```python
import torch

def _softmax(x, axis=-1):
    return torch.softmax(x, dim=axis)
def _gelu(x):
    return torch.nn.functional.gelu(x, approximate="tanh")
def _silu(x):
    return torch.nn.functional.silu(x)
def _sigmoid(x):
    return torch.sigmoid(x)
def _layernorm(x, axis=-1, eps=1e-5):
    m = x.mean(dim=axis, keepdim=True)
    v = x.var(dim=axis, keepdim=True, unbiased=False)
    return (x - m) / torch.sqrt(v + eps)
def _scatter_add(tgt, idx, src, axis=0):
    return tgt.clone().index_add_(axis, idx, src)
def _segment_sum(src, seg, n):
    out = torch.zeros((n,) + src.shape[1:], dtype=src.dtype)
    return out.index_add_(0, seg, src)
def _pad(x, pw):
    flat = tuple(v for pair in reversed(pw) for v in pair)
    return torch.nn.functional.pad(x, flat)

kernel_name = 'gated_mix__linear_attn_block__mixer_token_mlp__prompt'

def setup_inputs():

    _w = (lambda a: (lambda t: t.to(torch.bfloat16) if t.is_floating_point() else t)(torch.as_tensor(a)))
    def _A_setup():
        B, S, D = 1, 2048, 640
        return {
            "x": _w((lambda *s: torch.randn(*s, dtype=torch.bfloat16) * 0.05)(B, S, D)),
            "wqkv": _w((lambda *s: torch.randn(*s, dtype=torch.bfloat16) * 0.4)(D, 3 * D)),
            "wo": _w((lambda *s: torch.randn(*s, dtype=torch.bfloat16) * 0.05)(D, D)),
        }
    _A_in = _A_setup()

    def _B_setup():
        B, S, D, F = 1, 2048, 640, 1536
        return {
            "x": _w((lambda *s: torch.randn(*s, dtype=torch.bfloat16) * 0.05)(B, S, D)),
            "w1": _w((lambda *s: torch.randn(*s, dtype=torch.bfloat16) * 0.4)(S, F) * (S ** -0.5)),
            "b1": _w((lambda *s: torch.randn(*s, dtype=torch.bfloat16) * 3.2)(F) * 0.02),
            "w2": _w((lambda *s: torch.randn(*s, dtype=torch.bfloat16) * 0.05)(F, S) * (F ** -0.5)),
            "b2": _w((lambda *s: torch.randn(*s, dtype=torch.bfloat16) * 0.1)(S) * 0.02),
        }
    _B_in = _B_setup()

    return {
        "A_x": _A_in["x"],
        "A_wqkv": _A_in["wqkv"],
        "A_wo": _A_in["wo"],
        "B_x": _B_in["x"],
        "B_w1": _B_in["w1"],
        "B_b1": _B_in["b1"],
        "B_w2": _B_in["w2"],
        "B_b2": _B_in["b2"],
        "gate_w": _w((lambda *s: torch.randn(*s, dtype=torch.bfloat16) * 0.05)(640) * 16.0),
    }

def reference(A_x, A_wqkv, A_wo, B_x, B_w1, B_b1, B_w2, B_b2, gate_w):
    def _A_ref(x, wqkv, wo):
        B, S, D = x.shape
        H = 32; Dh = D // H
        qkv = (lambda x, *d: x.permute(*d))((x @ wqkv).reshape(B, S, 3, H, Dh), 2, 0, 3, 1, 4)
        q, k, v = qkv[0], qkv[1], qkv[2]
        phi = lambda t: torch.where(t > 0, t + 1, torch.exp(t)) + 1e-6
        pq, pk = phi(q), phi(k)
        kv = torch.einsum("bhsd,bhse->bhde", pk, v)
        z = torch.einsum("bhsd->bhd", pk)
        num = torch.einsum("bhqd,bhde->bhqe", pq, kv)
        den = torch.einsum("bhqd,bhd->bhq", pq, z)[..., None] + 1e-6
        o = num / den
        return (lambda x, *d: x.permute(*d))(o, 0, 2, 1, 3).reshape(B, S, D) @ wo

    def _B_ref(x, w1, b1, w2, b2):
        B, S, D = x.shape
        h = _layernorm(x, axis=-1)
        u = torch.einsum("bsd,sf->bdf", h, w1) + b1
        u = _gelu(u)
        y = torch.einsum("bdf,fs->bds", u, w2) + b2
        return (lambda x, *d: x.permute(*d))(y, 0, 2, 1)

    x = A_x
    g = _sigmoid((x * gate_w).sum(-1, keepdims=True))
    a = _A_ref(x, A_wqkv, A_wo)
    b = _B_ref(x, B_w1, B_b1, B_w2, B_b2)
    return g * a + (1 - g) * b
```

```python
import sys

KNAME = "gated_mix__linear_attn_block__mixer_token_mlp__prompt_kernel"

FS = 128
F_LN, F_KV, F_U, F_GO, F_WOT = 0x1000, 0x5000, 0x9000, 0xD000, 0x11000
G_OFF = 0x12000
STAMP = 0x14000
KVP = 0x20000
KVP_ST = 7168
HT = 0x100000
UW = 0x380000
UW_ST = 69632
GO = 0x640000
GO_ST = 20480
WS_USED = 0x8C0000
TAG_INC = 0x9E3779B9
SPIN_LIMIT = 1 << 17

LDS_BYTES = 163840
LNBUF = 131072
LN_ST = 1312
LNG = LNBUF + 16 * LN_ST
A_SLOT = 49152
A_WOFF = 16384
EXCH_ST = 14336
KVT = 147456
ZH = KVT + 11 * 1024

LOG2E = 0x3FB8AA3B


def f2u(x):
    import struct
    return struct.unpack("<I", struct.pack("<f", x))[0]


class Asm:
    def __init__(self):
        self.L = []
        self.nlab = 0

    def __call__(self, s):
        for line in s.split("\n"):
            line = line.strip()
            if line:
                self.L.append(("    " if not line.endswith(":") else "") + line)

    def label(self, base):
        self.nlab += 1
        return f"L{base}_{self.nlab}"

    def text(self):
        return "\n".join(self.L) + "\n"


def vr(a, n=1):
    return f"v{a}" if n == 1 else f"v[{a}:{a+n-1}]"


def sr(a, n=1):
    return f"s{a}" if n == 1 else f"s[{a}:{a+n-1}]"


P_X, P_WQKV, P_WO, P_BX, P_W1, P_B1, P_W2, P_B2 = 4, 6, 8, 10, 12, 14, 16, 18
P_GATE, P_OUT, P_DBG, P_WS = 20, 22, 24, 26
S_TAG, S_WAVE = 28, 29
S_XCD, S_J = 30, 31
R_WS, R_X, R_W, R_P, R_W2, R_M, R_OUT = 32, 36, 40, 44, 48, 52, 56
S_T0 = 60
S_MT, S_HG, S_DT, S_FT, S_KST, S_PAR = 70, 71, 72, 73, 74, 75
S_ST, S_DTILE = 76, 77
S_CNT = 78
S_A, S_B, S_C, S_D = 80, 81, 82, 83
S_MSK = 84
S_K0 = 90
S_STMP = 96


class Gen:
    def __init__(self, stamps=False, stop=None):
        self.a = Asm()
        self.stamps = stamps
        self.stop = stop

    def srd(self, dst, ptr, nbytes, off_s=None):
        a = self.a
        if off_s is None:
            a(f"s_mov_b32 s{dst}, s{ptr}\ns_and_b32 s{dst+1}, s{ptr+1}, 0xffff")
        else:
            a(f"s_add_u32 s{dst}, s{ptr}, s{off_s}\ns_addc_u32 s{dst+1}, s{ptr+1}, 0\ns_and_b32 s{dst+1}, s{dst+1}, 0xffff")
        a(f"s_mov_b32 s{dst+2}, {nbytes:#x}\ns_mov_b32 s{dst+3}, 0x20000")

    def stamp(self, k, vtmp):
        if not self.stamps:
            return
        a = self.a
        a(f"s_memrealtime s[{S_STMP}:{S_STMP+1}]\ns_waitcnt lgkmcnt(0)")
        a(f"s_lshl_b32 s{S_STMP+2}, s2, 7\ns_add_u32 s{S_STMP+2}, s{S_STMP+2}, {STAMP + 8*k}")
        a(f"v_mov_b32 v{vtmp}, s{S_STMP}\nv_mov_b32 v{vtmp+1}, s{S_STMP+1}\nv_mov_b32 v{vtmp+2}, 0")
        a(f"s_mov_b64 exec, 1\nbuffer_store_dwordx2 v[{vtmp}:{vtmp+1}], v{vtmp+2}, s[{R_WS}:{R_WS+3}], s{S_STMP+2} offen\ns_mov_b64 exec, -1")

    def poll(self, voffs, vtmp):
        a = self.a
        lp, dn = a.label("poll"), a.label("pdone")
        a(f"s_mov_b32 s{S_CNT}, 0\n{lp}:")
        for i, vo in enumerate(voffs):
            a(f"buffer_load_dword v{vtmp+i}, v{vo}, s[{R_WS}:{R_WS+3}], 0 offen sc1")
        a("s_waitcnt vmcnt(0)")
        a(f"v_cmp_ne_u32 vcc, s{S_TAG}, v{vtmp}")
        for i in range(1, len(voffs)):
            a(f"v_cmp_ne_u32 s[{S_T0}:{S_T0+1}], s{S_TAG}, v{vtmp+i}\ns_nop 1\ns_or_b64 vcc, vcc, s[{S_T0}:{S_T0+1}]")
        a(f"s_nop 1\ns_cmp_eq_u64 vcc, 0\ns_cbranch_scc1 {dn}")
        a(f"s_add_u32 s{S_CNT}, s{S_CNT}, 1\ns_cmp_lt_u32 s{S_CNT}, {SPIN_LIMIT}\ns_cbranch_scc0 {dn}\ns_sleep 1\ns_branch {lp}\n{dn}:")

    def flag_store(self, s_off, vtmp):
        a = self.a
        a(f"v_mov_b32 v{vtmp}, s{S_TAG}\nv_mov_b32 v{vtmp+1}, 0\ns_mov_b64 exec, 1")
        a(f"buffer_store_dword v{vtmp}, v{vtmp+1}, s[{R_WS}:{R_WS+3}], s{s_off} offen sc1\ns_mov_b64 exec, -1")

    def pipeline(self, stages, D, gstar, prologue=True, loop_label=None, loop_cond=None):
        a = self.a
        seq = []
        for si, st in enumerate(stages):
            for gi, u in enumerate(st["uses"]):
                seq.append((si, gi, u))
        issued = []
        nxt = 0
        opened = -1

        def issue_upto(lim):
            nonlocal nxt
            while nxt < len(seq) and nxt <= lim and seq[nxt][0] <= opened:
                for name, txt in seq[nxt][2]["reads"]:
                    a(txt)
                    issued.append(name)
                nxt += 1

        def open_stage(s):
            nonlocal opened
            a(stages[s]["bar"])
            opened = s

        if prologue:
            open_stage(0)
            issue_upto(D - 2)
        n_real = sum(len(st["uses"]) for st in stages if not st.get("virtual"))
        for f in range(n_real):
            si, gi, u = seq[f]
            if gi == 0 and stages[si].get("head"):
                a(stages[si]["head"])
            if gi == gstar and si + 1 < len(stages):
                a("s_waitcnt lgkmcnt(0)")
                issued.append("__drain")
                open_stage(si + 1)
                issue_upto(f + D - 1)
            issue_upto(f + D - 1)
            last = -1
            for nm in u["need"]:
                idx = len(issued) - 1 - issued[::-1].index(nm)
                last = max(last, idx)
            drain = (len(issued) - 1 - issued[::-1].index("__drain")) if "__drain" in issued else -1
            w = []
            if last > drain:
                n = sum(1 for x in issued[last + 1:] if x != "__drain")
                assert n <= 15, n
                if u.get("lastwait") != n or True:
                    w.append(f"lgkmcnt({n})")
            if u.get("vm") is not None:
                w.insert(0, f"vmcnt({u['vm']})")
            if w:
                a("s_waitcnt " + " ".join(w))
            if u.get("before"):
                a(u["before"])
            for m in u["mf"]:
                a(m)
            if u.get("after"):
                a(u["after"])
            if gi == len(stages[si]["uses"]) - 1 and stages[si].get("tail"):
                a(stages[si]["tail"])

    def prologue(self):
        a = self.a
        a(f"""
        s_cmp_ge_u32 s2, 256
        s_cbranch_scc1 L_end
        s_load_dwordx16 s[4:19], s[0:1], 0
        s_load_dwordx8 s[20:27], s[0:1], 64
        v_and_b32 v1, 63, v0
        v_lshrrev_b32 v2, 6, v0
        s_and_b32 s{S_XCD}, s2, 7
        v_readfirstlane_b32 s{S_WAVE}, v2
        s_lshr_b32 s{S_J}, s2, 3
        s_waitcnt lgkmcnt(0)
        s_load_dword s{S_TAG}, s[{P_WS}:{P_WS+1}], 0
        """)
        self.srd(R_WS, P_WS, WS_USED)
        self.srd(R_X, P_X, 2048 * 1280)
        if self.stamps:
            a(f"s_cmp_lg_u32 s{S_WAVE}, 0\ns_cbranch_scc1 L_nost0")
            self.stamp(0, 4)
            a("L_nost0:")
        a(f"""
        s_lshr_b32 s{S_T0}, s{S_XCD}, 1
        s_lshl_b32 s{S_T0}, s{S_T0}, 3
        s_lshr_b32 s{S_ST}, s{S_J}, 2
        s_add_u32 s{S_ST}, s{S_ST}, s{S_T0}
        s_and_b32 s{S_T0}, s{S_XCD}, 1
        s_lshl_b32 s{S_T0}, s{S_T0}, 2
        s_and_b32 s{S_DTILE}, s{S_J}, 3
        s_add_u32 s{S_DTILE}, s{S_DTILE}, s{S_T0}
        s_cmp_ge_u32 s{S_XCD}, 4
        s_cbranch_scc1 L_roleB
        """)

    V_W2 = 240

    def w2_setup(self):
        a = self.a
        V = self.V_W2
        self.srd(R_W2, P_W2, 1536 * 4096)
        a(f"""
        v_lshrrev_b32 v{V}, 3, v1
        v_lshrrev_b32 v{V+1}, 4, v1
        v_lshlrev_b32 v{V+1}, 1, v{V+1}
        v_and_b32 v{V+2}, 7, v1
        v_xor_b32 v{V+1}, v{V+1}, v{V+2}
        v_lshlrev_b32 v{V+1}, 4, v{V+1}
        v_lshl_add_u32 v{V}, v{V}, 12, v{V+1}
        v_add_u32 v{V+1}, {32768-1024}, v{V}
        v_add_u32 v{V+2}, {2*(32768-1024)}, v{V}
        v_add_u32 v{V+3}, {3*(32768-1024)}, v{V}
        s_sub_u32 s{S_T0}, s{S_WAVE}, 5
        s_lshl_b32 s{S_B}, s{S_T0}, 13
        s_lshl_b32 s{S_A}, s{S_T0}, 18
        s_lshl_b32 s{S_T0}, s{S_ST}, 7
        s_add_u32 s{S_A}, s{S_A}, s{S_T0}
        """)

    def w2_issue(self):
        a = self.a
        V = self.V_W2
        for g in range(2):
            a(f"s_add_u32 m0, s{S_B}, {g*4096}")
            a(f"s_add_u32 s{S_T0}, s{S_A}, {g*4*32768}")
            for i in range(4):
                a(f"buffer_load_dwordx4 v{V+i}, s[{R_W2}:{R_W2+3}], s{S_T0} offen offset:{i*1024} lds")
        a(f"s_add_u32 s{S_A}, s{S_A}, {128*4096}\ns_add_u32 s{S_B}, s{S_B}, 16384\ns_and_b32 s{S_B}, s{S_B}, 0x1ffff")

    def w2_prefill(self, n):
        a = self.a
        lp = a.label("pf")
        a(f"s_mov_b32 s{S_C}, 0\n{lp}:")
        self.w2_issue()
        a(f"s_add_u32 s{S_C}, s{S_C}, 1\ns_cmp_lt_u32 s{S_C}, {n}\ns_cbranch_scc1 {lp}")

    def if_wave56(self):
        a = self.a
        skip = a.label("n56")
        a(f"s_sub_u32 s{S_T0}, s{S_WAVE}, 5\ns_cmp_lt_u32 s{S_T0}, 2\ns_cbranch_scc0 {skip}")
        return skip

    def role_a(self):
        a = self.a
        a("L_roleA:")
        a(f"s_mov_b32 s{S_MT}, s{S_ST}\ns_mov_b32 s{S_HG}, s{S_DTILE}")
        a(f"s_cmp_ge_u32 s{S_WAVE}, 4\ns_cbranch_scc1 L_A_loader")
        ACC, XF, WF, VXA, VWA = 128, 96, 64, 4, 6
        self.a_thread_map()
        a(f"""
        v_and_b32 v16, 15, v1
        v_lshrrev_b32 v17, 4, v1
        s_lshl_b32 s{S_T0}, s{S_WAVE}, 5
        v_add_u32 v18, s{S_T0}, v16
        v_lshrrev_b32 v19, 1, v16
        v_xor_b32 v19, v17, v19
        v_lshlrev_b32 v19, 4, v19
        v_lshl_add_u32 v{VXA}, v18, 7, v19
        v_xor_b32 v{VXA+1}, 64, v{VXA}
        v_lshrrev_b32 v18, 2, v16
        v_lshl_add_u32 v19, v17, 3, v18
        v_and_b32 v20, 1, v17
        v_lshl_or_b32 v20, v20, 2, v18
        v_lshlrev_b32 v19, 9, v19
        v_lshl_add_u32 v19, v20, 5, v19
        v_and_b32 v20, 3, v16
        v_lshl_add_u32 v19, v20, 3, v19
        v_add_u32 v{VWA}, {A_WOFF}, v19
        """)
        for n in range(1, 8):
            a(f"v_xor_b32 v{VWA+n}, {n<<5}, v{VWA}")
        for r in range(120):
            a(f"v_mov_b32 v{ACC+r}, 0")
        a(f"s_mov_b32 s{S_A}, 0\ns_mov_b32 s{S_B}, 0\ns_mov_b32 s{S_C}, {A_SLOT}\ns_waitcnt lgkmcnt(0)")
        a(f"s_add_u32 s{S_TAG}, s{S_TAG}, {TAG_INC:#x}")

        RING = 6
        D = 6

        def mk_stage(bar, virtual=False, head=None, tail=None):
            uses = []
            for g in range(30):
                ks, n = divmod(g, 15)
                wb = WF + 4 * (g % RING)
                reads = []
                if g == 0:
                    for rb in range(2):
                        reads.append((f"x0{rb}", f"ds_read_b128 {vr(XF+4*rb,4)}, v{VXA} offset:{rb*2048}"))
                if g == 13:
                    for rb in range(2):
                        reads.append((f"x1{rb}", f"ds_read_b128 {vr(XF+8+4*rb,4)}, v{VXA+1} offset:{rb*2048}"))
                off = ks * 16384 + (n >> 3) * 256
                reads.append((f"w{g}a", f"ds_read_b64_tr_b16 {vr(wb,2)}, v{VWA+(n&7)} offset:{off}"))
                reads.append((f"w{g}b", f"ds_read_b64_tr_b16 {vr(wb+2,2)}, v{VWA+(n&7)} offset:{off+2048}"))
                need = [f"w{g}b", f"x{ks}1"]
                mf = []
                for rb in range(2):
                    acc = vr(ACC + (n * 2 + rb) * 4, 4)
                    xf = vr(XF + ks * 8 + rb * 4, 4)
                    wf = vr(wb, 4)
                    if n < 5:
                        mf.append(f"v_mfma_f32_16x16x32_bf16 {acc}, {wf}, {xf}, {acc}")
                    else:
                        mf.append(f"v_mfma_f32_16x16x32_bf16 {acc}, {xf}, {wf}, {acc}")
                uses.append(dict(reads=reads, need=need, mf=mf))
            return dict(uses=uses, bar=bar, virtual=virtual, head=head, tail=tail)

        adv = f"""s_barrier
        s_add_u32 s{S_B}, s{S_B}, 1
        s_cmp_eq_u32 s{S_B}, 3
        s_cselect_b32 s{S_B}, 0, s{S_B}
        s_cselect_b32 s{S_T0}, {(-2*A_SLOT) & 0xffffffff:#x}, s{S_C}
        """ + "\n".join(f"v_add_u32 v{r}, s{S_T0}, v{r}" for r in range(VXA, VWA + 8))
        tail = f"s_add_u32 s{S_A}, s{S_A}, 1\ns_cmp_lt_u32 s{S_A}, 10\ns_cbranch_scc1 L_A_loop"
        self.pipeline([mk_stage("s_barrier", head="L_A_loop:", tail=tail), mk_stage(adv, virtual=True)], D, 30 - 3)
        self.stamp(2, 16)
        PK, VV, ONES, KVD, ZD = 16, 36, 56, 64, 116
        a("s_waitcnt lgkmcnt(0)\ns_nop 7")
        a(f"s_mov_b32 s{S_K0}, {LOG2E:#x}\ns_mov_b32 s{S_K0+1}, {LOG2E:#x}\ns_mov_b32 s{S_K0+2}, {f2u(1e-6):#x}")

        def phi(base, n, t):
            for i in range(0, n, 4):
                r = base + i
                a(f"v_pk_mul_f32 {vr(t,2)}, {vr(r,2)}, s[{S_K0}:{S_K0+1}]")
                a(f"v_pk_mul_f32 {vr(t+2,2)}, {vr(r+2,2)}, s[{S_K0}:{S_K0+1}]")
                for k in range(4):
                    a(f"v_exp_f32_e64 v{t+k}, v{t+k} clamp")
                for k in range(4):
                    a(f"v_max_f32 v{r+k}, s{S_K0+2}, v{r+k}")
                a(f"v_pk_add_f32 {vr(r,2)}, {vr(r,2)}, {vr(t,2)}")
                a(f"v_pk_add_f32 {vr(r+2,2)}, {vr(r+2,2)}, {vr(t+2,2)}")

        def pack(dst, src0, src1):
            a(f"v_cvt_pk_bf16_f32 v{dst}, v{src0}, v{src0+1}\nv_cvt_pk_bf16_f32 v{dst+1}, v{src0+2}, v{src0+3}")
            if src1 is None:
                a(f"v_mov_b32 v{dst+2}, 0\nv_mov_b32 v{dst+3}, 0")
            else:
                a(f"v_cvt_pk_bf16_f32 v{dst+2}, v{src1}, v{src1+1}\nv_cvt_pk_bf16_f32 v{dst+3}, v{src1+2}, v{src1+3}")

        for b in range(5):
            pack(VV + 4 * b, ACC + (10 + b) * 8, ACC + (10 + b) * 8 + 4)
        for k in range(4):
            a(f"v_mov_b32 v{ONES+k}, 0x3f803f80")
        phi(ACC + 40, 40, 60)
        for b in range(5):
            pack(PK + 4 * b, ACC + (5 + b) * 8, ACC + (5 + b) * 8 + 4)
        a("s_nop 1")
        ZD = ACC + 80
        blocks = [(x, y) for x in range(5) for y in range(5) if abs(x - y) <= 1]
        for (x, y) in blocks:
            a(f"v_mfma_f32_16x16x32_bf16 {vr(KVD+4*(2*x+y),4)}, {vr(PK+4*x,4)}, {vr(VV+4*y,4)}, 0")
        for x in range(5):
            a(f"v_mfma_f32_16x16x32_bf16 {vr(ZD+4*x,4)}, {vr(ONES,4)}, {vr(PK+4*x,4)}, 0")
        a(f"""
        s_mul_i32 s{S_T0}, s{S_WAVE}, {EXCH_ST}
        v_lshlrev_b32 v60, 4, v1
        v_add_u32 v60, s{S_T0}, v60
        v_and_b32 v61, 15, v1
        v_lshlrev_b32 v61, 2, v61
        v_add_u32 v61, s{S_T0}, v61
        s_nop 3
        """)
        for i in range(13):
            a(f"ds_write_b128 v60, {vr(KVD+4*i,4)} offset:{i*1024}")
        for x in range(5):
            a(f"ds_write_b32 v61, v{ZD+4*x} offset:{13312+64*x}")
        a("s_waitcnt lgkmcnt(0)\ns_barrier")
        self.a_reduce_publish(64)
        PQ = 16
        phi(ACC, 40, 60)
        for ts in range(3):
            for rb in range(2):
                pack(PQ + (ts * 2 + rb) * 4, ACC + (2 * ts * 2 + rb) * 4, None if ts == 2 else ACC + ((2 * ts + 1) * 2 + rb) * 4)
        a("s_waitcnt vmcnt(0)\ns_barrier")
        a("s_barrier")
        a(f"""
        v_and_b32 v63, 15, v1
        v_lshlrev_b32 v63, 2, v63
        s_lshl_b32 s{S_T0}, s{S_MT}, 7
        s_lshl_b32 s{S_T0+1}, s{S_WAVE}, 5
        s_add_u32 s{S_T0}, s{S_T0}, s{S_T0+1}
        s_lshl_b32 s{S_T0}, s{S_T0}, 2
        s_add_u32 s{S_T0}, s{S_T0}, {G_OFF}
        buffer_load_dword v62, v63, s[{R_WS}:{R_WS+3}], s{S_T0} offen sc1
        buffer_load_dword v61, v63, s[{R_WS}:{R_WS+3}], s{S_T0} offen offset:64 sc1
        """)
        self.a_gather(64, 0)
        a("s_waitcnt lgkmcnt(0)\ns_barrier")
        self.stamp(4, 40)
        FR = 64
        a("v_lshlrev_b32 v60, 4, v1\nv_add_u32 v60, " + str(KVT) + ", v60")
        used = [0, 2, 3, 4, 5, 7, 8, 9, 10, 11, 12, 13]
        for f in used:
            a(f"ds_read_b128 {vr(FR+4*f,4)}, v60 offset:{f*1024}")
        NUM, DEN = 128, 168
        kts = {0: [0], 1: [0, 1], 2: [0, 1], 3: [1, 2], 4: [1, 2]}
        a(f"""
        v_lshrrev_b32 v40, 4, v1
        v_cmp_gt_u32 s[{S_MSK}:{S_MSK+1}], 1, v40
        v_cmp_gt_u32 s[{S_MSK+2}:{S_MSK+3}], 2, v40
        v_cmp_gt_u32 s[{S_MSK+4}:{S_MSK+5}], 3, v40
        s_waitcnt lgkmcnt(0)
        """)
        for rb in range(2):
            for ts in range(3):
                c = "0" if ts == 0 else vr(DEN + 4 * rb, 4)
                a(f"v_mfma_f32_16x16x32_bf16 {vr(DEN+4*rb,4)}, {vr(FR+4*(11+ts),4)}, {vr(PQ+(ts*2+rb)*4,4)}, {c}")
        for rb in range(2):
            for b in range(5):
                for i, ts in enumerate(kts[b]):
                    d = vr(NUM + (rb * 5 + b) * 4, 4)
                    c = "0" if i == 0 else d
                    a(f"v_mfma_f32_16x16x32_bf16 {d}, {vr(FR+4*(2*b+ts),4)}, {vr(PQ+(ts*2+rb)*4,4)}, {c}")
        for rb in range(2):
            for h in range(4):
                a(f"v_add_f32 v{DEN+4*rb+h}, s{S_K0+2}, v{DEN+4*rb+h}")
        for rb in range(2):
            for h in range(4):
                a(f"v_rcp_f32 v{DEN+4*rb+h}, v{DEN+4*rb+h}")
        a("s_waitcnt vmcnt(0)")
        gv = {0: 62, 1: 61}
        for rb in range(2):
            for h in range(4):
                a(f"v_mul_f32 v{DEN+4*rb+h}, v{gv[rb]}, v{DEN+4*rb+h}")
        a(f"""
        s_lshl_b32 s{S_T0}, s{S_MT}, 3
        s_lshl_b32 s{S_T0+1}, s{S_WAVE}, 1
        s_add_u32 s{S_T0}, s{S_T0}, s{S_T0+1}
        s_mul_i32 s{S_T0}, s{S_T0}, {GO_ST}
        s_add_u32 s{S_T0}, s{S_T0}, {GO}
        s_lshl_b32 s{S_T0+1}, s{S_HG}, 11
        s_add_u32 s{S_T0+1}, s{S_T0+1}, s{S_T0}
        s_lshl_b32 s{S_T0+2}, s{S_HG}, 9
        s_add_u32 s{S_T0+2}, s{S_T0+2}, s{S_T0}
        s_add_u32 s{S_T0+2}, s{S_T0+2}, 16384
        v_lshlrev_b32 v40, 4, v1
        v_lshlrev_b32 v41, 3, v1
        """)
        for rb in range(2):
            d = DEN + 4 * rb
            a(f"v_cndmask_b32 v44, v{d+1}, v{d}, s[{S_MSK}:{S_MSK+1}]")
            a(f"v_cndmask_b32 v45, v{d+2}, v{d+1}, s[{S_MSK+2}:{S_MSK+3}]")
            a(f"v_cndmask_b32 v46, v{d+3}, v{d+2}, s[{S_MSK+4}:{S_MSK+5}]")
            sc = [d, 44, 45, 46, d + 3]
            for b in range(5):
                for k in range(4):
                    r = NUM + (rb * 5 + b) * 4 + k
                    a(f"v_mul_f32 v{r}, v{sc[b]}, v{r}")
            o = 176 + rb * 12
            n0 = NUM + rb * 20
            pack(o, n0, n0 + 4)
            pack(o + 4, n0 + 8, n0 + 12)
            a(f"v_cvt_pk_bf16_f32 v{o+8}, v{n0+16}, v{n0+17}\nv_cvt_pk_bf16_f32 v{o+9}, v{n0+18}, v{n0+19}")
            a(f"buffer_store_dwordx4 {vr(o,4)}, v40, s[{R_WS}:{R_WS+3}], s{S_T0+1} offen sc1")
            a(f"buffer_store_dwordx4 {vr(o+4,4)}, v40, s[{R_WS}:{R_WS+3}], s{S_T0+1} offen offset:1024 sc1")
            a(f"buffer_store_dwordx2 {vr(o+8,2)}, v41, s[{R_WS}:{R_WS+3}], s{S_T0+2} offen sc1")
            if rb == 0:
                a(f"s_add_u32 s{S_T0+1}, s{S_T0+1}, {GO_ST}\ns_add_u32 s{S_T0+2}, s{S_T0+2}, {GO_ST}")
        a("s_waitcnt vmcnt(0)\ns_barrier")
        a("s_branch L_F_comp")

        a("L_A_loader:")
        VX, VW = 4, 8
        self.srd(R_W, P_WQKV, 640 * 3840)
        a(f"""
        s_sub_u32 s{S_D}, s{S_WAVE}, 4
        v_lshrrev_b32 v16, 3, v1
        v_lshrrev_b32 v17, 4, v1
        v_and_b32 v18, 7, v1
        v_xor_b32 v17, v17, v18
        v_lshlrev_b32 v17, 4, v17
        v_mul_u32_u24 v16, 1280, v16
        v_add_u32 v{VX}, v16, v17
        v_xor_b32 v18, 64, v{VX}
        v_add_u32 v{VX+1}, {8*1280-1024}, v18
        v_add_u32 v{VX+2}, {2*(8*1280-1024)}, v{VX}
        v_add_u32 v{VX+3}, {3*(8*1280-1024)}, v18
        s_lshl_b32 s{S_T0}, s{S_MT}, 7
        s_lshl_b32 s{S_T0+1}, s{S_D}, 5
        s_add_u32 s{S_T0}, s{S_T0}, s{S_T0+1}
        s_mul_i32 s{S_A}, s{S_T0}, 1280
        s_lshl_b32 s{S_C}, s{S_D}, 12
        """)
        def issue_x():
            a(f"s_mov_b32 m0, s{S_C}\ns_nop 0")
            for i in range(4):
                a(f"buffer_load_dwordx4 v{VX+i}, s[{R_X}:{R_X+3}], s{S_A} offen offset:{i*1024} lds")
            a(f"s_add_u32 s{S_A}, s{S_A}, 128")

        def issue_w():
            for g in range(2):
                a(f"s_lshl_b32 s{S_T0}, s{S_D}, 12\ns_add_u32 s{S_T0}, s{S_T0}, s{S_C}\ns_add_u32 m0, s{S_T0}, {A_WOFF + g*4096}\ns_nop 0")
                for i in range(4):
                    a(f"buffer_load_dwordx4 v{VW+4*g+i}, s[{R_W}:{R_W+3}], s{S_B} offen offset:{i*1024} lds")
            a(f"s_add_u32 s{S_B}, s{S_B}, {64*3840}")

        def next_slot():
            a(f"s_add_u32 s{S_C}, s{S_C}, {A_SLOT}\ns_cmp_ge_u32 s{S_C}, {3*A_SLOT}\ns_cselect_b32 s{S_T0}, {3*A_SLOT}, 0\ns_sub_u32 s{S_C}, s{S_C}, s{S_T0}")

        issue_x()
        a(f"""
        v_lshrrev_b32 v16, 5, v1
        v_bfe_u32 v17, v1, 1, 4
        v_and_b32 v18, 1, v1
        v_lshlrev_b32 v18, 4, v18
        v_mul_u32_u24 v19, 3840, v16
        v_add_u32 v18, v18, v19
        """)
        for i in (0, 1, 4, 5):
            sig = (2 * (i & 1)) | ((i >> 2) << 2)
            a(f"""
            v_or_b32 v19, {sig}, v16
            v_xor_b32 v19, v17, v19
            v_min_u32 v19, 14, v19
            v_mul_u32_u24 v20, 13, v19
            v_lshrrev_b32 v20, 6, v20
            v_mul_u32_u24 v20, 1120, v20
            v_lshl_add_u32 v19, v19, 5, v20
            v_add_u32 v19, v19, v18
            v_add_u32 v{VW+i}, {2*i*3840 - (i&3)*1024}, v19
            v_add_u32 v{VW+i+2}, {2*(i+2)*3840 - ((i+2)&3)*1024}, v19
            """)
        a(f"""
        s_mul_i32 s{S_B}, s{S_HG}, 160
        s_mul_i32 s{S_T0}, s{S_D}, {16*3840}
        s_add_u32 s{S_B}, s{S_B}, s{S_T0}
        """)
        issue_w()
        for _ in range(2):
            next_slot()
            issue_x()
            issue_w()
        a(f"v_lshlrev_b32 v16, 4, v1\ns_lshl_b32 s{S_T0}, s{S_D}, 12\ns_add_u32 s{S_T0}, s{S_T0}, {KVT}\nv_add_u32 v16, s{S_T0}, v16")
        a("v_mov_b32 v20, 0\nv_mov_b32 v21, 0\nv_mov_b32 v22, 0\nv_mov_b32 v23, 0")
        for i in range(4):
            a(f"ds_write_b128 v16, v[20:23] offset:{i*1024}")
        self.a_thread_map()
        a(f"s_waitcnt lgkmcnt(0)\ns_add_u32 s{S_TAG}, s{S_TAG}, {TAG_INC:#x}")
        a("s_waitcnt vmcnt(24)\ns_barrier")
        self.stamp(1, 16)
        a(f"s_mov_b32 s{S_CNT}, 1\nL_A_lloop:")
        a("s_waitcnt vmcnt(12)\ns_barrier")
        next_slot()
        issue_x()
        issue_w()
        a(f"s_add_u32 s{S_CNT}, s{S_CNT}, 1\ns_cmp_le_u32 s{S_CNT}, 7\ns_cbranch_scc1 L_A_lloop")
        a("s_waitcnt vmcnt(12)\ns_barrier\ns_waitcnt vmcnt(0)\ns_barrier\ns_barrier")
        a("s_barrier")
        a(f"s_cmp_eq_u32 s{S_WAVE}, 7\ns_cbranch_scc1 L_A_poller")
        self.a_reduce_publish(64)
        a("s_waitcnt vmcnt(0)\ns_barrier\ns_barrier")
        skip = self.if_wave56()
        self.a_gather(64, 56, prefill=True)
        a("s_waitcnt lgkmcnt(0)\ns_barrier\ns_barrier\ns_branch L_F_loader")
        a(f"{skip}:")
        self.a_gather(64, 0)
        a("s_waitcnt lgkmcnt(0)\ns_barrier\ns_barrier")
        a("s_branch L_F_comp")
        a("L_A_poller:\ns_barrier")
        a(f"s_lshl_b32 s{S_T0}, s{S_HG}, 4\ns_add_u32 s{S_T0}, s{S_T0}, s{S_MT}\ns_mul_i32 s{S_T0}, s{S_T0}, {FS}\ns_add_u32 s{S_T0}, s{S_T0}, {F_KV}")
        self.flag_store(S_T0, 16)
        self.stamp(3, 16)
        a(f"""
        v_and_b32 v16, 15, v1
        s_lshl_b32 s{S_T0}, s{S_HG}, 4
        v_add_u32 v16, s{S_T0}, v16
        v_mul_u32_u24 v16, {FS}, v16
        v_add_u32 v16, {F_KV}, v16
        v_and_b32 v17, 7, v1
        s_lshl_b32 s{S_T0}, s{S_MT}, 3
        v_add_u32 v17, s{S_T0}, v17
        v_mul_u32_u24 v17, {FS}, v17
        v_add_u32 v17, {F_LN}, v17
        v_cmp_gt_u32 vcc, 32, v1
        s_nop 1
        v_cndmask_b32 v16, v17, v16, vcc
        """)
        self.poll([16], 18)
        a("s_barrier\ns_barrier\ns_barrier")
        a(f"s_lshl_b32 s{S_T0}, s{S_MT}, 3\ns_add_u32 s{S_T0}, s{S_T0}, s{S_HG}\ns_mul_i32 s{S_T0}, s{S_T0}, {FS}\ns_add_u32 s{S_T0}, s{S_T0}, {F_GO}")
        self.flag_store(S_T0, 16)
        self.stamp(5, 16)
        a("s_branch L_F_poller")

    def a_thread_map(self):
        a = self.a
        a(f"""
        v_mul_u32_u24 v16, 625, v0
        v_lshrrev_b32 v16, 16, v16
        v_mul_u32_u24 v17, 105, v16
        v_sub_u32 v17, v0, v17
        v_mul_u32_u24 v18, 205, v17
        v_lshrrev_b32 v18, 10, v18
        v_mul_u32_u24 v19, 5, v18
        v_sub_u32 v19, v17, v19
        v_mad_u32_u24 v19, v16, 5, v19
        v_mad_u32_u24 v20, v16, 20, v18
        v_lshrrev_b32 v21, 2, v19
        v_and_b32 v22, 3, v19
        v_lshrrev_b32 v23, 4, v20
        v_and_b32 v20, 15, v20
        v_lshl_add_u32 v20, v22, 4, v20
        v_lshl_add_u32 v2, v21, 1, v23
        v_lshlrev_b32 v2, 6, v2
        v_add_u32 v2, v2, v20
        v_lshlrev_b32 v2, 4, v2
        v_lshlrev_b32 v3, 4, v19
        v_add_u32 v3, 13312, v3
        v_cmp_lt_u32 vcc, 99, v17
        v_lshrrev_b32 v24, 1, v21
        v_and_b32 v21, 1, v21
        v_cndmask_b32 v2, v2, v3, vcc
        v_lshl_add_u32 v3, v23, 1, v24
        v_add_u32 v24, 11, v24
        v_lshl_add_u32 v22, v22, 4, v16
        v_cndmask_b32 v3, v3, v24, vcc
        v_cndmask_b32 v20, v20, v22, vcc
        v_lshl_add_u32 v3, v3, 6, v20
        v_lshlrev_b32 v3, 4, v3
        v_lshl_add_u32 v3, v21, 3, v3
        v_add_u32 v249, {KVT}, v3
        v_mov_b32 v25, 2
        v_cndmask_b32 v25, 1, v25, vcc
        v_mov_b32 v16, 420
        v_cmp_gt_u32 vcc, v16, v0
        v_lshlrev_b32 v250, 4, v0
        s_nop 0
        v_cndmask_b32 v251, 0, v25, vcc
        v_cndmask_b32 v248, 0, v2, vcc
        """)

    def a_reduce_publish(self, T):
        a = self.a
        for w in range(4):
            a(f"ds_read_b128 {vr(T+4*w,4)}, v248 offset:{w*EXCH_ST}")
        a(f"""
        s_lshl_b32 s{S_T0}, s{S_HG}, 4
        s_add_u32 s{S_T0}, s{S_T0}, s{S_MT}
        s_mul_i32 s{S_T0}, s{S_T0}, {KVP_ST}
        s_add_u32 s{S_T0}, s{S_T0}, {KVP}
        v_cmp_ne_u32 vcc, 0, v251
        s_waitcnt lgkmcnt(0)
        v_pk_add_f32 {vr(T,2)}, {vr(T,2)}, {vr(T+4,2)}
        v_pk_add_f32 {vr(T+2,2)}, {vr(T+2,2)}, {vr(T+6,2)}
        v_pk_add_f32 {vr(T+8,2)}, {vr(T+8,2)}, {vr(T+12,2)}
        v_pk_add_f32 {vr(T+10,2)}, {vr(T+10,2)}, {vr(T+14,2)}
        v_pk_add_f32 {vr(T,2)}, {vr(T,2)}, {vr(T+8,2)}
        v_pk_add_f32 {vr(T+2,2)}, {vr(T+2,2)}, {vr(T+10,2)}
        s_mov_b64 exec, vcc
        buffer_store_dwordx4 {vr(T,4)}, v250, s[{R_WS}:{R_WS+3}], s{S_T0} offen sc1
        s_mov_b64 exec, -1
        """)

    def a_gather(self, T, vm_after, prefill=False):
        a = self.a
        a(f"s_mul_i32 s{S_T0}, s{S_HG}, {16*KVP_ST}\ns_add_u32 s{S_T0}, s{S_T0}, {KVP}")
        a("v_cmp_ne_u32 vcc, 0, v251\ns_nop 1\ns_mov_b64 exec, vcc")
        for m in range(16):
            a(f"buffer_load_dwordx4 {vr(T+4*m,4)}, v250, s[{R_WS}:{R_WS+3}], s{S_T0} offen sc1")
            if m < 15:
                a(f"s_add_u32 s{S_T0}, s{S_T0}, {KVP_ST}")
        a("s_mov_b64 exec, -1")
        if prefill:
            self.w2_setup()
            self.w2_prefill(5)
            vm_after = 40
        for st in (8, 4, 2, 1):
            if st == 8:
                a(f"s_waitcnt vmcnt({vm_after})")
            for m in range(st):
                for h in (0, 2):
                    a(f"v_pk_add_f32 {vr(T+4*m+h,2)}, {vr(T+4*m+h,2)}, {vr(T+4*(m+st)+h,2)}")
        a(f"""
        v_cvt_pk_bf16_f32 v{T}, v{T}, v{T+1}
        v_cvt_pk_bf16_f32 v{T+1}, v{T+2}, v{T+3}
        v_cmp_ne_u32 vcc, 0, v251
        v_cmp_eq_u32 s[{S_T0}:{S_T0+1}], 2, v251
        s_nop 1
        s_mov_b64 exec, vcc
        ds_write_b64 v249, {vr(T,2)}
        s_mov_b64 exec, s[{S_T0}:{S_T0+1}]
        ds_write_b64 v249, {vr(T,2)} offset:64
        ds_write_b64 v249, {vr(T,2)} offset:128
        ds_write_b64 v249, {vr(T,2)} offset:192
        s_mov_b64 exec, -1
        """)
        if prefill:
            self.w2_prefill(3)

    def role_b(self):
        a = self.a
        a("L_roleB:")
        XR, GR, B1R = 16, 26, 36
        a(f"""
        s_sub_u32 s{S_T0}, s{S_XCD}, 4
        s_lshl_b32 s{S_T0+1}, s{S_T0}, 5
        s_add_u32 s{S_T0+1}, s{S_T0+1}, s{S_J}
        s_lshr_b32 s{S_KST}, s{S_T0+1}, 1
        s_and_b32 s{S_PAR}, s{S_T0+1}, 1
        s_mul_i32 s{S_FT}, s{S_J}, 205
        s_lshr_b32 s{S_FT}, s{S_FT}, 10
        s_mul_i32 s{S_DT}, s{S_FT}, 5
        s_sub_u32 s{S_DT}, s{S_J}, s{S_DT}
        s_mul_i32 s{S_T0}, s{S_T0}, 6
        s_add_u32 s{S_FT}, s{S_FT}, s{S_T0}
        s_lshl_b32 s{S_T0}, s{S_KST}, 5
        s_lshl_b32 s{S_T0+1}, s{S_PAR}, 3
        s_add_u32 s{S_T0}, s{S_T0}, s{S_T0+1}
        s_and_b32 s{S_T0+1}, s{S_WAVE}, 3
        s_lshl_b32 s{S_T0+1}, s{S_T0+1}, 1
        s_add_u32 s{S_T0}, s{S_T0}, s{S_T0+1}
        s_lshr_b32 s{S_T0+1}, s{S_WAVE}, 2
        s_lshl_b32 s{S_T0+1}, s{S_T0+1}, 4
        s_add_u32 s{S_T0}, s{S_T0}, s{S_T0+1}
        s_mul_i32 s{S_T0}, s{S_T0}, 1280
        v_lshrrev_b32 v2, 5, v1
        v_and_b32 v3, 31, v1
        v_lshlrev_b32 v3, 3, v3
        v_mad_u32_u24 v4, v2, s{S_T0+2}, v3
        """.replace(f"v_mad_u32_u24 v4, v2, s{S_T0+2}, v3", "v_mul_u32_u24 v4, 1280, v2\nv_add_u32 v4, v4, v3"))
        for c in range(5):
            a(f"buffer_load_dwordx2 {vr(XR+2*c,2)}, v4, s[{R_X}:{R_X+3}], s{S_T0} offen offset:{c*256}")
        self.srd(R_M, P_GATE, 1280)
        for c in range(5):
            a(f"buffer_load_dwordx2 {vr(GR+2*c,2)}, v3, s[{R_M}:{R_M+3}], 0 offen offset:{c*256}")
        self.srd(R_OUT, P_B1, 3072)
        a(f"v_lshrrev_b32 v5, 4, v1\nv_lshlrev_b32 v5, 3, v5\ns_lshl_b32 s{S_T0}, s{S_FT}, 7")
        for b in range(4):
            a(f"buffer_load_dwordx2 {vr(B1R+2*b,2)}, v5, s[{R_OUT}:{R_OUT+3}], s{S_T0} offen offset:{b*32}")
        VS0, VS1, VPF = 6, 7, 8
        self.srd(R_W, P_W1, 2048 * 3072)
        a(f"""
        v_lshrrev_b32 v12, 3, v1
        v_lshrrev_b32 v13, 4, v1
        v_lshlrev_b32 v13, 1, v13
        v_and_b32 v14, 7, v1
        v_xor_b32 v13, v13, v14
        v_lshlrev_b32 v13, 4, v13
        v_mul_u32_u24 v12, 3072, v12
        v_add_u32 v{VPF}, v12, v13
        s_mul_i32 s{S_T0}, s{S_WAVE}, {16*3072}
        v_add_u32 v{VS0}, s{S_T0}, v{VPF}
        v_add_u32 v{VS1}, {8*3072-1024}, v{VS0}
        s_cmp_lt_u32 s{S_WAVE}, 4
        s_cbranch_scc1 L_B_nopf
        s_cmp_ge_u32 s{S_J}, 30
        s_cbranch_scc1 L_B_nopf
        v_add_u32 v{VPF+1}, {8*3072-1024}, v{VPF}
        v_add_u32 v{VPF+2}, {2*(8*3072-1024)}, v{VPF}
        v_add_u32 v{VPF+3}, {3*(8*3072-1024)}, v{VPF}
        s_sub_u32 s{S_T0}, s{S_WAVE}, 4
        s_lshl_b32 s{S_B}, s{S_T0}, 12
        s_mul_i32 s{S_A}, s{S_T0}, {32*3072}
        s_lshl_b32 s{S_T0}, s{S_FT}, 7
        s_add_u32 s{S_A}, s{S_A}, s{S_T0}
        L_B_pf:
        s_mov_b32 m0, s{S_B}
        s_add_u32 s{S_B}, s{S_B}, 16384
        """)
        for i in range(4):
            a(f"buffer_load_dwordx4 v{VPF+i}, s[{R_W}:{R_W+3}], s{S_A} offen offset:{i*1024} lds")
        a(f"""
        s_add_u32 s{S_A}, s{S_A}, {128*3072}
        s_cmp_lt_u32 s{S_B}, 0x20000
        s_cbranch_scc1 L_B_pf
        s_waitcnt vmcnt(36)
        s_branch L_B_ln
        L_B_nopf:
        s_waitcnt vmcnt(4)
        L_B_ln:
        """)
        XS = 44
        a("v_mov_b32 v64, 0\nv_mov_b32 v65, 0\nv_mov_b32 v66, 0x3f803f80")
        for c in range(10):
            a(f"v_dot2c_f32_bf16 v65, v{XR+c}, v{GR+c}")
        for c in range(10):
            a(f"v_dot2c_f32_bf16 v64, v{XR+c}, v66")
        for c in range(10):
            a(f"v_lshlrev_b32 v{XS+2*c}, 16, v{XR+c}\nv_and_b32 v{XS+2*c+1}, 0xffff0000, v{XR+c}")

        def reduce32(regs, t):
            for mode in ("quad_perm:[1,0,3,2]", "quad_perm:[2,3,0,1]", "row_half_mirror", "row_mirror"):
                for r in regs:
                    a(f"v_add_f32_dpp v{r}, v{r}, v{r} {mode} row_mask:0xf bank_mask:0xf")
                a("s_nop 1" if len(regs) == 1 else "s_nop 0")
            for i, r in enumerate(regs):
                a(f"v_mov_b32 v{t+i}, v{r}")
            a("s_nop 1")
            for i, r in enumerate(regs):
                a(f"v_permlane16_swap_b32 v{r}, v{t+i}")
            a("s_nop 1")
            for i, r in enumerate(regs):
                a(f"v_add_f32 v{r}, v{r}, v{t+i}")

        reduce32([64, 65], 66)
        a(f"v_mul_f32 v64, {f2u(-1.0/640):#x}, v64\nv_mul_f32 v65, {f2u(-1.4426950408889634):#x}, v65\nv_mov_b32 v67, 0\nv_mov_b32 v66, 0")
        a("v_exp_f32 v65, v65")
        for c in range(20):
            a(f"v_add_f32 v{XS+c}, v64, v{XS+c}")
        a("v_add_f32 v65, 1.0, v65\nv_rcp_f32 v65, v65")
        for c in range(0, 20, 2):
            a(f"v_fmac_f32 v66, v{XS+c}, v{XS+c}\nv_fmac_f32 v67, v{XS+c+1}, v{XS+c+1}")
        a("v_add_f32 v66, v66, v67\ns_nop 1")
        reduce32([66], 67)
        a(f"v_mov_b32 v67, {f2u(1e-5):#x}\nv_fmac_f32 v67, {f2u(1.0/640):#x}, v66\nv_rsq_f32 v67, v67\ns_nop 0")
        for c in range(20):
            a(f"v_mul_f32 v{XS+c}, v67, v{XS+c}")
        for c in range(10):
            a(f"v_cvt_pk_bf16_f32 v{XR+c}, v{XS+2*c}, v{XS+2*c+1}")
        a(f"""
        s_lshl_b32 s{S_T0}, s{S_WAVE}, 1
        v_add_u32 v2, s{S_T0}, v2
        v_mul_u32_u24 v4, {LN_ST}, v2
        v_add_u32 v4, v4, v3
        v_add_u32 v4, {LNBUF}, v4
        v_lshlrev_b32 v2, 2, v2
        v_add_u32 v2, {LNG}, v2
        """)
        for c in range(5):
            a(f"ds_write_b64 v4, {vr(XR+2*c,2)} offset:{c*256}")
        a("ds_write_b32 v2, v65")
        a(f"s_waitcnt lgkmcnt(0)\ns_add_u32 s{S_TAG}, s{S_TAG}, {TAG_INC:#x}\ns_barrier")
        a(f"s_cmp_ge_u32 s{S_WAVE}, 4\ns_cbranch_scc1 L_B_l2")
        a(f"""
        v_and_b32 v12, 15, v1
        v_bfe_u32 v13, v1, 4, 1
        v_lshrrev_b32 v14, 5, v1
        v_lshrrev_b32 v15, 2, v12
        v_lshl_add_u32 v15, v13, 2, v15
        v_mul_u32_u24 v15, {LN_ST}, v15
        v_lshl_add_u32 v15, v14, 5, v15
        v_and_b32 v2, 3, v12
        v_lshl_add_u32 v15, v2, 3, v15
        s_mul_i32 s{S_T0}, s{S_WAVE}, 320
        s_add_u32 s{S_T0}, s{S_T0}, {LNBUF}
        v_add_u32 v15, s{S_T0}, v15
        """)
        for i in range(5):
            a(f"ds_read_b64_tr_b16 {vr(44+4*i,2)}, v15 offset:{i*64}")
            a(f"ds_read_b64_tr_b16 {vr(46+4*i,2)}, v15 offset:{i*64+8*LN_ST}")
        a(f"""
        v_lshlrev_b32 v2, 2, v12
        v_add_u32 v2, {LNG}, v2
        ds_read_b32 v65, v2
        v_lshlrev_b32 v14, 16, v14
        v_lshl_add_u32 v14, v13, 8, v14
        v_lshl_add_u32 v14, v12, 4, v14
        s_mul_i32 s{S_T0}, s{S_WAVE}, {5*131072}
        s_lshl_b32 s{S_T0+1}, s{S_KST}, 10
        s_add_u32 s{S_T0}, s{S_T0}, s{S_T0+1}
        s_lshl_b32 s{S_T0+1}, s{S_PAR}, 9
        s_add_u32 s{S_T0}, s{S_T0}, s{S_T0+1}
        s_add_u32 s{S_T0}, s{S_T0}, {HT}
        """)
        for i in range(5):
            a(f"s_waitcnt lgkmcnt({9-2*i})")
            a(f"buffer_store_dwordx4 {vr(44+4*i,4)}, v14, s[{R_WS}:{R_WS+3}], s{S_T0} offen sc1")
            if i < 4:
                a(f"s_add_u32 s{S_T0}, s{S_T0}, 131072")
        a(f"""
        s_cmp_lg_u32 s{S_WAVE}, 0
        s_cbranch_scc1 L_B_nog
        v_and_b32 v2, 7, v12
        v_lshrrev_b32 v12, 3, v12
        v_lshl_add_u32 v2, v12, 4, v2
        v_lshlrev_b32 v2, 2, v2
        s_lshl_b32 s{S_T0}, s{S_KST}, 7
        s_lshl_b32 s{S_T0+1}, s{S_PAR}, 5
        s_add_u32 s{S_T0}, s{S_T0}, s{S_T0+1}
        s_add_u32 s{S_T0}, s{S_T0}, {G_OFF}
        s_waitcnt lgkmcnt(0)
        s_mov_b64 exec, 0xffff
        buffer_store_dword v65, v2, s[{R_WS}:{R_WS+3}], s{S_T0} offen sc1
        s_mov_b64 exec, -1
        L_B_nog:
        s_waitcnt vmcnt(0) lgkmcnt(0)
        L_B_l2:
        s_barrier
        s_cmp_lg_u32 s{S_WAVE}, 0
        s_cbranch_scc1 L_B_l3
        s_lshl_b32 s{S_T0}, s{S_KST}, 1
        s_add_u32 s{S_T0}, s{S_T0}, s{S_PAR}
        s_mul_i32 s{S_T0}, s{S_T0}, {FS}
        s_add_u32 s{S_T0}, s{S_T0}, {F_LN}
        """)
        self.flag_store(S_T0, 12)
        self.stamp(1, 12)
        a(f"s_cmp_ge_u32 s{S_J}, 30\ns_cbranch_scc1 L_helper")
        a(f"v_mul_u32_u24 v12, {FS}, v1\nv_add_u32 v12, {F_LN}, v12\nv_add_u32 v13, {64*FS}, v12")
        self.poll([12, 13], 14)
        self.stamp(2, 12)
        a(f"L_B_l3:\ns_cmp_ge_u32 s{S_J}, 30\ns_cbranch_scc1 L_helper\ns_barrier")
        PF, WF, ACC, VT, VL = 64, 128, 160, 8, 12
        a(f"""
        s_lshl_b32 s{S_T0}, s{S_DT}, 3
        s_add_u32 s{S_T0}, s{S_T0}, s{S_WAVE}
        s_lshl_b32 s{S_T0}, s{S_T0}, 16
        s_add_u32 s{S_T0}, s{S_T0}, {HT}
        """)
        self.srd(R_P, P_WS, 65536, off_s=S_T0)
        a(f"v_lshlrev_b32 v{VL}, 4, v1\ns_mov_b32 s{S_C}, 0")
        for t in range(4):
            for ks in range(4):
                a(f"buffer_load_dwordx4 {vr(PF+16*t+4*ks,4)}, v{VL}, s[{R_P}:{R_P+3}], s{S_C} offen offset:{ks*1024} sc1")
            a(f"s_add_u32 s{S_C}, s{S_C}, 4096")
        self.tr_addr(VT)
        for r in range(16):
            a(f"v_mov_b32 v{ACC+r}, 0")
        a(f"""
        s_lshl_b32 s{S_B}, s{S_WAVE}, 11
        s_lshl_b32 s{S_A}, s{S_FT}, 7
        s_add_u32 s{S_A}, s{S_A}, {8*128*3072}
        s_mov_b32 s{S_D}, 0
        """)

        def mk(u, bar, virtual=False, head=None, tail=None):
            uses = []
            for ks in range(4):
                for b in range(4):
                    g = ks * 4 + b
                    wb = WF + 4 * (g % 8)
                    off = u * 16384 + ks * 4096
                    reads = [(f"w{g}a", f"ds_read_b64_tr_b16 {vr(wb,2)}, v{VT+b} offset:{off}"),
                             (f"w{g}b", f"ds_read_b64_tr_b16 {vr(wb+2,2)}, v{VT+b} offset:{off+2048}")]
                    acc = vr(ACC + 4 * b, 4)
                    pf = vr(PF + 16 * u + 4 * ks, 4)
                    d = dict(reads=reads, need=[f"w{g}b"], mf=[f"v_mfma_f32_16x16x32_bf16 {acc}, {vr(wb,4)}, {pf}, {acc}"])
                    if b == 0:
                        d["vm"] = 15
                    if b == 3:
                        d["after"] = f"buffer_load_dwordx4 {pf}, v{VL}, s[{R_P}:{R_P+3}], s{S_C} offen offset:{ks*1024} sc1"
                        if ks == 3:
                            d["after"] += f"\ns_add_u32 s{S_C}, s{S_C}, 4096"
                    uses.append(d)
            return dict(uses=uses, bar=bar, virtual=virtual, head=head, tail=tail)

        def bar(u):
            lab = a.label("nodma")
            t = f"""s_barrier
            s_cmp_ge_u32 s{S_D}, 2
            s_cbranch_scc1 {lab}
            s_mov_b32 m0, s{S_B}
            s_add_u32 s{S_B}, s{S_B}, 16384
            buffer_load_dwordx4 v{VS0}, s[{R_W}:{R_W+3}], s{S_A} offen lds
            buffer_load_dwordx4 v{VS1}, s[{R_W}:{R_W+3}], s{S_A} offen offset:1024 lds
            s_add_u32 s{S_A}, s{S_A}, {128*3072}
            {lab}:
            """
            if u == 0:
                t += "\n".join(f"v_xor_b32 v{VT+b}, 0x10000, v{VT+b}" for b in range(4))
            return t

        tail = f"s_add_u32 s{S_D}, s{S_D}, 1\ns_cmp_lt_u32 s{S_D}, 4\ns_cbranch_scc1 L_B_loop"
        st = [mk(0, "s_waitcnt vmcnt(16)\ns_barrier", head="L_B_loop:"), mk(1, bar(1)), mk(2, bar(2)), mk(3, bar(3), tail=tail), mk(0, bar(0), virtual=True)]
        self.pipeline(st, 7, 16 - 3)
        self.stamp(3, 13)
        c = 0.7978845608028654
        k0 = -2.0 * c * 1.4426950408889634
        k1 = k0 * 0.044715
        a(f"""
        s_waitcnt lgkmcnt(0)
        s_mov_b32 s{S_K0}, {f2u(k1):#x}
        s_mov_b32 s{S_K0+1}, {f2u(k1):#x}
        v_mov_b32 v44, {f2u(k0):#x}
        v_mov_b32 v45, {f2u(k0):#x}
        v_mov_b32 v46, 1.0
        v_mov_b32 v47, 1.0
        """)
        for b in range(4):
            a(f"v_lshlrev_b32 v48, 16, v{B1R+2*b}\nv_and_b32 v49, 0xffff0000, v{B1R+2*b}")
            a(f"v_lshlrev_b32 v50, 16, v{B1R+2*b+1}\nv_and_b32 v51, 0xffff0000, v{B1R+2*b+1}")
            r = ACC + 4 * b
            if b == 0:
                a("s_nop 3")
            a(f"""
            v_pk_add_f32 {vr(r,2)}, {vr(r,2)}, v[48:49]
            v_pk_add_f32 {vr(r+2,2)}, {vr(r+2,2)}, v[50:51]
            v_pk_mul_f32 v[48:49], {vr(r,2)}, {vr(r,2)}
            v_pk_mul_f32 v[50:51], {vr(r+2,2)}, {vr(r+2,2)}
            v_pk_fma_f32 v[48:49], v[48:49], s[{S_K0}:{S_K0+1}], v[44:45]
            v_pk_fma_f32 v[50:51], v[50:51], s[{S_K0}:{S_K0+1}], v[44:45]
            v_pk_mul_f32 v[48:49], v[48:49], {vr(r,2)}
            v_pk_mul_f32 v[50:51], v[50:51], {vr(r+2,2)}
            v_exp_f32 v48, v48
            v_exp_f32 v49, v49
            v_exp_f32 v50, v50
            v_exp_f32 v51, v51
            s_nop 0
            v_pk_add_f32 v[48:49], v[48:49], v[46:47]
            v_pk_add_f32 v[50:51], v[50:51], v[46:47]
            v_rcp_f32 v48, v48
            v_rcp_f32 v49, v49
            v_rcp_f32 v50, v50
            v_rcp_f32 v51, v51
            s_nop 0
            v_pk_mul_f32 {vr(r,2)}, {vr(r,2)}, v[48:49]
            v_pk_mul_f32 {vr(r+2,2)}, {vr(r+2,2)}, v[50:51]
            v_cvt_pk_bf16_f32 v{52+2*b}, v{r}, v{r+1}
            v_cvt_pk_bf16_f32 v{53+2*b}, v{r+2}, v{r+3}
            """)
        a(f"""
        s_lshl_b32 s{S_T0}, s{S_DT}, 3
        s_add_u32 s{S_T0}, s{S_T0}, s{S_WAVE}
        s_mul_i32 s{S_T0}, s{S_T0}, {UW_ST}
        s_lshl_b32 s{S_T0+1}, s{S_FT}, 11
        s_add_u32 s{S_T0}, s{S_T0}, s{S_T0+1}
        s_add_u32 s{S_T0}, s{S_T0}, {UW}
        buffer_store_dwordx4 v[52:55], v{VL}, s[{R_WS}:{R_WS+3}], s{S_T0} offen sc1
        buffer_store_dwordx4 v[56:59], v{VL}, s[{R_WS}:{R_WS+3}], s{S_T0} offen offset:1024 sc1
        """)
        skip = self.if_wave56()
        self.w2_setup()
        self.w2_prefill(7)
        a("s_waitcnt vmcnt(56)\ns_barrier")
        self.w2_prefill(1)
        a("s_branch L_F_loader")
        a(f"{skip}:\ns_waitcnt vmcnt(0)\ns_barrier")
        a(f"s_cmp_lg_u32 s{S_WAVE}, 7\ns_cbranch_scc1 L_F_comp")
        a(f"s_mul_i32 s{S_T0}, s{S_DT}, 24\ns_add_u32 s{S_T0}, s{S_T0}, s{S_FT}\ns_mul_i32 s{S_T0}, s{S_T0}, {FS}\ns_add_u32 s{S_T0}, s{S_T0}, {F_U}")
        self.flag_store(S_T0, 12)
        self.stamp(4, 12)
        a("s_branch L_F_poller")

    def tr_addr(self, VT):
        a = self.a
        a(f"""
        v_and_b32 v{VT+1}, 15, v1
        v_lshrrev_b32 v{VT+2}, 4, v1
        v_lshrrev_b32 v{VT+3}, 2, v{VT+1}
        v_lshl_add_u32 v{VT+3}, v{VT+2}, 2, v{VT+3}
        v_bfe_u32 v{VT+2}, v{VT+3}, 1, 2
        v_lshlrev_b32 v{VT+3}, 7, v{VT+3}
        v_lshl_add_u32 v{VT+3}, v{VT+2}, 5, v{VT+3}
        v_and_b32 v{VT+1}, 3, v{VT+1}
        v_lshl_add_u32 v{VT}, v{VT+1}, 3, v{VT+3}
        v_xor_b32 v{VT+1}, 32, v{VT}
        v_xor_b32 v{VT+2}, 64, v{VT}
        v_xor_b32 v{VT+3}, 96, v{VT}
        """)

    def helper(self):
        a = self.a
        a("L_helper:")
        a(f"""
        s_sub_u32 s{S_D}, s{S_XCD}, 4
        s_lshl_b32 s{S_D}, s{S_D}, 1
        s_add_u32 s{S_D}, s{S_D}, s{S_J}
        s_sub_u32 s{S_D}, s{S_D}, 30
        """)
        self.srd(R_W, P_WO, 640 * 1280)
        for p in range(5):
            a(f"""
            v_add_u32 v12, {p*64}, v1
            v_mul_u32_u24 v13, 205, v12
            v_lshrrev_b32 v13, 11, v13
            v_mul_u32_u24 v14, 10, v13
            v_sub_u32 v14, v12, v14
            v_lshlrev_b32 v14, 4, v14
            v_mul_u32_u24 v13, 1280, v13
            v_add_u32 v{16+p}, v13, v14
            """)
            if p in (1, 2, 3):
                a(f"v_subrev_u32 v{16+p}, {p*1024}, v{16+p}")
        a(f"""
        s_mov_b32 s{S_C}, s{S_WAVE}
        L_H_ld:
        s_mul_i32 s{S_A}, s{S_C}, {32*1280}
        s_mul_i32 s{S_T0}, s{S_D}, 160
        s_add_u32 s{S_A}, s{S_A}, s{S_T0}
        s_mul_i32 s{S_B}, s{S_C}, 5120
        s_mov_b32 m0, s{S_B}
        s_nop 0
        """)
        for p in range(4):
            a(f"buffer_load_dwordx4 v{16+p}, s[{R_W}:{R_W+3}], s{S_A} offen offset:{p*1024} lds")
        a(f"s_add_u32 m0, s{S_B}, 4096\ns_nop 0\nbuffer_load_dwordx4 v20, s[{R_W}:{R_W+3}], s{S_A} offen lds")
        a(f"""
        s_add_u32 s{S_C}, s{S_C}, 8
        s_cmp_lt_u32 s{S_C}, 20
        s_cbranch_scc1 L_H_ld
        v_and_b32 v12, 15, v1
        v_lshrrev_b32 v13, 4, v1
        v_lshrrev_b32 v14, 2, v12
        v_lshl_add_u32 v14, v13, 2, v14
        v_mul_u32_u24 v14, 160, v14
        v_and_b32 v12, 3, v12
        v_lshl_add_u32 v14, v12, 3, v14
        v_lshlrev_b32 v15, 4, v1
        s_waitcnt vmcnt(0)
        s_barrier
        s_mov_b32 s{S_C}, s{S_WAVE}
        L_H_tr:
        s_lshr_b32 s{S_T0}, s{S_C}, 1
        s_mul_i32 s{S_T0}, s{S_T0}, 5
        s_and_b32 s{S_T0+1}, s{S_C}, 1
        s_lshl_b32 s{S_T0+1}, s{S_T0+1}, 1
        s_add_u32 s{S_T0}, s{S_T0}, s{S_T0+1}
        s_add_u32 s{S_T0+1}, s{S_T0}, 1
        s_mul_i32 s{S_T0+2}, s{S_C}, 10
        s_sub_u32 s{S_T0+2}, s{S_T0+2}, 156
        s_add_u32 s{S_T0+3}, s{S_T0+2}, 5
        s_cmp_lt_u32 s{S_C}, 16
        s_cselect_b32 s{S_T0}, s{S_T0}, s{S_T0+2}
        s_cselect_b32 s{S_T0+1}, s{S_T0+1}, s{S_T0+3}
        s_mul_i32 s{S_T0}, s{S_T0}, 2560
        s_mul_i32 s{S_T0+1}, s{S_T0+1}, 2560
        v_add_u32 v12, s{S_T0}, v14
        v_add_u32 v13, s{S_T0+1}, v14
        """)
        for b in range(5):
            a(f"ds_read_b64_tr_b16 {vr(24+4*b,2)}, v12 offset:{b*32}\nds_read_b64_tr_b16 {vr(26+4*b,2)}, v13 offset:{b*32}")
        a(f"""
        s_mul_i32 s{S_T0}, s{S_D}, {5*UW_ST}
        s_lshl_b32 s{S_T0+1}, s{S_C}, 10
        s_add_u32 s{S_T0}, s{S_T0}, s{S_T0+1}
        s_add_u32 s{S_T0}, s{S_T0}, {UW + 49152}
        """)
        for b in range(5):
            a(f"s_waitcnt lgkmcnt({8-2*b})")
            a(f"buffer_store_dwordx4 {vr(24+4*b,4)}, v15, s[{R_WS}:{R_WS+3}], s{S_T0} offen sc1")
            if b < 4:
                a(f"s_add_u32 s{S_T0}, s{S_T0}, {UW_ST}")
        a(f"""
        s_add_u32 s{S_C}, s{S_C}, 8
        s_cmp_lt_u32 s{S_C}, 20
        s_cbranch_scc1 L_H_tr
        s_waitcnt vmcnt(0)
        s_barrier
        """)
        skip = self.if_wave56()
        self.w2_setup()
        self.w2_prefill(8)
        a(f"s_branch L_F_loader\n{skip}:")
        a(f"s_cmp_lg_u32 s{S_WAVE}, 7\ns_cbranch_scc1 L_F_comp")
        a(f"s_mul_i32 s{S_T0}, s{S_D}, {FS}\ns_add_u32 s{S_T0}, s{S_T0}, {F_WOT}")
        self.flag_store(S_T0, 12)
        a("s_branch L_F_poller")

    def final(self):
        a = self.a
        a("L_F_comp:")
        if self.stop == "phase1":
            a("s_branch L_end")
        PF, WF, ACC, VT, VT2, VL, VB, VB2, V8 = 64, 128, 160, 8, 16, 12, 13, 14, 15
        GV, BV = 20, 24
        a(f"""
        s_mul_i32 s{S_T0}, s{S_DTILE}, 5
        s_add_u32 s{S_D}, s{S_T0}, s{S_WAVE}
        s_mul_i32 s{S_T0}, s{S_D}, {UW_ST}
        s_add_u32 s{S_T0}, s{S_T0}, {UW}
        """)
        self.srd(R_P, P_WS, UW_ST, off_s=S_T0)
        self.srd(R_M, P_B2, 4096)
        self.srd(R_OUT, P_OUT, 2048 * 1280)
        self.tr_addr(VT)
        for b in range(4):
            a(f"v_add_u32 v{VT2+b}, 0x10000, v{VT+b}")
        a(f"""
        v_lshlrev_b32 v{VL}, 4, v1
        v_add_u32 v{VB2}, 0x10000, v{VL}
        v_lshlrev_b32 v{V8}, 3, v1
        v_and_b32 v2, 15, v1
        v_lshlrev_b32 v3, 1, v2
        v_lshlrev_b32 v4, 2, v2
        s_lshl_b32 s{S_T0}, s{S_ST}, 7
        """)
        for sb in range(4):
            a(f"buffer_load_ushort v{BV+sb}, v3, s[{R_M}:{R_M+3}], s{S_T0} offen offset:{sb*32}")
        for r in range(16):
            a(f"v_mov_b32 v{ACC+r}, 0")
        a(f"s_lshl_b32 s{S_T0}, s{S_ST}, 8\ns_add_u32 s{S_T0}, s{S_T0}, {G_OFF}\ns_mov_b32 s{S_C}, 0")
        a("s_barrier")
        for t in range(4):
            for ks in range(4):
                a(f"buffer_load_dwordx4 {vr(PF+16*t+4*ks,4)}, v{VL}, s[{R_P}:{R_P+3}], s{S_C} offen offset:{ks*1024} sc1")
            a(f"s_add_u32 s{S_C}, s{S_C}, 4096")
            if t == 0:
                for sb in range(4):
                    a(f"buffer_load_dword v{GV+sb}, v4, s[{R_WS}:{R_WS+3}], s{S_T0} offen offset:{sb*64} sc1")

        mid = "s_nop 7\n"
        for sb in range(4):
            mid += f"v_lshlrev_b32 v{BV+sb}, 16, v{BV+sb}\nv_sub_f32 v{GV+sb}, 1.0, v{GV+sb}\n"
        for sb in range(4):
            for k in range(4):
                r = ACC + 4 * sb + k
                mid += f"v_add_f32 v{r}, v{BV+sb}, v{r}\n"
        for sb in range(4):
            for k in range(4):
                r = ACC + 4 * sb + k
                mid += f"v_mul_f32 v{r}, v{GV+sb}, v{r}\n"
        mid += "s_nop 1\n"

        stages = []
        for t in range(17):
            slot = t % 8
            hi = slot >= 4
            uses = []
            for ks in range(4):
                for sb in range(4):
                    g = ks * 4 + sb
                    wb = WF + 4 * (g % 8)
                    if t < 12:
                        off = (slot & 3) * 16384 + ks * 4096
                        va = (VT2 if hi else VT) + sb
                        reads = [(f"w{g}a", f"ds_read_b64_tr_b16 {vr(wb,2)}, v{va} offset:{off}"),
                                 (f"w{g}b", f"ds_read_b64_tr_b16 {vr(wb+2,2)}, v{va} offset:{off+2048}")]
                    elif t < 16:
                        off = (slot & 3) * 16384 + sb * 4096 + ks * 1024
                        reads = [(f"w{g}b", f"ds_read_b128 {vr(wb,4)}, v{VB2 if hi else VL} offset:{off}")]
                    else:
                        off = (slot & 3) * 16384 + sb * 4096 + ks * 1024
                        assert not hi
                        reads = [(f"w{g}a", f"ds_read_b64 {vr(wb,2)}, v{V8} offset:{off}"),
                                 (f"w{g}b", f"ds_read_b64 {vr(wb+2,2)}, v{V8} offset:{off+512}")]
                    acc = vr(ACC + 4 * sb, 4)
                    pf = vr(PF + 16 * (t % 4) + 4 * ks, 4)
                    d = dict(reads=reads, need=[f"w{g}b"], mf=[f"v_mfma_f32_16x16x32_bf16 {acc}, {pf}, {vr(wb,4)}, {acc}"])
                    if sb == 0:
                        k = t * 4 + ks
                        issued_after = min(k + 15, 67) - k
                        if t == 0:
                            issued_after += 4
                        d["vm"] = issued_after if not (t == 1 and ks == 0 and False) else issued_after
                    if sb == 3 and t + 4 < 17:
                        d["after"] = f"buffer_load_dwordx4 {pf}, v{VL}, s[{R_P}:{R_P+3}], s{S_C} offen offset:{ks*1024} sc1"
                        if ks == 3:
                            d["after"] += f"\ns_add_u32 s{S_C}, s{S_C}, 4096"
                    if t == 12 and g == 0:
                        d["before"] = mid
                    uses.append(d)
            stages.append(dict(uses=uses, bar="s_barrier"))
        self.pipeline(stages, 7, 16 - 3)
        self.stamp(8, 2)
        a(f"""
        v_and_b32 v2, 15, v1
        v_mul_u32_u24 v2, 1280, v2
        v_lshrrev_b32 v3, 4, v1
        v_lshl_add_u32 v2, v3, 3, v2
        s_mul_i32 s{S_T0}, s{S_ST}, {64*1280}
        s_lshl_b32 s{S_T0+1}, s{S_D}, 5
        s_add_u32 s{S_T0}, s{S_T0}, s{S_T0+1}
        s_nop 1
        """)
        for sb in range(4):
            r = ACC + 4 * sb
            a(f"v_cvt_pk_bf16_f32 v{r}, v{r}, v{r+1}\nv_cvt_pk_bf16_f32 v{r+1}, v{r+2}, v{r+3}")
            a(f"buffer_store_dwordx2 {vr(r,2)}, v2, s[{R_OUT}:{R_OUT+3}], s{S_T0} offen")
            if sb < 3:
                a(f"s_add_u32 s{S_T0}, s{S_T0}, {16*1280}")
        if self.stamps:
            a("s_waitcnt vmcnt(0)")
            self.stamp(9, 2)
        a(f"s_or_b32 s{S_T0}, s2, s{S_WAVE}\ns_cmp_lg_u32 s{S_T0}, 0\ns_cbranch_scc1 L_end\ns_mov_b32 s{S_T0}, 0")
        self.flag_store(S_T0, 4)
        a("s_branch L_end")

        a("L_F_loader:")
        if self.stop == "phase1":
            a("s_branch L_end")
        a(f"v_lshlrev_b32 v{VL}, 4, v1\ns_barrier")
        a(f"""
        s_sub_u32 s{S_T0}, s{S_WAVE}, 5
        s_lshl_b32 s{S_T0}, s{S_T0}, 1
        s_lshl_b32 s{S_T0+1}, s{S_ST}, 2
        s_add_u32 s{S_T0+1}, s{S_T0+1}, s{S_T0}
        s_mul_i32 s{S_C}, s{S_T0+1}, {GO_ST}
        s_add_u32 s{S_C}, s{S_C}, {GO}
        s_lshl_b32 s{S_D}, s{S_T0}, 12
        """)
        order = list(range(8))
        for tb in range(17):
            after = [x for x in order[order.index(tb) + 1:]]
            n = 8 * len(after)
            a(f"s_waitcnt vmcnt({min(n,63)})\ns_barrier")
            t = tb - 1
            if 0 <= t <= 3:
                self.w2_issue()
                order.append(t + 8)
            if 8 <= t <= 12:
                iv = t + 4
                g = iv - 12
                for s2 in range(2):
                    a(f"s_add_u32 m0, s{S_D}, {(iv % 8)*16384 + s2*4096}\ns_add_u32 s{S_T0}, s{S_C}, {s2*GO_ST + g*4096}")
                    for i in range(4):
                        a(f"buffer_load_dwordx4 v{VL}, s[{R_WS}:{R_WS+3}], s{S_T0} offen offset:{i*1024} sc1 lds")
                order.append(iv)
        a("s_branch L_end")
        a("L_F_poller:")
        if self.stop == "phase1":
            a("s_branch L_end")
        a(f"""
        s_mul_i32 s{S_T0}, s{S_DTILE}, 5
        s_lshr_b32 s{S_T0+1}, s{S_T0}, 3
        s_add_u32 s{S_T0}, s{S_T0}, 4
        s_lshr_b32 s{S_T0}, s{S_T0}, 3
        s_mul_i32 s{S_T0}, s{S_T0}, 24
        s_mul_i32 s{S_T0+1}, s{S_T0+1}, 24
        v_and_b32 v2, 31, v1
        v_min_u32 v2, 23, v2
        v_add_u32 v3, s{S_T0}, v2
        v_add_u32 v2, s{S_T0+1}, v2
        v_cmp_gt_u32 vcc, 32, v1
        s_mul_i32 s{S_T0}, s{S_DTILE}, {FS}
        s_add_u32 s{S_T0}, s{S_T0}, {F_WOT}
        v_cndmask_b32 v2, v2, v3, vcc
        v_mul_u32_u24 v2, {FS}, v2
        v_add_u32 v2, {F_U}, v2
        v_mov_b32 v3, s{S_T0}
        v_cmp_eq_u32 vcc, 63, v1
        s_nop 1
        v_cndmask_b32 v2, v2, v3, vcc
        """)
        self.poll([2], 4)
        self.stamp(6, 4)
        a("s_barrier")
        a(f"""
        v_and_b32 v2, 7, v1
        s_lshr_b32 s{S_T0}, s{S_ST}, 1
        s_lshl_b32 s{S_T0}, s{S_T0}, 3
        v_add_u32 v2, s{S_T0}, v2
        v_mul_u32_u24 v2, {FS}, v2
        v_add_u32 v2, {F_GO}, v2
        """)
        for tb in range(9):
            a("s_barrier")
        self.poll([2], 4)
        self.stamp(7, 4)
        for tb in range(9, 17):
            a("s_barrier")
        a("L_end:\ns_endpgm")

    def build(self, header):
        a = self.a
        self.prologue()
        self.role_a()
        self.role_b()
        self.helper()
        self.final()
        body = a.text()
        out = header
        out += f"; @launch grid=(256,1,1) block=(512,1,1) lds={LDS_BYTES}\n"
        out += f'.amdgcn_target "amdgcn-amd-amdhsa--gfx950"\n.text\n.globl {KNAME}\n.p2align 8\n.type {KNAME},@function\n{KNAME}:\n'
        out += body
        out += f""".section .rodata,"a"
.p2align 6
.amdhsa_kernel {KNAME}
  .amdhsa_next_free_vgpr 256
  .amdhsa_next_free_sgpr 102
  .amdhsa_accum_offset 256
  .amdhsa_group_segment_fixed_size 0
  .amdhsa_kernarg_size 96
  .amdhsa_user_sgpr_count 2
  .amdhsa_user_sgpr_kernarg_segment_ptr 1
  .amdhsa_system_sgpr_workgroup_id_x 1
  .amdhsa_float_denorm_mode_32 3
.end_amdhsa_kernel
"""
        return out


def header():
    ref = open("gated_mix__linear_attn_block__mixer_token_mlp__prompt.s.ref").read().split("\n")
    h = []
    for l in ref:
        if l.startswith("; Override"):
            break
        h.append(l)
    return "\n".join(h) + "\n"


if __name__ == "__main__":
    import argparse
    p = argparse.ArgumentParser()
    p.add_argument("-o", default="gated_mix__linear_attn_block__mixer_token_mlp__prompt.s")
    p.add_argument("--stamps", action="store_true")
    p.add_argument("--stop", default=None)
    args = p.parse_args()
    g = Gen(stamps=args.stamps, stop=args.stop)
    open(args.o, "w").write(g.build(header()))
    print("wrote", args.o)
```

```python
import sys

KNAME = "gated_mix__linear_attn_block__mixer_token_mlp__prompt_kernel"

FS = 128
F_LN, F_KV, F_U, F_GO, F_WOT = 0x1000, 0x5000, 0x9000, 0xD000, 0x11000
G_OFF = 0x12000
STAMP = 0x8C0000
KVP = 0x20000
KVP_ST = 7168
HT = 0x100000
UW = 0x380000
UW_ST = 69632
GO = 0x640000
GO_ST = 20480
WS_USED = 0x8E0000
TAG_INC = 0x9E3779B9
SPIN_LIMIT = 1 << 17

LDS_BYTES = 163840
LNBUF = 131072
LN_ST = 1312
LNG = LNBUF + 16 * LN_ST
A_SLOT = 49152
A_WOFF = 16384
EXCH_ST = 14336
KVT = 147456
ZH = KVT + 11 * 1024

LOG2E = 0x3FB8AA3B


def f2u(x):
    import struct
    return struct.unpack("<I", struct.pack("<f", x))[0]


class Asm:
    def __init__(self):
        self.L = []
        self.nlab = 0

    def __call__(self, s):
        for line in s.split("\n"):
            line = line.strip()
            if line:
                self.L.append(("    " if not line.endswith(":") else "") + line)

    def label(self, base):
        self.nlab += 1
        return f"L{base}_{self.nlab}"

    def text(self):
        return "\n".join(self.L) + "\n"


def vr(a, n=1):
    return f"v{a}" if n == 1 else f"v[{a}:{a+n-1}]"


def sr(a, n=1):
    return f"s{a}" if n == 1 else f"s[{a}:{a+n-1}]"


P_X, P_WQKV, P_WO, P_BX, P_W1, P_B1, P_W2, P_B2 = 4, 6, 8, 10, 12, 14, 16, 18
P_GATE, P_OUT, P_DBG, P_WS = 20, 22, 24, 26
S_TAG, S_WAVE = 28, 29
S_XCD, S_J = 30, 31
R_WS, R_X, R_W, R_P, R_W2, R_M, R_OUT = 32, 36, 40, 44, 48, 52, 56
S_T0 = 60
S_MT, S_HG, S_DT, S_FT, S_KST, S_PAR = 70, 71, 72, 73, 74, 75
S_ST, S_DTILE = 76, 77
S_CNT = 78
S_A, S_B, S_C, S_D = 80, 81, 82, 83
S_MSK = 84
S_K0 = 90
S_STMP = 96


class Gen:
    def __init__(self, stamps=False, stop=None, opts=None):
        self.o = opts or {}
        self.a = Asm()
        self.stamps = stamps
        self.stop = stop

    def srd(self, dst, ptr, nbytes, off_s=None):
        a = self.a
        if off_s is None:
            a(f"s_mov_b32 s{dst}, s{ptr}\ns_and_b32 s{dst+1}, s{ptr+1}, 0xffff")
        else:
            a(f"s_add_u32 s{dst}, s{ptr}, s{off_s}\ns_addc_u32 s{dst+1}, s{ptr+1}, 0\ns_and_b32 s{dst+1}, s{dst+1}, 0xffff")
        a(f"s_mov_b32 s{dst+2}, {nbytes:#x}\ns_mov_b32 s{dst+3}, 0x20000")

    def stamp(self, k, vtmp, dyn=None):
        if not self.stamps:
            return
        a = self.a
        a(f"s_memrealtime s[{S_STMP}:{S_STMP+1}]\ns_memtime s[100:101]\ns_waitcnt lgkmcnt(0)\ns_mov_b32 s{S_STMP+1}, s100")
        a(f"s_lshl_b32 s{S_STMP+2}, s2, 9\ns_add_u32 s{S_STMP+2}, s{S_STMP+2}, {STAMP + 8*k}")
        if dyn is not None:
            a(f"s_lshl_b32 s{S_STMP+3}, s{dyn}, 3\ns_add_u32 s{S_STMP+2}, s{S_STMP+2}, s{S_STMP+3}")
        a(f"v_mov_b32 v{vtmp}, s{S_STMP}\nv_mov_b32 v{vtmp+1}, s{S_STMP+1}\nv_mov_b32 v{vtmp+2}, 0")
        a(f"s_mov_b64 exec, 1\nbuffer_store_dwordx2 v[{vtmp}:{vtmp+1}], v{vtmp+2}, s[{R_WS}:{R_WS+3}], s{S_STMP+2} offen\ns_mov_b64 exec, -1")

    def poll(self, voffs, vtmp):
        a = self.a
        lp, dn = a.label("poll"), a.label("pdone")
        a(f"s_mov_b32 s{S_CNT}, 0\n{lp}:")
        for i, vo in enumerate(voffs):
            a(f"buffer_load_dword v{vtmp+i}, v{vo}, s[{R_WS}:{R_WS+3}], 0 offen sc1")
        a("s_waitcnt vmcnt(0)")
        a(f"v_cmp_ne_u32 vcc, s{S_TAG}, v{vtmp}")
        for i in range(1, len(voffs)):
            a(f"v_cmp_ne_u32 s[{S_T0}:{S_T0+1}], s{S_TAG}, v{vtmp+i}\ns_nop 1\ns_or_b64 vcc, vcc, s[{S_T0}:{S_T0+1}]")
        a(f"s_nop 1\ns_cmp_eq_u64 vcc, 0\ns_cbranch_scc1 {dn}")
        a(f"s_add_u32 s{S_CNT}, s{S_CNT}, 1\ns_cmp_lt_u32 s{S_CNT}, {SPIN_LIMIT}\ns_cbranch_scc0 {dn}\ns_sleep 1\ns_branch {lp}\n{dn}:")

    def flag_store(self, s_off, vtmp):
        a = self.a
        a(f"v_mov_b32 v{vtmp}, s{S_TAG}\nv_mov_b32 v{vtmp+1}, 0\ns_mov_b64 exec, 1")
        a(f"buffer_store_dword v{vtmp}, v{vtmp+1}, s[{R_WS}:{R_WS+3}], s{s_off} offen sc1\ns_mov_b64 exec, -1")

    def pipeline(self, stages, D, gstar, prologue=True, loop_label=None, loop_cond=None):
        a = self.a
        seq = []
        for si, st in enumerate(stages):
            for gi, u in enumerate(st["uses"]):
                seq.append((si, gi, u))
        issued = []
        nxt = 0
        opened = -1

        def issue_upto(lim):
            nonlocal nxt
            while nxt < len(seq) and nxt <= lim and seq[nxt][0] <= opened:
                for name, txt in seq[nxt][2]["reads"]:
                    a(txt)
                    issued.append(name)
                nxt += 1

        def open_stage(s):
            nonlocal opened
            a(stages[s]["bar"])
            opened = s

        if prologue:
            open_stage(0)
            issue_upto(D - 2)
        n_real = sum(len(st["uses"]) for st in stages if not st.get("virtual"))
        for f in range(n_real):
            si, gi, u = seq[f]
            if gi == 0 and stages[si].get("head"):
                a(stages[si]["head"])
            if gi == gstar and si + 1 < len(stages):
                a("s_waitcnt lgkmcnt(0)")
                issued.append("__drain")
                open_stage(si + 1)
                issue_upto(f + D - 1)
            issue_upto(f + D - 1)
            last = -1
            for nm in u["need"]:
                idx = len(issued) - 1 - issued[::-1].index(nm)
                last = max(last, idx)
            drain = (len(issued) - 1 - issued[::-1].index("__drain")) if "__drain" in issued else -1
            w = []
            if last > drain:
                n = sum(1 for x in issued[last + 1:] if x != "__drain")
                assert n <= 15, n
                if u.get("lastwait") != n or True:
                    w.append(f"lgkmcnt({n})")
            if u.get("vm") is not None:
                w.insert(0, f"vmcnt({u['vm']})")
            if w:
                a("s_waitcnt " + " ".join(w))
            if u.get("before"):
                a(u["before"])
            for m in u["mf"]:
                a(m)
            if u.get("after"):
                a(u["after"])
            if gi == len(stages[si]["uses"]) - 1 and stages[si].get("tail"):
                a(stages[si]["tail"])

    def prologue(self):
        a = self.a
        a(f"""
        s_cmp_ge_u32 s2, 256
        s_cbranch_scc1 L_end
        s_load_dwordx16 s[4:19], s[0:1], 0
        s_load_dwordx8 s[20:27], s[0:1], 64
        v_and_b32 v1, 63, v0
        v_lshrrev_b32 v2, 6, v0
        s_and_b32 s{S_XCD}, s2, 7
        v_readfirstlane_b32 s{S_WAVE}, v2
        s_lshr_b32 s{S_J}, s2, 3
        s_waitcnt lgkmcnt(0)
        s_load_dword s{S_TAG}, s[{P_WS}:{P_WS+1}], 0
        """)
        self.srd(R_WS, P_WS, WS_USED)
        self.srd(R_X, P_X, 2048 * 1280)
        if self.stamps:
            a(f"s_cmp_lg_u32 s{S_WAVE}, 0\ns_cbranch_scc1 L_nost0")
            self.stamp(0, 4)
            a("L_nost0:")
        if self.o.get("pf_code"):
            self.code_prefetch()
        a(f"""
        s_lshr_b32 s{S_T0}, s{S_XCD}, 1
        s_lshl_b32 s{S_T0}, s{S_T0}, 3
        s_lshr_b32 s{S_ST}, s{S_J}, 2
        s_add_u32 s{S_ST}, s{S_ST}, s{S_T0}
        s_and_b32 s{S_T0}, s{S_XCD}, 1
        s_lshl_b32 s{S_T0}, s{S_T0}, 2
        s_and_b32 s{S_DTILE}, s{S_J}, 3
        s_add_u32 s{S_DTILE}, s{S_DTILE}, s{S_T0}
        s_cmp_lt_u32 s{S_XCD}, 4
        s_cbranch_scc1 L_roleB
        """)

    V_W2 = 240

    def w2_setup(self):
        a = self.a
        V = self.V_W2
        self.srd(R_W2, P_W2, 1536 * 4096)
        a(f"""
        v_lshrrev_b32 v{V}, 3, v1
        v_lshrrev_b32 v{V+1}, 4, v1
        v_lshlrev_b32 v{V+1}, 1, v{V+1}
        v_and_b32 v{V+2}, 7, v1
        v_xor_b32 v{V+1}, v{V+1}, v{V+2}
        v_lshlrev_b32 v{V+1}, 4, v{V+1}
        v_lshl_add_u32 v{V}, v{V}, 12, v{V+1}
        v_add_u32 v{V+1}, {32768-1024}, v{V}
        v_add_u32 v{V+2}, {2*(32768-1024)}, v{V}
        v_add_u32 v{V+3}, {3*(32768-1024)}, v{V}
        s_sub_u32 s{S_T0}, s{S_WAVE}, 5
        s_lshl_b32 s{S_B}, s{S_T0}, 13
        s_lshl_b32 s{S_A}, s{S_T0}, 18
        s_lshl_b32 s{S_T0}, s{S_ST}, 7
        s_add_u32 s{S_A}, s{S_A}, s{S_T0}
        """)

    def w2_issue(self):
        a = self.a
        V = self.V_W2
        for g in range(2):
            a(f"s_add_u32 m0, s{S_B}, {g*4096}")
            a(f"s_add_u32 s{S_T0}, s{S_A}, {g*4*32768}")
            for i in range(4):
                a(f"buffer_load_dwordx4 v{V+i}, s[{R_W2}:{R_W2+3}], s{S_T0} offen offset:{i*1024} lds")
        a(f"s_add_u32 s{S_A}, s{S_A}, {128*4096}\ns_add_u32 s{S_B}, s{S_B}, 16384\ns_and_b32 s{S_B}, s{S_B}, 0x1ffff")

    def w2_prefill(self, n):
        a = self.a
        lp = a.label("pf")
        a(f"s_mov_b32 s{S_C}, 0\n{lp}:")
        self.w2_issue()
        a(f"s_add_u32 s{S_C}, s{S_C}, 1\ns_cmp_lt_u32 s{S_C}, {n}\ns_cbranch_scc1 {lp}")

    def if_wave56(self):
        a = self.a
        skip = a.label("n56")
        a(f"s_sub_u32 s{S_T0}, s{S_WAVE}, 5\ns_cmp_lt_u32 s{S_T0}, 2\ns_cbranch_scc0 {skip}")
        return skip

    def role_a(self):
        a = self.a
        a("L_roleA:")
        a(f"s_sub_u32 s{S_MT}, s{S_ST}, 16\ns_mov_b32 s{S_HG}, s{S_DTILE}")
        a(f"s_cmp_ge_u32 s{S_WAVE}, 4\ns_cbranch_scc1 L_A_loader")
        ACC, XF, WF, VXA, VWA = 128, 96, 64, 4, 6
        if self.o.get("pf_start"):
            self.start_prefetch()
        self.a_thread_map()
        a(f"""
        v_and_b32 v16, 15, v1
        v_lshrrev_b32 v17, 4, v1
        s_lshl_b32 s{S_T0}, s{S_WAVE}, 5
        v_add_u32 v18, s{S_T0}, v16
        v_lshrrev_b32 v19, 1, v16
        v_xor_b32 v19, v17, v19
        v_lshlrev_b32 v19, 4, v19
        v_lshl_add_u32 v{VXA}, v18, 7, v19
        v_xor_b32 v{VXA+1}, 64, v{VXA}
        v_lshrrev_b32 v18, 2, v16
        v_lshl_add_u32 v19, v17, 3, v18
        v_and_b32 v20, 1, v17
        v_lshl_or_b32 v20, v20, 2, v18
        v_lshlrev_b32 v19, 9, v19
        v_lshl_add_u32 v19, v20, 5, v19
        v_and_b32 v20, 3, v16
        v_lshl_add_u32 v19, v20, 3, v19
        v_add_u32 v{VWA}, {A_WOFF}, v19
        """)
        for n in range(1, 8):
            a(f"v_xor_b32 v{VWA+n}, {n<<5}, v{VWA}")
        for r in range(120):
            a(f"v_mov_b32 v{ACC+r}, 0")
        a(f"s_mov_b32 s{S_A}, 0\ns_mov_b32 s{S_B}, 0\ns_mov_b32 s{S_C}, {A_SLOT}\ns_waitcnt lgkmcnt(0)")
        a(f"s_add_u32 s{S_TAG}, s{S_TAG}, {TAG_INC:#x}")

        RING = 6
        D = 6

        def mk_stage(bar, virtual=False, head=None, tail=None):
            uses = []
            for g in range(30):
                ks, n = divmod(g, 15)
                wb = WF + 4 * (g % RING)
                reads = []
                if g == 0:
                    for rb in range(2):
                        reads.append((f"x0{rb}", f"ds_read_b128 {vr(XF+4*rb,4)}, v{VXA} offset:{rb*2048}"))
                if g == 13:
                    for rb in range(2):
                        reads.append((f"x1{rb}", f"ds_read_b128 {vr(XF+8+4*rb,4)}, v{VXA+1} offset:{rb*2048}"))
                off = ks * 16384 + (n >> 3) * 256
                reads.append((f"w{g}a", f"ds_read_b64_tr_b16 {vr(wb,2)}, v{VWA+(n&7)} offset:{off}"))
                reads.append((f"w{g}b", f"ds_read_b64_tr_b16 {vr(wb+2,2)}, v{VWA+(n&7)} offset:{off+2048}"))
                need = [f"w{g}b", f"x{ks}1"]
                mf = []
                for rb in range(2):
                    acc = vr(ACC + (n * 2 + rb) * 4, 4)
                    xf = vr(XF + ks * 8 + rb * 4, 4)
                    wf = vr(wb, 4)
                    if n < 5:
                        mf.append(f"v_mfma_f32_16x16x32_bf16 {acc}, {wf}, {xf}, {acc}")
                    else:
                        mf.append(f"v_mfma_f32_16x16x32_bf16 {acc}, {xf}, {wf}, {acc}")
                uses.append(dict(reads=reads, need=need, mf=mf))
            return dict(uses=uses, bar=bar, virtual=virtual, head=head, tail=tail)

        adv = f"""s_barrier
        s_add_u32 s{S_B}, s{S_B}, 1
        s_cmp_eq_u32 s{S_B}, 3
        s_cselect_b32 s{S_B}, 0, s{S_B}
        s_cselect_b32 s{S_T0}, {(-2*A_SLOT) & 0xffffffff:#x}, s{S_C}
        """ + "\n".join(f"v_add_u32 v{r}, s{S_T0}, v{r}" for r in range(VXA, VWA + 8))
        tail = f"s_add_u32 s{S_A}, s{S_A}, 1\ns_cmp_lt_u32 s{S_A}, 10\ns_cbranch_scc1 L_A_loop"
        head = "L_A_loop:"
        if self.o.get("pf_mid"):
            it = self.o.get("pf_mid")
            head += f"""
            s_cmp_lg_u32 s{S_A}, {it}
            s_cbranch_scc1 L_A_nopf
            buffer_load_dword v253, v252, s[{R_W2}:{R_W2+3}], s{S_D} offen
            s_mov_b32 exec_hi, 0
            buffer_load_dword v253, v252, s[{R_W2}:{R_W2+3}], s{S_D+0} offen offset:0
            s_mov_b32 exec_hi, -1
            L_A_nopf:
            """.replace(f"s{S_D+0} offen offset:0", f"s{S_KST} offen")
            self.srd(R_W2, P_W2, 1536 * 4096)
            a(f"""
            v_lshlrev_b32 v252, 7, v1
            s_lshl_b32 s{S_T0}, s{S_MT}, 3
            s_add_u32 s{S_T0}, s{S_T0}, s{S_HG}
            s_lshl_b32 s{S_T0}, s{S_T0}, 2
            s_add_u32 s{S_T0}, s{S_T0}, s{S_WAVE}
            s_mul_i32 s{S_D}, s{S_T0}, 12288
            s_add_u32 s{S_KST}, s{S_D}, 8192
            """)
        self.pipeline([mk_stage("s_barrier", head=head, tail=tail), mk_stage(adv, virtual=True)], D, 30 - 3)
        self.stamp(2, 16)
        PK, VV, ONES, KVD, ZD = 16, 36, 56, 64, 116
        a("s_waitcnt lgkmcnt(0)\ns_nop 7")
        a(f"s_mov_b32 s{S_K0}, {LOG2E:#x}\ns_mov_b32 s{S_K0+1}, {LOG2E:#x}\ns_mov_b32 s{S_K0+2}, {f2u(1e-6):#x}")

        def phi(base, n, t):
            for i in range(0, n, 4):
                r = base + i
                a(f"v_pk_mul_f32 {vr(t,2)}, {vr(r,2)}, s[{S_K0}:{S_K0+1}]")
                a(f"v_pk_mul_f32 {vr(t+2,2)}, {vr(r+2,2)}, s[{S_K0}:{S_K0+1}]")
                for k in range(4):
                    a(f"v_exp_f32_e64 v{t+k}, v{t+k} clamp")
                for k in range(4):
                    a(f"v_max_f32 v{r+k}, s{S_K0+2}, v{r+k}")
                a(f"v_pk_add_f32 {vr(r,2)}, {vr(r,2)}, {vr(t,2)}")
                a(f"v_pk_add_f32 {vr(r+2,2)}, {vr(r+2,2)}, {vr(t+2,2)}")

        def pack(dst, src0, src1):
            a(f"v_cvt_pk_bf16_f32 v{dst}, v{src0}, v{src0+1}\nv_cvt_pk_bf16_f32 v{dst+1}, v{src0+2}, v{src0+3}")
            if src1 is None:
                a(f"v_mov_b32 v{dst+2}, 0\nv_mov_b32 v{dst+3}, 0")
            else:
                a(f"v_cvt_pk_bf16_f32 v{dst+2}, v{src1}, v{src1+1}\nv_cvt_pk_bf16_f32 v{dst+3}, v{src1+2}, v{src1+3}")

        for b in range(5):
            pack(VV + 4 * b, ACC + (10 + b) * 8, ACC + (10 + b) * 8 + 4)
        for k in range(4):
            a(f"v_mov_b32 v{ONES+k}, 0x3f803f80")
        phi(ACC + 40, 40, 60)
        for b in range(5):
            pack(PK + 4 * b, ACC + (5 + b) * 8, ACC + (5 + b) * 8 + 4)
        a("s_nop 1")
        ZD = ACC + 80
        blocks = [(x, y) for x in range(5) for y in range(5) if abs(x - y) <= 1]
        for (x, y) in blocks:
            a(f"v_mfma_f32_16x16x32_bf16 {vr(KVD+4*(2*x+y),4)}, {vr(PK+4*x,4)}, {vr(VV+4*y,4)}, 0")
        for x in range(5):
            a(f"v_mfma_f32_16x16x32_bf16 {vr(ZD+4*x,4)}, {vr(ONES,4)}, {vr(PK+4*x,4)}, 0")
        a(f"""
        s_mul_i32 s{S_T0}, s{S_WAVE}, {EXCH_ST}
        v_lshlrev_b32 v60, 4, v1
        v_add_u32 v60, s{S_T0}, v60
        v_and_b32 v61, 15, v1
        v_lshlrev_b32 v61, 2, v61
        v_add_u32 v61, s{S_T0}, v61
        s_nop 3
        """)
        for i in range(13):
            a(f"ds_write_b128 v60, {vr(KVD+4*i,4)} offset:{i*1024}")
        for x in range(5):
            a(f"ds_write_b32 v61, v{ZD+4*x} offset:{13312+64*x}")
        a("s_waitcnt lgkmcnt(0)\ns_barrier")
        self.a_reduce_publish(64)
        a("s_waitcnt vmcnt(0)\ns_barrier")
        PQ = 16
        phi(ACC, 40, 60)
        for ts in range(3):
            for rb in range(2):
                pack(PQ + (ts * 2 + rb) * 4, ACC + (2 * ts * 2 + rb) * 4, None if ts == 2 else ACC + ((2 * ts + 1) * 2 + rb) * 4)
        a("s_barrier")
        a(f"""
        v_and_b32 v63, 15, v1
        v_lshlrev_b32 v63, 2, v63
        s_lshl_b32 s{S_T0}, s{S_MT}, 7
        s_lshl_b32 s{S_T0+1}, s{S_WAVE}, 5
        s_add_u32 s{S_T0}, s{S_T0}, s{S_T0+1}
        s_lshl_b32 s{S_T0}, s{S_T0}, 2
        s_add_u32 s{S_T0}, s{S_T0}, {G_OFF}
        buffer_load_dword v62, v63, s[{R_WS}:{R_WS+3}], s{S_T0} offen sc1
        buffer_load_dword v61, v63, s[{R_WS}:{R_WS+3}], s{S_T0} offen offset:64 sc1
        """)
        self.a_gather(64, 0)
        a("s_waitcnt lgkmcnt(0)\ns_barrier")
        self.stamp(4, 40)
        FR = 64
        a("v_lshlrev_b32 v60, 4, v1\nv_add_u32 v60, " + str(KVT) + ", v60")
        used = [0, 2, 3, 4, 5, 7, 8, 9, 10, 11, 12, 13]
        for f in used:
            a(f"ds_read_b128 {vr(FR+4*f,4)}, v60 offset:{f*1024}")
        NUM, DEN = 128, 168
        kts = {0: [0], 1: [0, 1], 2: [0, 1], 3: [1, 2], 4: [1, 2]}
        a(f"""
        v_lshrrev_b32 v40, 4, v1
        v_cmp_gt_u32 s[{S_MSK}:{S_MSK+1}], 1, v40
        v_cmp_gt_u32 s[{S_MSK+2}:{S_MSK+3}], 2, v40
        v_cmp_gt_u32 s[{S_MSK+4}:{S_MSK+5}], 3, v40
        s_waitcnt lgkmcnt(0)
        """)
        for rb in range(2):
            for ts in range(3):
                c = "0" if ts == 0 else vr(DEN + 4 * rb, 4)
                a(f"v_mfma_f32_16x16x32_bf16 {vr(DEN+4*rb,4)}, {vr(FR+4*(11+ts),4)}, {vr(PQ+(ts*2+rb)*4,4)}, {c}")
        for rb in range(2):
            for b in range(5):
                for i, ts in enumerate(kts[b]):
                    d = vr(NUM + (rb * 5 + b) * 4, 4)
                    c = "0" if i == 0 else d
                    a(f"v_mfma_f32_16x16x32_bf16 {d}, {vr(FR+4*(2*b+ts),4)}, {vr(PQ+(ts*2+rb)*4,4)}, {c}")
        for rb in range(2):
            for h in range(4):
                a(f"v_add_f32 v{DEN+4*rb+h}, s{S_K0+2}, v{DEN+4*rb+h}")
        for rb in range(2):
            for h in range(4):
                a(f"v_rcp_f32 v{DEN+4*rb+h}, v{DEN+4*rb+h}")
        a("s_waitcnt vmcnt(0)")
        gv = {0: 62, 1: 61}
        for rb in range(2):
            for h in range(4):
                a(f"v_mul_f32 v{DEN+4*rb+h}, v{gv[rb]}, v{DEN+4*rb+h}")
        a(f"""
        s_lshl_b32 s{S_T0}, s{S_MT}, 3
        s_lshl_b32 s{S_T0+1}, s{S_WAVE}, 1
        s_add_u32 s{S_T0}, s{S_T0}, s{S_T0+1}
        s_mul_i32 s{S_T0}, s{S_T0}, {GO_ST}
        s_add_u32 s{S_T0}, s{S_T0}, {GO}
        s_lshl_b32 s{S_T0+1}, s{S_HG}, 11
        s_add_u32 s{S_T0+1}, s{S_T0+1}, s{S_T0}
        s_lshl_b32 s{S_T0+2}, s{S_HG}, 9
        s_add_u32 s{S_T0+2}, s{S_T0+2}, s{S_T0}
        s_add_u32 s{S_T0+2}, s{S_T0+2}, 16384
        v_lshlrev_b32 v40, 4, v1
        v_lshlrev_b32 v41, 3, v1
        """)
        for rb in range(2):
            d = DEN + 4 * rb
            a(f"v_cndmask_b32 v44, v{d+1}, v{d}, s[{S_MSK}:{S_MSK+1}]")
            a(f"v_cndmask_b32 v45, v{d+2}, v{d+1}, s[{S_MSK+2}:{S_MSK+3}]")
            a(f"v_cndmask_b32 v46, v{d+3}, v{d+2}, s[{S_MSK+4}:{S_MSK+5}]")
            sc = [d, 44, 45, 46, d + 3]
            for b in range(5):
                for k in range(4):
                    r = NUM + (rb * 5 + b) * 4 + k
                    a(f"v_mul_f32 v{r}, v{sc[b]}, v{r}")
            o = 176 + rb * 12
            n0 = NUM + rb * 20
            pack(o, n0, n0 + 4)
            pack(o + 4, n0 + 8, n0 + 12)
            a(f"v_cvt_pk_bf16_f32 v{o+8}, v{n0+16}, v{n0+17}\nv_cvt_pk_bf16_f32 v{o+9}, v{n0+18}, v{n0+19}")
            a(f"buffer_store_dwordx4 {vr(o,4)}, v40, s[{R_WS}:{R_WS+3}], s{S_T0+1} offen sc1")
            a(f"buffer_store_dwordx4 {vr(o+4,4)}, v40, s[{R_WS}:{R_WS+3}], s{S_T0+1} offen offset:1024 sc1")
            a(f"buffer_store_dwordx2 {vr(o+8,2)}, v41, s[{R_WS}:{R_WS+3}], s{S_T0+2} offen sc1")
            if rb == 0:
                a(f"s_add_u32 s{S_T0+1}, s{S_T0+1}, {GO_ST}\ns_add_u32 s{S_T0+2}, s{S_T0+2}, {GO_ST}")
        a("s_waitcnt vmcnt(0)\ns_barrier")
        a("s_branch L_F_comp")

        a("L_A_loader:")
        VX, VW = 4, 8
        self.srd(R_W, P_WQKV, 640 * 3840)
        a(f"""
        s_sub_u32 s{S_D}, s{S_WAVE}, 4
        v_lshrrev_b32 v16, 3, v1
        v_lshrrev_b32 v17, 4, v1
        v_and_b32 v18, 7, v1
        v_xor_b32 v17, v17, v18
        v_lshlrev_b32 v17, 4, v17
        v_mul_u32_u24 v16, 1280, v16
        v_add_u32 v{VX}, v16, v17
        v_xor_b32 v18, 64, v{VX}
        v_add_u32 v{VX+1}, {8*1280-1024}, v18
        v_add_u32 v{VX+2}, {2*(8*1280-1024)}, v{VX}
        v_add_u32 v{VX+3}, {3*(8*1280-1024)}, v18
        s_lshl_b32 s{S_T0}, s{S_MT}, 7
        s_lshl_b32 s{S_T0+1}, s{S_D}, 5
        s_add_u32 s{S_T0}, s{S_T0}, s{S_T0+1}
        s_mul_i32 s{S_A}, s{S_T0}, 1280
        s_lshl_b32 s{S_C}, s{S_D}, 12
        """)
        def issue_x():
            a(f"s_mov_b32 m0, s{S_C}\ns_nop 0")
            for i in range(4):
                a(f"buffer_load_dwordx4 v{VX+i}, s[{R_X}:{R_X+3}], s{S_A} offen offset:{i*1024} lds")
            a(f"s_add_u32 s{S_A}, s{S_A}, 128")

        def issue_w():
            for g in range(2):
                a(f"s_lshl_b32 s{S_T0}, s{S_D}, 12\ns_add_u32 s{S_T0}, s{S_T0}, s{S_C}\ns_add_u32 m0, s{S_T0}, {A_WOFF + g*4096}\ns_nop 0")
                for i in range(4):
                    a(f"buffer_load_dwordx4 v{VW+4*g+i}, s[{R_W}:{R_W+3}], s{S_B} offen offset:{i*1024} lds")
            a(f"s_add_u32 s{S_B}, s{S_B}, {64*3840}")

        def next_slot():
            a(f"s_add_u32 s{S_C}, s{S_C}, {A_SLOT}\ns_cmp_ge_u32 s{S_C}, {3*A_SLOT}\ns_cselect_b32 s{S_T0}, {3*A_SLOT}, 0\ns_sub_u32 s{S_C}, s{S_C}, s{S_T0}")

        issue_x()
        a(f"""
        v_lshrrev_b32 v16, 5, v1
        v_bfe_u32 v17, v1, 1, 4
        v_and_b32 v18, 1, v1
        v_lshlrev_b32 v18, 4, v18
        v_mul_u32_u24 v19, 3840, v16
        v_add_u32 v18, v18, v19
        """)
        for i in (0, 1, 4, 5):
            sig = (2 * (i & 1)) | ((i >> 2) << 2)
            a(f"""
            v_or_b32 v19, {sig}, v16
            v_xor_b32 v19, v17, v19
            v_min_u32 v19, 14, v19
            v_mul_u32_u24 v20, 13, v19
            v_lshrrev_b32 v20, 6, v20
            v_mul_u32_u24 v20, 1120, v20
            v_lshl_add_u32 v19, v19, 5, v20
            v_add_u32 v19, v19, v18
            v_add_u32 v{VW+i}, {2*i*3840 - (i&3)*1024}, v19
            v_add_u32 v{VW+i+2}, {2*(i+2)*3840 - ((i+2)&3)*1024}, v19
            """)
        a(f"""
        s_mul_i32 s{S_B}, s{S_HG}, 160
        s_mul_i32 s{S_T0}, s{S_D}, {16*3840}
        s_add_u32 s{S_B}, s{S_B}, s{S_T0}
        """)
        issue_w()
        for _ in range(2):
            next_slot()
            issue_x()
            issue_w()
        a(f"v_lshlrev_b32 v16, 4, v1\ns_lshl_b32 s{S_T0}, s{S_D}, 12\ns_add_u32 s{S_T0}, s{S_T0}, {KVT}\nv_add_u32 v16, s{S_T0}, v16")
        a("v_mov_b32 v20, 0\nv_mov_b32 v21, 0\nv_mov_b32 v22, 0\nv_mov_b32 v23, 0")
        for i in range(4):
            a(f"ds_write_b128 v16, v[20:23] offset:{i*1024}")
        self.a_thread_map()
        a(f"s_waitcnt lgkmcnt(0)\ns_add_u32 s{S_TAG}, s{S_TAG}, {TAG_INC:#x}")
        a("s_waitcnt vmcnt(24)\ns_barrier")
        self.stamp(1, 16)
        a(f"s_mov_b32 s{S_CNT}, 1\nL_A_lloop:")
        a("s_waitcnt vmcnt(12)\ns_barrier")
        self.stamp(16, 16, dyn=S_CNT)
        next_slot()
        issue_x()
        issue_w()
        a(f"s_add_u32 s{S_CNT}, s{S_CNT}, 1\ns_cmp_le_u32 s{S_CNT}, 7\ns_cbranch_scc1 L_A_lloop")
        a("s_waitcnt vmcnt(12)\ns_barrier")
        self.stamp(24, 16)
        if self.o.get("pf_w2"):
            self.w2_l2_prefetch(48)
        a(f"s_waitcnt vmcnt({2 if self.o.get('pf_w2') else 0})\ns_barrier")
        self.stamp(25, 16)
        a("s_barrier")
        self.stamp(26, 16)
        a("s_barrier")
        a(f"s_cmp_eq_u32 s{S_WAVE}, 7\ns_cbranch_scc1 L_A_poller")
        self.a_reduce_publish(64)
        a("s_waitcnt vmcnt(0)\ns_barrier\ns_barrier")
        skip = self.if_wave56()
        self.a_gather(64, 0)
        a("s_waitcnt lgkmcnt(0)\ns_barrier")
        self.w2_setup()
        self.w2_prefill(8)
        a("s_barrier\ns_branch L_F_loader")
        a(f"{skip}:")
        self.a_gather(64, 0)
        a("s_waitcnt lgkmcnt(0)\ns_barrier\ns_barrier")
        a("s_branch L_F_u4")
        a("L_A_poller:\ns_barrier")
        a(f"s_lshl_b32 s{S_T0}, s{S_HG}, 4\ns_add_u32 s{S_T0}, s{S_T0}, s{S_MT}\ns_mul_i32 s{S_T0}, s{S_T0}, {FS}\ns_add_u32 s{S_T0}, s{S_T0}, {F_KV}")
        self.flag_store(S_T0, 16)
        self.stamp(3, 16)
        a(f"""
        v_and_b32 v16, 15, v1
        s_lshl_b32 s{S_T0}, s{S_HG}, 4
        v_add_u32 v16, s{S_T0}, v16
        v_mul_u32_u24 v16, {FS}, v16
        v_add_u32 v16, {F_KV}, v16
        v_and_b32 v17, 7, v1
        s_lshl_b32 s{S_T0}, s{S_MT}, 3
        v_add_u32 v17, s{S_T0}, v17
        v_mul_u32_u24 v17, {FS}, v17
        v_add_u32 v17, {F_LN}, v17
        v_cmp_gt_u32 vcc, 32, v1
        s_nop 1
        v_cndmask_b32 v16, v17, v16, vcc
        """)
        self.poll([16], 18)
        a("s_barrier\ns_barrier\ns_barrier")
        a(f"s_lshl_b32 s{S_T0}, s{S_MT}, 3\ns_add_u32 s{S_T0}, s{S_T0}, s{S_HG}\ns_mul_i32 s{S_T0}, s{S_T0}, {FS}\ns_add_u32 s{S_T0}, s{S_T0}, {F_GO}")
        self.flag_store(S_T0, 16)
        self.stamp(5, 16)
        a("s_branch L_F_poller")

    def start_prefetch(self):
        a = self.a
        self.srd(R_W, P_WQKV, 640 * 3840)
        self.srd(R_P, P_W1, 2048 * 3072)
        a(f"""
        s_lshl_b32 s{S_T0}, s{S_J}, 2
        s_add_u32 s{S_T0}, s{S_T0}, s{S_WAVE}
        v_lshrrev_b32 v16, 4, v1
        v_and_b32 v17, 15, v1
        v_min_u32 v17, 14, v17
        v_mul_u32_u24 v18, 13, v17
        v_lshrrev_b32 v18, 6, v18
        v_mul_u32_u24 v18, 640, v18
        v_lshl_add_u32 v18, v17, 7, v18
        v_mul_u32_u24 v16, 3840, v16
        v_add_u32 v18, v18, v16
        s_mul_i32 s{S_T0+1}, s{S_T0}, {4*3840}
        s_add_u32 s{S_T0+1}, s{S_T0+1}, {192*3840}
        s_lshr_b32 s{S_T0+2}, s{S_HG}, 2
        s_mul_i32 s{S_T0+2}, s{S_T0+2}, 640
        s_add_u32 s{S_T0+1}, s{S_T0+1}, s{S_T0+2}
        buffer_load_dword v253, v18, s[{R_W}:{R_W+3}], s{S_T0+1} offen
        v_lshrrev_b32 v16, 3, v1
        v_and_b32 v17, 7, v1
        v_min_u32 v17, 6, v17
        v_mul_u32_u24 v16, 1280, v16
        v_lshl_add_u32 v16, v17, 7, v16
        s_lshr_b32 s{S_T0+2}, s{S_MT}, 3
        s_lshl_b32 s{S_T0+2}, s{S_T0+2}, 7
        s_add_u32 s{S_T0+2}, s{S_T0+2}, s{S_T0}
        s_mul_i32 s{S_T0+2}, s{S_T0+2}, {8*1280}
        s_add_u32 s{S_T0+2}, s{S_T0+2}, 384
        buffer_load_dword v253, v16, s[{R_X}:{R_X+3}], s{S_T0+2} offen
        v_lshlrev_b32 v16, 7, v1
        s_sub_u32 s{S_T0+2}, s{S_XCD}, 4
        s_lshl_b32 s{S_T0+2}, s{S_T0+2}, 7
        s_add_u32 s{S_T0+2}, s{S_T0+2}, s{S_T0}
        s_mul_i32 s{S_T0+2}, s{S_T0+2}, 6144
        s_add_u32 s{S_T0+2}, s{S_T0+2}, {1024*3072}
        s_mov_b32 exec_hi, 0xffff
        buffer_load_dword v253, v16, s[{R_P}:{R_P+3}], s{S_T0+2} offen
        s_mov_b32 exec_hi, -1
        """)

    def code_prefetch(self):
        a = self.a
        a(f"""
        s_cmp_lg_u32 s{S_WAVE}, 3
        s_cbranch_scc1 L_nocpf
        s_cmp_ge_u32 s{S_J}, 4
        s_cbranch_scc1 L_nocpf
        s_getpc_b64 s[{S_T0}:{S_T0+1}]
        L_pcref:
        s_lshl_b32 s{S_T0+2}, s{S_J}, 13
        v_lshlrev_b32 v4, 7, v1
        v_add_u32 v4, s{S_T0+2}, v4
        v_min_u32 v4, L_end-L_pcref, v4
        global_load_dword v253, v4, s[{S_T0}:{S_T0+1}]
        L_nocpf:
        """)

    def a_thread_map(self):
        a = self.a
        a(f"""
        v_mul_u32_u24 v16, 625, v0
        v_lshrrev_b32 v16, 16, v16
        v_mul_u32_u24 v17, 105, v16
        v_sub_u32 v17, v0, v17
        v_mul_u32_u24 v18, 205, v17
        v_lshrrev_b32 v18, 10, v18
        v_mul_u32_u24 v19, 5, v18
        v_sub_u32 v19, v17, v19
        v_mad_u32_u24 v19, v16, 5, v19
        v_mad_u32_u24 v20, v16, 20, v18
        v_lshrrev_b32 v21, 2, v19
        v_and_b32 v22, 3, v19
        v_lshrrev_b32 v23, 4, v20
        v_and_b32 v20, 15, v20
        v_lshl_add_u32 v20, v22, 4, v20
        v_lshl_add_u32 v2, v21, 1, v23
        v_lshlrev_b32 v2, 6, v2
        v_add_u32 v2, v2, v20
        v_lshlrev_b32 v2, 4, v2
        v_lshlrev_b32 v3, 4, v19
        v_add_u32 v3, 13312, v3
        v_cmp_lt_u32 vcc, 99, v17
        v_lshrrev_b32 v24, 1, v21
        v_and_b32 v21, 1, v21
        v_cndmask_b32 v2, v2, v3, vcc
        v_lshl_add_u32 v3, v23, 1, v24
        v_add_u32 v24, 11, v24
        v_lshl_add_u32 v22, v22, 4, v16
        v_cndmask_b32 v3, v3, v24, vcc
        v_cndmask_b32 v20, v20, v22, vcc
        v_lshl_add_u32 v3, v3, 6, v20
        v_lshlrev_b32 v3, 4, v3
        v_lshl_add_u32 v3, v21, 3, v3
        v_add_u32 v249, {KVT}, v3
        v_mov_b32 v25, 2
        v_cndmask_b32 v25, 1, v25, vcc
        v_mov_b32 v16, 420
        v_cmp_gt_u32 vcc, v16, v0
        v_lshlrev_b32 v250, 4, v0
        s_nop 0
        v_cndmask_b32 v251, 0, v25, vcc
        v_cndmask_b32 v248, 0, v2, vcc
        """)

    def a_reduce_publish(self, T):
        a = self.a
        for w in range(4):
            a(f"ds_read_b128 {vr(T+4*w,4)}, v248 offset:{w*EXCH_ST}")
        a(f"""
        s_lshl_b32 s{S_T0}, s{S_HG}, 4
        s_add_u32 s{S_T0}, s{S_T0}, s{S_MT}
        s_mul_i32 s{S_T0}, s{S_T0}, {KVP_ST}
        s_add_u32 s{S_T0}, s{S_T0}, {KVP}
        v_cmp_ne_u32 vcc, 0, v251
        s_waitcnt lgkmcnt(0)
        v_pk_add_f32 {vr(T,2)}, {vr(T,2)}, {vr(T+4,2)}
        v_pk_add_f32 {vr(T+2,2)}, {vr(T+2,2)}, {vr(T+6,2)}
        v_pk_add_f32 {vr(T+8,2)}, {vr(T+8,2)}, {vr(T+12,2)}
        v_pk_add_f32 {vr(T+10,2)}, {vr(T+10,2)}, {vr(T+14,2)}
        v_pk_add_f32 {vr(T,2)}, {vr(T,2)}, {vr(T+8,2)}
        v_pk_add_f32 {vr(T+2,2)}, {vr(T+2,2)}, {vr(T+10,2)}
        s_mov_b64 exec, vcc
        buffer_store_dwordx4 {vr(T,4)}, v250, s[{R_WS}:{R_WS+3}], s{S_T0} offen sc1
        s_mov_b64 exec, -1
        """)

    def a_gather(self, T, vm_after, prefill=False):
        a = self.a
        a(f"s_mul_i32 s{S_T0}, s{S_HG}, {16*KVP_ST}\ns_add_u32 s{S_T0}, s{S_T0}, {KVP}")
        a("v_cmp_ne_u32 vcc, 0, v251\ns_nop 1\ns_mov_b64 exec, vcc")
        for m in range(16):
            a(f"buffer_load_dwordx4 {vr(T+4*m,4)}, v250, s[{R_WS}:{R_WS+3}], s{S_T0} offen sc1")
            if m < 15:
                a(f"s_add_u32 s{S_T0}, s{S_T0}, {KVP_ST}")
        a("s_mov_b64 exec, -1")
        if prefill:
            self.w2_setup()
            self.w2_prefill(5)
            vm_after = 40
        for st in (8, 4, 2, 1):
            if st == 8:
                a(f"s_waitcnt vmcnt({vm_after})")
            for m in range(st):
                for h in (0, 2):
                    a(f"v_pk_add_f32 {vr(T+4*m+h,2)}, {vr(T+4*m+h,2)}, {vr(T+4*(m+st)+h,2)}")
        a(f"""
        v_cvt_pk_bf16_f32 v{T}, v{T}, v{T+1}
        v_cvt_pk_bf16_f32 v{T+1}, v{T+2}, v{T+3}
        v_cmp_ne_u32 vcc, 0, v251
        v_cmp_eq_u32 s[{S_T0}:{S_T0+1}], 2, v251
        s_nop 1
        s_mov_b64 exec, vcc
        ds_write_b64 v249, {vr(T,2)}
        s_mov_b64 exec, s[{S_T0}:{S_T0+1}]
        ds_write_b64 v249, {vr(T,2)} offset:64
        ds_write_b64 v249, {vr(T,2)} offset:128
        ds_write_b64 v249, {vr(T,2)} offset:192
        s_mov_b64 exec, -1
        """)
        if prefill:
            self.w2_prefill(3)

    def role_b(self):
        a = self.a
        a("L_roleB:")
        XR, GR, B1R = 16, 26, 36
        a(f"""
        s_mov_b32 s{S_T0}, s{S_XCD}
        s_lshl_b32 s{S_T0+1}, s{S_T0}, 5
        s_add_u32 s{S_T0+1}, s{S_T0+1}, s{S_J}
        s_lshr_b32 s{S_KST}, s{S_T0+1}, 1
        s_and_b32 s{S_PAR}, s{S_T0+1}, 1
        s_mul_i32 s{S_FT}, s{S_J}, 205
        s_lshr_b32 s{S_FT}, s{S_FT}, 10
        s_mul_i32 s{S_DT}, s{S_FT}, 5
        s_sub_u32 s{S_DT}, s{S_J}, s{S_DT}
        s_mul_i32 s{S_T0}, s{S_T0}, 6
        s_add_u32 s{S_FT}, s{S_FT}, s{S_T0}
        s_lshl_b32 s{S_T0}, s{S_KST}, 5
        s_lshl_b32 s{S_T0+1}, s{S_PAR}, 3
        s_add_u32 s{S_T0}, s{S_T0}, s{S_T0+1}
        s_and_b32 s{S_T0+1}, s{S_WAVE}, 3
        s_lshl_b32 s{S_T0+1}, s{S_T0+1}, 1
        s_add_u32 s{S_T0}, s{S_T0}, s{S_T0+1}
        s_lshr_b32 s{S_T0+1}, s{S_WAVE}, 2
        s_lshl_b32 s{S_T0+1}, s{S_T0+1}, 4
        s_add_u32 s{S_T0}, s{S_T0}, s{S_T0+1}
        s_mul_i32 s{S_T0}, s{S_T0}, 1280
        v_lshrrev_b32 v2, 5, v1
        v_and_b32 v3, 31, v1
        v_lshlrev_b32 v3, 3, v3
        v_mad_u32_u24 v4, v2, s{S_T0+2}, v3
        """.replace(f"v_mad_u32_u24 v4, v2, s{S_T0+2}, v3", "v_mul_u32_u24 v4, 1280, v2\nv_add_u32 v4, v4, v3"))
        for c in range(5):
            a(f"buffer_load_dwordx2 {vr(XR+2*c,2)}, v4, s[{R_X}:{R_X+3}], s{S_T0} offen offset:{c*256}")
        self.srd(R_M, P_GATE, 1280)
        for c in range(5):
            a(f"buffer_load_dwordx2 {vr(GR+2*c,2)}, v3, s[{R_M}:{R_M+3}], 0 offen offset:{c*256}")
        self.srd(R_OUT, P_B1, 3072)
        a(f"v_lshrrev_b32 v5, 4, v1\nv_lshlrev_b32 v5, 3, v5\ns_lshl_b32 s{S_T0}, s{S_FT}, 7")
        for b in range(4):
            a(f"buffer_load_dwordx2 {vr(B1R+2*b,2)}, v5, s[{R_OUT}:{R_OUT+3}], s{S_T0} offen offset:{b*32}")
        VS0, VS1, VPF = 6, 7, 8
        self.srd(R_W, P_W1, 2048 * 3072)
        a(f"""
        v_lshrrev_b32 v12, 3, v1
        v_lshrrev_b32 v13, 4, v1
        v_lshlrev_b32 v13, 1, v13
        v_and_b32 v14, 7, v1
        v_xor_b32 v13, v13, v14
        v_lshlrev_b32 v13, 4, v13
        v_mul_u32_u24 v12, 3072, v12
        v_add_u32 v{VPF}, v12, v13
        v_add_u32 v{VPF+1}, {8*3072-1024}, v{VPF}
        v_add_u32 v{VPF+2}, {2*(8*3072-1024)}, v{VPF}
        v_add_u32 v{VPF+3}, {3*(8*3072-1024)}, v{VPF}
        s_cmp_lt_u32 s{S_WAVE}, 4
        s_cbranch_scc1 L_B_nopf
        s_cmp_ge_u32 s{S_J}, 30
        s_cbranch_scc1 L_B_nopf
        s_sub_u32 s{S_T0}, s{S_WAVE}, 4
        s_lshl_b32 s{S_B}, s{S_T0}, 12
        s_mul_i32 s{S_A}, s{S_T0}, {32*3072}
        s_lshl_b32 s{S_T0}, s{S_FT}, 7
        s_add_u32 s{S_A}, s{S_A}, s{S_T0}
        L_B_pf:
        s_mov_b32 m0, s{S_B}
        s_add_u32 s{S_B}, s{S_B}, 16384
        """)
        for i in range(4):
            a(f"buffer_load_dwordx4 v{VPF+i}, s[{R_W}:{R_W+3}], s{S_A} offen offset:{i*1024} lds")
        a(f"""
        s_add_u32 s{S_A}, s{S_A}, {128*3072}
        s_cmp_lt_u32 s{S_B}, 0x20000
        s_cbranch_scc1 L_B_pf
        s_waitcnt vmcnt(36)
        s_branch L_B_ln
        L_B_nopf:
        s_waitcnt vmcnt(4)
        L_B_ln:
        """)
        self.stamp(11, 44)
        XS = 44
        a("v_mov_b32 v64, 0\nv_mov_b32 v65, 0\nv_mov_b32 v66, 0x3f803f80")
        for c in range(10):
            a(f"v_dot2c_f32_bf16 v65, v{XR+c}, v{GR+c}")
        for c in range(10):
            a(f"v_dot2c_f32_bf16 v64, v{XR+c}, v66")
        for c in range(10):
            a(f"v_lshlrev_b32 v{XS+2*c}, 16, v{XR+c}\nv_and_b32 v{XS+2*c+1}, 0xffff0000, v{XR+c}")

        def reduce32(regs, t):
            for mode in ("quad_perm:[1,0,3,2]", "quad_perm:[2,3,0,1]", "row_half_mirror", "row_mirror"):
                for r in regs:
                    a(f"v_add_f32_dpp v{r}, v{r}, v{r} {mode} row_mask:0xf bank_mask:0xf")
                a("s_nop 1" if len(regs) == 1 else "s_nop 0")
            for i, r in enumerate(regs):
                a(f"v_mov_b32 v{t+i}, v{r}")
            a("s_nop 1")
            for i, r in enumerate(regs):
                a(f"v_permlane16_swap_b32 v{r}, v{t+i}")
            a("s_nop 1")
            for i, r in enumerate(regs):
                a(f"v_add_f32 v{r}, v{r}, v{t+i}")

        reduce32([64, 65], 66)
        a(f"v_mul_f32 v64, {f2u(-1.0/640):#x}, v64\nv_mul_f32 v65, {f2u(-1.4426950408889634):#x}, v65\nv_mov_b32 v67, 0\nv_mov_b32 v66, 0")
        a("v_exp_f32 v65, v65")
        for c in range(20):
            a(f"v_add_f32 v{XS+c}, v64, v{XS+c}")
        a("v_add_f32 v65, 1.0, v65\nv_rcp_f32 v65, v65")
        for c in range(0, 20, 2):
            a(f"v_fmac_f32 v66, v{XS+c}, v{XS+c}\nv_fmac_f32 v67, v{XS+c+1}, v{XS+c+1}")
        a("v_add_f32 v66, v66, v67\ns_nop 1")
        reduce32([66], 67)
        a(f"v_mov_b32 v67, {f2u(1e-5):#x}\nv_fmac_f32 v67, {f2u(1.0/640):#x}, v66\nv_rsq_f32 v67, v67\ns_nop 0")
        for c in range(20):
            a(f"v_mul_f32 v{XS+c}, v67, v{XS+c}")
        for c in range(10):
            a(f"v_cvt_pk_bf16_f32 v{XR+c}, v{XS+2*c}, v{XS+2*c+1}")
        a(f"""
        s_lshl_b32 s{S_T0}, s{S_WAVE}, 1
        v_add_u32 v2, s{S_T0}, v2
        v_mul_u32_u24 v4, {LN_ST}, v2
        v_add_u32 v4, v4, v3
        v_add_u32 v4, {LNBUF}, v4
        v_lshlrev_b32 v2, 2, v2
        v_add_u32 v2, {LNG}, v2
        """)
        for c in range(5):
            a(f"ds_write_b64 v4, {vr(XR+2*c,2)} offset:{c*256}")
        a("ds_write_b32 v2, v65")
        a(f"s_waitcnt lgkmcnt(0)\ns_add_u32 s{S_TAG}, s{S_TAG}, {TAG_INC:#x}\ns_barrier")
        self.stamp(12, 44)
        a(f"s_cmp_ge_u32 s{S_WAVE}, 4\ns_cbranch_scc1 L_B_l2")
        a(f"""
        v_and_b32 v12, 15, v1
        v_bfe_u32 v13, v1, 4, 1
        v_lshrrev_b32 v14, 5, v1
        v_lshrrev_b32 v15, 2, v12
        v_lshl_add_u32 v15, v13, 2, v15
        v_mul_u32_u24 v15, {LN_ST}, v15
        v_lshl_add_u32 v15, v14, 5, v15
        v_and_b32 v2, 3, v12
        v_lshl_add_u32 v15, v2, 3, v15
        s_mul_i32 s{S_T0}, s{S_WAVE}, 320
        s_add_u32 s{S_T0}, s{S_T0}, {LNBUF}
        v_add_u32 v15, s{S_T0}, v15
        """)
        for i in range(5):
            a(f"ds_read_b64_tr_b16 {vr(44+4*i,2)}, v15 offset:{i*64}")
            a(f"ds_read_b64_tr_b16 {vr(46+4*i,2)}, v15 offset:{i*64+8*LN_ST}")
        a(f"""
        v_lshlrev_b32 v2, 2, v12
        v_add_u32 v2, {LNG}, v2
        ds_read_b32 v65, v2
        v_lshlrev_b32 v14, 16, v14
        v_lshl_add_u32 v14, v13, 8, v14
        v_lshl_add_u32 v14, v12, 4, v14
        s_mul_i32 s{S_T0}, s{S_WAVE}, {5*131072}
        s_lshl_b32 s{S_T0+1}, s{S_KST}, 10
        s_add_u32 s{S_T0}, s{S_T0}, s{S_T0+1}
        s_lshl_b32 s{S_T0+1}, s{S_PAR}, 9
        s_add_u32 s{S_T0}, s{S_T0}, s{S_T0+1}
        s_add_u32 s{S_T0}, s{S_T0}, {HT}
        """)
        for i in range(5):
            a(f"s_waitcnt lgkmcnt({9-2*i})")
            a(f"buffer_store_dwordx4 {vr(44+4*i,4)}, v14, s[{R_WS}:{R_WS+3}], s{S_T0} offen sc1")
            if i < 4:
                a(f"s_add_u32 s{S_T0}, s{S_T0}, 131072")
        a(f"""
        s_cmp_lg_u32 s{S_WAVE}, 0
        s_cbranch_scc1 L_B_nog
        v_and_b32 v2, 7, v12
        v_lshrrev_b32 v12, 3, v12
        v_lshl_add_u32 v2, v12, 4, v2
        v_lshlrev_b32 v2, 2, v2
        s_lshl_b32 s{S_T0}, s{S_KST}, 7
        s_lshl_b32 s{S_T0+1}, s{S_PAR}, 5
        s_add_u32 s{S_T0}, s{S_T0}, s{S_T0+1}
        s_add_u32 s{S_T0}, s{S_T0}, {G_OFF}
        s_waitcnt lgkmcnt(0)
        s_mov_b64 exec, 0xffff
        buffer_store_dword v65, v2, s[{R_WS}:{R_WS+3}], s{S_T0} offen sc1
        s_mov_b64 exec, -1
        L_B_nog:
        s_waitcnt vmcnt(0) lgkmcnt(0)
        L_B_l2:
        s_barrier
        s_cmp_lg_u32 s{S_WAVE}, 0
        s_cbranch_scc1 L_B_l3
        s_lshl_b32 s{S_T0}, s{S_KST}, 1
        s_add_u32 s{S_T0}, s{S_T0}, s{S_PAR}
        s_mul_i32 s{S_T0}, s{S_T0}, {FS}
        s_add_u32 s{S_T0}, s{S_T0}, {F_LN}
        """)
        self.flag_store(S_T0, 12)
        self.stamp(1, 12)
        a(f"s_cmp_ge_u32 s{S_J}, 30\ns_cbranch_scc1 L_helper")
        a(f"v_mul_u32_u24 v12, {FS}, v1\nv_add_u32 v12, {F_LN}, v12\nv_add_u32 v13, {64*FS}, v12")
        self.poll([12, 13], 14)
        self.stamp(2, 12)
        a(f"L_B_l3:\ns_cmp_ge_u32 s{S_J}, 30\ns_cbranch_scc1 L_helper")
        a(f"s_cmp_ge_u32 s{S_WAVE}, 4\ns_cbranch_scc1 L_B_aux")
        PF, WF, ACC, VT, VL = 64, 192, 224, 8, 12
        a(f"""
        s_lshl_b32 s{S_T0}, s{S_DT}, 3
        s_lshl_b32 s{S_T0+1}, s{S_WAVE}, 1
        s_add_u32 s{S_D}, s{S_T0}, s{S_T0+1}
        s_lshl_b32 s{S_T0}, s{S_D}, 16
        s_add_u32 s{S_T0}, s{S_T0}, {HT}
        """)
        self.srd(R_P, P_WS, 65536, off_s=S_T0)
        a(f"s_add_u32 s{S_T0}, s{S_T0}, 65536")
        self.srd(R_M, P_WS, 65536, off_s=S_T0)
        a(f"v_lshlrev_b32 v{VL}, 4, v1\ns_mov_b32 s{S_C}, 0\ns_mov_b32 s{S_B}, 0")
        self.tr_addr(VT)
        for r in range(32):
            a(f"v_mov_b32 v{ACC+r}, 0")
        a("s_barrier")
        RP = (R_P, R_M)

        def pload(u, ks):
            return "\n".join(f"buffer_load_dwordx4 {vr(PF+32*u+8*ks+4*d,4)}, v{VL}, s[{RP[d]}:{RP[d]+3}], s{S_C} offen offset:{ks*1024} sc1" for d in range(2))

        for t in range(4):
            for ks in range(4):
                a(pload(t, ks))
            a(f"s_add_u32 s{S_C}, s{S_C}, 4096")
            if t == 0:
                first_bar_here = len(a.L)

        def mk(u, bar, virtual=False, head=None, tail=None):
            uses = []
            for ks in range(4):
                for b in range(4):
                    g = ks * 4 + b
                    wb = WF + 4 * (g % 8)
                    off = u * 16384 + ks * 4096
                    reads = [(f"w{g}a", f"ds_read_b64_tr_b16 {vr(wb,2)}, v{VT+b} offset:{off}"),
                             (f"w{g}b", f"ds_read_b64_tr_b16 {vr(wb+2,2)}, v{VT+b} offset:{off+2048}")]
                    mf = []
                    for dd in range(2):
                        acc = vr(ACC + 16 * dd + 4 * b, 4)
                        mf.append(f"v_mfma_f32_16x16x32_bf16 {acc}, {vr(wb,4)}, {vr(PF+32*u+8*ks+4*dd,4)}, {acc}")
                    d = dict(reads=reads, need=[f"w{g}b"], mf=mf)
                    if b == 0:
                        d["vm"] = 30
                    if b == 3:
                        d["after"] = pload(u, ks)
                        if ks == 3:
                            d["after"] += f"\ns_add_u32 s{S_C}, s{S_C}, 4096"
                    uses.append(d)
            return dict(uses=uses, bar=bar, virtual=virtual, head=head, tail=tail)

        xo = "s_barrier\n" + "\n".join(f"v_xor_b32 v{VT+b}, 0x10000, v{VT+b}" for b in range(4))
        tail = f"s_add_u32 s{S_B}, s{S_B}, 1\ns_cmp_lt_u32 s{S_B}, 4\ns_cbranch_scc1 L_B_loop"
        st = [mk(0, "", head="L_B_loop:"), mk(1, "s_barrier"), mk(2, "s_barrier"), mk(3, "s_barrier", tail=tail), mk(0, xo, virtual=True)]
        a.L.insert(first_bar_here, "    s_barrier")
        self.pipeline(st, 6, 16 - 3)
        self.stamp(3, 44)
        c = 0.7978845608028654
        k0 = -2.0 * c * 1.4426950408889634
        k1 = k0 * 0.044715
        a(f"""
        s_waitcnt lgkmcnt(0)
        s_mov_b32 s{S_K0}, {f2u(k1):#x}
        s_mov_b32 s{S_K0+1}, {f2u(k1):#x}
        v_mov_b32 v44, {f2u(k0):#x}
        v_mov_b32 v45, {f2u(k0):#x}
        v_mov_b32 v46, 1.0
        v_mov_b32 v47, 1.0
        s_mul_i32 s{S_T0}, s{S_D}, {UW_ST}
        s_lshl_b32 s{S_T0+1}, s{S_FT}, 11
        s_add_u32 s{S_T0}, s{S_T0}, s{S_T0+1}
        s_add_u32 s{S_T0}, s{S_T0}, {UW}
        """)
        BF = 16
        for b in range(4):
            a(f"v_lshlrev_b32 v{BF+4*b}, 16, v{B1R+2*b}\nv_and_b32 v{BF+4*b+1}, 0xffff0000, v{B1R+2*b}")
            a(f"v_lshlrev_b32 v{BF+4*b+2}, 16, v{B1R+2*b+1}\nv_and_b32 v{BF+4*b+3}, 0xffff0000, v{B1R+2*b+1}")
        for dd in range(2):
            for p in range(2):
                r = ACC + 16 * dd + 8 * p
                T = 48
                for q in range(4):
                    a(f"v_pk_add_f32 {vr(r+2*q,2)}, {vr(r+2*q,2)}, {vr(BF+8*p+2*q,2)}")
                for q in range(4):
                    a(f"v_pk_mul_f32 {vr(T+2*q,2)}, {vr(r+2*q,2)}, {vr(r+2*q,2)}")
                for q in range(4):
                    a(f"v_pk_fma_f32 {vr(T+2*q,2)}, {vr(T+2*q,2)}, s[{S_K0}:{S_K0+1}], v[44:45]")
                for q in range(4):
                    a(f"v_pk_mul_f32 {vr(T+2*q,2)}, {vr(T+2*q,2)}, {vr(r+2*q,2)}")
                for q in range(8):
                    a(f"v_exp_f32 v{T+q}, v{T+q}")
                for q in range(4):
                    a(f"v_pk_add_f32 {vr(T+2*q,2)}, {vr(T+2*q,2)}, v[46:47]")
                for q in range(8):
                    a(f"v_rcp_f32 v{T+q}, v{T+q}")
                for q in range(4):
                    a(f"v_pk_mul_f32 {vr(r+2*q,2)}, {vr(r+2*q,2)}, {vr(T+2*q,2)}")
                o = 56 + 4 * (p & 1)
                for q in range(4):
                    a(f"v_cvt_pk_bf16_f32 v{o+q}, v{r+2*q}, v{r+2*q+1}")
                a(f"buffer_store_dwordx4 {vr(o,4)}, v{VL}, s[{R_WS}:{R_WS+3}], s{S_T0} offen offset:{p*1024} sc1")
            if dd == 0:
                a(f"s_add_u32 s{S_T0}, s{S_T0}, {UW_ST}")
        self.stamp(10, 44)
        a("s_waitcnt vmcnt(0)\ns_barrier\ns_branch L_F_comp")

        a("L_B_aux:\ns_barrier")
        a(f"s_and_b32 s{S_B}, s{S_B}, 0x1ffff")
        order = list(range(8))
        cnt = {k: 4 for k in range(16)}
        for tb in range(17):
            if tb < 16:
                n = sum(cnt[x] for x in order[order.index(tb) + 1:])
                a(f"s_waitcnt vmcnt({n})")
            a("s_barrier")
            if tb < 16:
                self.stamp(16 + tb, 44)
            if 1 <= tb <= 8:
                a(f"s_mov_b32 m0, s{S_B}\ns_add_u32 s{S_B}, s{S_B}, 16384")
                for i in range(4):
                    a(f"buffer_load_dwordx4 v{VPF+i}, s[{R_W}:{R_W+3}], s{S_A} offen offset:{i*1024} lds")
                a(f"s_add_u32 s{S_A}, s{S_A}, {128*3072}")
                order.append(tb + 7)
            if tb == 8 and self.o.get("pf_w2"):
                self.w2_l2_prefetch(48)
                order.append("pf"); cnt["pf"] = 2
        skip = self.if_wave56()
        self.w2_setup()
        if self.o.get("early_prefill"):
            self.w2_prefill(8)
            a("s_barrier")
        else:
            a("s_barrier")
            self.w2_prefill(8)
        a("s_branch L_F_loader")
        a(f"{skip}:\ns_barrier")
        a(f"s_cmp_lg_u32 s{S_WAVE}, 7\ns_cbranch_scc1 L_F_u4")
        a(f"s_mul_i32 s{S_T0}, s{S_DT}, 24\ns_add_u32 s{S_T0}, s{S_T0}, s{S_FT}\ns_mul_i32 s{S_T0}, s{S_T0}, {FS}\ns_add_u32 s{S_T0}, s{S_T0}, {F_U}")
        self.flag_store(S_T0, 12)
        self.stamp(4, 12)
        a("s_branch L_F_poller")

    def w2_l2_prefetch(self, VT):
        a = self.a
        self.srd(R_W2, P_W2, 1536 * 4096)
        a(f"""
        v_lshrrev_b32 v{VT}, 3, v1
        v_and_b32 v{VT+1}, 7, v1
        v_lshlrev_b32 v{VT+1}, 7, v{VT+1}
        v_lshl_add_u32 v{VT}, v{VT}, 12, v{VT+1}
        s_mul_i32 s{S_T0}, s{S_J}, 48
        s_and_b32 s{S_T0+1}, s{S_WAVE}, 3
        s_mul_i32 s{S_T0+1}, s{S_T0+1}, 12
        s_add_u32 s{S_T0}, s{S_T0}, s{S_T0+1}
        s_lshl_b32 s{S_T0}, s{S_T0}, 12
        s_lshr_b32 s{S_T0+1}, s{S_XCD}, 1
        s_lshl_b32 s{S_T0+1}, s{S_T0+1}, 10
        s_add_u32 s{S_T0}, s{S_T0}, s{S_T0+1}
        buffer_load_dword v{VT+2}, v{VT}, s[{R_W2}:{R_W2+3}], s{S_T0} offen
        s_add_u32 s{S_T0}, s{S_T0}, {8*4096}
        s_mov_b32 exec_hi, 0
        buffer_load_dword v{VT+3}, v{VT}, s[{R_W2}:{R_W2+3}], s{S_T0} offen
        s_mov_b64 exec, -1
        """)

    def tr_addr(self, VT):
        a = self.a
        a(f"""
        v_and_b32 v{VT+1}, 15, v1
        v_lshrrev_b32 v{VT+2}, 4, v1
        v_lshrrev_b32 v{VT+3}, 2, v{VT+1}
        v_lshl_add_u32 v{VT+3}, v{VT+2}, 2, v{VT+3}
        v_bfe_u32 v{VT+2}, v{VT+3}, 1, 2
        v_lshlrev_b32 v{VT+3}, 7, v{VT+3}
        v_lshl_add_u32 v{VT+3}, v{VT+2}, 5, v{VT+3}
        v_and_b32 v{VT+1}, 3, v{VT+1}
        v_lshl_add_u32 v{VT}, v{VT+1}, 3, v{VT+3}
        v_xor_b32 v{VT+1}, 32, v{VT}
        v_xor_b32 v{VT+2}, 64, v{VT}
        v_xor_b32 v{VT+3}, 96, v{VT}
        """)

    def helper(self):
        a = self.a
        a("L_helper:")
        a(f"""
        s_lshl_b32 s{S_D}, s{S_XCD}, 1
        s_add_u32 s{S_D}, s{S_D}, s{S_J}
        s_sub_u32 s{S_D}, s{S_D}, 30
        """)
        self.srd(R_W, P_WO, 640 * 1280)
        for p in range(5):
            a(f"""
            v_add_u32 v12, {p*64}, v1
            v_mul_u32_u24 v13, 205, v12
            v_lshrrev_b32 v13, 11, v13
            v_mul_u32_u24 v14, 10, v13
            v_sub_u32 v14, v12, v14
            v_lshlrev_b32 v14, 4, v14
            v_mul_u32_u24 v13, 1280, v13
            v_add_u32 v{16+p}, v13, v14
            """)
            if p in (1, 2, 3):
                a(f"v_subrev_u32 v{16+p}, {p*1024}, v{16+p}")
        a(f"""
        s_mov_b32 s{S_C}, s{S_WAVE}
        L_H_ld:
        s_mul_i32 s{S_A}, s{S_C}, {32*1280}
        s_mul_i32 s{S_T0}, s{S_D}, 160
        s_add_u32 s{S_A}, s{S_A}, s{S_T0}
        s_mul_i32 s{S_B}, s{S_C}, 5120
        s_mov_b32 m0, s{S_B}
        s_nop 0
        """)
        for p in range(4):
            a(f"buffer_load_dwordx4 v{16+p}, s[{R_W}:{R_W+3}], s{S_A} offen offset:{p*1024} lds")
        a(f"s_add_u32 m0, s{S_B}, 4096\ns_nop 0\nbuffer_load_dwordx4 v20, s[{R_W}:{R_W+3}], s{S_A} offen lds")
        a(f"""
        s_add_u32 s{S_C}, s{S_C}, 8
        s_cmp_lt_u32 s{S_C}, 20
        s_cbranch_scc1 L_H_ld
        v_and_b32 v12, 15, v1
        v_lshrrev_b32 v13, 4, v1
        v_lshrrev_b32 v14, 2, v12
        v_lshl_add_u32 v14, v13, 2, v14
        v_mul_u32_u24 v14, 160, v14
        v_and_b32 v12, 3, v12
        v_lshl_add_u32 v14, v12, 3, v14
        v_lshlrev_b32 v15, 4, v1
        s_waitcnt vmcnt(0)
        s_barrier
        s_mov_b32 s{S_C}, s{S_WAVE}
        L_H_tr:
        s_lshr_b32 s{S_T0}, s{S_C}, 1
        s_mul_i32 s{S_T0}, s{S_T0}, 5
        s_and_b32 s{S_T0+1}, s{S_C}, 1
        s_lshl_b32 s{S_T0+1}, s{S_T0+1}, 1
        s_add_u32 s{S_T0}, s{S_T0}, s{S_T0+1}
        s_add_u32 s{S_T0+1}, s{S_T0}, 1
        s_mul_i32 s{S_T0+2}, s{S_C}, 10
        s_sub_u32 s{S_T0+2}, s{S_T0+2}, 156
        s_add_u32 s{S_T0+3}, s{S_T0+2}, 5
        s_cmp_lt_u32 s{S_C}, 16
        s_cselect_b32 s{S_T0}, s{S_T0}, s{S_T0+2}
        s_cselect_b32 s{S_T0+1}, s{S_T0+1}, s{S_T0+3}
        s_mul_i32 s{S_T0}, s{S_T0}, 2560
        s_mul_i32 s{S_T0+1}, s{S_T0+1}, 2560
        v_add_u32 v12, s{S_T0}, v14
        v_add_u32 v13, s{S_T0+1}, v14
        """)
        for b in range(5):
            a(f"ds_read_b64_tr_b16 {vr(24+4*b,2)}, v12 offset:{b*32}\nds_read_b64_tr_b16 {vr(26+4*b,2)}, v13 offset:{b*32}")
        a(f"""
        s_mul_i32 s{S_T0}, s{S_D}, {5*UW_ST}
        s_lshl_b32 s{S_T0+1}, s{S_C}, 10
        s_add_u32 s{S_T0}, s{S_T0}, s{S_T0+1}
        s_add_u32 s{S_T0}, s{S_T0}, {UW + 49152}
        """)
        for b in range(5):
            a(f"s_waitcnt lgkmcnt({8-2*b})")
            a(f"buffer_store_dwordx4 {vr(24+4*b,4)}, v15, s[{R_WS}:{R_WS+3}], s{S_T0} offen sc1")
            if b < 4:
                a(f"s_add_u32 s{S_T0}, s{S_T0}, {UW_ST}")
        a(f"""
        s_add_u32 s{S_C}, s{S_C}, 8
        s_cmp_lt_u32 s{S_C}, 20
        s_cbranch_scc1 L_H_tr
        s_waitcnt vmcnt(0)
        s_barrier
        """)
        skip = self.if_wave56()
        self.w2_setup()
        self.w2_prefill(8)
        a(f"s_branch L_F_loader\n{skip}:")
        a(f"s_cmp_lt_u32 s{S_WAVE}, 4\ns_cbranch_scc1 L_F_comp\ns_cmp_lg_u32 s{S_WAVE}, 7\ns_cbranch_scc1 L_F_u4")
        a(f"s_mul_i32 s{S_T0}, s{S_D}, {FS}\ns_add_u32 s{S_T0}, s{S_T0}, {F_WOT}")
        self.flag_store(S_T0, 12)
        a("s_branch L_F_poller")

    def final(self):
        a = self.a
        a("L_F_comp:")
        if self.stop == "phase1":
            a("s_branch L_end")
        PF, WF, ACC, U4, ACC4 = 64, 128, 160, 176, 184
        VT, VL, VU4, VT2, GV, BV, VGH, VG8 = 8, 12, 13, 16, 20, 24, 28, 32
        a(f"""
        s_mul_i32 s{S_T0}, s{S_DTILE}, 5
        s_add_u32 s{S_D}, s{S_T0}, s{S_WAVE}
        s_mul_i32 s{S_T0}, s{S_D}, {UW_ST}
        s_add_u32 s{S_T0}, s{S_T0}, {UW}
        """)
        self.srd(R_P, P_WS, UW_ST, off_s=S_T0)
        self.srd(R_M, P_B2, 4096)
        self.srd(R_OUT, P_OUT, 2048 * 1280)
        self.tr_addr(4)
        a(f"""
        v_lshlrev_b32 v{VL}, 4, v1
        v_add_u32 v{VU4}, 0x20000, v{VL}
        v_lshlrev_b32 v5, 3, v1
        v_and_b32 v2, 15, v1
        v_lshlrev_b32 v3, 1, v2
        v_lshlrev_b32 v2, 2, v2
        """)
        SB = S_MSK
        for b in range(4):
            a(f"""
            s_add_u32 s{SB+b}, s{S_WAVE}, {b}
            s_and_b32 s{SB+b}, s{SB+b}, 3
            s_lshl_b32 s{S_T0}, s{SB+b}, 5
            v_xor_b32 v{VT+b}, s{S_T0}, v4
            s_lshl_b32 s{S_T0+1}, s{S_ST}, 7
            s_add_u32 s{S_T0}, s{S_T0}, s{S_T0+1}
            buffer_load_ushort v{BV+b}, v3, s[{R_M}:{R_M+3}], s{S_T0} offen
            v_add_u32 v{VT2+b}, 0x10000, v{VT+b}
            s_lshl_b32 s{S_T0}, s{SB+b}, 12
            v_add_u32 v{VG8+b}, s{S_T0}, v5
            s_add_u32 s{S_T0}, s{S_T0}, 0x10000
            v_add_u32 v{VGH+b}, s{S_T0}, v{VL}
            """)
        for r in range(16):
            a(f"v_mov_b32 v{ACC+r}, 0")
        for r in range(4):
            a(f"v_mov_b32 v{ACC4+r}, 0")
        a(f"s_lshl_b32 s{S_A}, s{S_ST}, 8\ns_add_u32 s{S_A}, s{S_A}, {G_OFF}\ns_mov_b32 s{S_C}, 0")
        a("s_barrier")
        for t in range(4):
            for ks in range(4):
                a(f"buffer_load_dwordx4 {vr(PF+16*t+4*ks,4)}, v{VL}, s[{R_P}:{R_P+3}], s{S_C} offen offset:{ks*1024} sc1")
            a(f"s_add_u32 s{S_C}, s{S_C}, 4096")
            if t == 0:
                a("s_barrier")
            if t == 3:
                for b in range(4):
                    a(f"s_lshl_b32 s{S_T0}, s{SB+b}, 6\ns_add_u32 s{S_T0}, s{S_T0}, s{S_A}")
                    a(f"buffer_load_dword v{GV+b}, v2, s[{R_WS}:{R_WS+3}], s{S_T0} offen sc1")

        mid = "s_nop 7\n"
        for b in range(4):
            mid += f"v_lshlrev_b32 v{BV+b}, 16, v{BV+b}\nv_sub_f32 v{GV+b}, 1.0, v{GV+b}\n"
        blocks = [(ACC + 4 * b, b) for b in range(4)] + [(ACC4, 0)]
        for r0, b in blocks:
            for k in range(4):
                mid += f"v_add_f32 v{r0+k}, v{BV+b}, v{r0+k}\n"
        for r0, b in blocks:
            for k in range(4):
                mid += f"v_mul_f32 v{r0+k}, v{GV+b}, v{r0+k}\n"
        mid += "s_nop 1\n"

        stages = []
        for t in range(17):
            slot = t % 8
            hi = slot >= 4
            uses = []
            for ks in range(4):
                for b in range(4):
                    g = ks * 4 + b
                    wb = WF + 4 * (g % 8)
                    reads = []
                    u4 = U4 + 4 * (ks & 1)
                    if b == 0:
                        reads.append((f"u{ks}", f"ds_read_b128 {vr(u4,4)}, v{VU4} offset:{slot*4096 + ks*1024}"))
                    if t < 12:
                        off = (slot & 3) * 16384 + ks * 4096
                        va = (VT2 if hi else VT) + b
                        reads += [(f"w{g}a", f"ds_read_b64_tr_b16 {vr(wb,2)}, v{va} offset:{off}"),
                                  (f"w{g}b", f"ds_read_b64_tr_b16 {vr(wb+2,2)}, v{va} offset:{off+2048}")]
                    elif t < 16:
                        assert hi
                        off = (slot & 3) * 16384 + ks * 1024
                        reads += [(f"w{g}b", f"ds_read_b128 {vr(wb,4)}, v{VGH+b} offset:{off}")]
                    else:
                        off = (slot & 3) * 16384 + ks * 1024
                        assert not hi
                        reads += [(f"w{g}a", f"ds_read_b64 {vr(wb,2)}, v{VG8+b} offset:{off}"),
                                  (f"w{g}b", f"ds_read_b64 {vr(wb+2,2)}, v{VG8+b} offset:{off+512}")]
                    acc = vr(ACC + 4 * b, 4)
                    pf = vr(PF + 16 * (t % 4) + 4 * ks, 4)
                    mf = [f"v_mfma_f32_16x16x32_bf16 {acc}, {pf}, {vr(wb,4)}, {acc}"]
                    if b == 0:
                        mf.append(f"v_mfma_f32_16x16x32_bf16 {vr(ACC4,4)}, {vr(u4,4)}, {vr(wb,4)}, {vr(ACC4,4)}")
                    d = dict(reads=reads, need=[f"w{g}b"], mf=mf)
                    if b == 0:
                        k = t * 4 + ks
                        n = min(k + 15, 67) - k
                        if t < 4:
                            n += 4
                        d["vm"] = n
                    if b == 3 and t + 4 < 17:
                        d["after"] = f"buffer_load_dwordx4 {pf}, v{VL}, s[{R_P}:{R_P+3}], s{S_C} offen offset:{ks*1024} sc1"
                        if ks == 3:
                            d["after"] += f"\ns_add_u32 s{S_C}, s{S_C}, 4096"
                    if t == 12 and g == 0:
                        d["before"] = mid
                    uses.append(d)
            stages.append(dict(uses=uses, bar="s_barrier" if t else ""))
        self.pipeline(stages, 6, 16 - 3)
        self.stamp(8, 2)
        a(f"""
        v_and_b32 v2, 15, v1
        v_mul_u32_u24 v2, 1280, v2
        v_lshrrev_b32 v3, 4, v1
        v_lshl_add_u32 v2, v3, 3, v2
        s_mul_i32 s{S_A}, s{S_ST}, {64*1280}
        s_lshl_b32 s{S_T0+1}, s{S_D}, 5
        s_add_u32 s{S_B}, s{S_A}, s{S_T0+1}
        s_mul_i32 s{S_T0+1}, s{S_DTILE}, 160
        s_add_u32 s{S_A}, s{S_A}, s{S_T0+1}
        s_add_u32 s{S_A}, s{S_A}, 128
        """)
        for r, b in blocks:
            a(f"s_mul_i32 s{S_T0}, s{SB+b}, {16*1280}\ns_add_u32 s{S_T0}, s{S_T0}, s{S_A if r == ACC4 else S_B}")
            a(f"v_cvt_pk_bf16_f32 v{r}, v{r}, v{r+1}\nv_cvt_pk_bf16_f32 v{r+1}, v{r+2}, v{r+3}")
            a(f"buffer_store_dwordx2 {vr(r,2)}, v2, s[{R_OUT}:{R_OUT+3}], s{S_T0} offen")
        if self.stamps:
            a("s_waitcnt vmcnt(0)")
            self.stamp(9, 2)
        a(f"s_or_b32 s{S_T0}, s2, s{S_WAVE}\ns_cmp_lg_u32 s{S_T0}, 0\ns_cbranch_scc1 L_end\ns_mov_b32 s{S_T0}, 0")
        self.flag_store(S_T0, 4)
        a("s_branch L_end")

        a("L_F_u4:")
        if self.stop == "phase1":
            a("s_branch L_end")
        a(f"""
        v_lshlrev_b32 v{VL}, 4, v1
        s_mul_i32 s{S_C}, s{S_DTILE}, {5*UW_ST}
        s_add_u32 s{S_C}, s{S_C}, {UW + 4*UW_ST}
        s_barrier
        """)

        def u4_issue(iv):
            a(f"s_mov_b32 m0, {0x20000 + (iv % 8)*4096:#x}\ns_add_u32 s{S_T0}, s{S_C}, {iv*4096}")
            for i in range(4):
                a(f"buffer_load_dwordx4 v{VL}, s[{R_WS}:{R_WS+3}], s{S_T0} offen offset:{i*1024} sc1 lds")
        order = []
        for iv in range(8):
            u4_issue(iv)
            order.append(iv)
            if iv == 2:
                a("s_waitcnt vmcnt(8)\ns_barrier")
        for tb in range(1, 17):
            a(f"s_waitcnt vmcnt({4*len(order[order.index(tb)+1:])})\ns_barrier")
            if tb + 7 <= 16:
                u4_issue(tb + 7)
                order.append(tb + 7)
        a("s_branch L_end")

        a("L_F_loader:")
        if self.stop == "phase1":
            a("s_branch L_end")
        a(f"v_lshlrev_b32 v{VL}, 4, v1\ns_barrier")
        a(f"""
        s_sub_u32 s{S_T0}, s{S_WAVE}, 5
        s_lshl_b32 s{S_T0}, s{S_T0}, 1
        s_lshl_b32 s{S_T0+1}, s{S_ST}, 2
        s_add_u32 s{S_T0+1}, s{S_T0+1}, s{S_T0}
        s_mul_i32 s{S_C}, s{S_T0+1}, {GO_ST}
        s_add_u32 s{S_C}, s{S_C}, {GO}
        s_lshl_b32 s{S_D}, s{S_T0}, 12
        """)
        order = list(range(8))
        for tb in range(17):
            after = [x for x in order[order.index(tb) + 1:]]
            n = 8 * len(after)
            a(f"s_waitcnt vmcnt({min(n,63)})\ns_barrier")
            t = tb - 1
            if 0 <= t <= 3:
                self.w2_issue()
                order.append(t + 8)
            if 8 <= t <= 12:
                iv = t + 4
                g = iv - 12
                for s2 in range(2):
                    a(f"s_add_u32 m0, s{S_D}, {(iv % 8)*16384 + s2*4096}\ns_add_u32 s{S_T0}, s{S_C}, {s2*GO_ST + g*4096}")
                    for i in range(4):
                        a(f"buffer_load_dwordx4 v{VL}, s[{R_WS}:{R_WS+3}], s{S_T0} offen offset:{i*1024} sc1 lds")
                order.append(iv)
        a("s_branch L_end")
        a("L_F_poller:")
        if self.stop == "phase1":
            a("s_branch L_end")
        a(f"""
        s_mul_i32 s{S_T0}, s{S_DTILE}, 5
        s_lshr_b32 s{S_T0+1}, s{S_T0}, 3
        s_add_u32 s{S_T0}, s{S_T0}, 4
        s_lshr_b32 s{S_T0}, s{S_T0}, 3
        s_mul_i32 s{S_T0}, s{S_T0}, 24
        s_mul_i32 s{S_T0+1}, s{S_T0+1}, 24
        v_and_b32 v2, 31, v1
        v_min_u32 v2, 23, v2
        v_add_u32 v3, s{S_T0}, v2
        v_add_u32 v2, s{S_T0+1}, v2
        v_cmp_gt_u32 vcc, 32, v1
        s_mul_i32 s{S_T0}, s{S_DTILE}, {FS}
        s_add_u32 s{S_T0}, s{S_T0}, {F_WOT}
        v_cndmask_b32 v2, v2, v3, vcc
        v_mul_u32_u24 v2, {FS}, v2
        v_add_u32 v2, {F_U}, v2
        v_mov_b32 v3, s{S_T0}
        v_cmp_eq_u32 vcc, 63, v1
        s_nop 1
        v_cndmask_b32 v2, v2, v3, vcc
        """)
        self.poll([2], 4)
        self.stamp(6, 4)
        a("s_barrier")
        a(f"""
        v_and_b32 v2, 7, v1
        s_lshr_b32 s{S_T0}, s{S_ST}, 1
        s_lshl_b32 s{S_T0}, s{S_T0}, 3
        v_add_u32 v2, s{S_T0}, v2
        v_mul_u32_u24 v2, {FS}, v2
        v_add_u32 v2, {F_GO}, v2
        """)
        for tb in range(9):
            a("s_barrier")
            self.stamp(32 + tb, 4)
        self.poll([2], 4)
        self.stamp(7, 4)
        for tb in range(9, 17):
            a("s_barrier")
            self.stamp(32 + tb, 4)
        a("L_end:\ns_endpgm")

    def build(self, header):
        a = self.a
        self.prologue()
        self.role_a()
        self.role_b()
        self.helper()
        self.final()
        body = a.text()
        out = header
        out += f"; @launch grid=(256,1,1) block=(512,1,1) lds={LDS_BYTES}\n"
        out += f'.amdgcn_target "amdgcn-amd-amdhsa--gfx950"\n.text\n.globl {KNAME}\n.p2align 8\n.type {KNAME},@function\n{KNAME}:\n'
        out += body
        out += f""".section .rodata,"a"
.p2align 6
.amdhsa_kernel {KNAME}
  .amdhsa_next_free_vgpr 256
  .amdhsa_next_free_sgpr 102
  .amdhsa_accum_offset 256
  .amdhsa_group_segment_fixed_size 0
  .amdhsa_kernarg_size 96
  .amdhsa_user_sgpr_count 2
  .amdhsa_user_sgpr_kernarg_segment_ptr 1
  .amdhsa_system_sgpr_workgroup_id_x 1
  .amdhsa_float_denorm_mode_32 3
.end_amdhsa_kernel
"""
        return out


def header():
    ref = open("gated_mix__linear_attn_block__mixer_token_mlp__prompt.s.ref").read().split("\n")
    h = []
    for l in ref:
        if l.startswith("; Override"):
            break
        h.append(l)
    return "\n".join(h) + "\n"


if __name__ == "__main__":
    import argparse
    p = argparse.ArgumentParser()
    p.add_argument("-o", default="gated_mix__linear_attn_block__mixer_token_mlp__prompt.s")
    p.add_argument("--stamps", action="store_true")
    p.add_argument("--stop", default=None)
    p.add_argument("--opt", default="")
    args = p.parse_args()
    opts = {k: (int(v) if v else 1) for k, _, v in (x.partition('=') for x in args.opt.split(',') if x)}
    g = Gen(stamps=args.stamps, stop=args.stop, opts=opts)
    open(args.o, "w").write(g.build(header()))
    print("wrote", args.o)
```

```python
import sys

KNAME = "gated_mix__linear_attn_block__mixer_token_mlp__prompt_kernel"

FS = 128
F_LN, F_KV, F_U, F_GO, F_WOT = 0x1000, 0x5000, 0x9000, 0xD000, 0x11000
G_OFF = 0x12000
STAMP = 0x8C0000
KVP = 0x20000
KVP_ST = 7168
HT = 0x100000
UW = 0x380000
UW_ST = 69632
GO = 0x640000
GO_ST = 20480
WS_USED = 0x8E0000
TAG_INC = 0x9E3779B9
SPIN_LIMIT = 1 << 17

LDS_BYTES = 163840
LNBUF = 131072
LN_ST = 1312
LNG = LNBUF + 16 * LN_ST
A_SLOT = 49152
A_WOFF = 16384
EXCH_ST = 14336
KVT = 147456
ZH = KVT + 11 * 1024

LOG2E = 0x3FB8AA3B


def f2u(x):
    import struct
    return struct.unpack("<I", struct.pack("<f", x))[0]


class Asm:
    def __init__(self):
        self.L = []
        self.nlab = 0

    def __call__(self, s):
        for line in s.split("\n"):
            line = line.strip()
            if line:
                self.L.append(("    " if not line.endswith(":") else "") + line)

    def label(self, base):
        self.nlab += 1
        return f"L{base}_{self.nlab}"

    def text(self):
        return "\n".join(self.L) + "\n"


def vr(a, n=1):
    return f"v{a}" if n == 1 else f"v[{a}:{a+n-1}]"


def sr(a, n=1):
    return f"s{a}" if n == 1 else f"s[{a}:{a+n-1}]"


P_X, P_WQKV, P_WO, P_BX, P_W1, P_B1, P_W2, P_B2 = 4, 6, 8, 10, 12, 14, 16, 18
P_GATE, P_OUT, P_DBG, P_WS = 20, 22, 24, 26
S_TAG, S_WAVE = 28, 29
S_XCD, S_J = 30, 31
R_WS, R_X, R_W, R_P, R_W2, R_M, R_OUT = 32, 36, 40, 44, 48, 52, 56
S_T0 = 60
S_MT, S_HG, S_DT, S_FT, S_KST, S_PAR = 70, 71, 72, 73, 74, 75
S_ST, S_DTILE = 76, 77
S_CNT = 78
S_A, S_B, S_C, S_D = 80, 81, 82, 83
S_MSK = 84
S_K0 = 90
S_STMP = 96


class Gen:
    def __init__(self, stamps=False, stop=None, opts=None):
        self.o = opts or {}
        self.a = Asm()
        self.stamps = stamps
        self.stop = stop

    def srd(self, dst, ptr, nbytes, off_s=None):
        a = self.a
        if off_s is None:
            a(f"s_mov_b32 s{dst}, s{ptr}\ns_and_b32 s{dst+1}, s{ptr+1}, 0xffff")
        else:
            a(f"s_add_u32 s{dst}, s{ptr}, s{off_s}\ns_addc_u32 s{dst+1}, s{ptr+1}, 0\ns_and_b32 s{dst+1}, s{dst+1}, 0xffff")
        a(f"s_mov_b32 s{dst+2}, {nbytes:#x}\ns_mov_b32 s{dst+3}, 0x20000")

    def stamp(self, k, vtmp, dyn=None):
        if self.o.get("dbg"):
            m = {0: 0, 11: 1, 1: 2, 2: 3, 3: 4, 4: 5, 6: 6, 9: 7}
            mA = {0: 0, 1: 1, 2: 2, 3: 3, 4: 4, 5: 5, 6: 6, 9: 7}
            if dyn is not None:
                return
            a = self.a
            for wg, mp, base in ((8, m, 0), (12, mA, 8)):
                if k in mp:
                    lab = a.label("nd")
                    a(f"s_cmp_lg_u32 s2, {wg}\ns_cbranch_scc1 {lab}")
                    a(f"s_memrealtime s[{S_STMP}:{S_STMP+1}]\ns_waitcnt lgkmcnt(0)")
                    a(f"v_mov_b32 v{vtmp}, s{S_STMP}\nv_mov_b32 v{vtmp+2}, {4*(base+mp[k])}")
                    a(f"s_mov_b64 exec, 1\nglobal_store_dword v{vtmp+2}, v{vtmp}, s[{P_DBG}:{P_DBG+1}]\ns_mov_b64 exec, -1\n{lab}:")
            return
        if not self.stamps:
            return
        a = self.a
        a(f"s_memrealtime s[{S_STMP}:{S_STMP+1}]\ns_memtime s[100:101]\ns_waitcnt lgkmcnt(0)\ns_mov_b32 s{S_STMP+1}, s100")
        a(f"s_lshl_b32 s{S_STMP+2}, s2, 9\ns_add_u32 s{S_STMP+2}, s{S_STMP+2}, {STAMP + 8*k}")
        if dyn is not None:
            a(f"s_lshl_b32 s{S_STMP+3}, s{dyn}, 3\ns_add_u32 s{S_STMP+2}, s{S_STMP+2}, s{S_STMP+3}")
        a(f"v_mov_b32 v{vtmp}, s{S_STMP}\nv_mov_b32 v{vtmp+1}, s{S_STMP+1}\nv_mov_b32 v{vtmp+2}, 0")
        a(f"s_mov_b64 exec, 1\nbuffer_store_dwordx2 v[{vtmp}:{vtmp+1}], v{vtmp+2}, s[{R_WS}:{R_WS+3}], s{S_STMP+2} offen\ns_mov_b64 exec, -1")

    def poll(self, voffs, vtmp):
        a = self.a
        lp, dn = a.label("poll"), a.label("pdone")
        a(f"s_mov_b32 s{S_CNT}, 0\n{lp}:")
        for i, vo in enumerate(voffs):
            a(f"buffer_load_dword v{vtmp+i}, v{vo}, s[{R_WS}:{R_WS+3}], 0 offen sc1")
        a("s_waitcnt vmcnt(0)")
        a(f"v_cmp_ne_u32 vcc, s{S_TAG}, v{vtmp}")
        for i in range(1, len(voffs)):
            a(f"v_cmp_ne_u32 s[{S_T0}:{S_T0+1}], s{S_TAG}, v{vtmp+i}\ns_nop 1\ns_or_b64 vcc, vcc, s[{S_T0}:{S_T0+1}]")
        a(f"s_nop 1\ns_cmp_eq_u64 vcc, 0\ns_cbranch_scc1 {dn}")
        a(f"s_add_u32 s{S_CNT}, s{S_CNT}, 1\ns_cmp_lt_u32 s{S_CNT}, {SPIN_LIMIT}\ns_cbranch_scc0 {dn}\ns_sleep 1\ns_branch {lp}\n{dn}:")

    def flag_store(self, s_off, vtmp):
        a = self.a
        a(f"v_mov_b32 v{vtmp}, s{S_TAG}\nv_mov_b32 v{vtmp+1}, 0\ns_mov_b64 exec, 1")
        a(f"buffer_store_dword v{vtmp}, v{vtmp+1}, s[{R_WS}:{R_WS+3}], s{s_off} offen sc1\ns_mov_b64 exec, -1")

    def pipeline(self, stages, D, gstar, prologue=True, loop_label=None, loop_cond=None):
        a = self.a
        seq = []
        for si, st in enumerate(stages):
            for gi, u in enumerate(st["uses"]):
                seq.append((si, gi, u))
        issued = []
        nxt = 0
        opened = -1

        def issue_upto(lim):
            nonlocal nxt
            while nxt < len(seq) and nxt <= lim and seq[nxt][0] <= opened:
                for name, txt in seq[nxt][2]["reads"]:
                    a(txt)
                    issued.append(name)
                nxt += 1

        def open_stage(s):
            nonlocal opened
            a(stages[s]["bar"])
            opened = s

        if prologue:
            open_stage(0)
            issue_upto(D - 2)
        n_real = sum(len(st["uses"]) for st in stages if not st.get("virtual"))
        for f in range(n_real):
            si, gi, u = seq[f]
            if gi == 0 and stages[si].get("head"):
                a(stages[si]["head"])
            if gi == gstar and si + 1 < len(stages):
                a("s_waitcnt lgkmcnt(0)")
                issued.append("__drain")
                open_stage(si + 1)
                issue_upto(f + D - 1)
            issue_upto(f + D - 1)
            last = -1
            for nm in u["need"]:
                idx = len(issued) - 1 - issued[::-1].index(nm)
                last = max(last, idx)
            drain = (len(issued) - 1 - issued[::-1].index("__drain")) if "__drain" in issued else -1
            w = []
            if last > drain:
                n = sum(1 for x in issued[last + 1:] if x != "__drain")
                assert n <= 15, n
                if u.get("lastwait") != n or True:
                    w.append(f"lgkmcnt({n})")
            if u.get("vm") is not None:
                w.insert(0, f"vmcnt({u['vm']})")
            if w:
                a("s_waitcnt " + " ".join(w))
            if u.get("before"):
                a(u["before"])
            for m in u["mf"]:
                a(m)
            if u.get("after"):
                a(u["after"])
            if gi == len(stages[si]["uses"]) - 1 and stages[si].get("tail"):
                a(stages[si]["tail"])

    def prologue(self):
        a = self.a
        a(f"""
        s_cmp_ge_u32 s2, 256
        s_cbranch_scc1 L_end
        s_load_dwordx16 s[4:19], s[0:1], 0
        s_load_dwordx8 s[20:27], s[0:1], 64
        v_and_b32 v1, 63, v0
        v_lshrrev_b32 v2, 6, v0
        s_and_b32 s{S_XCD}, s2, 7
        v_readfirstlane_b32 s{S_WAVE}, v2
        s_lshr_b32 s{S_J}, s2, 3
        s_waitcnt lgkmcnt(0)
        s_load_dword s{S_TAG}, s[{P_WS}:{P_WS+1}], 0
        """)
        self.srd(R_WS, P_WS, WS_USED)
        self.srd(R_X, P_X, 2048 * 1280)
        if self.stamps or self.o.get("dbg"):
            a(f"s_cmp_lg_u32 s{S_WAVE}, 0\ns_cbranch_scc1 L_nost0")
            self.stamp(0, 4)
            a("L_nost0:")
        if self.o.get("pf_code"):
            self.code_prefetch()
        a(f"""
        s_lshr_b32 s{S_T0}, s{S_XCD}, 1
        s_lshl_b32 s{S_T0}, s{S_T0}, 3
        s_lshr_b32 s{S_ST}, s{S_J}, 2
        s_add_u32 s{S_ST}, s{S_ST}, s{S_T0}
        s_and_b32 s{S_T0}, s{S_XCD}, 1
        s_lshl_b32 s{S_T0}, s{S_T0}, 2
        s_and_b32 s{S_DTILE}, s{S_J}, 3
        s_add_u32 s{S_DTILE}, s{S_DTILE}, s{S_T0}
        s_cmp_lt_u32 s{S_XCD}, 4
        s_cbranch_scc1 L_roleB
        """)

    V_W2 = 240

    def w2_setup(self):
        a = self.a
        V = self.V_W2
        self.srd(R_W2, P_W2, 1536 * 4096)
        a(f"""
        v_lshrrev_b32 v{V}, 3, v1
        v_lshrrev_b32 v{V+1}, 4, v1
        v_lshlrev_b32 v{V+1}, 1, v{V+1}
        v_and_b32 v{V+2}, 7, v1
        v_xor_b32 v{V+1}, v{V+1}, v{V+2}
        v_lshlrev_b32 v{V+1}, 4, v{V+1}
        v_lshl_add_u32 v{V}, v{V}, 12, v{V+1}
        v_add_u32 v{V+1}, {32768-1024}, v{V}
        v_add_u32 v{V+2}, {2*(32768-1024)}, v{V}
        v_add_u32 v{V+3}, {3*(32768-1024)}, v{V}
        s_sub_u32 s{S_T0}, s{S_WAVE}, 5
        s_lshl_b32 s{S_B}, s{S_T0}, 13
        s_lshl_b32 s{S_A}, s{S_T0}, 18
        s_lshl_b32 s{S_T0}, s{S_ST}, 7
        s_add_u32 s{S_A}, s{S_A}, s{S_T0}
        """)

    def w2_issue(self):
        a = self.a
        V = self.V_W2
        for g in range(2):
            a(f"s_add_u32 m0, s{S_B}, {g*4096}")
            a(f"s_add_u32 s{S_T0}, s{S_A}, {g*4*32768}")
            for i in range(4):
                a(f"buffer_load_dwordx4 v{V+i}, s[{R_W2}:{R_W2+3}], s{S_T0} offen offset:{i*1024} lds")
        a(f"s_add_u32 s{S_A}, s{S_A}, {128*4096}\ns_add_u32 s{S_B}, s{S_B}, 16384\ns_and_b32 s{S_B}, s{S_B}, 0x1ffff")

    def w2_prefill(self, n):
        a = self.a
        lp = a.label("pf")
        a(f"s_mov_b32 s{S_C}, 0\n{lp}:")
        self.w2_issue()
        a(f"s_add_u32 s{S_C}, s{S_C}, 1\ns_cmp_lt_u32 s{S_C}, {n}\ns_cbranch_scc1 {lp}")

    def if_wave56(self):
        a = self.a
        skip = a.label("n56")
        a(f"s_sub_u32 s{S_T0}, s{S_WAVE}, 5\ns_cmp_lt_u32 s{S_T0}, 2\ns_cbranch_scc0 {skip}")
        return skip

    def role_a(self):
        a = self.a
        a("L_roleA:")
        a(f"s_sub_u32 s{S_MT}, s{S_ST}, 16\ns_mov_b32 s{S_HG}, s{S_DTILE}")
        a(f"s_cmp_ge_u32 s{S_WAVE}, 4\ns_cbranch_scc1 L_A_loader")
        ACC, XF, WF, VXA, VWA = 128, 96, 64, 4, 6
        if self.o.get("ta1") or self.o.get("ta2"):
            self.start_prefetch()
        self.a_thread_map()
        a(f"""
        v_and_b32 v16, 15, v1
        v_lshrrev_b32 v17, 4, v1
        s_lshl_b32 s{S_T0}, s{S_WAVE}, 5
        v_add_u32 v18, s{S_T0}, v16
        v_lshrrev_b32 v19, 1, v16
        v_xor_b32 v19, v17, v19
        v_lshlrev_b32 v19, 4, v19
        v_lshl_add_u32 v{VXA}, v18, 7, v19
        v_xor_b32 v{VXA+1}, 64, v{VXA}
        v_lshrrev_b32 v18, 2, v16
        v_lshl_add_u32 v19, v17, 3, v18
        v_and_b32 v20, 1, v17
        v_lshl_or_b32 v20, v20, 2, v18
        v_lshlrev_b32 v19, 9, v19
        v_lshl_add_u32 v19, v20, 5, v19
        v_and_b32 v20, 3, v16
        v_lshl_add_u32 v19, v20, 3, v19
        v_add_u32 v{VWA}, {A_WOFF}, v19
        """)
        for n in range(1, 8):
            a(f"v_xor_b32 v{VWA+n}, {n<<5}, v{VWA}")
        for r in range(120):
            a(f"v_mov_b32 v{ACC+r}, 0")
        a(f"s_mov_b32 s{S_A}, 0\ns_mov_b32 s{S_B}, 0\ns_mov_b32 s{S_C}, {A_SLOT}\ns_waitcnt lgkmcnt(0)")
        a(f"s_add_u32 s{S_TAG}, s{S_TAG}, {TAG_INC:#x}")

        RING = 6
        D = 6

        def mk_stage(bar, virtual=False, head=None, tail=None):
            uses = []
            for g in range(30):
                ks, n = divmod(g, 15)
                wb = WF + 4 * (g % RING)
                reads = []
                if g == 0:
                    for rb in range(2):
                        reads.append((f"x0{rb}", f"ds_read_b128 {vr(XF+4*rb,4)}, v{VXA} offset:{rb*2048}"))
                if g == 13:
                    for rb in range(2):
                        reads.append((f"x1{rb}", f"ds_read_b128 {vr(XF+8+4*rb,4)}, v{VXA+1} offset:{rb*2048}"))
                off = ks * 16384 + (n >> 3) * 256
                reads.append((f"w{g}a", f"ds_read_b64_tr_b16 {vr(wb,2)}, v{VWA+(n&7)} offset:{off}"))
                reads.append((f"w{g}b", f"ds_read_b64_tr_b16 {vr(wb+2,2)}, v{VWA+(n&7)} offset:{off+2048}"))
                need = [f"w{g}b", f"x{ks}1"]
                mf = []
                for rb in range(2):
                    acc = vr(ACC + (n * 2 + rb) * 4, 4)
                    xf = vr(XF + ks * 8 + rb * 4, 4)
                    wf = vr(wb, 4)
                    if n < 5:
                        mf.append(f"v_mfma_f32_16x16x32_bf16 {acc}, {wf}, {xf}, {acc}")
                    else:
                        mf.append(f"v_mfma_f32_16x16x32_bf16 {acc}, {xf}, {wf}, {acc}")
                uses.append(dict(reads=reads, need=need, mf=mf))
            return dict(uses=uses, bar=bar, virtual=virtual, head=head, tail=tail)

        adv = f"""s_barrier
        s_add_u32 s{S_B}, s{S_B}, 1
        s_cmp_eq_u32 s{S_B}, 3
        s_cselect_b32 s{S_B}, 0, s{S_B}
        s_cselect_b32 s{S_T0}, {(-2*A_SLOT) & 0xffffffff:#x}, s{S_C}
        """ + "\n".join(f"v_add_u32 v{r}, s{S_T0}, v{r}" for r in range(VXA, VWA + 8))
        tail = f"s_add_u32 s{S_A}, s{S_A}, 1\ns_cmp_lt_u32 s{S_A}, 10\ns_cbranch_scc1 L_A_loop"
        head = "L_A_loop:\n"
        bar0 = "s_barrier"
        ta2 = self.o.get("ta2")
        if ta2 == 1:
            a(self.pf_rest())
        elif ta2 == 2:
            bar0 += "\n" + self.pf_rest()
        elif ta2:
            head += f"s_cmp_lg_u32 s{S_A}, {ta2-2}\ns_cbranch_scc1 L_A_npf\n" + self.pf_rest() + "L_A_npf:\n"
        self.pipeline([mk_stage(bar0, head=head, tail=tail), mk_stage(adv, virtual=True)], D, 30 - 3)
        self.stamp(2, 16)
        PK, VV, ONES, KVD, ZD = 16, 36, 56, 64, 116
        a("s_waitcnt lgkmcnt(0)\ns_nop 7")
        a(f"s_mov_b32 s{S_K0}, {LOG2E:#x}\ns_mov_b32 s{S_K0+1}, {LOG2E:#x}\ns_mov_b32 s{S_K0+2}, {f2u(1e-6):#x}")

        def phi(base, n, t):
            for i in range(0, n, 4):
                r = base + i
                a(f"v_pk_mul_f32 {vr(t,2)}, {vr(r,2)}, s[{S_K0}:{S_K0+1}]")
                a(f"v_pk_mul_f32 {vr(t+2,2)}, {vr(r+2,2)}, s[{S_K0}:{S_K0+1}]")
                for k in range(4):
                    a(f"v_exp_f32_e64 v{t+k}, v{t+k} clamp")
                for k in range(4):
                    a(f"v_max_f32 v{r+k}, s{S_K0+2}, v{r+k}")
                a(f"v_pk_add_f32 {vr(r,2)}, {vr(r,2)}, {vr(t,2)}")
                a(f"v_pk_add_f32 {vr(r+2,2)}, {vr(r+2,2)}, {vr(t+2,2)}")

        def pack(dst, src0, src1):
            a(f"v_cvt_pk_bf16_f32 v{dst}, v{src0}, v{src0+1}\nv_cvt_pk_bf16_f32 v{dst+1}, v{src0+2}, v{src0+3}")
            if src1 is None:
                a(f"v_mov_b32 v{dst+2}, 0\nv_mov_b32 v{dst+3}, 0")
            else:
                a(f"v_cvt_pk_bf16_f32 v{dst+2}, v{src1}, v{src1+1}\nv_cvt_pk_bf16_f32 v{dst+3}, v{src1+2}, v{src1+3}")

        for b in range(5):
            pack(VV + 4 * b, ACC + (10 + b) * 8, ACC + (10 + b) * 8 + 4)
        for k in range(4):
            a(f"v_mov_b32 v{ONES+k}, 0x3f803f80")
        phi(ACC + 40, 40, 60)
        for b in range(5):
            pack(PK + 4 * b, ACC + (5 + b) * 8, ACC + (5 + b) * 8 + 4)
        a("s_nop 1")
        ZD = ACC + 80
        blocks = [(x, y) for x in range(5) for y in range(5) if abs(x - y) <= 1]
        for (x, y) in blocks:
            a(f"v_mfma_f32_16x16x32_bf16 {vr(KVD+4*(2*x+y),4)}, {vr(PK+4*x,4)}, {vr(VV+4*y,4)}, 0")
        for x in range(5):
            a(f"v_mfma_f32_16x16x32_bf16 {vr(ZD+4*x,4)}, {vr(ONES,4)}, {vr(PK+4*x,4)}, 0")
        a(f"""
        s_mul_i32 s{S_T0}, s{S_WAVE}, {EXCH_ST}
        v_lshlrev_b32 v60, 4, v1
        v_add_u32 v60, s{S_T0}, v60
        v_and_b32 v61, 15, v1
        v_lshlrev_b32 v61, 2, v61
        v_add_u32 v61, s{S_T0}, v61
        s_nop 3
        """)
        for i in range(13):
            a(f"ds_write_b128 v60, {vr(KVD+4*i,4)} offset:{i*1024}")
        for x in range(5):
            a(f"ds_write_b32 v61, v{ZD+4*x} offset:{13312+64*x}")
        a("s_waitcnt lgkmcnt(0)\ns_barrier")
        self.a_reduce_publish(64)
        a("s_waitcnt vmcnt(0)\ns_barrier")
        PQ = 16
        phi(ACC, 40, 60)
        for ts in range(3):
            for rb in range(2):
                pack(PQ + (ts * 2 + rb) * 4, ACC + (2 * ts * 2 + rb) * 4, None if ts == 2 else ACC + ((2 * ts + 1) * 2 + rb) * 4)
        a("s_barrier")
        a(f"""
        v_and_b32 v63, 15, v1
        v_lshlrev_b32 v63, 2, v63
        s_lshl_b32 s{S_T0}, s{S_MT}, 7
        s_lshl_b32 s{S_T0+1}, s{S_WAVE}, 5
        s_add_u32 s{S_T0}, s{S_T0}, s{S_T0+1}
        s_lshl_b32 s{S_T0}, s{S_T0}, 2
        s_add_u32 s{S_T0}, s{S_T0}, {G_OFF}
        buffer_load_dword v62, v63, s[{R_WS}:{R_WS+3}], s{S_T0} offen sc1
        buffer_load_dword v61, v63, s[{R_WS}:{R_WS+3}], s{S_T0} offen offset:64 sc1
        """)
        self.a_gather(64, 0)
        a("s_waitcnt lgkmcnt(0)\ns_barrier")
        self.stamp(4, 40)
        FR = 64
        a("v_lshlrev_b32 v60, 4, v1\nv_add_u32 v60, " + str(KVT) + ", v60")
        used = [0, 2, 3, 4, 5, 7, 8, 9, 10, 11, 12, 13]
        for f in used:
            a(f"ds_read_b128 {vr(FR+4*f,4)}, v60 offset:{f*1024}")
        NUM, DEN = 128, 168
        kts = {0: [0], 1: [0, 1], 2: [0, 1], 3: [1, 2], 4: [1, 2]}
        a(f"""
        v_lshrrev_b32 v40, 4, v1
        v_cmp_gt_u32 s[{S_MSK}:{S_MSK+1}], 1, v40
        v_cmp_gt_u32 s[{S_MSK+2}:{S_MSK+3}], 2, v40
        v_cmp_gt_u32 s[{S_MSK+4}:{S_MSK+5}], 3, v40
        s_waitcnt lgkmcnt(0)
        """)
        for rb in range(2):
            for ts in range(3):
                c = "0" if ts == 0 else vr(DEN + 4 * rb, 4)
                a(f"v_mfma_f32_16x16x32_bf16 {vr(DEN+4*rb,4)}, {vr(FR+4*(11+ts),4)}, {vr(PQ+(ts*2+rb)*4,4)}, {c}")
        for rb in range(2):
            for b in range(5):
                for i, ts in enumerate(kts[b]):
                    d = vr(NUM + (rb * 5 + b) * 4, 4)
                    c = "0" if i == 0 else d
                    a(f"v_mfma_f32_16x16x32_bf16 {d}, {vr(FR+4*(2*b+ts),4)}, {vr(PQ+(ts*2+rb)*4,4)}, {c}")
        for rb in range(2):
            for h in range(4):
                a(f"v_add_f32 v{DEN+4*rb+h}, s{S_K0+2}, v{DEN+4*rb+h}")
        for rb in range(2):
            for h in range(4):
                a(f"v_rcp_f32 v{DEN+4*rb+h}, v{DEN+4*rb+h}")
        a("s_waitcnt vmcnt(0)")
        gv = {0: 62, 1: 61}
        for rb in range(2):
            for h in range(4):
                a(f"v_mul_f32 v{DEN+4*rb+h}, v{gv[rb]}, v{DEN+4*rb+h}")
        a(f"""
        s_lshl_b32 s{S_T0}, s{S_MT}, 3
        s_lshl_b32 s{S_T0+1}, s{S_WAVE}, 1
        s_add_u32 s{S_T0}, s{S_T0}, s{S_T0+1}
        s_mul_i32 s{S_T0}, s{S_T0}, {GO_ST}
        s_add_u32 s{S_T0}, s{S_T0}, {GO}
        s_lshl_b32 s{S_T0+1}, s{S_HG}, 11
        s_add_u32 s{S_T0+1}, s{S_T0+1}, s{S_T0}
        s_lshl_b32 s{S_T0+2}, s{S_HG}, 9
        s_add_u32 s{S_T0+2}, s{S_T0+2}, s{S_T0}
        s_add_u32 s{S_T0+2}, s{S_T0+2}, 16384
        v_lshlrev_b32 v40, 4, v1
        v_lshlrev_b32 v41, 3, v1
        """)
        for rb in range(2):
            d = DEN + 4 * rb
            a(f"v_cndmask_b32 v44, v{d+1}, v{d}, s[{S_MSK}:{S_MSK+1}]")
            a(f"v_cndmask_b32 v45, v{d+2}, v{d+1}, s[{S_MSK+2}:{S_MSK+3}]")
            a(f"v_cndmask_b32 v46, v{d+3}, v{d+2}, s[{S_MSK+4}:{S_MSK+5}]")
            sc = [d, 44, 45, 46, d + 3]
            for b in range(5):
                for k in range(4):
                    r = NUM + (rb * 5 + b) * 4 + k
                    a(f"v_mul_f32 v{r}, v{sc[b]}, v{r}")
            o = 176 + rb * 12
            n0 = NUM + rb * 20
            pack(o, n0, n0 + 4)
            pack(o + 4, n0 + 8, n0 + 12)
            a(f"v_cvt_pk_bf16_f32 v{o+8}, v{n0+16}, v{n0+17}\nv_cvt_pk_bf16_f32 v{o+9}, v{n0+18}, v{n0+19}")
            a(f"buffer_store_dwordx4 {vr(o,4)}, v40, s[{R_WS}:{R_WS+3}], s{S_T0+1} offen sc1")
            a(f"buffer_store_dwordx4 {vr(o+4,4)}, v40, s[{R_WS}:{R_WS+3}], s{S_T0+1} offen offset:1024 sc1")
            a(f"buffer_store_dwordx2 {vr(o+8,2)}, v41, s[{R_WS}:{R_WS+3}], s{S_T0+2} offen sc1")
            if rb == 0:
                a(f"s_add_u32 s{S_T0+1}, s{S_T0+1}, {GO_ST}\ns_add_u32 s{S_T0+2}, s{S_T0+2}, {GO_ST}")
        a("s_waitcnt vmcnt(0)\ns_barrier")
        a("s_branch L_F_comp")

        a("L_A_loader:")
        VX, VW = 4, 8
        self.srd(R_W, P_WQKV, 640 * 3840)
        a(f"""
        s_sub_u32 s{S_D}, s{S_WAVE}, 4
        v_lshrrev_b32 v16, 3, v1
        v_lshrrev_b32 v17, 4, v1
        v_and_b32 v18, 7, v1
        v_xor_b32 v17, v17, v18
        v_lshlrev_b32 v17, 4, v17
        v_mul_u32_u24 v16, 1280, v16
        v_add_u32 v{VX}, v16, v17
        v_xor_b32 v18, 64, v{VX}
        v_add_u32 v{VX+1}, {8*1280-1024}, v18
        v_add_u32 v{VX+2}, {2*(8*1280-1024)}, v{VX}
        v_add_u32 v{VX+3}, {3*(8*1280-1024)}, v18
        s_lshl_b32 s{S_T0}, s{S_MT}, 7
        s_lshl_b32 s{S_T0+1}, s{S_D}, 5
        s_add_u32 s{S_T0}, s{S_T0}, s{S_T0+1}
        s_mul_i32 s{S_A}, s{S_T0}, 1280
        s_lshl_b32 s{S_C}, s{S_D}, 12
        """)
        def issue_x():
            a(f"s_mov_b32 m0, s{S_C}\ns_nop 0")
            for i in range(4):
                a(f"buffer_load_dwordx4 v{VX+i}, s[{R_X}:{R_X+3}], s{S_A} offen offset:{i*1024} lds")
            a(f"s_add_u32 s{S_A}, s{S_A}, 128")

        def issue_w():
            for g in range(2):
                a(f"s_lshl_b32 s{S_T0}, s{S_D}, 12\ns_add_u32 s{S_T0}, s{S_T0}, s{S_C}\ns_add_u32 m0, s{S_T0}, {A_WOFF + g*4096}\ns_nop 0")
                for i in range(4):
                    a(f"buffer_load_dwordx4 v{VW+4*g+i}, s[{R_W}:{R_W+3}], s{S_B} offen offset:{i*1024} lds")
            a(f"s_add_u32 s{S_B}, s{S_B}, {64*3840}")

        def next_slot():
            a(f"s_add_u32 s{S_C}, s{S_C}, {A_SLOT}\ns_cmp_ge_u32 s{S_C}, {3*A_SLOT}\ns_cselect_b32 s{S_T0}, {3*A_SLOT}, 0\ns_sub_u32 s{S_C}, s{S_C}, s{S_T0}")

        issue_x()
        a(f"""
        v_lshrrev_b32 v16, 5, v1
        v_bfe_u32 v17, v1, 1, 4
        v_and_b32 v18, 1, v1
        v_lshlrev_b32 v18, 4, v18
        v_mul_u32_u24 v19, 3840, v16
        v_add_u32 v18, v18, v19
        """)
        for i in (0, 1, 4, 5):
            sig = (2 * (i & 1)) | ((i >> 2) << 2)
            a(f"""
            v_or_b32 v19, {sig}, v16
            v_xor_b32 v19, v17, v19
            v_min_u32 v19, 14, v19
            v_mul_u32_u24 v20, 13, v19
            v_lshrrev_b32 v20, 6, v20
            v_mul_u32_u24 v20, 1120, v20
            v_lshl_add_u32 v19, v19, 5, v20
            v_add_u32 v19, v19, v18
            v_add_u32 v{VW+i}, {2*i*3840 - (i&3)*1024}, v19
            v_add_u32 v{VW+i+2}, {2*(i+2)*3840 - ((i+2)&3)*1024}, v19
            """)
        a(f"""
        s_mul_i32 s{S_B}, s{S_HG}, 160
        s_mul_i32 s{S_T0}, s{S_D}, {16*3840}
        s_add_u32 s{S_B}, s{S_B}, s{S_T0}
        """)
        issue_w()
        for _ in range(2):
            next_slot()
            issue_x()
            issue_w()
        a(f"v_lshlrev_b32 v16, 4, v1\ns_lshl_b32 s{S_T0}, s{S_D}, 12\ns_add_u32 s{S_T0}, s{S_T0}, {KVT}\nv_add_u32 v16, s{S_T0}, v16")
        a("v_mov_b32 v20, 0\nv_mov_b32 v21, 0\nv_mov_b32 v22, 0\nv_mov_b32 v23, 0")
        for i in range(4):
            a(f"ds_write_b128 v16, v[20:23] offset:{i*1024}")
        self.a_thread_map()
        a(f"s_waitcnt lgkmcnt(0)\ns_add_u32 s{S_TAG}, s{S_TAG}, {TAG_INC:#x}")
        a("s_waitcnt vmcnt(24)\ns_barrier")
        self.stamp(1, 16)
        a(f"s_mov_b32 s{S_CNT}, 1\nL_A_lloop:")
        a("s_waitcnt vmcnt(12)\ns_barrier")
        self.stamp(16, 16, dyn=S_CNT)
        next_slot()
        issue_x()
        issue_w()
        a(f"s_add_u32 s{S_CNT}, s{S_CNT}, 1\ns_cmp_le_u32 s{S_CNT}, 7\ns_cbranch_scc1 L_A_lloop")
        tw = 2 if self.o.get("tw2") else 0
        if tw:
            self.w2_touch()
        a(f"s_waitcnt vmcnt({12+tw})\ns_barrier")
        self.stamp(24, 16)
        a(f"s_waitcnt vmcnt({tw})\ns_barrier")
        self.stamp(25, 16)
        a("s_barrier")
        self.stamp(26, 16)
        a("s_barrier")
        a(f"s_cmp_eq_u32 s{S_WAVE}, 7\ns_cbranch_scc1 L_A_poller")
        self.a_reduce_publish(64)
        a("s_waitcnt vmcnt(0)\ns_barrier\ns_barrier")
        skip = self.if_wave56()
        self.a_gather(64, 0)
        a("s_waitcnt lgkmcnt(0)\ns_barrier\ns_barrier")
        self.w2_setup()
        self.w2_prefill(8)
        a("s_branch L_F_loader")
        a(f"{skip}:")
        self.a_gather(64, 0)
        a("s_waitcnt lgkmcnt(0)\ns_barrier\ns_barrier")
        a("s_branch L_F_u4")
        a("L_A_poller:\ns_barrier")
        a(f"s_lshl_b32 s{S_T0}, s{S_HG}, 4\ns_add_u32 s{S_T0}, s{S_T0}, s{S_MT}\ns_mul_i32 s{S_T0}, s{S_T0}, {FS}\ns_add_u32 s{S_T0}, s{S_T0}, {F_KV}")
        self.flag_store(S_T0, 16)
        self.stamp(3, 16)
        a(f"""
        v_and_b32 v16, 15, v1
        s_lshl_b32 s{S_T0}, s{S_HG}, 4
        v_add_u32 v16, s{S_T0}, v16
        v_mul_u32_u24 v16, {FS}, v16
        v_add_u32 v16, {F_KV}, v16
        v_and_b32 v17, 7, v1
        s_lshl_b32 s{S_T0}, s{S_MT}, 3
        v_add_u32 v17, s{S_T0}, v17
        v_mul_u32_u24 v17, {FS}, v17
        v_add_u32 v17, {F_LN}, v17
        v_cmp_gt_u32 vcc, 32, v1
        s_nop 1
        v_cndmask_b32 v16, v17, v16, vcc
        """)
        self.poll([16], 18)
        a("s_barrier\ns_barrier\ns_barrier")
        a(f"s_lshl_b32 s{S_T0}, s{S_MT}, 3\ns_add_u32 s{S_T0}, s{S_T0}, s{S_HG}\ns_mul_i32 s{S_T0}, s{S_T0}, {FS}\ns_add_u32 s{S_T0}, s{S_T0}, {F_GO}")
        self.flag_store(S_T0, 16)
        self.stamp(5, 16)
        a("s_branch L_F_poller")

    def start_prefetch(self):
        a = self.a
        self.srd(R_W, P_WQKV, 640 * 3840)
        a(f"""
        s_lshl_b32 s{S_T0}, s{S_J}, 2
        s_add_u32 s{S_T0}, s{S_T0}, s{S_WAVE}
        v_lshrrev_b32 v16, 2, v1
        v_and_b32 v17, 3, v1
        v_mul_u32_u24 v16, 1280, v16
        v_lshl_add_u32 v16, v17, 7, v16
        s_lshr_b32 s{S_T0+2}, s{S_MT}, 3
        s_lshl_b32 s{S_T0+2}, s{S_T0+2}, 7
        s_add_u32 s{S_T0+2}, s{S_T0+2}, s{S_T0}
        s_mul_i32 s{S_DT}, s{S_T0+2}, {8*1280}
        v_lshrrev_b32 v19, 4, v1
        v_and_b32 v17, 15, v1
        v_min_u32 v17, 14, v17
        v_mul_u32_u24 v18, 13, v17
        v_lshrrev_b32 v18, 6, v18
        v_mul_u32_u24 v18, 640, v18
        v_lshl_add_u32 v18, v17, 7, v18
        v_mul_u32_u24 v19, 3840, v19
        v_add_u32 v112, v18, v19
        s_lshr_b32 s{S_T0+2}, s{S_HG}, 2
        s_mul_i32 s{S_T0+2}, s{S_T0+2}, 640
        s_mul_i32 s{S_FT}, s{S_T0}, {2*3840}
        s_add_u32 s{S_FT}, s{S_FT}, s{S_T0+2}
        """)
        if self.o.get("ta1"):
            a(f"""
            s_mov_b32 exec_hi, 0
            buffer_load_dword v253, v112, s[{R_W}:{R_W+3}], s{S_FT} offen
            buffer_load_dword v253, v16, s[{R_X}:{R_X+3}], s{S_DT} offen
            s_mov_b32 exec_hi, -1
            """)
        a(f"""
        s_mul_i32 s{S_FT}, s{S_T0}, {3*3840}
        s_add_u32 s{S_FT}, s{S_FT}, s{S_T0+2}
        s_add_u32 s{S_FT}, s{S_FT}, {256*3840}
        v_lshrrev_b32 v16, 3, v1
        v_and_b32 v17, 7, v1
        v_min_u32 v17, 5, v17
        v_mul_u32_u24 v16, 1280, v16
        v_lshl_add_u32 v113, v17, 7, v16
        s_add_u32 s{S_DT}, s{S_DT}, 512
        """)

    def pf_rest(self):
        return f"""s_mov_b32 exec_hi, 0xffff
        buffer_load_dword v253, v112, s[{R_W}:{R_W+3}], s{S_FT} offen
        s_mov_b32 exec_hi, -1
        buffer_load_dword v253, v113, s[{R_X}:{R_X+3}], s{S_DT} offen
        """

    def w2_touch(self):
        a = self.a
        self.srd(R_W2, P_W2, 1536 * 4096)
        a(f"""
        v_lshlrev_b32 v48, 7, v1
        s_lshl_b32 s{S_T0}, s{S_MT}, 3
        s_add_u32 s{S_T0}, s{S_T0}, s{S_HG}
        s_lshl_b32 s{S_T0}, s{S_T0}, 2
        s_add_u32 s{S_T0}, s{S_T0}, s{S_D}
        s_mul_i32 s{S_T0}, s{S_T0}, 12288
        buffer_load_dword v253, v48, s[{R_W2}:{R_W2+3}], s{S_T0} offen
        s_add_u32 s{S_T0}, s{S_T0}, 8192
        s_mov_b32 exec_hi, 0
        buffer_load_dword v253, v48, s[{R_W2}:{R_W2+3}], s{S_T0} offen
        s_mov_b32 exec_hi, -1
        """)

    def code_prefetch(self):
        a = self.a
        a(f"""
        s_cmp_lg_u32 s{S_WAVE}, 3
        s_cbranch_scc1 L_nocpf
        s_cmp_ge_u32 s{S_J}, 4
        s_cbranch_scc1 L_nocpf
        s_getpc_b64 s[{S_T0}:{S_T0+1}]
        L_pcref:
        s_lshl_b32 s{S_T0+2}, s{S_J}, 13
        v_lshlrev_b32 v4, 7, v1
        v_add_u32 v4, s{S_T0+2}, v4
        v_min_u32 v4, L_end-L_pcref, v4
        global_load_dword v253, v4, s[{S_T0}:{S_T0+1}]
        L_nocpf:
        """)

    def a_thread_map(self):
        a = self.a
        a(f"""
        v_mul_u32_u24 v16, 625, v0
        v_lshrrev_b32 v16, 16, v16
        v_mul_u32_u24 v17, 105, v16
        v_sub_u32 v17, v0, v17
        v_mul_u32_u24 v18, 205, v17
        v_lshrrev_b32 v18, 10, v18
        v_mul_u32_u24 v19, 5, v18
        v_sub_u32 v19, v17, v19
        v_mad_u32_u24 v19, v16, 5, v19
        v_mad_u32_u24 v20, v16, 20, v18
        v_lshrrev_b32 v21, 2, v19
        v_and_b32 v22, 3, v19
        v_lshrrev_b32 v23, 4, v20
        v_and_b32 v20, 15, v20
        v_lshl_add_u32 v20, v22, 4, v20
        v_lshl_add_u32 v2, v21, 1, v23
        v_lshlrev_b32 v2, 6, v2
        v_add_u32 v2, v2, v20
        v_lshlrev_b32 v2, 4, v2
        v_lshlrev_b32 v3, 4, v19
        v_add_u32 v3, 13312, v3
        v_cmp_lt_u32 vcc, 99, v17
        v_lshrrev_b32 v24, 1, v21
        v_and_b32 v21, 1, v21
        v_cndmask_b32 v2, v2, v3, vcc
        v_lshl_add_u32 v3, v23, 1, v24
        v_add_u32 v24, 11, v24
        v_lshl_add_u32 v22, v22, 4, v16
        v_cndmask_b32 v3, v3, v24, vcc
        v_cndmask_b32 v20, v20, v22, vcc
        v_lshl_add_u32 v3, v3, 6, v20
        v_lshlrev_b32 v3, 4, v3
        v_lshl_add_u32 v3, v21, 3, v3
        v_add_u32 v249, {KVT}, v3
        v_mov_b32 v25, 2
        v_cndmask_b32 v25, 1, v25, vcc
        v_mov_b32 v16, 420
        v_cmp_gt_u32 vcc, v16, v0
        v_lshlrev_b32 v250, 4, v0
        s_nop 0
        v_cndmask_b32 v251, 0, v25, vcc
        v_cndmask_b32 v248, 0, v2, vcc
        """)

    def a_reduce_publish(self, T):
        a = self.a
        for w in range(4):
            a(f"ds_read_b128 {vr(T+4*w,4)}, v248 offset:{w*EXCH_ST}")
        a(f"""
        s_lshl_b32 s{S_T0}, s{S_HG}, 4
        s_add_u32 s{S_T0}, s{S_T0}, s{S_MT}
        s_mul_i32 s{S_T0}, s{S_T0}, {KVP_ST}
        s_add_u32 s{S_T0}, s{S_T0}, {KVP}
        v_cmp_ne_u32 vcc, 0, v251
        s_waitcnt lgkmcnt(0)
        v_pk_add_f32 {vr(T,2)}, {vr(T,2)}, {vr(T+4,2)}
        v_pk_add_f32 {vr(T+2,2)}, {vr(T+2,2)}, {vr(T+6,2)}
        v_pk_add_f32 {vr(T+8,2)}, {vr(T+8,2)}, {vr(T+12,2)}
        v_pk_add_f32 {vr(T+10,2)}, {vr(T+10,2)}, {vr(T+14,2)}
        v_pk_add_f32 {vr(T,2)}, {vr(T,2)}, {vr(T+8,2)}
        v_pk_add_f32 {vr(T+2,2)}, {vr(T+2,2)}, {vr(T+10,2)}
        s_mov_b64 exec, vcc
        buffer_store_dwordx4 {vr(T,4)}, v250, s[{R_WS}:{R_WS+3}], s{S_T0} offen sc1
        s_mov_b64 exec, -1
        """)

    def a_gather(self, T, vm_after, prefill=False):
        a = self.a
        a(f"s_mul_i32 s{S_T0}, s{S_HG}, {16*KVP_ST}\ns_add_u32 s{S_T0}, s{S_T0}, {KVP}")
        a("v_cmp_ne_u32 vcc, 0, v251\ns_nop 1\ns_mov_b64 exec, vcc")
        for m in range(16):
            a(f"buffer_load_dwordx4 {vr(T+4*m,4)}, v250, s[{R_WS}:{R_WS+3}], s{S_T0} offen sc1")
            if m < 15:
                a(f"s_add_u32 s{S_T0}, s{S_T0}, {KVP_ST}")
        a("s_mov_b64 exec, -1")
        if prefill:
            self.w2_setup()
            self.w2_prefill(5)
            vm_after = 40
        for st in (8, 4, 2, 1):
            if st == 8:
                a(f"s_waitcnt vmcnt({vm_after})")
            for m in range(st):
                for h in (0, 2):
                    a(f"v_pk_add_f32 {vr(T+4*m+h,2)}, {vr(T+4*m+h,2)}, {vr(T+4*(m+st)+h,2)}")
        a(f"""
        v_cvt_pk_bf16_f32 v{T}, v{T}, v{T+1}
        v_cvt_pk_bf16_f32 v{T+1}, v{T+2}, v{T+3}
        v_cmp_ne_u32 vcc, 0, v251
        v_cmp_eq_u32 s[{S_T0}:{S_T0+1}], 2, v251
        s_nop 1
        s_mov_b64 exec, vcc
        ds_write_b64 v249, {vr(T,2)}
        s_mov_b64 exec, s[{S_T0}:{S_T0+1}]
        ds_write_b64 v249, {vr(T,2)} offset:64
        ds_write_b64 v249, {vr(T,2)} offset:128
        ds_write_b64 v249, {vr(T,2)} offset:192
        s_mov_b64 exec, -1
        """)
        if prefill:
            self.w2_prefill(3)

    def role_b(self):
        a = self.a
        a("L_roleB:")
        XR, GR, B1R = 16, 26, 36
        a(f"""
        s_mov_b32 s{S_T0}, s{S_XCD}
        s_lshl_b32 s{S_T0+1}, s{S_T0}, 5
        s_add_u32 s{S_T0+1}, s{S_T0+1}, s{S_J}
        s_lshr_b32 s{S_KST}, s{S_T0+1}, 1
        s_and_b32 s{S_PAR}, s{S_T0+1}, 1
        s_mul_i32 s{S_FT}, s{S_J}, 205
        s_lshr_b32 s{S_FT}, s{S_FT}, 10
        s_mul_i32 s{S_DT}, s{S_FT}, 5
        s_sub_u32 s{S_DT}, s{S_J}, s{S_DT}
        s_mul_i32 s{S_T0}, s{S_T0}, 6
        s_add_u32 s{S_FT}, s{S_FT}, s{S_T0}
        s_lshl_b32 s{S_T0}, s{S_KST}, 5
        s_lshl_b32 s{S_T0+1}, s{S_PAR}, 3
        s_add_u32 s{S_T0}, s{S_T0}, s{S_T0+1}
        s_and_b32 s{S_T0+1}, s{S_WAVE}, 3
        s_lshl_b32 s{S_T0+1}, s{S_T0+1}, 1
        s_add_u32 s{S_T0}, s{S_T0}, s{S_T0+1}
        s_lshr_b32 s{S_T0+1}, s{S_WAVE}, 2
        s_lshl_b32 s{S_T0+1}, s{S_T0+1}, 4
        s_add_u32 s{S_T0}, s{S_T0}, s{S_T0+1}
        s_mul_i32 s{S_T0}, s{S_T0}, 1280
        v_lshrrev_b32 v2, 5, v1
        v_and_b32 v3, 31, v1
        v_lshlrev_b32 v3, 3, v3
        v_mad_u32_u24 v4, v2, s{S_T0+2}, v3
        """.replace(f"v_mad_u32_u24 v4, v2, s{S_T0+2}, v3", "v_mul_u32_u24 v4, 1280, v2\nv_add_u32 v4, v4, v3"))
        for c in range(5):
            a(f"buffer_load_dwordx2 {vr(XR+2*c,2)}, v4, s[{R_X}:{R_X+3}], s{S_T0} offen offset:{c*256}")
        self.srd(R_M, P_GATE, 1280)
        for c in range(5):
            a(f"buffer_load_dwordx2 {vr(GR+2*c,2)}, v3, s[{R_M}:{R_M+3}], 0 offen offset:{c*256}")
        self.srd(R_OUT, P_B1, 3072)
        a(f"v_lshrrev_b32 v5, 4, v1\nv_lshlrev_b32 v5, 3, v5\ns_lshl_b32 s{S_T0}, s{S_FT}, 7")
        for b in range(4):
            a(f"buffer_load_dwordx2 {vr(B1R+2*b,2)}, v5, s[{R_OUT}:{R_OUT+3}], s{S_T0} offen offset:{b*32}")
        VS0, VS1, VPF = 6, 7, 8
        self.srd(R_W, P_W1, 2048 * 3072)
        a(f"""
        v_lshrrev_b32 v12, 3, v1
        v_lshrrev_b32 v13, 4, v1
        v_lshlrev_b32 v13, 1, v13
        v_and_b32 v14, 7, v1
        v_xor_b32 v13, v13, v14
        v_lshlrev_b32 v13, 4, v13
        v_mul_u32_u24 v12, 3072, v12
        v_add_u32 v{VPF}, v12, v13
        v_add_u32 v{VPF+1}, {8*3072-1024}, v{VPF}
        v_add_u32 v{VPF+2}, {2*(8*3072-1024)}, v{VPF}
        v_add_u32 v{VPF+3}, {3*(8*3072-1024)}, v{VPF}
        """)
        pf = f"""
        s_cmp_lt_u32 s{S_WAVE}, 4
        s_cbranch_scc1 L_B_nopf
        s_cmp_ge_u32 s{S_J}, 30
        s_cbranch_scc1 L_B_nopf
        s_sub_u32 s{S_T0}, s{S_WAVE}, 4
        s_lshl_b32 s{S_B}, s{S_T0}, 12
        s_mul_i32 s{S_A}, s{S_T0}, {32*3072}
        s_lshl_b32 s{S_T0}, s{S_FT}, 7
        s_add_u32 s{S_A}, s{S_A}, s{S_T0}
        L_B_pf:
        s_mov_b32 m0, s{S_B}
        s_add_u32 s{S_B}, s{S_B}, 16384
        """
        for i in range(4):
            pf += f"buffer_load_dwordx4 v{VPF+i}, s[{R_W}:{R_W+3}], s{S_A} offen offset:{i*1024} lds\n"
        pf += f"""
        s_add_u32 s{S_A}, s{S_A}, {128*3072}
        s_cmp_lt_u32 s{S_B}, 0x20000
        s_cbranch_scc1 L_B_pf
        """
        def w1_touch(part):
            lab = a.label("nt")
            a(f"""
            s_cmp_lt_u32 s{S_WAVE}, 4
            s_cbranch_scc1 {lab}
            s_lshl_b32 s{S_T0}, s{S_J}, 2
            s_add_u32 s{S_T0}, s{S_T0}, s{S_WAVE}
            s_sub_u32 s{S_T0}, s{S_T0}, {4 - part*128}
            s_mul_i32 s{S_T0}, s{S_T0}, {8*3072}
            s_mul_i32 s{S_T0+1}, s{S_XCD}, 768
            s_add_u32 s{S_T0}, s{S_T0}, s{S_T0+1}
            buffer_load_dword v253, v7, s[{R_W}:{R_W+3}], s{S_T0} offen
            {lab}:
            """.replace(f"s_sub_u32 s{S_T0}, s{S_T0}, {4 - part*128}", f"s_add_u32 s{S_T0}, s{S_T0}, {(part*128 - 4) & 0xffffffff:#x}"))
        a("v_and_b32 v7, 7, v1\nv_min_u32 v7, 5, v7\nv_lshl_add_u32 v7, v7, 7, v12")
        if self.o.get("late_w1"):
            if self.o.get("tb1"):
                w1_touch(0)
                a(f"s_cmp_lt_u32 s{S_WAVE}, 4\ns_cbranch_scc1 L_B_w4\ns_waitcnt vmcnt(5)\nL_B_w4:")
                a(f"s_cmp_ge_u32 s{S_WAVE}, 4\ns_cbranch_scc1 L_B_w5\ns_waitcnt vmcnt(4)\nL_B_w5:")
            else:
                a("s_waitcnt vmcnt(4)")
        else:
            a(pf + "s_waitcnt vmcnt(36)\ns_branch L_B_ln\nL_B_nopf:\ns_waitcnt vmcnt(4)\nL_B_ln:")
        self.stamp(11, 44)
        XS = 44
        a("v_mov_b32 v64, 0\nv_mov_b32 v65, 0\nv_mov_b32 v66, 0x3f803f80")
        for c in range(10):
            a(f"v_dot2c_f32_bf16 v65, v{XR+c}, v{GR+c}")
        for c in range(10):
            a(f"v_dot2c_f32_bf16 v64, v{XR+c}, v66")
        for c in range(10):
            a(f"v_lshlrev_b32 v{XS+2*c}, 16, v{XR+c}\nv_and_b32 v{XS+2*c+1}, 0xffff0000, v{XR+c}")

        def reduce32(regs, t):
            for mode in ("quad_perm:[1,0,3,2]", "quad_perm:[2,3,0,1]", "row_half_mirror", "row_mirror"):
                for r in regs:
                    a(f"v_add_f32_dpp v{r}, v{r}, v{r} {mode} row_mask:0xf bank_mask:0xf")
                a("s_nop 1" if len(regs) == 1 else "s_nop 0")
            for i, r in enumerate(regs):
                a(f"v_mov_b32 v{t+i}, v{r}")
            a("s_nop 1")
            for i, r in enumerate(regs):
                a(f"v_permlane16_swap_b32 v{r}, v{t+i}")
            a("s_nop 1")
            for i, r in enumerate(regs):
                a(f"v_add_f32 v{r}, v{r}, v{t+i}")

        reduce32([64, 65], 66)
        a(f"v_mul_f32 v64, {f2u(-1.0/640):#x}, v64\nv_mul_f32 v65, {f2u(-1.4426950408889634):#x}, v65\nv_mov_b32 v67, 0\nv_mov_b32 v66, 0")
        a("v_exp_f32 v65, v65")
        for c in range(20):
            a(f"v_add_f32 v{XS+c}, v64, v{XS+c}")
        a("v_add_f32 v65, 1.0, v65\nv_rcp_f32 v65, v65")
        for c in range(0, 20, 2):
            a(f"v_fmac_f32 v66, v{XS+c}, v{XS+c}\nv_fmac_f32 v67, v{XS+c+1}, v{XS+c+1}")
        a("v_add_f32 v66, v66, v67\ns_nop 1")
        reduce32([66], 67)
        a(f"v_mov_b32 v67, {f2u(1e-5):#x}\nv_fmac_f32 v67, {f2u(1.0/640):#x}, v66\nv_rsq_f32 v67, v67\ns_nop 0")
        for c in range(20):
            a(f"v_mul_f32 v{XS+c}, v67, v{XS+c}")
        for c in range(10):
            a(f"v_cvt_pk_bf16_f32 v{XR+c}, v{XS+2*c}, v{XS+2*c+1}")
        a(f"""
        s_lshl_b32 s{S_T0}, s{S_WAVE}, 1
        v_add_u32 v2, s{S_T0}, v2
        v_mul_u32_u24 v4, {LN_ST}, v2
        v_add_u32 v4, v4, v3
        v_add_u32 v4, {LNBUF}, v4
        v_lshlrev_b32 v2, 2, v2
        v_add_u32 v2, {LNG}, v2
        """)
        for c in range(5):
            a(f"ds_write_b64 v4, {vr(XR+2*c,2)} offset:{c*256}")
        a("ds_write_b32 v2, v65")
        a(f"s_waitcnt lgkmcnt(0)\ns_add_u32 s{S_TAG}, s{S_TAG}, {TAG_INC:#x}\ns_barrier")
        self.stamp(12, 44)
        if self.o.get("late_w1") == 1:
            a(pf + "L_B_nopf:")
        a(f"s_cmp_ge_u32 s{S_WAVE}, 4\ns_cbranch_scc1 L_B_l1b")
        a(f"""
        v_and_b32 v12, 15, v1
        v_bfe_u32 v13, v1, 4, 1
        v_lshrrev_b32 v14, 5, v1
        v_lshrrev_b32 v15, 2, v12
        v_lshl_add_u32 v15, v13, 2, v15
        v_mul_u32_u24 v15, {LN_ST}, v15
        v_lshl_add_u32 v15, v14, 5, v15
        v_and_b32 v2, 3, v12
        v_lshl_add_u32 v15, v2, 3, v15
        s_mul_i32 s{S_T0}, s{S_WAVE}, 320
        s_add_u32 s{S_T0}, s{S_T0}, {LNBUF}
        v_add_u32 v15, s{S_T0}, v15
        """)
        for i in range(5):
            a(f"ds_read_b64_tr_b16 {vr(44+4*i,2)}, v15 offset:{i*64}")
            a(f"ds_read_b64_tr_b16 {vr(46+4*i,2)}, v15 offset:{i*64+8*LN_ST}")
        a(f"""
        v_lshlrev_b32 v2, 2, v12
        v_add_u32 v2, {LNG}, v2
        ds_read_b32 v65, v2
        v_lshlrev_b32 v14, 16, v14
        v_lshl_add_u32 v14, v13, 8, v14
        v_lshl_add_u32 v14, v12, 4, v14
        s_mul_i32 s{S_T0}, s{S_WAVE}, {5*131072}
        s_lshl_b32 s{S_T0+1}, s{S_KST}, 10
        s_add_u32 s{S_T0}, s{S_T0}, s{S_T0+1}
        s_lshl_b32 s{S_T0+1}, s{S_PAR}, 9
        s_add_u32 s{S_T0}, s{S_T0}, s{S_T0+1}
        s_add_u32 s{S_T0}, s{S_T0}, {HT}
        """)
        for i in range(5):
            a(f"s_waitcnt lgkmcnt({9-2*i})")
            a(f"buffer_store_dwordx4 {vr(44+4*i,4)}, v14, s[{R_WS}:{R_WS+3}], s{S_T0} offen sc1")
            if i < 4:
                a(f"s_add_u32 s{S_T0}, s{S_T0}, 131072")
        a(f"""
        s_cmp_lg_u32 s{S_WAVE}, 0
        s_cbranch_scc1 L_B_nog
        v_and_b32 v2, 7, v12
        v_lshrrev_b32 v12, 3, v12
        v_lshl_add_u32 v2, v12, 4, v2
        v_lshlrev_b32 v2, 2, v2
        s_lshl_b32 s{S_T0}, s{S_KST}, 7
        s_lshl_b32 s{S_T0+1}, s{S_PAR}, 5
        s_add_u32 s{S_T0}, s{S_T0}, s{S_T0+1}
        s_add_u32 s{S_T0}, s{S_T0}, {G_OFF}
        s_waitcnt lgkmcnt(0)
        s_mov_b64 exec, 0xffff
        buffer_store_dword v65, v2, s[{R_WS}:{R_WS+3}], s{S_T0} offen sc1
        s_mov_b64 exec, -1
        L_B_nog:
        s_barrier
        s_waitcnt vmcnt(0) lgkmcnt(0)
        s_branch L_B_l2
        L_B_l1b:
        s_barrier
        """)
        if self.o.get("tb2"):
            w1_touch(1)
        if self.o.get("late_w1") == 2:
            a(pf + "L_B_nopf:")
        a(f"""
        L_B_l2:
        s_barrier
        """)
        if self.o.get("late_w1") == 3:
            a(pf + "L_B_nopf:")
        a(f"""
        s_cmp_lg_u32 s{S_WAVE}, 0
        s_cbranch_scc1 L_B_l3
        s_lshl_b32 s{S_T0}, s{S_KST}, 1
        s_add_u32 s{S_T0}, s{S_T0}, s{S_PAR}
        s_mul_i32 s{S_T0}, s{S_T0}, {FS}
        s_add_u32 s{S_T0}, s{S_T0}, {F_LN}
        """)
        self.flag_store(S_T0, 12)
        self.stamp(1, 12)
        a(f"s_cmp_ge_u32 s{S_J}, 30\ns_cbranch_scc1 L_helper")
        a(f"v_mul_u32_u24 v12, {FS}, v1\nv_add_u32 v12, {F_LN}, v12\nv_add_u32 v13, {64*FS}, v12")
        self.poll([12, 13], 14)
        self.stamp(2, 12)
        a(f"L_B_l3:\ns_cmp_ge_u32 s{S_J}, 30\ns_cbranch_scc1 L_helper")
        a(f"s_cmp_ge_u32 s{S_WAVE}, 4\ns_cbranch_scc1 L_B_aux")
        PF, WF, ACC, VT, VL = 64, 192, 224, 8, 12
        a(f"""
        s_lshl_b32 s{S_T0}, s{S_DT}, 3
        s_lshl_b32 s{S_T0+1}, s{S_WAVE}, 1
        s_add_u32 s{S_D}, s{S_T0}, s{S_T0+1}
        s_lshl_b32 s{S_T0}, s{S_D}, 16
        s_add_u32 s{S_T0}, s{S_T0}, {HT}
        """)
        self.srd(R_P, P_WS, 65536, off_s=S_T0)
        a(f"s_add_u32 s{S_T0}, s{S_T0}, 65536")
        self.srd(R_M, P_WS, 65536, off_s=S_T0)
        a(f"v_lshlrev_b32 v{VL}, 4, v1\ns_mov_b32 s{S_C}, 0\ns_mov_b32 s{S_B}, 0")
        self.tr_addr(VT)
        for r in range(32):
            a(f"v_mov_b32 v{ACC+r}, 0")
        a("s_barrier")
        RP = (R_P, R_M)

        def pload(u, ks):
            return "\n".join(f"buffer_load_dwordx4 {vr(PF+32*u+8*ks+4*d,4)}, v{VL}, s[{RP[d]}:{RP[d]+3}], s{S_C} offen offset:{ks*1024} sc1" for d in range(2))

        for t in range(4):
            for ks in range(4):
                a(pload(t, ks))
            a(f"s_add_u32 s{S_C}, s{S_C}, 4096")
            if t == 0:
                first_bar_here = len(a.L)

        def mk(u, bar, virtual=False, head=None, tail=None):
            uses = []
            for ks in range(4):
                for b in range(4):
                    g = ks * 4 + b
                    wb = WF + 4 * (g % 8)
                    off = u * 16384 + ks * 4096
                    reads = [(f"w{g}a", f"ds_read_b64_tr_b16 {vr(wb,2)}, v{VT+b} offset:{off}"),
                             (f"w{g}b", f"ds_read_b64_tr_b16 {vr(wb+2,2)}, v{VT+b} offset:{off+2048}")]
                    mf = []
                    for dd in range(2):
                        acc = vr(ACC + 16 * dd + 4 * b, 4)
                        mf.append(f"v_mfma_f32_16x16x32_bf16 {acc}, {vr(wb,4)}, {vr(PF+32*u+8*ks+4*dd,4)}, {acc}")
                    d = dict(reads=reads, need=[f"w{g}b"], mf=mf)
                    if b == 0:
                        d["vm"] = 30
                    if b == 3:
                        d["after"] = pload(u, ks)
                        if ks == 3:
                            d["after"] += f"\ns_add_u32 s{S_C}, s{S_C}, 4096"
                    uses.append(d)
            return dict(uses=uses, bar=bar, virtual=virtual, head=head, tail=tail)

        xo = "s_barrier\n" + "\n".join(f"v_xor_b32 v{VT+b}, 0x10000, v{VT+b}" for b in range(4))
        tail = f"s_add_u32 s{S_B}, s{S_B}, 1\ns_cmp_lt_u32 s{S_B}, 4\ns_cbranch_scc1 L_B_loop"
        st = [mk(0, "", head="L_B_loop:"), mk(1, "s_barrier"), mk(2, "s_barrier"), mk(3, "s_barrier", tail=tail), mk(0, xo, virtual=True)]
        a.L.insert(first_bar_here, "    s_barrier")
        self.pipeline(st, 6, 16 - 3)
        self.stamp(3, 44)
        c = 0.7978845608028654
        k0 = -2.0 * c * 1.4426950408889634
        k1 = k0 * 0.044715
        a(f"""
        s_waitcnt lgkmcnt(0)
        s_mov_b32 s{S_K0}, {f2u(k1):#x}
        s_mov_b32 s{S_K0+1}, {f2u(k1):#x}
        v_mov_b32 v44, {f2u(k0):#x}
        v_mov_b32 v45, {f2u(k0):#x}
        v_mov_b32 v46, 1.0
        v_mov_b32 v47, 1.0
        s_mul_i32 s{S_T0}, s{S_D}, {UW_ST}
        s_lshl_b32 s{S_T0+1}, s{S_FT}, 11
        s_add_u32 s{S_T0}, s{S_T0}, s{S_T0+1}
        s_add_u32 s{S_T0}, s{S_T0}, {UW}
        """)
        BF = 16
        for b in range(4):
            a(f"v_lshlrev_b32 v{BF+4*b}, 16, v{B1R+2*b}\nv_and_b32 v{BF+4*b+1}, 0xffff0000, v{B1R+2*b}")
            a(f"v_lshlrev_b32 v{BF+4*b+2}, 16, v{B1R+2*b+1}\nv_and_b32 v{BF+4*b+3}, 0xffff0000, v{B1R+2*b+1}")
        for dd in range(2):
            for p in range(2):
                r = ACC + 16 * dd + 8 * p
                T = 48
                for q in range(4):
                    a(f"v_pk_add_f32 {vr(r+2*q,2)}, {vr(r+2*q,2)}, {vr(BF+8*p+2*q,2)}")
                for q in range(4):
                    a(f"v_pk_mul_f32 {vr(T+2*q,2)}, {vr(r+2*q,2)}, {vr(r+2*q,2)}")
                for q in range(4):
                    a(f"v_pk_fma_f32 {vr(T+2*q,2)}, {vr(T+2*q,2)}, s[{S_K0}:{S_K0+1}], v[44:45]")
                for q in range(4):
                    a(f"v_pk_mul_f32 {vr(T+2*q,2)}, {vr(T+2*q,2)}, {vr(r+2*q,2)}")
                for q in range(8):
                    a(f"v_exp_f32 v{T+q}, v{T+q}")
                for q in range(4):
                    a(f"v_pk_add_f32 {vr(T+2*q,2)}, {vr(T+2*q,2)}, v[46:47]")
                for q in range(8):
                    a(f"v_rcp_f32 v{T+q}, v{T+q}")
                for q in range(4):
                    a(f"v_pk_mul_f32 {vr(r+2*q,2)}, {vr(r+2*q,2)}, {vr(T+2*q,2)}")
                o = 56 + 4 * (p & 1)
                for q in range(4):
                    a(f"v_cvt_pk_bf16_f32 v{o+q}, v{r+2*q}, v{r+2*q+1}")
                a(f"buffer_store_dwordx4 {vr(o,4)}, v{VL}, s[{R_WS}:{R_WS+3}], s{S_T0} offen offset:{p*1024} sc1")
            if dd == 0:
                a(f"s_add_u32 s{S_T0}, s{S_T0}, {UW_ST}")
        self.stamp(10, 44)
        a("s_waitcnt vmcnt(0)\ns_barrier\ns_branch L_F_comp")

        a("L_B_aux:\ns_barrier")
        a(f"s_and_b32 s{S_B}, s{S_B}, 0x1ffff")
        order = list(range(8))
        cnt = {k: 4 for k in range(16)}
        for tb in range(17):
            if tb < 16:
                n = sum(cnt[x] for x in order[order.index(tb) + 1:])
                a(f"s_waitcnt vmcnt({n})")
            a("s_barrier")
            if tb < 16:
                self.stamp(16 + tb, 44)
            if 1 <= tb <= 8:
                a(f"s_mov_b32 m0, s{S_B}\ns_add_u32 s{S_B}, s{S_B}, 16384")
                for i in range(4):
                    a(f"buffer_load_dwordx4 v{VPF+i}, s[{R_W}:{R_W+3}], s{S_A} offen offset:{i*1024} lds")
                a(f"s_add_u32 s{S_A}, s{S_A}, {128*3072}")
                order.append(tb + 7)
            if tb == 8 and self.o.get("pf_w2"):
                self.w2_l2_prefetch(48)
                order.append("pf"); cnt["pf"] = 2
        skip = self.if_wave56()
        a("s_barrier")
        self.w2_setup()
        self.w2_prefill(8)
        a("s_branch L_F_loader")
        a(f"{skip}:\ns_barrier")
        a(f"s_cmp_lg_u32 s{S_WAVE}, 7\ns_cbranch_scc1 L_F_u4")
        a(f"s_mul_i32 s{S_T0}, s{S_DT}, 24\ns_add_u32 s{S_T0}, s{S_T0}, s{S_FT}\ns_mul_i32 s{S_T0}, s{S_T0}, {FS}\ns_add_u32 s{S_T0}, s{S_T0}, {F_U}")
        self.flag_store(S_T0, 12)
        self.stamp(4, 12)
        a("s_branch L_F_poller")

    def w2_l2_prefetch(self, VT):
        a = self.a
        self.srd(R_W2, P_W2, 1536 * 4096)
        a(f"""
        v_lshrrev_b32 v{VT}, 3, v1
        v_and_b32 v{VT+1}, 7, v1
        v_lshlrev_b32 v{VT+1}, 7, v{VT+1}
        v_lshl_add_u32 v{VT}, v{VT}, 12, v{VT+1}
        s_mul_i32 s{S_T0}, s{S_J}, 48
        s_and_b32 s{S_T0+1}, s{S_WAVE}, 3
        s_mul_i32 s{S_T0+1}, s{S_T0+1}, 12
        s_add_u32 s{S_T0}, s{S_T0}, s{S_T0+1}
        s_lshl_b32 s{S_T0}, s{S_T0}, 12
        s_lshr_b32 s{S_T0+1}, s{S_XCD}, 1
        s_lshl_b32 s{S_T0+1}, s{S_T0+1}, 10
        s_add_u32 s{S_T0}, s{S_T0}, s{S_T0+1}
        buffer_load_dword v{VT+2}, v{VT}, s[{R_W2}:{R_W2+3}], s{S_T0} offen
        s_add_u32 s{S_T0}, s{S_T0}, {8*4096}
        s_mov_b32 exec_hi, 0
        buffer_load_dword v{VT+3}, v{VT}, s[{R_W2}:{R_W2+3}], s{S_T0} offen
        s_mov_b64 exec, -1
        """)

    def tr_addr(self, VT):
        a = self.a
        a(f"""
        v_and_b32 v{VT+1}, 15, v1
        v_lshrrev_b32 v{VT+2}, 4, v1
        v_lshrrev_b32 v{VT+3}, 2, v{VT+1}
        v_lshl_add_u32 v{VT+3}, v{VT+2}, 2, v{VT+3}
        v_bfe_u32 v{VT+2}, v{VT+3}, 1, 2
        v_lshlrev_b32 v{VT+3}, 7, v{VT+3}
        v_lshl_add_u32 v{VT+3}, v{VT+2}, 5, v{VT+3}
        v_and_b32 v{VT+1}, 3, v{VT+1}
        v_lshl_add_u32 v{VT}, v{VT+1}, 3, v{VT+3}
        v_xor_b32 v{VT+1}, 32, v{VT}
        v_xor_b32 v{VT+2}, 64, v{VT}
        v_xor_b32 v{VT+3}, 96, v{VT}
        """)

    def helper(self):
        a = self.a
        a("L_helper:")
        a(f"""
        s_lshl_b32 s{S_D}, s{S_XCD}, 1
        s_add_u32 s{S_D}, s{S_D}, s{S_J}
        s_sub_u32 s{S_D}, s{S_D}, 30
        """)
        self.srd(R_W, P_WO, 640 * 1280)
        for p in range(5):
            a(f"""
            v_add_u32 v12, {p*64}, v1
            v_mul_u32_u24 v13, 205, v12
            v_lshrrev_b32 v13, 11, v13
            v_mul_u32_u24 v14, 10, v13
            v_sub_u32 v14, v12, v14
            v_lshlrev_b32 v14, 4, v14
            v_mul_u32_u24 v13, 1280, v13
            v_add_u32 v{16+p}, v13, v14
            """)
            if p in (1, 2, 3):
                a(f"v_subrev_u32 v{16+p}, {p*1024}, v{16+p}")
        a(f"""
        s_mov_b32 s{S_C}, s{S_WAVE}
        L_H_ld:
        s_mul_i32 s{S_A}, s{S_C}, {32*1280}
        s_mul_i32 s{S_T0}, s{S_D}, 160
        s_add_u32 s{S_A}, s{S_A}, s{S_T0}
        s_mul_i32 s{S_B}, s{S_C}, 5120
        s_mov_b32 m0, s{S_B}
        s_nop 0
        """)
        for p in range(4):
            a(f"buffer_load_dwordx4 v{16+p}, s[{R_W}:{R_W+3}], s{S_A} offen offset:{p*1024} lds")
        a(f"s_add_u32 m0, s{S_B}, 4096\ns_nop 0\nbuffer_load_dwordx4 v20, s[{R_W}:{R_W+3}], s{S_A} offen lds")
        a(f"""
        s_add_u32 s{S_C}, s{S_C}, 8
        s_cmp_lt_u32 s{S_C}, 20
        s_cbranch_scc1 L_H_ld
        v_and_b32 v12, 15, v1
        v_lshrrev_b32 v13, 4, v1
        v_lshrrev_b32 v14, 2, v12
        v_lshl_add_u32 v14, v13, 2, v14
        v_mul_u32_u24 v14, 160, v14
        v_and_b32 v12, 3, v12
        v_lshl_add_u32 v14, v12, 3, v14
        v_lshlrev_b32 v15, 4, v1
        s_waitcnt vmcnt(0)
        s_barrier
        s_mov_b32 s{S_C}, s{S_WAVE}
        L_H_tr:
        s_lshr_b32 s{S_T0}, s{S_C}, 1
        s_mul_i32 s{S_T0}, s{S_T0}, 5
        s_and_b32 s{S_T0+1}, s{S_C}, 1
        s_lshl_b32 s{S_T0+1}, s{S_T0+1}, 1
        s_add_u32 s{S_T0}, s{S_T0}, s{S_T0+1}
        s_add_u32 s{S_T0+1}, s{S_T0}, 1
        s_mul_i32 s{S_T0+2}, s{S_C}, 10
        s_sub_u32 s{S_T0+2}, s{S_T0+2}, 156
        s_add_u32 s{S_T0+3}, s{S_T0+2}, 5
        s_cmp_lt_u32 s{S_C}, 16
        s_cselect_b32 s{S_T0}, s{S_T0}, s{S_T0+2}
        s_cselect_b32 s{S_T0+1}, s{S_T0+1}, s{S_T0+3}
        s_mul_i32 s{S_T0}, s{S_T0}, 2560
        s_mul_i32 s{S_T0+1}, s{S_T0+1}, 2560
        v_add_u32 v12, s{S_T0}, v14
        v_add_u32 v13, s{S_T0+1}, v14
        """)
        for b in range(5):
            a(f"ds_read_b64_tr_b16 {vr(24+4*b,2)}, v12 offset:{b*32}\nds_read_b64_tr_b16 {vr(26+4*b,2)}, v13 offset:{b*32}")
        a(f"""
        s_mul_i32 s{S_T0}, s{S_D}, {5*UW_ST}
        s_lshl_b32 s{S_T0+1}, s{S_C}, 10
        s_add_u32 s{S_T0}, s{S_T0}, s{S_T0+1}
        s_add_u32 s{S_T0}, s{S_T0}, {UW + 49152}
        """)
        for b in range(5):
            a(f"s_waitcnt lgkmcnt({8-2*b})")
            a(f"buffer_store_dwordx4 {vr(24+4*b,4)}, v15, s[{R_WS}:{R_WS+3}], s{S_T0} offen sc1")
            if b < 4:
                a(f"s_add_u32 s{S_T0}, s{S_T0}, {UW_ST}")
        a(f"""
        s_add_u32 s{S_C}, s{S_C}, 8
        s_cmp_lt_u32 s{S_C}, 20
        s_cbranch_scc1 L_H_tr
        s_waitcnt vmcnt(0)
        s_barrier
        """)
        skip = self.if_wave56()
        self.w2_setup()
        self.w2_prefill(8)
        a(f"s_branch L_F_loader\n{skip}:")
        a(f"s_cmp_lt_u32 s{S_WAVE}, 4\ns_cbranch_scc1 L_F_comp\ns_cmp_lg_u32 s{S_WAVE}, 7\ns_cbranch_scc1 L_F_u4")
        a(f"s_mul_i32 s{S_T0}, s{S_D}, {FS}\ns_add_u32 s{S_T0}, s{S_T0}, {F_WOT}")
        self.flag_store(S_T0, 12)
        a("s_branch L_F_poller")

    def final(self):
        a = self.a
        a("L_F_comp:")
        if self.stop == "phase1":
            a("s_branch L_end")
        PF, WF, ACC, U4, ACC4 = 64, 128, 160, 176, 184
        VT, VL, VU4, VT2, GV, BV, VGH, VG8 = 8, 12, 13, 16, 20, 24, 28, 32
        a(f"""
        s_mul_i32 s{S_T0}, s{S_DTILE}, 5
        s_add_u32 s{S_D}, s{S_T0}, s{S_WAVE}
        s_mul_i32 s{S_T0}, s{S_D}, {UW_ST}
        s_add_u32 s{S_T0}, s{S_T0}, {UW}
        """)
        self.srd(R_P, P_WS, UW_ST, off_s=S_T0)
        self.srd(R_M, P_B2, 4096)
        self.srd(R_OUT, P_OUT, 2048 * 1280)
        self.tr_addr(4)
        a(f"""
        v_lshlrev_b32 v{VL}, 4, v1
        v_add_u32 v{VU4}, 0x20000, v{VL}
        v_lshlrev_b32 v5, 3, v1
        v_and_b32 v2, 15, v1
        v_lshlrev_b32 v3, 1, v2
        v_lshlrev_b32 v2, 2, v2
        """)
        SB = S_MSK
        for b in range(4):
            a(f"""
            s_add_u32 s{SB+b}, s{S_WAVE}, {b}
            s_and_b32 s{SB+b}, s{SB+b}, 3
            s_lshl_b32 s{S_T0}, s{SB+b}, 5
            v_xor_b32 v{VT+b}, s{S_T0}, v4
            s_lshl_b32 s{S_T0+1}, s{S_ST}, 7
            s_add_u32 s{S_T0}, s{S_T0}, s{S_T0+1}
            buffer_load_ushort v{BV+b}, v3, s[{R_M}:{R_M+3}], s{S_T0} offen
            v_add_u32 v{VT2+b}, 0x10000, v{VT+b}
            s_lshl_b32 s{S_T0}, s{SB+b}, 12
            v_add_u32 v{VG8+b}, s{S_T0}, v5
            s_add_u32 s{S_T0}, s{S_T0}, 0x10000
            v_add_u32 v{VGH+b}, s{S_T0}, v{VL}
            """)
        for r in range(16):
            a(f"v_mov_b32 v{ACC+r}, 0")
        for r in range(4):
            a(f"v_mov_b32 v{ACC4+r}, 0")
        a(f"s_lshl_b32 s{S_A}, s{S_ST}, 8\ns_add_u32 s{S_A}, s{S_A}, {G_OFF}\ns_mov_b32 s{S_C}, 0")
        a("s_barrier")
        for t in range(4):
            for ks in range(4):
                a(f"buffer_load_dwordx4 {vr(PF+16*t+4*ks,4)}, v{VL}, s[{R_P}:{R_P+3}], s{S_C} offen offset:{ks*1024} sc1")
            a(f"s_add_u32 s{S_C}, s{S_C}, 4096")
            if t == 0:
                a("s_barrier")
            if t == 3:
                for b in range(4):
                    a(f"s_lshl_b32 s{S_T0}, s{SB+b}, 6\ns_add_u32 s{S_T0}, s{S_T0}, s{S_A}")
                    a(f"buffer_load_dword v{GV+b}, v2, s[{R_WS}:{R_WS+3}], s{S_T0} offen sc1")

        mid = "s_nop 7\n"
        for b in range(4):
            mid += f"v_lshlrev_b32 v{BV+b}, 16, v{BV+b}\nv_sub_f32 v{GV+b}, 1.0, v{GV+b}\n"
        blocks = [(ACC + 4 * b, b) for b in range(4)] + [(ACC4, 0)]
        for r0, b in blocks:
            for k in range(4):
                mid += f"v_add_f32 v{r0+k}, v{BV+b}, v{r0+k}\n"
        for r0, b in blocks:
            for k in range(4):
                mid += f"v_mul_f32 v{r0+k}, v{GV+b}, v{r0+k}\n"
        mid += "s_nop 1\n"

        stages = []
        for t in range(17):
            slot = t % 8
            hi = slot >= 4
            uses = []
            for ks in range(4):
                for b in range(4):
                    g = ks * 4 + b
                    wb = WF + 4 * (g % 8)
                    reads = []
                    u4 = U4 + 4 * (ks & 1)
                    if b == 0:
                        reads.append((f"u{ks}", f"ds_read_b128 {vr(u4,4)}, v{VU4} offset:{slot*4096 + ks*1024}"))
                    if t < 12:
                        off = (slot & 3) * 16384 + ks * 4096
                        va = (VT2 if hi else VT) + b
                        reads += [(f"w{g}a", f"ds_read_b64_tr_b16 {vr(wb,2)}, v{va} offset:{off}"),
                                  (f"w{g}b", f"ds_read_b64_tr_b16 {vr(wb+2,2)}, v{va} offset:{off+2048}")]
                    elif t < 16:
                        assert hi
                        off = (slot & 3) * 16384 + ks * 1024
                        reads += [(f"w{g}b", f"ds_read_b128 {vr(wb,4)}, v{VGH+b} offset:{off}")]
                    else:
                        off = (slot & 3) * 16384 + ks * 1024
                        assert not hi
                        reads += [(f"w{g}a", f"ds_read_b64 {vr(wb,2)}, v{VG8+b} offset:{off}"),
                                  (f"w{g}b", f"ds_read_b64 {vr(wb+2,2)}, v{VG8+b} offset:{off+512}")]
                    acc = vr(ACC + 4 * b, 4)
                    pf = vr(PF + 16 * (t % 4) + 4 * ks, 4)
                    mf = [f"v_mfma_f32_16x16x32_bf16 {acc}, {pf}, {vr(wb,4)}, {acc}"]
                    if b == 0:
                        mf.append(f"v_mfma_f32_16x16x32_bf16 {vr(ACC4,4)}, {vr(u4,4)}, {vr(wb,4)}, {vr(ACC4,4)}")
                    d = dict(reads=reads, need=[f"w{g}b"], mf=mf)
                    if b == 0:
                        k = t * 4 + ks
                        n = min(k + 15, 67) - k
                        if t < 4:
                            n += 4
                        d["vm"] = n
                    if b == 3 and t + 4 < 17:
                        d["after"] = f"buffer_load_dwordx4 {pf}, v{VL}, s[{R_P}:{R_P+3}], s{S_C} offen offset:{ks*1024} sc1"
                        if ks == 3:
                            d["after"] += f"\ns_add_u32 s{S_C}, s{S_C}, 4096"
                    if t == 12 and g == 0:
                        d["before"] = mid
                    uses.append(d)
            stages.append(dict(uses=uses, bar="s_barrier" if t else ""))
        self.pipeline(stages, 6, 16 - 3)
        self.stamp(8, 2)
        a(f"""
        v_and_b32 v2, 15, v1
        v_mul_u32_u24 v2, 1280, v2
        v_lshrrev_b32 v3, 4, v1
        v_lshl_add_u32 v2, v3, 3, v2
        s_mul_i32 s{S_A}, s{S_ST}, {64*1280}
        s_lshl_b32 s{S_T0+1}, s{S_D}, 5
        s_add_u32 s{S_B}, s{S_A}, s{S_T0+1}
        s_mul_i32 s{S_T0+1}, s{S_DTILE}, 160
        s_add_u32 s{S_A}, s{S_A}, s{S_T0+1}
        s_add_u32 s{S_A}, s{S_A}, 128
        """)
        for r, b in blocks:
            a(f"s_mul_i32 s{S_T0}, s{SB+b}, {16*1280}\ns_add_u32 s{S_T0}, s{S_T0}, s{S_A if r == ACC4 else S_B}")
            a(f"v_cvt_pk_bf16_f32 v{r}, v{r}, v{r+1}\nv_cvt_pk_bf16_f32 v{r+1}, v{r+2}, v{r+3}")
            a(f"buffer_store_dwordx2 {vr(r,2)}, v2, s[{R_OUT}:{R_OUT+3}], s{S_T0} offen")
        if self.stamps or self.o.get("dbg"):
            a("s_waitcnt vmcnt(0)")
            self.stamp(9, 2)
        a(f"s_or_b32 s{S_T0}, s2, s{S_WAVE}\ns_cmp_lg_u32 s{S_T0}, 0\ns_cbranch_scc1 L_end\ns_mov_b32 s{S_T0}, 0")
        self.flag_store(S_T0, 4)
        a("s_branch L_end")

        a("L_F_u4:")
        if self.stop == "phase1":
            a("s_branch L_end")
        a(f"""
        v_lshlrev_b32 v{VL}, 4, v1
        s_mul_i32 s{S_C}, s{S_DTILE}, {5*UW_ST}
        s_add_u32 s{S_C}, s{S_C}, {UW + 4*UW_ST}
        s_barrier
        """)

        def u4_issue(iv):
            a(f"s_mov_b32 m0, {0x20000 + (iv % 8)*4096:#x}\ns_add_u32 s{S_T0}, s{S_C}, {iv*4096}")
            for i in range(4):
                a(f"buffer_load_dwordx4 v{VL}, s[{R_WS}:{R_WS+3}], s{S_T0} offen offset:{i*1024} sc1 lds")
        order = []
        for iv in range(8):
            u4_issue(iv)
            order.append(iv)
            if iv == 2:
                a("s_waitcnt vmcnt(8)\ns_barrier")
        for tb in range(1, 17):
            a(f"s_waitcnt vmcnt({4*len(order[order.index(tb)+1:])})\ns_barrier")
            if tb + 7 <= 16:
                u4_issue(tb + 7)
                order.append(tb + 7)
        a("s_branch L_end")

        a("L_F_loader:")
        if self.stop == "phase1":
            a("s_branch L_end")
        a(f"v_lshlrev_b32 v{VL}, 4, v1\ns_barrier")
        a(f"""
        s_sub_u32 s{S_T0}, s{S_WAVE}, 5
        s_lshl_b32 s{S_T0}, s{S_T0}, 1
        s_lshl_b32 s{S_T0+1}, s{S_ST}, 2
        s_add_u32 s{S_T0+1}, s{S_T0+1}, s{S_T0}
        s_mul_i32 s{S_C}, s{S_T0+1}, {GO_ST}
        s_add_u32 s{S_C}, s{S_C}, {GO}
        s_lshl_b32 s{S_D}, s{S_T0}, 12
        """)
        order = list(range(8))
        for tb in range(17):
            after = [x for x in order[order.index(tb) + 1:]]
            n = 8 * len(after)
            a(f"s_waitcnt vmcnt({min(n,63)})\ns_barrier")
            t = tb - 1
            if 0 <= t <= 3:
                self.w2_issue()
                order.append(t + 8)
            if 8 <= t <= 12:
                iv = t + 4
                g = iv - 12
                for s2 in range(2):
                    a(f"s_add_u32 m0, s{S_D}, {(iv % 8)*16384 + s2*4096}\ns_add_u32 s{S_T0}, s{S_C}, {s2*GO_ST + g*4096}")
                    for i in range(4):
                        a(f"buffer_load_dwordx4 v{VL}, s[{R_WS}:{R_WS+3}], s{S_T0} offen offset:{i*1024} sc1 lds")
                order.append(iv)
        a("s_branch L_end")
        a("L_F_poller:")
        if self.stop == "phase1":
            a("s_branch L_end")
        a(f"""
        s_mul_i32 s{S_T0}, s{S_DTILE}, 5
        s_lshr_b32 s{S_T0+1}, s{S_T0}, 3
        s_add_u32 s{S_T0}, s{S_T0}, 4
        s_lshr_b32 s{S_T0}, s{S_T0}, 3
        s_mul_i32 s{S_T0}, s{S_T0}, 24
        s_mul_i32 s{S_T0+1}, s{S_T0+1}, 24
        v_and_b32 v2, 31, v1
        v_min_u32 v2, 23, v2
        v_add_u32 v3, s{S_T0}, v2
        v_add_u32 v2, s{S_T0+1}, v2
        v_cmp_gt_u32 vcc, 32, v1
        s_mul_i32 s{S_T0}, s{S_DTILE}, {FS}
        s_add_u32 s{S_T0}, s{S_T0}, {F_WOT}
        v_cndmask_b32 v2, v2, v3, vcc
        v_mul_u32_u24 v2, {FS}, v2
        v_add_u32 v2, {F_U}, v2
        v_mov_b32 v3, s{S_T0}
        v_cmp_eq_u32 vcc, 63, v1
        s_nop 1
        v_cndmask_b32 v2, v2, v3, vcc
        """)
        self.poll([2], 4)
        self.stamp(6, 4)
        a("s_barrier")
        a(f"""
        v_and_b32 v2, 7, v1
        s_lshr_b32 s{S_T0}, s{S_ST}, 1
        s_lshl_b32 s{S_T0}, s{S_T0}, 3
        v_add_u32 v2, s{S_T0}, v2
        v_mul_u32_u24 v2, {FS}, v2
        v_add_u32 v2, {F_GO}, v2
        """)
        gp = self.o.get("gopoll", 9)
        for tb in range(gp):
            a("s_barrier")
            self.stamp(32 + tb, 4)
        self.poll([2], 4)
        self.stamp(7, 4)
        for tb in range(gp, 17):
            a("s_barrier")
            self.stamp(32 + tb, 4)
        a("L_end:\ns_endpgm")

    def build(self, header):
        a = self.a
        self.prologue()
        self.role_a()
        self.role_b()
        self.helper()
        self.final()
        body = a.text()
        out = header
        out += f"; @launch grid=(256,1,1) block=(512,1,1) lds={LDS_BYTES}\n"
        out += f'.amdgcn_target "amdgcn-amd-amdhsa--gfx950"\n.text\n.globl {KNAME}\n.p2align 8\n.type {KNAME},@function\n{KNAME}:\n'
        out += body
        out += f""".section .rodata,"a"
.p2align 6
.amdhsa_kernel {KNAME}
  .amdhsa_next_free_vgpr 256
  .amdhsa_next_free_sgpr 102
  .amdhsa_accum_offset 256
  .amdhsa_group_segment_fixed_size 0
  .amdhsa_kernarg_size 96
  .amdhsa_user_sgpr_count 2
  .amdhsa_user_sgpr_kernarg_segment_ptr 1
  .amdhsa_system_sgpr_workgroup_id_x 1
  .amdhsa_float_denorm_mode_32 3
.end_amdhsa_kernel
"""
        return out


def header():
    ref = open("gated_mix__linear_attn_block__mixer_token_mlp__prompt.s.ref").read().split("\n")
    h = []
    for l in ref:
        if l.startswith("; Override"):
            break
        h.append(l)
    return "\n".join(h) + "\n"


if __name__ == "__main__":
    import argparse
    p = argparse.ArgumentParser()
    p.add_argument("-o", default="gated_mix__linear_attn_block__mixer_token_mlp__prompt.s")
    p.add_argument("--stamps", action="store_true")
    p.add_argument("--stop", default=None)
    p.add_argument("--opt", default="")
    args = p.parse_args()
    opts = {k: (int(v) if v != '' else 1) for k, _, v in (x.partition('=') for x in args.opt.split(',') if x)}
    g = Gen(stamps=args.stamps, stop=args.stop, opts=opts)
    open(args.o, "w").write(g.build(header()))
    print("wrote", args.o)
```

```python
import sys

KNAME = "gated_mix__linear_attn_block__mixer_token_mlp__prompt_kernel"

FS = 128
F_LN, F_KV, F_U, F_GO, F_WOT = 0x1000, 0x5000, 0x9000, 0xD000, 0x11000
G_OFF = 0x12000
STAMP = 0x8C0000
KVP = 0x20000
KVP_ST = 7168
HT = 0x100000
UW = 0x380000
UW_ST = 69632
GO = 0x640000
GO_ST = 20480
WS_USED = 0x8E0000
TAG_INC = 0x9E3779B9
SPIN_LIMIT = 1 << 17

LDS_BYTES = 163840
LNBUF = 131072
LN_ST = 1312
LNG = LNBUF + 16 * LN_ST
A_SLOT = 49152
A_WOFF = 16384
EXCH_ST = 14336
KVT = 147456
ZH = KVT + 11 * 1024

LOG2E = 0x3FB8AA3B


def f2u(x):
    import struct
    return struct.unpack("<I", struct.pack("<f", x))[0]


class Asm:
    def __init__(self):
        self.L = []
        self.nlab = 0

    def __call__(self, s):
        for line in s.split("\n"):
            line = line.strip()
            if line:
                self.L.append(("    " if not line.endswith(":") else "") + line)

    def label(self, base):
        self.nlab += 1
        return f"L{base}_{self.nlab}"

    def text(self):
        return "\n".join(self.L) + "\n"


def vr(a, n=1):
    return f"v{a}" if n == 1 else f"v[{a}:{a+n-1}]"


def sr(a, n=1):
    return f"s{a}" if n == 1 else f"s[{a}:{a+n-1}]"


P_X, P_WQKV, P_WO, P_BX, P_W1, P_B1, P_W2, P_B2 = 4, 6, 8, 10, 12, 14, 16, 18
P_GATE, P_OUT, P_DBG, P_WS = 20, 22, 24, 26
S_TAG, S_WAVE = 28, 29
S_XCD, S_J = 30, 31
R_WS, R_X, R_W, R_P, R_W2, R_M, R_OUT = 32, 36, 40, 44, 48, 52, 56
S_T0 = 60
S_MT, S_HG, S_DT, S_FT, S_KST, S_PAR = 70, 71, 72, 73, 74, 75
S_ST, S_DTILE = 76, 77
S_CNT = 78
S_A, S_B, S_C, S_D = 80, 81, 82, 83
S_MSK = 84
S_K0 = 90
S_STMP = 96


class Gen:
    def __init__(self, stamps=False, stop=None, opts=None):
        self.o = opts or {}
        self.a = Asm()
        self.stamps = stamps
        self.stop = stop

    def srd(self, dst, ptr, nbytes, off_s=None):
        a = self.a
        if off_s is None:
            a(f"s_mov_b32 s{dst}, s{ptr}\ns_and_b32 s{dst+1}, s{ptr+1}, 0xffff")
        else:
            a(f"s_add_u32 s{dst}, s{ptr}, s{off_s}\ns_addc_u32 s{dst+1}, s{ptr+1}, 0\ns_and_b32 s{dst+1}, s{dst+1}, 0xffff")
        a(f"s_mov_b32 s{dst+2}, {nbytes:#x}\ns_mov_b32 s{dst+3}, 0x20000")

    def stamp(self, k, vtmp, dyn=None):
        if self.o.get("dbg"):
            m = {0: 0, 11: 1, 1: 2, 2: 3, 3: 4, 4: 5, 6: 6, 9: 7}
            mA = {0: 0, 1: 1, 2: 2, 3: 3, 4: 4, 5: 5, 6: 6, 9: 7}
            if dyn is not None:
                return
            a = self.a
            for wg, mp, base in ((8, m, 0), (12, mA, 8)):
                if k in mp:
                    lab = a.label("nd")
                    a(f"s_cmp_lg_u32 s2, {wg}\ns_cbranch_scc1 {lab}")
                    a(f"s_memrealtime s[{S_STMP}:{S_STMP+1}]\ns_waitcnt lgkmcnt(0)")
                    a(f"v_mov_b32 v{vtmp}, s{S_STMP}\nv_mov_b32 v{vtmp+2}, {4*(base+mp[k])}")
                    a(f"s_mov_b64 exec, 1\nglobal_store_dword v{vtmp+2}, v{vtmp}, s[{P_DBG}:{P_DBG+1}]\ns_mov_b64 exec, -1\n{lab}:")
            return
        if not self.stamps:
            return
        a = self.a
        a(f"s_memrealtime s[{S_STMP}:{S_STMP+1}]\ns_memtime s[100:101]\ns_waitcnt lgkmcnt(0)\ns_mov_b32 s{S_STMP+1}, s100")
        a(f"s_lshl_b32 s{S_STMP+2}, s2, 9\ns_add_u32 s{S_STMP+2}, s{S_STMP+2}, {STAMP + 8*k}")
        if dyn is not None:
            a(f"s_lshl_b32 s{S_STMP+3}, s{dyn}, 3\ns_add_u32 s{S_STMP+2}, s{S_STMP+2}, s{S_STMP+3}")
        a(f"v_mov_b32 v{vtmp}, s{S_STMP}\nv_mov_b32 v{vtmp+1}, s{S_STMP+1}\nv_mov_b32 v{vtmp+2}, 0")
        a(f"s_mov_b64 exec, 1\nbuffer_store_dwordx2 v[{vtmp}:{vtmp+1}], v{vtmp+2}, s[{R_WS}:{R_WS+3}], s{S_STMP+2} offen\ns_mov_b64 exec, -1")

    def poll(self, voffs, vtmp):
        a = self.a
        lp, dn = a.label("poll"), a.label("pdone")
        a(f"s_mov_b32 s{S_CNT}, 0\n{lp}:")
        for i, vo in enumerate(voffs):
            a(f"buffer_load_dword v{vtmp+i}, v{vo}, s[{R_WS}:{R_WS+3}], 0 offen sc1")
        a("s_waitcnt vmcnt(0)")
        a(f"v_cmp_ne_u32 vcc, s{S_TAG}, v{vtmp}")
        for i in range(1, len(voffs)):
            a(f"v_cmp_ne_u32 s[{S_T0}:{S_T0+1}], s{S_TAG}, v{vtmp+i}\ns_nop 1\ns_or_b64 vcc, vcc, s[{S_T0}:{S_T0+1}]")
        a(f"s_nop 1\ns_cmp_eq_u64 vcc, 0\ns_cbranch_scc1 {dn}")
        a(f"s_add_u32 s{S_CNT}, s{S_CNT}, 1\ns_cmp_lt_u32 s{S_CNT}, {SPIN_LIMIT}\ns_cbranch_scc0 {dn}\ns_sleep 1\ns_branch {lp}\n{dn}:")

    def flag_store(self, s_off, vtmp):
        a = self.a
        a(f"v_mov_b32 v{vtmp}, s{S_TAG}\nv_mov_b32 v{vtmp+1}, 0\ns_mov_b64 exec, 1")
        a(f"buffer_store_dword v{vtmp}, v{vtmp+1}, s[{R_WS}:{R_WS+3}], s{s_off} offen sc1\ns_mov_b64 exec, -1")

    def pipeline(self, stages, D, gstar, prologue=True, loop_label=None, loop_cond=None):
        a = self.a
        seq = []
        for si, st in enumerate(stages):
            for gi, u in enumerate(st["uses"]):
                seq.append((si, gi, u))
        issued = []
        nxt = 0
        opened = -1

        def issue_upto(lim):
            nonlocal nxt
            while nxt < len(seq) and nxt <= lim and seq[nxt][0] <= opened:
                for name, txt in seq[nxt][2]["reads"]:
                    a(txt)
                    issued.append(name)
                nxt += 1

        def open_stage(s):
            nonlocal opened
            a(stages[s]["bar"])
            opened = s

        if prologue:
            open_stage(0)
            issue_upto(D - 2)
        n_real = sum(len(st["uses"]) for st in stages if not st.get("virtual"))
        for f in range(n_real):
            si, gi, u = seq[f]
            if gi == 0 and stages[si].get("head"):
                a(stages[si]["head"])
            if gi == gstar and si + 1 < len(stages):
                a("s_waitcnt lgkmcnt(0)")
                issued.append("__drain")
                open_stage(si + 1)
                issue_upto(f + D - 1)
            issue_upto(f + D - 1)
            last = -1
            for nm in u["need"]:
                idx = len(issued) - 1 - issued[::-1].index(nm)
                last = max(last, idx)
            drain = (len(issued) - 1 - issued[::-1].index("__drain")) if "__drain" in issued else -1
            w = []
            if last > drain:
                n = sum(1 for x in issued[last + 1:] if x != "__drain")
                assert n <= 15, n
                if u.get("lastwait") != n or True:
                    w.append(f"lgkmcnt({n})")
            if u.get("vm") is not None:
                w.insert(0, f"vmcnt({u['vm']})")
            if w:
                a("s_waitcnt " + " ".join(w))
            if u.get("before"):
                a(u["before"])
            for m in u["mf"]:
                a(m)
            if u.get("after"):
                a(u["after"])
            if gi == len(stages[si]["uses"]) - 1 and stages[si].get("tail"):
                a(stages[si]["tail"])

    def prologue(self):
        a = self.a
        a(f"""
        s_cmp_ge_u32 s2, 256
        s_cbranch_scc1 L_end
        {"s_memrealtime s[98:99]" if self.o.get("calib") else ""}
        s_load_dwordx16 s[4:19], s[0:1], 0
        s_load_dwordx8 s[20:27], s[0:1], 64
        v_and_b32 v1, 63, v0
        v_lshrrev_b32 v2, 6, v0
        s_and_b32 s{S_XCD}, s2, 7
        v_readfirstlane_b32 s{S_WAVE}, v2
        s_lshr_b32 s{S_J}, s2, 3
        s_waitcnt lgkmcnt(0)
        s_load_dword s{S_TAG}, s[{P_WS}:{P_WS+1}], 0
        """)
        self.srd(R_WS, P_WS, WS_USED)
        self.srd(R_X, P_X, 2048 * 1280)
        if self.stamps or self.o.get("dbg"):
            a(f"s_cmp_lg_u32 s{S_WAVE}, 0\ns_cbranch_scc1 L_nost0")
            self.stamp(0, 4)
            a("L_nost0:")
        if self.o.get("pf_code"):
            self.code_prefetch()
        a(f"""
        s_lshr_b32 s{S_T0}, s{S_XCD}, 1
        s_lshl_b32 s{S_T0}, s{S_T0}, 3
        s_lshr_b32 s{S_ST}, s{S_J}, 2
        s_add_u32 s{S_ST}, s{S_ST}, s{S_T0}
        s_and_b32 s{S_T0}, s{S_XCD}, 1
        s_lshl_b32 s{S_T0}, s{S_T0}, 2
        s_and_b32 s{S_DTILE}, s{S_J}, 3
        s_add_u32 s{S_DTILE}, s{S_DTILE}, s{S_T0}
        s_cmp_lt_u32 s{S_XCD}, 4
        s_cbranch_scc1 L_roleB
        """)

    V_W2 = 240

    def w2_setup(self):
        a = self.a
        V = self.V_W2
        self.srd(R_W2, P_W2, 1536 * 4096)
        a(f"""
        v_lshrrev_b32 v{V}, 3, v1
        v_lshrrev_b32 v{V+1}, 4, v1
        v_lshlrev_b32 v{V+1}, 1, v{V+1}
        v_and_b32 v{V+2}, 7, v1
        v_xor_b32 v{V+1}, v{V+1}, v{V+2}
        v_lshlrev_b32 v{V+1}, 4, v{V+1}
        v_lshl_add_u32 v{V}, v{V}, 12, v{V+1}
        v_add_u32 v{V+1}, {32768-1024}, v{V}
        v_add_u32 v{V+2}, {2*(32768-1024)}, v{V}
        v_add_u32 v{V+3}, {3*(32768-1024)}, v{V}
        s_sub_u32 s{S_T0}, s{S_WAVE}, 5
        s_lshl_b32 s{S_B}, s{S_T0}, 13
        s_lshl_b32 s{S_A}, s{S_T0}, 18
        s_lshl_b32 s{S_T0}, s{S_ST}, 7
        s_add_u32 s{S_A}, s{S_A}, s{S_T0}
        """)

    def w2_issue(self):
        a = self.a
        V = self.V_W2
        for g in range(2):
            a(f"s_add_u32 m0, s{S_B}, {g*4096}")
            a(f"s_add_u32 s{S_T0}, s{S_A}, {g*4*32768}")
            for i in range(4):
                a(f"buffer_load_dwordx4 v{V+i}, s[{R_W2}:{R_W2+3}], s{S_T0} offen offset:{i*1024} lds")
        a(f"s_add_u32 s{S_A}, s{S_A}, {128*4096}\ns_add_u32 s{S_B}, s{S_B}, 16384\ns_and_b32 s{S_B}, s{S_B}, 0x1ffff")

    def w2_prefill(self, n):
        a = self.a
        lp = a.label("pf")
        a(f"s_mov_b32 s{S_C}, 0\n{lp}:")
        self.w2_issue()
        a(f"s_add_u32 s{S_C}, s{S_C}, 1\ns_cmp_lt_u32 s{S_C}, {n}\ns_cbranch_scc1 {lp}")

    def if_wave56(self):
        a = self.a
        skip = a.label("n56")
        a(f"s_sub_u32 s{S_T0}, s{S_WAVE}, 5\ns_cmp_lt_u32 s{S_T0}, 2\ns_cbranch_scc0 {skip}")
        return skip

    def role_a(self):
        a = self.a
        a("L_roleA:")
        a(f"s_sub_u32 s{S_MT}, s{S_ST}, 16\ns_mov_b32 s{S_HG}, s{S_DTILE}")
        a(f"s_cmp_ge_u32 s{S_WAVE}, 4\ns_cbranch_scc1 L_A_loader")
        ACC, XF, WF, VXA, VWA = 128, 96, 64, 4, 6
        if self.o.get("ta1") or self.o.get("ta2"):
            self.start_prefetch()
        self.a_thread_map()
        a(f"""
        v_and_b32 v16, 15, v1
        v_lshrrev_b32 v17, 4, v1
        s_lshl_b32 s{S_T0}, s{S_WAVE}, 5
        v_add_u32 v18, s{S_T0}, v16
        v_lshrrev_b32 v19, 1, v16
        v_xor_b32 v19, v17, v19
        v_lshlrev_b32 v19, 4, v19
        v_lshl_add_u32 v{VXA}, v18, 7, v19
        v_xor_b32 v{VXA+1}, 64, v{VXA}
        v_lshrrev_b32 v18, 2, v16
        v_lshl_add_u32 v19, v17, 3, v18
        v_and_b32 v20, 1, v17
        v_lshl_or_b32 v20, v20, 2, v18
        v_lshlrev_b32 v19, 9, v19
        v_lshl_add_u32 v19, v20, 5, v19
        v_and_b32 v20, 3, v16
        v_lshl_add_u32 v19, v20, 3, v19
        v_add_u32 v{VWA}, {A_WOFF}, v19
        """)
        for n in range(1, 8):
            a(f"v_xor_b32 v{VWA+n}, {n<<5}, v{VWA}")
        for r in range(120):
            a(f"v_mov_b32 v{ACC+r}, 0")
        a(f"s_mov_b32 s{S_A}, 0\ns_mov_b32 s{S_B}, 0\ns_mov_b32 s{S_C}, {A_SLOT}\ns_waitcnt lgkmcnt(0)")
        a(f"s_add_u32 s{S_TAG}, s{S_TAG}, {TAG_INC:#x}")

        RING = 6
        D = 6

        def mk_stage(bar, virtual=False, head=None, tail=None):
            uses = []
            for g in range(30):
                ks, n = divmod(g, 15)
                wb = WF + 4 * (g % RING)
                reads = []
                if g == 0:
                    for rb in range(2):
                        reads.append((f"x0{rb}", f"ds_read_b128 {vr(XF+4*rb,4)}, v{VXA} offset:{rb*2048}"))
                if g == 13:
                    for rb in range(2):
                        reads.append((f"x1{rb}", f"ds_read_b128 {vr(XF+8+4*rb,4)}, v{VXA+1} offset:{rb*2048}"))
                off = ks * 16384 + (n >> 3) * 256
                reads.append((f"w{g}a", f"ds_read_b64_tr_b16 {vr(wb,2)}, v{VWA+(n&7)} offset:{off}"))
                reads.append((f"w{g}b", f"ds_read_b64_tr_b16 {vr(wb+2,2)}, v{VWA+(n&7)} offset:{off+2048}"))
                need = [f"w{g}b", f"x{ks}1"]
                mf = []
                for rb in range(2):
                    acc = vr(ACC + (n * 2 + rb) * 4, 4)
                    xf = vr(XF + ks * 8 + rb * 4, 4)
                    wf = vr(wb, 4)
                    if n < 5:
                        mf.append(f"v_mfma_f32_16x16x32_bf16 {acc}, {wf}, {xf}, {acc}")
                    else:
                        mf.append(f"v_mfma_f32_16x16x32_bf16 {acc}, {xf}, {wf}, {acc}")
                uses.append(dict(reads=reads, need=need, mf=mf))
            return dict(uses=uses, bar=bar, virtual=virtual, head=head, tail=tail)

        adv = f"""s_barrier
        s_add_u32 s{S_B}, s{S_B}, 1
        s_cmp_eq_u32 s{S_B}, 3
        s_cselect_b32 s{S_B}, 0, s{S_B}
        s_cselect_b32 s{S_T0}, {(-2*A_SLOT) & 0xffffffff:#x}, s{S_C}
        """ + "\n".join(f"v_add_u32 v{r}, s{S_T0}, v{r}" for r in range(VXA, VWA + 8))
        tail = f"s_add_u32 s{S_A}, s{S_A}, 1\ns_cmp_lt_u32 s{S_A}, 10\ns_cbranch_scc1 L_A_loop"
        head = "L_A_loop:\n"
        bar0 = "s_barrier"
        ta2 = self.o.get("ta2")
        if ta2 == 1:
            a(self.pf_rest())
        elif ta2 == 2:
            bar0 += "\n" + self.pf_rest()
        elif ta2:
            head += f"s_cmp_lg_u32 s{S_A}, {ta2-2}\ns_cbranch_scc1 L_A_npf\n" + self.pf_rest() + "L_A_npf:\n"
        self.pipeline([mk_stage(bar0, head=head, tail=tail), mk_stage(adv, virtual=True)], D, 30 - 3)
        self.stamp(2, 16)
        PK, VV, ONES, KVD, ZD = 16, 36, 56, 64, 116
        a("s_waitcnt lgkmcnt(0)\ns_nop 7")
        a(f"s_mov_b32 s{S_K0}, {LOG2E:#x}\ns_mov_b32 s{S_K0+1}, {LOG2E:#x}\ns_mov_b32 s{S_K0+2}, {f2u(1e-6):#x}")

        def phi(base, n, t):
            for i in range(0, n, 4):
                r = base + i
                a(f"v_pk_mul_f32 {vr(t,2)}, {vr(r,2)}, s[{S_K0}:{S_K0+1}]")
                a(f"v_pk_mul_f32 {vr(t+2,2)}, {vr(r+2,2)}, s[{S_K0}:{S_K0+1}]")
                for k in range(4):
                    a(f"v_exp_f32_e64 v{t+k}, v{t+k} clamp")
                for k in range(4):
                    a(f"v_max_f32 v{r+k}, s{S_K0+2}, v{r+k}")
                a(f"v_pk_add_f32 {vr(r,2)}, {vr(r,2)}, {vr(t,2)}")
                a(f"v_pk_add_f32 {vr(r+2,2)}, {vr(r+2,2)}, {vr(t+2,2)}")

        def pack(dst, src0, src1):
            a(f"v_cvt_pk_bf16_f32 v{dst}, v{src0}, v{src0+1}\nv_cvt_pk_bf16_f32 v{dst+1}, v{src0+2}, v{src0+3}")
            if src1 is None:
                a(f"v_mov_b32 v{dst+2}, 0\nv_mov_b32 v{dst+3}, 0")
            else:
                a(f"v_cvt_pk_bf16_f32 v{dst+2}, v{src1}, v{src1+1}\nv_cvt_pk_bf16_f32 v{dst+3}, v{src1+2}, v{src1+3}")

        for b in range(5):
            pack(VV + 4 * b, ACC + (10 + b) * 8, ACC + (10 + b) * 8 + 4)
        for k in range(4):
            a(f"v_mov_b32 v{ONES+k}, 0x3f803f80")
        phi(ACC + 40, 40, 60)
        for b in range(5):
            pack(PK + 4 * b, ACC + (5 + b) * 8, ACC + (5 + b) * 8 + 4)
        a("s_nop 1")
        ZD = ACC + 80
        blocks = [(x, y) for x in range(5) for y in range(5) if abs(x - y) <= 1]
        for (x, y) in blocks:
            a(f"v_mfma_f32_16x16x32_bf16 {vr(KVD+4*(2*x+y),4)}, {vr(PK+4*x,4)}, {vr(VV+4*y,4)}, 0")
        for x in range(5):
            a(f"v_mfma_f32_16x16x32_bf16 {vr(ZD+4*x,4)}, {vr(ONES,4)}, {vr(PK+4*x,4)}, 0")
        a(f"""
        s_mul_i32 s{S_T0}, s{S_WAVE}, {EXCH_ST}
        v_lshlrev_b32 v60, 4, v1
        v_add_u32 v60, s{S_T0}, v60
        v_and_b32 v61, 15, v1
        v_lshlrev_b32 v61, 2, v61
        v_add_u32 v61, s{S_T0}, v61
        s_nop 3
        """)
        for i in range(13):
            a(f"ds_write_b128 v60, {vr(KVD+4*i,4)} offset:{i*1024}")
        for x in range(5):
            a(f"ds_write_b32 v61, v{ZD+4*x} offset:{13312+64*x}")
        a("s_waitcnt lgkmcnt(0)\ns_barrier")
        self.a_reduce_publish(64)
        a("s_waitcnt vmcnt(0)\ns_barrier")
        PQ = 16
        phi(ACC, 40, 60)
        for ts in range(3):
            for rb in range(2):
                pack(PQ + (ts * 2 + rb) * 4, ACC + (2 * ts * 2 + rb) * 4, None if ts == 2 else ACC + ((2 * ts + 1) * 2 + rb) * 4)
        a("s_barrier")
        a(f"""
        v_and_b32 v63, 15, v1
        v_lshlrev_b32 v63, 2, v63
        s_lshl_b32 s{S_T0}, s{S_MT}, 7
        s_lshl_b32 s{S_T0+1}, s{S_WAVE}, 5
        s_add_u32 s{S_T0}, s{S_T0}, s{S_T0+1}
        s_lshl_b32 s{S_T0}, s{S_T0}, 2
        s_add_u32 s{S_T0}, s{S_T0}, {G_OFF}
        buffer_load_dword v62, v63, s[{R_WS}:{R_WS+3}], s{S_T0} offen sc1
        buffer_load_dword v61, v63, s[{R_WS}:{R_WS+3}], s{S_T0} offen offset:64 sc1
        """)
        self.a_gather(64, 0)
        a("s_waitcnt lgkmcnt(0)\ns_barrier")
        self.stamp(4, 40)
        FR = 64
        a("v_lshlrev_b32 v60, 4, v1\nv_add_u32 v60, " + str(KVT) + ", v60")
        used = [0, 2, 3, 4, 5, 7, 8, 9, 10, 11, 12, 13]
        for f in used:
            a(f"ds_read_b128 {vr(FR+4*f,4)}, v60 offset:{f*1024}")
        NUM, DEN = 128, 168
        kts = {0: [0], 1: [0, 1], 2: [0, 1], 3: [1, 2], 4: [1, 2]}
        a(f"""
        v_lshrrev_b32 v40, 4, v1
        v_cmp_gt_u32 s[{S_MSK}:{S_MSK+1}], 1, v40
        v_cmp_gt_u32 s[{S_MSK+2}:{S_MSK+3}], 2, v40
        v_cmp_gt_u32 s[{S_MSK+4}:{S_MSK+5}], 3, v40
        s_waitcnt lgkmcnt(0)
        """)
        for rb in range(2):
            for ts in range(3):
                c = "0" if ts == 0 else vr(DEN + 4 * rb, 4)
                a(f"v_mfma_f32_16x16x32_bf16 {vr(DEN+4*rb,4)}, {vr(FR+4*(11+ts),4)}, {vr(PQ+(ts*2+rb)*4,4)}, {c}")
        for rb in range(2):
            for b in range(5):
                for i, ts in enumerate(kts[b]):
                    d = vr(NUM + (rb * 5 + b) * 4, 4)
                    c = "0" if i == 0 else d
                    a(f"v_mfma_f32_16x16x32_bf16 {d}, {vr(FR+4*(2*b+ts),4)}, {vr(PQ+(ts*2+rb)*4,4)}, {c}")
        for rb in range(2):
            for h in range(4):
                a(f"v_add_f32 v{DEN+4*rb+h}, s{S_K0+2}, v{DEN+4*rb+h}")
        for rb in range(2):
            for h in range(4):
                a(f"v_rcp_f32 v{DEN+4*rb+h}, v{DEN+4*rb+h}")
        a("s_waitcnt vmcnt(0)")
        gv = {0: 62, 1: 61}
        for rb in range(2):
            for h in range(4):
                a(f"v_mul_f32 v{DEN+4*rb+h}, v{gv[rb]}, v{DEN+4*rb+h}")
        a(f"""
        s_lshl_b32 s{S_T0}, s{S_MT}, 3
        s_lshl_b32 s{S_T0+1}, s{S_WAVE}, 1
        s_add_u32 s{S_T0}, s{S_T0}, s{S_T0+1}
        s_mul_i32 s{S_T0}, s{S_T0}, {GO_ST}
        s_add_u32 s{S_T0}, s{S_T0}, {GO}
        s_lshl_b32 s{S_T0+1}, s{S_HG}, 11
        s_add_u32 s{S_T0+1}, s{S_T0+1}, s{S_T0}
        s_lshl_b32 s{S_T0+2}, s{S_HG}, 9
        s_add_u32 s{S_T0+2}, s{S_T0+2}, s{S_T0}
        s_add_u32 s{S_T0+2}, s{S_T0+2}, 16384
        v_lshlrev_b32 v40, 4, v1
        v_lshlrev_b32 v41, 3, v1
        """)
        for rb in range(2):
            d = DEN + 4 * rb
            a(f"v_cndmask_b32 v44, v{d+1}, v{d}, s[{S_MSK}:{S_MSK+1}]")
            a(f"v_cndmask_b32 v45, v{d+2}, v{d+1}, s[{S_MSK+2}:{S_MSK+3}]")
            a(f"v_cndmask_b32 v46, v{d+3}, v{d+2}, s[{S_MSK+4}:{S_MSK+5}]")
            sc = [d, 44, 45, 46, d + 3]
            for b in range(5):
                for k in range(4):
                    r = NUM + (rb * 5 + b) * 4 + k
                    a(f"v_mul_f32 v{r}, v{sc[b]}, v{r}")
            o = 176 + rb * 12
            n0 = NUM + rb * 20
            pack(o, n0, n0 + 4)
            pack(o + 4, n0 + 8, n0 + 12)
            a(f"v_cvt_pk_bf16_f32 v{o+8}, v{n0+16}, v{n0+17}\nv_cvt_pk_bf16_f32 v{o+9}, v{n0+18}, v{n0+19}")
            a(f"buffer_store_dwordx4 {vr(o,4)}, v40, s[{R_WS}:{R_WS+3}], s{S_T0+1} offen sc1")
            a(f"buffer_store_dwordx4 {vr(o+4,4)}, v40, s[{R_WS}:{R_WS+3}], s{S_T0+1} offen offset:1024 sc1")
            a(f"buffer_store_dwordx2 {vr(o+8,2)}, v41, s[{R_WS}:{R_WS+3}], s{S_T0+2} offen sc1")
            if rb == 0:
                a(f"s_add_u32 s{S_T0+1}, s{S_T0+1}, {GO_ST}\ns_add_u32 s{S_T0+2}, s{S_T0+2}, {GO_ST}")
        a("s_waitcnt vmcnt(0)\ns_barrier")
        a("s_branch L_F_comp")

        a("L_A_loader:")
        VX, VW = 4, 8
        self.srd(R_W, P_WQKV, 640 * 3840)
        a(f"""
        s_sub_u32 s{S_D}, s{S_WAVE}, 4
        v_lshrrev_b32 v16, 3, v1
        v_lshrrev_b32 v17, 4, v1
        v_and_b32 v18, 7, v1
        v_xor_b32 v17, v17, v18
        v_lshlrev_b32 v17, 4, v17
        v_mul_u32_u24 v16, 1280, v16
        v_add_u32 v{VX}, v16, v17
        v_xor_b32 v18, 64, v{VX}
        v_add_u32 v{VX+1}, {8*1280-1024}, v18
        v_add_u32 v{VX+2}, {2*(8*1280-1024)}, v{VX}
        v_add_u32 v{VX+3}, {3*(8*1280-1024)}, v18
        s_lshl_b32 s{S_T0}, s{S_MT}, 7
        s_lshl_b32 s{S_T0+1}, s{S_D}, 5
        s_add_u32 s{S_T0}, s{S_T0}, s{S_T0+1}
        s_mul_i32 s{S_A}, s{S_T0}, 1280
        s_lshl_b32 s{S_C}, s{S_D}, 12
        """)
        def issue_x():
            a(f"s_mov_b32 m0, s{S_C}\ns_nop 0")
            for i in range(4):
                a(f"buffer_load_dwordx4 v{VX+i}, s[{R_X}:{R_X+3}], s{S_A} offen offset:{i*1024} lds")
            a(f"s_add_u32 s{S_A}, s{S_A}, 128")

        def issue_w():
            for g in range(2):
                a(f"s_lshl_b32 s{S_T0}, s{S_D}, 12\ns_add_u32 s{S_T0}, s{S_T0}, s{S_C}\ns_add_u32 m0, s{S_T0}, {A_WOFF + g*4096}\ns_nop 0")
                for i in range(4):
                    a(f"buffer_load_dwordx4 v{VW+4*g+i}, s[{R_W}:{R_W+3}], s{S_B} offen offset:{i*1024} lds")
            a(f"s_add_u32 s{S_B}, s{S_B}, {64*3840}")

        def next_slot():
            a(f"s_add_u32 s{S_C}, s{S_C}, {A_SLOT}\ns_cmp_ge_u32 s{S_C}, {3*A_SLOT}\ns_cselect_b32 s{S_T0}, {3*A_SLOT}, 0\ns_sub_u32 s{S_C}, s{S_C}, s{S_T0}")

        issue_x()
        a(f"""
        v_lshrrev_b32 v16, 5, v1
        v_bfe_u32 v17, v1, 1, 4
        v_and_b32 v18, 1, v1
        v_lshlrev_b32 v18, 4, v18
        v_mul_u32_u24 v19, 3840, v16
        v_add_u32 v18, v18, v19
        """)
        for i in (0, 1, 4, 5):
            sig = (2 * (i & 1)) | ((i >> 2) << 2)
            a(f"""
            v_or_b32 v19, {sig}, v16
            v_xor_b32 v19, v17, v19
            v_min_u32 v19, 14, v19
            v_mul_u32_u24 v20, 13, v19
            v_lshrrev_b32 v20, 6, v20
            v_mul_u32_u24 v20, 1120, v20
            v_lshl_add_u32 v19, v19, 5, v20
            v_add_u32 v19, v19, v18
            v_add_u32 v{VW+i}, {2*i*3840 - (i&3)*1024}, v19
            v_add_u32 v{VW+i+2}, {2*(i+2)*3840 - ((i+2)&3)*1024}, v19
            """)
        a(f"""
        s_mul_i32 s{S_B}, s{S_HG}, 160
        s_mul_i32 s{S_T0}, s{S_D}, {16*3840}
        s_add_u32 s{S_B}, s{S_B}, s{S_T0}
        """)
        issue_w()
        for _ in range(2):
            next_slot()
            issue_x()
            issue_w()
        a(f"v_lshlrev_b32 v16, 4, v1\ns_lshl_b32 s{S_T0}, s{S_D}, 12\ns_add_u32 s{S_T0}, s{S_T0}, {KVT}\nv_add_u32 v16, s{S_T0}, v16")
        a("v_mov_b32 v20, 0\nv_mov_b32 v21, 0\nv_mov_b32 v22, 0\nv_mov_b32 v23, 0")
        for i in range(4):
            a(f"ds_write_b128 v16, v[20:23] offset:{i*1024}")
        self.a_thread_map()
        a(f"s_waitcnt lgkmcnt(0)\ns_add_u32 s{S_TAG}, s{S_TAG}, {TAG_INC:#x}")
        a("s_waitcnt vmcnt(24)\ns_barrier")
        self.stamp(1, 16)
        a(f"s_mov_b32 s{S_CNT}, 1\nL_A_lloop:")
        a("s_waitcnt vmcnt(12)\ns_barrier")
        self.stamp(16, 16, dyn=S_CNT)
        next_slot()
        issue_x()
        issue_w()
        a(f"s_add_u32 s{S_CNT}, s{S_CNT}, 1\ns_cmp_le_u32 s{S_CNT}, 7\ns_cbranch_scc1 L_A_lloop")
        tw = 2 if self.o.get("tw2") else 0
        if tw:
            self.w2_touch()
        a(f"s_waitcnt vmcnt({12+tw})\ns_barrier")
        self.stamp(24, 16)
        a(f"s_waitcnt vmcnt({tw})\ns_barrier")
        self.stamp(25, 16)
        a("s_barrier")
        self.stamp(26, 16)
        a("s_barrier")
        a(f"s_cmp_eq_u32 s{S_WAVE}, 7\ns_cbranch_scc1 L_A_poller")
        self.a_reduce_publish(64)
        a("s_waitcnt vmcnt(0)\ns_barrier\ns_barrier")
        skip = self.if_wave56()
        self.a_gather(64, 0)
        a("s_waitcnt lgkmcnt(0)\ns_barrier\ns_barrier")
        self.w2_setup()
        self.w2_prefill(8)
        a("s_branch L_F_loader")
        a(f"{skip}:")
        self.a_gather(64, 0)
        a("s_waitcnt lgkmcnt(0)\ns_barrier\ns_barrier")
        a("s_branch L_F_u4")
        a("L_A_poller:\ns_barrier")
        a(f"s_lshl_b32 s{S_T0}, s{S_HG}, 4\ns_add_u32 s{S_T0}, s{S_T0}, s{S_MT}\ns_mul_i32 s{S_T0}, s{S_T0}, {FS}\ns_add_u32 s{S_T0}, s{S_T0}, {F_KV}")
        self.flag_store(S_T0, 16)
        self.stamp(3, 16)
        a(f"""
        v_and_b32 v16, 15, v1
        s_lshl_b32 s{S_T0}, s{S_HG}, 4
        v_add_u32 v16, s{S_T0}, v16
        v_mul_u32_u24 v16, {FS}, v16
        v_add_u32 v16, {F_KV}, v16
        v_and_b32 v17, 7, v1
        s_lshl_b32 s{S_T0}, s{S_MT}, 3
        v_add_u32 v17, s{S_T0}, v17
        v_mul_u32_u24 v17, {FS}, v17
        v_add_u32 v17, {F_LN}, v17
        v_cmp_gt_u32 vcc, 32, v1
        s_nop 1
        v_cndmask_b32 v16, v17, v16, vcc
        """)
        self.poll([16], 18)
        a("s_barrier\ns_barrier\ns_barrier")
        a(f"s_lshl_b32 s{S_T0}, s{S_MT}, 3\ns_add_u32 s{S_T0}, s{S_T0}, s{S_HG}\ns_mul_i32 s{S_T0}, s{S_T0}, {FS}\ns_add_u32 s{S_T0}, s{S_T0}, {F_GO}")
        self.flag_store(S_T0, 16)
        self.stamp(5, 16)
        a("s_branch L_F_poller")

    def start_prefetch(self):
        a = self.a
        self.srd(R_W, P_WQKV, 640 * 3840)
        a(f"""
        s_lshl_b32 s{S_T0}, s{S_J}, 2
        s_add_u32 s{S_T0}, s{S_T0}, s{S_WAVE}
        v_lshrrev_b32 v16, 2, v1
        v_and_b32 v17, 3, v1
        v_mul_u32_u24 v16, 1280, v16
        v_lshl_add_u32 v16, v17, 7, v16
        s_lshr_b32 s{S_T0+2}, s{S_MT}, 3
        s_lshl_b32 s{S_T0+2}, s{S_T0+2}, 7
        s_add_u32 s{S_T0+2}, s{S_T0+2}, s{S_T0}
        s_mul_i32 s{S_DT}, s{S_T0+2}, {8*1280}
        v_lshrrev_b32 v19, 4, v1
        v_and_b32 v17, 15, v1
        v_min_u32 v17, 14, v17
        v_mul_u32_u24 v18, 13, v17
        v_lshrrev_b32 v18, 6, v18
        v_mul_u32_u24 v18, 640, v18
        v_lshl_add_u32 v18, v17, 7, v18
        v_mul_u32_u24 v19, 3840, v19
        v_add_u32 v112, v18, v19
        s_lshr_b32 s{S_T0+2}, s{S_HG}, 2
        s_mul_i32 s{S_T0+2}, s{S_T0+2}, 640
        s_mul_i32 s{S_FT}, s{S_T0}, {2*3840}
        s_add_u32 s{S_FT}, s{S_FT}, s{S_T0+2}
        """)
        if self.o.get("ta1"):
            a(f"""
            s_mov_b32 exec_hi, 0
            buffer_load_dword v253, v112, s[{R_W}:{R_W+3}], s{S_FT} offen
            buffer_load_dword v253, v16, s[{R_X}:{R_X+3}], s{S_DT} offen
            s_mov_b32 exec_hi, -1
            """)
        a(f"""
        s_mul_i32 s{S_FT}, s{S_T0}, {3*3840}
        s_add_u32 s{S_FT}, s{S_FT}, s{S_T0+2}
        s_add_u32 s{S_FT}, s{S_FT}, {256*3840}
        v_lshrrev_b32 v16, 3, v1
        v_and_b32 v17, 7, v1
        v_min_u32 v17, 5, v17
        v_mul_u32_u24 v16, 1280, v16
        v_lshl_add_u32 v113, v17, 7, v16
        s_add_u32 s{S_DT}, s{S_DT}, 512
        """)

    def pf_rest(self):
        return f"""s_mov_b32 exec_hi, 0xffff
        buffer_load_dword v253, v112, s[{R_W}:{R_W+3}], s{S_FT} offen
        s_mov_b32 exec_hi, -1
        buffer_load_dword v253, v113, s[{R_X}:{R_X+3}], s{S_DT} offen
        """

    def w2_touch(self):
        a = self.a
        self.srd(R_W2, P_W2, 1536 * 4096)
        a(f"""
        v_lshlrev_b32 v48, 7, v1
        s_lshl_b32 s{S_T0}, s{S_MT}, 3
        s_add_u32 s{S_T0}, s{S_T0}, s{S_HG}
        s_lshl_b32 s{S_T0}, s{S_T0}, 2
        s_add_u32 s{S_T0}, s{S_T0}, s{S_D}
        s_mul_i32 s{S_T0}, s{S_T0}, 12288
        buffer_load_dword v253, v48, s[{R_W2}:{R_W2+3}], s{S_T0} offen
        s_add_u32 s{S_T0}, s{S_T0}, 8192
        s_mov_b32 exec_hi, 0
        buffer_load_dword v253, v48, s[{R_W2}:{R_W2+3}], s{S_T0} offen
        s_mov_b32 exec_hi, -1
        """)

    def code_prefetch(self):
        a = self.a
        a(f"""
        s_cmp_lg_u32 s{S_WAVE}, 3
        s_cbranch_scc1 L_nocpf
        s_cmp_ge_u32 s{S_J}, 4
        s_cbranch_scc1 L_nocpf
        s_getpc_b64 s[{S_T0}:{S_T0+1}]
        L_pcref:
        s_lshl_b32 s{S_T0+2}, s{S_J}, 13
        v_lshlrev_b32 v4, 7, v1
        v_add_u32 v4, s{S_T0+2}, v4
        v_min_u32 v4, L_end-L_pcref, v4
        global_load_dword v253, v4, s[{S_T0}:{S_T0+1}]
        L_nocpf:
        """)

    def a_thread_map(self):
        a = self.a
        a(f"""
        v_mul_u32_u24 v16, 625, v0
        v_lshrrev_b32 v16, 16, v16
        v_mul_u32_u24 v17, 105, v16
        v_sub_u32 v17, v0, v17
        v_mul_u32_u24 v18, 205, v17
        v_lshrrev_b32 v18, 10, v18
        v_mul_u32_u24 v19, 5, v18
        v_sub_u32 v19, v17, v19
        v_mad_u32_u24 v19, v16, 5, v19
        v_mad_u32_u24 v20, v16, 20, v18
        v_lshrrev_b32 v21, 2, v19
        v_and_b32 v22, 3, v19
        v_lshrrev_b32 v23, 4, v20
        v_and_b32 v20, 15, v20
        v_lshl_add_u32 v20, v22, 4, v20
        v_lshl_add_u32 v2, v21, 1, v23
        v_lshlrev_b32 v2, 6, v2
        v_add_u32 v2, v2, v20
        v_lshlrev_b32 v2, 4, v2
        v_lshlrev_b32 v3, 4, v19
        v_add_u32 v3, 13312, v3
        v_cmp_lt_u32 vcc, 99, v17
        v_lshrrev_b32 v24, 1, v21
        v_and_b32 v21, 1, v21
        v_cndmask_b32 v2, v2, v3, vcc
        v_lshl_add_u32 v3, v23, 1, v24
        v_add_u32 v24, 11, v24
        v_lshl_add_u32 v22, v22, 4, v16
        v_cndmask_b32 v3, v3, v24, vcc
        v_cndmask_b32 v20, v20, v22, vcc
        v_lshl_add_u32 v3, v3, 6, v20
        v_lshlrev_b32 v3, 4, v3
        v_lshl_add_u32 v3, v21, 3, v3
        v_add_u32 v249, {KVT}, v3
        v_mov_b32 v25, 2
        v_cndmask_b32 v25, 1, v25, vcc
        v_mov_b32 v16, 420
        v_cmp_gt_u32 vcc, v16, v0
        v_lshlrev_b32 v250, 4, v0
        s_nop 0
        v_cndmask_b32 v251, 0, v25, vcc
        v_cndmask_b32 v248, 0, v2, vcc
        """)

    def a_reduce_publish(self, T):
        a = self.a
        for w in range(4):
            a(f"ds_read_b128 {vr(T+4*w,4)}, v248 offset:{w*EXCH_ST}")
        a(f"""
        s_lshl_b32 s{S_T0}, s{S_HG}, 4
        s_add_u32 s{S_T0}, s{S_T0}, s{S_MT}
        s_mul_i32 s{S_T0}, s{S_T0}, {KVP_ST}
        s_add_u32 s{S_T0}, s{S_T0}, {KVP}
        v_cmp_ne_u32 vcc, 0, v251
        s_waitcnt lgkmcnt(0)
        v_pk_add_f32 {vr(T,2)}, {vr(T,2)}, {vr(T+4,2)}
        v_pk_add_f32 {vr(T+2,2)}, {vr(T+2,2)}, {vr(T+6,2)}
        v_pk_add_f32 {vr(T+8,2)}, {vr(T+8,2)}, {vr(T+12,2)}
        v_pk_add_f32 {vr(T+10,2)}, {vr(T+10,2)}, {vr(T+14,2)}
        v_pk_add_f32 {vr(T,2)}, {vr(T,2)}, {vr(T+8,2)}
        v_pk_add_f32 {vr(T+2,2)}, {vr(T+2,2)}, {vr(T+10,2)}
        s_mov_b64 exec, vcc
        buffer_store_dwordx4 {vr(T,4)}, v250, s[{R_WS}:{R_WS+3}], s{S_T0} offen sc1
        s_mov_b64 exec, -1
        """)

    def a_gather(self, T, vm_after, prefill=False):
        a = self.a
        a(f"s_mul_i32 s{S_T0}, s{S_HG}, {16*KVP_ST}\ns_add_u32 s{S_T0}, s{S_T0}, {KVP}")
        a("v_cmp_ne_u32 vcc, 0, v251\ns_nop 1\ns_mov_b64 exec, vcc")
        for m in range(16):
            a(f"buffer_load_dwordx4 {vr(T+4*m,4)}, v250, s[{R_WS}:{R_WS+3}], s{S_T0} offen sc1")
            if m < 15:
                a(f"s_add_u32 s{S_T0}, s{S_T0}, {KVP_ST}")
        a("s_mov_b64 exec, -1")
        if prefill:
            self.w2_setup()
            self.w2_prefill(5)
            vm_after = 40
        for st in (8, 4, 2, 1):
            if st == 8:
                a(f"s_waitcnt vmcnt({vm_after})")
            for m in range(st):
                for h in (0, 2):
                    a(f"v_pk_add_f32 {vr(T+4*m+h,2)}, {vr(T+4*m+h,2)}, {vr(T+4*(m+st)+h,2)}")
        a(f"""
        v_cvt_pk_bf16_f32 v{T}, v{T}, v{T+1}
        v_cvt_pk_bf16_f32 v{T+1}, v{T+2}, v{T+3}
        v_cmp_ne_u32 vcc, 0, v251
        v_cmp_eq_u32 s[{S_T0}:{S_T0+1}], 2, v251
        s_nop 1
        s_mov_b64 exec, vcc
        ds_write_b64 v249, {vr(T,2)}
        s_mov_b64 exec, s[{S_T0}:{S_T0+1}]
        ds_write_b64 v249, {vr(T,2)} offset:64
        ds_write_b64 v249, {vr(T,2)} offset:128
        ds_write_b64 v249, {vr(T,2)} offset:192
        s_mov_b64 exec, -1
        """)
        if prefill:
            self.w2_prefill(3)

    def role_b(self):
        a = self.a
        a("L_roleB:")
        XR, GR, B1R = 16, 26, 36
        a(f"""
        s_mov_b32 s{S_T0}, s{S_XCD}
        s_lshl_b32 s{S_T0+1}, s{S_T0}, 5
        s_add_u32 s{S_T0+1}, s{S_T0+1}, s{S_J}
        s_lshr_b32 s{S_KST}, s{S_T0+1}, 1
        s_and_b32 s{S_PAR}, s{S_T0+1}, 1
        s_mul_i32 s{S_FT}, s{S_J}, 205
        s_lshr_b32 s{S_FT}, s{S_FT}, 10
        s_mul_i32 s{S_DT}, s{S_FT}, 5
        s_sub_u32 s{S_DT}, s{S_J}, s{S_DT}
        s_mul_i32 s{S_T0}, s{S_T0}, 6
        s_add_u32 s{S_FT}, s{S_FT}, s{S_T0}
        s_lshl_b32 s{S_T0}, s{S_KST}, 5
        s_lshl_b32 s{S_T0+1}, s{S_PAR}, 3
        s_add_u32 s{S_T0}, s{S_T0}, s{S_T0+1}
        s_and_b32 s{S_T0+1}, s{S_WAVE}, 3
        s_lshl_b32 s{S_T0+1}, s{S_T0+1}, 1
        s_add_u32 s{S_T0}, s{S_T0}, s{S_T0+1}
        s_lshr_b32 s{S_T0+1}, s{S_WAVE}, 2
        s_lshl_b32 s{S_T0+1}, s{S_T0+1}, 4
        s_add_u32 s{S_T0}, s{S_T0}, s{S_T0+1}
        s_mul_i32 s{S_T0}, s{S_T0}, 1280
        v_lshrrev_b32 v2, 5, v1
        v_and_b32 v3, 31, v1
        v_lshlrev_b32 v3, 3, v3
        v_mad_u32_u24 v4, v2, s{S_T0+2}, v3
        """.replace(f"v_mad_u32_u24 v4, v2, s{S_T0+2}, v3", "v_mul_u32_u24 v4, 1280, v2\nv_add_u32 v4, v4, v3"))
        for c in range(5):
            a(f"buffer_load_dwordx2 {vr(XR+2*c,2)}, v4, s[{R_X}:{R_X+3}], s{S_T0} offen offset:{c*256}")
        self.srd(R_M, P_GATE, 1280)
        for c in range(5):
            a(f"buffer_load_dwordx2 {vr(GR+2*c,2)}, v3, s[{R_M}:{R_M+3}], 0 offen offset:{c*256}")
        self.srd(R_OUT, P_B1, 3072)
        a(f"v_lshrrev_b32 v5, 4, v1\nv_lshlrev_b32 v5, 3, v5\ns_lshl_b32 s{S_T0}, s{S_FT}, 7")
        for b in range(4):
            a(f"buffer_load_dwordx2 {vr(B1R+2*b,2)}, v5, s[{R_OUT}:{R_OUT+3}], s{S_T0} offen offset:{b*32}")
        VS0, VS1, VPF = 6, 7, 8
        self.srd(R_W, P_W1, 2048 * 3072)
        a(f"""
        v_lshrrev_b32 v12, 3, v1
        v_lshrrev_b32 v13, 4, v1
        v_lshlrev_b32 v13, 1, v13
        v_and_b32 v14, 7, v1
        v_xor_b32 v13, v13, v14
        v_lshlrev_b32 v13, 4, v13
        v_mul_u32_u24 v12, 3072, v12
        v_add_u32 v{VPF}, v12, v13
        v_add_u32 v{VPF+1}, {8*3072-1024}, v{VPF}
        v_add_u32 v{VPF+2}, {2*(8*3072-1024)}, v{VPF}
        v_add_u32 v{VPF+3}, {3*(8*3072-1024)}, v{VPF}
        """)
        pf = f"""
        s_cmp_lt_u32 s{S_WAVE}, 4
        s_cbranch_scc1 L_B_nopf
        s_cmp_ge_u32 s{S_J}, 30
        s_cbranch_scc1 L_B_nopf
        s_sub_u32 s{S_T0}, s{S_WAVE}, 4
        s_lshl_b32 s{S_B}, s{S_T0}, 12
        s_mul_i32 s{S_A}, s{S_T0}, {32*3072}
        s_lshl_b32 s{S_T0}, s{S_FT}, 7
        s_add_u32 s{S_A}, s{S_A}, s{S_T0}
        L_B_pf:
        s_mov_b32 m0, s{S_B}
        s_add_u32 s{S_B}, s{S_B}, 16384
        """
        for i in range(4):
            pf += f"buffer_load_dwordx4 v{VPF+i}, s[{R_W}:{R_W+3}], s{S_A} offen offset:{i*1024} lds\n"
        pf += f"""
        s_add_u32 s{S_A}, s{S_A}, {128*3072}
        s_cmp_lt_u32 s{S_B}, 0x20000
        s_cbranch_scc1 L_B_pf
        """
        def w1_touch(part):
            lab = a.label("nt")
            a(f"""
            s_cmp_lt_u32 s{S_WAVE}, 4
            s_cbranch_scc1 {lab}
            s_lshl_b32 s{S_T0}, s{S_J}, 2
            s_add_u32 s{S_T0}, s{S_T0}, s{S_WAVE}
            s_sub_u32 s{S_T0}, s{S_T0}, {4 - part*128}
            s_mul_i32 s{S_T0}, s{S_T0}, {8*3072}
            s_mul_i32 s{S_T0+1}, s{S_XCD}, 768
            s_add_u32 s{S_T0}, s{S_T0}, s{S_T0+1}
            buffer_load_dword v253, v7, s[{R_W}:{R_W+3}], s{S_T0} offen
            {lab}:
            """.replace(f"s_sub_u32 s{S_T0}, s{S_T0}, {4 - part*128}", f"s_add_u32 s{S_T0}, s{S_T0}, {(part*128 - 4) & 0xffffffff:#x}"))
        a("v_and_b32 v7, 7, v1\nv_min_u32 v7, 5, v7\nv_lshl_add_u32 v7, v7, 7, v12")
        if self.o.get("late_w1"):
            if self.o.get("tb1"):
                w1_touch(0)
                a(f"s_cmp_lt_u32 s{S_WAVE}, 4\ns_cbranch_scc1 L_B_w4\ns_waitcnt vmcnt(5)\nL_B_w4:")
                a(f"s_cmp_ge_u32 s{S_WAVE}, 4\ns_cbranch_scc1 L_B_w5\ns_waitcnt vmcnt(4)\nL_B_w5:")
            else:
                a("s_waitcnt vmcnt(4)")
        else:
            a(pf + "s_waitcnt vmcnt(36)\ns_branch L_B_ln\nL_B_nopf:\ns_waitcnt vmcnt(4)\nL_B_ln:")
        self.stamp(11, 44)
        XS = 44
        a("v_mov_b32 v64, 0\nv_mov_b32 v65, 0\nv_mov_b32 v66, 0x3f803f80")
        for c in range(10):
            a(f"v_dot2c_f32_bf16 v65, v{XR+c}, v{GR+c}")
        for c in range(10):
            a(f"v_dot2c_f32_bf16 v64, v{XR+c}, v66")
        for c in range(10):
            a(f"v_lshlrev_b32 v{XS+2*c}, 16, v{XR+c}\nv_and_b32 v{XS+2*c+1}, 0xffff0000, v{XR+c}")

        def reduce32(regs, t):
            for mode in ("quad_perm:[1,0,3,2]", "quad_perm:[2,3,0,1]", "row_half_mirror", "row_mirror"):
                for r in regs:
                    a(f"v_add_f32_dpp v{r}, v{r}, v{r} {mode} row_mask:0xf bank_mask:0xf")
                a("s_nop 1" if len(regs) == 1 else "s_nop 0")
            for i, r in enumerate(regs):
                a(f"v_mov_b32 v{t+i}, v{r}")
            a("s_nop 1")
            for i, r in enumerate(regs):
                a(f"v_permlane16_swap_b32 v{r}, v{t+i}")
            a("s_nop 1")
            for i, r in enumerate(regs):
                a(f"v_add_f32 v{r}, v{r}, v{t+i}")

        reduce32([64, 65], 66)
        a(f"v_mul_f32 v64, {f2u(-1.0/640):#x}, v64\nv_mul_f32 v65, {f2u(-1.4426950408889634):#x}, v65\nv_mov_b32 v67, 0\nv_mov_b32 v66, 0")
        a("v_exp_f32 v65, v65")
        for c in range(20):
            a(f"v_add_f32 v{XS+c}, v64, v{XS+c}")
        a("v_add_f32 v65, 1.0, v65\nv_rcp_f32 v65, v65")
        for c in range(0, 20, 2):
            a(f"v_fmac_f32 v66, v{XS+c}, v{XS+c}\nv_fmac_f32 v67, v{XS+c+1}, v{XS+c+1}")
        a("v_add_f32 v66, v66, v67\ns_nop 1")
        reduce32([66], 67)
        a(f"v_mov_b32 v67, {f2u(1e-5):#x}\nv_fmac_f32 v67, {f2u(1.0/640):#x}, v66\nv_rsq_f32 v67, v67\ns_nop 0")
        for c in range(20):
            a(f"v_mul_f32 v{XS+c}, v67, v{XS+c}")
        for c in range(10):
            a(f"v_cvt_pk_bf16_f32 v{XR+c}, v{XS+2*c}, v{XS+2*c+1}")
        a(f"""
        s_lshl_b32 s{S_T0}, s{S_WAVE}, 1
        v_add_u32 v2, s{S_T0}, v2
        v_mul_u32_u24 v4, {LN_ST}, v2
        v_add_u32 v4, v4, v3
        v_add_u32 v4, {LNBUF}, v4
        v_lshlrev_b32 v2, 2, v2
        v_add_u32 v2, {LNG}, v2
        """)
        for c in range(5):
            a(f"ds_write_b64 v4, {vr(XR+2*c,2)} offset:{c*256}")
        a("ds_write_b32 v2, v65")
        a(f"s_waitcnt lgkmcnt(0)\ns_add_u32 s{S_TAG}, s{S_TAG}, {TAG_INC:#x}\ns_barrier")
        self.stamp(12, 44)
        if self.o.get("late_w1") == 1:
            a(pf + "L_B_nopf:")
        a(f"s_cmp_ge_u32 s{S_WAVE}, 4\ns_cbranch_scc1 L_B_l1b")
        a(f"""
        v_and_b32 v12, 15, v1
        v_bfe_u32 v13, v1, 4, 1
        v_lshrrev_b32 v14, 5, v1
        v_lshrrev_b32 v15, 2, v12
        v_lshl_add_u32 v15, v13, 2, v15
        v_mul_u32_u24 v15, {LN_ST}, v15
        v_lshl_add_u32 v15, v14, 5, v15
        v_and_b32 v2, 3, v12
        v_lshl_add_u32 v15, v2, 3, v15
        s_mul_i32 s{S_T0}, s{S_WAVE}, 320
        s_add_u32 s{S_T0}, s{S_T0}, {LNBUF}
        v_add_u32 v15, s{S_T0}, v15
        """)
        for i in range(5):
            a(f"ds_read_b64_tr_b16 {vr(44+4*i,2)}, v15 offset:{i*64}")
            a(f"ds_read_b64_tr_b16 {vr(46+4*i,2)}, v15 offset:{i*64+8*LN_ST}")
        a(f"""
        v_lshlrev_b32 v2, 2, v12
        v_add_u32 v2, {LNG}, v2
        ds_read_b32 v65, v2
        v_lshlrev_b32 v14, 16, v14
        v_lshl_add_u32 v14, v13, 8, v14
        v_lshl_add_u32 v14, v12, 4, v14
        s_mul_i32 s{S_T0}, s{S_WAVE}, {5*131072}
        s_lshl_b32 s{S_T0+1}, s{S_KST}, 10
        s_add_u32 s{S_T0}, s{S_T0}, s{S_T0+1}
        s_lshl_b32 s{S_T0+1}, s{S_PAR}, 9
        s_add_u32 s{S_T0}, s{S_T0}, s{S_T0+1}
        s_add_u32 s{S_T0}, s{S_T0}, {HT}
        """)
        for i in range(5):
            a(f"s_waitcnt lgkmcnt({9-2*i})")
            a(f"buffer_store_dwordx4 {vr(44+4*i,4)}, v14, s[{R_WS}:{R_WS+3}], s{S_T0} offen sc1")
            if i < 4:
                a(f"s_add_u32 s{S_T0}, s{S_T0}, 131072")
        a(f"""
        s_cmp_lg_u32 s{S_WAVE}, 0
        s_cbranch_scc1 L_B_nog
        v_and_b32 v2, 7, v12
        v_lshrrev_b32 v12, 3, v12
        v_lshl_add_u32 v2, v12, 4, v2
        v_lshlrev_b32 v2, 2, v2
        s_lshl_b32 s{S_T0}, s{S_KST}, 7
        s_lshl_b32 s{S_T0+1}, s{S_PAR}, 5
        s_add_u32 s{S_T0}, s{S_T0}, s{S_T0+1}
        s_add_u32 s{S_T0}, s{S_T0}, {G_OFF}
        s_waitcnt lgkmcnt(0)
        s_mov_b64 exec, 0xffff
        buffer_store_dword v65, v2, s[{R_WS}:{R_WS+3}], s{S_T0} offen sc1
        s_mov_b64 exec, -1
        L_B_nog:
        s_barrier
        s_waitcnt vmcnt(0) lgkmcnt(0)
        s_branch L_B_l2
        L_B_l1b:
        s_barrier
        """)
        if self.o.get("tb2"):
            w1_touch(1)
        if self.o.get("late_w1") == 2:
            a(pf + "L_B_nopf:")
        a(f"""
        L_B_l2:
        s_barrier
        """)
        if self.o.get("late_w1") == 3:
            a(pf + "L_B_nopf:")
        a(f"""
        s_cmp_lg_u32 s{S_WAVE}, 0
        s_cbranch_scc1 L_B_l3
        s_lshl_b32 s{S_T0}, s{S_KST}, 1
        s_add_u32 s{S_T0}, s{S_T0}, s{S_PAR}
        s_mul_i32 s{S_T0}, s{S_T0}, {FS}
        s_add_u32 s{S_T0}, s{S_T0}, {F_LN}
        """)
        self.flag_store(S_T0, 12)
        self.stamp(1, 12)
        a(f"s_cmp_ge_u32 s{S_J}, 30\ns_cbranch_scc1 L_helper")
        a(f"v_mul_u32_u24 v12, {FS}, v1\nv_add_u32 v12, {F_LN}, v12\nv_add_u32 v13, {64*FS}, v12")
        self.poll([12, 13], 14)
        self.stamp(2, 12)
        a(f"L_B_l3:\ns_cmp_ge_u32 s{S_J}, 30\ns_cbranch_scc1 L_helper")
        a(f"s_cmp_ge_u32 s{S_WAVE}, 4\ns_cbranch_scc1 L_B_aux")
        PF, WF, ACC, VT, VL = 64, 192, 224, 8, 12
        a(f"""
        s_lshl_b32 s{S_T0}, s{S_DT}, 3
        s_lshl_b32 s{S_T0+1}, s{S_WAVE}, 1
        s_add_u32 s{S_D}, s{S_T0}, s{S_T0+1}
        s_lshl_b32 s{S_T0}, s{S_D}, 16
        s_add_u32 s{S_T0}, s{S_T0}, {HT}
        """)
        self.srd(R_P, P_WS, 65536, off_s=S_T0)
        a(f"s_add_u32 s{S_T0}, s{S_T0}, 65536")
        self.srd(R_M, P_WS, 65536, off_s=S_T0)
        a(f"v_lshlrev_b32 v{VL}, 4, v1\ns_mov_b32 s{S_C}, 0\ns_mov_b32 s{S_B}, 0")
        self.tr_addr(VT)
        for r in range(32):
            a(f"v_mov_b32 v{ACC+r}, 0")
        a("s_barrier")
        RP = (R_P, R_M)

        def pload(u, ks):
            return "\n".join(f"buffer_load_dwordx4 {vr(PF+32*u+8*ks+4*d,4)}, v{VL}, s[{RP[d]}:{RP[d]+3}], s{S_C} offen offset:{ks*1024} sc1" for d in range(2))

        for t in range(4):
            for ks in range(4):
                a(pload(t, ks))
            a(f"s_add_u32 s{S_C}, s{S_C}, 4096")
            if t == 0:
                first_bar_here = len(a.L)

        def mk(u, bar, virtual=False, head=None, tail=None):
            uses = []
            for ks in range(4):
                for b in range(4):
                    g = ks * 4 + b
                    wb = WF + 4 * (g % 8)
                    off = u * 16384 + ks * 4096
                    reads = [(f"w{g}a", f"ds_read_b64_tr_b16 {vr(wb,2)}, v{VT+b} offset:{off}"),
                             (f"w{g}b", f"ds_read_b64_tr_b16 {vr(wb+2,2)}, v{VT+b} offset:{off+2048}")]
                    mf = []
                    for dd in range(2):
                        acc = vr(ACC + 16 * dd + 4 * b, 4)
                        mf.append(f"v_mfma_f32_16x16x32_bf16 {acc}, {vr(wb,4)}, {vr(PF+32*u+8*ks+4*dd,4)}, {acc}")
                    d = dict(reads=reads, need=[f"w{g}b"], mf=mf)
                    if b == 0:
                        d["vm"] = 30
                    if b == 3:
                        d["after"] = pload(u, ks)
                        if ks == 3:
                            d["after"] += f"\ns_add_u32 s{S_C}, s{S_C}, 4096"
                    uses.append(d)
            return dict(uses=uses, bar=bar, virtual=virtual, head=head, tail=tail)

        xo = "s_barrier\n" + "\n".join(f"v_xor_b32 v{VT+b}, 0x10000, v{VT+b}" for b in range(4))
        tail = f"s_add_u32 s{S_B}, s{S_B}, 1\ns_cmp_lt_u32 s{S_B}, 4\ns_cbranch_scc1 L_B_loop"
        st = [mk(0, "", head="L_B_loop:"), mk(1, "s_barrier"), mk(2, "s_barrier"), mk(3, "s_barrier", tail=tail), mk(0, xo, virtual=True)]
        a.L.insert(first_bar_here, "    s_barrier")
        self.pipeline(st, 6, 16 - 3)
        self.stamp(3, 44)
        c = 0.7978845608028654
        k0 = -2.0 * c * 1.4426950408889634
        k1 = k0 * 0.044715
        a(f"""
        s_waitcnt lgkmcnt(0)
        s_mov_b32 s{S_K0}, {f2u(k1):#x}
        s_mov_b32 s{S_K0+1}, {f2u(k1):#x}
        v_mov_b32 v44, {f2u(k0):#x}
        v_mov_b32 v45, {f2u(k0):#x}
        v_mov_b32 v46, 1.0
        v_mov_b32 v47, 1.0
        s_mul_i32 s{S_T0}, s{S_D}, {UW_ST}
        s_lshl_b32 s{S_T0+1}, s{S_FT}, 11
        s_add_u32 s{S_T0}, s{S_T0}, s{S_T0+1}
        s_add_u32 s{S_T0}, s{S_T0}, {UW}
        """)
        BF = 16
        for b in range(4):
            a(f"v_lshlrev_b32 v{BF+4*b}, 16, v{B1R+2*b}\nv_and_b32 v{BF+4*b+1}, 0xffff0000, v{B1R+2*b}")
            a(f"v_lshlrev_b32 v{BF+4*b+2}, 16, v{B1R+2*b+1}\nv_and_b32 v{BF+4*b+3}, 0xffff0000, v{B1R+2*b+1}")
        for dd in range(2):
            for p in range(2):
                r = ACC + 16 * dd + 8 * p
                T = 48
                for q in range(4):
                    a(f"v_pk_add_f32 {vr(r+2*q,2)}, {vr(r+2*q,2)}, {vr(BF+8*p+2*q,2)}")
                for q in range(4):
                    a(f"v_pk_mul_f32 {vr(T+2*q,2)}, {vr(r+2*q,2)}, {vr(r+2*q,2)}")
                for q in range(4):
                    a(f"v_pk_fma_f32 {vr(T+2*q,2)}, {vr(T+2*q,2)}, s[{S_K0}:{S_K0+1}], v[44:45]")
                for q in range(4):
                    a(f"v_pk_mul_f32 {vr(T+2*q,2)}, {vr(T+2*q,2)}, {vr(r+2*q,2)}")
                for q in range(8):
                    a(f"v_exp_f32 v{T+q}, v{T+q}")
                for q in range(4):
                    a(f"v_pk_add_f32 {vr(T+2*q,2)}, {vr(T+2*q,2)}, v[46:47]")
                for q in range(8):
                    a(f"v_rcp_f32 v{T+q}, v{T+q}")
                for q in range(4):
                    a(f"v_pk_mul_f32 {vr(r+2*q,2)}, {vr(r+2*q,2)}, {vr(T+2*q,2)}")
                o = 56 + 4 * (p & 1)
                for q in range(4):
                    a(f"v_cvt_pk_bf16_f32 v{o+q}, v{r+2*q}, v{r+2*q+1}")
                a(f"buffer_store_dwordx4 {vr(o,4)}, v{VL}, s[{R_WS}:{R_WS+3}], s{S_T0} offen offset:{p*1024} sc1")
            if dd == 0:
                a(f"s_add_u32 s{S_T0}, s{S_T0}, {UW_ST}")
        self.stamp(10, 44)
        a("s_waitcnt vmcnt(0)\ns_barrier\ns_branch L_F_comp")

        a("L_B_aux:\ns_barrier")
        a(f"s_and_b32 s{S_B}, s{S_B}, 0x1ffff")
        order = list(range(8))
        cnt = {k: 4 for k in range(16)}
        for tb in range(17):
            if tb < 16:
                n = sum(cnt[x] for x in order[order.index(tb) + 1:])
                a(f"s_waitcnt vmcnt({n})")
            a("s_barrier")
            if tb < 16:
                self.stamp(16 + tb, 44)
            if 1 <= tb <= 8:
                a(f"s_mov_b32 m0, s{S_B}\ns_add_u32 s{S_B}, s{S_B}, 16384")
                for i in range(4):
                    a(f"buffer_load_dwordx4 v{VPF+i}, s[{R_W}:{R_W+3}], s{S_A} offen offset:{i*1024} lds")
                a(f"s_add_u32 s{S_A}, s{S_A}, {128*3072}")
                order.append(tb + 7)
            if tb == 8 and self.o.get("pf_w2"):
                self.w2_l2_prefetch(48)
                order.append("pf"); cnt["pf"] = 2
        skip = self.if_wave56()
        a("s_barrier")
        self.w2_setup()
        self.w2_prefill(8)
        a("s_branch L_F_loader")
        a(f"{skip}:\ns_barrier")
        a(f"s_cmp_lg_u32 s{S_WAVE}, 7\ns_cbranch_scc1 L_F_u4")
        a(f"s_mul_i32 s{S_T0}, s{S_DT}, 24\ns_add_u32 s{S_T0}, s{S_T0}, s{S_FT}\ns_mul_i32 s{S_T0}, s{S_T0}, {FS}\ns_add_u32 s{S_T0}, s{S_T0}, {F_U}")
        self.flag_store(S_T0, 12)
        self.stamp(4, 12)
        a("s_branch L_F_poller")

    def w2_l2_prefetch(self, VT):
        a = self.a
        self.srd(R_W2, P_W2, 1536 * 4096)
        a(f"""
        v_lshrrev_b32 v{VT}, 3, v1
        v_and_b32 v{VT+1}, 7, v1
        v_lshlrev_b32 v{VT+1}, 7, v{VT+1}
        v_lshl_add_u32 v{VT}, v{VT}, 12, v{VT+1}
        s_mul_i32 s{S_T0}, s{S_J}, 48
        s_and_b32 s{S_T0+1}, s{S_WAVE}, 3
        s_mul_i32 s{S_T0+1}, s{S_T0+1}, 12
        s_add_u32 s{S_T0}, s{S_T0}, s{S_T0+1}
        s_lshl_b32 s{S_T0}, s{S_T0}, 12
        s_lshr_b32 s{S_T0+1}, s{S_XCD}, 1
        s_lshl_b32 s{S_T0+1}, s{S_T0+1}, 10
        s_add_u32 s{S_T0}, s{S_T0}, s{S_T0+1}
        buffer_load_dword v{VT+2}, v{VT}, s[{R_W2}:{R_W2+3}], s{S_T0} offen
        s_add_u32 s{S_T0}, s{S_T0}, {8*4096}
        s_mov_b32 exec_hi, 0
        buffer_load_dword v{VT+3}, v{VT}, s[{R_W2}:{R_W2+3}], s{S_T0} offen
        s_mov_b64 exec, -1
        """)

    def tr_addr(self, VT):
        a = self.a
        a(f"""
        v_and_b32 v{VT+1}, 15, v1
        v_lshrrev_b32 v{VT+2}, 4, v1
        v_lshrrev_b32 v{VT+3}, 2, v{VT+1}
        v_lshl_add_u32 v{VT+3}, v{VT+2}, 2, v{VT+3}
        v_bfe_u32 v{VT+2}, v{VT+3}, 1, 2
        v_lshlrev_b32 v{VT+3}, 7, v{VT+3}
        v_lshl_add_u32 v{VT+3}, v{VT+2}, 5, v{VT+3}
        v_and_b32 v{VT+1}, 3, v{VT+1}
        v_lshl_add_u32 v{VT}, v{VT+1}, 3, v{VT+3}
        v_xor_b32 v{VT+1}, 32, v{VT}
        v_xor_b32 v{VT+2}, 64, v{VT}
        v_xor_b32 v{VT+3}, 96, v{VT}
        """)

    def helper(self):
        a = self.a
        a("L_helper:")
        a(f"""
        s_lshl_b32 s{S_D}, s{S_XCD}, 1
        s_add_u32 s{S_D}, s{S_D}, s{S_J}
        s_sub_u32 s{S_D}, s{S_D}, 30
        """)
        self.srd(R_W, P_WO, 640 * 1280)
        for p in range(5):
            a(f"""
            v_add_u32 v12, {p*64}, v1
            v_mul_u32_u24 v13, 205, v12
            v_lshrrev_b32 v13, 11, v13
            v_mul_u32_u24 v14, 10, v13
            v_sub_u32 v14, v12, v14
            v_lshlrev_b32 v14, 4, v14
            v_mul_u32_u24 v13, 1280, v13
            v_add_u32 v{16+p}, v13, v14
            """)
            if p in (1, 2, 3):
                a(f"v_subrev_u32 v{16+p}, {p*1024}, v{16+p}")
        a(f"""
        s_mov_b32 s{S_C}, s{S_WAVE}
        L_H_ld:
        s_mul_i32 s{S_A}, s{S_C}, {32*1280}
        s_mul_i32 s{S_T0}, s{S_D}, 160
        s_add_u32 s{S_A}, s{S_A}, s{S_T0}
        s_mul_i32 s{S_B}, s{S_C}, 5120
        s_mov_b32 m0, s{S_B}
        s_nop 0
        """)
        for p in range(4):
            a(f"buffer_load_dwordx4 v{16+p}, s[{R_W}:{R_W+3}], s{S_A} offen offset:{p*1024} lds")
        a(f"s_add_u32 m0, s{S_B}, 4096\ns_nop 0\nbuffer_load_dwordx4 v20, s[{R_W}:{R_W+3}], s{S_A} offen lds")
        a(f"""
        s_add_u32 s{S_C}, s{S_C}, 8
        s_cmp_lt_u32 s{S_C}, 20
        s_cbranch_scc1 L_H_ld
        v_and_b32 v12, 15, v1
        v_lshrrev_b32 v13, 4, v1
        v_lshrrev_b32 v14, 2, v12
        v_lshl_add_u32 v14, v13, 2, v14
        v_mul_u32_u24 v14, 160, v14
        v_and_b32 v12, 3, v12
        v_lshl_add_u32 v14, v12, 3, v14
        v_lshlrev_b32 v15, 4, v1
        s_waitcnt vmcnt(0)
        s_barrier
        s_mov_b32 s{S_C}, s{S_WAVE}
        L_H_tr:
        s_lshr_b32 s{S_T0}, s{S_C}, 1
        s_mul_i32 s{S_T0}, s{S_T0}, 5
        s_and_b32 s{S_T0+1}, s{S_C}, 1
        s_lshl_b32 s{S_T0+1}, s{S_T0+1}, 1
        s_add_u32 s{S_T0}, s{S_T0}, s{S_T0+1}
        s_add_u32 s{S_T0+1}, s{S_T0}, 1
        s_mul_i32 s{S_T0+2}, s{S_C}, 10
        s_sub_u32 s{S_T0+2}, s{S_T0+2}, 156
        s_add_u32 s{S_T0+3}, s{S_T0+2}, 5
        s_cmp_lt_u32 s{S_C}, 16
        s_cselect_b32 s{S_T0}, s{S_T0}, s{S_T0+2}
        s_cselect_b32 s{S_T0+1}, s{S_T0+1}, s{S_T0+3}
        s_mul_i32 s{S_T0}, s{S_T0}, 2560
        s_mul_i32 s{S_T0+1}, s{S_T0+1}, 2560
        v_add_u32 v12, s{S_T0}, v14
        v_add_u32 v13, s{S_T0+1}, v14
        """)
        for b in range(5):
            a(f"ds_read_b64_tr_b16 {vr(24+4*b,2)}, v12 offset:{b*32}\nds_read_b64_tr_b16 {vr(26+4*b,2)}, v13 offset:{b*32}")
        a(f"""
        s_mul_i32 s{S_T0}, s{S_D}, {5*UW_ST}
        s_lshl_b32 s{S_T0+1}, s{S_C}, 10
        s_add_u32 s{S_T0}, s{S_T0}, s{S_T0+1}
        s_add_u32 s{S_T0}, s{S_T0}, {UW + 49152}
        """)
        for b in range(5):
            a(f"s_waitcnt lgkmcnt({8-2*b})")
            a(f"buffer_store_dwordx4 {vr(24+4*b,4)}, v15, s[{R_WS}:{R_WS+3}], s{S_T0} offen sc1")
            if b < 4:
                a(f"s_add_u32 s{S_T0}, s{S_T0}, {UW_ST}")
        a(f"""
        s_add_u32 s{S_C}, s{S_C}, 8
        s_cmp_lt_u32 s{S_C}, 20
        s_cbranch_scc1 L_H_tr
        s_waitcnt vmcnt(0)
        s_barrier
        """)
        skip = self.if_wave56()
        self.w2_setup()
        self.w2_prefill(8)
        a(f"s_branch L_F_loader\n{skip}:")
        a(f"s_cmp_lt_u32 s{S_WAVE}, 4\ns_cbranch_scc1 L_F_comp\ns_cmp_lg_u32 s{S_WAVE}, 7\ns_cbranch_scc1 L_F_u4")
        a(f"s_mul_i32 s{S_T0}, s{S_D}, {FS}\ns_add_u32 s{S_T0}, s{S_T0}, {F_WOT}")
        self.flag_store(S_T0, 12)
        a("s_branch L_F_poller")

    def final(self):
        a = self.a
        a("L_F_comp:")
        if self.stop == "phase1":
            a("s_branch L_end")
        PF, WF, ACC, U4, ACC4 = 64, 128, 160, 176, 184
        VT, VL, VU4, VT2, GV, BV, VGH, VG8 = 8, 12, 13, 16, 20, 24, 28, 32
        a(f"""
        s_mul_i32 s{S_T0}, s{S_DTILE}, 5
        s_add_u32 s{S_D}, s{S_T0}, s{S_WAVE}
        s_mul_i32 s{S_T0}, s{S_D}, {UW_ST}
        s_add_u32 s{S_T0}, s{S_T0}, {UW}
        """)
        self.srd(R_P, P_WS, UW_ST, off_s=S_T0)
        self.srd(R_M, P_B2, 4096)
        self.srd(R_OUT, P_OUT, 2048 * 1280)
        self.tr_addr(4)
        a(f"""
        v_lshlrev_b32 v{VL}, 4, v1
        v_add_u32 v{VU4}, 0x20000, v{VL}
        v_lshlrev_b32 v5, 3, v1
        v_and_b32 v2, 15, v1
        v_lshlrev_b32 v3, 1, v2
        v_lshlrev_b32 v2, 2, v2
        """)
        SB = S_MSK
        for b in range(4):
            a(f"""
            s_add_u32 s{SB+b}, s{S_WAVE}, {b}
            s_and_b32 s{SB+b}, s{SB+b}, 3
            s_lshl_b32 s{S_T0}, s{SB+b}, 5
            v_xor_b32 v{VT+b}, s{S_T0}, v4
            s_lshl_b32 s{S_T0+1}, s{S_ST}, 7
            s_add_u32 s{S_T0}, s{S_T0}, s{S_T0+1}
            buffer_load_ushort v{BV+b}, v3, s[{R_M}:{R_M+3}], s{S_T0} offen
            v_add_u32 v{VT2+b}, 0x10000, v{VT+b}
            s_lshl_b32 s{S_T0}, s{SB+b}, 12
            v_add_u32 v{VG8+b}, s{S_T0}, v5
            s_add_u32 s{S_T0}, s{S_T0}, 0x10000
            v_add_u32 v{VGH+b}, s{S_T0}, v{VL}
            """)
        for r in range(16):
            a(f"v_mov_b32 v{ACC+r}, 0")
        for r in range(4):
            a(f"v_mov_b32 v{ACC4+r}, 0")
        a(f"s_lshl_b32 s{S_A}, s{S_ST}, 8\ns_add_u32 s{S_A}, s{S_A}, {G_OFF}\ns_mov_b32 s{S_C}, 0")
        a("s_barrier")
        for t in range(4):
            for ks in range(4):
                a(f"buffer_load_dwordx4 {vr(PF+16*t+4*ks,4)}, v{VL}, s[{R_P}:{R_P+3}], s{S_C} offen offset:{ks*1024} sc1")
            a(f"s_add_u32 s{S_C}, s{S_C}, 4096")
            if t == 0:
                a("s_barrier")
            if t == 3:
                for b in range(4):
                    a(f"s_lshl_b32 s{S_T0}, s{SB+b}, 6\ns_add_u32 s{S_T0}, s{S_T0}, s{S_A}")
                    a(f"buffer_load_dword v{GV+b}, v2, s[{R_WS}:{R_WS+3}], s{S_T0} offen sc1")

        mid = "s_nop 7\n"
        for b in range(4):
            mid += f"v_lshlrev_b32 v{BV+b}, 16, v{BV+b}\nv_sub_f32 v{GV+b}, 1.0, v{GV+b}\n"
        blocks = [(ACC + 4 * b, b) for b in range(4)] + [(ACC4, 0)]
        for r0, b in blocks:
            for k in range(4):
                mid += f"v_add_f32 v{r0+k}, v{BV+b}, v{r0+k}\n"
        for r0, b in blocks:
            for k in range(4):
                mid += f"v_mul_f32 v{r0+k}, v{GV+b}, v{r0+k}\n"
        mid += "s_nop 1\n"

        stages = []
        for t in range(17):
            slot = t % 8
            hi = slot >= 4
            uses = []
            for ks in range(4):
                for b in range(4):
                    g = ks * 4 + b
                    wb = WF + 4 * (g % 8)
                    reads = []
                    u4 = U4 + 4 * (ks & 1)
                    if b == 0:
                        reads.append((f"u{ks}", f"ds_read_b128 {vr(u4,4)}, v{VU4} offset:{slot*4096 + ks*1024}"))
                    if t < 12:
                        off = (slot & 3) * 16384 + ks * 4096
                        va = (VT2 if hi else VT) + b
                        reads += [(f"w{g}a", f"ds_read_b64_tr_b16 {vr(wb,2)}, v{va} offset:{off}"),
                                  (f"w{g}b", f"ds_read_b64_tr_b16 {vr(wb+2,2)}, v{va} offset:{off+2048}")]
                    elif t < 16:
                        assert hi
                        off = (slot & 3) * 16384 + ks * 1024
                        reads += [(f"w{g}b", f"ds_read_b128 {vr(wb,4)}, v{VGH+b} offset:{off}")]
                    else:
                        off = (slot & 3) * 16384 + ks * 1024
                        assert not hi
                        reads += [(f"w{g}a", f"ds_read_b64 {vr(wb,2)}, v{VG8+b} offset:{off}"),
                                  (f"w{g}b", f"ds_read_b64 {vr(wb+2,2)}, v{VG8+b} offset:{off+512}")]
                    acc = vr(ACC + 4 * b, 4)
                    pf = vr(PF + 16 * (t % 4) + 4 * ks, 4)
                    mf = [f"v_mfma_f32_16x16x32_bf16 {acc}, {pf}, {vr(wb,4)}, {acc}"]
                    if b == 0:
                        mf.append(f"v_mfma_f32_16x16x32_bf16 {vr(ACC4,4)}, {vr(u4,4)}, {vr(wb,4)}, {vr(ACC4,4)}")
                    d = dict(reads=reads, need=[f"w{g}b"], mf=mf)
                    if b == 0:
                        k = t * 4 + ks
                        n = min(k + 15, 67) - k
                        if t < 4:
                            n += 4
                        d["vm"] = n
                    if b == 3 and t + 4 < 17:
                        d["after"] = f"buffer_load_dwordx4 {pf}, v{VL}, s[{R_P}:{R_P+3}], s{S_C} offen offset:{ks*1024} sc1"
                        if ks == 3:
                            d["after"] += f"\ns_add_u32 s{S_C}, s{S_C}, 4096"
                    if t == 12 and g == 0:
                        d["before"] = mid
                    uses.append(d)
            stages.append(dict(uses=uses, bar="s_barrier" if t else ""))
        self.pipeline(stages, 6, 16 - 3)
        self.stamp(8, 2)
        a(f"""
        v_and_b32 v2, 15, v1
        v_mul_u32_u24 v2, 1280, v2
        v_lshrrev_b32 v3, 4, v1
        v_lshl_add_u32 v2, v3, 3, v2
        s_mul_i32 s{S_A}, s{S_ST}, {64*1280}
        s_lshl_b32 s{S_T0+1}, s{S_D}, 5
        s_add_u32 s{S_B}, s{S_A}, s{S_T0+1}
        s_mul_i32 s{S_T0+1}, s{S_DTILE}, 160
        s_add_u32 s{S_A}, s{S_A}, s{S_T0+1}
        s_add_u32 s{S_A}, s{S_A}, 128
        """)
        for r, b in blocks:
            a(f"s_mul_i32 s{S_T0}, s{SB+b}, {16*1280}\ns_add_u32 s{S_T0}, s{S_T0}, s{S_A if r == ACC4 else S_B}")
            a(f"v_cvt_pk_bf16_f32 v{r}, v{r}, v{r+1}\nv_cvt_pk_bf16_f32 v{r+1}, v{r+2}, v{r+3}")
            a(f"buffer_store_dwordx2 {vr(r,2)}, v2, s[{R_OUT}:{R_OUT+3}], s{S_T0} offen")
        if self.stamps or self.o.get("dbg"):
            a("s_waitcnt vmcnt(0)")
            self.stamp(9, 2)
        if self.o.get("calib"):
            a(f"""
            L_cal:
            s_memrealtime s[96:97]
            s_waitcnt lgkmcnt(0)
            s_sub_u32 s96, s96, s98
            s_cmp_lt_u32 s96, {self.o.get("calib")*100}
            s_cbranch_scc1 L_cal
            """)
        a(f"s_or_b32 s{S_T0}, s2, s{S_WAVE}\ns_cmp_lg_u32 s{S_T0}, 0\ns_cbranch_scc1 L_end\ns_mov_b32 s{S_T0}, 0")
        self.flag_store(S_T0, 4)
        a("s_branch L_end")

        a("L_F_u4:")
        if self.stop == "phase1":
            a("s_branch L_end")
        a(f"""
        v_lshlrev_b32 v{VL}, 4, v1
        s_mul_i32 s{S_C}, s{S_DTILE}, {5*UW_ST}
        s_add_u32 s{S_C}, s{S_C}, {UW + 4*UW_ST}
        s_barrier
        """)

        def u4_issue(iv):
            a(f"s_mov_b32 m0, {0x20000 + (iv % 8)*4096:#x}\ns_add_u32 s{S_T0}, s{S_C}, {iv*4096}")
            for i in range(4):
                a(f"buffer_load_dwordx4 v{VL}, s[{R_WS}:{R_WS+3}], s{S_T0} offen offset:{i*1024} sc1 lds")
        order = []
        for iv in range(8):
            u4_issue(iv)
            order.append(iv)
            if iv == 2:
                a("s_waitcnt vmcnt(8)\ns_barrier")
        for tb in range(1, 17):
            a(f"s_waitcnt vmcnt({4*len(order[order.index(tb)+1:])})\ns_barrier")
            if tb + 7 <= 16:
                u4_issue(tb + 7)
                order.append(tb + 7)
        a("s_branch L_end")

        a("L_F_loader:")
        if self.stop == "phase1":
            a("s_branch L_end")
        a(f"v_lshlrev_b32 v{VL}, 4, v1\ns_barrier")
        a(f"""
        s_sub_u32 s{S_T0}, s{S_WAVE}, 5
        s_lshl_b32 s{S_T0}, s{S_T0}, 1
        s_lshl_b32 s{S_T0+1}, s{S_ST}, 2
        s_add_u32 s{S_T0+1}, s{S_T0+1}, s{S_T0}
        s_mul_i32 s{S_C}, s{S_T0+1}, {GO_ST}
        s_add_u32 s{S_C}, s{S_C}, {GO}
        s_lshl_b32 s{S_D}, s{S_T0}, 12
        """)
        order = list(range(8))
        for tb in range(17):
            after = [x for x in order[order.index(tb) + 1:]]
            n = 8 * len(after)
            a(f"s_waitcnt vmcnt({min(n,63)})\ns_barrier")
            t = tb - 1
            if 0 <= t <= 3:
                self.w2_issue()
                order.append(t + 8)
            if 8 <= t <= 12:
                iv = t + 4
                g = iv - 12
                for s2 in range(2):
                    a(f"s_add_u32 m0, s{S_D}, {(iv % 8)*16384 + s2*4096}\ns_add_u32 s{S_T0}, s{S_C}, {s2*GO_ST + g*4096}")
                    for i in range(4):
                        a(f"buffer_load_dwordx4 v{VL}, s[{R_WS}:{R_WS+3}], s{S_T0} offen offset:{i*1024} sc1 lds")
                order.append(iv)
        a("s_branch L_end")
        a("L_F_poller:")
        if self.stop == "phase1":
            a("s_branch L_end")
        a(f"""
        s_mul_i32 s{S_T0}, s{S_DTILE}, 5
        s_lshr_b32 s{S_T0+1}, s{S_T0}, 3
        s_add_u32 s{S_T0}, s{S_T0}, 4
        s_lshr_b32 s{S_T0}, s{S_T0}, 3
        s_mul_i32 s{S_T0}, s{S_T0}, 24
        s_mul_i32 s{S_T0+1}, s{S_T0+1}, 24
        v_and_b32 v2, 31, v1
        v_min_u32 v2, 23, v2
        v_add_u32 v3, s{S_T0}, v2
        v_add_u32 v2, s{S_T0+1}, v2
        v_cmp_gt_u32 vcc, 32, v1
        s_mul_i32 s{S_T0}, s{S_DTILE}, {FS}
        s_add_u32 s{S_T0}, s{S_T0}, {F_WOT}
        v_cndmask_b32 v2, v2, v3, vcc
        v_mul_u32_u24 v2, {FS}, v2
        v_add_u32 v2, {F_U}, v2
        v_mov_b32 v3, s{S_T0}
        v_cmp_eq_u32 vcc, 63, v1
        s_nop 1
        v_cndmask_b32 v2, v2, v3, vcc
        """)
        self.poll([2], 4)
        self.stamp(6, 4)
        a("s_barrier")
        a(f"""
        v_and_b32 v2, 7, v1
        s_lshr_b32 s{S_T0}, s{S_ST}, 1
        s_lshl_b32 s{S_T0}, s{S_T0}, 3
        v_add_u32 v2, s{S_T0}, v2
        v_mul_u32_u24 v2, {FS}, v2
        v_add_u32 v2, {F_GO}, v2
        """)
        gp = self.o.get("gopoll", 9)
        for tb in range(gp):
            a("s_barrier")
            self.stamp(32 + tb, 4)
        self.poll([2], 4)
        self.stamp(7, 4)
        for tb in range(gp, 17):
            a("s_barrier")
            self.stamp(32 + tb, 4)
        a("L_end:\ns_endpgm")

    def build(self, header):
        a = self.a
        self.prologue()
        self.role_a()
        self.role_b()
        self.helper()
        self.final()
        body = a.text()
        out = header
        out += f"; @launch grid=(256,1,1) block=(512,1,1) lds={LDS_BYTES}\n"
        out += f'.amdgcn_target "amdgcn-amd-amdhsa--gfx950"\n.text\n.globl {KNAME}\n.p2align 8\n.type {KNAME},@function\n{KNAME}:\n'
        out += body
        out += f""".section .rodata,"a"
.p2align 6
.amdhsa_kernel {KNAME}
  .amdhsa_next_free_vgpr 256
  .amdhsa_next_free_sgpr 102
  .amdhsa_accum_offset 256
  .amdhsa_group_segment_fixed_size 0
  .amdhsa_kernarg_size 96
  .amdhsa_user_sgpr_count 2
  .amdhsa_user_sgpr_kernarg_segment_ptr 1
  .amdhsa_system_sgpr_workgroup_id_x 1
  .amdhsa_float_denorm_mode_32 3
.end_amdhsa_kernel
"""
        return out


def header():
    ref = open("gated_mix__linear_attn_block__mixer_token_mlp__prompt.s.ref").read().split("\n")
    h = []
    for l in ref:
        if l.startswith("; Override"):
            break
        h.append(l)
    return "\n".join(h) + "\n"


if __name__ == "__main__":
    import argparse
    p = argparse.ArgumentParser()
    p.add_argument("-o", default="gated_mix__linear_attn_block__mixer_token_mlp__prompt.s")
    p.add_argument("--stamps", action="store_true")
    p.add_argument("--stop", default=None)
    p.add_argument("--opt", default="")
    args = p.parse_args()
    opts = {k: (int(v) if v != '' else 1) for k, _, v in (x.partition('=') for x in args.opt.split(',') if x)}
    g = Gen(stamps=args.stamps, stop=args.stop, opts=opts)
    open(args.o, "w").write(g.build(header()))
    print("wrote", args.o)
```

```python
import sys

KNAME = "gated_mix__linear_attn_block__mixer_token_mlp__prompt_kernel"

FS = 128
F_LN, F_KV, F_U, F_GO, F_WOT = 0x1000, 0x5000, 0x9000, 0xD000, 0x11000
G_OFF = 0x12000
STAMP = 0x900000
KVP = 0x20000
KVP_ST = 7168
HT = 0x100000
UW = 0x380000
UW_ST = 69632
GO = 0x640000
GO_ST = 20480
WS_USED = 0xA00000
TAG_INC = 0x9E3779B9
SPIN_LIMIT = 1 << 17

LDS_BYTES = 163840
LNBUF = 131072
LN_ST = 1312
LNG = LNBUF + 16 * LN_ST
A_SLOT = 49152
A_WOFF = 16384
EXCH_ST = 14336
KVT = 147456
ZH = KVT + 11 * 1024

LOG2E = 0x3FB8AA3B


def f2u(x):
    import struct
    return struct.unpack("<I", struct.pack("<f", x))[0]


class Asm:
    def __init__(self):
        self.L = []
        self.nlab = 0

    def __call__(self, s):
        for line in s.split("\n"):
            line = line.strip()
            if line:
                self.L.append(("    " if not line.endswith(":") else "") + line)

    def label(self, base):
        self.nlab += 1
        return f"L{base}_{self.nlab}"

    def text(self):
        return "\n".join(self.L) + "\n"


def vr(a, n=1):
    return f"v{a}" if n == 1 else f"v[{a}:{a+n-1}]"


def sr(a, n=1):
    return f"s{a}" if n == 1 else f"s[{a}:{a+n-1}]"


P_X, P_WQKV, P_WO, P_BX, P_W1, P_B1, P_W2, P_B2 = 4, 6, 8, 10, 12, 14, 16, 18
P_GATE, P_OUT, P_DBG, P_WS = 20, 22, 24, 26
S_TAG, S_WAVE = 28, 29
S_XCD, S_J = 30, 31
R_WS, R_X, R_W, R_P, R_W2, R_M, R_OUT = 32, 36, 40, 44, 48, 52, 56
S_T0 = 60
S_MT, S_HG, S_DT, S_FT, S_KST, S_PAR = 70, 71, 72, 73, 74, 75
S_ST, S_DTILE = 76, 77
S_CNT = 78
S_A, S_B, S_C, S_D = 80, 81, 82, 83
S_MSK = 84
S_K0 = 90
S_STMP = 96
S_PERM = 66
S_M = 79
S_FROMA = 95


def lead_perm(n, nshare, m, lead=2):
    order = list(range(n))
    i = m
    while i + lead < n:
        order[i:i + lead + 1] = [order[i + lead]] + order[i:i + lead]
        i += nshare
    return order


class Gen:
    def __init__(self, stamps=False, stop=None, opts=None):
        self.o = opts or {}
        self.a = Asm()
        self.stamps = stamps
        self.stop = stop

    def srd(self, dst, ptr, nbytes, off_s=None):
        a = self.a
        if off_s is None:
            a(f"s_mov_b32 s{dst}, s{ptr}\ns_and_b32 s{dst+1}, s{ptr+1}, 0xffff")
        else:
            a(f"s_add_u32 s{dst}, s{ptr}, s{off_s}\ns_addc_u32 s{dst+1}, s{ptr+1}, 0\ns_and_b32 s{dst+1}, s{dst+1}, 0xffff")
        a(f"s_mov_b32 s{dst+2}, {nbytes:#x}\ns_mov_b32 s{dst+3}, 0x20000")

    def stamp(self, k, vtmp, dyn=None):
        if self.o.get("dbg"):
            m = {0: 0, 11: 1, 1: 2, 2: 3, 3: 4, 4: 5, 6: 6, 9: 7}
            mA = {0: 0, 1: 1, 2: 2, 3: 3, 4: 4, 5: 5, 6: 6, 9: 7}
            if dyn is not None:
                return
            a = self.a
            for wg, mp, base in ((8, m, 0), (12, mA, 8)):
                if k in mp:
                    lab = a.label("nd")
                    a(f"s_cmp_lg_u32 s2, {wg}\ns_cbranch_scc1 {lab}")
                    a(f"s_memrealtime s[{S_STMP}:{S_STMP+1}]\ns_waitcnt lgkmcnt(0)")
                    a(f"v_mov_b32 v{vtmp}, s{S_STMP}\nv_mov_b32 v{vtmp+2}, {4*(base+mp[k])}")
                    a(f"s_mov_b64 exec, 1\nglobal_store_dword v{vtmp+2}, v{vtmp}, s[{P_DBG}:{P_DBG+1}]\ns_mov_b64 exec, -1\n{lab}:")
            return
        if not self.stamps:
            return
        a = self.a
        a(f"s_memrealtime s[{S_STMP}:{S_STMP+1}]\ns_memtime s[100:101]")
        ln = str(k)
        if dyn is not None:
            a(f"s_add_u32 m0, s{dyn}, {k}")
            ln = "m0"
        a(f"s_waitcnt lgkmcnt(0)\nv_writelane_b32 v254, s{S_STMP}, {ln}\nv_writelane_b32 v255, s100, {ln}")

    def perm_setup(self, s_m, n, nshare, dst, enable):
        a = self.a
        def pk(o):
            v = 0
            for i, x in enumerate(o):
                v |= x << (4 * i)
            return v & 0xffffffff, v >> 32
        lo, hi = pk(list(range(n)))
        a(f"s_mov_b32 s{dst}, {lo:#x}\ns_mov_b32 s{dst+1}, {hi:#x}")
        if not enable:
            return
        for m in range(nshare):
            lo, hi = pk(lead_perm(n, nshare, m, enable))
            a(f"s_cmp_eq_u32 s{s_m}, {m}\ns_cselect_b32 s{dst}, {lo:#x}, s{dst}\ns_cselect_b32 s{dst+1}, {hi:#x}, s{dst+1}")

    def perm_next(self, dst, src, mul):
        t = f"s_and_b32 s{dst}, s{src}, 15\ns_lshr_b64 s[{src}:{src+1}], s[{src}:{src+1}], 4\n"
        if mul & (mul - 1) == 0:
            t += f"s_lshl_b32 s{dst}, s{dst}, {mul.bit_length()-1}\n"
        else:
            t += f"s_mul_i32 s{dst}, s{dst}, {mul}\n"
        return t

    def poll(self, voffs, vtmp):
        a = self.a
        lp, dn = a.label("poll"), a.label("pdone")
        a(f"s_mov_b32 s{S_CNT}, 0\n{lp}:")
        for i, vo in enumerate(voffs):
            a(f"buffer_load_dword v{vtmp+i}, v{vo}, s[{R_WS}:{R_WS+3}], 0 offen sc1")
        a("s_waitcnt vmcnt(0)")
        a(f"v_cmp_ne_u32 vcc, s{S_TAG}, v{vtmp}")
        for i in range(1, len(voffs)):
            a(f"v_cmp_ne_u32 s[{S_T0}:{S_T0+1}], s{S_TAG}, v{vtmp+i}\ns_nop 1\ns_or_b64 vcc, vcc, s[{S_T0}:{S_T0+1}]")
        a(f"s_nop 1\ns_cmp_eq_u64 vcc, 0\ns_cbranch_scc1 {dn}")
        a(f"s_add_u32 s{S_CNT}, s{S_CNT}, 1\ns_cmp_lt_u32 s{S_CNT}, {SPIN_LIMIT}\ns_cbranch_scc0 {dn}\ns_sleep 1\ns_branch {lp}\n{dn}:")

    def flag_store(self, s_off, vtmp):
        a = self.a
        a(f"v_mov_b32 v{vtmp}, s{S_TAG}\nv_mov_b32 v{vtmp+1}, 0\ns_mov_b64 exec, 1")
        a(f"buffer_store_dword v{vtmp}, v{vtmp+1}, s[{R_WS}:{R_WS+3}], s{s_off} offen sc1\ns_mov_b64 exec, -1")

    def pipeline(self, stages, L, gstar, drain=True, wait_every=2):
        a = self.a
        seq = [(si, gi, u) for si, st in enumerate(stages) for gi, u in enumerate(st["uses"])]
        issued = []
        state = dict(nxt=0, opened=-1)
        pend = []

        def collect(lim):
            while state["nxt"] < len(seq) and state["nxt"] <= lim and seq[state["nxt"]][0] <= state["opened"]:
                si_, _, u_ = seq[state["nxt"]]
                for name, txt in u_["reads"]:
                    pend.append((f"{si_}:{name}", txt))
                state["nxt"] += 1
                if seq[state["nxt"] - 1][1] == len(stages[si_]["uses"]) - 1 and si_ + 1 < len(stages):
                    state["defer"] = list(stages[si_ + 1].get("pre", []))

        def emit(n):
            for _ in range(min(n, len(pend))):
                name, txt = pend.pop(0)
                a(txt)
                if name:
                    issued.append(name)

        a(stages[0]["bar"])
        state["opened"] = 0
        collect(L - 1)
        emit(len(pend))
        n_real = sum(len(st["uses"]) for st in stages if not st.get("virtual"))
        covered = -1
        for f in range(n_real):
            si, gi, u = seq[f]
            nuse = len(stages[si]["uses"])
            if gi == 0 and stages[si].get("head"):
                assert not pend, pend
                a(stages[si]["head"])
                covered = -1
            if gi == gstar and si + 1 < len(stages):
                emit(len(pend))
                for x in state.pop("defer", []):
                    a(x)
                if drain:
                    a("s_waitcnt lgkmcnt(0)")
                    covered = len(issued) - 1
                a(stages[si + 1]["bar"])
                pend.extend((None, x) for x in stages[si + 1].get("bar_pend", []))
                state["opened"] = si + 1
                collect(f + L - 1)
            def lastidx(ff):
                s_, _, uu = seq[ff]
                return max(len(issued) - 1 - issued[::-1].index(f"{s_}:{nm}") for nm in uu["need"])
            w = []
            if lastidx(f) > covered:
                tgt = lastidx(f)
                for ff in range(f + 1, min(f + wait_every, n_real)):
                    if seq[ff][0] != si:
                        break
                    try:
                        tgt = max(tgt, lastidx(ff))
                    except ValueError:
                        break
                n = len(issued) - 1 - tgt
                assert n <= 15, n
                w.append(f"lgkmcnt({n})")
                covered = tgt
            if u.get("vm") is not None:
                npv = sum(1 for nm_, t_ in pend if t_.strip().startswith("buffer_load"))
                w.insert(0, f"vmcnt({u['vm'] - npv})")
            if w:
                a("s_waitcnt " + " ".join(w))
            if u.get("before"):
                a(u["before"])
            if state.get("defer") and not pend:
                n_ = self.o.get("npre", 7)
                pend.extend((None, x) for x in state["defer"][:n_])
                state["defer"] = state["defer"][n_:]
            collect(f + L)
            if state.get("mix"):
                k_ = state.pop("mix")
                head_, rest_ = pend[:k_], pend[k_:]
                pend[:] = [x for pr in zip(head_, rest_) for x in pr] + head_[len(rest_):] + rest_[len(head_):]
            nm_ = len(u["mf"])
            for k, m in enumerate(u["mf"]):
                a(m)
                left = nm_ - k
                if drain and gi >= gstar:
                    left += sum(len(uu["mf"]) for uu in stages[si]["uses"][gi + 1:])
                    extra = 2 * (nuse - 1 - gi)
                    emit(-(-(len(pend) + extra) // left) if left > 1 else len(pend))
                else:
                    emit(-(-len(pend) // left))
            if u.get("after"):
                items = [x for x in u["after"].split("\n") if x.strip()]
                if gi == nuse - 1:
                    for x in items:
                        a(x)
                else:
                    assert not pend
                    pend.extend((None, x) for x in items)
                    state["mix"] = len(items)
            if gi == nuse - 1 and stages[si].get("tail"):
                a(stages[si]["tail"])

    def prologue(self):
        a = self.a
        a(f"""
        s_cmp_ge_u32 s2, 256
        s_cbranch_scc1 L_exit
        {"v_mov_b32 v254, 0" if self.stamps else ""}
        {"v_mov_b32 v255, 0" if self.stamps else ""}
        {"s_memrealtime s[98:99]" if self.o.get("calib") else ""}
        s_load_dwordx16 s[4:19], s[0:1], 0
        s_load_dwordx8 s[20:27], s[0:1], 64
        v_and_b32 v1, 63, v0
        v_lshrrev_b32 v2, 6, v0
        s_and_b32 s{S_XCD}, s2, 7
        v_readfirstlane_b32 s{S_WAVE}, v2
        s_lshr_b32 s{S_J}, s2, 3
        s_waitcnt lgkmcnt(0)
        s_load_dword s{S_TAG}, s[{P_WS}:{P_WS+1}], 0
        """)
        self.srd(R_WS, P_WS, WS_USED)
        self.srd(R_X, P_X, 2048 * 1280)
        if self.stamps or self.o.get("dbg"):
            a(f"s_cmp_lg_u32 s{S_WAVE}, 0\ns_cbranch_scc1 L_nost0")
            self.stamp(0, 4)
            a("L_nost0:")
        if self.o.get("pf_code"):
            self.code_prefetch()
        if self.o.get("prio"):
            a(f"""
            s_sub_u32 s{S_T0}, s{S_WAVE}, 4
            s_cmp_lt_u32 s{S_T0}, 3
            s_cbranch_scc1 L_noprio
            s_setprio 3
            L_noprio:
            """)
        a(f"""
        s_lshr_b32 s{S_T0}, s{S_XCD}, 1
        s_lshl_b32 s{S_T0}, s{S_T0}, 3
        s_lshr_b32 s{S_ST}, s{S_J}, 2
        s_add_u32 s{S_ST}, s{S_ST}, s{S_T0}
        s_and_b32 s{S_T0}, s{S_XCD}, 1
        s_lshl_b32 s{S_T0}, s{S_T0}, 2
        s_and_b32 s{S_DTILE}, s{S_J}, 3
        s_add_u32 s{S_DTILE}, s{S_DTILE}, s{S_T0}
        s_cmp_lt_u32 s{S_XCD}, 4
        s_cbranch_scc1 L_roleB
        """)

    V_W2 = 240

    def f_perm(self):
        a = self.a
        a(f"s_lshl_b32 s{S_M}, s{S_DTILE}, 1\ns_add_u32 s{S_M}, s{S_M}, s{S_ST}\ns_and_b32 s{S_M}, s{S_M}, 7")
        self.perm_setup(S_M, 12, 8, S_PERM, self.o.get("rotF"))

    def w2_setup(self):
        a = self.a
        V = self.V_W2
        self.f_perm()
        self.srd(R_W2, P_W2, 1536 * 4096)
        a(f"""
        v_lshrrev_b32 v{V}, 3, v1
        v_lshrrev_b32 v{V+1}, 4, v1
        v_lshlrev_b32 v{V+1}, 1, v{V+1}
        v_and_b32 v{V+2}, 7, v1
        v_xor_b32 v{V+1}, v{V+1}, v{V+2}
        v_lshlrev_b32 v{V+1}, 4, v{V+1}
        v_lshl_add_u32 v{V}, v{V}, 12, v{V+1}
        v_add_u32 v{V+1}, {32768-1024}, v{V}
        v_add_u32 v{V+2}, {2*(32768-1024)}, v{V}
        v_add_u32 v{V+3}, {3*(32768-1024)}, v{V}
        s_sub_u32 s{S_T0}, s{S_WAVE}, 5
        s_lshl_b32 s{S_B}, s{S_T0}, 13
        s_lshl_b32 s{S_A}, s{S_T0}, 18
        s_lshl_b32 s{S_T0}, s{S_ST}, 7
        s_add_u32 s{S_A}, s{S_A}, s{S_T0}
        """)

    def w2_issue(self):
        a = self.a
        V = self.V_W2
        a(self.perm_next(S_T0, S_PERM, 128 * 4096))
        a(f"s_add_u32 s{S_T0}, s{S_T0}, s{S_A}")
        for g in range(2):
            a(f"s_add_u32 m0, s{S_B}, {g*4096}")
            a(f"s_add_u32 s{S_T0}, s{S_T0}, {g*4*32768}")
            for i in range(4):
                a(f"buffer_load_dwordx4 v{V+i}, s[{R_W2}:{R_W2+3}], s{S_T0} offen offset:{i*1024} lds")
        a(f"s_add_u32 s{S_B}, s{S_B}, 16384\ns_and_b32 s{S_B}, s{S_B}, 0x1ffff")

    def w2_prefill(self, n):
        if n == 0:
            return
        a = self.a
        lp = a.label("pf")
        a(f"s_mov_b32 s{S_C}, 0\n{lp}:")
        self.w2_issue()
        a(f"s_add_u32 s{S_C}, s{S_C}, 1\ns_cmp_lt_u32 s{S_C}, {n}\ns_cbranch_scc1 {lp}")

    def if_wave56(self):
        a = self.a
        skip = a.label("n56")
        a(f"s_sub_u32 s{S_T0}, s{S_WAVE}, 5\ns_cmp_lt_u32 s{S_T0}, 2\ns_cbranch_scc0 {skip}")
        return skip

    def role_a(self):
        a = self.a
        a(f"L_roleA:\ns_mov_b32 s{S_FROMA}, 1")
        a(f"s_sub_u32 s{S_MT}, s{S_ST}, 16\ns_mov_b32 s{S_HG}, s{S_DTILE}")
        a(f"s_cmp_ge_u32 s{S_WAVE}, 4\ns_cbranch_scc1 L_A_loader")
        ACC, XF, WF, VXA, VWA = 128, 96, 64, 4, 6
        if self.o.get("ta1") or self.o.get("ta2"):
            self.start_prefetch()
        self.a_thread_map()
        a(f"""
        v_and_b32 v16, 15, v1
        v_lshrrev_b32 v17, 4, v1
        s_lshl_b32 s{S_T0}, s{S_WAVE}, 5
        v_add_u32 v18, s{S_T0}, v16
        v_lshrrev_b32 v19, 1, v16
        v_xor_b32 v19, v17, v19
        v_lshlrev_b32 v19, 4, v19
        v_lshl_add_u32 v{VXA}, v18, 7, v19
        v_xor_b32 v{VXA+1}, 64, v{VXA}
        v_lshrrev_b32 v18, 2, v16
        v_lshl_add_u32 v19, v17, 3, v18
        v_and_b32 v20, 1, v17
        v_lshl_or_b32 v20, v20, 2, v18
        v_lshlrev_b32 v19, 9, v19
        v_lshl_add_u32 v19, v20, 5, v19
        v_and_b32 v20, 3, v16
        v_lshl_add_u32 v19, v20, 3, v19
        v_add_u32 v{VWA}, {A_WOFF}, v19
        """)
        for n in range(1, 8):
            a(f"v_xor_b32 v{VWA+n}, {n<<5}, v{VWA}")
        for r in range(120):
            a(f"v_mov_b32 v{ACC+r}, 0")
        a(f"s_mov_b32 s{S_A}, 0\ns_mov_b32 s{S_B}, 0\ns_mov_b32 s{S_C}, {A_SLOT}\ns_waitcnt lgkmcnt(0)")
        a(f"s_add_u32 s{S_TAG}, s{S_TAG}, {TAG_INC:#x}")

        RING = 6
        D = 6

        def mk_stage(bar, virtual=False, head=None, tail=None):
            uses = []
            for g in range(30):
                ks, n = divmod(g, 15)
                wb = WF + 4 * (g % RING)
                reads = []
                if g == 0:
                    for rb in range(2):
                        reads.append((f"x0{rb}", f"ds_read_b128 {vr(XF+4*rb,4)}, v{VXA} offset:{rb*2048}"))
                if g == 13:
                    for rb in range(2):
                        reads.append((f"x1{rb}", f"ds_read_b128 {vr(XF+8+4*rb,4)}, v{VXA+1} offset:{rb*2048}"))
                off = ks * 16384 + (n >> 3) * 256
                reads.append((f"w{g}a", f"ds_read_b64_tr_b16 {vr(wb,2)}, v{VWA+(n&7)} offset:{off}"))
                reads.append((f"w{g}b", f"ds_read_b64_tr_b16 {vr(wb+2,2)}, v{VWA+(n&7)} offset:{off+2048}"))
                need = [f"w{g}b", f"x{ks}1"]
                mf = []
                for rb in range(2):
                    acc = vr(ACC + (n * 2 + rb) * 4, 4)
                    xf = vr(XF + ks * 8 + rb * 4, 4)
                    wf = vr(wb, 4)
                    if n < 5:
                        mf.append(f"v_mfma_f32_16x16x32_bf16 {acc}, {wf}, {xf}, {acc}")
                    else:
                        mf.append(f"v_mfma_f32_16x16x32_bf16 {acc}, {xf}, {wf}, {acc}")
                uses.append(dict(reads=reads, need=need, mf=mf))
            return dict(uses=uses, bar=bar, virtual=virtual, head=head, tail=tail)

        adv = "s_barrier"
        pre = [f"s_add_u32 s{S_B}, s{S_B}, 1", f"s_cmp_eq_u32 s{S_B}, 3", f"s_cselect_b32 s{S_B}, 0, s{S_B}",
               f"s_cselect_b32 s{S_T0}, {(-2*A_SLOT) & 0xffffffff:#x}, s{S_C}"]
        pre += [f"v_add_u32 v{r}, s{S_T0}, v{r}" for r in range(VXA, VWA + 8)]
        tail = f"s_add_u32 s{S_A}, s{S_A}, 1\ns_cmp_lt_u32 s{S_A}, 10\ns_cbranch_scc1 L_A_loop"
        head = "L_A_loop:\n"
        bar0 = "s_barrier"
        ta2 = self.o.get("ta2")
        if ta2 == 1:
            a(self.pf_rest())
        elif ta2 == 2:
            bar0 += "\n" + self.pf_rest()
        elif ta2:
            head += f"s_cmp_lg_u32 s{S_A}, {ta2-2}\ns_cbranch_scc1 L_A_npf\n" + self.pf_rest() + "L_A_npf:\n"
        self.pipeline([mk_stage(bar0, head=head, tail=tail), dict(mk_stage(adv, virtual=True), pre=pre)], 5, 30 - 3, wait_every=self.o.get('we', 2))
        self.stamp(2, 16)
        PK, VV, ONES, KVD, ZD = 16, 36, 56, 64, 116
        a("s_waitcnt lgkmcnt(0)\ns_nop 7")
        a(f"s_mov_b32 s{S_K0}, {LOG2E:#x}\ns_mov_b32 s{S_K0+1}, {LOG2E:#x}\ns_mov_b32 s{S_K0+2}, {f2u(1e-6):#x}")

        def phi(base, n, t):
            for i in range(0, n, 4):
                r = base + i
                a(f"v_pk_mul_f32 {vr(t,2)}, {vr(r,2)}, s[{S_K0}:{S_K0+1}]")
                a(f"v_pk_mul_f32 {vr(t+2,2)}, {vr(r+2,2)}, s[{S_K0}:{S_K0+1}]")
                for k in range(4):
                    a(f"v_exp_f32_e64 v{t+k}, v{t+k} clamp")
                for k in range(4):
                    a(f"v_max_f32 v{r+k}, s{S_K0+2}, v{r+k}")
                a(f"v_pk_add_f32 {vr(r,2)}, {vr(r,2)}, {vr(t,2)}")
                a(f"v_pk_add_f32 {vr(r+2,2)}, {vr(r+2,2)}, {vr(t+2,2)}")

        def pack(dst, src0, src1):
            a(f"v_cvt_pk_bf16_f32 v{dst}, v{src0}, v{src0+1}\nv_cvt_pk_bf16_f32 v{dst+1}, v{src0+2}, v{src0+3}")
            if src1 is None:
                a(f"v_mov_b32 v{dst+2}, 0\nv_mov_b32 v{dst+3}, 0")
            else:
                a(f"v_cvt_pk_bf16_f32 v{dst+2}, v{src1}, v{src1+1}\nv_cvt_pk_bf16_f32 v{dst+3}, v{src1+2}, v{src1+3}")

        for b in range(5):
            pack(VV + 4 * b, ACC + (10 + b) * 8, ACC + (10 + b) * 8 + 4)
        for k in range(4):
            a(f"v_mov_b32 v{ONES+k}, 0x3f803f80")
        phi(ACC + 40, 40, 60)
        for b in range(5):
            pack(PK + 4 * b, ACC + (5 + b) * 8, ACC + (5 + b) * 8 + 4)
        a("s_nop 1")
        ZD = ACC + 80
        blocks = [(x, y) for x in range(5) for y in range(5) if abs(x - y) <= 1]
        for (x, y) in blocks:
            a(f"v_mfma_f32_16x16x32_bf16 {vr(KVD+4*(2*x+y),4)}, {vr(PK+4*x,4)}, {vr(VV+4*y,4)}, 0")
        for x in range(5):
            a(f"v_mfma_f32_16x16x32_bf16 {vr(ZD+4*x,4)}, {vr(ONES,4)}, {vr(PK+4*x,4)}, 0")
        a(f"""
        s_mul_i32 s{S_T0}, s{S_WAVE}, {EXCH_ST}
        v_lshlrev_b32 v60, 4, v1
        v_add_u32 v60, s{S_T0}, v60
        v_and_b32 v61, 15, v1
        v_lshlrev_b32 v61, 2, v61
        v_add_u32 v61, s{S_T0}, v61
        s_nop 3
        """)
        for i in range(13):
            a(f"ds_write_b128 v60, {vr(KVD+4*i,4)} offset:{i*1024}")
        for x in range(5):
            a(f"ds_write_b32 v61, v{ZD+4*x} offset:{13312+64*x}")
        a("s_waitcnt lgkmcnt(0)\ns_barrier")
        self.a_reduce_publish(64)
        a("s_waitcnt vmcnt(0)\ns_barrier")
        PQ = 16
        phi(ACC, 40, 60)
        for ts in range(3):
            for rb in range(2):
                pack(PQ + (ts * 2 + rb) * 4, ACC + (2 * ts * 2 + rb) * 4, None if ts == 2 else ACC + ((2 * ts + 1) * 2 + rb) * 4)
        a("s_barrier")
        a(f"""
        v_and_b32 v63, 15, v1
        v_lshlrev_b32 v63, 2, v63
        s_lshl_b32 s{S_T0}, s{S_MT}, 7
        s_lshl_b32 s{S_T0+1}, s{S_WAVE}, 5
        s_add_u32 s{S_T0}, s{S_T0}, s{S_T0+1}
        s_lshl_b32 s{S_T0}, s{S_T0}, 2
        s_add_u32 s{S_T0}, s{S_T0}, {G_OFF}
        buffer_load_dword v62, v63, s[{R_WS}:{R_WS+3}], s{S_T0} offen sc1
        buffer_load_dword v61, v63, s[{R_WS}:{R_WS+3}], s{S_T0} offen offset:64 sc1
        """)
        def wot_hook():
            self.uw_srd()
            a("v_lshlrev_b32 v60, 4, v1")
            self.wot_preload(60)
        self.a_gather(64, 20, wot_hook)
        a("s_waitcnt lgkmcnt(0)\ns_barrier")
        self.stamp(4, 40)
        FR = 64
        a("v_lshlrev_b32 v60, 4, v1\nv_add_u32 v60, " + str(KVT) + ", v60")
        used = [0, 2, 3, 4, 5, 7, 8, 9, 10, 11, 12, 13]
        for f in used:
            a(f"ds_read_b128 {vr(FR+4*f,4)}, v60 offset:{f*1024}")
        NUM, DEN = 128, 120
        kts = {0: [0], 1: [0, 1], 2: [0, 1], 3: [1, 2], 4: [1, 2]}
        a(f"""
        v_lshrrev_b32 v40, 4, v1
        v_cmp_gt_u32 s[{S_MSK}:{S_MSK+1}], 1, v40
        v_cmp_gt_u32 s[{S_MSK+2}:{S_MSK+3}], 2, v40
        v_cmp_gt_u32 s[{S_MSK+4}:{S_MSK+5}], 3, v40
        s_waitcnt lgkmcnt(0)
        """)
        for rb in range(2):
            for ts in range(3):
                c = "0" if ts == 0 else vr(DEN + 4 * rb, 4)
                a(f"v_mfma_f32_16x16x32_bf16 {vr(DEN+4*rb,4)}, {vr(FR+4*(11+ts),4)}, {vr(PQ+(ts*2+rb)*4,4)}, {c}")
        for rb in range(2):
            for b in range(5):
                for i, ts in enumerate(kts[b]):
                    d = vr(NUM + (rb * 5 + b) * 4, 4)
                    c = "0" if i == 0 else d
                    a(f"v_mfma_f32_16x16x32_bf16 {d}, {vr(FR+4*(2*b+ts),4)}, {vr(PQ+(ts*2+rb)*4,4)}, {c}")
        for rb in range(2):
            for h in range(4):
                a(f"v_add_f32 v{DEN+4*rb+h}, s{S_K0+2}, v{DEN+4*rb+h}")
        for rb in range(2):
            for h in range(4):
                a(f"v_rcp_f32 v{DEN+4*rb+h}, v{DEN+4*rb+h}")
        a("s_nop 0")
        gv = {0: 62, 1: 61}
        for rb in range(2):
            for h in range(4):
                a(f"v_mul_f32 v{DEN+4*rb+h}, v{gv[rb]}, v{DEN+4*rb+h}")
        a(f"""
        s_lshl_b32 s{S_T0}, s{S_MT}, 3
        s_lshl_b32 s{S_T0+1}, s{S_WAVE}, 1
        s_add_u32 s{S_T0}, s{S_T0}, s{S_T0+1}
        s_mul_i32 s{S_T0}, s{S_T0}, {GO_ST}
        s_add_u32 s{S_T0}, s{S_T0}, {GO}
        s_lshl_b32 s{S_T0+1}, s{S_HG}, 11
        s_add_u32 s{S_T0+1}, s{S_T0+1}, s{S_T0}
        s_lshl_b32 s{S_T0+2}, s{S_HG}, 9
        s_add_u32 s{S_T0+2}, s{S_T0+2}, s{S_T0}
        s_add_u32 s{S_T0+2}, s{S_T0+2}, 16384
        v_lshlrev_b32 v40, 4, v1
        v_lshlrev_b32 v41, 3, v1
        """)
        for rb in range(2):
            d = DEN + 4 * rb
            a(f"v_cndmask_b32 v44, v{d+1}, v{d}, s[{S_MSK}:{S_MSK+1}]")
            a(f"v_cndmask_b32 v45, v{d+2}, v{d+1}, s[{S_MSK+2}:{S_MSK+3}]")
            a(f"v_cndmask_b32 v46, v{d+3}, v{d+2}, s[{S_MSK+4}:{S_MSK+5}]")
            sc = [d, 44, 45, 46, d + 3]
            for b in range(5):
                for k in range(4):
                    r = NUM + (rb * 5 + b) * 4 + k
                    a(f"v_mul_f32 v{r}, v{sc[b]}, v{r}")
            o = 16 + rb * 12
            n0 = NUM + rb * 20
            pack(o, n0, n0 + 4)
            pack(o + 4, n0 + 8, n0 + 12)
            a(f"v_cvt_pk_bf16_f32 v{o+8}, v{n0+16}, v{n0+17}\nv_cvt_pk_bf16_f32 v{o+9}, v{n0+18}, v{n0+19}")
            a(f"buffer_store_dwordx4 {vr(o,4)}, v40, s[{R_WS}:{R_WS+3}], s{S_T0+1} offen sc1")
            a(f"buffer_store_dwordx4 {vr(o+4,4)}, v40, s[{R_WS}:{R_WS+3}], s{S_T0+1} offen offset:1024 sc1")
            a(f"buffer_store_dwordx2 {vr(o+8,2)}, v41, s[{R_WS}:{R_WS+3}], s{S_T0+2} offen sc1")
            if rb == 0:
                a(f"s_add_u32 s{S_T0+1}, s{S_T0+1}, {GO_ST}\ns_add_u32 s{S_T0+2}, s{S_T0+2}, {GO_ST}")
        self.stamp(5, 40)
        a("s_branch L_F_comp")

        a("L_A_loader:")
        VX, VW = 4, 8
        self.srd(R_W, P_WQKV, 640 * 3840)
        a(f"""
        s_sub_u32 s{S_D}, s{S_WAVE}, 4
        v_lshrrev_b32 v16, 3, v1
        v_lshrrev_b32 v17, 4, v1
        v_and_b32 v18, 7, v1
        v_xor_b32 v17, v17, v18
        v_lshlrev_b32 v17, 4, v17
        v_mul_u32_u24 v16, 1280, v16
        v_add_u32 v{VX}, v16, v17
        v_xor_b32 v18, 64, v{VX}
        v_add_u32 v{VX+1}, {8*1280-1024}, v18
        v_add_u32 v{VX+2}, {2*(8*1280-1024)}, v{VX}
        v_add_u32 v{VX+3}, {3*(8*1280-1024)}, v18
        s_lshl_b32 s{S_T0}, s{S_MT}, 7
        s_lshl_b32 s{S_T0+1}, s{S_D}, 5
        s_add_u32 s{S_T0}, s{S_T0}, s{S_T0+1}
        s_mul_i32 s{S_A}, s{S_T0}, 1280
        s_lshl_b32 s{S_C}, s{S_D}, 12
        """)
        def issue_x():
            a(f"s_mov_b32 m0, s{S_C}\ns_nop 0")
            for i in range(4):
                a(f"buffer_load_dwordx4 v{VX+i}, s[{R_X}:{R_X+3}], s{S_A} offen offset:{i*1024} lds")
            a(f"s_add_u32 s{S_A}, s{S_A}, 128")

        def issue_w():
            for g in range(2):
                a(f"s_lshl_b32 s{S_T0}, s{S_D}, 12\ns_add_u32 s{S_T0}, s{S_T0}, s{S_C}\ns_add_u32 m0, s{S_T0}, {A_WOFF + g*4096}\ns_nop 0")
                for i in range(4):
                    a(f"buffer_load_dwordx4 v{VW+4*g+i}, s[{R_W}:{R_W+3}], s{S_B} offen offset:{i*1024} lds")
            a(f"s_add_u32 s{S_B}, s{S_B}, {64*3840}")

        def next_slot():
            a(f"s_add_u32 s{S_C}, s{S_C}, {A_SLOT}\ns_cmp_ge_u32 s{S_C}, {3*A_SLOT}\ns_cselect_b32 s{S_T0}, {3*A_SLOT}, 0\ns_sub_u32 s{S_C}, s{S_C}, s{S_T0}")

        issue_x()
        a(f"""
        v_lshrrev_b32 v16, 5, v1
        v_bfe_u32 v17, v1, 1, 4
        v_and_b32 v18, 1, v1
        v_lshlrev_b32 v18, 4, v18
        v_mul_u32_u24 v19, 3840, v16
        v_add_u32 v18, v18, v19
        """)
        for i in (0, 1, 4, 5):
            sig = (2 * (i & 1)) | ((i >> 2) << 2)
            a(f"""
            v_or_b32 v19, {sig}, v16
            v_xor_b32 v19, v17, v19
            v_min_u32 v19, 14, v19
            v_mul_u32_u24 v20, 13, v19
            v_lshrrev_b32 v20, 6, v20
            v_mul_u32_u24 v20, 1120, v20
            v_lshl_add_u32 v19, v19, 5, v20
            v_add_u32 v19, v19, v18
            v_add_u32 v{VW+i}, {2*i*3840 - (i&3)*1024}, v19
            v_add_u32 v{VW+i+2}, {2*(i+2)*3840 - ((i+2)&3)*1024}, v19
            """)
        a(f"""
        s_mul_i32 s{S_B}, s{S_HG}, 160
        s_mul_i32 s{S_T0}, s{S_D}, {16*3840}
        s_add_u32 s{S_B}, s{S_B}, s{S_T0}
        """)
        issue_w()
        for _ in range(2):
            next_slot()
            issue_x()
            issue_w()
        a(f"v_lshlrev_b32 v16, 4, v1\ns_lshl_b32 s{S_T0}, s{S_D}, 12\ns_add_u32 s{S_T0}, s{S_T0}, {KVT}\nv_add_u32 v16, s{S_T0}, v16")
        a("v_mov_b32 v20, 0\nv_mov_b32 v21, 0\nv_mov_b32 v22, 0\nv_mov_b32 v23, 0")
        for i in range(4):
            a(f"ds_write_b128 v16, v[20:23] offset:{i*1024}")
        a(f"s_waitcnt lgkmcnt(0)\ns_add_u32 s{S_TAG}, s{S_TAG}, {TAG_INC:#x}")
        a("s_waitcnt vmcnt(24)\ns_barrier")
        self.stamp(1, 16)
        a(f"s_mov_b32 s{S_CNT}, 1\nL_A_lloop:")
        a("s_waitcnt vmcnt(12)\ns_barrier")
        self.stamp(16, 16, dyn=S_CNT)
        next_slot()
        issue_x()
        issue_w()
        a(f"s_add_u32 s{S_CNT}, s{S_CNT}, 1\ns_cmp_le_u32 s{S_CNT}, 7\ns_cbranch_scc1 L_A_lloop")
        tw = 3 if self.o.get("tw2") else 0
        a(f"s_waitcnt vmcnt(12)\ns_barrier")
        if tw:
            self.w2_touch()
        self.stamp(24, 16)
        a(f"s_waitcnt vmcnt({tw})\ns_barrier")
        self.stamp(25, 16)
        a("s_barrier")
        self.stamp(26, 16)
        self.a_thread_map()
        a("s_barrier")
        a(f"s_cmp_eq_u32 s{S_WAVE}, 7\ns_cbranch_scc1 L_A_poller")
        self.a_reduce_publish(64)
        a("s_waitcnt vmcnt(0)\ns_barrier")
        skip = self.if_wave56()
        nA1 = self.o.get("nA1", 0)
        self.w2_setup()
        self.w2_prefill(nA1)
        a("s_barrier")
        assert 14 + 8 * (8 - nA1) <= 63
        self.a_gather(64, 8 * (8 - nA1), lambda: self.w2_prefill(8 - nA1))
        a("s_waitcnt lgkmcnt(0)\ns_barrier")
        a("s_branch L_F_loader")
        a(f"{skip}:\ns_barrier")
        self.a_gather(64)
        a("s_waitcnt lgkmcnt(0)\ns_barrier")
        a("s_branch L_F_u4")
        a("L_A_poller:\ns_barrier")
        a(f"s_lshl_b32 s{S_T0}, s{S_HG}, 4\ns_add_u32 s{S_T0}, s{S_T0}, s{S_MT}\ns_mul_i32 s{S_T0}, s{S_T0}, {FS}\ns_add_u32 s{S_T0}, s{S_T0}, {F_KV}")
        self.flag_store(S_T0, 16)
        self.stamp(3, 16)
        a(f"""
        v_and_b32 v16, 15, v1
        s_lshl_b32 s{S_T0}, s{S_HG}, 4
        v_add_u32 v16, s{S_T0}, v16
        v_mul_u32_u24 v16, {FS}, v16
        v_add_u32 v16, {F_KV}, v16
        v_and_b32 v17, 7, v1
        s_lshl_b32 s{S_T0}, s{S_MT}, 3
        v_add_u32 v17, s{S_T0}, v17
        v_mul_u32_u24 v17, {FS}, v17
        v_add_u32 v17, {F_LN}, v17
        v_cmp_gt_u32 vcc, 32, v1
        s_nop 1
        v_cndmask_b32 v16, v17, v16, vcc
        s_mul_i32 s{S_T0}, s{S_DTILE}, {FS}
        s_add_u32 s{S_T0}, s{S_T0}, {F_WOT}
        v_mov_b32 v17, s{S_T0}
        v_cmp_eq_u32 vcc, 63, v1
        s_nop 1
        v_cndmask_b32 v16, v16, v17, vcc
        """)
        self.poll([16], 18)
        self.stamp(13, 16)
        a("s_barrier\ns_barrier")
        a("s_branch L_F_poller")

    def start_prefetch(self):
        a = self.a
        self.srd(R_W, P_WQKV, 640 * 3840)
        a(f"""
        s_lshl_b32 s{S_T0}, s{S_J}, 2
        s_add_u32 s{S_T0}, s{S_T0}, s{S_WAVE}
        v_lshrrev_b32 v16, 2, v1
        v_and_b32 v17, 3, v1
        v_mul_u32_u24 v16, 1280, v16
        v_lshl_add_u32 v16, v17, 7, v16
        s_lshr_b32 s{S_T0+2}, s{S_MT}, 3
        s_lshl_b32 s{S_T0+2}, s{S_T0+2}, 7
        s_add_u32 s{S_T0+2}, s{S_T0+2}, s{S_T0}
        s_mul_i32 s{S_DT}, s{S_T0+2}, {8*1280}
        v_lshrrev_b32 v19, 4, v1
        v_and_b32 v17, 15, v1
        v_min_u32 v17, 14, v17
        v_mul_u32_u24 v18, 13, v17
        v_lshrrev_b32 v18, 6, v18
        v_mul_u32_u24 v18, 640, v18
        v_lshl_add_u32 v18, v17, 7, v18
        v_mul_u32_u24 v19, 3840, v19
        v_add_u32 v112, v18, v19
        s_lshr_b32 s{S_T0+2}, s{S_HG}, 2
        s_mul_i32 s{S_T0+2}, s{S_T0+2}, 640
        s_mul_i32 s{S_FT}, s{S_T0}, {2*3840}
        s_add_u32 s{S_FT}, s{S_FT}, s{S_T0+2}
        """)
        if self.o.get("ta1"):
            a(f"""
            s_mov_b32 exec_hi, 0
            buffer_load_dword v253, v112, s[{R_W}:{R_W+3}], s{S_FT} offen
            buffer_load_dword v253, v16, s[{R_X}:{R_X+3}], s{S_DT} offen
            s_mov_b32 exec_hi, -1
            """)
        a(f"""
        s_mul_i32 s{S_FT}, s{S_T0}, {3*3840}
        s_add_u32 s{S_FT}, s{S_FT}, s{S_T0+2}
        s_add_u32 s{S_FT}, s{S_FT}, {256*3840}
        v_lshrrev_b32 v16, 3, v1
        v_and_b32 v17, 7, v1
        v_min_u32 v17, 5, v17
        v_mul_u32_u24 v16, 1280, v16
        v_lshl_add_u32 v113, v17, 7, v16
        s_add_u32 s{S_DT}, s{S_DT}, 512
        """)

    def pf_rest(self):
        return f"""s_mov_b32 exec_hi, 0xffff
        buffer_load_dword v253, v112, s[{R_W}:{R_W+3}], s{S_FT} offen
        s_mov_b32 exec_hi, -1
        buffer_load_dword v253, v113, s[{R_X}:{R_X+3}], s{S_DT} offen
        """

    def w2_touch(self):
        a = self.a
        self.srd(R_W2, P_W2, 1536 * 4096)
        a(f"""
        v_lshlrev_b32 v48, 7, v1
        s_lshl_b32 s{S_T0}, s{S_MT}, 3
        s_add_u32 s{S_T0}, s{S_T0}, s{S_HG}
        s_lshl_b32 s{S_T0}, s{S_T0}, 2
        s_add_u32 s{S_T0}, s{S_T0}, s{S_D}
        s_mul_i32 s{S_T0}, s{S_T0}, 12288
        buffer_load_dword v253, v48, s[{R_W2}:{R_W2+3}], s{S_T0} offen
        s_add_u32 s{S_T0}, s{S_T0}, 8192
        s_mov_b32 exec_hi, 0
        buffer_load_dword v253, v48, s[{R_W2}:{R_W2+3}], s{S_T0} offen
        """)
        self.srd(R_P, P_WO, 640 * 1280)
        a(f"""
        s_lshl_b32 s{S_T0}, s{S_MT}, 3
        s_add_u32 s{S_T0}, s{S_T0}, s{S_HG}
        s_lshl_b32 s{S_T0}, s{S_T0}, 2
        s_add_u32 s{S_T0}, s{S_T0}, s{S_D}
        s_mul_i32 s{S_T0}, s{S_T0}, 1664
        s_mov_b32 exec_lo, 0x1fff
        buffer_load_dword v253, v48, s[{R_P}:{R_P+3}], s{S_T0} offen
        s_mov_b64 exec, -1
        """)

    def code_prefetch(self):
        a = self.a
        a(f"""
        s_cmp_lg_u32 s{S_WAVE}, 3
        s_cbranch_scc1 L_nocpf
        s_cmp_ge_u32 s{S_J}, 4
        s_cbranch_scc1 L_nocpf
        s_getpc_b64 s[{S_T0}:{S_T0+1}]
        L_pcref:
        s_lshl_b32 s{S_T0+2}, s{S_J}, 13
        v_lshlrev_b32 v4, 7, v1
        v_add_u32 v4, s{S_T0+2}, v4
        v_min_u32 v4, L_end-L_pcref, v4
        global_load_dword v253, v4, s[{S_T0}:{S_T0+1}]
        L_nocpf:
        """)

    def a_thread_map(self):
        a = self.a
        a(f"""
        v_mul_u32_u24 v16, 625, v0
        v_lshrrev_b32 v16, 16, v16
        v_mul_u32_u24 v17, 105, v16
        v_sub_u32 v17, v0, v17
        v_mul_u32_u24 v18, 205, v17
        v_lshrrev_b32 v18, 10, v18
        v_mul_u32_u24 v19, 5, v18
        v_sub_u32 v19, v17, v19
        v_mad_u32_u24 v19, v16, 5, v19
        v_mad_u32_u24 v20, v16, 20, v18
        v_lshrrev_b32 v21, 2, v19
        v_and_b32 v22, 3, v19
        v_lshrrev_b32 v23, 4, v20
        v_and_b32 v20, 15, v20
        v_lshl_add_u32 v20, v22, 4, v20
        v_lshl_add_u32 v2, v21, 1, v23
        v_lshlrev_b32 v2, 6, v2
        v_add_u32 v2, v2, v20
        v_lshlrev_b32 v2, 4, v2
        v_lshlrev_b32 v3, 4, v19
        v_add_u32 v3, 13312, v3
        v_cmp_lt_u32 vcc, 99, v17
        v_lshrrev_b32 v24, 1, v21
        v_and_b32 v21, 1, v21
        v_cndmask_b32 v2, v2, v3, vcc
        v_lshl_add_u32 v3, v23, 1, v24
        v_add_u32 v24, 11, v24
        v_lshl_add_u32 v22, v22, 4, v16
        v_cndmask_b32 v3, v3, v24, vcc
        v_cndmask_b32 v20, v20, v22, vcc
        v_lshl_add_u32 v3, v3, 6, v20
        v_lshlrev_b32 v3, 4, v3
        v_lshl_add_u32 v3, v21, 3, v3
        v_add_u32 v3, {KVT}, v3
        v_mov_b32 v25, 2
        v_cndmask_b32 v25, 1, v25, vcc
        v_mov_b32 v16, 420
        v_cmp_gt_u32 vcc, v16, v0
        v_lshlrev_b32 v14, 4, v0
        s_nop 0
        v_cndmask_b32 v15, 0, v25, vcc
        v_cndmask_b32 v2, 0, v2, vcc
        """)

    def a_reduce_publish(self, T):
        a = self.a
        for w in range(4):
            a(f"ds_read_b128 {vr(T+4*w,4)}, v2 offset:{w*EXCH_ST}")
        a(f"""
        s_lshl_b32 s{S_T0}, s{S_HG}, 4
        s_add_u32 s{S_T0}, s{S_T0}, s{S_MT}
        s_mul_i32 s{S_T0}, s{S_T0}, {KVP_ST}
        s_add_u32 s{S_T0}, s{S_T0}, {KVP}
        v_cmp_ne_u32 vcc, 0, v15
        s_waitcnt lgkmcnt(0)
        v_pk_add_f32 {vr(T,2)}, {vr(T,2)}, {vr(T+4,2)}
        v_pk_add_f32 {vr(T+2,2)}, {vr(T+2,2)}, {vr(T+6,2)}
        v_pk_add_f32 {vr(T+8,2)}, {vr(T+8,2)}, {vr(T+12,2)}
        v_pk_add_f32 {vr(T+10,2)}, {vr(T+10,2)}, {vr(T+14,2)}
        v_pk_add_f32 {vr(T,2)}, {vr(T,2)}, {vr(T+8,2)}
        v_pk_add_f32 {vr(T+2,2)}, {vr(T+2,2)}, {vr(T+10,2)}
        s_mov_b64 exec, vcc
        buffer_store_dwordx4 {vr(T,4)}, v14, s[{R_WS}:{R_WS+3}], s{S_T0} offen sc1
        s_mov_b64 exec, -1
        """)

    def a_gather(self, T, extra=0, hook=None):
        a = self.a
        a(f"s_mul_i32 s{S_T0+1}, s{S_HG}, {16*KVP_ST}\ns_add_u32 s{S_T0+1}, s{S_T0+1}, {KVP}")
        rot = self.o.get("rotG")
        if rot:
            a(f"s_lshl_b32 s{S_T0+2}, s{S_MT}, 1")
        else:
            a(f"s_mov_b32 s{S_T0+2}, 0")
        a("v_cmp_ne_u32 vcc, 0, v15\ns_nop 1\ns_mov_b64 exec, vcc")
        for m in range(16):
            a(f"s_and_b32 s{S_T0+2}, s{S_T0+2}, 15\ns_mul_i32 s{S_T0}, s{S_T0+2}, {KVP_ST}\ns_add_u32 s{S_T0}, s{S_T0}, s{S_T0+1}\ns_add_u32 s{S_T0+2}, s{S_T0+2}, 1")
            a(f"buffer_load_dwordx4 {vr(T+4*m,4)}, v14, s[{R_WS}:{R_WS+3}], s{S_T0} offen sc1")
        a("s_mov_b64 exec, -1")
        if hook:
            hook()
        for m in range(0, 16, 2):
            a(f"s_waitcnt vmcnt({14-m+extra})")
            for h in (0, 2):
                a(f"v_pk_add_f32 {vr(T+4*m+h,2)}, {vr(T+4*m+h,2)}, {vr(T+4*(m+1)+h,2)}")
            if m >= 2:
                for h in (0, 2):
                    a(f"v_pk_add_f32 {vr(T+h,2)}, {vr(T+h,2)}, {vr(T+4*m+h,2)}")
        a(f"""
        v_cvt_pk_bf16_f32 v{T}, v{T}, v{T+1}
        v_cvt_pk_bf16_f32 v{T+1}, v{T+2}, v{T+3}
        v_cmp_ne_u32 vcc, 0, v15
        v_cmp_eq_u32 s[{S_T0}:{S_T0+1}], 2, v15
        s_nop 1
        s_mov_b64 exec, vcc
        ds_write_b64 v3, {vr(T,2)}
        s_mov_b64 exec, s[{S_T0}:{S_T0+1}]
        ds_write_b64 v3, {vr(T,2)} offset:64
        ds_write_b64 v3, {vr(T,2)} offset:128
        ds_write_b64 v3, {vr(T,2)} offset:192
        s_mov_b64 exec, -1
        """)

    def role_b(self):
        a = self.a
        a(f"L_roleB:\ns_mov_b32 s{S_FROMA}, 0")
        XR, GR, B1R = 16, 26, 36
        a(f"""
        s_mov_b32 s{S_T0}, s{S_XCD}
        s_lshl_b32 s{S_T0+1}, s{S_T0}, 5
        s_add_u32 s{S_T0+1}, s{S_T0+1}, s{S_J}
        s_lshr_b32 s{S_KST}, s{S_T0+1}, 1
        s_and_b32 s{S_PAR}, s{S_T0+1}, 1
        s_mul_i32 s{S_FT}, s{S_J}, 205
        s_lshr_b32 s{S_FT}, s{S_FT}, 10
        s_mov_b32 s{S_M}, s{S_FT}
        s_mul_i32 s{S_DT}, s{S_FT}, 5
        s_sub_u32 s{S_DT}, s{S_J}, s{S_DT}
        s_mul_i32 s{S_T0}, s{S_T0}, 6
        s_add_u32 s{S_FT}, s{S_FT}, s{S_T0}
        s_lshl_b32 s{S_T0}, s{S_KST}, 5
        s_lshl_b32 s{S_T0+1}, s{S_PAR}, 3
        s_add_u32 s{S_T0}, s{S_T0}, s{S_T0+1}
        s_and_b32 s{S_T0+1}, s{S_WAVE}, 3
        s_lshl_b32 s{S_T0+1}, s{S_T0+1}, 1
        s_add_u32 s{S_T0}, s{S_T0}, s{S_T0+1}
        s_lshr_b32 s{S_T0+1}, s{S_WAVE}, 2
        s_lshl_b32 s{S_T0+1}, s{S_T0+1}, 4
        s_add_u32 s{S_T0}, s{S_T0}, s{S_T0+1}
        s_mul_i32 s{S_T0}, s{S_T0}, 1280
        v_lshrrev_b32 v2, 5, v1
        v_and_b32 v3, 31, v1
        v_lshlrev_b32 v3, 3, v3
        v_mad_u32_u24 v4, v2, s{S_T0+2}, v3
        """.replace(f"v_mad_u32_u24 v4, v2, s{S_T0+2}, v3", "v_mul_u32_u24 v4, 1280, v2\nv_add_u32 v4, v4, v3"))
        for c in range(5):
            a(f"buffer_load_dwordx2 {vr(XR+2*c,2)}, v4, s[{R_X}:{R_X+3}], s{S_T0} offen offset:{c*256}")
        self.srd(R_M, P_GATE, 1280)
        for c in range(5):
            a(f"buffer_load_dwordx2 {vr(GR+2*c,2)}, v3, s[{R_M}:{R_M+3}], 0 offen offset:{c*256}")
        self.srd(R_OUT, P_B1, 3072)
        a(f"v_lshrrev_b32 v5, 4, v1\nv_lshlrev_b32 v5, 3, v5\ns_lshl_b32 s{S_T0}, s{S_FT}, 7")
        for b in range(4):
            a(f"buffer_load_dwordx2 {vr(B1R+2*b,2)}, v5, s[{R_OUT}:{R_OUT+3}], s{S_T0} offen offset:{b*32}")
        VS0, VS1, VPF = 6, 7, 8
        self.srd(R_W, P_W1, 2048 * 3072)
        a(f"""
        v_lshrrev_b32 v12, 3, v1
        v_lshrrev_b32 v13, 4, v1
        v_lshlrev_b32 v13, 1, v13
        v_and_b32 v14, 7, v1
        v_xor_b32 v13, v13, v14
        v_lshlrev_b32 v13, 4, v13
        v_mul_u32_u24 v12, 3072, v12
        v_add_u32 v{VPF}, v12, v13
        v_add_u32 v{VPF+1}, {8*3072-1024}, v{VPF}
        v_add_u32 v{VPF+2}, {2*(8*3072-1024)}, v{VPF}
        v_add_u32 v{VPF+3}, {3*(8*3072-1024)}, v{VPF}
        """)
        self.perm_setup(S_M, 16, 6, S_PERM, self.o.get("rotB"))
        N1 = self.o.get("n1", 8)

        def w1_issue():
            t = self.perm_next(S_T0, S_PERM, 128 * 3072)
            t += f"s_mov_b32 m0, s{S_B}\ns_add_u32 s{S_T0}, s{S_T0}, s{S_A}\n"
            for i in range(4):
                t += f"buffer_load_dwordx4 v{VPF+i}, s[{R_W}:{R_W+3}], s{S_T0} offen offset:{i*1024} lds\n"
            t += f"s_add_u32 s{S_B}, s{S_B}, 16384\n"
            return t
        pf = f"""
        s_cmp_lt_u32 s{S_WAVE}, 4
        s_cbranch_scc1 L_B_nopf
        s_cmp_ge_u32 s{S_J}, 30
        s_cbranch_scc1 L_B_nopf
        s_sub_u32 s{S_T0}, s{S_WAVE}, 4
        s_lshl_b32 s{S_B}, s{S_T0}, 12
        s_mul_i32 s{S_A}, s{S_T0}, {32*3072}
        s_lshl_b32 s{S_T0}, s{S_FT}, 7
        s_add_u32 s{S_A}, s{S_A}, s{S_T0}
        L_B_pf:
        """ + w1_issue() + f"""
        s_cmp_lt_u32 s{S_B}, {N1*16384}
        s_cbranch_scc1 L_B_pf
        """
        def w1_touch(part):
            lab = a.label("nt")
            a(f"""
            s_cmp_lt_u32 s{S_WAVE}, 4
            s_cbranch_scc1 {lab}
            s_lshl_b32 s{S_T0}, s{S_J}, 2
            s_add_u32 s{S_T0}, s{S_T0}, s{S_WAVE}
            s_sub_u32 s{S_T0}, s{S_T0}, {4 - part*128}
            s_mul_i32 s{S_T0}, s{S_T0}, {8*3072}
            s_mul_i32 s{S_T0+1}, s{S_XCD}, 768
            s_add_u32 s{S_T0}, s{S_T0}, s{S_T0+1}
            buffer_load_dword v253, v7, s[{R_W}:{R_W+3}], s{S_T0} offen
            {lab}:
            """.replace(f"s_sub_u32 s{S_T0}, s{S_T0}, {4 - part*128}", f"s_add_u32 s{S_T0}, s{S_T0}, {(part*128 - 4) & 0xffffffff:#x}"))
        a("v_and_b32 v7, 7, v1\nv_min_u32 v7, 5, v7\nv_lshl_add_u32 v7, v7, 7, v12")
        if self.o.get("late_w1"):
            if self.o.get("tb1"):
                w1_touch(0)
                if self.o.get("tb2") == 3:
                    w1_touch(1)
                a(f"s_cmp_lt_u32 s{S_WAVE}, 4\ns_cbranch_scc1 L_B_w4\ns_waitcnt vmcnt({6 if self.o.get('tb2') == 3 else 5})\nL_B_w4:")
                a(f"s_cmp_ge_u32 s{S_WAVE}, 4\ns_cbranch_scc1 L_B_w5\ns_waitcnt vmcnt(4)\nL_B_w5:")
            else:
                a("s_waitcnt vmcnt(4)")
        else:
            a(pf + "s_waitcnt vmcnt(36)\ns_branch L_B_ln\nL_B_nopf:\ns_waitcnt vmcnt(4)\nL_B_ln:")
        self.stamp(11, 44)
        XS = 44
        a("v_mov_b32 v64, 0\nv_mov_b32 v65, 0\nv_mov_b32 v66, 0x3f803f80")
        for c in range(10):
            a(f"v_dot2c_f32_bf16 v65, v{XR+c}, v{GR+c}")
        for c in range(10):
            a(f"v_dot2c_f32_bf16 v64, v{XR+c}, v66")
        for c in range(10):
            a(f"v_lshlrev_b32 v{XS+2*c}, 16, v{XR+c}\nv_and_b32 v{XS+2*c+1}, 0xffff0000, v{XR+c}")

        def reduce32(regs, t):
            for mode in ("quad_perm:[1,0,3,2]", "quad_perm:[2,3,0,1]", "row_half_mirror", "row_mirror"):
                for r in regs:
                    a(f"v_add_f32_dpp v{r}, v{r}, v{r} {mode} row_mask:0xf bank_mask:0xf")
                a("s_nop 1" if len(regs) == 1 else "s_nop 0")
            for i, r in enumerate(regs):
                a(f"v_mov_b32 v{t+i}, v{r}")
            a("s_nop 1")
            for i, r in enumerate(regs):
                a(f"v_permlane16_swap_b32 v{r}, v{t+i}")
            a("s_nop 1")
            for i, r in enumerate(regs):
                a(f"v_add_f32 v{r}, v{r}, v{t+i}")

        reduce32([64, 65], 66)
        a(f"v_mul_f32 v64, {f2u(-1.0/640):#x}, v64\nv_mul_f32 v65, {f2u(-1.4426950408889634):#x}, v65\nv_mov_b32 v67, 0\nv_mov_b32 v66, 0")
        a("v_exp_f32 v65, v65")
        for c in range(20):
            a(f"v_add_f32 v{XS+c}, v64, v{XS+c}")
        a("v_add_f32 v65, 1.0, v65\nv_rcp_f32 v65, v65")
        for c in range(0, 20, 2):
            a(f"v_fmac_f32 v66, v{XS+c}, v{XS+c}\nv_fmac_f32 v67, v{XS+c+1}, v{XS+c+1}")
        a("v_add_f32 v66, v66, v67\ns_nop 1")
        reduce32([66], 67)
        a(f"v_mov_b32 v67, {f2u(1e-5):#x}\nv_fmac_f32 v67, {f2u(1.0/640):#x}, v66\nv_rsq_f32 v67, v67\ns_nop 0")
        for c in range(20):
            a(f"v_mul_f32 v{XS+c}, v67, v{XS+c}")
        for c in range(10):
            a(f"v_cvt_pk_bf16_f32 v{XR+c}, v{XS+2*c}, v{XS+2*c+1}")
        a(f"""
        s_lshl_b32 s{S_T0}, s{S_WAVE}, 1
        v_add_u32 v2, s{S_T0}, v2
        v_mul_u32_u24 v4, {LN_ST}, v2
        v_add_u32 v4, v4, v3
        v_add_u32 v4, {LNBUF}, v4
        v_lshlrev_b32 v2, 2, v2
        v_add_u32 v2, {LNG}, v2
        """)
        for c in range(5):
            a(f"ds_write_b64 v4, {vr(XR+2*c,2)} offset:{c*256}")
        a("ds_write_b32 v2, v65")
        a(f"s_waitcnt lgkmcnt(0)\ns_add_u32 s{S_TAG}, s{S_TAG}, {TAG_INC:#x}\ns_barrier")
        self.stamp(12, 44)
        if self.o.get("late_w1") == 1:
            a(pf + "L_B_nopf:")
        a(f"s_cmp_ge_u32 s{S_WAVE}, 4\ns_cbranch_scc1 L_B_l1b")
        a(f"""
        v_and_b32 v12, 15, v1
        v_bfe_u32 v13, v1, 4, 1
        v_lshrrev_b32 v14, 5, v1
        v_lshrrev_b32 v15, 2, v12
        v_lshl_add_u32 v15, v13, 2, v15
        v_mul_u32_u24 v15, {LN_ST}, v15
        v_lshl_add_u32 v15, v14, 5, v15
        v_and_b32 v2, 3, v12
        v_lshl_add_u32 v15, v2, 3, v15
        s_mul_i32 s{S_T0}, s{S_WAVE}, 320
        s_add_u32 s{S_T0}, s{S_T0}, {LNBUF}
        v_add_u32 v15, s{S_T0}, v15
        """)
        for i in range(5):
            a(f"ds_read_b64_tr_b16 {vr(44+4*i,2)}, v15 offset:{i*64}")
            a(f"ds_read_b64_tr_b16 {vr(46+4*i,2)}, v15 offset:{i*64+8*LN_ST}")
        a(f"""
        v_lshlrev_b32 v2, 2, v12
        v_add_u32 v2, {LNG}, v2
        ds_read_b32 v65, v2
        v_lshlrev_b32 v14, 16, v14
        v_lshl_add_u32 v14, v13, 8, v14
        v_lshl_add_u32 v14, v12, 4, v14
        s_mul_i32 s{S_T0}, s{S_WAVE}, {5*131072}
        s_lshl_b32 s{S_T0+1}, s{S_KST}, 10
        s_add_u32 s{S_T0}, s{S_T0}, s{S_T0+1}
        s_lshl_b32 s{S_T0+1}, s{S_PAR}, 9
        s_add_u32 s{S_T0}, s{S_T0}, s{S_T0+1}
        s_add_u32 s{S_T0}, s{S_T0}, {HT}
        """)
        for i in range(5):
            a(f"s_waitcnt lgkmcnt({9-2*i})")
            a(f"buffer_store_dwordx4 {vr(44+4*i,4)}, v14, s[{R_WS}:{R_WS+3}], s{S_T0} offen sc1")
            if i < 4:
                a(f"s_add_u32 s{S_T0}, s{S_T0}, 131072")
        a(f"""
        s_cmp_lg_u32 s{S_WAVE}, 0
        s_cbranch_scc1 L_B_nog
        v_and_b32 v2, 7, v12
        v_lshrrev_b32 v12, 3, v12
        v_lshl_add_u32 v2, v12, 4, v2
        v_lshlrev_b32 v2, 2, v2
        s_lshl_b32 s{S_T0}, s{S_KST}, 7
        s_lshl_b32 s{S_T0+1}, s{S_PAR}, 5
        s_add_u32 s{S_T0}, s{S_T0}, s{S_T0+1}
        s_add_u32 s{S_T0}, s{S_T0}, {G_OFF}
        s_waitcnt lgkmcnt(0)
        s_mov_b64 exec, 0xffff
        buffer_store_dword v65, v2, s[{R_WS}:{R_WS+3}], s{S_T0} offen sc1
        s_mov_b64 exec, -1
        L_B_nog:
        s_barrier
        s_waitcnt vmcnt(0) lgkmcnt(0)
        s_branch L_B_l2
        L_B_l1b:
        s_barrier
        """)
        if self.o.get("tb2") == 1:
            w1_touch(1)
        if self.o.get("late_w1") == 2:
            a(pf + "L_B_nopf:")
        a(f"""
        L_B_l2:
        s_barrier
        """)
        if self.o.get("late_w1") == 3:
            a(pf + "L_B_nopf:")
        if self.o.get("tb2") == 2:
            w1_touch(1)
        a(f"""
        s_cmp_lg_u32 s{S_WAVE}, 0
        s_cbranch_scc1 L_B_l3
        s_lshl_b32 s{S_T0}, s{S_KST}, 1
        s_add_u32 s{S_T0}, s{S_T0}, s{S_PAR}
        s_mul_i32 s{S_T0}, s{S_T0}, {FS}
        s_add_u32 s{S_T0}, s{S_T0}, {F_LN}
        """)
        self.flag_store(S_T0, 12)
        self.stamp(1, 12)
        a(f"s_cmp_ge_u32 s{S_J}, 30\ns_cbranch_scc1 L_helper")
        a(f"v_mul_u32_u24 v12, {FS}, v1\nv_add_u32 v12, {F_LN}, v12\nv_add_u32 v13, {64*FS}, v12")
        self.poll([12, 13], 14)
        self.stamp(2, 12)
        a(f"L_B_l3:\ns_cmp_ge_u32 s{S_J}, 30\ns_cbranch_scc1 L_helper")
        a(f"s_cmp_ge_u32 s{S_WAVE}, 4\ns_cbranch_scc1 L_B_aux")
        PF, WF, ACC, VT, VL = 64, 128, 160, 8, 12
        a(f"""
        s_lshl_b32 s{S_T0}, s{S_DT}, 3
        s_lshl_b32 s{S_T0+1}, s{S_WAVE}, 1
        s_add_u32 s{S_D}, s{S_T0}, s{S_T0+1}
        s_lshl_b32 s{S_T0}, s{S_D}, 16
        s_add_u32 s{S_T0}, s{S_T0}, {HT}
        """)
        self.srd(R_P, P_WS, 65536, off_s=S_T0)
        a(f"s_add_u32 s{S_T0}, s{S_T0}, 65536")
        self.srd(R_M, P_WS, 65536, off_s=S_T0)
        a(f"v_lshlrev_b32 v{VL}, 4, v1\ns_mov_b32 s{S_B}, 0")
        a(self.perm_next(S_C, S_PERM, 4096))
        self.tr_addr(VT)
        for r in range(32):
            a(f"v_mov_b32 v{ACC+r}, 0")
        a("s_barrier")
        RP = (R_P, R_M)

        def pload(u, ks):
            if self.o.get("x_noload"):
                return "s_nop 0"
            sc = "" if self.o.get("x_nosc1") else "sc1"
            so = "0" if self.o.get("x_same") else f"s{S_C}"
            return "\n".join(f"buffer_load_dwordx4 {vr(PF+32*(u%2)+8*ks+4*d,4)}, v{VL}, s[{RP[d]}:{RP[d]+3}], {so} offen offset:{ks*1024} {sc}" for d in range(2))

        for t in range(2):
            for ks in range(4):
                a(pload(t, ks))
            a(self.perm_next(S_C, S_PERM, 4096))
            if t == 0:
                first_bar_here = len(a.L)

        def mk(u, bar, virtual=False, head=None, tail=None):
            uses = []
            for ks in range(4):
                for b in range(4):
                    g = ks * 4 + b
                    wb = WF + 4 * (g % 8)
                    off = u * 16384 + ks * 4096
                    reads = [(f"w{g}a", f"ds_read_b64_tr_b16 {vr(wb,2)}, v{VT+b} offset:{off}"),
                             (f"w{g}b", f"ds_read_b64_tr_b16 {vr(wb+2,2)}, v{VT+b} offset:{off+2048}")]
                    mf = []
                    for dd in range(2):
                        acc = vr(ACC + 16 * dd + 4 * b, 4)
                        mf.append(f"v_mfma_f32_16x16x32_bf16 {acc}, {vr(wb,4)}, {vr(PF+32*(u%2)+8*ks+4*dd,4)}, {acc}")
                    d = dict(reads=reads, need=[f"w{g}b"], mf=mf)
                    if b == 0:
                        d["vm"] = 14
                    if b == 3:
                        d["after"] = pload(u, ks)
                        if ks == 3:
                            d["after"] += "\n" + self.perm_next(S_C, S_PERM, 4096)
                            if u >= 1:
                                d["after"] += f"s_cmp_ge_u32 s{S_B}, 3\ns_cselect_b32 s{S_C}, 0x10000, s{S_C}"
                    uses.append(d)
            return dict(uses=uses, bar=bar, virtual=virtual, head=head, tail=tail)

        xo = "s_barrier\n" + "\n".join(f"v_xor_b32 v{VT+b}, 0x10000, v{VT+b}" for b in range(4))
        tail = f"s_add_u32 s{S_B}, s{S_B}, 1\ns_cmp_lt_u32 s{S_B}, 4\ns_cbranch_scc1 L_B_loop"
        st = [mk(0, "", head="L_B_loop:"), mk(1, "s_barrier"), mk(2, "s_barrier"), mk(3, "s_barrier", tail=tail), mk(0, xo, virtual=True)]
        a.L.insert(first_bar_here, "    s_barrier")
        nd = self.o.get("nodrain")
        LB = self.o.get("LB", 7)
        self.pipeline(st, LB, (16 - LB) if nd else 13, drain=not nd, wait_every=self.o.get('we', 2))
        if nd:
            a("s_waitcnt lgkmcnt(0)\ns_barrier")
        self.stamp(3, 44)
        c = 0.7978845608028654
        k0 = -2.0 * c * 1.4426950408889634
        k1 = k0 * 0.044715
        a(f"""
        s_waitcnt lgkmcnt(0)
        s_mov_b32 s{S_K0}, {f2u(k1):#x}
        s_mov_b32 s{S_K0+1}, {f2u(k1):#x}
        v_mov_b32 v44, {f2u(k0):#x}
        v_mov_b32 v45, {f2u(k0):#x}
        v_mov_b32 v46, 1.0
        v_mov_b32 v47, 1.0
        s_mul_i32 s{S_T0}, s{S_D}, {UW_ST}
        s_lshl_b32 s{S_T0+1}, s{S_FT}, 11
        s_add_u32 s{S_T0}, s{S_T0}, s{S_T0+1}
        s_add_u32 s{S_T0}, s{S_T0}, {UW}
        """)
        BF = 16
        for b in range(4):
            a(f"v_lshlrev_b32 v{BF+4*b}, 16, v{B1R+2*b}\nv_and_b32 v{BF+4*b+1}, 0xffff0000, v{B1R+2*b}")
            a(f"v_lshlrev_b32 v{BF+4*b+2}, 16, v{B1R+2*b+1}\nv_and_b32 v{BF+4*b+3}, 0xffff0000, v{B1R+2*b+1}")
        for dd in range(2):
            for p in range(2):
                r = ACC + 16 * dd + 8 * p
                T = 48
                for q in range(4):
                    a(f"v_pk_add_f32 {vr(r+2*q,2)}, {vr(r+2*q,2)}, {vr(BF+8*p+2*q,2)}")
                for q in range(4):
                    a(f"v_pk_mul_f32 {vr(T+2*q,2)}, {vr(r+2*q,2)}, {vr(r+2*q,2)}")
                for q in range(4):
                    a(f"v_pk_fma_f32 {vr(T+2*q,2)}, {vr(T+2*q,2)}, s[{S_K0}:{S_K0+1}], v[44:45]")
                for q in range(4):
                    a(f"v_pk_mul_f32 {vr(T+2*q,2)}, {vr(T+2*q,2)}, {vr(r+2*q,2)}")
                for q in range(8):
                    a(f"v_exp_f32 v{T+q}, v{T+q}")
                for q in range(4):
                    a(f"v_pk_add_f32 {vr(T+2*q,2)}, {vr(T+2*q,2)}, v[46:47]")
                for q in range(8):
                    a(f"v_rcp_f32 v{T+q}, v{T+q}")
                for q in range(4):
                    a(f"v_pk_mul_f32 {vr(r+2*q,2)}, {vr(r+2*q,2)}, {vr(T+2*q,2)}")
                o = 56 + 4 * (p & 1)
                for q in range(4):
                    a(f"v_cvt_pk_bf16_f32 v{o+q}, v{r+2*q}, v{r+2*q+1}")
                a(f"buffer_store_dwordx4 {vr(o,4)}, v{VL}, s[{R_WS}:{R_WS+3}], s{S_T0} offen offset:{p*1024} sc1")
            if dd == 0:
                a(f"s_add_u32 s{S_T0}, s{S_T0}, {UW_ST}")
        self.stamp(10, 44)
        a("s_waitcnt vmcnt(0)\ns_barrier\ns_branch L_F_comp")

        a("L_B_aux:\ns_barrier")
        order = list(range(N1))
        if self.o.get("tb2") == 2:
            order.append("t")
        cnt = {k: 4 for k in range(16)}
        cnt["t"] = 1
        nxt = N1
        lag = self.o.get("lag", 0)
        for tb in range(17):
            if tb < 16:
                n = sum(cnt[x] for x in order[order.index(tb) + 1:])
                a(f"s_waitcnt vmcnt({n})")
            a("s_barrier")
            if tb < 16:
                self.stamp(16 + tb, 44)
            if self.o.get("tb2") == 5 and tb == self.o.get("tb2at", 0):
                w1_touch(1)
                order.append("t")
            k = 0
            while nxt <= min(15, tb + (6 if self.o.get("nodrain") and nxt >= 8 else 7) - (lag if nxt >= 8 else 0)) and k < 2:
                if nxt == 8:
                    a(f"s_and_b32 s{S_B}, s{S_B}, 0x1ffff")
                a(w1_issue())
                order.append(nxt)
                nxt += 1
                k += 1
        assert nxt == 16
        if self.o.get("nodrain"):
            a("s_barrier")
        skip = self.if_wave56()
        nB1 = self.o.get("nB1", 0)
        if nB1:
            self.w2_setup()
            self.w2_prefill(nB1)
            a("s_barrier\ns_nop 7\ns_nop 7")
            self.w2_prefill(8 - nB1)
        else:
            a("s_barrier")
            self.w2_setup()
            self.w2_prefill(8)
        a("s_branch L_F_loader")
        a(f"{skip}:\ns_barrier")
        a(f"s_cmp_lg_u32 s{S_WAVE}, 7\ns_cbranch_scc1 L_F_u4")
        a(f"s_mul_i32 s{S_T0}, s{S_DT}, 24\ns_add_u32 s{S_T0}, s{S_T0}, s{S_FT}\ns_mul_i32 s{S_T0}, s{S_T0}, {FS}\ns_add_u32 s{S_T0}, s{S_T0}, {F_U}")
        self.flag_store(S_T0, 12)
        self.stamp(4, 12)
        a("s_branch L_F_poller")

    def w2_l2_prefetch(self, VT):
        a = self.a
        self.srd(R_W2, P_W2, 1536 * 4096)
        a(f"""
        v_lshrrev_b32 v{VT}, 3, v1
        v_and_b32 v{VT+1}, 7, v1
        v_lshlrev_b32 v{VT+1}, 7, v{VT+1}
        v_lshl_add_u32 v{VT}, v{VT}, 12, v{VT+1}
        s_mul_i32 s{S_T0}, s{S_J}, 48
        s_and_b32 s{S_T0+1}, s{S_WAVE}, 3
        s_mul_i32 s{S_T0+1}, s{S_T0+1}, 12
        s_add_u32 s{S_T0}, s{S_T0}, s{S_T0+1}
        s_lshl_b32 s{S_T0}, s{S_T0}, 12
        s_lshr_b32 s{S_T0+1}, s{S_XCD}, 1
        s_lshl_b32 s{S_T0+1}, s{S_T0+1}, 10
        s_add_u32 s{S_T0}, s{S_T0}, s{S_T0+1}
        buffer_load_dword v{VT+2}, v{VT}, s[{R_W2}:{R_W2+3}], s{S_T0} offen
        s_add_u32 s{S_T0}, s{S_T0}, {8*4096}
        s_mov_b32 exec_hi, 0
        buffer_load_dword v{VT+3}, v{VT}, s[{R_W2}:{R_W2+3}], s{S_T0} offen
        s_mov_b64 exec, -1
        """)

    def tr_addr(self, VT):
        a = self.a
        a(f"""
        v_and_b32 v{VT+1}, 15, v1
        v_lshrrev_b32 v{VT+2}, 4, v1
        v_lshrrev_b32 v{VT+3}, 2, v{VT+1}
        v_lshl_add_u32 v{VT+3}, v{VT+2}, 2, v{VT+3}
        v_bfe_u32 v{VT+2}, v{VT+3}, 1, 2
        v_lshlrev_b32 v{VT+3}, 7, v{VT+3}
        v_lshl_add_u32 v{VT+3}, v{VT+2}, 5, v{VT+3}
        v_and_b32 v{VT+1}, 3, v{VT+1}
        v_lshl_add_u32 v{VT}, v{VT+1}, 3, v{VT+3}
        v_xor_b32 v{VT+1}, 32, v{VT}
        v_xor_b32 v{VT+2}, 64, v{VT}
        v_xor_b32 v{VT+3}, 96, v{VT}
        """)

    def helper(self):
        a = self.a
        a("L_helper:")
        a(f"""
        s_lshl_b32 s{S_D}, s{S_XCD}, 1
        s_add_u32 s{S_D}, s{S_D}, s{S_J}
        s_sub_u32 s{S_D}, s{S_D}, 30
        """)
        if self.o.get("tb2") == 4:
            a(f"""
            s_sub_u32 s{S_T0}, s{S_J}, 30
            s_lshl_b32 s{S_T0}, s{S_T0}, 3
            s_add_u32 s{S_T0}, s{S_T0}, s{S_WAVE}
            s_add_u32 s{S_T0}, s{S_T0}, 128
            s_mul_i32 s{S_T0}, s{S_T0}, {8*3072}
            s_mul_i32 s{S_T0+1}, s{S_XCD}, 768
            s_add_u32 s{S_T0}, s{S_T0}, s{S_T0+1}
            """)
            for k in range(8):
                a(f"buffer_load_dword v253, v7, s[{R_W}:{R_W+3}], s{S_T0} offen\ns_add_u32 s{S_T0}, s{S_T0}, {128*3072}")
        self.srd(R_W, P_WO, 640 * 1280)
        for p in range(5):
            a(f"""
            v_add_u32 v12, {p*64}, v1
            v_mul_u32_u24 v13, 205, v12
            v_lshrrev_b32 v13, 11, v13
            v_mul_u32_u24 v14, 10, v13
            v_sub_u32 v14, v12, v14
            v_lshlrev_b32 v14, 4, v14
            v_mul_u32_u24 v13, 1280, v13
            v_add_u32 v{16+p}, v13, v14
            """)
            if p in (1, 2, 3):
                a(f"v_subrev_u32 v{16+p}, {p*1024}, v{16+p}")
        a(f"""
        s_mov_b32 s{S_C}, s{S_WAVE}
        L_H_ld:
        s_mul_i32 s{S_A}, s{S_C}, {32*1280}
        s_mul_i32 s{S_T0}, s{S_D}, 160
        s_add_u32 s{S_A}, s{S_A}, s{S_T0}
        s_mul_i32 s{S_B}, s{S_C}, 5120
        s_mov_b32 m0, s{S_B}
        s_nop 0
        """)
        for p in range(4):
            a(f"buffer_load_dwordx4 v{16+p}, s[{R_W}:{R_W+3}], s{S_A} offen offset:{p*1024} lds")
        a(f"s_add_u32 m0, s{S_B}, 4096\ns_nop 0\nbuffer_load_dwordx4 v20, s[{R_W}:{R_W+3}], s{S_A} offen lds")
        a(f"""
        s_add_u32 s{S_C}, s{S_C}, 8
        s_cmp_lt_u32 s{S_C}, 20
        s_cbranch_scc1 L_H_ld
        v_and_b32 v12, 15, v1
        v_lshrrev_b32 v13, 4, v1
        v_lshrrev_b32 v14, 2, v12
        v_lshl_add_u32 v14, v13, 2, v14
        v_mul_u32_u24 v14, 160, v14
        v_and_b32 v12, 3, v12
        v_lshl_add_u32 v14, v12, 3, v14
        v_lshlrev_b32 v15, 4, v1
        s_waitcnt vmcnt(0)
        s_barrier
        s_mov_b32 s{S_C}, s{S_WAVE}
        L_H_tr:
        s_lshr_b32 s{S_T0}, s{S_C}, 1
        s_mul_i32 s{S_T0}, s{S_T0}, 5
        s_and_b32 s{S_T0+1}, s{S_C}, 1
        s_lshl_b32 s{S_T0+1}, s{S_T0+1}, 1
        s_add_u32 s{S_T0}, s{S_T0}, s{S_T0+1}
        s_add_u32 s{S_T0+1}, s{S_T0}, 1
        s_mul_i32 s{S_T0+2}, s{S_C}, 10
        s_sub_u32 s{S_T0+2}, s{S_T0+2}, 156
        s_add_u32 s{S_T0+3}, s{S_T0+2}, 5
        s_cmp_lt_u32 s{S_C}, 16
        s_cselect_b32 s{S_T0}, s{S_T0}, s{S_T0+2}
        s_cselect_b32 s{S_T0+1}, s{S_T0+1}, s{S_T0+3}
        s_mul_i32 s{S_T0}, s{S_T0}, 2560
        s_mul_i32 s{S_T0+1}, s{S_T0+1}, 2560
        v_add_u32 v12, s{S_T0}, v14
        v_add_u32 v13, s{S_T0+1}, v14
        """)
        for b in range(5):
            a(f"ds_read_b64_tr_b16 {vr(24+4*b,2)}, v12 offset:{b*32}\nds_read_b64_tr_b16 {vr(26+4*b,2)}, v13 offset:{b*32}")
        a(f"""
        s_mul_i32 s{S_T0}, s{S_D}, {5*UW_ST}
        s_lshl_b32 s{S_T0+1}, s{S_C}, 10
        s_add_u32 s{S_T0}, s{S_T0}, s{S_T0+1}
        s_add_u32 s{S_T0}, s{S_T0}, {UW + 49152}
        """)
        for b in range(5):
            a(f"s_waitcnt lgkmcnt({8-2*b})")
            a(f"buffer_store_dwordx4 {vr(24+4*b,4)}, v15, s[{R_WS}:{R_WS+3}], s{S_T0} offen sc1")
            if b < 4:
                a(f"s_add_u32 s{S_T0}, s{S_T0}, {UW_ST}")
        a(f"""
        s_add_u32 s{S_C}, s{S_C}, 8
        s_cmp_lt_u32 s{S_C}, 20
        s_cbranch_scc1 L_H_tr
        s_waitcnt vmcnt(0)
        s_barrier
        """)
        skip = self.if_wave56()
        self.w2_setup()
        self.w2_prefill(8)
        a(f"s_branch L_F_loader\n{skip}:")
        a(f"s_cmp_lt_u32 s{S_WAVE}, 4\ns_cbranch_scc1 L_F_comp\ns_cmp_lg_u32 s{S_WAVE}, 7\ns_cbranch_scc1 L_F_u4")
        a(f"s_mul_i32 s{S_T0}, s{S_D}, {FS}\ns_add_u32 s{S_T0}, s{S_T0}, {F_WOT}")
        self.flag_store(S_T0, 12)
        a("s_branch L_F_poller")

    F_WOT_REG = 172

    def uw_srd(self):
        a = self.a
        a(f"""
        s_mul_i32 s{S_T0}, s{S_DTILE}, 5
        s_add_u32 s{S_D}, s{S_T0}, s{S_WAVE}
        s_mul_i32 s{S_T0}, s{S_D}, {UW_ST}
        s_add_u32 s{S_T0}, s{S_T0}, {UW}
        """)
        self.srd(R_P, P_WS, UW_ST, off_s=S_T0)

    def wot_preload(self, VL):
        a = self.a
        for k in range(20):
            if k % 4 == 0:
                a(f"s_mov_b32 s{S_C}, {49152 + k*1024}")
            a(f"buffer_load_dwordx4 {vr(self.F_WOT_REG+4*k,4)}, v{VL}, s[{R_P}:{R_P+3}], s{S_C} offen offset:{(k%4)*1024} sc1")

    def f0_barrier(self):
        lab = self.a.label("f0")
        self.a(f"s_cmp_eq_u32 s{S_FROMA}, 1\ns_cbranch_scc1 {lab}\ns_barrier\n{lab}:")

    def final(self):
        a = self.a
        a("L_F_comp:")
        if self.stop == "phase1":
            a("s_branch L_end")
        PF, WF, ACC, ACC4, U4, WOT = 64, 112, 144, 160, 164, 172
        NPF = 3
        pre = True
        VT, VL, VU4, VT2, GV, BV, VGH, VG8 = 8, 12, 13, 16, 20, 24, 28, 32
        self.uw_srd()
        self.srd(R_M, P_B2, 4096)
        self.srd(R_OUT, P_OUT, 2048 * 1280)
        self.tr_addr(4)
        a(f"""
        v_lshlrev_b32 v{VL}, 4, v1
        v_add_u32 v{VU4}, 0x20000, v{VL}
        v_lshlrev_b32 v5, 3, v1
        v_and_b32 v2, 15, v1
        v_lshlrev_b32 v3, 1, v2
        v_lshlrev_b32 v2, 2, v2
        """)
        SB = S_MSK
        for b in range(4):
            a(f"""
            s_add_u32 s{SB+b}, s{S_WAVE}, {b}
            s_and_b32 s{SB+b}, s{SB+b}, 3
            s_lshl_b32 s{S_T0}, s{SB+b}, 5
            v_xor_b32 v{VT+b}, s{S_T0}, v4
            s_lshl_b32 s{S_T0+1}, s{S_ST}, 7
            s_add_u32 s{S_T0}, s{S_T0}, s{S_T0+1}
            buffer_load_ushort v{BV+b}, v3, s[{R_M}:{R_M+3}], s{S_T0} offen
            v_add_u32 v{VT2+b}, 0x10000, v{VT+b}
            s_lshl_b32 s{S_T0}, s{SB+b}, 12
            v_add_u32 v{VG8+b}, s{S_T0}, v5
            s_add_u32 s{S_T0}, s{S_T0}, 0x10000
            v_add_u32 v{VGH+b}, s{S_T0}, v{VL}
            """)
        for r in range(16):
            a(f"v_mov_b32 v{ACC+r}, 0")
        for r in range(4):
            a(f"v_mov_b32 v{ACC4+r}, 0")
        a(f"s_lshl_b32 s{S_A}, s{S_ST}, 8\ns_add_u32 s{S_A}, s{S_A}, {G_OFF}")
        self.f_perm()
        nstream = 12 if pre else 17

        def next_sc(step):
            if step < 12:
                return self.perm_next(S_C, S_PERM, 4096)
            return f"s_mov_b32 s{S_C}, {step*4096}\n"
        a(f"s_cmp_eq_u32 s{S_FROMA}, 1\ns_cbranch_scc1 L_F_nowot\ns_barrier")
        self.wot_preload(VL)
        a("L_F_nowot:")
        a(next_sc(0))
        a("s_barrier")
        for t in range(NPF):
            for ks in range(4):
                a(f"buffer_load_dwordx4 {vr(PF+16*t+4*ks,4)}, v{VL}, s[{R_P}:{R_P+3}], s{S_C} offen offset:{ks*1024} sc1")
            a(next_sc(t + 1))
            if t == 0:
                a("s_barrier")
            if t == NPF - 1:
                for b in range(4):
                    a(f"s_lshl_b32 s{S_T0}, s{SB+b}, 6\ns_add_u32 s{S_T0}, s{S_T0}, s{S_A}")
                    a(f"buffer_load_dword v{GV+b}, v2, s[{R_WS}:{R_WS+3}], s{S_T0} offen sc1")

        mid = "s_nop 7\n"
        for b in range(4):
            mid += f"v_lshlrev_b32 v{BV+b}, 16, v{BV+b}\nv_sub_f32 v{GV+b}, 1.0, v{GV+b}\n"
        blocks = [(ACC + 4 * b, b) for b in range(4)] + [(ACC4, 0)]
        for r0, b in blocks:
            for k in range(4):
                mid += f"v_add_f32 v{r0+k}, v{BV+b}, v{r0+k}\n"
        for r0, b in blocks:
            for k in range(4):
                mid += f"v_mul_f32 v{r0+k}, v{GV+b}, v{r0+k}\n"
        mid += "s_nop 1\n"

        stages = []
        for t in range(17):
            slot = t % 8
            hi = slot >= 4
            uses = []
            for ks in range(4):
                for b in range(4):
                    g = ks * 4 + b
                    wb = WF + 4 * (g % 8)
                    reads = []
                    u4 = U4 + 4 * (ks & 1)
                    if b == 0:
                        reads.append((f"u{ks}", f"ds_read_b128 {vr(u4,4)}, v{VU4} offset:{slot*4096 + ks*1024}"))
                    if t < 12:
                        off = (slot & 3) * 16384 + ks * 4096
                        va = (VT2 if hi else VT) + b
                        reads += [(f"w{g}a", f"ds_read_b64_tr_b16 {vr(wb,2)}, v{va} offset:{off}"),
                                  (f"w{g}b", f"ds_read_b64_tr_b16 {vr(wb+2,2)}, v{va} offset:{off+2048}")]
                    elif t < 16:
                        assert hi
                        off = (slot & 3) * 16384 + ks * 1024
                        reads += [(f"w{g}b", f"ds_read_b128 {vr(wb,4)}, v{VGH+b} offset:{off}")]
                    else:
                        off = (slot & 3) * 16384 + ks * 1024
                        assert not hi
                        reads += [(f"w{g}a", f"ds_read_b64 {vr(wb,2)}, v{VG8+b} offset:{off}"),
                                  (f"w{g}b", f"ds_read_b64 {vr(wb+2,2)}, v{VG8+b} offset:{off+512}")]
                    acc = vr(ACC + 4 * b, 4)
                    ring = t < nstream
                    pf = vr(PF + 16 * (t % NPF) + 4 * ks, 4) if ring else vr(WOT + 16 * (t - 12) + 4 * ks, 4)
                    mf = [f"v_mfma_f32_16x16x32_bf16 {acc}, {pf}, {vr(wb,4)}, {acc}"]
                    if b == 0:
                        mf.append(f"v_mfma_f32_16x16x32_bf16 {vr(ACC4,4)}, {vr(u4,4)}, {vr(wb,4)}, {vr(ACC4,4)}")
                    d = dict(reads=reads, need=[f"w{g}b"], mf=mf)
                    if b == 0 and ring:
                        k = t * 4 + ks
                        n = min(k + 4 * NPF - 1, 4 * nstream - 1) - k
                        if t < NPF:
                            n += 4
                        d["vm"] = n
                    if b == 3 and t + NPF < nstream:
                        d["after"] = f"buffer_load_dwordx4 {pf}, v{VL}, s[{R_P}:{R_P+3}], s{S_C} offen offset:{ks*1024} sc1"
                        if ks == 3 and t + NPF + 1 < nstream:
                            d["after"] += "\n" + next_sc(t + NPF + 1)
                    if t == 12 and g == 0:
                        d["before"] = mid
                    uses.append(d)
            stages.append(dict(uses=uses, bar="s_barrier" if t else ""))
        nd = self.o.get("nodrain")
        LF = self.o.get("LF", 6)
        self.pipeline(stages, LF, (16 - LF) if nd else 13, drain=not nd, wait_every=self.o.get('we', 2))
        self.stamp(8, 2)
        a(f"""
        v_and_b32 v2, 15, v1
        v_mul_u32_u24 v2, 1280, v2
        v_lshrrev_b32 v3, 4, v1
        v_lshl_add_u32 v2, v3, 3, v2
        s_mul_i32 s{S_A}, s{S_ST}, {64*1280}
        s_lshl_b32 s{S_T0+1}, s{S_D}, 5
        s_add_u32 s{S_B}, s{S_A}, s{S_T0+1}
        s_mul_i32 s{S_T0+1}, s{S_DTILE}, 160
        s_add_u32 s{S_A}, s{S_A}, s{S_T0+1}
        s_add_u32 s{S_A}, s{S_A}, 128
        """)
        for r, b in blocks:
            a(f"s_mul_i32 s{S_T0}, s{SB+b}, {16*1280}\ns_add_u32 s{S_T0}, s{S_T0}, s{S_A if r == ACC4 else S_B}")
            a(f"v_cvt_pk_bf16_f32 v{r}, v{r}, v{r+1}\nv_cvt_pk_bf16_f32 v{r+1}, v{r+2}, v{r+3}")
            a(f"buffer_store_dwordx2 {vr(r,2)}, v2, s[{R_OUT}:{R_OUT+3}], s{S_T0} offen {['', 'sc1', 'nt', 'sc0 sc1'][self.o.get('osc', 0)]}")
        if self.stamps or self.o.get("dbg"):
            a("s_waitcnt vmcnt(0)")
            self.stamp(9, 2)
        if self.o.get("calib"):
            a(f"""
            L_cal:
            s_memrealtime s[96:97]
            s_waitcnt lgkmcnt(0)
            s_sub_u32 s96, s96, s98
            s_cmp_lt_u32 s96, {self.o.get("calib")*100}
            s_cbranch_scc1 L_cal
            """)
        a(f"s_or_b32 s{S_T0}, s2, s{S_WAVE}\ns_cmp_lg_u32 s{S_T0}, 0\ns_cbranch_scc1 L_end\ns_mov_b32 s{S_T0}, 0")
        self.flag_store(S_T0, 4)
        a("s_branch L_end")

        a("L_F_u4:")
        if self.stop == "phase1":
            a("s_branch L_end")
        a(f"""
        v_lshlrev_b32 v{VL}, 4, v1
        s_mul_i32 s{S_C}, s{S_DTILE}, {5*UW_ST}
        s_add_u32 s{S_C}, s{S_C}, {UW + 4*UW_ST}
        """)
        self.f_perm()
        self.f0_barrier()
        a("s_barrier")

        def u4_issue(iv):
            if iv < 12:
                a(self.perm_next(S_T0, S_PERM, 4096) + f"s_mov_b32 m0, {0x20000 + (iv % 8)*4096:#x}\ns_add_u32 s{S_T0}, s{S_T0}, s{S_C}")
            else:
                a(f"s_mov_b32 m0, {0x20000 + (iv % 8)*4096:#x}\ns_add_u32 s{S_T0}, s{S_C}, {iv*4096}")
            for i in range(4):
                a(f"buffer_load_dwordx4 v{VL}, s[{R_WS}:{R_WS+3}], s{S_T0} offen offset:{i*1024} sc1 lds")
        order = []
        for iv in range(8):
            u4_issue(iv)
            order.append(iv)
            if iv == 2:
                a("s_waitcnt vmcnt(8)\ns_barrier")
        for tb in range(1, 17):
            a(f"s_waitcnt vmcnt({4*len(order[order.index(tb)+1:])})\ns_barrier")
            iv = tb + (6 if self.o.get("nodrain") else 7)
            if 8 <= iv <= 16:
                u4_issue(iv)
                order.append(iv)
        a("s_branch L_end")

        a("L_F_loader:")
        if self.stop == "phase1":
            a("s_branch L_end")
        a(f"v_lshlrev_b32 v{VL}, 4, v1")
        self.f0_barrier()
        a("s_barrier")
        a(f"""
        s_sub_u32 s{S_T0}, s{S_WAVE}, 5
        s_lshl_b32 s{S_T0}, s{S_T0}, 1
        s_lshl_b32 s{S_T0+1}, s{S_ST}, 2
        s_add_u32 s{S_T0+1}, s{S_T0+1}, s{S_T0}
        s_mul_i32 s{S_C}, s{S_T0+1}, {GO_ST}
        s_add_u32 s{S_C}, s{S_C}, {GO}
        s_lshl_b32 s{S_D}, s{S_T0}, 12
        """)
        order = list(range(8))
        for tb in range(17):
            after = [x for x in order[order.index(tb) + 1:]]
            n = 8 * len(after)
            a(f"s_waitcnt vmcnt({min(n,63)})\ns_barrier")
            t = tb - 1
            tw = t - (1 if self.o.get("nodrain") else 0)
            if 0 <= tw <= 3:
                self.w2_issue()
                order.append(tw + 8)
            if 8 <= t <= 12:
                iv = t + 4
                g = iv - 12
                for s2 in range(2):
                    a(f"s_add_u32 m0, s{S_D}, {(iv % 8)*16384 + s2*4096}\ns_add_u32 s{S_T0}, s{S_C}, {s2*GO_ST + g*4096}")
                    for i in range(4):
                        a(f"buffer_load_dwordx4 v{VL}, s[{R_WS}:{R_WS+3}], s{S_T0} offen offset:{i*1024} sc1 lds")
                order.append(iv)
        a("s_branch L_end")
        a("L_F_poller:")
        if self.stop == "phase1":
            a("s_branch L_end")
        a(f"s_cmp_eq_u32 s{S_FROMA}, 1\ns_cbranch_scc1 L_F_pnowot")
        a(f"s_mul_i32 s{S_T0}, s{S_DTILE}, {FS}\ns_add_u32 s{S_T0}, s{S_T0}, {F_WOT}\nv_mov_b32 v2, s{S_T0}")
        self.poll([2], 4)
        a("s_barrier\nL_F_pnowot:")
        a(f"""
        s_mul_i32 s{S_T0}, s{S_DTILE}, 5
        s_lshr_b32 s{S_T0+1}, s{S_T0}, 3
        s_add_u32 s{S_T0}, s{S_T0}, 4
        s_lshr_b32 s{S_T0}, s{S_T0}, 3
        s_mul_i32 s{S_T0}, s{S_T0}, 24
        s_mul_i32 s{S_T0+1}, s{S_T0+1}, 24
        v_and_b32 v2, 31, v1
        v_min_u32 v2, 23, v2
        v_add_u32 v3, s{S_T0}, v2
        v_add_u32 v2, s{S_T0+1}, v2
        v_cmp_gt_u32 vcc, 32, v1
        s_mul_i32 s{S_T0}, s{S_DTILE}, {FS}
        s_add_u32 s{S_T0}, s{S_T0}, {F_WOT}
        v_cndmask_b32 v2, v2, v3, vcc
        v_mul_u32_u24 v2, {FS}, v2
        v_add_u32 v2, {F_U}, v2
        v_mov_b32 v3, s{S_T0}
        v_cmp_eq_u32 vcc, 63, v1
        s_nop 1
        v_cndmask_b32 v2, v2, v3, vcc
        """)
        self.poll([2], 4)
        self.stamp(6, 4)
        a("s_barrier")
        a(f"""
        v_and_b32 v2, 7, v1
        s_lshr_b32 s{S_T0}, s{S_ST}, 1
        s_lshl_b32 s{S_T0}, s{S_T0}, 3
        v_add_u32 v2, s{S_T0}, v2
        v_mul_u32_u24 v2, {FS}, v2
        v_add_u32 v2, {F_GO}, v2
        """)
        gp = self.o.get("gopoll", 9)
        for tb in range(gp):
            a("s_barrier")
            if tb == 1:
                a(f"s_cmp_eq_u32 s{S_FROMA}, 1\ns_cbranch_scc0 L_F_nogo")
                a(f"s_lshl_b32 s{S_T0}, s{S_MT}, 3\ns_add_u32 s{S_T0}, s{S_T0}, s{S_HG}\ns_mul_i32 s{S_T0}, s{S_T0}, {FS}\ns_add_u32 s{S_T0}, s{S_T0}, {F_GO}")
                self.flag_store(S_T0, 6)
                a("L_F_nogo:")
            self.stamp(32 + tb, 4)
        self.poll([2], 4)
        self.stamp(7, 4)
        for tb in range(gp, 17):
            a("s_barrier")
            self.stamp(32 + tb, 4)
        a("L_end:")
        if self.stamps:
            a(f"""
            s_lshl_b32 s{S_T0}, s2, 3
            s_add_u32 s{S_T0}, s{S_T0}, s{S_WAVE}
            s_lshl_b32 s{S_T0}, s{S_T0}, 9
            s_add_u32 s{S_T0}, s{S_T0}, {STAMP}
            v_lshlrev_b32 v2, 3, v1
            buffer_store_dwordx2 v[254:255], v2, s[{R_WS}:{R_WS+3}], s{S_T0} offen
            """)
        a("L_exit:\ns_endpgm")

    def build(self, header):
        a = self.a
        self.prologue()
        self.role_a()
        self.role_b()
        self.helper()
        self.final()
        body = a.text()
        out = header
        out += f"; @launch grid=(256,1,1) block=(512,1,1) lds={LDS_BYTES}\n"
        out += f'.amdgcn_target "amdgcn-amd-amdhsa--gfx950"\n.text\n.globl {KNAME}\n.p2align 8\n.type {KNAME},@function\n{KNAME}:\n'
        out += body
        out += f""".section .rodata,"a"
.p2align 6
.amdhsa_kernel {KNAME}
  .amdhsa_next_free_vgpr 256
  .amdhsa_next_free_sgpr 102
  .amdhsa_accum_offset 256
  .amdhsa_group_segment_fixed_size 0
  .amdhsa_kernarg_size 96
  .amdhsa_user_sgpr_count 2
  .amdhsa_user_sgpr_kernarg_segment_ptr 1
  .amdhsa_system_sgpr_workgroup_id_x 1
  .amdhsa_float_denorm_mode_32 3
.end_amdhsa_kernel
"""
        return out


def header():
    ref = open("gated_mix__linear_attn_block__mixer_token_mlp__prompt.s.ref").read().split("\n")
    h = []
    for l in ref:
        if l.startswith("; Override"):
            break
        h.append(l)
    return "\n".join(h) + "\n"


if __name__ == "__main__":
    import argparse
    p = argparse.ArgumentParser()
    p.add_argument("-o", default="gated_mix__linear_attn_block__mixer_token_mlp__prompt.s")
    p.add_argument("--stamps", action="store_true")
    p.add_argument("--stop", default=None)
    p.add_argument("--opt", default="")
    args = p.parse_args()
    opts = {k: (int(v) if v != '' else 1) for k, _, v in (x.partition('=') for x in args.opt.split(',') if x)}
    g = Gen(stamps=args.stamps, stop=args.stop, opts=opts)
    open(args.o, "w").write(g.build(header()))
    print("wrote", args.o)
```

```python
import sys

KNAME = "gated_mix__linear_attn_block__mixer_token_mlp__prompt_kernel"

import os
FS = int(os.environ.get('FS', 128))
F_LN, F_KV, F_U, F_GO, F_WOT = 0x1000, 0x5000, 0x9000, 0xD000, 0x11000
G_OFF = 0x12000
STAMP = 0x900000
KVP = 0x20000
KVP_ST = 7168
HT = 0x100000
UW = 0x380000
UW_ST = 69632
GO = 0x640000
GO_ST = 20480
WS_USED = 0xA00000
TAG_INC = 0x9E3779B9
SPIN_LIMIT = 1 << 17

LDS_BYTES = 163840
LNBUF = 0
LN_ST = 1312
LNG = LNBUF + 32 * LN_ST
A_SLOT = 49152
A_WOFF = 16384
EXCH_ST = 14336
EXCH = 131072 - 4 * EXCH_ST
KVT = 147456
ZH = KVT + 11 * 1024

LOG2E = 0x3FB8AA3B


def f2u(x):
    import struct
    return struct.unpack("<I", struct.pack("<f", x))[0]


class Asm:
    def __init__(self):
        self.L = []
        self.nlab = 0

    def __call__(self, s):
        for line in s.split("\n"):
            line = line.strip()
            if line:
                self.L.append(("    " if not line.endswith(":") else "") + line)

    def label(self, base):
        self.nlab += 1
        return f"L{base}_{self.nlab}"

    def text(self):
        return "\n".join(self.L) + "\n"


def vr(a, n=1):
    return f"v{a}" if n == 1 else f"v[{a}:{a+n-1}]"


def sr(a, n=1):
    return f"s{a}" if n == 1 else f"s[{a}:{a+n-1}]"


P_X, P_WQKV, P_WO, P_BX, P_W1, P_B1, P_W2, P_B2 = 4, 6, 8, 10, 12, 14, 16, 18
P_GATE, P_OUT, P_DBG, P_WS = 20, 22, 24, 26
S_TAG, S_WAVE = 28, 29
S_XCD, S_J = 30, 31
R_WS, R_X, R_W, R_P, R_W2, R_M, R_OUT = 32, 36, 40, 44, 48, 52, 56
S_T0 = 60
S_MT, S_HG, S_DT, S_FT, S_KST, S_PAR = 70, 71, 72, 73, 74, 75
S_ST, S_DTILE = 76, 77
S_CNT = 78
S_A, S_B, S_C, S_D = 80, 81, 82, 83
S_MSK = 84
S_K0 = 90
S_STMP = 96
S_PERM = 66
S_M = 79
S_FROMA = 95


def lead_perm(n, nshare, m, lead=2):
    order = list(range(n))
    i = m
    while i + lead < n:
        order[i:i + lead + 1] = [order[i + lead]] + order[i:i + lead]
        i += nshare
    return order


class Gen:
    def __init__(self, stamps=False, stop=None, opts=None):
        self.o = opts or {}
        self.a = Asm()
        self.stamps = stamps
        self.stop = stop

    def srd(self, dst, ptr, nbytes, off_s=None):
        a = self.a
        if off_s is None:
            a(f"s_mov_b32 s{dst}, s{ptr}\ns_and_b32 s{dst+1}, s{ptr+1}, 0xffff")
        else:
            a(f"s_add_u32 s{dst}, s{ptr}, s{off_s}\ns_addc_u32 s{dst+1}, s{ptr+1}, 0\ns_and_b32 s{dst+1}, s{dst+1}, 0xffff")
        a(f"s_mov_b32 s{dst+2}, {nbytes:#x}\ns_mov_b32 s{dst+3}, 0x20000")

    def stamp(self, k, vtmp, dyn=None):
        if self.o.get("dbg"):
            m = {0: 0, 11: 1, 1: 2, 2: 3, 3: 4, 4: 5, 6: 6, 9: 7}
            mA = {0: 0, 1: 1, 2: 2, 3: 3, 4: 4, 5: 5, 6: 6, 9: 7}
            if dyn is not None:
                return
            a = self.a
            for wg, mp, base in ((8, m, 0), (12, mA, 8)):
                if k in mp:
                    lab = a.label("nd")
                    a(f"s_cmp_lg_u32 s2, {wg}\ns_cbranch_scc1 {lab}")
                    a(f"s_memrealtime s[{S_STMP}:{S_STMP+1}]\ns_waitcnt lgkmcnt(0)")
                    a(f"v_mov_b32 v{vtmp}, s{S_STMP}\nv_mov_b32 v{vtmp+2}, {4*(base+mp[k])}")
                    a(f"s_mov_b64 exec, 1\nglobal_store_dword v{vtmp+2}, v{vtmp}, s[{P_DBG}:{P_DBG+1}]\ns_mov_b64 exec, -1\n{lab}:")
            return
        if not self.stamps:
            return
        a = self.a
        a(f"s_memrealtime s[{S_STMP}:{S_STMP+1}]\ns_memtime s[100:101]")
        ln = str(k)
        if dyn is not None:
            a(f"s_add_u32 m0, s{dyn}, {k}")
            ln = "m0"
        a(f"s_waitcnt lgkmcnt(0)\nv_writelane_b32 v254, s{S_STMP}, {ln}\nv_writelane_b32 v255, s100, {ln}")

    def perm_setup(self, s_m, n, nshare, dst, enable):
        a = self.a
        def pk(o):
            v = 0
            for i, x in enumerate(o):
                v |= x << (4 * i)
            return v & 0xffffffff, v >> 32
        lo, hi = pk(list(range(n)))
        a(f"s_mov_b32 s{dst}, {lo:#x}\ns_mov_b32 s{dst+1}, {hi:#x}")
        if not enable:
            return
        for m in range(nshare):
            lo, hi = pk(lead_perm(n, nshare, m, enable))
            a(f"s_cmp_eq_u32 s{s_m}, {m}\ns_cselect_b32 s{dst}, {lo:#x}, s{dst}\ns_cselect_b32 s{dst+1}, {hi:#x}, s{dst+1}")

    def perm_next(self, dst, src, mul):
        t = f"s_and_b32 s{dst}, s{src}, 15\ns_lshr_b64 s[{src}:{src+1}], s[{src}:{src+1}], 4\n"
        if mul & (mul - 1) == 0:
            t += f"s_lshl_b32 s{dst}, s{dst}, {mul.bit_length()-1}\n"
        else:
            t += f"s_mul_i32 s{dst}, s{dst}, {mul}\n"
        return t

    def poll(self, voffs, vtmp):
        a = self.a
        lp, dn = a.label("poll"), a.label("pdone")
        n = len(voffs)

        def ld(k):
            for i, vo in enumerate(voffs):
                a(f"buffer_load_dword v{vtmp+k*n+i}, v{vo}, s[{R_WS}:{R_WS+3}], 0 offen sc1")

        def chk(k):
            a(f"v_cmp_ne_u32 vcc, s{S_TAG}, v{vtmp+k*n}")
            for i in range(1, n):
                a(f"v_cmp_ne_u32 s[{S_T0}:{S_T0+1}], s{S_TAG}, v{vtmp+k*n+i}\ns_nop 1\ns_or_b64 vcc, vcc, s[{S_T0}:{S_T0+1}]")
            a(f"s_nop 1\ns_cmp_eq_u64 vcc, 0\ns_cbranch_scc1 {dn}")
        if not self.o.get("pp"):
            a(f"s_mov_b32 s{S_CNT}, 0\n{lp}:")
            ld(0)
            a("s_waitcnt vmcnt(0)")
            chk(0)
            a(f"s_add_u32 s{S_CNT}, s{S_CNT}, 1\ns_cmp_lt_u32 s{S_CNT}, {SPIN_LIMIT}\ns_cbranch_scc0 {dn}\ns_sleep 1\ns_branch {lp}\n{dn}:")
            return
        sl = f"s_sleep {self.o['pp'] - 1}\n" if self.o["pp"] > 1 else ""
        a(f"s_mov_b32 s{S_CNT}, 0")
        ld(0)
        a(f"{sl}{lp}:")
        ld(1)
        a(f"s_waitcnt vmcnt({n})")
        chk(0)
        ld(0)
        a(f"s_waitcnt vmcnt({n})")
        chk(1)
        a(f"s_add_u32 s{S_CNT}, s{S_CNT}, 1\ns_cmp_lt_u32 s{S_CNT}, {SPIN_LIMIT}\ns_cbranch_scc1 {lp}\n{dn}:")

    def flag_store(self, s_off, vtmp):
        a = self.a
        a(f"v_mov_b32 v{vtmp}, s{S_TAG}\nv_mov_b32 v{vtmp+1}, 0\ns_mov_b64 exec, 1")
        a(f"buffer_store_dword v{vtmp}, v{vtmp+1}, s[{R_WS}:{R_WS+3}], s{s_off} offen sc1\ns_mov_b64 exec, -1")

    def pipeline(self, stages, L, gstar, drain=True, wait_every=2):
        a = self.a
        seq = [(si, gi, u) for si, st in enumerate(stages) for gi, u in enumerate(st["uses"])]
        issued = []
        state = dict(nxt=0, opened=-1)
        pend = []

        def collect(lim):
            while state["nxt"] < len(seq) and state["nxt"] <= lim and seq[state["nxt"]][0] <= state["opened"]:
                si_, _, u_ = seq[state["nxt"]]
                for name, txt in u_["reads"]:
                    pend.append((f"{si_}:{name}", txt))
                state["nxt"] += 1
                if seq[state["nxt"] - 1][1] == len(stages[si_]["uses"]) - 1 and si_ + 1 < len(stages):
                    state["defer"] = list(stages[si_ + 1].get("pre", []))

        def emit(n):
            for _ in range(min(n, len(pend))):
                name, txt = pend.pop(0)
                a(txt)
                if name:
                    issued.append(name)

        a(stages[0]["bar"])
        state["opened"] = 0
        collect(L - 1)
        emit(len(pend))
        n_real = sum(len(st["uses"]) for st in stages if not st.get("virtual"))
        covered = -1
        for f in range(n_real):
            si, gi, u = seq[f]
            nuse = len(stages[si]["uses"])
            if gi == 0 and stages[si].get("head"):
                assert not pend, pend
                a(stages[si]["head"])
                covered = -1
            if gi == gstar and si + 1 < len(stages):
                emit(len(pend))
                for x in state.pop("defer", []):
                    a(x)
                if drain:
                    a("s_waitcnt lgkmcnt(0)")
                    covered = len(issued) - 1
                a(stages[si + 1]["bar"])
                pend.extend((None, x) for x in stages[si + 1].get("bar_pend", []))
                state["opened"] = si + 1
                collect(f + L - 1)
            def lastidx(ff):
                s_, _, uu = seq[ff]
                return max(len(issued) - 1 - issued[::-1].index(f"{s_}:{nm}") for nm in uu["need"])
            w = []
            if lastidx(f) > covered:
                tgt = lastidx(f)
                for ff in range(f + 1, min(f + wait_every, n_real)):
                    if seq[ff][0] != si:
                        break
                    try:
                        tgt = max(tgt, lastidx(ff))
                    except ValueError:
                        break
                n = len(issued) - 1 - tgt
                assert n <= 15, n
                w.append(f"lgkmcnt({n})")
                covered = tgt
            if u.get("vm") is not None:
                npv = sum(1 for nm_, t_ in pend if t_.strip().startswith("buffer_load"))
                w.insert(0, f"vmcnt({u['vm'] - npv})")
            if w:
                a("s_waitcnt " + " ".join(w))
            if u.get("before"):
                a(u["before"])
            if state.get("defer") and not pend:
                n_ = self.o.get("npre", 7)
                pend.extend((None, x) for x in state["defer"][:n_])
                state["defer"] = state["defer"][n_:]
            collect(f + L)
            if state.get("mix"):
                k_ = state.pop("mix")
                head_, rest_ = pend[:k_], pend[k_:]
                pend[:] = [x for pr in zip(head_, rest_) for x in pr] + head_[len(rest_):] + rest_[len(head_):]
            nm_ = len(u["mf"])
            for k, m in enumerate(u["mf"]):
                a(m)
                left = nm_ - k
                if drain and gi >= gstar:
                    left += sum(len(uu["mf"]) for uu in stages[si]["uses"][gi + 1:])
                    extra = 2 * (nuse - 1 - gi)
                    emit(-(-(len(pend) + extra) // left) if left > 1 else len(pend))
                else:
                    emit(-(-len(pend) // left))
            if u.get("after"):
                items = [x for x in u["after"].split("\n") if x.strip()]
                if gi == nuse - 1:
                    for x in items:
                        a(x)
                else:
                    assert not pend
                    pend.extend((None, x) for x in items)
                    state["mix"] = len(items)
            if gi == nuse - 1 and stages[si].get("tail"):
                a(stages[si]["tail"])

    def prologue(self):
        a = self.a
        a(f"""
        s_cmp_ge_u32 s2, 256
        s_cbranch_scc1 L_exit
        {"v_mov_b32 v254, 0" if self.stamps else ""}
        {"v_mov_b32 v255, 0" if self.stamps else ""}
        {"s_memrealtime s[98:99]" if self.o.get("calib") else ""}
        s_load_dwordx16 s[4:19], s[0:1], 0
        s_load_dwordx8 s[20:27], s[0:1], 64
        v_and_b32 v1, 63, v0
        v_lshrrev_b32 v2, 6, v0
        s_and_b32 s{S_XCD}, s2, 7
        v_readfirstlane_b32 s{S_WAVE}, v2
        s_lshr_b32 s{S_J}, s2, 3
        s_waitcnt lgkmcnt(0)
        s_load_dword s{S_TAG}, s[{P_WS}:{P_WS+1}], 0
        """)
        self.srd(R_WS, P_WS, WS_USED)
        self.srd(R_X, P_X, 2048 * 1280)
        self.srd(R_W2, P_W2, 1536 * 4096)
        if self.stamps or self.o.get("dbg"):
            a(f"s_cmp_lg_u32 s{S_WAVE}, 0\ns_cbranch_scc1 L_nost0")
            self.stamp(0, 4)
            a("L_nost0:")
        if self.o.get("pf_code"):
            self.code_prefetch()
        if self.o.get("prio"):
            a(f"""
            s_sub_u32 s{S_T0}, s{S_WAVE}, 4
            s_cmp_lt_u32 s{S_T0}, 3
            s_cbranch_scc1 L_noprio
            s_setprio 3
            L_noprio:
            """)
        a(f"""
        s_lshr_b32 s{S_T0}, s{S_XCD}, 1
        s_lshl_b32 s{S_T0}, s{S_T0}, 3
        s_lshr_b32 s{S_ST}, s{S_J}, 2
        s_add_u32 s{S_ST}, s{S_ST}, s{S_T0}
        s_and_b32 s{S_T0}, s{S_XCD}, 1
        s_lshl_b32 s{S_T0}, s{S_T0}, 2
        s_and_b32 s{S_DTILE}, s{S_J}, 3
        s_add_u32 s{S_DTILE}, s{S_DTILE}, s{S_T0}
        s_cmp_lt_u32 s{S_XCD}, 4
        s_cbranch_scc1 L_roleB
        """)

    V_W2 = 240

    def f_perm(self):
        a = self.a
        a(f"s_lshl_b32 s{S_M}, s{S_DTILE}, 1\ns_add_u32 s{S_M}, s{S_M}, s{S_ST}\ns_and_b32 s{S_M}, s{S_M}, 7")
        self.perm_setup(S_M, 12, 8, S_PERM, self.o.get("rotF"))

    def w2_setup(self):
        a = self.a
        V = self.V_W2
        self.f_perm()
        a(f"""
        v_lshrrev_b32 v{V}, 3, v1
        v_lshrrev_b32 v{V+1}, 4, v1
        v_lshlrev_b32 v{V+1}, 1, v{V+1}
        v_and_b32 v{V+2}, 7, v1
        v_xor_b32 v{V+1}, v{V+1}, v{V+2}
        v_lshlrev_b32 v{V+1}, 4, v{V+1}
        v_lshl_add_u32 v{V}, v{V}, 12, v{V+1}
        v_add_u32 v{V+1}, {32768-1024}, v{V}
        v_add_u32 v{V+2}, {2*(32768-1024)}, v{V}
        v_add_u32 v{V+3}, {3*(32768-1024)}, v{V}
        s_sub_u32 s{S_T0}, s{S_WAVE}, 5
        s_lshl_b32 s{S_B}, s{S_T0}, 13
        s_lshl_b32 s{S_A}, s{S_T0}, 18
        s_lshl_b32 s{S_T0}, s{S_ST}, 7
        s_add_u32 s{S_A}, s{S_A}, s{S_T0}
        """)

    def w2_issue(self):
        a = self.a
        V = self.V_W2
        a(self.perm_next(S_T0, S_PERM, 128 * 4096))
        a(f"s_add_u32 s{S_T0}, s{S_T0}, s{S_A}")
        for g in range(2):
            a(f"s_add_u32 m0, s{S_B}, {g*4096}")
            a(f"s_add_u32 s{S_T0}, s{S_T0}, {g*4*32768}")
            for i in range(4):
                a(f"buffer_load_dwordx4 v{V+i}, s[{R_W2}:{R_W2+3}], s{S_T0} offen offset:{i*1024} lds")
        a(f"s_add_u32 s{S_B}, s{S_B}, 16384\ns_and_b32 s{S_B}, s{S_B}, 0x1ffff")

    def w2_prefill(self, n):
        if n == 0:
            return
        a = self.a
        lp = a.label("pf")
        a(f"s_mov_b32 s{S_C}, 0\n{lp}:")
        self.w2_issue()
        a(f"s_add_u32 s{S_C}, s{S_C}, 1\ns_cmp_lt_u32 s{S_C}, {n}\ns_cbranch_scc1 {lp}")

    def if_wave56(self):
        a = self.a
        skip = a.label("n56")
        a(f"s_sub_u32 s{S_T0}, s{S_WAVE}, 5\ns_cmp_lt_u32 s{S_T0}, 2\ns_cbranch_scc0 {skip}")
        return skip

    def role_a(self):
        a = self.a
        a(f"L_roleA:\ns_mov_b32 s{S_FROMA}, 1")
        a(f"s_sub_u32 s{S_MT}, s{S_ST}, 16\ns_mov_b32 s{S_HG}, s{S_DTILE}")
        a(f"s_cmp_ge_u32 s{S_WAVE}, 4\ns_cbranch_scc1 L_A_loader")
        ACC, XF, WF, VXA, VWA = 128, 96, 64, 4, 6
        if self.o.get("ta1") or self.o.get("ta2"):
            self.start_prefetch()
        self.a_thread_map()
        a(f"""
        v_and_b32 v16, 15, v1
        v_lshrrev_b32 v17, 4, v1
        s_lshl_b32 s{S_T0}, s{S_WAVE}, 5
        v_add_u32 v18, s{S_T0}, v16
        v_lshrrev_b32 v19, 1, v16
        v_xor_b32 v19, v17, v19
        v_lshlrev_b32 v19, 4, v19
        v_lshl_add_u32 v{VXA}, v18, 7, v19
        v_xor_b32 v{VXA+1}, 64, v{VXA}
        v_lshrrev_b32 v18, 2, v16
        v_lshl_add_u32 v19, v17, 3, v18
        v_and_b32 v20, 1, v17
        v_lshl_or_b32 v20, v20, 2, v18
        v_lshlrev_b32 v19, 9, v19
        v_lshl_add_u32 v19, v20, 5, v19
        v_and_b32 v20, 3, v16
        v_lshl_add_u32 v19, v20, 3, v19
        v_add_u32 v{VWA}, {A_WOFF}, v19
        """)
        for n in range(1, 8):
            a(f"v_xor_b32 v{VWA+n}, {n<<5}, v{VWA}")
        for r in range(120):
            a(f"v_mov_b32 v{ACC+r}, 0")
        a(f"s_mov_b32 s{S_A}, 0\ns_mov_b32 s{S_B}, 0\ns_mov_b32 s{S_C}, {A_SLOT}\ns_waitcnt lgkmcnt(0)")
        a(f"s_add_u32 s{S_TAG}, s{S_TAG}, {TAG_INC:#x}")

        RING = 6
        D = 6

        def mk_stage(bar, virtual=False, head=None, tail=None):
            uses = []
            for g in range(30):
                ks, n = divmod(g, 15)
                wb = WF + 4 * (g % RING)
                reads = []
                if g == 0:
                    for rb in range(2):
                        reads.append((f"x0{rb}", f"ds_read_b128 {vr(XF+4*rb,4)}, v{VXA} offset:{rb*2048}"))
                if g == 13:
                    for rb in range(2):
                        reads.append((f"x1{rb}", f"ds_read_b128 {vr(XF+8+4*rb,4)}, v{VXA+1} offset:{rb*2048}"))
                off = ks * 16384 + (n >> 3) * 256
                reads.append((f"w{g}a", f"ds_read_b64_tr_b16 {vr(wb,2)}, v{VWA+(n&7)} offset:{off}"))
                reads.append((f"w{g}b", f"ds_read_b64_tr_b16 {vr(wb+2,2)}, v{VWA+(n&7)} offset:{off+2048}"))
                need = [f"w{g}b", f"x{ks}1"]
                mf = []
                for rb in range(2):
                    acc = vr(ACC + (n * 2 + rb) * 4, 4)
                    xf = vr(XF + ks * 8 + rb * 4, 4)
                    wf = vr(wb, 4)
                    if n < 5:
                        mf.append(f"v_mfma_f32_16x16x32_bf16 {acc}, {wf}, {xf}, {acc}")
                    else:
                        mf.append(f"v_mfma_f32_16x16x32_bf16 {acc}, {xf}, {wf}, {acc}")
                uses.append(dict(reads=reads, need=need, mf=mf))
            return dict(uses=uses, bar=bar, virtual=virtual, head=head, tail=tail)

        adv = "s_barrier"
        pre = [f"s_add_u32 s{S_B}, s{S_B}, 1", f"s_cmp_eq_u32 s{S_B}, 3", f"s_cselect_b32 s{S_B}, 0, s{S_B}",
               f"s_cselect_b32 s{S_T0}, {(-2*A_SLOT) & 0xffffffff:#x}, s{S_C}"]
        pre += [f"v_add_u32 v{r}, s{S_T0}, v{r}" for r in range(VXA, VWA + 8)]
        tail = f"s_add_u32 s{S_A}, s{S_A}, 1\ns_cmp_lt_u32 s{S_A}, 10\ns_cbranch_scc1 L_A_loop"
        head = "L_A_loop:\n"
        bar0 = "s_barrier"
        if self.o.get("tw2") == 2:
            self.srd(R_P, P_WO, 640 * 1280)
            a(f"""
            v_lshlrev_b32 v252, 7, v1
            s_lshl_b32 s{S_T0}, s{S_MT}, 3
            s_add_u32 s{S_T0}, s{S_T0}, s{S_HG}
            s_lshl_b32 s{S_T0}, s{S_T0}, 2
            s_add_u32 s{S_T0}, s{S_T0}, s{S_WAVE}
            s_mul_i32 s{S_D}, s{S_T0}, 12288
            s_add_u32 s{S_KST}, s{S_D}, 8192
            s_mul_i32 s{S_PAR}, s{S_T0}, 1664
            s_and_b32 s{S_M}, s{S_J}, 7
            s_add_u32 s{S_M}, s{S_M}, {self.o.get("tw2at", 1)}
            """)
            head += f"""
            s_cmp_lg_u32 s{S_A}, s{S_M}
            s_cbranch_scc1 L_A_nt2
            buffer_load_dword v253, v252, s[{R_W2}:{R_W2+3}], s{S_D} offen
            s_mov_b32 exec_hi, 0
            buffer_load_dword v253, v252, s[{R_W2}:{R_W2+3}], s{S_KST} offen
            s_mov_b32 exec_lo, 0x1fff
            buffer_load_dword v253, v252, s[{R_P}:{R_P+3}], s{S_PAR} offen
            s_mov_b64 exec, -1
            L_A_nt2:
            """
        ta2 = self.o.get("ta2")
        if ta2 == 1:
            a(self.pf_rest())
        elif ta2 == 2:
            bar0 += "\n" + self.pf_rest()
        elif ta2:
            head += f"s_cmp_lg_u32 s{S_A}, {ta2-2}\ns_cbranch_scc1 L_A_npf\n" + self.pf_rest() + "L_A_npf:\n"
        self.pipeline([mk_stage(bar0, head=head, tail=tail), dict(mk_stage(adv, virtual=True), pre=pre)], 5, 30 - 3, wait_every=self.o.get('we', 2))
        self.stamp(2, 16)
        PK, VV, ONES, KVD, ZD = 16, 36, 56, 64, 116
        a("s_waitcnt lgkmcnt(0)\ns_nop 7")
        a(f"s_mov_b32 s{S_K0}, {LOG2E:#x}\ns_mov_b32 s{S_K0+1}, {LOG2E:#x}\ns_mov_b32 s{S_K0+2}, {f2u(1e-6):#x}")

        def phi(base, n, t):
            for i in range(0, n, 4):
                r = base + i
                a(f"v_pk_mul_f32 {vr(t,2)}, {vr(r,2)}, s[{S_K0}:{S_K0+1}]")
                a(f"v_pk_mul_f32 {vr(t+2,2)}, {vr(r+2,2)}, s[{S_K0}:{S_K0+1}]")
                for k in range(4):
                    a(f"v_exp_f32_e64 v{t+k}, v{t+k} clamp")
                for k in range(4):
                    a(f"v_max_f32 v{r+k}, s{S_K0+2}, v{r+k}")
                a(f"v_pk_add_f32 {vr(r,2)}, {vr(r,2)}, {vr(t,2)}")
                a(f"v_pk_add_f32 {vr(r+2,2)}, {vr(r+2,2)}, {vr(t+2,2)}")

        def pack(dst, src0, src1):
            a(f"v_cvt_pk_bf16_f32 v{dst}, v{src0}, v{src0+1}\nv_cvt_pk_bf16_f32 v{dst+1}, v{src0+2}, v{src0+3}")
            if src1 is None:
                a(f"v_mov_b32 v{dst+2}, 0\nv_mov_b32 v{dst+3}, 0")
            else:
                a(f"v_cvt_pk_bf16_f32 v{dst+2}, v{src1}, v{src1+1}\nv_cvt_pk_bf16_f32 v{dst+3}, v{src1+2}, v{src1+3}")

        for b in range(5):
            pack(VV + 4 * b, ACC + (10 + b) * 8, ACC + (10 + b) * 8 + 4)
        for k in range(4):
            a(f"v_mov_b32 v{ONES+k}, 0x3f803f80")
        phi(ACC + 40, 40, 60)
        for b in range(5):
            pack(PK + 4 * b, ACC + (5 + b) * 8, ACC + (5 + b) * 8 + 4)
        a("s_nop 1")
        ZD = ACC + 80
        blocks = [(x, y) for x in range(5) for y in range(5) if abs(x - y) <= 1]
        for (x, y) in blocks:
            a(f"v_mfma_f32_16x16x32_bf16 {vr(KVD+4*(2*x+y),4)}, {vr(PK+4*x,4)}, {vr(VV+4*y,4)}, 0")
        for x in range(5):
            a(f"v_mfma_f32_16x16x32_bf16 {vr(ZD+4*x,4)}, {vr(ONES,4)}, {vr(PK+4*x,4)}, 0")
        a(f"""
        s_mul_i32 s{S_T0}, s{S_WAVE}, {EXCH_ST}
        s_add_u32 s{S_T0}, s{S_T0}, {EXCH}
        v_lshlrev_b32 v60, 4, v1
        v_add_u32 v60, s{S_T0}, v60
        v_and_b32 v61, 15, v1
        v_lshlrev_b32 v61, 2, v61
        v_add_u32 v61, s{S_T0}, v61
        s_nop 3
        """)
        for i in range(13):
            a(f"ds_write_b128 v60, {vr(KVD+4*i,4)} offset:{i*1024}")
        for x in range(5):
            a(f"ds_write_b32 v61, v{ZD+4*x} offset:{13312+64*x}")
        a("s_waitcnt lgkmcnt(0)\ns_barrier")
        self.a_reduce_publish(64)
        a("s_waitcnt vmcnt(0)\ns_barrier")
        PQ = 16
        phi(ACC, 40, 60)
        for ts in range(3):
            for rb in range(2):
                pack(PQ + (ts * 2 + rb) * 4, ACC + (2 * ts * 2 + rb) * 4, None if ts == 2 else ACC + ((2 * ts + 1) * 2 + rb) * 4)
        self.uw_srd()
        a("v_lshlrev_b32 v60, 4, v1\ns_barrier")
        self.wot_preload(60)
        a("s_barrier")
        a(f"""
        v_and_b32 v63, 15, v1
        v_lshlrev_b32 v63, 2, v63
        s_lshl_b32 s{S_T0}, s{S_MT}, 7
        s_lshl_b32 s{S_T0+1}, s{S_WAVE}, 5
        s_add_u32 s{S_T0}, s{S_T0}, s{S_T0+1}
        s_lshl_b32 s{S_T0}, s{S_T0}, 2
        s_add_u32 s{S_T0}, s{S_T0}, {G_OFF}
        buffer_load_dword v62, v63, s[{R_WS}:{R_WS+3}], s{S_T0} offen sc1
        buffer_load_dword v61, v63, s[{R_WS}:{R_WS+3}], s{S_T0} offen offset:64 sc1
        """)
        self.a_gather(64)
        a("s_waitcnt lgkmcnt(0)\ns_barrier")
        self.stamp(4, 40)
        FR = 64
        a("v_lshlrev_b32 v60, 4, v1\nv_add_u32 v60, " + str(KVT) + ", v60")
        used = [0, 2, 3, 4, 5, 7, 8, 9, 10, 11, 12, 13]
        for f in used:
            a(f"ds_read_b128 {vr(FR+4*f,4)}, v60 offset:{f*1024}")
        NUM, DEN = 128, 120
        kts = {0: [0], 1: [0, 1], 2: [0, 1], 3: [1, 2], 4: [1, 2]}
        a(f"""
        v_lshrrev_b32 v40, 4, v1
        v_cmp_gt_u32 s[{S_MSK}:{S_MSK+1}], 1, v40
        v_cmp_gt_u32 s[{S_MSK+2}:{S_MSK+3}], 2, v40
        v_cmp_gt_u32 s[{S_MSK+4}:{S_MSK+5}], 3, v40
        s_waitcnt lgkmcnt(0)
        """)
        for rb in range(2):
            for ts in range(3):
                c = "0" if ts == 0 else vr(DEN + 4 * rb, 4)
                a(f"v_mfma_f32_16x16x32_bf16 {vr(DEN+4*rb,4)}, {vr(FR+4*(11+ts),4)}, {vr(PQ+(ts*2+rb)*4,4)}, {c}")
        for rb in range(2):
            for b in range(5):
                for i, ts in enumerate(kts[b]):
                    d = vr(NUM + (rb * 5 + b) * 4, 4)
                    c = "0" if i == 0 else d
                    a(f"v_mfma_f32_16x16x32_bf16 {d}, {vr(FR+4*(2*b+ts),4)}, {vr(PQ+(ts*2+rb)*4,4)}, {c}")
        for rb in range(2):
            for h in range(4):
                a(f"v_add_f32 v{DEN+4*rb+h}, s{S_K0+2}, v{DEN+4*rb+h}")
        for rb in range(2):
            for h in range(4):
                a(f"v_rcp_f32 v{DEN+4*rb+h}, v{DEN+4*rb+h}")
        a("s_nop 0")
        gv = {0: 62, 1: 61}
        for rb in range(2):
            for h in range(4):
                a(f"v_mul_f32 v{DEN+4*rb+h}, v{gv[rb]}, v{DEN+4*rb+h}")
        a(f"""
        s_lshl_b32 s{S_T0}, s{S_MT}, 3
        s_lshl_b32 s{S_T0+1}, s{S_WAVE}, 1
        s_add_u32 s{S_T0}, s{S_T0}, s{S_T0+1}
        s_mul_i32 s{S_T0}, s{S_T0}, {GO_ST}
        s_add_u32 s{S_T0}, s{S_T0}, {GO}
        s_lshl_b32 s{S_T0+1}, s{S_HG}, 11
        s_add_u32 s{S_T0+1}, s{S_T0+1}, s{S_T0}
        s_lshl_b32 s{S_T0+2}, s{S_HG}, 9
        s_add_u32 s{S_T0+2}, s{S_T0+2}, s{S_T0}
        s_add_u32 s{S_T0+2}, s{S_T0+2}, 16384
        v_lshlrev_b32 v40, 4, v1
        v_lshlrev_b32 v41, 3, v1
        """)
        for rb in range(2):
            d = DEN + 4 * rb
            a(f"v_cndmask_b32 v44, v{d+1}, v{d}, s[{S_MSK}:{S_MSK+1}]")
            a(f"v_cndmask_b32 v45, v{d+2}, v{d+1}, s[{S_MSK+2}:{S_MSK+3}]")
            a(f"v_cndmask_b32 v46, v{d+3}, v{d+2}, s[{S_MSK+4}:{S_MSK+5}]")
            sc = [d, 44, 45, 46, d + 3]
            for b in range(5):
                for k in range(4):
                    r = NUM + (rb * 5 + b) * 4 + k
                    a(f"v_mul_f32 v{r}, v{sc[b]}, v{r}")
            o = 16 + rb * 12
            n0 = NUM + rb * 20
            pack(o, n0, n0 + 4)
            pack(o + 4, n0 + 8, n0 + 12)
            a(f"v_cvt_pk_bf16_f32 v{o+8}, v{n0+16}, v{n0+17}\nv_cvt_pk_bf16_f32 v{o+9}, v{n0+18}, v{n0+19}")
            a(f"buffer_store_dwordx4 {vr(o,4)}, v40, s[{R_WS}:{R_WS+3}], s{S_T0+1} offen sc1")
            a(f"buffer_store_dwordx4 {vr(o+4,4)}, v40, s[{R_WS}:{R_WS+3}], s{S_T0+1} offen offset:1024 sc1")
            a(f"buffer_store_dwordx2 {vr(o+8,2)}, v41, s[{R_WS}:{R_WS+3}], s{S_T0+2} offen sc1")
            if rb == 0:
                a(f"s_add_u32 s{S_T0+1}, s{S_T0+1}, {GO_ST}\ns_add_u32 s{S_T0+2}, s{S_T0+2}, {GO_ST}")
        self.stamp(5, 40)
        a("s_branch L_F_comp")

        a("L_A_loader:")
        VX, VW = 4, 8
        self.srd(R_W, P_WQKV, 640 * 3840)
        a(f"""
        s_sub_u32 s{S_D}, s{S_WAVE}, 4
        v_lshrrev_b32 v16, 3, v1
        v_lshrrev_b32 v17, 4, v1
        v_and_b32 v18, 7, v1
        v_xor_b32 v17, v17, v18
        v_lshlrev_b32 v17, 4, v17
        v_mul_u32_u24 v16, 1280, v16
        v_add_u32 v{VX}, v16, v17
        v_xor_b32 v18, 64, v{VX}
        v_add_u32 v{VX+1}, {8*1280-1024}, v18
        v_add_u32 v{VX+2}, {2*(8*1280-1024)}, v{VX}
        v_add_u32 v{VX+3}, {3*(8*1280-1024)}, v18
        s_lshl_b32 s{S_T0}, s{S_MT}, 7
        s_lshl_b32 s{S_T0+1}, s{S_D}, 5
        s_add_u32 s{S_T0}, s{S_T0}, s{S_T0+1}
        s_mul_i32 s{S_A}, s{S_T0}, 1280
        s_lshl_b32 s{S_C}, s{S_D}, 12
        """)
        def issue_x():
            a(f"s_mov_b32 m0, s{S_C}\ns_nop 0")
            for i in range(4):
                a(f"buffer_load_dwordx4 v{VX+i}, s[{R_X}:{R_X+3}], s{S_A} offen offset:{i*1024} lds")
            a(f"s_add_u32 s{S_A}, s{S_A}, 128")

        def issue_w():
            for g in range(2):
                a(f"s_lshl_b32 s{S_T0}, s{S_D}, 12\ns_add_u32 s{S_T0}, s{S_T0}, s{S_C}\ns_add_u32 m0, s{S_T0}, {A_WOFF + g*4096}\ns_nop 0")
                for i in range(4):
                    a(f"buffer_load_dwordx4 v{VW+4*g+i}, s[{R_W}:{R_W+3}], s{S_B} offen offset:{i*1024} lds")
            a(f"s_add_u32 s{S_B}, s{S_B}, {64*3840}")

        def next_slot():
            a(f"s_add_u32 s{S_C}, s{S_C}, {A_SLOT}\ns_cmp_ge_u32 s{S_C}, {3*A_SLOT}\ns_cselect_b32 s{S_T0}, {3*A_SLOT}, 0\ns_sub_u32 s{S_C}, s{S_C}, s{S_T0}")

        issue_x()
        a(f"""
        v_lshrrev_b32 v16, 5, v1
        v_bfe_u32 v17, v1, 1, 4
        v_and_b32 v18, 1, v1
        v_lshlrev_b32 v18, 4, v18
        v_mul_u32_u24 v19, 3840, v16
        v_add_u32 v18, v18, v19
        """)
        for i in (0, 1, 4, 5):
            sig = (2 * (i & 1)) | ((i >> 2) << 2)
            a(f"""
            v_or_b32 v19, {sig}, v16
            v_xor_b32 v19, v17, v19
            v_min_u32 v19, 14, v19
            v_mul_u32_u24 v20, 13, v19
            v_lshrrev_b32 v20, 6, v20
            v_mul_u32_u24 v20, 1120, v20
            v_lshl_add_u32 v19, v19, 5, v20
            v_add_u32 v19, v19, v18
            v_add_u32 v{VW+i}, {2*i*3840 - (i&3)*1024}, v19
            v_add_u32 v{VW+i+2}, {2*(i+2)*3840 - ((i+2)&3)*1024}, v19
            """)
        a(f"""
        s_mul_i32 s{S_B}, s{S_HG}, 160
        s_mul_i32 s{S_T0}, s{S_D}, {16*3840}
        s_add_u32 s{S_B}, s{S_B}, s{S_T0}
        """)
        issue_w()
        for _ in range(2):
            next_slot()
            issue_x()
            issue_w()
        a(f"v_lshlrev_b32 v16, 4, v1\ns_lshl_b32 s{S_T0}, s{S_D}, 12\ns_add_u32 s{S_T0}, s{S_T0}, {KVT}\nv_add_u32 v16, s{S_T0}, v16")
        a("v_mov_b32 v20, 0\nv_mov_b32 v21, 0\nv_mov_b32 v22, 0\nv_mov_b32 v23, 0")
        for i in range(4):
            a(f"ds_write_b128 v16, v[20:23] offset:{i*1024}")
        a(f"s_waitcnt lgkmcnt(0)\ns_add_u32 s{S_TAG}, s{S_TAG}, {TAG_INC:#x}")
        a("s_waitcnt vmcnt(24)\ns_barrier")
        self.stamp(1, 16)
        a(f"s_mov_b32 s{S_CNT}, 1\nL_A_lloop:")
        a("s_waitcnt vmcnt(12)\ns_barrier")
        self.stamp(16, 16, dyn=S_CNT)
        next_slot()
        issue_x()
        issue_w()
        a(f"s_add_u32 s{S_CNT}, s{S_CNT}, 1\ns_cmp_le_u32 s{S_CNT}, 7\ns_cbranch_scc1 L_A_lloop")
        tw = 3 if self.o.get("tw2") == 1 else 0
        a(f"s_waitcnt vmcnt(12)\ns_barrier")
        if tw:
            self.w2_touch()
        self.stamp(24, 16)
        a(f"s_waitcnt vmcnt({tw})\ns_barrier")
        self.stamp(25, 16)
        a("s_barrier")
        self.stamp(26, 16)
        nA0 = self.o.get("nA0", 4)
        self.w2_setup()
        skip0 = self.if_wave56()
        self.w2_prefill(nA0)
        a(f"{skip0}:")
        self.a_thread_map()
        a("s_barrier")
        a(f"s_cmp_eq_u32 s{S_WAVE}, 7\ns_cbranch_scc1 L_A_poller")
        self.a_reduce_publish(64)
        a("s_waitcnt vmcnt(0)\ns_barrier")
        skip = self.if_wave56()
        a("s_nop 7\ns_nop 7")
        self.w2_prefill(8 - nA0)
        a("s_barrier\ns_barrier")
        self.a_gather(64)
        a("s_waitcnt lgkmcnt(0)\ns_barrier")
        a("s_branch L_F_loader")
        a(f"{skip}:\ns_barrier\ns_barrier")
        self.a_gather(64)
        a("s_waitcnt lgkmcnt(0)\ns_barrier")
        a("s_branch L_F_u4")
        a("L_A_poller:\ns_barrier")
        a(f"s_lshl_b32 s{S_T0}, s{S_HG}, 4\ns_add_u32 s{S_T0}, s{S_T0}, s{S_MT}\ns_mul_i32 s{S_T0}, s{S_T0}, {FS}\ns_add_u32 s{S_T0}, s{S_T0}, {F_KV}")
        self.flag_store(S_T0, 16)
        self.stamp(3, 16)
        a(f"s_mul_i32 s{S_T0}, s{S_DTILE}, {FS}\ns_add_u32 s{S_T0}, s{S_T0}, {F_WOT}\nv_mov_b32 v16, s{S_T0}")
        self.poll([16], 18)
        a("s_barrier")
        a(f"""
        v_and_b32 v16, 15, v1
        s_lshl_b32 s{S_T0}, s{S_HG}, 4
        v_add_u32 v16, s{S_T0}, v16
        v_mul_u32_u24 v16, {FS}, v16
        v_add_u32 v16, {F_KV}, v16
        v_and_b32 v17, 3, v1
        s_lshl_b32 s{S_T0}, s{S_MT}, 2
        v_add_u32 v17, s{S_T0}, v17
        v_mul_u32_u24 v17, {FS}, v17
        v_add_u32 v17, {F_LN}, v17
        v_cmp_gt_u32 vcc, 32, v1
        s_nop 1
        v_cndmask_b32 v16, v17, v16, vcc
        """)
        self.poll([16], 18)
        self.stamp(13, 16)
        a("s_barrier\ns_barrier")
        a("s_branch L_F_poller")

    def start_prefetch(self):
        a = self.a
        self.srd(R_W, P_WQKV, 640 * 3840)
        a(f"""
        s_lshl_b32 s{S_T0}, s{S_J}, 2
        s_add_u32 s{S_T0}, s{S_T0}, s{S_WAVE}
        v_lshrrev_b32 v16, 2, v1
        v_and_b32 v17, 3, v1
        v_mul_u32_u24 v16, 1280, v16
        v_lshl_add_u32 v16, v17, 7, v16
        s_lshr_b32 s{S_T0+2}, s{S_MT}, 3
        s_lshl_b32 s{S_T0+2}, s{S_T0+2}, 7
        s_add_u32 s{S_T0+2}, s{S_T0+2}, s{S_T0}
        s_mul_i32 s{S_DT}, s{S_T0+2}, {8*1280}
        v_lshrrev_b32 v19, 4, v1
        v_and_b32 v17, 15, v1
        v_min_u32 v17, 14, v17
        v_mul_u32_u24 v18, 13, v17
        v_lshrrev_b32 v18, 6, v18
        v_mul_u32_u24 v18, 640, v18
        v_lshl_add_u32 v18, v17, 7, v18
        v_mul_u32_u24 v19, 3840, v19
        v_add_u32 v112, v18, v19
        s_lshr_b32 s{S_T0+2}, s{S_HG}, 2
        s_mul_i32 s{S_T0+2}, s{S_T0+2}, 640
        s_mul_i32 s{S_FT}, s{S_T0}, {2*3840}
        s_add_u32 s{S_FT}, s{S_FT}, s{S_T0+2}
        """)
        if self.o.get("ta1"):
            a(f"""
            s_mov_b32 exec_hi, 0
            buffer_load_dword v253, v112, s[{R_W}:{R_W+3}], s{S_FT} offen
            buffer_load_dword v253, v16, s[{R_X}:{R_X+3}], s{S_DT} offen
            s_mov_b32 exec_hi, -1
            """)
        a(f"""
        s_mul_i32 s{S_FT}, s{S_T0}, {3*3840}
        s_add_u32 s{S_FT}, s{S_FT}, s{S_T0+2}
        s_add_u32 s{S_FT}, s{S_FT}, {256*3840}
        v_lshrrev_b32 v16, 3, v1
        v_and_b32 v17, 7, v1
        v_min_u32 v17, 5, v17
        v_mul_u32_u24 v16, 1280, v16
        v_lshl_add_u32 v113, v17, 7, v16
        s_add_u32 s{S_DT}, s{S_DT}, 512
        """)

    def pf_rest(self):
        return f"""s_mov_b32 exec_hi, 0xffff
        buffer_load_dword v253, v112, s[{R_W}:{R_W+3}], s{S_FT} offen
        s_mov_b32 exec_hi, -1
        buffer_load_dword v253, v113, s[{R_X}:{R_X+3}], s{S_DT} offen
        """

    def w2_touch(self):
        a = self.a
        self.srd(R_W2, P_W2, 1536 * 4096)
        a(f"""
        v_lshlrev_b32 v48, 7, v1
        s_lshl_b32 s{S_T0}, s{S_MT}, 3
        s_add_u32 s{S_T0}, s{S_T0}, s{S_HG}
        s_lshl_b32 s{S_T0}, s{S_T0}, 2
        s_add_u32 s{S_T0}, s{S_T0}, s{S_D}
        s_mul_i32 s{S_T0}, s{S_T0}, 12288
        buffer_load_dword v253, v48, s[{R_W2}:{R_W2+3}], s{S_T0} offen
        s_add_u32 s{S_T0}, s{S_T0}, 8192
        s_mov_b32 exec_hi, 0
        buffer_load_dword v253, v48, s[{R_W2}:{R_W2+3}], s{S_T0} offen
        """)
        self.srd(R_P, P_WO, 640 * 1280)
        a(f"""
        s_lshl_b32 s{S_T0}, s{S_MT}, 3
        s_add_u32 s{S_T0}, s{S_T0}, s{S_HG}
        s_lshl_b32 s{S_T0}, s{S_T0}, 2
        s_add_u32 s{S_T0}, s{S_T0}, s{S_D}
        s_mul_i32 s{S_T0}, s{S_T0}, 1664
        s_mov_b32 exec_lo, 0x1fff
        buffer_load_dword v253, v48, s[{R_P}:{R_P+3}], s{S_T0} offen
        s_mov_b64 exec, -1
        """)

    def code_prefetch(self):
        a = self.a
        a(f"""
        s_cmp_lg_u32 s{S_WAVE}, 3
        s_cbranch_scc1 L_nocpf
        s_cmp_ge_u32 s{S_J}, 4
        s_cbranch_scc1 L_nocpf
        s_getpc_b64 s[{S_T0}:{S_T0+1}]
        L_pcref:
        s_lshl_b32 s{S_T0+2}, s{S_J}, 13
        v_lshlrev_b32 v4, 7, v1
        v_add_u32 v4, s{S_T0+2}, v4
        v_min_u32 v4, L_end-L_pcref, v4
        global_load_dword v253, v4, s[{S_T0}:{S_T0+1}]
        L_nocpf:
        """)

    def a_thread_map(self):
        a = self.a
        a(f"""
        v_mul_u32_u24 v16, 625, v0
        v_lshrrev_b32 v16, 16, v16
        v_mul_u32_u24 v17, 105, v16
        v_sub_u32 v17, v0, v17
        v_mul_u32_u24 v18, 205, v17
        v_lshrrev_b32 v18, 10, v18
        v_mul_u32_u24 v19, 5, v18
        v_sub_u32 v19, v17, v19
        v_mad_u32_u24 v19, v16, 5, v19
        v_mad_u32_u24 v20, v16, 20, v18
        v_lshrrev_b32 v21, 2, v19
        v_and_b32 v22, 3, v19
        v_lshrrev_b32 v23, 4, v20
        v_and_b32 v20, 15, v20
        v_lshl_add_u32 v20, v22, 4, v20
        v_lshl_add_u32 v2, v21, 1, v23
        v_lshlrev_b32 v2, 6, v2
        v_add_u32 v2, v2, v20
        v_lshlrev_b32 v2, 4, v2
        v_lshlrev_b32 v3, 4, v19
        v_add_u32 v3, 13312, v3
        v_cmp_lt_u32 vcc, 99, v17
        v_lshrrev_b32 v24, 1, v21
        v_and_b32 v21, 1, v21
        v_cndmask_b32 v2, v2, v3, vcc
        v_lshl_add_u32 v3, v23, 1, v24
        v_add_u32 v24, 11, v24
        v_lshl_add_u32 v22, v22, 4, v16
        v_cndmask_b32 v3, v3, v24, vcc
        v_cndmask_b32 v20, v20, v22, vcc
        v_lshl_add_u32 v3, v3, 6, v20
        v_lshlrev_b32 v3, 4, v3
        v_lshl_add_u32 v3, v21, 3, v3
        v_add_u32 v3, {KVT}, v3
        v_mov_b32 v25, 2
        v_cndmask_b32 v25, 1, v25, vcc
        v_mov_b32 v16, 420
        v_cmp_gt_u32 vcc, v16, v0
        v_lshlrev_b32 v14, 4, v0
        s_nop 0
        v_cndmask_b32 v15, 0, v25, vcc
        v_cndmask_b32 v2, 0, v2, vcc
        v_add_u32 v2, {EXCH}, v2
        """)

    def a_reduce_publish(self, T):
        a = self.a
        for w in range(4):
            a(f"ds_read_b128 {vr(T+4*w,4)}, v2 offset:{w*EXCH_ST}")
        a(f"""
        s_lshl_b32 s{S_T0}, s{S_HG}, 4
        s_add_u32 s{S_T0}, s{S_T0}, s{S_MT}
        s_mul_i32 s{S_T0}, s{S_T0}, {KVP_ST}
        s_add_u32 s{S_T0}, s{S_T0}, {KVP}
        v_cmp_ne_u32 vcc, 0, v15
        s_waitcnt lgkmcnt(0)
        v_pk_add_f32 {vr(T,2)}, {vr(T,2)}, {vr(T+4,2)}
        v_pk_add_f32 {vr(T+2,2)}, {vr(T+2,2)}, {vr(T+6,2)}
        v_pk_add_f32 {vr(T+8,2)}, {vr(T+8,2)}, {vr(T+12,2)}
        v_pk_add_f32 {vr(T+10,2)}, {vr(T+10,2)}, {vr(T+14,2)}
        v_pk_add_f32 {vr(T,2)}, {vr(T,2)}, {vr(T+8,2)}
        v_pk_add_f32 {vr(T+2,2)}, {vr(T+2,2)}, {vr(T+10,2)}
        s_mov_b64 exec, vcc
        buffer_store_dwordx4 {vr(T,4)}, v14, s[{R_WS}:{R_WS+3}], s{S_T0} offen sc1
        s_mov_b64 exec, -1
        """)

    def a_gather(self, T, extra=0, hook=None):
        a = self.a
        a(f"s_mul_i32 s{S_T0+1}, s{S_HG}, {16*KVP_ST}\ns_add_u32 s{S_T0+1}, s{S_T0+1}, {KVP}")
        rot = self.o.get("rotG")
        if rot:
            a(f"s_lshl_b32 s{S_T0+2}, s{S_MT}, 1")
        else:
            a(f"s_mov_b32 s{S_T0+2}, 0")
        a("v_cmp_ne_u32 vcc, 0, v15\ns_nop 1\ns_mov_b64 exec, vcc")
        for m in range(16):
            a(f"s_and_b32 s{S_T0+2}, s{S_T0+2}, 15\ns_mul_i32 s{S_T0}, s{S_T0+2}, {KVP_ST}\ns_add_u32 s{S_T0}, s{S_T0}, s{S_T0+1}\ns_add_u32 s{S_T0+2}, s{S_T0+2}, 1")
            a(f"buffer_load_dwordx4 {vr(T+4*m,4)}, v14, s[{R_WS}:{R_WS+3}], s{S_T0} offen sc1")
        a("s_mov_b64 exec, -1")
        if hook:
            hook()
        for m in range(0, 16, 2):
            a(f"s_waitcnt vmcnt({14-m+extra})")
            for h in (0, 2):
                a(f"v_pk_add_f32 {vr(T+4*m+h,2)}, {vr(T+4*m+h,2)}, {vr(T+4*(m+1)+h,2)}")
            if m >= 2:
                for h in (0, 2):
                    a(f"v_pk_add_f32 {vr(T+h,2)}, {vr(T+h,2)}, {vr(T+4*m+h,2)}")
        a(f"""
        v_cvt_pk_bf16_f32 v{T}, v{T}, v{T+1}
        v_cvt_pk_bf16_f32 v{T+1}, v{T+2}, v{T+3}
        v_cmp_ne_u32 vcc, 0, v15
        v_cmp_eq_u32 s[{S_T0}:{S_T0+1}], 2, v15
        s_nop 1
        s_mov_b64 exec, vcc
        ds_write_b64 v3, {vr(T,2)}
        s_mov_b64 exec, s[{S_T0}:{S_T0+1}]
        ds_write_b64 v3, {vr(T,2)} offset:64
        ds_write_b64 v3, {vr(T,2)} offset:128
        ds_write_b64 v3, {vr(T,2)} offset:192
        s_mov_b64 exec, -1
        """)

    def role_b(self):
        a = self.a
        a(f"L_roleB:\ns_mov_b32 s{S_FROMA}, 0")
        XR, B1R, GR, XS = 16, 36, 64, 84
        VPF = 8
        a(f"s_cmp_ge_u32 s{S_J}, 16\ns_cbranch_scc1 L_B_pfrole")
        a(f"""
        s_lshl_b32 s{S_KST}, s{S_XCD}, 4
        s_add_u32 s{S_KST}, s{S_KST}, s{S_J}
        s_lshl_b32 s{S_T0}, s{S_KST}, 3
        s_add_u32 s{S_T0}, s{S_T0}, s{S_WAVE}
        s_mul_i32 s{S_T0}, s{S_T0}, {4*1280}
        v_lshrrev_b32 v2, 4, v1
        v_and_b32 v3, 15, v1
        v_lshlrev_b32 v3, 4, v3
        v_mul_u32_u24 v4, 1280, v2
        v_add_u32 v4, v4, v3
        """)
        for c in range(5):
            a(f"buffer_load_dwordx4 {vr(XR+4*c,4)}, v4, s[{R_X}:{R_X+3}], s{S_T0} offen offset:{c*256}")
        self.srd(R_M, P_GATE, 1280)
        for c in range(5):
            a(f"buffer_load_dwordx4 {vr(GR+4*c,4)}, v3, s[{R_M}:{R_M+3}], 0 offen offset:{c*256}")

        def common_setup():
            a(f"""
            s_mul_i32 s{S_M}, s{S_J}, 205
            s_lshr_b32 s{S_M}, s{S_M}, 10
            s_mul_i32 s{S_DT}, s{S_M}, 5
            s_sub_u32 s{S_DT}, s{S_J}, s{S_DT}
            s_mul_i32 s{S_FT}, s{S_XCD}, 6
            s_add_u32 s{S_FT}, s{S_FT}, s{S_M}
            """)
            self.srd(R_OUT, P_B1, 3072)
            a(f"v_lshrrev_b32 v5, 4, v1\nv_lshlrev_b32 v5, 3, v5\ns_lshl_b32 s{S_T0}, s{S_FT}, 7")
            for b in range(4):
                a(f"buffer_load_dwordx2 {vr(B1R+2*b,2)}, v5, s[{R_OUT}:{R_OUT+3}], s{S_T0} offen offset:{b*32}")
            a(f"""
            v_lshrrev_b32 v12, 3, v1
            v_lshrrev_b32 v13, 4, v1
            v_lshlrev_b32 v13, 1, v13
            v_and_b32 v14, 7, v1
            v_xor_b32 v13, v13, v14
            v_lshlrev_b32 v13, 4, v13
            v_mul_u32_u24 v12, 3072, v12
            v_add_u32 v{VPF}, v12, v13
            v_add_u32 v{VPF+1}, {8*3072-1024}, v{VPF}
            v_add_u32 v{VPF+2}, {2*(8*3072-1024)}, v{VPF}
            v_add_u32 v{VPF+3}, {3*(8*3072-1024)}, v{VPF}
            """)
            self.perm_setup(S_M, 16, 6, S_PERM, self.o.get("rotB"))

        self.srd(R_W, P_W1, 2048 * 3072)
        common_setup()
        a("v_mov_b32 v124, 0\nv_mov_b32 v125, 0\nv_mov_b32 v126, 0x3f803f80\ns_waitcnt vmcnt(4)")
        self.stamp(11, 44)
        for c in range(20):
            a(f"v_dot2c_f32_bf16 v124, v{XR+c}, v126")
        for c in range(20):
            a(f"v_dot2c_f32_bf16 v125, v{XR+c}, v{GR+c}")
        for c in range(20):
            a(f"v_lshlrev_b32 v{XS+2*c}, 16, v{XR+c}\nv_and_b32 v{XS+2*c+1}, 0xffff0000, v{XR+c}")

        def reduce16(regs):
            for mode in ("quad_perm:[1,0,3,2]", "quad_perm:[2,3,0,1]", "row_half_mirror", "row_mirror"):
                for r in regs:
                    a(f"v_add_f32_dpp v{r}, v{r}, v{r} {mode} row_mask:0xf bank_mask:0xf")
                a("s_nop 1" if len(regs) == 1 else "s_nop 0")

        reduce16([124, 125])
        a(f"""
        v_mul_f32 v126, {f2u(-1.0/640):#x}, v124
        v_mul_f32 v127, {f2u(-1.0/640):#x}, v124
        v_mul_f32 v125, {f2u(-1.4426950408889634):#x}, v125
        v_mov_b32 v128, 0
        v_mov_b32 v129, 0
        v_mov_b32 v130, 0
        v_mov_b32 v131, 0
        v_exp_f32 v125, v125
        """)
        for c in range(20):
            a(f"v_pk_add_f32 {vr(XS+2*c,2)}, {vr(XS+2*c,2)}, v[126:127]")
        a("v_add_f32 v125, 1.0, v125\nv_rcp_f32 v125, v125")
        for c in range(20):
            t = 128 + 2 * (c & 1)
            a(f"v_pk_fma_f32 {vr(t,2)}, {vr(XS+2*c,2)}, {vr(XS+2*c,2)}, {vr(t,2)}")
        a("v_pk_add_f32 v[128:129], v[128:129], v[130:131]\nv_add_f32 v128, v128, v129\ns_nop 1")
        reduce16([128])
        a(f"v_mov_b32 v126, {f2u(1e-5):#x}\nv_fmac_f32 v126, {f2u(1.0/640):#x}, v128\nv_rsq_f32 v126, v126")
        a(f"""
        s_lshl_b32 s{S_T0}, s{S_WAVE}, 2
        v_add_u32 v2, s{S_T0}, v2
        v_mov_b32 v127, v126
        v_mul_u32_u24 v4, {LN_ST}, v2
        v_add_u32 v4, v4, v3
        v_lshlrev_b32 v2, 2, v2
        """)
        for c4 in range(5):
            for c in range(4 * c4, 4 * c4 + 4):
                a(f"v_pk_mul_f32 {vr(XS+2*c,2)}, {vr(XS+2*c,2)}, v[126:127]")
            for c in range(4 * c4, 4 * c4 + 4):
                a(f"v_cvt_pk_bf16_f32 v{XR+c}, v{XS+2*c}, v{XS+2*c+1}")
            a(f"ds_write_b128 v4, {vr(XR+4*c4,4)} offset:{LNBUF + c4*256}")
        a(f"ds_write_b32 v2, v125 offset:{LNG}")
        a(f"""
        v_and_b32 v12, 15, v1
        v_lshrrev_b32 v13, 4, v1
        v_lshrrev_b32 v15, 2, v12
        v_lshl_add_u32 v15, v13, 2, v15
        v_mul_u32_u24 v15, {LN_ST}, v15
        v_and_b32 v2, 3, v12
        v_lshl_add_u32 v15, v2, 3, v15
        s_mul_i32 s{S_T0}, s{S_WAVE}, 160
        v_add_u32 v15, s{S_T0}, v15
        v_lshlrev_b32 v14, 4, v1
        v_lshlrev_b32 v2, 2, v1
        s_mul_i32 s{S_T0}, s{S_WAVE}, {5*65536}
        s_lshl_b32 s{S_T0+1}, s{S_KST}, 10
        s_add_u32 s{S_T0}, s{S_T0}, s{S_T0+1}
        s_add_u32 s{S_T0}, s{S_T0}, {HT}
        s_waitcnt lgkmcnt(0)
        s_add_u32 s{S_TAG}, s{S_TAG}, {TAG_INC:#x}
        s_barrier
        """)
        self.stamp(12, 44)
        for i in range(5):
            a(f"ds_read_b64_tr_b16 {vr(44+4*i,2)}, v15 offset:{LNBUF + i*32}")
            a(f"ds_read_b64_tr_b16 {vr(46+4*i,2)}, v15 offset:{LNBUF + i*32+16*LN_ST}")
        a(f"ds_read_b32 v125, v2 offset:{LNG}")
        for i in range(5):
            a(f"s_waitcnt lgkmcnt({9-2*i})")
            a(f"buffer_store_dwordx4 {vr(44+4*i,4)}, v14, s[{R_WS}:{R_WS+3}], s{S_T0} offen sc1")
            if i < 4:
                a(f"s_add_u32 s{S_T0}, s{S_T0}, 65536")
        a(f"""
        s_cmp_lg_u32 s{S_WAVE}, 0
        s_cbranch_scc1 L_B_nog
        s_lshl_b32 s{S_T0}, s{S_KST}, 7
        s_add_u32 s{S_T0}, s{S_T0}, {G_OFF}
        s_waitcnt lgkmcnt(0)
        s_mov_b32 exec_hi, 0
        buffer_store_dword v125, v2, s[{R_WS}:{R_WS+3}], s{S_T0} offen sc1
        s_mov_b32 exec_hi, -1
        L_B_nog:
        s_waitcnt vmcnt(0) lgkmcnt(0)
        s_barrier
        s_cmp_lg_u32 s{S_WAVE}, 0
        s_cbranch_scc1 L_B_join
        s_mul_i32 s{S_T0}, s{S_KST}, {FS}
        s_add_u32 s{S_T0}, s{S_T0}, {F_LN}
        """)
        self.flag_store(S_T0, 12)
        self.stamp(1, 12)
        a("s_branch L_B_join")
        a("L_B_pfrole:")
        self.srd(R_M, P_WQKV, 640 * 3840)
        self.srd(R_W, P_W1, 2048 * 3072)
        if self.o.get("pfdelay"):
            common_setup()
            a("s_waitcnt vmcnt(0)")
        a(f"""
        s_sub_u32 s{S_T0}, s{S_J}, 16
        s_lshl_b32 s{S_T0}, s{S_T0}, 3
        s_add_u32 s{S_T0}, s{S_T0}, s{S_WAVE}
        s_lshl_b32 s{S_T0+1}, s{S_XCD}, 7
        s_add_u32 s{S_T0+1}, s{S_T0+1}, s{S_T0}
        v_lshrrev_b32 v6, 3, v1
        v_and_b32 v7, 7, v1
        v_min_u32 v7, 5, v7
        v_mul_u32_u24 v6, 3072, v6
        v_lshl_add_u32 v7, v7, 7, v6
        v_lshlrev_b32 v6, 7, v1
        s_mul_i32 s{S_T0}, s{S_T0}, {8*3072}
        s_mul_i32 s{S_T0+2}, s{S_XCD}, 768
        s_add_u32 s{S_T0}, s{S_T0}, s{S_T0+2}
        s_mul_i32 s{S_T0+1}, s{S_T0+1}, 2880
        s_add_u32 s{S_T0+1}, s{S_T0+1}, {256*3840}
        buffer_load_dword v253, v7, s[{R_W}:{R_W+3}], s{S_T0} offen
        s_mov_b64 exec, 0xffffff
        buffer_load_dword v253, v6, s[{R_M}:{R_M+3}], s{S_T0+1} offen
        s_mov_b64 exec, -1
        s_add_u32 s{S_T0}, s{S_T0}, {1024*3072}
        buffer_load_dword v253, v7, s[{R_W}:{R_W+3}], s{S_T0} offen
        """)
        if not self.o.get("pfdelay"):
            common_setup()
        self.stamp(15, 12)
        a(f"s_waitcnt lgkmcnt(0)\ns_add_u32 s{S_TAG}, s{S_TAG}, {TAG_INC:#x}")
        a(f"s_cmp_ge_u32 s{S_J}, 30\ns_cbranch_scc1 L_helper")
        N1 = self.o.get("n1", 8)
        NREG = self.o.get("nreg", 0)
        assert NREG == 0 or N1 == 8

        def w1_issue():
            t = self.perm_next(S_T0, S_PERM, 128 * 3072)
            t += f"s_mov_b32 m0, s{S_B}\ns_add_u32 s{S_T0}, s{S_T0}, s{S_A}\n"
            for i in range(4):
                t += f"buffer_load_dwordx4 v{VPF+i}, s[{R_W}:{R_W+3}], s{S_T0} offen offset:{i*1024} lds\n"
            t += f"s_add_u32 s{S_B}, s{S_B}, 16384\n"
            return t
        a(f"""
        L_B_join:
        s_cmp_lt_u32 s{S_WAVE}, 4
        s_cbranch_scc1 L_B_comp0
        s_sub_u32 s{S_T0}, s{S_WAVE}, 4
        s_lshl_b32 s{S_B}, s{S_T0}, 12
        s_mul_i32 s{S_A}, s{S_T0}, {32*3072}
        s_lshl_b32 s{S_T0}, s{S_FT}, 7
        s_add_u32 s{S_A}, s{S_A}, s{S_T0}
        L_B_pf:
        """ + w1_issue() + f"""
        s_cmp_lt_u32 s{S_B}, {N1*16384}
        s_cbranch_scc1 L_B_pf
        """)
        for k in range(NREG):
            if k == 4:
                a("s_waitcnt vmcnt(40)")
            a(self.perm_next(S_T0, S_PERM, 128 * 3072) + f"s_add_u32 s{S_T0}, s{S_T0}, s{S_A}")
            for i in range(4):
                a(f"buffer_load_dwordx4 {vr(64+16*k+4*i,4)}, v{VPF+i}, s[{R_W}:{R_W+3}], s{S_T0} offen offset:{i*1024}")
        a(f"s_branch L_B_aux\nL_B_comp0:\ns_cmp_lg_u32 s{S_WAVE}, 0\ns_cbranch_scc1 L_B_l3")
        a(f"v_mul_u32_u24 v12, {FS}, v1\nv_add_u32 v12, {F_LN}, v12")
        self.poll([12], 14)
        self.stamp(2, 12)
        a("L_B_l3:")
        PF, WF, ACC, VT, VL = 64, 128, 160, 8, 12
        a(f"""
        s_lshl_b32 s{S_T0}, s{S_DT}, 3
        s_lshl_b32 s{S_T0+1}, s{S_WAVE}, 1
        s_add_u32 s{S_D}, s{S_T0}, s{S_T0+1}
        s_lshl_b32 s{S_T0}, s{S_D}, 16
        s_add_u32 s{S_T0}, s{S_T0}, {HT}
        """)
        self.srd(R_P, P_WS, 65536, off_s=S_T0)
        a(f"s_add_u32 s{S_T0}, s{S_T0}, 65536")
        self.srd(R_M, P_WS, 65536, off_s=S_T0)
        a(f"v_lshlrev_b32 v{VL}, 4, v1\ns_mov_b32 s{S_B}, 0")
        a(self.perm_next(S_C, S_PERM, 4096))
        self.tr_addr(VT)
        for r in range(32):
            a(f"v_mov_b32 v{ACC+r}, 0")
        a("s_barrier")
        RP = (R_P, R_M)

        def pload(u, ks):
            if self.o.get("x_noload"):
                return "s_nop 0"
            sc = "" if self.o.get("x_nosc1") else "sc1"
            so = "0" if self.o.get("x_same") else f"s{S_C}"
            return "\n".join(f"buffer_load_dwordx4 {vr(PF+32*(u%2)+8*ks+4*d,4)}, v{VL}, s[{RP[d]}:{RP[d]+3}], {so} offen offset:{ks*1024} {sc}" for d in range(2))

        for t in range(2):
            for ks in range(4):
                a(pload(t, ks))
            a(self.perm_next(S_C, S_PERM, 4096))
            if t == 0:
                first_bar_here = len(a.L)

        def mk(u, bar, virtual=False, head=None, tail=None):
            uses = []
            for ks in range(4):
                for b in range(4):
                    g = ks * 4 + b
                    wb = WF + 4 * (g % 8)
                    off = u * 16384 + ks * 4096
                    reads = [(f"w{g}a", f"ds_read_b64_tr_b16 {vr(wb,2)}, v{VT+b} offset:{off}"),
                             (f"w{g}b", f"ds_read_b64_tr_b16 {vr(wb+2,2)}, v{VT+b} offset:{off+2048}")]
                    mf = []
                    for dd in range(2):
                        acc = vr(ACC + 16 * dd + 4 * b, 4)
                        mf.append(f"v_mfma_f32_16x16x32_bf16 {acc}, {vr(wb,4)}, {vr(PF+32*(u%2)+8*ks+4*dd,4)}, {acc}")
                    d = dict(reads=reads, need=[f"w{g}b"], mf=mf)
                    if b == 0:
                        d["vm"] = 14
                    if b == 3:
                        d["after"] = pload(u, ks)
                        if ks == 3:
                            d["after"] += "\n" + self.perm_next(S_C, S_PERM, 4096)
                            if u >= 1:
                                d["after"] += f"s_cmp_ge_u32 s{S_B}, 3\ns_cselect_b32 s{S_C}, 0x10000, s{S_C}"
                    uses.append(d)
            return dict(uses=uses, bar=bar, virtual=virtual, head=head, tail=tail)

        xo = "s_barrier\n" + "\n".join(f"v_xor_b32 v{VT+b}, 0x10000, v{VT+b}" for b in range(4))
        tail = f"s_add_u32 s{S_B}, s{S_B}, 1\ns_cmp_lt_u32 s{S_B}, 4\ns_cbranch_scc1 L_B_loop"
        st = [mk(0, "", head="L_B_loop:"), mk(1, "s_barrier"), mk(2, "s_barrier"), mk(3, "s_barrier", tail=tail), mk(0, xo, virtual=True)]
        a.L.insert(first_bar_here, "    s_barrier")
        nd = self.o.get("nodrain")
        LB = self.o.get("LB", 7)
        self.pipeline(st, LB, (16 - LB) if nd else 13, drain=not nd, wait_every=self.o.get('we', 2))
        if nd:
            a("s_waitcnt lgkmcnt(0)\ns_barrier")
        self.stamp(3, 44)
        c = 0.7978845608028654
        k0 = -2.0 * c * 1.4426950408889634
        k1 = k0 * 0.044715
        a(f"""
        s_waitcnt lgkmcnt(0)
        s_mov_b32 s{S_K0}, {f2u(k1):#x}
        s_mov_b32 s{S_K0+1}, {f2u(k1):#x}
        v_mov_b32 v44, {f2u(k0):#x}
        v_mov_b32 v45, {f2u(k0):#x}
        v_mov_b32 v46, 1.0
        v_mov_b32 v47, 1.0
        s_mul_i32 s{S_T0}, s{S_D}, {UW_ST}
        s_lshl_b32 s{S_T0+1}, s{S_FT}, 11
        s_add_u32 s{S_T0}, s{S_T0}, s{S_T0+1}
        s_add_u32 s{S_T0}, s{S_T0}, {UW}
        """)
        BF = 16
        for b in range(4):
            a(f"v_lshlrev_b32 v{BF+4*b}, 16, v{B1R+2*b}\nv_and_b32 v{BF+4*b+1}, 0xffff0000, v{B1R+2*b}")
            a(f"v_lshlrev_b32 v{BF+4*b+2}, 16, v{B1R+2*b+1}\nv_and_b32 v{BF+4*b+3}, 0xffff0000, v{B1R+2*b+1}")
        for dd in range(2):
            for p in range(2):
                r = ACC + 16 * dd + 8 * p
                T = 48
                for q in range(4):
                    a(f"v_pk_add_f32 {vr(r+2*q,2)}, {vr(r+2*q,2)}, {vr(BF+8*p+2*q,2)}")
                for q in range(4):
                    a(f"v_pk_mul_f32 {vr(T+2*q,2)}, {vr(r+2*q,2)}, {vr(r+2*q,2)}")
                for q in range(4):
                    a(f"v_pk_fma_f32 {vr(T+2*q,2)}, {vr(T+2*q,2)}, s[{S_K0}:{S_K0+1}], v[44:45]")
                for q in range(4):
                    a(f"v_pk_mul_f32 {vr(T+2*q,2)}, {vr(T+2*q,2)}, {vr(r+2*q,2)}")
                for q in range(8):
                    a(f"v_exp_f32 v{T+q}, v{T+q}")
                for q in range(4):
                    a(f"v_pk_add_f32 {vr(T+2*q,2)}, {vr(T+2*q,2)}, v[46:47]")
                for q in range(8):
                    a(f"v_rcp_f32 v{T+q}, v{T+q}")
                for q in range(4):
                    a(f"v_pk_mul_f32 {vr(r+2*q,2)}, {vr(r+2*q,2)}, {vr(T+2*q,2)}")
                o = 56 + 4 * (p & 1)
                for q in range(4):
                    a(f"v_cvt_pk_bf16_f32 v{o+q}, v{r+2*q}, v{r+2*q+1}")
                a(f"buffer_store_dwordx4 {vr(o,4)}, v{VL}, s[{R_WS}:{R_WS+3}], s{S_T0} offen offset:{p*1024} sc1")
            if dd == 0:
                a(f"s_add_u32 s{S_T0}, s{S_T0}, {UW_ST}")
        self.stamp(10, 44)
        a("s_waitcnt vmcnt(0)\ns_barrier\ns_branch L_F_comp")

        a("L_B_aux:\ns_barrier")
        order = list(range(N1 + NREG))
        cnt = {k: 4 for k in range(16)}
        cnt["t"] = 1
        nxt = N1
        lag = self.o.get("lag", 0)
        if NREG:
            a(f"""
            s_sub_u32 s{S_T0}, s{S_WAVE}, 4
            s_lshl_b32 s{S_T0}, s{S_T0}, 12
            v_lshlrev_b32 v12, 4, v1
            v_add_u32 v12, s{S_T0}, v12
            v_add_u32 v13, 0x10000, v12
            s_add_u32 s{S_B}, s{S_T0}, {(NREG % 8) * 16384}
            """)
        for tb in range(17):
            if tb < 16:
                n = sum(cnt[x] for x in order[order.index(tb) + 1:])
                a(f"s_waitcnt vmcnt({min(n, 63)}) lgkmcnt(0)")
            a("s_barrier")
            if tb < 16:
                self.stamp(16 + tb, 44)
            k = 0
            while nxt <= min(15, tb + (6 if self.o.get("nodrain") and nxt >= 8 else 7) - (lag if nxt >= 8 + NREG else 0)) and k < 2:
                if 8 <= nxt < 8 + NREG:
                    n = sum(cnt[x] for x in order[order.index(nxt) + 1:])
                    a(f"s_waitcnt vmcnt({min(n, 63)})")
                    sl = nxt % 8
                    for i in range(4):
                        a(f"ds_write_b128 v{13 if sl >= 4 else 12}, {vr(64+16*(nxt-8)+4*i,4)} offset:{(sl&3)*16384+i*1024}")
                else:
                    if nxt == 8:
                        a(f"s_and_b32 s{S_B}, s{S_B}, 0x1ffff")
                    a(w1_issue())
                    order.append(nxt)
                nxt += 1
                k += 1
        assert nxt == 16
        if self.o.get("nodrain"):
            a("s_barrier")
        skip = self.if_wave56()
        nB1 = self.o.get("nB1", 0)
        if nB1:
            self.w2_setup()
            self.w2_prefill(nB1)
            a("s_barrier\ns_nop 7\ns_nop 7")
            self.w2_prefill(8 - nB1)
        else:
            a("s_barrier")
            self.w2_setup()
            self.w2_prefill(8)
        a("s_branch L_F_loader")
        a(f"{skip}:\ns_barrier")
        a(f"s_cmp_lg_u32 s{S_WAVE}, 7\ns_cbranch_scc1 L_F_u4")
        a(f"s_mul_i32 s{S_T0}, s{S_DT}, 24\ns_add_u32 s{S_T0}, s{S_T0}, s{S_FT}\ns_mul_i32 s{S_T0}, s{S_T0}, {FS}\ns_add_u32 s{S_T0}, s{S_T0}, {F_U}")
        self.flag_store(S_T0, 12)
        self.stamp(4, 12)
        a("s_branch L_F_poller")

    def w2_l2_prefetch(self, VT):
        a = self.a
        self.srd(R_W2, P_W2, 1536 * 4096)
        a(f"""
        v_lshrrev_b32 v{VT}, 3, v1
        v_and_b32 v{VT+1}, 7, v1
        v_lshlrev_b32 v{VT+1}, 7, v{VT+1}
        v_lshl_add_u32 v{VT}, v{VT}, 12, v{VT+1}
        s_mul_i32 s{S_T0}, s{S_J}, 48
        s_and_b32 s{S_T0+1}, s{S_WAVE}, 3
        s_mul_i32 s{S_T0+1}, s{S_T0+1}, 12
        s_add_u32 s{S_T0}, s{S_T0}, s{S_T0+1}
        s_lshl_b32 s{S_T0}, s{S_T0}, 12
        s_lshr_b32 s{S_T0+1}, s{S_XCD}, 1
        s_lshl_b32 s{S_T0+1}, s{S_T0+1}, 10
        s_add_u32 s{S_T0}, s{S_T0}, s{S_T0+1}
        buffer_load_dword v{VT+2}, v{VT}, s[{R_W2}:{R_W2+3}], s{S_T0} offen
        s_add_u32 s{S_T0}, s{S_T0}, {8*4096}
        s_mov_b32 exec_hi, 0
        buffer_load_dword v{VT+3}, v{VT}, s[{R_W2}:{R_W2+3}], s{S_T0} offen
        s_mov_b64 exec, -1
        """)

    def tr_addr(self, VT):
        a = self.a
        a(f"""
        v_and_b32 v{VT+1}, 15, v1
        v_lshrrev_b32 v{VT+2}, 4, v1
        v_lshrrev_b32 v{VT+3}, 2, v{VT+1}
        v_lshl_add_u32 v{VT+3}, v{VT+2}, 2, v{VT+3}
        v_bfe_u32 v{VT+2}, v{VT+3}, 1, 2
        v_lshlrev_b32 v{VT+3}, 7, v{VT+3}
        v_lshl_add_u32 v{VT+3}, v{VT+2}, 5, v{VT+3}
        v_and_b32 v{VT+1}, 3, v{VT+1}
        v_lshl_add_u32 v{VT}, v{VT+1}, 3, v{VT+3}
        v_xor_b32 v{VT+1}, 32, v{VT}
        v_xor_b32 v{VT+2}, 64, v{VT}
        v_xor_b32 v{VT+3}, 96, v{VT}
        """)

    def helper(self):
        a = self.a
        a("L_helper:")
        a(f"""
        s_lshl_b32 s{S_D}, s{S_XCD}, 1
        s_add_u32 s{S_D}, s{S_D}, s{S_J}
        s_sub_u32 s{S_D}, s{S_D}, 30
        """)
        self.srd(R_W, P_WO, 640 * 1280)
        for p in range(5):
            a(f"""
            v_add_u32 v12, {p*64}, v1
            v_mul_u32_u24 v13, 205, v12
            v_lshrrev_b32 v13, 11, v13
            v_mul_u32_u24 v14, 10, v13
            v_sub_u32 v14, v12, v14
            v_lshlrev_b32 v14, 4, v14
            v_mul_u32_u24 v13, 1280, v13
            v_add_u32 v{16+p}, v13, v14
            """)
            if p in (1, 2, 3):
                a(f"v_subrev_u32 v{16+p}, {p*1024}, v{16+p}")
        a(f"""
        s_mov_b32 s{S_C}, s{S_WAVE}
        L_H_ld:
        s_mul_i32 s{S_A}, s{S_C}, {32*1280}
        s_mul_i32 s{S_T0}, s{S_D}, 160
        s_add_u32 s{S_A}, s{S_A}, s{S_T0}
        s_mul_i32 s{S_B}, s{S_C}, 5120
        s_mov_b32 m0, s{S_B}
        s_nop 0
        """)
        for p in range(4):
            a(f"buffer_load_dwordx4 v{16+p}, s[{R_W}:{R_W+3}], s{S_A} offen offset:{p*1024} lds")
        a(f"s_add_u32 m0, s{S_B}, 4096\ns_nop 0\nbuffer_load_dwordx4 v20, s[{R_W}:{R_W+3}], s{S_A} offen lds")
        a(f"""
        s_add_u32 s{S_C}, s{S_C}, 8
        s_cmp_lt_u32 s{S_C}, 20
        s_cbranch_scc1 L_H_ld
        v_and_b32 v12, 15, v1
        v_lshrrev_b32 v13, 4, v1
        v_lshrrev_b32 v14, 2, v12
        v_lshl_add_u32 v14, v13, 2, v14
        v_mul_u32_u24 v14, 160, v14
        v_and_b32 v12, 3, v12
        v_lshl_add_u32 v14, v12, 3, v14
        v_lshlrev_b32 v15, 4, v1
        s_waitcnt vmcnt(0)
        s_barrier
        s_mov_b32 s{S_C}, s{S_WAVE}
        L_H_tr:
        s_lshr_b32 s{S_T0}, s{S_C}, 1
        s_mul_i32 s{S_T0}, s{S_T0}, 5
        s_and_b32 s{S_T0+1}, s{S_C}, 1
        s_lshl_b32 s{S_T0+1}, s{S_T0+1}, 1
        s_add_u32 s{S_T0}, s{S_T0}, s{S_T0+1}
        s_add_u32 s{S_T0+1}, s{S_T0}, 1
        s_mul_i32 s{S_T0+2}, s{S_C}, 10
        s_sub_u32 s{S_T0+2}, s{S_T0+2}, 156
        s_add_u32 s{S_T0+3}, s{S_T0+2}, 5
        s_cmp_lt_u32 s{S_C}, 16
        s_cselect_b32 s{S_T0}, s{S_T0}, s{S_T0+2}
        s_cselect_b32 s{S_T0+1}, s{S_T0+1}, s{S_T0+3}
        s_mul_i32 s{S_T0}, s{S_T0}, 2560
        s_mul_i32 s{S_T0+1}, s{S_T0+1}, 2560
        v_add_u32 v12, s{S_T0}, v14
        v_add_u32 v13, s{S_T0+1}, v14
        """)
        for b in range(5):
            a(f"ds_read_b64_tr_b16 {vr(24+4*b,2)}, v12 offset:{b*32}\nds_read_b64_tr_b16 {vr(26+4*b,2)}, v13 offset:{b*32}")
        a(f"""
        s_mul_i32 s{S_T0}, s{S_D}, {5*UW_ST}
        s_lshl_b32 s{S_T0+1}, s{S_C}, 10
        s_add_u32 s{S_T0}, s{S_T0}, s{S_T0+1}
        s_add_u32 s{S_T0}, s{S_T0}, {UW + 49152}
        """)
        for b in range(5):
            a(f"s_waitcnt lgkmcnt({8-2*b})")
            a(f"buffer_store_dwordx4 {vr(24+4*b,4)}, v15, s[{R_WS}:{R_WS+3}], s{S_T0} offen sc1")
            if b < 4:
                a(f"s_add_u32 s{S_T0}, s{S_T0}, {UW_ST}")
        a(f"""
        s_add_u32 s{S_C}, s{S_C}, 8
        s_cmp_lt_u32 s{S_C}, 20
        s_cbranch_scc1 L_H_tr
        s_waitcnt vmcnt(0)
        s_barrier
        """)
        skip = self.if_wave56()
        self.w2_setup()
        self.w2_prefill(8)
        a(f"s_branch L_F_loader\n{skip}:")
        a(f"s_cmp_lt_u32 s{S_WAVE}, 4\ns_cbranch_scc1 L_F_comp\ns_cmp_lg_u32 s{S_WAVE}, 7\ns_cbranch_scc1 L_F_u4")
        a(f"s_mul_i32 s{S_T0}, s{S_D}, {FS}\ns_add_u32 s{S_T0}, s{S_T0}, {F_WOT}")
        self.flag_store(S_T0, 12)
        self.stamp(14, 12)
        a("s_branch L_F_poller")

    F_WOT_REG = 172

    def uw_srd(self):
        a = self.a
        a(f"""
        s_mul_i32 s{S_T0}, s{S_DTILE}, 5
        s_add_u32 s{S_D}, s{S_T0}, s{S_WAVE}
        s_mul_i32 s{S_T0}, s{S_D}, {UW_ST}
        s_add_u32 s{S_T0}, s{S_T0}, {UW}
        """)
        self.srd(R_P, P_WS, UW_ST, off_s=S_T0)

    def wot_preload(self, VL):
        a = self.a
        for k in range(20):
            if k % 4 == 0:
                a(f"s_mov_b32 s{S_C}, {49152 + k*1024}")
            a(f"buffer_load_dwordx4 {vr(self.F_WOT_REG+4*k,4)}, v{VL}, s[{R_P}:{R_P+3}], s{S_C} offen offset:{(k%4)*1024} sc1")

    def f0_barrier(self):
        lab = self.a.label("f0")
        self.a(f"s_cmp_eq_u32 s{S_FROMA}, 1\ns_cbranch_scc1 {lab}\ns_barrier\n{lab}:")

    def final(self):
        a = self.a
        a("L_F_comp:")
        if self.stop == "phase1":
            a("s_branch L_end")
        PF, WF, ACC, ACC4, U4, WOT = 64, 112, 144, 160, 164, 172
        NPF = 3
        pre = True
        VT, VL, VU4, VT2, GV, BV, VGH, VG8 = 8, 12, 13, 16, 20, 24, 28, 32
        self.uw_srd()
        self.srd(R_M, P_B2, 4096)
        self.srd(R_OUT, P_OUT, 2048 * 1280)
        self.tr_addr(4)
        a(f"""
        v_lshlrev_b32 v{VL}, 4, v1
        v_add_u32 v{VU4}, 0x20000, v{VL}
        v_lshlrev_b32 v5, 3, v1
        v_and_b32 v2, 15, v1
        v_lshlrev_b32 v3, 1, v2
        v_lshlrev_b32 v2, 2, v2
        """)
        SB = S_MSK
        for b in range(4):
            a(f"""
            s_add_u32 s{SB+b}, s{S_WAVE}, {b}
            s_and_b32 s{SB+b}, s{SB+b}, 3
            s_lshl_b32 s{S_T0}, s{SB+b}, 5
            v_xor_b32 v{VT+b}, s{S_T0}, v4
            s_lshl_b32 s{S_T0+1}, s{S_ST}, 7
            s_add_u32 s{S_T0}, s{S_T0}, s{S_T0+1}
            buffer_load_ushort v{BV+b}, v3, s[{R_M}:{R_M+3}], s{S_T0} offen
            v_add_u32 v{VT2+b}, 0x10000, v{VT+b}
            s_lshl_b32 s{S_T0}, s{SB+b}, 12
            v_add_u32 v{VG8+b}, s{S_T0}, v5
            s_add_u32 s{S_T0}, s{S_T0}, 0x10000
            v_add_u32 v{VGH+b}, s{S_T0}, v{VL}
            """)
        for r in range(16):
            a(f"v_mov_b32 v{ACC+r}, 0")
        for r in range(4):
            a(f"v_mov_b32 v{ACC4+r}, 0")
        a(f"s_lshl_b32 s{S_A}, s{S_ST}, 8\ns_add_u32 s{S_A}, s{S_A}, {G_OFF}")
        self.f_perm()
        nstream = 12 if pre else 17

        def next_sc(step):
            if step < 12:
                return self.perm_next(S_C, S_PERM, 4096)
            return f"s_mov_b32 s{S_C}, {step*4096}\n"
        a(f"s_cmp_eq_u32 s{S_FROMA}, 1\ns_cbranch_scc1 L_F_nowot\ns_barrier")
        self.wot_preload(VL)
        a("L_F_nowot:")
        a(next_sc(0))
        a("s_barrier")
        for t in range(NPF):
            for ks in range(4):
                a(f"buffer_load_dwordx4 {vr(PF+16*t+4*ks,4)}, v{VL}, s[{R_P}:{R_P+3}], s{S_C} offen offset:{ks*1024} sc1")
            a(next_sc(t + 1))
            if t == 0:
                a("s_barrier")
            if t == NPF - 1:
                for b in range(4):
                    a(f"s_lshl_b32 s{S_T0}, s{SB+b}, 6\ns_add_u32 s{S_T0}, s{S_T0}, s{S_A}")
                    a(f"buffer_load_dword v{GV+b}, v2, s[{R_WS}:{R_WS+3}], s{S_T0} offen sc1")

        mid = "s_nop 7\n"
        for b in range(4):
            mid += f"v_lshlrev_b32 v{BV+b}, 16, v{BV+b}\nv_sub_f32 v{GV+b}, 1.0, v{GV+b}\n"
        blocks = [(ACC + 4 * b, b) for b in range(4)] + [(ACC4, 0)]
        for r0, b in blocks:
            for k in range(4):
                mid += f"v_add_f32 v{r0+k}, v{BV+b}, v{r0+k}\n"
        for r0, b in blocks:
            for k in range(4):
                mid += f"v_mul_f32 v{r0+k}, v{GV+b}, v{r0+k}\n"
        mid += "s_nop 1\n"

        stages = []
        for t in range(17):
            slot = t % 8
            hi = slot >= 4
            uses = []
            for ks in range(4):
                for b in range(4):
                    g = ks * 4 + b
                    wb = WF + 4 * (g % 8)
                    reads = []
                    u4 = U4 + 4 * (ks & 1)
                    if b == 0:
                        reads.append((f"u{ks}", f"ds_read_b128 {vr(u4,4)}, v{VU4} offset:{slot*4096 + ks*1024}"))
                    if t < 12:
                        off = (slot & 3) * 16384 + ks * 4096
                        va = (VT2 if hi else VT) + b
                        reads += [(f"w{g}a", f"ds_read_b64_tr_b16 {vr(wb,2)}, v{va} offset:{off}"),
                                  (f"w{g}b", f"ds_read_b64_tr_b16 {vr(wb+2,2)}, v{va} offset:{off+2048}")]
                    elif t < 16:
                        assert hi
                        off = (slot & 3) * 16384 + ks * 1024
                        reads += [(f"w{g}b", f"ds_read_b128 {vr(wb,4)}, v{VGH+b} offset:{off}")]
                    else:
                        off = (slot & 3) * 16384 + ks * 1024
                        assert not hi
                        reads += [(f"w{g}a", f"ds_read_b64 {vr(wb,2)}, v{VG8+b} offset:{off}"),
                                  (f"w{g}b", f"ds_read_b64 {vr(wb+2,2)}, v{VG8+b} offset:{off+512}")]
                    acc = vr(ACC + 4 * b, 4)
                    ring = t < nstream
                    pf = vr(PF + 16 * (t % NPF) + 4 * ks, 4) if ring else vr(WOT + 16 * (t - 12) + 4 * ks, 4)
                    mf = [f"v_mfma_f32_16x16x32_bf16 {acc}, {pf}, {vr(wb,4)}, {acc}"]
                    if b == 0:
                        mf.append(f"v_mfma_f32_16x16x32_bf16 {vr(ACC4,4)}, {vr(u4,4)}, {vr(wb,4)}, {vr(ACC4,4)}")
                    d = dict(reads=reads, need=[f"w{g}b"], mf=mf)
                    if b == 0 and ring:
                        k = t * 4 + ks
                        n = min(k + 4 * NPF - 1, 4 * nstream - 1) - k
                        if t < NPF:
                            n += 4
                        d["vm"] = n
                    if b == 3 and t + NPF < nstream:
                        d["after"] = f"buffer_load_dwordx4 {pf}, v{VL}, s[{R_P}:{R_P+3}], s{S_C} offen offset:{ks*1024} sc1"
                        if ks == 3 and t + NPF + 1 < nstream:
                            d["after"] += "\n" + next_sc(t + NPF + 1)
                    if t == 12 and g == 0:
                        d["before"] = mid
                    uses.append(d)
            stages.append(dict(uses=uses, bar="s_barrier" if t else ""))
        nd = self.o.get("nodrain")
        LF = self.o.get("LF", 6)
        self.pipeline(stages, LF, (16 - LF) if nd else 13, drain=not nd, wait_every=self.o.get('we', 2))
        self.stamp(8, 2)
        a(f"""
        v_and_b32 v2, 15, v1
        v_mul_u32_u24 v2, 1280, v2
        v_lshrrev_b32 v3, 4, v1
        v_lshl_add_u32 v2, v3, 3, v2
        s_mul_i32 s{S_A}, s{S_ST}, {64*1280}
        s_lshl_b32 s{S_T0+1}, s{S_D}, 5
        s_add_u32 s{S_B}, s{S_A}, s{S_T0+1}
        s_mul_i32 s{S_T0+1}, s{S_DTILE}, 160
        s_add_u32 s{S_A}, s{S_A}, s{S_T0+1}
        s_add_u32 s{S_A}, s{S_A}, 128
        """)
        for r, b in blocks:
            a(f"s_mul_i32 s{S_T0}, s{SB+b}, {16*1280}\ns_add_u32 s{S_T0}, s{S_T0}, s{S_A if r == ACC4 else S_B}")
            a(f"v_cvt_pk_bf16_f32 v{r}, v{r}, v{r+1}\nv_cvt_pk_bf16_f32 v{r+1}, v{r+2}, v{r+3}")
            a(f"buffer_store_dwordx2 {vr(r,2)}, v2, s[{R_OUT}:{R_OUT+3}], s{S_T0} offen {['', 'sc1', 'nt', 'sc0 sc1'][self.o.get('osc', 0)]}")
        if self.stamps or self.o.get("dbg"):
            a("s_waitcnt vmcnt(0)")
            self.stamp(9, 2)
        if self.o.get("calib"):
            a(f"""
            L_cal:
            s_memrealtime s[96:97]
            s_waitcnt lgkmcnt(0)
            s_sub_u32 s96, s96, s98
            s_cmp_lt_u32 s96, {self.o.get("calib")*100}
            s_cbranch_scc1 L_cal
            """)
        a(f"s_or_b32 s{S_T0}, s2, s{S_WAVE}\ns_cmp_lg_u32 s{S_T0}, 0\ns_cbranch_scc1 L_end\ns_mov_b32 s{S_T0}, 0")
        self.flag_store(S_T0, 4)
        a("s_branch L_end")

        a("L_F_u4:")
        if self.stop == "phase1":
            a("s_branch L_end")
        a(f"""
        v_lshlrev_b32 v{VL}, 4, v1
        s_mul_i32 s{S_C}, s{S_DTILE}, {5*UW_ST}
        s_add_u32 s{S_C}, s{S_C}, {UW + 4*UW_ST}
        """)
        self.f_perm()
        self.f0_barrier()
        a("s_barrier")

        def u4_issue(iv):
            if iv < 12:
                a(self.perm_next(S_T0, S_PERM, 4096) + f"s_mov_b32 m0, {0x20000 + (iv % 8)*4096:#x}\ns_add_u32 s{S_T0}, s{S_T0}, s{S_C}")
            else:
                a(f"s_mov_b32 m0, {0x20000 + (iv % 8)*4096:#x}\ns_add_u32 s{S_T0}, s{S_C}, {iv*4096}")
            for i in range(4):
                a(f"buffer_load_dwordx4 v{VL}, s[{R_WS}:{R_WS+3}], s{S_T0} offen offset:{i*1024} sc1 lds")
        order = []
        for iv in range(8):
            u4_issue(iv)
            order.append(iv)
            if iv == 2:
                a("s_waitcnt vmcnt(8)\ns_barrier")
        for tb in range(1, 17):
            a(f"s_waitcnt vmcnt({4*len(order[order.index(tb)+1:])})\ns_barrier")
            iv = tb + (6 if self.o.get("nodrain") else 7)
            if 8 <= iv <= 16:
                u4_issue(iv)
                order.append(iv)
        a("s_branch L_end")

        a("L_F_loader:")
        if self.stop == "phase1":
            a("s_branch L_end")
        a(f"v_lshlrev_b32 v{VL}, 4, v1")
        self.f0_barrier()
        a("s_barrier")
        a(f"""
        s_sub_u32 s{S_T0}, s{S_WAVE}, 5
        s_lshl_b32 s{S_T0}, s{S_T0}, 1
        s_lshl_b32 s{S_T0+1}, s{S_ST}, 2
        s_add_u32 s{S_T0+1}, s{S_T0+1}, s{S_T0}
        s_mul_i32 s{S_C}, s{S_T0+1}, {GO_ST}
        s_add_u32 s{S_C}, s{S_C}, {GO}
        s_lshl_b32 s{S_D}, s{S_T0}, 12
        """)
        order = list(range(8))
        for tb in range(17):
            after = [x for x in order[order.index(tb) + 1:]]
            n = 8 * len(after)
            a(f"s_waitcnt vmcnt({min(n,63)})\ns_barrier")
            t = tb - 1
            tw = t - (1 if self.o.get("nodrain") else 0)
            if 0 <= tw <= 3:
                self.w2_issue()
                order.append(tw + 8)
            if 8 <= t <= 12:
                iv = t + 4
                g = iv - 12
                for s2 in range(2):
                    a(f"s_add_u32 m0, s{S_D}, {(iv % 8)*16384 + s2*4096}\ns_add_u32 s{S_T0}, s{S_C}, {s2*GO_ST + g*4096}")
                    for i in range(4):
                        a(f"buffer_load_dwordx4 v{VL}, s[{R_WS}:{R_WS+3}], s{S_T0} offen offset:{i*1024} sc1 lds")
                order.append(iv)
        a("s_branch L_end")
        a("L_F_poller:")
        if self.stop == "phase1":
            a("s_branch L_end")
        a(f"s_cmp_eq_u32 s{S_FROMA}, 1\ns_cbranch_scc1 L_F_pnowot")
        a(f"s_mul_i32 s{S_T0}, s{S_DTILE}, {FS}\ns_add_u32 s{S_T0}, s{S_T0}, {F_WOT}\nv_mov_b32 v2, s{S_T0}")
        self.poll([2], 4)
        a("s_barrier\nL_F_pnowot:")
        a(f"""
        s_mul_i32 s{S_T0}, s{S_DTILE}, 5
        s_lshr_b32 s{S_T0+1}, s{S_T0}, 3
        s_add_u32 s{S_T0}, s{S_T0}, 4
        s_lshr_b32 s{S_T0}, s{S_T0}, 3
        s_mul_i32 s{S_T0}, s{S_T0}, 24
        s_mul_i32 s{S_T0+1}, s{S_T0+1}, 24
        v_and_b32 v2, 31, v1
        v_min_u32 v2, 23, v2
        v_add_u32 v3, s{S_T0}, v2
        v_add_u32 v2, s{S_T0+1}, v2
        v_cmp_gt_u32 vcc, 32, v1
        s_mul_i32 s{S_T0}, s{S_DTILE}, {FS}
        s_add_u32 s{S_T0}, s{S_T0}, {F_WOT}
        v_cndmask_b32 v2, v2, v3, vcc
        v_mul_u32_u24 v2, {FS}, v2
        v_add_u32 v2, {F_U}, v2
        v_mov_b32 v3, s{S_T0}
        v_cmp_eq_u32 vcc, 63, v1
        s_nop 1
        v_cndmask_b32 v2, v2, v3, vcc
        """)
        self.poll([2], 4)
        self.stamp(6, 4)
        a("s_barrier")
        a(f"""
        v_and_b32 v2, 7, v1
        s_lshr_b32 s{S_T0}, s{S_ST}, 1
        s_lshl_b32 s{S_T0}, s{S_T0}, 3
        v_add_u32 v2, s{S_T0}, v2
        v_mul_u32_u24 v2, {FS}, v2
        v_add_u32 v2, {F_GO}, v2
        """)
        gp = self.o.get("gopoll", 9)
        for tb in range(gp):
            a("s_barrier")
            if tb == 1:
                a(f"s_cmp_eq_u32 s{S_FROMA}, 1\ns_cbranch_scc0 L_F_nogo")
                a(f"s_lshl_b32 s{S_T0}, s{S_MT}, 3\ns_add_u32 s{S_T0}, s{S_T0}, s{S_HG}\ns_mul_i32 s{S_T0}, s{S_T0}, {FS}\ns_add_u32 s{S_T0}, s{S_T0}, {F_GO}")
                self.flag_store(S_T0, 6)
                a("L_F_nogo:")
            self.stamp(32 + tb, 4)
        self.poll([2], 4)
        self.stamp(7, 4)
        for tb in range(gp, 17):
            a("s_barrier")
            self.stamp(32 + tb, 4)
        a("L_end:")
        if self.stamps:
            a(f"""
            s_lshl_b32 s{S_T0}, s2, 3
            s_add_u32 s{S_T0}, s{S_T0}, s{S_WAVE}
            s_lshl_b32 s{S_T0}, s{S_T0}, 9
            s_add_u32 s{S_T0}, s{S_T0}, {STAMP}
            v_lshlrev_b32 v2, 3, v1
            buffer_store_dwordx2 v[254:255], v2, s[{R_WS}:{R_WS+3}], s{S_T0} offen
            """)
        a("L_exit:\ns_endpgm")

    def build(self, header):
        a = self.a
        self.prologue()
        self.role_a()
        self.role_b()
        self.helper()
        self.final()
        body = a.text()
        out = header
        out += f"; @launch grid=(256,1,1) block=(512,1,1) lds={LDS_BYTES}\n"
        out += f'.amdgcn_target "amdgcn-amd-amdhsa--gfx950"\n.text\n.globl {KNAME}\n.p2align 8\n.type {KNAME},@function\n{KNAME}:\n'
        out += body
        out += f""".section .rodata,"a"
.p2align 6
.amdhsa_kernel {KNAME}
  .amdhsa_next_free_vgpr 256
  .amdhsa_next_free_sgpr 102
  .amdhsa_accum_offset 256
  .amdhsa_group_segment_fixed_size 0
  .amdhsa_kernarg_size 96
  .amdhsa_user_sgpr_count 2
  .amdhsa_user_sgpr_kernarg_segment_ptr 1
  .amdhsa_system_sgpr_workgroup_id_x 1
  .amdhsa_float_denorm_mode_32 3
.end_amdhsa_kernel
"""
        return out


def header():
    ref = open("gated_mix__linear_attn_block__mixer_token_mlp__prompt.s.ref").read().split("\n")
    h = []
    for l in ref:
        if l.startswith("; Override"):
            break
        h.append(l)
    return "\n".join(h) + "\n"


if __name__ == "__main__":
    import argparse
    p = argparse.ArgumentParser()
    p.add_argument("-o", default="gated_mix__linear_attn_block__mixer_token_mlp__prompt.s")
    p.add_argument("--stamps", action="store_true")
    p.add_argument("--stop", default=None)
    p.add_argument("--opt", default="")
    args = p.parse_args()
    opts = {k: (int(v) if v != '' else 1) for k, _, v in (x.partition('=') for x in args.opt.split(',') if x)}
    g = Gen(stamps=args.stamps, stop=args.stop, opts=opts)
    open(args.o, "w").write(g.build(header()))
    print("wrote", args.o)
```

```python
import sys

KNAME = "gated_mix__linear_attn_block__mixer_token_mlp__prompt_kernel"

import os
FS = int(os.environ.get('FS', 128))
F_LN, F_KV, F_U, F_GO, F_WOT = 0x1000, 0x5000, 0x9000, 0xD000, 0x11000
G_OFF = 0x12000
STAMP = 0x900000
KVP = 0x20000
KVP_ST = 7168
HT = 0x100000
UW = 0x380000
UW_ST = 69632
GO = 0x640000
GO_ST = 20480
WS_USED = 0xA00000
TAG_INC = 0x9E3779B9
SPIN_LIMIT = 1 << 17

LDS_BYTES = 163840
LNBUF = 0
LN_ST = 1312
LNG = LNBUF + 32 * LN_ST
A_SLOT = 49152
A_WOFF = 16384
EXCH_ST = 14336
EXCH = 131072 - 4 * EXCH_ST
KVT = 147456
ZH = KVT + 11 * 1024

LOG2E = 0x3FB8AA3B


def f2u(x):
    import struct
    return struct.unpack("<I", struct.pack("<f", x))[0]


class Asm:
    def __init__(self):
        self.L = []
        self.nlab = 0

    def __call__(self, s):
        for line in s.split("\n"):
            line = line.strip()
            if line:
                self.L.append(("    " if not line.endswith(":") else "") + line)

    def label(self, base):
        self.nlab += 1
        return f"L{base}_{self.nlab}"

    def text(self):
        return "\n".join(self.L) + "\n"


def vr(a, n=1):
    return f"v{a}" if n == 1 else f"v[{a}:{a+n-1}]"


def sr(a, n=1):
    return f"s{a}" if n == 1 else f"s[{a}:{a+n-1}]"


P_X, P_WQKV, P_WO, P_BX, P_W1, P_B1, P_W2, P_B2 = 4, 6, 8, 10, 12, 14, 16, 18
P_GATE, P_OUT, P_DBG, P_WS = 20, 22, 24, 26
S_TAG, S_WAVE = 28, 29
S_XCD, S_J = 30, 31
R_WS, R_X, R_W, R_P, R_W2, R_M, R_OUT = 32, 36, 40, 44, 48, 52, 56
S_T0 = 60
S_MT, S_HG, S_DT, S_FT, S_KST, S_PAR = 70, 71, 72, 73, 74, 75
S_ST, S_DTILE = 76, 77
S_CNT = 78
S_A, S_B, S_C, S_D = 80, 81, 82, 83
S_MSK = 84
S_K0 = 90
S_STMP = 96
S_PERM = 66
S_M = 79
S_FROMA = 95


def lead_perm(n, nshare, m, lead=2):
    order = list(range(n))
    i = m
    while i + lead < n:
        order[i:i + lead + 1] = [order[i + lead]] + order[i:i + lead]
        i += nshare
    return order


class Gen:
    def __init__(self, stamps=False, stop=None, opts=None):
        self.o = opts or {}
        self.a = Asm()
        self.stamps = stamps
        self.stop = stop

    def srd(self, dst, ptr, nbytes, off_s=None):
        a = self.a
        if off_s is None:
            a(f"s_mov_b32 s{dst}, s{ptr}\ns_and_b32 s{dst+1}, s{ptr+1}, 0xffff")
        else:
            a(f"s_add_u32 s{dst}, s{ptr}, s{off_s}\ns_addc_u32 s{dst+1}, s{ptr+1}, 0\ns_and_b32 s{dst+1}, s{dst+1}, 0xffff")
        a(f"s_mov_b32 s{dst+2}, {nbytes:#x}\ns_mov_b32 s{dst+3}, 0x20000")

    def stamp(self, k, vtmp, dyn=None):
        if self.o.get("dbg"):
            m = {0: 0, 11: 1, 1: 2, 2: 3, 3: 4, 4: 5, 6: 6, 9: 7}
            mA = {0: 0, 1: 1, 2: 2, 3: 3, 4: 4, 5: 5, 6: 6, 9: 7}
            if dyn is not None:
                return
            a = self.a
            for wg, mp, base in ((8, m, 0), (12, mA, 8)):
                if k in mp:
                    lab = a.label("nd")
                    a(f"s_cmp_lg_u32 s2, {wg}\ns_cbranch_scc1 {lab}")
                    a(f"s_memrealtime s[{S_STMP}:{S_STMP+1}]\ns_waitcnt lgkmcnt(0)")
                    a(f"v_mov_b32 v{vtmp}, s{S_STMP}\nv_mov_b32 v{vtmp+2}, {4*(base+mp[k])}")
                    a(f"s_mov_b64 exec, 1\nglobal_store_dword v{vtmp+2}, v{vtmp}, s[{P_DBG}:{P_DBG+1}]\ns_mov_b64 exec, -1\n{lab}:")
            return
        if not self.stamps:
            return
        a = self.a
        a(f"s_memrealtime s[{S_STMP}:{S_STMP+1}]\ns_memtime s[100:101]")
        ln = str(k)
        if dyn is not None:
            a(f"s_add_u32 m0, s{dyn}, {k}")
            ln = "m0"
        a(f"s_waitcnt lgkmcnt(0)\nv_writelane_b32 v254, s{S_STMP}, {ln}\nv_writelane_b32 v255, s100, {ln}")

    def perm_setup(self, s_m, n, nshare, dst, enable):
        a = self.a
        def pk(o):
            v = 0
            for i, x in enumerate(o):
                v |= x << (4 * i)
            return v & 0xffffffff, v >> 32
        lo, hi = pk(list(range(n)))
        a(f"s_mov_b32 s{dst}, {lo:#x}\ns_mov_b32 s{dst+1}, {hi:#x}")
        if not enable:
            return
        for m in range(nshare):
            lo, hi = pk(lead_perm(n, nshare, m, enable))
            a(f"s_cmp_eq_u32 s{s_m}, {m}\ns_cselect_b32 s{dst}, {lo:#x}, s{dst}\ns_cselect_b32 s{dst+1}, {hi:#x}, s{dst+1}")

    def perm_next(self, dst, src, mul):
        t = f"s_and_b32 s{dst}, s{src}, 15\ns_lshr_b64 s[{src}:{src+1}], s[{src}:{src+1}], 4\n"
        if mul & (mul - 1) == 0:
            t += f"s_lshl_b32 s{dst}, s{dst}, {mul.bit_length()-1}\n"
        else:
            t += f"s_mul_i32 s{dst}, s{dst}, {mul}\n"
        return t

    def poll(self, voffs, vtmp):
        a = self.a
        lp, dn = a.label("poll"), a.label("pdone")
        n = len(voffs)

        def ld(k):
            for i, vo in enumerate(voffs):
                a(f"buffer_load_dword v{vtmp+k*n+i}, v{vo}, s[{R_WS}:{R_WS+3}], 0 offen sc1")

        def chk(k):
            a(f"v_cmp_ne_u32 vcc, s{S_TAG}, v{vtmp+k*n}")
            for i in range(1, n):
                a(f"v_cmp_ne_u32 s[{S_T0}:{S_T0+1}], s{S_TAG}, v{vtmp+k*n+i}\ns_nop 1\ns_or_b64 vcc, vcc, s[{S_T0}:{S_T0+1}]")
            a(f"s_nop 1\ns_cmp_eq_u64 vcc, 0\ns_cbranch_scc1 {dn}")
        if not self.o.get("pp"):
            a(f"s_mov_b32 s{S_CNT}, 0\n{lp}:")
            ld(0)
            a("s_waitcnt vmcnt(0)")
            chk(0)
            a(f"s_add_u32 s{S_CNT}, s{S_CNT}, 1\ns_cmp_lt_u32 s{S_CNT}, {SPIN_LIMIT}\ns_cbranch_scc0 {dn}\ns_sleep 1\ns_branch {lp}\n{dn}:")
            return
        sl = f"s_sleep {self.o['pp'] - 1}\n" if self.o["pp"] > 1 else ""
        a(f"s_mov_b32 s{S_CNT}, 0")
        ld(0)
        a(f"{sl}{lp}:")
        ld(1)
        a(f"s_waitcnt vmcnt({n})")
        chk(0)
        ld(0)
        a(f"s_waitcnt vmcnt({n})")
        chk(1)
        a(f"s_add_u32 s{S_CNT}, s{S_CNT}, 1\ns_cmp_lt_u32 s{S_CNT}, {SPIN_LIMIT}\ns_cbranch_scc1 {lp}\n{dn}:")

    def flag_store(self, s_off, vtmp):
        a = self.a
        a(f"v_mov_b32 v{vtmp}, s{S_TAG}\nv_mov_b32 v{vtmp+1}, 0\ns_mov_b64 exec, 1")
        a(f"buffer_store_dword v{vtmp}, v{vtmp+1}, s[{R_WS}:{R_WS+3}], s{s_off} offen sc1\ns_mov_b64 exec, -1")

    def pipeline(self, stages, L, gstar, drain=True, wait_every=2):
        a = self.a
        seq = [(si, gi, u) for si, st in enumerate(stages) for gi, u in enumerate(st["uses"])]
        issued = []
        state = dict(nxt=0, opened=-1)
        pend = []

        def collect(lim):
            while state["nxt"] < len(seq) and state["nxt"] <= lim and seq[state["nxt"]][0] <= state["opened"]:
                si_, _, u_ = seq[state["nxt"]]
                for name, txt in u_["reads"]:
                    pend.append((f"{si_}:{name}", txt))
                state["nxt"] += 1
                if seq[state["nxt"] - 1][1] == len(stages[si_]["uses"]) - 1 and si_ + 1 < len(stages):
                    state["defer"] = list(stages[si_ + 1].get("pre", []))

        def emit(n):
            for _ in range(min(n, len(pend))):
                name, txt = pend.pop(0)
                a(txt)
                if name:
                    issued.append(name)

        a(stages[0]["bar"])
        state["opened"] = 0
        collect(L - 1)
        emit(len(pend))
        n_real = sum(len(st["uses"]) for st in stages if not st.get("virtual"))
        covered = -1
        for f in range(n_real):
            si, gi, u = seq[f]
            nuse = len(stages[si]["uses"])
            if gi == 0 and stages[si].get("head"):
                assert not pend, pend
                a(stages[si]["head"])
                covered = -1
            if gi == gstar and si + 1 < len(stages):
                emit(len(pend))
                for x in state.pop("defer", []):
                    a(x)
                if drain:
                    a("s_waitcnt lgkmcnt(0)")
                    covered = len(issued) - 1
                a(stages[si + 1]["bar"])
                pend.extend((None, x) for x in stages[si + 1].get("bar_pend", []))
                state["opened"] = si + 1
                collect(f + L - 1)
            def lastidx(ff):
                s_, _, uu = seq[ff]
                return max(len(issued) - 1 - issued[::-1].index(f"{s_}:{nm}") for nm in uu["need"])
            w = []
            if lastidx(f) > covered:
                tgt = lastidx(f)
                for ff in range(f + 1, min(f + wait_every, n_real)):
                    if seq[ff][0] != si:
                        break
                    try:
                        tgt = max(tgt, lastidx(ff))
                    except ValueError:
                        break
                n = len(issued) - 1 - tgt
                assert n <= 15, n
                w.append(f"lgkmcnt({n})")
                covered = tgt
            if u.get("vm") is not None:
                npv = sum(1 for nm_, t_ in pend if t_.strip().startswith("buffer_load"))
                w.insert(0, f"vmcnt({u['vm'] - npv})")
            if w:
                a("s_waitcnt " + " ".join(w))
            if u.get("before"):
                a(u["before"])
            if state.get("defer") and not pend:
                n_ = self.o.get("npre", 7)
                pend.extend((None, x) for x in state["defer"][:n_])
                state["defer"] = state["defer"][n_:]
            collect(f + L)
            if state.get("mix"):
                k_ = state.pop("mix")
                head_, rest_ = pend[:k_], pend[k_:]
                pend[:] = [x for pr in zip(head_, rest_) for x in pr] + head_[len(rest_):] + rest_[len(head_):]
            nm_ = len(u["mf"])
            for k, m in enumerate(u["mf"]):
                a(m)
                left = nm_ - k
                if drain and gi >= gstar:
                    left += sum(len(uu["mf"]) for uu in stages[si]["uses"][gi + 1:])
                    extra = 2 * (nuse - 1 - gi)
                    emit(-(-(len(pend) + extra) // left) if left > 1 else len(pend))
                else:
                    emit(-(-len(pend) // left))
            if u.get("after"):
                items = [x for x in u["after"].split("\n") if x.strip()]
                if gi == nuse - 1:
                    for x in items:
                        a(x)
                else:
                    assert not pend
                    pend.extend((None, x) for x in items)
                    state["mix"] = len(items)
            if gi == nuse - 1 and stages[si].get("tail"):
                a(stages[si]["tail"])

    def prologue(self):
        a = self.a
        a(f"""
        s_cmp_ge_u32 s2, 256
        s_cbranch_scc1 L_exit
        {"v_mov_b32 v254, 0" if self.stamps else ""}
        {"v_mov_b32 v255, 0" if self.stamps else ""}
        {"s_memrealtime s[98:99]" if self.o.get("calib") else ""}
        s_load_dwordx16 s[4:19], s[0:1], 0
        s_load_dwordx8 s[20:27], s[0:1], 64
        v_and_b32 v1, 63, v0
        v_lshrrev_b32 v2, 6, v0
        s_and_b32 s{S_XCD}, s2, 7
        v_readfirstlane_b32 s{S_WAVE}, v2
        s_lshr_b32 s{S_J}, s2, 3
        s_waitcnt lgkmcnt(0)
        s_load_dword s{S_TAG}, s[{P_WS}:{P_WS+1}], 0
        """)
        self.srd(R_WS, P_WS, WS_USED)
        self.srd(R_X, P_X, 2048 * 1280)
        self.srd(R_W2, P_W2, 1536 * 4096)
        if self.stamps or self.o.get("dbg"):
            a(f"s_cmp_lg_u32 s{S_WAVE}, 0\ns_cbranch_scc1 L_nost0")
            self.stamp(0, 4)
            a("L_nost0:")
        if self.o.get("tlb"):
            self.tlb_warm()
        if self.o.get("pf_code"):
            self.code_prefetch()
        if self.o.get("prio"):
            a(f"""
            s_sub_u32 s{S_T0}, s{S_WAVE}, 4
            s_cmp_lt_u32 s{S_T0}, 3
            s_cbranch_scc1 L_noprio
            s_setprio 3
            L_noprio:
            """)
        a(f"""
        s_lshr_b32 s{S_T0}, s{S_XCD}, 1
        s_lshl_b32 s{S_T0}, s{S_T0}, 3
        s_lshr_b32 s{S_ST}, s{S_J}, 2
        s_add_u32 s{S_ST}, s{S_ST}, s{S_T0}
        s_and_b32 s{S_T0}, s{S_XCD}, 1
        s_lshl_b32 s{S_T0}, s{S_T0}, 2
        s_and_b32 s{S_DTILE}, s{S_J}, 3
        s_add_u32 s{S_DTILE}, s{S_DTILE}, s{S_T0}
        s_cmp_lt_u32 s{S_XCD}, 4
        s_cbranch_scc1 L_roleB
        """)

    V_W2 = 240

    def f_perm(self):
        a = self.a
        a(f"s_lshl_b32 s{S_M}, s{S_DTILE}, 1\ns_add_u32 s{S_M}, s{S_M}, s{S_ST}\ns_and_b32 s{S_M}, s{S_M}, 7")
        self.perm_setup(S_M, 12, 8, S_PERM, self.o.get("rotF"))

    def w2_setup(self):
        a = self.a
        V = self.V_W2
        self.f_perm()
        a(f"""
        v_lshrrev_b32 v{V}, 3, v1
        v_lshrrev_b32 v{V+1}, 4, v1
        v_lshlrev_b32 v{V+1}, 1, v{V+1}
        v_and_b32 v{V+2}, 7, v1
        v_xor_b32 v{V+1}, v{V+1}, v{V+2}
        v_lshlrev_b32 v{V+1}, 4, v{V+1}
        v_lshl_add_u32 v{V}, v{V}, 12, v{V+1}
        v_add_u32 v{V+1}, {32768-1024}, v{V}
        v_add_u32 v{V+2}, {2*(32768-1024)}, v{V}
        v_add_u32 v{V+3}, {3*(32768-1024)}, v{V}
        s_sub_u32 s{S_T0}, s{S_WAVE}, 5
        s_lshl_b32 s{S_B}, s{S_T0}, 13
        s_lshl_b32 s{S_A}, s{S_T0}, 18
        s_lshl_b32 s{S_T0}, s{S_ST}, 7
        s_add_u32 s{S_A}, s{S_A}, s{S_T0}
        """)

    def w2_issue(self):
        a = self.a
        V = self.V_W2
        a(self.perm_next(S_T0, S_PERM, 128 * 4096))
        a(f"s_add_u32 s{S_T0}, s{S_T0}, s{S_A}")
        for g in range(2):
            a(f"s_add_u32 m0, s{S_B}, {g*4096}")
            a(f"s_add_u32 s{S_T0}, s{S_T0}, {g*4*32768}")
            for i in range(4):
                a(f"buffer_load_dwordx4 v{V+i}, s[{R_W2}:{R_W2+3}], s{S_T0} offen offset:{i*1024} lds")
        a(f"s_add_u32 s{S_B}, s{S_B}, 16384\ns_and_b32 s{S_B}, s{S_B}, 0x1ffff")

    def w2_prefill(self, n):
        if n == 0:
            return
        a = self.a
        lp = a.label("pf")
        a(f"s_mov_b32 s{S_C}, 0\n{lp}:")
        self.w2_issue()
        a(f"s_add_u32 s{S_C}, s{S_C}, 1\ns_cmp_lt_u32 s{S_C}, {n}\ns_cbranch_scc1 {lp}")

    def if_wave56(self):
        a = self.a
        skip = a.label("n56")
        a(f"s_sub_u32 s{S_T0}, s{S_WAVE}, 5\ns_cmp_lt_u32 s{S_T0}, 2\ns_cbranch_scc0 {skip}")
        return skip

    def role_a(self):
        a = self.a
        a(f"L_roleA:\ns_mov_b32 s{S_FROMA}, 1")
        a(f"s_sub_u32 s{S_MT}, s{S_ST}, 16\ns_mov_b32 s{S_HG}, s{S_DTILE}")
        a(f"s_cmp_ge_u32 s{S_WAVE}, 4\ns_cbranch_scc1 L_A_loader")
        ACC, XF, WF, VXA, VWA = 128, 96, 64, 4, 6
        if self.o.get("ta1") or self.o.get("ta2"):
            self.start_prefetch()
        self.a_thread_map()
        a(f"""
        v_and_b32 v16, 15, v1
        v_lshrrev_b32 v17, 4, v1
        s_lshl_b32 s{S_T0}, s{S_WAVE}, 5
        v_add_u32 v18, s{S_T0}, v16
        v_lshrrev_b32 v19, 1, v16
        v_xor_b32 v19, v17, v19
        v_lshlrev_b32 v19, 4, v19
        v_lshl_add_u32 v{VXA}, v18, 7, v19
        v_xor_b32 v{VXA+1}, 64, v{VXA}
        v_lshrrev_b32 v18, 2, v16
        v_lshl_add_u32 v19, v17, 3, v18
        v_and_b32 v20, 1, v17
        v_lshl_or_b32 v20, v20, 2, v18
        v_lshlrev_b32 v19, 9, v19
        v_lshl_add_u32 v19, v20, 5, v19
        v_and_b32 v20, 3, v16
        v_lshl_add_u32 v19, v20, 3, v19
        v_add_u32 v{VWA}, {A_WOFF}, v19
        """)
        for n in range(1, 8):
            a(f"v_xor_b32 v{VWA+n}, {n<<5}, v{VWA}")
        for r in range(120):
            a(f"v_mov_b32 v{ACC+r}, 0")
        a(f"s_mov_b32 s{S_A}, 0\ns_mov_b32 s{S_B}, 0\ns_mov_b32 s{S_C}, {A_SLOT}\ns_waitcnt lgkmcnt(0)")
        a(f"s_add_u32 s{S_TAG}, s{S_TAG}, {TAG_INC:#x}")

        RING = 6
        D = 6

        def mk_stage(bar, virtual=False, head=None, tail=None):
            uses = []
            for g in range(30):
                ks, n = divmod(g, 15)
                wb = WF + 4 * (g % RING)
                reads = []
                if g == 0:
                    for rb in range(2):
                        reads.append((f"x0{rb}", f"ds_read_b128 {vr(XF+4*rb,4)}, v{VXA} offset:{rb*2048}"))
                if g == 13:
                    for rb in range(2):
                        reads.append((f"x1{rb}", f"ds_read_b128 {vr(XF+8+4*rb,4)}, v{VXA+1} offset:{rb*2048}"))
                off = ks * 16384 + (n >> 3) * 256
                reads.append((f"w{g}a", f"ds_read_b64_tr_b16 {vr(wb,2)}, v{VWA+(n&7)} offset:{off}"))
                reads.append((f"w{g}b", f"ds_read_b64_tr_b16 {vr(wb+2,2)}, v{VWA+(n&7)} offset:{off+2048}"))
                need = [f"w{g}b", f"x{ks}1"]
                mf = []
                for rb in range(2):
                    acc = vr(ACC + (n * 2 + rb) * 4, 4)
                    xf = vr(XF + ks * 8 + rb * 4, 4)
                    wf = vr(wb, 4)
                    if n < 5:
                        mf.append(f"v_mfma_f32_16x16x32_bf16 {acc}, {wf}, {xf}, {acc}")
                    else:
                        mf.append(f"v_mfma_f32_16x16x32_bf16 {acc}, {xf}, {wf}, {acc}")
                uses.append(dict(reads=reads, need=need, mf=mf))
            return dict(uses=uses, bar=bar, virtual=virtual, head=head, tail=tail)

        adv = "s_barrier"
        pre = [f"s_add_u32 s{S_B}, s{S_B}, 1", f"s_cmp_eq_u32 s{S_B}, 3", f"s_cselect_b32 s{S_B}, 0, s{S_B}",
               f"s_cselect_b32 s{S_T0}, {(-2*A_SLOT) & 0xffffffff:#x}, s{S_C}"]
        pre += [f"v_add_u32 v{r}, s{S_T0}, v{r}" for r in range(VXA, VWA + 8)]
        tail = f"s_add_u32 s{S_A}, s{S_A}, 1\ns_cmp_lt_u32 s{S_A}, 10\ns_cbranch_scc1 L_A_loop"
        head = "L_A_loop:\n"
        bar0 = "s_barrier"
        if self.o.get("tw2") == 2:
            self.srd(R_P, P_WO, 640 * 1280)
            a(f"""
            v_lshlrev_b32 v252, 7, v1
            s_lshl_b32 s{S_T0}, s{S_MT}, 3
            s_add_u32 s{S_T0}, s{S_T0}, s{S_HG}
            s_lshl_b32 s{S_T0}, s{S_T0}, 2
            s_add_u32 s{S_T0}, s{S_T0}, s{S_WAVE}
            s_mul_i32 s{S_D}, s{S_T0}, 12288
            s_add_u32 s{S_KST}, s{S_D}, 8192
            s_mul_i32 s{S_PAR}, s{S_T0}, 1664
            s_and_b32 s{S_M}, s{S_J}, 7
            s_add_u32 s{S_M}, s{S_M}, {self.o.get("tw2at", 1)}
            """)
            head += f"""
            s_cmp_lg_u32 s{S_A}, s{S_M}
            s_cbranch_scc1 L_A_nt2
            buffer_load_dword v253, v252, s[{R_W2}:{R_W2+3}], s{S_D} offen
            s_mov_b32 exec_hi, 0
            buffer_load_dword v253, v252, s[{R_W2}:{R_W2+3}], s{S_KST} offen
            s_mov_b32 exec_lo, 0x1fff
            buffer_load_dword v253, v252, s[{R_P}:{R_P+3}], s{S_PAR} offen
            s_mov_b64 exec, -1
            L_A_nt2:
            """
        ta2 = self.o.get("ta2")
        if ta2 == 1:
            a(self.pf_rest())
        elif ta2 == 2:
            bar0 += "\n" + self.pf_rest()
        elif ta2:
            head += f"s_cmp_lg_u32 s{S_A}, {ta2-2}\ns_cbranch_scc1 L_A_npf\n" + self.pf_rest() + "L_A_npf:\n"
        self.pipeline([mk_stage(bar0, head=head, tail=tail), dict(mk_stage(adv, virtual=True), pre=pre)], 5, 30 - 3, wait_every=self.o.get('we', 2))
        self.stamp(2, 16)
        PK, VV, ONES, KVD, ZD = 16, 36, 56, 64, 116
        a("s_waitcnt lgkmcnt(0)\ns_nop 7")
        a(f"s_mov_b32 s{S_K0}, {LOG2E:#x}\ns_mov_b32 s{S_K0+1}, {LOG2E:#x}\ns_mov_b32 s{S_K0+2}, {f2u(1e-6):#x}")

        def phi(base, n, t):
            for i in range(0, n, 4):
                r = base + i
                a(f"v_pk_mul_f32 {vr(t,2)}, {vr(r,2)}, s[{S_K0}:{S_K0+1}]")
                a(f"v_pk_mul_f32 {vr(t+2,2)}, {vr(r+2,2)}, s[{S_K0}:{S_K0+1}]")
                for k in range(4):
                    a(f"v_exp_f32_e64 v{t+k}, v{t+k} clamp")
                for k in range(4):
                    a(f"v_max_f32 v{r+k}, s{S_K0+2}, v{r+k}")
                a(f"v_pk_add_f32 {vr(r,2)}, {vr(r,2)}, {vr(t,2)}")
                a(f"v_pk_add_f32 {vr(r+2,2)}, {vr(r+2,2)}, {vr(t+2,2)}")

        def pack(dst, src0, src1):
            a(f"v_cvt_pk_bf16_f32 v{dst}, v{src0}, v{src0+1}\nv_cvt_pk_bf16_f32 v{dst+1}, v{src0+2}, v{src0+3}")
            if src1 is None:
                a(f"v_mov_b32 v{dst+2}, 0\nv_mov_b32 v{dst+3}, 0")
            else:
                a(f"v_cvt_pk_bf16_f32 v{dst+2}, v{src1}, v{src1+1}\nv_cvt_pk_bf16_f32 v{dst+3}, v{src1+2}, v{src1+3}")

        for b in range(5):
            pack(VV + 4 * b, ACC + (10 + b) * 8, ACC + (10 + b) * 8 + 4)
        for k in range(4):
            a(f"v_mov_b32 v{ONES+k}, 0x3f803f80")
        phi(ACC + 40, 40, 60)
        for b in range(5):
            pack(PK + 4 * b, ACC + (5 + b) * 8, ACC + (5 + b) * 8 + 4)
        a("s_nop 1")
        ZD = ACC + 80
        blocks = [(x, y) for x in range(5) for y in range(5) if abs(x - y) <= 1]
        for (x, y) in blocks:
            a(f"v_mfma_f32_16x16x32_bf16 {vr(KVD+4*(2*x+y),4)}, {vr(PK+4*x,4)}, {vr(VV+4*y,4)}, 0")
        for x in range(5):
            a(f"v_mfma_f32_16x16x32_bf16 {vr(ZD+4*x,4)}, {vr(ONES,4)}, {vr(PK+4*x,4)}, 0")
        a(f"""
        s_mul_i32 s{S_T0}, s{S_WAVE}, {EXCH_ST}
        s_add_u32 s{S_T0}, s{S_T0}, {EXCH}
        v_lshlrev_b32 v60, 4, v1
        v_add_u32 v60, s{S_T0}, v60
        v_and_b32 v61, 15, v1
        v_lshlrev_b32 v61, 2, v61
        v_add_u32 v61, s{S_T0}, v61
        s_nop 3
        """)
        for i in range(13):
            a(f"ds_write_b128 v60, {vr(KVD+4*i,4)} offset:{i*1024}")
        for x in range(5):
            a(f"ds_write_b32 v61, v{ZD+4*x} offset:{13312+64*x}")
        a("s_waitcnt lgkmcnt(0)\ns_barrier")
        self.a_reduce_publish(64)
        a("s_waitcnt vmcnt(0)\ns_barrier")
        PQ = 16
        phi(ACC, 40, 60)
        for ts in range(3):
            for rb in range(2):
                pack(PQ + (ts * 2 + rb) * 4, ACC + (2 * ts * 2 + rb) * 4, None if ts == 2 else ACC + ((2 * ts + 1) * 2 + rb) * 4)
        self.uw_srd()
        a("v_lshlrev_b32 v60, 4, v1\ns_barrier")
        self.wot_preload(60)
        a("s_barrier")
        a(f"""
        v_and_b32 v63, 15, v1
        v_lshlrev_b32 v63, 2, v63
        s_lshl_b32 s{S_T0}, s{S_MT}, 7
        s_lshl_b32 s{S_T0+1}, s{S_WAVE}, 5
        s_add_u32 s{S_T0}, s{S_T0}, s{S_T0+1}
        s_lshl_b32 s{S_T0}, s{S_T0}, 2
        s_add_u32 s{S_T0}, s{S_T0}, {G_OFF}
        buffer_load_dword v62, v63, s[{R_WS}:{R_WS+3}], s{S_T0} offen sc1
        buffer_load_dword v61, v63, s[{R_WS}:{R_WS+3}], s{S_T0} offen offset:64 sc1
        """)
        self.a_gather(64)
        a("s_waitcnt lgkmcnt(0)\ns_barrier")
        self.stamp(4, 40)
        FR = 64
        a("v_lshlrev_b32 v60, 4, v1\nv_add_u32 v60, " + str(KVT) + ", v60")
        used = [0, 2, 3, 4, 5, 7, 8, 9, 10, 11, 12, 13]
        for f in used:
            a(f"ds_read_b128 {vr(FR+4*f,4)}, v60 offset:{f*1024}")
        NUM, DEN = 128, 120
        kts = {0: [0], 1: [0, 1], 2: [0, 1], 3: [1, 2], 4: [1, 2]}
        a(f"""
        v_lshrrev_b32 v40, 4, v1
        v_cmp_gt_u32 s[{S_MSK}:{S_MSK+1}], 1, v40
        v_cmp_gt_u32 s[{S_MSK+2}:{S_MSK+3}], 2, v40
        v_cmp_gt_u32 s[{S_MSK+4}:{S_MSK+5}], 3, v40
        s_waitcnt lgkmcnt(0)
        """)
        for rb in range(2):
            for ts in range(3):
                c = "0" if ts == 0 else vr(DEN + 4 * rb, 4)
                a(f"v_mfma_f32_16x16x32_bf16 {vr(DEN+4*rb,4)}, {vr(FR+4*(11+ts),4)}, {vr(PQ+(ts*2+rb)*4,4)}, {c}")
        for rb in range(2):
            for b in range(5):
                for i, ts in enumerate(kts[b]):
                    d = vr(NUM + (rb * 5 + b) * 4, 4)
                    c = "0" if i == 0 else d
                    a(f"v_mfma_f32_16x16x32_bf16 {d}, {vr(FR+4*(2*b+ts),4)}, {vr(PQ+(ts*2+rb)*4,4)}, {c}")
        for rb in range(2):
            for h in range(4):
                a(f"v_add_f32 v{DEN+4*rb+h}, s{S_K0+2}, v{DEN+4*rb+h}")
        for rb in range(2):
            for h in range(4):
                a(f"v_rcp_f32 v{DEN+4*rb+h}, v{DEN+4*rb+h}")
        a("s_nop 0")
        gv = {0: 62, 1: 61}
        for rb in range(2):
            for h in range(4):
                a(f"v_mul_f32 v{DEN+4*rb+h}, v{gv[rb]}, v{DEN+4*rb+h}")
        a(f"""
        s_lshl_b32 s{S_T0}, s{S_MT}, 3
        s_lshl_b32 s{S_T0+1}, s{S_WAVE}, 1
        s_add_u32 s{S_T0}, s{S_T0}, s{S_T0+1}
        s_mul_i32 s{S_T0}, s{S_T0}, {GO_ST}
        s_add_u32 s{S_T0}, s{S_T0}, {GO}
        s_lshl_b32 s{S_T0+1}, s{S_HG}, 11
        s_add_u32 s{S_T0+1}, s{S_T0+1}, s{S_T0}
        s_lshl_b32 s{S_T0+2}, s{S_HG}, 9
        s_add_u32 s{S_T0+2}, s{S_T0+2}, s{S_T0}
        s_add_u32 s{S_T0+2}, s{S_T0+2}, 16384
        v_lshlrev_b32 v40, 4, v1
        v_lshlrev_b32 v41, 3, v1
        """)
        for rb in range(2):
            d = DEN + 4 * rb
            a(f"v_cndmask_b32 v44, v{d+1}, v{d}, s[{S_MSK}:{S_MSK+1}]")
            a(f"v_cndmask_b32 v45, v{d+2}, v{d+1}, s[{S_MSK+2}:{S_MSK+3}]")
            a(f"v_cndmask_b32 v46, v{d+3}, v{d+2}, s[{S_MSK+4}:{S_MSK+5}]")
            sc = [d, 44, 45, 46, d + 3]
            for b in range(5):
                for k in range(4):
                    r = NUM + (rb * 5 + b) * 4 + k
                    a(f"v_mul_f32 v{r}, v{sc[b]}, v{r}")
            o = 16 + rb * 12
            n0 = NUM + rb * 20
            pack(o, n0, n0 + 4)
            pack(o + 4, n0 + 8, n0 + 12)
            a(f"v_cvt_pk_bf16_f32 v{o+8}, v{n0+16}, v{n0+17}\nv_cvt_pk_bf16_f32 v{o+9}, v{n0+18}, v{n0+19}")
            a(f"buffer_store_dwordx4 {vr(o,4)}, v40, s[{R_WS}:{R_WS+3}], s{S_T0+1} offen sc1")
            a(f"buffer_store_dwordx4 {vr(o+4,4)}, v40, s[{R_WS}:{R_WS+3}], s{S_T0+1} offen offset:1024 sc1")
            a(f"buffer_store_dwordx2 {vr(o+8,2)}, v41, s[{R_WS}:{R_WS+3}], s{S_T0+2} offen sc1")
            if rb == 0:
                a(f"s_add_u32 s{S_T0+1}, s{S_T0+1}, {GO_ST}\ns_add_u32 s{S_T0+2}, s{S_T0+2}, {GO_ST}")
        self.stamp(5, 40)
        a("s_branch L_F_comp")

        a("L_A_loader:")
        VX, VW = 4, 8
        self.srd(R_W, P_WQKV, 640 * 3840)
        a(f"""
        s_sub_u32 s{S_D}, s{S_WAVE}, 4
        v_lshrrev_b32 v16, 3, v1
        v_lshrrev_b32 v17, 4, v1
        v_and_b32 v18, 7, v1
        v_xor_b32 v17, v17, v18
        v_lshlrev_b32 v17, 4, v17
        v_mul_u32_u24 v16, 1280, v16
        v_add_u32 v{VX}, v16, v17
        v_xor_b32 v18, 64, v{VX}
        v_add_u32 v{VX+1}, {8*1280-1024}, v18
        v_add_u32 v{VX+2}, {2*(8*1280-1024)}, v{VX}
        v_add_u32 v{VX+3}, {3*(8*1280-1024)}, v18
        s_lshl_b32 s{S_T0}, s{S_MT}, 7
        s_lshl_b32 s{S_T0+1}, s{S_D}, 5
        s_add_u32 s{S_T0}, s{S_T0}, s{S_T0+1}
        s_mul_i32 s{S_A}, s{S_T0}, 1280
        s_lshl_b32 s{S_C}, s{S_D}, 12
        """)
        def issue_x():
            a(f"s_mov_b32 m0, s{S_C}\ns_nop 0")
            for i in range(4):
                a(f"buffer_load_dwordx4 v{VX+i}, s[{R_X}:{R_X+3}], s{S_A} offen offset:{i*1024} lds")
            a(f"s_add_u32 s{S_A}, s{S_A}, 128")

        def issue_w():
            for g in range(2):
                a(f"s_lshl_b32 s{S_T0}, s{S_D}, 12\ns_add_u32 s{S_T0}, s{S_T0}, s{S_C}\ns_add_u32 m0, s{S_T0}, {A_WOFF + g*4096}\ns_nop 0")
                for i in range(4):
                    a(f"buffer_load_dwordx4 v{VW+4*g+i}, s[{R_W}:{R_W+3}], s{S_B} offen offset:{i*1024} lds")
            a(f"s_add_u32 s{S_B}, s{S_B}, {64*3840}")

        def next_slot():
            a(f"s_add_u32 s{S_C}, s{S_C}, {A_SLOT}\ns_cmp_ge_u32 s{S_C}, {3*A_SLOT}\ns_cselect_b32 s{S_T0}, {3*A_SLOT}, 0\ns_sub_u32 s{S_C}, s{S_C}, s{S_T0}")

        issue_x()
        a(f"""
        v_lshrrev_b32 v16, 5, v1
        v_bfe_u32 v17, v1, 1, 4
        v_and_b32 v18, 1, v1
        v_lshlrev_b32 v18, 4, v18
        v_mul_u32_u24 v19, 3840, v16
        v_add_u32 v18, v18, v19
        """)
        for i in (0, 1, 4, 5):
            sig = (2 * (i & 1)) | ((i >> 2) << 2)
            a(f"""
            v_or_b32 v19, {sig}, v16
            v_xor_b32 v19, v17, v19
            v_min_u32 v19, 14, v19
            v_mul_u32_u24 v20, 13, v19
            v_lshrrev_b32 v20, 6, v20
            v_mul_u32_u24 v20, 1120, v20
            v_lshl_add_u32 v19, v19, 5, v20
            v_add_u32 v19, v19, v18
            v_add_u32 v{VW+i}, {2*i*3840 - (i&3)*1024}, v19
            v_add_u32 v{VW+i+2}, {2*(i+2)*3840 - ((i+2)&3)*1024}, v19
            """)
        a(f"""
        s_mul_i32 s{S_B}, s{S_HG}, 160
        s_mul_i32 s{S_T0}, s{S_D}, {16*3840}
        s_add_u32 s{S_B}, s{S_B}, s{S_T0}
        """)
        issue_w()
        for _ in range(2):
            next_slot()
            issue_x()
            issue_w()
        a(f"v_lshlrev_b32 v16, 4, v1\ns_lshl_b32 s{S_T0}, s{S_D}, 12\ns_add_u32 s{S_T0}, s{S_T0}, {KVT}\nv_add_u32 v16, s{S_T0}, v16")
        a("v_mov_b32 v20, 0\nv_mov_b32 v21, 0\nv_mov_b32 v22, 0\nv_mov_b32 v23, 0")
        for i in range(4):
            a(f"ds_write_b128 v16, v[20:23] offset:{i*1024}")
        a(f"s_waitcnt lgkmcnt(0)\ns_add_u32 s{S_TAG}, s{S_TAG}, {TAG_INC:#x}")
        a("s_waitcnt vmcnt(24)\ns_barrier")
        self.stamp(1, 16)
        a(f"s_mov_b32 s{S_CNT}, 1\nL_A_lloop:")
        a("s_waitcnt vmcnt(12)\ns_barrier")
        self.stamp(16, 16, dyn=S_CNT)
        next_slot()
        issue_x()
        issue_w()
        a(f"s_add_u32 s{S_CNT}, s{S_CNT}, 1\ns_cmp_le_u32 s{S_CNT}, 7\ns_cbranch_scc1 L_A_lloop")
        tw = 3 if self.o.get("tw2") == 1 else 0
        a(f"s_waitcnt vmcnt(12)\ns_barrier")
        if tw:
            self.w2_touch()
        self.stamp(24, 16)
        a(f"s_waitcnt vmcnt({tw})\ns_barrier")
        self.stamp(25, 16)
        a("s_barrier")
        self.stamp(26, 16)
        nA0 = self.o.get("nA0", 4)
        self.w2_setup()
        skip0 = self.if_wave56()
        self.w2_prefill(nA0)
        a(f"{skip0}:")
        self.a_thread_map()
        a("s_barrier")
        a(f"s_cmp_eq_u32 s{S_WAVE}, 7\ns_cbranch_scc1 L_A_poller")
        self.a_reduce_publish(64)
        a("s_waitcnt vmcnt(0)\ns_barrier")
        skip = self.if_wave56()
        a("s_nop 7\ns_nop 7")
        self.w2_prefill(8 - nA0)
        a("s_barrier\ns_barrier")
        self.a_gather(64)
        a("s_waitcnt lgkmcnt(0)\ns_barrier")
        a("s_branch L_F_loader")
        a(f"{skip}:\ns_barrier\ns_barrier")
        self.a_gather(64)
        a("s_waitcnt lgkmcnt(0)\ns_barrier")
        a("s_branch L_F_u4")
        a("L_A_poller:\ns_barrier")
        a(f"s_lshl_b32 s{S_T0}, s{S_HG}, 4\ns_add_u32 s{S_T0}, s{S_T0}, s{S_MT}\ns_mul_i32 s{S_T0}, s{S_T0}, {FS}\ns_add_u32 s{S_T0}, s{S_T0}, {F_KV}")
        self.flag_store(S_T0, 16)
        self.stamp(3, 16)
        a(f"s_mul_i32 s{S_T0}, s{S_DTILE}, {FS}\ns_add_u32 s{S_T0}, s{S_T0}, {F_WOT}\nv_mov_b32 v16, s{S_T0}")
        self.poll([16], 18)
        a("s_barrier")
        a(f"""
        v_and_b32 v16, 15, v1
        s_lshl_b32 s{S_T0}, s{S_HG}, 4
        v_add_u32 v16, s{S_T0}, v16
        v_mul_u32_u24 v16, {FS}, v16
        v_add_u32 v16, {F_KV}, v16
        v_and_b32 v17, 3, v1
        s_lshl_b32 s{S_T0}, s{S_MT}, 2
        v_add_u32 v17, s{S_T0}, v17
        v_mul_u32_u24 v17, {FS}, v17
        v_add_u32 v17, {F_LN}, v17
        v_cmp_gt_u32 vcc, 32, v1
        s_nop 1
        v_cndmask_b32 v16, v17, v16, vcc
        """)
        self.poll([16], 18)
        self.stamp(13, 16)
        a("s_barrier\ns_barrier")
        a("s_branch L_F_poller")

    def start_prefetch(self):
        a = self.a
        self.srd(R_W, P_WQKV, 640 * 3840)
        a(f"""
        s_lshl_b32 s{S_T0}, s{S_J}, 2
        s_add_u32 s{S_T0}, s{S_T0}, s{S_WAVE}
        v_lshrrev_b32 v16, 2, v1
        v_and_b32 v17, 3, v1
        v_mul_u32_u24 v16, 1280, v16
        v_lshl_add_u32 v16, v17, 7, v16
        s_lshr_b32 s{S_T0+2}, s{S_MT}, 3
        s_lshl_b32 s{S_T0+2}, s{S_T0+2}, 7
        s_add_u32 s{S_T0+2}, s{S_T0+2}, s{S_T0}
        s_mul_i32 s{S_DT}, s{S_T0+2}, {8*1280}
        v_lshrrev_b32 v19, 4, v1
        v_and_b32 v17, 15, v1
        v_min_u32 v17, 14, v17
        v_mul_u32_u24 v18, 13, v17
        v_lshrrev_b32 v18, 6, v18
        v_mul_u32_u24 v18, 640, v18
        v_lshl_add_u32 v18, v17, 7, v18
        v_mul_u32_u24 v19, 3840, v19
        v_add_u32 v112, v18, v19
        s_lshr_b32 s{S_T0+2}, s{S_HG}, 2
        s_mul_i32 s{S_T0+2}, s{S_T0+2}, 640
        s_mul_i32 s{S_FT}, s{S_T0}, {2*3840}
        s_add_u32 s{S_FT}, s{S_FT}, s{S_T0+2}
        """)
        if self.o.get("ta1"):
            a(f"""
            s_mov_b32 exec_hi, 0
            buffer_load_dword v253, v112, s[{R_W}:{R_W+3}], s{S_FT} offen
            buffer_load_dword v253, v16, s[{R_X}:{R_X+3}], s{S_DT} offen
            s_mov_b32 exec_hi, -1
            """)
        a(f"""
        s_mul_i32 s{S_FT}, s{S_T0}, {3*3840}
        s_add_u32 s{S_FT}, s{S_FT}, s{S_T0+2}
        s_add_u32 s{S_FT}, s{S_FT}, {256*3840}
        v_lshrrev_b32 v16, 3, v1
        v_and_b32 v17, 7, v1
        v_min_u32 v17, 5, v17
        v_mul_u32_u24 v16, 1280, v16
        v_lshl_add_u32 v113, v17, 7, v16
        s_add_u32 s{S_DT}, s{S_DT}, 512
        """)

    def pf_rest(self):
        return f"""s_mov_b32 exec_hi, 0xffff
        buffer_load_dword v253, v112, s[{R_W}:{R_W+3}], s{S_FT} offen
        s_mov_b32 exec_hi, -1
        buffer_load_dword v253, v113, s[{R_X}:{R_X+3}], s{S_DT} offen
        """

    def w2_touch(self):
        a = self.a
        self.srd(R_W2, P_W2, 1536 * 4096)
        a(f"""
        v_lshlrev_b32 v48, 7, v1
        s_lshl_b32 s{S_T0}, s{S_MT}, 3
        s_add_u32 s{S_T0}, s{S_T0}, s{S_HG}
        s_lshl_b32 s{S_T0}, s{S_T0}, 2
        s_add_u32 s{S_T0}, s{S_T0}, s{S_D}
        s_mul_i32 s{S_T0}, s{S_T0}, 12288
        buffer_load_dword v253, v48, s[{R_W2}:{R_W2+3}], s{S_T0} offen
        s_add_u32 s{S_T0}, s{S_T0}, 8192
        s_mov_b32 exec_hi, 0
        buffer_load_dword v253, v48, s[{R_W2}:{R_W2+3}], s{S_T0} offen
        """)
        self.srd(R_P, P_WO, 640 * 1280)
        a(f"""
        s_lshl_b32 s{S_T0}, s{S_MT}, 3
        s_add_u32 s{S_T0}, s{S_T0}, s{S_HG}
        s_lshl_b32 s{S_T0}, s{S_T0}, 2
        s_add_u32 s{S_T0}, s{S_T0}, s{S_D}
        s_mul_i32 s{S_T0}, s{S_T0}, 1664
        s_mov_b32 exec_lo, 0x1fff
        buffer_load_dword v253, v48, s[{R_P}:{R_P+3}], s{S_T0} offen
        s_mov_b64 exec, -1
        """)

    def tlb_warm(self):
        a = self.a
        mode = self.o["tlb"]
        wv = self.o.get("tlbw", 3)
        a(f"s_cmp_lg_u32 s{S_WAVE}, {wv}\ns_cbranch_scc1 L_notlb")
        self.srd(R_OUT, P_OUT, 2048 * 1280)
        self.srd(R_M, P_B2, 4096)
        self.srd(R_P, P_WO, 640 * 1280)
        self.srd(R_W, P_W1, 2048 * 3072)
        if mode == 1:
            a("v_lshlrev_b32 v4, 20, v1\nv_min_u32 v4, 0xf00000, v4\ns_mov_b64 exec, 0xffff")
            so = "0"
        else:
            a(f"v_lshlrev_b32 v4, 21, v1\ns_lshl_b32 s{S_T0}, s{S_J}, 16\ns_mov_b64 exec, 0x1f")
            so = f"s{S_T0}"
        for r in (R_WS, R_W2, R_OUT, R_W, R_P, R_M):
            a(f"buffer_load_dword v253, v4, s[{r}:{r+3}], {so} offen sc1")
        a("s_mov_b64 exec, -1\nL_notlb:")

    def code_prefetch(self):
        a = self.a
        a(f"""
        s_cmp_lg_u32 s{S_WAVE}, 3
        s_cbranch_scc1 L_nocpf
        s_cmp_ge_u32 s{S_J}, 4
        s_cbranch_scc1 L_nocpf
        s_getpc_b64 s[{S_T0}:{S_T0+1}]
        L_pcref:
        s_lshl_b32 s{S_T0+2}, s{S_J}, 13
        v_lshlrev_b32 v4, 7, v1
        v_add_u32 v4, s{S_T0+2}, v4
        v_min_u32 v4, L_end-L_pcref, v4
        global_load_dword v253, v4, s[{S_T0}:{S_T0+1}]
        L_nocpf:
        """)

    def a_thread_map(self):
        a = self.a
        a(f"""
        v_mul_u32_u24 v16, 625, v0
        v_lshrrev_b32 v16, 16, v16
        v_mul_u32_u24 v17, 105, v16
        v_sub_u32 v17, v0, v17
        v_mul_u32_u24 v18, 205, v17
        v_lshrrev_b32 v18, 10, v18
        v_mul_u32_u24 v19, 5, v18
        v_sub_u32 v19, v17, v19
        v_mad_u32_u24 v19, v16, 5, v19
        v_mad_u32_u24 v20, v16, 20, v18
        v_lshrrev_b32 v21, 2, v19
        v_and_b32 v22, 3, v19
        v_lshrrev_b32 v23, 4, v20
        v_and_b32 v20, 15, v20
        v_lshl_add_u32 v20, v22, 4, v20
        v_lshl_add_u32 v2, v21, 1, v23
        v_lshlrev_b32 v2, 6, v2
        v_add_u32 v2, v2, v20
        v_lshlrev_b32 v2, 4, v2
        v_lshlrev_b32 v3, 4, v19
        v_add_u32 v3, 13312, v3
        v_cmp_lt_u32 vcc, 99, v17
        v_lshrrev_b32 v24, 1, v21
        v_and_b32 v21, 1, v21
        v_cndmask_b32 v2, v2, v3, vcc
        v_lshl_add_u32 v3, v23, 1, v24
        v_add_u32 v24, 11, v24
        v_lshl_add_u32 v22, v22, 4, v16
        v_cndmask_b32 v3, v3, v24, vcc
        v_cndmask_b32 v20, v20, v22, vcc
        v_lshl_add_u32 v3, v3, 6, v20
        v_lshlrev_b32 v3, 4, v3
        v_lshl_add_u32 v3, v21, 3, v3
        v_add_u32 v3, {KVT}, v3
        v_mov_b32 v25, 2
        v_cndmask_b32 v25, 1, v25, vcc
        v_mov_b32 v16, 420
        v_cmp_gt_u32 vcc, v16, v0
        v_lshlrev_b32 v14, 4, v0
        s_nop 0
        v_cndmask_b32 v15, 0, v25, vcc
        v_cndmask_b32 v2, 0, v2, vcc
        v_add_u32 v2, {EXCH}, v2
        """)

    def a_reduce_publish(self, T):
        a = self.a
        for w in range(4):
            a(f"ds_read_b128 {vr(T+4*w,4)}, v2 offset:{w*EXCH_ST}")
        a(f"""
        s_lshl_b32 s{S_T0}, s{S_HG}, 4
        s_add_u32 s{S_T0}, s{S_T0}, s{S_MT}
        s_mul_i32 s{S_T0}, s{S_T0}, {KVP_ST}
        s_add_u32 s{S_T0}, s{S_T0}, {KVP}
        v_cmp_ne_u32 vcc, 0, v15
        s_waitcnt lgkmcnt(0)
        v_pk_add_f32 {vr(T,2)}, {vr(T,2)}, {vr(T+4,2)}
        v_pk_add_f32 {vr(T+2,2)}, {vr(T+2,2)}, {vr(T+6,2)}
        v_pk_add_f32 {vr(T+8,2)}, {vr(T+8,2)}, {vr(T+12,2)}
        v_pk_add_f32 {vr(T+10,2)}, {vr(T+10,2)}, {vr(T+14,2)}
        v_pk_add_f32 {vr(T,2)}, {vr(T,2)}, {vr(T+8,2)}
        v_pk_add_f32 {vr(T+2,2)}, {vr(T+2,2)}, {vr(T+10,2)}
        s_mov_b64 exec, vcc
        buffer_store_dwordx4 {vr(T,4)}, v14, s[{R_WS}:{R_WS+3}], s{S_T0} offen sc1
        s_mov_b64 exec, -1
        """)

    def a_gather(self, T, extra=0, hook=None):
        a = self.a
        a(f"s_mul_i32 s{S_T0+1}, s{S_HG}, {16*KVP_ST}\ns_add_u32 s{S_T0+1}, s{S_T0+1}, {KVP}")
        rot = self.o.get("rotG")
        if rot:
            a(f"s_lshl_b32 s{S_T0+2}, s{S_MT}, 1")
        else:
            a(f"s_mov_b32 s{S_T0+2}, 0")
        a("v_cmp_ne_u32 vcc, 0, v15\ns_nop 1\ns_mov_b64 exec, vcc")
        for m in range(16):
            a(f"s_and_b32 s{S_T0+2}, s{S_T0+2}, 15\ns_mul_i32 s{S_T0}, s{S_T0+2}, {KVP_ST}\ns_add_u32 s{S_T0}, s{S_T0}, s{S_T0+1}\ns_add_u32 s{S_T0+2}, s{S_T0+2}, 1")
            a(f"buffer_load_dwordx4 {vr(T+4*m,4)}, v14, s[{R_WS}:{R_WS+3}], s{S_T0} offen sc1")
        a("s_mov_b64 exec, -1")
        if hook:
            hook()
        for m in range(0, 16, 2):
            a(f"s_waitcnt vmcnt({14-m+extra})")
            for h in (0, 2):
                a(f"v_pk_add_f32 {vr(T+4*m+h,2)}, {vr(T+4*m+h,2)}, {vr(T+4*(m+1)+h,2)}")
            if m >= 2:
                for h in (0, 2):
                    a(f"v_pk_add_f32 {vr(T+h,2)}, {vr(T+h,2)}, {vr(T+4*m+h,2)}")
        a(f"""
        v_cvt_pk_bf16_f32 v{T}, v{T}, v{T+1}
        v_cvt_pk_bf16_f32 v{T+1}, v{T+2}, v{T+3}
        v_cmp_ne_u32 vcc, 0, v15
        v_cmp_eq_u32 s[{S_T0}:{S_T0+1}], 2, v15
        s_nop 1
        s_mov_b64 exec, vcc
        ds_write_b64 v3, {vr(T,2)}
        s_mov_b64 exec, s[{S_T0}:{S_T0+1}]
        ds_write_b64 v3, {vr(T,2)} offset:64
        ds_write_b64 v3, {vr(T,2)} offset:128
        ds_write_b64 v3, {vr(T,2)} offset:192
        s_mov_b64 exec, -1
        """)

    def role_b(self):
        a = self.a
        a(f"L_roleB:\ns_mov_b32 s{S_FROMA}, 0")
        XR, B1R, GR, XS = 16, 36, 64, 84
        VPF = 8
        a(f"s_cmp_ge_u32 s{S_J}, 16\ns_cbranch_scc1 L_B_pfrole")
        a(f"""
        s_lshl_b32 s{S_KST}, s{S_XCD}, 4
        s_add_u32 s{S_KST}, s{S_KST}, s{S_J}
        s_lshl_b32 s{S_T0}, s{S_KST}, 3
        s_add_u32 s{S_T0}, s{S_T0}, s{S_WAVE}
        s_mul_i32 s{S_T0}, s{S_T0}, {4*1280}
        v_lshrrev_b32 v2, 4, v1
        v_and_b32 v3, 15, v1
        v_lshlrev_b32 v3, 4, v3
        v_mul_u32_u24 v4, 1280, v2
        v_add_u32 v4, v4, v3
        """)
        for c in range(5):
            a(f"buffer_load_dwordx4 {vr(XR+4*c,4)}, v4, s[{R_X}:{R_X+3}], s{S_T0} offen offset:{c*256}")
        self.srd(R_M, P_GATE, 1280)
        for c in range(5):
            a(f"buffer_load_dwordx4 {vr(GR+4*c,4)}, v3, s[{R_M}:{R_M+3}], 0 offen offset:{c*256}")

        def common_setup():
            a(f"""
            s_mul_i32 s{S_M}, s{S_J}, 205
            s_lshr_b32 s{S_M}, s{S_M}, 10
            s_mul_i32 s{S_DT}, s{S_M}, 5
            s_sub_u32 s{S_DT}, s{S_J}, s{S_DT}
            s_mul_i32 s{S_FT}, s{S_XCD}, 6
            s_add_u32 s{S_FT}, s{S_FT}, s{S_M}
            """)
            self.srd(R_OUT, P_B1, 3072)
            a(f"v_lshrrev_b32 v5, 4, v1\nv_lshlrev_b32 v5, 3, v5\ns_lshl_b32 s{S_T0}, s{S_FT}, 7")
            for b in range(4):
                a(f"buffer_load_dwordx2 {vr(B1R+2*b,2)}, v5, s[{R_OUT}:{R_OUT+3}], s{S_T0} offen offset:{b*32}")
            a(f"""
            v_lshrrev_b32 v12, 3, v1
            v_lshrrev_b32 v13, 4, v1
            v_lshlrev_b32 v13, 1, v13
            v_and_b32 v14, 7, v1
            v_xor_b32 v13, v13, v14
            v_lshlrev_b32 v13, 4, v13
            v_mul_u32_u24 v12, 3072, v12
            v_add_u32 v{VPF}, v12, v13
            v_add_u32 v{VPF+1}, {8*3072-1024}, v{VPF}
            v_add_u32 v{VPF+2}, {2*(8*3072-1024)}, v{VPF}
            v_add_u32 v{VPF+3}, {3*(8*3072-1024)}, v{VPF}
            """)
            self.perm_setup(S_M, 16, 6, S_PERM, self.o.get("rotB"))

        self.srd(R_W, P_W1, 2048 * 3072)
        common_setup()
        a("v_mov_b32 v124, 0\nv_mov_b32 v125, 0\nv_mov_b32 v126, 0x3f803f80\ns_waitcnt vmcnt(4)")
        self.stamp(11, 44)
        for c in range(20):
            a(f"v_dot2c_f32_bf16 v124, v{XR+c}, v126")
        for c in range(20):
            a(f"v_dot2c_f32_bf16 v125, v{XR+c}, v{GR+c}")
        for c in range(20):
            a(f"v_lshlrev_b32 v{XS+2*c}, 16, v{XR+c}\nv_and_b32 v{XS+2*c+1}, 0xffff0000, v{XR+c}")

        def reduce16(regs):
            for mode in ("quad_perm:[1,0,3,2]", "quad_perm:[2,3,0,1]", "row_half_mirror", "row_mirror"):
                for r in regs:
                    a(f"v_add_f32_dpp v{r}, v{r}, v{r} {mode} row_mask:0xf bank_mask:0xf")
                a("s_nop 1" if len(regs) == 1 else "s_nop 0")

        reduce16([124, 125])
        a(f"""
        v_mul_f32 v126, {f2u(-1.0/640):#x}, v124
        v_mul_f32 v127, {f2u(-1.0/640):#x}, v124
        v_mul_f32 v125, {f2u(-1.4426950408889634):#x}, v125
        v_mov_b32 v128, 0
        v_mov_b32 v129, 0
        v_mov_b32 v130, 0
        v_mov_b32 v131, 0
        v_exp_f32 v125, v125
        """)
        for c in range(20):
            a(f"v_pk_add_f32 {vr(XS+2*c,2)}, {vr(XS+2*c,2)}, v[126:127]")
        a("v_add_f32 v125, 1.0, v125\nv_rcp_f32 v125, v125")
        for c in range(20):
            t = 128 + 2 * (c & 1)
            a(f"v_pk_fma_f32 {vr(t,2)}, {vr(XS+2*c,2)}, {vr(XS+2*c,2)}, {vr(t,2)}")
        a("v_pk_add_f32 v[128:129], v[128:129], v[130:131]\nv_add_f32 v128, v128, v129\ns_nop 1")
        reduce16([128])
        a(f"v_mov_b32 v126, {f2u(1e-5):#x}\nv_fmac_f32 v126, {f2u(1.0/640):#x}, v128\nv_rsq_f32 v126, v126")
        a(f"""
        s_lshl_b32 s{S_T0}, s{S_WAVE}, 2
        v_add_u32 v2, s{S_T0}, v2
        v_mov_b32 v127, v126
        v_mul_u32_u24 v4, {LN_ST}, v2
        v_add_u32 v4, v4, v3
        v_lshlrev_b32 v2, 2, v2
        """)
        for c4 in range(5):
            for c in range(4 * c4, 4 * c4 + 4):
                a(f"v_pk_mul_f32 {vr(XS+2*c,2)}, {vr(XS+2*c,2)}, v[126:127]")
            for c in range(4 * c4, 4 * c4 + 4):
                a(f"v_cvt_pk_bf16_f32 v{XR+c}, v{XS+2*c}, v{XS+2*c+1}")
            a(f"ds_write_b128 v4, {vr(XR+4*c4,4)} offset:{LNBUF + c4*256}")
        a(f"ds_write_b32 v2, v125 offset:{LNG}")
        a(f"""
        v_and_b32 v12, 15, v1
        v_lshrrev_b32 v13, 4, v1
        v_lshrrev_b32 v15, 2, v12
        v_lshl_add_u32 v15, v13, 2, v15
        v_mul_u32_u24 v15, {LN_ST}, v15
        v_and_b32 v2, 3, v12
        v_lshl_add_u32 v15, v2, 3, v15
        s_mul_i32 s{S_T0}, s{S_WAVE}, 160
        v_add_u32 v15, s{S_T0}, v15
        v_lshlrev_b32 v14, 4, v1
        v_lshlrev_b32 v2, 2, v1
        s_mul_i32 s{S_T0}, s{S_WAVE}, {5*65536}
        s_lshl_b32 s{S_T0+1}, s{S_KST}, 10
        s_add_u32 s{S_T0}, s{S_T0}, s{S_T0+1}
        s_add_u32 s{S_T0}, s{S_T0}, {HT}
        s_waitcnt lgkmcnt(0)
        s_add_u32 s{S_TAG}, s{S_TAG}, {TAG_INC:#x}
        s_barrier
        """)
        self.stamp(12, 44)
        for i in range(5):
            a(f"ds_read_b64_tr_b16 {vr(44+4*i,2)}, v15 offset:{LNBUF + i*32}")
            a(f"ds_read_b64_tr_b16 {vr(46+4*i,2)}, v15 offset:{LNBUF + i*32+16*LN_ST}")
        a(f"ds_read_b32 v125, v2 offset:{LNG}")
        for i in range(5):
            a(f"s_waitcnt lgkmcnt({9-2*i})")
            a(f"buffer_store_dwordx4 {vr(44+4*i,4)}, v14, s[{R_WS}:{R_WS+3}], s{S_T0} offen sc1")
            if i < 4:
                a(f"s_add_u32 s{S_T0}, s{S_T0}, 65536")
        a(f"""
        s_cmp_lg_u32 s{S_WAVE}, 0
        s_cbranch_scc1 L_B_nog
        s_lshl_b32 s{S_T0}, s{S_KST}, 7
        s_add_u32 s{S_T0}, s{S_T0}, {G_OFF}
        s_waitcnt lgkmcnt(0)
        s_mov_b32 exec_hi, 0
        buffer_store_dword v125, v2, s[{R_WS}:{R_WS+3}], s{S_T0} offen sc1
        s_mov_b32 exec_hi, -1
        L_B_nog:
        s_waitcnt vmcnt(0) lgkmcnt(0)
        s_barrier
        s_cmp_lg_u32 s{S_WAVE}, 0
        s_cbranch_scc1 L_B_join
        s_mul_i32 s{S_T0}, s{S_KST}, {FS}
        s_add_u32 s{S_T0}, s{S_T0}, {F_LN}
        """)
        self.flag_store(S_T0, 12)
        self.stamp(1, 12)
        a("s_branch L_B_join")
        a("L_B_pfrole:")
        self.srd(R_M, P_WQKV, 640 * 3840)
        self.srd(R_W, P_W1, 2048 * 3072)
        if self.o.get("pfdelay"):
            common_setup()
            a("s_waitcnt vmcnt(0)")
        a(f"""
        s_sub_u32 s{S_T0}, s{S_J}, 16
        s_lshl_b32 s{S_T0}, s{S_T0}, 3
        s_add_u32 s{S_T0}, s{S_T0}, s{S_WAVE}
        s_lshl_b32 s{S_T0+1}, s{S_XCD}, 7
        s_add_u32 s{S_T0+1}, s{S_T0+1}, s{S_T0}
        v_lshrrev_b32 v6, 3, v1
        v_and_b32 v7, 7, v1
        v_min_u32 v7, 5, v7
        v_mul_u32_u24 v6, 3072, v6
        v_lshl_add_u32 v7, v7, 7, v6
        v_lshlrev_b32 v6, 7, v1
        s_mul_i32 s{S_T0}, s{S_T0}, {8*3072}
        s_mul_i32 s{S_T0+2}, s{S_XCD}, 768
        s_add_u32 s{S_T0}, s{S_T0}, s{S_T0+2}
        s_mul_i32 s{S_T0+1}, s{S_T0+1}, 2880
        s_add_u32 s{S_T0+1}, s{S_T0+1}, {256*3840}
        buffer_load_dword v253, v7, s[{R_W}:{R_W+3}], s{S_T0} offen
        s_mov_b64 exec, 0xffffff
        buffer_load_dword v253, v6, s[{R_M}:{R_M+3}], s{S_T0+1} offen
        s_mov_b64 exec, -1
        s_add_u32 s{S_T0}, s{S_T0}, {1024*3072}
        buffer_load_dword v253, v7, s[{R_W}:{R_W+3}], s{S_T0} offen
        """)
        if not self.o.get("pfdelay"):
            common_setup()
        self.stamp(15, 12)
        a(f"s_waitcnt lgkmcnt(0)\ns_add_u32 s{S_TAG}, s{S_TAG}, {TAG_INC:#x}")
        a(f"s_cmp_ge_u32 s{S_J}, 30\ns_cbranch_scc1 L_helper")
        N1 = self.o.get("n1", 8)
        NREG = self.o.get("nreg", 0)
        assert NREG == 0 or N1 == 8

        def w1_issue():
            t = self.perm_next(S_T0, S_PERM, 128 * 3072)
            t += f"s_mov_b32 m0, s{S_B}\ns_add_u32 s{S_T0}, s{S_T0}, s{S_A}\n"
            for i in range(4):
                t += f"buffer_load_dwordx4 v{VPF+i}, s[{R_W}:{R_W+3}], s{S_T0} offen offset:{i*1024} lds\n"
            t += f"s_add_u32 s{S_B}, s{S_B}, 16384\n"
            return t
        a(f"""
        L_B_join:
        s_cmp_lt_u32 s{S_WAVE}, 4
        s_cbranch_scc1 L_B_comp0
        s_sub_u32 s{S_T0}, s{S_WAVE}, 4
        s_lshl_b32 s{S_B}, s{S_T0}, 12
        s_mul_i32 s{S_A}, s{S_T0}, {32*3072}
        s_lshl_b32 s{S_T0}, s{S_FT}, 7
        s_add_u32 s{S_A}, s{S_A}, s{S_T0}
        L_B_pf:
        """ + w1_issue() + f"""
        s_cmp_lt_u32 s{S_B}, {N1*16384}
        s_cbranch_scc1 L_B_pf
        """)
        for k in range(NREG):
            if k == 4:
                a("s_waitcnt vmcnt(40)")
            a(self.perm_next(S_T0, S_PERM, 128 * 3072) + f"s_add_u32 s{S_T0}, s{S_T0}, s{S_A}")
            for i in range(4):
                a(f"buffer_load_dwordx4 {vr(64+16*k+4*i,4)}, v{VPF+i}, s[{R_W}:{R_W+3}], s{S_T0} offen offset:{i*1024}")
        a(f"s_branch L_B_aux\nL_B_comp0:\ns_cmp_lg_u32 s{S_WAVE}, 0\ns_cbranch_scc1 L_B_l3")
        a(f"v_mul_u32_u24 v12, {FS}, v1\nv_add_u32 v12, {F_LN}, v12")
        self.poll([12], 14)
        self.stamp(2, 12)
        a("L_B_l3:")
        PF, WF, ACC, VT, VL = 64, 128, 160, 8, 12
        a(f"""
        s_lshl_b32 s{S_T0}, s{S_DT}, 3
        s_lshl_b32 s{S_T0+1}, s{S_WAVE}, 1
        s_add_u32 s{S_D}, s{S_T0}, s{S_T0+1}
        s_lshl_b32 s{S_T0}, s{S_D}, 16
        s_add_u32 s{S_T0}, s{S_T0}, {HT}
        """)
        self.srd(R_P, P_WS, 65536, off_s=S_T0)
        a(f"s_add_u32 s{S_T0}, s{S_T0}, 65536")
        self.srd(R_M, P_WS, 65536, off_s=S_T0)
        a(f"v_lshlrev_b32 v{VL}, 4, v1\ns_mov_b32 s{S_B}, 0")
        a(self.perm_next(S_C, S_PERM, 4096))
        self.tr_addr(VT)
        for r in range(32):
            a(f"v_mov_b32 v{ACC+r}, 0")
        a("s_barrier")
        RP = (R_P, R_M)

        def pload(u, ks):
            if self.o.get("x_noload"):
                return "s_nop 0"
            sc = "" if self.o.get("x_nosc1") else "sc1"
            so = "0" if self.o.get("x_same") else f"s{S_C}"
            return "\n".join(f"buffer_load_dwordx4 {vr(PF+32*(u%2)+8*ks+4*d,4)}, v{VL}, s[{RP[d]}:{RP[d]+3}], {so} offen offset:{ks*1024} {sc}" for d in range(2))

        for t in range(2):
            for ks in range(4):
                a(pload(t, ks))
            a(self.perm_next(S_C, S_PERM, 4096))
            if t == 0:
                first_bar_here = len(a.L)

        def mk(u, bar, virtual=False, head=None, tail=None):
            uses = []
            for ks in range(4):
                for b in range(4):
                    g = ks * 4 + b
                    wb = WF + 4 * (g % 8)
                    off = u * 16384 + ks * 4096
                    reads = [(f"w{g}a", f"ds_read_b64_tr_b16 {vr(wb,2)}, v{VT+b} offset:{off}"),
                             (f"w{g}b", f"ds_read_b64_tr_b16 {vr(wb+2,2)}, v{VT+b} offset:{off+2048}")]
                    mf = []
                    for dd in range(2):
                        acc = vr(ACC + 16 * dd + 4 * b, 4)
                        mf.append(f"v_mfma_f32_16x16x32_bf16 {acc}, {vr(wb,4)}, {vr(PF+32*(u%2)+8*ks+4*dd,4)}, {acc}")
                    d = dict(reads=reads, need=[f"w{g}b"], mf=mf)
                    if b == 0:
                        d["vm"] = 14
                    if b == 3:
                        d["after"] = pload(u, ks)
                        if ks == 3:
                            d["after"] += "\n" + self.perm_next(S_C, S_PERM, 4096)
                            if u >= 1:
                                d["after"] += f"s_cmp_ge_u32 s{S_B}, 3\ns_cselect_b32 s{S_C}, 0x10000, s{S_C}"
                    uses.append(d)
            return dict(uses=uses, bar=bar, virtual=virtual, head=head, tail=tail)

        xo = "s_barrier\n" + "\n".join(f"v_xor_b32 v{VT+b}, 0x10000, v{VT+b}" for b in range(4))
        tail = f"s_add_u32 s{S_B}, s{S_B}, 1\ns_cmp_lt_u32 s{S_B}, 4\ns_cbranch_scc1 L_B_loop"
        st = [mk(0, "", head="L_B_loop:"), mk(1, "s_barrier"), mk(2, "s_barrier"), mk(3, "s_barrier", tail=tail), mk(0, xo, virtual=True)]
        a.L.insert(first_bar_here, "    s_barrier")
        nd = self.o.get("nodrain")
        LB = self.o.get("LB", 7)
        self.pipeline(st, LB, (16 - LB) if nd else 13, drain=not nd, wait_every=self.o.get('we', 2))
        if nd:
            a("s_waitcnt lgkmcnt(0)\ns_barrier")
        self.stamp(3, 44)
        c = 0.7978845608028654
        k0 = -2.0 * c * 1.4426950408889634
        k1 = k0 * 0.044715
        a(f"""
        s_waitcnt lgkmcnt(0)
        s_mov_b32 s{S_K0}, {f2u(k1):#x}
        s_mov_b32 s{S_K0+1}, {f2u(k1):#x}
        v_mov_b32 v44, {f2u(k0):#x}
        v_mov_b32 v45, {f2u(k0):#x}
        v_mov_b32 v46, 1.0
        v_mov_b32 v47, 1.0
        s_mul_i32 s{S_T0}, s{S_D}, {UW_ST}
        s_lshl_b32 s{S_T0+1}, s{S_FT}, 11
        s_add_u32 s{S_T0}, s{S_T0}, s{S_T0+1}
        s_add_u32 s{S_T0}, s{S_T0}, {UW}
        """)
        BF = 16
        for b in range(4):
            a(f"v_lshlrev_b32 v{BF+4*b}, 16, v{B1R+2*b}\nv_and_b32 v{BF+4*b+1}, 0xffff0000, v{B1R+2*b}")
            a(f"v_lshlrev_b32 v{BF+4*b+2}, 16, v{B1R+2*b+1}\nv_and_b32 v{BF+4*b+3}, 0xffff0000, v{B1R+2*b+1}")
        for dd in range(2):
            for p in range(2):
                r = ACC + 16 * dd + 8 * p
                T = 48
                for q in range(4):
                    a(f"v_pk_add_f32 {vr(r+2*q,2)}, {vr(r+2*q,2)}, {vr(BF+8*p+2*q,2)}")
                for q in range(4):
                    a(f"v_pk_mul_f32 {vr(T+2*q,2)}, {vr(r+2*q,2)}, {vr(r+2*q,2)}")
                for q in range(4):
                    a(f"v_pk_fma_f32 {vr(T+2*q,2)}, {vr(T+2*q,2)}, s[{S_K0}:{S_K0+1}], v[44:45]")
                for q in range(4):
                    a(f"v_pk_mul_f32 {vr(T+2*q,2)}, {vr(T+2*q,2)}, {vr(r+2*q,2)}")
                for q in range(8):
                    a(f"v_exp_f32 v{T+q}, v{T+q}")
                for q in range(4):
                    a(f"v_pk_add_f32 {vr(T+2*q,2)}, {vr(T+2*q,2)}, v[46:47]")
                for q in range(8):
                    a(f"v_rcp_f32 v{T+q}, v{T+q}")
                for q in range(4):
                    a(f"v_pk_mul_f32 {vr(r+2*q,2)}, {vr(r+2*q,2)}, {vr(T+2*q,2)}")
                o = 56 + 4 * (p & 1)
                for q in range(4):
                    a(f"v_cvt_pk_bf16_f32 v{o+q}, v{r+2*q}, v{r+2*q+1}")
                a(f"buffer_store_dwordx4 {vr(o,4)}, v{VL}, s[{R_WS}:{R_WS+3}], s{S_T0} offen offset:{p*1024} sc1")
            if dd == 0:
                a(f"s_add_u32 s{S_T0}, s{S_T0}, {UW_ST}")
        self.stamp(10, 44)
        a("s_waitcnt vmcnt(0)\ns_barrier\ns_branch L_F_comp")

        a("L_B_aux:\ns_barrier")
        order = list(range(N1 + NREG))
        cnt = {k: 4 for k in range(16)}
        cnt["t"] = 1
        nxt = N1
        lag = self.o.get("lag", 0)
        if NREG:
            a(f"""
            s_sub_u32 s{S_T0}, s{S_WAVE}, 4
            s_lshl_b32 s{S_T0}, s{S_T0}, 12
            v_lshlrev_b32 v12, 4, v1
            v_add_u32 v12, s{S_T0}, v12
            v_add_u32 v13, 0x10000, v12
            s_add_u32 s{S_B}, s{S_T0}, {(NREG % 8) * 16384}
            """)
        for tb in range(17):
            if tb < 16:
                n = sum(cnt[x] for x in order[order.index(tb) + 1:])
                a(f"s_waitcnt vmcnt({min(n, 63)}) lgkmcnt(0)")
            a("s_barrier")
            if tb < 16:
                self.stamp(16 + tb, 44)
            k = 0
            while nxt <= min(15, tb + (6 if self.o.get("nodrain") and nxt >= 8 else 7) - (lag if nxt >= 8 + NREG else 0)) and k < 2:
                if 8 <= nxt < 8 + NREG:
                    n = sum(cnt[x] for x in order[order.index(nxt) + 1:])
                    a(f"s_waitcnt vmcnt({min(n, 63)})")
                    sl = nxt % 8
                    for i in range(4):
                        a(f"ds_write_b128 v{13 if sl >= 4 else 12}, {vr(64+16*(nxt-8)+4*i,4)} offset:{(sl&3)*16384+i*1024}")
                else:
                    if nxt == 8:
                        a(f"s_and_b32 s{S_B}, s{S_B}, 0x1ffff")
                    a(w1_issue())
                    order.append(nxt)
                nxt += 1
                k += 1
        assert nxt == 16
        if self.o.get("nodrain"):
            a("s_barrier")
        skip = self.if_wave56()
        nB1 = self.o.get("nB1", 0)
        if nB1:
            self.w2_setup()
            self.w2_prefill(nB1)
            a("s_barrier\ns_nop 7\ns_nop 7")
            self.w2_prefill(8 - nB1)
        else:
            a("s_barrier")
            self.w2_setup()
            self.w2_prefill(8)
        a("s_branch L_F_loader")
        a(f"{skip}:\ns_barrier")
        a(f"s_cmp_lg_u32 s{S_WAVE}, 7\ns_cbranch_scc1 L_F_u4")
        a(f"s_mul_i32 s{S_T0}, s{S_DT}, 24\ns_add_u32 s{S_T0}, s{S_T0}, s{S_FT}\ns_mul_i32 s{S_T0}, s{S_T0}, {FS}\ns_add_u32 s{S_T0}, s{S_T0}, {F_U}")
        self.flag_store(S_T0, 12)
        self.stamp(4, 12)
        a("s_branch L_F_poller")

    def w2_l2_prefetch(self, VT):
        a = self.a
        self.srd(R_W2, P_W2, 1536 * 4096)
        a(f"""
        v_lshrrev_b32 v{VT}, 3, v1
        v_and_b32 v{VT+1}, 7, v1
        v_lshlrev_b32 v{VT+1}, 7, v{VT+1}
        v_lshl_add_u32 v{VT}, v{VT}, 12, v{VT+1}
        s_mul_i32 s{S_T0}, s{S_J}, 48
        s_and_b32 s{S_T0+1}, s{S_WAVE}, 3
        s_mul_i32 s{S_T0+1}, s{S_T0+1}, 12
        s_add_u32 s{S_T0}, s{S_T0}, s{S_T0+1}
        s_lshl_b32 s{S_T0}, s{S_T0}, 12
        s_lshr_b32 s{S_T0+1}, s{S_XCD}, 1
        s_lshl_b32 s{S_T0+1}, s{S_T0+1}, 10
        s_add_u32 s{S_T0}, s{S_T0}, s{S_T0+1}
        buffer_load_dword v{VT+2}, v{VT}, s[{R_W2}:{R_W2+3}], s{S_T0} offen
        s_add_u32 s{S_T0}, s{S_T0}, {8*4096}
        s_mov_b32 exec_hi, 0
        buffer_load_dword v{VT+3}, v{VT}, s[{R_W2}:{R_W2+3}], s{S_T0} offen
        s_mov_b64 exec, -1
        """)

    def tr_addr(self, VT):
        a = self.a
        a(f"""
        v_and_b32 v{VT+1}, 15, v1
        v_lshrrev_b32 v{VT+2}, 4, v1
        v_lshrrev_b32 v{VT+3}, 2, v{VT+1}
        v_lshl_add_u32 v{VT+3}, v{VT+2}, 2, v{VT+3}
        v_bfe_u32 v{VT+2}, v{VT+3}, 1, 2
        v_lshlrev_b32 v{VT+3}, 7, v{VT+3}
        v_lshl_add_u32 v{VT+3}, v{VT+2}, 5, v{VT+3}
        v_and_b32 v{VT+1}, 3, v{VT+1}
        v_lshl_add_u32 v{VT}, v{VT+1}, 3, v{VT+3}
        v_xor_b32 v{VT+1}, 32, v{VT}
        v_xor_b32 v{VT+2}, 64, v{VT}
        v_xor_b32 v{VT+3}, 96, v{VT}
        """)

    def helper(self):
        a = self.a
        a("L_helper:")
        a(f"""
        s_lshl_b32 s{S_D}, s{S_XCD}, 1
        s_add_u32 s{S_D}, s{S_D}, s{S_J}
        s_sub_u32 s{S_D}, s{S_D}, 30
        """)
        self.srd(R_W, P_WO, 640 * 1280)
        for p in range(5):
            a(f"""
            v_add_u32 v12, {p*64}, v1
            v_mul_u32_u24 v13, 205, v12
            v_lshrrev_b32 v13, 11, v13
            v_mul_u32_u24 v14, 10, v13
            v_sub_u32 v14, v12, v14
            v_lshlrev_b32 v14, 4, v14
            v_mul_u32_u24 v13, 1280, v13
            v_add_u32 v{16+p}, v13, v14
            """)
            if p in (1, 2, 3):
                a(f"v_subrev_u32 v{16+p}, {p*1024}, v{16+p}")
        a(f"""
        s_mov_b32 s{S_C}, s{S_WAVE}
        L_H_ld:
        s_mul_i32 s{S_A}, s{S_C}, {32*1280}
        s_mul_i32 s{S_T0}, s{S_D}, 160
        s_add_u32 s{S_A}, s{S_A}, s{S_T0}
        s_mul_i32 s{S_B}, s{S_C}, 5120
        s_mov_b32 m0, s{S_B}
        s_nop 0
        """)
        for p in range(4):
            a(f"buffer_load_dwordx4 v{16+p}, s[{R_W}:{R_W+3}], s{S_A} offen offset:{p*1024} lds")
        a(f"s_add_u32 m0, s{S_B}, 4096\ns_nop 0\nbuffer_load_dwordx4 v20, s[{R_W}:{R_W+3}], s{S_A} offen lds")
        a(f"""
        s_add_u32 s{S_C}, s{S_C}, 8
        s_cmp_lt_u32 s{S_C}, 20
        s_cbranch_scc1 L_H_ld
        v_and_b32 v12, 15, v1
        v_lshrrev_b32 v13, 4, v1
        v_lshrrev_b32 v14, 2, v12
        v_lshl_add_u32 v14, v13, 2, v14
        v_mul_u32_u24 v14, 160, v14
        v_and_b32 v12, 3, v12
        v_lshl_add_u32 v14, v12, 3, v14
        v_lshlrev_b32 v15, 4, v1
        s_waitcnt vmcnt(0)
        s_barrier
        s_mov_b32 s{S_C}, s{S_WAVE}
        L_H_tr:
        s_lshr_b32 s{S_T0}, s{S_C}, 1
        s_mul_i32 s{S_T0}, s{S_T0}, 5
        s_and_b32 s{S_T0+1}, s{S_C}, 1
        s_lshl_b32 s{S_T0+1}, s{S_T0+1}, 1
        s_add_u32 s{S_T0}, s{S_T0}, s{S_T0+1}
        s_add_u32 s{S_T0+1}, s{S_T0}, 1
        s_mul_i32 s{S_T0+2}, s{S_C}, 10
        s_sub_u32 s{S_T0+2}, s{S_T0+2}, 156
        s_add_u32 s{S_T0+3}, s{S_T0+2}, 5
        s_cmp_lt_u32 s{S_C}, 16
        s_cselect_b32 s{S_T0}, s{S_T0}, s{S_T0+2}
        s_cselect_b32 s{S_T0+1}, s{S_T0+1}, s{S_T0+3}
        s_mul_i32 s{S_T0}, s{S_T0}, 2560
        s_mul_i32 s{S_T0+1}, s{S_T0+1}, 2560
        v_add_u32 v12, s{S_T0}, v14
        v_add_u32 v13, s{S_T0+1}, v14
        """)
        for b in range(5):
            a(f"ds_read_b64_tr_b16 {vr(24+4*b,2)}, v12 offset:{b*32}\nds_read_b64_tr_b16 {vr(26+4*b,2)}, v13 offset:{b*32}")
        a(f"""
        s_mul_i32 s{S_T0}, s{S_D}, {5*UW_ST}
        s_lshl_b32 s{S_T0+1}, s{S_C}, 10
        s_add_u32 s{S_T0}, s{S_T0}, s{S_T0+1}
        s_add_u32 s{S_T0}, s{S_T0}, {UW + 49152}
        """)
        for b in range(5):
            a(f"s_waitcnt lgkmcnt({8-2*b})")
            a(f"buffer_store_dwordx4 {vr(24+4*b,4)}, v15, s[{R_WS}:{R_WS+3}], s{S_T0} offen sc1")
            if b < 4:
                a(f"s_add_u32 s{S_T0}, s{S_T0}, {UW_ST}")
        a(f"""
        s_add_u32 s{S_C}, s{S_C}, 8
        s_cmp_lt_u32 s{S_C}, 20
        s_cbranch_scc1 L_H_tr
        s_waitcnt vmcnt(0)
        s_barrier
        """)
        skip = self.if_wave56()
        self.w2_setup()
        self.w2_prefill(8)
        a(f"s_branch L_F_loader\n{skip}:")
        a(f"s_cmp_lt_u32 s{S_WAVE}, 4\ns_cbranch_scc1 L_F_comp\ns_cmp_lg_u32 s{S_WAVE}, 7\ns_cbranch_scc1 L_F_u4")
        a(f"s_mul_i32 s{S_T0}, s{S_D}, {FS}\ns_add_u32 s{S_T0}, s{S_T0}, {F_WOT}")
        self.flag_store(S_T0, 12)
        self.stamp(14, 12)
        a("s_branch L_F_poller")

    F_WOT_REG = 172

    def uw_srd(self):
        a = self.a
        a(f"""
        s_mul_i32 s{S_T0}, s{S_DTILE}, 5
        s_add_u32 s{S_D}, s{S_T0}, s{S_WAVE}
        s_mul_i32 s{S_T0}, s{S_D}, {UW_ST}
        s_add_u32 s{S_T0}, s{S_T0}, {UW}
        """)
        self.srd(R_P, P_WS, UW_ST, off_s=S_T0)

    def wot_preload(self, VL):
        a = self.a
        for k in range(20):
            if k % 4 == 0:
                a(f"s_mov_b32 s{S_C}, {49152 + k*1024}")
            a(f"buffer_load_dwordx4 {vr(self.F_WOT_REG+4*k,4)}, v{VL}, s[{R_P}:{R_P+3}], s{S_C} offen offset:{(k%4)*1024} sc1")

    def f0_barrier(self):
        lab = self.a.label("f0")
        self.a(f"s_cmp_eq_u32 s{S_FROMA}, 1\ns_cbranch_scc1 {lab}\ns_barrier\n{lab}:")

    def final(self):
        a = self.a
        a("L_F_comp:")
        if self.stop == "phase1":
            a("s_branch L_end")
        PF, WF, ACC, ACC4, U4, WOT = 64, 112, 144, 160, 164, 172
        NPF = 3
        pre = True
        VT, VL, VU4, VT2, GV, BV, VGH, VG8 = 8, 12, 13, 16, 20, 24, 28, 32
        self.uw_srd()
        self.srd(R_M, P_B2, 4096)
        self.srd(R_OUT, P_OUT, 2048 * 1280)
        self.tr_addr(4)
        a(f"""
        v_lshlrev_b32 v{VL}, 4, v1
        v_add_u32 v{VU4}, 0x20000, v{VL}
        v_lshlrev_b32 v5, 3, v1
        v_and_b32 v2, 15, v1
        v_lshlrev_b32 v3, 1, v2
        v_lshlrev_b32 v2, 2, v2
        """)
        SB = S_MSK
        for b in range(4):
            a(f"""
            s_add_u32 s{SB+b}, s{S_WAVE}, {b}
            s_and_b32 s{SB+b}, s{SB+b}, 3
            s_lshl_b32 s{S_T0}, s{SB+b}, 5
            v_xor_b32 v{VT+b}, s{S_T0}, v4
            s_lshl_b32 s{S_T0+1}, s{S_ST}, 7
            s_add_u32 s{S_T0}, s{S_T0}, s{S_T0+1}
            buffer_load_ushort v{BV+b}, v3, s[{R_M}:{R_M+3}], s{S_T0} offen
            v_add_u32 v{VT2+b}, 0x10000, v{VT+b}
            s_lshl_b32 s{S_T0}, s{SB+b}, 12
            v_add_u32 v{VG8+b}, s{S_T0}, v5
            s_add_u32 s{S_T0}, s{S_T0}, 0x10000
            v_add_u32 v{VGH+b}, s{S_T0}, v{VL}
            """)
        for r in range(16):
            a(f"v_mov_b32 v{ACC+r}, 0")
        for r in range(4):
            a(f"v_mov_b32 v{ACC4+r}, 0")
        a(f"s_lshl_b32 s{S_A}, s{S_ST}, 8\ns_add_u32 s{S_A}, s{S_A}, {G_OFF}")
        self.f_perm()
        nstream = 12 if pre else 17

        def next_sc(step):
            if step < 12:
                return self.perm_next(S_C, S_PERM, 4096)
            return f"s_mov_b32 s{S_C}, {step*4096}\n"
        a(f"s_cmp_eq_u32 s{S_FROMA}, 1\ns_cbranch_scc1 L_F_nowot\ns_barrier")
        self.wot_preload(VL)
        a("L_F_nowot:")
        a(next_sc(0))
        a("s_barrier")
        for t in range(NPF):
            for ks in range(4):
                a(f"buffer_load_dwordx4 {vr(PF+16*t+4*ks,4)}, v{VL}, s[{R_P}:{R_P+3}], s{S_C} offen offset:{ks*1024} sc1")
            a(next_sc(t + 1))
            if t == 0:
                a("s_barrier")
            if t == NPF - 1:
                for b in range(4):
                    a(f"s_lshl_b32 s{S_T0}, s{SB+b}, 6\ns_add_u32 s{S_T0}, s{S_T0}, s{S_A}")
                    a(f"buffer_load_dword v{GV+b}, v2, s[{R_WS}:{R_WS+3}], s{S_T0} offen sc1")

        mid = "s_nop 7\n"
        for b in range(4):
            mid += f"v_lshlrev_b32 v{BV+b}, 16, v{BV+b}\nv_sub_f32 v{GV+b}, 1.0, v{GV+b}\n"
        blocks = [(ACC + 4 * b, b) for b in range(4)] + [(ACC4, 0)]
        for r0, b in blocks:
            for k in range(4):
                mid += f"v_add_f32 v{r0+k}, v{BV+b}, v{r0+k}\n"
        for r0, b in blocks:
            for k in range(4):
                mid += f"v_mul_f32 v{r0+k}, v{GV+b}, v{r0+k}\n"
        mid += "s_nop 1\n"

        stages = []
        for t in range(17):
            slot = t % 8
            hi = slot >= 4
            uses = []
            for ks in range(4):
                for b in range(4):
                    g = ks * 4 + b
                    wb = WF + 4 * (g % 8)
                    reads = []
                    u4 = U4 + 4 * (ks & 1)
                    if b == 0:
                        reads.append((f"u{ks}", f"ds_read_b128 {vr(u4,4)}, v{VU4} offset:{slot*4096 + ks*1024}"))
                    if t < 12:
                        off = (slot & 3) * 16384 + ks * 4096
                        va = (VT2 if hi else VT) + b
                        reads += [(f"w{g}a", f"ds_read_b64_tr_b16 {vr(wb,2)}, v{va} offset:{off}"),
                                  (f"w{g}b", f"ds_read_b64_tr_b16 {vr(wb+2,2)}, v{va} offset:{off+2048}")]
                    elif t < 16:
                        assert hi
                        off = (slot & 3) * 16384 + ks * 1024
                        reads += [(f"w{g}b", f"ds_read_b128 {vr(wb,4)}, v{VGH+b} offset:{off}")]
                    else:
                        off = (slot & 3) * 16384 + ks * 1024
                        assert not hi
                        reads += [(f"w{g}a", f"ds_read_b64 {vr(wb,2)}, v{VG8+b} offset:{off}"),
                                  (f"w{g}b", f"ds_read_b64 {vr(wb+2,2)}, v{VG8+b} offset:{off+512}")]
                    acc = vr(ACC + 4 * b, 4)
                    ring = t < nstream
                    pf = vr(PF + 16 * (t % NPF) + 4 * ks, 4) if ring else vr(WOT + 16 * (t - 12) + 4 * ks, 4)
                    mf = [f"v_mfma_f32_16x16x32_bf16 {acc}, {pf}, {vr(wb,4)}, {acc}"]
                    if b == 0:
                        mf.append(f"v_mfma_f32_16x16x32_bf16 {vr(ACC4,4)}, {vr(u4,4)}, {vr(wb,4)}, {vr(ACC4,4)}")
                    d = dict(reads=reads, need=[f"w{g}b"], mf=mf)
                    if b == 0 and ring:
                        k = t * 4 + ks
                        n = min(k + 4 * NPF - 1, 4 * nstream - 1) - k
                        if t < NPF:
                            n += 4
                        d["vm"] = n
                    if b == 3 and t + NPF < nstream:
                        d["after"] = f"buffer_load_dwordx4 {pf}, v{VL}, s[{R_P}:{R_P+3}], s{S_C} offen offset:{ks*1024} sc1"
                        if ks == 3 and t + NPF + 1 < nstream:
                            d["after"] += "\n" + next_sc(t + NPF + 1)
                    if t == 12 and g == 0:
                        d["before"] = mid
                    uses.append(d)
            stages.append(dict(uses=uses, bar="s_barrier" if t else ""))
        nd = self.o.get("nodrain")
        LF = self.o.get("LF", 6)
        self.pipeline(stages, LF, (16 - LF) if nd else 13, drain=not nd, wait_every=self.o.get('we', 2))
        self.stamp(8, 2)
        a(f"""
        v_and_b32 v2, 15, v1
        v_mul_u32_u24 v2, 1280, v2
        v_lshrrev_b32 v3, 4, v1
        v_lshl_add_u32 v2, v3, 3, v2
        s_mul_i32 s{S_A}, s{S_ST}, {64*1280}
        s_lshl_b32 s{S_T0+1}, s{S_D}, 5
        s_add_u32 s{S_B}, s{S_A}, s{S_T0+1}
        s_mul_i32 s{S_T0+1}, s{S_DTILE}, 160
        s_add_u32 s{S_A}, s{S_A}, s{S_T0+1}
        s_add_u32 s{S_A}, s{S_A}, 128
        """)
        for r, b in blocks:
            a(f"s_mul_i32 s{S_T0}, s{SB+b}, {16*1280}\ns_add_u32 s{S_T0}, s{S_T0}, s{S_A if r == ACC4 else S_B}")
            a(f"v_cvt_pk_bf16_f32 v{r}, v{r}, v{r+1}\nv_cvt_pk_bf16_f32 v{r+1}, v{r+2}, v{r+3}")
            a(f"buffer_store_dwordx2 {vr(r,2)}, v2, s[{R_OUT}:{R_OUT+3}], s{S_T0} offen {['', 'sc1', 'nt', 'sc0 sc1'][self.o.get('osc', 0)]}")
        if self.stamps or self.o.get("dbg"):
            a("s_waitcnt vmcnt(0)")
            self.stamp(9, 2)
        if self.o.get("calib"):
            a(f"""
            L_cal:
            s_memrealtime s[96:97]
            s_waitcnt lgkmcnt(0)
            s_sub_u32 s96, s96, s98
            s_cmp_lt_u32 s96, {self.o.get("calib")*100}
            s_cbranch_scc1 L_cal
            """)
        a(f"s_or_b32 s{S_T0}, s2, s{S_WAVE}\ns_cmp_lg_u32 s{S_T0}, 0\ns_cbranch_scc1 L_end\ns_mov_b32 s{S_T0}, 0")
        self.flag_store(S_T0, 4)
        a("s_branch L_end")

        a("L_F_u4:")
        if self.stop == "phase1":
            a("s_branch L_end")
        a(f"""
        v_lshlrev_b32 v{VL}, 4, v1
        s_mul_i32 s{S_C}, s{S_DTILE}, {5*UW_ST}
        s_add_u32 s{S_C}, s{S_C}, {UW + 4*UW_ST}
        """)
        self.f_perm()
        self.f0_barrier()
        a("s_barrier")

        def u4_issue(iv):
            if iv < 12:
                a(self.perm_next(S_T0, S_PERM, 4096) + f"s_mov_b32 m0, {0x20000 + (iv % 8)*4096:#x}\ns_add_u32 s{S_T0}, s{S_T0}, s{S_C}")
            else:
                a(f"s_mov_b32 m0, {0x20000 + (iv % 8)*4096:#x}\ns_add_u32 s{S_T0}, s{S_C}, {iv*4096}")
            for i in range(4):
                a(f"buffer_load_dwordx4 v{VL}, s[{R_WS}:{R_WS+3}], s{S_T0} offen offset:{i*1024} sc1 lds")
        order = []
        for iv in range(8):
            u4_issue(iv)
            order.append(iv)
            if iv == 2:
                a("s_waitcnt vmcnt(8)\ns_barrier")
        for tb in range(1, 17):
            a(f"s_waitcnt vmcnt({4*len(order[order.index(tb)+1:])})\ns_barrier")
            iv = tb + (6 if self.o.get("nodrain") else 7)
            if 8 <= iv <= 16:
                u4_issue(iv)
                order.append(iv)
        a("s_branch L_end")

        a("L_F_loader:")
        if self.stop == "phase1":
            a("s_branch L_end")
        a(f"v_lshlrev_b32 v{VL}, 4, v1")
        self.f0_barrier()
        a("s_barrier")
        a(f"""
        s_sub_u32 s{S_T0}, s{S_WAVE}, 5
        s_lshl_b32 s{S_T0}, s{S_T0}, 1
        s_lshl_b32 s{S_T0+1}, s{S_ST}, 2
        s_add_u32 s{S_T0+1}, s{S_T0+1}, s{S_T0}
        s_mul_i32 s{S_C}, s{S_T0+1}, {GO_ST}
        s_add_u32 s{S_C}, s{S_C}, {GO}
        s_lshl_b32 s{S_D}, s{S_T0}, 12
        """)
        order = list(range(8))
        for tb in range(17):
            after = [x for x in order[order.index(tb) + 1:]]
            n = 8 * len(after)
            a(f"s_waitcnt vmcnt({min(n,63)})\ns_barrier")
            t = tb - 1
            tw = t - (1 if self.o.get("nodrain") else 0)
            if 0 <= tw <= 3:
                self.w2_issue()
                order.append(tw + 8)
            if 8 <= t <= 12:
                iv = t + 4
                g = iv - 12
                for s2 in range(2):
                    a(f"s_add_u32 m0, s{S_D}, {(iv % 8)*16384 + s2*4096}\ns_add_u32 s{S_T0}, s{S_C}, {s2*GO_ST + g*4096}")
                    for i in range(4):
                        a(f"buffer_load_dwordx4 v{VL}, s[{R_WS}:{R_WS+3}], s{S_T0} offen offset:{i*1024} sc1 lds")
                order.append(iv)
        a("s_branch L_end")
        a("L_F_poller:")
        if self.stop == "phase1":
            a("s_branch L_end")
        a(f"s_cmp_eq_u32 s{S_FROMA}, 1\ns_cbranch_scc1 L_F_pnowot")
        a(f"s_mul_i32 s{S_T0}, s{S_DTILE}, {FS}\ns_add_u32 s{S_T0}, s{S_T0}, {F_WOT}\nv_mov_b32 v2, s{S_T0}")
        self.poll([2], 4)
        a("s_barrier\nL_F_pnowot:")
        a(f"""
        s_mul_i32 s{S_T0}, s{S_DTILE}, 5
        s_lshr_b32 s{S_T0+1}, s{S_T0}, 3
        s_add_u32 s{S_T0}, s{S_T0}, 4
        s_lshr_b32 s{S_T0}, s{S_T0}, 3
        s_mul_i32 s{S_T0}, s{S_T0}, 24
        s_mul_i32 s{S_T0+1}, s{S_T0+1}, 24
        v_and_b32 v2, 31, v1
        v_min_u32 v2, 23, v2
        v_add_u32 v3, s{S_T0}, v2
        v_add_u32 v2, s{S_T0+1}, v2
        v_cmp_gt_u32 vcc, 32, v1
        s_mul_i32 s{S_T0}, s{S_DTILE}, {FS}
        s_add_u32 s{S_T0}, s{S_T0}, {F_WOT}
        v_cndmask_b32 v2, v2, v3, vcc
        v_mul_u32_u24 v2, {FS}, v2
        v_add_u32 v2, {F_U}, v2
        v_mov_b32 v3, s{S_T0}
        v_cmp_eq_u32 vcc, 63, v1
        s_nop 1
        v_cndmask_b32 v2, v2, v3, vcc
        """)
        self.poll([2], 4)
        self.stamp(6, 4)
        a("s_barrier")
        a(f"""
        v_and_b32 v2, 7, v1
        s_lshr_b32 s{S_T0}, s{S_ST}, 1
        s_lshl_b32 s{S_T0}, s{S_T0}, 3
        v_add_u32 v2, s{S_T0}, v2
        v_mul_u32_u24 v2, {FS}, v2
        v_add_u32 v2, {F_GO}, v2
        """)
        gp = self.o.get("gopoll", 9)
        for tb in range(gp):
            a("s_barrier")
            if tb == 1:
                a(f"s_cmp_eq_u32 s{S_FROMA}, 1\ns_cbranch_scc0 L_F_nogo")
                a(f"s_lshl_b32 s{S_T0}, s{S_MT}, 3\ns_add_u32 s{S_T0}, s{S_T0}, s{S_HG}\ns_mul_i32 s{S_T0}, s{S_T0}, {FS}\ns_add_u32 s{S_T0}, s{S_T0}, {F_GO}")
                self.flag_store(S_T0, 6)
                a("L_F_nogo:")
            self.stamp(32 + tb, 4)
        self.poll([2], 4)
        self.stamp(7, 4)
        for tb in range(gp, 17):
            a("s_barrier")
            self.stamp(32 + tb, 4)
        a("L_end:")
        if self.stamps:
            a(f"""
            s_lshl_b32 s{S_T0}, s2, 3
            s_add_u32 s{S_T0}, s{S_T0}, s{S_WAVE}
            s_lshl_b32 s{S_T0}, s{S_T0}, 9
            s_add_u32 s{S_T0}, s{S_T0}, {STAMP}
            v_lshlrev_b32 v2, 3, v1
            buffer_store_dwordx2 v[254:255], v2, s[{R_WS}:{R_WS+3}], s{S_T0} offen
            """)
        a("L_exit:\ns_endpgm")

    def build(self, header):
        a = self.a
        self.prologue()
        self.role_a()
        self.role_b()
        self.helper()
        self.final()
        body = a.text()
        out = header
        out += f"; @launch grid=(256,1,1) block=(512,1,1) lds={LDS_BYTES}\n"
        out += f'.amdgcn_target "amdgcn-amd-amdhsa--gfx950"\n.text\n.globl {KNAME}\n.p2align 8\n.type {KNAME},@function\n{KNAME}:\n'
        out += body
        out += f""".section .rodata,"a"
.p2align 6
.amdhsa_kernel {KNAME}
  .amdhsa_next_free_vgpr 256
  .amdhsa_next_free_sgpr 102
  .amdhsa_accum_offset 256
  .amdhsa_group_segment_fixed_size 0
  .amdhsa_kernarg_size 96
  .amdhsa_user_sgpr_count 2
  .amdhsa_user_sgpr_kernarg_segment_ptr 1
  .amdhsa_system_sgpr_workgroup_id_x 1
  .amdhsa_float_denorm_mode_32 3
.end_amdhsa_kernel
"""
        return out


def header():
    ref = open("gated_mix__linear_attn_block__mixer_token_mlp__prompt.s.ref").read().split("\n")
    h = []
    for l in ref:
        if l.startswith("; Override"):
            break
        h.append(l)
    return "\n".join(h) + "\n"


if __name__ == "__main__":
    import argparse
    p = argparse.ArgumentParser()
    p.add_argument("-o", default="gated_mix__linear_attn_block__mixer_token_mlp__prompt.s")
    p.add_argument("--stamps", action="store_true")
    p.add_argument("--stop", default=None)
    p.add_argument("--opt", default="")
    args = p.parse_args()
    opts = {k: (int(v) if v != '' else 1) for k, _, v in (x.partition('=') for x in args.opt.split(',') if x)}
    g = Gen(stamps=args.stamps, stop=args.stop, opts=opts)
    open(args.o, "w").write(g.build(header()))
    print("wrote", args.o)
```

```python
import sys

KNAME = "gated_mix__linear_attn_block__mixer_token_mlp__prompt_kernel"

import os
FS = int(os.environ.get('FS', 128))
F_LN, F_KV, F_U, F_GO, F_WOT = 0x1000, 0x5000, 0x9000, 0xD000, 0x11000
G_OFF = 0x12000
STAMP = 0x900000
KVP = 0x20000
KVP_ST = 7168
HT = 0x100000
UW = 0x380000
UW_ST = 69632
GO = 0x640000
GO_ST = 20480
WS_USED = 0xA00000
TAG_INC = 0x9E3779B9
SPIN_LIMIT = 1 << 17

LDS_BYTES = 163840
LNBUF = 0
LN_ST = 1312
LNG = LNBUF + 32 * LN_ST
A_SLOT = 49152
A_WOFF = 16384
EXCH_ST = 14336
EXCH = 131072 - 4 * EXCH_ST
KVT = 147456
ZH = KVT + 11 * 1024

LOG2E = 0x3FB8AA3B


def f2u(x):
    import struct
    return struct.unpack("<I", struct.pack("<f", x))[0]


class Asm:
    def __init__(self):
        self.L = []
        self.nlab = 0

    def __call__(self, s):
        for line in s.split("\n"):
            line = line.strip()
            if line:
                self.L.append(("    " if not line.endswith(":") else "") + line)

    def label(self, base):
        self.nlab += 1
        return f"L{base}_{self.nlab}"

    def text(self):
        return "\n".join(self.L) + "\n"


def vr(a, n=1):
    return f"v{a}" if n == 1 else f"v[{a}:{a+n-1}]"


def sr(a, n=1):
    return f"s{a}" if n == 1 else f"s[{a}:{a+n-1}]"


P_X, P_WQKV, P_WO, P_BX, P_W1, P_B1, P_W2, P_B2 = 4, 6, 8, 10, 12, 14, 16, 18
P_GATE, P_OUT, P_DBG, P_WS = 20, 22, 24, 26
S_TAG, S_WAVE = 28, 29
S_XCD, S_J = 30, 31
R_WS, R_X, R_W, R_P, R_W2, R_M, R_OUT = 32, 36, 40, 44, 48, 52, 56
S_T0 = 60
S_MT, S_HG, S_DT, S_FT, S_KST, S_PAR = 70, 71, 72, 73, 74, 75
S_ST, S_DTILE = 76, 77
S_CNT = 78
S_A, S_B, S_C, S_D = 80, 81, 82, 83
S_MSK = 84
S_K0 = 90
S_STMP = 96
S_PERM = 66
S_M = 79
S_FROMA = 95


def lead_perm(n, nshare, m, lead=2):
    order = list(range(n))
    i = m
    while i + lead < n:
        order[i:i + lead + 1] = [order[i + lead]] + order[i:i + lead]
        i += nshare
    return order


class Gen:
    def __init__(self, stamps=False, stop=None, opts=None):
        self.o = opts or {}
        self.a = Asm()
        self.stamps = stamps
        self.stop = stop

    def srd(self, dst, ptr, nbytes, off_s=None):
        a = self.a
        if off_s is None:
            a(f"s_mov_b32 s{dst}, s{ptr}\ns_and_b32 s{dst+1}, s{ptr+1}, 0xffff")
        else:
            a(f"s_add_u32 s{dst}, s{ptr}, s{off_s}\ns_addc_u32 s{dst+1}, s{ptr+1}, 0\ns_and_b32 s{dst+1}, s{dst+1}, 0xffff")
        a(f"s_mov_b32 s{dst+2}, {nbytes:#x}\ns_mov_b32 s{dst+3}, 0x20000")

    def stamp(self, k, vtmp, dyn=None):
        if "probe" in self.o:
            role = self.o.get("prole")
            if k == self.o["probe"] and dyn is None:
                lab = self.a.label("npr")
                if role is not None and k != 0:
                    self.a(f"s_cmp_lg_u32 s{S_FROMA}, {role}\ns_cbranch_scc1 {lab}")
                self.a(f"s_memrealtime s[98:99]\ns_mov_b32 s94, 1\ns_waitcnt lgkmcnt(0)\n{lab}:")
            return
        if self.o.get("dbg"):
            m = {0: 0, 11: 1, 1: 2, 2: 3, 3: 4, 4: 5, 6: 6, 9: 7}
            mA = {0: 0, 1: 1, 2: 2, 3: 3, 4: 4, 5: 5, 6: 6, 9: 7}
            if dyn is not None:
                return
            a = self.a
            for wg, mp, base in ((8, m, 0), (12, mA, 8)):
                if k in mp:
                    lab = a.label("nd")
                    a(f"s_cmp_lg_u32 s2, {wg}\ns_cbranch_scc1 {lab}")
                    a(f"s_memrealtime s[{S_STMP}:{S_STMP+1}]\ns_waitcnt lgkmcnt(0)")
                    a(f"v_mov_b32 v{vtmp}, s{S_STMP}\nv_mov_b32 v{vtmp+2}, {4*(base+mp[k])}")
                    a(f"s_mov_b64 exec, 1\nglobal_store_dword v{vtmp+2}, v{vtmp}, s[{P_DBG}:{P_DBG+1}]\ns_mov_b64 exec, -1\n{lab}:")
            return
        if not self.stamps:
            return
        a = self.a
        a(f"s_memrealtime s[{S_STMP}:{S_STMP+1}]\ns_memtime s[100:101]")
        ln = str(k)
        if dyn is not None:
            a(f"s_add_u32 m0, s{dyn}, {k}")
            ln = "m0"
        a(f"s_waitcnt lgkmcnt(0)\nv_writelane_b32 v254, s{S_STMP}, {ln}\nv_writelane_b32 v255, s100, {ln}")

    def perm_setup(self, s_m, n, nshare, dst, enable):
        a = self.a
        def pk(o):
            v = 0
            for i, x in enumerate(o):
                v |= x << (4 * i)
            return v & 0xffffffff, v >> 32
        lo, hi = pk(list(range(n)))
        a(f"s_mov_b32 s{dst}, {lo:#x}\ns_mov_b32 s{dst+1}, {hi:#x}")
        if not enable:
            return
        for m in range(nshare):
            lo, hi = pk(lead_perm(n, nshare, m, enable))
            a(f"s_cmp_eq_u32 s{s_m}, {m}\ns_cselect_b32 s{dst}, {lo:#x}, s{dst}\ns_cselect_b32 s{dst+1}, {hi:#x}, s{dst+1}")

    def perm_next(self, dst, src, mul):
        t = f"s_and_b32 s{dst}, s{src}, 15\ns_lshr_b64 s[{src}:{src+1}], s[{src}:{src+1}], 4\n"
        if mul & (mul - 1) == 0:
            t += f"s_lshl_b32 s{dst}, s{dst}, {mul.bit_length()-1}\n"
        else:
            t += f"s_mul_i32 s{dst}, s{dst}, {mul}\n"
        return t

    def poll(self, voffs, vtmp):
        a = self.a
        lp, dn = a.label("poll"), a.label("pdone")
        n = len(voffs)

        def ld(k):
            for i, vo in enumerate(voffs):
                a(f"buffer_load_dword v{vtmp+k*n+i}, v{vo}, s[{R_WS}:{R_WS+3}], 0 offen sc1")

        def chk(k):
            a(f"v_cmp_ne_u32 vcc, s{S_TAG}, v{vtmp+k*n}")
            for i in range(1, n):
                a(f"v_cmp_ne_u32 s[{S_T0}:{S_T0+1}], s{S_TAG}, v{vtmp+k*n+i}\ns_nop 1\ns_or_b64 vcc, vcc, s[{S_T0}:{S_T0+1}]")
            a(f"s_nop 1\ns_cmp_eq_u64 vcc, 0\ns_cbranch_scc1 {dn}")
        if not self.o.get("pp"):
            a(f"s_mov_b32 s{S_CNT}, 0\n{lp}:")
            ld(0)
            a("s_waitcnt vmcnt(0)")
            chk(0)
            a(f"s_add_u32 s{S_CNT}, s{S_CNT}, 1\ns_cmp_lt_u32 s{S_CNT}, {SPIN_LIMIT}\ns_cbranch_scc0 {dn}\ns_sleep 1\ns_branch {lp}\n{dn}:")
            return
        sl = f"s_sleep {self.o['pp'] - 1}\n" if self.o["pp"] > 1 else ""
        a(f"s_mov_b32 s{S_CNT}, 0")
        ld(0)
        a(f"{sl}{lp}:")
        ld(1)
        a(f"s_waitcnt vmcnt({n})")
        chk(0)
        ld(0)
        a(f"s_waitcnt vmcnt({n})")
        chk(1)
        a(f"s_add_u32 s{S_CNT}, s{S_CNT}, 1\ns_cmp_lt_u32 s{S_CNT}, {SPIN_LIMIT}\ns_cbranch_scc1 {lp}\n{dn}:")

    def flag_store(self, s_off, vtmp):
        a = self.a
        a(f"v_mov_b32 v{vtmp}, s{S_TAG}\nv_mov_b32 v{vtmp+1}, 0\ns_mov_b64 exec, 1")
        a(f"buffer_store_dword v{vtmp}, v{vtmp+1}, s[{R_WS}:{R_WS+3}], s{s_off} offen sc1\ns_mov_b64 exec, -1")

    def pipeline(self, stages, L, gstar, drain=True, wait_every=2):
        a = self.a
        seq = [(si, gi, u) for si, st in enumerate(stages) for gi, u in enumerate(st["uses"])]
        issued = []
        state = dict(nxt=0, opened=-1)
        pend = []

        def collect(lim):
            while state["nxt"] < len(seq) and state["nxt"] <= lim and seq[state["nxt"]][0] <= state["opened"]:
                si_, _, u_ = seq[state["nxt"]]
                for name, txt in u_["reads"]:
                    pend.append((f"{si_}:{name}", txt))
                state["nxt"] += 1
                if seq[state["nxt"] - 1][1] == len(stages[si_]["uses"]) - 1 and si_ + 1 < len(stages):
                    state["defer"] = list(stages[si_ + 1].get("pre", []))

        def emit(n):
            for _ in range(min(n, len(pend))):
                name, txt = pend.pop(0)
                a(txt)
                if name:
                    issued.append(name)

        a(stages[0]["bar"])
        state["opened"] = 0
        collect(L - 1)
        emit(len(pend))
        n_real = sum(len(st["uses"]) for st in stages if not st.get("virtual"))
        covered = -1
        for f in range(n_real):
            si, gi, u = seq[f]
            nuse = len(stages[si]["uses"])
            if gi == 0 and stages[si].get("head"):
                assert not pend, pend
                a(stages[si]["head"])
                covered = -1
            if gi == gstar and si + 1 < len(stages):
                emit(len(pend))
                for x in state.pop("defer", []):
                    a(x)
                if drain:
                    a("s_waitcnt lgkmcnt(0)")
                    covered = len(issued) - 1
                a(stages[si + 1]["bar"])
                pend.extend((None, x) for x in stages[si + 1].get("bar_pend", []))
                state["opened"] = si + 1
                collect(f + L - 1)
            def lastidx(ff):
                s_, _, uu = seq[ff]
                return max(len(issued) - 1 - issued[::-1].index(f"{s_}:{nm}") for nm in uu["need"])
            w = []
            if lastidx(f) > covered:
                tgt = lastidx(f)
                for ff in range(f + 1, min(f + wait_every, n_real)):
                    if seq[ff][0] != si:
                        break
                    try:
                        tgt = max(tgt, lastidx(ff))
                    except ValueError:
                        break
                n = len(issued) - 1 - tgt
                assert n <= 15, n
                w.append(f"lgkmcnt({n})")
                covered = tgt
            if u.get("vm") is not None:
                npv = sum(1 for nm_, t_ in pend if t_.strip().startswith("buffer_load"))
                w.insert(0, f"vmcnt({u['vm'] - npv})")
            if w:
                a("s_waitcnt " + " ".join(w))
            if u.get("before"):
                a(u["before"])
            if state.get("defer") and not pend:
                n_ = self.o.get("npre", 7)
                pend.extend((None, x) for x in state["defer"][:n_])
                state["defer"] = state["defer"][n_:]
            collect(f + L)
            if state.get("mix"):
                k_ = state.pop("mix")
                head_, rest_ = pend[:k_], pend[k_:]
                pend[:] = [x for pr in zip(head_, rest_) for x in pr] + head_[len(rest_):] + rest_[len(head_):]
            nm_ = len(u["mf"])
            for k, m in enumerate(u["mf"]):
                a(m)
                left = nm_ - k
                if drain and gi >= gstar:
                    left += sum(len(uu["mf"]) for uu in stages[si]["uses"][gi + 1:])
                    extra = 2 * (nuse - 1 - gi)
                    emit(-(-(len(pend) + extra) // left) if left > 1 else len(pend))
                else:
                    emit(-(-len(pend) // left))
            if u.get("after"):
                items = [x for x in u["after"].split("\n") if x.strip()]
                if gi == nuse - 1:
                    for x in items:
                        a(x)
                else:
                    assert not pend
                    pend.extend((None, x) for x in items)
                    state["mix"] = len(items)
            if gi == nuse - 1 and stages[si].get("tail"):
                a(stages[si]["tail"])

    def prologue(self):
        a = self.a
        a(f"""
        s_cmp_ge_u32 s2, 256
        s_cbranch_scc1 L_exit
        {"v_mov_b32 v254, 0" if self.stamps else ""}
        {"v_mov_b32 v255, 0" if self.stamps else ""}
        {"s_memrealtime s[98:99]" if self.o.get("calib") else ""}
        {"s_mov_b32 s94, 0" if "probe" in self.o else ""}
        s_load_dwordx16 s[4:19], s[0:1], 0
        s_load_dwordx8 s[20:27], s[0:1], 64
        v_and_b32 v1, 63, v0
        v_lshrrev_b32 v2, 6, v0
        s_and_b32 s{S_XCD}, s2, 7
        v_readfirstlane_b32 s{S_WAVE}, v2
        s_lshr_b32 s{S_J}, s2, 3
        s_waitcnt lgkmcnt(0)
        s_load_dword s{S_TAG}, s[{P_WS}:{P_WS+1}], 0
        """)
        self.srd(R_WS, P_WS, WS_USED)
        self.srd(R_X, P_X, 2048 * 1280)
        self.srd(R_W2, P_W2, 1536 * 4096)
        if self.stamps or self.o.get("dbg") or "probe" in self.o:
            a(f"s_cmp_lg_u32 s{S_WAVE}, 0\ns_cbranch_scc1 L_nost0")
            self.stamp(0, 4)
            a("L_nost0:")
        if self.o.get("tlb"):
            self.tlb_warm()
        if self.o.get("pf_code"):
            self.code_prefetch()
        if self.o.get("prio"):
            a(f"""
            s_sub_u32 s{S_T0}, s{S_WAVE}, 4
            s_cmp_lt_u32 s{S_T0}, 3
            s_cbranch_scc1 L_noprio
            s_setprio 3
            L_noprio:
            """)
        a(f"""
        s_lshr_b32 s{S_T0}, s{S_XCD}, 1
        s_lshl_b32 s{S_T0}, s{S_T0}, 3
        s_lshr_b32 s{S_ST}, s{S_J}, 2
        s_add_u32 s{S_ST}, s{S_ST}, s{S_T0}
        s_and_b32 s{S_T0}, s{S_XCD}, 1
        s_lshl_b32 s{S_T0}, s{S_T0}, 2
        s_and_b32 s{S_DTILE}, s{S_J}, 3
        s_add_u32 s{S_DTILE}, s{S_DTILE}, s{S_T0}
        s_cmp_lt_u32 s{S_XCD}, 4
        s_cbranch_scc1 L_roleB
        """)

    V_W2 = 240

    def f_perm(self):
        a = self.a
        a(f"s_lshl_b32 s{S_M}, s{S_DTILE}, 1\ns_add_u32 s{S_M}, s{S_M}, s{S_ST}\ns_and_b32 s{S_M}, s{S_M}, 7")
        self.perm_setup(S_M, 12, 8, S_PERM, self.o.get("rotF"))

    def w2_setup(self):
        a = self.a
        V = self.V_W2
        self.f_perm()
        a(f"""
        v_lshrrev_b32 v{V}, 3, v1
        v_lshrrev_b32 v{V+1}, 4, v1
        v_lshlrev_b32 v{V+1}, 1, v{V+1}
        v_and_b32 v{V+2}, 7, v1
        v_xor_b32 v{V+1}, v{V+1}, v{V+2}
        v_lshlrev_b32 v{V+1}, 4, v{V+1}
        v_lshl_add_u32 v{V}, v{V}, 12, v{V+1}
        v_add_u32 v{V+1}, {32768-1024}, v{V}
        v_add_u32 v{V+2}, {2*(32768-1024)}, v{V}
        v_add_u32 v{V+3}, {3*(32768-1024)}, v{V}
        s_sub_u32 s{S_T0}, s{S_WAVE}, 5
        s_lshl_b32 s{S_B}, s{S_T0}, 13
        s_lshl_b32 s{S_A}, s{S_T0}, 18
        s_lshl_b32 s{S_T0}, s{S_ST}, 7
        s_add_u32 s{S_A}, s{S_A}, s{S_T0}
        """)

    def w2_issue(self):
        a = self.a
        V = self.V_W2
        a(self.perm_next(S_T0, S_PERM, 128 * 4096))
        a(f"s_add_u32 s{S_T0}, s{S_T0}, s{S_A}")
        for g in range(2):
            a(f"s_add_u32 m0, s{S_B}, {g*4096}")
            a(f"s_add_u32 s{S_T0}, s{S_T0}, {g*4*32768}")
            for i in range(4):
                a(f"buffer_load_dwordx4 v{V+i}, s[{R_W2}:{R_W2+3}], s{S_T0} offen offset:{i*1024} lds")
        a(f"s_add_u32 s{S_B}, s{S_B}, 16384\ns_and_b32 s{S_B}, s{S_B}, 0x1ffff")

    def w2_prefill(self, n):
        if n == 0:
            return
        a = self.a
        lp = a.label("pf")
        a(f"s_mov_b32 s{S_C}, 0\n{lp}:")
        self.w2_issue()
        a(f"s_add_u32 s{S_C}, s{S_C}, 1\ns_cmp_lt_u32 s{S_C}, {n}\ns_cbranch_scc1 {lp}")

    def if_wave56(self):
        a = self.a
        skip = a.label("n56")
        a(f"s_sub_u32 s{S_T0}, s{S_WAVE}, 5\ns_cmp_lt_u32 s{S_T0}, 2\ns_cbranch_scc0 {skip}")
        return skip

    def role_a(self):
        a = self.a
        a(f"L_roleA:\ns_mov_b32 s{S_FROMA}, 1")
        a(f"s_sub_u32 s{S_MT}, s{S_ST}, 16\ns_mov_b32 s{S_HG}, s{S_DTILE}")
        a(f"s_cmp_ge_u32 s{S_WAVE}, 4\ns_cbranch_scc1 L_A_loader")
        ACC, XF, WF, VXA, VWA = 128, 96, 64, 4, 6
        if self.o.get("ta1") or self.o.get("ta2"):
            self.start_prefetch()
        self.a_thread_map()
        a(f"""
        v_and_b32 v16, 15, v1
        v_lshrrev_b32 v17, 4, v1
        s_lshl_b32 s{S_T0}, s{S_WAVE}, 5
        v_add_u32 v18, s{S_T0}, v16
        v_lshrrev_b32 v19, 1, v16
        v_xor_b32 v19, v17, v19
        v_lshlrev_b32 v19, 4, v19
        v_lshl_add_u32 v{VXA}, v18, 7, v19
        v_xor_b32 v{VXA+1}, 64, v{VXA}
        v_lshrrev_b32 v18, 2, v16
        v_lshl_add_u32 v19, v17, 3, v18
        v_and_b32 v20, 1, v17
        v_lshl_or_b32 v20, v20, 2, v18
        v_lshlrev_b32 v19, 9, v19
        v_lshl_add_u32 v19, v20, 5, v19
        v_and_b32 v20, 3, v16
        v_lshl_add_u32 v19, v20, 3, v19
        v_add_u32 v{VWA}, {A_WOFF}, v19
        """)
        for n in range(1, 8):
            a(f"v_xor_b32 v{VWA+n}, {n<<5}, v{VWA}")
        for r in range(120):
            a(f"v_mov_b32 v{ACC+r}, 0")
        a(f"s_mov_b32 s{S_A}, 0\ns_mov_b32 s{S_B}, 0\ns_mov_b32 s{S_C}, {A_SLOT}\ns_waitcnt lgkmcnt(0)")
        a(f"s_add_u32 s{S_TAG}, s{S_TAG}, {TAG_INC:#x}")

        RING = 6
        D = 6

        def mk_stage(bar, virtual=False, head=None, tail=None):
            uses = []
            for g in range(30):
                ks, n = divmod(g, 15)
                wb = WF + 4 * (g % RING)
                reads = []
                if g == 0:
                    for rb in range(2):
                        reads.append((f"x0{rb}", f"ds_read_b128 {vr(XF+4*rb,4)}, v{VXA} offset:{rb*2048}"))
                if g == 13:
                    for rb in range(2):
                        reads.append((f"x1{rb}", f"ds_read_b128 {vr(XF+8+4*rb,4)}, v{VXA+1} offset:{rb*2048}"))
                off = ks * 16384 + (n >> 3) * 256
                reads.append((f"w{g}a", f"ds_read_b64_tr_b16 {vr(wb,2)}, v{VWA+(n&7)} offset:{off}"))
                reads.append((f"w{g}b", f"ds_read_b64_tr_b16 {vr(wb+2,2)}, v{VWA+(n&7)} offset:{off+2048}"))
                need = [f"w{g}b", f"x{ks}1"]
                mf = []
                for rb in range(2):
                    acc = vr(ACC + (n * 2 + rb) * 4, 4)
                    xf = vr(XF + ks * 8 + rb * 4, 4)
                    wf = vr(wb, 4)
                    if n < 5:
                        mf.append(f"v_mfma_f32_16x16x32_bf16 {acc}, {wf}, {xf}, {acc}")
                    else:
                        mf.append(f"v_mfma_f32_16x16x32_bf16 {acc}, {xf}, {wf}, {acc}")
                uses.append(dict(reads=reads, need=need, mf=mf))
            return dict(uses=uses, bar=bar, virtual=virtual, head=head, tail=tail)

        adv = "s_barrier"
        pre = [f"s_add_u32 s{S_B}, s{S_B}, 1", f"s_cmp_eq_u32 s{S_B}, 3", f"s_cselect_b32 s{S_B}, 0, s{S_B}",
               f"s_cselect_b32 s{S_T0}, {(-2*A_SLOT) & 0xffffffff:#x}, s{S_C}"]
        pre += [f"v_add_u32 v{r}, s{S_T0}, v{r}" for r in range(VXA, VWA + 8)]
        tail = f"s_add_u32 s{S_A}, s{S_A}, 1\ns_cmp_lt_u32 s{S_A}, 10\ns_cbranch_scc1 L_A_loop"
        head = "L_A_loop:\n"
        bar0 = "s_barrier"
        if self.o.get("tw2") == 2:
            self.srd(R_P, P_WO, 640 * 1280)
            a(f"""
            v_lshlrev_b32 v252, 7, v1
            s_lshl_b32 s{S_T0}, s{S_MT}, 3
            s_add_u32 s{S_T0}, s{S_T0}, s{S_HG}
            s_lshl_b32 s{S_T0}, s{S_T0}, 2
            s_add_u32 s{S_T0}, s{S_T0}, s{S_WAVE}
            s_mul_i32 s{S_D}, s{S_T0}, 12288
            s_add_u32 s{S_KST}, s{S_D}, 8192
            s_mul_i32 s{S_PAR}, s{S_T0}, 1664
            s_and_b32 s{S_M}, s{S_J}, 7
            s_add_u32 s{S_M}, s{S_M}, {self.o.get("tw2at", 1)}
            """)
            head += f"""
            s_cmp_lg_u32 s{S_A}, s{S_M}
            s_cbranch_scc1 L_A_nt2
            buffer_load_dword v253, v252, s[{R_W2}:{R_W2+3}], s{S_D} offen
            s_mov_b32 exec_hi, 0
            buffer_load_dword v253, v252, s[{R_W2}:{R_W2+3}], s{S_KST} offen
            s_mov_b32 exec_lo, 0x1fff
            buffer_load_dword v253, v252, s[{R_P}:{R_P+3}], s{S_PAR} offen
            s_mov_b64 exec, -1
            L_A_nt2:
            """
        ta2 = self.o.get("ta2")
        if ta2 == 1:
            a(self.pf_rest())
        elif ta2 == 2:
            bar0 += "\n" + self.pf_rest()
        elif ta2:
            head += f"s_cmp_lg_u32 s{S_A}, {ta2-2}\ns_cbranch_scc1 L_A_npf\n" + self.pf_rest() + "L_A_npf:\n"
        self.pipeline([mk_stage(bar0, head=head, tail=tail), dict(mk_stage(adv, virtual=True), pre=pre)], 5, 30 - 3, wait_every=self.o.get('we', 2))
        self.stamp(2, 16)
        PK, VV, ONES, KVD, ZD = 16, 36, 56, 64, 116
        a("s_waitcnt lgkmcnt(0)\ns_nop 7")
        a(f"s_mov_b32 s{S_K0}, {LOG2E:#x}\ns_mov_b32 s{S_K0+1}, {LOG2E:#x}\ns_mov_b32 s{S_K0+2}, {f2u(1e-6):#x}")

        def phi(base, n, t):
            for i in range(0, n, 4):
                r = base + i
                a(f"v_pk_mul_f32 {vr(t,2)}, {vr(r,2)}, s[{S_K0}:{S_K0+1}]")
                a(f"v_pk_mul_f32 {vr(t+2,2)}, {vr(r+2,2)}, s[{S_K0}:{S_K0+1}]")
                for k in range(4):
                    a(f"v_exp_f32_e64 v{t+k}, v{t+k} clamp")
                for k in range(4):
                    a(f"v_max_f32 v{r+k}, s{S_K0+2}, v{r+k}")
                a(f"v_pk_add_f32 {vr(r,2)}, {vr(r,2)}, {vr(t,2)}")
                a(f"v_pk_add_f32 {vr(r+2,2)}, {vr(r+2,2)}, {vr(t+2,2)}")

        def pack(dst, src0, src1):
            a(f"v_cvt_pk_bf16_f32 v{dst}, v{src0}, v{src0+1}\nv_cvt_pk_bf16_f32 v{dst+1}, v{src0+2}, v{src0+3}")
            if src1 is None:
                a(f"v_mov_b32 v{dst+2}, 0\nv_mov_b32 v{dst+3}, 0")
            else:
                a(f"v_cvt_pk_bf16_f32 v{dst+2}, v{src1}, v{src1+1}\nv_cvt_pk_bf16_f32 v{dst+3}, v{src1+2}, v{src1+3}")

        for b in range(5):
            pack(VV + 4 * b, ACC + (10 + b) * 8, ACC + (10 + b) * 8 + 4)
        for k in range(4):
            a(f"v_mov_b32 v{ONES+k}, 0x3f803f80")
        phi(ACC + 40, 40, 60)
        for b in range(5):
            pack(PK + 4 * b, ACC + (5 + b) * 8, ACC + (5 + b) * 8 + 4)
        a("s_nop 1")
        ZD = ACC + 80
        blocks = [(x, y) for x in range(5) for y in range(5) if abs(x - y) <= 1]
        for (x, y) in blocks:
            a(f"v_mfma_f32_16x16x32_bf16 {vr(KVD+4*(2*x+y),4)}, {vr(PK+4*x,4)}, {vr(VV+4*y,4)}, 0")
        for x in range(5):
            a(f"v_mfma_f32_16x16x32_bf16 {vr(ZD+4*x,4)}, {vr(ONES,4)}, {vr(PK+4*x,4)}, 0")
        a(f"""
        s_mul_i32 s{S_T0}, s{S_WAVE}, {EXCH_ST}
        s_add_u32 s{S_T0}, s{S_T0}, {EXCH}
        v_lshlrev_b32 v60, 4, v1
        v_add_u32 v60, s{S_T0}, v60
        v_and_b32 v61, 15, v1
        v_lshlrev_b32 v61, 2, v61
        v_add_u32 v61, s{S_T0}, v61
        s_nop 3
        """)
        for i in range(13):
            a(f"ds_write_b128 v60, {vr(KVD+4*i,4)} offset:{i*1024}")
        for x in range(5):
            a(f"ds_write_b32 v61, v{ZD+4*x} offset:{13312+64*x}")
        a("s_waitcnt lgkmcnt(0)\ns_barrier")
        self.a_reduce_publish(64)
        a("s_waitcnt vmcnt(0)\ns_barrier")
        PQ = 16
        phi(ACC, 40, 60)
        for ts in range(3):
            for rb in range(2):
                pack(PQ + (ts * 2 + rb) * 4, ACC + (2 * ts * 2 + rb) * 4, None if ts == 2 else ACC + ((2 * ts + 1) * 2 + rb) * 4)
        self.uw_srd()
        a("v_lshlrev_b32 v60, 4, v1\ns_barrier")
        self.wot_preload(60)
        a("s_barrier")
        a(f"""
        v_and_b32 v63, 15, v1
        v_lshlrev_b32 v63, 2, v63
        s_lshl_b32 s{S_T0}, s{S_MT}, 7
        s_lshl_b32 s{S_T0+1}, s{S_WAVE}, 5
        s_add_u32 s{S_T0}, s{S_T0}, s{S_T0+1}
        s_lshl_b32 s{S_T0}, s{S_T0}, 2
        s_add_u32 s{S_T0}, s{S_T0}, {G_OFF}
        buffer_load_dword v62, v63, s[{R_WS}:{R_WS+3}], s{S_T0} offen sc1
        buffer_load_dword v61, v63, s[{R_WS}:{R_WS+3}], s{S_T0} offen offset:64 sc1
        """)
        self.a_gather(64)
        a("s_waitcnt lgkmcnt(0)\ns_barrier")
        self.stamp(4, 40)
        FR = 64
        a("v_lshlrev_b32 v60, 4, v1\nv_add_u32 v60, " + str(KVT) + ", v60")
        used = [0, 2, 3, 4, 5, 7, 8, 9, 10, 11, 12, 13]
        for f in used:
            a(f"ds_read_b128 {vr(FR+4*f,4)}, v60 offset:{f*1024}")
        NUM, DEN = 128, 120
        kts = {0: [0], 1: [0, 1], 2: [0, 1], 3: [1, 2], 4: [1, 2]}
        a(f"""
        v_lshrrev_b32 v40, 4, v1
        v_cmp_gt_u32 s[{S_MSK}:{S_MSK+1}], 1, v40
        v_cmp_gt_u32 s[{S_MSK+2}:{S_MSK+3}], 2, v40
        v_cmp_gt_u32 s[{S_MSK+4}:{S_MSK+5}], 3, v40
        s_waitcnt lgkmcnt(0)
        """)
        for rb in range(2):
            for ts in range(3):
                c = "0" if ts == 0 else vr(DEN + 4 * rb, 4)
                a(f"v_mfma_f32_16x16x32_bf16 {vr(DEN+4*rb,4)}, {vr(FR+4*(11+ts),4)}, {vr(PQ+(ts*2+rb)*4,4)}, {c}")
        for rb in range(2):
            for b in range(5):
                for i, ts in enumerate(kts[b]):
                    d = vr(NUM + (rb * 5 + b) * 4, 4)
                    c = "0" if i == 0 else d
                    a(f"v_mfma_f32_16x16x32_bf16 {d}, {vr(FR+4*(2*b+ts),4)}, {vr(PQ+(ts*2+rb)*4,4)}, {c}")
        for rb in range(2):
            for h in range(4):
                a(f"v_add_f32 v{DEN+4*rb+h}, s{S_K0+2}, v{DEN+4*rb+h}")
        for rb in range(2):
            for h in range(4):
                a(f"v_rcp_f32 v{DEN+4*rb+h}, v{DEN+4*rb+h}")
        a("s_nop 0")
        gv = {0: 62, 1: 61}
        for rb in range(2):
            for h in range(4):
                a(f"v_mul_f32 v{DEN+4*rb+h}, v{gv[rb]}, v{DEN+4*rb+h}")
        a(f"""
        s_lshl_b32 s{S_T0}, s{S_MT}, 3
        s_lshl_b32 s{S_T0+1}, s{S_WAVE}, 1
        s_add_u32 s{S_T0}, s{S_T0}, s{S_T0+1}
        s_mul_i32 s{S_T0}, s{S_T0}, {GO_ST}
        s_add_u32 s{S_T0}, s{S_T0}, {GO}
        s_lshl_b32 s{S_T0+1}, s{S_HG}, 11
        s_add_u32 s{S_T0+1}, s{S_T0+1}, s{S_T0}
        s_lshl_b32 s{S_T0+2}, s{S_HG}, 9
        s_add_u32 s{S_T0+2}, s{S_T0+2}, s{S_T0}
        s_add_u32 s{S_T0+2}, s{S_T0+2}, 16384
        v_lshlrev_b32 v40, 4, v1
        v_lshlrev_b32 v41, 3, v1
        """)
        for rb in range(2):
            d = DEN + 4 * rb
            a(f"v_cndmask_b32 v44, v{d+1}, v{d}, s[{S_MSK}:{S_MSK+1}]")
            a(f"v_cndmask_b32 v45, v{d+2}, v{d+1}, s[{S_MSK+2}:{S_MSK+3}]")
            a(f"v_cndmask_b32 v46, v{d+3}, v{d+2}, s[{S_MSK+4}:{S_MSK+5}]")
            sc = [d, 44, 45, 46, d + 3]
            for b in range(5):
                for k in range(4):
                    r = NUM + (rb * 5 + b) * 4 + k
                    a(f"v_mul_f32 v{r}, v{sc[b]}, v{r}")
            o = 16 + rb * 12
            n0 = NUM + rb * 20
            pack(o, n0, n0 + 4)
            pack(o + 4, n0 + 8, n0 + 12)
            a(f"v_cvt_pk_bf16_f32 v{o+8}, v{n0+16}, v{n0+17}\nv_cvt_pk_bf16_f32 v{o+9}, v{n0+18}, v{n0+19}")
            a(f"buffer_store_dwordx4 {vr(o,4)}, v40, s[{R_WS}:{R_WS+3}], s{S_T0+1} offen sc1")
            a(f"buffer_store_dwordx4 {vr(o+4,4)}, v40, s[{R_WS}:{R_WS+3}], s{S_T0+1} offen offset:1024 sc1")
            a(f"buffer_store_dwordx2 {vr(o+8,2)}, v41, s[{R_WS}:{R_WS+3}], s{S_T0+2} offen sc1")
            if rb == 0:
                a(f"s_add_u32 s{S_T0+1}, s{S_T0+1}, {GO_ST}\ns_add_u32 s{S_T0+2}, s{S_T0+2}, {GO_ST}")
        self.stamp(5, 40)
        a("s_branch L_F_comp")

        a("L_A_loader:")
        VX, VW = 4, 8
        self.srd(R_W, P_WQKV, 640 * 3840)
        a(f"""
        s_sub_u32 s{S_D}, s{S_WAVE}, 4
        v_lshrrev_b32 v16, 3, v1
        v_lshrrev_b32 v17, 4, v1
        v_and_b32 v18, 7, v1
        v_xor_b32 v17, v17, v18
        v_lshlrev_b32 v17, 4, v17
        v_mul_u32_u24 v16, 1280, v16
        v_add_u32 v{VX}, v16, v17
        v_xor_b32 v18, 64, v{VX}
        v_add_u32 v{VX+1}, {8*1280-1024}, v18
        v_add_u32 v{VX+2}, {2*(8*1280-1024)}, v{VX}
        v_add_u32 v{VX+3}, {3*(8*1280-1024)}, v18
        s_lshl_b32 s{S_T0}, s{S_MT}, 7
        s_lshl_b32 s{S_T0+1}, s{S_D}, 5
        s_add_u32 s{S_T0}, s{S_T0}, s{S_T0+1}
        s_mul_i32 s{S_A}, s{S_T0}, 1280
        s_lshl_b32 s{S_C}, s{S_D}, 12
        """)
        def issue_x():
            a(f"s_mov_b32 m0, s{S_C}\ns_nop 0")
            for i in range(4):
                a(f"buffer_load_dwordx4 v{VX+i}, s[{R_X}:{R_X+3}], s{S_A} offen offset:{i*1024} lds")
            a(f"s_add_u32 s{S_A}, s{S_A}, 128")

        def issue_w():
            for g in range(2):
                a(f"s_lshl_b32 s{S_T0}, s{S_D}, 12\ns_add_u32 s{S_T0}, s{S_T0}, s{S_C}\ns_add_u32 m0, s{S_T0}, {A_WOFF + g*4096}\ns_nop 0")
                for i in range(4):
                    a(f"buffer_load_dwordx4 v{VW+4*g+i}, s[{R_W}:{R_W+3}], s{S_B} offen offset:{i*1024} lds")
            a(f"s_add_u32 s{S_B}, s{S_B}, {64*3840}")

        def next_slot():
            a(f"s_add_u32 s{S_C}, s{S_C}, {A_SLOT}\ns_cmp_ge_u32 s{S_C}, {3*A_SLOT}\ns_cselect_b32 s{S_T0}, {3*A_SLOT}, 0\ns_sub_u32 s{S_C}, s{S_C}, s{S_T0}")

        issue_x()
        a(f"""
        v_lshrrev_b32 v16, 5, v1
        v_bfe_u32 v17, v1, 1, 4
        v_and_b32 v18, 1, v1
        v_lshlrev_b32 v18, 4, v18
        v_mul_u32_u24 v19, 3840, v16
        v_add_u32 v18, v18, v19
        """)
        for i in (0, 1, 4, 5):
            sig = (2 * (i & 1)) | ((i >> 2) << 2)
            a(f"""
            v_or_b32 v19, {sig}, v16
            v_xor_b32 v19, v17, v19
            v_min_u32 v19, 14, v19
            v_mul_u32_u24 v20, 13, v19
            v_lshrrev_b32 v20, 6, v20
            v_mul_u32_u24 v20, 1120, v20
            v_lshl_add_u32 v19, v19, 5, v20
            v_add_u32 v19, v19, v18
            v_add_u32 v{VW+i}, {2*i*3840 - (i&3)*1024}, v19
            v_add_u32 v{VW+i+2}, {2*(i+2)*3840 - ((i+2)&3)*1024}, v19
            """)
        a(f"""
        s_mul_i32 s{S_B}, s{S_HG}, 160
        s_mul_i32 s{S_T0}, s{S_D}, {16*3840}
        s_add_u32 s{S_B}, s{S_B}, s{S_T0}
        """)
        issue_w()
        for _ in range(2):
            next_slot()
            issue_x()
            issue_w()
        a(f"v_lshlrev_b32 v16, 4, v1\ns_lshl_b32 s{S_T0}, s{S_D}, 12\ns_add_u32 s{S_T0}, s{S_T0}, {KVT}\nv_add_u32 v16, s{S_T0}, v16")
        a("v_mov_b32 v20, 0\nv_mov_b32 v21, 0\nv_mov_b32 v22, 0\nv_mov_b32 v23, 0")
        for i in range(4):
            a(f"ds_write_b128 v16, v[20:23] offset:{i*1024}")
        a(f"s_waitcnt lgkmcnt(0)\ns_add_u32 s{S_TAG}, s{S_TAG}, {TAG_INC:#x}")
        a("s_waitcnt vmcnt(24)\ns_barrier")
        self.stamp(1, 16)
        a(f"s_mov_b32 s{S_CNT}, 1\nL_A_lloop:")
        a("s_waitcnt vmcnt(12)\ns_barrier")
        self.stamp(16, 16, dyn=S_CNT)
        next_slot()
        issue_x()
        issue_w()
        a(f"s_add_u32 s{S_CNT}, s{S_CNT}, 1\ns_cmp_le_u32 s{S_CNT}, 7\ns_cbranch_scc1 L_A_lloop")
        tw = 3 if self.o.get("tw2") == 1 else 0
        a(f"s_waitcnt vmcnt(12)\ns_barrier")
        if tw:
            self.w2_touch()
        self.stamp(24, 16)
        a(f"s_waitcnt vmcnt({tw})\ns_barrier")
        self.stamp(25, 16)
        a("s_barrier")
        self.stamp(26, 16)
        nA0 = self.o.get("nA0", 4)
        self.w2_setup()
        skip0 = self.if_wave56()
        self.w2_prefill(nA0)
        a(f"{skip0}:")
        self.a_thread_map()
        a("s_barrier")
        a(f"s_cmp_eq_u32 s{S_WAVE}, 7\ns_cbranch_scc1 L_A_poller")
        self.a_reduce_publish(64)
        a("s_waitcnt vmcnt(0)\ns_barrier")
        skip = self.if_wave56()
        a("s_nop 7\ns_nop 7")
        self.w2_prefill(8 - nA0)
        a("s_barrier\ns_barrier")
        self.a_gather(64)
        a("s_waitcnt lgkmcnt(0)\ns_barrier")
        a("s_branch L_F_loader")
        a(f"{skip}:\ns_barrier\ns_barrier")
        self.a_gather(64)
        a("s_waitcnt lgkmcnt(0)\ns_barrier")
        a("s_branch L_F_u4")
        a("L_A_poller:\ns_barrier")
        a(f"s_lshl_b32 s{S_T0}, s{S_HG}, 4\ns_add_u32 s{S_T0}, s{S_T0}, s{S_MT}\ns_mul_i32 s{S_T0}, s{S_T0}, {FS}\ns_add_u32 s{S_T0}, s{S_T0}, {F_KV}")
        self.flag_store(S_T0, 16)
        self.stamp(3, 16)
        a(f"s_mul_i32 s{S_T0}, s{S_DTILE}, {FS}\ns_add_u32 s{S_T0}, s{S_T0}, {F_WOT}\nv_mov_b32 v16, s{S_T0}")
        self.poll([16], 18)
        a("s_barrier")
        a(f"""
        v_and_b32 v16, 15, v1
        s_lshl_b32 s{S_T0}, s{S_HG}, 4
        v_add_u32 v16, s{S_T0}, v16
        v_mul_u32_u24 v16, {FS}, v16
        v_add_u32 v16, {F_KV}, v16
        v_and_b32 v17, 3, v1
        s_lshl_b32 s{S_T0}, s{S_MT}, 2
        v_add_u32 v17, s{S_T0}, v17
        v_mul_u32_u24 v17, {FS}, v17
        v_add_u32 v17, {F_LN}, v17
        v_cmp_gt_u32 vcc, 32, v1
        s_nop 1
        v_cndmask_b32 v16, v17, v16, vcc
        """)
        self.poll([16], 18)
        self.stamp(13, 16)
        a("s_barrier\ns_barrier")
        a("s_branch L_F_poller")

    def start_prefetch(self):
        a = self.a
        self.srd(R_W, P_WQKV, 640 * 3840)
        a(f"""
        s_lshl_b32 s{S_T0}, s{S_J}, 2
        s_add_u32 s{S_T0}, s{S_T0}, s{S_WAVE}
        v_lshrrev_b32 v16, 2, v1
        v_and_b32 v17, 3, v1
        v_mul_u32_u24 v16, 1280, v16
        v_lshl_add_u32 v16, v17, 7, v16
        s_lshr_b32 s{S_T0+2}, s{S_MT}, 3
        s_lshl_b32 s{S_T0+2}, s{S_T0+2}, 7
        s_add_u32 s{S_T0+2}, s{S_T0+2}, s{S_T0}
        s_mul_i32 s{S_DT}, s{S_T0+2}, {8*1280}
        v_lshrrev_b32 v19, 4, v1
        v_and_b32 v17, 15, v1
        v_min_u32 v17, 14, v17
        v_mul_u32_u24 v18, 13, v17
        v_lshrrev_b32 v18, 6, v18
        v_mul_u32_u24 v18, 640, v18
        v_lshl_add_u32 v18, v17, 7, v18
        v_mul_u32_u24 v19, 3840, v19
        v_add_u32 v112, v18, v19
        s_lshr_b32 s{S_T0+2}, s{S_HG}, 2
        s_mul_i32 s{S_T0+2}, s{S_T0+2}, 640
        s_mul_i32 s{S_FT}, s{S_T0}, {2*3840}
        s_add_u32 s{S_FT}, s{S_FT}, s{S_T0+2}
        """)
        if self.o.get("ta1"):
            a(f"""
            s_mov_b32 exec_hi, 0
            buffer_load_dword v253, v112, s[{R_W}:{R_W+3}], s{S_FT} offen
            buffer_load_dword v253, v16, s[{R_X}:{R_X+3}], s{S_DT} offen
            s_mov_b32 exec_hi, -1
            """)
        a(f"""
        s_mul_i32 s{S_FT}, s{S_T0}, {3*3840}
        s_add_u32 s{S_FT}, s{S_FT}, s{S_T0+2}
        s_add_u32 s{S_FT}, s{S_FT}, {256*3840}
        v_lshrrev_b32 v16, 3, v1
        v_and_b32 v17, 7, v1
        v_min_u32 v17, 5, v17
        v_mul_u32_u24 v16, 1280, v16
        v_lshl_add_u32 v113, v17, 7, v16
        s_add_u32 s{S_DT}, s{S_DT}, 512
        """)

    def pf_rest(self):
        return f"""s_mov_b32 exec_hi, 0xffff
        buffer_load_dword v253, v112, s[{R_W}:{R_W+3}], s{S_FT} offen
        s_mov_b32 exec_hi, -1
        buffer_load_dword v253, v113, s[{R_X}:{R_X+3}], s{S_DT} offen
        """

    def w2_touch(self):
        a = self.a
        self.srd(R_W2, P_W2, 1536 * 4096)
        a(f"""
        v_lshlrev_b32 v48, 7, v1
        s_lshl_b32 s{S_T0}, s{S_MT}, 3
        s_add_u32 s{S_T0}, s{S_T0}, s{S_HG}
        s_lshl_b32 s{S_T0}, s{S_T0}, 2
        s_add_u32 s{S_T0}, s{S_T0}, s{S_D}
        s_mul_i32 s{S_T0}, s{S_T0}, 12288
        buffer_load_dword v253, v48, s[{R_W2}:{R_W2+3}], s{S_T0} offen
        s_add_u32 s{S_T0}, s{S_T0}, 8192
        s_mov_b32 exec_hi, 0
        buffer_load_dword v253, v48, s[{R_W2}:{R_W2+3}], s{S_T0} offen
        """)
        self.srd(R_P, P_WO, 640 * 1280)
        a(f"""
        s_lshl_b32 s{S_T0}, s{S_MT}, 3
        s_add_u32 s{S_T0}, s{S_T0}, s{S_HG}
        s_lshl_b32 s{S_T0}, s{S_T0}, 2
        s_add_u32 s{S_T0}, s{S_T0}, s{S_D}
        s_mul_i32 s{S_T0}, s{S_T0}, 1664
        s_mov_b32 exec_lo, 0x1fff
        buffer_load_dword v253, v48, s[{R_P}:{R_P+3}], s{S_T0} offen
        s_mov_b64 exec, -1
        """)

    def tlb_warm(self):
        a = self.a
        mode = self.o["tlb"]
        wv = self.o.get("tlbw", 3)
        a(f"s_cmp_lg_u32 s{S_WAVE}, {wv}\ns_cbranch_scc1 L_notlb")
        self.srd(R_OUT, P_OUT, 2048 * 1280)
        self.srd(R_M, P_B2, 4096)
        self.srd(R_P, P_WO, 640 * 1280)
        self.srd(R_W, P_W1, 2048 * 3072)
        if mode == 1:
            a("v_lshlrev_b32 v4, 20, v1\nv_min_u32 v4, 0xf00000, v4\ns_mov_b64 exec, 0xffff")
            so = "0"
        else:
            a(f"v_lshlrev_b32 v4, 21, v1\ns_lshl_b32 s{S_T0}, s{S_J}, 16\ns_mov_b64 exec, 0x1f")
            so = f"s{S_T0}"
        for r in (R_WS, R_W2, R_OUT, R_W, R_P, R_M):
            a(f"buffer_load_dword v253, v4, s[{r}:{r+3}], {so} offen sc1")
        a("s_mov_b64 exec, -1\nL_notlb:")

    def code_prefetch(self):
        a = self.a
        a(f"""
        s_cmp_lg_u32 s{S_WAVE}, 3
        s_cbranch_scc1 L_nocpf
        s_cmp_ge_u32 s{S_J}, 4
        s_cbranch_scc1 L_nocpf
        s_getpc_b64 s[{S_T0}:{S_T0+1}]
        L_pcref:
        s_lshl_b32 s{S_T0+2}, s{S_J}, 13
        v_lshlrev_b32 v4, 7, v1
        v_add_u32 v4, s{S_T0+2}, v4
        v_min_u32 v4, L_end-L_pcref, v4
        global_load_dword v253, v4, s[{S_T0}:{S_T0+1}]
        L_nocpf:
        """)

    def a_thread_map(self):
        a = self.a
        a(f"""
        v_mul_u32_u24 v16, 625, v0
        v_lshrrev_b32 v16, 16, v16
        v_mul_u32_u24 v17, 105, v16
        v_sub_u32 v17, v0, v17
        v_mul_u32_u24 v18, 205, v17
        v_lshrrev_b32 v18, 10, v18
        v_mul_u32_u24 v19, 5, v18
        v_sub_u32 v19, v17, v19
        v_mad_u32_u24 v19, v16, 5, v19
        v_mad_u32_u24 v20, v16, 20, v18
        v_lshrrev_b32 v21, 2, v19
        v_and_b32 v22, 3, v19
        v_lshrrev_b32 v23, 4, v20
        v_and_b32 v20, 15, v20
        v_lshl_add_u32 v20, v22, 4, v20
        v_lshl_add_u32 v2, v21, 1, v23
        v_lshlrev_b32 v2, 6, v2
        v_add_u32 v2, v2, v20
        v_lshlrev_b32 v2, 4, v2
        v_lshlrev_b32 v3, 4, v19
        v_add_u32 v3, 13312, v3
        v_cmp_lt_u32 vcc, 99, v17
        v_lshrrev_b32 v24, 1, v21
        v_and_b32 v21, 1, v21
        v_cndmask_b32 v2, v2, v3, vcc
        v_lshl_add_u32 v3, v23, 1, v24
        v_add_u32 v24, 11, v24
        v_lshl_add_u32 v22, v22, 4, v16
        v_cndmask_b32 v3, v3, v24, vcc
        v_cndmask_b32 v20, v20, v22, vcc
        v_lshl_add_u32 v3, v3, 6, v20
        v_lshlrev_b32 v3, 4, v3
        v_lshl_add_u32 v3, v21, 3, v3
        v_add_u32 v3, {KVT}, v3
        v_mov_b32 v25, 2
        v_cndmask_b32 v25, 1, v25, vcc
        v_mov_b32 v16, 420
        v_cmp_gt_u32 vcc, v16, v0
        v_lshlrev_b32 v14, 4, v0
        s_nop 0
        v_cndmask_b32 v15, 0, v25, vcc
        v_cndmask_b32 v2, 0, v2, vcc
        v_add_u32 v2, {EXCH}, v2
        """)

    def a_reduce_publish(self, T):
        a = self.a
        for w in range(4):
            a(f"ds_read_b128 {vr(T+4*w,4)}, v2 offset:{w*EXCH_ST}")
        a(f"""
        s_lshl_b32 s{S_T0}, s{S_HG}, 4
        s_add_u32 s{S_T0}, s{S_T0}, s{S_MT}
        s_mul_i32 s{S_T0}, s{S_T0}, {KVP_ST}
        s_add_u32 s{S_T0}, s{S_T0}, {KVP}
        v_cmp_ne_u32 vcc, 0, v15
        s_waitcnt lgkmcnt(0)
        v_pk_add_f32 {vr(T,2)}, {vr(T,2)}, {vr(T+4,2)}
        v_pk_add_f32 {vr(T+2,2)}, {vr(T+2,2)}, {vr(T+6,2)}
        v_pk_add_f32 {vr(T+8,2)}, {vr(T+8,2)}, {vr(T+12,2)}
        v_pk_add_f32 {vr(T+10,2)}, {vr(T+10,2)}, {vr(T+14,2)}
        v_pk_add_f32 {vr(T,2)}, {vr(T,2)}, {vr(T+8,2)}
        v_pk_add_f32 {vr(T+2,2)}, {vr(T+2,2)}, {vr(T+10,2)}
        s_mov_b64 exec, vcc
        buffer_store_dwordx4 {vr(T,4)}, v14, s[{R_WS}:{R_WS+3}], s{S_T0} offen sc1
        s_mov_b64 exec, -1
        """)

    def a_gather(self, T, extra=0, hook=None):
        a = self.a
        a(f"s_mul_i32 s{S_T0+1}, s{S_HG}, {16*KVP_ST}\ns_add_u32 s{S_T0+1}, s{S_T0+1}, {KVP}")
        rot = self.o.get("rotG")
        if rot:
            a(f"s_lshl_b32 s{S_T0+2}, s{S_MT}, 1")
        else:
            a(f"s_mov_b32 s{S_T0+2}, 0")
        a("v_cmp_ne_u32 vcc, 0, v15\ns_nop 1\ns_mov_b64 exec, vcc")
        for m in range(16):
            a(f"s_and_b32 s{S_T0+2}, s{S_T0+2}, 15\ns_mul_i32 s{S_T0}, s{S_T0+2}, {KVP_ST}\ns_add_u32 s{S_T0}, s{S_T0}, s{S_T0+1}\ns_add_u32 s{S_T0+2}, s{S_T0+2}, 1")
            a(f"buffer_load_dwordx4 {vr(T+4*m,4)}, v14, s[{R_WS}:{R_WS+3}], s{S_T0} offen sc1")
        a("s_mov_b64 exec, -1")
        if hook:
            hook()
        for m in range(0, 16, 2):
            a(f"s_waitcnt vmcnt({14-m+extra})")
            for h in (0, 2):
                a(f"v_pk_add_f32 {vr(T+4*m+h,2)}, {vr(T+4*m+h,2)}, {vr(T+4*(m+1)+h,2)}")
            if m >= 2:
                for h in (0, 2):
                    a(f"v_pk_add_f32 {vr(T+h,2)}, {vr(T+h,2)}, {vr(T+4*m+h,2)}")
        a(f"""
        v_cvt_pk_bf16_f32 v{T}, v{T}, v{T+1}
        v_cvt_pk_bf16_f32 v{T+1}, v{T+2}, v{T+3}
        v_cmp_ne_u32 vcc, 0, v15
        v_cmp_eq_u32 s[{S_T0}:{S_T0+1}], 2, v15
        s_nop 1
        s_mov_b64 exec, vcc
        ds_write_b64 v3, {vr(T,2)}
        s_mov_b64 exec, s[{S_T0}:{S_T0+1}]
        ds_write_b64 v3, {vr(T,2)} offset:64
        ds_write_b64 v3, {vr(T,2)} offset:128
        ds_write_b64 v3, {vr(T,2)} offset:192
        s_mov_b64 exec, -1
        """)

    def role_b(self):
        a = self.a
        a(f"L_roleB:\ns_mov_b32 s{S_FROMA}, 0")
        XR, B1R, GR, XS = 16, 36, 64, 84
        VPF = 8
        a(f"s_cmp_ge_u32 s{S_J}, 16\ns_cbranch_scc1 L_B_pfrole")
        a(f"""
        s_lshl_b32 s{S_KST}, s{S_XCD}, 4
        s_add_u32 s{S_KST}, s{S_KST}, s{S_J}
        s_lshl_b32 s{S_T0}, s{S_KST}, 3
        s_add_u32 s{S_T0}, s{S_T0}, s{S_WAVE}
        s_mul_i32 s{S_T0}, s{S_T0}, {4*1280}
        v_lshrrev_b32 v2, 4, v1
        v_and_b32 v3, 15, v1
        v_lshlrev_b32 v3, 4, v3
        v_mul_u32_u24 v4, 1280, v2
        v_add_u32 v4, v4, v3
        """)
        for c in range(5):
            a(f"buffer_load_dwordx4 {vr(XR+4*c,4)}, v4, s[{R_X}:{R_X+3}], s{S_T0} offen offset:{c*256}")
        self.srd(R_M, P_GATE, 1280)
        for c in range(5):
            a(f"buffer_load_dwordx4 {vr(GR+4*c,4)}, v3, s[{R_M}:{R_M+3}], 0 offen offset:{c*256}")

        def common_setup():
            a(f"""
            s_mul_i32 s{S_M}, s{S_J}, 205
            s_lshr_b32 s{S_M}, s{S_M}, 10
            s_mul_i32 s{S_DT}, s{S_M}, 5
            s_sub_u32 s{S_DT}, s{S_J}, s{S_DT}
            s_mul_i32 s{S_FT}, s{S_XCD}, 6
            s_add_u32 s{S_FT}, s{S_FT}, s{S_M}
            """)
            self.srd(R_OUT, P_B1, 3072)
            a(f"v_lshrrev_b32 v5, 4, v1\nv_lshlrev_b32 v5, 3, v5\ns_lshl_b32 s{S_T0}, s{S_FT}, 7")
            for b in range(4):
                a(f"buffer_load_dwordx2 {vr(B1R+2*b,2)}, v5, s[{R_OUT}:{R_OUT+3}], s{S_T0} offen offset:{b*32}")
            a(f"""
            v_lshrrev_b32 v12, 3, v1
            v_lshrrev_b32 v13, 4, v1
            v_lshlrev_b32 v13, 1, v13
            v_and_b32 v14, 7, v1
            v_xor_b32 v13, v13, v14
            v_lshlrev_b32 v13, 4, v13
            v_mul_u32_u24 v12, 3072, v12
            v_add_u32 v{VPF}, v12, v13
            v_add_u32 v{VPF+1}, {8*3072-1024}, v{VPF}
            v_add_u32 v{VPF+2}, {2*(8*3072-1024)}, v{VPF}
            v_add_u32 v{VPF+3}, {3*(8*3072-1024)}, v{VPF}
            """)
            self.perm_setup(S_M, 16, 6, S_PERM, self.o.get("rotB"))

        self.srd(R_W, P_W1, 2048 * 3072)
        common_setup()
        a("v_mov_b32 v124, 0\nv_mov_b32 v125, 0\nv_mov_b32 v126, 0x3f803f80\ns_waitcnt vmcnt(4)")
        self.stamp(11, 44)
        for c in range(20):
            a(f"v_dot2c_f32_bf16 v124, v{XR+c}, v126")
        for c in range(20):
            a(f"v_dot2c_f32_bf16 v125, v{XR+c}, v{GR+c}")
        for c in range(20):
            a(f"v_lshlrev_b32 v{XS+2*c}, 16, v{XR+c}\nv_and_b32 v{XS+2*c+1}, 0xffff0000, v{XR+c}")

        def reduce16(regs):
            for mode in ("quad_perm:[1,0,3,2]", "quad_perm:[2,3,0,1]", "row_half_mirror", "row_mirror"):
                for r in regs:
                    a(f"v_add_f32_dpp v{r}, v{r}, v{r} {mode} row_mask:0xf bank_mask:0xf")
                a("s_nop 1" if len(regs) == 1 else "s_nop 0")

        reduce16([124, 125])
        a(f"""
        v_mul_f32 v126, {f2u(-1.0/640):#x}, v124
        v_mul_f32 v127, {f2u(-1.0/640):#x}, v124
        v_mul_f32 v125, {f2u(-1.4426950408889634):#x}, v125
        v_mov_b32 v128, 0
        v_mov_b32 v129, 0
        v_mov_b32 v130, 0
        v_mov_b32 v131, 0
        v_exp_f32 v125, v125
        """)
        for c in range(20):
            a(f"v_pk_add_f32 {vr(XS+2*c,2)}, {vr(XS+2*c,2)}, v[126:127]")
        a("v_add_f32 v125, 1.0, v125\nv_rcp_f32 v125, v125")
        for c in range(20):
            t = 128 + 2 * (c & 1)
            a(f"v_pk_fma_f32 {vr(t,2)}, {vr(XS+2*c,2)}, {vr(XS+2*c,2)}, {vr(t,2)}")
        a("v_pk_add_f32 v[128:129], v[128:129], v[130:131]\nv_add_f32 v128, v128, v129\ns_nop 1")
        reduce16([128])
        a(f"v_mov_b32 v126, {f2u(1e-5):#x}\nv_fmac_f32 v126, {f2u(1.0/640):#x}, v128\nv_rsq_f32 v126, v126")
        a(f"""
        s_lshl_b32 s{S_T0}, s{S_WAVE}, 2
        v_add_u32 v2, s{S_T0}, v2
        v_mov_b32 v127, v126
        v_mul_u32_u24 v4, {LN_ST}, v2
        v_add_u32 v4, v4, v3
        v_lshlrev_b32 v2, 2, v2
        """)
        for c4 in range(5):
            for c in range(4 * c4, 4 * c4 + 4):
                a(f"v_pk_mul_f32 {vr(XS+2*c,2)}, {vr(XS+2*c,2)}, v[126:127]")
            for c in range(4 * c4, 4 * c4 + 4):
                a(f"v_cvt_pk_bf16_f32 v{XR+c}, v{XS+2*c}, v{XS+2*c+1}")
            a(f"ds_write_b128 v4, {vr(XR+4*c4,4)} offset:{LNBUF + c4*256}")
        a(f"ds_write_b32 v2, v125 offset:{LNG}")
        a(f"""
        v_and_b32 v12, 15, v1
        v_lshrrev_b32 v13, 4, v1
        v_lshrrev_b32 v15, 2, v12
        v_lshl_add_u32 v15, v13, 2, v15
        v_mul_u32_u24 v15, {LN_ST}, v15
        v_and_b32 v2, 3, v12
        v_lshl_add_u32 v15, v2, 3, v15
        s_mul_i32 s{S_T0}, s{S_WAVE}, 160
        v_add_u32 v15, s{S_T0}, v15
        v_lshlrev_b32 v14, 4, v1
        v_lshlrev_b32 v2, 2, v1
        s_mul_i32 s{S_T0}, s{S_WAVE}, {5*65536}
        s_lshl_b32 s{S_T0+1}, s{S_KST}, 10
        s_add_u32 s{S_T0}, s{S_T0}, s{S_T0+1}
        s_add_u32 s{S_T0}, s{S_T0}, {HT}
        s_waitcnt lgkmcnt(0)
        s_add_u32 s{S_TAG}, s{S_TAG}, {TAG_INC:#x}
        s_barrier
        """)
        self.stamp(12, 44)
        for i in range(5):
            a(f"ds_read_b64_tr_b16 {vr(44+4*i,2)}, v15 offset:{LNBUF + i*32}")
            a(f"ds_read_b64_tr_b16 {vr(46+4*i,2)}, v15 offset:{LNBUF + i*32+16*LN_ST}")
        a(f"ds_read_b32 v125, v2 offset:{LNG}")
        for i in range(5):
            a(f"s_waitcnt lgkmcnt({9-2*i})")
            a(f"buffer_store_dwordx4 {vr(44+4*i,4)}, v14, s[{R_WS}:{R_WS+3}], s{S_T0} offen sc1")
            if i < 4:
                a(f"s_add_u32 s{S_T0}, s{S_T0}, 65536")
        a(f"""
        s_cmp_lg_u32 s{S_WAVE}, 0
        s_cbranch_scc1 L_B_nog
        s_lshl_b32 s{S_T0}, s{S_KST}, 7
        s_add_u32 s{S_T0}, s{S_T0}, {G_OFF}
        s_waitcnt lgkmcnt(0)
        s_mov_b32 exec_hi, 0
        buffer_store_dword v125, v2, s[{R_WS}:{R_WS+3}], s{S_T0} offen sc1
        s_mov_b32 exec_hi, -1
        L_B_nog:
        s_waitcnt vmcnt(0) lgkmcnt(0)
        s_barrier
        s_cmp_lg_u32 s{S_WAVE}, 0
        s_cbranch_scc1 L_B_join
        s_mul_i32 s{S_T0}, s{S_KST}, {FS}
        s_add_u32 s{S_T0}, s{S_T0}, {F_LN}
        """)
        self.flag_store(S_T0, 12)
        self.stamp(1, 12)
        a("s_branch L_B_join")
        a("L_B_pfrole:")
        self.srd(R_M, P_WQKV, 640 * 3840)
        self.srd(R_W, P_W1, 2048 * 3072)
        if self.o.get("pfdelay"):
            common_setup()
            a("s_waitcnt vmcnt(0)")
        a(f"""
        s_sub_u32 s{S_T0}, s{S_J}, 16
        s_lshl_b32 s{S_T0}, s{S_T0}, 3
        s_add_u32 s{S_T0}, s{S_T0}, s{S_WAVE}
        s_lshl_b32 s{S_T0+1}, s{S_XCD}, 7
        s_add_u32 s{S_T0+1}, s{S_T0+1}, s{S_T0}
        v_lshrrev_b32 v6, 3, v1
        v_and_b32 v7, 7, v1
        v_min_u32 v7, 5, v7
        v_mul_u32_u24 v6, 3072, v6
        v_lshl_add_u32 v7, v7, 7, v6
        v_lshlrev_b32 v6, 7, v1
        s_mul_i32 s{S_T0}, s{S_T0}, {8*3072}
        s_mul_i32 s{S_T0+2}, s{S_XCD}, 768
        s_add_u32 s{S_T0}, s{S_T0}, s{S_T0+2}
        s_mul_i32 s{S_T0+1}, s{S_T0+1}, 2880
        s_add_u32 s{S_T0+1}, s{S_T0+1}, {256*3840}
        buffer_load_dword v253, v7, s[{R_W}:{R_W+3}], s{S_T0} offen
        s_mov_b64 exec, 0xffffff
        buffer_load_dword v253, v6, s[{R_M}:{R_M+3}], s{S_T0+1} offen
        s_mov_b64 exec, -1
        s_add_u32 s{S_T0}, s{S_T0}, {1024*3072}
        buffer_load_dword v253, v7, s[{R_W}:{R_W+3}], s{S_T0} offen
        """)
        if not self.o.get("pfdelay"):
            common_setup()
        self.stamp(15, 12)
        a(f"s_waitcnt lgkmcnt(0)\ns_add_u32 s{S_TAG}, s{S_TAG}, {TAG_INC:#x}")
        a(f"s_cmp_ge_u32 s{S_J}, 30\ns_cbranch_scc1 L_helper")
        N1 = self.o.get("n1", 8)
        NREG = self.o.get("nreg", 0)
        assert NREG == 0 or N1 == 8

        def w1_issue():
            t = self.perm_next(S_T0, S_PERM, 128 * 3072)
            t += f"s_mov_b32 m0, s{S_B}\ns_add_u32 s{S_T0}, s{S_T0}, s{S_A}\n"
            for i in range(4):
                t += f"buffer_load_dwordx4 v{VPF+i}, s[{R_W}:{R_W+3}], s{S_T0} offen offset:{i*1024} lds\n"
            t += f"s_add_u32 s{S_B}, s{S_B}, 16384\n"
            return t
        a(f"""
        L_B_join:
        s_cmp_lt_u32 s{S_WAVE}, 4
        s_cbranch_scc1 L_B_comp0
        s_sub_u32 s{S_T0}, s{S_WAVE}, 4
        s_lshl_b32 s{S_B}, s{S_T0}, 12
        s_mul_i32 s{S_A}, s{S_T0}, {32*3072}
        s_lshl_b32 s{S_T0}, s{S_FT}, 7
        s_add_u32 s{S_A}, s{S_A}, s{S_T0}
        L_B_pf:
        """ + w1_issue() + f"""
        s_cmp_lt_u32 s{S_B}, {N1*16384}
        s_cbranch_scc1 L_B_pf
        """)
        for k in range(NREG):
            if k == 4:
                a("s_waitcnt vmcnt(40)")
            a(self.perm_next(S_T0, S_PERM, 128 * 3072) + f"s_add_u32 s{S_T0}, s{S_T0}, s{S_A}")
            for i in range(4):
                a(f"buffer_load_dwordx4 {vr(64+16*k+4*i,4)}, v{VPF+i}, s[{R_W}:{R_W+3}], s{S_T0} offen offset:{i*1024}")
        a(f"s_branch L_B_aux\nL_B_comp0:\ns_cmp_lg_u32 s{S_WAVE}, 0\ns_cbranch_scc1 L_B_l3")
        a(f"v_mul_u32_u24 v12, {FS}, v1\nv_add_u32 v12, {F_LN}, v12")
        self.poll([12], 14)
        self.stamp(2, 12)
        a("L_B_l3:")
        PF, WF, ACC, VT, VL = 64, 128, 160, 8, 12
        a(f"""
        s_lshl_b32 s{S_T0}, s{S_DT}, 3
        s_lshl_b32 s{S_T0+1}, s{S_WAVE}, 1
        s_add_u32 s{S_D}, s{S_T0}, s{S_T0+1}
        s_lshl_b32 s{S_T0}, s{S_D}, 16
        s_add_u32 s{S_T0}, s{S_T0}, {HT}
        """)
        self.srd(R_P, P_WS, 65536, off_s=S_T0)
        a(f"s_add_u32 s{S_T0}, s{S_T0}, 65536")
        self.srd(R_M, P_WS, 65536, off_s=S_T0)
        a(f"v_lshlrev_b32 v{VL}, 4, v1\ns_mov_b32 s{S_B}, 0")
        a(self.perm_next(S_C, S_PERM, 4096))
        self.tr_addr(VT)
        for r in range(32):
            a(f"v_mov_b32 v{ACC+r}, 0")
        a("s_barrier")
        RP = (R_P, R_M)

        def pload(u, ks):
            if self.o.get("x_noload"):
                return "s_nop 0"
            sc = "" if self.o.get("x_nosc1") else "sc1"
            so = "0" if self.o.get("x_same") else f"s{S_C}"
            return "\n".join(f"buffer_load_dwordx4 {vr(PF+32*(u%2)+8*ks+4*d,4)}, v{VL}, s[{RP[d]}:{RP[d]+3}], {so} offen offset:{ks*1024} {sc}" for d in range(2))

        for t in range(2):
            for ks in range(4):
                a(pload(t, ks))
            a(self.perm_next(S_C, S_PERM, 4096))
            if t == 0:
                first_bar_here = len(a.L)

        def mk(u, bar, virtual=False, head=None, tail=None):
            uses = []
            for ks in range(4):
                for b in range(4):
                    g = ks * 4 + b
                    wb = WF + 4 * (g % 8)
                    off = u * 16384 + ks * 4096
                    reads = [(f"w{g}a", f"ds_read_b64_tr_b16 {vr(wb,2)}, v{VT+b} offset:{off}"),
                             (f"w{g}b", f"ds_read_b64_tr_b16 {vr(wb+2,2)}, v{VT+b} offset:{off+2048}")]
                    mf = []
                    for dd in range(2):
                        acc = vr(ACC + 16 * dd + 4 * b, 4)
                        mf.append(f"v_mfma_f32_16x16x32_bf16 {acc}, {vr(wb,4)}, {vr(PF+32*(u%2)+8*ks+4*dd,4)}, {acc}")
                    d = dict(reads=reads, need=[f"w{g}b"], mf=mf)
                    if b == 0:
                        d["vm"] = 14
                    if b == 3:
                        d["after"] = pload(u, ks)
                        if ks == 3:
                            d["after"] += "\n" + self.perm_next(S_C, S_PERM, 4096)
                            if u >= 1:
                                d["after"] += f"s_cmp_ge_u32 s{S_B}, 3\ns_cselect_b32 s{S_C}, 0x10000, s{S_C}"
                    uses.append(d)
            return dict(uses=uses, bar=bar, virtual=virtual, head=head, tail=tail)

        xo = "s_barrier\n" + "\n".join(f"v_xor_b32 v{VT+b}, 0x10000, v{VT+b}" for b in range(4))
        tail = f"s_add_u32 s{S_B}, s{S_B}, 1\ns_cmp_lt_u32 s{S_B}, 4\ns_cbranch_scc1 L_B_loop"
        st = [mk(0, "", head="L_B_loop:"), mk(1, "s_barrier"), mk(2, "s_barrier"), mk(3, "s_barrier", tail=tail), mk(0, xo, virtual=True)]
        a.L.insert(first_bar_here, "    s_barrier")
        nd = self.o.get("nodrain")
        LB = self.o.get("LB", 7)
        self.pipeline(st, LB, (16 - LB) if nd else 13, drain=not nd, wait_every=self.o.get('we', 2))
        if nd:
            a("s_waitcnt lgkmcnt(0)\ns_barrier")
        self.stamp(3, 44)
        c = 0.7978845608028654
        k0 = -2.0 * c * 1.4426950408889634
        k1 = k0 * 0.044715
        a(f"""
        s_waitcnt lgkmcnt(0)
        s_mov_b32 s{S_K0}, {f2u(k1):#x}
        s_mov_b32 s{S_K0+1}, {f2u(k1):#x}
        v_mov_b32 v44, {f2u(k0):#x}
        v_mov_b32 v45, {f2u(k0):#x}
        v_mov_b32 v46, 1.0
        v_mov_b32 v47, 1.0
        s_mul_i32 s{S_T0}, s{S_D}, {UW_ST}
        s_lshl_b32 s{S_T0+1}, s{S_FT}, 11
        s_add_u32 s{S_T0}, s{S_T0}, s{S_T0+1}
        s_add_u32 s{S_T0}, s{S_T0}, {UW}
        """)
        BF = 16
        for b in range(4):
            a(f"v_lshlrev_b32 v{BF+4*b}, 16, v{B1R+2*b}\nv_and_b32 v{BF+4*b+1}, 0xffff0000, v{B1R+2*b}")
            a(f"v_lshlrev_b32 v{BF+4*b+2}, 16, v{B1R+2*b+1}\nv_and_b32 v{BF+4*b+3}, 0xffff0000, v{B1R+2*b+1}")
        for dd in range(2):
            for p in range(2):
                r = ACC + 16 * dd + 8 * p
                T = 48
                for q in range(4):
                    a(f"v_pk_add_f32 {vr(r+2*q,2)}, {vr(r+2*q,2)}, {vr(BF+8*p+2*q,2)}")
                for q in range(4):
                    a(f"v_pk_mul_f32 {vr(T+2*q,2)}, {vr(r+2*q,2)}, {vr(r+2*q,2)}")
                for q in range(4):
                    a(f"v_pk_fma_f32 {vr(T+2*q,2)}, {vr(T+2*q,2)}, s[{S_K0}:{S_K0+1}], v[44:45]")
                for q in range(4):
                    a(f"v_pk_mul_f32 {vr(T+2*q,2)}, {vr(T+2*q,2)}, {vr(r+2*q,2)}")
                for q in range(8):
                    a(f"v_exp_f32 v{T+q}, v{T+q}")
                for q in range(4):
                    a(f"v_pk_add_f32 {vr(T+2*q,2)}, {vr(T+2*q,2)}, v[46:47]")
                for q in range(8):
                    a(f"v_rcp_f32 v{T+q}, v{T+q}")
                for q in range(4):
                    a(f"v_pk_mul_f32 {vr(r+2*q,2)}, {vr(r+2*q,2)}, {vr(T+2*q,2)}")
                o = 56 + 4 * (p & 1)
                for q in range(4):
                    a(f"v_cvt_pk_bf16_f32 v{o+q}, v{r+2*q}, v{r+2*q+1}")
                a(f"buffer_store_dwordx4 {vr(o,4)}, v{VL}, s[{R_WS}:{R_WS+3}], s{S_T0} offen offset:{p*1024} sc1")
            if dd == 0:
                a(f"s_add_u32 s{S_T0}, s{S_T0}, {UW_ST}")
        self.stamp(10, 44)
        a("s_waitcnt vmcnt(0)\ns_barrier\ns_branch L_F_comp")

        a("L_B_aux:\ns_barrier")
        order = list(range(N1 + NREG))
        cnt = {k: 4 for k in range(16)}
        cnt["t"] = 1
        nxt = N1
        lag = self.o.get("lag", 0)
        if NREG:
            a(f"""
            s_sub_u32 s{S_T0}, s{S_WAVE}, 4
            s_lshl_b32 s{S_T0}, s{S_T0}, 12
            v_lshlrev_b32 v12, 4, v1
            v_add_u32 v12, s{S_T0}, v12
            v_add_u32 v13, 0x10000, v12
            s_add_u32 s{S_B}, s{S_T0}, {(NREG % 8) * 16384}
            """)
        for tb in range(17):
            if tb < 16:
                n = sum(cnt[x] for x in order[order.index(tb) + 1:])
                a(f"s_waitcnt vmcnt({min(n, 63)}) lgkmcnt(0)")
            a("s_barrier")
            if tb < 16:
                self.stamp(16 + tb, 44)
            k = 0
            while nxt <= min(15, tb + (6 if self.o.get("nodrain") and nxt >= 8 else 7) - (lag if nxt >= 8 + NREG else 0)) and k < 2:
                if 8 <= nxt < 8 + NREG:
                    n = sum(cnt[x] for x in order[order.index(nxt) + 1:])
                    a(f"s_waitcnt vmcnt({min(n, 63)})")
                    sl = nxt % 8
                    for i in range(4):
                        a(f"ds_write_b128 v{13 if sl >= 4 else 12}, {vr(64+16*(nxt-8)+4*i,4)} offset:{(sl&3)*16384+i*1024}")
                else:
                    if nxt == 8:
                        a(f"s_and_b32 s{S_B}, s{S_B}, 0x1ffff")
                    a(w1_issue())
                    order.append(nxt)
                nxt += 1
                k += 1
        assert nxt == 16
        if self.o.get("nodrain"):
            a("s_barrier")
        skip = self.if_wave56()
        nB1 = self.o.get("nB1", 0)
        if nB1:
            self.w2_setup()
            self.w2_prefill(nB1)
            a("s_barrier\ns_nop 7\ns_nop 7")
            self.w2_prefill(8 - nB1)
        else:
            a("s_barrier")
            self.w2_setup()
            self.w2_prefill(8)
        a("s_branch L_F_loader")
        a(f"{skip}:\ns_barrier")
        a(f"s_cmp_lg_u32 s{S_WAVE}, 7\ns_cbranch_scc1 L_F_u4")
        a(f"s_mul_i32 s{S_T0}, s{S_DT}, 24\ns_add_u32 s{S_T0}, s{S_T0}, s{S_FT}\ns_mul_i32 s{S_T0}, s{S_T0}, {FS}\ns_add_u32 s{S_T0}, s{S_T0}, {F_U}")
        self.flag_store(S_T0, 12)
        self.stamp(4, 12)
        a("s_branch L_F_poller")

    def w2_l2_prefetch(self, VT):
        a = self.a
        self.srd(R_W2, P_W2, 1536 * 4096)
        a(f"""
        v_lshrrev_b32 v{VT}, 3, v1
        v_and_b32 v{VT+1}, 7, v1
        v_lshlrev_b32 v{VT+1}, 7, v{VT+1}
        v_lshl_add_u32 v{VT}, v{VT}, 12, v{VT+1}
        s_mul_i32 s{S_T0}, s{S_J}, 48
        s_and_b32 s{S_T0+1}, s{S_WAVE}, 3
        s_mul_i32 s{S_T0+1}, s{S_T0+1}, 12
        s_add_u32 s{S_T0}, s{S_T0}, s{S_T0+1}
        s_lshl_b32 s{S_T0}, s{S_T0}, 12
        s_lshr_b32 s{S_T0+1}, s{S_XCD}, 1
        s_lshl_b32 s{S_T0+1}, s{S_T0+1}, 10
        s_add_u32 s{S_T0}, s{S_T0}, s{S_T0+1}
        buffer_load_dword v{VT+2}, v{VT}, s[{R_W2}:{R_W2+3}], s{S_T0} offen
        s_add_u32 s{S_T0}, s{S_T0}, {8*4096}
        s_mov_b32 exec_hi, 0
        buffer_load_dword v{VT+3}, v{VT}, s[{R_W2}:{R_W2+3}], s{S_T0} offen
        s_mov_b64 exec, -1
        """)

    def tr_addr(self, VT):
        a = self.a
        a(f"""
        v_and_b32 v{VT+1}, 15, v1
        v_lshrrev_b32 v{VT+2}, 4, v1
        v_lshrrev_b32 v{VT+3}, 2, v{VT+1}
        v_lshl_add_u32 v{VT+3}, v{VT+2}, 2, v{VT+3}
        v_bfe_u32 v{VT+2}, v{VT+3}, 1, 2
        v_lshlrev_b32 v{VT+3}, 7, v{VT+3}
        v_lshl_add_u32 v{VT+3}, v{VT+2}, 5, v{VT+3}
        v_and_b32 v{VT+1}, 3, v{VT+1}
        v_lshl_add_u32 v{VT}, v{VT+1}, 3, v{VT+3}
        v_xor_b32 v{VT+1}, 32, v{VT}
        v_xor_b32 v{VT+2}, 64, v{VT}
        v_xor_b32 v{VT+3}, 96, v{VT}
        """)

    def helper(self):
        a = self.a
        a("L_helper:")
        a(f"""
        s_lshl_b32 s{S_D}, s{S_XCD}, 1
        s_add_u32 s{S_D}, s{S_D}, s{S_J}
        s_sub_u32 s{S_D}, s{S_D}, 30
        """)
        self.srd(R_W, P_WO, 640 * 1280)
        for p in range(5):
            a(f"""
            v_add_u32 v12, {p*64}, v1
            v_mul_u32_u24 v13, 205, v12
            v_lshrrev_b32 v13, 11, v13
            v_mul_u32_u24 v14, 10, v13
            v_sub_u32 v14, v12, v14
            v_lshlrev_b32 v14, 4, v14
            v_mul_u32_u24 v13, 1280, v13
            v_add_u32 v{16+p}, v13, v14
            """)
            if p in (1, 2, 3):
                a(f"v_subrev_u32 v{16+p}, {p*1024}, v{16+p}")
        a(f"""
        s_mov_b32 s{S_C}, s{S_WAVE}
        L_H_ld:
        s_mul_i32 s{S_A}, s{S_C}, {32*1280}
        s_mul_i32 s{S_T0}, s{S_D}, 160
        s_add_u32 s{S_A}, s{S_A}, s{S_T0}
        s_mul_i32 s{S_B}, s{S_C}, 5120
        s_mov_b32 m0, s{S_B}
        s_nop 0
        """)
        for p in range(4):
            a(f"buffer_load_dwordx4 v{16+p}, s[{R_W}:{R_W+3}], s{S_A} offen offset:{p*1024} lds")
        a(f"s_add_u32 m0, s{S_B}, 4096\ns_nop 0\nbuffer_load_dwordx4 v20, s[{R_W}:{R_W+3}], s{S_A} offen lds")
        a(f"""
        s_add_u32 s{S_C}, s{S_C}, 8
        s_cmp_lt_u32 s{S_C}, 20
        s_cbranch_scc1 L_H_ld
        v_and_b32 v12, 15, v1
        v_lshrrev_b32 v13, 4, v1
        v_lshrrev_b32 v14, 2, v12
        v_lshl_add_u32 v14, v13, 2, v14
        v_mul_u32_u24 v14, 160, v14
        v_and_b32 v12, 3, v12
        v_lshl_add_u32 v14, v12, 3, v14
        v_lshlrev_b32 v15, 4, v1
        s_waitcnt vmcnt(0)
        s_barrier
        s_mov_b32 s{S_C}, s{S_WAVE}
        L_H_tr:
        s_lshr_b32 s{S_T0}, s{S_C}, 1
        s_mul_i32 s{S_T0}, s{S_T0}, 5
        s_and_b32 s{S_T0+1}, s{S_C}, 1
        s_lshl_b32 s{S_T0+1}, s{S_T0+1}, 1
        s_add_u32 s{S_T0}, s{S_T0}, s{S_T0+1}
        s_add_u32 s{S_T0+1}, s{S_T0}, 1
        s_mul_i32 s{S_T0+2}, s{S_C}, 10
        s_sub_u32 s{S_T0+2}, s{S_T0+2}, 156
        s_add_u32 s{S_T0+3}, s{S_T0+2}, 5
        s_cmp_lt_u32 s{S_C}, 16
        s_cselect_b32 s{S_T0}, s{S_T0}, s{S_T0+2}
        s_cselect_b32 s{S_T0+1}, s{S_T0+1}, s{S_T0+3}
        s_mul_i32 s{S_T0}, s{S_T0}, 2560
        s_mul_i32 s{S_T0+1}, s{S_T0+1}, 2560
        v_add_u32 v12, s{S_T0}, v14
        v_add_u32 v13, s{S_T0+1}, v14
        """)
        for b in range(5):
            a(f"ds_read_b64_tr_b16 {vr(24+4*b,2)}, v12 offset:{b*32}\nds_read_b64_tr_b16 {vr(26+4*b,2)}, v13 offset:{b*32}")
        a(f"""
        s_mul_i32 s{S_T0}, s{S_D}, {5*UW_ST}
        s_lshl_b32 s{S_T0+1}, s{S_C}, 10
        s_add_u32 s{S_T0}, s{S_T0}, s{S_T0+1}
        s_add_u32 s{S_T0}, s{S_T0}, {UW + 49152}
        """)
        for b in range(5):
            a(f"s_waitcnt lgkmcnt({8-2*b})")
            a(f"buffer_store_dwordx4 {vr(24+4*b,4)}, v15, s[{R_WS}:{R_WS+3}], s{S_T0} offen sc1")
            if b < 4:
                a(f"s_add_u32 s{S_T0}, s{S_T0}, {UW_ST}")
        a(f"""
        s_add_u32 s{S_C}, s{S_C}, 8
        s_cmp_lt_u32 s{S_C}, 20
        s_cbranch_scc1 L_H_tr
        s_waitcnt vmcnt(0)
        s_barrier
        """)
        skip = self.if_wave56()
        self.w2_setup()
        self.w2_prefill(8)
        a(f"s_branch L_F_loader\n{skip}:")
        a(f"s_cmp_lt_u32 s{S_WAVE}, 4\ns_cbranch_scc1 L_F_comp\ns_cmp_lg_u32 s{S_WAVE}, 7\ns_cbranch_scc1 L_F_u4")
        a(f"s_mul_i32 s{S_T0}, s{S_D}, {FS}\ns_add_u32 s{S_T0}, s{S_T0}, {F_WOT}")
        self.flag_store(S_T0, 12)
        self.stamp(14, 12)
        a("s_branch L_F_poller")

    F_WOT_REG = 172

    def uw_srd(self):
        a = self.a
        a(f"""
        s_mul_i32 s{S_T0}, s{S_DTILE}, 5
        s_add_u32 s{S_D}, s{S_T0}, s{S_WAVE}
        s_mul_i32 s{S_T0}, s{S_D}, {UW_ST}
        s_add_u32 s{S_T0}, s{S_T0}, {UW}
        """)
        self.srd(R_P, P_WS, UW_ST, off_s=S_T0)

    def wot_preload(self, VL):
        a = self.a
        for k in range(20):
            if k % 4 == 0:
                a(f"s_mov_b32 s{S_C}, {49152 + k*1024}")
            a(f"buffer_load_dwordx4 {vr(self.F_WOT_REG+4*k,4)}, v{VL}, s[{R_P}:{R_P+3}], s{S_C} offen offset:{(k%4)*1024} sc1")

    def f0_barrier(self):
        lab = self.a.label("f0")
        self.a(f"s_cmp_eq_u32 s{S_FROMA}, 1\ns_cbranch_scc1 {lab}\ns_barrier\n{lab}:")

    def final(self):
        a = self.a
        a("L_F_comp:")
        if self.stop == "phase1":
            a("s_branch L_end")
        PF, WF, ACC, ACC4, U4, WOT = 64, 112, 144, 160, 164, 172
        NPF = 3
        pre = True
        VT, VL, VU4, VT2, GV, BV, VGH, VG8 = 8, 12, 13, 16, 20, 24, 28, 32
        self.uw_srd()
        self.srd(R_M, P_B2, 4096)
        self.srd(R_OUT, P_OUT, 2048 * 1280)
        self.tr_addr(4)
        a(f"""
        v_lshlrev_b32 v{VL}, 4, v1
        v_add_u32 v{VU4}, 0x20000, v{VL}
        v_lshlrev_b32 v5, 3, v1
        v_and_b32 v2, 15, v1
        v_lshlrev_b32 v3, 1, v2
        v_lshlrev_b32 v2, 2, v2
        """)
        SB = S_MSK
        for b in range(4):
            a(f"""
            s_add_u32 s{SB+b}, s{S_WAVE}, {b}
            s_and_b32 s{SB+b}, s{SB+b}, 3
            s_lshl_b32 s{S_T0}, s{SB+b}, 5
            v_xor_b32 v{VT+b}, s{S_T0}, v4
            s_lshl_b32 s{S_T0+1}, s{S_ST}, 7
            s_add_u32 s{S_T0}, s{S_T0}, s{S_T0+1}
            buffer_load_ushort v{BV+b}, v3, s[{R_M}:{R_M+3}], s{S_T0} offen
            v_add_u32 v{VT2+b}, 0x10000, v{VT+b}
            s_lshl_b32 s{S_T0}, s{SB+b}, 12
            v_add_u32 v{VG8+b}, s{S_T0}, v5
            s_add_u32 s{S_T0}, s{S_T0}, 0x10000
            v_add_u32 v{VGH+b}, s{S_T0}, v{VL}
            """)
        for r in range(16):
            a(f"v_mov_b32 v{ACC+r}, 0")
        for r in range(4):
            a(f"v_mov_b32 v{ACC4+r}, 0")
        a(f"s_lshl_b32 s{S_A}, s{S_ST}, 8\ns_add_u32 s{S_A}, s{S_A}, {G_OFF}")
        self.f_perm()
        nstream = 12 if pre else 17

        def next_sc(step):
            if step < 12:
                return self.perm_next(S_C, S_PERM, 4096)
            return f"s_mov_b32 s{S_C}, {step*4096}\n"
        a(f"s_cmp_eq_u32 s{S_FROMA}, 1\ns_cbranch_scc1 L_F_nowot\ns_barrier")
        self.wot_preload(VL)
        a("L_F_nowot:")
        a(next_sc(0))
        a("s_barrier")
        for t in range(NPF):
            for ks in range(4):
                a(f"buffer_load_dwordx4 {vr(PF+16*t+4*ks,4)}, v{VL}, s[{R_P}:{R_P+3}], s{S_C} offen offset:{ks*1024} sc1")
            a(next_sc(t + 1))
            if t == 0:
                a("s_barrier")
            if t == NPF - 1:
                for b in range(4):
                    a(f"s_lshl_b32 s{S_T0}, s{SB+b}, 6\ns_add_u32 s{S_T0}, s{S_T0}, s{S_A}")
                    a(f"buffer_load_dword v{GV+b}, v2, s[{R_WS}:{R_WS+3}], s{S_T0} offen sc1")

        mid = "s_nop 7\n"
        for b in range(4):
            mid += f"v_lshlrev_b32 v{BV+b}, 16, v{BV+b}\nv_sub_f32 v{GV+b}, 1.0, v{GV+b}\n"
        blocks = [(ACC + 4 * b, b) for b in range(4)] + [(ACC4, 0)]
        for r0, b in blocks:
            for k in range(4):
                mid += f"v_add_f32 v{r0+k}, v{BV+b}, v{r0+k}\n"
        for r0, b in blocks:
            for k in range(4):
                mid += f"v_mul_f32 v{r0+k}, v{GV+b}, v{r0+k}\n"
        mid += "s_nop 1\n"

        stages = []
        for t in range(17):
            slot = t % 8
            hi = slot >= 4
            uses = []
            for ks in range(4):
                for b in range(4):
                    g = ks * 4 + b
                    wb = WF + 4 * (g % 8)
                    reads = []
                    u4 = U4 + 4 * (ks & 1)
                    if b == 0:
                        reads.append((f"u{ks}", f"ds_read_b128 {vr(u4,4)}, v{VU4} offset:{slot*4096 + ks*1024}"))
                    if t < 12:
                        off = (slot & 3) * 16384 + ks * 4096
                        va = (VT2 if hi else VT) + b
                        reads += [(f"w{g}a", f"ds_read_b64_tr_b16 {vr(wb,2)}, v{va} offset:{off}"),
                                  (f"w{g}b", f"ds_read_b64_tr_b16 {vr(wb+2,2)}, v{va} offset:{off+2048}")]
                    elif t < 16:
                        assert hi
                        off = (slot & 3) * 16384 + ks * 1024
                        reads += [(f"w{g}b", f"ds_read_b128 {vr(wb,4)}, v{VGH+b} offset:{off}")]
                    else:
                        off = (slot & 3) * 16384 + ks * 1024
                        assert not hi
                        reads += [(f"w{g}a", f"ds_read_b64 {vr(wb,2)}, v{VG8+b} offset:{off}"),
                                  (f"w{g}b", f"ds_read_b64 {vr(wb+2,2)}, v{VG8+b} offset:{off+512}")]
                    acc = vr(ACC + 4 * b, 4)
                    ring = t < nstream
                    pf = vr(PF + 16 * (t % NPF) + 4 * ks, 4) if ring else vr(WOT + 16 * (t - 12) + 4 * ks, 4)
                    mf = [f"v_mfma_f32_16x16x32_bf16 {acc}, {pf}, {vr(wb,4)}, {acc}"]
                    if b == 0:
                        mf.append(f"v_mfma_f32_16x16x32_bf16 {vr(ACC4,4)}, {vr(u4,4)}, {vr(wb,4)}, {vr(ACC4,4)}")
                    d = dict(reads=reads, need=[f"w{g}b"], mf=mf)
                    if b == 0 and ring:
                        k = t * 4 + ks
                        n = min(k + 4 * NPF - 1, 4 * nstream - 1) - k
                        if t < NPF:
                            n += 4
                        d["vm"] = n
                    if b == 3 and t + NPF < nstream:
                        d["after"] = f"buffer_load_dwordx4 {pf}, v{VL}, s[{R_P}:{R_P+3}], s{S_C} offen offset:{ks*1024} sc1"
                        if ks == 3 and t + NPF + 1 < nstream:
                            d["after"] += "\n" + next_sc(t + NPF + 1)
                    if t == 12 and g == 0:
                        d["before"] = mid
                    uses.append(d)
            stages.append(dict(uses=uses, bar="s_barrier" if t else ""))
        nd = self.o.get("nodrain")
        LF = self.o.get("LF", 6)
        self.pipeline(stages, LF, (16 - LF) if nd else 13, drain=not nd, wait_every=self.o.get('we', 2))
        self.stamp(8, 2)
        a(f"""
        v_and_b32 v2, 15, v1
        v_mul_u32_u24 v2, 1280, v2
        v_lshrrev_b32 v3, 4, v1
        v_lshl_add_u32 v2, v3, 3, v2
        s_mul_i32 s{S_A}, s{S_ST}, {64*1280}
        s_lshl_b32 s{S_T0+1}, s{S_D}, 5
        s_add_u32 s{S_B}, s{S_A}, s{S_T0+1}
        s_mul_i32 s{S_T0+1}, s{S_DTILE}, 160
        s_add_u32 s{S_A}, s{S_A}, s{S_T0+1}
        s_add_u32 s{S_A}, s{S_A}, 128
        """)
        for r, b in blocks:
            a(f"s_mul_i32 s{S_T0}, s{SB+b}, {16*1280}\ns_add_u32 s{S_T0}, s{S_T0}, s{S_A if r == ACC4 else S_B}")
            a(f"v_cvt_pk_bf16_f32 v{r}, v{r}, v{r+1}\nv_cvt_pk_bf16_f32 v{r+1}, v{r+2}, v{r+3}")
            a(f"buffer_store_dwordx2 {vr(r,2)}, v2, s[{R_OUT}:{R_OUT+3}], s{S_T0} offen {['', 'sc1', 'nt', 'sc0 sc1'][self.o.get('osc', 0)]}")
        if self.stamps or self.o.get("dbg"):
            a("s_waitcnt vmcnt(0)")
            self.stamp(9, 2)
        if self.o.get("calib"):
            a(f"""
            L_cal:
            s_memrealtime s[96:97]
            s_waitcnt lgkmcnt(0)
            s_sub_u32 s96, s96, s98
            s_cmp_lt_u32 s96, {self.o.get("calib")*100}
            s_cbranch_scc1 L_cal
            """)
        a(f"s_or_b32 s{S_T0}, s2, s{S_WAVE}\ns_cmp_lg_u32 s{S_T0}, 0\ns_cbranch_scc1 L_end\ns_mov_b32 s{S_T0}, 0")
        self.flag_store(S_T0, 4)
        a("s_branch L_end")

        a("L_F_u4:")
        if self.stop == "phase1":
            a("s_branch L_end")
        a(f"""
        v_lshlrev_b32 v{VL}, 4, v1
        s_mul_i32 s{S_C}, s{S_DTILE}, {5*UW_ST}
        s_add_u32 s{S_C}, s{S_C}, {UW + 4*UW_ST}
        """)
        self.f_perm()
        self.f0_barrier()
        a("s_barrier")

        def u4_issue(iv):
            if iv < 12:
                a(self.perm_next(S_T0, S_PERM, 4096) + f"s_mov_b32 m0, {0x20000 + (iv % 8)*4096:#x}\ns_add_u32 s{S_T0}, s{S_T0}, s{S_C}")
            else:
                a(f"s_mov_b32 m0, {0x20000 + (iv % 8)*4096:#x}\ns_add_u32 s{S_T0}, s{S_C}, {iv*4096}")
            for i in range(4):
                a(f"buffer_load_dwordx4 v{VL}, s[{R_WS}:{R_WS+3}], s{S_T0} offen offset:{i*1024} sc1 lds")
        order = []
        for iv in range(8):
            u4_issue(iv)
            order.append(iv)
            if iv == 2:
                a("s_waitcnt vmcnt(8)\ns_barrier")
        for tb in range(1, 17):
            a(f"s_waitcnt vmcnt({4*len(order[order.index(tb)+1:])})\ns_barrier")
            iv = tb + (6 if self.o.get("nodrain") else 7)
            if 8 <= iv <= 16:
                u4_issue(iv)
                order.append(iv)
        a("s_branch L_end")

        a("L_F_loader:")
        if self.stop == "phase1":
            a("s_branch L_end")
        a(f"v_lshlrev_b32 v{VL}, 4, v1")
        self.f0_barrier()
        a("s_barrier")
        a(f"""
        s_sub_u32 s{S_T0}, s{S_WAVE}, 5
        s_lshl_b32 s{S_T0}, s{S_T0}, 1
        s_lshl_b32 s{S_T0+1}, s{S_ST}, 2
        s_add_u32 s{S_T0+1}, s{S_T0+1}, s{S_T0}
        s_mul_i32 s{S_C}, s{S_T0+1}, {GO_ST}
        s_add_u32 s{S_C}, s{S_C}, {GO}
        s_lshl_b32 s{S_D}, s{S_T0}, 12
        """)
        order = list(range(8))
        for tb in range(17):
            after = [x for x in order[order.index(tb) + 1:]]
            n = 8 * len(after)
            a(f"s_waitcnt vmcnt({min(n,63)})\ns_barrier")
            t = tb - 1
            tw = t - (1 if self.o.get("nodrain") else 0)
            if 0 <= tw <= 3:
                self.w2_issue()
                order.append(tw + 8)
            if 8 <= t <= 12:
                iv = t + 4
                g = iv - 12
                for s2 in range(2):
                    a(f"s_add_u32 m0, s{S_D}, {(iv % 8)*16384 + s2*4096}\ns_add_u32 s{S_T0}, s{S_C}, {s2*GO_ST + g*4096}")
                    for i in range(4):
                        a(f"buffer_load_dwordx4 v{VL}, s[{R_WS}:{R_WS+3}], s{S_T0} offen offset:{i*1024} sc1 lds")
                order.append(iv)
        a("s_branch L_end")
        a("L_F_poller:")
        if self.stop == "phase1":
            a("s_branch L_end")
        a(f"s_cmp_eq_u32 s{S_FROMA}, 1\ns_cbranch_scc1 L_F_pnowot")
        a(f"s_mul_i32 s{S_T0}, s{S_DTILE}, {FS}\ns_add_u32 s{S_T0}, s{S_T0}, {F_WOT}\nv_mov_b32 v2, s{S_T0}")
        self.poll([2], 4)
        a("s_barrier\nL_F_pnowot:")
        a(f"""
        s_mul_i32 s{S_T0}, s{S_DTILE}, 5
        s_lshr_b32 s{S_T0+1}, s{S_T0}, 3
        s_add_u32 s{S_T0}, s{S_T0}, 4
        s_lshr_b32 s{S_T0}, s{S_T0}, 3
        s_mul_i32 s{S_T0}, s{S_T0}, 24
        s_mul_i32 s{S_T0+1}, s{S_T0+1}, 24
        v_and_b32 v2, 31, v1
        v_min_u32 v2, 23, v2
        v_add_u32 v3, s{S_T0}, v2
        v_add_u32 v2, s{S_T0+1}, v2
        v_cmp_gt_u32 vcc, 32, v1
        s_mul_i32 s{S_T0}, s{S_DTILE}, {FS}
        s_add_u32 s{S_T0}, s{S_T0}, {F_WOT}
        v_cndmask_b32 v2, v2, v3, vcc
        v_mul_u32_u24 v2, {FS}, v2
        v_add_u32 v2, {F_U}, v2
        v_mov_b32 v3, s{S_T0}
        v_cmp_eq_u32 vcc, 63, v1
        s_nop 1
        v_cndmask_b32 v2, v2, v3, vcc
        """)
        self.poll([2], 4)
        self.stamp(6, 4)
        a("s_barrier")
        a(f"""
        v_and_b32 v2, 7, v1
        s_lshr_b32 s{S_T0}, s{S_ST}, 1
        s_lshl_b32 s{S_T0}, s{S_T0}, 3
        v_add_u32 v2, s{S_T0}, v2
        v_mul_u32_u24 v2, {FS}, v2
        v_add_u32 v2, {F_GO}, v2
        """)
        gp = self.o.get("gopoll", 9)
        for tb in range(gp):
            a("s_barrier")
            if tb == 1:
                a(f"s_cmp_eq_u32 s{S_FROMA}, 1\ns_cbranch_scc0 L_F_nogo")
                a(f"s_lshl_b32 s{S_T0}, s{S_MT}, 3\ns_add_u32 s{S_T0}, s{S_T0}, s{S_HG}\ns_mul_i32 s{S_T0}, s{S_T0}, {FS}\ns_add_u32 s{S_T0}, s{S_T0}, {F_GO}")
                self.flag_store(S_T0, 6)
                a("L_F_nogo:")
            self.stamp(32 + tb, 4)
        self.poll([2], 4)
        self.stamp(7, 4)
        for tb in range(gp, 17):
            a("s_barrier")
            self.stamp(32 + tb, 4)
        a("L_end:")
        if "probe" in self.o:
            a("""
            s_cmp_eq_u32 s94, 0
            s_cbranch_scc1 L_exit
            L_prb:
            s_memrealtime s[96:97]
            s_waitcnt lgkmcnt(0)
            s_sub_u32 s96, s96, s98
            s_cmp_lt_u32 s96, 4000
            s_cbranch_scc1 L_prb
            """)
        if self.stamps:
            a(f"""
            s_lshl_b32 s{S_T0}, s2, 3
            s_add_u32 s{S_T0}, s{S_T0}, s{S_WAVE}
            s_lshl_b32 s{S_T0}, s{S_T0}, 9
            s_add_u32 s{S_T0}, s{S_T0}, {STAMP}
            v_lshlrev_b32 v2, 3, v1
            buffer_store_dwordx2 v[254:255], v2, s[{R_WS}:{R_WS+3}], s{S_T0} offen
            """)
        a("L_exit:\ns_endpgm")

    def build(self, header):
        a = self.a
        self.prologue()
        self.role_a()
        self.role_b()
        self.helper()
        self.final()
        body = a.text()
        out = header
        out += f"; @launch grid=(256,1,1) block=(512,1,1) lds={LDS_BYTES}\n"
        out += f'.amdgcn_target "amdgcn-amd-amdhsa--gfx950"\n.text\n.globl {KNAME}\n.p2align 8\n.type {KNAME},@function\n{KNAME}:\n'
        out += body
        out += f""".section .rodata,"a"
.p2align 6
.amdhsa_kernel {KNAME}
  .amdhsa_next_free_vgpr 256
  .amdhsa_next_free_sgpr 102
  .amdhsa_accum_offset 256
  .amdhsa_group_segment_fixed_size 0
  .amdhsa_kernarg_size 96
  .amdhsa_user_sgpr_count 2
  .amdhsa_user_sgpr_kernarg_segment_ptr 1
  .amdhsa_system_sgpr_workgroup_id_x 1
  .amdhsa_float_denorm_mode_32 3
.end_amdhsa_kernel
"""
        return out


def header():
    ref = open("gated_mix__linear_attn_block__mixer_token_mlp__prompt.s.ref").read().split("\n")
    h = []
    for l in ref:
        if l.startswith("; Override"):
            break
        h.append(l)
    return "\n".join(h) + "\n"


if __name__ == "__main__":
    import argparse
    p = argparse.ArgumentParser()
    p.add_argument("-o", default="gated_mix__linear_attn_block__mixer_token_mlp__prompt.s")
    p.add_argument("--stamps", action="store_true")
    p.add_argument("--stop", default=None)
    p.add_argument("--opt", default="")
    args = p.parse_args()
    opts = {k: (int(v) if v != '' else 1) for k, _, v in (x.partition('=') for x in args.opt.split(',') if x)}
    g = Gen(stamps=args.stamps, stop=args.stop, opts=opts)
    open(args.o, "w").write(g.build(header()))
    print("wrote", args.o)
```

```python
import sys

KNAME = "gated_mix__linear_attn_block__mixer_token_mlp__prompt_kernel"

import os
FS = int(os.environ.get('FS', 128))
F_LN, F_KV, F_U, F_GO, F_WOT = 0x1000, 0x5000, 0x9000, 0xD000, 0x11000
G_OFF = 0x12000
STAMP = 0x900000
KVP = 0x20000
KVP_ST = 7168
HT = 0x100000
UW = 0x380000
UW_ST = 69632
GO = 0x640000
GO_ST = 20480
WS_USED = 0xA00000
TAG_INC = 0x9E3779B9
SPIN_LIMIT = 1 << 17

LDS_BYTES = 163840
LNBUF = 0
LN_ST = 1312
LNG = LNBUF + 32 * LN_ST
A_SLOT = 49152
A_WOFF = 16384
EXCH_ST = 14336
EXCH = 131072 - 4 * EXCH_ST
KVT = 147456
ZH = KVT + 11 * 1024

LOG2E = 0x3FB8AA3B


def f2u(x):
    import struct
    return struct.unpack("<I", struct.pack("<f", x))[0]


class Asm:
    def __init__(self):
        self.L = []
        self.nlab = 0

    def __call__(self, s):
        for line in s.split("\n"):
            line = line.strip()
            if line:
                self.L.append(("    " if not line.endswith(":") else "") + line)

    def label(self, base):
        self.nlab += 1
        return f"L{base}_{self.nlab}"

    def text(self):
        return "\n".join(self.L) + "\n"


def vr(a, n=1):
    return f"v{a}" if n == 1 else f"v[{a}:{a+n-1}]"


def sr(a, n=1):
    return f"s{a}" if n == 1 else f"s[{a}:{a+n-1}]"


P_X, P_WQKV, P_WO, P_BX, P_W1, P_B1, P_W2, P_B2 = 4, 6, 8, 10, 12, 14, 16, 18
P_GATE, P_OUT, P_DBG, P_WS = 20, 22, 24, 26
S_TAG, S_WAVE = 28, 29
S_XCD, S_J = 30, 31
R_WS, R_X, R_W, R_P, R_W2, R_M, R_OUT = 32, 36, 40, 44, 48, 52, 56
S_T0 = 60
S_MT, S_HG, S_DT, S_FT, S_KST, S_PAR = 70, 71, 72, 73, 74, 75
S_ST, S_DTILE = 76, 77
S_CNT = 78
S_A, S_B, S_C, S_D = 80, 81, 82, 83
S_MSK = 84
S_K0 = 90
S_STMP = 96
S_PERM = 66
S_M = 79
S_FROMA = 95


def lead_perm(n, nshare, m, lead=2):
    order = list(range(n))
    i = m
    while i + lead < n:
        order[i:i + lead + 1] = [order[i + lead]] + order[i:i + lead]
        i += nshare
    return order


class Gen:
    def __init__(self, stamps=False, stop=None, opts=None):
        self.o = opts or {}
        self.a = Asm()
        self.stamps = stamps
        self.stop = stop

    def srd(self, dst, ptr, nbytes, off_s=None):
        a = self.a
        if off_s is None:
            a(f"s_mov_b32 s{dst}, s{ptr}\ns_and_b32 s{dst+1}, s{ptr+1}, 0xffff")
        else:
            a(f"s_add_u32 s{dst}, s{ptr}, s{off_s}\ns_addc_u32 s{dst+1}, s{ptr+1}, 0\ns_and_b32 s{dst+1}, s{dst+1}, 0xffff")
        a(f"s_mov_b32 s{dst+2}, {nbytes:#x}\ns_mov_b32 s{dst+3}, 0x20000")

    def stamp(self, k, vtmp, dyn=None):
        if "pc1" in self.o:
            if dyn is None and k in (self.o["pc1"], self.o["pc2"]):
                lab = self.a.label("npr")
                self.a(f"s_cmp_lg_u32 s{S_FROMA}, {self.o.get('prole', 0)}\ns_cbranch_scc1 {lab}")
                if k == self.o["pc1"]:
                    self.a(f"s_memtime s[92:93]\ns_waitcnt lgkmcnt(0)")
                else:
                    self.a(f"s_memtime s[96:97]\ns_waitcnt lgkmcnt(0)\ns_sub_u32 s92, s96, s92\ns_lshr_b32 s92, s92, 4\ns_add_u32 s98, s98, s92\ns_mov_b32 s94, 1")
                self.a(f"{lab}:")
            return
        if "probe" in self.o:
            role = self.o.get("prole")
            if k == self.o["probe"] and dyn is None:
                lab = self.a.label("npr")
                if role is not None and k != 0:
                    self.a(f"s_cmp_lg_u32 s{S_FROMA}, {role}\ns_cbranch_scc1 {lab}")
                self.a(f"s_memrealtime s[98:99]\ns_mov_b32 s94, 1\ns_waitcnt lgkmcnt(0)\n{lab}:")
            return
        if self.o.get("dbg"):
            m = {0: 0, 11: 1, 1: 2, 2: 3, 3: 4, 4: 5, 6: 6, 9: 7}
            mA = {0: 0, 1: 1, 2: 2, 3: 3, 4: 4, 5: 5, 6: 6, 9: 7}
            if dyn is not None:
                return
            a = self.a
            for wg, mp, base in ((8, m, 0), (12, mA, 8)):
                if k in mp:
                    lab = a.label("nd")
                    a(f"s_cmp_lg_u32 s2, {wg}\ns_cbranch_scc1 {lab}")
                    a(f"s_memrealtime s[{S_STMP}:{S_STMP+1}]\ns_waitcnt lgkmcnt(0)")
                    a(f"v_mov_b32 v{vtmp}, s{S_STMP}\nv_mov_b32 v{vtmp+2}, {4*(base+mp[k])}")
                    a(f"s_mov_b64 exec, 1\nglobal_store_dword v{vtmp+2}, v{vtmp}, s[{P_DBG}:{P_DBG+1}]\ns_mov_b64 exec, -1\n{lab}:")
            return
        if not self.stamps:
            return
        a = self.a
        a(f"s_memrealtime s[{S_STMP}:{S_STMP+1}]\ns_memtime s[100:101]")
        ln = str(k)
        if dyn is not None:
            a(f"s_add_u32 m0, s{dyn}, {k}")
            ln = "m0"
        a(f"s_waitcnt lgkmcnt(0)\nv_writelane_b32 v254, s{S_STMP}, {ln}\nv_writelane_b32 v255, s100, {ln}")

    def perm_setup(self, s_m, n, nshare, dst, enable):
        a = self.a
        def pk(o):
            v = 0
            for i, x in enumerate(o):
                v |= x << (4 * i)
            return v & 0xffffffff, v >> 32
        lo, hi = pk(list(range(n)))
        a(f"s_mov_b32 s{dst}, {lo:#x}\ns_mov_b32 s{dst+1}, {hi:#x}")
        if not enable:
            return
        for m in range(nshare):
            lo, hi = pk(lead_perm(n, nshare, m, enable))
            a(f"s_cmp_eq_u32 s{s_m}, {m}\ns_cselect_b32 s{dst}, {lo:#x}, s{dst}\ns_cselect_b32 s{dst+1}, {hi:#x}, s{dst+1}")

    def perm_next(self, dst, src, mul):
        t = f"s_and_b32 s{dst}, s{src}, 15\ns_lshr_b64 s[{src}:{src+1}], s[{src}:{src+1}], 4\n"
        if mul & (mul - 1) == 0:
            t += f"s_lshl_b32 s{dst}, s{dst}, {mul.bit_length()-1}\n"
        else:
            t += f"s_mul_i32 s{dst}, s{dst}, {mul}\n"
        return t

    def poll(self, voffs, vtmp):
        a = self.a
        lp, dn = a.label("poll"), a.label("pdone")
        n = len(voffs)

        def ld(k):
            for i, vo in enumerate(voffs):
                a(f"buffer_load_dword v{vtmp+k*n+i}, v{vo}, s[{R_WS}:{R_WS+3}], 0 offen sc1")

        def chk(k):
            a(f"v_cmp_ne_u32 vcc, s{S_TAG}, v{vtmp+k*n}")
            for i in range(1, n):
                a(f"v_cmp_ne_u32 s[{S_T0}:{S_T0+1}], s{S_TAG}, v{vtmp+k*n+i}\ns_nop 1\ns_or_b64 vcc, vcc, s[{S_T0}:{S_T0+1}]")
            a(f"s_nop 1\ns_cmp_eq_u64 vcc, 0\ns_cbranch_scc1 {dn}")
        if not self.o.get("pp"):
            a(f"s_mov_b32 s{S_CNT}, 0\n{lp}:")
            ld(0)
            a("s_waitcnt vmcnt(0)")
            chk(0)
            a(f"s_add_u32 s{S_CNT}, s{S_CNT}, 1\ns_cmp_lt_u32 s{S_CNT}, {SPIN_LIMIT}\ns_cbranch_scc0 {dn}\ns_sleep 1\ns_branch {lp}\n{dn}:")
            return
        sl = f"s_sleep {self.o['pp'] - 1}\n" if self.o["pp"] > 1 else ""
        a(f"s_mov_b32 s{S_CNT}, 0")
        ld(0)
        a(f"{sl}{lp}:")
        ld(1)
        a(f"s_waitcnt vmcnt({n})")
        chk(0)
        ld(0)
        a(f"s_waitcnt vmcnt({n})")
        chk(1)
        a(f"s_add_u32 s{S_CNT}, s{S_CNT}, 1\ns_cmp_lt_u32 s{S_CNT}, {SPIN_LIMIT}\ns_cbranch_scc1 {lp}\n{dn}:")

    def flag_store(self, s_off, vtmp):
        a = self.a
        a(f"v_mov_b32 v{vtmp}, s{S_TAG}\nv_mov_b32 v{vtmp+1}, 0\ns_mov_b64 exec, 1")
        a(f"buffer_store_dword v{vtmp}, v{vtmp+1}, s[{R_WS}:{R_WS+3}], s{s_off} offen sc1\ns_mov_b64 exec, -1")

    def pipeline(self, stages, L, gstar, drain=True, wait_every=2):
        a = self.a
        seq = [(si, gi, u) for si, st in enumerate(stages) for gi, u in enumerate(st["uses"])]
        issued = []
        state = dict(nxt=0, opened=-1)
        pend = []

        def collect(lim):
            while state["nxt"] < len(seq) and state["nxt"] <= lim and seq[state["nxt"]][0] <= state["opened"]:
                si_, _, u_ = seq[state["nxt"]]
                for name, txt in u_["reads"]:
                    pend.append((f"{si_}:{name}", txt))
                state["nxt"] += 1
                if seq[state["nxt"] - 1][1] == len(stages[si_]["uses"]) - 1 and si_ + 1 < len(stages):
                    state["defer"] = list(stages[si_ + 1].get("pre", []))

        def emit(n):
            for _ in range(min(n, len(pend))):
                name, txt = pend.pop(0)
                a(txt)
                if name:
                    issued.append(name)

        a(stages[0]["bar"])
        state["opened"] = 0
        collect(L - 1)
        emit(len(pend))
        n_real = sum(len(st["uses"]) for st in stages if not st.get("virtual"))
        covered = -1
        for f in range(n_real):
            si, gi, u = seq[f]
            nuse = len(stages[si]["uses"])
            if gi == 0 and stages[si].get("head"):
                assert not pend, pend
                a(stages[si]["head"])
                covered = -1
            if gi == gstar and si + 1 < len(stages):
                emit(len(pend))
                for x in state.pop("defer", []):
                    a(x)
                if drain:
                    a("s_waitcnt lgkmcnt(0)")
                    covered = len(issued) - 1
                a(stages[si + 1]["bar"])
                pend.extend((None, x) for x in stages[si + 1].get("bar_pend", []))
                state["opened"] = si + 1
                collect(f + L - 1)
            def lastidx(ff):
                s_, _, uu = seq[ff]
                return max(len(issued) - 1 - issued[::-1].index(f"{s_}:{nm}") for nm in uu["need"])
            w = []
            if lastidx(f) > covered:
                tgt = lastidx(f)
                for ff in range(f + 1, min(f + wait_every, n_real)):
                    if seq[ff][0] != si:
                        break
                    try:
                        tgt = max(tgt, lastidx(ff))
                    except ValueError:
                        break
                n = len(issued) - 1 - tgt
                assert n <= 15, n
                w.append(f"lgkmcnt({n})")
                covered = tgt
            if u.get("vm") is not None:
                npv = sum(1 for nm_, t_ in pend if t_.strip().startswith("buffer_load"))
                w.insert(0, f"vmcnt({u['vm'] - npv})")
            if w:
                a("s_waitcnt " + " ".join(w))
            if u.get("before"):
                a(u["before"])
            if state.get("defer") and not pend:
                n_ = self.o.get("npre", 7)
                pend.extend((None, x) for x in state["defer"][:n_])
                state["defer"] = state["defer"][n_:]
            collect(f + L)
            if state.get("mix"):
                k_ = state.pop("mix")
                head_, rest_ = pend[:k_], pend[k_:]
                pend[:] = [x for pr in zip(head_, rest_) for x in pr] + head_[len(rest_):] + rest_[len(head_):]
            nm_ = len(u["mf"])
            for k, m in enumerate(u["mf"]):
                a(m)
                left = nm_ - k
                if drain and gi >= gstar:
                    left += sum(len(uu["mf"]) for uu in stages[si]["uses"][gi + 1:])
                    extra = 2 * (nuse - 1 - gi)
                    emit(-(-(len(pend) + extra) // left) if left > 1 else len(pend))
                else:
                    emit(-(-len(pend) // left))
            if u.get("after"):
                items = [x for x in u["after"].split("\n") if x.strip()]
                if gi == nuse - 1:
                    for x in items:
                        a(x)
                else:
                    assert not pend
                    pend.extend((None, x) for x in items)
                    state["mix"] = len(items)
            if gi == nuse - 1 and stages[si].get("tail"):
                a(stages[si]["tail"])

    def prologue(self):
        a = self.a
        a(f"""
        s_cmp_ge_u32 s2, 256
        s_cbranch_scc1 L_exit
        {"v_mov_b32 v254, 0" if self.stamps else ""}
        {"v_mov_b32 v255, 0" if self.stamps else ""}
        {"s_memrealtime s[98:99]" if self.o.get("calib") or "pc1" in self.o else ""}
        {"s_mov_b32 s94, 0" if "probe" in self.o or "pc1" in self.o else ""}
        s_load_dwordx16 s[4:19], s[0:1], 0
        s_load_dwordx8 s[20:27], s[0:1], 64
        v_and_b32 v1, 63, v0
        v_lshrrev_b32 v2, 6, v0
        s_and_b32 s{S_XCD}, s2, 7
        v_readfirstlane_b32 s{S_WAVE}, v2
        s_lshr_b32 s{S_J}, s2, 3
        s_waitcnt lgkmcnt(0)
        s_load_dword s{S_TAG}, s[{P_WS}:{P_WS+1}], 0
        """)
        self.srd(R_WS, P_WS, WS_USED)
        self.srd(R_X, P_X, 2048 * 1280)
        self.srd(R_W2, P_W2, 1536 * 4096)
        if self.stamps or self.o.get("dbg") or "probe" in self.o:
            a(f"s_cmp_lg_u32 s{S_WAVE}, 0\ns_cbranch_scc1 L_nost0")
            self.stamp(0, 4)
            a("L_nost0:")
        if self.o.get("tlb"):
            self.tlb_warm()
        if self.o.get("pf_code"):
            self.code_prefetch()
        if self.o.get("prio"):
            a(f"""
            s_sub_u32 s{S_T0}, s{S_WAVE}, 4
            s_cmp_lt_u32 s{S_T0}, 3
            s_cbranch_scc1 L_noprio
            s_setprio 3
            L_noprio:
            """)
        a(f"""
        s_lshr_b32 s{S_T0}, s{S_XCD}, 1
        s_lshl_b32 s{S_T0}, s{S_T0}, 3
        s_lshr_b32 s{S_ST}, s{S_J}, 2
        s_add_u32 s{S_ST}, s{S_ST}, s{S_T0}
        s_and_b32 s{S_T0}, s{S_XCD}, 1
        s_lshl_b32 s{S_T0}, s{S_T0}, 2
        s_and_b32 s{S_DTILE}, s{S_J}, 3
        s_add_u32 s{S_DTILE}, s{S_DTILE}, s{S_T0}
        s_cmp_lt_u32 s{S_XCD}, 4
        s_cbranch_scc1 L_roleB
        """)

    V_W2 = 240

    def f_perm(self):
        a = self.a
        a(f"s_lshl_b32 s{S_M}, s{S_DTILE}, 1\ns_add_u32 s{S_M}, s{S_M}, s{S_ST}\ns_and_b32 s{S_M}, s{S_M}, 7")
        self.perm_setup(S_M, 12, 8, S_PERM, self.o.get("rotF"))

    def w2_setup(self):
        a = self.a
        V = self.V_W2
        self.f_perm()
        a(f"""
        v_lshrrev_b32 v{V}, 3, v1
        v_lshrrev_b32 v{V+1}, 4, v1
        v_lshlrev_b32 v{V+1}, 1, v{V+1}
        v_and_b32 v{V+2}, 7, v1
        v_xor_b32 v{V+1}, v{V+1}, v{V+2}
        v_lshlrev_b32 v{V+1}, 4, v{V+1}
        v_lshl_add_u32 v{V}, v{V}, 12, v{V+1}
        v_add_u32 v{V+1}, {32768-1024}, v{V}
        v_add_u32 v{V+2}, {2*(32768-1024)}, v{V}
        v_add_u32 v{V+3}, {3*(32768-1024)}, v{V}
        s_sub_u32 s{S_T0}, s{S_WAVE}, 5
        s_lshl_b32 s{S_B}, s{S_T0}, 13
        s_lshl_b32 s{S_A}, s{S_T0}, 18
        s_lshl_b32 s{S_T0}, s{S_ST}, 7
        s_add_u32 s{S_A}, s{S_A}, s{S_T0}
        """)

    def w2_issue(self):
        a = self.a
        V = self.V_W2
        a(self.perm_next(S_T0, S_PERM, 128 * 4096))
        a(f"s_add_u32 s{S_T0}, s{S_T0}, s{S_A}")
        for g in range(2):
            a(f"s_add_u32 m0, s{S_B}, {g*4096}")
            a(f"s_add_u32 s{S_T0}, s{S_T0}, {g*4*32768}")
            for i in range(4):
                a(f"buffer_load_dwordx4 v{V+i}, s[{R_W2}:{R_W2+3}], s{S_T0} offen offset:{i*1024} lds")
        a(f"s_add_u32 s{S_B}, s{S_B}, 16384\ns_and_b32 s{S_B}, s{S_B}, 0x1ffff")

    def w2_prefill(self, n):
        if n == 0:
            return
        a = self.a
        lp = a.label("pf")
        a(f"s_mov_b32 s{S_C}, 0\n{lp}:")
        self.w2_issue()
        a(f"s_add_u32 s{S_C}, s{S_C}, 1\ns_cmp_lt_u32 s{S_C}, {n}\ns_cbranch_scc1 {lp}")

    def if_wave56(self):
        a = self.a
        skip = a.label("n56")
        a(f"s_sub_u32 s{S_T0}, s{S_WAVE}, 5\ns_cmp_lt_u32 s{S_T0}, 2\ns_cbranch_scc0 {skip}")
        return skip

    def role_a(self):
        a = self.a
        a(f"L_roleA:\ns_mov_b32 s{S_FROMA}, 1")
        a(f"s_sub_u32 s{S_MT}, s{S_ST}, 16\ns_mov_b32 s{S_HG}, s{S_DTILE}")
        a(f"s_cmp_ge_u32 s{S_WAVE}, 4\ns_cbranch_scc1 L_A_loader")
        ACC, XF, WF, VXA, VWA = 128, 96, 64, 4, 6
        if self.o.get("ta1") or self.o.get("ta2"):
            self.start_prefetch()
        self.a_thread_map()
        a(f"""
        v_and_b32 v16, 15, v1
        v_lshrrev_b32 v17, 4, v1
        s_lshl_b32 s{S_T0}, s{S_WAVE}, 5
        v_add_u32 v18, s{S_T0}, v16
        v_lshrrev_b32 v19, 1, v16
        v_xor_b32 v19, v17, v19
        v_lshlrev_b32 v19, 4, v19
        v_lshl_add_u32 v{VXA}, v18, 7, v19
        v_xor_b32 v{VXA+1}, 64, v{VXA}
        v_lshrrev_b32 v18, 2, v16
        v_lshl_add_u32 v19, v17, 3, v18
        v_and_b32 v20, 1, v17
        v_lshl_or_b32 v20, v20, 2, v18
        v_lshlrev_b32 v19, 9, v19
        v_lshl_add_u32 v19, v20, 5, v19
        v_and_b32 v20, 3, v16
        v_lshl_add_u32 v19, v20, 3, v19
        v_add_u32 v{VWA}, {A_WOFF}, v19
        """)
        for n in range(1, 8):
            a(f"v_xor_b32 v{VWA+n}, {n<<5}, v{VWA}")
        for r in range(120):
            a(f"v_mov_b32 v{ACC+r}, 0")
        a(f"s_mov_b32 s{S_A}, 0\ns_mov_b32 s{S_B}, 0\ns_mov_b32 s{S_C}, {A_SLOT}\ns_waitcnt lgkmcnt(0)")
        a(f"s_add_u32 s{S_TAG}, s{S_TAG}, {TAG_INC:#x}")

        RING = 6
        D = 6

        def mk_stage(bar, virtual=False, head=None, tail=None):
            uses = []
            for g in range(30):
                ks, n = divmod(g, 15)
                wb = WF + 4 * (g % RING)
                reads = []
                if g == 0:
                    for rb in range(2):
                        reads.append((f"x0{rb}", f"ds_read_b128 {vr(XF+4*rb,4)}, v{VXA} offset:{rb*2048}"))
                if g == 13:
                    for rb in range(2):
                        reads.append((f"x1{rb}", f"ds_read_b128 {vr(XF+8+4*rb,4)}, v{VXA+1} offset:{rb*2048}"))
                off = ks * 16384 + (n >> 3) * 256
                reads.append((f"w{g}a", f"ds_read_b64_tr_b16 {vr(wb,2)}, v{VWA+(n&7)} offset:{off}"))
                reads.append((f"w{g}b", f"ds_read_b64_tr_b16 {vr(wb+2,2)}, v{VWA+(n&7)} offset:{off+2048}"))
                need = [f"w{g}b", f"x{ks}1"]
                mf = []
                for rb in range(2):
                    acc = vr(ACC + (n * 2 + rb) * 4, 4)
                    xf = vr(XF + ks * 8 + rb * 4, 4)
                    wf = vr(wb, 4)
                    if n < 5:
                        mf.append(f"v_mfma_f32_16x16x32_bf16 {acc}, {wf}, {xf}, {acc}")
                    else:
                        mf.append(f"v_mfma_f32_16x16x32_bf16 {acc}, {xf}, {wf}, {acc}")
                uses.append(dict(reads=reads, need=need, mf=mf))
            return dict(uses=uses, bar=bar, virtual=virtual, head=head, tail=tail)

        adv = "s_barrier"
        pre = [f"s_add_u32 s{S_B}, s{S_B}, 1", f"s_cmp_eq_u32 s{S_B}, 3", f"s_cselect_b32 s{S_B}, 0, s{S_B}",
               f"s_cselect_b32 s{S_T0}, {(-2*A_SLOT) & 0xffffffff:#x}, s{S_C}"]
        pre += [f"v_add_u32 v{r}, s{S_T0}, v{r}" for r in range(VXA, VWA + 8)]
        tail = f"s_add_u32 s{S_A}, s{S_A}, 1\ns_cmp_lt_u32 s{S_A}, 10\ns_cbranch_scc1 L_A_loop"
        head = "L_A_loop:\n"
        bar0 = "s_barrier"
        if self.o.get("tw2") == 2:
            self.srd(R_P, P_WO, 640 * 1280)
            a(f"""
            v_lshlrev_b32 v252, 7, v1
            s_lshl_b32 s{S_T0}, s{S_MT}, 3
            s_add_u32 s{S_T0}, s{S_T0}, s{S_HG}
            s_lshl_b32 s{S_T0}, s{S_T0}, 2
            s_add_u32 s{S_T0}, s{S_T0}, s{S_WAVE}
            s_mul_i32 s{S_D}, s{S_T0}, 12288
            s_add_u32 s{S_KST}, s{S_D}, 8192
            s_mul_i32 s{S_PAR}, s{S_T0}, 1664
            s_and_b32 s{S_M}, s{S_J}, 7
            s_add_u32 s{S_M}, s{S_M}, {self.o.get("tw2at", 1)}
            """)
            head += f"""
            s_cmp_lg_u32 s{S_A}, s{S_M}
            s_cbranch_scc1 L_A_nt2
            buffer_load_dword v253, v252, s[{R_W2}:{R_W2+3}], s{S_D} offen
            s_mov_b32 exec_hi, 0
            buffer_load_dword v253, v252, s[{R_W2}:{R_W2+3}], s{S_KST} offen
            s_mov_b32 exec_lo, 0x1fff
            buffer_load_dword v253, v252, s[{R_P}:{R_P+3}], s{S_PAR} offen
            s_mov_b64 exec, -1
            L_A_nt2:
            """
        ta2 = self.o.get("ta2")
        if ta2 == 1:
            a(self.pf_rest())
        elif ta2 == 2:
            bar0 += "\n" + self.pf_rest()
        elif ta2:
            head += f"s_cmp_lg_u32 s{S_A}, {ta2-2}\ns_cbranch_scc1 L_A_npf\n" + self.pf_rest() + "L_A_npf:\n"
        self.pipeline([mk_stage(bar0, head=head, tail=tail), dict(mk_stage(adv, virtual=True), pre=pre)], 5, 30 - 3, wait_every=self.o.get('we', 2))
        self.stamp(2, 16)
        PK, VV, ONES, KVD, ZD = 16, 36, 56, 64, 116
        a("s_waitcnt lgkmcnt(0)\ns_nop 7")
        a(f"s_mov_b32 s{S_K0}, {LOG2E:#x}\ns_mov_b32 s{S_K0+1}, {LOG2E:#x}\ns_mov_b32 s{S_K0+2}, {f2u(1e-6):#x}")

        def phi(base, n, t):
            for i in range(0, n, 4):
                r = base + i
                a(f"v_pk_mul_f32 {vr(t,2)}, {vr(r,2)}, s[{S_K0}:{S_K0+1}]")
                a(f"v_pk_mul_f32 {vr(t+2,2)}, {vr(r+2,2)}, s[{S_K0}:{S_K0+1}]")
                for k in range(4):
                    a(f"v_exp_f32_e64 v{t+k}, v{t+k} clamp")
                for k in range(4):
                    a(f"v_max_f32 v{r+k}, s{S_K0+2}, v{r+k}")
                a(f"v_pk_add_f32 {vr(r,2)}, {vr(r,2)}, {vr(t,2)}")
                a(f"v_pk_add_f32 {vr(r+2,2)}, {vr(r+2,2)}, {vr(t+2,2)}")

        def pack(dst, src0, src1):
            a(f"v_cvt_pk_bf16_f32 v{dst}, v{src0}, v{src0+1}\nv_cvt_pk_bf16_f32 v{dst+1}, v{src0+2}, v{src0+3}")
            if src1 is None:
                a(f"v_mov_b32 v{dst+2}, 0\nv_mov_b32 v{dst+3}, 0")
            else:
                a(f"v_cvt_pk_bf16_f32 v{dst+2}, v{src1}, v{src1+1}\nv_cvt_pk_bf16_f32 v{dst+3}, v{src1+2}, v{src1+3}")

        for b in range(5):
            pack(VV + 4 * b, ACC + (10 + b) * 8, ACC + (10 + b) * 8 + 4)
        for k in range(4):
            a(f"v_mov_b32 v{ONES+k}, 0x3f803f80")
        phi(ACC + 40, 40, 60)
        for b in range(5):
            pack(PK + 4 * b, ACC + (5 + b) * 8, ACC + (5 + b) * 8 + 4)
        a("s_nop 1")
        ZD = ACC + 80
        blocks = [(x, y) for x in range(5) for y in range(5) if abs(x - y) <= 1]
        for (x, y) in blocks:
            a(f"v_mfma_f32_16x16x32_bf16 {vr(KVD+4*(2*x+y),4)}, {vr(PK+4*x,4)}, {vr(VV+4*y,4)}, 0")
        for x in range(5):
            a(f"v_mfma_f32_16x16x32_bf16 {vr(ZD+4*x,4)}, {vr(ONES,4)}, {vr(PK+4*x,4)}, 0")
        a(f"""
        s_mul_i32 s{S_T0}, s{S_WAVE}, {EXCH_ST}
        s_add_u32 s{S_T0}, s{S_T0}, {EXCH}
        v_lshlrev_b32 v60, 4, v1
        v_add_u32 v60, s{S_T0}, v60
        v_and_b32 v61, 15, v1
        v_lshlrev_b32 v61, 2, v61
        v_add_u32 v61, s{S_T0}, v61
        s_nop 3
        """)
        for i in range(13):
            a(f"ds_write_b128 v60, {vr(KVD+4*i,4)} offset:{i*1024}")
        for x in range(5):
            a(f"ds_write_b32 v61, v{ZD+4*x} offset:{13312+64*x}")
        a("s_waitcnt lgkmcnt(0)\ns_barrier")
        self.a_reduce_publish(64)
        a("s_waitcnt vmcnt(0)\ns_barrier")
        PQ = 16
        phi(ACC, 40, 60)
        for ts in range(3):
            for rb in range(2):
                pack(PQ + (ts * 2 + rb) * 4, ACC + (2 * ts * 2 + rb) * 4, None if ts == 2 else ACC + ((2 * ts + 1) * 2 + rb) * 4)
        self.uw_srd()
        a("v_lshlrev_b32 v60, 4, v1\ns_barrier")
        self.wot_preload(60)
        a("s_barrier")
        a(f"""
        v_and_b32 v63, 15, v1
        v_lshlrev_b32 v63, 2, v63
        s_lshl_b32 s{S_T0}, s{S_MT}, 7
        s_lshl_b32 s{S_T0+1}, s{S_WAVE}, 5
        s_add_u32 s{S_T0}, s{S_T0}, s{S_T0+1}
        s_lshl_b32 s{S_T0}, s{S_T0}, 2
        s_add_u32 s{S_T0}, s{S_T0}, {G_OFF}
        buffer_load_dword v62, v63, s[{R_WS}:{R_WS+3}], s{S_T0} offen sc1
        buffer_load_dword v61, v63, s[{R_WS}:{R_WS+3}], s{S_T0} offen offset:64 sc1
        """)
        self.a_gather(64)
        a("s_waitcnt lgkmcnt(0)\ns_barrier")
        self.stamp(4, 40)
        FR = 64
        a("v_lshlrev_b32 v60, 4, v1\nv_add_u32 v60, " + str(KVT) + ", v60")
        used = [0, 2, 3, 4, 5, 7, 8, 9, 10, 11, 12, 13]
        for f in used:
            a(f"ds_read_b128 {vr(FR+4*f,4)}, v60 offset:{f*1024}")
        NUM, DEN = 128, 120
        kts = {0: [0], 1: [0, 1], 2: [0, 1], 3: [1, 2], 4: [1, 2]}
        a(f"""
        v_lshrrev_b32 v40, 4, v1
        v_cmp_gt_u32 s[{S_MSK}:{S_MSK+1}], 1, v40
        v_cmp_gt_u32 s[{S_MSK+2}:{S_MSK+3}], 2, v40
        v_cmp_gt_u32 s[{S_MSK+4}:{S_MSK+5}], 3, v40
        s_waitcnt lgkmcnt(0)
        """)
        for rb in range(2):
            for ts in range(3):
                c = "0" if ts == 0 else vr(DEN + 4 * rb, 4)
                a(f"v_mfma_f32_16x16x32_bf16 {vr(DEN+4*rb,4)}, {vr(FR+4*(11+ts),4)}, {vr(PQ+(ts*2+rb)*4,4)}, {c}")
        for rb in range(2):
            for b in range(5):
                for i, ts in enumerate(kts[b]):
                    d = vr(NUM + (rb * 5 + b) * 4, 4)
                    c = "0" if i == 0 else d
                    a(f"v_mfma_f32_16x16x32_bf16 {d}, {vr(FR+4*(2*b+ts),4)}, {vr(PQ+(ts*2+rb)*4,4)}, {c}")
        for rb in range(2):
            for h in range(4):
                a(f"v_add_f32 v{DEN+4*rb+h}, s{S_K0+2}, v{DEN+4*rb+h}")
        for rb in range(2):
            for h in range(4):
                a(f"v_rcp_f32 v{DEN+4*rb+h}, v{DEN+4*rb+h}")
        a("s_nop 0")
        gv = {0: 62, 1: 61}
        for rb in range(2):
            for h in range(4):
                a(f"v_mul_f32 v{DEN+4*rb+h}, v{gv[rb]}, v{DEN+4*rb+h}")
        a(f"""
        s_lshl_b32 s{S_T0}, s{S_MT}, 3
        s_lshl_b32 s{S_T0+1}, s{S_WAVE}, 1
        s_add_u32 s{S_T0}, s{S_T0}, s{S_T0+1}
        s_mul_i32 s{S_T0}, s{S_T0}, {GO_ST}
        s_add_u32 s{S_T0}, s{S_T0}, {GO}
        s_lshl_b32 s{S_T0+1}, s{S_HG}, 11
        s_add_u32 s{S_T0+1}, s{S_T0+1}, s{S_T0}
        s_lshl_b32 s{S_T0+2}, s{S_HG}, 9
        s_add_u32 s{S_T0+2}, s{S_T0+2}, s{S_T0}
        s_add_u32 s{S_T0+2}, s{S_T0+2}, 16384
        v_lshlrev_b32 v40, 4, v1
        v_lshlrev_b32 v41, 3, v1
        """)
        for rb in range(2):
            d = DEN + 4 * rb
            a(f"v_cndmask_b32 v44, v{d+1}, v{d}, s[{S_MSK}:{S_MSK+1}]")
            a(f"v_cndmask_b32 v45, v{d+2}, v{d+1}, s[{S_MSK+2}:{S_MSK+3}]")
            a(f"v_cndmask_b32 v46, v{d+3}, v{d+2}, s[{S_MSK+4}:{S_MSK+5}]")
            sc = [d, 44, 45, 46, d + 3]
            for b in range(5):
                for k in range(4):
                    r = NUM + (rb * 5 + b) * 4 + k
                    a(f"v_mul_f32 v{r}, v{sc[b]}, v{r}")
            o = 16 + rb * 12
            n0 = NUM + rb * 20
            pack(o, n0, n0 + 4)
            pack(o + 4, n0 + 8, n0 + 12)
            a(f"v_cvt_pk_bf16_f32 v{o+8}, v{n0+16}, v{n0+17}\nv_cvt_pk_bf16_f32 v{o+9}, v{n0+18}, v{n0+19}")
            a(f"buffer_store_dwordx4 {vr(o,4)}, v40, s[{R_WS}:{R_WS+3}], s{S_T0+1} offen sc1")
            a(f"buffer_store_dwordx4 {vr(o+4,4)}, v40, s[{R_WS}:{R_WS+3}], s{S_T0+1} offen offset:1024 sc1")
            a(f"buffer_store_dwordx2 {vr(o+8,2)}, v41, s[{R_WS}:{R_WS+3}], s{S_T0+2} offen sc1")
            if rb == 0:
                a(f"s_add_u32 s{S_T0+1}, s{S_T0+1}, {GO_ST}\ns_add_u32 s{S_T0+2}, s{S_T0+2}, {GO_ST}")
        self.stamp(5, 40)
        a("s_branch L_F_comp")

        a("L_A_loader:")
        VX, VW = 4, 8
        self.srd(R_W, P_WQKV, 640 * 3840)
        a(f"""
        s_sub_u32 s{S_D}, s{S_WAVE}, 4
        v_lshrrev_b32 v16, 3, v1
        v_lshrrev_b32 v17, 4, v1
        v_and_b32 v18, 7, v1
        v_xor_b32 v17, v17, v18
        v_lshlrev_b32 v17, 4, v17
        v_mul_u32_u24 v16, 1280, v16
        v_add_u32 v{VX}, v16, v17
        v_xor_b32 v18, 64, v{VX}
        v_add_u32 v{VX+1}, {8*1280-1024}, v18
        v_add_u32 v{VX+2}, {2*(8*1280-1024)}, v{VX}
        v_add_u32 v{VX+3}, {3*(8*1280-1024)}, v18
        s_lshl_b32 s{S_T0}, s{S_MT}, 7
        s_lshl_b32 s{S_T0+1}, s{S_D}, 5
        s_add_u32 s{S_T0}, s{S_T0}, s{S_T0+1}
        s_mul_i32 s{S_A}, s{S_T0}, 1280
        s_lshl_b32 s{S_C}, s{S_D}, 12
        """)
        def issue_x():
            a(f"s_mov_b32 m0, s{S_C}\ns_nop 0")
            for i in range(4):
                a(f"buffer_load_dwordx4 v{VX+i}, s[{R_X}:{R_X+3}], s{S_A} offen offset:{i*1024} lds")
            a(f"s_add_u32 s{S_A}, s{S_A}, 128")

        def issue_w():
            for g in range(2):
                a(f"s_lshl_b32 s{S_T0}, s{S_D}, 12\ns_add_u32 s{S_T0}, s{S_T0}, s{S_C}\ns_add_u32 m0, s{S_T0}, {A_WOFF + g*4096}\ns_nop 0")
                for i in range(4):
                    a(f"buffer_load_dwordx4 v{VW+4*g+i}, s[{R_W}:{R_W+3}], s{S_B} offen offset:{i*1024} lds")
            a(f"s_add_u32 s{S_B}, s{S_B}, {64*3840}")

        def next_slot():
            a(f"s_add_u32 s{S_C}, s{S_C}, {A_SLOT}\ns_cmp_ge_u32 s{S_C}, {3*A_SLOT}\ns_cselect_b32 s{S_T0}, {3*A_SLOT}, 0\ns_sub_u32 s{S_C}, s{S_C}, s{S_T0}")

        issue_x()
        a(f"""
        v_lshrrev_b32 v16, 5, v1
        v_bfe_u32 v17, v1, 1, 4
        v_and_b32 v18, 1, v1
        v_lshlrev_b32 v18, 4, v18
        v_mul_u32_u24 v19, 3840, v16
        v_add_u32 v18, v18, v19
        """)
        for i in (0, 1, 4, 5):
            sig = (2 * (i & 1)) | ((i >> 2) << 2)
            a(f"""
            v_or_b32 v19, {sig}, v16
            v_xor_b32 v19, v17, v19
            v_min_u32 v19, 14, v19
            v_mul_u32_u24 v20, 13, v19
            v_lshrrev_b32 v20, 6, v20
            v_mul_u32_u24 v20, 1120, v20
            v_lshl_add_u32 v19, v19, 5, v20
            v_add_u32 v19, v19, v18
            v_add_u32 v{VW+i}, {2*i*3840 - (i&3)*1024}, v19
            v_add_u32 v{VW+i+2}, {2*(i+2)*3840 - ((i+2)&3)*1024}, v19
            """)
        a(f"""
        s_mul_i32 s{S_B}, s{S_HG}, 160
        s_mul_i32 s{S_T0}, s{S_D}, {16*3840}
        s_add_u32 s{S_B}, s{S_B}, s{S_T0}
        """)
        issue_w()
        for _ in range(2):
            next_slot()
            issue_x()
            issue_w()
        a(f"v_lshlrev_b32 v16, 4, v1\ns_lshl_b32 s{S_T0}, s{S_D}, 12\ns_add_u32 s{S_T0}, s{S_T0}, {KVT}\nv_add_u32 v16, s{S_T0}, v16")
        a("v_mov_b32 v20, 0\nv_mov_b32 v21, 0\nv_mov_b32 v22, 0\nv_mov_b32 v23, 0")
        for i in range(4):
            a(f"ds_write_b128 v16, v[20:23] offset:{i*1024}")
        a(f"s_waitcnt lgkmcnt(0)\ns_add_u32 s{S_TAG}, s{S_TAG}, {TAG_INC:#x}")
        a("s_waitcnt vmcnt(24)\ns_barrier")
        self.stamp(1, 16)
        a(f"s_mov_b32 s{S_CNT}, 1\nL_A_lloop:")
        a("s_waitcnt vmcnt(12)\ns_barrier")
        self.stamp(16, 16, dyn=S_CNT)
        next_slot()
        issue_x()
        issue_w()
        a(f"s_add_u32 s{S_CNT}, s{S_CNT}, 1\ns_cmp_le_u32 s{S_CNT}, 7\ns_cbranch_scc1 L_A_lloop")
        tw = 3 if self.o.get("tw2") == 1 else 0
        a(f"s_waitcnt vmcnt(12)\ns_barrier")
        if tw:
            self.w2_touch()
        self.stamp(24, 16)
        a(f"s_waitcnt vmcnt({tw})\ns_barrier")
        self.stamp(25, 16)
        a("s_barrier")
        self.stamp(26, 16)
        nA0 = self.o.get("nA0", 4)
        self.w2_setup()
        skip0 = self.if_wave56()
        self.w2_prefill(nA0)
        a(f"{skip0}:")
        self.a_thread_map()
        a("s_barrier")
        a(f"s_cmp_eq_u32 s{S_WAVE}, 7\ns_cbranch_scc1 L_A_poller")
        self.a_reduce_publish(64)
        a("s_waitcnt vmcnt(0)\ns_barrier")
        skip = self.if_wave56()
        a("s_nop 7\ns_nop 7")
        self.w2_prefill(8 - nA0)
        a("s_barrier\ns_barrier")
        self.a_gather(64)
        a("s_waitcnt lgkmcnt(0)\ns_barrier")
        a("s_branch L_F_loader")
        a(f"{skip}:\ns_barrier\ns_barrier")
        self.a_gather(64)
        a("s_waitcnt lgkmcnt(0)\ns_barrier")
        a("s_branch L_F_u4")
        a("L_A_poller:\ns_barrier")
        a(f"s_lshl_b32 s{S_T0}, s{S_HG}, 4\ns_add_u32 s{S_T0}, s{S_T0}, s{S_MT}\ns_mul_i32 s{S_T0}, s{S_T0}, {FS}\ns_add_u32 s{S_T0}, s{S_T0}, {F_KV}")
        self.flag_store(S_T0, 16)
        self.stamp(3, 16)
        a(f"s_mul_i32 s{S_T0}, s{S_DTILE}, {FS}\ns_add_u32 s{S_T0}, s{S_T0}, {F_WOT}\nv_mov_b32 v16, s{S_T0}")
        self.poll([16], 18)
        a("s_barrier")
        a(f"""
        v_and_b32 v16, 15, v1
        s_lshl_b32 s{S_T0}, s{S_HG}, 4
        v_add_u32 v16, s{S_T0}, v16
        v_mul_u32_u24 v16, {FS}, v16
        v_add_u32 v16, {F_KV}, v16
        v_and_b32 v17, 3, v1
        s_lshl_b32 s{S_T0}, s{S_MT}, 2
        v_add_u32 v17, s{S_T0}, v17
        v_mul_u32_u24 v17, {FS}, v17
        v_add_u32 v17, {F_LN}, v17
        v_cmp_gt_u32 vcc, 32, v1
        s_nop 1
        v_cndmask_b32 v16, v17, v16, vcc
        """)
        self.poll([16], 18)
        self.stamp(13, 16)
        a("s_barrier\ns_barrier")
        a("s_branch L_F_poller")

    def start_prefetch(self):
        a = self.a
        self.srd(R_W, P_WQKV, 640 * 3840)
        a(f"""
        s_lshl_b32 s{S_T0}, s{S_J}, 2
        s_add_u32 s{S_T0}, s{S_T0}, s{S_WAVE}
        v_lshrrev_b32 v16, 2, v1
        v_and_b32 v17, 3, v1
        v_mul_u32_u24 v16, 1280, v16
        v_lshl_add_u32 v16, v17, 7, v16
        s_lshr_b32 s{S_T0+2}, s{S_MT}, 3
        s_lshl_b32 s{S_T0+2}, s{S_T0+2}, 7
        s_add_u32 s{S_T0+2}, s{S_T0+2}, s{S_T0}
        s_mul_i32 s{S_DT}, s{S_T0+2}, {8*1280}
        v_lshrrev_b32 v19, 4, v1
        v_and_b32 v17, 15, v1
        v_min_u32 v17, 14, v17
        v_mul_u32_u24 v18, 13, v17
        v_lshrrev_b32 v18, 6, v18
        v_mul_u32_u24 v18, 640, v18
        v_lshl_add_u32 v18, v17, 7, v18
        v_mul_u32_u24 v19, 3840, v19
        v_add_u32 v112, v18, v19
        s_lshr_b32 s{S_T0+2}, s{S_HG}, 2
        s_mul_i32 s{S_T0+2}, s{S_T0+2}, 640
        s_mul_i32 s{S_FT}, s{S_T0}, {2*3840}
        s_add_u32 s{S_FT}, s{S_FT}, s{S_T0+2}
        """)
        if self.o.get("ta1"):
            a(f"""
            s_mov_b32 exec_hi, 0
            buffer_load_dword v253, v112, s[{R_W}:{R_W+3}], s{S_FT} offen
            buffer_load_dword v253, v16, s[{R_X}:{R_X+3}], s{S_DT} offen
            s_mov_b32 exec_hi, -1
            """)
        a(f"""
        s_mul_i32 s{S_FT}, s{S_T0}, {3*3840}
        s_add_u32 s{S_FT}, s{S_FT}, s{S_T0+2}
        s_add_u32 s{S_FT}, s{S_FT}, {256*3840}
        v_lshrrev_b32 v16, 3, v1
        v_and_b32 v17, 7, v1
        v_min_u32 v17, 5, v17
        v_mul_u32_u24 v16, 1280, v16
        v_lshl_add_u32 v113, v17, 7, v16
        s_add_u32 s{S_DT}, s{S_DT}, 512
        """)

    def pf_rest(self):
        return f"""s_mov_b32 exec_hi, 0xffff
        buffer_load_dword v253, v112, s[{R_W}:{R_W+3}], s{S_FT} offen
        s_mov_b32 exec_hi, -1
        buffer_load_dword v253, v113, s[{R_X}:{R_X+3}], s{S_DT} offen
        """

    def w2_touch(self):
        a = self.a
        self.srd(R_W2, P_W2, 1536 * 4096)
        a(f"""
        v_lshlrev_b32 v48, 7, v1
        s_lshl_b32 s{S_T0}, s{S_MT}, 3
        s_add_u32 s{S_T0}, s{S_T0}, s{S_HG}
        s_lshl_b32 s{S_T0}, s{S_T0}, 2
        s_add_u32 s{S_T0}, s{S_T0}, s{S_D}
        s_mul_i32 s{S_T0}, s{S_T0}, 12288
        buffer_load_dword v253, v48, s[{R_W2}:{R_W2+3}], s{S_T0} offen
        s_add_u32 s{S_T0}, s{S_T0}, 8192
        s_mov_b32 exec_hi, 0
        buffer_load_dword v253, v48, s[{R_W2}:{R_W2+3}], s{S_T0} offen
        """)
        self.srd(R_P, P_WO, 640 * 1280)
        a(f"""
        s_lshl_b32 s{S_T0}, s{S_MT}, 3
        s_add_u32 s{S_T0}, s{S_T0}, s{S_HG}
        s_lshl_b32 s{S_T0}, s{S_T0}, 2
        s_add_u32 s{S_T0}, s{S_T0}, s{S_D}
        s_mul_i32 s{S_T0}, s{S_T0}, 1664
        s_mov_b32 exec_lo, 0x1fff
        buffer_load_dword v253, v48, s[{R_P}:{R_P+3}], s{S_T0} offen
        s_mov_b64 exec, -1
        """)

    def tlb_warm(self):
        a = self.a
        mode = self.o["tlb"]
        wv = self.o.get("tlbw", 3)
        a(f"s_cmp_lg_u32 s{S_WAVE}, {wv}\ns_cbranch_scc1 L_notlb")
        self.srd(R_OUT, P_OUT, 2048 * 1280)
        self.srd(R_M, P_B2, 4096)
        self.srd(R_P, P_WO, 640 * 1280)
        self.srd(R_W, P_W1, 2048 * 3072)
        if mode == 1:
            a("v_lshlrev_b32 v4, 20, v1\nv_min_u32 v4, 0xf00000, v4\ns_mov_b64 exec, 0xffff")
            so = "0"
        else:
            a(f"v_lshlrev_b32 v4, 21, v1\ns_lshl_b32 s{S_T0}, s{S_J}, 16\ns_mov_b64 exec, 0x1f")
            so = f"s{S_T0}"
        for r in (R_WS, R_W2, R_OUT, R_W, R_P, R_M):
            a(f"buffer_load_dword v253, v4, s[{r}:{r+3}], {so} offen sc1")
        a("s_mov_b64 exec, -1\nL_notlb:")

    def code_prefetch(self):
        a = self.a
        a(f"""
        s_cmp_lg_u32 s{S_WAVE}, 3
        s_cbranch_scc1 L_nocpf
        s_cmp_ge_u32 s{S_J}, 4
        s_cbranch_scc1 L_nocpf
        s_getpc_b64 s[{S_T0}:{S_T0+1}]
        L_pcref:
        s_lshl_b32 s{S_T0+2}, s{S_J}, 13
        v_lshlrev_b32 v4, 7, v1
        v_add_u32 v4, s{S_T0+2}, v4
        v_min_u32 v4, L_end-L_pcref, v4
        global_load_dword v253, v4, s[{S_T0}:{S_T0+1}]
        L_nocpf:
        """)

    def a_thread_map(self):
        a = self.a
        a(f"""
        v_mul_u32_u24 v16, 625, v0
        v_lshrrev_b32 v16, 16, v16
        v_mul_u32_u24 v17, 105, v16
        v_sub_u32 v17, v0, v17
        v_mul_u32_u24 v18, 205, v17
        v_lshrrev_b32 v18, 10, v18
        v_mul_u32_u24 v19, 5, v18
        v_sub_u32 v19, v17, v19
        v_mad_u32_u24 v19, v16, 5, v19
        v_mad_u32_u24 v20, v16, 20, v18
        v_lshrrev_b32 v21, 2, v19
        v_and_b32 v22, 3, v19
        v_lshrrev_b32 v23, 4, v20
        v_and_b32 v20, 15, v20
        v_lshl_add_u32 v20, v22, 4, v20
        v_lshl_add_u32 v2, v21, 1, v23
        v_lshlrev_b32 v2, 6, v2
        v_add_u32 v2, v2, v20
        v_lshlrev_b32 v2, 4, v2
        v_lshlrev_b32 v3, 4, v19
        v_add_u32 v3, 13312, v3
        v_cmp_lt_u32 vcc, 99, v17
        v_lshrrev_b32 v24, 1, v21
        v_and_b32 v21, 1, v21
        v_cndmask_b32 v2, v2, v3, vcc
        v_lshl_add_u32 v3, v23, 1, v24
        v_add_u32 v24, 11, v24
        v_lshl_add_u32 v22, v22, 4, v16
        v_cndmask_b32 v3, v3, v24, vcc
        v_cndmask_b32 v20, v20, v22, vcc
        v_lshl_add_u32 v3, v3, 6, v20
        v_lshlrev_b32 v3, 4, v3
        v_lshl_add_u32 v3, v21, 3, v3
        v_add_u32 v3, {KVT}, v3
        v_mov_b32 v25, 2
        v_cndmask_b32 v25, 1, v25, vcc
        v_mov_b32 v16, 420
        v_cmp_gt_u32 vcc, v16, v0
        v_lshlrev_b32 v14, 4, v0
        s_nop 0
        v_cndmask_b32 v15, 0, v25, vcc
        v_cndmask_b32 v2, 0, v2, vcc
        v_add_u32 v2, {EXCH}, v2
        """)

    def a_reduce_publish(self, T):
        a = self.a
        for w in range(4):
            a(f"ds_read_b128 {vr(T+4*w,4)}, v2 offset:{w*EXCH_ST}")
        a(f"""
        s_lshl_b32 s{S_T0}, s{S_HG}, 4
        s_add_u32 s{S_T0}, s{S_T0}, s{S_MT}
        s_mul_i32 s{S_T0}, s{S_T0}, {KVP_ST}
        s_add_u32 s{S_T0}, s{S_T0}, {KVP}
        v_cmp_ne_u32 vcc, 0, v15
        s_waitcnt lgkmcnt(0)
        v_pk_add_f32 {vr(T,2)}, {vr(T,2)}, {vr(T+4,2)}
        v_pk_add_f32 {vr(T+2,2)}, {vr(T+2,2)}, {vr(T+6,2)}
        v_pk_add_f32 {vr(T+8,2)}, {vr(T+8,2)}, {vr(T+12,2)}
        v_pk_add_f32 {vr(T+10,2)}, {vr(T+10,2)}, {vr(T+14,2)}
        v_pk_add_f32 {vr(T,2)}, {vr(T,2)}, {vr(T+8,2)}
        v_pk_add_f32 {vr(T+2,2)}, {vr(T+2,2)}, {vr(T+10,2)}
        s_mov_b64 exec, vcc
        buffer_store_dwordx4 {vr(T,4)}, v14, s[{R_WS}:{R_WS+3}], s{S_T0} offen sc1
        s_mov_b64 exec, -1
        """)

    def a_gather(self, T, extra=0, hook=None):
        a = self.a
        a(f"s_mul_i32 s{S_T0+1}, s{S_HG}, {16*KVP_ST}\ns_add_u32 s{S_T0+1}, s{S_T0+1}, {KVP}")
        rot = self.o.get("rotG")
        if rot:
            a(f"s_lshl_b32 s{S_T0+2}, s{S_MT}, 1")
        else:
            a(f"s_mov_b32 s{S_T0+2}, 0")
        a("v_cmp_ne_u32 vcc, 0, v15\ns_nop 1\ns_mov_b64 exec, vcc")
        for m in range(16):
            a(f"s_and_b32 s{S_T0+2}, s{S_T0+2}, 15\ns_mul_i32 s{S_T0}, s{S_T0+2}, {KVP_ST}\ns_add_u32 s{S_T0}, s{S_T0}, s{S_T0+1}\ns_add_u32 s{S_T0+2}, s{S_T0+2}, 1")
            a(f"buffer_load_dwordx4 {vr(T+4*m,4)}, v14, s[{R_WS}:{R_WS+3}], s{S_T0} offen sc1")
        a("s_mov_b64 exec, -1")
        if hook:
            hook()
        for m in range(0, 16, 2):
            a(f"s_waitcnt vmcnt({14-m+extra})")
            for h in (0, 2):
                a(f"v_pk_add_f32 {vr(T+4*m+h,2)}, {vr(T+4*m+h,2)}, {vr(T+4*(m+1)+h,2)}")
            if m >= 2:
                for h in (0, 2):
                    a(f"v_pk_add_f32 {vr(T+h,2)}, {vr(T+h,2)}, {vr(T+4*m+h,2)}")
        a(f"""
        v_cvt_pk_bf16_f32 v{T}, v{T}, v{T+1}
        v_cvt_pk_bf16_f32 v{T+1}, v{T+2}, v{T+3}
        v_cmp_ne_u32 vcc, 0, v15
        v_cmp_eq_u32 s[{S_T0}:{S_T0+1}], 2, v15
        s_nop 1
        s_mov_b64 exec, vcc
        ds_write_b64 v3, {vr(T,2)}
        s_mov_b64 exec, s[{S_T0}:{S_T0+1}]
        ds_write_b64 v3, {vr(T,2)} offset:64
        ds_write_b64 v3, {vr(T,2)} offset:128
        ds_write_b64 v3, {vr(T,2)} offset:192
        s_mov_b64 exec, -1
        """)

    def role_b(self):
        a = self.a
        a(f"L_roleB:\ns_mov_b32 s{S_FROMA}, 0")
        XR, B1R, GR, XS = 16, 36, 64, 84
        VPF = 8
        a(f"s_cmp_ge_u32 s{S_J}, 16\ns_cbranch_scc1 L_B_pfrole")
        a(f"""
        s_lshl_b32 s{S_KST}, s{S_XCD}, 4
        s_add_u32 s{S_KST}, s{S_KST}, s{S_J}
        s_lshl_b32 s{S_T0}, s{S_KST}, 3
        s_add_u32 s{S_T0}, s{S_T0}, s{S_WAVE}
        s_mul_i32 s{S_T0}, s{S_T0}, {4*1280}
        v_lshrrev_b32 v2, 4, v1
        v_and_b32 v3, 15, v1
        v_lshlrev_b32 v3, 4, v3
        v_mul_u32_u24 v4, 1280, v2
        v_add_u32 v4, v4, v3
        """)
        for c in range(5):
            a(f"buffer_load_dwordx4 {vr(XR+4*c,4)}, v4, s[{R_X}:{R_X+3}], s{S_T0} offen offset:{c*256}")
        self.srd(R_M, P_GATE, 1280)
        for c in range(5):
            a(f"buffer_load_dwordx4 {vr(GR+4*c,4)}, v3, s[{R_M}:{R_M+3}], 0 offen offset:{c*256}")

        def common_setup():
            a(f"""
            s_mul_i32 s{S_M}, s{S_J}, 205
            s_lshr_b32 s{S_M}, s{S_M}, 10
            s_mul_i32 s{S_DT}, s{S_M}, 5
            s_sub_u32 s{S_DT}, s{S_J}, s{S_DT}
            s_mul_i32 s{S_FT}, s{S_XCD}, 6
            s_add_u32 s{S_FT}, s{S_FT}, s{S_M}
            """)
            self.srd(R_OUT, P_B1, 3072)
            a(f"v_lshrrev_b32 v5, 4, v1\nv_lshlrev_b32 v5, 3, v5\ns_lshl_b32 s{S_T0}, s{S_FT}, 7")
            for b in range(4):
                a(f"buffer_load_dwordx2 {vr(B1R+2*b,2)}, v5, s[{R_OUT}:{R_OUT+3}], s{S_T0} offen offset:{b*32}")
            a(f"""
            v_lshrrev_b32 v12, 3, v1
            v_lshrrev_b32 v13, 4, v1
            v_lshlrev_b32 v13, 1, v13
            v_and_b32 v14, 7, v1
            v_xor_b32 v13, v13, v14
            v_lshlrev_b32 v13, 4, v13
            v_mul_u32_u24 v12, 3072, v12
            v_add_u32 v{VPF}, v12, v13
            v_add_u32 v{VPF+1}, {8*3072-1024}, v{VPF}
            v_add_u32 v{VPF+2}, {2*(8*3072-1024)}, v{VPF}
            v_add_u32 v{VPF+3}, {3*(8*3072-1024)}, v{VPF}
            """)
            self.perm_setup(S_M, 16, 6, S_PERM, self.o.get("rotB"))

        self.srd(R_W, P_W1, 2048 * 3072)
        common_setup()
        a("v_mov_b32 v124, 0\nv_mov_b32 v125, 0\nv_mov_b32 v126, 0x3f803f80\ns_waitcnt vmcnt(4)")
        self.stamp(11, 44)
        for c in range(20):
            a(f"v_dot2c_f32_bf16 v124, v{XR+c}, v126")
        for c in range(20):
            a(f"v_dot2c_f32_bf16 v125, v{XR+c}, v{GR+c}")
        for c in range(20):
            a(f"v_lshlrev_b32 v{XS+2*c}, 16, v{XR+c}\nv_and_b32 v{XS+2*c+1}, 0xffff0000, v{XR+c}")

        def reduce16(regs):
            for mode in ("quad_perm:[1,0,3,2]", "quad_perm:[2,3,0,1]", "row_half_mirror", "row_mirror"):
                for r in regs:
                    a(f"v_add_f32_dpp v{r}, v{r}, v{r} {mode} row_mask:0xf bank_mask:0xf")
                a("s_nop 1" if len(regs) == 1 else "s_nop 0")

        reduce16([124, 125])
        a(f"""
        v_mul_f32 v126, {f2u(-1.0/640):#x}, v124
        v_mul_f32 v127, {f2u(-1.0/640):#x}, v124
        v_mul_f32 v125, {f2u(-1.4426950408889634):#x}, v125
        v_mov_b32 v128, 0
        v_mov_b32 v129, 0
        v_mov_b32 v130, 0
        v_mov_b32 v131, 0
        v_exp_f32 v125, v125
        """)
        for c in range(20):
            a(f"v_pk_add_f32 {vr(XS+2*c,2)}, {vr(XS+2*c,2)}, v[126:127]")
        a("v_add_f32 v125, 1.0, v125\nv_rcp_f32 v125, v125")
        for c in range(20):
            t = 128 + 2 * (c & 1)
            a(f"v_pk_fma_f32 {vr(t,2)}, {vr(XS+2*c,2)}, {vr(XS+2*c,2)}, {vr(t,2)}")
        a("v_pk_add_f32 v[128:129], v[128:129], v[130:131]\nv_add_f32 v128, v128, v129\ns_nop 1")
        reduce16([128])
        a(f"v_mov_b32 v126, {f2u(1e-5):#x}\nv_fmac_f32 v126, {f2u(1.0/640):#x}, v128\nv_rsq_f32 v126, v126")
        a(f"""
        s_lshl_b32 s{S_T0}, s{S_WAVE}, 2
        v_add_u32 v2, s{S_T0}, v2
        v_mov_b32 v127, v126
        v_mul_u32_u24 v4, {LN_ST}, v2
        v_add_u32 v4, v4, v3
        v_lshlrev_b32 v2, 2, v2
        """)
        for c4 in range(5):
            for c in range(4 * c4, 4 * c4 + 4):
                a(f"v_pk_mul_f32 {vr(XS+2*c,2)}, {vr(XS+2*c,2)}, v[126:127]")
            for c in range(4 * c4, 4 * c4 + 4):
                a(f"v_cvt_pk_bf16_f32 v{XR+c}, v{XS+2*c}, v{XS+2*c+1}")
            a(f"ds_write_b128 v4, {vr(XR+4*c4,4)} offset:{LNBUF + c4*256}")
        a(f"ds_write_b32 v2, v125 offset:{LNG}")
        a(f"""
        v_and_b32 v12, 15, v1
        v_lshrrev_b32 v13, 4, v1
        v_lshrrev_b32 v15, 2, v12
        v_lshl_add_u32 v15, v13, 2, v15
        v_mul_u32_u24 v15, {LN_ST}, v15
        v_and_b32 v2, 3, v12
        v_lshl_add_u32 v15, v2, 3, v15
        s_mul_i32 s{S_T0}, s{S_WAVE}, 160
        v_add_u32 v15, s{S_T0}, v15
        v_lshlrev_b32 v14, 4, v1
        v_lshlrev_b32 v2, 2, v1
        s_mul_i32 s{S_T0}, s{S_WAVE}, {5*65536}
        s_lshl_b32 s{S_T0+1}, s{S_KST}, 10
        s_add_u32 s{S_T0}, s{S_T0}, s{S_T0+1}
        s_add_u32 s{S_T0}, s{S_T0}, {HT}
        s_waitcnt lgkmcnt(0)
        s_add_u32 s{S_TAG}, s{S_TAG}, {TAG_INC:#x}
        s_barrier
        """)
        self.stamp(12, 44)
        for i in range(5):
            a(f"ds_read_b64_tr_b16 {vr(44+4*i,2)}, v15 offset:{LNBUF + i*32}")
            a(f"ds_read_b64_tr_b16 {vr(46+4*i,2)}, v15 offset:{LNBUF + i*32+16*LN_ST}")
        a(f"ds_read_b32 v125, v2 offset:{LNG}")
        for i in range(5):
            a(f"s_waitcnt lgkmcnt({9-2*i})")
            a(f"buffer_store_dwordx4 {vr(44+4*i,4)}, v14, s[{R_WS}:{R_WS+3}], s{S_T0} offen sc1")
            if i < 4:
                a(f"s_add_u32 s{S_T0}, s{S_T0}, 65536")
        a(f"""
        s_cmp_lg_u32 s{S_WAVE}, 0
        s_cbranch_scc1 L_B_nog
        s_lshl_b32 s{S_T0}, s{S_KST}, 7
        s_add_u32 s{S_T0}, s{S_T0}, {G_OFF}
        s_waitcnt lgkmcnt(0)
        s_mov_b32 exec_hi, 0
        buffer_store_dword v125, v2, s[{R_WS}:{R_WS+3}], s{S_T0} offen sc1
        s_mov_b32 exec_hi, -1
        L_B_nog:
        s_waitcnt vmcnt(0) lgkmcnt(0)
        s_barrier
        s_cmp_lg_u32 s{S_WAVE}, 0
        s_cbranch_scc1 L_B_join
        s_mul_i32 s{S_T0}, s{S_KST}, {FS}
        s_add_u32 s{S_T0}, s{S_T0}, {F_LN}
        """)
        self.flag_store(S_T0, 12)
        self.stamp(1, 12)
        a("s_branch L_B_join")
        a("L_B_pfrole:")
        self.srd(R_M, P_WQKV, 640 * 3840)
        self.srd(R_W, P_W1, 2048 * 3072)
        if self.o.get("pfdelay"):
            common_setup()
            a("s_waitcnt vmcnt(0)")
        a(f"""
        s_sub_u32 s{S_T0}, s{S_J}, 16
        s_lshl_b32 s{S_T0}, s{S_T0}, 3
        s_add_u32 s{S_T0}, s{S_T0}, s{S_WAVE}
        s_lshl_b32 s{S_T0+1}, s{S_XCD}, 7
        s_add_u32 s{S_T0+1}, s{S_T0+1}, s{S_T0}
        v_lshrrev_b32 v6, 3, v1
        v_and_b32 v7, 7, v1
        v_min_u32 v7, 5, v7
        v_mul_u32_u24 v6, 3072, v6
        v_lshl_add_u32 v7, v7, 7, v6
        v_lshlrev_b32 v6, 7, v1
        s_mul_i32 s{S_T0}, s{S_T0}, {8*3072}
        s_mul_i32 s{S_T0+2}, s{S_XCD}, 768
        s_add_u32 s{S_T0}, s{S_T0}, s{S_T0+2}
        s_mul_i32 s{S_T0+1}, s{S_T0+1}, 2880
        s_add_u32 s{S_T0+1}, s{S_T0+1}, {256*3840}
        buffer_load_dword v253, v7, s[{R_W}:{R_W+3}], s{S_T0} offen
        s_mov_b64 exec, 0xffffff
        buffer_load_dword v253, v6, s[{R_M}:{R_M+3}], s{S_T0+1} offen
        s_mov_b64 exec, -1
        s_add_u32 s{S_T0}, s{S_T0}, {1024*3072}
        buffer_load_dword v253, v7, s[{R_W}:{R_W+3}], s{S_T0} offen
        """)
        if not self.o.get("pfdelay"):
            common_setup()
        self.stamp(15, 12)
        a(f"s_waitcnt lgkmcnt(0)\ns_add_u32 s{S_TAG}, s{S_TAG}, {TAG_INC:#x}")
        a(f"s_cmp_ge_u32 s{S_J}, 30\ns_cbranch_scc1 L_helper")
        N1 = self.o.get("n1", 8)
        NREG = self.o.get("nreg", 0)
        assert NREG == 0 or N1 == 8

        def w1_issue():
            t = self.perm_next(S_T0, S_PERM, 128 * 3072)
            t += f"s_mov_b32 m0, s{S_B}\ns_add_u32 s{S_T0}, s{S_T0}, s{S_A}\n"
            for i in range(4):
                t += f"buffer_load_dwordx4 v{VPF+i}, s[{R_W}:{R_W+3}], s{S_T0} offen offset:{i*1024} lds\n"
            t += f"s_add_u32 s{S_B}, s{S_B}, 16384\n"
            return t
        a(f"""
        L_B_join:
        s_cmp_lt_u32 s{S_WAVE}, 4
        s_cbranch_scc1 L_B_comp0
        s_sub_u32 s{S_T0}, s{S_WAVE}, 4
        s_lshl_b32 s{S_B}, s{S_T0}, 12
        s_mul_i32 s{S_A}, s{S_T0}, {32*3072}
        s_lshl_b32 s{S_T0}, s{S_FT}, 7
        s_add_u32 s{S_A}, s{S_A}, s{S_T0}
        L_B_pf:
        """ + w1_issue() + f"""
        s_cmp_lt_u32 s{S_B}, {N1*16384}
        s_cbranch_scc1 L_B_pf
        """)
        for k in range(NREG):
            if k == 4:
                a("s_waitcnt vmcnt(40)")
            a(self.perm_next(S_T0, S_PERM, 128 * 3072) + f"s_add_u32 s{S_T0}, s{S_T0}, s{S_A}")
            for i in range(4):
                a(f"buffer_load_dwordx4 {vr(64+16*k+4*i,4)}, v{VPF+i}, s[{R_W}:{R_W+3}], s{S_T0} offen offset:{i*1024}")
        a(f"s_branch L_B_aux\nL_B_comp0:\ns_cmp_lg_u32 s{S_WAVE}, 0\ns_cbranch_scc1 L_B_l3")
        a(f"v_mul_u32_u24 v12, {FS}, v1\nv_add_u32 v12, {F_LN}, v12")
        self.poll([12], 14)
        self.stamp(2, 12)
        a("L_B_l3:")
        PF, WF, ACC, VT, VL = 64, 128, 160, 8, 12
        a(f"""
        s_lshl_b32 s{S_T0}, s{S_DT}, 3
        s_lshl_b32 s{S_T0+1}, s{S_WAVE}, 1
        s_add_u32 s{S_D}, s{S_T0}, s{S_T0+1}
        s_lshl_b32 s{S_T0}, s{S_D}, 16
        s_add_u32 s{S_T0}, s{S_T0}, {HT}
        """)
        self.srd(R_P, P_WS, 65536, off_s=S_T0)
        a(f"s_add_u32 s{S_T0}, s{S_T0}, 65536")
        self.srd(R_M, P_WS, 65536, off_s=S_T0)
        a(f"v_lshlrev_b32 v{VL}, 4, v1\ns_mov_b32 s{S_B}, 0")
        a(self.perm_next(S_C, S_PERM, 4096))
        self.tr_addr(VT)
        for r in range(32):
            a(f"v_mov_b32 v{ACC+r}, 0")
        a("s_barrier")
        RP = (R_P, R_M)

        def pload(u, ks):
            if self.o.get("x_noload"):
                return "s_nop 0"
            sc = "" if self.o.get("x_nosc1") else "sc1"
            so = "0" if self.o.get("x_same") else f"s{S_C}"
            return "\n".join(f"buffer_load_dwordx4 {vr(PF+32*(u%2)+8*ks+4*d,4)}, v{VL}, s[{RP[d]}:{RP[d]+3}], {so} offen offset:{ks*1024} {sc}" for d in range(2))

        for t in range(2):
            for ks in range(4):
                a(pload(t, ks))
            a(self.perm_next(S_C, S_PERM, 4096))
            if t == 0:
                first_bar_here = len(a.L)

        def mk(u, bar, virtual=False, head=None, tail=None):
            uses = []
            for ks in range(4):
                for b in range(4):
                    g = ks * 4 + b
                    wb = WF + 4 * (g % 8)
                    off = u * 16384 + ks * 4096
                    reads = [(f"w{g}a", f"ds_read_b64_tr_b16 {vr(wb,2)}, v{VT+b} offset:{off}"),
                             (f"w{g}b", f"ds_read_b64_tr_b16 {vr(wb+2,2)}, v{VT+b} offset:{off+2048}")]
                    mf = []
                    for dd in range(2):
                        acc = vr(ACC + 16 * dd + 4 * b, 4)
                        mf.append(f"v_mfma_f32_16x16x32_bf16 {acc}, {vr(wb,4)}, {vr(PF+32*(u%2)+8*ks+4*dd,4)}, {acc}")
                    d = dict(reads=reads, need=[f"w{g}b"], mf=mf)
                    if b == 0:
                        d["vm"] = 14
                    if b == 3:
                        d["after"] = pload(u, ks)
                        if ks == 3:
                            d["after"] += "\n" + self.perm_next(S_C, S_PERM, 4096)
                            if u >= 1:
                                d["after"] += f"s_cmp_ge_u32 s{S_B}, 3\ns_cselect_b32 s{S_C}, 0x10000, s{S_C}"
                    uses.append(d)
            return dict(uses=uses, bar=bar, virtual=virtual, head=head, tail=tail)

        xo = "s_barrier\n" + "\n".join(f"v_xor_b32 v{VT+b}, 0x10000, v{VT+b}" for b in range(4))
        tail = f"s_add_u32 s{S_B}, s{S_B}, 1\ns_cmp_lt_u32 s{S_B}, 4\ns_cbranch_scc1 L_B_loop"
        st = [mk(0, "", head="L_B_loop:"), mk(1, "s_barrier"), mk(2, "s_barrier"), mk(3, "s_barrier", tail=tail), mk(0, xo, virtual=True)]
        a.L.insert(first_bar_here, "    s_barrier")
        nd = self.o.get("nodrain")
        LB = self.o.get("LB", 7)
        self.pipeline(st, LB, (16 - LB) if nd else 13, drain=not nd, wait_every=self.o.get('we', 2))
        if nd:
            a("s_waitcnt lgkmcnt(0)\ns_barrier")
        self.stamp(3, 44)
        c = 0.7978845608028654
        k0 = -2.0 * c * 1.4426950408889634
        k1 = k0 * 0.044715
        a(f"""
        s_waitcnt lgkmcnt(0)
        s_mov_b32 s{S_K0}, {f2u(k1):#x}
        s_mov_b32 s{S_K0+1}, {f2u(k1):#x}
        v_mov_b32 v44, {f2u(k0):#x}
        v_mov_b32 v45, {f2u(k0):#x}
        v_mov_b32 v46, 1.0
        v_mov_b32 v47, 1.0
        s_mul_i32 s{S_T0}, s{S_D}, {UW_ST}
        s_lshl_b32 s{S_T0+1}, s{S_FT}, 11
        s_add_u32 s{S_T0}, s{S_T0}, s{S_T0+1}
        s_add_u32 s{S_T0}, s{S_T0}, {UW}
        """)
        BF = 16
        for b in range(4):
            a(f"v_lshlrev_b32 v{BF+4*b}, 16, v{B1R+2*b}\nv_and_b32 v{BF+4*b+1}, 0xffff0000, v{B1R+2*b}")
            a(f"v_lshlrev_b32 v{BF+4*b+2}, 16, v{B1R+2*b+1}\nv_and_b32 v{BF+4*b+3}, 0xffff0000, v{B1R+2*b+1}")
        for dd in range(2):
            for p in range(2):
                r = ACC + 16 * dd + 8 * p
                T = 48
                for q in range(4):
                    a(f"v_pk_add_f32 {vr(r+2*q,2)}, {vr(r+2*q,2)}, {vr(BF+8*p+2*q,2)}")
                for q in range(4):
                    a(f"v_pk_mul_f32 {vr(T+2*q,2)}, {vr(r+2*q,2)}, {vr(r+2*q,2)}")
                for q in range(4):
                    a(f"v_pk_fma_f32 {vr(T+2*q,2)}, {vr(T+2*q,2)}, s[{S_K0}:{S_K0+1}], v[44:45]")
                for q in range(4):
                    a(f"v_pk_mul_f32 {vr(T+2*q,2)}, {vr(T+2*q,2)}, {vr(r+2*q,2)}")
                for q in range(8):
                    a(f"v_exp_f32 v{T+q}, v{T+q}")
                for q in range(4):
                    a(f"v_pk_add_f32 {vr(T+2*q,2)}, {vr(T+2*q,2)}, v[46:47]")
                for q in range(8):
                    a(f"v_rcp_f32 v{T+q}, v{T+q}")
                for q in range(4):
                    a(f"v_pk_mul_f32 {vr(r+2*q,2)}, {vr(r+2*q,2)}, {vr(T+2*q,2)}")
                o = 56 + 4 * (p & 1)
                for q in range(4):
                    a(f"v_cvt_pk_bf16_f32 v{o+q}, v{r+2*q}, v{r+2*q+1}")
                a(f"buffer_store_dwordx4 {vr(o,4)}, v{VL}, s[{R_WS}:{R_WS+3}], s{S_T0} offen offset:{p*1024} sc1")
            if dd == 0:
                a(f"s_add_u32 s{S_T0}, s{S_T0}, {UW_ST}")
        self.stamp(10, 44)
        a("s_waitcnt vmcnt(0)\ns_barrier\ns_branch L_F_comp")

        a("L_B_aux:\ns_barrier")
        order = list(range(N1 + NREG))
        cnt = {k: 4 for k in range(16)}
        cnt["t"] = 1
        nxt = N1
        lag = self.o.get("lag", 0)
        if NREG:
            a(f"""
            s_sub_u32 s{S_T0}, s{S_WAVE}, 4
            s_lshl_b32 s{S_T0}, s{S_T0}, 12
            v_lshlrev_b32 v12, 4, v1
            v_add_u32 v12, s{S_T0}, v12
            v_add_u32 v13, 0x10000, v12
            s_add_u32 s{S_B}, s{S_T0}, {(NREG % 8) * 16384}
            """)
        for tb in range(17):
            if tb < 16:
                n = sum(cnt[x] for x in order[order.index(tb) + 1:])
                a(f"s_waitcnt vmcnt({min(n, 63)}) lgkmcnt(0)")
            a("s_barrier")
            if tb < 16:
                self.stamp(16 + tb, 44)
            k = 0
            while nxt <= min(15, tb + (6 if self.o.get("nodrain") and nxt >= 8 else 7) - (lag if nxt >= 8 + NREG else 0)) and k < 2:
                if 8 <= nxt < 8 + NREG:
                    n = sum(cnt[x] for x in order[order.index(nxt) + 1:])
                    a(f"s_waitcnt vmcnt({min(n, 63)})")
                    sl = nxt % 8
                    for i in range(4):
                        a(f"ds_write_b128 v{13 if sl >= 4 else 12}, {vr(64+16*(nxt-8)+4*i,4)} offset:{(sl&3)*16384+i*1024}")
                else:
                    if nxt == 8:
                        a(f"s_and_b32 s{S_B}, s{S_B}, 0x1ffff")
                    a(w1_issue())
                    order.append(nxt)
                nxt += 1
                k += 1
        assert nxt == 16
        if self.o.get("nodrain"):
            a("s_barrier")
        skip = self.if_wave56()
        nB1 = self.o.get("nB1", 0)
        if nB1:
            self.w2_setup()
            self.w2_prefill(nB1)
            a("s_barrier\ns_nop 7\ns_nop 7")
            self.w2_prefill(8 - nB1)
        else:
            a("s_barrier")
            self.w2_setup()
            self.w2_prefill(8)
        a("s_branch L_F_loader")
        a(f"{skip}:\ns_barrier")
        a(f"s_cmp_lg_u32 s{S_WAVE}, 7\ns_cbranch_scc1 L_F_u4")
        a(f"s_mul_i32 s{S_T0}, s{S_DT}, 24\ns_add_u32 s{S_T0}, s{S_T0}, s{S_FT}\ns_mul_i32 s{S_T0}, s{S_T0}, {FS}\ns_add_u32 s{S_T0}, s{S_T0}, {F_U}")
        self.flag_store(S_T0, 12)
        self.stamp(4, 12)
        a("s_branch L_F_poller")

    def w2_l2_prefetch(self, VT):
        a = self.a
        self.srd(R_W2, P_W2, 1536 * 4096)
        a(f"""
        v_lshrrev_b32 v{VT}, 3, v1
        v_and_b32 v{VT+1}, 7, v1
        v_lshlrev_b32 v{VT+1}, 7, v{VT+1}
        v_lshl_add_u32 v{VT}, v{VT}, 12, v{VT+1}
        s_mul_i32 s{S_T0}, s{S_J}, 48
        s_and_b32 s{S_T0+1}, s{S_WAVE}, 3
        s_mul_i32 s{S_T0+1}, s{S_T0+1}, 12
        s_add_u32 s{S_T0}, s{S_T0}, s{S_T0+1}
        s_lshl_b32 s{S_T0}, s{S_T0}, 12
        s_lshr_b32 s{S_T0+1}, s{S_XCD}, 1
        s_lshl_b32 s{S_T0+1}, s{S_T0+1}, 10
        s_add_u32 s{S_T0}, s{S_T0}, s{S_T0+1}
        buffer_load_dword v{VT+2}, v{VT}, s[{R_W2}:{R_W2+3}], s{S_T0} offen
        s_add_u32 s{S_T0}, s{S_T0}, {8*4096}
        s_mov_b32 exec_hi, 0
        buffer_load_dword v{VT+3}, v{VT}, s[{R_W2}:{R_W2+3}], s{S_T0} offen
        s_mov_b64 exec, -1
        """)

    def tr_addr(self, VT):
        a = self.a
        a(f"""
        v_and_b32 v{VT+1}, 15, v1
        v_lshrrev_b32 v{VT+2}, 4, v1
        v_lshrrev_b32 v{VT+3}, 2, v{VT+1}
        v_lshl_add_u32 v{VT+3}, v{VT+2}, 2, v{VT+3}
        v_bfe_u32 v{VT+2}, v{VT+3}, 1, 2
        v_lshlrev_b32 v{VT+3}, 7, v{VT+3}
        v_lshl_add_u32 v{VT+3}, v{VT+2}, 5, v{VT+3}
        v_and_b32 v{VT+1}, 3, v{VT+1}
        v_lshl_add_u32 v{VT}, v{VT+1}, 3, v{VT+3}
        v_xor_b32 v{VT+1}, 32, v{VT}
        v_xor_b32 v{VT+2}, 64, v{VT}
        v_xor_b32 v{VT+3}, 96, v{VT}
        """)

    def helper(self):
        a = self.a
        a("L_helper:")
        a(f"""
        s_lshl_b32 s{S_D}, s{S_XCD}, 1
        s_add_u32 s{S_D}, s{S_D}, s{S_J}
        s_sub_u32 s{S_D}, s{S_D}, 30
        """)
        self.srd(R_W, P_WO, 640 * 1280)
        for p in range(5):
            a(f"""
            v_add_u32 v12, {p*64}, v1
            v_mul_u32_u24 v13, 205, v12
            v_lshrrev_b32 v13, 11, v13
            v_mul_u32_u24 v14, 10, v13
            v_sub_u32 v14, v12, v14
            v_lshlrev_b32 v14, 4, v14
            v_mul_u32_u24 v13, 1280, v13
            v_add_u32 v{16+p}, v13, v14
            """)
            if p in (1, 2, 3):
                a(f"v_subrev_u32 v{16+p}, {p*1024}, v{16+p}")
        a(f"""
        s_mov_b32 s{S_C}, s{S_WAVE}
        L_H_ld:
        s_mul_i32 s{S_A}, s{S_C}, {32*1280}
        s_mul_i32 s{S_T0}, s{S_D}, 160
        s_add_u32 s{S_A}, s{S_A}, s{S_T0}
        s_mul_i32 s{S_B}, s{S_C}, 5120
        s_mov_b32 m0, s{S_B}
        s_nop 0
        """)
        for p in range(4):
            a(f"buffer_load_dwordx4 v{16+p}, s[{R_W}:{R_W+3}], s{S_A} offen offset:{p*1024} lds")
        a(f"s_add_u32 m0, s{S_B}, 4096\ns_nop 0\nbuffer_load_dwordx4 v20, s[{R_W}:{R_W+3}], s{S_A} offen lds")
        a(f"""
        s_add_u32 s{S_C}, s{S_C}, 8
        s_cmp_lt_u32 s{S_C}, 20
        s_cbranch_scc1 L_H_ld
        v_and_b32 v12, 15, v1
        v_lshrrev_b32 v13, 4, v1
        v_lshrrev_b32 v14, 2, v12
        v_lshl_add_u32 v14, v13, 2, v14
        v_mul_u32_u24 v14, 160, v14
        v_and_b32 v12, 3, v12
        v_lshl_add_u32 v14, v12, 3, v14
        v_lshlrev_b32 v15, 4, v1
        s_waitcnt vmcnt(0)
        s_barrier
        s_mov_b32 s{S_C}, s{S_WAVE}
        L_H_tr:
        s_lshr_b32 s{S_T0}, s{S_C}, 1
        s_mul_i32 s{S_T0}, s{S_T0}, 5
        s_and_b32 s{S_T0+1}, s{S_C}, 1
        s_lshl_b32 s{S_T0+1}, s{S_T0+1}, 1
        s_add_u32 s{S_T0}, s{S_T0}, s{S_T0+1}
        s_add_u32 s{S_T0+1}, s{S_T0}, 1
        s_mul_i32 s{S_T0+2}, s{S_C}, 10
        s_sub_u32 s{S_T0+2}, s{S_T0+2}, 156
        s_add_u32 s{S_T0+3}, s{S_T0+2}, 5
        s_cmp_lt_u32 s{S_C}, 16
        s_cselect_b32 s{S_T0}, s{S_T0}, s{S_T0+2}
        s_cselect_b32 s{S_T0+1}, s{S_T0+1}, s{S_T0+3}
        s_mul_i32 s{S_T0}, s{S_T0}, 2560
        s_mul_i32 s{S_T0+1}, s{S_T0+1}, 2560
        v_add_u32 v12, s{S_T0}, v14
        v_add_u32 v13, s{S_T0+1}, v14
        """)
        for b in range(5):
            a(f"ds_read_b64_tr_b16 {vr(24+4*b,2)}, v12 offset:{b*32}\nds_read_b64_tr_b16 {vr(26+4*b,2)}, v13 offset:{b*32}")
        a(f"""
        s_mul_i32 s{S_T0}, s{S_D}, {5*UW_ST}
        s_lshl_b32 s{S_T0+1}, s{S_C}, 10
        s_add_u32 s{S_T0}, s{S_T0}, s{S_T0+1}
        s_add_u32 s{S_T0}, s{S_T0}, {UW + 49152}
        """)
        for b in range(5):
            a(f"s_waitcnt lgkmcnt({8-2*b})")
            a(f"buffer_store_dwordx4 {vr(24+4*b,4)}, v15, s[{R_WS}:{R_WS+3}], s{S_T0} offen sc1")
            if b < 4:
                a(f"s_add_u32 s{S_T0}, s{S_T0}, {UW_ST}")
        a(f"""
        s_add_u32 s{S_C}, s{S_C}, 8
        s_cmp_lt_u32 s{S_C}, 20
        s_cbranch_scc1 L_H_tr
        s_waitcnt vmcnt(0)
        s_barrier
        """)
        skip = self.if_wave56()
        self.w2_setup()
        self.w2_prefill(8)
        a(f"s_branch L_F_loader\n{skip}:")
        a(f"s_cmp_lt_u32 s{S_WAVE}, 4\ns_cbranch_scc1 L_F_comp\ns_cmp_lg_u32 s{S_WAVE}, 7\ns_cbranch_scc1 L_F_u4")
        a(f"s_mul_i32 s{S_T0}, s{S_D}, {FS}\ns_add_u32 s{S_T0}, s{S_T0}, {F_WOT}")
        self.flag_store(S_T0, 12)
        self.stamp(14, 12)
        a("s_branch L_F_poller")

    F_WOT_REG = 172

    def uw_srd(self):
        a = self.a
        a(f"""
        s_mul_i32 s{S_T0}, s{S_DTILE}, 5
        s_add_u32 s{S_D}, s{S_T0}, s{S_WAVE}
        s_mul_i32 s{S_T0}, s{S_D}, {UW_ST}
        s_add_u32 s{S_T0}, s{S_T0}, {UW}
        """)
        self.srd(R_P, P_WS, UW_ST, off_s=S_T0)

    def wot_preload(self, VL):
        a = self.a
        for k in range(20):
            if k % 4 == 0:
                a(f"s_mov_b32 s{S_C}, {49152 + k*1024}")
            a(f"buffer_load_dwordx4 {vr(self.F_WOT_REG+4*k,4)}, v{VL}, s[{R_P}:{R_P+3}], s{S_C} offen offset:{(k%4)*1024} sc1")

    def f0_barrier(self):
        lab = self.a.label("f0")
        self.a(f"s_cmp_eq_u32 s{S_FROMA}, 1\ns_cbranch_scc1 {lab}\ns_barrier\n{lab}:")

    def final(self):
        a = self.a
        a("L_F_comp:")
        if self.stop == "phase1":
            a("s_branch L_end")
        PF, WF, ACC, ACC4, U4, WOT = 64, 112, 144, 160, 164, 172
        NPF = 3
        pre = True
        VT, VL, VU4, VT2, GV, BV, VGH, VG8 = 8, 12, 13, 16, 20, 24, 28, 32
        self.uw_srd()
        self.srd(R_M, P_B2, 4096)
        self.srd(R_OUT, P_OUT, 2048 * 1280)
        self.tr_addr(4)
        a(f"""
        v_lshlrev_b32 v{VL}, 4, v1
        v_add_u32 v{VU4}, 0x20000, v{VL}
        v_lshlrev_b32 v5, 3, v1
        v_and_b32 v2, 15, v1
        v_lshlrev_b32 v3, 1, v2
        v_lshlrev_b32 v2, 2, v2
        """)
        SB = S_MSK
        for b in range(4):
            a(f"""
            s_add_u32 s{SB+b}, s{S_WAVE}, {b}
            s_and_b32 s{SB+b}, s{SB+b}, 3
            s_lshl_b32 s{S_T0}, s{SB+b}, 5
            v_xor_b32 v{VT+b}, s{S_T0}, v4
            s_lshl_b32 s{S_T0+1}, s{S_ST}, 7
            s_add_u32 s{S_T0}, s{S_T0}, s{S_T0+1}
            buffer_load_ushort v{BV+b}, v3, s[{R_M}:{R_M+3}], s{S_T0} offen
            v_add_u32 v{VT2+b}, 0x10000, v{VT+b}
            s_lshl_b32 s{S_T0}, s{SB+b}, 12
            v_add_u32 v{VG8+b}, s{S_T0}, v5
            s_add_u32 s{S_T0}, s{S_T0}, 0x10000
            v_add_u32 v{VGH+b}, s{S_T0}, v{VL}
            """)
        for r in range(16):
            a(f"v_mov_b32 v{ACC+r}, 0")
        for r in range(4):
            a(f"v_mov_b32 v{ACC4+r}, 0")
        a(f"s_lshl_b32 s{S_A}, s{S_ST}, 8\ns_add_u32 s{S_A}, s{S_A}, {G_OFF}")
        self.f_perm()
        nstream = 12 if pre else 17

        def next_sc(step):
            if step < 12:
                return self.perm_next(S_C, S_PERM, 4096)
            return f"s_mov_b32 s{S_C}, {step*4096}\n"
        a(f"s_cmp_eq_u32 s{S_FROMA}, 1\ns_cbranch_scc1 L_F_nowot\ns_barrier")
        self.wot_preload(VL)
        a("L_F_nowot:")
        a(next_sc(0))
        a("s_barrier")
        for t in range(NPF):
            for ks in range(4):
                a(f"buffer_load_dwordx4 {vr(PF+16*t+4*ks,4)}, v{VL}, s[{R_P}:{R_P+3}], s{S_C} offen offset:{ks*1024} sc1")
            a(next_sc(t + 1))
            if t == 0:
                a("s_barrier")
            if t == NPF - 1:
                for b in range(4):
                    a(f"s_lshl_b32 s{S_T0}, s{SB+b}, 6\ns_add_u32 s{S_T0}, s{S_T0}, s{S_A}")
                    a(f"buffer_load_dword v{GV+b}, v2, s[{R_WS}:{R_WS+3}], s{S_T0} offen sc1")

        mid = "s_nop 7\n"
        for b in range(4):
            mid += f"v_lshlrev_b32 v{BV+b}, 16, v{BV+b}\nv_sub_f32 v{GV+b}, 1.0, v{GV+b}\n"
        blocks = [(ACC + 4 * b, b) for b in range(4)] + [(ACC4, 0)]
        for r0, b in blocks:
            for k in range(4):
                mid += f"v_add_f32 v{r0+k}, v{BV+b}, v{r0+k}\n"
        for r0, b in blocks:
            for k in range(4):
                mid += f"v_mul_f32 v{r0+k}, v{GV+b}, v{r0+k}\n"
        mid += "s_nop 1\n"

        stages = []
        for t in range(17):
            slot = t % 8
            hi = slot >= 4
            uses = []
            for ks in range(4):
                for b in range(4):
                    g = ks * 4 + b
                    wb = WF + 4 * (g % 8)
                    reads = []
                    u4 = U4 + 4 * (ks & 1)
                    if b == 0:
                        reads.append((f"u{ks}", f"ds_read_b128 {vr(u4,4)}, v{VU4} offset:{slot*4096 + ks*1024}"))
                    if t < 12:
                        off = (slot & 3) * 16384 + ks * 4096
                        va = (VT2 if hi else VT) + b
                        reads += [(f"w{g}a", f"ds_read_b64_tr_b16 {vr(wb,2)}, v{va} offset:{off}"),
                                  (f"w{g}b", f"ds_read_b64_tr_b16 {vr(wb+2,2)}, v{va} offset:{off+2048}")]
                    elif t < 16:
                        assert hi
                        off = (slot & 3) * 16384 + ks * 1024
                        reads += [(f"w{g}b", f"ds_read_b128 {vr(wb,4)}, v{VGH+b} offset:{off}")]
                    else:
                        off = (slot & 3) * 16384 + ks * 1024
                        assert not hi
                        reads += [(f"w{g}a", f"ds_read_b64 {vr(wb,2)}, v{VG8+b} offset:{off}"),
                                  (f"w{g}b", f"ds_read_b64 {vr(wb+2,2)}, v{VG8+b} offset:{off+512}")]
                    acc = vr(ACC + 4 * b, 4)
                    ring = t < nstream
                    pf = vr(PF + 16 * (t % NPF) + 4 * ks, 4) if ring else vr(WOT + 16 * (t - 12) + 4 * ks, 4)
                    mf = [f"v_mfma_f32_16x16x32_bf16 {acc}, {pf}, {vr(wb,4)}, {acc}"]
                    if b == 0:
                        mf.append(f"v_mfma_f32_16x16x32_bf16 {vr(ACC4,4)}, {vr(u4,4)}, {vr(wb,4)}, {vr(ACC4,4)}")
                    d = dict(reads=reads, need=[f"w{g}b"], mf=mf)
                    if b == 0 and ring:
                        k = t * 4 + ks
                        n = min(k + 4 * NPF - 1, 4 * nstream - 1) - k
                        if t < NPF:
                            n += 4
                        d["vm"] = n
                    if b == 3 and t + NPF < nstream:
                        d["after"] = f"buffer_load_dwordx4 {pf}, v{VL}, s[{R_P}:{R_P+3}], s{S_C} offen offset:{ks*1024} sc1"
                        if ks == 3 and t + NPF + 1 < nstream:
                            d["after"] += "\n" + next_sc(t + NPF + 1)
                    if t == 12 and g == 0:
                        d["before"] = mid
                    uses.append(d)
            stages.append(dict(uses=uses, bar="s_barrier" if t else ""))
        nd = self.o.get("nodrain")
        LF = self.o.get("LF", 6)
        self.pipeline(stages, LF, (16 - LF) if nd else 13, drain=not nd, wait_every=self.o.get('we', 2))
        self.stamp(8, 2)
        a(f"""
        v_and_b32 v2, 15, v1
        v_mul_u32_u24 v2, 1280, v2
        v_lshrrev_b32 v3, 4, v1
        v_lshl_add_u32 v2, v3, 3, v2
        s_mul_i32 s{S_A}, s{S_ST}, {64*1280}
        s_lshl_b32 s{S_T0+1}, s{S_D}, 5
        s_add_u32 s{S_B}, s{S_A}, s{S_T0+1}
        s_mul_i32 s{S_T0+1}, s{S_DTILE}, 160
        s_add_u32 s{S_A}, s{S_A}, s{S_T0+1}
        s_add_u32 s{S_A}, s{S_A}, 128
        """)
        for r, b in blocks:
            a(f"s_mul_i32 s{S_T0}, s{SB+b}, {16*1280}\ns_add_u32 s{S_T0}, s{S_T0}, s{S_A if r == ACC4 else S_B}")
            a(f"v_cvt_pk_bf16_f32 v{r}, v{r}, v{r+1}\nv_cvt_pk_bf16_f32 v{r+1}, v{r+2}, v{r+3}")
            a(f"buffer_store_dwordx2 {vr(r,2)}, v2, s[{R_OUT}:{R_OUT+3}], s{S_T0} offen {['', 'sc1', 'nt', 'sc0 sc1'][self.o.get('osc', 0)]}")
        if self.stamps or self.o.get("dbg"):
            a("s_waitcnt vmcnt(0)")
            self.stamp(9, 2)
        if self.o.get("calib"):
            a(f"""
            L_cal:
            s_memrealtime s[96:97]
            s_waitcnt lgkmcnt(0)
            s_sub_u32 s96, s96, s98
            s_cmp_lt_u32 s96, {self.o.get("calib")*100}
            s_cbranch_scc1 L_cal
            """)
        a(f"s_or_b32 s{S_T0}, s2, s{S_WAVE}\ns_cmp_lg_u32 s{S_T0}, 0\ns_cbranch_scc1 L_end\ns_mov_b32 s{S_T0}, 0")
        self.flag_store(S_T0, 4)
        a("s_branch L_end")

        a("L_F_u4:")
        if self.stop == "phase1":
            a("s_branch L_end")
        a(f"""
        v_lshlrev_b32 v{VL}, 4, v1
        s_mul_i32 s{S_C}, s{S_DTILE}, {5*UW_ST}
        s_add_u32 s{S_C}, s{S_C}, {UW + 4*UW_ST}
        """)
        self.f_perm()
        self.f0_barrier()
        a("s_barrier")

        def u4_issue(iv):
            if iv < 12:
                a(self.perm_next(S_T0, S_PERM, 4096) + f"s_mov_b32 m0, {0x20000 + (iv % 8)*4096:#x}\ns_add_u32 s{S_T0}, s{S_T0}, s{S_C}")
            else:
                a(f"s_mov_b32 m0, {0x20000 + (iv % 8)*4096:#x}\ns_add_u32 s{S_T0}, s{S_C}, {iv*4096}")
            for i in range(4):
                a(f"buffer_load_dwordx4 v{VL}, s[{R_WS}:{R_WS+3}], s{S_T0} offen offset:{i*1024} sc1 lds")
        order = []
        for iv in range(8):
            u4_issue(iv)
            order.append(iv)
            if iv == 2:
                a("s_waitcnt vmcnt(8)\ns_barrier")
        for tb in range(1, 17):
            a(f"s_waitcnt vmcnt({4*len(order[order.index(tb)+1:])})\ns_barrier")
            iv = tb + (6 if self.o.get("nodrain") else 7)
            if 8 <= iv <= 16:
                u4_issue(iv)
                order.append(iv)
        a("s_branch L_end")

        a("L_F_loader:")
        if self.stop == "phase1":
            a("s_branch L_end")
        a(f"v_lshlrev_b32 v{VL}, 4, v1")
        self.f0_barrier()
        a("s_barrier")
        a(f"""
        s_sub_u32 s{S_T0}, s{S_WAVE}, 5
        s_lshl_b32 s{S_T0}, s{S_T0}, 1
        s_lshl_b32 s{S_T0+1}, s{S_ST}, 2
        s_add_u32 s{S_T0+1}, s{S_T0+1}, s{S_T0}
        s_mul_i32 s{S_C}, s{S_T0+1}, {GO_ST}
        s_add_u32 s{S_C}, s{S_C}, {GO}
        s_lshl_b32 s{S_D}, s{S_T0}, 12
        """)
        order = list(range(8))
        for tb in range(17):
            after = [x for x in order[order.index(tb) + 1:]]
            n = 8 * len(after)
            a(f"s_waitcnt vmcnt({min(n,63)})\ns_barrier")
            t = tb - 1
            tw = t - (1 if self.o.get("nodrain") else 0)
            if 0 <= tw <= 3:
                self.w2_issue()
                order.append(tw + 8)
            if 8 <= t <= 12:
                iv = t + 4
                g = iv - 12
                for s2 in range(2):
                    a(f"s_add_u32 m0, s{S_D}, {(iv % 8)*16384 + s2*4096}\ns_add_u32 s{S_T0}, s{S_C}, {s2*GO_ST + g*4096}")
                    for i in range(4):
                        a(f"buffer_load_dwordx4 v{VL}, s[{R_WS}:{R_WS+3}], s{S_T0} offen offset:{i*1024} sc1 lds")
                order.append(iv)
        a("s_branch L_end")
        a("L_F_poller:")
        if self.stop == "phase1":
            a("s_branch L_end")
        a(f"s_cmp_eq_u32 s{S_FROMA}, 1\ns_cbranch_scc1 L_F_pnowot")
        a(f"s_mul_i32 s{S_T0}, s{S_DTILE}, {FS}\ns_add_u32 s{S_T0}, s{S_T0}, {F_WOT}\nv_mov_b32 v2, s{S_T0}")
        self.poll([2], 4)
        a("s_barrier\nL_F_pnowot:")
        a(f"""
        s_mul_i32 s{S_T0}, s{S_DTILE}, 5
        s_lshr_b32 s{S_T0+1}, s{S_T0}, 3
        s_add_u32 s{S_T0}, s{S_T0}, 4
        s_lshr_b32 s{S_T0}, s{S_T0}, 3
        s_mul_i32 s{S_T0}, s{S_T0}, 24
        s_mul_i32 s{S_T0+1}, s{S_T0+1}, 24
        v_and_b32 v2, 31, v1
        v_min_u32 v2, 23, v2
        v_add_u32 v3, s{S_T0}, v2
        v_add_u32 v2, s{S_T0+1}, v2
        v_cmp_gt_u32 vcc, 32, v1
        s_mul_i32 s{S_T0}, s{S_DTILE}, {FS}
        s_add_u32 s{S_T0}, s{S_T0}, {F_WOT}
        v_cndmask_b32 v2, v2, v3, vcc
        v_mul_u32_u24 v2, {FS}, v2
        v_add_u32 v2, {F_U}, v2
        v_mov_b32 v3, s{S_T0}
        v_cmp_eq_u32 vcc, 63, v1
        s_nop 1
        v_cndmask_b32 v2, v2, v3, vcc
        """)
        self.poll([2], 4)
        self.stamp(6, 4)
        a("s_barrier")
        a(f"""
        v_and_b32 v2, 7, v1
        s_lshr_b32 s{S_T0}, s{S_ST}, 1
        s_lshl_b32 s{S_T0}, s{S_T0}, 3
        v_add_u32 v2, s{S_T0}, v2
        v_mul_u32_u24 v2, {FS}, v2
        v_add_u32 v2, {F_GO}, v2
        """)
        gp = self.o.get("gopoll", 9)
        for tb in range(gp):
            a("s_barrier")
            if tb == 1:
                a(f"s_cmp_eq_u32 s{S_FROMA}, 1\ns_cbranch_scc0 L_F_nogo")
                a(f"s_lshl_b32 s{S_T0}, s{S_MT}, 3\ns_add_u32 s{S_T0}, s{S_T0}, s{S_HG}\ns_mul_i32 s{S_T0}, s{S_T0}, {FS}\ns_add_u32 s{S_T0}, s{S_T0}, {F_GO}")
                self.flag_store(S_T0, 6)
                a("L_F_nogo:")
            self.stamp(32 + tb, 4)
        self.poll([2], 4)
        self.stamp(7, 4)
        for tb in range(gp, 17):
            a("s_barrier")
            self.stamp(32 + tb, 4)
        a("L_end:")
        if "probe" in self.o or "pc1" in self.o:
            a("""
            s_cmp_eq_u32 s94, 0
            s_cbranch_scc1 L_exit
            L_prb:
            s_memrealtime s[96:97]
            s_waitcnt lgkmcnt(0)
            s_sub_u32 s96, s96, s98
            s_cmp_lt_i32 s96, 4000
            s_cbranch_scc1 L_prb
            """)
        if self.stamps:
            a(f"""
            s_lshl_b32 s{S_T0}, s2, 3
            s_add_u32 s{S_T0}, s{S_T0}, s{S_WAVE}
            s_lshl_b32 s{S_T0}, s{S_T0}, 9
            s_add_u32 s{S_T0}, s{S_T0}, {STAMP}
            v_lshlrev_b32 v2, 3, v1
            buffer_store_dwordx2 v[254:255], v2, s[{R_WS}:{R_WS+3}], s{S_T0} offen
            """)
        a("L_exit:\ns_endpgm")

    def build(self, header):
        a = self.a
        self.prologue()
        self.role_a()
        self.role_b()
        self.helper()
        self.final()
        body = a.text()
        out = header
        out += f"; @launch grid=(256,1,1) block=(512,1,1) lds={LDS_BYTES}\n"
        out += f'.amdgcn_target "amdgcn-amd-amdhsa--gfx950"\n.text\n.globl {KNAME}\n.p2align 8\n.type {KNAME},@function\n{KNAME}:\n'
        out += body
        out += f""".section .rodata,"a"
.p2align 6
.amdhsa_kernel {KNAME}
  .amdhsa_next_free_vgpr 256
  .amdhsa_next_free_sgpr 102
  .amdhsa_accum_offset 256
  .amdhsa_group_segment_fixed_size 0
  .amdhsa_kernarg_size 96
  .amdhsa_user_sgpr_count 2
  .amdhsa_user_sgpr_kernarg_segment_ptr 1
  .amdhsa_system_sgpr_workgroup_id_x 1
  .amdhsa_float_denorm_mode_32 3
.end_amdhsa_kernel
"""
        return out


def header():
    ref = open("gated_mix__linear_attn_block__mixer_token_mlp__prompt.s.ref").read().split("\n")
    h = []
    for l in ref:
        if l.startswith("; Override"):
            break
        h.append(l)
    return "\n".join(h) + "\n"


if __name__ == "__main__":
    import argparse
    p = argparse.ArgumentParser()
    p.add_argument("-o", default="gated_mix__linear_attn_block__mixer_token_mlp__prompt.s")
    p.add_argument("--stamps", action="store_true")
    p.add_argument("--stop", default=None)
    p.add_argument("--opt", default="")
    args = p.parse_args()
    opts = {k: (int(v) if v != '' else 1) for k, _, v in (x.partition('=') for x in args.opt.split(',') if x)}
    g = Gen(stamps=args.stamps, stop=args.stop, opts=opts)
    open(args.o, "w").write(g.build(header()))
    print("wrote", args.o)
```

```python
import sys

KNAME = "gated_mix__linear_attn_block__mixer_token_mlp__prompt_kernel"

import os
FS = int(os.environ.get('FS', 128))
F_LN, F_KV, F_U, F_GO, F_WOT = 0x1000, 0x5000, 0x9000, 0xD000, 0x11000
G_OFF = 0x12000
STAMP = 0x900000
KVP = 0x20000
KVP_ST = 7168
HT = 0x100000
UW = 0x380000
UW_ST = 69632
GO = 0x640000
GO_ST = 20480
WS_USED = 0xA00000
TAG_INC = 0x9E3779B9
SPIN_LIMIT = 1 << 17

LDS_BYTES = 163840
LNBUF = 0
LN_ST = 1312
LNG = LNBUF + 32 * LN_ST
A_SLOT = 49152
A_WOFF = 16384
EXCH_ST = 14336
EXCH = 131072 - 4 * EXCH_ST
KVT = 147456
ZH = KVT + 11 * 1024

LOG2E = 0x3FB8AA3B


def f2u(x):
    import struct
    return struct.unpack("<I", struct.pack("<f", x))[0]


class Asm:
    def __init__(self):
        self.L = []
        self.nlab = 0

    def __call__(self, s):
        for line in s.split("\n"):
            line = line.strip()
            if line:
                self.L.append(("    " if not line.endswith(":") else "") + line)

    def label(self, base):
        self.nlab += 1
        return f"L{base}_{self.nlab}"

    def text(self):
        return "\n".join(self.L) + "\n"


def vr(a, n=1):
    return f"v{a}" if n == 1 else f"v[{a}:{a+n-1}]"


def sr(a, n=1):
    return f"s{a}" if n == 1 else f"s[{a}:{a+n-1}]"


P_X, P_WQKV, P_WO, P_BX, P_W1, P_B1, P_W2, P_B2 = 4, 6, 8, 10, 12, 14, 16, 18
P_GATE, P_OUT, P_DBG, P_WS = 20, 22, 24, 26
S_TAG, S_WAVE = 28, 29
S_XCD, S_J = 30, 31
R_WS, R_X, R_W, R_P, R_W2, R_M, R_OUT = 32, 36, 40, 44, 48, 52, 56
S_T0 = 60
S_MT, S_HG, S_DT, S_FT, S_KST, S_PAR = 70, 71, 72, 73, 74, 75
S_ST, S_DTILE = 76, 77
S_CNT = 78
S_A, S_B, S_C, S_D = 80, 81, 82, 83
S_MSK = 84
S_K0 = 90
S_STMP = 96
S_PERM = 66
S_M = 79
S_FROMA = 95


def lead_perm(n, nshare, m, lead=2):
    order = list(range(n))
    i = m
    while i + lead < n:
        order[i:i + lead + 1] = [order[i + lead]] + order[i:i + lead]
        i += nshare
    return order


class Gen:
    def __init__(self, stamps=False, stop=None, opts=None):
        self.o = opts or {}
        self.a = Asm()
        self.stamps = stamps
        self.stop = stop

    def srd(self, dst, ptr, nbytes, off_s=None):
        a = self.a
        if off_s is None:
            a(f"s_mov_b32 s{dst}, s{ptr}\ns_and_b32 s{dst+1}, s{ptr+1}, 0xffff")
        else:
            a(f"s_add_u32 s{dst}, s{ptr}, s{off_s}\ns_addc_u32 s{dst+1}, s{ptr+1}, 0\ns_and_b32 s{dst+1}, s{dst+1}, 0xffff")
        a(f"s_mov_b32 s{dst+2}, {nbytes:#x}\ns_mov_b32 s{dst+3}, 0x20000")

    def stamp(self, k, vtmp, dyn=None):
        if "pc1" in self.o:
            if dyn is None and k in (self.o["pc1"], self.o["pc2"]):
                lab = self.a.label("npr")
                self.a(f"s_cmp_lg_u32 s{S_FROMA}, {self.o.get('prole', 0)}\ns_cbranch_scc1 {lab}")
                if k == self.o["pc1"]:
                    self.a(f"s_memtime s[92:93]\ns_waitcnt lgkmcnt(0)")
                else:
                    self.a(f"s_memtime s[96:97]\ns_waitcnt lgkmcnt(0)\ns_sub_u32 s92, s96, s92\ns_lshr_b32 s92, s92, 4\ns_add_u32 s98, s98, s92\ns_mov_b32 s94, 1")
                self.a(f"{lab}:")
            return
        if "probe" in self.o:
            role = self.o.get("prole")
            if k == self.o["probe"] and dyn is None:
                lab = self.a.label("npr")
                if role is not None and k != 0:
                    self.a(f"s_cmp_lg_u32 s{S_FROMA}, {role}\ns_cbranch_scc1 {lab}")
                self.a(f"s_memrealtime s[98:99]\ns_mov_b32 s94, 1\ns_waitcnt lgkmcnt(0)\n{lab}:")
            return
        if self.o.get("dbg"):
            m = {0: 0, 11: 1, 1: 2, 2: 3, 3: 4, 4: 5, 6: 6, 9: 7}
            mA = {0: 0, 1: 1, 2: 2, 3: 3, 4: 4, 5: 5, 6: 6, 9: 7}
            if dyn is not None:
                return
            a = self.a
            for wg, mp, base in ((8, m, 0), (12, mA, 8)):
                if k in mp:
                    lab = a.label("nd")
                    a(f"s_cmp_lg_u32 s2, {wg}\ns_cbranch_scc1 {lab}")
                    a(f"s_memrealtime s[{S_STMP}:{S_STMP+1}]\ns_waitcnt lgkmcnt(0)")
                    a(f"v_mov_b32 v{vtmp}, s{S_STMP}\nv_mov_b32 v{vtmp+2}, {4*(base+mp[k])}")
                    a(f"s_mov_b64 exec, 1\nglobal_store_dword v{vtmp+2}, v{vtmp}, s[{P_DBG}:{P_DBG+1}]\ns_mov_b64 exec, -1\n{lab}:")
            return
        if not self.stamps:
            return
        a = self.a
        a(f"s_memrealtime s[{S_STMP}:{S_STMP+1}]\ns_memtime s[100:101]")
        ln = str(k)
        if dyn is not None:
            a(f"s_add_u32 m0, s{dyn}, {k}")
            ln = "m0"
        a(f"s_waitcnt lgkmcnt(0)\nv_writelane_b32 v254, s{S_STMP}, {ln}\nv_writelane_b32 v255, s100, {ln}")

    def perm_setup(self, s_m, n, nshare, dst, enable):
        a = self.a
        def pk(o):
            v = 0
            for i, x in enumerate(o):
                v |= x << (4 * i)
            return v & 0xffffffff, v >> 32
        lo, hi = pk(list(range(n)))
        a(f"s_mov_b32 s{dst}, {lo:#x}\ns_mov_b32 s{dst+1}, {hi:#x}")
        if not enable:
            return
        for m in range(nshare):
            lo, hi = pk(lead_perm(n, nshare, m, enable))
            a(f"s_cmp_eq_u32 s{s_m}, {m}\ns_cselect_b32 s{dst}, {lo:#x}, s{dst}\ns_cselect_b32 s{dst+1}, {hi:#x}, s{dst+1}")

    def perm_next(self, dst, src, mul):
        t = f"s_and_b32 s{dst}, s{src}, 15\ns_lshr_b64 s[{src}:{src+1}], s[{src}:{src+1}], 4\n"
        if mul & (mul - 1) == 0:
            t += f"s_lshl_b32 s{dst}, s{dst}, {mul.bit_length()-1}\n"
        else:
            t += f"s_mul_i32 s{dst}, s{dst}, {mul}\n"
        return t

    def poll(self, voffs, vtmp):
        a = self.a
        lp, dn = a.label("poll"), a.label("pdone")
        n = len(voffs)

        def ld(k):
            for i, vo in enumerate(voffs):
                a(f"buffer_load_dword v{vtmp+k*n+i}, v{vo}, s[{R_WS}:{R_WS+3}], 0 offen sc1")

        def chk(k):
            a(f"v_cmp_ne_u32 vcc, s{S_TAG}, v{vtmp+k*n}")
            for i in range(1, n):
                a(f"v_cmp_ne_u32 s[{S_T0}:{S_T0+1}], s{S_TAG}, v{vtmp+k*n+i}\ns_nop 1\ns_or_b64 vcc, vcc, s[{S_T0}:{S_T0+1}]")
            a(f"s_nop 1\ns_cmp_eq_u64 vcc, 0\ns_cbranch_scc1 {dn}")
        if not self.o.get("pp"):
            a(f"s_mov_b32 s{S_CNT}, 0\n{lp}:")
            ld(0)
            a("s_waitcnt vmcnt(0)")
            chk(0)
            a(f"s_add_u32 s{S_CNT}, s{S_CNT}, 1\ns_cmp_lt_u32 s{S_CNT}, {SPIN_LIMIT}\ns_cbranch_scc0 {dn}\ns_sleep 1\ns_branch {lp}\n{dn}:")
            return
        sl = f"s_sleep {self.o['pp'] - 1}\n" if self.o["pp"] > 1 else ""
        a(f"s_mov_b32 s{S_CNT}, 0")
        ld(0)
        a(f"{sl}{lp}:")
        ld(1)
        a(f"s_waitcnt vmcnt({n})")
        chk(0)
        ld(0)
        a(f"s_waitcnt vmcnt({n})")
        chk(1)
        a(f"s_add_u32 s{S_CNT}, s{S_CNT}, 1\ns_cmp_lt_u32 s{S_CNT}, {SPIN_LIMIT}\ns_cbranch_scc1 {lp}\n{dn}:")

    def flag_store(self, s_off, vtmp):
        a = self.a
        a(f"v_mov_b32 v{vtmp}, s{S_TAG}\nv_mov_b32 v{vtmp+1}, 0\ns_mov_b64 exec, 1")
        a(f"buffer_store_dword v{vtmp}, v{vtmp+1}, s[{R_WS}:{R_WS+3}], s{s_off} offen sc1\ns_mov_b64 exec, -1")

    def pipeline(self, stages, L, gstar, drain=True, wait_every=2):
        a = self.a
        seq = [(si, gi, u) for si, st in enumerate(stages) for gi, u in enumerate(st["uses"])]
        issued = []
        state = dict(nxt=0, opened=-1)
        pend = []

        def collect(lim):
            while state["nxt"] < len(seq) and state["nxt"] <= lim and seq[state["nxt"]][0] <= state["opened"]:
                si_, _, u_ = seq[state["nxt"]]
                for name, txt in u_["reads"]:
                    pend.append((f"{si_}:{name}", txt))
                state["nxt"] += 1
                if seq[state["nxt"] - 1][1] == len(stages[si_]["uses"]) - 1 and si_ + 1 < len(stages):
                    state["defer"] = list(stages[si_ + 1].get("pre", []))

        def emit(n):
            for _ in range(min(n, len(pend))):
                name, txt = pend.pop(0)
                a(txt)
                if name:
                    issued.append(name)

        a(stages[0]["bar"])
        state["opened"] = 0
        collect(L - 1)
        emit(len(pend))
        n_real = sum(len(st["uses"]) for st in stages if not st.get("virtual"))
        covered = -1
        for f in range(n_real):
            si, gi, u = seq[f]
            nuse = len(stages[si]["uses"])
            if gi == 0 and stages[si].get("head"):
                assert not pend, pend
                a(stages[si]["head"])
                covered = -1
            if gi == gstar and si + 1 < len(stages):
                emit(len(pend))
                for x in state.pop("defer", []):
                    a(x)
                if drain:
                    a("s_waitcnt lgkmcnt(0)")
                    covered = len(issued) - 1
                a(stages[si + 1]["bar"])
                pend.extend((None, x) for x in stages[si + 1].get("bar_pend", []))
                state["opened"] = si + 1
                collect(f + L - 1)
            def lastidx(ff):
                s_, _, uu = seq[ff]
                return max(len(issued) - 1 - issued[::-1].index(f"{s_}:{nm}") for nm in uu["need"])
            w = []
            if lastidx(f) > covered:
                tgt = lastidx(f)
                for ff in range(f + 1, min(f + wait_every, n_real)):
                    if seq[ff][0] != si:
                        break
                    try:
                        tgt = max(tgt, lastidx(ff))
                    except ValueError:
                        break
                n = len(issued) - 1 - tgt
                assert n <= 15, n
                w.append(f"lgkmcnt({n})")
                covered = tgt
            if u.get("vm") is not None:
                npv = sum(1 for nm_, t_ in pend if t_.strip().startswith("buffer_load"))
                w.insert(0, f"vmcnt({u['vm'] - npv})")
            if w:
                a("s_waitcnt " + " ".join(w))
            if u.get("before"):
                a(u["before"])
            if state.get("defer") and not pend:
                n_ = self.o.get("npre", 7)
                pend.extend((None, x) for x in state["defer"][:n_])
                state["defer"] = state["defer"][n_:]
            collect(f + L)
            if state.get("mix"):
                k_ = state.pop("mix")
                head_, rest_ = pend[:k_], pend[k_:]
                pend[:] = [x for pr in zip(head_, rest_) for x in pr] + head_[len(rest_):] + rest_[len(head_):]
            nm_ = len(u["mf"])
            for k, m in enumerate(u["mf"]):
                a(m)
                left = nm_ - k
                if drain and gi >= gstar:
                    left += sum(len(uu["mf"]) for uu in stages[si]["uses"][gi + 1:])
                    extra = 2 * (nuse - 1 - gi)
                    emit(-(-(len(pend) + extra) // left) if left > 1 else len(pend))
                else:
                    emit(-(-len(pend) // left))
            if u.get("after"):
                items = [x for x in u["after"].split("\n") if x.strip()]
                if gi == nuse - 1:
                    for x in items:
                        a(x)
                else:
                    assert not pend
                    pend.extend((None, x) for x in items)
                    state["mix"] = len(items)
            if gi == nuse - 1 and stages[si].get("tail"):
                a(stages[si]["tail"])

    def prologue(self):
        a = self.a
        a(f"""
        s_cmp_ge_u32 s2, 256
        s_cbranch_scc1 L_exit
        {"v_mov_b32 v254, 0" if self.stamps else ""}
        {"v_mov_b32 v255, 0" if self.stamps else ""}
        {"s_memrealtime s[98:99]" if self.o.get("calib") or "pc1" in self.o else ""}
        {"s_mov_b32 s94, 0" if "probe" in self.o or "pc1" in self.o else ""}
        s_load_dwordx16 s[4:19], s[0:1], 0
        s_load_dwordx8 s[20:27], s[0:1], 64
        v_and_b32 v1, 63, v0
        v_lshrrev_b32 v2, 6, v0
        s_and_b32 s{S_XCD}, s2, 7
        v_readfirstlane_b32 s{S_WAVE}, v2
        s_lshr_b32 s{S_J}, s2, 3
        s_waitcnt lgkmcnt(0)
        s_load_dword s{S_TAG}, s[{P_WS}:{P_WS+1}], 0
        """)
        self.srd(R_WS, P_WS, WS_USED)
        self.srd(R_X, P_X, 2048 * 1280)
        self.srd(R_W2, P_W2, 1536 * 4096)
        if self.stamps or self.o.get("dbg") or "probe" in self.o:
            a(f"s_cmp_lg_u32 s{S_WAVE}, 0\ns_cbranch_scc1 L_nost0")
            self.stamp(0, 4)
            a("L_nost0:")
        if self.o.get("tlb"):
            self.tlb_warm()
        if self.o.get("pf_code"):
            self.code_prefetch()
        if self.o.get("prio"):
            a(f"""
            s_sub_u32 s{S_T0}, s{S_WAVE}, 4
            s_cmp_lt_u32 s{S_T0}, 3
            s_cbranch_scc1 L_noprio
            s_setprio 3
            L_noprio:
            """)
        a(f"""
        s_lshr_b32 s{S_T0}, s{S_XCD}, 1
        s_lshl_b32 s{S_T0}, s{S_T0}, 3
        s_lshr_b32 s{S_ST}, s{S_J}, 2
        s_add_u32 s{S_ST}, s{S_ST}, s{S_T0}
        s_and_b32 s{S_T0}, s{S_XCD}, 1
        s_lshl_b32 s{S_T0}, s{S_T0}, 2
        s_and_b32 s{S_DTILE}, s{S_J}, 3
        s_add_u32 s{S_DTILE}, s{S_DTILE}, s{S_T0}
        s_cmp_lt_u32 s{S_XCD}, 4
        s_cbranch_scc1 L_roleB
        """)

    V_W2 = 240

    def f_perm(self):
        a = self.a
        a(f"s_lshl_b32 s{S_M}, s{S_DTILE}, 1\ns_add_u32 s{S_M}, s{S_M}, s{S_ST}\ns_and_b32 s{S_M}, s{S_M}, 7")
        self.perm_setup(S_M, 12, 8, S_PERM, self.o.get("rotF"))

    def w2_setup(self):
        a = self.a
        V = self.V_W2
        self.f_perm()
        a(f"""
        v_lshrrev_b32 v{V}, 3, v1
        v_lshrrev_b32 v{V+1}, 4, v1
        v_lshlrev_b32 v{V+1}, 1, v{V+1}
        v_and_b32 v{V+2}, 7, v1
        v_xor_b32 v{V+1}, v{V+1}, v{V+2}
        v_lshlrev_b32 v{V+1}, 4, v{V+1}
        v_lshl_add_u32 v{V}, v{V}, 12, v{V+1}
        v_add_u32 v{V+1}, {32768-1024}, v{V}
        v_add_u32 v{V+2}, {2*(32768-1024)}, v{V}
        v_add_u32 v{V+3}, {3*(32768-1024)}, v{V}
        s_sub_u32 s{S_T0}, s{S_WAVE}, 5
        s_lshl_b32 s{S_B}, s{S_T0}, 13
        s_lshl_b32 s{S_A}, s{S_T0}, 18
        s_lshl_b32 s{S_T0}, s{S_ST}, 7
        s_add_u32 s{S_A}, s{S_A}, s{S_T0}
        """)

    def w2_issue(self):
        a = self.a
        V = self.V_W2
        a(self.perm_next(S_T0, S_PERM, 128 * 4096))
        a(f"s_add_u32 s{S_T0}, s{S_T0}, s{S_A}")
        for g in range(2):
            a(f"s_add_u32 m0, s{S_B}, {g*4096}")
            a(f"s_add_u32 s{S_T0}, s{S_T0}, {g*4*32768}")
            for i in range(4):
                a(f"buffer_load_dwordx4 v{V+i}, s[{R_W2}:{R_W2+3}], s{S_T0} offen offset:{i*1024} lds")
        a(f"s_add_u32 s{S_B}, s{S_B}, 16384\ns_and_b32 s{S_B}, s{S_B}, 0x1ffff")

    def w2_prefill(self, n):
        if n == 0:
            return
        a = self.a
        lp = a.label("pf")
        a(f"s_mov_b32 s{S_C}, 0\n{lp}:")
        self.w2_issue()
        a(f"s_add_u32 s{S_C}, s{S_C}, 1\ns_cmp_lt_u32 s{S_C}, {n}\ns_cbranch_scc1 {lp}")

    def if_wave56(self):
        a = self.a
        skip = a.label("n56")
        a(f"s_sub_u32 s{S_T0}, s{S_WAVE}, 5\ns_cmp_lt_u32 s{S_T0}, 2\ns_cbranch_scc0 {skip}")
        return skip

    def role_a(self):
        a = self.a
        a(f"L_roleA:\ns_mov_b32 s{S_FROMA}, 1")
        a(f"s_sub_u32 s{S_MT}, s{S_ST}, 16\ns_mov_b32 s{S_HG}, s{S_DTILE}")
        a(f"s_cmp_ge_u32 s{S_WAVE}, 4\ns_cbranch_scc1 L_A_loader")
        ACC, XF, WF, VXA, VWA = 128, 96, 64, 4, 6
        if self.o.get("ta1") or self.o.get("ta2"):
            self.start_prefetch()
        self.a_thread_map()
        a(f"""
        v_and_b32 v16, 15, v1
        v_lshrrev_b32 v17, 4, v1
        s_lshl_b32 s{S_T0}, s{S_WAVE}, 5
        v_add_u32 v18, s{S_T0}, v16
        v_lshrrev_b32 v19, 1, v16
        v_xor_b32 v19, v17, v19
        v_lshlrev_b32 v19, 4, v19
        v_lshl_add_u32 v{VXA}, v18, 7, v19
        v_xor_b32 v{VXA+1}, 64, v{VXA}
        v_lshrrev_b32 v18, 2, v16
        v_lshl_add_u32 v19, v17, 3, v18
        v_and_b32 v20, 1, v17
        v_lshl_or_b32 v20, v20, 2, v18
        v_lshlrev_b32 v19, 9, v19
        v_lshl_add_u32 v19, v20, 5, v19
        v_and_b32 v20, 3, v16
        v_lshl_add_u32 v19, v20, 3, v19
        v_add_u32 v{VWA}, {A_WOFF}, v19
        """)
        for n in range(1, 8):
            a(f"v_xor_b32 v{VWA+n}, {n<<5}, v{VWA}")
        for r in range(120):
            a(f"v_mov_b32 v{ACC+r}, 0")
        a(f"s_mov_b32 s{S_A}, 0\ns_mov_b32 s{S_B}, 0\ns_mov_b32 s{S_C}, {A_SLOT}\ns_waitcnt lgkmcnt(0)")
        a(f"s_add_u32 s{S_TAG}, s{S_TAG}, {TAG_INC:#x}")

        RING = 6
        D = 6

        def mk_stage(bar, virtual=False, head=None, tail=None):
            uses = []
            for g in range(30):
                ks, n = divmod(g, 15)
                wb = WF + 4 * (g % RING)
                reads = []
                if g == 0:
                    for rb in range(2):
                        reads.append((f"x0{rb}", f"ds_read_b128 {vr(XF+4*rb,4)}, v{VXA} offset:{rb*2048}"))
                if g == 13:
                    for rb in range(2):
                        reads.append((f"x1{rb}", f"ds_read_b128 {vr(XF+8+4*rb,4)}, v{VXA+1} offset:{rb*2048}"))
                off = ks * 16384 + (n >> 3) * 256
                reads.append((f"w{g}a", f"ds_read_b64_tr_b16 {vr(wb,2)}, v{VWA+(n&7)} offset:{off}"))
                reads.append((f"w{g}b", f"ds_read_b64_tr_b16 {vr(wb+2,2)}, v{VWA+(n&7)} offset:{off+2048}"))
                need = [f"w{g}b", f"x{ks}1"]
                mf = []
                for rb in range(2):
                    acc = vr(ACC + (n * 2 + rb) * 4, 4)
                    xf = vr(XF + ks * 8 + rb * 4, 4)
                    wf = vr(wb, 4)
                    if n < 5:
                        mf.append(f"v_mfma_f32_16x16x32_bf16 {acc}, {wf}, {xf}, {acc}")
                    else:
                        mf.append(f"v_mfma_f32_16x16x32_bf16 {acc}, {xf}, {wf}, {acc}")
                uses.append(dict(reads=reads, need=need, mf=mf))
            return dict(uses=uses, bar=bar, virtual=virtual, head=head, tail=tail)

        adv = "s_barrier"
        pre = [f"s_add_u32 s{S_B}, s{S_B}, 1", f"s_cmp_eq_u32 s{S_B}, 3", f"s_cselect_b32 s{S_B}, 0, s{S_B}",
               f"s_cselect_b32 s{S_T0}, {(-2*A_SLOT) & 0xffffffff:#x}, s{S_C}"]
        pre += [f"v_add_u32 v{r}, s{S_T0}, v{r}" for r in range(VXA, VWA + 8)]
        tail = f"s_add_u32 s{S_A}, s{S_A}, 1\ns_cmp_lt_u32 s{S_A}, 10\ns_cbranch_scc1 L_A_loop"
        head = "L_A_loop:\n"
        bar0 = "s_barrier"
        if self.o.get("tw2") == 2:
            self.srd(R_P, P_WO, 640 * 1280)
            a(f"""
            v_lshlrev_b32 v252, 7, v1
            s_lshl_b32 s{S_T0}, s{S_MT}, 3
            s_add_u32 s{S_T0}, s{S_T0}, s{S_HG}
            s_lshl_b32 s{S_T0}, s{S_T0}, 2
            s_add_u32 s{S_T0}, s{S_T0}, s{S_WAVE}
            s_mul_i32 s{S_D}, s{S_T0}, 12288
            s_add_u32 s{S_KST}, s{S_D}, 8192
            s_mul_i32 s{S_PAR}, s{S_T0}, 1664
            s_and_b32 s{S_M}, s{S_J}, 7
            s_add_u32 s{S_M}, s{S_M}, {self.o.get("tw2at", 1)}
            """)
            head += f"""
            s_cmp_lg_u32 s{S_A}, s{S_M}
            s_cbranch_scc1 L_A_nt2
            buffer_load_dword v253, v252, s[{R_W2}:{R_W2+3}], s{S_D} offen
            s_mov_b32 exec_hi, 0
            buffer_load_dword v253, v252, s[{R_W2}:{R_W2+3}], s{S_KST} offen
            s_mov_b32 exec_lo, 0x1fff
            buffer_load_dword v253, v252, s[{R_P}:{R_P+3}], s{S_PAR} offen
            s_mov_b64 exec, -1
            L_A_nt2:
            """
        ta2 = self.o.get("ta2")
        if ta2 == 1:
            a(self.pf_rest())
        elif ta2 == 2:
            bar0 += "\n" + self.pf_rest()
        elif ta2:
            head += f"s_cmp_lg_u32 s{S_A}, {ta2-2}\ns_cbranch_scc1 L_A_npf\n" + self.pf_rest() + "L_A_npf:\n"
        self.pipeline([mk_stage(bar0, head=head, tail=tail), dict(mk_stage(adv, virtual=True), pre=pre)], 5, 30 - 3, wait_every=self.o.get('we', 2))
        self.stamp(2, 16)
        PK, VV, ONES, KVD, ZD = 16, 36, 56, 64, 116
        a("s_waitcnt lgkmcnt(0)\ns_nop 7")
        a(f"s_mov_b32 s{S_K0}, {LOG2E:#x}\ns_mov_b32 s{S_K0+1}, {LOG2E:#x}\ns_mov_b32 s{S_K0+2}, {f2u(1e-6):#x}")

        def phi(base, n, t):
            for i in range(0, n, 4):
                r = base + i
                a(f"v_pk_mul_f32 {vr(t,2)}, {vr(r,2)}, s[{S_K0}:{S_K0+1}]")
                a(f"v_pk_mul_f32 {vr(t+2,2)}, {vr(r+2,2)}, s[{S_K0}:{S_K0+1}]")
                for k in range(4):
                    a(f"v_exp_f32_e64 v{t+k}, v{t+k} clamp")
                for k in range(4):
                    a(f"v_max_f32 v{r+k}, s{S_K0+2}, v{r+k}")
                a(f"v_pk_add_f32 {vr(r,2)}, {vr(r,2)}, {vr(t,2)}")
                a(f"v_pk_add_f32 {vr(r+2,2)}, {vr(r+2,2)}, {vr(t+2,2)}")

        def pack(dst, src0, src1):
            a(f"v_cvt_pk_bf16_f32 v{dst}, v{src0}, v{src0+1}\nv_cvt_pk_bf16_f32 v{dst+1}, v{src0+2}, v{src0+3}")
            if src1 is None:
                a(f"v_mov_b32 v{dst+2}, 0\nv_mov_b32 v{dst+3}, 0")
            else:
                a(f"v_cvt_pk_bf16_f32 v{dst+2}, v{src1}, v{src1+1}\nv_cvt_pk_bf16_f32 v{dst+3}, v{src1+2}, v{src1+3}")

        for b in range(5):
            pack(VV + 4 * b, ACC + (10 + b) * 8, ACC + (10 + b) * 8 + 4)
        for k in range(4):
            a(f"v_mov_b32 v{ONES+k}, 0x3f803f80")
        phi(ACC + 40, 40, 60)
        for b in range(5):
            pack(PK + 4 * b, ACC + (5 + b) * 8, ACC + (5 + b) * 8 + 4)
        a("s_nop 1")
        ZD = ACC + 80
        blocks = [(x, y) for x in range(5) for y in range(5) if abs(x - y) <= 1]
        for (x, y) in blocks:
            a(f"v_mfma_f32_16x16x32_bf16 {vr(KVD+4*(2*x+y),4)}, {vr(PK+4*x,4)}, {vr(VV+4*y,4)}, 0")
        for x in range(5):
            a(f"v_mfma_f32_16x16x32_bf16 {vr(ZD+4*x,4)}, {vr(ONES,4)}, {vr(PK+4*x,4)}, 0")
        a(f"""
        s_mul_i32 s{S_T0}, s{S_WAVE}, {EXCH_ST}
        s_add_u32 s{S_T0}, s{S_T0}, {EXCH}
        v_lshlrev_b32 v60, 4, v1
        v_add_u32 v60, s{S_T0}, v60
        v_and_b32 v61, 15, v1
        v_lshlrev_b32 v61, 2, v61
        v_add_u32 v61, s{S_T0}, v61
        s_nop 3
        """)
        for i in range(13):
            a(f"ds_write_b128 v60, {vr(KVD+4*i,4)} offset:{i*1024}")
        for x in range(5):
            a(f"ds_write_b32 v61, v{ZD+4*x} offset:{13312+64*x}")
        a("s_waitcnt lgkmcnt(0)\ns_barrier")
        self.a_reduce_publish(64)
        a("s_waitcnt vmcnt(0)\ns_barrier")
        PQ = 16
        phi(ACC, 40, 60)
        for ts in range(3):
            for rb in range(2):
                pack(PQ + (ts * 2 + rb) * 4, ACC + (2 * ts * 2 + rb) * 4, None if ts == 2 else ACC + ((2 * ts + 1) * 2 + rb) * 4)
        self.uw_srd()
        a("v_lshlrev_b32 v60, 4, v1\ns_barrier")
        self.wot_preload(60)
        a("s_barrier")
        a(f"""
        v_and_b32 v63, 15, v1
        v_lshlrev_b32 v63, 2, v63
        s_lshl_b32 s{S_T0}, s{S_MT}, 7
        s_lshl_b32 s{S_T0+1}, s{S_WAVE}, 5
        s_add_u32 s{S_T0}, s{S_T0}, s{S_T0+1}
        s_lshl_b32 s{S_T0}, s{S_T0}, 2
        s_add_u32 s{S_T0}, s{S_T0}, {G_OFF}
        buffer_load_dword v62, v63, s[{R_WS}:{R_WS+3}], s{S_T0} offen sc1
        buffer_load_dword v61, v63, s[{R_WS}:{R_WS+3}], s{S_T0} offen offset:64 sc1
        """)
        self.a_gather(64)
        a("s_waitcnt lgkmcnt(0)\ns_barrier")
        self.stamp(4, 40)
        FR = 64
        a("v_lshlrev_b32 v60, 4, v1\nv_add_u32 v60, " + str(KVT) + ", v60")
        used = [0, 2, 3, 4, 5, 7, 8, 9, 10, 11, 12, 13]
        for f in used:
            a(f"ds_read_b128 {vr(FR+4*f,4)}, v60 offset:{f*1024}")
        NUM, DEN = 128, 120
        kts = {0: [0], 1: [0, 1], 2: [0, 1], 3: [1, 2], 4: [1, 2]}
        a(f"""
        v_lshrrev_b32 v40, 4, v1
        v_cmp_gt_u32 s[{S_MSK}:{S_MSK+1}], 1, v40
        v_cmp_gt_u32 s[{S_MSK+2}:{S_MSK+3}], 2, v40
        v_cmp_gt_u32 s[{S_MSK+4}:{S_MSK+5}], 3, v40
        s_waitcnt lgkmcnt(0)
        """)
        for rb in range(2):
            for ts in range(3):
                c = "0" if ts == 0 else vr(DEN + 4 * rb, 4)
                a(f"v_mfma_f32_16x16x32_bf16 {vr(DEN+4*rb,4)}, {vr(FR+4*(11+ts),4)}, {vr(PQ+(ts*2+rb)*4,4)}, {c}")
        for rb in range(2):
            for b in range(5):
                for i, ts in enumerate(kts[b]):
                    d = vr(NUM + (rb * 5 + b) * 4, 4)
                    c = "0" if i == 0 else d
                    a(f"v_mfma_f32_16x16x32_bf16 {d}, {vr(FR+4*(2*b+ts),4)}, {vr(PQ+(ts*2+rb)*4,4)}, {c}")
        for rb in range(2):
            for h in range(4):
                a(f"v_add_f32 v{DEN+4*rb+h}, s{S_K0+2}, v{DEN+4*rb+h}")
        for rb in range(2):
            for h in range(4):
                a(f"v_rcp_f32 v{DEN+4*rb+h}, v{DEN+4*rb+h}")
        a("s_nop 0")
        gv = {0: 62, 1: 61}
        for rb in range(2):
            for h in range(4):
                a(f"v_mul_f32 v{DEN+4*rb+h}, v{gv[rb]}, v{DEN+4*rb+h}")
        a(f"""
        s_lshl_b32 s{S_T0}, s{S_MT}, 3
        s_lshl_b32 s{S_T0+1}, s{S_WAVE}, 1
        s_add_u32 s{S_T0}, s{S_T0}, s{S_T0+1}
        s_mul_i32 s{S_T0}, s{S_T0}, {GO_ST}
        s_add_u32 s{S_T0}, s{S_T0}, {GO}
        s_lshl_b32 s{S_T0+1}, s{S_HG}, 11
        s_add_u32 s{S_T0+1}, s{S_T0+1}, s{S_T0}
        s_lshl_b32 s{S_T0+2}, s{S_HG}, 9
        s_add_u32 s{S_T0+2}, s{S_T0+2}, s{S_T0}
        s_add_u32 s{S_T0+2}, s{S_T0+2}, 16384
        v_lshlrev_b32 v40, 4, v1
        v_lshlrev_b32 v41, 3, v1
        """)
        for rb in range(2):
            d = DEN + 4 * rb
            a(f"v_cndmask_b32 v44, v{d+1}, v{d}, s[{S_MSK}:{S_MSK+1}]")
            a(f"v_cndmask_b32 v45, v{d+2}, v{d+1}, s[{S_MSK+2}:{S_MSK+3}]")
            a(f"v_cndmask_b32 v46, v{d+3}, v{d+2}, s[{S_MSK+4}:{S_MSK+5}]")
            sc = [d, 44, 45, 46, d + 3]
            for b in range(5):
                for k in range(4):
                    r = NUM + (rb * 5 + b) * 4 + k
                    a(f"v_mul_f32 v{r}, v{sc[b]}, v{r}")
            o = 16 + rb * 12
            n0 = NUM + rb * 20
            pack(o, n0, n0 + 4)
            pack(o + 4, n0 + 8, n0 + 12)
            a(f"v_cvt_pk_bf16_f32 v{o+8}, v{n0+16}, v{n0+17}\nv_cvt_pk_bf16_f32 v{o+9}, v{n0+18}, v{n0+19}")
            a(f"buffer_store_dwordx4 {vr(o,4)}, v40, s[{R_WS}:{R_WS+3}], s{S_T0+1} offen sc1")
            a(f"buffer_store_dwordx4 {vr(o+4,4)}, v40, s[{R_WS}:{R_WS+3}], s{S_T0+1} offen offset:1024 sc1")
            a(f"buffer_store_dwordx2 {vr(o+8,2)}, v41, s[{R_WS}:{R_WS+3}], s{S_T0+2} offen sc1")
            if rb == 0:
                a(f"s_add_u32 s{S_T0+1}, s{S_T0+1}, {GO_ST}\ns_add_u32 s{S_T0+2}, s{S_T0+2}, {GO_ST}")
        self.stamp(5, 40)
        a("s_branch L_F_comp")

        a("L_A_loader:")
        VX, VW = 4, 8
        self.srd(R_W, P_WQKV, 640 * 3840)
        a(f"""
        s_sub_u32 s{S_D}, s{S_WAVE}, 4
        v_lshrrev_b32 v16, 3, v1
        v_lshrrev_b32 v17, 4, v1
        v_and_b32 v18, 7, v1
        v_xor_b32 v17, v17, v18
        v_lshlrev_b32 v17, 4, v17
        v_mul_u32_u24 v16, 1280, v16
        v_add_u32 v{VX}, v16, v17
        v_xor_b32 v18, 64, v{VX}
        v_add_u32 v{VX+1}, {8*1280-1024}, v18
        v_add_u32 v{VX+2}, {2*(8*1280-1024)}, v{VX}
        v_add_u32 v{VX+3}, {3*(8*1280-1024)}, v18
        s_lshl_b32 s{S_T0}, s{S_MT}, 7
        s_lshl_b32 s{S_T0+1}, s{S_D}, 5
        s_add_u32 s{S_T0}, s{S_T0}, s{S_T0+1}
        s_mul_i32 s{S_A}, s{S_T0}, 1280
        s_lshl_b32 s{S_C}, s{S_D}, 12
        """)
        def issue_x():
            a(f"s_mov_b32 m0, s{S_C}\ns_nop 0")
            for i in range(4):
                a(f"buffer_load_dwordx4 v{VX+i}, s[{R_X}:{R_X+3}], s{S_A} offen offset:{i*1024} lds")
            a(f"s_add_u32 s{S_A}, s{S_A}, 128")

        def issue_w():
            for g in range(2):
                a(f"s_lshl_b32 s{S_T0}, s{S_D}, 12\ns_add_u32 s{S_T0}, s{S_T0}, s{S_C}\ns_add_u32 m0, s{S_T0}, {A_WOFF + g*4096}\ns_nop 0")
                for i in range(4):
                    a(f"buffer_load_dwordx4 v{VW+4*g+i}, s[{R_W}:{R_W+3}], s{S_B} offen offset:{i*1024} lds")
            a(f"s_add_u32 s{S_B}, s{S_B}, {64*3840}")

        def next_slot():
            a(f"s_add_u32 s{S_C}, s{S_C}, {A_SLOT}\ns_cmp_ge_u32 s{S_C}, {3*A_SLOT}\ns_cselect_b32 s{S_T0}, {3*A_SLOT}, 0\ns_sub_u32 s{S_C}, s{S_C}, s{S_T0}")

        issue_x()
        a(f"""
        v_lshrrev_b32 v16, 5, v1
        v_bfe_u32 v17, v1, 1, 4
        v_and_b32 v18, 1, v1
        v_lshlrev_b32 v18, 4, v18
        v_mul_u32_u24 v19, 3840, v16
        v_add_u32 v18, v18, v19
        """)
        for i in (0, 1, 4, 5):
            sig = (2 * (i & 1)) | ((i >> 2) << 2)
            a(f"""
            v_or_b32 v19, {sig}, v16
            v_xor_b32 v19, v17, v19
            v_min_u32 v19, 14, v19
            v_mul_u32_u24 v20, 13, v19
            v_lshrrev_b32 v20, 6, v20
            v_mul_u32_u24 v20, 1120, v20
            v_lshl_add_u32 v19, v19, 5, v20
            v_add_u32 v19, v19, v18
            v_add_u32 v{VW+i}, {2*i*3840 - (i&3)*1024}, v19
            v_add_u32 v{VW+i+2}, {2*(i+2)*3840 - ((i+2)&3)*1024}, v19
            """)
        a(f"""
        s_mul_i32 s{S_B}, s{S_HG}, 160
        s_mul_i32 s{S_T0}, s{S_D}, {16*3840}
        s_add_u32 s{S_B}, s{S_B}, s{S_T0}
        """)
        issue_w()
        for _ in range(2):
            next_slot()
            issue_x()
            issue_w()
        a(f"v_lshlrev_b32 v16, 4, v1\ns_lshl_b32 s{S_T0}, s{S_D}, 12\ns_add_u32 s{S_T0}, s{S_T0}, {KVT}\nv_add_u32 v16, s{S_T0}, v16")
        a("v_mov_b32 v20, 0\nv_mov_b32 v21, 0\nv_mov_b32 v22, 0\nv_mov_b32 v23, 0")
        for i in range(4):
            a(f"ds_write_b128 v16, v[20:23] offset:{i*1024}")
        a(f"s_waitcnt lgkmcnt(0)\ns_add_u32 s{S_TAG}, s{S_TAG}, {TAG_INC:#x}")
        a("s_waitcnt vmcnt(24)\ns_barrier")
        self.stamp(1, 16)
        a(f"s_mov_b32 s{S_CNT}, 1\nL_A_lloop:")
        a("s_waitcnt vmcnt(12)\ns_barrier")
        self.stamp(16, 16, dyn=S_CNT)
        next_slot()
        issue_x()
        issue_w()
        a(f"s_add_u32 s{S_CNT}, s{S_CNT}, 1\ns_cmp_le_u32 s{S_CNT}, 7\ns_cbranch_scc1 L_A_lloop")
        tw = 3 if self.o.get("tw2") == 1 else 0
        a(f"s_waitcnt vmcnt(12)\ns_barrier")
        if tw:
            self.w2_touch()
        self.stamp(24, 16)
        a(f"s_waitcnt vmcnt({tw})\ns_barrier")
        self.stamp(25, 16)
        a("s_barrier")
        self.stamp(26, 16)
        nA0 = self.o.get("nA0", 4)
        self.w2_setup()
        skip0 = self.if_wave56()
        self.w2_prefill(nA0)
        a(f"{skip0}:")
        self.a_thread_map()
        a("s_barrier")
        a(f"s_cmp_eq_u32 s{S_WAVE}, 7\ns_cbranch_scc1 L_A_poller")
        self.a_reduce_publish(64)
        a("s_waitcnt vmcnt(0)\ns_barrier")
        skip = self.if_wave56()
        a("s_nop 7\ns_nop 7")
        self.w2_prefill(8 - nA0)
        a("s_barrier\ns_barrier")
        self.a_gather(64)
        a("s_waitcnt lgkmcnt(0)\ns_barrier")
        a("s_branch L_F_loader")
        a(f"{skip}:\ns_barrier\ns_barrier")
        self.a_gather(64)
        a("s_waitcnt lgkmcnt(0)\ns_barrier")
        a("s_branch L_F_u4")
        a("L_A_poller:\ns_barrier")
        a(f"s_lshl_b32 s{S_T0}, s{S_HG}, 4\ns_add_u32 s{S_T0}, s{S_T0}, s{S_MT}\ns_mul_i32 s{S_T0}, s{S_T0}, {FS}\ns_add_u32 s{S_T0}, s{S_T0}, {F_KV}")
        self.flag_store(S_T0, 16)
        self.stamp(3, 16)
        a(f"s_mul_i32 s{S_T0}, s{S_DTILE}, {FS}\ns_add_u32 s{S_T0}, s{S_T0}, {F_WOT}\nv_mov_b32 v16, s{S_T0}")
        self.poll([16], 18)
        a("s_barrier")
        a(f"""
        v_and_b32 v16, 15, v1
        s_lshl_b32 s{S_T0}, s{S_HG}, 4
        v_add_u32 v16, s{S_T0}, v16
        v_mul_u32_u24 v16, {FS}, v16
        v_add_u32 v16, {F_KV}, v16
        v_and_b32 v17, 3, v1
        s_lshl_b32 s{S_T0}, s{S_MT}, 2
        v_add_u32 v17, s{S_T0}, v17
        v_mul_u32_u24 v17, {FS}, v17
        v_add_u32 v17, {F_LN}, v17
        v_cmp_gt_u32 vcc, 32, v1
        s_nop 1
        v_cndmask_b32 v16, v17, v16, vcc
        """)
        self.poll([16], 18)
        self.stamp(13, 16)
        a("s_barrier\ns_barrier")
        a("s_branch L_F_poller")

    def start_prefetch(self):
        a = self.a
        self.srd(R_W, P_WQKV, 640 * 3840)
        a(f"""
        s_lshl_b32 s{S_T0}, s{S_J}, 2
        s_add_u32 s{S_T0}, s{S_T0}, s{S_WAVE}
        v_lshrrev_b32 v16, 2, v1
        v_and_b32 v17, 3, v1
        v_mul_u32_u24 v16, 1280, v16
        v_lshl_add_u32 v16, v17, 7, v16
        s_lshr_b32 s{S_T0+2}, s{S_MT}, 3
        s_lshl_b32 s{S_T0+2}, s{S_T0+2}, 7
        s_add_u32 s{S_T0+2}, s{S_T0+2}, s{S_T0}
        s_mul_i32 s{S_DT}, s{S_T0+2}, {8*1280}
        v_lshrrev_b32 v19, 4, v1
        v_and_b32 v17, 15, v1
        v_min_u32 v17, 14, v17
        v_mul_u32_u24 v18, 13, v17
        v_lshrrev_b32 v18, 6, v18
        v_mul_u32_u24 v18, 640, v18
        v_lshl_add_u32 v18, v17, 7, v18
        v_mul_u32_u24 v19, 3840, v19
        v_add_u32 v112, v18, v19
        s_lshr_b32 s{S_T0+2}, s{S_HG}, 2
        s_mul_i32 s{S_T0+2}, s{S_T0+2}, 640
        s_mul_i32 s{S_FT}, s{S_T0}, {2*3840}
        s_add_u32 s{S_FT}, s{S_FT}, s{S_T0+2}
        """)
        if self.o.get("ta1"):
            a(f"""
            s_mov_b32 exec_hi, 0
            buffer_load_dword v253, v112, s[{R_W}:{R_W+3}], s{S_FT} offen
            buffer_load_dword v253, v16, s[{R_X}:{R_X+3}], s{S_DT} offen
            s_mov_b32 exec_hi, -1
            """)
        a(f"""
        s_mul_i32 s{S_FT}, s{S_T0}, {3*3840}
        s_add_u32 s{S_FT}, s{S_FT}, s{S_T0+2}
        s_add_u32 s{S_FT}, s{S_FT}, {256*3840}
        v_lshrrev_b32 v16, 3, v1
        v_and_b32 v17, 7, v1
        v_min_u32 v17, 5, v17
        v_mul_u32_u24 v16, 1280, v16
        v_lshl_add_u32 v113, v17, 7, v16
        s_add_u32 s{S_DT}, s{S_DT}, 512
        """)

    def pf_rest(self):
        return f"""s_mov_b32 exec_hi, 0xffff
        buffer_load_dword v253, v112, s[{R_W}:{R_W+3}], s{S_FT} offen
        s_mov_b32 exec_hi, -1
        buffer_load_dword v253, v113, s[{R_X}:{R_X+3}], s{S_DT} offen
        """

    def w2_touch(self):
        a = self.a
        self.srd(R_W2, P_W2, 1536 * 4096)
        a(f"""
        v_lshlrev_b32 v48, 7, v1
        s_lshl_b32 s{S_T0}, s{S_MT}, 3
        s_add_u32 s{S_T0}, s{S_T0}, s{S_HG}
        s_lshl_b32 s{S_T0}, s{S_T0}, 2
        s_add_u32 s{S_T0}, s{S_T0}, s{S_D}
        s_mul_i32 s{S_T0}, s{S_T0}, 12288
        buffer_load_dword v253, v48, s[{R_W2}:{R_W2+3}], s{S_T0} offen
        s_add_u32 s{S_T0}, s{S_T0}, 8192
        s_mov_b32 exec_hi, 0
        buffer_load_dword v253, v48, s[{R_W2}:{R_W2+3}], s{S_T0} offen
        """)
        self.srd(R_P, P_WO, 640 * 1280)
        a(f"""
        s_lshl_b32 s{S_T0}, s{S_MT}, 3
        s_add_u32 s{S_T0}, s{S_T0}, s{S_HG}
        s_lshl_b32 s{S_T0}, s{S_T0}, 2
        s_add_u32 s{S_T0}, s{S_T0}, s{S_D}
        s_mul_i32 s{S_T0}, s{S_T0}, 1664
        s_mov_b32 exec_lo, 0x1fff
        buffer_load_dword v253, v48, s[{R_P}:{R_P+3}], s{S_T0} offen
        s_mov_b64 exec, -1
        """)

    def tlb_warm(self):
        a = self.a
        mode = self.o["tlb"]
        wv = self.o.get("tlbw", 3)
        a(f"s_cmp_lg_u32 s{S_WAVE}, {wv}\ns_cbranch_scc1 L_notlb")
        self.srd(R_OUT, P_OUT, 2048 * 1280)
        self.srd(R_M, P_B2, 4096)
        self.srd(R_P, P_WO, 640 * 1280)
        self.srd(R_W, P_W1, 2048 * 3072)
        if mode == 1:
            a("v_lshlrev_b32 v4, 20, v1\nv_min_u32 v4, 0xf00000, v4\ns_mov_b64 exec, 0xffff")
            so = "0"
        else:
            a(f"v_lshlrev_b32 v4, 21, v1\ns_lshl_b32 s{S_T0}, s{S_J}, 16\ns_mov_b64 exec, 0x1f")
            so = f"s{S_T0}"
        for r in (R_WS, R_W2, R_OUT, R_W, R_P, R_M):
            a(f"buffer_load_dword v253, v4, s[{r}:{r+3}], {so} offen sc1")
        a("s_mov_b64 exec, -1\nL_notlb:")

    def code_prefetch(self):
        a = self.a
        a(f"""
        s_cmp_lg_u32 s{S_WAVE}, 3
        s_cbranch_scc1 L_nocpf
        s_cmp_ge_u32 s{S_J}, 4
        s_cbranch_scc1 L_nocpf
        s_getpc_b64 s[{S_T0}:{S_T0+1}]
        L_pcref:
        s_lshl_b32 s{S_T0+2}, s{S_J}, 13
        v_lshlrev_b32 v4, 7, v1
        v_add_u32 v4, s{S_T0+2}, v4
        v_min_u32 v4, L_end-L_pcref, v4
        global_load_dword v253, v4, s[{S_T0}:{S_T0+1}]
        L_nocpf:
        """)

    def a_thread_map(self):
        a = self.a
        a(f"""
        v_mul_u32_u24 v16, 625, v0
        v_lshrrev_b32 v16, 16, v16
        v_mul_u32_u24 v17, 105, v16
        v_sub_u32 v17, v0, v17
        v_mul_u32_u24 v18, 205, v17
        v_lshrrev_b32 v18, 10, v18
        v_mul_u32_u24 v19, 5, v18
        v_sub_u32 v19, v17, v19
        v_mad_u32_u24 v19, v16, 5, v19
        v_mad_u32_u24 v20, v16, 20, v18
        v_lshrrev_b32 v21, 2, v19
        v_and_b32 v22, 3, v19
        v_lshrrev_b32 v23, 4, v20
        v_and_b32 v20, 15, v20
        v_lshl_add_u32 v20, v22, 4, v20
        v_lshl_add_u32 v2, v21, 1, v23
        v_lshlrev_b32 v2, 6, v2
        v_add_u32 v2, v2, v20
        v_lshlrev_b32 v2, 4, v2
        v_lshlrev_b32 v3, 4, v19
        v_add_u32 v3, 13312, v3
        v_cmp_lt_u32 vcc, 99, v17
        v_lshrrev_b32 v24, 1, v21
        v_and_b32 v21, 1, v21
        v_cndmask_b32 v2, v2, v3, vcc
        v_lshl_add_u32 v3, v23, 1, v24
        v_add_u32 v24, 11, v24
        v_lshl_add_u32 v22, v22, 4, v16
        v_cndmask_b32 v3, v3, v24, vcc
        v_cndmask_b32 v20, v20, v22, vcc
        v_lshl_add_u32 v3, v3, 6, v20
        v_lshlrev_b32 v3, 4, v3
        v_lshl_add_u32 v3, v21, 3, v3
        v_add_u32 v3, {KVT}, v3
        v_mov_b32 v25, 2
        v_cndmask_b32 v25, 1, v25, vcc
        v_mov_b32 v16, 420
        v_cmp_gt_u32 vcc, v16, v0
        v_lshlrev_b32 v14, 4, v0
        s_nop 0
        v_cndmask_b32 v15, 0, v25, vcc
        v_cndmask_b32 v2, 0, v2, vcc
        v_add_u32 v2, {EXCH}, v2
        """)

    def a_reduce_publish(self, T):
        a = self.a
        for w in range(4):
            a(f"ds_read_b128 {vr(T+4*w,4)}, v2 offset:{w*EXCH_ST}")
        a(f"""
        s_lshl_b32 s{S_T0}, s{S_HG}, 4
        s_add_u32 s{S_T0}, s{S_T0}, s{S_MT}
        s_mul_i32 s{S_T0}, s{S_T0}, {KVP_ST}
        s_add_u32 s{S_T0}, s{S_T0}, {KVP}
        v_cmp_ne_u32 vcc, 0, v15
        s_waitcnt lgkmcnt(0)
        v_pk_add_f32 {vr(T,2)}, {vr(T,2)}, {vr(T+4,2)}
        v_pk_add_f32 {vr(T+2,2)}, {vr(T+2,2)}, {vr(T+6,2)}
        v_pk_add_f32 {vr(T+8,2)}, {vr(T+8,2)}, {vr(T+12,2)}
        v_pk_add_f32 {vr(T+10,2)}, {vr(T+10,2)}, {vr(T+14,2)}
        v_pk_add_f32 {vr(T,2)}, {vr(T,2)}, {vr(T+8,2)}
        v_pk_add_f32 {vr(T+2,2)}, {vr(T+2,2)}, {vr(T+10,2)}
        s_mov_b64 exec, vcc
        buffer_store_dwordx4 {vr(T,4)}, v14, s[{R_WS}:{R_WS+3}], s{S_T0} offen sc1
        s_mov_b64 exec, -1
        """)

    def a_gather(self, T, extra=0, hook=None):
        a = self.a
        a(f"s_mul_i32 s{S_T0+1}, s{S_HG}, {16*KVP_ST}\ns_add_u32 s{S_T0+1}, s{S_T0+1}, {KVP}")
        rot = self.o.get("rotG")
        if rot:
            a(f"s_lshl_b32 s{S_T0+2}, s{S_MT}, 1")
        else:
            a(f"s_mov_b32 s{S_T0+2}, 0")
        a("v_cmp_ne_u32 vcc, 0, v15\ns_nop 1\ns_mov_b64 exec, vcc")
        for m in range(16):
            a(f"s_and_b32 s{S_T0+2}, s{S_T0+2}, 15\ns_mul_i32 s{S_T0}, s{S_T0+2}, {KVP_ST}\ns_add_u32 s{S_T0}, s{S_T0}, s{S_T0+1}\ns_add_u32 s{S_T0+2}, s{S_T0+2}, 1")
            a(f"buffer_load_dwordx4 {vr(T+4*m,4)}, v14, s[{R_WS}:{R_WS+3}], s{S_T0} offen sc1")
        a("s_mov_b64 exec, -1")
        if hook:
            hook()
        for m in range(0, 16, 2):
            a(f"s_waitcnt vmcnt({14-m+extra})")
            for h in (0, 2):
                a(f"v_pk_add_f32 {vr(T+4*m+h,2)}, {vr(T+4*m+h,2)}, {vr(T+4*(m+1)+h,2)}")
            if m >= 2:
                for h in (0, 2):
                    a(f"v_pk_add_f32 {vr(T+h,2)}, {vr(T+h,2)}, {vr(T+4*m+h,2)}")
        a(f"""
        v_cvt_pk_bf16_f32 v{T}, v{T}, v{T+1}
        v_cvt_pk_bf16_f32 v{T+1}, v{T+2}, v{T+3}
        v_cmp_ne_u32 vcc, 0, v15
        v_cmp_eq_u32 s[{S_T0}:{S_T0+1}], 2, v15
        s_nop 1
        s_mov_b64 exec, vcc
        ds_write_b64 v3, {vr(T,2)}
        s_mov_b64 exec, s[{S_T0}:{S_T0+1}]
        ds_write_b64 v3, {vr(T,2)} offset:64
        ds_write_b64 v3, {vr(T,2)} offset:128
        ds_write_b64 v3, {vr(T,2)} offset:192
        s_mov_b64 exec, -1
        """)

    def role_b(self):
        a = self.a
        a(f"L_roleB:\ns_mov_b32 s{S_FROMA}, 0")
        XR, B1R, GR, XS = 16, 36, 64, 84
        VPF = 8
        a(f"s_cmp_ge_u32 s{S_J}, 16\ns_cbranch_scc1 L_B_pfrole")
        a(f"""
        s_lshl_b32 s{S_KST}, s{S_XCD}, 4
        s_add_u32 s{S_KST}, s{S_KST}, s{S_J}
        s_lshl_b32 s{S_T0}, s{S_KST}, 3
        s_add_u32 s{S_T0}, s{S_T0}, s{S_WAVE}
        s_mul_i32 s{S_T0}, s{S_T0}, {4*1280}
        v_lshrrev_b32 v2, 4, v1
        v_and_b32 v3, 15, v1
        v_lshlrev_b32 v3, 4, v3
        v_mul_u32_u24 v4, 1280, v2
        v_add_u32 v4, v4, v3
        """)
        for c in range(5):
            a(f"buffer_load_dwordx4 {vr(XR+4*c,4)}, v4, s[{R_X}:{R_X+3}], s{S_T0} offen offset:{c*256}")
        self.srd(R_M, P_GATE, 1280)
        for c in range(5):
            a(f"buffer_load_dwordx4 {vr(GR+4*c,4)}, v3, s[{R_M}:{R_M+3}], 0 offen offset:{c*256}")

        def common_setup():
            a(f"""
            s_mul_i32 s{S_M}, s{S_J}, 205
            s_lshr_b32 s{S_M}, s{S_M}, 10
            s_mul_i32 s{S_DT}, s{S_M}, 5
            s_sub_u32 s{S_DT}, s{S_J}, s{S_DT}
            s_mul_i32 s{S_FT}, s{S_XCD}, 6
            s_add_u32 s{S_FT}, s{S_FT}, s{S_M}
            """)
            self.srd(R_OUT, P_B1, 3072)
            a(f"v_lshrrev_b32 v5, 4, v1\nv_lshlrev_b32 v5, 3, v5\ns_lshl_b32 s{S_T0}, s{S_FT}, 7")
            for b in range(4):
                a(f"buffer_load_dwordx2 {vr(B1R+2*b,2)}, v5, s[{R_OUT}:{R_OUT+3}], s{S_T0} offen offset:{b*32}")
            a(f"""
            v_lshrrev_b32 v12, 3, v1
            v_lshrrev_b32 v13, 4, v1
            v_lshlrev_b32 v13, 1, v13
            v_and_b32 v14, 7, v1
            v_xor_b32 v13, v13, v14
            v_lshlrev_b32 v13, 4, v13
            v_mul_u32_u24 v12, 3072, v12
            v_add_u32 v{VPF}, v12, v13
            v_add_u32 v{VPF+1}, {8*3072-1024}, v{VPF}
            v_add_u32 v{VPF+2}, {2*(8*3072-1024)}, v{VPF}
            v_add_u32 v{VPF+3}, {3*(8*3072-1024)}, v{VPF}
            """)
            self.perm_setup(S_M, 16, 6, S_PERM, self.o.get("rotB"))

        def wq_touch():
            self.srd(R_M, P_WQKV, 640 * 3840)
            a(f"""
            v_lshlrev_b32 v6, 7, v1
            s_mul_i32 s{S_T0+1}, s{S_T0+1}, 2880
            s_add_u32 s{S_T0+1}, s{S_T0+1}, {256*3840}
            s_mov_b64 exec, 0xffffff
            buffer_load_dword v253, v6, s[{R_M}:{R_M+3}], s{S_T0+1} offen
            s_mov_b64 exec, -1
            """)

        self.srd(R_W, P_W1, 2048 * 3072)
        common_setup()
        a("v_mov_b32 v124, 0\nv_mov_b32 v125, 0\nv_mov_b32 v126, 0x3f803f80\ns_waitcnt vmcnt(4)")
        self.stamp(11, 44)
        for c in range(20):
            a(f"v_dot2c_f32_bf16 v124, v{XR+c}, v126")
        for c in range(20):
            a(f"v_dot2c_f32_bf16 v125, v{XR+c}, v{GR+c}")
        for c in range(20):
            a(f"v_lshlrev_b32 v{XS+2*c}, 16, v{XR+c}\nv_and_b32 v{XS+2*c+1}, 0xffff0000, v{XR+c}")

        def reduce16(regs):
            for mode in ("quad_perm:[1,0,3,2]", "quad_perm:[2,3,0,1]", "row_half_mirror", "row_mirror"):
                for r in regs:
                    a(f"v_add_f32_dpp v{r}, v{r}, v{r} {mode} row_mask:0xf bank_mask:0xf")
                a("s_nop 1" if len(regs) == 1 else "s_nop 0")

        reduce16([124, 125])
        a(f"""
        v_mul_f32 v126, {f2u(-1.0/640):#x}, v124
        v_mul_f32 v127, {f2u(-1.0/640):#x}, v124
        v_mul_f32 v125, {f2u(-1.4426950408889634):#x}, v125
        v_mov_b32 v128, 0
        v_mov_b32 v129, 0
        v_mov_b32 v130, 0
        v_mov_b32 v131, 0
        v_exp_f32 v125, v125
        """)
        for c in range(20):
            a(f"v_pk_add_f32 {vr(XS+2*c,2)}, {vr(XS+2*c,2)}, v[126:127]")
        a("v_add_f32 v125, 1.0, v125\nv_rcp_f32 v125, v125")
        for c in range(20):
            t = 128 + 2 * (c & 1)
            a(f"v_pk_fma_f32 {vr(t,2)}, {vr(XS+2*c,2)}, {vr(XS+2*c,2)}, {vr(t,2)}")
        a("v_pk_add_f32 v[128:129], v[128:129], v[130:131]\nv_add_f32 v128, v128, v129\ns_nop 1")
        reduce16([128])
        a(f"v_mov_b32 v126, {f2u(1e-5):#x}\nv_fmac_f32 v126, {f2u(1.0/640):#x}, v128\nv_rsq_f32 v126, v126")
        a(f"""
        s_lshl_b32 s{S_T0}, s{S_WAVE}, 2
        v_add_u32 v2, s{S_T0}, v2
        v_mov_b32 v127, v126
        v_mul_u32_u24 v4, {LN_ST}, v2
        v_add_u32 v4, v4, v3
        v_lshlrev_b32 v2, 2, v2
        """)
        for c4 in range(5):
            for c in range(4 * c4, 4 * c4 + 4):
                a(f"v_pk_mul_f32 {vr(XS+2*c,2)}, {vr(XS+2*c,2)}, v[126:127]")
            for c in range(4 * c4, 4 * c4 + 4):
                a(f"v_cvt_pk_bf16_f32 v{XR+c}, v{XS+2*c}, v{XS+2*c+1}")
            a(f"ds_write_b128 v4, {vr(XR+4*c4,4)} offset:{LNBUF + c4*256}")
        a(f"ds_write_b32 v2, v125 offset:{LNG}")
        a(f"""
        v_and_b32 v12, 15, v1
        v_lshrrev_b32 v13, 4, v1
        v_lshrrev_b32 v15, 2, v12
        v_lshl_add_u32 v15, v13, 2, v15
        v_mul_u32_u24 v15, {LN_ST}, v15
        v_and_b32 v2, 3, v12
        v_lshl_add_u32 v15, v2, 3, v15
        s_mul_i32 s{S_T0}, s{S_WAVE}, 160
        v_add_u32 v15, s{S_T0}, v15
        v_lshlrev_b32 v14, 4, v1
        v_lshlrev_b32 v2, 2, v1
        s_mul_i32 s{S_T0}, s{S_WAVE}, {5*65536}
        s_lshl_b32 s{S_T0+1}, s{S_KST}, 10
        s_add_u32 s{S_T0}, s{S_T0}, s{S_T0+1}
        s_add_u32 s{S_T0}, s{S_T0}, {HT}
        s_waitcnt lgkmcnt(0)
        s_add_u32 s{S_TAG}, s{S_TAG}, {TAG_INC:#x}
        s_barrier
        """)
        self.stamp(12, 44)
        for i in range(5):
            a(f"ds_read_b64_tr_b16 {vr(44+4*i,2)}, v15 offset:{LNBUF + i*32}")
            a(f"ds_read_b64_tr_b16 {vr(46+4*i,2)}, v15 offset:{LNBUF + i*32+16*LN_ST}")
        a(f"ds_read_b32 v125, v2 offset:{LNG}")
        for i in range(5):
            a(f"s_waitcnt lgkmcnt({9-2*i})")
            a(f"buffer_store_dwordx4 {vr(44+4*i,4)}, v14, s[{R_WS}:{R_WS+3}], s{S_T0} offen sc1")
            if i < 4:
                a(f"s_add_u32 s{S_T0}, s{S_T0}, 65536")
        a(f"""
        s_cmp_lg_u32 s{S_WAVE}, 0
        s_cbranch_scc1 L_B_nog
        s_lshl_b32 s{S_T0}, s{S_KST}, 7
        s_add_u32 s{S_T0}, s{S_T0}, {G_OFF}
        s_waitcnt lgkmcnt(0)
        s_mov_b32 exec_hi, 0
        buffer_store_dword v125, v2, s[{R_WS}:{R_WS+3}], s{S_T0} offen sc1
        s_mov_b32 exec_hi, -1
        L_B_nog:
        s_waitcnt vmcnt(0) lgkmcnt(0)
        s_barrier
        s_cmp_lg_u32 s{S_WAVE}, 0
        s_cbranch_scc1 L_B_nofl
        s_mul_i32 s{S_T0}, s{S_KST}, {FS}
        s_add_u32 s{S_T0}, s{S_T0}, {F_LN}
        """)
        self.flag_store(S_T0, 12)
        self.stamp(1, 12)
        a("L_B_nofl:")
        if self.o.get("wq") == 1:
            a(f"s_lshl_b32 s{S_T0+1}, s{S_KST}, 3\ns_add_u32 s{S_T0+1}, s{S_T0+1}, s{S_WAVE}")
            wq_touch()
        a("s_branch L_B_join")
        a("L_B_pfrole:")
        self.srd(R_W, P_W1, 2048 * 3072)
        if self.o.get("pfdelay"):
            common_setup()
            a("s_waitcnt vmcnt(0)")
        wq = self.o.get("wq", 0)
        a(f"""
        s_sub_u32 s{S_T0}, s{S_J}, 16
        s_lshl_b32 s{S_T0}, s{S_T0}, 3
        s_add_u32 s{S_T0}, s{S_T0}, s{S_WAVE}
        s_lshl_b32 s{S_T0+1}, s{S_XCD}, 7
        s_add_u32 s{S_T0+1}, s{S_T0+1}, s{S_T0}
        v_lshrrev_b32 v6, 3, v1
        v_and_b32 v7, 7, v1
        v_min_u32 v7, 5, v7
        v_mul_u32_u24 v6, 3072, v6
        v_lshl_add_u32 v7, v7, 7, v6
        s_mul_i32 s{S_T0}, s{S_T0}, {8*3072}
        s_mul_i32 s{S_T0+2}, s{S_XCD}, 768
        s_add_u32 s{S_T0}, s{S_T0}, s{S_T0+2}
        buffer_load_dword v253, v7, s[{R_W}:{R_W+3}], s{S_T0} offen
        """)
        if wq == 0:
            wq_touch()
        a(f"""
        s_add_u32 s{S_T0}, s{S_T0}, {1024*3072}
        buffer_load_dword v253, v7, s[{R_W}:{R_W+3}], s{S_T0} offen
        """)
        if not self.o.get("pfdelay"):
            common_setup()
        self.stamp(15, 12)
        a(f"s_waitcnt lgkmcnt(0)\ns_add_u32 s{S_TAG}, s{S_TAG}, {TAG_INC:#x}")
        a(f"s_cmp_ge_u32 s{S_J}, 30\ns_cbranch_scc1 L_helper")
        N1 = self.o.get("n1", 8)
        NREG = self.o.get("nreg", 0)
        assert NREG == 0 or N1 == 8

        def w1_issue():
            t = self.perm_next(S_T0, S_PERM, 128 * 3072)
            t += f"s_mov_b32 m0, s{S_B}\ns_add_u32 s{S_T0}, s{S_T0}, s{S_A}\n"
            for i in range(4):
                t += f"buffer_load_dwordx4 v{VPF+i}, s[{R_W}:{R_W+3}], s{S_T0} offen offset:{i*1024} lds\n"
            t += f"s_add_u32 s{S_B}, s{S_B}, 16384\n"
            return t
        a(f"""
        L_B_join:
        s_cmp_lt_u32 s{S_WAVE}, 4
        s_cbranch_scc1 L_B_comp0
        s_sub_u32 s{S_T0}, s{S_WAVE}, 4
        s_lshl_b32 s{S_B}, s{S_T0}, 12
        s_mul_i32 s{S_A}, s{S_T0}, {32*3072}
        s_lshl_b32 s{S_T0}, s{S_FT}, 7
        s_add_u32 s{S_A}, s{S_A}, s{S_T0}
        L_B_pf:
        """ + w1_issue() + f"""
        s_cmp_lt_u32 s{S_B}, {N1*16384}
        s_cbranch_scc1 L_B_pf
        """)
        for k in range(NREG):
            if k == 4:
                a("s_waitcnt vmcnt(40)")
            a(self.perm_next(S_T0, S_PERM, 128 * 3072) + f"s_add_u32 s{S_T0}, s{S_T0}, s{S_A}")
            for i in range(4):
                a(f"buffer_load_dwordx4 {vr(64+16*k+4*i,4)}, v{VPF+i}, s[{R_W}:{R_W+3}], s{S_T0} offen offset:{i*1024}")
        a(f"s_branch L_B_aux\nL_B_comp0:\ns_cmp_lg_u32 s{S_WAVE}, 0\ns_cbranch_scc1 L_B_l3")
        a(f"v_mul_u32_u24 v12, {FS}, v1\nv_add_u32 v12, {F_LN}, v12")
        self.poll([12], 14)
        self.stamp(2, 12)
        a("L_B_l3:")
        PF, WF, ACC, VT, VL = 64, 128, 160, 8, 12
        a(f"""
        s_lshl_b32 s{S_T0}, s{S_DT}, 3
        s_lshl_b32 s{S_T0+1}, s{S_WAVE}, 1
        s_add_u32 s{S_D}, s{S_T0}, s{S_T0+1}
        s_lshl_b32 s{S_T0}, s{S_D}, 16
        s_add_u32 s{S_T0}, s{S_T0}, {HT}
        """)
        self.srd(R_P, P_WS, 65536, off_s=S_T0)
        a(f"s_add_u32 s{S_T0}, s{S_T0}, 65536")
        self.srd(R_M, P_WS, 65536, off_s=S_T0)
        a(f"v_lshlrev_b32 v{VL}, 4, v1\ns_mov_b32 s{S_B}, 0")
        a(self.perm_next(S_C, S_PERM, 4096))
        self.tr_addr(VT)
        for r in range(32):
            a(f"v_mov_b32 v{ACC+r}, 0")
        a("s_barrier")
        RP = (R_P, R_M)

        def pload(u, ks):
            if self.o.get("x_noload"):
                return "s_nop 0"
            sc = "" if self.o.get("x_nosc1") else "sc1"
            so = "0" if self.o.get("x_same") else f"s{S_C}"
            return "\n".join(f"buffer_load_dwordx4 {vr(PF+32*(u%2)+8*ks+4*d,4)}, v{VL}, s[{RP[d]}:{RP[d]+3}], {so} offen offset:{ks*1024} {sc}" for d in range(2))

        for t in range(2):
            for ks in range(4):
                a(pload(t, ks))
            a(self.perm_next(S_C, S_PERM, 4096))
            if t == 0:
                first_bar_here = len(a.L)

        def mk(u, bar, virtual=False, head=None, tail=None):
            uses = []
            for ks in range(4):
                for b in range(4):
                    g = ks * 4 + b
                    wb = WF + 4 * (g % 8)
                    off = u * 16384 + ks * 4096
                    reads = [(f"w{g}a", f"ds_read_b64_tr_b16 {vr(wb,2)}, v{VT+b} offset:{off}"),
                             (f"w{g}b", f"ds_read_b64_tr_b16 {vr(wb+2,2)}, v{VT+b} offset:{off+2048}")]
                    mf = []
                    for dd in range(2):
                        acc = vr(ACC + 16 * dd + 4 * b, 4)
                        mf.append(f"v_mfma_f32_16x16x32_bf16 {acc}, {vr(wb,4)}, {vr(PF+32*(u%2)+8*ks+4*dd,4)}, {acc}")
                    d = dict(reads=reads, need=[f"w{g}b"], mf=mf)
                    if b == 0:
                        d["vm"] = 14
                    if b == 3:
                        d["after"] = pload(u, ks)
                        if ks == 3:
                            d["after"] += "\n" + self.perm_next(S_C, S_PERM, 4096)
                            if u >= 1:
                                d["after"] += f"s_cmp_ge_u32 s{S_B}, 3\ns_cselect_b32 s{S_C}, 0x10000, s{S_C}"
                    uses.append(d)
            return dict(uses=uses, bar=bar, virtual=virtual, head=head, tail=tail)

        xo = "s_barrier\n" + "\n".join(f"v_xor_b32 v{VT+b}, 0x10000, v{VT+b}" for b in range(4))
        tail = f"s_add_u32 s{S_B}, s{S_B}, 1\ns_cmp_lt_u32 s{S_B}, 4\ns_cbranch_scc1 L_B_loop"
        st = [mk(0, "", head="L_B_loop:"), mk(1, "s_barrier"), mk(2, "s_barrier"), mk(3, "s_barrier", tail=tail), mk(0, xo, virtual=True)]
        a.L.insert(first_bar_here, "    s_barrier")
        nd = self.o.get("nodrain")
        LB = self.o.get("LB", 7)
        self.pipeline(st, LB, (16 - LB) if nd else 13, drain=not nd, wait_every=self.o.get('we', 2))
        if nd:
            a("s_waitcnt lgkmcnt(0)\ns_barrier")
        self.stamp(3, 44)
        c = 0.7978845608028654
        k0 = -2.0 * c * 1.4426950408889634
        k1 = k0 * 0.044715
        a(f"""
        s_waitcnt lgkmcnt(0)
        s_mov_b32 s{S_K0}, {f2u(k1):#x}
        s_mov_b32 s{S_K0+1}, {f2u(k1):#x}
        v_mov_b32 v44, {f2u(k0):#x}
        v_mov_b32 v45, {f2u(k0):#x}
        v_mov_b32 v46, 1.0
        v_mov_b32 v47, 1.0
        s_mul_i32 s{S_T0}, s{S_D}, {UW_ST}
        s_lshl_b32 s{S_T0+1}, s{S_FT}, 11
        s_add_u32 s{S_T0}, s{S_T0}, s{S_T0+1}
        s_add_u32 s{S_T0}, s{S_T0}, {UW}
        """)
        BF = 16
        for b in range(4):
            a(f"v_lshlrev_b32 v{BF+4*b}, 16, v{B1R+2*b}\nv_and_b32 v{BF+4*b+1}, 0xffff0000, v{B1R+2*b}")
            a(f"v_lshlrev_b32 v{BF+4*b+2}, 16, v{B1R+2*b+1}\nv_and_b32 v{BF+4*b+3}, 0xffff0000, v{B1R+2*b+1}")
        for dd in range(2):
            for p in range(2):
                r = ACC + 16 * dd + 8 * p
                T = 48
                for q in range(4):
                    a(f"v_pk_add_f32 {vr(r+2*q,2)}, {vr(r+2*q,2)}, {vr(BF+8*p+2*q,2)}")
                for q in range(4):
                    a(f"v_pk_mul_f32 {vr(T+2*q,2)}, {vr(r+2*q,2)}, {vr(r+2*q,2)}")
                for q in range(4):
                    a(f"v_pk_fma_f32 {vr(T+2*q,2)}, {vr(T+2*q,2)}, s[{S_K0}:{S_K0+1}], v[44:45]")
                for q in range(4):
                    a(f"v_pk_mul_f32 {vr(T+2*q,2)}, {vr(T+2*q,2)}, {vr(r+2*q,2)}")
                for q in range(8):
                    a(f"v_exp_f32 v{T+q}, v{T+q}")
                for q in range(4):
                    a(f"v_pk_add_f32 {vr(T+2*q,2)}, {vr(T+2*q,2)}, v[46:47]")
                for q in range(8):
                    a(f"v_rcp_f32 v{T+q}, v{T+q}")
                for q in range(4):
                    a(f"v_pk_mul_f32 {vr(r+2*q,2)}, {vr(r+2*q,2)}, {vr(T+2*q,2)}")
                o = 56 + 4 * (p & 1)
                for q in range(4):
                    a(f"v_cvt_pk_bf16_f32 v{o+q}, v{r+2*q}, v{r+2*q+1}")
                a(f"buffer_store_dwordx4 {vr(o,4)}, v{VL}, s[{R_WS}:{R_WS+3}], s{S_T0} offen offset:{p*1024} sc1")
            if dd == 0:
                a(f"s_add_u32 s{S_T0}, s{S_T0}, {UW_ST}")
        self.stamp(10, 44)
        a("s_waitcnt vmcnt(0)\ns_barrier\ns_branch L_F_comp")

        a("L_B_aux:\ns_barrier")
        order = list(range(N1 + NREG))
        cnt = {k: 4 for k in range(16)}
        cnt["t"] = 1
        nxt = N1
        lag = self.o.get("lag", 0)
        if NREG:
            a(f"""
            s_sub_u32 s{S_T0}, s{S_WAVE}, 4
            s_lshl_b32 s{S_T0}, s{S_T0}, 12
            v_lshlrev_b32 v12, 4, v1
            v_add_u32 v12, s{S_T0}, v12
            v_add_u32 v13, 0x10000, v12
            s_add_u32 s{S_B}, s{S_T0}, {(NREG % 8) * 16384}
            """)
        for tb in range(17):
            if tb < 16:
                n = sum(cnt[x] for x in order[order.index(tb) + 1:])
                a(f"s_waitcnt vmcnt({min(n, 63)}) lgkmcnt(0)")
            a("s_barrier")
            if tb < 16:
                self.stamp(16 + tb, 44)
            k = 0
            while nxt <= min(15, tb + (6 if self.o.get("nodrain") and nxt >= 8 else 7) - (lag if nxt >= 8 + NREG else 0)) and k < 2:
                if 8 <= nxt < 8 + NREG:
                    n = sum(cnt[x] for x in order[order.index(nxt) + 1:])
                    a(f"s_waitcnt vmcnt({min(n, 63)})")
                    sl = nxt % 8
                    for i in range(4):
                        a(f"ds_write_b128 v{13 if sl >= 4 else 12}, {vr(64+16*(nxt-8)+4*i,4)} offset:{(sl&3)*16384+i*1024}")
                else:
                    if nxt == 8:
                        a(f"s_and_b32 s{S_B}, s{S_B}, 0x1ffff")
                    a(w1_issue())
                    order.append(nxt)
                nxt += 1
                k += 1
        assert nxt == 16
        if self.o.get("nodrain"):
            a("s_barrier")
        skip = self.if_wave56()
        nB1 = self.o.get("nB1", 0)
        if nB1:
            self.w2_setup()
            self.w2_prefill(nB1)
            a("s_barrier\ns_nop 7\ns_nop 7")
            self.w2_prefill(8 - nB1)
        else:
            a("s_barrier")
            self.w2_setup()
            self.w2_prefill(8)
        a("s_branch L_F_loader")
        a(f"{skip}:\ns_barrier")
        a(f"s_cmp_lg_u32 s{S_WAVE}, 7\ns_cbranch_scc1 L_F_u4")
        a(f"s_mul_i32 s{S_T0}, s{S_DT}, 24\ns_add_u32 s{S_T0}, s{S_T0}, s{S_FT}\ns_mul_i32 s{S_T0}, s{S_T0}, {FS}\ns_add_u32 s{S_T0}, s{S_T0}, {F_U}")
        self.flag_store(S_T0, 12)
        self.stamp(4, 12)
        a("s_branch L_F_poller")

    def w2_l2_prefetch(self, VT):
        a = self.a
        self.srd(R_W2, P_W2, 1536 * 4096)
        a(f"""
        v_lshrrev_b32 v{VT}, 3, v1
        v_and_b32 v{VT+1}, 7, v1
        v_lshlrev_b32 v{VT+1}, 7, v{VT+1}
        v_lshl_add_u32 v{VT}, v{VT}, 12, v{VT+1}
        s_mul_i32 s{S_T0}, s{S_J}, 48
        s_and_b32 s{S_T0+1}, s{S_WAVE}, 3
        s_mul_i32 s{S_T0+1}, s{S_T0+1}, 12
        s_add_u32 s{S_T0}, s{S_T0}, s{S_T0+1}
        s_lshl_b32 s{S_T0}, s{S_T0}, 12
        s_lshr_b32 s{S_T0+1}, s{S_XCD}, 1
        s_lshl_b32 s{S_T0+1}, s{S_T0+1}, 10
        s_add_u32 s{S_T0}, s{S_T0}, s{S_T0+1}
        buffer_load_dword v{VT+2}, v{VT}, s[{R_W2}:{R_W2+3}], s{S_T0} offen
        s_add_u32 s{S_T0}, s{S_T0}, {8*4096}
        s_mov_b32 exec_hi, 0
        buffer_load_dword v{VT+3}, v{VT}, s[{R_W2}:{R_W2+3}], s{S_T0} offen
        s_mov_b64 exec, -1
        """)

    def tr_addr(self, VT):
        a = self.a
        a(f"""
        v_and_b32 v{VT+1}, 15, v1
        v_lshrrev_b32 v{VT+2}, 4, v1
        v_lshrrev_b32 v{VT+3}, 2, v{VT+1}
        v_lshl_add_u32 v{VT+3}, v{VT+2}, 2, v{VT+3}
        v_bfe_u32 v{VT+2}, v{VT+3}, 1, 2
        v_lshlrev_b32 v{VT+3}, 7, v{VT+3}
        v_lshl_add_u32 v{VT+3}, v{VT+2}, 5, v{VT+3}
        v_and_b32 v{VT+1}, 3, v{VT+1}
        v_lshl_add_u32 v{VT}, v{VT+1}, 3, v{VT+3}
        v_xor_b32 v{VT+1}, 32, v{VT}
        v_xor_b32 v{VT+2}, 64, v{VT}
        v_xor_b32 v{VT+3}, 96, v{VT}
        """)

    def helper(self):
        a = self.a
        a("L_helper:")
        a(f"""
        s_lshl_b32 s{S_D}, s{S_XCD}, 1
        s_add_u32 s{S_D}, s{S_D}, s{S_J}
        s_sub_u32 s{S_D}, s{S_D}, 30
        """)
        self.srd(R_W, P_WO, 640 * 1280)
        for p in range(5):
            a(f"""
            v_add_u32 v12, {p*64}, v1
            v_mul_u32_u24 v13, 205, v12
            v_lshrrev_b32 v13, 11, v13
            v_mul_u32_u24 v14, 10, v13
            v_sub_u32 v14, v12, v14
            v_lshlrev_b32 v14, 4, v14
            v_mul_u32_u24 v13, 1280, v13
            v_add_u32 v{16+p}, v13, v14
            """)
            if p in (1, 2, 3):
                a(f"v_subrev_u32 v{16+p}, {p*1024}, v{16+p}")
        a(f"""
        s_mov_b32 s{S_C}, s{S_WAVE}
        L_H_ld:
        s_mul_i32 s{S_A}, s{S_C}, {32*1280}
        s_mul_i32 s{S_T0}, s{S_D}, 160
        s_add_u32 s{S_A}, s{S_A}, s{S_T0}
        s_mul_i32 s{S_B}, s{S_C}, 5120
        s_mov_b32 m0, s{S_B}
        s_nop 0
        """)
        for p in range(4):
            a(f"buffer_load_dwordx4 v{16+p}, s[{R_W}:{R_W+3}], s{S_A} offen offset:{p*1024} lds")
        a(f"s_add_u32 m0, s{S_B}, 4096\ns_nop 0\nbuffer_load_dwordx4 v20, s[{R_W}:{R_W+3}], s{S_A} offen lds")
        a(f"""
        s_add_u32 s{S_C}, s{S_C}, 8
        s_cmp_lt_u32 s{S_C}, 20
        s_cbranch_scc1 L_H_ld
        v_and_b32 v12, 15, v1
        v_lshrrev_b32 v13, 4, v1
        v_lshrrev_b32 v14, 2, v12
        v_lshl_add_u32 v14, v13, 2, v14
        v_mul_u32_u24 v14, 160, v14
        v_and_b32 v12, 3, v12
        v_lshl_add_u32 v14, v12, 3, v14
        v_lshlrev_b32 v15, 4, v1
        s_waitcnt vmcnt(0)
        s_barrier
        s_mov_b32 s{S_C}, s{S_WAVE}
        L_H_tr:
        s_lshr_b32 s{S_T0}, s{S_C}, 1
        s_mul_i32 s{S_T0}, s{S_T0}, 5
        s_and_b32 s{S_T0+1}, s{S_C}, 1
        s_lshl_b32 s{S_T0+1}, s{S_T0+1}, 1
        s_add_u32 s{S_T0}, s{S_T0}, s{S_T0+1}
        s_add_u32 s{S_T0+1}, s{S_T0}, 1
        s_mul_i32 s{S_T0+2}, s{S_C}, 10
        s_sub_u32 s{S_T0+2}, s{S_T0+2}, 156
        s_add_u32 s{S_T0+3}, s{S_T0+2}, 5
        s_cmp_lt_u32 s{S_C}, 16
        s_cselect_b32 s{S_T0}, s{S_T0}, s{S_T0+2}
        s_cselect_b32 s{S_T0+1}, s{S_T0+1}, s{S_T0+3}
        s_mul_i32 s{S_T0}, s{S_T0}, 2560
        s_mul_i32 s{S_T0+1}, s{S_T0+1}, 2560
        v_add_u32 v12, s{S_T0}, v14
        v_add_u32 v13, s{S_T0+1}, v14
        """)
        for b in range(5):
            a(f"ds_read_b64_tr_b16 {vr(24+4*b,2)}, v12 offset:{b*32}\nds_read_b64_tr_b16 {vr(26+4*b,2)}, v13 offset:{b*32}")
        a(f"""
        s_mul_i32 s{S_T0}, s{S_D}, {5*UW_ST}
        s_lshl_b32 s{S_T0+1}, s{S_C}, 10
        s_add_u32 s{S_T0}, s{S_T0}, s{S_T0+1}
        s_add_u32 s{S_T0}, s{S_T0}, {UW + 49152}
        """)
        for b in range(5):
            a(f"s_waitcnt lgkmcnt({8-2*b})")
            a(f"buffer_store_dwordx4 {vr(24+4*b,4)}, v15, s[{R_WS}:{R_WS+3}], s{S_T0} offen sc1")
            if b < 4:
                a(f"s_add_u32 s{S_T0}, s{S_T0}, {UW_ST}")
        a(f"""
        s_add_u32 s{S_C}, s{S_C}, 8
        s_cmp_lt_u32 s{S_C}, 20
        s_cbranch_scc1 L_H_tr
        s_waitcnt vmcnt(0)
        s_barrier
        """)
        skip = self.if_wave56()
        self.w2_setup()
        self.w2_prefill(8)
        a(f"s_branch L_F_loader\n{skip}:")
        a(f"s_cmp_lt_u32 s{S_WAVE}, 4\ns_cbranch_scc1 L_F_comp\ns_cmp_lg_u32 s{S_WAVE}, 7\ns_cbranch_scc1 L_F_u4")
        a(f"s_mul_i32 s{S_T0}, s{S_D}, {FS}\ns_add_u32 s{S_T0}, s{S_T0}, {F_WOT}")
        self.flag_store(S_T0, 12)
        self.stamp(14, 12)
        a("s_branch L_F_poller")

    F_WOT_REG = 172

    def uw_srd(self):
        a = self.a
        a(f"""
        s_mul_i32 s{S_T0}, s{S_DTILE}, 5
        s_add_u32 s{S_D}, s{S_T0}, s{S_WAVE}
        s_mul_i32 s{S_T0}, s{S_D}, {UW_ST}
        s_add_u32 s{S_T0}, s{S_T0}, {UW}
        """)
        self.srd(R_P, P_WS, UW_ST, off_s=S_T0)

    def wot_preload(self, VL):
        a = self.a
        for k in range(20):
            if k % 4 == 0:
                a(f"s_mov_b32 s{S_C}, {49152 + k*1024}")
            a(f"buffer_load_dwordx4 {vr(self.F_WOT_REG+4*k,4)}, v{VL}, s[{R_P}:{R_P+3}], s{S_C} offen offset:{(k%4)*1024} sc1")

    def f0_barrier(self):
        lab = self.a.label("f0")
        self.a(f"s_cmp_eq_u32 s{S_FROMA}, 1\ns_cbranch_scc1 {lab}\ns_barrier\n{lab}:")

    def final(self):
        a = self.a
        a("L_F_comp:")
        if self.stop == "phase1":
            a("s_branch L_end")
        PF, WF, ACC, ACC4, U4, WOT = 64, 112, 144, 160, 164, 172
        NPF = 3
        pre = True
        VT, VL, VU4, VT2, GV, BV, VGH, VG8 = 8, 12, 13, 16, 20, 24, 28, 32
        self.uw_srd()
        self.srd(R_M, P_B2, 4096)
        self.srd(R_OUT, P_OUT, 2048 * 1280)
        self.tr_addr(4)
        a(f"""
        v_lshlrev_b32 v{VL}, 4, v1
        v_add_u32 v{VU4}, 0x20000, v{VL}
        v_lshlrev_b32 v5, 3, v1
        v_and_b32 v2, 15, v1
        v_lshlrev_b32 v3, 1, v2
        v_lshlrev_b32 v2, 2, v2
        """)
        SB = S_MSK
        for b in range(4):
            a(f"""
            s_add_u32 s{SB+b}, s{S_WAVE}, {b}
            s_and_b32 s{SB+b}, s{SB+b}, 3
            s_lshl_b32 s{S_T0}, s{SB+b}, 5
            v_xor_b32 v{VT+b}, s{S_T0}, v4
            s_lshl_b32 s{S_T0+1}, s{S_ST}, 7
            s_add_u32 s{S_T0}, s{S_T0}, s{S_T0+1}
            buffer_load_ushort v{BV+b}, v3, s[{R_M}:{R_M+3}], s{S_T0} offen
            v_add_u32 v{VT2+b}, 0x10000, v{VT+b}
            s_lshl_b32 s{S_T0}, s{SB+b}, 12
            v_add_u32 v{VG8+b}, s{S_T0}, v5
            s_add_u32 s{S_T0}, s{S_T0}, 0x10000
            v_add_u32 v{VGH+b}, s{S_T0}, v{VL}
            """)
        for r in range(16):
            a(f"v_mov_b32 v{ACC+r}, 0")
        for r in range(4):
            a(f"v_mov_b32 v{ACC4+r}, 0")
        a(f"s_lshl_b32 s{S_A}, s{S_ST}, 8\ns_add_u32 s{S_A}, s{S_A}, {G_OFF}")
        self.f_perm()
        nstream = 12 if pre else 17

        def next_sc(step):
            if step < 12:
                return self.perm_next(S_C, S_PERM, 4096)
            return f"s_mov_b32 s{S_C}, {step*4096}\n"
        a(f"s_cmp_eq_u32 s{S_FROMA}, 1\ns_cbranch_scc1 L_F_nowot\ns_barrier")
        self.wot_preload(VL)
        a("L_F_nowot:")
        a(next_sc(0))
        a("s_barrier")
        for t in range(NPF):
            for ks in range(4):
                a(f"buffer_load_dwordx4 {vr(PF+16*t+4*ks,4)}, v{VL}, s[{R_P}:{R_P+3}], s{S_C} offen offset:{ks*1024} sc1")
            a(next_sc(t + 1))
            if t == 0:
                a("s_barrier")
            if t == NPF - 1:
                for b in range(4):
                    a(f"s_lshl_b32 s{S_T0}, s{SB+b}, 6\ns_add_u32 s{S_T0}, s{S_T0}, s{S_A}")
                    a(f"buffer_load_dword v{GV+b}, v2, s[{R_WS}:{R_WS+3}], s{S_T0} offen sc1")

        mid = "s_nop 7\n"
        for b in range(4):
            mid += f"v_lshlrev_b32 v{BV+b}, 16, v{BV+b}\nv_sub_f32 v{GV+b}, 1.0, v{GV+b}\n"
        blocks = [(ACC + 4 * b, b) for b in range(4)] + [(ACC4, 0)]
        for r0, b in blocks:
            for k in range(4):
                mid += f"v_add_f32 v{r0+k}, v{BV+b}, v{r0+k}\n"
        for r0, b in blocks:
            for k in range(4):
                mid += f"v_mul_f32 v{r0+k}, v{GV+b}, v{r0+k}\n"
        mid += "s_nop 1\n"

        stages = []
        for t in range(17):
            slot = t % 8
            hi = slot >= 4
            uses = []
            for ks in range(4):
                for b in range(4):
                    g = ks * 4 + b
                    wb = WF + 4 * (g % 8)
                    reads = []
                    u4 = U4 + 4 * (ks & 1)
                    if b == 0:
                        reads.append((f"u{ks}", f"ds_read_b128 {vr(u4,4)}, v{VU4} offset:{slot*4096 + ks*1024}"))
                    if t < 12:
                        off = (slot & 3) * 16384 + ks * 4096
                        va = (VT2 if hi else VT) + b
                        reads += [(f"w{g}a", f"ds_read_b64_tr_b16 {vr(wb,2)}, v{va} offset:{off}"),
                                  (f"w{g}b", f"ds_read_b64_tr_b16 {vr(wb+2,2)}, v{va} offset:{off+2048}")]
                    elif t < 16:
                        assert hi
                        off = (slot & 3) * 16384 + ks * 1024
                        reads += [(f"w{g}b", f"ds_read_b128 {vr(wb,4)}, v{VGH+b} offset:{off}")]
                    else:
                        off = (slot & 3) * 16384 + ks * 1024
                        assert not hi
                        reads += [(f"w{g}a", f"ds_read_b64 {vr(wb,2)}, v{VG8+b} offset:{off}"),
                                  (f"w{g}b", f"ds_read_b64 {vr(wb+2,2)}, v{VG8+b} offset:{off+512}")]
                    acc = vr(ACC + 4 * b, 4)
                    ring = t < nstream
                    pf = vr(PF + 16 * (t % NPF) + 4 * ks, 4) if ring else vr(WOT + 16 * (t - 12) + 4 * ks, 4)
                    mf = [f"v_mfma_f32_16x16x32_bf16 {acc}, {pf}, {vr(wb,4)}, {acc}"]
                    if b == 0:
                        mf.append(f"v_mfma_f32_16x16x32_bf16 {vr(ACC4,4)}, {vr(u4,4)}, {vr(wb,4)}, {vr(ACC4,4)}")
                    d = dict(reads=reads, need=[f"w{g}b"], mf=mf)
                    if b == 0 and ring:
                        k = t * 4 + ks
                        n = min(k + 4 * NPF - 1, 4 * nstream - 1) - k
                        if t < NPF:
                            n += 4
                        d["vm"] = n
                    if b == 3 and t + NPF < nstream:
                        d["after"] = f"buffer_load_dwordx4 {pf}, v{VL}, s[{R_P}:{R_P+3}], s{S_C} offen offset:{ks*1024} sc1"
                        if ks == 3 and t + NPF + 1 < nstream:
                            d["after"] += "\n" + next_sc(t + NPF + 1)
                    if t == 12 and g == 0:
                        d["before"] = mid
                    uses.append(d)
            stages.append(dict(uses=uses, bar="s_barrier" if t else ""))
        nd = self.o.get("nodrain")
        LF = self.o.get("LF", 6)
        self.pipeline(stages, LF, (16 - LF) if nd else 13, drain=not nd, wait_every=self.o.get('we', 2))
        self.stamp(8, 2)
        a(f"""
        v_and_b32 v2, 15, v1
        v_mul_u32_u24 v2, 1280, v2
        v_lshrrev_b32 v3, 4, v1
        v_lshl_add_u32 v2, v3, 3, v2
        s_mul_i32 s{S_A}, s{S_ST}, {64*1280}
        s_lshl_b32 s{S_T0+1}, s{S_D}, 5
        s_add_u32 s{S_B}, s{S_A}, s{S_T0+1}
        s_mul_i32 s{S_T0+1}, s{S_DTILE}, 160
        s_add_u32 s{S_A}, s{S_A}, s{S_T0+1}
        s_add_u32 s{S_A}, s{S_A}, 128
        """)
        for r, b in blocks:
            a(f"s_mul_i32 s{S_T0}, s{SB+b}, {16*1280}\ns_add_u32 s{S_T0}, s{S_T0}, s{S_A if r == ACC4 else S_B}")
            a(f"v_cvt_pk_bf16_f32 v{r}, v{r}, v{r+1}\nv_cvt_pk_bf16_f32 v{r+1}, v{r+2}, v{r+3}")
            a(f"buffer_store_dwordx2 {vr(r,2)}, v2, s[{R_OUT}:{R_OUT+3}], s{S_T0} offen {['', 'sc1', 'nt', 'sc0 sc1'][self.o.get('osc', 0)]}")
        if self.stamps or self.o.get("dbg"):
            a("s_waitcnt vmcnt(0)")
            self.stamp(9, 2)
        if self.o.get("calib"):
            a(f"""
            L_cal:
            s_memrealtime s[96:97]
            s_waitcnt lgkmcnt(0)
            s_sub_u32 s96, s96, s98
            s_cmp_lt_u32 s96, {self.o.get("calib")*100}
            s_cbranch_scc1 L_cal
            """)
        a(f"s_or_b32 s{S_T0}, s2, s{S_WAVE}\ns_cmp_lg_u32 s{S_T0}, 0\ns_cbranch_scc1 L_end\ns_mov_b32 s{S_T0}, 0")
        self.flag_store(S_T0, 4)
        a("s_branch L_end")

        a("L_F_u4:")
        if self.stop == "phase1":
            a("s_branch L_end")
        a(f"""
        v_lshlrev_b32 v{VL}, 4, v1
        s_mul_i32 s{S_C}, s{S_DTILE}, {5*UW_ST}
        s_add_u32 s{S_C}, s{S_C}, {UW + 4*UW_ST}
        """)
        self.f_perm()
        self.f0_barrier()
        a("s_barrier")

        def u4_issue(iv):
            if iv < 12:
                a(self.perm_next(S_T0, S_PERM, 4096) + f"s_mov_b32 m0, {0x20000 + (iv % 8)*4096:#x}\ns_add_u32 s{S_T0}, s{S_T0}, s{S_C}")
            else:
                a(f"s_mov_b32 m0, {0x20000 + (iv % 8)*4096:#x}\ns_add_u32 s{S_T0}, s{S_C}, {iv*4096}")
            for i in range(4):
                a(f"buffer_load_dwordx4 v{VL}, s[{R_WS}:{R_WS+3}], s{S_T0} offen offset:{i*1024} sc1 lds")
        order = []
        for iv in range(8):
            u4_issue(iv)
            order.append(iv)
            if iv == 2:
                a("s_waitcnt vmcnt(8)\ns_barrier")
        for tb in range(1, 17):
            a(f"s_waitcnt vmcnt({4*len(order[order.index(tb)+1:])})\ns_barrier")
            iv = tb + (6 if self.o.get("nodrain") else 7)
            if 8 <= iv <= 16:
                u4_issue(iv)
                order.append(iv)
        a("s_branch L_end")

        a("L_F_loader:")
        if self.stop == "phase1":
            a("s_branch L_end")
        a(f"v_lshlrev_b32 v{VL}, 4, v1")
        self.f0_barrier()
        a("s_barrier")
        a(f"""
        s_sub_u32 s{S_T0}, s{S_WAVE}, 5
        s_lshl_b32 s{S_T0}, s{S_T0}, 1
        s_lshl_b32 s{S_T0+1}, s{S_ST}, 2
        s_add_u32 s{S_T0+1}, s{S_T0+1}, s{S_T0}
        s_mul_i32 s{S_C}, s{S_T0+1}, {GO_ST}
        s_add_u32 s{S_C}, s{S_C}, {GO}
        s_lshl_b32 s{S_D}, s{S_T0}, 12
        """)
        order = list(range(8))
        for tb in range(17):
            after = [x for x in order[order.index(tb) + 1:]]
            n = 8 * len(after)
            a(f"s_waitcnt vmcnt({min(n,63)})\ns_barrier")
            t = tb - 1
            tw = t - (1 if self.o.get("nodrain") else 0)
            if 0 <= tw <= 3:
                self.w2_issue()
                order.append(tw + 8)
            if 8 <= t <= 12:
                iv = t + 4
                g = iv - 12
                for s2 in range(2):
                    a(f"s_add_u32 m0, s{S_D}, {(iv % 8)*16384 + s2*4096}\ns_add_u32 s{S_T0}, s{S_C}, {s2*GO_ST + g*4096}")
                    for i in range(4):
                        a(f"buffer_load_dwordx4 v{VL}, s[{R_WS}:{R_WS+3}], s{S_T0} offen offset:{i*1024} sc1 lds")
                order.append(iv)
        a("s_branch L_end")
        a("L_F_poller:")
        if self.stop == "phase1":
            a("s_branch L_end")
        a(f"s_cmp_eq_u32 s{S_FROMA}, 1\ns_cbranch_scc1 L_F_pnowot")
        a(f"s_mul_i32 s{S_T0}, s{S_DTILE}, {FS}\ns_add_u32 s{S_T0}, s{S_T0}, {F_WOT}\nv_mov_b32 v2, s{S_T0}")
        self.poll([2], 4)
        a("s_barrier\nL_F_pnowot:")
        a(f"""
        s_mul_i32 s{S_T0}, s{S_DTILE}, 5
        s_lshr_b32 s{S_T0+1}, s{S_T0}, 3
        s_add_u32 s{S_T0}, s{S_T0}, 4
        s_lshr_b32 s{S_T0}, s{S_T0}, 3
        s_mul_i32 s{S_T0}, s{S_T0}, 24
        s_mul_i32 s{S_T0+1}, s{S_T0+1}, 24
        v_and_b32 v2, 31, v1
        v_min_u32 v2, 23, v2
        v_add_u32 v3, s{S_T0}, v2
        v_add_u32 v2, s{S_T0+1}, v2
        v_cmp_gt_u32 vcc, 32, v1
        s_mul_i32 s{S_T0}, s{S_DTILE}, {FS}
        s_add_u32 s{S_T0}, s{S_T0}, {F_WOT}
        v_cndmask_b32 v2, v2, v3, vcc
        v_mul_u32_u24 v2, {FS}, v2
        v_add_u32 v2, {F_U}, v2
        v_mov_b32 v3, s{S_T0}
        v_cmp_eq_u32 vcc, 63, v1
        s_nop 1
        v_cndmask_b32 v2, v2, v3, vcc
        """)
        self.poll([2], 4)
        self.stamp(6, 4)
        a("s_barrier")
        a(f"""
        v_and_b32 v2, 7, v1
        s_lshr_b32 s{S_T0}, s{S_ST}, 1
        s_lshl_b32 s{S_T0}, s{S_T0}, 3
        v_add_u32 v2, s{S_T0}, v2
        v_mul_u32_u24 v2, {FS}, v2
        v_add_u32 v2, {F_GO}, v2
        """)
        gp = self.o.get("gopoll", 9)
        for tb in range(gp):
            a("s_barrier")
            if tb == 1:
                a(f"s_cmp_eq_u32 s{S_FROMA}, 1\ns_cbranch_scc0 L_F_nogo")
                a(f"s_lshl_b32 s{S_T0}, s{S_MT}, 3\ns_add_u32 s{S_T0}, s{S_T0}, s{S_HG}\ns_mul_i32 s{S_T0}, s{S_T0}, {FS}\ns_add_u32 s{S_T0}, s{S_T0}, {F_GO}")
                self.flag_store(S_T0, 6)
                a("L_F_nogo:")
            self.stamp(32 + tb, 4)
        self.poll([2], 4)
        self.stamp(7, 4)
        for tb in range(gp, 17):
            a("s_barrier")
            self.stamp(32 + tb, 4)
        a("L_end:")
        if "probe" in self.o or "pc1" in self.o:
            a("""
            s_cmp_eq_u32 s94, 0
            s_cbranch_scc1 L_exit
            L_prb:
            s_memrealtime s[96:97]
            s_waitcnt lgkmcnt(0)
            s_sub_u32 s96, s96, s98
            s_cmp_lt_i32 s96, 4000
            s_cbranch_scc1 L_prb
            """)
        if self.stamps:
            a(f"""
            s_lshl_b32 s{S_T0}, s2, 3
            s_add_u32 s{S_T0}, s{S_T0}, s{S_WAVE}
            s_lshl_b32 s{S_T0}, s{S_T0}, 9
            s_add_u32 s{S_T0}, s{S_T0}, {STAMP}
            v_lshlrev_b32 v2, 3, v1
            buffer_store_dwordx2 v[254:255], v2, s[{R_WS}:{R_WS+3}], s{S_T0} offen
            """)
        a("L_exit:\ns_endpgm")

    def build(self, header):
        a = self.a
        self.prologue()
        self.role_a()
        self.role_b()
        self.helper()
        self.final()
        body = a.text()
        out = header
        out += f"; @launch grid=(256,1,1) block=(512,1,1) lds={LDS_BYTES}\n"
        out += f'.amdgcn_target "amdgcn-amd-amdhsa--gfx950"\n.text\n.globl {KNAME}\n.p2align 8\n.type {KNAME},@function\n{KNAME}:\n'
        out += body
        out += f""".section .rodata,"a"
.p2align 6
.amdhsa_kernel {KNAME}
  .amdhsa_next_free_vgpr 256
  .amdhsa_next_free_sgpr 102
  .amdhsa_accum_offset 256
  .amdhsa_group_segment_fixed_size 0
  .amdhsa_kernarg_size 96
  .amdhsa_user_sgpr_count 2
  .amdhsa_user_sgpr_kernarg_segment_ptr 1
  .amdhsa_system_sgpr_workgroup_id_x 1
  .amdhsa_float_denorm_mode_32 3
.end_amdhsa_kernel
"""
        return out


def header():
    ref = open("gated_mix__linear_attn_block__mixer_token_mlp__prompt.s.ref").read().split("\n")
    h = []
    for l in ref:
        if l.startswith("; Override"):
            break
        h.append(l)
    return "\n".join(h) + "\n"


if __name__ == "__main__":
    import argparse
    p = argparse.ArgumentParser()
    p.add_argument("-o", default="gated_mix__linear_attn_block__mixer_token_mlp__prompt.s")
    p.add_argument("--stamps", action="store_true")
    p.add_argument("--stop", default=None)
    p.add_argument("--opt", default="")
    args = p.parse_args()
    opts = {k: (int(v) if v != '' else 1) for k, _, v in (x.partition('=') for x in args.opt.split(',') if x)}
    g = Gen(stamps=args.stamps, stop=args.stop, opts=opts)
    open(args.o, "w").write(g.build(header()))
    print("wrote", args.o)
```

```python
import sys

KNAME = "gated_mix__linear_attn_block__mixer_token_mlp__prompt_kernel"

import os
FS = int(os.environ.get('FS', 128))
F_LN, F_KV, F_U, F_GO, F_WOT = 0x1000, 0x5000, 0x9000, 0xD000, 0x11000
G_OFF = 0x12000
STAMP = 0x900000
KVP = 0x20000
KVP_ST = 7168
HT = 0x100000
UW = 0x380000
UW_ST = 69632
GO = 0x640000
GO_ST = 20480
WS_USED = 0xA00000
TAG_INC = 0x9E3779B9
SPIN_LIMIT = 1 << 17

LDS_BYTES = 163840
LNBUF = 0
LN_ST = 1312
LNG = LNBUF + 32 * LN_ST
A_SLOT = 49152
A_WOFF = 16384
EXCH_ST = 14336
EXCH = 131072 - 4 * EXCH_ST
KVT = 147456
ZH = KVT + 11 * 1024

LOG2E = 0x3FB8AA3B


def f2u(x):
    import struct
    return struct.unpack("<I", struct.pack("<f", x))[0]


class Asm:
    def __init__(self):
        self.L = []
        self.nlab = 0

    def __call__(self, s):
        for line in s.split("\n"):
            line = line.strip()
            if line:
                self.L.append(("    " if not line.endswith(":") else "") + line)

    def label(self, base):
        self.nlab += 1
        return f"L{base}_{self.nlab}"

    def text(self):
        return "\n".join(self.L) + "\n"


def vr(a, n=1):
    return f"v{a}" if n == 1 else f"v[{a}:{a+n-1}]"


def sr(a, n=1):
    return f"s{a}" if n == 1 else f"s[{a}:{a+n-1}]"


P_X, P_WQKV, P_WO, P_BX, P_W1, P_B1, P_W2, P_B2 = 4, 6, 8, 10, 12, 14, 16, 18
P_GATE, P_OUT, P_DBG, P_WS = 20, 22, 24, 26
S_TAG, S_WAVE = 28, 29
S_XCD, S_J = 30, 31
R_WS, R_X, R_W, R_P, R_W2, R_M, R_OUT = 32, 36, 40, 44, 48, 52, 56
S_T0 = 60
S_MT, S_HG, S_DT, S_FT, S_KST, S_PAR = 70, 71, 72, 73, 74, 75
S_ST, S_DTILE = 76, 77
S_CNT = 78
S_A, S_B, S_C, S_D = 80, 81, 82, 83
S_MSK = 84
S_K0 = 90
S_STMP = 96
S_PERM = 66
S_M = 79
S_FROMA = 95


def lead_perm(n, nshare, m, lead=2):
    order = list(range(n))
    i = m
    while i + lead < n:
        order[i:i + lead + 1] = [order[i + lead]] + order[i:i + lead]
        i += nshare
    return order


class Gen:
    def __init__(self, stamps=False, stop=None, opts=None):
        self.o = opts or {}
        self.a = Asm()
        self.stamps = stamps
        self.stop = stop

    def srd(self, dst, ptr, nbytes, off_s=None):
        a = self.a
        if off_s is None:
            a(f"s_mov_b32 s{dst}, s{ptr}\ns_and_b32 s{dst+1}, s{ptr+1}, 0xffff")
        else:
            a(f"s_add_u32 s{dst}, s{ptr}, s{off_s}\ns_addc_u32 s{dst+1}, s{ptr+1}, 0\ns_and_b32 s{dst+1}, s{dst+1}, 0xffff")
        a(f"s_mov_b32 s{dst+2}, {nbytes:#x}\ns_mov_b32 s{dst+3}, 0x20000")

    def stamp(self, k, vtmp, dyn=None):
        if "pc1" in self.o:
            if dyn is None and k in (self.o["pc1"], self.o["pc2"]):
                lab = self.a.label("npr")
                self.a(f"s_cmp_lg_u32 s{S_FROMA}, {self.o.get('prole', 0)}\ns_cbranch_scc1 {lab}")
                if k == self.o["pc1"]:
                    self.a(f"s_memtime s[92:93]\ns_waitcnt lgkmcnt(0)")
                else:
                    self.a(f"s_memtime s[96:97]\ns_waitcnt lgkmcnt(0)\ns_sub_u32 s92, s96, s92\ns_lshr_b32 s92, s92, 4\ns_add_u32 s98, s98, s92\ns_mov_b32 s94, 1")
                self.a(f"{lab}:")
            return
        if "probe" in self.o:
            role = self.o.get("prole")
            if k == self.o["probe"] and dyn is None:
                lab = self.a.label("npr")
                if role is not None and k != 0:
                    self.a(f"s_cmp_lg_u32 s{S_FROMA}, {role}\ns_cbranch_scc1 {lab}")
                self.a(f"s_memrealtime s[98:99]\ns_mov_b32 s94, 1\ns_waitcnt lgkmcnt(0)\n{lab}:")
            return
        if self.o.get("dbg"):
            m = {0: 0, 11: 1, 1: 2, 2: 3, 3: 4, 4: 5, 6: 6, 9: 7}
            mA = {0: 0, 1: 1, 2: 2, 3: 3, 4: 4, 5: 5, 6: 6, 9: 7}
            if dyn is not None:
                return
            a = self.a
            for wg, mp, base in ((8, m, 0), (12, mA, 8)):
                if k in mp:
                    lab = a.label("nd")
                    a(f"s_cmp_lg_u32 s2, {wg}\ns_cbranch_scc1 {lab}")
                    a(f"s_memrealtime s[{S_STMP}:{S_STMP+1}]\ns_waitcnt lgkmcnt(0)")
                    a(f"v_mov_b32 v{vtmp}, s{S_STMP}\nv_mov_b32 v{vtmp+2}, {4*(base+mp[k])}")
                    a(f"s_mov_b64 exec, 1\nglobal_store_dword v{vtmp+2}, v{vtmp}, s[{P_DBG}:{P_DBG+1}]\ns_mov_b64 exec, -1\n{lab}:")
            return
        if not self.stamps:
            return
        a = self.a
        a(f"s_memrealtime s[{S_STMP}:{S_STMP+1}]\ns_memtime s[100:101]")
        ln = str(k)
        if dyn is not None:
            a(f"s_add_u32 m0, s{dyn}, {k}")
            ln = "m0"
        a(f"s_waitcnt lgkmcnt(0)\nv_writelane_b32 v254, s{S_STMP}, {ln}\nv_writelane_b32 v255, s100, {ln}")

    def perm_setup(self, s_m, n, nshare, dst, enable):
        a = self.a
        def pk(o):
            v = 0
            for i, x in enumerate(o):
                v |= x << (4 * i)
            return v & 0xffffffff, v >> 32
        lo, hi = pk(list(range(n)))
        a(f"s_mov_b32 s{dst}, {lo:#x}\ns_mov_b32 s{dst+1}, {hi:#x}")
        if not enable:
            return
        for m in range(nshare):
            lo, hi = pk(lead_perm(n, nshare, m, enable))
            a(f"s_cmp_eq_u32 s{s_m}, {m}\ns_cselect_b32 s{dst}, {lo:#x}, s{dst}\ns_cselect_b32 s{dst+1}, {hi:#x}, s{dst+1}")

    def perm_next(self, dst, src, mul):
        t = f"s_and_b32 s{dst}, s{src}, 15\ns_lshr_b64 s[{src}:{src+1}], s[{src}:{src+1}], 4\n"
        if mul & (mul - 1) == 0:
            t += f"s_lshl_b32 s{dst}, s{dst}, {mul.bit_length()-1}\n"
        else:
            t += f"s_mul_i32 s{dst}, s{dst}, {mul}\n"
        return t

    def poll(self, voffs, vtmp):
        a = self.a
        lp, dn = a.label("poll"), a.label("pdone")
        n = len(voffs)

        def ld(k):
            for i, vo in enumerate(voffs):
                a(f"buffer_load_dword v{vtmp+k*n+i}, v{vo}, s[{R_WS}:{R_WS+3}], 0 offen sc1")

        def chk(k):
            a(f"v_cmp_ne_u32 vcc, s{S_TAG}, v{vtmp+k*n}")
            for i in range(1, n):
                a(f"v_cmp_ne_u32 s[{S_T0}:{S_T0+1}], s{S_TAG}, v{vtmp+k*n+i}\ns_nop 1\ns_or_b64 vcc, vcc, s[{S_T0}:{S_T0+1}]")
            a(f"s_nop 1\ns_cmp_eq_u64 vcc, 0\ns_cbranch_scc1 {dn}")
        if not self.o.get("pp"):
            a(f"s_mov_b32 s{S_CNT}, 0\n{lp}:")
            ld(0)
            a("s_waitcnt vmcnt(0)")
            chk(0)
            a(f"s_add_u32 s{S_CNT}, s{S_CNT}, 1\ns_cmp_lt_u32 s{S_CNT}, {SPIN_LIMIT}\ns_cbranch_scc0 {dn}\ns_sleep 1\ns_branch {lp}\n{dn}:")
            return
        sl = f"s_sleep {self.o['pp'] - 1}\n" if self.o["pp"] > 1 else ""
        a(f"s_mov_b32 s{S_CNT}, 0")
        ld(0)
        a(f"{sl}{lp}:")
        ld(1)
        a(f"s_waitcnt vmcnt({n})")
        chk(0)
        ld(0)
        a(f"s_waitcnt vmcnt({n})")
        chk(1)
        a(f"s_add_u32 s{S_CNT}, s{S_CNT}, 1\ns_cmp_lt_u32 s{S_CNT}, {SPIN_LIMIT}\ns_cbranch_scc1 {lp}\n{dn}:")

    def flag_store(self, s_off, vtmp):
        a = self.a
        a(f"v_mov_b32 v{vtmp}, s{S_TAG}\nv_mov_b32 v{vtmp+1}, 0\ns_mov_b64 exec, 1")
        a(f"buffer_store_dword v{vtmp}, v{vtmp+1}, s[{R_WS}:{R_WS+3}], s{s_off} offen sc1\ns_mov_b64 exec, -1")

    def pipeline(self, stages, L, gstar, drain=True, wait_every=2):
        a = self.a
        seq = [(si, gi, u) for si, st in enumerate(stages) for gi, u in enumerate(st["uses"])]
        issued = []
        state = dict(nxt=0, opened=-1)
        pend = []

        def collect(lim):
            while state["nxt"] < len(seq) and state["nxt"] <= lim and seq[state["nxt"]][0] <= state["opened"]:
                si_, _, u_ = seq[state["nxt"]]
                for name, txt in u_["reads"]:
                    pend.append((f"{si_}:{name}", txt))
                state["nxt"] += 1
                if seq[state["nxt"] - 1][1] == len(stages[si_]["uses"]) - 1 and si_ + 1 < len(stages):
                    state["defer"] = list(stages[si_ + 1].get("pre", []))

        def emit(n):
            for _ in range(min(n, len(pend))):
                name, txt = pend.pop(0)
                a(txt)
                if name:
                    issued.append(name)

        a(stages[0]["bar"])
        state["opened"] = 0
        collect(L - 1)
        emit(len(pend))
        n_real = sum(len(st["uses"]) for st in stages if not st.get("virtual"))
        covered = -1
        for f in range(n_real):
            si, gi, u = seq[f]
            nuse = len(stages[si]["uses"])
            if gi == 0 and stages[si].get("head"):
                assert not pend, pend
                a(stages[si]["head"])
                covered = -1
            if gi == gstar and si + 1 < len(stages):
                emit(len(pend))
                for x in state.pop("defer", []):
                    a(x)
                if drain:
                    a("s_waitcnt lgkmcnt(0)")
                    covered = len(issued) - 1
                a(stages[si + 1]["bar"])
                pend.extend((None, x) for x in stages[si + 1].get("bar_pend", []))
                state["opened"] = si + 1
                collect(f + L - 1)
            def lastidx(ff):
                s_, _, uu = seq[ff]
                return max(len(issued) - 1 - issued[::-1].index(f"{s_}:{nm}") for nm in uu["need"])
            w = []
            if lastidx(f) > covered:
                tgt = lastidx(f)
                for ff in range(f + 1, min(f + wait_every, n_real)):
                    if seq[ff][0] != si:
                        break
                    try:
                        tgt = max(tgt, lastidx(ff))
                    except ValueError:
                        break
                n = len(issued) - 1 - tgt
                assert n <= 15, n
                w.append(f"lgkmcnt({n})")
                covered = tgt
            if u.get("vm") is not None:
                npv = sum(1 for nm_, t_ in pend if t_.strip().startswith("buffer_load"))
                w.insert(0, f"vmcnt({u['vm'] - npv})")
            if w:
                a("s_waitcnt " + " ".join(w))
            if u.get("before"):
                a(u["before"])
            if state.get("defer") and not pend:
                n_ = self.o.get("npre", 7)
                pend.extend((None, x) for x in state["defer"][:n_])
                state["defer"] = state["defer"][n_:]
            collect(f + L)
            if state.get("mix"):
                k_ = state.pop("mix")
                head_, rest_ = pend[:k_], pend[k_:]
                pend[:] = [x for pr in zip(head_, rest_) for x in pr] + head_[len(rest_):] + rest_[len(head_):]
            nm_ = len(u["mf"])
            for k, m in enumerate(u["mf"]):
                a(m)
                left = nm_ - k
                if drain and gi >= gstar:
                    left += sum(len(uu["mf"]) for uu in stages[si]["uses"][gi + 1:])
                    extra = 2 * (nuse - 1 - gi)
                    emit(-(-(len(pend) + extra) // left) if left > 1 else len(pend))
                else:
                    emit(-(-len(pend) // left))
            if u.get("after"):
                items = [x for x in u["after"].split("\n") if x.strip()]
                if gi == nuse - 1:
                    for x in items:
                        a(x)
                else:
                    assert not pend
                    pend.extend((None, x) for x in items)
                    state["mix"] = len(items)
            if gi == nuse - 1 and stages[si].get("tail"):
                a(stages[si]["tail"])

    def prologue(self):
        a = self.a
        a(f"""
        s_cmp_ge_u32 s2, 256
        s_cbranch_scc1 L_exit
        {"v_mov_b32 v254, 0" if self.stamps else ""}
        {"v_mov_b32 v255, 0" if self.stamps else ""}
        {"s_memrealtime s[98:99]" if self.o.get("calib") or "pc1" in self.o else ""}
        {"s_mov_b32 s94, 0" if "probe" in self.o or "pc1" in self.o else ""}
        s_load_dwordx16 s[4:19], s[0:1], 0
        s_load_dwordx8 s[20:27], s[0:1], 64
        v_and_b32 v1, 63, v0
        v_lshrrev_b32 v2, 6, v0
        s_and_b32 s{S_XCD}, s2, 7
        v_readfirstlane_b32 s{S_WAVE}, v2
        s_lshr_b32 s{S_J}, s2, 3
        s_waitcnt lgkmcnt(0)
        s_load_dword s{S_TAG}, s[{P_WS}:{P_WS+1}], 0
        """)
        self.srd(R_WS, P_WS, WS_USED)
        self.srd(R_X, P_X, 2048 * 1280)
        self.srd(R_W2, P_W2, 1536 * 4096)
        if self.stamps or self.o.get("dbg") or "probe" in self.o:
            a(f"s_cmp_lg_u32 s{S_WAVE}, 0\ns_cbranch_scc1 L_nost0")
            self.stamp(0, 4)
            a("L_nost0:")
        if self.o.get("tlb"):
            self.tlb_warm()
        if self.o.get("pf_code"):
            self.code_prefetch()
        if self.o.get("prio"):
            a(f"""
            s_sub_u32 s{S_T0}, s{S_WAVE}, 4
            s_cmp_lt_u32 s{S_T0}, 3
            s_cbranch_scc1 L_noprio
            s_setprio 3
            L_noprio:
            """)
        a(f"""
        s_lshr_b32 s{S_T0}, s{S_XCD}, 1
        s_lshl_b32 s{S_T0}, s{S_T0}, 3
        s_lshr_b32 s{S_ST}, s{S_J}, 2
        s_add_u32 s{S_ST}, s{S_ST}, s{S_T0}
        s_and_b32 s{S_T0}, s{S_XCD}, 1
        s_lshl_b32 s{S_T0}, s{S_T0}, 2
        s_and_b32 s{S_DTILE}, s{S_J}, 3
        s_add_u32 s{S_DTILE}, s{S_DTILE}, s{S_T0}
        s_cmp_lt_u32 s{S_XCD}, 4
        s_cbranch_scc1 L_roleB
        """)

    V_W2 = 240

    def f_perm(self):
        a = self.a
        a(f"s_lshl_b32 s{S_M}, s{S_DTILE}, 1\ns_add_u32 s{S_M}, s{S_M}, s{S_ST}\ns_and_b32 s{S_M}, s{S_M}, 7")
        self.perm_setup(S_M, 12, 8, S_PERM, self.o.get("rotF"))

    def w2_setup(self):
        a = self.a
        V = self.V_W2
        self.f_perm()
        a(f"""
        v_lshrrev_b32 v{V}, 3, v1
        v_lshrrev_b32 v{V+1}, 4, v1
        v_lshlrev_b32 v{V+1}, 1, v{V+1}
        v_and_b32 v{V+2}, 7, v1
        v_xor_b32 v{V+1}, v{V+1}, v{V+2}
        v_lshlrev_b32 v{V+1}, 4, v{V+1}
        v_lshl_add_u32 v{V}, v{V}, 12, v{V+1}
        v_add_u32 v{V+1}, {32768-1024}, v{V}
        v_add_u32 v{V+2}, {2*(32768-1024)}, v{V}
        v_add_u32 v{V+3}, {3*(32768-1024)}, v{V}
        s_sub_u32 s{S_T0}, s{S_WAVE}, 5
        s_lshl_b32 s{S_B}, s{S_T0}, 13
        s_lshl_b32 s{S_A}, s{S_T0}, 18
        s_lshl_b32 s{S_T0}, s{S_ST}, 7
        s_add_u32 s{S_A}, s{S_A}, s{S_T0}
        """)

    def w2_issue(self):
        a = self.a
        V = self.V_W2
        a(self.perm_next(S_T0, S_PERM, 128 * 4096))
        a(f"s_add_u32 s{S_T0}, s{S_T0}, s{S_A}")
        for g in range(2):
            a(f"s_add_u32 m0, s{S_B}, {g*4096}")
            a(f"s_add_u32 s{S_T0}, s{S_T0}, {g*4*32768}")
            for i in range(4):
                a(f"buffer_load_dwordx4 v{V+i}, s[{R_W2}:{R_W2+3}], s{S_T0} offen offset:{i*1024} lds")
        a(f"s_add_u32 s{S_B}, s{S_B}, 16384\ns_and_b32 s{S_B}, s{S_B}, 0x1ffff")

    def w2_prefill(self, n):
        if n == 0:
            return
        a = self.a
        lp = a.label("pf")
        a(f"s_mov_b32 s{S_C}, 0\n{lp}:")
        self.w2_issue()
        a(f"s_add_u32 s{S_C}, s{S_C}, 1\ns_cmp_lt_u32 s{S_C}, {n}\ns_cbranch_scc1 {lp}")

    def if_wave56(self):
        a = self.a
        skip = a.label("n56")
        a(f"s_sub_u32 s{S_T0}, s{S_WAVE}, 5\ns_cmp_lt_u32 s{S_T0}, 2\ns_cbranch_scc0 {skip}")
        return skip

    def role_a(self):
        a = self.a
        a(f"L_roleA:\ns_mov_b32 s{S_FROMA}, 1")
        a(f"s_sub_u32 s{S_MT}, s{S_ST}, 16\ns_mov_b32 s{S_HG}, s{S_DTILE}")
        a(f"s_cmp_ge_u32 s{S_WAVE}, 4\ns_cbranch_scc1 L_A_loader")
        ACC, XF, WF, VXA, VWA = 128, 96, 64, 4, 6
        if self.o.get("ta1") or self.o.get("ta2"):
            self.start_prefetch()
        self.a_thread_map()
        a(f"""
        v_and_b32 v16, 15, v1
        v_lshrrev_b32 v17, 4, v1
        s_lshl_b32 s{S_T0}, s{S_WAVE}, 5
        v_add_u32 v18, s{S_T0}, v16
        v_lshrrev_b32 v19, 1, v16
        v_xor_b32 v19, v17, v19
        v_lshlrev_b32 v19, 4, v19
        v_lshl_add_u32 v{VXA}, v18, 7, v19
        v_xor_b32 v{VXA+1}, 64, v{VXA}
        v_lshrrev_b32 v18, 2, v16
        v_lshl_add_u32 v19, v17, 3, v18
        v_and_b32 v20, 1, v17
        v_lshl_or_b32 v20, v20, 2, v18
        v_lshlrev_b32 v19, 9, v19
        v_lshl_add_u32 v19, v20, 5, v19
        v_and_b32 v20, 3, v16
        v_lshl_add_u32 v19, v20, 3, v19
        v_add_u32 v{VWA}, {A_WOFF}, v19
        """)
        for n in range(1, 8):
            a(f"v_xor_b32 v{VWA+n}, {n<<5}, v{VWA}")
        for r in range(120):
            a(f"v_mov_b32 v{ACC+r}, 0")
        a(f"s_mov_b32 s{S_A}, 0\ns_mov_b32 s{S_B}, 0\ns_mov_b32 s{S_C}, {A_SLOT}\ns_waitcnt lgkmcnt(0)")
        a(f"s_add_u32 s{S_TAG}, s{S_TAG}, {TAG_INC:#x}")

        RING = 6
        D = 6

        def mk_stage(bar, virtual=False, head=None, tail=None):
            uses = []
            for g in range(30):
                ks, n = divmod(g, 15)
                wb = WF + 4 * (g % RING)
                reads = []
                if g == 0:
                    for rb in range(2):
                        reads.append((f"x0{rb}", f"ds_read_b128 {vr(XF+4*rb,4)}, v{VXA} offset:{rb*2048}"))
                if g == 13:
                    for rb in range(2):
                        reads.append((f"x1{rb}", f"ds_read_b128 {vr(XF+8+4*rb,4)}, v{VXA+1} offset:{rb*2048}"))
                off = ks * 16384 + (n >> 3) * 256
                reads.append((f"w{g}a", f"ds_read_b64_tr_b16 {vr(wb,2)}, v{VWA+(n&7)} offset:{off}"))
                reads.append((f"w{g}b", f"ds_read_b64_tr_b16 {vr(wb+2,2)}, v{VWA+(n&7)} offset:{off+2048}"))
                need = [f"w{g}b", f"x{ks}1"]
                mf = []
                for rb in range(2):
                    acc = vr(ACC + (n * 2 + rb) * 4, 4)
                    xf = vr(XF + ks * 8 + rb * 4, 4)
                    wf = vr(wb, 4)
                    if n < 5:
                        mf.append(f"v_mfma_f32_16x16x32_bf16 {acc}, {wf}, {xf}, {acc}")
                    else:
                        mf.append(f"v_mfma_f32_16x16x32_bf16 {acc}, {xf}, {wf}, {acc}")
                uses.append(dict(reads=reads, need=need, mf=mf))
            return dict(uses=uses, bar=bar, virtual=virtual, head=head, tail=tail)

        adv = "s_barrier"
        pre = [f"s_add_u32 s{S_B}, s{S_B}, 1", f"s_cmp_eq_u32 s{S_B}, 3", f"s_cselect_b32 s{S_B}, 0, s{S_B}",
               f"s_cselect_b32 s{S_T0}, {(-2*A_SLOT) & 0xffffffff:#x}, s{S_C}"]
        pre += [f"v_add_u32 v{r}, s{S_T0}, v{r}" for r in range(VXA, VWA + 8)]
        tail = f"s_add_u32 s{S_A}, s{S_A}, 1\ns_cmp_lt_u32 s{S_A}, 10\ns_cbranch_scc1 L_A_loop"
        head = "L_A_loop:\n"
        bar0 = "s_barrier"
        if self.o.get("tw2") == 2:
            self.srd(R_P, P_WO, 640 * 1280)
            a(f"""
            v_lshlrev_b32 v252, 7, v1
            s_lshl_b32 s{S_T0}, s{S_MT}, 3
            s_add_u32 s{S_T0}, s{S_T0}, s{S_HG}
            s_lshl_b32 s{S_T0}, s{S_T0}, 2
            s_add_u32 s{S_T0}, s{S_T0}, s{S_WAVE}
            s_mul_i32 s{S_D}, s{S_T0}, 12288
            s_add_u32 s{S_KST}, s{S_D}, 8192
            s_mul_i32 s{S_PAR}, s{S_T0}, 1664
            s_and_b32 s{S_M}, s{S_J}, 7
            s_add_u32 s{S_M}, s{S_M}, {self.o.get("tw2at", 1)}
            """)
            head += f"""
            s_cmp_lg_u32 s{S_A}, s{S_M}
            s_cbranch_scc1 L_A_nt2
            buffer_load_dword v253, v252, s[{R_W2}:{R_W2+3}], s{S_D} offen
            s_mov_b32 exec_hi, 0
            buffer_load_dword v253, v252, s[{R_W2}:{R_W2+3}], s{S_KST} offen
            s_mov_b32 exec_lo, 0x1fff
            buffer_load_dword v253, v252, s[{R_P}:{R_P+3}], s{S_PAR} offen
            s_mov_b64 exec, -1
            L_A_nt2:
            """
        ta2 = self.o.get("ta2")
        if ta2 == 1:
            a(self.pf_rest())
        elif ta2 == 2:
            bar0 += "\n" + self.pf_rest()
        elif ta2:
            head += f"s_cmp_lg_u32 s{S_A}, {ta2-2}\ns_cbranch_scc1 L_A_npf\n" + self.pf_rest() + "L_A_npf:\n"
        self.pipeline([mk_stage(bar0, head=head, tail=tail), dict(mk_stage(adv, virtual=True), pre=pre)], 5, 30 - 3, wait_every=self.o.get('we', 2))
        self.stamp(2, 16)
        PK, VV, ONES, KVD, ZD = 16, 36, 56, 64, 116
        a("s_waitcnt lgkmcnt(0)\ns_nop 7")
        a(f"s_mov_b32 s{S_K0}, {LOG2E:#x}\ns_mov_b32 s{S_K0+1}, {LOG2E:#x}\ns_mov_b32 s{S_K0+2}, {f2u(1e-6):#x}")

        def phi(base, n, t):
            for i in range(0, n, 4):
                r = base + i
                a(f"v_pk_mul_f32 {vr(t,2)}, {vr(r,2)}, s[{S_K0}:{S_K0+1}]")
                a(f"v_pk_mul_f32 {vr(t+2,2)}, {vr(r+2,2)}, s[{S_K0}:{S_K0+1}]")
                for k in range(4):
                    a(f"v_exp_f32_e64 v{t+k}, v{t+k} clamp")
                for k in range(4):
                    a(f"v_max_f32 v{r+k}, s{S_K0+2}, v{r+k}")
                a(f"v_pk_add_f32 {vr(r,2)}, {vr(r,2)}, {vr(t,2)}")
                a(f"v_pk_add_f32 {vr(r+2,2)}, {vr(r+2,2)}, {vr(t+2,2)}")

        def pack(dst, src0, src1):
            a(f"v_cvt_pk_bf16_f32 v{dst}, v{src0}, v{src0+1}\nv_cvt_pk_bf16_f32 v{dst+1}, v{src0+2}, v{src0+3}")
            if src1 is None:
                a(f"v_mov_b32 v{dst+2}, 0\nv_mov_b32 v{dst+3}, 0")
            else:
                a(f"v_cvt_pk_bf16_f32 v{dst+2}, v{src1}, v{src1+1}\nv_cvt_pk_bf16_f32 v{dst+3}, v{src1+2}, v{src1+3}")

        for b in range(5):
            pack(VV + 4 * b, ACC + (10 + b) * 8, ACC + (10 + b) * 8 + 4)
        for k in range(4):
            a(f"v_mov_b32 v{ONES+k}, 0x3f803f80")
        phi(ACC + 40, 40, 60)
        for b in range(5):
            pack(PK + 4 * b, ACC + (5 + b) * 8, ACC + (5 + b) * 8 + 4)
        a("s_nop 1")
        ZD = ACC + 80
        blocks = [(x, y) for x in range(5) for y in range(5) if abs(x - y) <= 1]
        for (x, y) in blocks:
            a(f"v_mfma_f32_16x16x32_bf16 {vr(KVD+4*(2*x+y),4)}, {vr(PK+4*x,4)}, {vr(VV+4*y,4)}, 0")
        for x in range(5):
            a(f"v_mfma_f32_16x16x32_bf16 {vr(ZD+4*x,4)}, {vr(ONES,4)}, {vr(PK+4*x,4)}, 0")
        a(f"""
        s_mul_i32 s{S_T0}, s{S_WAVE}, {EXCH_ST}
        s_add_u32 s{S_T0}, s{S_T0}, {EXCH}
        v_lshlrev_b32 v60, 4, v1
        v_add_u32 v60, s{S_T0}, v60
        v_and_b32 v61, 15, v1
        v_lshlrev_b32 v61, 2, v61
        v_add_u32 v61, s{S_T0}, v61
        s_nop 3
        """)
        for i in range(13):
            a(f"ds_write_b128 v60, {vr(KVD+4*i,4)} offset:{i*1024}")
        for x in range(5):
            a(f"ds_write_b32 v61, v{ZD+4*x} offset:{13312+64*x}")
        a("s_waitcnt lgkmcnt(0)\ns_barrier")
        self.a_reduce_publish(64)
        a("s_waitcnt vmcnt(0)\ns_barrier")
        PQ = 16
        phi(ACC, 40, 60)
        for ts in range(3):
            for rb in range(2):
                pack(PQ + (ts * 2 + rb) * 4, ACC + (2 * ts * 2 + rb) * 4, None if ts == 2 else ACC + ((2 * ts + 1) * 2 + rb) * 4)
        self.uw_srd()
        a("v_lshlrev_b32 v60, 4, v1\ns_barrier")
        self.wot_preload(60)
        a("s_barrier")
        a(f"""
        v_and_b32 v63, 15, v1
        v_lshlrev_b32 v63, 2, v63
        s_lshl_b32 s{S_T0}, s{S_MT}, 7
        s_lshl_b32 s{S_T0+1}, s{S_WAVE}, 5
        s_add_u32 s{S_T0}, s{S_T0}, s{S_T0+1}
        s_lshl_b32 s{S_T0}, s{S_T0}, 2
        s_add_u32 s{S_T0}, s{S_T0}, {G_OFF}
        buffer_load_dword v62, v63, s[{R_WS}:{R_WS+3}], s{S_T0} offen sc1
        buffer_load_dword v61, v63, s[{R_WS}:{R_WS+3}], s{S_T0} offen offset:64 sc1
        """)
        self.a_gather(64)
        a("s_waitcnt lgkmcnt(0)\ns_barrier")
        self.stamp(4, 40)
        FR = 64
        a("v_lshlrev_b32 v60, 4, v1\nv_add_u32 v60, " + str(KVT) + ", v60")
        used = [0, 2, 3, 4, 5, 7, 8, 9, 10, 11, 12, 13]
        for f in used:
            a(f"ds_read_b128 {vr(FR+4*f,4)}, v60 offset:{f*1024}")
        NUM, DEN = 128, 120
        kts = {0: [0], 1: [0, 1], 2: [0, 1], 3: [1, 2], 4: [1, 2]}
        a(f"""
        v_lshrrev_b32 v40, 4, v1
        v_cmp_gt_u32 s[{S_MSK}:{S_MSK+1}], 1, v40
        v_cmp_gt_u32 s[{S_MSK+2}:{S_MSK+3}], 2, v40
        v_cmp_gt_u32 s[{S_MSK+4}:{S_MSK+5}], 3, v40
        s_waitcnt lgkmcnt(0)
        """)
        for rb in range(2):
            for ts in range(3):
                c = "0" if ts == 0 else vr(DEN + 4 * rb, 4)
                a(f"v_mfma_f32_16x16x32_bf16 {vr(DEN+4*rb,4)}, {vr(FR+4*(11+ts),4)}, {vr(PQ+(ts*2+rb)*4,4)}, {c}")
        for rb in range(2):
            for b in range(5):
                for i, ts in enumerate(kts[b]):
                    d = vr(NUM + (rb * 5 + b) * 4, 4)
                    c = "0" if i == 0 else d
                    a(f"v_mfma_f32_16x16x32_bf16 {d}, {vr(FR+4*(2*b+ts),4)}, {vr(PQ+(ts*2+rb)*4,4)}, {c}")
        for rb in range(2):
            for h in range(4):
                a(f"v_add_f32 v{DEN+4*rb+h}, s{S_K0+2}, v{DEN+4*rb+h}")
        for rb in range(2):
            for h in range(4):
                a(f"v_rcp_f32 v{DEN+4*rb+h}, v{DEN+4*rb+h}")
        a("s_nop 0")
        gv = {0: 62, 1: 61}
        for rb in range(2):
            for h in range(4):
                a(f"v_mul_f32 v{DEN+4*rb+h}, v{gv[rb]}, v{DEN+4*rb+h}")
        a(f"""
        s_lshl_b32 s{S_T0}, s{S_MT}, 3
        s_lshl_b32 s{S_T0+1}, s{S_WAVE}, 1
        s_add_u32 s{S_T0}, s{S_T0}, s{S_T0+1}
        s_mul_i32 s{S_T0}, s{S_T0}, {GO_ST}
        s_add_u32 s{S_T0}, s{S_T0}, {GO}
        s_lshl_b32 s{S_T0+1}, s{S_HG}, 11
        s_add_u32 s{S_T0+1}, s{S_T0+1}, s{S_T0}
        s_lshl_b32 s{S_T0+2}, s{S_HG}, 9
        s_add_u32 s{S_T0+2}, s{S_T0+2}, s{S_T0}
        s_add_u32 s{S_T0+2}, s{S_T0+2}, 16384
        v_lshlrev_b32 v40, 4, v1
        v_lshlrev_b32 v41, 3, v1
        """)
        for rb in range(2):
            d = DEN + 4 * rb
            a(f"v_cndmask_b32 v44, v{d+1}, v{d}, s[{S_MSK}:{S_MSK+1}]")
            a(f"v_cndmask_b32 v45, v{d+2}, v{d+1}, s[{S_MSK+2}:{S_MSK+3}]")
            a(f"v_cndmask_b32 v46, v{d+3}, v{d+2}, s[{S_MSK+4}:{S_MSK+5}]")
            sc = [d, 44, 45, 46, d + 3]
            for b in range(5):
                for k in range(4):
                    r = NUM + (rb * 5 + b) * 4 + k
                    a(f"v_mul_f32 v{r}, v{sc[b]}, v{r}")
            o = 16 + rb * 12
            n0 = NUM + rb * 20
            pack(o, n0, n0 + 4)
            pack(o + 4, n0 + 8, n0 + 12)
            a(f"v_cvt_pk_bf16_f32 v{o+8}, v{n0+16}, v{n0+17}\nv_cvt_pk_bf16_f32 v{o+9}, v{n0+18}, v{n0+19}")
            a(f"buffer_store_dwordx4 {vr(o,4)}, v40, s[{R_WS}:{R_WS+3}], s{S_T0+1} offen sc1")
            a(f"buffer_store_dwordx4 {vr(o+4,4)}, v40, s[{R_WS}:{R_WS+3}], s{S_T0+1} offen offset:1024 sc1")
            a(f"buffer_store_dwordx2 {vr(o+8,2)}, v41, s[{R_WS}:{R_WS+3}], s{S_T0+2} offen sc1")
            if rb == 0:
                a(f"s_add_u32 s{S_T0+1}, s{S_T0+1}, {GO_ST}\ns_add_u32 s{S_T0+2}, s{S_T0+2}, {GO_ST}")
        self.stamp(5, 40)
        a("s_branch L_F_comp")

        a("L_A_loader:")
        VX, VW = 4, 8
        self.srd(R_W, P_WQKV, 640 * 3840)
        a(f"""
        s_sub_u32 s{S_D}, s{S_WAVE}, 4
        v_lshrrev_b32 v16, 3, v1
        v_lshrrev_b32 v17, 4, v1
        v_and_b32 v18, 7, v1
        v_xor_b32 v17, v17, v18
        v_lshlrev_b32 v17, 4, v17
        v_mul_u32_u24 v16, 1280, v16
        v_add_u32 v{VX}, v16, v17
        v_xor_b32 v18, 64, v{VX}
        v_add_u32 v{VX+1}, {8*1280-1024}, v18
        v_add_u32 v{VX+2}, {2*(8*1280-1024)}, v{VX}
        v_add_u32 v{VX+3}, {3*(8*1280-1024)}, v18
        s_lshl_b32 s{S_T0}, s{S_MT}, 7
        s_lshl_b32 s{S_T0+1}, s{S_D}, 5
        s_add_u32 s{S_T0}, s{S_T0}, s{S_T0+1}
        s_mul_i32 s{S_A}, s{S_T0}, 1280
        s_lshl_b32 s{S_C}, s{S_D}, 12
        """)
        def issue_x():
            a(f"s_mov_b32 m0, s{S_C}\ns_nop 0")
            for i in range(4):
                a(f"buffer_load_dwordx4 v{VX+i}, s[{R_X}:{R_X+3}], s{S_A} offen offset:{i*1024} lds")
            a(f"s_add_u32 s{S_A}, s{S_A}, 128")

        def issue_w():
            for g in range(2):
                a(f"s_lshl_b32 s{S_T0}, s{S_D}, 12\ns_add_u32 s{S_T0}, s{S_T0}, s{S_C}\ns_add_u32 m0, s{S_T0}, {A_WOFF + g*4096}\ns_nop 0")
                for i in range(4):
                    a(f"buffer_load_dwordx4 v{VW+4*g+i}, s[{R_W}:{R_W+3}], s{S_B} offen offset:{i*1024} lds")
            a(f"s_add_u32 s{S_B}, s{S_B}, {64*3840}")

        def next_slot():
            a(f"s_add_u32 s{S_C}, s{S_C}, {A_SLOT}\ns_cmp_ge_u32 s{S_C}, {3*A_SLOT}\ns_cselect_b32 s{S_T0}, {3*A_SLOT}, 0\ns_sub_u32 s{S_C}, s{S_C}, s{S_T0}")

        issue_x()
        a(f"""
        v_lshrrev_b32 v16, 5, v1
        v_bfe_u32 v17, v1, 1, 4
        v_and_b32 v18, 1, v1
        v_lshlrev_b32 v18, 4, v18
        v_mul_u32_u24 v19, 3840, v16
        v_add_u32 v18, v18, v19
        """)
        for i in (0, 1, 4, 5):
            sig = (2 * (i & 1)) | ((i >> 2) << 2)
            a(f"""
            v_or_b32 v19, {sig}, v16
            v_xor_b32 v19, v17, v19
            v_min_u32 v19, 14, v19
            v_mul_u32_u24 v20, 13, v19
            v_lshrrev_b32 v20, 6, v20
            v_mul_u32_u24 v20, 1120, v20
            v_lshl_add_u32 v19, v19, 5, v20
            v_add_u32 v19, v19, v18
            v_add_u32 v{VW+i}, {2*i*3840 - (i&3)*1024}, v19
            v_add_u32 v{VW+i+2}, {2*(i+2)*3840 - ((i+2)&3)*1024}, v19
            """)
        a(f"""
        s_mul_i32 s{S_B}, s{S_HG}, 160
        s_mul_i32 s{S_T0}, s{S_D}, {16*3840}
        s_add_u32 s{S_B}, s{S_B}, s{S_T0}
        """)
        issue_w()
        for _ in range(2):
            next_slot()
            issue_x()
            issue_w()
        a(f"v_lshlrev_b32 v16, 4, v1\ns_lshl_b32 s{S_T0}, s{S_D}, 12\ns_add_u32 s{S_T0}, s{S_T0}, {KVT}\nv_add_u32 v16, s{S_T0}, v16")
        a("v_mov_b32 v20, 0\nv_mov_b32 v21, 0\nv_mov_b32 v22, 0\nv_mov_b32 v23, 0")
        for i in range(4):
            a(f"ds_write_b128 v16, v[20:23] offset:{i*1024}")
        a(f"s_waitcnt lgkmcnt(0)\ns_add_u32 s{S_TAG}, s{S_TAG}, {TAG_INC:#x}")
        a("s_waitcnt vmcnt(24)\ns_barrier")
        self.stamp(1, 16)
        a(f"s_mov_b32 s{S_CNT}, 1\nL_A_lloop:")
        a("s_waitcnt vmcnt(12)\ns_barrier")
        self.stamp(16, 16, dyn=S_CNT)
        next_slot()
        issue_x()
        issue_w()
        a(f"s_add_u32 s{S_CNT}, s{S_CNT}, 1\ns_cmp_le_u32 s{S_CNT}, 7\ns_cbranch_scc1 L_A_lloop")
        tw = 3 if self.o.get("tw2") == 1 else 0
        a(f"s_waitcnt vmcnt(12)\ns_barrier")
        if tw:
            self.w2_touch()
        self.stamp(24, 16)
        a(f"s_waitcnt vmcnt({tw})\ns_barrier")
        self.stamp(25, 16)
        a("s_barrier")
        self.stamp(26, 16)
        nA0 = self.o.get("nA0", 4)
        self.w2_setup()
        skip0 = self.if_wave56()
        self.w2_prefill(nA0)
        a(f"{skip0}:")
        self.a_thread_map()
        a("s_barrier")
        a(f"s_cmp_eq_u32 s{S_WAVE}, 7\ns_cbranch_scc1 L_A_poller")
        self.a_reduce_publish(64)
        a("s_waitcnt vmcnt(0)\ns_barrier")
        skip = self.if_wave56()
        a("s_nop 7\ns_nop 7")
        self.w2_prefill(8 - nA0)
        a("s_barrier\ns_barrier")
        self.a_gather(64)
        a("s_waitcnt lgkmcnt(0)\ns_barrier")
        a("s_branch L_F_loader")
        a(f"{skip}:\ns_barrier\ns_barrier")
        self.a_gather(64)
        a("s_waitcnt lgkmcnt(0)\ns_barrier")
        a("s_branch L_F_u4")
        a("L_A_poller:\ns_barrier")
        a(f"s_lshl_b32 s{S_T0}, s{S_HG}, 4\ns_add_u32 s{S_T0}, s{S_T0}, s{S_MT}\ns_mul_i32 s{S_T0}, s{S_T0}, {FS}\ns_add_u32 s{S_T0}, s{S_T0}, {F_KV}")
        self.flag_store(S_T0, 16)
        self.stamp(3, 16)
        a(f"s_mul_i32 s{S_T0}, s{S_DTILE}, {FS}\ns_add_u32 s{S_T0}, s{S_T0}, {F_WOT}\nv_mov_b32 v16, s{S_T0}")
        self.poll([16], 18)
        a("s_barrier")
        a(f"""
        v_and_b32 v16, 15, v1
        s_lshl_b32 s{S_T0}, s{S_HG}, 4
        v_add_u32 v16, s{S_T0}, v16
        v_mul_u32_u24 v16, {FS}, v16
        v_add_u32 v16, {F_KV}, v16
        v_and_b32 v17, 3, v1
        s_lshl_b32 s{S_T0}, s{S_MT}, 2
        v_add_u32 v17, s{S_T0}, v17
        v_mul_u32_u24 v17, {FS}, v17
        v_add_u32 v17, {F_LN}, v17
        v_cmp_gt_u32 vcc, 32, v1
        s_nop 1
        v_cndmask_b32 v16, v17, v16, vcc
        """)
        self.poll([16], 18)
        self.stamp(13, 16)
        a("s_barrier\ns_barrier")
        a("s_branch L_F_poller")

    def start_prefetch(self):
        a = self.a
        self.srd(R_W, P_WQKV, 640 * 3840)
        a(f"""
        s_lshl_b32 s{S_T0}, s{S_J}, 2
        s_add_u32 s{S_T0}, s{S_T0}, s{S_WAVE}
        v_lshrrev_b32 v16, 2, v1
        v_and_b32 v17, 3, v1
        v_mul_u32_u24 v16, 1280, v16
        v_lshl_add_u32 v16, v17, 7, v16
        s_lshr_b32 s{S_T0+2}, s{S_MT}, 3
        s_lshl_b32 s{S_T0+2}, s{S_T0+2}, 7
        s_add_u32 s{S_T0+2}, s{S_T0+2}, s{S_T0}
        s_mul_i32 s{S_DT}, s{S_T0+2}, {8*1280}
        v_lshrrev_b32 v19, 4, v1
        v_and_b32 v17, 15, v1
        v_min_u32 v17, 14, v17
        v_mul_u32_u24 v18, 13, v17
        v_lshrrev_b32 v18, 6, v18
        v_mul_u32_u24 v18, 640, v18
        v_lshl_add_u32 v18, v17, 7, v18
        v_mul_u32_u24 v19, 3840, v19
        v_add_u32 v112, v18, v19
        s_lshr_b32 s{S_T0+2}, s{S_HG}, 2
        s_mul_i32 s{S_T0+2}, s{S_T0+2}, 640
        s_mul_i32 s{S_FT}, s{S_T0}, {2*3840}
        s_add_u32 s{S_FT}, s{S_FT}, s{S_T0+2}
        """)
        if self.o.get("ta1"):
            a(f"""
            s_mov_b32 exec_hi, 0
            buffer_load_dword v253, v112, s[{R_W}:{R_W+3}], s{S_FT} offen
            buffer_load_dword v253, v16, s[{R_X}:{R_X+3}], s{S_DT} offen
            s_mov_b32 exec_hi, -1
            """)
        a(f"""
        s_mul_i32 s{S_FT}, s{S_T0}, {3*3840}
        s_add_u32 s{S_FT}, s{S_FT}, s{S_T0+2}
        s_add_u32 s{S_FT}, s{S_FT}, {256*3840}
        v_lshrrev_b32 v16, 3, v1
        v_and_b32 v17, 7, v1
        v_min_u32 v17, 5, v17
        v_mul_u32_u24 v16, 1280, v16
        v_lshl_add_u32 v113, v17, 7, v16
        s_add_u32 s{S_DT}, s{S_DT}, 512
        """)

    def pf_rest(self):
        return f"""s_mov_b32 exec_hi, 0xffff
        buffer_load_dword v253, v112, s[{R_W}:{R_W+3}], s{S_FT} offen
        s_mov_b32 exec_hi, -1
        buffer_load_dword v253, v113, s[{R_X}:{R_X+3}], s{S_DT} offen
        """

    def w2_touch(self):
        a = self.a
        self.srd(R_W2, P_W2, 1536 * 4096)
        a(f"""
        v_lshlrev_b32 v48, 7, v1
        s_lshl_b32 s{S_T0}, s{S_MT}, 3
        s_add_u32 s{S_T0}, s{S_T0}, s{S_HG}
        s_lshl_b32 s{S_T0}, s{S_T0}, 2
        s_add_u32 s{S_T0}, s{S_T0}, s{S_D}
        s_mul_i32 s{S_T0}, s{S_T0}, 12288
        buffer_load_dword v253, v48, s[{R_W2}:{R_W2+3}], s{S_T0} offen
        s_add_u32 s{S_T0}, s{S_T0}, 8192
        s_mov_b32 exec_hi, 0
        buffer_load_dword v253, v48, s[{R_W2}:{R_W2+3}], s{S_T0} offen
        """)
        self.srd(R_P, P_WO, 640 * 1280)
        a(f"""
        s_lshl_b32 s{S_T0}, s{S_MT}, 3
        s_add_u32 s{S_T0}, s{S_T0}, s{S_HG}
        s_lshl_b32 s{S_T0}, s{S_T0}, 2
        s_add_u32 s{S_T0}, s{S_T0}, s{S_D}
        s_mul_i32 s{S_T0}, s{S_T0}, 1664
        s_mov_b32 exec_lo, 0x1fff
        buffer_load_dword v253, v48, s[{R_P}:{R_P+3}], s{S_T0} offen
        s_mov_b64 exec, -1
        """)

    def tlb_warm(self):
        a = self.a
        mode = self.o["tlb"]
        wv = self.o.get("tlbw", 3)
        a(f"s_cmp_lg_u32 s{S_WAVE}, {wv}\ns_cbranch_scc1 L_notlb")
        self.srd(R_OUT, P_OUT, 2048 * 1280)
        self.srd(R_M, P_B2, 4096)
        self.srd(R_P, P_WO, 640 * 1280)
        self.srd(R_W, P_W1, 2048 * 3072)
        if mode == 1:
            a("v_lshlrev_b32 v4, 20, v1\nv_min_u32 v4, 0xf00000, v4\ns_mov_b64 exec, 0xffff")
            so = "0"
        else:
            a(f"v_lshlrev_b32 v4, 21, v1\ns_lshl_b32 s{S_T0}, s{S_J}, 16\ns_mov_b64 exec, 0x1f")
            so = f"s{S_T0}"
        for r in (R_WS, R_W2, R_OUT, R_W, R_P, R_M):
            a(f"buffer_load_dword v253, v4, s[{r}:{r+3}], {so} offen sc1")
        a("s_mov_b64 exec, -1\nL_notlb:")

    def code_prefetch(self):
        a = self.a
        a(f"""
        s_cmp_lg_u32 s{S_WAVE}, 3
        s_cbranch_scc1 L_nocpf
        s_cmp_ge_u32 s{S_J}, 4
        s_cbranch_scc1 L_nocpf
        s_getpc_b64 s[{S_T0}:{S_T0+1}]
        L_pcref:
        s_lshl_b32 s{S_T0+2}, s{S_J}, 13
        v_lshlrev_b32 v4, 7, v1
        v_add_u32 v4, s{S_T0+2}, v4
        v_min_u32 v4, L_end-L_pcref, v4
        global_load_dword v253, v4, s[{S_T0}:{S_T0+1}]
        L_nocpf:
        """)

    def a_thread_map(self):
        a = self.a
        a(f"""
        v_mul_u32_u24 v16, 625, v0
        v_lshrrev_b32 v16, 16, v16
        v_mul_u32_u24 v17, 105, v16
        v_sub_u32 v17, v0, v17
        v_mul_u32_u24 v18, 205, v17
        v_lshrrev_b32 v18, 10, v18
        v_mul_u32_u24 v19, 5, v18
        v_sub_u32 v19, v17, v19
        v_mad_u32_u24 v19, v16, 5, v19
        v_mad_u32_u24 v20, v16, 20, v18
        v_lshrrev_b32 v21, 2, v19
        v_and_b32 v22, 3, v19
        v_lshrrev_b32 v23, 4, v20
        v_and_b32 v20, 15, v20
        v_lshl_add_u32 v20, v22, 4, v20
        v_lshl_add_u32 v2, v21, 1, v23
        v_lshlrev_b32 v2, 6, v2
        v_add_u32 v2, v2, v20
        v_lshlrev_b32 v2, 4, v2
        v_lshlrev_b32 v3, 4, v19
        v_add_u32 v3, 13312, v3
        v_cmp_lt_u32 vcc, 99, v17
        v_lshrrev_b32 v24, 1, v21
        v_and_b32 v21, 1, v21
        v_cndmask_b32 v2, v2, v3, vcc
        v_lshl_add_u32 v3, v23, 1, v24
        v_add_u32 v24, 11, v24
        v_lshl_add_u32 v22, v22, 4, v16
        v_cndmask_b32 v3, v3, v24, vcc
        v_cndmask_b32 v20, v20, v22, vcc
        v_lshl_add_u32 v3, v3, 6, v20
        v_lshlrev_b32 v3, 4, v3
        v_lshl_add_u32 v3, v21, 3, v3
        v_add_u32 v3, {KVT}, v3
        v_mov_b32 v25, 2
        v_cndmask_b32 v25, 1, v25, vcc
        v_mov_b32 v16, 420
        v_cmp_gt_u32 vcc, v16, v0
        v_lshlrev_b32 v14, 4, v0
        s_nop 0
        v_cndmask_b32 v15, 0, v25, vcc
        v_cndmask_b32 v2, 0, v2, vcc
        v_add_u32 v2, {EXCH}, v2
        """)

    def a_reduce_publish(self, T):
        a = self.a
        for w in range(4):
            a(f"ds_read_b128 {vr(T+4*w,4)}, v2 offset:{w*EXCH_ST}")
        a(f"""
        s_lshl_b32 s{S_T0}, s{S_HG}, 4
        s_add_u32 s{S_T0}, s{S_T0}, s{S_MT}
        s_mul_i32 s{S_T0}, s{S_T0}, {KVP_ST}
        s_add_u32 s{S_T0}, s{S_T0}, {KVP}
        v_cmp_ne_u32 vcc, 0, v15
        s_waitcnt lgkmcnt(0)
        v_pk_add_f32 {vr(T,2)}, {vr(T,2)}, {vr(T+4,2)}
        v_pk_add_f32 {vr(T+2,2)}, {vr(T+2,2)}, {vr(T+6,2)}
        v_pk_add_f32 {vr(T+8,2)}, {vr(T+8,2)}, {vr(T+12,2)}
        v_pk_add_f32 {vr(T+10,2)}, {vr(T+10,2)}, {vr(T+14,2)}
        v_pk_add_f32 {vr(T,2)}, {vr(T,2)}, {vr(T+8,2)}
        v_pk_add_f32 {vr(T+2,2)}, {vr(T+2,2)}, {vr(T+10,2)}
        s_mov_b64 exec, vcc
        buffer_store_dwordx4 {vr(T,4)}, v14, s[{R_WS}:{R_WS+3}], s{S_T0} offen sc1
        s_mov_b64 exec, -1
        """)

    def a_gather(self, T, extra=0, hook=None):
        a = self.a
        a(f"s_mul_i32 s{S_T0+1}, s{S_HG}, {16*KVP_ST}\ns_add_u32 s{S_T0+1}, s{S_T0+1}, {KVP}")
        rot = self.o.get("rotG")
        if rot:
            a(f"s_lshl_b32 s{S_T0+2}, s{S_MT}, 1")
        else:
            a(f"s_mov_b32 s{S_T0+2}, 0")
        a("v_cmp_ne_u32 vcc, 0, v15\ns_nop 1\ns_mov_b64 exec, vcc")
        for m in range(16):
            a(f"s_and_b32 s{S_T0+2}, s{S_T0+2}, 15\ns_mul_i32 s{S_T0}, s{S_T0+2}, {KVP_ST}\ns_add_u32 s{S_T0}, s{S_T0}, s{S_T0+1}\ns_add_u32 s{S_T0+2}, s{S_T0+2}, 1")
            a(f"buffer_load_dwordx4 {vr(T+4*m,4)}, v14, s[{R_WS}:{R_WS+3}], s{S_T0} offen sc1")
        a("s_mov_b64 exec, -1")
        if hook:
            hook()
        for m in range(0, 16, 2):
            a(f"s_waitcnt vmcnt({14-m+extra})")
            for h in (0, 2):
                a(f"v_pk_add_f32 {vr(T+4*m+h,2)}, {vr(T+4*m+h,2)}, {vr(T+4*(m+1)+h,2)}")
            if m >= 2:
                for h in (0, 2):
                    a(f"v_pk_add_f32 {vr(T+h,2)}, {vr(T+h,2)}, {vr(T+4*m+h,2)}")
        a(f"""
        v_cvt_pk_bf16_f32 v{T}, v{T}, v{T+1}
        v_cvt_pk_bf16_f32 v{T+1}, v{T+2}, v{T+3}
        v_cmp_ne_u32 vcc, 0, v15
        v_cmp_eq_u32 s[{S_T0}:{S_T0+1}], 2, v15
        s_nop 1
        s_mov_b64 exec, vcc
        ds_write_b64 v3, {vr(T,2)}
        s_mov_b64 exec, s[{S_T0}:{S_T0+1}]
        ds_write_b64 v3, {vr(T,2)} offset:64
        ds_write_b64 v3, {vr(T,2)} offset:128
        ds_write_b64 v3, {vr(T,2)} offset:192
        s_mov_b64 exec, -1
        """)

    def role_b(self):
        a = self.a
        a(f"L_roleB:\ns_mov_b32 s{S_FROMA}, 0")
        XR, B1R, GR, XS = 16, 36, 64, 84
        VPF = 8
        a(f"s_cmp_ge_u32 s{S_J}, 16\ns_cbranch_scc1 L_B_pfrole")
        a(f"""
        s_lshl_b32 s{S_KST}, s{S_XCD}, 4
        s_add_u32 s{S_KST}, s{S_KST}, s{S_J}
        s_lshl_b32 s{S_T0}, s{S_KST}, 3
        s_add_u32 s{S_T0}, s{S_T0}, s{S_WAVE}
        s_mul_i32 s{S_T0}, s{S_T0}, {4*1280}
        v_lshrrev_b32 v2, 4, v1
        v_and_b32 v3, 15, v1
        v_lshlrev_b32 v3, 4, v3
        v_mul_u32_u24 v4, 1280, v2
        v_add_u32 v4, v4, v3
        """)
        for c in range(5):
            a(f"buffer_load_dwordx4 {vr(XR+4*c,4)}, v4, s[{R_X}:{R_X+3}], s{S_T0} offen offset:{c*256}")
        self.srd(R_M, P_GATE, 1280)
        for c in range(5):
            a(f"buffer_load_dwordx4 {vr(GR+4*c,4)}, v3, s[{R_M}:{R_M+3}], 0 offen offset:{c*256}")

        def common_setup():
            a(f"""
            s_mul_i32 s{S_M}, s{S_J}, 205
            s_lshr_b32 s{S_M}, s{S_M}, 10
            s_mul_i32 s{S_DT}, s{S_M}, 5
            s_sub_u32 s{S_DT}, s{S_J}, s{S_DT}
            s_mul_i32 s{S_FT}, s{S_XCD}, 6
            s_add_u32 s{S_FT}, s{S_FT}, s{S_M}
            """)
            self.srd(R_OUT, P_B1, 3072)
            a(f"v_lshrrev_b32 v5, 4, v1\nv_lshlrev_b32 v5, 3, v5\ns_lshl_b32 s{S_T0}, s{S_FT}, 7")
            for b in range(4):
                a(f"buffer_load_dwordx2 {vr(B1R+2*b,2)}, v5, s[{R_OUT}:{R_OUT+3}], s{S_T0} offen offset:{b*32}")
            a(f"""
            v_lshrrev_b32 v12, 3, v1
            v_lshrrev_b32 v13, 4, v1
            v_lshlrev_b32 v13, 1, v13
            v_and_b32 v14, 7, v1
            v_xor_b32 v13, v13, v14
            v_lshlrev_b32 v13, 4, v13
            v_mul_u32_u24 v12, 3072, v12
            v_add_u32 v{VPF}, v12, v13
            v_add_u32 v{VPF+1}, {8*3072-1024}, v{VPF}
            v_add_u32 v{VPF+2}, {2*(8*3072-1024)}, v{VPF}
            v_add_u32 v{VPF+3}, {3*(8*3072-1024)}, v{VPF}
            """)
            self.perm_setup(S_M, 16, 6, S_PERM, self.o.get("rotB"))

        def wq_touch():
            self.srd(R_M, P_WQKV, 640 * 3840)
            a(f"""
            v_lshlrev_b32 v6, 7, v1
            s_mul_i32 s{S_T0+1}, s{S_T0+1}, 2880
            s_add_u32 s{S_T0+1}, s{S_T0+1}, {256*3840}
            s_mov_b64 exec, 0xffffff
            buffer_load_dword v253, v6, s[{R_M}:{R_M+3}], s{S_T0+1} offen
            s_mov_b64 exec, -1
            """)

        self.srd(R_W, P_W1, 2048 * 3072)
        common_setup()
        a("v_mov_b32 v124, 0\nv_mov_b32 v125, 0\nv_mov_b32 v126, 0x3f803f80\ns_waitcnt vmcnt(4)")
        self.stamp(11, 44)
        for c in range(20):
            a(f"v_dot2c_f32_bf16 v124, v{XR+c}, v126")
        for c in range(20):
            a(f"v_dot2c_f32_bf16 v125, v{XR+c}, v{GR+c}")
        for c in range(20):
            a(f"v_lshlrev_b32 v{XS+2*c}, 16, v{XR+c}\nv_and_b32 v{XS+2*c+1}, 0xffff0000, v{XR+c}")

        def reduce16(regs):
            for mode in ("quad_perm:[1,0,3,2]", "quad_perm:[2,3,0,1]", "row_half_mirror", "row_mirror"):
                for r in regs:
                    a(f"v_add_f32_dpp v{r}, v{r}, v{r} {mode} row_mask:0xf bank_mask:0xf")
                a("s_nop 1" if len(regs) == 1 else "s_nop 0")

        reduce16([124, 125])
        a(f"""
        v_mul_f32 v126, {f2u(-1.0/640):#x}, v124
        v_mul_f32 v127, {f2u(-1.0/640):#x}, v124
        v_mul_f32 v125, {f2u(-1.4426950408889634):#x}, v125
        v_mov_b32 v128, 0
        v_mov_b32 v129, 0
        v_mov_b32 v130, 0
        v_mov_b32 v131, 0
        v_exp_f32 v125, v125
        """)
        for c in range(20):
            a(f"v_pk_add_f32 {vr(XS+2*c,2)}, {vr(XS+2*c,2)}, v[126:127]")
        a("v_add_f32 v125, 1.0, v125\nv_rcp_f32 v125, v125")
        for c in range(20):
            t = 128 + 2 * (c & 1)
            a(f"v_pk_fma_f32 {vr(t,2)}, {vr(XS+2*c,2)}, {vr(XS+2*c,2)}, {vr(t,2)}")
        a("v_pk_add_f32 v[128:129], v[128:129], v[130:131]\nv_add_f32 v128, v128, v129\ns_nop 1")
        reduce16([128])
        a(f"v_mov_b32 v126, {f2u(1e-5):#x}\nv_fmac_f32 v126, {f2u(1.0/640):#x}, v128\nv_rsq_f32 v126, v126")
        a(f"""
        s_lshl_b32 s{S_T0}, s{S_WAVE}, 2
        v_add_u32 v2, s{S_T0}, v2
        v_mov_b32 v127, v126
        v_mul_u32_u24 v4, {LN_ST}, v2
        v_add_u32 v4, v4, v3
        v_lshlrev_b32 v2, 2, v2
        """)
        for c4 in range(5):
            for c in range(4 * c4, 4 * c4 + 4):
                a(f"v_pk_mul_f32 {vr(XS+2*c,2)}, {vr(XS+2*c,2)}, v[126:127]")
            for c in range(4 * c4, 4 * c4 + 4):
                a(f"v_cvt_pk_bf16_f32 v{XR+c}, v{XS+2*c}, v{XS+2*c+1}")
            a(f"ds_write_b128 v4, {vr(XR+4*c4,4)} offset:{LNBUF + c4*256}")
        a(f"ds_write_b32 v2, v125 offset:{LNG}")
        a(f"""
        v_and_b32 v12, 15, v1
        v_lshrrev_b32 v13, 4, v1
        v_lshrrev_b32 v15, 2, v12
        v_lshl_add_u32 v15, v13, 2, v15
        v_mul_u32_u24 v15, {LN_ST}, v15
        v_and_b32 v2, 3, v12
        v_lshl_add_u32 v15, v2, 3, v15
        s_mul_i32 s{S_T0}, s{S_WAVE}, 160
        v_add_u32 v15, s{S_T0}, v15
        v_lshlrev_b32 v14, 4, v1
        v_lshlrev_b32 v2, 2, v1
        s_mul_i32 s{S_T0}, s{S_WAVE}, {5*65536}
        s_lshl_b32 s{S_T0+1}, s{S_KST}, 10
        s_add_u32 s{S_T0}, s{S_T0}, s{S_T0+1}
        s_add_u32 s{S_T0}, s{S_T0}, {HT}
        s_waitcnt lgkmcnt(0)
        s_add_u32 s{S_TAG}, s{S_TAG}, {TAG_INC:#x}
        s_barrier
        """)
        self.stamp(12, 44)
        for i in range(5):
            a(f"ds_read_b64_tr_b16 {vr(44+4*i,2)}, v15 offset:{LNBUF + i*32}")
            a(f"ds_read_b64_tr_b16 {vr(46+4*i,2)}, v15 offset:{LNBUF + i*32+16*LN_ST}")
        a(f"ds_read_b32 v125, v2 offset:{LNG}")
        for i in range(5):
            a(f"s_waitcnt lgkmcnt({9-2*i})")
            a(f"buffer_store_dwordx4 {vr(44+4*i,4)}, v14, s[{R_WS}:{R_WS+3}], s{S_T0} offen sc1")
            if i < 4:
                a(f"s_add_u32 s{S_T0}, s{S_T0}, 65536")
        a(f"""
        s_cmp_lg_u32 s{S_WAVE}, 0
        s_cbranch_scc1 L_B_nog
        s_lshl_b32 s{S_T0}, s{S_KST}, 7
        s_add_u32 s{S_T0}, s{S_T0}, {G_OFF}
        s_waitcnt lgkmcnt(0)
        s_mov_b32 exec_hi, 0
        buffer_store_dword v125, v2, s[{R_WS}:{R_WS+3}], s{S_T0} offen sc1
        s_mov_b32 exec_hi, -1
        L_B_nog:
        s_waitcnt vmcnt(0) lgkmcnt(0)
        s_barrier
        s_cmp_lg_u32 s{S_WAVE}, 0
        s_cbranch_scc1 L_B_nofl
        s_mul_i32 s{S_T0}, s{S_KST}, {FS}
        s_add_u32 s{S_T0}, s{S_T0}, {F_LN}
        """)
        self.flag_store(S_T0, 12)
        self.stamp(1, 12)
        a("L_B_nofl:")
        if self.o.get("wq") == 1:
            a(f"s_lshl_b32 s{S_T0+1}, s{S_KST}, 3\ns_add_u32 s{S_T0+1}, s{S_T0+1}, s{S_WAVE}")
            wq_touch()
        a("s_branch L_B_join")
        a("L_B_pfrole:")
        self.srd(R_W, P_W1, 2048 * 3072)
        if self.o.get("pfdelay"):
            common_setup()
            a("s_waitcnt vmcnt(0)")
        wq = self.o.get("wq", 0)
        a(f"""
        s_sub_u32 s{S_T0}, s{S_J}, 16
        s_lshl_b32 s{S_T0}, s{S_T0}, 3
        s_add_u32 s{S_T0}, s{S_T0}, s{S_WAVE}
        s_lshl_b32 s{S_T0+1}, s{S_XCD}, 7
        s_add_u32 s{S_T0+1}, s{S_T0+1}, s{S_T0}
        v_lshrrev_b32 v6, 3, v1
        v_and_b32 v7, 7, v1
        v_min_u32 v7, 5, v7
        v_mul_u32_u24 v6, 3072, v6
        v_lshl_add_u32 v7, v7, 7, v6
        s_mul_i32 s{S_T0}, s{S_T0}, {8*3072}
        s_mul_i32 s{S_T0+2}, s{S_XCD}, 768
        s_add_u32 s{S_T0}, s{S_T0}, s{S_T0+2}
        buffer_load_dword v253, v7, s[{R_W}:{R_W+3}], s{S_T0} offen
        """)
        if wq == 0:
            wq_touch()
        a(f"""
        s_add_u32 s{S_T0}, s{S_T0}, {1024*3072}
        buffer_load_dword v253, v7, s[{R_W}:{R_W+3}], s{S_T0} offen
        """)
        if not self.o.get("pfdelay"):
            common_setup()
        self.stamp(15, 12)
        a(f"s_waitcnt lgkmcnt(0)\ns_add_u32 s{S_TAG}, s{S_TAG}, {TAG_INC:#x}")
        a(f"s_cmp_ge_u32 s{S_J}, 30\ns_cbranch_scc1 L_helper")
        N1 = self.o.get("n1", 8)
        NREG = self.o.get("nreg", 0)
        assert NREG == 0 or N1 == 8

        def w1_issue():
            t = self.perm_next(S_T0, S_PERM, 128 * 3072)
            t += f"s_mov_b32 m0, s{S_B}\ns_add_u32 s{S_T0}, s{S_T0}, s{S_A}\n"
            for i in range(4):
                t += f"buffer_load_dwordx4 v{VPF+i}, s[{R_W}:{R_W+3}], s{S_T0} offen offset:{i*1024} lds\n"
            t += f"s_add_u32 s{S_B}, s{S_B}, 16384\n"
            return t
        a(f"""
        L_B_join:
        s_cmp_lt_u32 s{S_WAVE}, 4
        s_cbranch_scc1 L_B_comp0
        s_sub_u32 s{S_T0}, s{S_WAVE}, 4
        s_lshl_b32 s{S_B}, s{S_T0}, 12
        s_mul_i32 s{S_A}, s{S_T0}, {32*3072}
        s_lshl_b32 s{S_T0}, s{S_FT}, 7
        s_add_u32 s{S_A}, s{S_A}, s{S_T0}
        L_B_pf:
        """ + w1_issue() + f"""
        s_cmp_lt_u32 s{S_B}, {N1*16384}
        s_cbranch_scc1 L_B_pf
        """)
        for k in range(NREG):
            if k == 4:
                a("s_waitcnt vmcnt(40)")
            a(self.perm_next(S_T0, S_PERM, 128 * 3072) + f"s_add_u32 s{S_T0}, s{S_T0}, s{S_A}")
            for i in range(4):
                a(f"buffer_load_dwordx4 {vr(64+16*k+4*i,4)}, v{VPF+i}, s[{R_W}:{R_W+3}], s{S_T0} offen offset:{i*1024}")
        a(f"s_branch L_B_aux\nL_B_comp0:\ns_cmp_lg_u32 s{S_WAVE}, 0\ns_cbranch_scc1 L_B_l3")
        a(f"v_mul_u32_u24 v12, {FS}, v1\nv_add_u32 v12, {F_LN}, v12")
        self.poll([12], 14)
        self.stamp(2, 12)
        a("L_B_l3:")
        PF, WF, ACC, VT, VL = 64, 128, 160, 8, 12
        a(f"""
        s_lshl_b32 s{S_T0}, s{S_DT}, 3
        s_lshl_b32 s{S_T0+1}, s{S_WAVE}, 1
        s_add_u32 s{S_D}, s{S_T0}, s{S_T0+1}
        s_lshl_b32 s{S_T0}, s{S_D}, 16
        s_add_u32 s{S_T0}, s{S_T0}, {HT}
        """)
        self.srd(R_P, P_WS, 65536, off_s=S_T0)
        a(f"s_add_u32 s{S_T0}, s{S_T0}, 65536")
        self.srd(R_M, P_WS, 65536, off_s=S_T0)
        a(f"v_lshlrev_b32 v{VL}, 4, v1\ns_mov_b32 s{S_B}, 0")
        a(self.perm_next(S_C, S_PERM, 4096))
        self.tr_addr(VT)
        for r in range(32):
            a(f"v_mov_b32 v{ACC+r}, 0")
        a("s_barrier")
        RP = (R_P, R_M)

        def pload(u, ks):
            if self.o.get("x_noload"):
                return "s_nop 0"
            sc = "" if self.o.get("x_nosc1") else "sc1"
            so = "0" if self.o.get("x_same") else f"s{S_C}"
            return "\n".join(f"buffer_load_dwordx4 {vr(PF+32*(u%2)+8*ks+4*d,4)}, v{VL}, s[{RP[d]}:{RP[d]+3}], {so} offen offset:{ks*1024} {sc}" for d in range(2))

        for t in range(2):
            for ks in range(4):
                a(pload(t, ks))
            a(self.perm_next(S_C, S_PERM, 4096))
            if t == 0:
                first_bar_here = len(a.L)

        def mk(u, bar, virtual=False, head=None, tail=None):
            uses = []
            for ks in range(4):
                for b in range(4):
                    g = ks * 4 + b
                    wb = WF + 4 * (g % 8)
                    off = u * 16384 + ks * 4096
                    reads = [(f"w{g}a", f"ds_read_b64_tr_b16 {vr(wb,2)}, v{VT+b} offset:{off}"),
                             (f"w{g}b", f"ds_read_b64_tr_b16 {vr(wb+2,2)}, v{VT+b} offset:{off+2048}")]
                    mf = []
                    for dd in range(2):
                        acc = vr(ACC + 16 * dd + 4 * b, 4)
                        mf.append(f"v_mfma_f32_16x16x32_bf16 {acc}, {vr(wb,4)}, {vr(PF+32*(u%2)+8*ks+4*dd,4)}, {acc}")
                    d = dict(reads=reads, need=[f"w{g}b"], mf=mf)
                    if b == 0:
                        d["vm"] = 14
                    if b == 3:
                        d["after"] = pload(u, ks)
                        if ks == 3:
                            d["after"] += "\n" + self.perm_next(S_C, S_PERM, 4096)
                            if u >= 1:
                                d["after"] += f"s_cmp_ge_u32 s{S_B}, 3\ns_cselect_b32 s{S_C}, 0x10000, s{S_C}"
                    uses.append(d)
            return dict(uses=uses, bar=bar, virtual=virtual, head=head, tail=tail)

        xo = "s_barrier\n" + "\n".join(f"v_xor_b32 v{VT+b}, 0x10000, v{VT+b}" for b in range(4))
        tail = f"s_add_u32 s{S_B}, s{S_B}, 1\ns_cmp_lt_u32 s{S_B}, 4\ns_cbranch_scc1 L_B_loop"
        st = [mk(0, "", head="L_B_loop:"), mk(1, "s_barrier"), mk(2, "s_barrier"), mk(3, "s_barrier", tail=tail), mk(0, xo, virtual=True)]
        a.L.insert(first_bar_here, "    s_barrier")
        nd = self.o.get("nodrain")
        LB = self.o.get("LB", 7)
        self.pipeline(st, LB, (16 - LB) if nd else 13, drain=not nd, wait_every=self.o.get('we', 2))
        if nd:
            a("s_waitcnt lgkmcnt(0)\ns_barrier")
        self.stamp(3, 44)
        c = 0.7978845608028654
        k0 = -2.0 * c * 1.4426950408889634
        k1 = k0 * 0.044715
        a(f"""
        s_waitcnt lgkmcnt(0)
        s_mov_b32 s{S_K0}, {f2u(k1):#x}
        s_mov_b32 s{S_K0+1}, {f2u(k1):#x}
        v_mov_b32 v44, {f2u(k0):#x}
        v_mov_b32 v45, {f2u(k0):#x}
        v_mov_b32 v46, 1.0
        v_mov_b32 v47, 1.0
        s_mul_i32 s{S_T0}, s{S_D}, {UW_ST}
        s_lshl_b32 s{S_T0+1}, s{S_FT}, 11
        s_add_u32 s{S_T0}, s{S_T0}, s{S_T0+1}
        s_add_u32 s{S_T0}, s{S_T0}, {UW}
        """)
        BF = 16
        for b in range(4):
            a(f"v_lshlrev_b32 v{BF+4*b}, 16, v{B1R+2*b}\nv_and_b32 v{BF+4*b+1}, 0xffff0000, v{B1R+2*b}")
            a(f"v_lshlrev_b32 v{BF+4*b+2}, 16, v{B1R+2*b+1}\nv_and_b32 v{BF+4*b+3}, 0xffff0000, v{B1R+2*b+1}")
        for dd in range(2):
            for p in range(2):
                r = ACC + 16 * dd + 8 * p
                T = 48
                for q in range(4):
                    a(f"v_pk_add_f32 {vr(r+2*q,2)}, {vr(r+2*q,2)}, {vr(BF+8*p+2*q,2)}")
                for q in range(4):
                    a(f"v_pk_mul_f32 {vr(T+2*q,2)}, {vr(r+2*q,2)}, {vr(r+2*q,2)}")
                for q in range(4):
                    a(f"v_pk_fma_f32 {vr(T+2*q,2)}, {vr(T+2*q,2)}, s[{S_K0}:{S_K0+1}], v[44:45]")
                for q in range(4):
                    a(f"v_pk_mul_f32 {vr(T+2*q,2)}, {vr(T+2*q,2)}, {vr(r+2*q,2)}")
                for q in range(8):
                    a(f"v_exp_f32 v{T+q}, v{T+q}")
                for q in range(4):
                    a(f"v_pk_add_f32 {vr(T+2*q,2)}, {vr(T+2*q,2)}, v[46:47]")
                for q in range(8):
                    a(f"v_rcp_f32 v{T+q}, v{T+q}")
                for q in range(4):
                    a(f"v_pk_mul_f32 {vr(r+2*q,2)}, {vr(r+2*q,2)}, {vr(T+2*q,2)}")
                o = 56 + 4 * (p & 1)
                for q in range(4):
                    a(f"v_cvt_pk_bf16_f32 v{o+q}, v{r+2*q}, v{r+2*q+1}")
                a(f"buffer_store_dwordx4 {vr(o,4)}, v{VL}, s[{R_WS}:{R_WS+3}], s{S_T0} offen offset:{p*1024} sc1")
            if dd == 0:
                a(f"s_add_u32 s{S_T0}, s{S_T0}, {UW_ST}")
        self.stamp(10, 44)
        a("s_waitcnt vmcnt(0)\ns_barrier\ns_branch L_F_comp")

        a("L_B_aux:\ns_barrier")
        order = list(range(N1 + NREG))
        cnt = {k: 4 for k in range(16)}
        cnt["t"] = 1
        nxt = N1
        lag = self.o.get("lag", 0)
        if NREG:
            a(f"""
            s_sub_u32 s{S_T0}, s{S_WAVE}, 4
            s_lshl_b32 s{S_T0}, s{S_T0}, 12
            v_lshlrev_b32 v12, 4, v1
            v_add_u32 v12, s{S_T0}, v12
            v_add_u32 v13, 0x10000, v12
            s_add_u32 s{S_B}, s{S_T0}, {(NREG % 8) * 16384}
            """)
        eB = self.o.get("eB", 17)
        nB1 = self.o.get("nB1", 0)
        per = self.o.get("perB", 2)
        done_w2 = 0
        for tb in range(17):
            if tb < 16 and tb <= eB:
                n = sum(cnt[x] for x in order[order.index(tb) + 1:])
                a(f"s_waitcnt vmcnt({min(n, 63) if tb < eB else 0}) lgkmcnt(0)")
            a("s_barrier")
            if tb < 16:
                self.stamp(16 + tb, 44)
            if tb == eB:
                assert nxt == 16
                self.w2_setup()
            if tb >= eB and done_w2 < nB1:
                k2 = min(per, nB1 - done_w2, tb - 9 - done_w2)
                sk = self.if_wave56()
                self.w2_prefill(k2)
                a(f"{sk}:")
                done_w2 += k2
            k = 0
            while nxt <= min(15, tb + (6 if self.o.get("nodrain") and nxt >= 8 else 7) - (lag if nxt >= 8 + NREG else 0)) and k < 2:
                if 8 <= nxt < 8 + NREG:
                    n = sum(cnt[x] for x in order[order.index(nxt) + 1:])
                    a(f"s_waitcnt vmcnt({min(n, 63)})")
                    sl = nxt % 8
                    for i in range(4):
                        a(f"ds_write_b128 v{13 if sl >= 4 else 12}, {vr(64+16*(nxt-8)+4*i,4)} offset:{(sl&3)*16384+i*1024}")
                else:
                    if nxt == 8:
                        a(f"s_and_b32 s{S_B}, s{S_B}, 0x1ffff")
                    a(w1_issue())
                    order.append(nxt)
                nxt += 1
                k += 1
        assert nxt == 16
        if self.o.get("nodrain"):
            a("s_barrier")
        if eB == 17:
            self.w2_setup()
        skip = self.if_wave56()
        self.w2_prefill(nB1 - done_w2)
        a("s_barrier\ns_nop 7\ns_nop 7")
        self.w2_prefill(8 - nB1)
        a("s_branch L_F_loader")
        a(f"{skip}:\ns_barrier")
        a(f"s_cmp_lg_u32 s{S_WAVE}, 7\ns_cbranch_scc1 L_F_u4")
        a(f"s_mul_i32 s{S_T0}, s{S_DT}, 24\ns_add_u32 s{S_T0}, s{S_T0}, s{S_FT}\ns_mul_i32 s{S_T0}, s{S_T0}, {FS}\ns_add_u32 s{S_T0}, s{S_T0}, {F_U}")
        self.flag_store(S_T0, 12)
        self.stamp(4, 12)
        a("s_branch L_F_poller")

    def w2_l2_prefetch(self, VT):
        a = self.a
        self.srd(R_W2, P_W2, 1536 * 4096)
        a(f"""
        v_lshrrev_b32 v{VT}, 3, v1
        v_and_b32 v{VT+1}, 7, v1
        v_lshlrev_b32 v{VT+1}, 7, v{VT+1}
        v_lshl_add_u32 v{VT}, v{VT}, 12, v{VT+1}
        s_mul_i32 s{S_T0}, s{S_J}, 48
        s_and_b32 s{S_T0+1}, s{S_WAVE}, 3
        s_mul_i32 s{S_T0+1}, s{S_T0+1}, 12
        s_add_u32 s{S_T0}, s{S_T0}, s{S_T0+1}
        s_lshl_b32 s{S_T0}, s{S_T0}, 12
        s_lshr_b32 s{S_T0+1}, s{S_XCD}, 1
        s_lshl_b32 s{S_T0+1}, s{S_T0+1}, 10
        s_add_u32 s{S_T0}, s{S_T0}, s{S_T0+1}
        buffer_load_dword v{VT+2}, v{VT}, s[{R_W2}:{R_W2+3}], s{S_T0} offen
        s_add_u32 s{S_T0}, s{S_T0}, {8*4096}
        s_mov_b32 exec_hi, 0
        buffer_load_dword v{VT+3}, v{VT}, s[{R_W2}:{R_W2+3}], s{S_T0} offen
        s_mov_b64 exec, -1
        """)

    def tr_addr(self, VT):
        a = self.a
        a(f"""
        v_and_b32 v{VT+1}, 15, v1
        v_lshrrev_b32 v{VT+2}, 4, v1
        v_lshrrev_b32 v{VT+3}, 2, v{VT+1}
        v_lshl_add_u32 v{VT+3}, v{VT+2}, 2, v{VT+3}
        v_bfe_u32 v{VT+2}, v{VT+3}, 1, 2
        v_lshlrev_b32 v{VT+3}, 7, v{VT+3}
        v_lshl_add_u32 v{VT+3}, v{VT+2}, 5, v{VT+3}
        v_and_b32 v{VT+1}, 3, v{VT+1}
        v_lshl_add_u32 v{VT}, v{VT+1}, 3, v{VT+3}
        v_xor_b32 v{VT+1}, 32, v{VT}
        v_xor_b32 v{VT+2}, 64, v{VT}
        v_xor_b32 v{VT+3}, 96, v{VT}
        """)

    def helper(self):
        a = self.a
        a("L_helper:")
        a(f"""
        s_lshl_b32 s{S_D}, s{S_XCD}, 1
        s_add_u32 s{S_D}, s{S_D}, s{S_J}
        s_sub_u32 s{S_D}, s{S_D}, 30
        """)
        self.srd(R_W, P_WO, 640 * 1280)
        for p in range(5):
            a(f"""
            v_add_u32 v12, {p*64}, v1
            v_mul_u32_u24 v13, 205, v12
            v_lshrrev_b32 v13, 11, v13
            v_mul_u32_u24 v14, 10, v13
            v_sub_u32 v14, v12, v14
            v_lshlrev_b32 v14, 4, v14
            v_mul_u32_u24 v13, 1280, v13
            v_add_u32 v{16+p}, v13, v14
            """)
            if p in (1, 2, 3):
                a(f"v_subrev_u32 v{16+p}, {p*1024}, v{16+p}")
        a(f"""
        s_mov_b32 s{S_C}, s{S_WAVE}
        L_H_ld:
        s_mul_i32 s{S_A}, s{S_C}, {32*1280}
        s_mul_i32 s{S_T0}, s{S_D}, 160
        s_add_u32 s{S_A}, s{S_A}, s{S_T0}
        s_mul_i32 s{S_B}, s{S_C}, 5120
        s_mov_b32 m0, s{S_B}
        s_nop 0
        """)
        for p in range(4):
            a(f"buffer_load_dwordx4 v{16+p}, s[{R_W}:{R_W+3}], s{S_A} offen offset:{p*1024} lds")
        a(f"s_add_u32 m0, s{S_B}, 4096\ns_nop 0\nbuffer_load_dwordx4 v20, s[{R_W}:{R_W+3}], s{S_A} offen lds")
        a(f"""
        s_add_u32 s{S_C}, s{S_C}, 8
        s_cmp_lt_u32 s{S_C}, 20
        s_cbranch_scc1 L_H_ld
        v_and_b32 v12, 15, v1
        v_lshrrev_b32 v13, 4, v1
        v_lshrrev_b32 v14, 2, v12
        v_lshl_add_u32 v14, v13, 2, v14
        v_mul_u32_u24 v14, 160, v14
        v_and_b32 v12, 3, v12
        v_lshl_add_u32 v14, v12, 3, v14
        v_lshlrev_b32 v15, 4, v1
        s_waitcnt vmcnt(0)
        s_barrier
        s_mov_b32 s{S_C}, s{S_WAVE}
        L_H_tr:
        s_lshr_b32 s{S_T0}, s{S_C}, 1
        s_mul_i32 s{S_T0}, s{S_T0}, 5
        s_and_b32 s{S_T0+1}, s{S_C}, 1
        s_lshl_b32 s{S_T0+1}, s{S_T0+1}, 1
        s_add_u32 s{S_T0}, s{S_T0}, s{S_T0+1}
        s_add_u32 s{S_T0+1}, s{S_T0}, 1
        s_mul_i32 s{S_T0+2}, s{S_C}, 10
        s_sub_u32 s{S_T0+2}, s{S_T0+2}, 156
        s_add_u32 s{S_T0+3}, s{S_T0+2}, 5
        s_cmp_lt_u32 s{S_C}, 16
        s_cselect_b32 s{S_T0}, s{S_T0}, s{S_T0+2}
        s_cselect_b32 s{S_T0+1}, s{S_T0+1}, s{S_T0+3}
        s_mul_i32 s{S_T0}, s{S_T0}, 2560
        s_mul_i32 s{S_T0+1}, s{S_T0+1}, 2560
        v_add_u32 v12, s{S_T0}, v14
        v_add_u32 v13, s{S_T0+1}, v14
        """)
        for b in range(5):
            a(f"ds_read_b64_tr_b16 {vr(24+4*b,2)}, v12 offset:{b*32}\nds_read_b64_tr_b16 {vr(26+4*b,2)}, v13 offset:{b*32}")
        a(f"""
        s_mul_i32 s{S_T0}, s{S_D}, {5*UW_ST}
        s_lshl_b32 s{S_T0+1}, s{S_C}, 10
        s_add_u32 s{S_T0}, s{S_T0}, s{S_T0+1}
        s_add_u32 s{S_T0}, s{S_T0}, {UW + 49152}
        """)
        for b in range(5):
            a(f"s_waitcnt lgkmcnt({8-2*b})")
            a(f"buffer_store_dwordx4 {vr(24+4*b,4)}, v15, s[{R_WS}:{R_WS+3}], s{S_T0} offen sc1")
            if b < 4:
                a(f"s_add_u32 s{S_T0}, s{S_T0}, {UW_ST}")
        a(f"""
        s_add_u32 s{S_C}, s{S_C}, 8
        s_cmp_lt_u32 s{S_C}, 20
        s_cbranch_scc1 L_H_tr
        s_waitcnt vmcnt(0)
        s_barrier
        """)
        skip = self.if_wave56()
        self.w2_setup()
        self.w2_prefill(8)
        a(f"s_branch L_F_loader\n{skip}:")
        a(f"s_cmp_lt_u32 s{S_WAVE}, 4\ns_cbranch_scc1 L_F_comp\ns_cmp_lg_u32 s{S_WAVE}, 7\ns_cbranch_scc1 L_F_u4")
        a(f"s_mul_i32 s{S_T0}, s{S_D}, {FS}\ns_add_u32 s{S_T0}, s{S_T0}, {F_WOT}")
        self.flag_store(S_T0, 12)
        self.stamp(14, 12)
        a("s_branch L_F_poller")

    F_WOT_REG = 172

    def uw_srd(self):
        a = self.a
        a(f"""
        s_mul_i32 s{S_T0}, s{S_DTILE}, 5
        s_add_u32 s{S_D}, s{S_T0}, s{S_WAVE}
        s_mul_i32 s{S_T0}, s{S_D}, {UW_ST}
        s_add_u32 s{S_T0}, s{S_T0}, {UW}
        """)
        self.srd(R_P, P_WS, UW_ST, off_s=S_T0)

    def wot_preload(self, VL):
        a = self.a
        for k in range(20):
            if k % 4 == 0:
                a(f"s_mov_b32 s{S_C}, {49152 + k*1024}")
            a(f"buffer_load_dwordx4 {vr(self.F_WOT_REG+4*k,4)}, v{VL}, s[{R_P}:{R_P+3}], s{S_C} offen offset:{(k%4)*1024} sc1")

    def f0_barrier(self):
        lab = self.a.label("f0")
        self.a(f"s_cmp_eq_u32 s{S_FROMA}, 1\ns_cbranch_scc1 {lab}\ns_barrier\n{lab}:")

    def final(self):
        a = self.a
        a("L_F_comp:")
        if self.stop == "phase1":
            a("s_branch L_end")
        PF, WF, ACC, ACC4, U4, WOT = 64, 112, 144, 160, 164, 172
        NPF = 3
        pre = True
        VT, VL, VU4, VT2, GV, BV, VGH, VG8 = 8, 12, 13, 16, 20, 24, 28, 32
        self.uw_srd()
        self.srd(R_M, P_B2, 4096)
        self.srd(R_OUT, P_OUT, 2048 * 1280)
        self.tr_addr(4)
        a(f"""
        v_lshlrev_b32 v{VL}, 4, v1
        v_add_u32 v{VU4}, 0x20000, v{VL}
        v_lshlrev_b32 v5, 3, v1
        v_and_b32 v2, 15, v1
        v_lshlrev_b32 v3, 1, v2
        v_lshlrev_b32 v2, 2, v2
        """)
        SB = S_MSK
        for b in range(4):
            a(f"""
            s_add_u32 s{SB+b}, s{S_WAVE}, {b}
            s_and_b32 s{SB+b}, s{SB+b}, 3
            s_lshl_b32 s{S_T0}, s{SB+b}, 5
            v_xor_b32 v{VT+b}, s{S_T0}, v4
            s_lshl_b32 s{S_T0+1}, s{S_ST}, 7
            s_add_u32 s{S_T0}, s{S_T0}, s{S_T0+1}
            buffer_load_ushort v{BV+b}, v3, s[{R_M}:{R_M+3}], s{S_T0} offen
            v_add_u32 v{VT2+b}, 0x10000, v{VT+b}
            s_lshl_b32 s{S_T0}, s{SB+b}, 12
            v_add_u32 v{VG8+b}, s{S_T0}, v5
            s_add_u32 s{S_T0}, s{S_T0}, 0x10000
            v_add_u32 v{VGH+b}, s{S_T0}, v{VL}
            """)
        for r in range(16):
            a(f"v_mov_b32 v{ACC+r}, 0")
        for r in range(4):
            a(f"v_mov_b32 v{ACC4+r}, 0")
        a(f"s_lshl_b32 s{S_A}, s{S_ST}, 8\ns_add_u32 s{S_A}, s{S_A}, {G_OFF}")
        self.f_perm()
        nstream = 12 if pre else 17

        def next_sc(step):
            if step < 12:
                return self.perm_next(S_C, S_PERM, 4096)
            return f"s_mov_b32 s{S_C}, {step*4096}\n"
        a(f"s_cmp_eq_u32 s{S_FROMA}, 1\ns_cbranch_scc1 L_F_nowot\ns_barrier")
        self.wot_preload(VL)
        a("L_F_nowot:")
        a(next_sc(0))
        a("s_barrier")
        for t in range(NPF):
            for ks in range(4):
                a(f"buffer_load_dwordx4 {vr(PF+16*t+4*ks,4)}, v{VL}, s[{R_P}:{R_P+3}], s{S_C} offen offset:{ks*1024} sc1")
            a(next_sc(t + 1))
            if t == 0:
                a("s_barrier")
            if t == NPF - 1:
                for b in range(4):
                    a(f"s_lshl_b32 s{S_T0}, s{SB+b}, 6\ns_add_u32 s{S_T0}, s{S_T0}, s{S_A}")
                    a(f"buffer_load_dword v{GV+b}, v2, s[{R_WS}:{R_WS+3}], s{S_T0} offen sc1")

        ACC2 = 40
        for r in range(20):
            a(f"v_mov_b32 v{ACC2+r}, 0")
        blocks = [(ACC + 4 * b, b) for b in range(4)] + [(ACC4, 0)]
        fill = []
        for b in range(4):
            fill += [f"v_lshlrev_b32 v{BV+b}, 16, v{BV+b}", f"v_sub_f32 v{GV+b}, 1.0, v{GV+b}"]
        for r0, b in blocks:
            for k in range(4):
                fill.append(f"v_add_f32 v{r0+k}, v{BV+b}, v{r0+k}")

        stages = []
        for t in range(17):
            slot = t % 8
            hi = slot >= 4
            uses = []
            for ks in range(4):
                for b in range(4):
                    g = ks * 4 + b
                    wb = WF + 4 * (g % 8)
                    reads = []
                    u4 = U4 + 4 * (ks & 1)
                    if b == 0:
                        reads.append((f"u{ks}", f"ds_read_b128 {vr(u4,4)}, v{VU4} offset:{slot*4096 + ks*1024}"))
                    if t < 12:
                        off = (slot & 3) * 16384 + ks * 4096
                        va = (VT2 if hi else VT) + b
                        reads += [(f"w{g}a", f"ds_read_b64_tr_b16 {vr(wb,2)}, v{va} offset:{off}"),
                                  (f"w{g}b", f"ds_read_b64_tr_b16 {vr(wb+2,2)}, v{va} offset:{off+2048}")]
                    elif t < 16:
                        assert hi
                        off = (slot & 3) * 16384 + ks * 1024
                        reads += [(f"w{g}b", f"ds_read_b128 {vr(wb,4)}, v{VGH+b} offset:{off}")]
                    else:
                        off = (slot & 3) * 16384 + ks * 1024
                        assert not hi
                        reads += [(f"w{g}a", f"ds_read_b64 {vr(wb,2)}, v{VG8+b} offset:{off}"),
                                  (f"w{g}b", f"ds_read_b64 {vr(wb+2,2)}, v{VG8+b} offset:{off+512}")]
                    acc = vr((ACC if t < 12 else ACC2) + 4 * b, 4)
                    a4 = vr(ACC4 if t < 12 else ACC2 + 16, 4)
                    ring = t < nstream
                    pf = vr(PF + 16 * (t % NPF) + 4 * ks, 4) if ring else vr(WOT + 16 * (t - 12) + 4 * ks, 4)
                    mf = [f"v_mfma_f32_16x16x32_bf16 {acc}, {pf}, {vr(wb,4)}, {acc}"]
                    if b == 0:
                        mf.append(f"v_mfma_f32_16x16x32_bf16 {a4}, {vr(u4,4)}, {vr(wb,4)}, {a4}")
                    d = dict(reads=reads, need=[f"w{g}b"], mf=mf)
                    if b == 0 and ring:
                        k = t * 4 + ks
                        n = min(k + 4 * NPF - 1, 4 * nstream - 1) - k
                        if t < NPF:
                            n += 4
                        d["vm"] = n
                    if b == 3 and t + NPF < nstream:
                        d["after"] = f"buffer_load_dwordx4 {pf}, v{VL}, s[{R_P}:{R_P+3}], s{S_C} offen offset:{ks*1024} sc1"
                        if ks == 3 and t + NPF + 1 < nstream:
                            d["after"] += "\n" + next_sc(t + NPF + 1)
                    if t >= 13 and fill and g < 15:
                        d["after"] = fill.pop(0)
                    uses.append(d)
            stages.append(dict(uses=uses, bar="s_barrier" if t else ""))
        nd = self.o.get("nodrain")
        LF = self.o.get("LF", 6)
        self.pipeline(stages, LF, (16 - LF) if nd else 13, drain=not nd, wait_every=self.o.get('we', 2))
        self.stamp(8, 2)
        a(f"""
        v_and_b32 v2, 15, v1
        v_mul_u32_u24 v2, 1280, v2
        v_lshrrev_b32 v3, 4, v1
        v_lshl_add_u32 v2, v3, 3, v2
        s_mul_i32 s{S_A}, s{S_ST}, {64*1280}
        s_lshl_b32 s{S_T0+1}, s{S_D}, 5
        s_add_u32 s{S_B}, s{S_A}, s{S_T0+1}
        s_mul_i32 s{S_T0+1}, s{S_DTILE}, 160
        s_add_u32 s{S_A}, s{S_A}, s{S_T0+1}
        s_add_u32 s{S_A}, s{S_A}, 128
        """)
        assert not fill
        for i_, (r, b) in enumerate(blocks):
            for k in range(4):
                a(f"v_fma_f32 v{r+k}, v{r+k}, v{GV+b}, v{ACC2+4*i_+k}")
            a(f"s_mul_i32 s{S_T0}, s{SB+b}, {16*1280}\ns_add_u32 s{S_T0}, s{S_T0}, s{S_A if r == ACC4 else S_B}")
            a(f"v_cvt_pk_bf16_f32 v{r}, v{r}, v{r+1}\nv_cvt_pk_bf16_f32 v{r+1}, v{r+2}, v{r+3}")
            a(f"buffer_store_dwordx2 {vr(r,2)}, v2, s[{R_OUT}:{R_OUT+3}], s{S_T0} offen {['', 'sc1', 'nt', 'sc0 sc1'][self.o.get('osc', 0)]}")
        if self.stamps or self.o.get("dbg"):
            a("s_waitcnt vmcnt(0)")
            self.stamp(9, 2)
        if self.o.get("calib"):
            a(f"""
            L_cal:
            s_memrealtime s[96:97]
            s_waitcnt lgkmcnt(0)
            s_sub_u32 s96, s96, s98
            s_cmp_lt_u32 s96, {self.o.get("calib")*100}
            s_cbranch_scc1 L_cal
            """)
        a(f"s_or_b32 s{S_T0}, s2, s{S_WAVE}\ns_cmp_lg_u32 s{S_T0}, 0\ns_cbranch_scc1 L_end\ns_mov_b32 s{S_T0}, 0")
        self.flag_store(S_T0, 4)
        a("s_branch L_end")

        a("L_F_u4:")
        if self.stop == "phase1":
            a("s_branch L_end")
        a(f"""
        v_lshlrev_b32 v{VL}, 4, v1
        s_mul_i32 s{S_C}, s{S_DTILE}, {5*UW_ST}
        s_add_u32 s{S_C}, s{S_C}, {UW + 4*UW_ST}
        """)
        self.f_perm()
        self.f0_barrier()
        p4 = self.o.get("preW4")
        if p4:
            for k in range(20):
                if k % 4 == 0:
                    a(f"s_add_u32 s{S_T0}, s{S_C}, {49152 + k*1024}")
                a(f"buffer_load_dwordx4 {vr(64+4*k,4)}, v{VL}, s[{R_WS}:{R_WS+3}], s{S_T0} offen offset:{(k%4)*1024} sc1")
            a(f"v_add_u32 v{VU4}, 0x20000, v{VL}")
        a("s_barrier")

        def u4_issue(iv):
            if iv >= 12 and p4:
                for i in range(4):
                    a(f"ds_write_b128 v{VU4}, {vr(64+16*(iv-12)+4*i,4)} offset:{(iv % 8)*4096 + i*1024}")
                return
            if iv < 12:
                a(self.perm_next(S_T0, S_PERM, 4096) + f"s_mov_b32 m0, {0x20000 + (iv % 8)*4096:#x}\ns_add_u32 s{S_T0}, s{S_T0}, s{S_C}")
            else:
                a(f"s_mov_b32 m0, {0x20000 + (iv % 8)*4096:#x}\ns_add_u32 s{S_T0}, s{S_C}, {iv*4096}")
            for i in range(4):
                a(f"buffer_load_dwordx4 v{VL}, s[{R_WS}:{R_WS+3}], s{S_T0} offen offset:{i*1024} sc1 lds")
        order = []
        for iv in range(8):
            u4_issue(iv)
            order.append(iv)
            if iv == 2:
                a("s_waitcnt vmcnt(8)\ns_barrier")
        for tb in range(1, 17):
            if tb in order:
                a(f"s_waitcnt vmcnt({4*len(order[order.index(tb)+1:])})")
            a("s_waitcnt lgkmcnt(0)\ns_barrier" if p4 and tb >= 7 else "s_barrier")
            iv = tb + (6 if self.o.get("nodrain") else 7)
            if 8 <= iv <= 16:
                u4_issue(iv)
                if not (p4 and iv >= 12):
                    order.append(iv)
        a("s_branch L_end")

        a("L_F_loader:")
        if self.stop == "phase1":
            a("s_branch L_end")
        a(f"v_lshlrev_b32 v{VL}, 4, v1")
        self.f0_barrier()
        nWR = self.o.get("nWR", 0)
        V = self.V_W2
        if nWR:
            a(f"s_waitcnt vmcnt(30)\nv_add_u32 v{VU4}, s{S_B}, v{VL}")
            for k in range(nWR):
                a(self.perm_next(S_T0, S_PERM, 128 * 4096) + f"s_add_u32 s{S_T0}, s{S_T0}, s{S_A}")
                for g in range(2):
                    if g:
                        a(f"s_add_u32 s{S_T0}, s{S_T0}, {4*32768}")
                    for i in range(4):
                        a(f"buffer_load_dwordx4 {vr(64+32*k+16*g+4*i,4)}, v{V+i}, s[{R_W2}:{R_W2+3}], s{S_T0} offen offset:{i*1024}")
            a(f"s_add_u32 s{S_B}, s{S_B}, {nWR*16384}")
        a("s_barrier")
        a(f"""
        s_sub_u32 s{S_T0}, s{S_WAVE}, 5
        s_lshl_b32 s{S_T0}, s{S_T0}, 1
        s_lshl_b32 s{S_T0+1}, s{S_ST}, 2
        s_add_u32 s{S_T0+1}, s{S_T0+1}, s{S_T0}
        s_mul_i32 s{S_C}, s{S_T0+1}, {GO_ST}
        s_add_u32 s{S_C}, s{S_C}, {GO}
        s_lshl_b32 s{S_D}, s{S_T0}, 12
        """)
        order = list(range(8 + nWR))
        for tb in range(17):
            after = [x for x in order[order.index(tb) + 1:]]
            n = 8 * len(after)
            a(f"s_waitcnt vmcnt({min(n,63)}) lgkmcnt(0)\ns_barrier")
            t = tb - 1
            tw = t - (1 if self.o.get("nodrain") else 0)
            if 0 <= tw < nWR:
                a(f"s_waitcnt vmcnt({8*len(order[order.index(tw+8)+1:])})")
                for g in range(2):
                    for i in range(4):
                        a(f"ds_write_b128 v{VU4}, {vr(64+32*tw+16*g+4*i,4)} offset:{tw*16384 + g*4096 + i*1024}")
            elif 0 <= tw <= 3:
                self.w2_issue()
                order.append(tw + 8)
            if 8 <= t <= 12:
                iv = t + 4
                g = iv - 12
                for s2 in range(2):
                    a(f"s_add_u32 m0, s{S_D}, {(iv % 8)*16384 + s2*4096}\ns_add_u32 s{S_T0}, s{S_C}, {s2*GO_ST + g*4096}")
                    for i in range(4):
                        a(f"buffer_load_dwordx4 v{VL}, s[{R_WS}:{R_WS+3}], s{S_T0} offen offset:{i*1024} sc1 lds")
                order.append(iv)
        a("s_branch L_end")
        a("L_F_poller:")
        if self.stop == "phase1":
            a("s_branch L_end")
        a(f"s_cmp_eq_u32 s{S_FROMA}, 1\ns_cbranch_scc1 L_F_pnowot")
        a(f"s_mul_i32 s{S_T0}, s{S_DTILE}, {FS}\ns_add_u32 s{S_T0}, s{S_T0}, {F_WOT}\nv_mov_b32 v2, s{S_T0}")
        self.poll([2], 4)
        a("s_barrier\nL_F_pnowot:")
        a(f"""
        s_mul_i32 s{S_T0}, s{S_DTILE}, 5
        s_lshr_b32 s{S_T0+1}, s{S_T0}, 3
        s_add_u32 s{S_T0}, s{S_T0}, 4
        s_lshr_b32 s{S_T0}, s{S_T0}, 3
        s_mul_i32 s{S_T0}, s{S_T0}, 24
        s_mul_i32 s{S_T0+1}, s{S_T0+1}, 24
        v_and_b32 v2, 31, v1
        v_min_u32 v2, 23, v2
        v_add_u32 v3, s{S_T0}, v2
        v_add_u32 v2, s{S_T0+1}, v2
        v_cmp_gt_u32 vcc, 32, v1
        s_mul_i32 s{S_T0}, s{S_DTILE}, {FS}
        s_add_u32 s{S_T0}, s{S_T0}, {F_WOT}
        v_cndmask_b32 v2, v2, v3, vcc
        v_mul_u32_u24 v2, {FS}, v2
        v_add_u32 v2, {F_U}, v2
        v_mov_b32 v3, s{S_T0}
        v_cmp_eq_u32 vcc, 63, v1
        s_nop 1
        v_cndmask_b32 v2, v2, v3, vcc
        """)
        self.poll([2], 4)
        self.stamp(6, 4)
        a("s_barrier")
        a(f"""
        v_and_b32 v2, 7, v1
        s_lshr_b32 s{S_T0}, s{S_ST}, 1
        s_lshl_b32 s{S_T0}, s{S_T0}, 3
        v_add_u32 v2, s{S_T0}, v2
        v_mul_u32_u24 v2, {FS}, v2
        v_add_u32 v2, {F_GO}, v2
        """)
        gp = self.o.get("gopoll", 9)
        for tb in range(gp):
            a("s_barrier")
            if tb == 1:
                a(f"s_cmp_eq_u32 s{S_FROMA}, 1\ns_cbranch_scc0 L_F_nogo")
                a(f"s_lshl_b32 s{S_T0}, s{S_MT}, 3\ns_add_u32 s{S_T0}, s{S_T0}, s{S_HG}\ns_mul_i32 s{S_T0}, s{S_T0}, {FS}\ns_add_u32 s{S_T0}, s{S_T0}, {F_GO}")
                self.flag_store(S_T0, 6)
                a("L_F_nogo:")
            self.stamp(32 + tb, 4)
        self.poll([2], 4)
        self.stamp(7, 4)
        for tb in range(gp, 17):
            a("s_barrier")
            self.stamp(32 + tb, 4)
        a("L_end:")
        if "probe" in self.o or "pc1" in self.o:
            a("""
            s_cmp_eq_u32 s94, 0
            s_cbranch_scc1 L_exit
            L_prb:
            s_memrealtime s[96:97]
            s_waitcnt lgkmcnt(0)
            s_sub_u32 s96, s96, s98
            s_cmp_lt_i32 s96, 4000
            s_cbranch_scc1 L_prb
            """)
        if self.stamps:
            a(f"""
            s_lshl_b32 s{S_T0}, s2, 3
            s_add_u32 s{S_T0}, s{S_T0}, s{S_WAVE}
            s_lshl_b32 s{S_T0}, s{S_T0}, 9
            s_add_u32 s{S_T0}, s{S_T0}, {STAMP}
            v_lshlrev_b32 v2, 3, v1
            buffer_store_dwordx2 v[254:255], v2, s[{R_WS}:{R_WS+3}], s{S_T0} offen
            """)
        a("L_exit:\ns_endpgm")

    def build(self, header):
        a = self.a
        self.prologue()
        self.role_a()
        self.role_b()
        self.helper()
        self.final()
        body = a.text()
        out = header
        out += f"; @launch grid=(256,1,1) block=(512,1,1) lds={LDS_BYTES}\n"
        out += f'.amdgcn_target "amdgcn-amd-amdhsa--gfx950"\n.text\n.globl {KNAME}\n.p2align 8\n.type {KNAME},@function\n{KNAME}:\n'
        out += body
        out += f""".section .rodata,"a"
.p2align 6
.amdhsa_kernel {KNAME}
  .amdhsa_next_free_vgpr 256
  .amdhsa_next_free_sgpr 102
  .amdhsa_accum_offset 256
  .amdhsa_group_segment_fixed_size 0
  .amdhsa_kernarg_size 96
  .amdhsa_user_sgpr_count 2
  .amdhsa_user_sgpr_kernarg_segment_ptr 1
  .amdhsa_system_sgpr_workgroup_id_x 1
  .amdhsa_float_denorm_mode_32 3
.end_amdhsa_kernel
"""
        return out


def header():
    ref = open("gated_mix__linear_attn_block__mixer_token_mlp__prompt.s.ref").read().split("\n")
    h = []
    for l in ref:
        if l.startswith("; Override"):
            break
        h.append(l)
    return "\n".join(h) + "\n"


if __name__ == "__main__":
    import argparse
    p = argparse.ArgumentParser()
    p.add_argument("-o", default="gated_mix__linear_attn_block__mixer_token_mlp__prompt.s")
    p.add_argument("--stamps", action="store_true")
    p.add_argument("--stop", default=None)
    p.add_argument("--opt", default="")
    args = p.parse_args()
    opts = {k: (int(v) if v != '' else 1) for k, _, v in (x.partition('=') for x in args.opt.split(',') if x)}
    g = Gen(stamps=args.stamps, stop=args.stop, opts=opts)
    open(args.o, "w").write(g.build(header()))
    print("wrote", args.o)
```

```python
import sys

KNAME = "gated_mix__linear_attn_block__mixer_token_mlp__prompt_kernel"

import os
FS = int(os.environ.get('FS', 128))
F_LN, F_KV, F_U, F_GO, F_WOT = 0x1000, 0x5000, 0x9000, 0xD000, 0x11000
G_OFF = 0x12000
STAMP = 0x900000
KVP = 0x20000
KVP_ST = 7168
HT = 0x100000
UW = 0x380000
UW_ST = 69632
GO = 0x640000
GO_ST = 20480
WS_USED = 0xA00000
TAG_INC = 0x9E3779B9
SPIN_LIMIT = 1 << 17

LDS_BYTES = 163840
LNBUF = 0
LN_ST = 1312
LNG = LNBUF + 32 * LN_ST
A_SLOT = 49152
A_WOFF = 16384
EXCH_ST = 14336
EXCH = 0
KVT = 147456
ZH = KVT + 11 * 1024

LOG2E = 0x3FB8AA3B


def f2u(x):
    import struct
    return struct.unpack("<I", struct.pack("<f", x))[0]


class Asm:
    def __init__(self):
        self.L = []
        self.nlab = 0

    def __call__(self, s):
        for line in s.split("\n"):
            line = line.strip()
            if line:
                self.L.append(("    " if not line.endswith(":") else "") + line)

    def label(self, base):
        self.nlab += 1
        return f"L{base}_{self.nlab}"

    def text(self):
        return "\n".join(self.L) + "\n"


def vr(a, n=1):
    return f"v{a}" if n == 1 else f"v[{a}:{a+n-1}]"


def sr(a, n=1):
    return f"s{a}" if n == 1 else f"s[{a}:{a+n-1}]"


P_X, P_WQKV, P_WO, P_BX, P_W1, P_B1, P_W2, P_B2 = 4, 6, 8, 10, 12, 14, 16, 18
P_GATE, P_OUT, P_DBG, P_WS = 20, 22, 24, 26
S_TAG, S_WAVE = 28, 29
S_XCD, S_J = 30, 31
R_WS, R_X, R_W, R_P, R_W2, R_M, R_OUT = 32, 36, 40, 44, 48, 52, 56
S_T0 = 60
S_MT, S_HG, S_DT, S_FT, S_KST, S_PAR = 70, 71, 72, 73, 74, 75
S_ST, S_DTILE = 76, 77
S_CNT = 78
S_A, S_B, S_C, S_D = 80, 81, 82, 83
S_MSK = 84
S_K0 = 90
S_STMP = 96
S_PERM = 66
S_M = 79
S_FROMA = 95
S_PERM2 = 68


def lead_perm(n, nshare, m, lead=2):
    order = list(range(n))
    i = m
    while i + lead < n:
        order[i:i + lead + 1] = [order[i + lead]] + order[i:i + lead]
        i += nshare
    return order


class Gen:
    def __init__(self, stamps=False, stop=None, opts=None):
        self.o = opts or {}
        self.a = Asm()
        self.stamps = stamps
        self.stop = stop

    def srd(self, dst, ptr, nbytes, off_s=None):
        a = self.a
        if off_s is None:
            a(f"s_mov_b32 s{dst}, s{ptr}\ns_and_b32 s{dst+1}, s{ptr+1}, 0xffff")
        else:
            a(f"s_add_u32 s{dst}, s{ptr}, s{off_s}\ns_addc_u32 s{dst+1}, s{ptr+1}, 0\ns_and_b32 s{dst+1}, s{dst+1}, 0xffff")
        a(f"s_mov_b32 s{dst+2}, {nbytes:#x}\ns_mov_b32 s{dst+3}, 0x20000")

    def stamp(self, k, vtmp, dyn=None):
        if "pc1" in self.o:
            if dyn is None and k in (self.o["pc1"], self.o["pc2"]):
                lab = self.a.label("npr")
                self.a(f"s_cmp_lg_u32 s{S_FROMA}, {self.o.get('prole', 0)}\ns_cbranch_scc1 {lab}")
                if k == self.o["pc1"]:
                    self.a(f"s_memtime s[92:93]\ns_waitcnt lgkmcnt(0)")
                else:
                    self.a(f"s_memtime s[96:97]\ns_waitcnt lgkmcnt(0)\ns_sub_u32 s92, s96, s92\ns_lshr_b32 s92, s92, 4\ns_add_u32 s98, s98, s92\ns_mov_b32 s94, 1")
                self.a(f"{lab}:")
            return
        if "probe" in self.o:
            role = self.o.get("prole")
            if k == self.o["probe"] and dyn is None:
                lab = self.a.label("npr")
                if role is not None and k != 0:
                    self.a(f"s_cmp_lg_u32 s{S_FROMA}, {role}\ns_cbranch_scc1 {lab}")
                self.a(f"s_memrealtime s[98:99]\ns_mov_b32 s94, 1\ns_waitcnt lgkmcnt(0)\n{lab}:")
            return
        if self.o.get("dbg"):
            m = {0: 0, 11: 1, 1: 2, 2: 3, 3: 4, 4: 5, 6: 6, 9: 7}
            mA = {0: 0, 1: 1, 2: 2, 3: 3, 4: 4, 5: 5, 6: 6, 9: 7}
            if dyn is not None:
                return
            a = self.a
            for wg, mp, base in ((8, m, 0), (12, mA, 8)):
                if k in mp:
                    lab = a.label("nd")
                    a(f"s_cmp_lg_u32 s2, {wg}\ns_cbranch_scc1 {lab}")
                    a(f"s_memrealtime s[{S_STMP}:{S_STMP+1}]\ns_waitcnt lgkmcnt(0)")
                    a(f"v_mov_b32 v{vtmp}, s{S_STMP}\nv_mov_b32 v{vtmp+2}, {4*(base+mp[k])}")
                    a(f"s_mov_b64 exec, 1\nglobal_store_dword v{vtmp+2}, v{vtmp}, s[{P_DBG}:{P_DBG+1}]\ns_mov_b64 exec, -1\n{lab}:")
            return
        if not self.stamps:
            return
        a = self.a
        a(f"s_memrealtime s[{S_STMP}:{S_STMP+1}]\ns_memtime s[100:101]")
        ln = str(k)
        if dyn is not None:
            a(f"s_add_u32 m0, s{dyn}, {k}")
            ln = "m0"
        a(f"s_waitcnt lgkmcnt(0)\nv_writelane_b32 v254, s{S_STMP}, {ln}\nv_writelane_b32 v255, s100, {ln}")

    def perm_setup(self, s_m, n, nshare, dst, enable):
        a = self.a
        def pk(o):
            v = 0
            for i, x in enumerate(o):
                v |= x << (4 * i)
            return v & 0xffffffff, v >> 32
        lo, hi = pk(list(range(n)))
        a(f"s_mov_b32 s{dst}, {lo:#x}\ns_mov_b32 s{dst+1}, {hi:#x}")
        if not enable:
            return
        for m in range(nshare):
            lo, hi = pk(lead_perm(n, nshare, m, enable))
            a(f"s_cmp_eq_u32 s{s_m}, {m}\ns_cselect_b32 s{dst}, {lo:#x}, s{dst}\ns_cselect_b32 s{dst+1}, {hi:#x}, s{dst+1}")

    def perm_next(self, dst, src, mul):
        t = f"s_and_b32 s{dst}, s{src}, 15\ns_lshr_b64 s[{src}:{src+1}], s[{src}:{src+1}], 4\n"
        if mul & (mul - 1) == 0:
            t += f"s_lshl_b32 s{dst}, s{dst}, {mul.bit_length()-1}\n"
        else:
            t += f"s_mul_i32 s{dst}, s{dst}, {mul}\n"
        return t

    def poll(self, voffs, vtmp, mask=None):
        a = self.a
        lp, dn = a.label("poll"), a.label("pdone")
        n = len(voffs)

        def ld(k):
            for i, vo in enumerate(voffs):
                a(f"buffer_load_dword v{vtmp+k*n+i}, v{vo}, s[{R_WS}:{R_WS+3}], 0 offen sc1")

        def chk(k):
            if mask is not None:
                a(f"v_xor_b32 v{vtmp+k*n}, s{S_TAG}, v{vtmp+k*n}\nv_and_b32 v{vtmp+k*n}, v{mask}, v{vtmp+k*n}\nv_cmp_ne_u32 vcc, 0, v{vtmp+k*n}")
            else:
                a(f"v_cmp_ne_u32 vcc, s{S_TAG}, v{vtmp+k*n}")
            for i in range(1, n):
                a(f"v_cmp_ne_u32 s[{S_T0}:{S_T0+1}], s{S_TAG}, v{vtmp+k*n+i}\ns_nop 1\ns_or_b64 vcc, vcc, s[{S_T0}:{S_T0+1}]")
            a(f"s_nop 1\ns_cmp_eq_u64 vcc, 0\ns_cbranch_scc1 {dn}")
        if not self.o.get("pp"):
            a(f"s_mov_b32 s{S_CNT}, 0\n{lp}:")
            ld(0)
            a("s_waitcnt vmcnt(0)")
            chk(0)
            a(f"s_add_u32 s{S_CNT}, s{S_CNT}, 1\ns_cmp_lt_u32 s{S_CNT}, {SPIN_LIMIT}\ns_cbranch_scc0 {dn}\ns_sleep 1\ns_branch {lp}\n{dn}:")
            return
        sl = f"s_sleep {self.o['pp'] - 1}\n" if self.o["pp"] > 1 else ""
        a(f"s_mov_b32 s{S_CNT}, 0")
        ld(0)
        a(f"{sl}{lp}:")
        ld(1)
        a(f"s_waitcnt vmcnt({n})")
        chk(0)
        ld(0)
        a(f"s_waitcnt vmcnt({n})")
        chk(1)
        a(f"s_add_u32 s{S_CNT}, s{S_CNT}, 1\ns_cmp_lt_u32 s{S_CNT}, {SPIN_LIMIT}\ns_cbranch_scc1 {lp}\n{dn}:")

    def flag_store(self, s_off, vtmp):
        a = self.a
        a(f"v_mov_b32 v{vtmp}, s{S_TAG}\nv_mov_b32 v{vtmp+1}, 0\ns_mov_b64 exec, 1")
        a(f"buffer_store_dword v{vtmp}, v{vtmp+1}, s[{R_WS}:{R_WS+3}], s{s_off} offen sc1\ns_mov_b64 exec, -1")

    def pipeline(self, stages, L, gstar, drain=True, wait_every=2, vis=None):
        a = self.a
        seq = [(si, gi, u) for si, st in enumerate(stages) for gi, u in enumerate(st["uses"])]
        issued = []
        vis = list(vis or [])
        state = dict(nxt=0, opened=-1)
        pend = []

        def collect(lim):
            while state["nxt"] < len(seq) and state["nxt"] <= lim and seq[state["nxt"]][0] <= state["opened"]:
                si_, _, u_ = seq[state["nxt"]]
                for name, txt in u_["reads"]:
                    pend.append((f"{si_}:{name}", txt))
                state["nxt"] += 1
                if seq[state["nxt"] - 1][1] == len(stages[si_]["uses"]) - 1 and si_ + 1 < len(stages):
                    state["defer"] = list(stages[si_ + 1].get("pre", []))

        def out(txt):
            if ";@" in txt:
                vis.append(txt.split(";@")[1].strip())
            a(txt)

        def emit(n):
            for _ in range(min(n, len(pend))):
                name, txt = pend.pop(0)
                out(txt)
                if name:
                    issued.append(name)

        a(stages[0]["bar"])
        state["opened"] = 0
        collect(L - 1)
        emit(len(pend))
        n_real = sum(len(st["uses"]) for st in stages if not st.get("virtual"))
        covered = -1
        for f in range(n_real):
            si, gi, u = seq[f]
            nuse = len(stages[si]["uses"])
            if gi == 0 and stages[si].get("head"):
                assert not pend, pend
                a(stages[si]["head"])
                covered = -1
            if gi == gstar and si + 1 < len(stages):
                emit(len(pend))
                for x in state.pop("defer", []):
                    a(x)
                if drain:
                    a("s_waitcnt lgkmcnt(0)")
                    covered = len(issued) - 1
                a(stages[si + 1]["bar"])
                pend.extend((None, x) for x in stages[si + 1].get("bar_pend", []))
                state["opened"] = si + 1
                collect(f + L - 1)
            def lastidx(ff):
                s_, _, uu = seq[ff]
                return max(len(issued) - 1 - issued[::-1].index(f"{s_}:{nm}") for nm in uu["need"])
            w = []
            if lastidx(f) > covered:
                tgt = lastidx(f)
                for ff in range(f + 1, min(f + wait_every, n_real)):
                    if seq[ff][0] != si:
                        break
                    try:
                        tgt = max(tgt, lastidx(ff))
                    except ValueError:
                        break
                n = len(issued) - 1 - tgt
                assert n <= 15, n
                w.append(f"lgkmcnt({n})")
                covered = tgt
            if u.get("vneed") is not None:
                w.insert(0, f"vmcnt({len(vis) - 1 - vis.index(u['vneed'])})")
            if u.get("vm") is not None:
                npv = sum(1 for nm_, t_ in pend if t_.strip().startswith("buffer_load"))
                w.insert(0, f"vmcnt({u['vm'] - npv})")
            if w:
                a("s_waitcnt " + " ".join(w))
            if u.get("before"):
                a(u["before"])
            if state.get("defer") and not pend:
                n_ = self.o.get("npre", 7)
                pend.extend((None, x) for x in state["defer"][:n_])
                state["defer"] = state["defer"][n_:]
            collect(f + L)
            if state.get("mix"):
                k_ = state.pop("mix")
                head_, rest_ = pend[:k_], pend[k_:]
                pend[:] = [x for pr in zip(head_, rest_) for x in pr] + head_[len(rest_):] + rest_[len(head_):]
            nm_ = len(u["mf"])
            for k, m in enumerate(u["mf"]):
                a(m)
                left = nm_ - k
                if drain and gi >= gstar:
                    left += sum(len(uu["mf"]) for uu in stages[si]["uses"][gi + 1:])
                    extra = 2 * (nuse - 1 - gi)
                    emit(-(-(len(pend) + extra) // left) if left > 1 else len(pend))
                else:
                    emit(-(-len(pend) // left))
            if u.get("after"):
                items = [x for x in u["after"].split("\n") if x.strip()]
                if gi == nuse - 1:
                    for x in items:
                        out(x)
                else:
                    assert not pend
                    pend.extend((None, x) for x in items)
                    state["mix"] = len(items)
            if gi == nuse - 1 and stages[si].get("tail"):
                a(stages[si]["tail"])

    def prologue(self):
        a = self.a
        a(f"""
        s_cmp_ge_u32 s2, 256
        s_cbranch_scc1 L_exit
        {"v_mov_b32 v254, 0" if self.stamps else ""}
        {"v_mov_b32 v255, 0" if self.stamps else ""}
        {"s_memrealtime s[98:99]" if self.o.get("calib") or "pc1" in self.o else ""}
        {"s_mov_b32 s94, 0" if "probe" in self.o or "pc1" in self.o else ""}
        s_load_dwordx16 s[4:19], s[0:1], 0
        s_load_dwordx8 s[20:27], s[0:1], 64
        v_and_b32 v1, 63, v0
        v_lshrrev_b32 v2, 6, v0
        s_and_b32 s{S_XCD}, s2, 7
        v_readfirstlane_b32 s{S_WAVE}, v2
        s_lshr_b32 s{S_J}, s2, 3
        s_waitcnt lgkmcnt(0)
        s_load_dword s{S_TAG}, s[{P_WS}:{P_WS+1}], 0
        """)
        self.srd(R_WS, P_WS, WS_USED)
        self.srd(R_X, P_X, 2048 * 1280)
        self.srd(R_W2, P_W2, 1536 * 4096)
        if self.stamps or self.o.get("dbg") or "probe" in self.o:
            a(f"s_cmp_lg_u32 s{S_WAVE}, 0\ns_cbranch_scc1 L_nost0")
            self.stamp(0, 4)
            a("L_nost0:")
        if self.o.get("tlb"):
            self.tlb_warm()
        if self.o.get("pf_code"):
            self.code_prefetch()
        if self.o.get("prio"):
            a(f"""
            s_sub_u32 s{S_T0}, s{S_WAVE}, 4
            s_cmp_lt_u32 s{S_T0}, 3
            s_cbranch_scc1 L_noprio
            s_setprio 3
            L_noprio:
            """)
        a(f"""
        s_lshr_b32 s{S_T0}, s{S_XCD}, 1
        s_lshl_b32 s{S_T0}, s{S_T0}, 3
        s_lshr_b32 s{S_ST}, s{S_J}, 2
        s_add_u32 s{S_ST}, s{S_ST}, s{S_T0}
        s_and_b32 s{S_T0}, s{S_XCD}, 1
        s_lshl_b32 s{S_T0}, s{S_T0}, 2
        s_and_b32 s{S_DTILE}, s{S_J}, 3
        s_add_u32 s{S_DTILE}, s{S_DTILE}, s{S_T0}
        s_cmp_lt_u32 s{S_XCD}, 4
        s_cbranch_scc1 L_roleB
        """)

    V_W2 = 240

    def f_perm(self):
        a = self.a
        a(f"s_lshl_b32 s{S_M}, s{S_DTILE}, 1\ns_add_u32 s{S_M}, s{S_M}, s{S_ST}\ns_and_b32 s{S_M}, s{S_M}, 7")
        self.perm_setup(S_M, 12, 8, S_PERM, self.o.get("rotF"))

    def w2_setup(self):
        a = self.a
        V = self.V_W2
        self.f_perm()
        a(f"""
        v_lshrrev_b32 v{V}, 3, v1
        v_lshrrev_b32 v{V+1}, 4, v1
        v_lshlrev_b32 v{V+1}, 1, v{V+1}
        v_and_b32 v{V+2}, 7, v1
        v_xor_b32 v{V+1}, v{V+1}, v{V+2}
        v_lshlrev_b32 v{V+1}, 4, v{V+1}
        v_lshl_add_u32 v{V}, v{V}, 12, v{V+1}
        v_add_u32 v{V+1}, {32768-1024}, v{V}
        v_add_u32 v{V+2}, {2*(32768-1024)}, v{V}
        v_add_u32 v{V+3}, {3*(32768-1024)}, v{V}
        s_sub_u32 s{S_T0}, s{S_WAVE}, 5
        s_lshl_b32 s{S_B}, s{S_T0}, 13
        s_lshl_b32 s{S_A}, s{S_T0}, 18
        s_lshl_b32 s{S_T0}, s{S_ST}, 7
        s_add_u32 s{S_A}, s{S_A}, s{S_T0}
        """)

    def w2_half(self, g):
        a = self.a
        V = self.V_W2
        if g == 0:
            a(self.perm_next(S_K0, S_PERM, 128 * 4096) + f"s_add_u32 s{S_K0}, s{S_K0}, s{S_A}")
        a(f"s_add_u32 m0, s{S_B}, {g*4096}\ns_add_u32 s{S_T0}, s{S_K0}, {g*4*32768}")
        for i in range(4):
            a(f"buffer_load_dwordx4 v{V+i}, s[{R_W2}:{R_W2+3}], s{S_T0} offen offset:{i*1024} lds")
        if g == 1:
            a(f"s_add_u32 s{S_B}, s{S_B}, 16384")

    def w2_issue(self):
        a = self.a
        V = self.V_W2
        a(self.perm_next(S_T0, S_PERM, 128 * 4096))
        a(f"s_add_u32 s{S_T0}, s{S_T0}, s{S_A}")
        for g in range(2):
            a(f"s_add_u32 m0, s{S_B}, {g*4096}")
            a(f"s_add_u32 s{S_T0}, s{S_T0}, {g*4*32768}")
            for i in range(4):
                a(f"buffer_load_dwordx4 v{V+i}, s[{R_W2}:{R_W2+3}], s{S_T0} offen offset:{i*1024} lds")
        a(f"s_add_u32 s{S_B}, s{S_B}, 16384\ns_and_b32 s{S_B}, s{S_B}, 0x1ffff")

    def w2_prefill(self, n):
        if n == 0:
            return
        a = self.a
        lp = a.label("pf")
        a(f"s_mov_b32 s{S_C}, 0\n{lp}:")
        self.w2_issue()
        a(f"s_add_u32 s{S_C}, s{S_C}, 1\ns_cmp_lt_u32 s{S_C}, {n}\ns_cbranch_scc1 {lp}")

    def if_wave56(self):
        a = self.a
        skip = a.label("n56")
        a(f"s_sub_u32 s{S_T0}, s{S_WAVE}, 5\ns_cmp_lt_u32 s{S_T0}, 2\ns_cbranch_scc0 {skip}")
        return skip

    def role_a(self):
        a = self.a
        a(f"L_roleA:\ns_mov_b32 s{S_FROMA}, 1")
        a(f"s_sub_u32 s{S_MT}, s{S_ST}, 16\ns_mov_b32 s{S_HG}, s{S_DTILE}")
        a(f"s_cmp_ge_u32 s{S_WAVE}, 4\ns_cbranch_scc1 L_A_loader")
        ACC, XF, WF, VXA, VWA = 128, 96, 64, 4, 6
        if self.o.get("ta1") or self.o.get("ta2"):
            self.start_prefetch()
        self.a_thread_map()
        a(f"""
        v_and_b32 v16, 15, v1
        v_lshrrev_b32 v17, 4, v1
        s_lshl_b32 s{S_T0}, s{S_WAVE}, 5
        v_add_u32 v18, s{S_T0}, v16
        v_lshrrev_b32 v19, 1, v16
        v_xor_b32 v19, v17, v19
        v_lshlrev_b32 v19, 4, v19
        v_lshl_add_u32 v{VXA}, v18, 7, v19
        v_xor_b32 v{VXA+1}, 64, v{VXA}
        v_lshrrev_b32 v18, 2, v16
        v_lshl_add_u32 v19, v17, 3, v18
        v_and_b32 v20, 1, v17
        v_lshl_or_b32 v20, v20, 2, v18
        v_lshlrev_b32 v19, 9, v19
        v_lshl_add_u32 v19, v20, 5, v19
        v_and_b32 v20, 3, v16
        v_lshl_add_u32 v19, v20, 3, v19
        v_add_u32 v{VWA}, {A_WOFF}, v19
        """)
        for n in range(1, 8):
            a(f"v_xor_b32 v{VWA+n}, {n<<5}, v{VWA}")
        for r in range(120):
            a(f"v_mov_b32 v{ACC+r}, 0")
        a(f"s_mov_b32 s{S_A}, 0\ns_mov_b32 s{S_B}, 0\ns_mov_b32 s{S_C}, {A_SLOT}\ns_waitcnt lgkmcnt(0)")
        a(f"s_add_u32 s{S_TAG}, s{S_TAG}, {TAG_INC:#x}")

        RING = 6
        D = 6

        def mk_stage(bar, virtual=False, head=None, tail=None):
            uses = []
            for g in range(30):
                ks, n = divmod(g, 15)
                wb = WF + 4 * (g % RING)
                reads = []
                if g == 0:
                    for rb in range(2):
                        reads.append((f"x0{rb}", f"ds_read_b128 {vr(XF+4*rb,4)}, v{VXA} offset:{rb*2048}"))
                if g == 13:
                    for rb in range(2):
                        reads.append((f"x1{rb}", f"ds_read_b128 {vr(XF+8+4*rb,4)}, v{VXA+1} offset:{rb*2048}"))
                off = ks * 16384 + (n >> 3) * 256
                reads.append((f"w{g}a", f"ds_read_b64_tr_b16 {vr(wb,2)}, v{VWA+(n&7)} offset:{off}"))
                reads.append((f"w{g}b", f"ds_read_b64_tr_b16 {vr(wb+2,2)}, v{VWA+(n&7)} offset:{off+2048}"))
                need = [f"w{g}b", f"x{ks}1"]
                mf = []
                for rb in range(2):
                    acc = vr(ACC + (n * 2 + rb) * 4, 4)
                    xf = vr(XF + ks * 8 + rb * 4, 4)
                    wf = vr(wb, 4)
                    if n < 5:
                        mf.append(f"v_mfma_f32_16x16x32_bf16 {acc}, {wf}, {xf}, {acc}")
                    else:
                        mf.append(f"v_mfma_f32_16x16x32_bf16 {acc}, {xf}, {wf}, {acc}")
                uses.append(dict(reads=reads, need=need, mf=mf))
            return dict(uses=uses, bar=bar, virtual=virtual, head=head, tail=tail)

        adv = "s_barrier"
        pre = [f"s_add_u32 s{S_B}, s{S_B}, 1", f"s_cmp_eq_u32 s{S_B}, 3", f"s_cselect_b32 s{S_B}, 0, s{S_B}",
               f"s_cselect_b32 s{S_T0}, {(-2*A_SLOT) & 0xffffffff:#x}, s{S_C}"]
        pre += [f"v_add_u32 v{r}, s{S_T0}, v{r}" for r in range(VXA, VWA + 8)]
        tail = f"s_add_u32 s{S_A}, s{S_A}, 1\ns_cmp_lt_u32 s{S_A}, 10\ns_cbranch_scc1 L_A_loop"
        head = "L_A_loop:\n"
        bar0 = "s_barrier"
        if self.o.get("tw2") == 2:
            self.srd(R_P, P_WO, 640 * 1280)
            a(f"""
            v_lshlrev_b32 v252, 7, v1
            s_lshl_b32 s{S_T0}, s{S_MT}, 3
            s_add_u32 s{S_T0}, s{S_T0}, s{S_HG}
            s_lshl_b32 s{S_T0}, s{S_T0}, 2
            s_add_u32 s{S_T0}, s{S_T0}, s{S_WAVE}
            s_mul_i32 s{S_D}, s{S_T0}, 12288
            s_add_u32 s{S_KST}, s{S_D}, 8192
            s_mul_i32 s{S_PAR}, s{S_T0}, 1664
            s_and_b32 s{S_M}, s{S_J}, 7
            s_add_u32 s{S_M}, s{S_M}, {self.o.get("tw2at", 1)}
            """)
            head += f"""
            s_cmp_lg_u32 s{S_A}, s{S_M}
            s_cbranch_scc1 L_A_nt2
            buffer_load_dword v253, v252, s[{R_W2}:{R_W2+3}], s{S_D} offen
            s_mov_b32 exec_hi, 0
            buffer_load_dword v253, v252, s[{R_W2}:{R_W2+3}], s{S_KST} offen
            s_mov_b32 exec_lo, 0x1fff
            buffer_load_dword v253, v252, s[{R_P}:{R_P+3}], s{S_PAR} offen
            s_mov_b64 exec, -1
            L_A_nt2:
            """
        ta2 = self.o.get("ta2")
        if ta2 == 1:
            a(self.pf_rest())
        elif ta2 == 2:
            bar0 += "\n" + self.pf_rest()
        elif ta2:
            head += f"s_cmp_lg_u32 s{S_A}, {ta2-2}\ns_cbranch_scc1 L_A_npf\n" + self.pf_rest() + "L_A_npf:\n"
        self.pipeline([mk_stage(bar0, head=head, tail=tail), dict(mk_stage(adv, virtual=True), pre=pre)], 5, 30 - 3, wait_every=self.o.get('we', 2))
        self.stamp(2, 16)
        PK, VV, ONES, KVD, ZD = 16, 36, 56, 64, 116
        a("s_waitcnt lgkmcnt(0)\ns_nop 7")
        a(f"s_mov_b32 s{S_K0}, {LOG2E:#x}\ns_mov_b32 s{S_K0+1}, {LOG2E:#x}\ns_mov_b32 s{S_K0+2}, {f2u(1e-6):#x}")

        def phi(base, n, t):
            for i in range(0, n, 4):
                r = base + i
                a(f"v_pk_mul_f32 {vr(t,2)}, {vr(r,2)}, s[{S_K0}:{S_K0+1}]")
                a(f"v_pk_mul_f32 {vr(t+2,2)}, {vr(r+2,2)}, s[{S_K0}:{S_K0+1}]")
                for k in range(4):
                    a(f"v_exp_f32_e64 v{t+k}, v{t+k} clamp")
                for k in range(4):
                    a(f"v_max_f32 v{r+k}, s{S_K0+2}, v{r+k}")
                a(f"v_pk_add_f32 {vr(r,2)}, {vr(r,2)}, {vr(t,2)}")
                a(f"v_pk_add_f32 {vr(r+2,2)}, {vr(r+2,2)}, {vr(t+2,2)}")

        def pack(dst, src0, src1):
            a(f"v_cvt_pk_bf16_f32 v{dst}, v{src0}, v{src0+1}\nv_cvt_pk_bf16_f32 v{dst+1}, v{src0+2}, v{src0+3}")
            if src1 is None:
                a(f"v_mov_b32 v{dst+2}, 0\nv_mov_b32 v{dst+3}, 0")
            else:
                a(f"v_cvt_pk_bf16_f32 v{dst+2}, v{src1}, v{src1+1}\nv_cvt_pk_bf16_f32 v{dst+3}, v{src1+2}, v{src1+3}")

        for b in range(5):
            pack(VV + 4 * b, ACC + (10 + b) * 8, ACC + (10 + b) * 8 + 4)
        for k in range(4):
            a(f"v_mov_b32 v{ONES+k}, 0x3f803f80")
        phi(ACC + 40, 40, 60)
        for b in range(5):
            pack(PK + 4 * b, ACC + (5 + b) * 8, ACC + (5 + b) * 8 + 4)
        a("s_nop 1")
        ZD = ACC + 80
        blocks = [(x, y) for x in range(5) for y in range(5) if abs(x - y) <= 1]
        for (x, y) in blocks:
            a(f"v_mfma_f32_16x16x32_bf16 {vr(KVD+4*(2*x+y),4)}, {vr(PK+4*x,4)}, {vr(VV+4*y,4)}, 0")
        for x in range(5):
            a(f"v_mfma_f32_16x16x32_bf16 {vr(ZD+4*x,4)}, {vr(ONES,4)}, {vr(PK+4*x,4)}, 0")
        a(f"""
        s_mul_i32 s{S_T0}, s{S_WAVE}, {EXCH_ST}
        s_add_u32 s{S_T0}, s{S_T0}, {EXCH}
        v_lshlrev_b32 v60, 4, v1
        v_add_u32 v60, s{S_T0}, v60
        v_and_b32 v61, 15, v1
        v_lshlrev_b32 v61, 2, v61
        v_add_u32 v61, s{S_T0}, v61
        s_nop 3
        """)
        for i in range(13):
            a(f"ds_write_b128 v60, {vr(KVD+4*i,4)} offset:{i*1024}")
        for x in range(5):
            a(f"ds_write_b32 v61, v{ZD+4*x} offset:{13312+64*x}")
        a("s_waitcnt lgkmcnt(0)\ns_barrier")
        self.a_reduce_publish(64)
        a("s_barrier")
        PQ = 16
        phi(ACC, 40, 60)
        for ts in range(3):
            for rb in range(2):
                pack(PQ + (ts * 2 + rb) * 4, ACC + (2 * ts * 2 + rb) * 4, None if ts == 2 else ACC + ((2 * ts + 1) * 2 + rb) * 4)
        self.uw_srd()
        self.f_setup()
        a("s_barrier")
        if not self.o.get("wotl"):
            self.wot_preload(self.F_V[2])
        a("s_barrier")
        a(f"""
        v_and_b32 v63, 15, v1
        v_lshlrev_b32 v63, 2, v63
        s_lshl_b32 s{S_T0}, s{S_MT}, 7
        s_lshl_b32 s{S_T0+1}, s{S_WAVE}, 5
        s_add_u32 s{S_T0}, s{S_T0}, s{S_T0+1}
        s_lshl_b32 s{S_T0}, s{S_T0}, 2
        s_add_u32 s{S_T0}, s{S_T0}, {G_OFF}
        buffer_load_dword v62, v63, s[{R_WS}:{R_WS+3}], s{S_T0} offen sc1
        buffer_load_dword v61, v63, s[{R_WS}:{R_WS+3}], s{S_T0} offen offset:64 sc1
        """)
        self.a_gather(64)
        a("s_waitcnt lgkmcnt(0)\ns_barrier")
        self.stamp(4, 40)
        FR = 64
        a("v_lshlrev_b32 v60, 4, v1\nv_add_u32 v60, " + str(KVT) + ", v60")
        used = [0, 2, 3, 4, 5, 7, 8, 9, 10, 11, 12, 13]
        for f in used:
            a(f"ds_read_b128 {vr(FR+4*f,4)}, v60 offset:{f*1024}")
        NUM, DEN = 128, 120
        kts = {0: [0], 1: [0, 1], 2: [0, 1], 3: [1, 2], 4: [1, 2]}
        a(f"""
        v_lshrrev_b32 v40, 4, v1
        v_cmp_gt_u32 s[{S_MSK}:{S_MSK+1}], 1, v40
        v_cmp_gt_u32 s[{S_MSK+2}:{S_MSK+3}], 2, v40
        v_cmp_gt_u32 s[{S_MSK+4}:{S_MSK+5}], 3, v40
        s_waitcnt lgkmcnt(0)
        """)
        for rb in range(2):
            for ts in range(3):
                c = "0" if ts == 0 else vr(DEN + 4 * rb, 4)
                a(f"v_mfma_f32_16x16x32_bf16 {vr(DEN+4*rb,4)}, {vr(FR+4*(11+ts),4)}, {vr(PQ+(ts*2+rb)*4,4)}, {c}")
        for rb in range(2):
            for b in range(5):
                for i, ts in enumerate(kts[b]):
                    d = vr(NUM + (rb * 5 + b) * 4, 4)
                    c = "0" if i == 0 else d
                    a(f"v_mfma_f32_16x16x32_bf16 {d}, {vr(FR+4*(2*b+ts),4)}, {vr(PQ+(ts*2+rb)*4,4)}, {c}")
        for rb in range(2):
            for h in range(4):
                a(f"v_add_f32 v{DEN+4*rb+h}, s{S_K0+2}, v{DEN+4*rb+h}")
        for rb in range(2):
            for h in range(4):
                a(f"v_rcp_f32 v{DEN+4*rb+h}, v{DEN+4*rb+h}")
        a("s_nop 0")
        gv = {0: 62, 1: 61}
        for rb in range(2):
            for h in range(4):
                a(f"v_mul_f32 v{DEN+4*rb+h}, v{gv[rb]}, v{DEN+4*rb+h}")
        a(f"""
        s_lshl_b32 s{S_T0}, s{S_MT}, 3
        s_lshl_b32 s{S_T0+1}, s{S_WAVE}, 1
        s_add_u32 s{S_T0}, s{S_T0}, s{S_T0+1}
        s_mul_i32 s{S_T0}, s{S_T0}, {GO_ST}
        s_add_u32 s{S_T0}, s{S_T0}, {GO}
        s_lshl_b32 s{S_T0+1}, s{S_HG}, 11
        s_add_u32 s{S_T0+1}, s{S_T0+1}, s{S_T0}
        s_lshl_b32 s{S_T0+2}, s{S_HG}, 9
        s_add_u32 s{S_T0+2}, s{S_T0+2}, s{S_T0}
        s_add_u32 s{S_T0+2}, s{S_T0+2}, 16384
        v_lshlrev_b32 v40, 4, v1
        v_lshlrev_b32 v41, 3, v1
        """)
        for rb in range(2):
            d = DEN + 4 * rb
            a(f"v_cndmask_b32 v44, v{d+1}, v{d}, s[{S_MSK}:{S_MSK+1}]")
            a(f"v_cndmask_b32 v45, v{d+2}, v{d+1}, s[{S_MSK+2}:{S_MSK+3}]")
            a(f"v_cndmask_b32 v46, v{d+3}, v{d+2}, s[{S_MSK+4}:{S_MSK+5}]")
            sc = [d, 44, 45, 46, d + 3]
            for b in range(5):
                for k in range(4):
                    r = NUM + (rb * 5 + b) * 4 + k
                    a(f"v_mul_f32 v{r}, v{sc[b]}, v{r}")
            o = 16 + rb * 12
            n0 = NUM + rb * 20
            pack(o, n0, n0 + 4)
            pack(o + 4, n0 + 8, n0 + 12)
            a(f"v_cvt_pk_bf16_f32 v{o+8}, v{n0+16}, v{n0+17}\nv_cvt_pk_bf16_f32 v{o+9}, v{n0+18}, v{n0+19}")
            a(f"buffer_store_dwordx4 {vr(o,4)}, v40, s[{R_WS}:{R_WS+3}], s{S_T0+1} offen sc1")
            a(f"buffer_store_dwordx4 {vr(o+4,4)}, v40, s[{R_WS}:{R_WS+3}], s{S_T0+1} offen offset:1024 sc1")
            a(f"buffer_store_dwordx2 {vr(o+8,2)}, v41, s[{R_WS}:{R_WS+3}], s{S_T0+2} offen sc1")
            if rb == 0:
                a(f"s_add_u32 s{S_T0+1}, s{S_T0+1}, {GO_ST}\ns_add_u32 s{S_T0+2}, s{S_T0+2}, {GO_ST}")
        self.stamp(5, 40)
        a("s_branch L_F_comp")

        a("L_A_loader:")
        VX, VW = 4, 8
        self.srd(R_W, P_WQKV, 640 * 3840)
        a(f"""
        s_sub_u32 s{S_D}, s{S_WAVE}, 4
        v_lshrrev_b32 v16, 3, v1
        v_lshrrev_b32 v17, 4, v1
        v_and_b32 v18, 7, v1
        v_xor_b32 v17, v17, v18
        v_lshlrev_b32 v17, 4, v17
        v_mul_u32_u24 v16, 1280, v16
        v_add_u32 v{VX}, v16, v17
        v_xor_b32 v18, 64, v{VX}
        v_add_u32 v{VX+1}, {8*1280-1024}, v18
        v_add_u32 v{VX+2}, {2*(8*1280-1024)}, v{VX}
        v_add_u32 v{VX+3}, {3*(8*1280-1024)}, v18
        s_lshl_b32 s{S_T0}, s{S_MT}, 7
        s_lshl_b32 s{S_T0+1}, s{S_D}, 5
        s_add_u32 s{S_T0}, s{S_T0}, s{S_T0+1}
        s_mul_i32 s{S_A}, s{S_T0}, 1280
        s_lshl_b32 s{S_C}, s{S_D}, 12
        """)
        def issue_x():
            a(f"s_mov_b32 m0, s{S_C}\ns_nop 0")
            for i in range(4):
                a(f"buffer_load_dwordx4 v{VX+i}, s[{R_X}:{R_X+3}], s{S_A} offen offset:{i*1024} lds")
            a(f"s_add_u32 s{S_A}, s{S_A}, 128")

        def issue_w():
            for g in range(2):
                a(f"s_lshl_b32 s{S_T0}, s{S_D}, 12\ns_add_u32 s{S_T0}, s{S_T0}, s{S_C}\ns_add_u32 m0, s{S_T0}, {A_WOFF + g*4096}\ns_nop 0")
                for i in range(4):
                    a(f"buffer_load_dwordx4 v{VW+4*g+i}, s[{R_W}:{R_W+3}], s{S_B} offen offset:{i*1024} lds")
            a(f"s_add_u32 s{S_B}, s{S_B}, {64*3840}")

        def next_slot():
            a(f"s_add_u32 s{S_C}, s{S_C}, {A_SLOT}\ns_cmp_ge_u32 s{S_C}, {3*A_SLOT}\ns_cselect_b32 s{S_T0}, {3*A_SLOT}, 0\ns_sub_u32 s{S_C}, s{S_C}, s{S_T0}")

        issue_x()
        a(f"""
        v_lshrrev_b32 v16, 5, v1
        v_bfe_u32 v17, v1, 1, 4
        v_and_b32 v18, 1, v1
        v_lshlrev_b32 v18, 4, v18
        v_mul_u32_u24 v19, 3840, v16
        v_add_u32 v18, v18, v19
        """)
        for i in (0, 1, 4, 5):
            sig = (2 * (i & 1)) | ((i >> 2) << 2)
            a(f"""
            v_or_b32 v19, {sig}, v16
            v_xor_b32 v19, v17, v19
            v_min_u32 v19, 14, v19
            v_mul_u32_u24 v20, 13, v19
            v_lshrrev_b32 v20, 6, v20
            v_mul_u32_u24 v20, 1120, v20
            v_lshl_add_u32 v19, v19, 5, v20
            v_add_u32 v19, v19, v18
            v_add_u32 v{VW+i}, {2*i*3840 - (i&3)*1024}, v19
            v_add_u32 v{VW+i+2}, {2*(i+2)*3840 - ((i+2)&3)*1024}, v19
            """)
        a(f"""
        s_mul_i32 s{S_B}, s{S_HG}, 160
        s_mul_i32 s{S_T0}, s{S_D}, {16*3840}
        s_add_u32 s{S_B}, s{S_B}, s{S_T0}
        """)
        issue_w()
        for _ in range(2):
            next_slot()
            issue_x()
            issue_w()
        a(f"v_lshlrev_b32 v16, 4, v1\ns_lshl_b32 s{S_T0}, s{S_D}, 12\ns_add_u32 s{S_T0}, s{S_T0}, {KVT}\nv_add_u32 v16, s{S_T0}, v16")
        a("v_mov_b32 v20, 0\nv_mov_b32 v21, 0\nv_mov_b32 v22, 0\nv_mov_b32 v23, 0")
        for i in range(4):
            a(f"ds_write_b128 v16, v[20:23] offset:{i*1024}")
        a(f"s_waitcnt lgkmcnt(0)\ns_add_u32 s{S_TAG}, s{S_TAG}, {TAG_INC:#x}")
        a("s_waitcnt vmcnt(24)\ns_barrier")
        self.stamp(1, 16)
        a(f"s_mov_b32 s{S_CNT}, 1\nL_A_lloop:")
        a("s_waitcnt vmcnt(12)\ns_barrier")
        self.stamp(16, 16, dyn=S_CNT)
        next_slot()
        issue_x()
        issue_w()
        a(f"s_add_u32 s{S_CNT}, s{S_CNT}, 1\ns_cmp_le_u32 s{S_CNT}, 7\ns_cbranch_scc1 L_A_lloop")
        tw = 3 if self.o.get("tw2") == 1 else 0
        a(f"s_waitcnt vmcnt(12)\ns_barrier")
        if tw:
            self.w2_touch()
        self.stamp(24, 16)
        self.w2_setup()
        a(f"""
        s_mov_b64 s[{S_PERM2}:{S_PERM2+1}], s[{S_PERM}:{S_PERM+1}]
        s_lshr_b64 s[{S_PERM}:{S_PERM+1}], s[{S_PERM}:{S_PERM+1}], 16
        s_add_u32 s{S_B}, s{S_B}, 0x10000
        s_waitcnt vmcnt({tw})
        s_barrier
        """)
        self.stamp(25, 16)
        eA = self.o.get("eA", 2)
        sk = self.if_wave56()
        self.w2_prefill(eA)
        a(f"{sk}:\ns_barrier")
        self.stamp(26, 16)
        sk = self.if_wave56()
        self.w2_prefill(4 - eA)
        a(f"{sk}:")
        self.a_thread_map()
        a("s_barrier")
        a(f"s_cmp_eq_u32 s{S_WAVE}, 7\ns_cbranch_scc1 L_A_poller")
        self.a_reduce_publish(64)
        a("s_barrier")
        skip = self.if_wave56()
        a(f"s_mov_b64 s[{S_T0+2}:{S_T0+3}], s[{S_PERM}:{S_PERM+1}]\ns_mov_b64 s[{S_PERM}:{S_PERM+1}], s[{S_PERM2}:{S_PERM2+1}]\ns_mov_b64 s[{S_PERM2}:{S_PERM2+1}], s[{S_T0+2}:{S_T0+3}]")
        self.w2_prefill(4)
        a(f"s_mov_b64 s[{S_PERM}:{S_PERM+1}], s[{S_PERM2}:{S_PERM2+1}]\ns_sub_u32 s{S_B}, s{S_B}, 0x10000")
        a("s_barrier\ns_barrier")
        self.a_gather(64)
        a("s_waitcnt lgkmcnt(0)\ns_barrier")
        a("s_branch L_F_loader")
        a(f"{skip}:\ns_barrier\ns_barrier")
        self.a_gather(64)
        a("s_waitcnt lgkmcnt(0)\ns_barrier")
        a("s_branch L_F_u4")
        a("L_A_poller:\ns_barrier")
        self.stamp(3, 16)
        a(f"s_mul_i32 s{S_T0}, s{S_DTILE}, {FS}\ns_add_u32 s{S_T0}, s{S_T0}, {F_WOT}\nv_mov_b32 v16, s{S_T0}")
        self.poll([16], 18)
        a("s_barrier")
        a(f"""
        v_and_b32 v16, 15, v1
        s_lshl_b32 s{S_T0}, s{S_HG}, 4
        v_add_u32 v16, s{S_T0}, v16
        v_mul_u32_u24 v16, {KVP_ST}, v16
        v_add_u32 v16, {KVP + 419*16}, v16
        v_and_b32 v17, 3, v1
        s_lshl_b32 s{S_T0}, s{S_MT}, 2
        v_add_u32 v17, s{S_T0}, v17
        v_mul_u32_u24 v17, {FS}, v17
        v_add_u32 v17, {F_LN}, v17
        v_cmp_gt_u32 vcc, 32, v1
        v_mov_b32 v22, 0xff
        s_nop 0
        v_cndmask_b32 v16, v17, v16, vcc
        v_cndmask_b32 v22, -1, v22, vcc
        """)
        self.poll([16], 18, mask=22)
        self.stamp(13, 16)
        a("s_barrier\ns_barrier")
        a("s_branch L_F_poller")

    def start_prefetch(self):
        a = self.a
        self.srd(R_W, P_WQKV, 640 * 3840)
        a(f"""
        s_lshl_b32 s{S_T0}, s{S_J}, 2
        s_add_u32 s{S_T0}, s{S_T0}, s{S_WAVE}
        v_lshrrev_b32 v16, 2, v1
        v_and_b32 v17, 3, v1
        v_mul_u32_u24 v16, 1280, v16
        v_lshl_add_u32 v16, v17, 7, v16
        s_lshr_b32 s{S_T0+2}, s{S_MT}, 3
        s_lshl_b32 s{S_T0+2}, s{S_T0+2}, 7
        s_add_u32 s{S_T0+2}, s{S_T0+2}, s{S_T0}
        s_mul_i32 s{S_DT}, s{S_T0+2}, {8*1280}
        v_lshrrev_b32 v19, 4, v1
        v_and_b32 v17, 15, v1
        v_min_u32 v17, 14, v17
        v_mul_u32_u24 v18, 13, v17
        v_lshrrev_b32 v18, 6, v18
        v_mul_u32_u24 v18, 640, v18
        v_lshl_add_u32 v18, v17, 7, v18
        v_mul_u32_u24 v19, 3840, v19
        v_add_u32 v112, v18, v19
        s_lshr_b32 s{S_T0+2}, s{S_HG}, 2
        s_mul_i32 s{S_T0+2}, s{S_T0+2}, 640
        s_mul_i32 s{S_FT}, s{S_T0}, {2*3840}
        s_add_u32 s{S_FT}, s{S_FT}, s{S_T0+2}
        """)
        if self.o.get("ta1"):
            a(f"""
            s_mov_b32 exec_hi, 0
            buffer_load_dword v253, v112, s[{R_W}:{R_W+3}], s{S_FT} offen
            buffer_load_dword v253, v16, s[{R_X}:{R_X+3}], s{S_DT} offen
            s_mov_b32 exec_hi, -1
            """)
        a(f"""
        s_mul_i32 s{S_FT}, s{S_T0}, {3*3840}
        s_add_u32 s{S_FT}, s{S_FT}, s{S_T0+2}
        s_add_u32 s{S_FT}, s{S_FT}, {256*3840}
        v_lshrrev_b32 v16, 3, v1
        v_and_b32 v17, 7, v1
        v_min_u32 v17, 5, v17
        v_mul_u32_u24 v16, 1280, v16
        v_lshl_add_u32 v113, v17, 7, v16
        s_add_u32 s{S_DT}, s{S_DT}, 512
        """)

    def pf_rest(self):
        return f"""s_mov_b32 exec_hi, 0xffff
        buffer_load_dword v253, v112, s[{R_W}:{R_W+3}], s{S_FT} offen
        s_mov_b32 exec_hi, -1
        buffer_load_dword v253, v113, s[{R_X}:{R_X+3}], s{S_DT} offen
        """

    def w2_touch(self):
        a = self.a
        self.srd(R_W2, P_W2, 1536 * 4096)
        a(f"""
        v_lshlrev_b32 v48, 7, v1
        s_lshl_b32 s{S_T0}, s{S_MT}, 3
        s_add_u32 s{S_T0}, s{S_T0}, s{S_HG}
        s_lshl_b32 s{S_T0}, s{S_T0}, 2
        s_add_u32 s{S_T0}, s{S_T0}, s{S_D}
        s_mul_i32 s{S_T0}, s{S_T0}, 12288
        buffer_load_dword v253, v48, s[{R_W2}:{R_W2+3}], s{S_T0} offen
        s_add_u32 s{S_T0}, s{S_T0}, 8192
        s_mov_b32 exec_hi, 0
        buffer_load_dword v253, v48, s[{R_W2}:{R_W2+3}], s{S_T0} offen
        """)
        self.srd(R_P, P_WO, 640 * 1280)
        a(f"""
        s_lshl_b32 s{S_T0}, s{S_MT}, 3
        s_add_u32 s{S_T0}, s{S_T0}, s{S_HG}
        s_lshl_b32 s{S_T0}, s{S_T0}, 2
        s_add_u32 s{S_T0}, s{S_T0}, s{S_D}
        s_mul_i32 s{S_T0}, s{S_T0}, 1664
        s_mov_b32 exec_lo, 0x1fff
        buffer_load_dword v253, v48, s[{R_P}:{R_P+3}], s{S_T0} offen
        s_mov_b64 exec, -1
        """)

    def tlb_warm(self):
        a = self.a
        mode = self.o["tlb"]
        wv = self.o.get("tlbw", 3)
        a(f"s_cmp_lg_u32 s{S_WAVE}, {wv}\ns_cbranch_scc1 L_notlb")
        self.srd(R_OUT, P_OUT, 2048 * 1280)
        self.srd(R_M, P_B2, 4096)
        self.srd(R_P, P_WO, 640 * 1280)
        self.srd(R_W, P_W1, 2048 * 3072)
        if mode == 1:
            a("v_lshlrev_b32 v4, 20, v1\nv_min_u32 v4, 0xf00000, v4\ns_mov_b64 exec, 0xffff")
            so = "0"
        else:
            a(f"v_lshlrev_b32 v4, 21, v1\ns_lshl_b32 s{S_T0}, s{S_J}, 16\ns_mov_b64 exec, 0x1f")
            so = f"s{S_T0}"
        for r in (R_WS, R_W2, R_OUT, R_W, R_P, R_M):
            a(f"buffer_load_dword v253, v4, s[{r}:{r+3}], {so} offen sc1")
        a("s_mov_b64 exec, -1\nL_notlb:")

    def code_prefetch(self):
        a = self.a
        a(f"""
        s_cmp_lg_u32 s{S_WAVE}, 3
        s_cbranch_scc1 L_nocpf
        s_cmp_ge_u32 s{S_J}, 4
        s_cbranch_scc1 L_nocpf
        s_getpc_b64 s[{S_T0}:{S_T0+1}]
        L_pcref:
        s_lshl_b32 s{S_T0+2}, s{S_J}, 13
        v_lshlrev_b32 v4, 7, v1
        v_add_u32 v4, s{S_T0+2}, v4
        v_min_u32 v4, L_end-L_pcref, v4
        global_load_dword v253, v4, s[{S_T0}:{S_T0+1}]
        L_nocpf:
        """)

    def a_thread_map(self):
        a = self.a
        a(f"""
        v_mul_u32_u24 v16, 625, v0
        v_lshrrev_b32 v16, 16, v16
        v_mul_u32_u24 v17, 105, v16
        v_sub_u32 v17, v0, v17
        v_mul_u32_u24 v18, 205, v17
        v_lshrrev_b32 v18, 10, v18
        v_mul_u32_u24 v19, 5, v18
        v_sub_u32 v19, v17, v19
        v_mad_u32_u24 v19, v16, 5, v19
        v_mad_u32_u24 v20, v16, 20, v18
        v_lshrrev_b32 v21, 2, v19
        v_and_b32 v22, 3, v19
        v_lshrrev_b32 v23, 4, v20
        v_and_b32 v20, 15, v20
        v_lshl_add_u32 v20, v22, 4, v20
        v_lshl_add_u32 v2, v21, 1, v23
        v_lshlrev_b32 v2, 6, v2
        v_add_u32 v2, v2, v20
        v_lshlrev_b32 v2, 4, v2
        v_lshlrev_b32 v3, 4, v19
        v_add_u32 v3, 13312, v3
        v_cmp_lt_u32 vcc, 99, v17
        v_lshrrev_b32 v24, 1, v21
        v_and_b32 v21, 1, v21
        v_cndmask_b32 v2, v2, v3, vcc
        v_lshl_add_u32 v3, v23, 1, v24
        v_add_u32 v24, 11, v24
        v_lshl_add_u32 v22, v22, 4, v16
        v_cndmask_b32 v3, v3, v24, vcc
        v_cndmask_b32 v20, v20, v22, vcc
        v_lshl_add_u32 v3, v3, 6, v20
        v_lshlrev_b32 v3, 4, v3
        v_lshl_add_u32 v3, v21, 3, v3
        v_add_u32 v3, {KVT}, v3
        v_mov_b32 v25, 2
        v_cndmask_b32 v25, 1, v25, vcc
        v_mov_b32 v16, 420
        v_cmp_gt_u32 vcc, v16, v0
        v_lshlrev_b32 v14, 4, v0
        s_nop 0
        v_cndmask_b32 v15, 0, v25, vcc
        v_cndmask_b32 v2, 0, v2, vcc
        v_add_u32 v2, {EXCH}, v2
        """)

    def a_reduce_publish(self, T):
        a = self.a
        for w in range(4):
            a(f"ds_read_b128 {vr(T+4*w,4)}, v2 offset:{w*EXCH_ST}")
        a(f"""
        s_lshl_b32 s{S_T0}, s{S_HG}, 4
        s_add_u32 s{S_T0}, s{S_T0}, s{S_MT}
        s_mul_i32 s{S_T0}, s{S_T0}, {KVP_ST}
        s_add_u32 s{S_T0}, s{S_T0}, {KVP}
        v_cmp_ne_u32 vcc, 0, v15
        s_waitcnt lgkmcnt(0)
        v_pk_add_f32 {vr(T,2)}, {vr(T,2)}, {vr(T+4,2)}
        v_pk_add_f32 {vr(T+2,2)}, {vr(T+2,2)}, {vr(T+6,2)}
        v_pk_add_f32 {vr(T+8,2)}, {vr(T+8,2)}, {vr(T+12,2)}
        v_pk_add_f32 {vr(T+10,2)}, {vr(T+10,2)}, {vr(T+14,2)}
        v_pk_add_f32 {vr(T,2)}, {vr(T,2)}, {vr(T+8,2)}
        v_pk_add_f32 {vr(T+2,2)}, {vr(T+2,2)}, {vr(T+10,2)}
        v_mov_b32_sdwa v{T}, s{S_TAG} dst_sel:BYTE_0 dst_unused:UNUSED_PRESERVE src0_sel:BYTE_0
        v_mov_b32_sdwa v{T+1}, s{S_TAG} dst_sel:BYTE_0 dst_unused:UNUSED_PRESERVE src0_sel:BYTE_1
        v_mov_b32_sdwa v{T+2}, s{S_TAG} dst_sel:BYTE_0 dst_unused:UNUSED_PRESERVE src0_sel:BYTE_2
        v_mov_b32_sdwa v{T+3}, s{S_TAG} dst_sel:BYTE_0 dst_unused:UNUSED_PRESERVE src0_sel:BYTE_3
        s_mov_b64 exec, vcc
        buffer_store_dwordx4 {vr(T,4)}, v14, s[{R_WS}:{R_WS+3}], s{S_T0} offen sc1
        s_mov_b64 exec, -1
        """)

    def a_gather(self, T):
        a = self.a
        rt, ok = a.label("gre"), a.label("gok")
        a(f"s_mul_i32 s{S_T0+1}, s{S_HG}, {16*KVP_ST}\ns_add_u32 s{S_T0+1}, s{S_T0+1}, {KVP}")
        a(f"v_cmp_ne_u32 s[{S_T0+4}:{S_T0+5}], 0, v15\ns_mov_b32 s{S_CNT}, 0\n{rt}:")
        a(f"s_lshl_b32 s{S_T0+2}, s{S_MT}, 1\ns_mov_b64 exec, s[{S_T0+4}:{S_T0+5}]")
        for m in range(16):
            a(f"s_and_b32 s{S_T0+2}, s{S_T0+2}, 15\ns_mul_i32 s{S_T0}, s{S_T0+2}, {KVP_ST}\ns_add_u32 s{S_T0}, s{S_T0}, s{S_T0+1}\ns_add_u32 s{S_T0+2}, s{S_T0+2}, 1")
            a(f"buffer_load_dwordx4 {vr(T+4*m,4)}, v14, s[{R_WS}:{R_WS+3}], s{S_T0} offen sc1")
        for m in range(0, 16, 2):
            a(f"s_waitcnt vmcnt({14-m})")
            for q in range(8):
                a(f"v_cmpx_eq_u32_sdwa vcc, v{T+4*m+q}, s{S_TAG} src0_sel:BYTE_0 src1_sel:BYTE_{q & 3}")
            for h in (0, 2):
                a(f"v_pk_add_f32 {vr(T+4*m+h,2)}, {vr(T+4*m+h,2)}, {vr(T+4*(m+1)+h,2)}")
            if m >= 2:
                for h in (0, 2):
                    a(f"v_pk_add_f32 {vr(T+h,2)}, {vr(T+h,2)}, {vr(T+4*m+h,2)}")
        a(f"""
        s_cmp_eq_u64 exec, s[{S_T0+4}:{S_T0+5}]
        s_cbranch_scc1 {ok}
        s_add_u32 s{S_CNT}, s{S_CNT}, 1
        s_cmp_lt_u32 s{S_CNT}, {SPIN_LIMIT}
        s_cbranch_scc1 {rt}
        {ok}:
        s_mov_b64 exec, -1
        """)
        a(f"""
        v_cvt_pk_bf16_f32 v{T}, v{T}, v{T+1}
        v_cvt_pk_bf16_f32 v{T+1}, v{T+2}, v{T+3}
        v_cmp_ne_u32 vcc, 0, v15
        v_cmp_eq_u32 s[{S_T0}:{S_T0+1}], 2, v15
        s_nop 1
        s_mov_b64 exec, vcc
        ds_write_b64 v3, {vr(T,2)}
        s_mov_b64 exec, s[{S_T0}:{S_T0+1}]
        ds_write_b64 v3, {vr(T,2)} offset:64
        ds_write_b64 v3, {vr(T,2)} offset:128
        ds_write_b64 v3, {vr(T,2)} offset:192
        s_mov_b64 exec, -1
        """)

    def role_b(self):
        a = self.a
        a(f"L_roleB:\ns_mov_b32 s{S_FROMA}, 0")
        XR, B1R, GR, XS = 16, 36, 64, 84
        VPF = 8
        a(f"s_cmp_ge_u32 s{S_J}, 16\ns_cbranch_scc1 L_B_pfrole")
        a(f"""
        s_lshl_b32 s{S_KST}, s{S_XCD}, 4
        s_add_u32 s{S_KST}, s{S_KST}, s{S_J}
        s_lshl_b32 s{S_T0}, s{S_KST}, 3
        s_add_u32 s{S_T0}, s{S_T0}, s{S_WAVE}
        s_mul_i32 s{S_T0}, s{S_T0}, {4*1280}
        v_lshrrev_b32 v2, 4, v1
        v_and_b32 v3, 15, v1
        v_lshlrev_b32 v3, 4, v3
        v_mul_u32_u24 v4, 1280, v2
        v_add_u32 v4, v4, v3
        """)
        for c in range(5):
            a(f"buffer_load_dwordx4 {vr(XR+4*c,4)}, v4, s[{R_X}:{R_X+3}], s{S_T0} offen offset:{c*256}")
        self.srd(R_M, P_GATE, 1280)
        for c in range(5):
            a(f"buffer_load_dwordx4 {vr(GR+4*c,4)}, v3, s[{R_M}:{R_M+3}], 0 offen offset:{c*256}")

        def common_setup():
            a(f"""
            s_mul_i32 s{S_M}, s{S_J}, 205
            s_lshr_b32 s{S_M}, s{S_M}, 10
            s_mul_i32 s{S_DT}, s{S_M}, 5
            s_sub_u32 s{S_DT}, s{S_J}, s{S_DT}
            s_mul_i32 s{S_FT}, s{S_XCD}, 6
            s_add_u32 s{S_FT}, s{S_FT}, s{S_M}
            """)
            self.srd(R_OUT, P_B1, 3072)
            a(f"v_lshrrev_b32 v5, 4, v1\nv_lshlrev_b32 v5, 3, v5\ns_lshl_b32 s{S_T0}, s{S_FT}, 7")
            for b in range(4):
                a(f"buffer_load_dwordx2 {vr(B1R+2*b,2)}, v5, s[{R_OUT}:{R_OUT+3}], s{S_T0} offen offset:{b*32}")
            a(f"""
            v_lshrrev_b32 v12, 3, v1
            v_lshrrev_b32 v13, 4, v1
            v_lshlrev_b32 v13, 1, v13
            v_and_b32 v14, 7, v1
            v_xor_b32 v13, v13, v14
            v_lshlrev_b32 v13, 4, v13
            v_mul_u32_u24 v12, 3072, v12
            v_add_u32 v{VPF}, v12, v13
            v_add_u32 v{VPF+1}, {8*3072-1024}, v{VPF}
            v_add_u32 v{VPF+2}, {2*(8*3072-1024)}, v{VPF}
            v_add_u32 v{VPF+3}, {3*(8*3072-1024)}, v{VPF}
            """)
            self.perm_setup(S_M, 16, 6, S_PERM, self.o.get("rotB"))

        def wq_touch():
            self.srd(R_M, P_WQKV, 640 * 3840)
            a(f"""
            v_lshlrev_b32 v6, 7, v1
            s_mul_i32 s{S_T0+1}, s{S_T0+1}, 2880
            s_add_u32 s{S_T0+1}, s{S_T0+1}, {256*3840}
            s_mov_b64 exec, 0xffffff
            buffer_load_dword v253, v6, s[{R_M}:{R_M+3}], s{S_T0+1} offen
            s_mov_b64 exec, -1
            """)

        self.srd(R_W, P_W1, 2048 * 3072)
        common_setup()
        a("v_mov_b32 v124, 0\nv_mov_b32 v125, 0\nv_mov_b32 v126, 0x3f803f80\ns_waitcnt vmcnt(4)")
        self.stamp(11, 44)
        for c in range(20):
            a(f"v_dot2c_f32_bf16 v124, v{XR+c}, v126")
        for c in range(20):
            a(f"v_dot2c_f32_bf16 v125, v{XR+c}, v{GR+c}")
        for c in range(20):
            a(f"v_lshlrev_b32 v{XS+2*c}, 16, v{XR+c}\nv_and_b32 v{XS+2*c+1}, 0xffff0000, v{XR+c}")

        def reduce16(regs):
            for mode in ("quad_perm:[1,0,3,2]", "quad_perm:[2,3,0,1]", "row_half_mirror", "row_mirror"):
                for r in regs:
                    a(f"v_add_f32_dpp v{r}, v{r}, v{r} {mode} row_mask:0xf bank_mask:0xf")
                a("s_nop 1" if len(regs) == 1 else "s_nop 0")

        reduce16([124, 125])
        a(f"""
        v_mul_f32 v126, {f2u(-1.0/640):#x}, v124
        v_mul_f32 v127, {f2u(-1.0/640):#x}, v124
        v_mul_f32 v125, {f2u(-1.4426950408889634):#x}, v125
        v_mov_b32 v128, 0
        v_mov_b32 v129, 0
        v_mov_b32 v130, 0
        v_mov_b32 v131, 0
        v_exp_f32 v125, v125
        """)
        for c in range(20):
            a(f"v_pk_add_f32 {vr(XS+2*c,2)}, {vr(XS+2*c,2)}, v[126:127]")
        a("v_add_f32 v125, 1.0, v125\nv_rcp_f32 v125, v125")
        for c in range(20):
            t = 128 + 2 * (c & 1)
            a(f"v_pk_fma_f32 {vr(t,2)}, {vr(XS+2*c,2)}, {vr(XS+2*c,2)}, {vr(t,2)}")
        a("v_pk_add_f32 v[128:129], v[128:129], v[130:131]\nv_add_f32 v128, v128, v129\ns_nop 1")
        reduce16([128])
        a(f"v_mov_b32 v126, {f2u(1e-5):#x}\nv_fmac_f32 v126, {f2u(1.0/640):#x}, v128\nv_rsq_f32 v126, v126")
        a(f"""
        s_lshl_b32 s{S_T0}, s{S_WAVE}, 2
        v_add_u32 v2, s{S_T0}, v2
        v_mov_b32 v127, v126
        v_mul_u32_u24 v4, {LN_ST}, v2
        v_add_u32 v4, v4, v3
        v_lshlrev_b32 v2, 2, v2
        """)
        for c4 in range(5):
            for c in range(4 * c4, 4 * c4 + 4):
                a(f"v_pk_mul_f32 {vr(XS+2*c,2)}, {vr(XS+2*c,2)}, v[126:127]")
            for c in range(4 * c4, 4 * c4 + 4):
                a(f"v_cvt_pk_bf16_f32 v{XR+c}, v{XS+2*c}, v{XS+2*c+1}")
            a(f"ds_write_b128 v4, {vr(XR+4*c4,4)} offset:{LNBUF + c4*256}")
        a(f"ds_write_b32 v2, v125 offset:{LNG}")
        a(f"""
        v_and_b32 v12, 15, v1
        v_lshrrev_b32 v13, 4, v1
        v_lshrrev_b32 v15, 2, v12
        v_lshl_add_u32 v15, v13, 2, v15
        v_mul_u32_u24 v15, {LN_ST}, v15
        v_and_b32 v2, 3, v12
        v_lshl_add_u32 v15, v2, 3, v15
        s_mul_i32 s{S_T0}, s{S_WAVE}, 160
        v_add_u32 v15, s{S_T0}, v15
        v_lshlrev_b32 v14, 4, v1
        v_lshlrev_b32 v2, 2, v1
        s_mul_i32 s{S_T0}, s{S_WAVE}, {5*65536}
        s_lshl_b32 s{S_T0+1}, s{S_KST}, 10
        s_add_u32 s{S_T0}, s{S_T0}, s{S_T0+1}
        s_add_u32 s{S_T0}, s{S_T0}, {HT}
        s_waitcnt lgkmcnt(0)
        s_add_u32 s{S_TAG}, s{S_TAG}, {TAG_INC:#x}
        s_barrier
        """)
        self.stamp(12, 44)
        for i in range(5):
            a(f"ds_read_b64_tr_b16 {vr(44+4*i,2)}, v15 offset:{LNBUF + i*32}")
            a(f"ds_read_b64_tr_b16 {vr(46+4*i,2)}, v15 offset:{LNBUF + i*32+16*LN_ST}")
        a(f"ds_read_b32 v125, v2 offset:{LNG}")
        for i in range(5):
            a(f"s_waitcnt lgkmcnt({9-2*i})")
            a(f"buffer_store_dwordx4 {vr(44+4*i,4)}, v14, s[{R_WS}:{R_WS+3}], s{S_T0} offen sc1")
            if i < 4:
                a(f"s_add_u32 s{S_T0}, s{S_T0}, 65536")
        a(f"""
        s_cmp_lg_u32 s{S_WAVE}, 0
        s_cbranch_scc1 L_B_nog
        s_lshl_b32 s{S_T0}, s{S_KST}, 7
        s_add_u32 s{S_T0}, s{S_T0}, {G_OFF}
        s_waitcnt lgkmcnt(0)
        s_mov_b32 exec_hi, 0
        buffer_store_dword v125, v2, s[{R_WS}:{R_WS+3}], s{S_T0} offen sc1
        s_mov_b32 exec_hi, -1
        L_B_nog:
        s_waitcnt vmcnt(0) lgkmcnt(0)
        s_barrier
        s_cmp_lg_u32 s{S_WAVE}, 0
        s_cbranch_scc1 L_B_nofl
        s_mul_i32 s{S_T0}, s{S_KST}, {FS}
        s_add_u32 s{S_T0}, s{S_T0}, {F_LN}
        """)
        self.flag_store(S_T0, 12)
        self.stamp(1, 12)
        a("L_B_nofl:")
        if self.o.get("wq") == 1:
            a(f"s_lshl_b32 s{S_T0+1}, s{S_KST}, 3\ns_add_u32 s{S_T0+1}, s{S_T0+1}, s{S_WAVE}")
            wq_touch()
        if self.o.get("wq") == 3:
            a(f"""
            s_lshl_b32 s{S_T0}, s{S_J}, 3
            s_add_u32 s{S_T0}, s{S_T0}, s{S_WAVE}
            s_add_u32 s{S_T0}, s{S_T0}, 128
            v_lshrrev_b32 v6, 3, v1
            v_and_b32 v7, 7, v1
            v_min_u32 v7, 5, v7
            v_mul_u32_u24 v6, 3072, v6
            v_lshl_add_u32 v7, v7, 7, v6
            s_mul_i32 s{S_T0}, s{S_T0}, {8*3072}
            s_mul_i32 s{S_T0+2}, s{S_XCD}, 768
            s_add_u32 s{S_T0}, s{S_T0}, s{S_T0+2}
            buffer_load_dword v253, v7, s[{R_W}:{R_W+3}], s{S_T0} offen
            """)
        a("s_branch L_B_join")
        a("L_B_pfrole:")
        self.srd(R_W, P_W1, 2048 * 3072)
        if self.o.get("pfdelay"):
            common_setup()
            a("s_waitcnt vmcnt(0)")
        wq = self.o.get("wq", 0)
        a(f"""
        s_sub_u32 s{S_T0}, s{S_J}, 16
        s_lshl_b32 s{S_T0}, s{S_T0}, 3
        s_add_u32 s{S_T0}, s{S_T0}, s{S_WAVE}
        s_lshl_b32 s{S_T0+1}, s{S_XCD}, 7
        s_add_u32 s{S_T0+1}, s{S_T0+1}, s{S_T0}
        v_lshrrev_b32 v6, 3, v1
        v_and_b32 v7, 7, v1
        v_min_u32 v7, 5, v7
        v_mul_u32_u24 v6, 3072, v6
        v_lshl_add_u32 v7, v7, 7, v6
        s_mul_i32 s{S_T0}, s{S_T0}, {8*3072}
        s_mul_i32 s{S_T0+2}, s{S_XCD}, 768
        s_add_u32 s{S_T0}, s{S_T0}, s{S_T0+2}
        buffer_load_dword v253, v7, s[{R_W}:{R_W+3}], s{S_T0} offen
        """)
        if wq in (0, 3):
            wq_touch()
        if wq != 3:
            a(f"""
            s_add_u32 s{S_T0}, s{S_T0}, {1024*3072}
            buffer_load_dword v253, v7, s[{R_W}:{R_W+3}], s{S_T0} offen
            """)
        if not self.o.get("pfdelay"):
            common_setup()
        self.stamp(15, 12)
        a(f"s_waitcnt lgkmcnt(0)\ns_add_u32 s{S_TAG}, s{S_TAG}, {TAG_INC:#x}")
        a(f"s_cmp_ge_u32 s{S_J}, 30\ns_cbranch_scc1 L_helper")
        N1 = self.o.get("n1", 8)
        NREG = self.o.get("nreg", 0)
        assert NREG == 0 or N1 == 8

        def w1_issue():
            t = self.perm_next(S_T0, S_PERM, 128 * 3072)
            t += f"s_mov_b32 m0, s{S_B}\ns_add_u32 s{S_T0}, s{S_T0}, s{S_A}\n"
            for i in range(4):
                t += f"buffer_load_dwordx4 v{VPF+i}, s[{R_W}:{R_W+3}], s{S_T0} offen offset:{i*1024} lds\n"
            t += f"s_add_u32 s{S_B}, s{S_B}, 16384\n"
            return t
        a(f"""
        L_B_join:
        s_cmp_lt_u32 s{S_WAVE}, 4
        s_cbranch_scc1 L_B_comp0
        s_sub_u32 s{S_T0}, s{S_WAVE}, 4
        s_lshl_b32 s{S_B}, s{S_T0}, 12
        s_mul_i32 s{S_A}, s{S_T0}, {32*3072}
        s_lshl_b32 s{S_T0}, s{S_FT}, 7
        s_add_u32 s{S_A}, s{S_A}, s{S_T0}
        L_B_pf:
        """ + w1_issue() + f"""
        s_cmp_lt_u32 s{S_B}, {N1*16384}
        s_cbranch_scc1 L_B_pf
        """)
        for k in range(NREG):
            if k == 4:
                a("s_waitcnt vmcnt(40)")
            a(self.perm_next(S_T0, S_PERM, 128 * 3072) + f"s_add_u32 s{S_T0}, s{S_T0}, s{S_A}")
            for i in range(4):
                a(f"buffer_load_dwordx4 {vr(64+16*k+4*i,4)}, v{VPF+i}, s[{R_W}:{R_W+3}], s{S_T0} offen offset:{i*1024}")
        a(f"s_branch L_B_aux\nL_B_comp0:\ns_cmp_lg_u32 s{S_WAVE}, 0\ns_cbranch_scc1 L_B_l3")
        a(f"v_mul_u32_u24 v12, {FS}, v1\nv_add_u32 v12, {F_LN}, v12")
        if not self.o.get("x_nopoll"):
            self.poll([12], 14)
        self.stamp(2, 12)
        a("L_B_l3:")
        PF, WF, ACC, VT, VL = 64, 128, 160, 8, 12
        a(f"""
        s_lshl_b32 s{S_T0}, s{S_DT}, 3
        s_lshl_b32 s{S_T0+1}, s{S_WAVE}, 1
        s_add_u32 s{S_D}, s{S_T0}, s{S_T0+1}
        s_lshl_b32 s{S_T0}, s{S_D}, 16
        s_add_u32 s{S_T0}, s{S_T0}, {HT}
        """)
        self.srd(R_P, P_WS, 65536, off_s=S_T0)
        a(f"s_add_u32 s{S_T0}, s{S_T0}, 65536")
        self.srd(R_M, P_WS, 65536, off_s=S_T0)
        a(f"v_lshlrev_b32 v{VL}, 4, v1\ns_mov_b32 s{S_B}, 0")
        a(self.perm_next(S_C, S_PERM, 4096))
        self.tr_addr(VT)
        for r in range(32):
            a(f"v_mov_b32 v{ACC+r}, 0")
        a("s_barrier")
        RP = (R_P, R_M)

        def pload(u, ks):
            if self.o.get("x_noload"):
                return "s_nop 0"
            sc = "" if self.o.get("x_nosc1") else "sc1"
            so = "0" if self.o.get("x_same") else f"s{S_C}"
            return "\n".join(f"buffer_load_dwordx4 {vr(PF+32*(u%2)+8*ks+4*d,4)}, v{VL}, s[{RP[d]}:{RP[d]+3}], {so} offen offset:{ks*1024} {sc}" for d in range(2))

        for t in range(2):
            for ks in range(4):
                a(pload(t, ks))
            a(self.perm_next(S_C, S_PERM, 4096))
            if t == 0:
                first_bar_here = len(a.L)

        def mk(u, bar, virtual=False, head=None, tail=None):
            uses = []
            for ks in range(4):
                for b in range(4):
                    g = ks * 4 + b
                    wb = WF + 4 * (g % 8)
                    off = u * 16384 + ks * 4096
                    reads = [(f"w{g}a", f"ds_read_b64_tr_b16 {vr(wb,2)}, v{VT+b} offset:{off}"),
                             (f"w{g}b", f"ds_read_b64_tr_b16 {vr(wb+2,2)}, v{VT+b} offset:{off+2048}")]
                    mf = []
                    for dd in range(2):
                        acc = vr(ACC + 16 * dd + 4 * b, 4)
                        mf.append(f"v_mfma_f32_16x16x32_bf16 {acc}, {vr(wb,4)}, {vr(PF+32*(u%2)+8*ks+4*dd,4)}, {acc}")
                    if self.o.get("x32"):
                        acc = vr(ACC + 16 * (b & 1), 16)
                        mf = [f"v_mfma_f32_32x32x16_bf16 {acc}, {vr(wb,4)}, {vr(PF+32*(u%2)+8*ks+4*(b>>1),4)}, {acc}"]
                    d = dict(reads=reads, need=[f"w{g}b"], mf=mf)
                    if b == 0:
                        d["vm"] = 14
                    if b == 3:
                        d["after"] = pload(u, ks)
                        if ks == 3:
                            d["after"] += "\n" + self.perm_next(S_C, S_PERM, 4096)
                            if u >= 1:
                                d["after"] += f"s_cmp_ge_u32 s{S_B}, 3\ns_cselect_b32 s{S_C}, 0x10000, s{S_C}"
                    uses.append(d)
            return dict(uses=uses, bar=bar, virtual=virtual, head=head, tail=tail)

        xo = "s_barrier\n" + "\n".join(f"v_xor_b32 v{VT+b}, 0x10000, v{VT+b}" for b in range(4))
        tail = f"s_add_u32 s{S_B}, s{S_B}, 1\ns_cmp_lt_u32 s{S_B}, 4\ns_cbranch_scc1 L_B_loop"
        st = [mk(0, "", head="L_B_loop:"), mk(1, "s_barrier"), mk(2, "s_barrier"), mk(3, "s_barrier", tail=tail), mk(0, xo, virtual=True)]
        a.L.insert(first_bar_here, "    s_barrier")
        nd = self.o.get("nodrain")
        LB = self.o.get("LB", 7)
        self.pipeline(st, LB, (16 - LB) if nd else 13, drain=not nd, wait_every=self.o.get('we', 2))
        if nd:
            a("s_waitcnt lgkmcnt(0)\ns_barrier")
        self.stamp(3, 44)
        c = 0.7978845608028654
        k0 = -2.0 * c * 1.4426950408889634
        k1 = k0 * 0.044715
        a(f"""
        s_waitcnt lgkmcnt(0)
        s_mov_b32 s{S_K0}, {f2u(k1):#x}
        s_mov_b32 s{S_K0+1}, {f2u(k1):#x}
        v_mov_b32 v44, {f2u(k0):#x}
        v_mov_b32 v45, {f2u(k0):#x}
        v_mov_b32 v46, 1.0
        v_mov_b32 v47, 1.0
        s_mul_i32 s{S_T0}, s{S_D}, {UW_ST}
        s_lshl_b32 s{S_T0+1}, s{S_FT}, 11
        s_add_u32 s{S_T0}, s{S_T0}, s{S_T0+1}
        s_add_u32 s{S_T0}, s{S_T0}, {UW}
        """)
        BF = 16
        for b in range(4):
            a(f"v_lshlrev_b32 v{BF+4*b}, 16, v{B1R+2*b}\nv_and_b32 v{BF+4*b+1}, 0xffff0000, v{B1R+2*b}")
            a(f"v_lshlrev_b32 v{BF+4*b+2}, 16, v{B1R+2*b+1}\nv_and_b32 v{BF+4*b+3}, 0xffff0000, v{B1R+2*b+1}")
        for dd in range(2):
            for p in range(2):
                r = ACC + 16 * dd + 8 * p
                T = 48
                for q in range(4):
                    a(f"v_pk_add_f32 {vr(r+2*q,2)}, {vr(r+2*q,2)}, {vr(BF+8*p+2*q,2)}")
                for q in range(4):
                    a(f"v_pk_mul_f32 {vr(T+2*q,2)}, {vr(r+2*q,2)}, {vr(r+2*q,2)}")
                for q in range(4):
                    a(f"v_pk_fma_f32 {vr(T+2*q,2)}, {vr(T+2*q,2)}, s[{S_K0}:{S_K0+1}], v[44:45]")
                for q in range(4):
                    a(f"v_pk_mul_f32 {vr(T+2*q,2)}, {vr(T+2*q,2)}, {vr(r+2*q,2)}")
                for q in range(8):
                    a(f"v_exp_f32 v{T+q}, v{T+q}")
                for q in range(4):
                    a(f"v_pk_add_f32 {vr(T+2*q,2)}, {vr(T+2*q,2)}, v[46:47]")
                for q in range(8):
                    a(f"v_rcp_f32 v{T+q}, v{T+q}")
                for q in range(4):
                    a(f"v_pk_mul_f32 {vr(r+2*q,2)}, {vr(r+2*q,2)}, {vr(T+2*q,2)}")
                o = 56 + 4 * (p & 1)
                for q in range(4):
                    a(f"v_cvt_pk_bf16_f32 v{o+q}, v{r+2*q}, v{r+2*q+1}")
                a(f"buffer_store_dwordx4 {vr(o,4)}, v{VL}, s[{R_WS}:{R_WS+3}], s{S_T0} offen offset:{p*1024} sc1")
            if dd == 0:
                a(f"s_add_u32 s{S_T0}, s{S_T0}, {UW_ST}")
        self.stamp(10, 44)
        a("s_waitcnt vmcnt(0)\ns_barrier\ns_branch L_F_comp")

        a("L_B_aux:\ns_barrier")
        order = list(range(N1 + NREG))
        cnt = {k: 4 for k in range(16)}
        cnt["t"] = 1
        nxt = N1
        lag = self.o.get("lag", 0)
        if NREG:
            a(f"""
            s_sub_u32 s{S_T0}, s{S_WAVE}, 4
            s_lshl_b32 s{S_T0}, s{S_T0}, 12
            v_lshlrev_b32 v12, 4, v1
            v_add_u32 v12, s{S_T0}, v12
            v_add_u32 v13, 0x10000, v12
            s_add_u32 s{S_B}, s{S_T0}, {(NREG % 8) * 16384}
            """)
        eB = self.o.get("eB", 17)
        nB1 = self.o.get("nB1", 0)
        per = self.o.get("perB", 2)
        done_w2 = 0
        for tb in range(17):
            if tb < 16 and tb <= eB:
                n = sum(cnt[x] for x in order[order.index(tb) + 1:])
                a(f"s_waitcnt vmcnt({min(n, 63) if tb < eB else 0}) lgkmcnt(0)")
            a("s_barrier")
            if tb < 16:
                self.stamp(16 + tb, 44)
            if tb == eB:
                assert nxt == 16
                self.w2_setup()
            if tb >= eB and done_w2 < nB1:
                k2 = min(per, nB1 - done_w2, tb - 9 - done_w2)
                sk = self.if_wave56()
                self.w2_prefill(k2)
                a(f"{sk}:")
                done_w2 += k2
            k = 0
            while nxt <= min(15, tb + (6 if self.o.get("nodrain") and nxt >= 8 else 7) - (lag if nxt >= 8 + NREG else 0)) and k < 2:
                if 8 <= nxt < 8 + NREG:
                    n = sum(cnt[x] for x in order[order.index(nxt) + 1:])
                    a(f"s_waitcnt vmcnt({min(n, 63)})")
                    sl = nxt % 8
                    for i in range(4):
                        a(f"ds_write_b128 v{13 if sl >= 4 else 12}, {vr(64+16*(nxt-8)+4*i,4)} offset:{(sl&3)*16384+i*1024}")
                else:
                    if nxt == 8:
                        a(f"s_and_b32 s{S_B}, s{S_B}, 0x1ffff")
                    a(w1_issue())
                    order.append(nxt)
                nxt += 1
                k += 1
        assert nxt == 16
        if self.o.get("nodrain"):
            a("s_barrier")
        if eB == 17:
            self.w2_setup()
        skip = self.if_wave56()
        self.w2_prefill(nB1 - done_w2)
        a("s_barrier\ns_nop 7\ns_nop 7")
        self.w2_prefill(8 - nB1)
        a("s_branch L_F_loader")
        a(f"{skip}:\ns_barrier")
        a(f"s_cmp_lg_u32 s{S_WAVE}, 7\ns_cbranch_scc1 L_F_u4")
        a(f"s_mul_i32 s{S_T0}, s{S_DT}, 24\ns_add_u32 s{S_T0}, s{S_T0}, s{S_FT}\ns_mul_i32 s{S_T0}, s{S_T0}, {FS}\ns_add_u32 s{S_T0}, s{S_T0}, {F_U}")
        self.flag_store(S_T0, 12)
        self.stamp(4, 12)
        a("s_branch L_F_poller")

    def w2_l2_prefetch(self, VT):
        a = self.a
        self.srd(R_W2, P_W2, 1536 * 4096)
        a(f"""
        v_lshrrev_b32 v{VT}, 3, v1
        v_and_b32 v{VT+1}, 7, v1
        v_lshlrev_b32 v{VT+1}, 7, v{VT+1}
        v_lshl_add_u32 v{VT}, v{VT}, 12, v{VT+1}
        s_mul_i32 s{S_T0}, s{S_J}, 48
        s_and_b32 s{S_T0+1}, s{S_WAVE}, 3
        s_mul_i32 s{S_T0+1}, s{S_T0+1}, 12
        s_add_u32 s{S_T0}, s{S_T0}, s{S_T0+1}
        s_lshl_b32 s{S_T0}, s{S_T0}, 12
        s_lshr_b32 s{S_T0+1}, s{S_XCD}, 1
        s_lshl_b32 s{S_T0+1}, s{S_T0+1}, 10
        s_add_u32 s{S_T0}, s{S_T0}, s{S_T0+1}
        buffer_load_dword v{VT+2}, v{VT}, s[{R_W2}:{R_W2+3}], s{S_T0} offen
        s_add_u32 s{S_T0}, s{S_T0}, {8*4096}
        s_mov_b32 exec_hi, 0
        buffer_load_dword v{VT+3}, v{VT}, s[{R_W2}:{R_W2+3}], s{S_T0} offen
        s_mov_b64 exec, -1
        """)

    def tr_addr(self, VT):
        a = self.a
        a(f"""
        v_and_b32 v{VT+1}, 15, v1
        v_lshrrev_b32 v{VT+2}, 4, v1
        v_lshrrev_b32 v{VT+3}, 2, v{VT+1}
        v_lshl_add_u32 v{VT+3}, v{VT+2}, 2, v{VT+3}
        v_bfe_u32 v{VT+2}, v{VT+3}, 1, 2
        v_lshlrev_b32 v{VT+3}, 7, v{VT+3}
        v_lshl_add_u32 v{VT+3}, v{VT+2}, 5, v{VT+3}
        v_and_b32 v{VT+1}, 3, v{VT+1}
        v_lshl_add_u32 v{VT}, v{VT+1}, 3, v{VT+3}
        v_xor_b32 v{VT+1}, 32, v{VT}
        v_xor_b32 v{VT+2}, 64, v{VT}
        v_xor_b32 v{VT+3}, 96, v{VT}
        """)

    def helper(self):
        a = self.a
        a("L_helper:")
        a(f"""
        s_lshl_b32 s{S_D}, s{S_XCD}, 1
        s_add_u32 s{S_D}, s{S_D}, s{S_J}
        s_sub_u32 s{S_D}, s{S_D}, 30
        """)
        self.srd(R_W, P_WO, 640 * 1280)
        for p in range(5):
            a(f"""
            v_add_u32 v12, {p*64}, v1
            v_mul_u32_u24 v13, 205, v12
            v_lshrrev_b32 v13, 11, v13
            v_mul_u32_u24 v14, 10, v13
            v_sub_u32 v14, v12, v14
            v_lshlrev_b32 v14, 4, v14
            v_mul_u32_u24 v13, 1280, v13
            v_add_u32 v{16+p}, v13, v14
            """)
            if p in (1, 2, 3):
                a(f"v_subrev_u32 v{16+p}, {p*1024}, v{16+p}")
        a(f"""
        s_mov_b32 s{S_C}, s{S_WAVE}
        L_H_ld:
        s_mul_i32 s{S_A}, s{S_C}, {32*1280}
        s_mul_i32 s{S_T0}, s{S_D}, 160
        s_add_u32 s{S_A}, s{S_A}, s{S_T0}
        s_mul_i32 s{S_B}, s{S_C}, 5120
        s_mov_b32 m0, s{S_B}
        s_nop 0
        """)
        for p in range(4):
            a(f"buffer_load_dwordx4 v{16+p}, s[{R_W}:{R_W+3}], s{S_A} offen offset:{p*1024} lds")
        a(f"s_add_u32 m0, s{S_B}, 4096\ns_nop 0\nbuffer_load_dwordx4 v20, s[{R_W}:{R_W+3}], s{S_A} offen lds")
        a(f"""
        s_add_u32 s{S_C}, s{S_C}, 8
        s_cmp_lt_u32 s{S_C}, 20
        s_cbranch_scc1 L_H_ld
        v_and_b32 v12, 15, v1
        v_lshrrev_b32 v13, 4, v1
        v_lshrrev_b32 v14, 2, v12
        v_lshl_add_u32 v14, v13, 2, v14
        v_mul_u32_u24 v14, 160, v14
        v_and_b32 v12, 3, v12
        v_lshl_add_u32 v14, v12, 3, v14
        v_lshlrev_b32 v15, 4, v1
        s_waitcnt vmcnt(0)
        s_barrier
        s_mov_b32 s{S_C}, s{S_WAVE}
        L_H_tr:
        s_lshr_b32 s{S_T0}, s{S_C}, 1
        s_mul_i32 s{S_T0}, s{S_T0}, 5
        s_and_b32 s{S_T0+1}, s{S_C}, 1
        s_lshl_b32 s{S_T0+1}, s{S_T0+1}, 1
        s_add_u32 s{S_T0}, s{S_T0}, s{S_T0+1}
        s_add_u32 s{S_T0+1}, s{S_T0}, 1
        s_mul_i32 s{S_T0+2}, s{S_C}, 10
        s_sub_u32 s{S_T0+2}, s{S_T0+2}, 156
        s_add_u32 s{S_T0+3}, s{S_T0+2}, 5
        s_cmp_lt_u32 s{S_C}, 16
        s_cselect_b32 s{S_T0}, s{S_T0}, s{S_T0+2}
        s_cselect_b32 s{S_T0+1}, s{S_T0+1}, s{S_T0+3}
        s_mul_i32 s{S_T0}, s{S_T0}, 2560
        s_mul_i32 s{S_T0+1}, s{S_T0+1}, 2560
        v_add_u32 v12, s{S_T0}, v14
        v_add_u32 v13, s{S_T0+1}, v14
        """)
        for b in range(5):
            a(f"ds_read_b64_tr_b16 {vr(24+4*b,2)}, v12 offset:{b*32}\nds_read_b64_tr_b16 {vr(26+4*b,2)}, v13 offset:{b*32}")
        a(f"""
        s_mul_i32 s{S_T0}, s{S_D}, {5*UW_ST}
        s_lshl_b32 s{S_T0+1}, s{S_C}, 10
        s_add_u32 s{S_T0}, s{S_T0}, s{S_T0+1}
        s_add_u32 s{S_T0}, s{S_T0}, {UW + 49152}
        """)
        for b in range(5):
            a(f"s_waitcnt lgkmcnt({8-2*b})")
            a(f"buffer_store_dwordx4 {vr(24+4*b,4)}, v15, s[{R_WS}:{R_WS+3}], s{S_T0} offen sc1")
            if b < 4:
                a(f"s_add_u32 s{S_T0}, s{S_T0}, {UW_ST}")
        a(f"""
        s_add_u32 s{S_C}, s{S_C}, 8
        s_cmp_lt_u32 s{S_C}, 20
        s_cbranch_scc1 L_H_tr
        s_waitcnt vmcnt(0)
        s_barrier
        """)
        skip = self.if_wave56()
        self.w2_setup()
        self.w2_prefill(8)
        a(f"s_branch L_F_loader\n{skip}:")
        a(f"s_cmp_lt_u32 s{S_WAVE}, 4\ns_cbranch_scc1 L_F_comp\ns_cmp_lg_u32 s{S_WAVE}, 7\ns_cbranch_scc1 L_F_u4")
        a(f"s_mul_i32 s{S_T0}, s{S_D}, {FS}\ns_add_u32 s{S_T0}, s{S_T0}, {F_WOT}")
        self.flag_store(S_T0, 12)
        self.stamp(14, 12)
        a("s_branch L_F_poller")

    F_WOT_REG = 172

    def uw_srd(self):
        a = self.a
        a(f"""
        s_mul_i32 s{S_T0}, s{S_DTILE}, 5
        s_add_u32 s{S_D}, s{S_T0}, s{S_WAVE}
        s_mul_i32 s{S_T0}, s{S_D}, {UW_ST}
        s_add_u32 s{S_T0}, s{S_T0}, {UW}
        """)
        self.srd(R_P, P_WS, UW_ST, off_s=S_T0)

    def wot_preload(self, VL):
        a = self.a
        for k in range(20):
            if k % 4 == 0:
                a(f"s_mov_b32 s{S_C}, {49152 + k*1024}")
            a(f"buffer_load_dwordx4 {vr(self.F_WOT_REG+4*k,4)}, v{VL}, s[{R_P}:{R_P+3}], s{S_C} offen offset:{(k%4)*1024} sc1")

    F_V = (4, 8, 12, 13, 47, 48, 52, 56, 168)
    F_SB = 72

    def f_setup(self):
        a = self.a
        VT, VT2, VL, VU4, VGA, VGH, VG8, GV, BV = self.F_V
        SB = self.F_SB
        self.srd(R_M, P_B2, 4096)
        self.srd(R_OUT, P_OUT, 2048 * 1280)
        self.tr_addr(VT2)
        a(f"""
        v_mov_b32 v42, v{VT2}
        v_lshlrev_b32 v{VL}, 4, v1
        v_add_u32 v{VU4}, 0x20000, v{VL}
        v_and_b32 v{VGA}, 15, v1
        v_lshlrev_b32 v43, 1, v{VGA}
        v_lshlrev_b32 v{VGA}, 2, v{VGA}
        v_lshlrev_b32 v{VG8+3}, 3, v1
        """)
        for b in range(4):
            a(f"""
            s_add_u32 s{SB+b}, s{S_WAVE}, {b}
            s_and_b32 s{SB+b}, s{SB+b}, 3
            s_lshl_b32 s{S_T0}, s{SB+b}, 5
            v_xor_b32 v{VT+b}, s{S_T0}, v42
            s_lshl_b32 s{S_T0+1}, s{S_ST}, 7
            s_add_u32 s{S_T0}, s{S_T0}, s{S_T0+1}
            buffer_load_ushort v{BV+b}, v43, s[{R_M}:{R_M+3}], s{S_T0} offen
            v_add_u32 v{VT2+b}, 0x10000, v{VT+b}
            s_lshl_b32 s{S_T0}, s{SB+b}, 12
            v_add_u32 v{VG8+b}, s{S_T0}, v{VG8+3}
            s_add_u32 s{S_T0}, s{S_T0}, 0x10000
            v_add_u32 v{VGH+b}, s{S_T0}, v{VL}
            """)
        a(f"s_lshl_b32 s{S_A}, s{S_ST}, 8\ns_add_u32 s{S_A}, s{S_A}, {G_OFF}")
        self.f_perm()

    def f0_barrier(self):
        lab = self.a.label("f0")
        self.a(f"s_cmp_eq_u32 s{S_FROMA}, 1\ns_cbranch_scc1 {lab}\ns_barrier\n{lab}:")

    def final(self):
        a = self.a
        a("L_F_comp:")
        if self.stop == "phase1":
            a("s_branch L_end")
        PF, WF, ACC, ACC4, U4, WOT = 64, 112, 144, 160, 36, 172
        NPF = 3
        pre = True
        VT, VT2, VL, VU4, VGA, VGH, VG8, GV, BV = self.F_V
        SB = self.F_SB
        a(f"s_cmp_eq_u32 s{S_FROMA}, 1\ns_cbranch_scc1 L_F_nowot")
        self.uw_srd()
        self.f_setup()
        nstream = 12 if pre else 17

        def next_sc(step):
            if step < 12:
                return self.perm_next(S_C, S_PERM, 4096)
            return f"s_mov_b32 s{S_C}, {step*4096}\n"
        a("s_barrier")
        self.wot_preload(VL)
        a("L_F_nowot:")
        a(next_sc(0))
        a("s_barrier")
        S_C1, S_C2 = S_K0, S_K0 + 1

        def uload(t, ks, so):
            return f"buffer_load_dwordx4 {vr(PF+16*(t % NPF)+4*ks,4)}, v{VL}, s[{R_P}:{R_P+3}], s{so} offen offset:{ks*1024} sc1 ;@u{t}_{ks}"
        vis0 = []
        for ks in range(4):
            a(uload(0, ks, S_C))
            vis0.append(f"u0_{ks}")
        a(self.perm_next(S_C1, S_PERM, 4096) + self.perm_next(S_C2, S_PERM, 4096) + next_sc(3))
        a("s_barrier")

        ACC2 = 16
        blocks = [(ACC + 4 * b, b) for b in range(4)] + [(ACC4, 0)]
        fill = []
        for b in range(4):
            fill += [f"v_lshlrev_b32 v{BV+b}, 16, v{BV+b}", f"v_sub_f32 v{GV+b}, 1.0, v{GV+b}"]
        for r0, b in blocks:
            for k in range(4):
                fill.append(f"v_add_f32 v{r0+k}, v{BV+b}, v{r0+k}")

        stages = []
        for t in range(17):
            slot = t % 8
            hi = slot >= 4
            uses = []
            for ks in range(4):
                for b in range(4):
                    g = ks * 4 + b
                    wb = WF + 4 * (g % 8)
                    reads = []
                    u4 = U4 + 4 * (ks & 1)
                    if b == 0:
                        reads.append((f"u{ks}", f"ds_read_b128 {vr(u4,4)}, v{VU4} offset:{slot*4096 + ks*1024}"))
                    if t < 12:
                        off = (slot & 3) * 16384 + ks * 4096
                        va = (VT2 if hi else VT) + b
                        reads += [(f"w{g}a", f"ds_read_b64_tr_b16 {vr(wb,2)}, v{va} offset:{off}"),
                                  (f"w{g}b", f"ds_read_b64_tr_b16 {vr(wb+2,2)}, v{va} offset:{off+2048}")]
                    elif t < 16:
                        assert hi
                        off = (slot & 3) * 16384 + ks * 1024
                        reads += [(f"w{g}b", f"ds_read_b128 {vr(wb,4)}, v{VGH+b} offset:{off}")]
                    else:
                        off = (slot & 3) * 16384 + ks * 1024
                        assert not hi
                        reads += [(f"w{g}a", f"ds_read_b64 {vr(wb,2)}, v{VG8+b} offset:{off}"),
                                  (f"w{g}b", f"ds_read_b64 {vr(wb+2,2)}, v{VG8+b} offset:{off+512}")]
                    acc = vr((ACC if t < 12 else ACC2) + 4 * b, 4)
                    a4 = vr(ACC4 if t < 12 else ACC2 + 16, 4)
                    ring = t < nstream
                    pf = vr(PF + 16 * (t % NPF) + 4 * ks, 4) if ring else vr(WOT + 16 * (t - 12) + 4 * ks, 4)
                    first = t in (0, 12) and ks == 0
                    mf = [f"v_mfma_f32_16x16x32_bf16 {acc}, {pf}, {vr(wb,4)}, {0 if first else acc}"]
                    if b == 0:
                        mf.append(f"v_mfma_f32_16x16x32_bf16 {a4}, {vr(u4,4)}, {vr(wb,4)}, {0 if first else a4}")
                    d = dict(reads=reads, need=[f"w{g}b"], mf=mf)
                    if self.o.get("x_fewlds"):
                        if b == 0:
                            d["reads"] = reads[1:]
                        else:
                            d["reads"] = []
                            d["need"] = [f"w{g-b}b"]
                    if b == 0 and ring:
                        d["vneed"] = f"u{t}_{ks}"
                    if t == 0 and b in (0, 1):
                        d["after"] = uload(1 + b, ks, (S_C1, S_C2)[b])
                    if t == 1 and b == 1:
                        d["after"] = (f"s_lshl_b32 s{S_T0}, s{SB+ks}, 6\ns_add_u32 s{S_T0}, s{S_T0}, s{S_A}\n"
                                      f"buffer_load_dword v{GV+ks}, v{VGA}, s[{R_WS}:{R_WS+3}], s{S_T0} offen sc1 ;@g{ks}")
                    if b == 3 and t + NPF < nstream:
                        d["after"] = uload(t + NPF, ks, S_C)
                        if ks == 3 and t + NPF + 1 < nstream:
                            d["after"] += "\n" + next_sc(t + NPF + 1)
                    if self.o.get("wotl") and 3 <= t <= 7 and b == 1:
                        k = (t - 3) * 4 + ks
                        lab = a.label("nw")
                        d["before"] = (f"s_cmp_eq_u32 s{S_FROMA}, 1\ns_cbranch_scc0 {lab}\ns_mov_b32 s{S_T0}, {49152 + k*1024}\n"
                                       f"buffer_load_dwordx4 {vr(WOT+4*k,4)}, v{VL}, s[{R_P}:{R_P+3}], s{S_T0} offen sc1\n{lab}:")
                    if t >= 13 and fill and g < 15:
                        d["after"] = fill.pop(0)
                    uses.append(d)
            stages.append(dict(uses=uses, bar="s_barrier" if t else ""))
        nd = self.o.get("nodrain")
        LF = self.o.get("LF", 6)
        self.pipeline(stages, LF, (16 - LF) if nd else 13, drain=not nd, wait_every=self.o.get('we', 2), vis=vis0)
        self.stamp(8, 2)
        a(f"""
        v_and_b32 v2, 15, v1
        v_mul_u32_u24 v2, 1280, v2
        v_lshrrev_b32 v3, 4, v1
        v_lshl_add_u32 v2, v3, 3, v2
        s_mul_i32 s{S_A}, s{S_ST}, {64*1280}
        s_lshl_b32 s{S_T0+1}, s{S_D}, 5
        s_add_u32 s{S_B}, s{S_A}, s{S_T0+1}
        s_mul_i32 s{S_T0+1}, s{S_DTILE}, 160
        s_add_u32 s{S_A}, s{S_A}, s{S_T0+1}
        s_add_u32 s{S_A}, s{S_A}, 128
        """)
        assert not fill
        for i_, (r, b) in enumerate(blocks):
            for k in range(4):
                a(f"v_fma_f32 v{r+k}, v{r+k}, v{GV+b}, v{ACC2+4*i_+k}")
            a(f"s_mul_i32 s{S_T0}, s{SB+b}, {16*1280}\ns_add_u32 s{S_T0}, s{S_T0}, s{S_A if r == ACC4 else S_B}")
            a(f"v_cvt_pk_bf16_f32 v{r}, v{r}, v{r+1}\nv_cvt_pk_bf16_f32 v{r+1}, v{r+2}, v{r+3}")
            a(f"buffer_store_dwordx2 {vr(r,2)}, v2, s[{R_OUT}:{R_OUT+3}], s{S_T0} offen {['', 'sc1', 'nt', 'sc0 sc1'][self.o.get('osc', 0)]}")
        if self.stamps or self.o.get("dbg"):
            a("s_waitcnt vmcnt(0)")
            self.stamp(9, 2)
        if self.o.get("calib"):
            a(f"""
            L_cal:
            s_memrealtime s[96:97]
            s_waitcnt lgkmcnt(0)
            s_sub_u32 s96, s96, s98
            s_cmp_lt_u32 s96, {self.o.get("calib")*100}
            s_cbranch_scc1 L_cal
            """)
        a(f"s_or_b32 s{S_T0}, s2, s{S_WAVE}\ns_cmp_lg_u32 s{S_T0}, 0\ns_cbranch_scc1 L_end\ns_mov_b32 s{S_T0}, 0")
        self.flag_store(S_T0, 4)
        a("s_branch L_end")

        a("L_F_u4:")
        if self.stop == "phase1":
            a("s_branch L_end")
        a(f"""
        v_lshlrev_b32 v{VL}, 4, v1
        s_mul_i32 s{S_C}, s{S_DTILE}, {5*UW_ST}
        s_add_u32 s{S_C}, s{S_C}, {UW + 4*UW_ST}
        """)
        self.f_perm()
        self.f0_barrier()
        p4 = self.o.get("preW4")
        if p4:
            for k in range(20):
                if k % 4 == 0:
                    a(f"s_add_u32 s{S_T0}, s{S_C}, {49152 + k*1024}")
                a(f"buffer_load_dwordx4 {vr(64+4*k,4)}, v{VL}, s[{R_WS}:{R_WS+3}], s{S_T0} offen offset:{(k%4)*1024} sc1")
            a(f"v_add_u32 v{VU4}, 0x20000, v{VL}")
        a("s_barrier")

        def u4_issue(iv):
            if iv >= 12 and p4:
                for i in range(4):
                    a(f"ds_write_b128 v{VU4}, {vr(64+16*(iv-12)+4*i,4)} offset:{(iv % 8)*4096 + i*1024}")
                return
            if iv < 12:
                a(self.perm_next(S_T0, S_PERM, 4096) + f"s_mov_b32 m0, {0x20000 + (iv % 8)*4096:#x}\ns_add_u32 s{S_T0}, s{S_T0}, s{S_C}")
            else:
                a(f"s_mov_b32 m0, {0x20000 + (iv % 8)*4096:#x}\ns_add_u32 s{S_T0}, s{S_C}, {iv*4096}")
            for i in range(4):
                a(f"buffer_load_dwordx4 v{VL}, s[{R_WS}:{R_WS+3}], s{S_T0} offen offset:{i*1024} sc1 lds")
        order = []
        for iv in range(8):
            u4_issue(iv)
            order.append(iv)
            if iv == 1:
                a("s_waitcnt vmcnt(4)\ns_barrier")
        for tb in range(1, 17):
            if tb in order:
                a(f"s_waitcnt vmcnt({4*len(order[order.index(tb)+1:])})")
            a("s_waitcnt lgkmcnt(0)\ns_barrier" if p4 and tb >= 7 else "s_barrier")
            iv = tb + (6 if self.o.get("nodrain") else 7)
            if 8 <= iv <= 16:
                u4_issue(iv)
                if not (p4 and iv >= 12):
                    order.append(iv)
        a("s_branch L_end")

        a("L_F_loader:")
        if self.stop == "phase1":
            a("s_branch L_end")
        a(f"v_lshlrev_b32 v{VL}, 4, v1")
        self.f0_barrier()
        nWR = self.o.get("nWR", 0)
        V = self.V_W2
        if nWR:
            a(f"s_waitcnt vmcnt(30)\nv_add_u32 v{VU4}, s{S_B}, v{VL}")
            for k in range(nWR):
                a(self.perm_next(S_T0, S_PERM, 128 * 4096) + f"s_add_u32 s{S_T0}, s{S_T0}, s{S_A}")
                for g in range(2):
                    if g:
                        a(f"s_add_u32 s{S_T0}, s{S_T0}, {4*32768}")
                    for i in range(4):
                        a(f"buffer_load_dwordx4 {vr(64+32*k+16*g+4*i,4)}, v{V+i}, s[{R_W2}:{R_W2+3}], s{S_T0} offen offset:{i*1024}")
            a(f"s_add_u32 s{S_B}, s{S_B}, {nWR*16384}")
        a("s_barrier")
        a(f"""
        s_sub_u32 s{S_T0}, s{S_WAVE}, 5
        s_lshl_b32 s{S_T0}, s{S_T0}, 1
        s_lshl_b32 s{S_T0+1}, s{S_ST}, 2
        s_add_u32 s{S_T0+1}, s{S_T0+1}, s{S_T0}
        s_mul_i32 s{S_C}, s{S_T0+1}, {GO_ST}
        s_add_u32 s{S_C}, s{S_C}, {GO}
        s_lshl_b32 s{S_D}, s{S_T0}, 12
        """)
        assert nWR == 0
        ops = [(iv, 8) for iv in range(8)]
        for tb in range(17):
            last = max(i for i, (iv, _) in enumerate(ops) if iv == tb)
            n = sum(c for _, c in ops[last + 1:])
            a(f"s_waitcnt vmcnt({min(n,63)})\ns_barrier")
            if self.o.get("halfW"):
                if 2 <= tb <= 9:
                    self.w2_half((tb - 2) & 1)
                    ops.append((8 + (tb - 2) // 2, 4))
            elif 2 <= tb <= 5:
                self.w2_issue()
                ops.append((tb + 6, 8))
            if 9 <= tb <= 13:
                iv = tb + 3
                g = iv - 12
                for s2 in range(2):
                    a(f"s_add_u32 m0, s{S_D}, {(iv % 8)*16384 + s2*4096}\ns_add_u32 s{S_T0}, s{S_C}, {s2*GO_ST + g*4096}")
                    for i in range(4):
                        a(f"buffer_load_dwordx4 v{VL}, s[{R_WS}:{R_WS+3}], s{S_T0} offen offset:{i*1024} sc1 lds")
                ops.append((iv, 8))
        a("s_branch L_end")
        a("L_F_poller:")
        if self.stop == "phase1":
            a("s_branch L_end")
        a(f"s_cmp_eq_u32 s{S_FROMA}, 1\ns_cbranch_scc1 L_F_pnowot")
        a(f"s_mul_i32 s{S_T0}, s{S_DTILE}, {FS}\ns_add_u32 s{S_T0}, s{S_T0}, {F_WOT}\nv_mov_b32 v2, s{S_T0}")
        self.poll([2], 4)
        a("s_barrier\nL_F_pnowot:")
        a(f"""
        s_mul_i32 s{S_T0}, s{S_DTILE}, 5
        s_lshr_b32 s{S_T0+1}, s{S_T0}, 3
        s_add_u32 s{S_T0}, s{S_T0}, 4
        s_lshr_b32 s{S_T0}, s{S_T0}, 3
        s_mul_i32 s{S_T0}, s{S_T0}, 24
        s_mul_i32 s{S_T0+1}, s{S_T0+1}, 24
        v_and_b32 v2, 31, v1
        v_min_u32 v2, 23, v2
        v_add_u32 v3, s{S_T0}, v2
        v_add_u32 v2, s{S_T0+1}, v2
        v_cmp_gt_u32 vcc, 32, v1
        s_mul_i32 s{S_T0}, s{S_DTILE}, {FS}
        s_add_u32 s{S_T0}, s{S_T0}, {F_WOT}
        v_cndmask_b32 v2, v2, v3, vcc
        v_mul_u32_u24 v2, {FS}, v2
        v_add_u32 v2, {F_U}, v2
        v_mov_b32 v3, s{S_T0}
        v_cmp_eq_u32 vcc, 63, v1
        s_nop 1
        v_cndmask_b32 v2, v2, v3, vcc
        """)
        self.poll([2], 4)
        self.stamp(6, 4)
        a("s_barrier")
        a(f"""
        v_and_b32 v2, 7, v1
        s_lshr_b32 s{S_T0}, s{S_ST}, 1
        s_lshl_b32 s{S_T0}, s{S_T0}, 3
        v_add_u32 v2, s{S_T0}, v2
        v_mul_u32_u24 v2, {FS}, v2
        v_add_u32 v2, {F_GO}, v2
        """)
        gp = self.o.get("gopoll", 9)
        for tb in range(gp):
            a("s_barrier")
            if tb == 1:
                a(f"s_cmp_eq_u32 s{S_FROMA}, 1\ns_cbranch_scc0 L_F_nogo")
                a(f"s_lshl_b32 s{S_T0}, s{S_MT}, 3\ns_add_u32 s{S_T0}, s{S_T0}, s{S_HG}\ns_mul_i32 s{S_T0}, s{S_T0}, {FS}\ns_add_u32 s{S_T0}, s{S_T0}, {F_GO}")
                self.flag_store(S_T0, 6)
                a("L_F_nogo:")
            if tb == gp - 3:
                a(f"buffer_load_dword v8, v2, s[{R_WS}:{R_WS+3}], 0 offen sc1")
            self.stamp(32 + tb, 4)
        a(f"s_waitcnt vmcnt(0)\nv_cmp_ne_u32 vcc, s{S_TAG}, v8\ns_nop 1\ns_cmp_eq_u64 vcc, 0\ns_cbranch_scc1 L_F_gook")
        self.poll([2], 4)
        a("L_F_gook:")
        self.stamp(7, 4)
        for tb in range(gp, 17):
            a("s_barrier")
            self.stamp(32 + tb, 4)
        a("L_end:")
        if "probe" in self.o or "pc1" in self.o:
            a("""
            s_cmp_eq_u32 s94, 0
            s_cbranch_scc1 L_exit
            L_prb:
            s_memrealtime s[96:97]
            s_waitcnt lgkmcnt(0)
            s_sub_u32 s96, s96, s98
            s_cmp_lt_i32 s96, 4000
            s_cbranch_scc1 L_prb
            """)
        if self.stamps:
            a(f"""
            s_lshl_b32 s{S_T0}, s2, 3
            s_add_u32 s{S_T0}, s{S_T0}, s{S_WAVE}
            s_lshl_b32 s{S_T0}, s{S_T0}, 9
            s_add_u32 s{S_T0}, s{S_T0}, {STAMP}
            v_lshlrev_b32 v2, 3, v1
            buffer_store_dwordx2 v[254:255], v2, s[{R_WS}:{R_WS+3}], s{S_T0} offen
            """)
        a("L_exit:\ns_endpgm")

    def build(self, header):
        a = self.a
        self.prologue()
        self.role_a()
        self.role_b()
        self.helper()
        self.final()
        body = a.text()
        out = header
        out += f"; @launch grid=(256,1,1) block=(512,1,1) lds={LDS_BYTES}\n"
        out += f'.amdgcn_target "amdgcn-amd-amdhsa--gfx950"\n.text\n.globl {KNAME}\n.p2align 8\n.type {KNAME},@function\n{KNAME}:\n'
        out += body
        out += f""".section .rodata,"a"
.p2align 6
.amdhsa_kernel {KNAME}
  .amdhsa_next_free_vgpr 256
  .amdhsa_next_free_sgpr 102
  .amdhsa_accum_offset 256
  .amdhsa_group_segment_fixed_size 0
  .amdhsa_kernarg_size 96
  .amdhsa_user_sgpr_count 2
  .amdhsa_user_sgpr_kernarg_segment_ptr 1
  .amdhsa_system_sgpr_workgroup_id_x 1
  .amdhsa_float_denorm_mode_32 3
.end_amdhsa_kernel
"""
        return out


def header():
    ref = open("gated_mix__linear_attn_block__mixer_token_mlp__prompt.s.ref").read().split("\n")
    h = []
    for l in ref:
        if l.startswith("; Override"):
            break
        h.append(l)
    return "\n".join(h) + "\n"


if __name__ == "__main__":
    import argparse
    p = argparse.ArgumentParser()
    p.add_argument("-o", default="gated_mix__linear_attn_block__mixer_token_mlp__prompt.s")
    p.add_argument("--stamps", action="store_true")
    p.add_argument("--stop", default=None)
    p.add_argument("--opt", default="")
    args = p.parse_args()
    opts = {k: (int(v) if v != '' else 1) for k, _, v in (x.partition('=') for x in args.opt.split(',') if x)}
    g = Gen(stamps=args.stamps, stop=args.stop, opts=opts)
    open(args.o, "w").write(g.build(header()))
    print("wrote", args.o)
```

```python
import sys

KNAME = "gated_mix__linear_attn_block__mixer_token_mlp__prompt_kernel"

import os
FS = int(os.environ.get('FS', 128))
F_LN, F_KV, F_U, F_GO, F_WOT = 0x1000, 0x5000, 0x9000, 0xD000, 0x11000
G_OFF = 0x12000
STAMP = 0x900000
KVP = 0x20000
KVP_ST = 7168
HT = 0x100000
UW = 0x380000
UW_ST = 69632
GO = 0x640000
GO_ST = 20480
WS_USED = 0xA00000
TAG_INC = 0x9E3779B9
SPIN_LIMIT = 1 << 17

LDS_BYTES = 163840
LNBUF = 131072
LN_ST = 1312
LNG = LNBUF + 16 * LN_ST
A_SLOT = 49152
A_WOFF = 16384
EXCH_ST = 14336
EXCH = 131072 - 4 * EXCH_ST
KVT = 147456
ZH = KVT + 11 * 1024

LOG2E = 0x3FB8AA3B


def f2u(x):
    import struct
    return struct.unpack("<I", struct.pack("<f", x))[0]


class Asm:
    def __init__(self):
        self.L = []
        self.nlab = 0

    def __call__(self, s):
        for line in s.split("\n"):
            line = line.strip()
            if line:
                self.L.append(("    " if not line.endswith(":") else "") + line)

    def label(self, base):
        self.nlab += 1
        return f"L{base}_{self.nlab}"

    def text(self):
        return "\n".join(self.L) + "\n"


def vr(a, n=1):
    return f"v{a}" if n == 1 else f"v[{a}:{a+n-1}]"


def sr(a, n=1):
    return f"s{a}" if n == 1 else f"s[{a}:{a+n-1}]"


P_X, P_WQKV, P_WO, P_BX, P_W1, P_B1, P_W2, P_B2 = 4, 6, 8, 10, 12, 14, 16, 18
P_GATE, P_OUT, P_DBG, P_WS = 20, 22, 24, 26
S_TAG, S_WAVE = 28, 29
S_XCD, S_J = 30, 31
R_WS, R_X, R_W, R_P, R_W2, R_M, R_OUT = 32, 36, 40, 44, 48, 52, 56
S_T0 = 60
S_MT, S_HG, S_DT, S_FT, S_KST, S_PAR = 70, 71, 72, 73, 74, 75
S_ST, S_DTILE = 76, 77
S_CNT = 78
S_A, S_B, S_C, S_D = 80, 81, 82, 83
S_MSK = 84
S_K0 = 90
S_STMP = 96
S_PERM = 66
S_M = 79
S_FROMA = 95


def lead_perm(n, nshare, m, lead=2):
    order = list(range(n))
    i = m
    while i + lead < n:
        order[i:i + lead + 1] = [order[i + lead]] + order[i:i + lead]
        i += nshare
    return order


class Gen:
    def __init__(self, stamps=False, stop=None, opts=None):
        self.o = opts or {}
        self.a = Asm()
        self.stamps = stamps
        self.stop = stop

    def srd(self, dst, ptr, nbytes, off_s=None):
        a = self.a
        if off_s is None:
            a(f"s_mov_b32 s{dst}, s{ptr}\ns_and_b32 s{dst+1}, s{ptr+1}, 0xffff")
        else:
            a(f"s_add_u32 s{dst}, s{ptr}, s{off_s}\ns_addc_u32 s{dst+1}, s{ptr+1}, 0\ns_and_b32 s{dst+1}, s{dst+1}, 0xffff")
        a(f"s_mov_b32 s{dst+2}, {nbytes:#x}\ns_mov_b32 s{dst+3}, 0x20000")

    def stamp(self, k, vtmp, dyn=None):
        if "probe" in self.o:
            role = self.o.get("prole")
            if k == self.o["probe"] and dyn is None:
                lab = self.a.label("npr")
                if role is not None and k != 0:
                    self.a(f"s_cmp_lg_u32 s{S_FROMA}, {role}\ns_cbranch_scc1 {lab}")
                self.a(f"s_memrealtime s[98:99]\ns_mov_b32 s94, 1\ns_waitcnt lgkmcnt(0)\n{lab}:")
            return
        if self.o.get("dbg"):
            m = {0: 0, 11: 1, 1: 2, 2: 3, 3: 4, 4: 5, 6: 6, 9: 7}
            mA = {0: 0, 1: 1, 2: 2, 3: 3, 4: 4, 5: 5, 6: 6, 9: 7}
            if dyn is not None:
                return
            a = self.a
            for wg, mp, base in ((8, m, 0), (12, mA, 8)):
                if k in mp:
                    lab = a.label("nd")
                    a(f"s_cmp_lg_u32 s2, {wg}\ns_cbranch_scc1 {lab}")
                    a(f"s_memrealtime s[{S_STMP}:{S_STMP+1}]\ns_waitcnt lgkmcnt(0)")
                    a(f"v_mov_b32 v{vtmp}, s{S_STMP}\nv_mov_b32 v{vtmp+2}, {4*(base+mp[k])}")
                    a(f"s_mov_b64 exec, 1\nglobal_store_dword v{vtmp+2}, v{vtmp}, s[{P_DBG}:{P_DBG+1}]\ns_mov_b64 exec, -1\n{lab}:")
            return
        if not self.stamps:
            return
        a = self.a
        a(f"s_memrealtime s[{S_STMP}:{S_STMP+1}]\ns_memtime s[100:101]")
        ln = str(k)
        if dyn is not None:
            a(f"s_add_u32 m0, s{dyn}, {k}")
            ln = "m0"
        a(f"s_waitcnt lgkmcnt(0)\nv_writelane_b32 v254, s{S_STMP}, {ln}\nv_writelane_b32 v255, s100, {ln}")

    def perm_setup(self, s_m, n, nshare, dst, enable):
        a = self.a
        def pk(o):
            v = 0
            for i, x in enumerate(o):
                v |= x << (4 * i)
            return v & 0xffffffff, v >> 32
        lo, hi = pk(list(range(n)))
        a(f"s_mov_b32 s{dst}, {lo:#x}\ns_mov_b32 s{dst+1}, {hi:#x}")
        if not enable:
            return
        for m in range(nshare):
            lo, hi = pk(lead_perm(n, nshare, m, enable))
            a(f"s_cmp_eq_u32 s{s_m}, {m}\ns_cselect_b32 s{dst}, {lo:#x}, s{dst}\ns_cselect_b32 s{dst+1}, {hi:#x}, s{dst+1}")

    def perm_next(self, dst, src, mul):
        t = f"s_and_b32 s{dst}, s{src}, 15\ns_lshr_b64 s[{src}:{src+1}], s[{src}:{src+1}], 4\n"
        if mul & (mul - 1) == 0:
            t += f"s_lshl_b32 s{dst}, s{dst}, {mul.bit_length()-1}\n"
        else:
            t += f"s_mul_i32 s{dst}, s{dst}, {mul}\n"
        return t

    def poll(self, voffs, vtmp):
        a = self.a
        lp, dn = a.label("poll"), a.label("pdone")
        n = len(voffs)

        def ld(k):
            for i, vo in enumerate(voffs):
                a(f"buffer_load_dword v{vtmp+k*n+i}, v{vo}, s[{R_WS}:{R_WS+3}], 0 offen sc1")

        def chk(k):
            a(f"v_cmp_ne_u32 vcc, s{S_TAG}, v{vtmp+k*n}")
            for i in range(1, n):
                a(f"v_cmp_ne_u32 s[{S_T0}:{S_T0+1}], s{S_TAG}, v{vtmp+k*n+i}\ns_nop 1\ns_or_b64 vcc, vcc, s[{S_T0}:{S_T0+1}]")
            a(f"s_nop 1\ns_cmp_eq_u64 vcc, 0\ns_cbranch_scc1 {dn}")
        if not self.o.get("pp"):
            a(f"s_mov_b32 s{S_CNT}, 0\n{lp}:")
            ld(0)
            a("s_waitcnt vmcnt(0)")
            chk(0)
            a(f"s_add_u32 s{S_CNT}, s{S_CNT}, 1\ns_cmp_lt_u32 s{S_CNT}, {SPIN_LIMIT}\ns_cbranch_scc0 {dn}\ns_sleep 1\ns_branch {lp}\n{dn}:")
            return
        sl = f"s_sleep {self.o['pp'] - 1}\n" if self.o["pp"] > 1 else ""
        a(f"s_mov_b32 s{S_CNT}, 0")
        ld(0)
        a(f"{sl}{lp}:")
        ld(1)
        a(f"s_waitcnt vmcnt({n})")
        chk(0)
        ld(0)
        a(f"s_waitcnt vmcnt({n})")
        chk(1)
        a(f"s_add_u32 s{S_CNT}, s{S_CNT}, 1\ns_cmp_lt_u32 s{S_CNT}, {SPIN_LIMIT}\ns_cbranch_scc1 {lp}\n{dn}:")

    def flag_store(self, s_off, vtmp):
        a = self.a
        a(f"v_mov_b32 v{vtmp}, s{S_TAG}\nv_mov_b32 v{vtmp+1}, 0\ns_mov_b64 exec, 1")
        a(f"buffer_store_dword v{vtmp}, v{vtmp+1}, s[{R_WS}:{R_WS+3}], s{s_off} offen sc1\ns_mov_b64 exec, -1")

    def pipeline(self, stages, L, gstar, drain=True, wait_every=2):
        a = self.a
        seq = [(si, gi, u) for si, st in enumerate(stages) for gi, u in enumerate(st["uses"])]
        issued = []
        state = dict(nxt=0, opened=-1)
        pend = []

        def collect(lim):
            while state["nxt"] < len(seq) and state["nxt"] <= lim and seq[state["nxt"]][0] <= state["opened"]:
                si_, _, u_ = seq[state["nxt"]]
                for name, txt in u_["reads"]:
                    pend.append((f"{si_}:{name}", txt))
                state["nxt"] += 1
                if seq[state["nxt"] - 1][1] == len(stages[si_]["uses"]) - 1 and si_ + 1 < len(stages):
                    state["defer"] = list(stages[si_ + 1].get("pre", []))

        def emit(n):
            for _ in range(min(n, len(pend))):
                name, txt = pend.pop(0)
                a(txt)
                if name:
                    issued.append(name)

        a(stages[0]["bar"])
        state["opened"] = 0
        collect(L - 1)
        emit(len(pend))
        n_real = sum(len(st["uses"]) for st in stages if not st.get("virtual"))
        covered = -1
        for f in range(n_real):
            si, gi, u = seq[f]
            nuse = len(stages[si]["uses"])
            if gi == 0 and stages[si].get("head"):
                assert not pend, pend
                a(stages[si]["head"])
                covered = -1
            if gi == gstar and si + 1 < len(stages):
                emit(len(pend))
                for x in state.pop("defer", []):
                    a(x)
                if drain:
                    a("s_waitcnt lgkmcnt(0)")
                    covered = len(issued) - 1
                a(stages[si + 1]["bar"])
                pend.extend((None, x) for x in stages[si + 1].get("bar_pend", []))
                state["opened"] = si + 1
                collect(f + L - 1)
            def lastidx(ff):
                s_, _, uu = seq[ff]
                return max(len(issued) - 1 - issued[::-1].index(f"{s_}:{nm}") for nm in uu["need"])
            w = []
            if lastidx(f) > covered:
                tgt = lastidx(f)
                for ff in range(f + 1, min(f + wait_every, n_real)):
                    if seq[ff][0] != si:
                        break
                    try:
                        tgt = max(tgt, lastidx(ff))
                    except ValueError:
                        break
                n = len(issued) - 1 - tgt
                assert n <= 15, n
                w.append(f"lgkmcnt({n})")
                covered = tgt
            if u.get("vm") is not None:
                npv = sum(1 for nm_, t_ in pend if t_.strip().startswith("buffer_load"))
                w.insert(0, f"vmcnt({u['vm'] - npv})")
            if w:
                a("s_waitcnt " + " ".join(w))
            if u.get("before"):
                a(u["before"])
            if state.get("defer") and not pend:
                n_ = self.o.get("npre", 7)
                pend.extend((None, x) for x in state["defer"][:n_])
                state["defer"] = state["defer"][n_:]
            collect(f + L)
            if state.get("mix"):
                k_ = state.pop("mix")
                head_, rest_ = pend[:k_], pend[k_:]
                pend[:] = [x for pr in zip(head_, rest_) for x in pr] + head_[len(rest_):] + rest_[len(head_):]
            nm_ = len(u["mf"])
            for k, m in enumerate(u["mf"]):
                a(m)
                left = nm_ - k
                if drain and gi >= gstar:
                    left += sum(len(uu["mf"]) for uu in stages[si]["uses"][gi + 1:])
                    extra = 2 * (nuse - 1 - gi)
                    emit(-(-(len(pend) + extra) // left) if left > 1 else len(pend))
                else:
                    emit(-(-len(pend) // left))
            if u.get("after"):
                items = [x for x in u["after"].split("\n") if x.strip()]
                if gi == nuse - 1:
                    for x in items:
                        a(x)
                else:
                    assert not pend
                    pend.extend((None, x) for x in items)
                    state["mix"] = len(items)
            if gi == nuse - 1 and stages[si].get("tail"):
                a(stages[si]["tail"])

    def prologue(self):
        a = self.a
        a(f"""
        s_cmp_ge_u32 s2, 256
        s_cbranch_scc1 L_exit
        {"v_mov_b32 v254, 0" if self.stamps else ""}
        {"v_mov_b32 v255, 0" if self.stamps else ""}
        {"s_mov_b32 s94, 0" if "probe" in self.o else ""}
        s_load_dwordx16 s[4:19], s[0:1], 0
        s_load_dwordx8 s[20:27], s[0:1], 64
        v_and_b32 v1, 63, v0
        v_lshrrev_b32 v2, 6, v0
        s_and_b32 s{S_XCD}, s2, 7
        v_readfirstlane_b32 s{S_WAVE}, v2
        s_lshr_b32 s{S_J}, s2, 3
        s_waitcnt lgkmcnt(0)
        s_load_dword s{S_TAG}, s[{P_WS}:{P_WS+1}], 0
        """)
        self.srd(R_WS, P_WS, WS_USED)
        self.srd(R_X, P_X, 2048 * 1280)
        self.srd(R_W2, P_W2, 1536 * 4096)
        if self.stamps or self.o.get("dbg"):
            a(f"s_cmp_lg_u32 s{S_WAVE}, 0\ns_cbranch_scc1 L_nost0")
            self.stamp(0, 4)
            a("L_nost0:")
        if self.o.get("pf_code"):
            self.code_prefetch()
        if self.o.get("prio"):
            a(f"""
            s_sub_u32 s{S_T0}, s{S_WAVE}, 4
            s_cmp_lt_u32 s{S_T0}, 3
            s_cbranch_scc1 L_noprio
            s_setprio 3
            L_noprio:
            """)
        a(f"""
        s_lshr_b32 s{S_T0}, s{S_XCD}, 1
        s_lshl_b32 s{S_T0}, s{S_T0}, 3
        s_lshr_b32 s{S_ST}, s{S_J}, 2
        s_add_u32 s{S_ST}, s{S_ST}, s{S_T0}
        s_and_b32 s{S_T0}, s{S_XCD}, 1
        s_lshl_b32 s{S_T0}, s{S_T0}, 2
        s_and_b32 s{S_DTILE}, s{S_J}, 3
        s_add_u32 s{S_DTILE}, s{S_DTILE}, s{S_T0}
        s_cmp_lt_u32 s{S_XCD}, 4
        s_cbranch_scc1 L_roleB
        """)

    V_W2 = 240

    def f_perm(self):
        a = self.a
        a(f"s_lshl_b32 s{S_M}, s{S_DTILE}, 1\ns_add_u32 s{S_M}, s{S_M}, s{S_ST}\ns_and_b32 s{S_M}, s{S_M}, 7")
        self.perm_setup(S_M, 12, 8, S_PERM, self.o.get("rotF"))

    def w2_setup(self):
        a = self.a
        V = self.V_W2
        self.f_perm()
        a(f"""
        v_lshrrev_b32 v{V}, 3, v1
        v_lshrrev_b32 v{V+1}, 4, v1
        v_lshlrev_b32 v{V+1}, 1, v{V+1}
        v_and_b32 v{V+2}, 7, v1
        v_xor_b32 v{V+1}, v{V+1}, v{V+2}
        v_lshlrev_b32 v{V+1}, 4, v{V+1}
        v_lshl_add_u32 v{V}, v{V}, 12, v{V+1}
        v_add_u32 v{V+1}, {32768-1024}, v{V}
        v_add_u32 v{V+2}, {2*(32768-1024)}, v{V}
        v_add_u32 v{V+3}, {3*(32768-1024)}, v{V}
        s_sub_u32 s{S_T0}, s{S_WAVE}, 5
        s_lshl_b32 s{S_B}, s{S_T0}, 13
        s_lshl_b32 s{S_A}, s{S_T0}, 18
        s_lshl_b32 s{S_T0}, s{S_ST}, 7
        s_add_u32 s{S_A}, s{S_A}, s{S_T0}
        """)

    def w2_issue(self):
        a = self.a
        V = self.V_W2
        a(self.perm_next(S_T0, S_PERM, 128 * 4096))
        a(f"s_add_u32 s{S_T0}, s{S_T0}, s{S_A}")
        for g in range(2):
            a(f"s_add_u32 m0, s{S_B}, {g*4096}")
            a(f"s_add_u32 s{S_T0}, s{S_T0}, {g*4*32768}")
            for i in range(4):
                a(f"buffer_load_dwordx4 v{V+i}, s[{R_W2}:{R_W2+3}], s{S_T0} offen offset:{i*1024} lds")
        a(f"s_add_u32 s{S_B}, s{S_B}, 16384\ns_and_b32 s{S_B}, s{S_B}, 0x1ffff")

    def w2_prefill(self, n):
        if n == 0:
            return
        a = self.a
        lp = a.label("pf")
        a(f"s_mov_b32 s{S_C}, 0\n{lp}:")
        self.w2_issue()
        a(f"s_add_u32 s{S_C}, s{S_C}, 1\ns_cmp_lt_u32 s{S_C}, {n}\ns_cbranch_scc1 {lp}")

    def if_wave56(self):
        a = self.a
        skip = a.label("n56")
        a(f"s_sub_u32 s{S_T0}, s{S_WAVE}, 5\ns_cmp_lt_u32 s{S_T0}, 2\ns_cbranch_scc0 {skip}")
        return skip

    def role_a(self):
        a = self.a
        a(f"L_roleA:\ns_mov_b32 s{S_FROMA}, 1")
        a(f"s_sub_u32 s{S_MT}, s{S_ST}, 16\ns_mov_b32 s{S_HG}, s{S_DTILE}")
        a(f"s_cmp_ge_u32 s{S_WAVE}, 4\ns_cbranch_scc1 L_A_loader")
        ACC, XF, WF, VXA, VWA = 128, 96, 64, 4, 6
        if self.o.get("ta1") or self.o.get("ta2"):
            self.start_prefetch()
        self.a_thread_map()
        a(f"""
        v_and_b32 v16, 15, v1
        v_lshrrev_b32 v17, 4, v1
        s_lshl_b32 s{S_T0}, s{S_WAVE}, 5
        v_add_u32 v18, s{S_T0}, v16
        v_lshrrev_b32 v19, 1, v16
        v_xor_b32 v19, v17, v19
        v_lshlrev_b32 v19, 4, v19
        v_lshl_add_u32 v{VXA}, v18, 7, v19
        v_xor_b32 v{VXA+1}, 64, v{VXA}
        v_lshrrev_b32 v18, 2, v16
        v_lshl_add_u32 v19, v17, 3, v18
        v_and_b32 v20, 1, v17
        v_lshl_or_b32 v20, v20, 2, v18
        v_lshlrev_b32 v19, 9, v19
        v_lshl_add_u32 v19, v20, 5, v19
        v_and_b32 v20, 3, v16
        v_lshl_add_u32 v19, v20, 3, v19
        v_add_u32 v{VWA}, {A_WOFF}, v19
        """)
        for n in range(1, 8):
            a(f"v_xor_b32 v{VWA+n}, {n<<5}, v{VWA}")
        for r in range(120):
            a(f"v_mov_b32 v{ACC+r}, 0")
        a(f"s_mov_b32 s{S_A}, 0\ns_mov_b32 s{S_B}, 0\ns_mov_b32 s{S_C}, {A_SLOT}\ns_waitcnt lgkmcnt(0)")
        a(f"s_add_u32 s{S_TAG}, s{S_TAG}, {TAG_INC:#x}")

        RING = 6
        D = 6

        def mk_stage(bar, virtual=False, head=None, tail=None):
            uses = []
            for g in range(30):
                ks, n = divmod(g, 15)
                wb = WF + 4 * (g % RING)
                reads = []
                if g == 0:
                    for rb in range(2):
                        reads.append((f"x0{rb}", f"ds_read_b128 {vr(XF+4*rb,4)}, v{VXA} offset:{rb*2048}"))
                if g == 13:
                    for rb in range(2):
                        reads.append((f"x1{rb}", f"ds_read_b128 {vr(XF+8+4*rb,4)}, v{VXA+1} offset:{rb*2048}"))
                off = ks * 16384 + (n >> 3) * 256
                reads.append((f"w{g}a", f"ds_read_b64_tr_b16 {vr(wb,2)}, v{VWA+(n&7)} offset:{off}"))
                reads.append((f"w{g}b", f"ds_read_b64_tr_b16 {vr(wb+2,2)}, v{VWA+(n&7)} offset:{off+2048}"))
                need = [f"w{g}b", f"x{ks}1"]
                mf = []
                for rb in range(2):
                    acc = vr(ACC + (n * 2 + rb) * 4, 4)
                    xf = vr(XF + ks * 8 + rb * 4, 4)
                    wf = vr(wb, 4)
                    if n < 5:
                        mf.append(f"v_mfma_f32_16x16x32_bf16 {acc}, {wf}, {xf}, {acc}")
                    else:
                        mf.append(f"v_mfma_f32_16x16x32_bf16 {acc}, {xf}, {wf}, {acc}")
                uses.append(dict(reads=reads, need=need, mf=mf))
            return dict(uses=uses, bar=bar, virtual=virtual, head=head, tail=tail)

        adv = "s_barrier"
        pre = [f"s_add_u32 s{S_B}, s{S_B}, 1", f"s_cmp_eq_u32 s{S_B}, 3", f"s_cselect_b32 s{S_B}, 0, s{S_B}",
               f"s_cselect_b32 s{S_T0}, {(-2*A_SLOT) & 0xffffffff:#x}, s{S_C}"]
        pre += [f"v_add_u32 v{r}, s{S_T0}, v{r}" for r in range(VXA, VWA + 8)]
        tail = f"s_add_u32 s{S_A}, s{S_A}, 1\ns_cmp_lt_u32 s{S_A}, 10\ns_cbranch_scc1 L_A_loop"
        head = "L_A_loop:\n"
        bar0 = "s_barrier"
        ta2 = self.o.get("ta2")
        if ta2 == 1:
            a(self.pf_rest())
        elif ta2 == 2:
            bar0 += "\n" + self.pf_rest()
        elif ta2:
            head += f"s_cmp_lg_u32 s{S_A}, {ta2-2}\ns_cbranch_scc1 L_A_npf\n" + self.pf_rest() + "L_A_npf:\n"
        self.pipeline([mk_stage(bar0, head=head, tail=tail), dict(mk_stage(adv, virtual=True), pre=pre)], 5, 30 - 3, wait_every=self.o.get('we', 2))
        self.stamp(2, 16)
        PK, VV, ONES, KVD, ZD = 16, 36, 56, 64, 116
        a("s_waitcnt lgkmcnt(0)\ns_nop 7")
        a(f"s_mov_b32 s{S_K0}, {LOG2E:#x}\ns_mov_b32 s{S_K0+1}, {LOG2E:#x}\ns_mov_b32 s{S_K0+2}, {f2u(1e-6):#x}")

        def phi(base, n, t):
            for i in range(0, n, 4):
                r = base + i
                a(f"v_pk_mul_f32 {vr(t,2)}, {vr(r,2)}, s[{S_K0}:{S_K0+1}]")
                a(f"v_pk_mul_f32 {vr(t+2,2)}, {vr(r+2,2)}, s[{S_K0}:{S_K0+1}]")
                for k in range(4):
                    a(f"v_exp_f32_e64 v{t+k}, v{t+k} clamp")
                for k in range(4):
                    a(f"v_max_f32 v{r+k}, s{S_K0+2}, v{r+k}")
                a(f"v_pk_add_f32 {vr(r,2)}, {vr(r,2)}, {vr(t,2)}")
                a(f"v_pk_add_f32 {vr(r+2,2)}, {vr(r+2,2)}, {vr(t+2,2)}")

        def pack(dst, src0, src1):
            a(f"v_cvt_pk_bf16_f32 v{dst}, v{src0}, v{src0+1}\nv_cvt_pk_bf16_f32 v{dst+1}, v{src0+2}, v{src0+3}")
            if src1 is None:
                a(f"v_mov_b32 v{dst+2}, 0\nv_mov_b32 v{dst+3}, 0")
            else:
                a(f"v_cvt_pk_bf16_f32 v{dst+2}, v{src1}, v{src1+1}\nv_cvt_pk_bf16_f32 v{dst+3}, v{src1+2}, v{src1+3}")

        for b in range(5):
            pack(VV + 4 * b, ACC + (10 + b) * 8, ACC + (10 + b) * 8 + 4)
        for k in range(4):
            a(f"v_mov_b32 v{ONES+k}, 0x3f803f80")
        phi(ACC + 40, 40, 60)
        for b in range(5):
            pack(PK + 4 * b, ACC + (5 + b) * 8, ACC + (5 + b) * 8 + 4)
        a("s_nop 1")
        ZD = ACC + 80
        blocks = [(x, y) for x in range(5) for y in range(5) if abs(x - y) <= 1]
        for (x, y) in blocks:
            a(f"v_mfma_f32_16x16x32_bf16 {vr(KVD+4*(2*x+y),4)}, {vr(PK+4*x,4)}, {vr(VV+4*y,4)}, 0")
        for x in range(5):
            a(f"v_mfma_f32_16x16x32_bf16 {vr(ZD+4*x,4)}, {vr(ONES,4)}, {vr(PK+4*x,4)}, 0")
        a(f"""
        s_mul_i32 s{S_T0}, s{S_WAVE}, {EXCH_ST}
        s_add_u32 s{S_T0}, s{S_T0}, {EXCH}
        v_lshlrev_b32 v60, 4, v1
        v_add_u32 v60, s{S_T0}, v60
        v_and_b32 v61, 15, v1
        v_lshlrev_b32 v61, 2, v61
        v_add_u32 v61, s{S_T0}, v61
        s_nop 3
        """)
        for i in range(13):
            a(f"ds_write_b128 v60, {vr(KVD+4*i,4)} offset:{i*1024}")
        for x in range(5):
            a(f"ds_write_b32 v61, v{ZD+4*x} offset:{13312+64*x}")
        a("s_waitcnt lgkmcnt(0)\ns_barrier")
        self.a_reduce_publish(64)
        a("s_waitcnt vmcnt(0)\ns_barrier")
        PQ = 16
        phi(ACC, 40, 60)
        for ts in range(3):
            for rb in range(2):
                pack(PQ + (ts * 2 + rb) * 4, ACC + (2 * ts * 2 + rb) * 4, None if ts == 2 else ACC + ((2 * ts + 1) * 2 + rb) * 4)
        self.uw_srd()
        a("v_lshlrev_b32 v60, 4, v1\ns_barrier")
        self.wot_preload(60)
        a("s_barrier")
        a(f"""
        v_and_b32 v63, 15, v1
        v_lshlrev_b32 v63, 2, v63
        s_lshl_b32 s{S_T0}, s{S_MT}, 7
        s_lshl_b32 s{S_T0+1}, s{S_WAVE}, 5
        s_add_u32 s{S_T0}, s{S_T0}, s{S_T0+1}
        s_lshl_b32 s{S_T0}, s{S_T0}, 2
        s_add_u32 s{S_T0}, s{S_T0}, {G_OFF}
        buffer_load_dword v62, v63, s[{R_WS}:{R_WS+3}], s{S_T0} offen sc1
        buffer_load_dword v61, v63, s[{R_WS}:{R_WS+3}], s{S_T0} offen offset:64 sc1
        """)
        self.a_gather(64)
        a("s_waitcnt lgkmcnt(0)\ns_barrier")
        self.stamp(4, 40)
        FR = 64
        a("v_lshlrev_b32 v60, 4, v1\nv_add_u32 v60, " + str(KVT) + ", v60")
        used = [0, 2, 3, 4, 5, 7, 8, 9, 10, 11, 12, 13]
        for f in used:
            a(f"ds_read_b128 {vr(FR+4*f,4)}, v60 offset:{f*1024}")
        NUM, DEN = 128, 120
        kts = {0: [0], 1: [0, 1], 2: [0, 1], 3: [1, 2], 4: [1, 2]}
        a(f"""
        v_lshrrev_b32 v40, 4, v1
        v_cmp_gt_u32 s[{S_MSK}:{S_MSK+1}], 1, v40
        v_cmp_gt_u32 s[{S_MSK+2}:{S_MSK+3}], 2, v40
        v_cmp_gt_u32 s[{S_MSK+4}:{S_MSK+5}], 3, v40
        s_waitcnt lgkmcnt(0)
        """)
        for rb in range(2):
            for ts in range(3):
                c = "0" if ts == 0 else vr(DEN + 4 * rb, 4)
                a(f"v_mfma_f32_16x16x32_bf16 {vr(DEN+4*rb,4)}, {vr(FR+4*(11+ts),4)}, {vr(PQ+(ts*2+rb)*4,4)}, {c}")
        for rb in range(2):
            for b in range(5):
                for i, ts in enumerate(kts[b]):
                    d = vr(NUM + (rb * 5 + b) * 4, 4)
                    c = "0" if i == 0 else d
                    a(f"v_mfma_f32_16x16x32_bf16 {d}, {vr(FR+4*(2*b+ts),4)}, {vr(PQ+(ts*2+rb)*4,4)}, {c}")
        for rb in range(2):
            for h in range(4):
                a(f"v_add_f32 v{DEN+4*rb+h}, s{S_K0+2}, v{DEN+4*rb+h}")
        for rb in range(2):
            for h in range(4):
                a(f"v_rcp_f32 v{DEN+4*rb+h}, v{DEN+4*rb+h}")
        a("s_nop 0")
        gv = {0: 62, 1: 61}
        for rb in range(2):
            for h in range(4):
                a(f"v_mul_f32 v{DEN+4*rb+h}, v{gv[rb]}, v{DEN+4*rb+h}")
        a(f"""
        s_lshl_b32 s{S_T0}, s{S_MT}, 3
        s_lshl_b32 s{S_T0+1}, s{S_WAVE}, 1
        s_add_u32 s{S_T0}, s{S_T0}, s{S_T0+1}
        s_mul_i32 s{S_T0}, s{S_T0}, {GO_ST}
        s_add_u32 s{S_T0}, s{S_T0}, {GO}
        s_lshl_b32 s{S_T0+1}, s{S_HG}, 11
        s_add_u32 s{S_T0+1}, s{S_T0+1}, s{S_T0}
        s_lshl_b32 s{S_T0+2}, s{S_HG}, 9
        s_add_u32 s{S_T0+2}, s{S_T0+2}, s{S_T0}
        s_add_u32 s{S_T0+2}, s{S_T0+2}, 16384
        v_lshlrev_b32 v40, 4, v1
        v_lshlrev_b32 v41, 3, v1
        """)
        for rb in range(2):
            d = DEN + 4 * rb
            a(f"v_cndmask_b32 v44, v{d+1}, v{d}, s[{S_MSK}:{S_MSK+1}]")
            a(f"v_cndmask_b32 v45, v{d+2}, v{d+1}, s[{S_MSK+2}:{S_MSK+3}]")
            a(f"v_cndmask_b32 v46, v{d+3}, v{d+2}, s[{S_MSK+4}:{S_MSK+5}]")
            sc = [d, 44, 45, 46, d + 3]
            for b in range(5):
                for k in range(4):
                    r = NUM + (rb * 5 + b) * 4 + k
                    a(f"v_mul_f32 v{r}, v{sc[b]}, v{r}")
            o = 16 + rb * 12
            n0 = NUM + rb * 20
            pack(o, n0, n0 + 4)
            pack(o + 4, n0 + 8, n0 + 12)
            a(f"v_cvt_pk_bf16_f32 v{o+8}, v{n0+16}, v{n0+17}\nv_cvt_pk_bf16_f32 v{o+9}, v{n0+18}, v{n0+19}")
            a(f"buffer_store_dwordx4 {vr(o,4)}, v40, s[{R_WS}:{R_WS+3}], s{S_T0+1} offen sc1")
            a(f"buffer_store_dwordx4 {vr(o+4,4)}, v40, s[{R_WS}:{R_WS+3}], s{S_T0+1} offen offset:1024 sc1")
            a(f"buffer_store_dwordx2 {vr(o+8,2)}, v41, s[{R_WS}:{R_WS+3}], s{S_T0+2} offen sc1")
            if rb == 0:
                a(f"s_add_u32 s{S_T0+1}, s{S_T0+1}, {GO_ST}\ns_add_u32 s{S_T0+2}, s{S_T0+2}, {GO_ST}")
        self.stamp(5, 40)
        a("s_branch L_F_comp")

        a("L_A_loader:")
        VX, VW = 4, 8
        self.srd(R_W, P_WQKV, 640 * 3840)
        a(f"""
        s_sub_u32 s{S_D}, s{S_WAVE}, 4
        v_lshrrev_b32 v16, 3, v1
        v_lshrrev_b32 v17, 4, v1
        v_and_b32 v18, 7, v1
        v_xor_b32 v17, v17, v18
        v_lshlrev_b32 v17, 4, v17
        v_mul_u32_u24 v16, 1280, v16
        v_add_u32 v{VX}, v16, v17
        v_xor_b32 v18, 64, v{VX}
        v_add_u32 v{VX+1}, {8*1280-1024}, v18
        v_add_u32 v{VX+2}, {2*(8*1280-1024)}, v{VX}
        v_add_u32 v{VX+3}, {3*(8*1280-1024)}, v18
        s_lshl_b32 s{S_T0}, s{S_MT}, 7
        s_lshl_b32 s{S_T0+1}, s{S_D}, 5
        s_add_u32 s{S_T0}, s{S_T0}, s{S_T0+1}
        s_mul_i32 s{S_A}, s{S_T0}, 1280
        s_lshl_b32 s{S_C}, s{S_D}, 12
        """)
        def issue_x():
            a(f"s_mov_b32 m0, s{S_C}\ns_nop 0")
            for i in range(4):
                a(f"buffer_load_dwordx4 v{VX+i}, s[{R_X}:{R_X+3}], s{S_A} offen offset:{i*1024} lds")
            a(f"s_add_u32 s{S_A}, s{S_A}, 128")

        def issue_w():
            for g in range(2):
                a(f"s_lshl_b32 s{S_T0}, s{S_D}, 12\ns_add_u32 s{S_T0}, s{S_T0}, s{S_C}\ns_add_u32 m0, s{S_T0}, {A_WOFF + g*4096}\ns_nop 0")
                for i in range(4):
                    a(f"buffer_load_dwordx4 v{VW+4*g+i}, s[{R_W}:{R_W+3}], s{S_B} offen offset:{i*1024} lds")
            a(f"s_add_u32 s{S_B}, s{S_B}, {64*3840}")

        def next_slot():
            a(f"s_add_u32 s{S_C}, s{S_C}, {A_SLOT}\ns_cmp_ge_u32 s{S_C}, {3*A_SLOT}\ns_cselect_b32 s{S_T0}, {3*A_SLOT}, 0\ns_sub_u32 s{S_C}, s{S_C}, s{S_T0}")

        issue_x()
        a(f"""
        v_lshrrev_b32 v16, 5, v1
        v_bfe_u32 v17, v1, 1, 4
        v_and_b32 v18, 1, v1
        v_lshlrev_b32 v18, 4, v18
        v_mul_u32_u24 v19, 3840, v16
        v_add_u32 v18, v18, v19
        """)
        for i in (0, 1, 4, 5):
            sig = (2 * (i & 1)) | ((i >> 2) << 2)
            a(f"""
            v_or_b32 v19, {sig}, v16
            v_xor_b32 v19, v17, v19
            v_min_u32 v19, 14, v19
            v_mul_u32_u24 v20, 13, v19
            v_lshrrev_b32 v20, 6, v20
            v_mul_u32_u24 v20, 1120, v20
            v_lshl_add_u32 v19, v19, 5, v20
            v_add_u32 v19, v19, v18
            v_add_u32 v{VW+i}, {2*i*3840 - (i&3)*1024}, v19
            v_add_u32 v{VW+i+2}, {2*(i+2)*3840 - ((i+2)&3)*1024}, v19
            """)
        a(f"""
        s_mul_i32 s{S_B}, s{S_HG}, 160
        s_mul_i32 s{S_T0}, s{S_D}, {16*3840}
        s_add_u32 s{S_B}, s{S_B}, s{S_T0}
        """)
        issue_w()
        for _ in range(2):
            next_slot()
            issue_x()
            issue_w()
        a(f"v_lshlrev_b32 v16, 4, v1\ns_lshl_b32 s{S_T0}, s{S_D}, 12\ns_add_u32 s{S_T0}, s{S_T0}, {KVT}\nv_add_u32 v16, s{S_T0}, v16")
        a("v_mov_b32 v20, 0\nv_mov_b32 v21, 0\nv_mov_b32 v22, 0\nv_mov_b32 v23, 0")
        for i in range(4):
            a(f"ds_write_b128 v16, v[20:23] offset:{i*1024}")
        a(f"s_waitcnt lgkmcnt(0)\ns_add_u32 s{S_TAG}, s{S_TAG}, {TAG_INC:#x}")
        a("s_waitcnt vmcnt(24)\ns_barrier")
        self.stamp(1, 16)
        a(f"s_mov_b32 s{S_CNT}, 1\nL_A_lloop:")
        a("s_waitcnt vmcnt(12)\ns_barrier")
        self.stamp(16, 16, dyn=S_CNT)
        next_slot()
        issue_x()
        issue_w()
        a(f"s_add_u32 s{S_CNT}, s{S_CNT}, 1\ns_cmp_le_u32 s{S_CNT}, 7\ns_cbranch_scc1 L_A_lloop")
        tw = 3 if self.o.get("tw2") else 0
        a(f"s_waitcnt vmcnt(12)\ns_barrier")
        if tw:
            self.w2_touch()
        self.stamp(24, 16)
        a(f"s_waitcnt vmcnt({tw})\ns_barrier")
        self.stamp(25, 16)
        a("s_barrier")
        self.stamp(26, 16)
        nA0 = self.o.get("nA0", 4)
        self.w2_setup()
        skip0 = self.if_wave56()
        self.w2_prefill(nA0)
        a(f"{skip0}:")
        self.a_thread_map()
        a("s_barrier")
        a(f"s_cmp_eq_u32 s{S_WAVE}, 7\ns_cbranch_scc1 L_A_poller")
        self.a_reduce_publish(64)
        a("s_waitcnt vmcnt(0)\ns_barrier")
        skip = self.if_wave56()
        a("s_nop 7\ns_nop 7")
        self.w2_prefill(8 - nA0)
        a("s_barrier\ns_barrier")
        self.a_gather(64)
        a("s_waitcnt lgkmcnt(0)\ns_barrier")
        a("s_branch L_F_loader")
        a(f"{skip}:\ns_barrier\ns_barrier")
        self.a_gather(64)
        a("s_waitcnt lgkmcnt(0)\ns_barrier")
        a("s_branch L_F_u4")
        a("L_A_poller:\ns_barrier")
        a(f"s_lshl_b32 s{S_T0}, s{S_HG}, 4\ns_add_u32 s{S_T0}, s{S_T0}, s{S_MT}\ns_mul_i32 s{S_T0}, s{S_T0}, {FS}\ns_add_u32 s{S_T0}, s{S_T0}, {F_KV}")
        self.flag_store(S_T0, 16)
        self.stamp(3, 16)
        a(f"s_mul_i32 s{S_T0}, s{S_DTILE}, {FS}\ns_add_u32 s{S_T0}, s{S_T0}, {F_WOT}\nv_mov_b32 v16, s{S_T0}")
        self.poll([16], 18)
        a("s_barrier")
        a(f"""
        v_and_b32 v16, 15, v1
        s_lshl_b32 s{S_T0}, s{S_HG}, 4
        v_add_u32 v16, s{S_T0}, v16
        v_mul_u32_u24 v16, {FS}, v16
        v_add_u32 v16, {F_KV}, v16
        v_and_b32 v17, 7, v1
        s_lshl_b32 s{S_T0}, s{S_MT}, 3
        v_add_u32 v17, s{S_T0}, v17
        v_mul_u32_u24 v17, {FS}, v17
        v_add_u32 v17, {F_LN}, v17
        v_cmp_gt_u32 vcc, 32, v1
        s_nop 1
        v_cndmask_b32 v16, v17, v16, vcc
        """)
        self.poll([16], 18)
        self.stamp(13, 16)
        a("s_barrier\ns_barrier")
        a("s_branch L_F_poller")

    def start_prefetch(self):
        a = self.a
        self.srd(R_W, P_WQKV, 640 * 3840)
        a(f"""
        s_lshl_b32 s{S_T0}, s{S_J}, 2
        s_add_u32 s{S_T0}, s{S_T0}, s{S_WAVE}
        v_lshrrev_b32 v16, 2, v1
        v_and_b32 v17, 3, v1
        v_mul_u32_u24 v16, 1280, v16
        v_lshl_add_u32 v16, v17, 7, v16
        s_lshr_b32 s{S_T0+2}, s{S_MT}, 3
        s_lshl_b32 s{S_T0+2}, s{S_T0+2}, 7
        s_add_u32 s{S_T0+2}, s{S_T0+2}, s{S_T0}
        s_mul_i32 s{S_DT}, s{S_T0+2}, {8*1280}
        v_lshrrev_b32 v19, 4, v1
        v_and_b32 v17, 15, v1
        v_min_u32 v17, 14, v17
        v_mul_u32_u24 v18, 13, v17
        v_lshrrev_b32 v18, 6, v18
        v_mul_u32_u24 v18, 640, v18
        v_lshl_add_u32 v18, v17, 7, v18
        v_mul_u32_u24 v19, 3840, v19
        v_add_u32 v112, v18, v19
        s_lshr_b32 s{S_T0+2}, s{S_HG}, 2
        s_mul_i32 s{S_T0+2}, s{S_T0+2}, 640
        s_mul_i32 s{S_FT}, s{S_T0}, {2*3840}
        s_add_u32 s{S_FT}, s{S_FT}, s{S_T0+2}
        """)
        if self.o.get("ta1"):
            a(f"""
            s_mov_b32 exec_hi, 0
            buffer_load_dword v253, v112, s[{R_W}:{R_W+3}], s{S_FT} offen
            buffer_load_dword v253, v16, s[{R_X}:{R_X+3}], s{S_DT} offen
            s_mov_b32 exec_hi, -1
            """)
        a(f"""
        s_mul_i32 s{S_FT}, s{S_T0}, {3*3840}
        s_add_u32 s{S_FT}, s{S_FT}, s{S_T0+2}
        s_add_u32 s{S_FT}, s{S_FT}, {256*3840}
        v_lshrrev_b32 v16, 3, v1
        v_and_b32 v17, 7, v1
        v_min_u32 v17, 5, v17
        v_mul_u32_u24 v16, 1280, v16
        v_lshl_add_u32 v113, v17, 7, v16
        s_add_u32 s{S_DT}, s{S_DT}, 512
        """)

    def pf_rest(self):
        return f"""s_mov_b32 exec_hi, 0xffff
        buffer_load_dword v253, v112, s[{R_W}:{R_W+3}], s{S_FT} offen
        s_mov_b32 exec_hi, -1
        buffer_load_dword v253, v113, s[{R_X}:{R_X+3}], s{S_DT} offen
        """

    def w2_touch(self):
        a = self.a
        self.srd(R_W2, P_W2, 1536 * 4096)
        a(f"""
        v_lshlrev_b32 v48, 7, v1
        s_lshl_b32 s{S_T0}, s{S_MT}, 3
        s_add_u32 s{S_T0}, s{S_T0}, s{S_HG}
        s_lshl_b32 s{S_T0}, s{S_T0}, 2
        s_add_u32 s{S_T0}, s{S_T0}, s{S_D}
        s_mul_i32 s{S_T0}, s{S_T0}, 12288
        buffer_load_dword v253, v48, s[{R_W2}:{R_W2+3}], s{S_T0} offen
        s_add_u32 s{S_T0}, s{S_T0}, 8192
        s_mov_b32 exec_hi, 0
        buffer_load_dword v253, v48, s[{R_W2}:{R_W2+3}], s{S_T0} offen
        """)
        self.srd(R_P, P_WO, 640 * 1280)
        a(f"""
        s_lshl_b32 s{S_T0}, s{S_MT}, 3
        s_add_u32 s{S_T0}, s{S_T0}, s{S_HG}
        s_lshl_b32 s{S_T0}, s{S_T0}, 2
        s_add_u32 s{S_T0}, s{S_T0}, s{S_D}
        s_mul_i32 s{S_T0}, s{S_T0}, 1664
        s_mov_b32 exec_lo, 0x1fff
        buffer_load_dword v253, v48, s[{R_P}:{R_P+3}], s{S_T0} offen
        s_mov_b64 exec, -1
        """)

    def code_prefetch(self):
        a = self.a
        a(f"""
        s_cmp_lg_u32 s{S_WAVE}, 3
        s_cbranch_scc1 L_nocpf
        s_cmp_ge_u32 s{S_J}, 4
        s_cbranch_scc1 L_nocpf
        s_getpc_b64 s[{S_T0}:{S_T0+1}]
        L_pcref:
        s_lshl_b32 s{S_T0+2}, s{S_J}, 13
        v_lshlrev_b32 v4, 7, v1
        v_add_u32 v4, s{S_T0+2}, v4
        v_min_u32 v4, L_end-L_pcref, v4
        global_load_dword v253, v4, s[{S_T0}:{S_T0+1}]
        L_nocpf:
        """)

    def a_thread_map(self):
        a = self.a
        a(f"""
        v_mul_u32_u24 v16, 625, v0
        v_lshrrev_b32 v16, 16, v16
        v_mul_u32_u24 v17, 105, v16
        v_sub_u32 v17, v0, v17
        v_mul_u32_u24 v18, 205, v17
        v_lshrrev_b32 v18, 10, v18
        v_mul_u32_u24 v19, 5, v18
        v_sub_u32 v19, v17, v19
        v_mad_u32_u24 v19, v16, 5, v19
        v_mad_u32_u24 v20, v16, 20, v18
        v_lshrrev_b32 v21, 2, v19
        v_and_b32 v22, 3, v19
        v_lshrrev_b32 v23, 4, v20
        v_and_b32 v20, 15, v20
        v_lshl_add_u32 v20, v22, 4, v20
        v_lshl_add_u32 v2, v21, 1, v23
        v_lshlrev_b32 v2, 6, v2
        v_add_u32 v2, v2, v20
        v_lshlrev_b32 v2, 4, v2
        v_lshlrev_b32 v3, 4, v19
        v_add_u32 v3, 13312, v3
        v_cmp_lt_u32 vcc, 99, v17
        v_lshrrev_b32 v24, 1, v21
        v_and_b32 v21, 1, v21
        v_cndmask_b32 v2, v2, v3, vcc
        v_lshl_add_u32 v3, v23, 1, v24
        v_add_u32 v24, 11, v24
        v_lshl_add_u32 v22, v22, 4, v16
        v_cndmask_b32 v3, v3, v24, vcc
        v_cndmask_b32 v20, v20, v22, vcc
        v_lshl_add_u32 v3, v3, 6, v20
        v_lshlrev_b32 v3, 4, v3
        v_lshl_add_u32 v3, v21, 3, v3
        v_add_u32 v3, {KVT}, v3
        v_mov_b32 v25, 2
        v_cndmask_b32 v25, 1, v25, vcc
        v_mov_b32 v16, 420
        v_cmp_gt_u32 vcc, v16, v0
        v_lshlrev_b32 v14, 4, v0
        s_nop 0
        v_cndmask_b32 v15, 0, v25, vcc
        v_cndmask_b32 v2, 0, v2, vcc
        v_add_u32 v2, {EXCH}, v2
        """)

    def a_reduce_publish(self, T):
        a = self.a
        for w in range(4):
            a(f"ds_read_b128 {vr(T+4*w,4)}, v2 offset:{w*EXCH_ST}")
        a(f"""
        s_lshl_b32 s{S_T0}, s{S_HG}, 4
        s_add_u32 s{S_T0}, s{S_T0}, s{S_MT}
        s_mul_i32 s{S_T0}, s{S_T0}, {KVP_ST}
        s_add_u32 s{S_T0}, s{S_T0}, {KVP}
        v_cmp_ne_u32 vcc, 0, v15
        s_waitcnt lgkmcnt(0)
        v_pk_add_f32 {vr(T,2)}, {vr(T,2)}, {vr(T+4,2)}
        v_pk_add_f32 {vr(T+2,2)}, {vr(T+2,2)}, {vr(T+6,2)}
        v_pk_add_f32 {vr(T+8,2)}, {vr(T+8,2)}, {vr(T+12,2)}
        v_pk_add_f32 {vr(T+10,2)}, {vr(T+10,2)}, {vr(T+14,2)}
        v_pk_add_f32 {vr(T,2)}, {vr(T,2)}, {vr(T+8,2)}
        v_pk_add_f32 {vr(T+2,2)}, {vr(T+2,2)}, {vr(T+10,2)}
        s_mov_b64 exec, vcc
        buffer_store_dwordx4 {vr(T,4)}, v14, s[{R_WS}:{R_WS+3}], s{S_T0} offen sc1
        s_mov_b64 exec, -1
        """)

    def a_gather(self, T, extra=0, hook=None):
        a = self.a
        a(f"s_mul_i32 s{S_T0+1}, s{S_HG}, {16*KVP_ST}\ns_add_u32 s{S_T0+1}, s{S_T0+1}, {KVP}")
        rot = self.o.get("rotG")
        if rot:
            a(f"s_lshl_b32 s{S_T0+2}, s{S_MT}, 1")
        else:
            a(f"s_mov_b32 s{S_T0+2}, 0")
        a("v_cmp_ne_u32 vcc, 0, v15\ns_nop 1\ns_mov_b64 exec, vcc")
        for m in range(16):
            a(f"s_and_b32 s{S_T0+2}, s{S_T0+2}, 15\ns_mul_i32 s{S_T0}, s{S_T0+2}, {KVP_ST}\ns_add_u32 s{S_T0}, s{S_T0}, s{S_T0+1}\ns_add_u32 s{S_T0+2}, s{S_T0+2}, 1")
            a(f"buffer_load_dwordx4 {vr(T+4*m,4)}, v14, s[{R_WS}:{R_WS+3}], s{S_T0} offen sc1")
        a("s_mov_b64 exec, -1")
        if hook:
            hook()
        for m in range(0, 16, 2):
            a(f"s_waitcnt vmcnt({14-m+extra})")
            for h in (0, 2):
                a(f"v_pk_add_f32 {vr(T+4*m+h,2)}, {vr(T+4*m+h,2)}, {vr(T+4*(m+1)+h,2)}")
            if m >= 2:
                for h in (0, 2):
                    a(f"v_pk_add_f32 {vr(T+h,2)}, {vr(T+h,2)}, {vr(T+4*m+h,2)}")
        a(f"""
        v_cvt_pk_bf16_f32 v{T}, v{T}, v{T+1}
        v_cvt_pk_bf16_f32 v{T+1}, v{T+2}, v{T+3}
        v_cmp_ne_u32 vcc, 0, v15
        v_cmp_eq_u32 s[{S_T0}:{S_T0+1}], 2, v15
        s_nop 1
        s_mov_b64 exec, vcc
        ds_write_b64 v3, {vr(T,2)}
        s_mov_b64 exec, s[{S_T0}:{S_T0+1}]
        ds_write_b64 v3, {vr(T,2)} offset:64
        ds_write_b64 v3, {vr(T,2)} offset:128
        ds_write_b64 v3, {vr(T,2)} offset:192
        s_mov_b64 exec, -1
        """)

    def role_b(self):
        a = self.a
        a(f"L_roleB:\ns_mov_b32 s{S_FROMA}, 0")
        XR, GR, B1R = 16, 26, 36
        a(f"""
        s_mov_b32 s{S_T0}, s{S_XCD}
        s_lshl_b32 s{S_T0+1}, s{S_T0}, 5
        s_add_u32 s{S_T0+1}, s{S_T0+1}, s{S_J}
        s_lshr_b32 s{S_KST}, s{S_T0+1}, 1
        s_and_b32 s{S_PAR}, s{S_T0+1}, 1
        s_mul_i32 s{S_FT}, s{S_J}, 205
        s_lshr_b32 s{S_FT}, s{S_FT}, 10
        s_mov_b32 s{S_M}, s{S_FT}
        s_mul_i32 s{S_DT}, s{S_FT}, 5
        s_sub_u32 s{S_DT}, s{S_J}, s{S_DT}
        s_mul_i32 s{S_T0}, s{S_T0}, 6
        s_add_u32 s{S_FT}, s{S_FT}, s{S_T0}
        s_lshl_b32 s{S_T0}, s{S_KST}, 5
        s_lshl_b32 s{S_T0+1}, s{S_PAR}, 3
        s_add_u32 s{S_T0}, s{S_T0}, s{S_T0+1}
        s_and_b32 s{S_T0+1}, s{S_WAVE}, 3
        s_lshl_b32 s{S_T0+1}, s{S_T0+1}, 1
        s_add_u32 s{S_T0}, s{S_T0}, s{S_T0+1}
        s_lshr_b32 s{S_T0+1}, s{S_WAVE}, 2
        s_lshl_b32 s{S_T0+1}, s{S_T0+1}, 4
        s_add_u32 s{S_T0}, s{S_T0}, s{S_T0+1}
        s_mul_i32 s{S_T0}, s{S_T0}, 1280
        v_lshrrev_b32 v2, 5, v1
        v_and_b32 v3, 31, v1
        v_lshlrev_b32 v3, 3, v3
        v_mad_u32_u24 v4, v2, s{S_T0+2}, v3
        """.replace(f"v_mad_u32_u24 v4, v2, s{S_T0+2}, v3", "v_mul_u32_u24 v4, 1280, v2\nv_add_u32 v4, v4, v3"))
        for c in range(5):
            a(f"buffer_load_dwordx2 {vr(XR+2*c,2)}, v4, s[{R_X}:{R_X+3}], s{S_T0} offen offset:{c*256}")
        self.srd(R_M, P_GATE, 1280)
        for c in range(5):
            a(f"buffer_load_dwordx2 {vr(GR+2*c,2)}, v3, s[{R_M}:{R_M+3}], 0 offen offset:{c*256}")
        self.srd(R_OUT, P_B1, 3072)
        a(f"v_lshrrev_b32 v5, 4, v1\nv_lshlrev_b32 v5, 3, v5\ns_lshl_b32 s{S_T0}, s{S_FT}, 7")
        for b in range(4):
            a(f"buffer_load_dwordx2 {vr(B1R+2*b,2)}, v5, s[{R_OUT}:{R_OUT+3}], s{S_T0} offen offset:{b*32}")
        VS0, VS1, VPF = 6, 7, 8
        self.srd(R_W, P_W1, 2048 * 3072)
        a(f"""
        v_lshrrev_b32 v12, 3, v1
        v_lshrrev_b32 v13, 4, v1
        v_lshlrev_b32 v13, 1, v13
        v_and_b32 v14, 7, v1
        v_xor_b32 v13, v13, v14
        v_lshlrev_b32 v13, 4, v13
        v_mul_u32_u24 v12, 3072, v12
        v_add_u32 v{VPF}, v12, v13
        v_add_u32 v{VPF+1}, {8*3072-1024}, v{VPF}
        v_add_u32 v{VPF+2}, {2*(8*3072-1024)}, v{VPF}
        v_add_u32 v{VPF+3}, {3*(8*3072-1024)}, v{VPF}
        """)
        self.perm_setup(S_M, 16, 6, S_PERM, self.o.get("rotB"))
        N1 = self.o.get("n1", 8)

        def w1_issue():
            t = self.perm_next(S_T0, S_PERM, 128 * 3072)
            t += f"s_mov_b32 m0, s{S_B}\ns_add_u32 s{S_T0}, s{S_T0}, s{S_A}\n"
            for i in range(4):
                t += f"buffer_load_dwordx4 v{VPF+i}, s[{R_W}:{R_W+3}], s{S_T0} offen offset:{i*1024} lds\n"
            t += f"s_add_u32 s{S_B}, s{S_B}, 16384\n"
            return t
        pf = f"""
        s_cmp_lt_u32 s{S_WAVE}, 4
        s_cbranch_scc1 L_B_nopf
        s_cmp_ge_u32 s{S_J}, 30
        s_cbranch_scc1 L_B_nopf
        s_sub_u32 s{S_T0}, s{S_WAVE}, 4
        s_lshl_b32 s{S_B}, s{S_T0}, 12
        s_mul_i32 s{S_A}, s{S_T0}, {32*3072}
        s_lshl_b32 s{S_T0}, s{S_FT}, 7
        s_add_u32 s{S_A}, s{S_A}, s{S_T0}
        L_B_pf:
        """ + w1_issue() + f"""
        s_cmp_lt_u32 s{S_B}, {N1*16384}
        s_cbranch_scc1 L_B_pf
        """
        NREG = self.o.get("nreg", 0)
        assert NREG == 0 or N1 == 8
        for k in range(NREG):
            if k == 4:
                pf += "s_waitcnt vmcnt(40)\n"
            pf += self.perm_next(S_T0, S_PERM, 128 * 3072) + f"s_add_u32 s{S_T0}, s{S_T0}, s{S_A}\n"
            for i in range(4):
                pf += f"buffer_load_dwordx4 {vr(64+16*k+4*i,4)}, v{VPF+i}, s[{R_W}:{R_W+3}], s{S_T0} offen offset:{i*1024}\n"
        def w1_touch(part):
            lab = a.label("nt")
            a(f"""
            s_cmp_lt_u32 s{S_WAVE}, 4
            s_cbranch_scc1 {lab}
            s_lshl_b32 s{S_T0}, s{S_J}, 2
            s_add_u32 s{S_T0}, s{S_T0}, s{S_WAVE}
            s_sub_u32 s{S_T0}, s{S_T0}, {4 - part*128}
            s_mul_i32 s{S_T0}, s{S_T0}, {8*3072}
            s_mul_i32 s{S_T0+1}, s{S_XCD}, 768
            s_add_u32 s{S_T0}, s{S_T0}, s{S_T0+1}
            buffer_load_dword v253, v7, s[{R_W}:{R_W+3}], s{S_T0} offen
            {lab}:
            """.replace(f"s_sub_u32 s{S_T0}, s{S_T0}, {4 - part*128}", f"s_add_u32 s{S_T0}, s{S_T0}, {(part*128 - 4) & 0xffffffff:#x}"))
        a("v_and_b32 v7, 7, v1\nv_min_u32 v7, 5, v7\nv_lshl_add_u32 v7, v7, 7, v12")
        if self.o.get("late_w1"):
            if self.o.get("tb1") == 1:
                w1_touch(0)
                if self.o.get("tb2") == 3:
                    w1_touch(1)
                a(f"s_cmp_lt_u32 s{S_WAVE}, 4\ns_cbranch_scc1 L_B_w4\ns_waitcnt vmcnt({6 if self.o.get('tb2') == 3 else 5})\nL_B_w4:")
                a(f"s_cmp_ge_u32 s{S_WAVE}, 4\ns_cbranch_scc1 L_B_w5\ns_waitcnt vmcnt(4)\nL_B_w5:")
            else:
                a("s_waitcnt vmcnt(4)")
        else:
            a(pf + "s_waitcnt vmcnt(36)\ns_branch L_B_ln\nL_B_nopf:\ns_waitcnt vmcnt(4)\nL_B_ln:")
        self.stamp(11, 44)
        XS = 44
        a("v_mov_b32 v64, 0\nv_mov_b32 v65, 0\nv_mov_b32 v66, 0x3f803f80")
        for c in range(10):
            a(f"v_dot2c_f32_bf16 v65, v{XR+c}, v{GR+c}")
        for c in range(10):
            a(f"v_dot2c_f32_bf16 v64, v{XR+c}, v66")
        for c in range(10):
            a(f"v_lshlrev_b32 v{XS+2*c}, 16, v{XR+c}\nv_and_b32 v{XS+2*c+1}, 0xffff0000, v{XR+c}")

        def reduce32(regs, t):
            for mode in ("quad_perm:[1,0,3,2]", "quad_perm:[2,3,0,1]", "row_half_mirror", "row_mirror"):
                for r in regs:
                    a(f"v_add_f32_dpp v{r}, v{r}, v{r} {mode} row_mask:0xf bank_mask:0xf")
                a("s_nop 1" if len(regs) == 1 else "s_nop 0")
            for i, r in enumerate(regs):
                a(f"v_mov_b32 v{t+i}, v{r}")
            a("s_nop 1")
            for i, r in enumerate(regs):
                a(f"v_permlane16_swap_b32 v{r}, v{t+i}")
            a("s_nop 1")
            for i, r in enumerate(regs):
                a(f"v_add_f32 v{r}, v{r}, v{t+i}")

        reduce32([64, 65], 66)
        a(f"v_mul_f32 v64, {f2u(-1.0/640):#x}, v64\nv_mul_f32 v65, {f2u(-1.4426950408889634):#x}, v65\nv_mov_b32 v67, 0\nv_mov_b32 v66, 0")
        a("v_exp_f32 v65, v65")
        for c in range(20):
            a(f"v_add_f32 v{XS+c}, v64, v{XS+c}")
        a("v_add_f32 v65, 1.0, v65\nv_rcp_f32 v65, v65")
        for c in range(0, 20, 2):
            a(f"v_fmac_f32 v66, v{XS+c}, v{XS+c}\nv_fmac_f32 v67, v{XS+c+1}, v{XS+c+1}")
        a("v_add_f32 v66, v66, v67\ns_nop 1")
        reduce32([66], 67)
        a(f"v_mov_b32 v67, {f2u(1e-5):#x}\nv_fmac_f32 v67, {f2u(1.0/640):#x}, v66\nv_rsq_f32 v67, v67\ns_nop 0")
        for c in range(20):
            a(f"v_mul_f32 v{XS+c}, v67, v{XS+c}")
        for c in range(10):
            a(f"v_cvt_pk_bf16_f32 v{XR+c}, v{XS+2*c}, v{XS+2*c+1}")
        a(f"""
        s_lshl_b32 s{S_T0}, s{S_WAVE}, 1
        v_add_u32 v2, s{S_T0}, v2
        v_mul_u32_u24 v4, {LN_ST}, v2
        v_add_u32 v4, v4, v3
        v_add_u32 v4, {LNBUF}, v4
        v_lshlrev_b32 v2, 2, v2
        v_add_u32 v2, {LNG}, v2
        """)
        for c in range(5):
            a(f"ds_write_b64 v4, {vr(XR+2*c,2)} offset:{c*256}")
        a("ds_write_b32 v2, v65")
        a(f"s_waitcnt lgkmcnt(0)\ns_add_u32 s{S_TAG}, s{S_TAG}, {TAG_INC:#x}\ns_barrier")
        self.stamp(12, 44)
        if self.o.get("late_w1") == 1:
            a(pf + "L_B_nopf:")
        a(f"s_cmp_ge_u32 s{S_WAVE}, 4\ns_cbranch_scc1 L_B_l1b")
        a(f"""
        v_and_b32 v12, 15, v1
        v_bfe_u32 v13, v1, 4, 1
        v_lshrrev_b32 v14, 5, v1
        v_lshrrev_b32 v15, 2, v12
        v_lshl_add_u32 v15, v13, 2, v15
        v_mul_u32_u24 v15, {LN_ST}, v15
        v_lshl_add_u32 v15, v14, 5, v15
        v_and_b32 v2, 3, v12
        v_lshl_add_u32 v15, v2, 3, v15
        s_mul_i32 s{S_T0}, s{S_WAVE}, 320
        s_add_u32 s{S_T0}, s{S_T0}, {LNBUF}
        v_add_u32 v15, s{S_T0}, v15
        """)
        for i in range(5):
            a(f"ds_read_b64_tr_b16 {vr(44+4*i,2)}, v15 offset:{i*64}")
            a(f"ds_read_b64_tr_b16 {vr(46+4*i,2)}, v15 offset:{i*64+8*LN_ST}")
        a(f"""
        v_lshlrev_b32 v2, 2, v12
        v_add_u32 v2, {LNG}, v2
        ds_read_b32 v65, v2
        v_lshlrev_b32 v14, 16, v14
        v_lshl_add_u32 v14, v13, 8, v14
        v_lshl_add_u32 v14, v12, 4, v14
        s_mul_i32 s{S_T0}, s{S_WAVE}, {5*131072}
        s_lshl_b32 s{S_T0+1}, s{S_KST}, 10
        s_add_u32 s{S_T0}, s{S_T0}, s{S_T0+1}
        s_lshl_b32 s{S_T0+1}, s{S_PAR}, 9
        s_add_u32 s{S_T0}, s{S_T0}, s{S_T0+1}
        s_add_u32 s{S_T0}, s{S_T0}, {HT}
        """)
        for i in range(5):
            a(f"s_waitcnt lgkmcnt({9-2*i})")
            a(f"buffer_store_dwordx4 {vr(44+4*i,4)}, v14, s[{R_WS}:{R_WS+3}], s{S_T0} offen sc1")
            if i < 4:
                a(f"s_add_u32 s{S_T0}, s{S_T0}, 131072")
        a(f"""
        s_cmp_lg_u32 s{S_WAVE}, 0
        s_cbranch_scc1 L_B_nog
        v_and_b32 v2, 7, v12
        v_lshrrev_b32 v12, 3, v12
        v_lshl_add_u32 v2, v12, 4, v2
        v_lshlrev_b32 v2, 2, v2
        s_lshl_b32 s{S_T0}, s{S_KST}, 7
        s_lshl_b32 s{S_T0+1}, s{S_PAR}, 5
        s_add_u32 s{S_T0}, s{S_T0}, s{S_T0+1}
        s_add_u32 s{S_T0}, s{S_T0}, {G_OFF}
        s_waitcnt lgkmcnt(0)
        s_mov_b64 exec, 0xffff
        buffer_store_dword v65, v2, s[{R_WS}:{R_WS+3}], s{S_T0} offen sc1
        s_mov_b64 exec, -1
        L_B_nog:
        s_barrier
        s_waitcnt vmcnt(0) lgkmcnt(0)
        s_branch L_B_l2
        L_B_l1b:
        s_barrier
        """)
        if self.o.get("tb1") == 2:
            w1_touch(0)
        if self.o.get("tb2") == 1:
            w1_touch(1)
        if self.o.get("late_w1") == 2:
            a(pf + "L_B_nopf:")
        a(f"""
        L_B_l2:
        s_barrier
        """)
        if self.o.get("late_w1") == 3:
            a(pf + "L_B_nopf:")
        if self.o.get("tb2") == 2:
            w1_touch(1)
        a(f"""
        s_cmp_lg_u32 s{S_WAVE}, 0
        s_cbranch_scc1 L_B_l3
        s_lshl_b32 s{S_T0}, s{S_KST}, 1
        s_add_u32 s{S_T0}, s{S_T0}, s{S_PAR}
        s_mul_i32 s{S_T0}, s{S_T0}, {FS}
        s_add_u32 s{S_T0}, s{S_T0}, {F_LN}
        """)
        self.flag_store(S_T0, 12)
        self.stamp(1, 12)
        a(f"s_cmp_ge_u32 s{S_J}, 30\ns_cbranch_scc1 L_helper")
        a(f"v_mul_u32_u24 v12, {FS}, v1\nv_add_u32 v12, {F_LN}, v12\nv_add_u32 v13, {64*FS}, v12")
        self.poll([12, 13], 14)
        self.stamp(2, 12)
        a(f"L_B_l3:\ns_cmp_ge_u32 s{S_J}, 30\ns_cbranch_scc1 L_helper")
        a(f"s_cmp_ge_u32 s{S_WAVE}, 4\ns_cbranch_scc1 L_B_aux")
        PF, WF, ACC, VT, VL = 64, 128, 160, 8, 12
        a(f"""
        s_lshl_b32 s{S_T0}, s{S_DT}, 3
        s_lshl_b32 s{S_T0+1}, s{S_WAVE}, 1
        s_add_u32 s{S_D}, s{S_T0}, s{S_T0+1}
        s_lshl_b32 s{S_T0}, s{S_D}, 16
        s_add_u32 s{S_T0}, s{S_T0}, {HT}
        """)
        self.srd(R_P, P_WS, 65536, off_s=S_T0)
        a(f"s_add_u32 s{S_T0}, s{S_T0}, 65536")
        self.srd(R_M, P_WS, 65536, off_s=S_T0)
        a(f"v_lshlrev_b32 v{VL}, 4, v1\ns_mov_b32 s{S_B}, 0")
        a(self.perm_next(S_C, S_PERM, 4096))
        self.tr_addr(VT)
        for r in range(32):
            a(f"v_mov_b32 v{ACC+r}, 0")
        a("s_barrier")
        RP = (R_P, R_M)

        def pload(u, ks):
            if self.o.get("x_noload"):
                return "s_nop 0"
            sc = "" if self.o.get("x_nosc1") else "sc1"
            so = "0" if self.o.get("x_same") else f"s{S_C}"
            return "\n".join(f"buffer_load_dwordx4 {vr(PF+32*(u%2)+8*ks+4*d,4)}, v{VL}, s[{RP[d]}:{RP[d]+3}], {so} offen offset:{ks*1024} {sc}" for d in range(2))

        for t in range(2):
            for ks in range(4):
                a(pload(t, ks))
            a(self.perm_next(S_C, S_PERM, 4096))
            if t == 0:
                first_bar_here = len(a.L)

        def mk(u, bar, virtual=False, head=None, tail=None):
            uses = []
            for ks in range(4):
                for b in range(4):
                    g = ks * 4 + b
                    wb = WF + 4 * (g % 8)
                    off = u * 16384 + ks * 4096
                    reads = [(f"w{g}a", f"ds_read_b64_tr_b16 {vr(wb,2)}, v{VT+b} offset:{off}"),
                             (f"w{g}b", f"ds_read_b64_tr_b16 {vr(wb+2,2)}, v{VT+b} offset:{off+2048}")]
                    mf = []
                    for dd in range(2):
                        acc = vr(ACC + 16 * dd + 4 * b, 4)
                        mf.append(f"v_mfma_f32_16x16x32_bf16 {acc}, {vr(wb,4)}, {vr(PF+32*(u%2)+8*ks+4*dd,4)}, {acc}")
                    d = dict(reads=reads, need=[f"w{g}b"], mf=mf)
                    if b == 0:
                        d["vm"] = 14
                    if b == 3:
                        d["after"] = pload(u, ks)
                        if ks == 3:
                            d["after"] += "\n" + self.perm_next(S_C, S_PERM, 4096)
                            if u >= 1:
                                d["after"] += f"s_cmp_ge_u32 s{S_B}, 3\ns_cselect_b32 s{S_C}, 0x10000, s{S_C}"
                    uses.append(d)
            return dict(uses=uses, bar=bar, virtual=virtual, head=head, tail=tail)

        xo = "s_barrier\n" + "\n".join(f"v_xor_b32 v{VT+b}, 0x10000, v{VT+b}" for b in range(4))
        tail = f"s_add_u32 s{S_B}, s{S_B}, 1\ns_cmp_lt_u32 s{S_B}, 4\ns_cbranch_scc1 L_B_loop"
        st = [mk(0, "", head="L_B_loop:"), mk(1, "s_barrier"), mk(2, "s_barrier"), mk(3, "s_barrier", tail=tail), mk(0, xo, virtual=True)]
        a.L.insert(first_bar_here, "    s_barrier")
        nd = self.o.get("nodrain")
        LB = self.o.get("LB", 7)
        self.pipeline(st, LB, (16 - LB) if nd else 13, drain=not nd, wait_every=self.o.get('we', 2))
        if nd:
            a("s_waitcnt lgkmcnt(0)\ns_barrier")
        self.stamp(3, 44)
        c = 0.7978845608028654
        k0 = -2.0 * c * 1.4426950408889634
        k1 = k0 * 0.044715
        a(f"""
        s_waitcnt lgkmcnt(0)
        s_mov_b32 s{S_K0}, {f2u(k1):#x}
        s_mov_b32 s{S_K0+1}, {f2u(k1):#x}
        v_mov_b32 v44, {f2u(k0):#x}
        v_mov_b32 v45, {f2u(k0):#x}
        v_mov_b32 v46, 1.0
        v_mov_b32 v47, 1.0
        s_mul_i32 s{S_T0}, s{S_D}, {UW_ST}
        s_lshl_b32 s{S_T0+1}, s{S_FT}, 11
        s_add_u32 s{S_T0}, s{S_T0}, s{S_T0+1}
        s_add_u32 s{S_T0}, s{S_T0}, {UW}
        """)
        BF = 16
        for b in range(4):
            a(f"v_lshlrev_b32 v{BF+4*b}, 16, v{B1R+2*b}\nv_and_b32 v{BF+4*b+1}, 0xffff0000, v{B1R+2*b}")
            a(f"v_lshlrev_b32 v{BF+4*b+2}, 16, v{B1R+2*b+1}\nv_and_b32 v{BF+4*b+3}, 0xffff0000, v{B1R+2*b+1}")
        for dd in range(2):
            for p in range(2):
                r = ACC + 16 * dd + 8 * p
                T = 48
                for q in range(4):
                    a(f"v_pk_add_f32 {vr(r+2*q,2)}, {vr(r+2*q,2)}, {vr(BF+8*p+2*q,2)}")
                for q in range(4):
                    a(f"v_pk_mul_f32 {vr(T+2*q,2)}, {vr(r+2*q,2)}, {vr(r+2*q,2)}")
                for q in range(4):
                    a(f"v_pk_fma_f32 {vr(T+2*q,2)}, {vr(T+2*q,2)}, s[{S_K0}:{S_K0+1}], v[44:45]")
                for q in range(4):
                    a(f"v_pk_mul_f32 {vr(T+2*q,2)}, {vr(T+2*q,2)}, {vr(r+2*q,2)}")
                for q in range(8):
                    a(f"v_exp_f32 v{T+q}, v{T+q}")
                for q in range(4):
                    a(f"v_pk_add_f32 {vr(T+2*q,2)}, {vr(T+2*q,2)}, v[46:47]")
                for q in range(8):
                    a(f"v_rcp_f32 v{T+q}, v{T+q}")
                for q in range(4):
                    a(f"v_pk_mul_f32 {vr(r+2*q,2)}, {vr(r+2*q,2)}, {vr(T+2*q,2)}")
                o = 56 + 4 * (p & 1)
                for q in range(4):
                    a(f"v_cvt_pk_bf16_f32 v{o+q}, v{r+2*q}, v{r+2*q+1}")
                a(f"buffer_store_dwordx4 {vr(o,4)}, v{VL}, s[{R_WS}:{R_WS+3}], s{S_T0} offen offset:{p*1024} sc1")
            if dd == 0:
                a(f"s_add_u32 s{S_T0}, s{S_T0}, {UW_ST}")
        self.stamp(10, 44)
        a("s_waitcnt vmcnt(0)\ns_barrier\ns_branch L_F_comp")

        a("L_B_aux:\ns_barrier")
        order = list(range(N1 + NREG))
        if self.o.get("tb2") == 2:
            order.append("t")
        cnt = {k: 4 for k in range(16)}
        cnt["t"] = 1
        nxt = N1
        lag = self.o.get("lag", 0)
        if NREG:
            a(f"""
            s_sub_u32 s{S_T0}, s{S_WAVE}, 4
            s_lshl_b32 s{S_T0}, s{S_T0}, 12
            v_lshlrev_b32 v12, 4, v1
            v_add_u32 v12, s{S_T0}, v12
            v_add_u32 v13, 0x10000, v12
            s_add_u32 s{S_B}, s{S_T0}, {(NREG % 8) * 16384}
            """)
        for tb in range(17):
            if tb < 16:
                n = sum(cnt[x] for x in order[order.index(tb) + 1:])
                a(f"s_waitcnt vmcnt({min(n, 63)}) lgkmcnt(0)")
            a("s_barrier")
            if tb < 16:
                self.stamp(16 + tb, 44)
            if self.o.get("tb2") == 5 and tb == self.o.get("tb2at", 0):
                w1_touch(1)
                order.append("t")
            k = 0
            while nxt <= min(15, tb + (6 if self.o.get("nodrain") and nxt >= 8 else 7) - (lag if nxt >= 8 + NREG else 0)) and k < 2:
                if 8 <= nxt < 8 + NREG:
                    n = sum(cnt[x] for x in order[order.index(nxt) + 1:])
                    a(f"s_waitcnt vmcnt({min(n, 63)})")
                    sl = nxt % 8
                    for i in range(4):
                        a(f"ds_write_b128 v{13 if sl >= 4 else 12}, {vr(64+16*(nxt-8)+4*i,4)} offset:{(sl&3)*16384+i*1024}")
                else:
                    if nxt == 8:
                        a(f"s_and_b32 s{S_B}, s{S_B}, 0x1ffff")
                    a(w1_issue())
                    order.append(nxt)
                nxt += 1
                k += 1
        assert nxt == 16
        if self.o.get("nodrain"):
            a("s_barrier")
        skip = self.if_wave56()
        nB1 = self.o.get("nB1", 0)
        if nB1:
            self.w2_setup()
            self.w2_prefill(nB1)
            a("s_barrier\ns_nop 7\ns_nop 7")
            self.w2_prefill(8 - nB1)
        else:
            a("s_barrier")
            self.w2_setup()
            self.w2_prefill(8)
        a("s_branch L_F_loader")
        a(f"{skip}:\ns_barrier")
        a(f"s_cmp_lg_u32 s{S_WAVE}, 7\ns_cbranch_scc1 L_F_u4")
        a(f"s_mul_i32 s{S_T0}, s{S_DT}, 24\ns_add_u32 s{S_T0}, s{S_T0}, s{S_FT}\ns_mul_i32 s{S_T0}, s{S_T0}, {FS}\ns_add_u32 s{S_T0}, s{S_T0}, {F_U}")
        self.flag_store(S_T0, 12)
        self.stamp(4, 12)
        a("s_branch L_F_poller")

    def w2_l2_prefetch(self, VT):
        a = self.a
        self.srd(R_W2, P_W2, 1536 * 4096)
        a(f"""
        v_lshrrev_b32 v{VT}, 3, v1
        v_and_b32 v{VT+1}, 7, v1
        v_lshlrev_b32 v{VT+1}, 7, v{VT+1}
        v_lshl_add_u32 v{VT}, v{VT}, 12, v{VT+1}
        s_mul_i32 s{S_T0}, s{S_J}, 48
        s_and_b32 s{S_T0+1}, s{S_WAVE}, 3
        s_mul_i32 s{S_T0+1}, s{S_T0+1}, 12
        s_add_u32 s{S_T0}, s{S_T0}, s{S_T0+1}
        s_lshl_b32 s{S_T0}, s{S_T0}, 12
        s_lshr_b32 s{S_T0+1}, s{S_XCD}, 1
        s_lshl_b32 s{S_T0+1}, s{S_T0+1}, 10
        s_add_u32 s{S_T0}, s{S_T0}, s{S_T0+1}
        buffer_load_dword v{VT+2}, v{VT}, s[{R_W2}:{R_W2+3}], s{S_T0} offen
        s_add_u32 s{S_T0}, s{S_T0}, {8*4096}
        s_mov_b32 exec_hi, 0
        buffer_load_dword v{VT+3}, v{VT}, s[{R_W2}:{R_W2+3}], s{S_T0} offen
        s_mov_b64 exec, -1
        """)

    def tr_addr(self, VT):
        a = self.a
        a(f"""
        v_and_b32 v{VT+1}, 15, v1
        v_lshrrev_b32 v{VT+2}, 4, v1
        v_lshrrev_b32 v{VT+3}, 2, v{VT+1}
        v_lshl_add_u32 v{VT+3}, v{VT+2}, 2, v{VT+3}
        v_bfe_u32 v{VT+2}, v{VT+3}, 1, 2
        v_lshlrev_b32 v{VT+3}, 7, v{VT+3}
        v_lshl_add_u32 v{VT+3}, v{VT+2}, 5, v{VT+3}
        v_and_b32 v{VT+1}, 3, v{VT+1}
        v_lshl_add_u32 v{VT}, v{VT+1}, 3, v{VT+3}
        v_xor_b32 v{VT+1}, 32, v{VT}
        v_xor_b32 v{VT+2}, 64, v{VT}
        v_xor_b32 v{VT+3}, 96, v{VT}
        """)

    def helper(self):
        a = self.a
        a("L_helper:")
        a(f"""
        s_lshl_b32 s{S_D}, s{S_XCD}, 1
        s_add_u32 s{S_D}, s{S_D}, s{S_J}
        s_sub_u32 s{S_D}, s{S_D}, 30
        """)
        if self.o.get("tb2") == 4:
            a(f"""
            s_sub_u32 s{S_T0}, s{S_J}, 30
            s_lshl_b32 s{S_T0}, s{S_T0}, 3
            s_add_u32 s{S_T0}, s{S_T0}, s{S_WAVE}
            s_add_u32 s{S_T0}, s{S_T0}, 128
            s_mul_i32 s{S_T0}, s{S_T0}, {8*3072}
            s_mul_i32 s{S_T0+1}, s{S_XCD}, 768
            s_add_u32 s{S_T0}, s{S_T0}, s{S_T0+1}
            """)
            for k in range(8):
                a(f"buffer_load_dword v253, v7, s[{R_W}:{R_W+3}], s{S_T0} offen\ns_add_u32 s{S_T0}, s{S_T0}, {128*3072}")
        self.srd(R_W, P_WO, 640 * 1280)
        for p in range(5):
            a(f"""
            v_add_u32 v12, {p*64}, v1
            v_mul_u32_u24 v13, 205, v12
            v_lshrrev_b32 v13, 11, v13
            v_mul_u32_u24 v14, 10, v13
            v_sub_u32 v14, v12, v14
            v_lshlrev_b32 v14, 4, v14
            v_mul_u32_u24 v13, 1280, v13
            v_add_u32 v{16+p}, v13, v14
            """)
            if p in (1, 2, 3):
                a(f"v_subrev_u32 v{16+p}, {p*1024}, v{16+p}")
        a(f"""
        s_mov_b32 s{S_C}, s{S_WAVE}
        L_H_ld:
        s_mul_i32 s{S_A}, s{S_C}, {32*1280}
        s_mul_i32 s{S_T0}, s{S_D}, 160
        s_add_u32 s{S_A}, s{S_A}, s{S_T0}
        s_mul_i32 s{S_B}, s{S_C}, 5120
        s_mov_b32 m0, s{S_B}
        s_nop 0
        """)
        for p in range(4):
            a(f"buffer_load_dwordx4 v{16+p}, s[{R_W}:{R_W+3}], s{S_A} offen offset:{p*1024} lds")
        a(f"s_add_u32 m0, s{S_B}, 4096\ns_nop 0\nbuffer_load_dwordx4 v20, s[{R_W}:{R_W+3}], s{S_A} offen lds")
        a(f"""
        s_add_u32 s{S_C}, s{S_C}, 8
        s_cmp_lt_u32 s{S_C}, 20
        s_cbranch_scc1 L_H_ld
        v_and_b32 v12, 15, v1
        v_lshrrev_b32 v13, 4, v1
        v_lshrrev_b32 v14, 2, v12
        v_lshl_add_u32 v14, v13, 2, v14
        v_mul_u32_u24 v14, 160, v14
        v_and_b32 v12, 3, v12
        v_lshl_add_u32 v14, v12, 3, v14
        v_lshlrev_b32 v15, 4, v1
        s_waitcnt vmcnt(0)
        s_barrier
        s_mov_b32 s{S_C}, s{S_WAVE}
        L_H_tr:
        s_lshr_b32 s{S_T0}, s{S_C}, 1
        s_mul_i32 s{S_T0}, s{S_T0}, 5
        s_and_b32 s{S_T0+1}, s{S_C}, 1
        s_lshl_b32 s{S_T0+1}, s{S_T0+1}, 1
        s_add_u32 s{S_T0}, s{S_T0}, s{S_T0+1}
        s_add_u32 s{S_T0+1}, s{S_T0}, 1
        s_mul_i32 s{S_T0+2}, s{S_C}, 10
        s_sub_u32 s{S_T0+2}, s{S_T0+2}, 156
        s_add_u32 s{S_T0+3}, s{S_T0+2}, 5
        s_cmp_lt_u32 s{S_C}, 16
        s_cselect_b32 s{S_T0}, s{S_T0}, s{S_T0+2}
        s_cselect_b32 s{S_T0+1}, s{S_T0+1}, s{S_T0+3}
        s_mul_i32 s{S_T0}, s{S_T0}, 2560
        s_mul_i32 s{S_T0+1}, s{S_T0+1}, 2560
        v_add_u32 v12, s{S_T0}, v14
        v_add_u32 v13, s{S_T0+1}, v14
        """)
        for b in range(5):
            a(f"ds_read_b64_tr_b16 {vr(24+4*b,2)}, v12 offset:{b*32}\nds_read_b64_tr_b16 {vr(26+4*b,2)}, v13 offset:{b*32}")
        a(f"""
        s_mul_i32 s{S_T0}, s{S_D}, {5*UW_ST}
        s_lshl_b32 s{S_T0+1}, s{S_C}, 10
        s_add_u32 s{S_T0}, s{S_T0}, s{S_T0+1}
        s_add_u32 s{S_T0}, s{S_T0}, {UW + 49152}
        """)
        for b in range(5):
            a(f"s_waitcnt lgkmcnt({8-2*b})")
            a(f"buffer_store_dwordx4 {vr(24+4*b,4)}, v15, s[{R_WS}:{R_WS+3}], s{S_T0} offen sc1")
            if b < 4:
                a(f"s_add_u32 s{S_T0}, s{S_T0}, {UW_ST}")
        a(f"""
        s_add_u32 s{S_C}, s{S_C}, 8
        s_cmp_lt_u32 s{S_C}, 20
        s_cbranch_scc1 L_H_tr
        s_waitcnt vmcnt(0)
        s_barrier
        """)
        skip = self.if_wave56()
        self.w2_setup()
        self.w2_prefill(8)
        a(f"s_branch L_F_loader\n{skip}:")
        a(f"s_cmp_lt_u32 s{S_WAVE}, 4\ns_cbranch_scc1 L_F_comp\ns_cmp_lg_u32 s{S_WAVE}, 7\ns_cbranch_scc1 L_F_u4")
        a(f"s_mul_i32 s{S_T0}, s{S_D}, {FS}\ns_add_u32 s{S_T0}, s{S_T0}, {F_WOT}")
        self.flag_store(S_T0, 12)
        self.stamp(14, 12)
        a("s_branch L_F_poller")

    F_WOT_REG = 172

    def uw_srd(self):
        a = self.a
        a(f"""
        s_mul_i32 s{S_T0}, s{S_DTILE}, 5
        s_add_u32 s{S_D}, s{S_T0}, s{S_WAVE}
        s_mul_i32 s{S_T0}, s{S_D}, {UW_ST}
        s_add_u32 s{S_T0}, s{S_T0}, {UW}
        """)
        self.srd(R_P, P_WS, UW_ST, off_s=S_T0)

    def wot_preload(self, VL):
        a = self.a
        for k in range(20):
            if k % 4 == 0:
                a(f"s_mov_b32 s{S_C}, {49152 + k*1024}")
            a(f"buffer_load_dwordx4 {vr(self.F_WOT_REG+4*k,4)}, v{VL}, s[{R_P}:{R_P+3}], s{S_C} offen offset:{(k%4)*1024} sc1")

    def f0_barrier(self):
        lab = self.a.label("f0")
        self.a(f"s_cmp_eq_u32 s{S_FROMA}, 1\ns_cbranch_scc1 {lab}\ns_barrier\n{lab}:")

    def final(self):
        a = self.a
        a("L_F_comp:")
        if self.stop == "phase1":
            a("s_branch L_end")
        PF, WF, ACC, ACC4, U4, WOT = 64, 112, 144, 160, 164, 172
        NPF = 3
        pre = True
        VT, VL, VU4, VT2, GV, BV, VGH, VG8 = 8, 12, 13, 16, 20, 24, 28, 32
        self.uw_srd()
        self.srd(R_M, P_B2, 4096)
        self.srd(R_OUT, P_OUT, 2048 * 1280)
        self.tr_addr(4)
        a(f"""
        v_lshlrev_b32 v{VL}, 4, v1
        v_add_u32 v{VU4}, 0x20000, v{VL}
        v_lshlrev_b32 v5, 3, v1
        v_and_b32 v2, 15, v1
        v_lshlrev_b32 v3, 1, v2
        v_lshlrev_b32 v2, 2, v2
        """)
        SB = S_MSK
        for b in range(4):
            a(f"""
            s_add_u32 s{SB+b}, s{S_WAVE}, {b}
            s_and_b32 s{SB+b}, s{SB+b}, 3
            s_lshl_b32 s{S_T0}, s{SB+b}, 5
            v_xor_b32 v{VT+b}, s{S_T0}, v4
            s_lshl_b32 s{S_T0+1}, s{S_ST}, 7
            s_add_u32 s{S_T0}, s{S_T0}, s{S_T0+1}
            buffer_load_ushort v{BV+b}, v3, s[{R_M}:{R_M+3}], s{S_T0} offen
            v_add_u32 v{VT2+b}, 0x10000, v{VT+b}
            s_lshl_b32 s{S_T0}, s{SB+b}, 12
            v_add_u32 v{VG8+b}, s{S_T0}, v5
            s_add_u32 s{S_T0}, s{S_T0}, 0x10000
            v_add_u32 v{VGH+b}, s{S_T0}, v{VL}
            """)
        for r in range(16):
            a(f"v_mov_b32 v{ACC+r}, 0")
        for r in range(4):
            a(f"v_mov_b32 v{ACC4+r}, 0")
        a(f"s_lshl_b32 s{S_A}, s{S_ST}, 8\ns_add_u32 s{S_A}, s{S_A}, {G_OFF}")
        self.f_perm()
        nstream = 12 if pre else 17

        def next_sc(step):
            if step < 12:
                return self.perm_next(S_C, S_PERM, 4096)
            return f"s_mov_b32 s{S_C}, {step*4096}\n"
        a(f"s_cmp_eq_u32 s{S_FROMA}, 1\ns_cbranch_scc1 L_F_nowot\ns_barrier")
        self.wot_preload(VL)
        a("L_F_nowot:")
        a(next_sc(0))
        a("s_barrier")
        for t in range(NPF):
            for ks in range(4):
                a(f"buffer_load_dwordx4 {vr(PF+16*t+4*ks,4)}, v{VL}, s[{R_P}:{R_P+3}], s{S_C} offen offset:{ks*1024} sc1")
            a(next_sc(t + 1))
            if t == 0:
                a("s_barrier")
            if t == NPF - 1:
                for b in range(4):
                    a(f"s_lshl_b32 s{S_T0}, s{SB+b}, 6\ns_add_u32 s{S_T0}, s{S_T0}, s{S_A}")
                    a(f"buffer_load_dword v{GV+b}, v2, s[{R_WS}:{R_WS+3}], s{S_T0} offen sc1")

        mid = "s_nop 7\n"
        for b in range(4):
            mid += f"v_lshlrev_b32 v{BV+b}, 16, v{BV+b}\nv_sub_f32 v{GV+b}, 1.0, v{GV+b}\n"
        blocks = [(ACC + 4 * b, b) for b in range(4)] + [(ACC4, 0)]
        for r0, b in blocks:
            for k in range(4):
                mid += f"v_add_f32 v{r0+k}, v{BV+b}, v{r0+k}\n"
        for r0, b in blocks:
            for k in range(4):
                mid += f"v_mul_f32 v{r0+k}, v{GV+b}, v{r0+k}\n"
        mid += "s_nop 1\n"

        stages = []
        for t in range(17):
            slot = t % 8
            hi = slot >= 4
            uses = []
            for ks in range(4):
                for b in range(4):
                    g = ks * 4 + b
                    wb = WF + 4 * (g % 8)
                    reads = []
                    u4 = U4 + 4 * (ks & 1)
                    if b == 0:
                        reads.append((f"u{ks}", f"ds_read_b128 {vr(u4,4)}, v{VU4} offset:{slot*4096 + ks*1024}"))
                    if t < 12:
                        off = (slot & 3) * 16384 + ks * 4096
                        va = (VT2 if hi else VT) + b
                        reads += [(f"w{g}a", f"ds_read_b64_tr_b16 {vr(wb,2)}, v{va} offset:{off}"),
                                  (f"w{g}b", f"ds_read_b64_tr_b16 {vr(wb+2,2)}, v{va} offset:{off+2048}")]
                    elif t < 16:
                        assert hi
                        off = (slot & 3) * 16384 + ks * 1024
                        reads += [(f"w{g}b", f"ds_read_b128 {vr(wb,4)}, v{VGH+b} offset:{off}")]
                    else:
                        off = (slot & 3) * 16384 + ks * 1024
                        assert not hi
                        reads += [(f"w{g}a", f"ds_read_b64 {vr(wb,2)}, v{VG8+b} offset:{off}"),
                                  (f"w{g}b", f"ds_read_b64 {vr(wb+2,2)}, v{VG8+b} offset:{off+512}")]
                    acc = vr(ACC + 4 * b, 4)
                    ring = t < nstream
                    pf = vr(PF + 16 * (t % NPF) + 4 * ks, 4) if ring else vr(WOT + 16 * (t - 12) + 4 * ks, 4)
                    mf = [f"v_mfma_f32_16x16x32_bf16 {acc}, {pf}, {vr(wb,4)}, {acc}"]
                    if b == 0:
                        mf.append(f"v_mfma_f32_16x16x32_bf16 {vr(ACC4,4)}, {vr(u4,4)}, {vr(wb,4)}, {vr(ACC4,4)}")
                    d = dict(reads=reads, need=[f"w{g}b"], mf=mf)
                    if b == 0 and ring:
                        k = t * 4 + ks
                        n = min(k + 4 * NPF - 1, 4 * nstream - 1) - k
                        if t < NPF:
                            n += 4
                        d["vm"] = n
                    if b == 3 and t + NPF < nstream:
                        d["after"] = f"buffer_load_dwordx4 {pf}, v{VL}, s[{R_P}:{R_P+3}], s{S_C} offen offset:{ks*1024} sc1"
                        if ks == 3 and t + NPF + 1 < nstream:
                            d["after"] += "\n" + next_sc(t + NPF + 1)
                    if t == 12 and g == 0:
                        d["before"] = mid
                    uses.append(d)
            stages.append(dict(uses=uses, bar="s_barrier" if t else ""))
        nd = self.o.get("nodrain")
        LF = self.o.get("LF", 6)
        self.pipeline(stages, LF, (16 - LF) if nd else 13, drain=not nd, wait_every=self.o.get('we', 2))
        self.stamp(8, 2)
        a(f"""
        v_and_b32 v2, 15, v1
        v_mul_u32_u24 v2, 1280, v2
        v_lshrrev_b32 v3, 4, v1
        v_lshl_add_u32 v2, v3, 3, v2
        s_mul_i32 s{S_A}, s{S_ST}, {64*1280}
        s_lshl_b32 s{S_T0+1}, s{S_D}, 5
        s_add_u32 s{S_B}, s{S_A}, s{S_T0+1}
        s_mul_i32 s{S_T0+1}, s{S_DTILE}, 160
        s_add_u32 s{S_A}, s{S_A}, s{S_T0+1}
        s_add_u32 s{S_A}, s{S_A}, 128
        """)
        for r, b in blocks:
            a(f"s_mul_i32 s{S_T0}, s{SB+b}, {16*1280}\ns_add_u32 s{S_T0}, s{S_T0}, s{S_A if r == ACC4 else S_B}")
            a(f"v_cvt_pk_bf16_f32 v{r}, v{r}, v{r+1}\nv_cvt_pk_bf16_f32 v{r+1}, v{r+2}, v{r+3}")
            a(f"buffer_store_dwordx2 {vr(r,2)}, v2, s[{R_OUT}:{R_OUT+3}], s{S_T0} offen {['', 'sc1', 'nt', 'sc0 sc1'][self.o.get('osc', 0)]}")
        if self.stamps or self.o.get("dbg"):
            a("s_waitcnt vmcnt(0)")
            self.stamp(9, 2)
        if self.o.get("calib"):
            a(f"""
            L_cal:
            s_memrealtime s[96:97]
            s_waitcnt lgkmcnt(0)
            s_sub_u32 s96, s96, s98
            s_cmp_lt_u32 s96, {self.o.get("calib")*100}
            s_cbranch_scc1 L_cal
            """)
        a(f"s_or_b32 s{S_T0}, s2, s{S_WAVE}\ns_cmp_lg_u32 s{S_T0}, 0\ns_cbranch_scc1 L_end\ns_mov_b32 s{S_T0}, 0")
        self.flag_store(S_T0, 4)
        a("s_branch L_end")

        a("L_F_u4:")
        if self.stop == "phase1":
            a("s_branch L_end")
        a(f"""
        v_lshlrev_b32 v{VL}, 4, v1
        s_mul_i32 s{S_C}, s{S_DTILE}, {5*UW_ST}
        s_add_u32 s{S_C}, s{S_C}, {UW + 4*UW_ST}
        """)
        self.f_perm()
        self.f0_barrier()
        a("s_barrier")

        def u4_issue(iv):
            if iv < 12:
                a(self.perm_next(S_T0, S_PERM, 4096) + f"s_mov_b32 m0, {0x20000 + (iv % 8)*4096:#x}\ns_add_u32 s{S_T0}, s{S_T0}, s{S_C}")
            else:
                a(f"s_mov_b32 m0, {0x20000 + (iv % 8)*4096:#x}\ns_add_u32 s{S_T0}, s{S_C}, {iv*4096}")
            for i in range(4):
                a(f"buffer_load_dwordx4 v{VL}, s[{R_WS}:{R_WS+3}], s{S_T0} offen offset:{i*1024} sc1 lds")
        order = []
        for iv in range(8):
            u4_issue(iv)
            order.append(iv)
            if iv == 2:
                a("s_waitcnt vmcnt(8)\ns_barrier")
        for tb in range(1, 17):
            a(f"s_waitcnt vmcnt({4*len(order[order.index(tb)+1:])})\ns_barrier")
            iv = tb + (6 if self.o.get("nodrain") else 7)
            if 8 <= iv <= 16:
                u4_issue(iv)
                order.append(iv)
        a("s_branch L_end")

        a("L_F_loader:")
        if self.stop == "phase1":
            a("s_branch L_end")
        a(f"v_lshlrev_b32 v{VL}, 4, v1")
        self.f0_barrier()
        a("s_barrier")
        a(f"""
        s_sub_u32 s{S_T0}, s{S_WAVE}, 5
        s_lshl_b32 s{S_T0}, s{S_T0}, 1
        s_lshl_b32 s{S_T0+1}, s{S_ST}, 2
        s_add_u32 s{S_T0+1}, s{S_T0+1}, s{S_T0}
        s_mul_i32 s{S_C}, s{S_T0+1}, {GO_ST}
        s_add_u32 s{S_C}, s{S_C}, {GO}
        s_lshl_b32 s{S_D}, s{S_T0}, 12
        """)
        order = list(range(8))
        for tb in range(17):
            after = [x for x in order[order.index(tb) + 1:]]
            n = 8 * len(after)
            a(f"s_waitcnt vmcnt({min(n,63)})\ns_barrier")
            t = tb - 1
            tw = t - (1 if self.o.get("nodrain") else 0)
            if 0 <= tw <= 3:
                self.w2_issue()
                order.append(tw + 8)
            if 8 <= t <= 12:
                iv = t + 4
                g = iv - 12
                for s2 in range(2):
                    a(f"s_add_u32 m0, s{S_D}, {(iv % 8)*16384 + s2*4096}\ns_add_u32 s{S_T0}, s{S_C}, {s2*GO_ST + g*4096}")
                    for i in range(4):
                        a(f"buffer_load_dwordx4 v{VL}, s[{R_WS}:{R_WS+3}], s{S_T0} offen offset:{i*1024} sc1 lds")
                order.append(iv)
        a("s_branch L_end")
        a("L_F_poller:")
        if self.stop == "phase1":
            a("s_branch L_end")
        a(f"s_cmp_eq_u32 s{S_FROMA}, 1\ns_cbranch_scc1 L_F_pnowot")
        a(f"s_mul_i32 s{S_T0}, s{S_DTILE}, {FS}\ns_add_u32 s{S_T0}, s{S_T0}, {F_WOT}\nv_mov_b32 v2, s{S_T0}")
        self.poll([2], 4)
        a("s_barrier\nL_F_pnowot:")
        a(f"""
        s_mul_i32 s{S_T0}, s{S_DTILE}, 5
        s_lshr_b32 s{S_T0+1}, s{S_T0}, 3
        s_add_u32 s{S_T0}, s{S_T0}, 4
        s_lshr_b32 s{S_T0}, s{S_T0}, 3
        s_mul_i32 s{S_T0}, s{S_T0}, 24
        s_mul_i32 s{S_T0+1}, s{S_T0+1}, 24
        v_and_b32 v2, 31, v1
        v_min_u32 v2, 23, v2
        v_add_u32 v3, s{S_T0}, v2
        v_add_u32 v2, s{S_T0+1}, v2
        v_cmp_gt_u32 vcc, 32, v1
        s_mul_i32 s{S_T0}, s{S_DTILE}, {FS}
        s_add_u32 s{S_T0}, s{S_T0}, {F_WOT}
        v_cndmask_b32 v2, v2, v3, vcc
        v_mul_u32_u24 v2, {FS}, v2
        v_add_u32 v2, {F_U}, v2
        v_mov_b32 v3, s{S_T0}
        v_cmp_eq_u32 vcc, 63, v1
        s_nop 1
        v_cndmask_b32 v2, v2, v3, vcc
        """)
        self.poll([2], 4)
        self.stamp(6, 4)
        a("s_barrier")
        a(f"""
        v_and_b32 v2, 7, v1
        s_lshr_b32 s{S_T0}, s{S_ST}, 1
        s_lshl_b32 s{S_T0}, s{S_T0}, 3
        v_add_u32 v2, s{S_T0}, v2
        v_mul_u32_u24 v2, {FS}, v2
        v_add_u32 v2, {F_GO}, v2
        """)
        gp = self.o.get("gopoll", 9)
        for tb in range(gp):
            a("s_barrier")
            if tb == 1:
                a(f"s_cmp_eq_u32 s{S_FROMA}, 1\ns_cbranch_scc0 L_F_nogo")
                a(f"s_lshl_b32 s{S_T0}, s{S_MT}, 3\ns_add_u32 s{S_T0}, s{S_T0}, s{S_HG}\ns_mul_i32 s{S_T0}, s{S_T0}, {FS}\ns_add_u32 s{S_T0}, s{S_T0}, {F_GO}")
                self.flag_store(S_T0, 6)
                a("L_F_nogo:")
            self.stamp(32 + tb, 4)
        self.poll([2], 4)
        self.stamp(7, 4)
        for tb in range(gp, 17):
            a("s_barrier")
            self.stamp(32 + tb, 4)
        a("L_end:")
        if "probe" in self.o:
            a("""
            s_cmp_eq_u32 s94, 0
            s_cbranch_scc1 L_exit
            L_prb:
            s_memrealtime s[96:97]
            s_waitcnt lgkmcnt(0)
            s_sub_u32 s96, s96, s98
            s_cmp_lt_u32 s96, 4000
            s_cbranch_scc1 L_prb
            """)
        if self.stamps:
            a(f"""
            s_lshl_b32 s{S_T0}, s2, 3
            s_add_u32 s{S_T0}, s{S_T0}, s{S_WAVE}
            s_lshl_b32 s{S_T0}, s{S_T0}, 9
            s_add_u32 s{S_T0}, s{S_T0}, {STAMP}
            v_lshlrev_b32 v2, 3, v1
            buffer_store_dwordx2 v[254:255], v2, s[{R_WS}:{R_WS+3}], s{S_T0} offen
            """)
        a("L_exit:\ns_endpgm")

    def build(self, header):
        a = self.a
        self.prologue()
        self.role_a()
        self.role_b()
        self.helper()
        self.final()
        body = a.text()
        out = header
        out += f"; @launch grid=(256,1,1) block=(512,1,1) lds={LDS_BYTES}\n"
        out += f'.amdgcn_target "amdgcn-amd-amdhsa--gfx950"\n.text\n.globl {KNAME}\n.p2align 8\n.type {KNAME},@function\n{KNAME}:\n'
        out += body
        out += f""".section .rodata,"a"
.p2align 6
.amdhsa_kernel {KNAME}
  .amdhsa_next_free_vgpr 256
  .amdhsa_next_free_sgpr 102
  .amdhsa_accum_offset 256
  .amdhsa_group_segment_fixed_size 0
  .amdhsa_kernarg_size 96
  .amdhsa_user_sgpr_count 2
  .amdhsa_user_sgpr_kernarg_segment_ptr 1
  .amdhsa_system_sgpr_workgroup_id_x 1
  .amdhsa_float_denorm_mode_32 3
.end_amdhsa_kernel
"""
        return out


def header():
    ref = open("gated_mix__linear_attn_block__mixer_token_mlp__prompt.s.ref").read().split("\n")
    h = []
    for l in ref:
        if l.startswith("; Override"):
            break
        h.append(l)
    return "\n".join(h) + "\n"


if __name__ == "__main__":
    import argparse
    p = argparse.ArgumentParser()
    p.add_argument("-o", default="gated_mix__linear_attn_block__mixer_token_mlp__prompt.s")
    p.add_argument("--stamps", action="store_true")
    p.add_argument("--stop", default=None)
    p.add_argument("--opt", default="")
    args = p.parse_args()
    opts = {k: (int(v) if v != '' else 1) for k, _, v in (x.partition('=') for x in args.opt.split(',') if x)}
    g = Gen(stamps=args.stamps, stop=args.stop, opts=opts)
    open(args.o, "w").write(g.build(header()))
    print("wrote", args.o)
```

```python
import sys

KNAME = "gated_mix__linear_attn_block__mixer_token_mlp__prompt_kernel"

import os
FS = int(os.environ.get('FS', 128))
F_LN, F_KV, F_U, F_GO, F_WOT = 0x1000, 0x5000, 0x9000, 0xD000, 0x11000
G_OFF = 0x12000
STAMP = 0x900000
KVP = 0x20000
KVP_ST = 7168
HT = 0x100000
UW = 0x380000
UW_ST = 69632
GO = 0x640000
GO_ST = 20480
WS_USED = 0xA00000
TAG_INC = 0x9E3779B9
SPIN_LIMIT = 1 << 17

LDS_BYTES = 163840
LNBUF = 0
LN_ST = 1312
LNG = LNBUF + 32 * LN_ST
A_SLOT = 49152
A_WOFF = 16384
EXCH_ST = 14336
EXCH = 0
KVT = 147456
ZH = KVT + 11 * 1024

LOG2E = 0x3FB8AA3B


def f2u(x):
    import struct
    return struct.unpack("<I", struct.pack("<f", x))[0]


class Asm:
    def __init__(self):
        self.L = []
        self.nlab = 0

    def __call__(self, s):
        for line in s.split("\n"):
            line = line.strip()
            if line:
                self.L.append(("    " if not line.endswith(":") else "") + line)

    def label(self, base):
        self.nlab += 1
        return f"L{base}_{self.nlab}"

    def text(self):
        return "\n".join(self.L) + "\n"


def vr(a, n=1):
    return f"v{a}" if n == 1 else f"v[{a}:{a+n-1}]"


def sr(a, n=1):
    return f"s{a}" if n == 1 else f"s[{a}:{a+n-1}]"


P_X, P_WQKV, P_WO, P_BX, P_W1, P_B1, P_W2, P_B2 = 4, 6, 8, 10, 12, 14, 16, 18
P_GATE, P_OUT, P_DBG, P_WS = 20, 22, 24, 26
S_TAG, S_WAVE = 28, 29
S_XCD, S_J = 30, 31
R_WS, R_X, R_W, R_P, R_W2, R_M, R_OUT = 32, 36, 40, 44, 48, 52, 56
S_T0 = 60
S_MT, S_HG, S_DT, S_FT, S_KST, S_PAR = 70, 71, 72, 73, 74, 75
S_ST, S_DTILE = 76, 77
S_CNT = 78
S_A, S_B, S_C, S_D = 80, 81, 82, 83
S_MSK = 84
S_K0 = 90
S_STMP = 96
S_PERM = 66
S_M = 79
S_FROMA = 95
S_PERM2 = 68


def lead_perm(n, nshare, m, lead=2):
    order = list(range(n))
    i = m
    while i + lead < n:
        order[i:i + lead + 1] = [order[i + lead]] + order[i:i + lead]
        i += nshare
    return order


class Gen:
    def __init__(self, stamps=False, stop=None, opts=None):
        self.o = opts or {}
        self.a = Asm()
        self.stamps = stamps
        self.stop = stop

    def nt(self, key):
        return "nt" if self.o.get(key) else ""

    def srd(self, dst, ptr, nbytes, off_s=None):
        a = self.a
        if off_s is None:
            a(f"s_mov_b32 s{dst}, s{ptr}\ns_and_b32 s{dst+1}, s{ptr+1}, 0xffff")
        else:
            a(f"s_add_u32 s{dst}, s{ptr}, s{off_s}\ns_addc_u32 s{dst+1}, s{ptr+1}, 0\ns_and_b32 s{dst+1}, s{dst+1}, 0xffff")
        a(f"s_mov_b32 s{dst+2}, {nbytes:#x}\ns_mov_b32 s{dst+3}, 0x20000")

    def stamp(self, k, vtmp, dyn=None):
        if "pc1" in self.o:
            if dyn is None and k in (self.o["pc1"], self.o["pc2"]):
                lab = self.a.label("npr")
                self.a(f"s_cmp_lg_u32 s{S_FROMA}, {self.o.get('prole', 0)}\ns_cbranch_scc1 {lab}")
                if k == self.o["pc1"]:
                    self.a(f"s_memtime s[92:93]\ns_waitcnt lgkmcnt(0)")
                else:
                    self.a(f"s_memtime s[96:97]\ns_waitcnt lgkmcnt(0)\ns_sub_u32 s92, s96, s92\ns_lshr_b32 s92, s92, 4\ns_add_u32 s98, s98, s92\ns_mov_b32 s94, 1")
                self.a(f"{lab}:")
            return
        if "probe" in self.o:
            role = self.o.get("prole")
            if k == self.o["probe"] and dyn is None:
                lab = self.a.label("npr")
                if role is not None and k != 0:
                    self.a(f"s_cmp_lg_u32 s{S_FROMA}, {role}\ns_cbranch_scc1 {lab}")
                self.a(f"s_memrealtime s[98:99]\ns_mov_b32 s94, 1\ns_waitcnt lgkmcnt(0)\n{lab}:")
            return
        if self.o.get("dbg"):
            m = {0: 0, 11: 1, 1: 2, 2: 3, 3: 4, 4: 5, 6: 6, 9: 7}
            mA = {0: 0, 1: 1, 2: 2, 3: 3, 4: 4, 5: 5, 6: 6, 9: 7}
            if dyn is not None:
                return
            a = self.a
            for wg, mp, base in ((8, m, 0), (12, mA, 8)):
                if k in mp:
                    lab = a.label("nd")
                    a(f"s_cmp_lg_u32 s2, {wg}\ns_cbranch_scc1 {lab}")
                    a(f"s_memrealtime s[{S_STMP}:{S_STMP+1}]\ns_waitcnt lgkmcnt(0)")
                    a(f"v_mov_b32 v{vtmp}, s{S_STMP}\nv_mov_b32 v{vtmp+2}, {4*(base+mp[k])}")
                    a(f"s_mov_b64 exec, 1\nglobal_store_dword v{vtmp+2}, v{vtmp}, s[{P_DBG}:{P_DBG+1}]\ns_mov_b64 exec, -1\n{lab}:")
            return
        if not self.stamps:
            return
        a = self.a
        a(f"s_memrealtime s[{S_STMP}:{S_STMP+1}]\ns_memtime s[100:101]")
        ln = str(k)
        if dyn is not None:
            a(f"s_add_u32 m0, s{dyn}, {k}")
            ln = "m0"
        a(f"s_waitcnt lgkmcnt(0)\nv_writelane_b32 v254, s{S_STMP}, {ln}\nv_writelane_b32 v255, s100, {ln}")

    def perm_setup(self, s_m, n, nshare, dst, enable):
        a = self.a
        def pk(o):
            v = 0
            for i, x in enumerate(o):
                v |= x << (4 * i)
            return v & 0xffffffff, v >> 32
        lo, hi = pk(list(range(n)))
        a(f"s_mov_b32 s{dst}, {lo:#x}\ns_mov_b32 s{dst+1}, {hi:#x}")
        if not enable:
            return
        for m in range(nshare):
            lo, hi = pk(lead_perm(n, nshare, m, enable))
            a(f"s_cmp_eq_u32 s{s_m}, {m}\ns_cselect_b32 s{dst}, {lo:#x}, s{dst}\ns_cselect_b32 s{dst+1}, {hi:#x}, s{dst+1}")

    def perm_next(self, dst, src, mul):
        t = f"s_and_b32 s{dst}, s{src}, 15\ns_lshr_b64 s[{src}:{src+1}], s[{src}:{src+1}], 4\n"
        if mul & (mul - 1) == 0:
            t += f"s_lshl_b32 s{dst}, s{dst}, {mul.bit_length()-1}\n"
        else:
            t += f"s_mul_i32 s{dst}, s{dst}, {mul}\n"
        return t

    def poll(self, voffs, vtmp, mask=None):
        a = self.a
        lp, dn = a.label("poll"), a.label("pdone")
        n = len(voffs)

        def ld(k):
            for i, vo in enumerate(voffs):
                a(f"buffer_load_dword v{vtmp+k*n+i}, v{vo}, s[{R_WS}:{R_WS+3}], 0 offen sc1")

        def chk(k):
            if mask is not None:
                a(f"v_xor_b32 v{vtmp+k*n}, s{S_TAG}, v{vtmp+k*n}\nv_and_b32 v{vtmp+k*n}, v{mask}, v{vtmp+k*n}\nv_cmp_ne_u32 vcc, 0, v{vtmp+k*n}")
            else:
                a(f"v_cmp_ne_u32 vcc, s{S_TAG}, v{vtmp+k*n}")
            for i in range(1, n):
                a(f"v_cmp_ne_u32 s[{S_T0}:{S_T0+1}], s{S_TAG}, v{vtmp+k*n+i}\ns_nop 1\ns_or_b64 vcc, vcc, s[{S_T0}:{S_T0+1}]")
            a(f"s_nop 1\ns_cmp_eq_u64 vcc, 0\ns_cbranch_scc1 {dn}")
        if not self.o.get("pp"):
            a(f"s_mov_b32 s{S_CNT}, 0\n{lp}:")
            ld(0)
            a("s_waitcnt vmcnt(0)")
            chk(0)
            a(f"s_add_u32 s{S_CNT}, s{S_CNT}, 1\ns_cmp_lt_u32 s{S_CNT}, {SPIN_LIMIT}\ns_cbranch_scc0 {dn}\ns_sleep 1\ns_branch {lp}\n{dn}:")
            return
        sl = f"s_sleep {self.o['pp'] - 1}\n" if self.o["pp"] > 1 else ""
        a(f"s_mov_b32 s{S_CNT}, 0")
        ld(0)
        a(f"{sl}{lp}:")
        ld(1)
        a(f"s_waitcnt vmcnt({n})")
        chk(0)
        ld(0)
        a(f"s_waitcnt vmcnt({n})")
        chk(1)
        a(f"s_add_u32 s{S_CNT}, s{S_CNT}, 1\ns_cmp_lt_u32 s{S_CNT}, {SPIN_LIMIT}\ns_cbranch_scc1 {lp}\n{dn}:")

    def flag_store(self, s_off, vtmp):
        a = self.a
        a(f"v_mov_b32 v{vtmp}, s{S_TAG}\nv_mov_b32 v{vtmp+1}, 0\ns_mov_b64 exec, 1")
        a(f"buffer_store_dword v{vtmp}, v{vtmp+1}, s[{R_WS}:{R_WS+3}], s{s_off} offen sc1\ns_mov_b64 exec, -1")

    def pipeline(self, stages, L, gstar, drain=True, wait_every=2, vis=None):
        a = self.a
        seq = [(si, gi, u) for si, st in enumerate(stages) for gi, u in enumerate(st["uses"])]
        issued = []
        vis = list(vis or [])
        state = dict(nxt=0, opened=-1)
        pend = []

        def collect(lim):
            while state["nxt"] < len(seq) and state["nxt"] <= lim and seq[state["nxt"]][0] <= state["opened"]:
                si_, _, u_ = seq[state["nxt"]]
                for name, txt in u_["reads"]:
                    pend.append((f"{si_}:{name}", txt))
                state["nxt"] += 1
                if seq[state["nxt"] - 1][1] == len(stages[si_]["uses"]) - 1 and si_ + 1 < len(stages):
                    state["defer"] = list(stages[si_ + 1].get("pre", []))

        def out(txt):
            if ";@" in txt:
                vis.append(txt.split(";@")[1].strip())
            a(txt)

        def emit(n):
            for _ in range(min(n, len(pend))):
                name, txt = pend.pop(0)
                out(txt)
                if name:
                    issued.append(name)

        a(stages[0]["bar"])
        state["opened"] = 0
        collect(L - 1)
        emit(len(pend))
        n_real = sum(len(st["uses"]) for st in stages if not st.get("virtual"))
        covered = -1
        for f in range(n_real):
            si, gi, u = seq[f]
            nuse = len(stages[si]["uses"])
            if gi == 0 and stages[si].get("head"):
                assert not pend, pend
                a(stages[si]["head"])
                covered = -1
            if gi == gstar and si + 1 < len(stages):
                emit(len(pend))
                for x in state.pop("defer", []):
                    a(x)
                if drain:
                    a("s_waitcnt lgkmcnt(0)")
                    covered = len(issued) - 1
                a(stages[si + 1]["bar"])
                pend.extend((None, x) for x in stages[si + 1].get("bar_pend", []))
                state["opened"] = si + 1
                collect(f + L - 1)
            def lastidx(ff):
                s_, _, uu = seq[ff]
                return max(len(issued) - 1 - issued[::-1].index(f"{s_}:{nm}") for nm in uu["need"])
            w = []
            if lastidx(f) > covered:
                tgt = lastidx(f)
                for ff in range(f + 1, min(f + wait_every, n_real)):
                    if seq[ff][0] != si:
                        break
                    try:
                        tgt = max(tgt, lastidx(ff))
                    except ValueError:
                        break
                n = len(issued) - 1 - tgt
                assert n <= 15, n
                w.append(f"lgkmcnt({n})")
                covered = tgt
            if u.get("vneed") is not None:
                w.insert(0, f"vmcnt({len(vis) - 1 - vis.index(u['vneed'])})")
            if u.get("vm") is not None:
                npv = sum(1 for nm_, t_ in pend if t_.strip().startswith("buffer_load"))
                w.insert(0, f"vmcnt({u['vm'] - npv})")
            if w:
                a("s_waitcnt " + " ".join(w))
            if u.get("before"):
                a(u["before"])
            if state.get("defer") and not pend:
                n_ = self.o.get("npre", 7)
                pend.extend((None, x) for x in state["defer"][:n_])
                state["defer"] = state["defer"][n_:]
            collect(f + L)
            if state.get("mix"):
                k_ = state.pop("mix")
                head_, rest_ = pend[:k_], pend[k_:]
                pend[:] = [x for pr in zip(head_, rest_) for x in pr] + head_[len(rest_):] + rest_[len(head_):]
            nm_ = len(u["mf"])
            for k, m in enumerate(u["mf"]):
                a(m)
                left = nm_ - k
                if drain and gi >= gstar:
                    left += sum(len(uu["mf"]) for uu in stages[si]["uses"][gi + 1:])
                    extra = 2 * (nuse - 1 - gi)
                    emit(-(-(len(pend) + extra) // left) if left > 1 else len(pend))
                else:
                    emit(-(-len(pend) // left))
            if u.get("after"):
                items = [x for x in u["after"].split("\n") if x.strip()]
                if gi == nuse - 1:
                    for x in items:
                        out(x)
                else:
                    assert not pend
                    pend.extend((None, x) for x in items)
                    state["mix"] = len(items)
            if gi == nuse - 1 and stages[si].get("tail"):
                a(stages[si]["tail"])

    def prologue(self):
        a = self.a
        a(f"""
        s_cmp_ge_u32 s2, 256
        s_cbranch_scc1 L_exit
        {"v_mov_b32 v254, 0" if self.stamps else ""}
        {"v_mov_b32 v255, 0" if self.stamps else ""}
        {"s_memrealtime s[98:99]" if self.o.get("calib") or "pc1" in self.o else ""}
        {"s_mov_b32 s94, 0" if "probe" in self.o or "pc1" in self.o else ""}
        s_load_dwordx16 s[4:19], s[0:1], 0
        s_load_dwordx8 s[20:27], s[0:1], 64
        v_and_b32 v1, 63, v0
        v_lshrrev_b32 v2, 6, v0
        s_and_b32 s{S_XCD}, s2, 7
        v_readfirstlane_b32 s{S_WAVE}, v2
        s_lshr_b32 s{S_J}, s2, 3
        s_waitcnt lgkmcnt(0)
        s_load_dword s{S_TAG}, s[{P_WS}:{P_WS+1}], 0
        """)
        self.srd(R_WS, P_WS, WS_USED)
        self.srd(R_X, P_X, 2048 * 1280)
        self.srd(R_W2, P_W2, 1536 * 4096)
        if self.stamps or self.o.get("dbg") or "probe" in self.o:
            a(f"s_cmp_lg_u32 s{S_WAVE}, 0\ns_cbranch_scc1 L_nost0")
            self.stamp(0, 4)
            a("L_nost0:")
        if self.o.get("tlb"):
            self.tlb_warm()
        if self.o.get("pf_code"):
            self.code_prefetch()
        if self.o.get("prio"):
            a(f"""
            s_sub_u32 s{S_T0}, s{S_WAVE}, 4
            s_cmp_lt_u32 s{S_T0}, 3
            s_cbranch_scc1 L_noprio
            s_setprio 3
            L_noprio:
            """)
        a(f"""
        s_lshr_b32 s{S_T0}, s{S_XCD}, 1
        s_lshl_b32 s{S_T0}, s{S_T0}, 3
        s_lshr_b32 s{S_ST}, s{S_J}, 2
        s_add_u32 s{S_ST}, s{S_ST}, s{S_T0}
        s_and_b32 s{S_T0}, s{S_XCD}, 1
        s_lshl_b32 s{S_T0}, s{S_T0}, 2
        s_and_b32 s{S_DTILE}, s{S_J}, 3
        s_add_u32 s{S_DTILE}, s{S_DTILE}, s{S_T0}
        s_cmp_lt_u32 s{S_XCD}, 4
        s_cbranch_scc1 L_roleB
        """)

    V_W2 = 240

    def f_perm(self):
        a = self.a
        a(f"s_lshl_b32 s{S_M}, s{S_DTILE}, 1\ns_add_u32 s{S_M}, s{S_M}, s{S_ST}\ns_and_b32 s{S_M}, s{S_M}, 7")
        self.perm_setup(S_M, 12, 8, S_PERM, self.o.get("rotF"))

    def w2_setup(self):
        a = self.a
        V = self.V_W2
        self.f_perm()
        a(f"""
        v_lshrrev_b32 v{V}, 3, v1
        v_lshrrev_b32 v{V+1}, 4, v1
        v_lshlrev_b32 v{V+1}, 1, v{V+1}
        v_and_b32 v{V+2}, 7, v1
        v_xor_b32 v{V+1}, v{V+1}, v{V+2}
        v_lshlrev_b32 v{V+1}, 4, v{V+1}
        v_lshl_add_u32 v{V}, v{V}, 12, v{V+1}
        v_add_u32 v{V+1}, {32768-1024}, v{V}
        v_add_u32 v{V+2}, {2*(32768-1024)}, v{V}
        v_add_u32 v{V+3}, {3*(32768-1024)}, v{V}
        s_sub_u32 s{S_T0}, s{S_WAVE}, 5
        s_lshl_b32 s{S_B}, s{S_T0}, 13
        s_lshl_b32 s{S_A}, s{S_T0}, 18
        s_lshl_b32 s{S_T0}, s{S_ST}, 7
        s_add_u32 s{S_A}, s{S_A}, s{S_T0}
        """)

    def w2_half(self, g):
        a = self.a
        V = self.V_W2
        if g == 0:
            a(self.perm_next(S_K0, S_PERM, 128 * 4096) + f"s_add_u32 s{S_K0}, s{S_K0}, s{S_A}")
        a(f"s_add_u32 m0, s{S_B}, {g*4096}\ns_add_u32 s{S_T0}, s{S_K0}, {g*4*32768}")
        for i in range(4):
            a(f"buffer_load_dwordx4 v{V+i}, s[{R_W2}:{R_W2+3}], s{S_T0} offen offset:{i*1024} lds")
        if g == 1:
            a(f"s_add_u32 s{S_B}, s{S_B}, 16384")

    def w2_issue(self):
        a = self.a
        V = self.V_W2
        a(self.perm_next(S_T0, S_PERM, 128 * 4096))
        a(f"s_add_u32 s{S_T0}, s{S_T0}, s{S_A}")
        for g in range(2):
            a(f"s_add_u32 m0, s{S_B}, {g*4096}")
            a(f"s_add_u32 s{S_T0}, s{S_T0}, {g*4*32768}")
            for i in range(4):
                a(f"buffer_load_dwordx4 v{V+i}, s[{R_W2}:{R_W2+3}], s{S_T0} offen offset:{i*1024} lds")
        a(f"s_add_u32 s{S_B}, s{S_B}, 16384\ns_and_b32 s{S_B}, s{S_B}, 0x1ffff")

    def w2_prefill(self, n):
        if n == 0:
            return
        a = self.a
        lp = a.label("pf")
        a(f"s_mov_b32 s{S_C}, 0\n{lp}:")
        self.w2_issue()
        a(f"s_add_u32 s{S_C}, s{S_C}, 1\ns_cmp_lt_u32 s{S_C}, {n}\ns_cbranch_scc1 {lp}")

    def if_wave56(self):
        a = self.a
        skip = a.label("n56")
        a(f"s_sub_u32 s{S_T0}, s{S_WAVE}, 5\ns_cmp_lt_u32 s{S_T0}, 2\ns_cbranch_scc0 {skip}")
        return skip

    def role_a(self):
        a = self.a
        a(f"L_roleA:\ns_mov_b32 s{S_FROMA}, 1")
        a(f"s_sub_u32 s{S_MT}, s{S_ST}, 16\ns_mov_b32 s{S_HG}, s{S_DTILE}")
        a(f"s_cmp_ge_u32 s{S_WAVE}, 4\ns_cbranch_scc1 L_A_loader")
        ACC, XF, WF, VXA, VWA = 128, 96, 64, 4, 6
        if self.o.get("ta1") or self.o.get("ta2"):
            self.start_prefetch()
        self.a_thread_map()
        a(f"""
        v_and_b32 v16, 15, v1
        v_lshrrev_b32 v17, 4, v1
        s_lshl_b32 s{S_T0}, s{S_WAVE}, 5
        v_add_u32 v18, s{S_T0}, v16
        v_lshrrev_b32 v19, 1, v16
        v_xor_b32 v19, v17, v19
        v_lshlrev_b32 v19, 4, v19
        v_lshl_add_u32 v{VXA}, v18, 7, v19
        v_xor_b32 v{VXA+1}, 64, v{VXA}
        v_lshrrev_b32 v18, 2, v16
        v_lshl_add_u32 v19, v17, 3, v18
        v_and_b32 v20, 1, v17
        v_lshl_or_b32 v20, v20, 2, v18
        v_lshlrev_b32 v19, 9, v19
        v_lshl_add_u32 v19, v20, 5, v19
        v_and_b32 v20, 3, v16
        v_lshl_add_u32 v19, v20, 3, v19
        v_add_u32 v{VWA}, {A_WOFF}, v19
        """)
        for n in range(1, 8):
            a(f"v_xor_b32 v{VWA+n}, {n<<5}, v{VWA}")
        for r in range(120):
            a(f"v_mov_b32 v{ACC+r}, 0")
        a(f"s_mov_b32 s{S_A}, 0\ns_mov_b32 s{S_B}, 0\ns_mov_b32 s{S_C}, {A_SLOT}\ns_waitcnt lgkmcnt(0)")
        a(f"s_add_u32 s{S_TAG}, s{S_TAG}, {TAG_INC:#x}")

        RING = 6
        D = 6

        def mk_stage(bar, virtual=False, head=None, tail=None):
            uses = []
            for g in range(30):
                ks, n = divmod(g, 15)
                wb = WF + 4 * (g % RING)
                reads = []
                if g == 0:
                    for rb in range(2):
                        reads.append((f"x0{rb}", f"ds_read_b128 {vr(XF+4*rb,4)}, v{VXA} offset:{rb*2048}"))
                if g == 13:
                    for rb in range(2):
                        reads.append((f"x1{rb}", f"ds_read_b128 {vr(XF+8+4*rb,4)}, v{VXA+1} offset:{rb*2048}"))
                off = ks * 16384 + (n >> 3) * 256
                reads.append((f"w{g}a", f"ds_read_b64_tr_b16 {vr(wb,2)}, v{VWA+(n&7)} offset:{off}"))
                reads.append((f"w{g}b", f"ds_read_b64_tr_b16 {vr(wb+2,2)}, v{VWA+(n&7)} offset:{off+2048}"))
                need = [f"w{g}b", f"x{ks}1"]
                mf = []
                for rb in range(2):
                    acc = vr(ACC + (n * 2 + rb) * 4, 4)
                    xf = vr(XF + ks * 8 + rb * 4, 4)
                    wf = vr(wb, 4)
                    if n < 5:
                        mf.append(f"v_mfma_f32_16x16x32_bf16 {acc}, {wf}, {xf}, {acc}")
                    else:
                        mf.append(f"v_mfma_f32_16x16x32_bf16 {acc}, {xf}, {wf}, {acc}")
                uses.append(dict(reads=reads, need=need, mf=mf))
            return dict(uses=uses, bar=bar, virtual=virtual, head=head, tail=tail)

        adv = "s_barrier"
        pre = [f"s_add_u32 s{S_B}, s{S_B}, 1", f"s_cmp_eq_u32 s{S_B}, 3", f"s_cselect_b32 s{S_B}, 0, s{S_B}",
               f"s_cselect_b32 s{S_T0}, {(-2*A_SLOT) & 0xffffffff:#x}, s{S_C}"]
        pre += [f"v_add_u32 v{r}, s{S_T0}, v{r}" for r in range(VXA, VWA + 8)]
        tail = f"s_add_u32 s{S_A}, s{S_A}, 1\ns_cmp_lt_u32 s{S_A}, 10\ns_cbranch_scc1 L_A_loop"
        head = "L_A_loop:\n"
        bar0 = "s_barrier"
        if self.o.get("tw2") == 2:
            self.srd(R_P, P_WO, 640 * 1280)
            a(f"""
            v_lshlrev_b32 v252, 7, v1
            s_lshl_b32 s{S_T0}, s{S_MT}, 3
            s_add_u32 s{S_T0}, s{S_T0}, s{S_HG}
            s_lshl_b32 s{S_T0}, s{S_T0}, 2
            s_add_u32 s{S_T0}, s{S_T0}, s{S_WAVE}
            s_mul_i32 s{S_D}, s{S_T0}, 12288
            s_add_u32 s{S_KST}, s{S_D}, 8192
            s_mul_i32 s{S_PAR}, s{S_T0}, 1664
            s_and_b32 s{S_M}, s{S_J}, 7
            s_add_u32 s{S_M}, s{S_M}, {self.o.get("tw2at", 1)}
            """)
            head += f"""
            s_cmp_lg_u32 s{S_A}, s{S_M}
            s_cbranch_scc1 L_A_nt2
            buffer_load_dword v253, v252, s[{R_W2}:{R_W2+3}], s{S_D} offen
            s_mov_b32 exec_hi, 0
            buffer_load_dword v253, v252, s[{R_W2}:{R_W2+3}], s{S_KST} offen
            s_mov_b32 exec_lo, 0x1fff
            buffer_load_dword v253, v252, s[{R_P}:{R_P+3}], s{S_PAR} offen
            s_mov_b64 exec, -1
            L_A_nt2:
            """
        if "promA" in self.o:
            head += f"s_cmp_lg_u32 s{S_A}, {self.o['promA']}\ns_cbranch_scc1 L_A_npr\n" + self.pf_rest_plain() + "L_A_npr:\n"
        ta2 = self.o.get("ta2")
        if ta2 == 1:
            a(self.pf_rest())
        elif ta2 == 2:
            bar0 += "\n" + self.pf_rest()
        elif ta2:
            head += f"s_cmp_lg_u32 s{S_A}, {ta2-2}\ns_cbranch_scc1 L_A_npf\n" + self.pf_rest() + "L_A_npf:\n"
        self.pipeline([mk_stage(bar0, head=head, tail=tail), dict(mk_stage(adv, virtual=True), pre=pre)], 5, 30 - 3, wait_every=self.o.get('we', 2))
        self.stamp(2, 16)
        PK, VV, ONES, KVD, ZD = 16, 36, 56, 64, 116
        a("s_waitcnt lgkmcnt(0)\ns_nop 7")
        a(f"s_mov_b32 s{S_K0}, {LOG2E:#x}\ns_mov_b32 s{S_K0+1}, {LOG2E:#x}\ns_mov_b32 s{S_K0+2}, {f2u(1e-6):#x}")

        def phi(base, n, t):
            for i in range(0, n, 4):
                r = base + i
                a(f"v_pk_mul_f32 {vr(t,2)}, {vr(r,2)}, s[{S_K0}:{S_K0+1}]")
                a(f"v_pk_mul_f32 {vr(t+2,2)}, {vr(r+2,2)}, s[{S_K0}:{S_K0+1}]")
                for k in range(4):
                    a(f"v_exp_f32_e64 v{t+k}, v{t+k} clamp")
                for k in range(4):
                    a(f"v_max_f32 v{r+k}, s{S_K0+2}, v{r+k}")
                a(f"v_pk_add_f32 {vr(r,2)}, {vr(r,2)}, {vr(t,2)}")
                a(f"v_pk_add_f32 {vr(r+2,2)}, {vr(r+2,2)}, {vr(t+2,2)}")

        def pack(dst, src0, src1):
            a(f"v_cvt_pk_bf16_f32 v{dst}, v{src0}, v{src0+1}\nv_cvt_pk_bf16_f32 v{dst+1}, v{src0+2}, v{src0+3}")
            if src1 is None:
                a(f"v_mov_b32 v{dst+2}, 0\nv_mov_b32 v{dst+3}, 0")
            else:
                a(f"v_cvt_pk_bf16_f32 v{dst+2}, v{src1}, v{src1+1}\nv_cvt_pk_bf16_f32 v{dst+3}, v{src1+2}, v{src1+3}")

        for b in range(5):
            pack(VV + 4 * b, ACC + (10 + b) * 8, ACC + (10 + b) * 8 + 4)
        for k in range(4):
            a(f"v_mov_b32 v{ONES+k}, 0x3f803f80")
        phi(ACC + 40, 40, 60)
        for b in range(5):
            pack(PK + 4 * b, ACC + (5 + b) * 8, ACC + (5 + b) * 8 + 4)
        a("s_nop 1")
        ZD = ACC + 80
        blocks = [(x, y) for x in range(5) for y in range(5) if abs(x - y) <= 1]
        for (x, y) in blocks:
            a(f"v_mfma_f32_16x16x32_bf16 {vr(KVD+4*(2*x+y),4)}, {vr(PK+4*x,4)}, {vr(VV+4*y,4)}, 0")
        for x in range(5):
            a(f"v_mfma_f32_16x16x32_bf16 {vr(ZD+4*x,4)}, {vr(ONES,4)}, {vr(PK+4*x,4)}, 0")
        a(f"""
        s_mul_i32 s{S_T0}, s{S_WAVE}, {EXCH_ST}
        s_add_u32 s{S_T0}, s{S_T0}, {EXCH}
        v_lshlrev_b32 v60, 4, v1
        v_add_u32 v60, s{S_T0}, v60
        v_and_b32 v61, 15, v1
        v_lshlrev_b32 v61, 2, v61
        v_add_u32 v61, s{S_T0}, v61
        s_nop 3
        """)
        for i in range(13):
            a(f"ds_write_b128 v60, {vr(KVD+4*i,4)} offset:{i*1024}")
        for x in range(5):
            a(f"ds_write_b32 v61, v{ZD+4*x} offset:{13312+64*x}")
        a("s_waitcnt lgkmcnt(0)\ns_barrier")
        self.a_reduce_publish(64)
        a("s_barrier")
        PQ = 16
        phi(ACC, 40, 60)
        for ts in range(3):
            for rb in range(2):
                pack(PQ + (ts * 2 + rb) * 4, ACC + (2 * ts * 2 + rb) * 4, None if ts == 2 else ACC + ((2 * ts + 1) * 2 + rb) * 4)
        self.uw_srd()
        self.f_setup()
        a("s_barrier")
        if not self.o.get("wotl"):
            self.wot_preload(self.F_V[2])
        a("s_barrier")
        a(f"""
        v_and_b32 v63, 15, v1
        v_lshlrev_b32 v63, 2, v63
        s_lshl_b32 s{S_T0}, s{S_MT}, 7
        s_lshl_b32 s{S_T0+1}, s{S_WAVE}, 5
        s_add_u32 s{S_T0}, s{S_T0}, s{S_T0+1}
        s_lshl_b32 s{S_T0}, s{S_T0}, 2
        s_add_u32 s{S_T0}, s{S_T0}, {G_OFF}
        buffer_load_dword v62, v63, s[{R_WS}:{R_WS+3}], s{S_T0} offen sc1
        buffer_load_dword v61, v63, s[{R_WS}:{R_WS+3}], s{S_T0} offen offset:64 sc1
        """)
        self.a_gather(64)
        a("s_waitcnt lgkmcnt(0)\ns_barrier")
        self.stamp(4, 40)
        FR = 64
        a("v_lshlrev_b32 v60, 4, v1\nv_add_u32 v60, " + str(KVT) + ", v60")
        used = [0, 2, 3, 4, 5, 7, 8, 9, 10, 11, 12, 13]
        for f in used:
            a(f"ds_read_b128 {vr(FR+4*f,4)}, v60 offset:{f*1024}")
        NUM, DEN = 128, 120
        kts = {0: [0], 1: [0, 1], 2: [0, 1], 3: [1, 2], 4: [1, 2]}
        a(f"""
        v_lshrrev_b32 v40, 4, v1
        v_cmp_gt_u32 s[{S_MSK}:{S_MSK+1}], 1, v40
        v_cmp_gt_u32 s[{S_MSK+2}:{S_MSK+3}], 2, v40
        v_cmp_gt_u32 s[{S_MSK+4}:{S_MSK+5}], 3, v40
        s_waitcnt lgkmcnt(0)
        """)
        for rb in range(2):
            for ts in range(3):
                c = "0" if ts == 0 else vr(DEN + 4 * rb, 4)
                a(f"v_mfma_f32_16x16x32_bf16 {vr(DEN+4*rb,4)}, {vr(FR+4*(11+ts),4)}, {vr(PQ+(ts*2+rb)*4,4)}, {c}")
        for rb in range(2):
            for b in range(5):
                for i, ts in enumerate(kts[b]):
                    d = vr(NUM + (rb * 5 + b) * 4, 4)
                    c = "0" if i == 0 else d
                    a(f"v_mfma_f32_16x16x32_bf16 {d}, {vr(FR+4*(2*b+ts),4)}, {vr(PQ+(ts*2+rb)*4,4)}, {c}")
        for rb in range(2):
            for h in range(4):
                a(f"v_add_f32 v{DEN+4*rb+h}, s{S_K0+2}, v{DEN+4*rb+h}")
        for rb in range(2):
            for h in range(4):
                a(f"v_rcp_f32 v{DEN+4*rb+h}, v{DEN+4*rb+h}")
        a("s_nop 0")
        gv = {0: 62, 1: 61}
        for rb in range(2):
            for h in range(4):
                a(f"v_mul_f32 v{DEN+4*rb+h}, v{gv[rb]}, v{DEN+4*rb+h}")
        a(f"""
        s_lshl_b32 s{S_T0}, s{S_MT}, 3
        s_lshl_b32 s{S_T0+1}, s{S_WAVE}, 1
        s_add_u32 s{S_T0}, s{S_T0}, s{S_T0+1}
        s_mul_i32 s{S_T0}, s{S_T0}, {GO_ST}
        s_add_u32 s{S_T0}, s{S_T0}, {GO}
        s_lshl_b32 s{S_T0+1}, s{S_HG}, 11
        s_add_u32 s{S_T0+1}, s{S_T0+1}, s{S_T0}
        s_lshl_b32 s{S_T0+2}, s{S_HG}, 9
        s_add_u32 s{S_T0+2}, s{S_T0+2}, s{S_T0}
        s_add_u32 s{S_T0+2}, s{S_T0+2}, 16384
        v_lshlrev_b32 v40, 4, v1
        v_lshlrev_b32 v41, 3, v1
        """)
        for rb in range(2):
            d = DEN + 4 * rb
            a(f"v_cndmask_b32 v44, v{d+1}, v{d}, s[{S_MSK}:{S_MSK+1}]")
            a(f"v_cndmask_b32 v45, v{d+2}, v{d+1}, s[{S_MSK+2}:{S_MSK+3}]")
            a(f"v_cndmask_b32 v46, v{d+3}, v{d+2}, s[{S_MSK+4}:{S_MSK+5}]")
            sc = [d, 44, 45, 46, d + 3]
            for b in range(5):
                for k in range(4):
                    r = NUM + (rb * 5 + b) * 4 + k
                    a(f"v_mul_f32 v{r}, v{sc[b]}, v{r}")
            o = 16 + rb * 12
            n0 = NUM + rb * 20
            pack(o, n0, n0 + 4)
            pack(o + 4, n0 + 8, n0 + 12)
            a(f"v_cvt_pk_bf16_f32 v{o+8}, v{n0+16}, v{n0+17}\nv_cvt_pk_bf16_f32 v{o+9}, v{n0+18}, v{n0+19}")
            a(f"buffer_store_dwordx4 {vr(o,4)}, v40, s[{R_WS}:{R_WS+3}], s{S_T0+1} offen sc1")
            a(f"buffer_store_dwordx4 {vr(o+4,4)}, v40, s[{R_WS}:{R_WS+3}], s{S_T0+1} offen offset:1024 sc1")
            a(f"buffer_store_dwordx2 {vr(o+8,2)}, v41, s[{R_WS}:{R_WS+3}], s{S_T0+2} offen sc1")
            if rb == 0:
                a(f"s_add_u32 s{S_T0+1}, s{S_T0+1}, {GO_ST}\ns_add_u32 s{S_T0+2}, s{S_T0+2}, {GO_ST}")
        self.stamp(5, 40)
        a("s_branch L_F_comp")

        a("L_A_loader:")
        VX, VW = 4, 8
        self.srd(R_W, P_WQKV, 640 * 3840)
        a(f"""
        s_sub_u32 s{S_D}, s{S_WAVE}, 4
        v_lshrrev_b32 v16, 3, v1
        v_lshrrev_b32 v17, 4, v1
        v_and_b32 v18, 7, v1
        v_xor_b32 v17, v17, v18
        v_lshlrev_b32 v17, 4, v17
        v_mul_u32_u24 v16, 1280, v16
        v_add_u32 v{VX}, v16, v17
        v_xor_b32 v18, 64, v{VX}
        v_add_u32 v{VX+1}, {8*1280-1024}, v18
        v_add_u32 v{VX+2}, {2*(8*1280-1024)}, v{VX}
        v_add_u32 v{VX+3}, {3*(8*1280-1024)}, v18
        s_lshl_b32 s{S_T0}, s{S_MT}, 7
        s_lshl_b32 s{S_T0+1}, s{S_D}, 5
        s_add_u32 s{S_T0}, s{S_T0}, s{S_T0+1}
        s_mul_i32 s{S_A}, s{S_T0}, 1280
        s_lshl_b32 s{S_C}, s{S_D}, 12
        """)
        def issue_x():
            a(f"s_mov_b32 m0, s{S_C}\ns_nop 0")
            for i in range(4):
                a(f"buffer_load_dwordx4 v{VX+i}, s[{R_X}:{R_X+3}], s{S_A} offen offset:{i*1024} lds")
            a(f"s_add_u32 s{S_A}, s{S_A}, 128")

        def issue_w():
            for g in range(2):
                a(f"s_lshl_b32 s{S_T0}, s{S_D}, 12\ns_add_u32 s{S_T0}, s{S_T0}, s{S_C}\ns_add_u32 m0, s{S_T0}, {A_WOFF + g*4096}\ns_nop 0")
                for i in range(4):
                    a(f"buffer_load_dwordx4 v{VW+4*g+i}, s[{R_W}:{R_W+3}], s{S_B} offen offset:{i*1024} lds")
            a(f"s_add_u32 s{S_B}, s{S_B}, {64*3840}")

        def next_slot():
            a(f"s_add_u32 s{S_C}, s{S_C}, {A_SLOT}\ns_cmp_ge_u32 s{S_C}, {3*A_SLOT}\ns_cselect_b32 s{S_T0}, {3*A_SLOT}, 0\ns_sub_u32 s{S_C}, s{S_C}, s{S_T0}")

        issue_x()
        a(f"""
        v_lshrrev_b32 v16, 5, v1
        v_bfe_u32 v17, v1, 1, 4
        v_and_b32 v18, 1, v1
        v_lshlrev_b32 v18, 4, v18
        v_mul_u32_u24 v19, 3840, v16
        v_add_u32 v18, v18, v19
        """)
        for i in (0, 1, 4, 5):
            sig = (2 * (i & 1)) | ((i >> 2) << 2)
            a(f"""
            v_or_b32 v19, {sig}, v16
            v_xor_b32 v19, v17, v19
            v_min_u32 v19, 14, v19
            v_mul_u32_u24 v20, 13, v19
            v_lshrrev_b32 v20, 6, v20
            v_mul_u32_u24 v20, 1120, v20
            v_lshl_add_u32 v19, v19, 5, v20
            v_add_u32 v19, v19, v18
            v_add_u32 v{VW+i}, {2*i*3840 - (i&3)*1024}, v19
            v_add_u32 v{VW+i+2}, {2*(i+2)*3840 - ((i+2)&3)*1024}, v19
            """)
        a(f"""
        s_mul_i32 s{S_B}, s{S_HG}, 160
        s_mul_i32 s{S_T0}, s{S_D}, {16*3840}
        s_add_u32 s{S_B}, s{S_B}, s{S_T0}
        """)
        issue_w()
        for _ in range(2):
            next_slot()
            issue_x()
            issue_w()
        a(f"v_lshlrev_b32 v16, 4, v1\ns_lshl_b32 s{S_T0}, s{S_D}, 12\ns_add_u32 s{S_T0}, s{S_T0}, {KVT}\nv_add_u32 v16, s{S_T0}, v16")
        a("v_mov_b32 v20, 0\nv_mov_b32 v21, 0\nv_mov_b32 v22, 0\nv_mov_b32 v23, 0")
        for i in range(4):
            a(f"ds_write_b128 v16, v[20:23] offset:{i*1024}")
        a(f"s_waitcnt lgkmcnt(0)\ns_add_u32 s{S_TAG}, s{S_TAG}, {TAG_INC:#x}")
        a("s_waitcnt vmcnt(24)\ns_barrier")
        self.stamp(1, 16)
        a(f"s_mov_b32 s{S_CNT}, 1\nL_A_lloop:")
        a("s_waitcnt vmcnt(12)\ns_barrier")
        self.stamp(16, 16, dyn=S_CNT)
        next_slot()
        issue_x()
        issue_w()
        a(f"s_add_u32 s{S_CNT}, s{S_CNT}, 1\ns_cmp_le_u32 s{S_CNT}, 7\ns_cbranch_scc1 L_A_lloop")
        tw = 3 if self.o.get("tw2") == 1 else 0
        a(f"s_waitcnt vmcnt(12)\ns_barrier")
        if tw:
            self.w2_touch()
        self.stamp(24, 16)
        self.w2_setup()
        a(f"""
        s_mov_b64 s[{S_PERM2}:{S_PERM2+1}], s[{S_PERM}:{S_PERM+1}]
        s_lshr_b64 s[{S_PERM}:{S_PERM+1}], s[{S_PERM}:{S_PERM+1}], 16
        s_add_u32 s{S_B}, s{S_B}, 0x10000
        s_waitcnt vmcnt({tw})
        s_barrier
        """)
        self.stamp(25, 16)
        eA = self.o.get("eA", 2)
        sk = self.if_wave56()
        self.w2_prefill(eA)
        a(f"{sk}:\ns_barrier")
        self.stamp(26, 16)
        sk = self.if_wave56()
        self.w2_prefill(4 - eA)
        a(f"{sk}:")
        self.a_thread_map()
        a("s_barrier")
        a(f"s_cmp_eq_u32 s{S_WAVE}, 7\ns_cbranch_scc1 L_A_poller")
        self.a_reduce_publish(64)
        a("s_barrier")
        skip = self.if_wave56()
        a(f"s_mov_b64 s[{S_T0+2}:{S_T0+3}], s[{S_PERM}:{S_PERM+1}]\ns_mov_b64 s[{S_PERM}:{S_PERM+1}], s[{S_PERM2}:{S_PERM2+1}]\ns_mov_b64 s[{S_PERM2}:{S_PERM2+1}], s[{S_T0+2}:{S_T0+3}]")
        self.w2_prefill(4)
        a(f"s_mov_b64 s[{S_PERM}:{S_PERM+1}], s[{S_PERM2}:{S_PERM2+1}]\ns_sub_u32 s{S_B}, s{S_B}, 0x10000")
        a("s_barrier\ns_barrier")
        self.a_gather(64)
        a("s_waitcnt lgkmcnt(0)\ns_barrier")
        a("s_branch L_F_loader")
        a(f"{skip}:\ns_barrier\ns_barrier")
        self.a_gather(64)
        a("s_waitcnt lgkmcnt(0)\ns_barrier")
        a("s_branch L_F_u4")
        a("L_A_poller:\ns_barrier")
        self.stamp(3, 16)
        a(f"s_mul_i32 s{S_T0}, s{S_DTILE}, {FS}\ns_add_u32 s{S_T0}, s{S_T0}, {F_WOT}\nv_mov_b32 v16, s{S_T0}")
        self.poll([16], 18)
        a("s_barrier")
        a(f"""
        v_and_b32 v16, 15, v1
        s_lshl_b32 s{S_T0}, s{S_HG}, 4
        v_add_u32 v16, s{S_T0}, v16
        v_mul_u32_u24 v16, {KVP_ST}, v16
        v_add_u32 v16, {KVP + 419*16}, v16
        v_and_b32 v17, 3, v1
        s_lshl_b32 s{S_T0}, s{S_MT}, 2
        v_add_u32 v17, s{S_T0}, v17
        v_mul_u32_u24 v17, {FS}, v17
        v_add_u32 v17, {F_LN}, v17
        v_cmp_gt_u32 vcc, 32, v1
        v_mov_b32 v22, 0xff
        s_nop 0
        v_cndmask_b32 v16, v17, v16, vcc
        v_cndmask_b32 v22, -1, v22, vcc
        """)
        self.poll([16], 18, mask=22)
        self.stamp(13, 16)
        a("s_barrier\ns_barrier")
        a("s_branch L_F_poller")

    def start_prefetch(self):
        a = self.a
        self.srd(R_W, P_WQKV, 640 * 3840)
        a(f"""
        s_lshl_b32 s{S_T0}, s{S_J}, 2
        s_add_u32 s{S_T0}, s{S_T0}, s{S_WAVE}
        v_lshrrev_b32 v16, 2, v1
        v_and_b32 v17, 3, v1
        v_mul_u32_u24 v16, 1280, v16
        v_lshl_add_u32 v16, v17, 7, v16
        s_lshr_b32 s{S_T0+2}, s{S_MT}, 3
        s_lshl_b32 s{S_T0+2}, s{S_T0+2}, 7
        s_add_u32 s{S_T0+2}, s{S_T0+2}, s{S_T0}
        s_mul_i32 s{S_DT}, s{S_T0+2}, {8*1280}
        v_lshrrev_b32 v19, 4, v1
        v_and_b32 v17, 15, v1
        v_min_u32 v17, 14, v17
        v_mul_u32_u24 v18, 13, v17
        v_lshrrev_b32 v18, 6, v18
        v_mul_u32_u24 v18, 640, v18
        v_lshl_add_u32 v18, v17, 7, v18
        v_mul_u32_u24 v19, 3840, v19
        v_add_u32 v112, v18, v19
        s_lshr_b32 s{S_T0+2}, s{S_HG}, 2
        s_mul_i32 s{S_T0+2}, s{S_T0+2}, 640
        s_mul_i32 s{S_FT}, s{S_T0}, {2*3840}
        s_add_u32 s{S_FT}, s{S_FT}, s{S_T0+2}
        """)
        if self.o.get("ta1"):
            a(f"""
            s_mov_b32 exec_hi, 0
            buffer_load_dword v253, v112, s[{R_W}:{R_W+3}], s{S_FT} offen {self.nt('nta')}
            buffer_load_dword v253, v16, s[{R_X}:{R_X+3}], s{S_DT} offen {self.nt('ntax')}
            s_mov_b32 exec_hi, -1
            """)
        a(f"""
        s_mul_i32 s{S_FT}, s{S_T0}, {3*3840}
        s_add_u32 s{S_FT}, s{S_FT}, s{S_T0+2}
        s_add_u32 s{S_FT}, s{S_FT}, {256*3840}
        v_lshrrev_b32 v16, 3, v1
        v_and_b32 v17, 7, v1
        v_min_u32 v17, 5, v17
        v_mul_u32_u24 v16, 1280, v16
        v_lshl_add_u32 v113, v17, 7, v16
        s_add_u32 s{S_DT}, s{S_DT}, 512
        """)

    def pf_rest_plain(self):
        return f"""s_waitcnt vmcnt(0)
        s_mov_b32 exec_hi, 0xffff
        buffer_load_dword v253, v112, s[{R_W}:{R_W+3}], s{S_FT} offen
        s_mov_b32 exec_hi, -1
        buffer_load_dword v253, v113, s[{R_X}:{R_X+3}], s{S_DT} offen
        """

    def pf_rest(self):
        return f"""s_mov_b32 exec_hi, 0xffff
        buffer_load_dword v253, v112, s[{R_W}:{R_W+3}], s{S_FT} offen {self.nt('nta')}
        s_mov_b32 exec_hi, -1
        buffer_load_dword v253, v113, s[{R_X}:{R_X+3}], s{S_DT} offen {self.nt('ntax')}
        """

    def w2_touch(self):
        a = self.a
        self.srd(R_W2, P_W2, 1536 * 4096)
        a(f"""
        v_lshlrev_b32 v48, 7, v1
        s_lshl_b32 s{S_T0}, s{S_MT}, 3
        s_add_u32 s{S_T0}, s{S_T0}, s{S_HG}
        s_lshl_b32 s{S_T0}, s{S_T0}, 2
        s_add_u32 s{S_T0}, s{S_T0}, s{S_D}
        s_mul_i32 s{S_T0}, s{S_T0}, 12288
        buffer_load_dword v253, v48, s[{R_W2}:{R_W2+3}], s{S_T0} offen
        s_add_u32 s{S_T0}, s{S_T0}, 8192
        s_mov_b32 exec_hi, 0
        buffer_load_dword v253, v48, s[{R_W2}:{R_W2+3}], s{S_T0} offen
        """)
        self.srd(R_P, P_WO, 640 * 1280)
        a(f"""
        s_lshl_b32 s{S_T0}, s{S_MT}, 3
        s_add_u32 s{S_T0}, s{S_T0}, s{S_HG}
        s_lshl_b32 s{S_T0}, s{S_T0}, 2
        s_add_u32 s{S_T0}, s{S_T0}, s{S_D}
        s_mul_i32 s{S_T0}, s{S_T0}, 1664
        s_mov_b32 exec_lo, 0x1fff
        buffer_load_dword v253, v48, s[{R_P}:{R_P+3}], s{S_T0} offen
        s_mov_b64 exec, -1
        """)

    def tlb_warm(self):
        a = self.a
        mode = self.o["tlb"]
        wv = self.o.get("tlbw", 3)
        a(f"s_cmp_lg_u32 s{S_WAVE}, {wv}\ns_cbranch_scc1 L_notlb")
        self.srd(R_OUT, P_OUT, 2048 * 1280)
        self.srd(R_M, P_B2, 4096)
        self.srd(R_P, P_WO, 640 * 1280)
        self.srd(R_W, P_W1, 2048 * 3072)
        if mode == 1:
            a("v_lshlrev_b32 v4, 20, v1\nv_min_u32 v4, 0xf00000, v4\ns_mov_b64 exec, 0xffff")
            so = "0"
        else:
            a(f"v_lshlrev_b32 v4, 21, v1\ns_lshl_b32 s{S_T0}, s{S_J}, 16\ns_mov_b64 exec, 0x1f")
            so = f"s{S_T0}"
        for r in (R_WS, R_W2, R_OUT, R_W, R_P, R_M):
            a(f"buffer_load_dword v253, v4, s[{r}:{r+3}], {so} offen sc1")
        a("s_mov_b64 exec, -1\nL_notlb:")

    def code_prefetch(self):
        a = self.a
        a(f"""
        s_cmp_lg_u32 s{S_WAVE}, 3
        s_cbranch_scc1 L_nocpf
        s_cmp_ge_u32 s{S_J}, 4
        s_cbranch_scc1 L_nocpf
        s_getpc_b64 s[{S_T0}:{S_T0+1}]
        L_pcref:
        s_lshl_b32 s{S_T0+2}, s{S_J}, 13
        v_lshlrev_b32 v4, 7, v1
        v_add_u32 v4, s{S_T0+2}, v4
        v_min_u32 v4, L_end-L_pcref, v4
        global_load_dword v253, v4, s[{S_T0}:{S_T0+1}]
        L_nocpf:
        """)

    def a_thread_map(self):
        a = self.a
        a(f"""
        v_mul_u32_u24 v16, 625, v0
        v_lshrrev_b32 v16, 16, v16
        v_mul_u32_u24 v17, 105, v16
        v_sub_u32 v17, v0, v17
        v_mul_u32_u24 v18, 205, v17
        v_lshrrev_b32 v18, 10, v18
        v_mul_u32_u24 v19, 5, v18
        v_sub_u32 v19, v17, v19
        v_mad_u32_u24 v19, v16, 5, v19
        v_mad_u32_u24 v20, v16, 20, v18
        v_lshrrev_b32 v21, 2, v19
        v_and_b32 v22, 3, v19
        v_lshrrev_b32 v23, 4, v20
        v_and_b32 v20, 15, v20
        v_lshl_add_u32 v20, v22, 4, v20
        v_lshl_add_u32 v2, v21, 1, v23
        v_lshlrev_b32 v2, 6, v2
        v_add_u32 v2, v2, v20
        v_lshlrev_b32 v2, 4, v2
        v_lshlrev_b32 v3, 4, v19
        v_add_u32 v3, 13312, v3
        v_cmp_lt_u32 vcc, 99, v17
        v_lshrrev_b32 v24, 1, v21
        v_and_b32 v21, 1, v21
        v_cndmask_b32 v2, v2, v3, vcc
        v_lshl_add_u32 v3, v23, 1, v24
        v_add_u32 v24, 11, v24
        v_lshl_add_u32 v22, v22, 4, v16
        v_cndmask_b32 v3, v3, v24, vcc
        v_cndmask_b32 v20, v20, v22, vcc
        v_lshl_add_u32 v3, v3, 6, v20
        v_lshlrev_b32 v3, 4, v3
        v_lshl_add_u32 v3, v21, 3, v3
        v_add_u32 v3, {KVT}, v3
        v_mov_b32 v25, 2
        v_cndmask_b32 v25, 1, v25, vcc
        v_mov_b32 v16, 420
        v_cmp_gt_u32 vcc, v16, v0
        v_lshlrev_b32 v14, 4, v0
        s_nop 0
        v_cndmask_b32 v15, 0, v25, vcc
        v_cndmask_b32 v2, 0, v2, vcc
        v_add_u32 v2, {EXCH}, v2
        """)

    def a_reduce_publish(self, T):
        a = self.a
        for w in range(4):
            a(f"ds_read_b128 {vr(T+4*w,4)}, v2 offset:{w*EXCH_ST}")
        a(f"""
        s_lshl_b32 s{S_T0}, s{S_HG}, 4
        s_add_u32 s{S_T0}, s{S_T0}, s{S_MT}
        s_mul_i32 s{S_T0}, s{S_T0}, {KVP_ST}
        s_add_u32 s{S_T0}, s{S_T0}, {KVP}
        v_cmp_ne_u32 vcc, 0, v15
        s_waitcnt lgkmcnt(0)
        v_pk_add_f32 {vr(T,2)}, {vr(T,2)}, {vr(T+4,2)}
        v_pk_add_f32 {vr(T+2,2)}, {vr(T+2,2)}, {vr(T+6,2)}
        v_pk_add_f32 {vr(T+8,2)}, {vr(T+8,2)}, {vr(T+12,2)}
        v_pk_add_f32 {vr(T+10,2)}, {vr(T+10,2)}, {vr(T+14,2)}
        v_pk_add_f32 {vr(T,2)}, {vr(T,2)}, {vr(T+8,2)}
        v_pk_add_f32 {vr(T+2,2)}, {vr(T+2,2)}, {vr(T+10,2)}
        v_mov_b32_sdwa v{T}, s{S_TAG} dst_sel:BYTE_0 dst_unused:UNUSED_PRESERVE src0_sel:BYTE_0
        v_mov_b32_sdwa v{T+1}, s{S_TAG} dst_sel:BYTE_0 dst_unused:UNUSED_PRESERVE src0_sel:BYTE_1
        v_mov_b32_sdwa v{T+2}, s{S_TAG} dst_sel:BYTE_0 dst_unused:UNUSED_PRESERVE src0_sel:BYTE_2
        v_mov_b32_sdwa v{T+3}, s{S_TAG} dst_sel:BYTE_0 dst_unused:UNUSED_PRESERVE src0_sel:BYTE_3
        s_mov_b64 exec, vcc
        buffer_store_dwordx4 {vr(T,4)}, v14, s[{R_WS}:{R_WS+3}], s{S_T0} offen sc1
        s_mov_b64 exec, -1
        """)

    def a_gather(self, T):
        a = self.a
        rt, ok = a.label("gre"), a.label("gok")
        a(f"s_mul_i32 s{S_T0+1}, s{S_HG}, {16*KVP_ST}\ns_add_u32 s{S_T0+1}, s{S_T0+1}, {KVP}")
        a(f"v_cmp_ne_u32 s[{S_T0+4}:{S_T0+5}], 0, v15\ns_mov_b32 s{S_CNT}, 0\n{rt}:")
        a(f"s_lshl_b32 s{S_T0+2}, s{S_MT}, 1\ns_mov_b64 exec, s[{S_T0+4}:{S_T0+5}]")
        for m in range(16):
            a(f"s_and_b32 s{S_T0+2}, s{S_T0+2}, 15\ns_mul_i32 s{S_T0}, s{S_T0+2}, {KVP_ST}\ns_add_u32 s{S_T0}, s{S_T0}, s{S_T0+1}\ns_add_u32 s{S_T0+2}, s{S_T0+2}, 1")
            a(f"buffer_load_dwordx4 {vr(T+4*m,4)}, v14, s[{R_WS}:{R_WS+3}], s{S_T0} offen sc1")
        for m in range(0, 16, 2):
            a(f"s_waitcnt vmcnt({14-m})")
            for q in range(8):
                a(f"v_cmpx_eq_u32_sdwa vcc, v{T+4*m+q}, s{S_TAG} src0_sel:BYTE_0 src1_sel:BYTE_{q & 3}")
            for h in (0, 2):
                a(f"v_pk_add_f32 {vr(T+4*m+h,2)}, {vr(T+4*m+h,2)}, {vr(T+4*(m+1)+h,2)}")
            if m >= 2:
                for h in (0, 2):
                    a(f"v_pk_add_f32 {vr(T+h,2)}, {vr(T+h,2)}, {vr(T+4*m+h,2)}")
        a(f"""
        s_cmp_eq_u64 exec, s[{S_T0+4}:{S_T0+5}]
        s_cbranch_scc1 {ok}
        s_add_u32 s{S_CNT}, s{S_CNT}, 1
        s_cmp_lt_u32 s{S_CNT}, {SPIN_LIMIT}
        s_cbranch_scc1 {rt}
        {ok}:
        s_mov_b64 exec, -1
        """)
        a(f"""
        v_cvt_pk_bf16_f32 v{T}, v{T}, v{T+1}
        v_cvt_pk_bf16_f32 v{T+1}, v{T+2}, v{T+3}
        v_cmp_ne_u32 vcc, 0, v15
        v_cmp_eq_u32 s[{S_T0}:{S_T0+1}], 2, v15
        s_nop 1
        s_mov_b64 exec, vcc
        ds_write_b64 v3, {vr(T,2)}
        s_mov_b64 exec, s[{S_T0}:{S_T0+1}]
        ds_write_b64 v3, {vr(T,2)} offset:64
        ds_write_b64 v3, {vr(T,2)} offset:128
        ds_write_b64 v3, {vr(T,2)} offset:192
        s_mov_b64 exec, -1
        """)

    def role_b(self):
        a = self.a
        a(f"L_roleB:\ns_mov_b32 s{S_FROMA}, 0")
        XR, B1R, GR, XS = 16, 36, 64, 84
        VPF = 8
        a(f"s_cmp_ge_u32 s{S_J}, 16\ns_cbranch_scc1 L_B_pfrole")
        a(f"""
        s_lshl_b32 s{S_KST}, s{S_XCD}, 4
        s_add_u32 s{S_KST}, s{S_KST}, s{S_J}
        s_lshl_b32 s{S_T0}, s{S_KST}, 3
        s_add_u32 s{S_T0}, s{S_T0}, s{S_WAVE}
        s_mul_i32 s{S_T0}, s{S_T0}, {4*1280}
        v_lshrrev_b32 v2, 4, v1
        v_and_b32 v3, 15, v1
        v_lshlrev_b32 v3, 4, v3
        v_mul_u32_u24 v4, 1280, v2
        v_add_u32 v4, v4, v3
        """)
        for c in range(5):
            a(f"buffer_load_dwordx4 {vr(XR+4*c,4)}, v4, s[{R_X}:{R_X+3}], s{S_T0} offen offset:{c*256} {self.nt('ntx')}")
        self.srd(R_M, P_GATE, 1280)
        for c in range(5):
            a(f"buffer_load_dwordx4 {vr(GR+4*c,4)}, v3, s[{R_M}:{R_M+3}], 0 offen offset:{c*256}")

        def common_setup():
            a(f"""
            s_mul_i32 s{S_M}, s{S_J}, 205
            s_lshr_b32 s{S_M}, s{S_M}, 10
            s_mul_i32 s{S_DT}, s{S_M}, 5
            s_sub_u32 s{S_DT}, s{S_J}, s{S_DT}
            s_mul_i32 s{S_FT}, s{S_XCD}, 6
            s_add_u32 s{S_FT}, s{S_FT}, s{S_M}
            """)
            self.srd(R_OUT, P_B1, 3072)
            a(f"v_lshrrev_b32 v5, 4, v1\nv_lshlrev_b32 v5, 3, v5\ns_lshl_b32 s{S_T0}, s{S_FT}, 7")
            for b in range(4):
                a(f"buffer_load_dwordx2 {vr(B1R+2*b,2)}, v5, s[{R_OUT}:{R_OUT+3}], s{S_T0} offen offset:{b*32}")
            a(f"""
            v_lshrrev_b32 v12, 3, v1
            v_lshrrev_b32 v13, 4, v1
            v_lshlrev_b32 v13, 1, v13
            v_and_b32 v14, 7, v1
            v_xor_b32 v13, v13, v14
            v_lshlrev_b32 v13, 4, v13
            v_mul_u32_u24 v12, 3072, v12
            v_add_u32 v{VPF}, v12, v13
            v_add_u32 v{VPF+1}, {8*3072-1024}, v{VPF}
            v_add_u32 v{VPF+2}, {2*(8*3072-1024)}, v{VPF}
            v_add_u32 v{VPF+3}, {3*(8*3072-1024)}, v{VPF}
            """)
            self.perm_setup(S_M, 16, 6, S_PERM, self.o.get("rotB"))

        def wq_touch():
            self.srd(R_M, P_WQKV, 640 * 3840)
            a(f"""
            v_lshlrev_b32 v6, 7, v1
            s_mul_i32 s{S_T0+1}, s{S_T0+1}, 2880
            s_add_u32 s{S_T0+1}, s{S_T0+1}, {256*3840}
            s_mov_b64 exec, 0xffffff
            buffer_load_dword v253, v6, s[{R_M}:{R_M+3}], s{S_T0+1} offen
            s_mov_b64 exec, -1
            """)

        self.srd(R_W, P_W1, 2048 * 3072)
        common_setup()
        a("v_mov_b32 v124, 0\nv_mov_b32 v125, 0\nv_mov_b32 v126, 0x3f803f80\ns_waitcnt vmcnt(4)")
        self.stamp(11, 44)
        for c in range(20):
            a(f"v_dot2c_f32_bf16 v124, v{XR+c}, v126")
        for c in range(20):
            a(f"v_dot2c_f32_bf16 v125, v{XR+c}, v{GR+c}")
        for c in range(20):
            a(f"v_lshlrev_b32 v{XS+2*c}, 16, v{XR+c}\nv_and_b32 v{XS+2*c+1}, 0xffff0000, v{XR+c}")

        def reduce16(regs):
            for mode in ("quad_perm:[1,0,3,2]", "quad_perm:[2,3,0,1]", "row_half_mirror", "row_mirror"):
                for r in regs:
                    a(f"v_add_f32_dpp v{r}, v{r}, v{r} {mode} row_mask:0xf bank_mask:0xf")
                a("s_nop 1" if len(regs) == 1 else "s_nop 0")

        reduce16([124, 125])
        a(f"""
        v_mul_f32 v126, {f2u(-1.0/640):#x}, v124
        v_mul_f32 v127, {f2u(-1.0/640):#x}, v124
        v_mul_f32 v125, {f2u(-1.4426950408889634):#x}, v125
        v_mov_b32 v128, 0
        v_mov_b32 v129, 0
        v_mov_b32 v130, 0
        v_mov_b32 v131, 0
        v_exp_f32 v125, v125
        """)
        for c in range(20):
            a(f"v_pk_add_f32 {vr(XS+2*c,2)}, {vr(XS+2*c,2)}, v[126:127]")
        a("v_add_f32 v125, 1.0, v125\nv_rcp_f32 v125, v125")
        for c in range(20):
            t = 128 + 2 * (c & 1)
            a(f"v_pk_fma_f32 {vr(t,2)}, {vr(XS+2*c,2)}, {vr(XS+2*c,2)}, {vr(t,2)}")
        a("v_pk_add_f32 v[128:129], v[128:129], v[130:131]\nv_add_f32 v128, v128, v129\ns_nop 1")
        reduce16([128])
        a(f"v_mov_b32 v126, {f2u(1e-5):#x}\nv_fmac_f32 v126, {f2u(1.0/640):#x}, v128\nv_rsq_f32 v126, v126")
        a(f"""
        s_lshl_b32 s{S_T0}, s{S_WAVE}, 2
        v_add_u32 v2, s{S_T0}, v2
        v_mov_b32 v127, v126
        v_mul_u32_u24 v4, {LN_ST}, v2
        v_add_u32 v4, v4, v3
        v_lshlrev_b32 v2, 2, v2
        """)
        for c4 in range(5):
            for c in range(4 * c4, 4 * c4 + 4):
                a(f"v_pk_mul_f32 {vr(XS+2*c,2)}, {vr(XS+2*c,2)}, v[126:127]")
            for c in range(4 * c4, 4 * c4 + 4):
                a(f"v_cvt_pk_bf16_f32 v{XR+c}, v{XS+2*c}, v{XS+2*c+1}")
            a(f"ds_write_b128 v4, {vr(XR+4*c4,4)} offset:{LNBUF + c4*256}")
        a(f"ds_write_b32 v2, v125 offset:{LNG}")
        a(f"""
        v_and_b32 v12, 15, v1
        v_lshrrev_b32 v13, 4, v1
        v_lshrrev_b32 v15, 2, v12
        v_lshl_add_u32 v15, v13, 2, v15
        v_mul_u32_u24 v15, {LN_ST}, v15
        v_and_b32 v2, 3, v12
        v_lshl_add_u32 v15, v2, 3, v15
        s_mul_i32 s{S_T0}, s{S_WAVE}, 160
        v_add_u32 v15, s{S_T0}, v15
        v_lshlrev_b32 v14, 4, v1
        v_lshlrev_b32 v2, 2, v1
        s_mul_i32 s{S_T0}, s{S_WAVE}, {5*65536}
        s_lshl_b32 s{S_T0+1}, s{S_KST}, 10
        s_add_u32 s{S_T0}, s{S_T0}, s{S_T0+1}
        s_add_u32 s{S_T0}, s{S_T0}, {HT}
        s_waitcnt lgkmcnt(0)
        s_add_u32 s{S_TAG}, s{S_TAG}, {TAG_INC:#x}
        s_barrier
        """)
        self.stamp(12, 44)
        for i in range(5):
            a(f"ds_read_b64_tr_b16 {vr(44+4*i,2)}, v15 offset:{LNBUF + i*32}")
            a(f"ds_read_b64_tr_b16 {vr(46+4*i,2)}, v15 offset:{LNBUF + i*32+16*LN_ST}")
        a(f"ds_read_b32 v125, v2 offset:{LNG}")
        for i in range(5):
            a(f"s_waitcnt lgkmcnt({9-2*i})")
            a(f"buffer_store_dwordx4 {vr(44+4*i,4)}, v14, s[{R_WS}:{R_WS+3}], s{S_T0} offen sc1")
            if i < 4:
                a(f"s_add_u32 s{S_T0}, s{S_T0}, 65536")
        a(f"""
        s_cmp_lg_u32 s{S_WAVE}, 0
        s_cbranch_scc1 L_B_nog
        s_lshl_b32 s{S_T0}, s{S_KST}, 7
        s_add_u32 s{S_T0}, s{S_T0}, {G_OFF}
        s_waitcnt lgkmcnt(0)
        s_mov_b32 exec_hi, 0
        buffer_store_dword v125, v2, s[{R_WS}:{R_WS+3}], s{S_T0} offen sc1
        s_mov_b32 exec_hi, -1
        L_B_nog:
        s_waitcnt vmcnt(0) lgkmcnt(0)
        s_barrier
        s_cmp_lg_u32 s{S_WAVE}, 0
        s_cbranch_scc1 L_B_nofl
        s_mul_i32 s{S_T0}, s{S_KST}, {FS}
        s_add_u32 s{S_T0}, s{S_T0}, {F_LN}
        """)
        self.flag_store(S_T0, 12)
        self.stamp(1, 12)
        a("L_B_nofl:")
        if self.o.get("wq") == 1:
            a(f"s_lshl_b32 s{S_T0+1}, s{S_KST}, 3\ns_add_u32 s{S_T0+1}, s{S_T0+1}, s{S_WAVE}")
            wq_touch()
        if self.o.get("wq") == 3:
            a(f"""
            s_lshl_b32 s{S_T0}, s{S_J}, 3
            s_add_u32 s{S_T0}, s{S_T0}, s{S_WAVE}
            s_add_u32 s{S_T0}, s{S_T0}, 128
            v_lshrrev_b32 v6, 3, v1
            v_and_b32 v7, 7, v1
            v_min_u32 v7, 5, v7
            v_mul_u32_u24 v6, 3072, v6
            v_lshl_add_u32 v7, v7, 7, v6
            s_mul_i32 s{S_T0}, s{S_T0}, {8*3072}
            s_mul_i32 s{S_T0+2}, s{S_XCD}, 768
            s_add_u32 s{S_T0}, s{S_T0}, s{S_T0+2}
            buffer_load_dword v253, v7, s[{R_W}:{R_W+3}], s{S_T0} offen {self.nt('ntw1')}
            """)
        a("s_branch L_B_join")
        a("L_B_pfrole:")
        self.srd(R_W, P_W1, 2048 * 3072)
        if self.o.get("pfdelay"):
            common_setup()
            a("s_waitcnt vmcnt(0)")
        wq = self.o.get("wq", 0)
        a(f"""
        s_sub_u32 s{S_T0}, s{S_J}, 16
        s_lshl_b32 s{S_T0}, s{S_T0}, 3
        s_add_u32 s{S_T0}, s{S_T0}, s{S_WAVE}
        s_lshl_b32 s{S_T0+1}, s{S_XCD}, 7
        s_add_u32 s{S_T0+1}, s{S_T0+1}, s{S_T0}
        v_lshrrev_b32 v6, 3, v1
        v_and_b32 v7, 7, v1
        v_min_u32 v7, 5, v7
        v_mul_u32_u24 v6, 3072, v6
        v_lshl_add_u32 v7, v7, 7, v6
        s_mul_i32 s{S_T0}, s{S_T0}, {8*3072}
        s_mul_i32 s{S_T0+2}, s{S_XCD}, 768
        s_add_u32 s{S_T0}, s{S_T0}, s{S_T0+2}
        buffer_load_dword v253, v7, s[{R_W}:{R_W+3}], s{S_T0} offen {self.nt('ntw1')}
        """)
        if wq in (0, 3):
            wq_touch()
        if wq != 3:
            a(f"""
            s_add_u32 s{S_T0}, s{S_T0}, {1024*3072}
            buffer_load_dword v253, v7, s[{R_W}:{R_W+3}], s{S_T0} offen {self.nt('ntw1b')}
            """)
        if self.o.get("promote"):
            k_ = 1 if wq != 3 else 0
            a(f"""
            s_sub_u32 s{S_T0+1}, s{S_T0}, {1024*3072*k_}
            s_waitcnt vmcnt({k_ + (1 if wq in (0, 3) else 0)})
            buffer_load_dword v253, v7, s[{R_W}:{R_W+3}], s{S_T0+1} offen
            """)
            if self.o.get("ntw1b"):
                a(f"s_waitcnt vmcnt(1)\nbuffer_load_dword v253, v7, s[{R_W}:{R_W+3}], s{S_T0} offen")
        if not self.o.get("pfdelay"):
            common_setup()
        self.stamp(15, 12)
        a(f"s_waitcnt lgkmcnt(0)\ns_add_u32 s{S_TAG}, s{S_TAG}, {TAG_INC:#x}")
        a(f"s_cmp_ge_u32 s{S_J}, 30\ns_cbranch_scc1 L_helper")
        N1 = self.o.get("n1", 8)
        NREG = self.o.get("nreg", 0)
        assert NREG == 0 or N1 == 8

        def w1_issue():
            t = self.perm_next(S_T0, S_PERM, 128 * 3072)
            t += f"s_mov_b32 m0, s{S_B}\ns_add_u32 s{S_T0}, s{S_T0}, s{S_A}\n"
            for i in range(4):
                t += f"buffer_load_dwordx4 v{VPF+i}, s[{R_W}:{R_W+3}], s{S_T0} offen offset:{i*1024} lds\n"
            t += f"s_add_u32 s{S_B}, s{S_B}, 16384\n"
            return t
        a(f"""
        L_B_join:
        s_cmp_lt_u32 s{S_WAVE}, 4
        s_cbranch_scc1 L_B_comp0
        s_sub_u32 s{S_T0}, s{S_WAVE}, 4
        s_lshl_b32 s{S_B}, s{S_T0}, 12
        s_mul_i32 s{S_A}, s{S_T0}, {32*3072}
        s_lshl_b32 s{S_T0}, s{S_FT}, 7
        s_add_u32 s{S_A}, s{S_A}, s{S_T0}
        L_B_pf:
        """ + w1_issue() + f"""
        s_cmp_lt_u32 s{S_B}, {N1*16384}
        s_cbranch_scc1 L_B_pf
        """)
        for k in range(NREG):
            if k == 4:
                a("s_waitcnt vmcnt(40)")
            a(self.perm_next(S_T0, S_PERM, 128 * 3072) + f"s_add_u32 s{S_T0}, s{S_T0}, s{S_A}")
            for i in range(4):
                a(f"buffer_load_dwordx4 {vr(64+16*k+4*i,4)}, v{VPF+i}, s[{R_W}:{R_W+3}], s{S_T0} offen offset:{i*1024}")
        a(f"s_branch L_B_aux\nL_B_comp0:\ns_cmp_lg_u32 s{S_WAVE}, 0\ns_cbranch_scc1 L_B_l3")
        a(f"v_mul_u32_u24 v12, {FS}, v1\nv_add_u32 v12, {F_LN}, v12")
        if not self.o.get("x_nopoll"):
            self.poll([12], 14)
        self.stamp(2, 12)
        a("L_B_l3:")
        PF, WF, ACC, VT, VL = 64, 128, 160, 8, 12
        a(f"""
        s_lshl_b32 s{S_T0}, s{S_DT}, 3
        s_lshl_b32 s{S_T0+1}, s{S_WAVE}, 1
        s_add_u32 s{S_D}, s{S_T0}, s{S_T0+1}
        s_lshl_b32 s{S_T0}, s{S_D}, 16
        s_add_u32 s{S_T0}, s{S_T0}, {HT}
        """)
        self.srd(R_P, P_WS, 65536, off_s=S_T0)
        a(f"s_add_u32 s{S_T0}, s{S_T0}, 65536")
        self.srd(R_M, P_WS, 65536, off_s=S_T0)
        a(f"v_lshlrev_b32 v{VL}, 4, v1\ns_mov_b32 s{S_B}, 0")
        a(self.perm_next(S_C, S_PERM, 4096))
        self.tr_addr(VT)
        for r in range(32):
            a(f"v_mov_b32 v{ACC+r}, 0")
        a("s_barrier")
        RP = (R_P, R_M)

        def pload(u, ks):
            if self.o.get("x_noload"):
                return "s_nop 0"
            sc = "" if self.o.get("x_nosc1") else "sc1"
            so = "0" if self.o.get("x_same") else f"s{S_C}"
            return "\n".join(f"buffer_load_dwordx4 {vr(PF+32*(u%2)+8*ks+4*d,4)}, v{VL}, s[{RP[d]}:{RP[d]+3}], {so} offen offset:{ks*1024} {sc}" for d in range(2))

        for t in range(2):
            for ks in range(4):
                a(pload(t, ks))
            a(self.perm_next(S_C, S_PERM, 4096))
            if t == 0:
                first_bar_here = len(a.L)

        def mk(u, bar, virtual=False, head=None, tail=None):
            uses = []
            for ks in range(4):
                for b in range(4):
                    g = ks * 4 + b
                    wb = WF + 4 * (g % 8)
                    off = u * 16384 + ks * 4096
                    reads = [(f"w{g}a", f"ds_read_b64_tr_b16 {vr(wb,2)}, v{VT+b} offset:{off}"),
                             (f"w{g}b", f"ds_read_b64_tr_b16 {vr(wb+2,2)}, v{VT+b} offset:{off+2048}")]
                    mf = []
                    for dd in range(2):
                        acc = vr(ACC + 16 * dd + 4 * b, 4)
                        mf.append(f"v_mfma_f32_16x16x32_bf16 {acc}, {vr(wb,4)}, {vr(PF+32*(u%2)+8*ks+4*dd,4)}, {acc}")
                    if self.o.get("x32"):
                        acc = vr(ACC + 16 * (b & 1), 16)
                        mf = [f"v_mfma_f32_32x32x16_bf16 {acc}, {vr(wb,4)}, {vr(PF+32*(u%2)+8*ks+4*(b>>1),4)}, {acc}"]
                    d = dict(reads=reads, need=[f"w{g}b"], mf=mf)
                    if b == 0:
                        d["vm"] = 14
                    if b == 3:
                        d["after"] = pload(u, ks)
                        if ks == 3:
                            d["after"] += "\n" + self.perm_next(S_C, S_PERM, 4096)
                            if u >= 1:
                                d["after"] += f"s_cmp_ge_u32 s{S_B}, 3\ns_cselect_b32 s{S_C}, 0x10000, s{S_C}"
                    uses.append(d)
            return dict(uses=uses, bar=bar, virtual=virtual, head=head, tail=tail)

        xo = "s_barrier\n" + "\n".join(f"v_xor_b32 v{VT+b}, 0x10000, v{VT+b}" for b in range(4))
        tail = f"s_add_u32 s{S_B}, s{S_B}, 1\ns_cmp_lt_u32 s{S_B}, 4\ns_cbranch_scc1 L_B_loop"
        st = [mk(0, "", head="L_B_loop:"), mk(1, "s_barrier"), mk(2, "s_barrier"), mk(3, "s_barrier", tail=tail), mk(0, xo, virtual=True)]
        a.L.insert(first_bar_here, "    s_barrier")
        nd = self.o.get("nodrain")
        LB = self.o.get("LB", 7)
        self.pipeline(st, LB, (16 - LB) if nd else 13, drain=not nd, wait_every=self.o.get('we', 2))
        if nd:
            a("s_waitcnt lgkmcnt(0)\ns_barrier")
        self.stamp(3, 44)
        c = 0.7978845608028654
        k0 = -2.0 * c * 1.4426950408889634
        k1 = k0 * 0.044715
        a(f"""
        s_waitcnt lgkmcnt(0)
        s_mov_b32 s{S_K0}, {f2u(k1):#x}
        s_mov_b32 s{S_K0+1}, {f2u(k1):#x}
        v_mov_b32 v44, {f2u(k0):#x}
        v_mov_b32 v45, {f2u(k0):#x}
        v_mov_b32 v46, 1.0
        v_mov_b32 v47, 1.0
        s_mul_i32 s{S_T0}, s{S_D}, {UW_ST}
        s_lshl_b32 s{S_T0+1}, s{S_FT}, 11
        s_add_u32 s{S_T0}, s{S_T0}, s{S_T0+1}
        s_add_u32 s{S_T0}, s{S_T0}, {UW}
        """)
        BF = 16
        for b in range(4):
            a(f"v_lshlrev_b32 v{BF+4*b}, 16, v{B1R+2*b}\nv_and_b32 v{BF+4*b+1}, 0xffff0000, v{B1R+2*b}")
            a(f"v_lshlrev_b32 v{BF+4*b+2}, 16, v{B1R+2*b+1}\nv_and_b32 v{BF+4*b+3}, 0xffff0000, v{B1R+2*b+1}")
        for dd in range(2):
            for p in range(2):
                r = ACC + 16 * dd + 8 * p
                T = 48
                for q in range(4):
                    a(f"v_pk_add_f32 {vr(r+2*q,2)}, {vr(r+2*q,2)}, {vr(BF+8*p+2*q,2)}")
                for q in range(4):
                    a(f"v_pk_mul_f32 {vr(T+2*q,2)}, {vr(r+2*q,2)}, {vr(r+2*q,2)}")
                for q in range(4):
                    a(f"v_pk_fma_f32 {vr(T+2*q,2)}, {vr(T+2*q,2)}, s[{S_K0}:{S_K0+1}], v[44:45]")
                for q in range(4):
                    a(f"v_pk_mul_f32 {vr(T+2*q,2)}, {vr(T+2*q,2)}, {vr(r+2*q,2)}")
                for q in range(8):
                    a(f"v_exp_f32 v{T+q}, v{T+q}")
                for q in range(4):
                    a(f"v_pk_add_f32 {vr(T+2*q,2)}, {vr(T+2*q,2)}, v[46:47]")
                for q in range(8):
                    a(f"v_rcp_f32 v{T+q}, v{T+q}")
                for q in range(4):
                    a(f"v_pk_mul_f32 {vr(r+2*q,2)}, {vr(r+2*q,2)}, {vr(T+2*q,2)}")
                o = 56 + 4 * (p & 1)
                for q in range(4):
                    a(f"v_cvt_pk_bf16_f32 v{o+q}, v{r+2*q}, v{r+2*q+1}")
                a(f"buffer_store_dwordx4 {vr(o,4)}, v{VL}, s[{R_WS}:{R_WS+3}], s{S_T0} offen offset:{p*1024} sc1")
            if dd == 0:
                a(f"s_add_u32 s{S_T0}, s{S_T0}, {UW_ST}")
        self.stamp(10, 44)
        a("s_waitcnt vmcnt(0)\ns_barrier\ns_branch L_F_comp")

        a("L_B_aux:\ns_barrier")
        order = list(range(N1 + NREG))
        cnt = {k: 4 for k in range(16)}
        cnt["t"] = 1
        nxt = N1
        lag = self.o.get("lag", 0)
        if NREG:
            a(f"""
            s_sub_u32 s{S_T0}, s{S_WAVE}, 4
            s_lshl_b32 s{S_T0}, s{S_T0}, 12
            v_lshlrev_b32 v12, 4, v1
            v_add_u32 v12, s{S_T0}, v12
            v_add_u32 v13, 0x10000, v12
            s_add_u32 s{S_B}, s{S_T0}, {(NREG % 8) * 16384}
            """)
        eB = self.o.get("eB", 17)
        nB1 = self.o.get("nB1", 0)
        per = self.o.get("perB", 2)
        done_w2 = 0
        for tb in range(17):
            if tb < 16 and tb <= eB:
                n = sum(cnt[x] for x in order[order.index(tb) + 1:])
                a(f"s_waitcnt vmcnt({min(n, 63) if tb < eB else 0}) lgkmcnt(0)")
            a("s_barrier")
            if tb < 16:
                self.stamp(16 + tb, 44)
            if tb == eB:
                assert nxt == 16
                self.w2_setup()
            if tb >= eB and done_w2 < nB1:
                k2 = min(per, nB1 - done_w2, tb - 9 - done_w2)
                sk = self.if_wave56()
                self.w2_prefill(k2)
                a(f"{sk}:")
                done_w2 += k2
            k = 0
            while nxt <= min(15, tb + (6 if self.o.get("nodrain") and nxt >= 8 else 7) - (lag if nxt >= 8 + NREG else 0)) and k < 2:
                if 8 <= nxt < 8 + NREG:
                    n = sum(cnt[x] for x in order[order.index(nxt) + 1:])
                    a(f"s_waitcnt vmcnt({min(n, 63)})")
                    sl = nxt % 8
                    for i in range(4):
                        a(f"ds_write_b128 v{13 if sl >= 4 else 12}, {vr(64+16*(nxt-8)+4*i,4)} offset:{(sl&3)*16384+i*1024}")
                else:
                    if nxt == 8:
                        a(f"s_and_b32 s{S_B}, s{S_B}, 0x1ffff")
                    a(w1_issue())
                    order.append(nxt)
                nxt += 1
                k += 1
        assert nxt == 16
        if self.o.get("nodrain"):
            a("s_barrier")
        if eB == 17:
            self.w2_setup()
        skip = self.if_wave56()
        self.w2_prefill(nB1 - done_w2)
        a("s_barrier\ns_nop 7\ns_nop 7")
        self.w2_prefill(8 - nB1)
        a("s_branch L_F_loader")
        a(f"{skip}:\ns_barrier")
        a(f"s_cmp_lg_u32 s{S_WAVE}, 7\ns_cbranch_scc1 L_F_u4")
        a(f"s_mul_i32 s{S_T0}, s{S_DT}, 24\ns_add_u32 s{S_T0}, s{S_T0}, s{S_FT}\ns_mul_i32 s{S_T0}, s{S_T0}, {FS}\ns_add_u32 s{S_T0}, s{S_T0}, {F_U}")
        self.flag_store(S_T0, 12)
        self.stamp(4, 12)
        a("s_branch L_F_poller")

    def w2_l2_prefetch(self, VT):
        a = self.a
        self.srd(R_W2, P_W2, 1536 * 4096)
        a(f"""
        v_lshrrev_b32 v{VT}, 3, v1
        v_and_b32 v{VT+1}, 7, v1
        v_lshlrev_b32 v{VT+1}, 7, v{VT+1}
        v_lshl_add_u32 v{VT}, v{VT}, 12, v{VT+1}
        s_mul_i32 s{S_T0}, s{S_J}, 48
        s_and_b32 s{S_T0+1}, s{S_WAVE}, 3
        s_mul_i32 s{S_T0+1}, s{S_T0+1}, 12
        s_add_u32 s{S_T0}, s{S_T0}, s{S_T0+1}
        s_lshl_b32 s{S_T0}, s{S_T0}, 12
        s_lshr_b32 s{S_T0+1}, s{S_XCD}, 1
        s_lshl_b32 s{S_T0+1}, s{S_T0+1}, 10
        s_add_u32 s{S_T0}, s{S_T0}, s{S_T0+1}
        buffer_load_dword v{VT+2}, v{VT}, s[{R_W2}:{R_W2+3}], s{S_T0} offen
        s_add_u32 s{S_T0}, s{S_T0}, {8*4096}
        s_mov_b32 exec_hi, 0
        buffer_load_dword v{VT+3}, v{VT}, s[{R_W2}:{R_W2+3}], s{S_T0} offen
        s_mov_b64 exec, -1
        """)

    def tr_addr(self, VT):
        a = self.a
        a(f"""
        v_and_b32 v{VT+1}, 15, v1
        v_lshrrev_b32 v{VT+2}, 4, v1
        v_lshrrev_b32 v{VT+3}, 2, v{VT+1}
        v_lshl_add_u32 v{VT+3}, v{VT+2}, 2, v{VT+3}
        v_bfe_u32 v{VT+2}, v{VT+3}, 1, 2
        v_lshlrev_b32 v{VT+3}, 7, v{VT+3}
        v_lshl_add_u32 v{VT+3}, v{VT+2}, 5, v{VT+3}
        v_and_b32 v{VT+1}, 3, v{VT+1}
        v_lshl_add_u32 v{VT}, v{VT+1}, 3, v{VT+3}
        v_xor_b32 v{VT+1}, 32, v{VT}
        v_xor_b32 v{VT+2}, 64, v{VT}
        v_xor_b32 v{VT+3}, 96, v{VT}
        """)

    def helper(self):
        a = self.a
        a("L_helper:")
        a(f"""
        s_lshl_b32 s{S_D}, s{S_XCD}, 1
        s_add_u32 s{S_D}, s{S_D}, s{S_J}
        s_sub_u32 s{S_D}, s{S_D}, 30
        """)
        self.srd(R_W, P_WO, 640 * 1280)
        for p in range(5):
            a(f"""
            v_add_u32 v12, {p*64}, v1
            v_mul_u32_u24 v13, 205, v12
            v_lshrrev_b32 v13, 11, v13
            v_mul_u32_u24 v14, 10, v13
            v_sub_u32 v14, v12, v14
            v_lshlrev_b32 v14, 4, v14
            v_mul_u32_u24 v13, 1280, v13
            v_add_u32 v{16+p}, v13, v14
            """)
            if p in (1, 2, 3):
                a(f"v_subrev_u32 v{16+p}, {p*1024}, v{16+p}")
        a(f"""
        s_mov_b32 s{S_C}, s{S_WAVE}
        L_H_ld:
        s_mul_i32 s{S_A}, s{S_C}, {32*1280}
        s_mul_i32 s{S_T0}, s{S_D}, 160
        s_add_u32 s{S_A}, s{S_A}, s{S_T0}
        s_mul_i32 s{S_B}, s{S_C}, 5120
        s_mov_b32 m0, s{S_B}
        s_nop 0
        """)
        for p in range(4):
            a(f"buffer_load_dwordx4 v{16+p}, s[{R_W}:{R_W+3}], s{S_A} offen offset:{p*1024} lds")
        a(f"s_add_u32 m0, s{S_B}, 4096\ns_nop 0\nbuffer_load_dwordx4 v20, s[{R_W}:{R_W+3}], s{S_A} offen lds")
        a(f"""
        s_add_u32 s{S_C}, s{S_C}, 8
        s_cmp_lt_u32 s{S_C}, 20
        s_cbranch_scc1 L_H_ld
        v_and_b32 v12, 15, v1
        v_lshrrev_b32 v13, 4, v1
        v_lshrrev_b32 v14, 2, v12
        v_lshl_add_u32 v14, v13, 2, v14
        v_mul_u32_u24 v14, 160, v14
        v_and_b32 v12, 3, v12
        v_lshl_add_u32 v14, v12, 3, v14
        v_lshlrev_b32 v15, 4, v1
        s_waitcnt vmcnt(0)
        s_barrier
        s_mov_b32 s{S_C}, s{S_WAVE}
        L_H_tr:
        s_lshr_b32 s{S_T0}, s{S_C}, 1
        s_mul_i32 s{S_T0}, s{S_T0}, 5
        s_and_b32 s{S_T0+1}, s{S_C}, 1
        s_lshl_b32 s{S_T0+1}, s{S_T0+1}, 1
        s_add_u32 s{S_T0}, s{S_T0}, s{S_T0+1}
        s_add_u32 s{S_T0+1}, s{S_T0}, 1
        s_mul_i32 s{S_T0+2}, s{S_C}, 10
        s_sub_u32 s{S_T0+2}, s{S_T0+2}, 156
        s_add_u32 s{S_T0+3}, s{S_T0+2}, 5
        s_cmp_lt_u32 s{S_C}, 16
        s_cselect_b32 s{S_T0}, s{S_T0}, s{S_T0+2}
        s_cselect_b32 s{S_T0+1}, s{S_T0+1}, s{S_T0+3}
        s_mul_i32 s{S_T0}, s{S_T0}, 2560
        s_mul_i32 s{S_T0+1}, s{S_T0+1}, 2560
        v_add_u32 v12, s{S_T0}, v14
        v_add_u32 v13, s{S_T0+1}, v14
        """)
        for b in range(5):
            a(f"ds_read_b64_tr_b16 {vr(24+4*b,2)}, v12 offset:{b*32}\nds_read_b64_tr_b16 {vr(26+4*b,2)}, v13 offset:{b*32}")
        a(f"""
        s_mul_i32 s{S_T0}, s{S_D}, {5*UW_ST}
        s_lshl_b32 s{S_T0+1}, s{S_C}, 10
        s_add_u32 s{S_T0}, s{S_T0}, s{S_T0+1}
        s_add_u32 s{S_T0}, s{S_T0}, {UW + 49152}
        """)
        for b in range(5):
            a(f"s_waitcnt lgkmcnt({8-2*b})")
            a(f"buffer_store_dwordx4 {vr(24+4*b,4)}, v15, s[{R_WS}:{R_WS+3}], s{S_T0} offen sc1")
            if b < 4:
                a(f"s_add_u32 s{S_T0}, s{S_T0}, {UW_ST}")
        a(f"""
        s_add_u32 s{S_C}, s{S_C}, 8
        s_cmp_lt_u32 s{S_C}, 20
        s_cbranch_scc1 L_H_tr
        s_waitcnt vmcnt(0)
        s_barrier
        """)
        skip = self.if_wave56()
        self.w2_setup()
        self.w2_prefill(8)
        a(f"s_branch L_F_loader\n{skip}:")
        a(f"s_cmp_lt_u32 s{S_WAVE}, 4\ns_cbranch_scc1 L_F_comp\ns_cmp_lg_u32 s{S_WAVE}, 7\ns_cbranch_scc1 L_F_u4")
        a(f"s_mul_i32 s{S_T0}, s{S_D}, {FS}\ns_add_u32 s{S_T0}, s{S_T0}, {F_WOT}")
        self.flag_store(S_T0, 12)
        self.stamp(14, 12)
        a("s_branch L_F_poller")

    F_WOT_REG = 172

    def uw_srd(self):
        a = self.a
        a(f"""
        s_mul_i32 s{S_T0}, s{S_DTILE}, 5
        s_add_u32 s{S_D}, s{S_T0}, s{S_WAVE}
        s_mul_i32 s{S_T0}, s{S_D}, {UW_ST}
        s_add_u32 s{S_T0}, s{S_T0}, {UW}
        """)
        self.srd(R_P, P_WS, UW_ST, off_s=S_T0)

    def wot_preload(self, VL):
        a = self.a
        for k in range(20):
            if k % 4 == 0:
                a(f"s_mov_b32 s{S_C}, {49152 + k*1024}")
            a(f"buffer_load_dwordx4 {vr(self.F_WOT_REG+4*k,4)}, v{VL}, s[{R_P}:{R_P+3}], s{S_C} offen offset:{(k%4)*1024} sc1")

    F_V = (4, 8, 12, 13, 47, 48, 52, 56, 168)
    F_SB = 72

    def f_setup(self):
        a = self.a
        VT, VT2, VL, VU4, VGA, VGH, VG8, GV, BV = self.F_V
        SB = self.F_SB
        self.srd(R_M, P_B2, 4096)
        self.srd(R_OUT, P_OUT, 2048 * 1280)
        self.tr_addr(VT2)
        a(f"""
        v_mov_b32 v42, v{VT2}
        v_lshlrev_b32 v{VL}, 4, v1
        v_add_u32 v{VU4}, 0x20000, v{VL}
        v_and_b32 v{VGA}, 15, v1
        v_lshlrev_b32 v43, 1, v{VGA}
        v_lshlrev_b32 v{VGA}, 2, v{VGA}
        v_lshlrev_b32 v{VG8+3}, 3, v1
        """)
        for b in range(4):
            a(f"""
            s_add_u32 s{SB+b}, s{S_WAVE}, {b}
            s_and_b32 s{SB+b}, s{SB+b}, 3
            s_lshl_b32 s{S_T0}, s{SB+b}, 5
            v_xor_b32 v{VT+b}, s{S_T0}, v42
            s_lshl_b32 s{S_T0+1}, s{S_ST}, 7
            s_add_u32 s{S_T0}, s{S_T0}, s{S_T0+1}
            buffer_load_ushort v{BV+b}, v43, s[{R_M}:{R_M+3}], s{S_T0} offen
            v_add_u32 v{VT2+b}, 0x10000, v{VT+b}
            s_lshl_b32 s{S_T0}, s{SB+b}, 12
            v_add_u32 v{VG8+b}, s{S_T0}, v{VG8+3}
            s_add_u32 s{S_T0}, s{S_T0}, 0x10000
            v_add_u32 v{VGH+b}, s{S_T0}, v{VL}
            """)
        a(f"s_lshl_b32 s{S_A}, s{S_ST}, 8\ns_add_u32 s{S_A}, s{S_A}, {G_OFF}")
        self.f_perm()

    def f0_barrier(self):
        lab = self.a.label("f0")
        self.a(f"s_cmp_eq_u32 s{S_FROMA}, 1\ns_cbranch_scc1 {lab}\ns_barrier\n{lab}:")

    def final(self):
        a = self.a
        a("L_F_comp:")
        if self.stop == "phase1":
            a("s_branch L_end")
        PF, WF, ACC, ACC4, U4, WOT = 64, 112, 144, 160, 36, 172
        NPF = 3
        pre = True
        VT, VT2, VL, VU4, VGA, VGH, VG8, GV, BV = self.F_V
        SB = self.F_SB
        a(f"s_cmp_eq_u32 s{S_FROMA}, 1\ns_cbranch_scc1 L_F_nowot")
        self.uw_srd()
        self.f_setup()
        nstream = 12 if pre else 17

        def next_sc(step):
            if step < 12:
                return self.perm_next(S_C, S_PERM, 4096)
            return f"s_mov_b32 s{S_C}, {step*4096}\n"
        a("s_barrier")
        self.wot_preload(VL)
        a("L_F_nowot:")
        a(next_sc(0))
        a("s_barrier")
        S_C1, S_C2 = S_K0, S_K0 + 1

        def uload(t, ks, so):
            return f"buffer_load_dwordx4 {vr(PF+16*(t % NPF)+4*ks,4)}, v{VL}, s[{R_P}:{R_P+3}], s{so} offen offset:{ks*1024} sc1 ;@u{t}_{ks}"
        vis0 = []
        for ks in range(4):
            a(uload(0, ks, S_C))
            vis0.append(f"u0_{ks}")
        a(self.perm_next(S_C1, S_PERM, 4096) + self.perm_next(S_C2, S_PERM, 4096) + next_sc(3))
        a("s_barrier")

        ACC2 = 16
        blocks = [(ACC + 4 * b, b) for b in range(4)] + [(ACC4, 0)]
        fill = []
        for b in range(4):
            fill += [f"v_lshlrev_b32 v{BV+b}, 16, v{BV+b}", f"v_sub_f32 v{GV+b}, 1.0, v{GV+b}"]
        for r0, b in blocks:
            for k in range(4):
                fill.append(f"v_add_f32 v{r0+k}, v{BV+b}, v{r0+k}")

        stages = []
        for t in range(17):
            slot = t % 8
            hi = slot >= 4
            uses = []
            for ks in range(4):
                for b in range(4):
                    g = ks * 4 + b
                    wb = WF + 4 * (g % 8)
                    reads = []
                    u4 = U4 + 4 * (ks & 1)
                    if b == 0:
                        reads.append((f"u{ks}", f"ds_read_b128 {vr(u4,4)}, v{VU4} offset:{slot*4096 + ks*1024}"))
                    if t < 12:
                        off = (slot & 3) * 16384 + ks * 4096
                        va = (VT2 if hi else VT) + b
                        reads += [(f"w{g}a", f"ds_read_b64_tr_b16 {vr(wb,2)}, v{va} offset:{off}"),
                                  (f"w{g}b", f"ds_read_b64_tr_b16 {vr(wb+2,2)}, v{va} offset:{off+2048}")]
                    elif t < 16:
                        assert hi
                        off = (slot & 3) * 16384 + ks * 1024
                        reads += [(f"w{g}b", f"ds_read_b128 {vr(wb,4)}, v{VGH+b} offset:{off}")]
                    else:
                        off = (slot & 3) * 16384 + ks * 1024
                        assert not hi
                        reads += [(f"w{g}a", f"ds_read_b64 {vr(wb,2)}, v{VG8+b} offset:{off}"),
                                  (f"w{g}b", f"ds_read_b64 {vr(wb+2,2)}, v{VG8+b} offset:{off+512}")]
                    acc = vr((ACC if t < 12 else ACC2) + 4 * b, 4)
                    a4 = vr(ACC4 if t < 12 else ACC2 + 16, 4)
                    ring = t < nstream
                    pf = vr(PF + 16 * (t % NPF) + 4 * ks, 4) if ring else vr(WOT + 16 * (t - 12) + 4 * ks, 4)
                    first = t in (0, 12) and ks == 0
                    mf = [f"v_mfma_f32_16x16x32_bf16 {acc}, {pf}, {vr(wb,4)}, {0 if first else acc}"]
                    if b == 0:
                        mf.append(f"v_mfma_f32_16x16x32_bf16 {a4}, {vr(u4,4)}, {vr(wb,4)}, {0 if first else a4}")
                    d = dict(reads=reads, need=[f"w{g}b"], mf=mf)
                    if self.o.get("x_fewlds"):
                        if b == 0:
                            d["reads"] = reads[1:]
                        else:
                            d["reads"] = []
                            d["need"] = [f"w{g-b}b"]
                    if b == 0 and ring:
                        d["vneed"] = f"u{t}_{ks}"
                    if t == 0 and b in (0, 1):
                        d["after"] = uload(1 + b, ks, (S_C1, S_C2)[b])
                    if t == 1 and b == 1:
                        d["after"] = (f"s_lshl_b32 s{S_T0}, s{SB+ks}, 6\ns_add_u32 s{S_T0}, s{S_T0}, s{S_A}\n"
                                      f"buffer_load_dword v{GV+ks}, v{VGA}, s[{R_WS}:{R_WS+3}], s{S_T0} offen sc1 ;@g{ks}")
                    if b == 3 and t + NPF < nstream:
                        d["after"] = uload(t + NPF, ks, S_C)
                        if ks == 3 and t + NPF + 1 < nstream:
                            d["after"] += "\n" + next_sc(t + NPF + 1)
                    if self.o.get("wotl") and 3 <= t <= 7 and b == 1:
                        k = (t - 3) * 4 + ks
                        lab = a.label("nw")
                        d["before"] = (f"s_cmp_eq_u32 s{S_FROMA}, 1\ns_cbranch_scc0 {lab}\ns_mov_b32 s{S_T0}, {49152 + k*1024}\n"
                                       f"buffer_load_dwordx4 {vr(WOT+4*k,4)}, v{VL}, s[{R_P}:{R_P+3}], s{S_T0} offen sc1\n{lab}:")
                    if t >= 13 and fill and g < 15:
                        d["after"] = fill.pop(0)
                    uses.append(d)
            stages.append(dict(uses=uses, bar="s_barrier" if t else ""))
        nd = self.o.get("nodrain")
        LF = self.o.get("LF", 6)
        self.pipeline(stages, LF, (16 - LF) if nd else 13, drain=not nd, wait_every=self.o.get('we', 2), vis=vis0)
        self.stamp(8, 2)
        a(f"""
        v_and_b32 v2, 15, v1
        v_mul_u32_u24 v2, 1280, v2
        v_lshrrev_b32 v3, 4, v1
        v_lshl_add_u32 v2, v3, 3, v2
        s_mul_i32 s{S_A}, s{S_ST}, {64*1280}
        s_lshl_b32 s{S_T0+1}, s{S_D}, 5
        s_add_u32 s{S_B}, s{S_A}, s{S_T0+1}
        s_mul_i32 s{S_T0+1}, s{S_DTILE}, 160
        s_add_u32 s{S_A}, s{S_A}, s{S_T0+1}
        s_add_u32 s{S_A}, s{S_A}, 128
        """)
        assert not fill
        for i_, (r, b) in enumerate(blocks):
            for k in range(4):
                a(f"v_fma_f32 v{r+k}, v{r+k}, v{GV+b}, v{ACC2+4*i_+k}")
            a(f"s_mul_i32 s{S_T0}, s{SB+b}, {16*1280}\ns_add_u32 s{S_T0}, s{S_T0}, s{S_A if r == ACC4 else S_B}")
            a(f"v_cvt_pk_bf16_f32 v{r}, v{r}, v{r+1}\nv_cvt_pk_bf16_f32 v{r+1}, v{r+2}, v{r+3}")
            a(f"buffer_store_dwordx2 {vr(r,2)}, v2, s[{R_OUT}:{R_OUT+3}], s{S_T0} offen {['', 'sc1', 'nt', 'sc0 sc1'][self.o.get('osc', 0)]}")
        if self.stamps or self.o.get("dbg"):
            a("s_waitcnt vmcnt(0)")
            self.stamp(9, 2)
        if self.o.get("calib"):
            a(f"""
            L_cal:
            s_memrealtime s[96:97]
            s_waitcnt lgkmcnt(0)
            s_sub_u32 s96, s96, s98
            s_cmp_lt_u32 s96, {self.o.get("calib")*100}
            s_cbranch_scc1 L_cal
            """)
        a(f"s_or_b32 s{S_T0}, s2, s{S_WAVE}\ns_cmp_lg_u32 s{S_T0}, 0\ns_cbranch_scc1 L_end\ns_mov_b32 s{S_T0}, 0")
        self.flag_store(S_T0, 4)
        a("s_branch L_end")

        a("L_F_u4:")
        if self.stop == "phase1":
            a("s_branch L_end")
        a(f"""
        v_lshlrev_b32 v{VL}, 4, v1
        s_mul_i32 s{S_C}, s{S_DTILE}, {5*UW_ST}
        s_add_u32 s{S_C}, s{S_C}, {UW + 4*UW_ST}
        """)
        self.f_perm()
        self.f0_barrier()
        p4 = self.o.get("preW4")
        if p4:
            for k in range(20):
                if k % 4 == 0:
                    a(f"s_add_u32 s{S_T0}, s{S_C}, {49152 + k*1024}")
                a(f"buffer_load_dwordx4 {vr(64+4*k,4)}, v{VL}, s[{R_WS}:{R_WS+3}], s{S_T0} offen offset:{(k%4)*1024} sc1")
            a(f"v_add_u32 v{VU4}, 0x20000, v{VL}")
        a("s_barrier")

        def u4_issue(iv):
            if iv >= 12 and p4:
                for i in range(4):
                    a(f"ds_write_b128 v{VU4}, {vr(64+16*(iv-12)+4*i,4)} offset:{(iv % 8)*4096 + i*1024}")
                return
            if iv < 12:
                a(self.perm_next(S_T0, S_PERM, 4096) + f"s_mov_b32 m0, {0x20000 + (iv % 8)*4096:#x}\ns_add_u32 s{S_T0}, s{S_T0}, s{S_C}")
            else:
                a(f"s_mov_b32 m0, {0x20000 + (iv % 8)*4096:#x}\ns_add_u32 s{S_T0}, s{S_C}, {iv*4096}")
            for i in range(4):
                a(f"buffer_load_dwordx4 v{VL}, s[{R_WS}:{R_WS+3}], s{S_T0} offen offset:{i*1024} sc1 lds")
        order = []
        for iv in range(8):
            u4_issue(iv)
            order.append(iv)
            if iv == 1:
                a("s_waitcnt vmcnt(4)\ns_barrier")
        for tb in range(1, 17):
            if tb in order:
                a(f"s_waitcnt vmcnt({4*len(order[order.index(tb)+1:])})")
            a("s_waitcnt lgkmcnt(0)\ns_barrier" if p4 and tb >= 7 else "s_barrier")
            iv = tb + (6 if self.o.get("nodrain") else 7)
            if 8 <= iv <= 16:
                u4_issue(iv)
                if not (p4 and iv >= 12):
                    order.append(iv)
        a("s_branch L_end")

        a("L_F_loader:")
        if self.stop == "phase1":
            a("s_branch L_end")
        a(f"v_lshlrev_b32 v{VL}, 4, v1")
        self.f0_barrier()
        nWR = self.o.get("nWR", 0)
        V = self.V_W2
        if nWR:
            a(f"s_waitcnt vmcnt(30)\nv_add_u32 v{VU4}, s{S_B}, v{VL}")
            for k in range(nWR):
                a(self.perm_next(S_T0, S_PERM, 128 * 4096) + f"s_add_u32 s{S_T0}, s{S_T0}, s{S_A}")
                for g in range(2):
                    if g:
                        a(f"s_add_u32 s{S_T0}, s{S_T0}, {4*32768}")
                    for i in range(4):
                        a(f"buffer_load_dwordx4 {vr(64+32*k+16*g+4*i,4)}, v{V+i}, s[{R_W2}:{R_W2+3}], s{S_T0} offen offset:{i*1024}")
            a(f"s_add_u32 s{S_B}, s{S_B}, {nWR*16384}")
        a("s_barrier")
        a(f"""
        s_sub_u32 s{S_T0}, s{S_WAVE}, 5
        s_lshl_b32 s{S_T0}, s{S_T0}, 1
        s_lshl_b32 s{S_T0+1}, s{S_ST}, 2
        s_add_u32 s{S_T0+1}, s{S_T0+1}, s{S_T0}
        s_mul_i32 s{S_C}, s{S_T0+1}, {GO_ST}
        s_add_u32 s{S_C}, s{S_C}, {GO}
        s_lshl_b32 s{S_D}, s{S_T0}, 12
        """)
        assert nWR == 0
        ops = [(iv, 8) for iv in range(8)]
        for tb in range(17):
            last = max(i for i, (iv, _) in enumerate(ops) if iv == tb)
            n = sum(c for _, c in ops[last + 1:])
            a(f"s_waitcnt vmcnt({min(n,63)})\ns_barrier")
            if self.o.get("halfW"):
                if 2 <= tb <= 9:
                    self.w2_half((tb - 2) & 1)
                    ops.append((8 + (tb - 2) // 2, 4))
            elif 2 <= tb <= 5:
                self.w2_issue()
                ops.append((tb + 6, 8))
            if 9 <= tb <= 13:
                iv = tb + 3
                g = iv - 12
                for s2 in range(2):
                    a(f"s_add_u32 m0, s{S_D}, {(iv % 8)*16384 + s2*4096}\ns_add_u32 s{S_T0}, s{S_C}, {s2*GO_ST + g*4096}")
                    for i in range(4):
                        a(f"buffer_load_dwordx4 v{VL}, s[{R_WS}:{R_WS+3}], s{S_T0} offen offset:{i*1024} sc1 lds")
                ops.append((iv, 8))
        a("s_branch L_end")
        a("L_F_poller:")
        if self.stop == "phase1":
            a("s_branch L_end")
        a(f"s_cmp_eq_u32 s{S_FROMA}, 1\ns_cbranch_scc1 L_F_pnowot")
        a(f"s_mul_i32 s{S_T0}, s{S_DTILE}, {FS}\ns_add_u32 s{S_T0}, s{S_T0}, {F_WOT}\nv_mov_b32 v2, s{S_T0}")
        self.poll([2], 4)
        a("s_barrier\nL_F_pnowot:")
        a(f"""
        s_mul_i32 s{S_T0}, s{S_DTILE}, 5
        s_lshr_b32 s{S_T0+1}, s{S_T0}, 3
        s_add_u32 s{S_T0}, s{S_T0}, 4
        s_lshr_b32 s{S_T0}, s{S_T0}, 3
        s_mul_i32 s{S_T0}, s{S_T0}, 24
        s_mul_i32 s{S_T0+1}, s{S_T0+1}, 24
        v_and_b32 v2, 31, v1
        v_min_u32 v2, 23, v2
        v_add_u32 v3, s{S_T0}, v2
        v_add_u32 v2, s{S_T0+1}, v2
        v_cmp_gt_u32 vcc, 32, v1
        s_mul_i32 s{S_T0}, s{S_DTILE}, {FS}
        s_add_u32 s{S_T0}, s{S_T0}, {F_WOT}
        v_cndmask_b32 v2, v2, v3, vcc
        v_mul_u32_u24 v2, {FS}, v2
        v_add_u32 v2, {F_U}, v2
        v_mov_b32 v3, s{S_T0}
        v_cmp_eq_u32 vcc, 63, v1
        s_nop 1
        v_cndmask_b32 v2, v2, v3, vcc
        """)
        self.poll([2], 4)
        self.stamp(6, 4)
        a("s_barrier")
        a(f"""
        v_and_b32 v2, 7, v1
        s_lshr_b32 s{S_T0}, s{S_ST}, 1
        s_lshl_b32 s{S_T0}, s{S_T0}, 3
        v_add_u32 v2, s{S_T0}, v2
        v_mul_u32_u24 v2, {FS}, v2
        v_add_u32 v2, {F_GO}, v2
        """)
        gp = self.o.get("gopoll", 9)
        for tb in range(gp):
            a("s_barrier")
            if tb == 1:
                a(f"s_cmp_eq_u32 s{S_FROMA}, 1\ns_cbranch_scc0 L_F_nogo")
                a(f"s_lshl_b32 s{S_T0}, s{S_MT}, 3\ns_add_u32 s{S_T0}, s{S_T0}, s{S_HG}\ns_mul_i32 s{S_T0}, s{S_T0}, {FS}\ns_add_u32 s{S_T0}, s{S_T0}, {F_GO}")
                self.flag_store(S_T0, 6)
                a("L_F_nogo:")
            if tb == gp - 3:
                a(f"buffer_load_dword v8, v2, s[{R_WS}:{R_WS+3}], 0 offen sc1")
            self.stamp(32 + tb, 4)
        a(f"s_waitcnt vmcnt(0)\nv_cmp_ne_u32 vcc, s{S_TAG}, v8\ns_nop 1\ns_cmp_eq_u64 vcc, 0\ns_cbranch_scc1 L_F_gook")
        self.poll([2], 4)
        a("L_F_gook:")
        self.stamp(7, 4)
        for tb in range(gp, 17):
            a("s_barrier")
            self.stamp(32 + tb, 4)
        a("L_end:")
        if "probe" in self.o or "pc1" in self.o:
            a("""
            s_cmp_eq_u32 s94, 0
            s_cbranch_scc1 L_exit
            L_prb:
            s_memrealtime s[96:97]
            s_waitcnt lgkmcnt(0)
            s_sub_u32 s96, s96, s98
            s_cmp_lt_i32 s96, 4000
            s_cbranch_scc1 L_prb
            """)
        if self.stamps:
            a(f"""
            s_lshl_b32 s{S_T0}, s2, 3
            s_add_u32 s{S_T0}, s{S_T0}, s{S_WAVE}
            s_lshl_b32 s{S_T0}, s{S_T0}, 9
            s_add_u32 s{S_T0}, s{S_T0}, {STAMP}
            v_lshlrev_b32 v2, 3, v1
            buffer_store_dwordx2 v[254:255], v2, s[{R_WS}:{R_WS+3}], s{S_T0} offen
            """)
        a("L_exit:\ns_endpgm")

    def build(self, header):
        a = self.a
        self.prologue()
        self.role_a()
        self.role_b()
        self.helper()
        self.final()
        body = a.text()
        out = header
        out += f"; @launch grid=(256,1,1) block=(512,1,1) lds={LDS_BYTES}\n"
        out += f'.amdgcn_target "amdgcn-amd-amdhsa--gfx950"\n.text\n.globl {KNAME}\n.p2align 8\n.type {KNAME},@function\n{KNAME}:\n'
        out += body
        out += f""".section .rodata,"a"
.p2align 6
.amdhsa_kernel {KNAME}
  .amdhsa_next_free_vgpr 256
  .amdhsa_next_free_sgpr 102
  .amdhsa_accum_offset 256
  .amdhsa_group_segment_fixed_size 0
  .amdhsa_kernarg_size 96
  .amdhsa_user_sgpr_count 2
  .amdhsa_user_sgpr_kernarg_segment_ptr 1
  .amdhsa_system_sgpr_workgroup_id_x 1
  .amdhsa_float_denorm_mode_32 3
.end_amdhsa_kernel
"""
        return out


def header():
    ref = open("gated_mix__linear_attn_block__mixer_token_mlp__prompt.s.ref").read().split("\n")
    h = []
    for l in ref:
        if l.startswith("; Override"):
            break
        h.append(l)
    return "\n".join(h) + "\n"


if __name__ == "__main__":
    import argparse
    p = argparse.ArgumentParser()
    p.add_argument("-o", default="gated_mix__linear_attn_block__mixer_token_mlp__prompt.s")
    p.add_argument("--stamps", action="store_true")
    p.add_argument("--stop", default=None)
    p.add_argument("--opt", default="")
    args = p.parse_args()
    opts = {k: (int(v) if v != '' else 1) for k, _, v in (x.partition('=') for x in args.opt.split(',') if x)}
    g = Gen(stamps=args.stamps, stop=args.stop, opts=opts)
    open(args.o, "w").write(g.build(header()))
    print("wrote", args.o)
```

```python
import sys

KNAME = "gated_mix__linear_attn_block__mixer_token_mlp__prompt_kernel"

import os
FS = int(os.environ.get('FS', 128))
F_LN, F_KV, F_U, F_GO, F_WOT = 0x1000, 0x5000, 0x9000, 0xD000, 0x11000
G_OFF = 0x12000
STAMP = 0x900000
KVP = 0x20000
KVP_ST = 7168
HT = 0x100000
UW = 0x380000
UW_ST = 69632
GO = 0x640000
GO_ST = 20480
WS_USED = 0xA00000
TAG_INC = 0x9E3779B9
SPIN_LIMIT = 1 << 17

LDS_BYTES = 163840
LNBUF = 0
LN_ST = 1312
LNG = LNBUF + 32 * LN_ST
A_SLOT = 49152
A_WOFF = 16384
EXCH_ST = 14336
EXCH = LDS_BYTES - 4 * EXCH_ST
KVT = 147456
ZH = KVT + 11 * 1024

LOG2E = 0x3FB8AA3B


def f2u(x):
    import struct
    return struct.unpack("<I", struct.pack("<f", x))[0]


class Asm:
    def __init__(self):
        self.L = []
        self.nlab = 0

    def __call__(self, s):
        for line in s.split("\n"):
            line = line.strip()
            if line:
                self.L.append(("    " if not line.endswith(":") else "") + line)

    def label(self, base):
        self.nlab += 1
        return f"L{base}_{self.nlab}"

    def text(self):
        return "\n".join(self.L) + "\n"


def vr(a, n=1):
    return f"v{a}" if n == 1 else f"v[{a}:{a+n-1}]"


def sr(a, n=1):
    return f"s{a}" if n == 1 else f"s[{a}:{a+n-1}]"


P_X, P_WQKV, P_WO, P_BX, P_W1, P_B1, P_W2, P_B2 = 4, 6, 8, 10, 12, 14, 16, 18
P_GATE, P_OUT, P_DBG, P_WS = 20, 22, 24, 26
S_TAG, S_WAVE = 28, 29
S_XCD, S_J = 30, 31
R_WS, R_X, R_W, R_P, R_W2, R_M, R_OUT = 32, 36, 40, 44, 48, 52, 56
S_T0 = 60
S_MT, S_HG, S_DT, S_FT, S_KST, S_PAR = 70, 71, 72, 73, 74, 75
S_ST, S_DTILE = 76, 77
S_CNT = 78
S_A, S_B, S_C, S_D = 80, 81, 82, 83
S_MSK = 84
S_K0 = 90
S_STMP = 96
S_PERM = 66
S_M = 79
S_FROMA = 95
S_PERM2 = 68


def lead_perm(n, nshare, m, lead=2):
    order = list(range(n))
    i = m
    while i + lead < n:
        order[i:i + lead + 1] = [order[i + lead]] + order[i:i + lead]
        i += nshare
    return order


class Gen:
    def __init__(self, stamps=False, stop=None, opts=None):
        self.o = opts or {}
        self.a = Asm()
        self.stamps = stamps
        self.stop = stop

    def nt(self, key):
        return "nt" if self.o.get(key) else ""

    def srd(self, dst, ptr, nbytes, off_s=None):
        a = self.a
        if off_s is None:
            a(f"s_mov_b32 s{dst}, s{ptr}\ns_and_b32 s{dst+1}, s{ptr+1}, 0xffff")
        else:
            a(f"s_add_u32 s{dst}, s{ptr}, s{off_s}\ns_addc_u32 s{dst+1}, s{ptr+1}, 0\ns_and_b32 s{dst+1}, s{dst+1}, 0xffff")
        a(f"s_mov_b32 s{dst+2}, {nbytes:#x}\ns_mov_b32 s{dst+3}, 0x20000")

    def stamp(self, k, vtmp, dyn=None):
        if "pc1" in self.o:
            if dyn is None and k in (self.o["pc1"], self.o["pc2"]):
                lab = self.a.label("npr")
                self.a(f"s_cmp_lg_u32 s{S_FROMA}, {self.o.get('prole', 0)}\ns_cbranch_scc1 {lab}")
                if k == self.o["pc1"]:
                    self.a(f"s_memtime s[92:93]\ns_waitcnt lgkmcnt(0)")
                else:
                    self.a(f"s_memtime s[96:97]\ns_waitcnt lgkmcnt(0)\ns_sub_u32 s92, s96, s92\ns_lshr_b32 s92, s92, 4\ns_add_u32 s98, s98, s92\ns_mov_b32 s94, 1")
                self.a(f"{lab}:")
            return
        if "probe" in self.o:
            role = self.o.get("prole")
            if k == self.o["probe"] and dyn is None:
                lab = self.a.label("npr")
                if role is not None and k != 0:
                    self.a(f"s_cmp_lg_u32 s{S_FROMA}, {role}\ns_cbranch_scc1 {lab}")
                self.a(f"s_memrealtime s[98:99]\ns_mov_b32 s94, 1\ns_waitcnt lgkmcnt(0)\n{lab}:")
            return
        if self.o.get("dbg"):
            m = {0: 0, 11: 1, 1: 2, 2: 3, 3: 4, 4: 5, 6: 6, 9: 7}
            mA = {0: 0, 1: 1, 2: 2, 3: 3, 4: 4, 5: 5, 6: 6, 9: 7}
            if dyn is not None:
                return
            a = self.a
            for wg, mp, base in ((8, m, 0), (12, mA, 8)):
                if k in mp:
                    lab = a.label("nd")
                    a(f"s_cmp_lg_u32 s2, {wg}\ns_cbranch_scc1 {lab}")
                    a(f"s_memrealtime s[{S_STMP}:{S_STMP+1}]\ns_waitcnt lgkmcnt(0)")
                    a(f"v_mov_b32 v{vtmp}, s{S_STMP}\nv_mov_b32 v{vtmp+2}, {4*(base+mp[k])}")
                    a(f"s_mov_b64 exec, 1\nglobal_store_dword v{vtmp+2}, v{vtmp}, s[{P_DBG}:{P_DBG+1}]\ns_mov_b64 exec, -1\n{lab}:")
            return
        if not self.stamps:
            return
        a = self.a
        a(f"s_memrealtime s[{S_STMP}:{S_STMP+1}]\ns_memtime s[100:101]")
        ln = str(k)
        if dyn is not None:
            a(f"s_add_u32 m0, s{dyn}, {k}")
            ln = "m0"
        a(f"s_waitcnt lgkmcnt(0)\nv_writelane_b32 v254, s{S_STMP}, {ln}\nv_writelane_b32 v255, s100, {ln}")

    def perm_setup(self, s_m, n, nshare, dst, enable):
        a = self.a
        def pk(o):
            v = 0
            for i, x in enumerate(o):
                v |= x << (4 * i)
            return v & 0xffffffff, v >> 32
        lo, hi = pk(list(range(n)))
        a(f"s_mov_b32 s{dst}, {lo:#x}\ns_mov_b32 s{dst+1}, {hi:#x}")
        if not enable:
            return
        for m in range(nshare):
            lo, hi = pk(lead_perm(n, nshare, m, enable))
            a(f"s_cmp_eq_u32 s{s_m}, {m}\ns_cselect_b32 s{dst}, {lo:#x}, s{dst}\ns_cselect_b32 s{dst+1}, {hi:#x}, s{dst+1}")

    def perm_next(self, dst, src, mul):
        t = f"s_and_b32 s{dst}, s{src}, 15\ns_lshr_b64 s[{src}:{src+1}], s[{src}:{src+1}], 4\n"
        if mul & (mul - 1) == 0:
            t += f"s_lshl_b32 s{dst}, s{dst}, {mul.bit_length()-1}\n"
        else:
            t += f"s_mul_i32 s{dst}, s{dst}, {mul}\n"
        return t

    def poll(self, voffs, vtmp, mask=None):
        a = self.a
        lp, dn = a.label("poll"), a.label("pdone")
        n = len(voffs)

        def ld(k):
            for i, vo in enumerate(voffs):
                a(f"buffer_load_dword v{vtmp+k*n+i}, v{vo}, s[{R_WS}:{R_WS+3}], 0 offen sc1")

        def chk(k):
            if mask is not None:
                a(f"v_xor_b32 v{vtmp+k*n}, s{S_TAG}, v{vtmp+k*n}\nv_and_b32 v{vtmp+k*n}, v{mask}, v{vtmp+k*n}\nv_cmp_ne_u32 vcc, 0, v{vtmp+k*n}")
            else:
                a(f"v_cmp_ne_u32 vcc, s{S_TAG}, v{vtmp+k*n}")
            for i in range(1, n):
                a(f"v_cmp_ne_u32 s[{S_T0}:{S_T0+1}], s{S_TAG}, v{vtmp+k*n+i}\ns_nop 1\ns_or_b64 vcc, vcc, s[{S_T0}:{S_T0+1}]")
            a(f"s_nop 1\ns_cmp_eq_u64 vcc, 0\ns_cbranch_scc1 {dn}")
        if not self.o.get("pp"):
            a(f"s_mov_b32 s{S_CNT}, 0\n{lp}:")
            ld(0)
            a("s_waitcnt vmcnt(0)")
            chk(0)
            a(f"s_add_u32 s{S_CNT}, s{S_CNT}, 1\ns_cmp_lt_u32 s{S_CNT}, {SPIN_LIMIT}\ns_cbranch_scc0 {dn}\ns_sleep 1\ns_branch {lp}\n{dn}:")
            return
        sl = f"s_sleep {self.o['pp'] - 1}\n" if self.o["pp"] > 1 else ""
        a(f"s_mov_b32 s{S_CNT}, 0")
        ld(0)
        a(f"{sl}{lp}:")
        ld(1)
        a(f"s_waitcnt vmcnt({n})")
        chk(0)
        ld(0)
        a(f"s_waitcnt vmcnt({n})")
        chk(1)
        a(f"s_add_u32 s{S_CNT}, s{S_CNT}, 1\ns_cmp_lt_u32 s{S_CNT}, {SPIN_LIMIT}\ns_cbranch_scc1 {lp}\n{dn}:")

    def flag_store(self, s_off, vtmp):
        a = self.a
        a(f"v_mov_b32 v{vtmp}, s{S_TAG}\nv_mov_b32 v{vtmp+1}, 0\ns_mov_b64 exec, 1")
        a(f"buffer_store_dword v{vtmp}, v{vtmp+1}, s[{R_WS}:{R_WS+3}], s{s_off} offen sc1\ns_mov_b64 exec, -1")

    def pipeline(self, stages, L, gstar, drain=True, wait_every=2, vis=None):
        a = self.a
        seq = [(si, gi, u) for si, st in enumerate(stages) for gi, u in enumerate(st["uses"])]
        issued = []
        vis = list(vis or [])
        state = dict(nxt=0, opened=-1)
        pend = []

        def collect(lim):
            while state["nxt"] < len(seq) and state["nxt"] <= lim and seq[state["nxt"]][0] <= state["opened"]:
                si_, _, u_ = seq[state["nxt"]]
                for name, txt in u_["reads"]:
                    pend.append((f"{si_}:{name}", txt))
                state["nxt"] += 1
                if seq[state["nxt"] - 1][1] == len(stages[si_]["uses"]) - 1 and si_ + 1 < len(stages):
                    state["defer"] = list(stages[si_ + 1].get("pre", []))

        def out(txt):
            if ";@" in txt:
                vis.append(txt.split(";@")[1].strip())
            a(txt)

        def emit(n):
            for _ in range(min(n, len(pend))):
                name, txt = pend.pop(0)
                out(txt)
                if name:
                    issued.append(name)

        a(stages[0]["bar"])
        state["opened"] = 0
        collect(L - 1)
        emit(len(pend))
        n_real = sum(len(st["uses"]) for st in stages if not st.get("virtual"))
        covered = -1
        for f in range(n_real):
            si, gi, u = seq[f]
            nuse = len(stages[si]["uses"])
            if gi == 0 and stages[si].get("head"):
                assert not pend, pend
                a(stages[si]["head"])
                covered = -1
            if gi == gstar and si + 1 < len(stages):
                emit(len(pend))
                for x in state.pop("defer", []):
                    a(x)
                if drain:
                    a("s_waitcnt lgkmcnt(0)")
                    covered = len(issued) - 1
                a(stages[si + 1]["bar"])
                pend.extend((None, x) for x in stages[si + 1].get("bar_pend", []))
                state["opened"] = si + 1
                collect(f + L - 1)
            def lastidx(ff):
                s_, _, uu = seq[ff]
                return max(len(issued) - 1 - issued[::-1].index(f"{s_}:{nm}") for nm in uu["need"])
            w = []
            if lastidx(f) > covered:
                tgt = lastidx(f)
                for ff in range(f + 1, min(f + wait_every, n_real)):
                    if seq[ff][0] != si:
                        break
                    try:
                        tgt = max(tgt, lastidx(ff))
                    except ValueError:
                        break
                n = len(issued) - 1 - tgt
                assert n <= 15, n
                w.append(f"lgkmcnt({n})")
                covered = tgt
            if u.get("vneed") is not None:
                w.insert(0, f"vmcnt({len(vis) - 1 - vis.index(u['vneed'])})")
            if u.get("vm") is not None:
                npv = sum(1 for nm_, t_ in pend if t_.strip().startswith("buffer_load"))
                w.insert(0, f"vmcnt({u['vm'] - npv})")
            if w:
                a("s_waitcnt " + " ".join(w))
            if u.get("before"):
                a(u["before"])
            if state.get("defer") and not pend:
                n_ = self.o.get("npre", 7)
                pend.extend((None, x) for x in state["defer"][:n_])
                state["defer"] = state["defer"][n_:]
            collect(f + L)
            if state.get("mix"):
                k_ = state.pop("mix")
                head_, rest_ = pend[:k_], pend[k_:]
                pend[:] = [x for pr in zip(head_, rest_) for x in pr] + head_[len(rest_):] + rest_[len(head_):]
            nm_ = len(u["mf"])
            for k, m in enumerate(u["mf"]):
                a(m)
                left = nm_ - k
                if drain and gi >= gstar:
                    left += sum(len(uu["mf"]) for uu in stages[si]["uses"][gi + 1:])
                    extra = 2 * (nuse - 1 - gi)
                    emit(-(-(len(pend) + extra) // left) if left > 1 else len(pend))
                else:
                    emit(-(-len(pend) // left))
            if u.get("after"):
                items = [x for x in u["after"].split("\n") if x.strip()]
                if gi == nuse - 1:
                    for x in items:
                        out(x)
                else:
                    assert not pend
                    pend.extend((None, x) for x in items)
                    state["mix"] = len(items)
            if gi == nuse - 1 and stages[si].get("tail"):
                a(stages[si]["tail"])

    def prologue(self):
        a = self.a
        a(f"""
        s_cmp_ge_u32 s2, 256
        s_cbranch_scc1 L_exit
        {"v_mov_b32 v254, 0" if self.stamps else ""}
        {"v_mov_b32 v255, 0" if self.stamps else ""}
        {"s_memrealtime s[98:99]" if self.o.get("calib") or "pc1" in self.o else ""}
        {"s_mov_b32 s94, 0" if "probe" in self.o or "pc1" in self.o else ""}
        s_load_dwordx16 s[4:19], s[0:1], 0
        s_load_dwordx8 s[20:27], s[0:1], 64
        v_and_b32 v1, 63, v0
        v_lshrrev_b32 v2, 6, v0
        s_and_b32 s{S_XCD}, s2, 7
        v_readfirstlane_b32 s{S_WAVE}, v2
        s_lshr_b32 s{S_J}, s2, 3
        s_waitcnt lgkmcnt(0)
        s_load_dword s{S_TAG}, s[{P_WS}:{P_WS+1}], 0
        """)
        self.srd(R_WS, P_WS, WS_USED)
        self.srd(R_X, P_X, 2048 * 1280)
        self.srd(R_W2, P_W2, 1536 * 4096)
        if self.stamps or self.o.get("dbg") or "probe" in self.o:
            a(f"s_cmp_lg_u32 s{S_WAVE}, 0\ns_cbranch_scc1 L_nost0")
            self.stamp(0, 4)
            a("L_nost0:")
        if self.o.get("tlb"):
            self.tlb_warm()
        if self.o.get("pf_code"):
            self.code_prefetch()
        if self.o.get("prio"):
            a(f"""
            s_sub_u32 s{S_T0}, s{S_WAVE}, 4
            s_cmp_lt_u32 s{S_T0}, 3
            s_cbranch_scc1 L_noprio
            s_setprio 3
            L_noprio:
            """)
        a(f"""
        s_lshr_b32 s{S_T0}, s{S_XCD}, 1
        s_lshl_b32 s{S_T0}, s{S_T0}, 3
        s_lshr_b32 s{S_ST}, s{S_J}, 2
        s_add_u32 s{S_ST}, s{S_ST}, s{S_T0}
        s_and_b32 s{S_T0}, s{S_XCD}, 1
        s_lshl_b32 s{S_T0}, s{S_T0}, 2
        s_and_b32 s{S_DTILE}, s{S_J}, 3
        s_add_u32 s{S_DTILE}, s{S_DTILE}, s{S_T0}
        s_cmp_lt_u32 s{S_XCD}, 4
        s_cbranch_scc1 L_roleB
        """)

    V_W2 = 240

    def f_perm(self):
        a = self.a
        a(f"s_lshl_b32 s{S_M}, s{S_DTILE}, 1\ns_add_u32 s{S_M}, s{S_M}, s{S_ST}\ns_and_b32 s{S_M}, s{S_M}, 7")
        self.perm_setup(S_M, 12, 8, S_PERM, self.o.get("rotF"))

    def w2_setup(self):
        a = self.a
        V = self.V_W2
        self.f_perm()
        a(f"""
        v_lshrrev_b32 v{V}, 3, v1
        v_lshrrev_b32 v{V+1}, 4, v1
        v_lshlrev_b32 v{V+1}, 1, v{V+1}
        v_and_b32 v{V+2}, 7, v1
        v_xor_b32 v{V+1}, v{V+1}, v{V+2}
        v_lshlrev_b32 v{V+1}, 4, v{V+1}
        v_lshl_add_u32 v{V}, v{V}, 12, v{V+1}
        v_add_u32 v{V+1}, {32768-1024}, v{V}
        v_add_u32 v{V+2}, {2*(32768-1024)}, v{V}
        v_add_u32 v{V+3}, {3*(32768-1024)}, v{V}
        s_sub_u32 s{S_T0}, s{S_WAVE}, 5
        s_lshl_b32 s{S_B}, s{S_T0}, 13
        s_lshl_b32 s{S_A}, s{S_T0}, 18
        s_lshl_b32 s{S_T0}, s{S_ST}, 7
        s_add_u32 s{S_A}, s{S_A}, s{S_T0}
        """)

    def w2_issue_at(self, p):
        a = self.a
        V = self.V_W2
        a(f"s_bfe_u32 s{S_T0}, s{S_PERM}, {(4 << 16) | (4 * p):#x}\ns_lshl_b32 s{S_T0}, s{S_T0}, 19\ns_add_u32 s{S_T0}, s{S_T0}, s{S_A}")
        for g in range(2):
            a(f"s_add_u32 m0, s{S_B}, {p*16384 + g*4096}")
            a(f"s_add_u32 s{S_T0}, s{S_T0}, {g*4*32768}")
            for i in range(4):
                a(f"buffer_load_dwordx4 v{V+i}, s[{R_W2}:{R_W2+3}], s{S_T0} offen offset:{i*1024} lds")

    def w2_half(self, g):
        a = self.a
        V = self.V_W2
        if g == 0:
            a(self.perm_next(S_K0, S_PERM, 128 * 4096) + f"s_add_u32 s{S_K0}, s{S_K0}, s{S_A}")
        a(f"s_add_u32 m0, s{S_B}, {g*4096}\ns_add_u32 s{S_T0}, s{S_K0}, {g*4*32768}")
        for i in range(4):
            a(f"buffer_load_dwordx4 v{V+i}, s[{R_W2}:{R_W2+3}], s{S_T0} offen offset:{i*1024} lds")
        if g == 1:
            a(f"s_add_u32 s{S_B}, s{S_B}, 16384")

    def w2_issue(self):
        a = self.a
        V = self.V_W2
        a(self.perm_next(S_T0, S_PERM, 128 * 4096))
        a(f"s_add_u32 s{S_T0}, s{S_T0}, s{S_A}")
        for g in range(2):
            a(f"s_add_u32 m0, s{S_B}, {g*4096}")
            a(f"s_add_u32 s{S_T0}, s{S_T0}, {g*4*32768}")
            for i in range(4):
                a(f"buffer_load_dwordx4 v{V+i}, s[{R_W2}:{R_W2+3}], s{S_T0} offen offset:{i*1024} lds")
        a(f"s_add_u32 s{S_B}, s{S_B}, 16384\ns_and_b32 s{S_B}, s{S_B}, 0x1ffff")

    def w2_prefill(self, n):
        if n == 0:
            return
        a = self.a
        lp = a.label("pf")
        a(f"s_mov_b32 s{S_C}, 0\n{lp}:")
        self.w2_issue()
        a(f"s_add_u32 s{S_C}, s{S_C}, 1\ns_cmp_lt_u32 s{S_C}, {n}\ns_cbranch_scc1 {lp}")

    def if_wave56(self):
        a = self.a
        skip = a.label("n56")
        a(f"s_sub_u32 s{S_T0}, s{S_WAVE}, 5\ns_cmp_lt_u32 s{S_T0}, 2\ns_cbranch_scc0 {skip}")
        return skip

    def role_a(self):
        a = self.a
        a(f"L_roleA:\ns_mov_b32 s{S_FROMA}, 1")
        a(f"s_sub_u32 s{S_MT}, s{S_ST}, 16\ns_mov_b32 s{S_HG}, s{S_DTILE}")
        a(f"s_cmp_ge_u32 s{S_WAVE}, 4\ns_cbranch_scc1 L_A_loader")
        ACC, XF, WF, VXA, VWA = 128, 96, 64, 4, 6
        if self.o.get("ta1") or self.o.get("ta2"):
            self.start_prefetch()
        self.a_thread_map()
        a(f"""
        v_and_b32 v16, 15, v1
        v_lshrrev_b32 v17, 4, v1
        s_lshl_b32 s{S_T0}, s{S_WAVE}, 5
        v_add_u32 v18, s{S_T0}, v16
        v_lshrrev_b32 v19, 1, v16
        v_xor_b32 v19, v17, v19
        v_lshlrev_b32 v19, 4, v19
        v_lshl_add_u32 v{VXA}, v18, 7, v19
        v_xor_b32 v{VXA+1}, 64, v{VXA}
        v_lshrrev_b32 v18, 2, v16
        v_lshl_add_u32 v19, v17, 3, v18
        v_and_b32 v20, 1, v17
        v_lshl_or_b32 v20, v20, 2, v18
        v_lshlrev_b32 v19, 9, v19
        v_lshl_add_u32 v19, v20, 5, v19
        v_and_b32 v20, 3, v16
        v_lshl_add_u32 v19, v20, 3, v19
        v_add_u32 v{VWA}, {A_WOFF}, v19
        """)
        for n in range(1, 8):
            a(f"v_xor_b32 v{VWA+n}, {n<<5}, v{VWA}")
        for r in range(120):
            a(f"v_mov_b32 v{ACC+r}, 0")
        a(f"s_mov_b32 s{S_A}, 0\ns_mov_b32 s{S_B}, 0\ns_mov_b32 s{S_C}, {A_SLOT}\ns_waitcnt lgkmcnt(0)")
        a(f"s_add_u32 s{S_TAG}, s{S_TAG}, {TAG_INC:#x}")

        RING = 6
        D = 6

        def mk_stage(bar, virtual=False, head=None, tail=None):
            uses = []
            for g in range(30):
                ks, n = divmod(g, 15)
                wb = WF + 4 * (g % RING)
                reads = []
                if g == 0:
                    for rb in range(2):
                        reads.append((f"x0{rb}", f"ds_read_b128 {vr(XF+4*rb,4)}, v{VXA} offset:{rb*2048}"))
                if g == 13:
                    for rb in range(2):
                        reads.append((f"x1{rb}", f"ds_read_b128 {vr(XF+8+4*rb,4)}, v{VXA+1} offset:{rb*2048}"))
                off = ks * 16384 + (n >> 3) * 256
                reads.append((f"w{g}a", f"ds_read_b64_tr_b16 {vr(wb,2)}, v{VWA+(n&7)} offset:{off}"))
                reads.append((f"w{g}b", f"ds_read_b64_tr_b16 {vr(wb+2,2)}, v{VWA+(n&7)} offset:{off+2048}"))
                need = [f"w{g}b", f"x{ks}1"]
                mf = []
                for rb in range(2):
                    acc = vr(ACC + (n * 2 + rb) * 4, 4)
                    xf = vr(XF + ks * 8 + rb * 4, 4)
                    wf = vr(wb, 4)
                    if n < 5:
                        mf.append(f"v_mfma_f32_16x16x32_bf16 {acc}, {wf}, {xf}, {acc}")
                    else:
                        mf.append(f"v_mfma_f32_16x16x32_bf16 {acc}, {xf}, {wf}, {acc}")
                uses.append(dict(reads=reads, need=need, mf=mf))
            return dict(uses=uses, bar=bar, virtual=virtual, head=head, tail=tail)

        adv = "s_barrier"
        pre = [f"s_add_u32 s{S_B}, s{S_B}, 1", f"s_cmp_eq_u32 s{S_B}, 3", f"s_cselect_b32 s{S_B}, 0, s{S_B}",
               f"s_cselect_b32 s{S_T0}, {(-2*A_SLOT) & 0xffffffff:#x}, s{S_C}"]
        pre += [f"v_add_u32 v{r}, s{S_T0}, v{r}" for r in range(VXA, VWA + 8)]
        tail = f"s_add_u32 s{S_A}, s{S_A}, 1\ns_cmp_lt_u32 s{S_A}, 10\ns_cbranch_scc1 L_A_loop"
        head = "L_A_loop:\n"
        bar0 = "s_barrier"
        if self.o.get("tw2") == 2:
            self.srd(R_P, P_WO, 640 * 1280)
            a(f"""
            v_lshlrev_b32 v252, 7, v1
            s_lshl_b32 s{S_T0}, s{S_MT}, 3
            s_add_u32 s{S_T0}, s{S_T0}, s{S_HG}
            s_lshl_b32 s{S_T0}, s{S_T0}, 2
            s_add_u32 s{S_T0}, s{S_T0}, s{S_WAVE}
            s_mul_i32 s{S_D}, s{S_T0}, 12288
            s_add_u32 s{S_KST}, s{S_D}, 8192
            s_mul_i32 s{S_PAR}, s{S_T0}, 1664
            s_and_b32 s{S_M}, s{S_J}, 7
            s_add_u32 s{S_M}, s{S_M}, {self.o.get("tw2at", 1)}
            """)
            head += f"""
            s_cmp_lg_u32 s{S_A}, s{S_M}
            s_cbranch_scc1 L_A_nt2
            buffer_load_dword v253, v252, s[{R_W2}:{R_W2+3}], s{S_D} offen
            s_mov_b32 exec_hi, 0
            buffer_load_dword v253, v252, s[{R_W2}:{R_W2+3}], s{S_KST} offen
            s_mov_b32 exec_lo, 0x1fff
            buffer_load_dword v253, v252, s[{R_P}:{R_P+3}], s{S_PAR} offen
            s_mov_b64 exec, -1
            L_A_nt2:
            """
        if "promA" in self.o:
            head += f"s_cmp_lg_u32 s{S_A}, {self.o['promA']}\ns_cbranch_scc1 L_A_npr\n" + self.pf_rest_plain() + "L_A_npr:\n"
        ta2 = self.o.get("ta2")
        if ta2 == 1:
            a(self.pf_rest())
        elif ta2 == 2:
            bar0 += "\n" + self.pf_rest()
        elif ta2:
            head += f"s_cmp_lg_u32 s{S_A}, {ta2-2}\ns_cbranch_scc1 L_A_npf\n" + self.pf_rest() + "L_A_npf:\n"
        self.pipeline([mk_stage(bar0, head=head, tail=tail), dict(mk_stage(adv, virtual=True), pre=pre)], 5, 30 - 3, wait_every=self.o.get('we', 2))
        self.stamp(2, 16)
        PK, VV, ONES, KVD, ZD = 16, 36, 56, 64, 116
        a("s_waitcnt lgkmcnt(0)\ns_nop 7")
        a(f"s_mov_b32 s{S_K0}, {LOG2E:#x}\ns_mov_b32 s{S_K0+1}, {LOG2E:#x}\ns_mov_b32 s{S_K0+2}, {f2u(1e-6):#x}")

        def phi(base, n, t):
            for i in range(0, n, 4):
                r = base + i
                a(f"v_pk_mul_f32 {vr(t,2)}, {vr(r,2)}, s[{S_K0}:{S_K0+1}]")
                a(f"v_pk_mul_f32 {vr(t+2,2)}, {vr(r+2,2)}, s[{S_K0}:{S_K0+1}]")
                for k in range(4):
                    a(f"v_exp_f32_e64 v{t+k}, v{t+k} clamp")
                for k in range(4):
                    a(f"v_max_f32 v{r+k}, s{S_K0+2}, v{r+k}")
                a(f"v_pk_add_f32 {vr(r,2)}, {vr(r,2)}, {vr(t,2)}")
                a(f"v_pk_add_f32 {vr(r+2,2)}, {vr(r+2,2)}, {vr(t+2,2)}")

        def pack(dst, src0, src1):
            a(f"v_cvt_pk_bf16_f32 v{dst}, v{src0}, v{src0+1}\nv_cvt_pk_bf16_f32 v{dst+1}, v{src0+2}, v{src0+3}")
            if src1 is None:
                a(f"v_mov_b32 v{dst+2}, 0\nv_mov_b32 v{dst+3}, 0")
            else:
                a(f"v_cvt_pk_bf16_f32 v{dst+2}, v{src1}, v{src1+1}\nv_cvt_pk_bf16_f32 v{dst+3}, v{src1+2}, v{src1+3}")

        for b in range(5):
            pack(VV + 4 * b, ACC + (10 + b) * 8, ACC + (10 + b) * 8 + 4)
        for k in range(4):
            a(f"v_mov_b32 v{ONES+k}, 0x3f803f80")
        phi(ACC + 40, 40, 60)
        for b in range(5):
            pack(PK + 4 * b, ACC + (5 + b) * 8, ACC + (5 + b) * 8 + 4)
        a("s_nop 1")
        ZD = ACC + 80
        blocks = [(x, y) for x in range(5) for y in range(5) if abs(x - y) <= 1]
        for (x, y) in blocks:
            a(f"v_mfma_f32_16x16x32_bf16 {vr(KVD+4*(2*x+y),4)}, {vr(PK+4*x,4)}, {vr(VV+4*y,4)}, 0")
        for x in range(5):
            a(f"v_mfma_f32_16x16x32_bf16 {vr(ZD+4*x,4)}, {vr(ONES,4)}, {vr(PK+4*x,4)}, 0")
        a(f"""
        s_mul_i32 s{S_T0}, s{S_WAVE}, {EXCH_ST}
        s_add_u32 s{S_T0}, s{S_T0}, {EXCH}
        v_lshlrev_b32 v60, 4, v1
        v_add_u32 v60, s{S_T0}, v60
        v_and_b32 v61, 15, v1
        v_lshlrev_b32 v61, 2, v61
        v_add_u32 v61, s{S_T0}, v61
        s_nop 3
        """)
        for i in range(13):
            a(f"ds_write_b128 v60, {vr(KVD+4*i,4)} offset:{i*1024}")
        for x in range(5):
            a(f"ds_write_b32 v61, v{ZD+4*x} offset:{13312+64*x}")
        self.stamp(10, 40)
        a("s_waitcnt lgkmcnt(0)\ns_barrier")
        self.stamp(11, 40)
        self.a_reduce_publish(64)
        self.stamp(12, 40)
        a("s_barrier")
        self.stamp(14, 40)
        PQ = 16
        phi(ACC, 40, 60)
        for ts in range(3):
            for rb in range(2):
                pack(PQ + (ts * 2 + rb) * 4, ACC + (2 * ts * 2 + rb) * 4, None if ts == 2 else ACC + ((2 * ts + 1) * 2 + rb) * 4)
        self.uw_srd()
        self.f_setup()
        a("s_barrier")
        if not self.o.get("wotl"):
            self.wot_preload(self.F_V[2])
        a(f"""
        v_and_b32 v63, 15, v1
        v_lshlrev_b32 v63, 2, v63
        s_lshl_b32 s{S_T0}, s{S_MT}, 7
        s_lshl_b32 s{S_T0+1}, s{S_WAVE}, 5
        s_add_u32 s{S_T0}, s{S_T0}, s{S_T0+1}
        s_lshl_b32 s{S_T0}, s{S_T0}, 2
        s_add_u32 s{S_T0}, s{S_T0}, {G_OFF}
        buffer_load_dword v62, v63, s[{R_WS}:{R_WS+3}], s{S_T0} offen sc1
        buffer_load_dword v61, v63, s[{R_WS}:{R_WS+3}], s{S_T0} offen offset:64 sc1
        """)
        self.a_gather(64)
        a("s_waitcnt lgkmcnt(0)\ns_barrier")
        self.stamp(4, 40)
        FR = 64
        a("v_lshlrev_b32 v60, 4, v1\nv_add_u32 v60, " + str(KVT) + ", v60")
        used = [0, 2, 3, 4, 5, 7, 8, 9, 10, 11, 12, 13]
        for f in used:
            a(f"ds_read_b128 {vr(FR+4*f,4)}, v60 offset:{f*1024}")
        NUM, DEN = 128, 120
        kts = {0: [0], 1: [0, 1], 2: [0, 1], 3: [1, 2], 4: [1, 2]}
        a(f"""
        v_lshrrev_b32 v40, 4, v1
        v_cmp_gt_u32 s[{S_MSK}:{S_MSK+1}], 1, v40
        v_cmp_gt_u32 s[{S_MSK+2}:{S_MSK+3}], 2, v40
        v_cmp_gt_u32 s[{S_MSK+4}:{S_MSK+5}], 3, v40
        s_waitcnt lgkmcnt(0)
        """)
        for rb in range(2):
            for ts in range(3):
                c = "0" if ts == 0 else vr(DEN + 4 * rb, 4)
                a(f"v_mfma_f32_16x16x32_bf16 {vr(DEN+4*rb,4)}, {vr(FR+4*(11+ts),4)}, {vr(PQ+(ts*2+rb)*4,4)}, {c}")
        for rb in range(2):
            for b in range(5):
                for i, ts in enumerate(kts[b]):
                    d = vr(NUM + (rb * 5 + b) * 4, 4)
                    c = "0" if i == 0 else d
                    a(f"v_mfma_f32_16x16x32_bf16 {d}, {vr(FR+4*(2*b+ts),4)}, {vr(PQ+(ts*2+rb)*4,4)}, {c}")
        for rb in range(2):
            for h in range(4):
                a(f"v_add_f32 v{DEN+4*rb+h}, s{S_K0+2}, v{DEN+4*rb+h}")
        for rb in range(2):
            for h in range(4):
                a(f"v_rcp_f32 v{DEN+4*rb+h}, v{DEN+4*rb+h}")
        a("s_nop 0")
        gv = {0: 62, 1: 61}
        for rb in range(2):
            for h in range(4):
                a(f"v_mul_f32 v{DEN+4*rb+h}, v{gv[rb]}, v{DEN+4*rb+h}")
        a(f"""
        s_lshl_b32 s{S_T0}, s{S_MT}, 3
        s_lshl_b32 s{S_T0+1}, s{S_WAVE}, 1
        s_add_u32 s{S_T0}, s{S_T0}, s{S_T0+1}
        s_mul_i32 s{S_T0}, s{S_T0}, {GO_ST}
        s_add_u32 s{S_T0}, s{S_T0}, {GO}
        s_lshl_b32 s{S_T0+1}, s{S_HG}, 11
        s_add_u32 s{S_T0+1}, s{S_T0+1}, s{S_T0}
        s_lshl_b32 s{S_T0+2}, s{S_HG}, 9
        s_add_u32 s{S_T0+2}, s{S_T0+2}, s{S_T0}
        s_add_u32 s{S_T0+2}, s{S_T0+2}, 16384
        v_lshlrev_b32 v40, 4, v1
        v_lshlrev_b32 v41, 3, v1
        """)
        for rb in range(2):
            d = DEN + 4 * rb
            a(f"v_cndmask_b32 v44, v{d+1}, v{d}, s[{S_MSK}:{S_MSK+1}]")
            a(f"v_cndmask_b32 v45, v{d+2}, v{d+1}, s[{S_MSK+2}:{S_MSK+3}]")
            a(f"v_cndmask_b32 v46, v{d+3}, v{d+2}, s[{S_MSK+4}:{S_MSK+5}]")
            sc = [d, 44, 45, 46, d + 3]
            for b in range(5):
                for k in range(4):
                    r = NUM + (rb * 5 + b) * 4 + k
                    a(f"v_mul_f32 v{r}, v{sc[b]}, v{r}")
            o = 16 + rb * 12
            n0 = NUM + rb * 20
            pack(o, n0, n0 + 4)
            pack(o + 4, n0 + 8, n0 + 12)
            a(f"v_cvt_pk_bf16_f32 v{o+8}, v{n0+16}, v{n0+17}\nv_cvt_pk_bf16_f32 v{o+9}, v{n0+18}, v{n0+19}")
            a(f"buffer_store_dwordx4 {vr(o,4)}, v40, s[{R_WS}:{R_WS+3}], s{S_T0+1} offen sc1")
            a(f"buffer_store_dwordx4 {vr(o+4,4)}, v40, s[{R_WS}:{R_WS+3}], s{S_T0+1} offen offset:1024 sc1")
            a(f"buffer_store_dwordx2 {vr(o+8,2)}, v41, s[{R_WS}:{R_WS+3}], s{S_T0+2} offen sc1")
            if rb == 0:
                a(f"s_add_u32 s{S_T0+1}, s{S_T0+1}, {GO_ST}\ns_add_u32 s{S_T0+2}, s{S_T0+2}, {GO_ST}")
        self.stamp(5, 40)
        a("s_branch L_F_comp")

        a("L_A_loader:")
        VX, VW = 4, 8
        self.srd(R_W, P_WQKV, 640 * 3840)
        a(f"""
        s_sub_u32 s{S_D}, s{S_WAVE}, 4
        v_lshrrev_b32 v16, 3, v1
        v_lshrrev_b32 v17, 4, v1
        v_and_b32 v18, 7, v1
        v_xor_b32 v17, v17, v18
        v_lshlrev_b32 v17, 4, v17
        v_mul_u32_u24 v16, 1280, v16
        v_add_u32 v{VX}, v16, v17
        v_xor_b32 v18, 64, v{VX}
        v_add_u32 v{VX+1}, {8*1280-1024}, v18
        v_add_u32 v{VX+2}, {2*(8*1280-1024)}, v{VX}
        v_add_u32 v{VX+3}, {3*(8*1280-1024)}, v18
        s_lshl_b32 s{S_T0}, s{S_MT}, 7
        s_lshl_b32 s{S_T0+1}, s{S_D}, 5
        s_add_u32 s{S_T0}, s{S_T0}, s{S_T0+1}
        s_mul_i32 s{S_A}, s{S_T0}, 1280
        s_lshl_b32 s{S_C}, s{S_D}, 12
        """)
        def issue_x():
            a(f"s_mov_b32 m0, s{S_C}\ns_nop 0")
            for i in range(4):
                a(f"buffer_load_dwordx4 v{VX+i}, s[{R_X}:{R_X+3}], s{S_A} offen offset:{i*1024} lds")
            a(f"s_add_u32 s{S_A}, s{S_A}, 128")

        def issue_w():
            for g in range(2):
                a(f"s_lshl_b32 s{S_T0}, s{S_D}, 12\ns_add_u32 s{S_T0}, s{S_T0}, s{S_C}\ns_add_u32 m0, s{S_T0}, {A_WOFF + g*4096}\ns_nop 0")
                for i in range(4):
                    a(f"buffer_load_dwordx4 v{VW+4*g+i}, s[{R_W}:{R_W+3}], s{S_B} offen offset:{i*1024} lds")
            a(f"s_add_u32 s{S_B}, s{S_B}, {64*3840}")

        def next_slot():
            a(f"s_add_u32 s{S_C}, s{S_C}, {A_SLOT}\ns_cmp_ge_u32 s{S_C}, {3*A_SLOT}\ns_cselect_b32 s{S_T0}, {3*A_SLOT}, 0\ns_sub_u32 s{S_C}, s{S_C}, s{S_T0}")

        issue_x()
        a(f"""
        v_lshrrev_b32 v16, 5, v1
        v_bfe_u32 v17, v1, 1, 4
        v_and_b32 v18, 1, v1
        v_lshlrev_b32 v18, 4, v18
        v_mul_u32_u24 v19, 3840, v16
        v_add_u32 v18, v18, v19
        """)
        for i in (0, 1, 4, 5):
            sig = (2 * (i & 1)) | ((i >> 2) << 2)
            a(f"""
            v_or_b32 v19, {sig}, v16
            v_xor_b32 v19, v17, v19
            v_min_u32 v19, 14, v19
            v_mul_u32_u24 v20, 13, v19
            v_lshrrev_b32 v20, 6, v20
            v_mul_u32_u24 v20, 1120, v20
            v_lshl_add_u32 v19, v19, 5, v20
            v_add_u32 v19, v19, v18
            v_add_u32 v{VW+i}, {2*i*3840 - (i&3)*1024}, v19
            v_add_u32 v{VW+i+2}, {2*(i+2)*3840 - ((i+2)&3)*1024}, v19
            """)
        a(f"""
        s_mul_i32 s{S_B}, s{S_HG}, 160
        s_mul_i32 s{S_T0}, s{S_D}, {16*3840}
        s_add_u32 s{S_B}, s{S_B}, s{S_T0}
        """)
        issue_w()
        for _ in range(2):
            next_slot()
            issue_x()
            issue_w()
        a(f"s_waitcnt lgkmcnt(0)\ns_add_u32 s{S_TAG}, s{S_TAG}, {TAG_INC:#x}")
        a("s_waitcnt vmcnt(24)\ns_barrier")
        self.stamp(1, 16)
        a(f"s_mov_b32 s{S_CNT}, 1\nL_A_lloop:")
        a("s_waitcnt vmcnt(12)\ns_barrier")
        self.stamp(16, 16, dyn=S_CNT)
        next_slot()
        issue_x()
        issue_w()
        a(f"s_add_u32 s{S_CNT}, s{S_CNT}, 1\ns_cmp_le_u32 s{S_CNT}, 7\ns_cbranch_scc1 L_A_lloop")
        tw = 3 if self.o.get("tw2") == 1 else 0
        a(f"s_waitcnt vmcnt(12)\ns_barrier")
        if tw:
            self.w2_touch()
        self.stamp(24, 16)
        self.w2_setup()
        self.a_thread_map()
        a(f"s_waitcnt vmcnt({tw})\ns_barrier")
        self.stamp(25, 16)
        eA = self.o.get("eA", 2)
        early = [3, 4, 5, 0, 1, 2]
        nE = self.o.get("nE", 6)
        sk = self.if_wave56()
        for p in early[:eA]:
            self.w2_issue_at(p)
        a(f"{sk}:\ns_barrier")
        self.stamp(26, 16)
        sk = self.if_wave56()
        for p in early[eA:nE]:
            self.w2_issue_at(p)
        a(f"{sk}:")
        a("s_barrier")
        a(f"s_cmp_eq_u32 s{S_WAVE}, 7\ns_cbranch_scc1 L_A_poller")
        self.a_reduce_publish(64)
        self.stamp(15, 40)
        a("s_barrier")
        self.kvt_zero()
        skip = self.if_wave56()
        for p in early[nE:] + [6, 7]:
            self.w2_issue_at(p)
        a(f"s_mov_b32 s{S_PERM}, s{S_PERM+1}")
        a("s_barrier")
        self.a_gather(64)
        a("s_waitcnt lgkmcnt(0)\ns_barrier")
        a("s_branch L_F_loader")
        a(f"{skip}:\ns_barrier")
        self.a_gather(64)
        a("s_waitcnt lgkmcnt(0)\ns_barrier")
        a("s_branch L_F_u4")
        a("L_A_poller:\ns_barrier")
        self.kvt_zero()
        self.stamp(3, 16)
        a(f"""
        s_mul_i32 s{S_T0}, s{S_DTILE}, {FS}
        s_add_u32 s{S_T0}, s{S_T0}, {F_WOT}
        v_mov_b32 v16, s{S_T0}
        v_and_b32 v17, 3, v1
        s_lshl_b32 s{S_T0}, s{S_MT}, 2
        v_add_u32 v17, s{S_T0}, v17
        v_mul_u32_u24 v17, {FS}, v17
        v_add_u32 v17, {F_LN}, v17
        v_cmp_gt_u32 vcc, 32, v1
        s_nop 1
        v_cndmask_b32 v16, v17, v16, vcc
        """)
        self.poll([16], 18)
        self.stamp(13, 16)
        a("s_barrier\ns_barrier")
        a("s_branch L_F_poller")
        self.a_gather_body(64)

    def kvt_zero(self):
        a = self.a
        a(f"v_lshlrev_b32 v16, 4, v1\ns_lshl_b32 s{S_T0}, s{S_D}, 12\ns_add_u32 s{S_T0}, s{S_T0}, {KVT}\nv_add_u32 v16, s{S_T0}, v16")
        a("v_mov_b32 v20, 0\nv_mov_b32 v21, 0\nv_mov_b32 v22, 0\nv_mov_b32 v23, 0")
        for i in range(4):
            a(f"ds_write_b128 v16, v[20:23] offset:{i*1024}")
        a("s_waitcnt lgkmcnt(0)")

    def start_prefetch(self):
        a = self.a
        self.srd(R_W, P_WQKV, 640 * 3840)
        a(f"""
        s_lshl_b32 s{S_T0}, s{S_J}, 2
        s_add_u32 s{S_T0}, s{S_T0}, s{S_WAVE}
        v_lshrrev_b32 v16, 2, v1
        v_and_b32 v17, 3, v1
        v_mul_u32_u24 v16, 1280, v16
        v_lshl_add_u32 v16, v17, 7, v16
        s_lshr_b32 s{S_T0+2}, s{S_MT}, 3
        s_lshl_b32 s{S_T0+2}, s{S_T0+2}, 7
        s_add_u32 s{S_T0+2}, s{S_T0+2}, s{S_T0}
        s_mul_i32 s{S_DT}, s{S_T0+2}, {8*1280}
        v_lshrrev_b32 v19, 4, v1
        v_and_b32 v17, 15, v1
        v_min_u32 v17, 14, v17
        v_mul_u32_u24 v18, 13, v17
        v_lshrrev_b32 v18, 6, v18
        v_mul_u32_u24 v18, 640, v18
        v_lshl_add_u32 v18, v17, 7, v18
        v_mul_u32_u24 v19, 3840, v19
        v_add_u32 v112, v18, v19
        s_lshr_b32 s{S_T0+2}, s{S_HG}, 2
        s_mul_i32 s{S_T0+2}, s{S_T0+2}, 640
        s_mul_i32 s{S_FT}, s{S_T0}, {2*3840}
        s_add_u32 s{S_FT}, s{S_FT}, s{S_T0+2}
        """)
        if self.o.get("ta1"):
            a(f"""
            s_mov_b32 exec_hi, 0
            buffer_load_dword v253, v112, s[{R_W}:{R_W+3}], s{S_FT} offen {self.nt('nta')}
            buffer_load_dword v253, v16, s[{R_X}:{R_X+3}], s{S_DT} offen {self.nt('ntax')}
            s_mov_b32 exec_hi, -1
            """)
        a(f"""
        s_mul_i32 s{S_FT}, s{S_T0}, {3*3840}
        s_add_u32 s{S_FT}, s{S_FT}, s{S_T0+2}
        s_add_u32 s{S_FT}, s{S_FT}, {256*3840}
        v_lshrrev_b32 v16, 3, v1
        v_and_b32 v17, 7, v1
        v_min_u32 v17, 5, v17
        v_mul_u32_u24 v16, 1280, v16
        v_lshl_add_u32 v113, v17, 7, v16
        s_add_u32 s{S_DT}, s{S_DT}, 512
        """)

    def pf_rest_plain(self):
        return f"""s_waitcnt vmcnt(0)
        s_mov_b32 exec_hi, 0xffff
        buffer_load_dword v253, v112, s[{R_W}:{R_W+3}], s{S_FT} offen
        s_mov_b32 exec_hi, -1
        buffer_load_dword v253, v113, s[{R_X}:{R_X+3}], s{S_DT} offen
        """

    def pf_rest(self):
        return f"""s_mov_b32 exec_hi, 0xffff
        buffer_load_dword v253, v112, s[{R_W}:{R_W+3}], s{S_FT} offen {self.nt('nta')}
        s_mov_b32 exec_hi, -1
        buffer_load_dword v253, v113, s[{R_X}:{R_X+3}], s{S_DT} offen {self.nt('ntax')}
        """

    def w2_touch(self):
        a = self.a
        self.srd(R_W2, P_W2, 1536 * 4096)
        a(f"""
        v_lshlrev_b32 v48, 7, v1
        s_lshl_b32 s{S_T0}, s{S_MT}, 3
        s_add_u32 s{S_T0}, s{S_T0}, s{S_HG}
        s_lshl_b32 s{S_T0}, s{S_T0}, 2
        s_add_u32 s{S_T0}, s{S_T0}, s{S_D}
        s_mul_i32 s{S_T0}, s{S_T0}, 12288
        buffer_load_dword v253, v48, s[{R_W2}:{R_W2+3}], s{S_T0} offen
        s_add_u32 s{S_T0}, s{S_T0}, 8192
        s_mov_b32 exec_hi, 0
        buffer_load_dword v253, v48, s[{R_W2}:{R_W2+3}], s{S_T0} offen
        """)
        self.srd(R_P, P_WO, 640 * 1280)
        a(f"""
        s_lshl_b32 s{S_T0}, s{S_MT}, 3
        s_add_u32 s{S_T0}, s{S_T0}, s{S_HG}
        s_lshl_b32 s{S_T0}, s{S_T0}, 2
        s_add_u32 s{S_T0}, s{S_T0}, s{S_D}
        s_mul_i32 s{S_T0}, s{S_T0}, 1664
        s_mov_b32 exec_lo, 0x1fff
        buffer_load_dword v253, v48, s[{R_P}:{R_P+3}], s{S_T0} offen
        s_mov_b64 exec, -1
        """)

    def tlb_warm(self):
        a = self.a
        mode = self.o["tlb"]
        wv = self.o.get("tlbw", 3)
        a(f"s_cmp_lg_u32 s{S_WAVE}, {wv}\ns_cbranch_scc1 L_notlb")
        self.srd(R_OUT, P_OUT, 2048 * 1280)
        self.srd(R_M, P_B2, 4096)
        self.srd(R_P, P_WO, 640 * 1280)
        self.srd(R_W, P_W1, 2048 * 3072)
        if mode == 1:
            a("v_lshlrev_b32 v4, 20, v1\nv_min_u32 v4, 0xf00000, v4\ns_mov_b64 exec, 0xffff")
            so = "0"
        else:
            a(f"v_lshlrev_b32 v4, 21, v1\ns_lshl_b32 s{S_T0}, s{S_J}, 16\ns_mov_b64 exec, 0x1f")
            so = f"s{S_T0}"
        for r in (R_WS, R_W2, R_OUT, R_W, R_P, R_M):
            a(f"buffer_load_dword v253, v4, s[{r}:{r+3}], {so} offen sc1")
        a("s_mov_b64 exec, -1\nL_notlb:")

    def code_prefetch(self):
        a = self.a
        a(f"""
        s_cmp_lg_u32 s{S_WAVE}, 3
        s_cbranch_scc1 L_nocpf
        s_cmp_ge_u32 s{S_J}, 4
        s_cbranch_scc1 L_nocpf
        s_getpc_b64 s[{S_T0}:{S_T0+1}]
        L_pcref:
        s_lshl_b32 s{S_T0+2}, s{S_J}, 13
        v_lshlrev_b32 v4, 7, v1
        v_add_u32 v4, s{S_T0+2}, v4
        v_min_u32 v4, L_end-L_pcref, v4
        global_load_dword v253, v4, s[{S_T0}:{S_T0+1}]
        L_nocpf:
        """)

    def a_thread_map(self):
        a = self.a
        a(f"""
        v_mul_u32_u24 v16, 625, v0
        v_lshrrev_b32 v16, 16, v16
        v_mul_u32_u24 v17, 105, v16
        v_sub_u32 v17, v0, v17
        v_mul_u32_u24 v19, 205, v17
        v_lshrrev_b32 v19, 12, v19
        v_mul_u32_u24 v18, 20, v19
        v_cmp_lt_u32 vcc, 99, v17
        v_sub_u32 v18, v17, v18
        s_nop 0
        v_cndmask_b32 v19, v19, v18, vcc
        v_mad_u32_u24 v19, v16, 5, v19
        v_mad_u32_u24 v20, v16, 20, v18
        v_lshrrev_b32 v21, 2, v19
        v_and_b32 v22, 3, v19
        v_lshrrev_b32 v23, 4, v20
        v_and_b32 v20, 15, v20
        v_lshl_add_u32 v20, v22, 4, v20
        v_lshl_add_u32 v2, v21, 1, v23
        v_lshlrev_b32 v2, 6, v2
        v_add_u32 v2, v2, v20
        v_lshlrev_b32 v2, 4, v2
        v_lshlrev_b32 v3, 4, v19
        v_add_u32 v3, 13312, v3
        v_cmp_lt_u32 vcc, 99, v17
        v_lshrrev_b32 v24, 1, v21
        v_and_b32 v21, 1, v21
        v_cndmask_b32 v2, v2, v3, vcc
        v_lshl_add_u32 v3, v23, 1, v24
        v_add_u32 v24, 11, v24
        v_lshl_add_u32 v22, v22, 4, v16
        v_cndmask_b32 v3, v3, v24, vcc
        v_cndmask_b32 v20, v20, v22, vcc
        v_lshl_add_u32 v3, v3, 6, v20
        v_lshlrev_b32 v3, 4, v3
        v_lshl_add_u32 v3, v21, 3, v3
        v_add_u32 v3, {KVT}, v3
        v_mov_b32 v25, 2
        v_cndmask_b32 v25, 1, v25, vcc
        v_mov_b32 v16, 420
        v_cmp_gt_u32 vcc, v16, v0
        v_lshlrev_b32 v14, 4, v0
        s_nop 0
        v_cndmask_b32 v15, 0, v25, vcc
        v_cndmask_b32 v2, 0, v2, vcc
        v_add_u32 v2, {EXCH}, v2
        """)

    def a_reduce_publish(self, T):
        a = self.a
        for w in range(4):
            a(f"ds_read_b128 {vr(T+4*w,4)}, v2 offset:{w*EXCH_ST}")
        a(f"""
        s_lshl_b32 s{S_T0}, s{S_HG}, 4
        s_add_u32 s{S_T0}, s{S_T0}, s{S_MT}
        s_mul_i32 s{S_T0}, s{S_T0}, {KVP_ST}
        s_add_u32 s{S_T0}, s{S_T0}, {KVP}
        v_cmp_ne_u32 vcc, 0, v15
        s_waitcnt lgkmcnt(0)
        v_pk_add_f32 {vr(T,2)}, {vr(T,2)}, {vr(T+4,2)}
        v_pk_add_f32 {vr(T+2,2)}, {vr(T+2,2)}, {vr(T+6,2)}
        v_pk_add_f32 {vr(T+8,2)}, {vr(T+8,2)}, {vr(T+12,2)}
        v_pk_add_f32 {vr(T+10,2)}, {vr(T+10,2)}, {vr(T+14,2)}
        v_pk_add_f32 {vr(T,2)}, {vr(T,2)}, {vr(T+8,2)}
        v_pk_add_f32 {vr(T+2,2)}, {vr(T+2,2)}, {vr(T+10,2)}
        v_mov_b32_sdwa v{T}, s{S_TAG} dst_sel:BYTE_0 dst_unused:UNUSED_PRESERVE src0_sel:BYTE_0
        v_mov_b32_sdwa v{T+1}, s{S_TAG} dst_sel:BYTE_0 dst_unused:UNUSED_PRESERVE src0_sel:BYTE_1
        v_mov_b32_sdwa v{T+2}, s{S_TAG} dst_sel:BYTE_0 dst_unused:UNUSED_PRESERVE src0_sel:BYTE_2
        v_mov_b32_sdwa v{T+3}, s{S_TAG} dst_sel:BYTE_0 dst_unused:UNUSED_PRESERVE src0_sel:BYTE_3
        s_mov_b64 exec, vcc
        buffer_store_dwordx4 {vr(T,4)}, v14, s[{R_WS}:{R_WS+3}], s{S_T0} offen sc1
        s_mov_b64 exec, -1
        """)

    S_RET = 88

    def a_gather(self, T):
        self.a(f"s_call_b64 s[{self.S_RET}:{self.S_RET+1}], L_gather")

    def a_gather_body(self, T):
        a = self.a
        MK = S_T0 + 4
        a("L_gather:")
        a(f"s_mul_i32 s{S_T0+1}, s{S_HG}, {16*KVP_ST}\ns_add_u32 s{S_T0+1}, s{S_T0+1}, {KVP}")
        a(f"v_cmp_ne_u32 s[{MK}:{MK+1}], 0, v15\ns_mov_b32 s{S_CNT}, 0\ns_lshl_b32 s{S_T0+2}, s{S_MT}, 1\ns_mov_b64 exec, s[{MK}:{MK+1}]")

        def pair(m):
            a(f"s_add_u32 s{S_T0}, s{S_T0+2}, {m}\ns_and_b32 s{S_T0}, s{S_T0}, 15\ns_mul_i32 s{S_T0}, s{S_T0}, {KVP_ST}\ns_add_u32 s{S_T0}, s{S_T0}, s{S_T0+1}")
            a(f"buffer_load_dwordx4 {vr(T+4*m,4)}, v14, s[{R_WS}:{R_WS+3}], s{S_T0} offen sc1\ns_add_u32 s{S_T0}, s{S_T0}, {KVP_ST}")
            a(f"buffer_load_dwordx4 {vr(T+4*m+4,4)}, v14, s[{R_WS}:{R_WS+3}], s{S_T0} offen sc1")
        for m in range(0, 16, 2):
            pair(m)
        for m in range(0, 16, 2):
            a(f"s_waitcnt vmcnt({14-m})\nL_gchk{m}:")
            for q in range(8):
                a(f"v_cmpx_eq_u32_sdwa vcc, v{T+4*m+q}, s{S_TAG} src0_sel:BYTE_0 src1_sel:BYTE_{q & 3}")
            a(f"""
            s_add_u32 s{S_CNT}, s{S_CNT}, 1
            s_cmp_eq_u64 exec, s[{MK}:{MK+1}]
            s_mov_b64 exec, s[{MK}:{MK+1}]
            s_cbranch_scc1 L_gok{m}
            s_cmp_ge_u32 s{S_CNT}, {SPIN_LIMIT}
            s_cbranch_scc1 L_gok{m}
            """)
            pair(m)
            a(f"s_waitcnt vmcnt(0)\ns_branch L_gchk{m}\nL_gok{m}:")
            for h in (0, 2):
                a(f"v_pk_add_f32 {vr(T+4*m+h,2)}, {vr(T+4*m+h,2)}, {vr(T+4*(m+1)+h,2)}")
            if m >= 2:
                for h in (0, 2):
                    a(f"v_pk_add_f32 {vr(T+h,2)}, {vr(T+h,2)}, {vr(T+4*m+h,2)}")
        a("s_mov_b64 exec, -1")
        a(f"""
        v_cvt_pk_bf16_f32 v{T}, v{T}, v{T+1}
        v_cvt_pk_bf16_f32 v{T+1}, v{T+2}, v{T+3}
        v_cmp_ne_u32 vcc, 0, v15
        v_cmp_eq_u32 s[{S_T0}:{S_T0+1}], 2, v15
        s_nop 1
        s_mov_b64 exec, vcc
        ds_write_b64 v3, {vr(T,2)}
        s_mov_b64 exec, s[{S_T0}:{S_T0+1}]
        ds_write_b64 v3, {vr(T,2)} offset:64
        ds_write_b64 v3, {vr(T,2)} offset:128
        ds_write_b64 v3, {vr(T,2)} offset:192
        s_mov_b64 exec, -1
        s_setpc_b64 s[{self.S_RET}:{self.S_RET+1}]
        """)

    def role_b(self):
        a = self.a
        a(f"L_roleB:\ns_mov_b32 s{S_FROMA}, 0")
        XR, B1R, GR, XS = 16, 36, 64, 84
        VPF = 8
        a(f"s_cmp_ge_u32 s{S_J}, 16\ns_cbranch_scc1 L_B_pfrole")
        a(f"""
        s_lshl_b32 s{S_KST}, s{S_XCD}, 4
        s_add_u32 s{S_KST}, s{S_KST}, s{S_J}
        s_lshl_b32 s{S_T0}, s{S_KST}, 3
        s_add_u32 s{S_T0}, s{S_T0}, s{S_WAVE}
        s_mul_i32 s{S_T0}, s{S_T0}, {4*1280}
        v_lshrrev_b32 v2, 4, v1
        v_and_b32 v3, 15, v1
        v_lshlrev_b32 v3, 4, v3
        v_mul_u32_u24 v4, 1280, v2
        v_add_u32 v4, v4, v3
        """)
        for c in range(5):
            a(f"buffer_load_dwordx4 {vr(XR+4*c,4)}, v4, s[{R_X}:{R_X+3}], s{S_T0} offen offset:{c*256} {self.nt('ntx')}")
        self.srd(R_M, P_GATE, 1280)
        for c in range(5):
            a(f"buffer_load_dwordx4 {vr(GR+4*c,4)}, v3, s[{R_M}:{R_M+3}], 0 offen offset:{c*256}")

        def common_setup():
            a(f"""
            s_mul_i32 s{S_M}, s{S_J}, 205
            s_lshr_b32 s{S_M}, s{S_M}, 10
            s_mul_i32 s{S_DT}, s{S_M}, 5
            s_sub_u32 s{S_DT}, s{S_J}, s{S_DT}
            s_mul_i32 s{S_FT}, s{S_XCD}, 6
            s_add_u32 s{S_FT}, s{S_FT}, s{S_M}
            """)
            self.srd(R_OUT, P_B1, 3072)
            a(f"v_lshrrev_b32 v5, 4, v1\nv_lshlrev_b32 v5, 3, v5\ns_lshl_b32 s{S_T0}, s{S_FT}, 7")
            for b in range(4):
                a(f"buffer_load_dwordx2 {vr(B1R+2*b,2)}, v5, s[{R_OUT}:{R_OUT+3}], s{S_T0} offen offset:{b*32}")
            a(f"""
            v_lshrrev_b32 v12, 3, v1
            v_lshrrev_b32 v13, 4, v1
            v_lshlrev_b32 v13, 1, v13
            v_and_b32 v14, 7, v1
            v_xor_b32 v13, v13, v14
            v_lshlrev_b32 v13, 4, v13
            v_mul_u32_u24 v12, 3072, v12
            v_add_u32 v{VPF}, v12, v13
            v_add_u32 v{VPF+1}, {8*3072-1024}, v{VPF}
            v_add_u32 v{VPF+2}, {2*(8*3072-1024)}, v{VPF}
            v_add_u32 v{VPF+3}, {3*(8*3072-1024)}, v{VPF}
            """)
            self.perm_setup(S_M, 16, 6, S_PERM, self.o.get("rotB"))

        def wq_touch():
            self.srd(R_M, P_WQKV, 640 * 3840)
            a(f"""
            v_lshlrev_b32 v6, 7, v1
            s_mul_i32 s{S_T0+1}, s{S_T0+1}, 2880
            s_add_u32 s{S_T0+1}, s{S_T0+1}, {256*3840}
            s_mov_b64 exec, 0xffffff
            buffer_load_dword v253, v6, s[{R_M}:{R_M+3}], s{S_T0+1} offen
            s_mov_b64 exec, -1
            """)

        self.srd(R_W, P_W1, 2048 * 3072)
        common_setup()
        a("v_mov_b32 v124, 0\nv_mov_b32 v125, 0\nv_mov_b32 v126, 0x3f803f80\ns_waitcnt vmcnt(4)")
        self.stamp(11, 44)
        for c in range(20):
            a(f"v_dot2c_f32_bf16 v124, v{XR+c}, v126")
        for c in range(20):
            a(f"v_dot2c_f32_bf16 v125, v{XR+c}, v{GR+c}")
        for c in range(20):
            a(f"v_lshlrev_b32 v{XS+2*c}, 16, v{XR+c}\nv_and_b32 v{XS+2*c+1}, 0xffff0000, v{XR+c}")

        def reduce16(regs):
            for mode in ("quad_perm:[1,0,3,2]", "quad_perm:[2,3,0,1]", "row_half_mirror", "row_mirror"):
                for r in regs:
                    a(f"v_add_f32_dpp v{r}, v{r}, v{r} {mode} row_mask:0xf bank_mask:0xf")
                a("s_nop 1" if len(regs) == 1 else "s_nop 0")

        reduce16([124, 125])
        a(f"""
        v_mul_f32 v126, {f2u(-1.0/640):#x}, v124
        v_mul_f32 v127, {f2u(-1.0/640):#x}, v124
        v_mul_f32 v125, {f2u(-1.4426950408889634):#x}, v125
        v_mov_b32 v128, 0
        v_mov_b32 v129, 0
        v_mov_b32 v130, 0
        v_mov_b32 v131, 0
        v_exp_f32 v125, v125
        """)
        for c in range(20):
            a(f"v_pk_add_f32 {vr(XS+2*c,2)}, {vr(XS+2*c,2)}, v[126:127]")
        a("v_add_f32 v125, 1.0, v125\nv_rcp_f32 v125, v125")
        for c in range(20):
            t = 128 + 2 * (c & 1)
            a(f"v_pk_fma_f32 {vr(t,2)}, {vr(XS+2*c,2)}, {vr(XS+2*c,2)}, {vr(t,2)}")
        a("v_pk_add_f32 v[128:129], v[128:129], v[130:131]\nv_add_f32 v128, v128, v129\ns_nop 1")
        reduce16([128])
        a(f"v_mov_b32 v126, {f2u(1e-5):#x}\nv_fmac_f32 v126, {f2u(1.0/640):#x}, v128\nv_rsq_f32 v126, v126")
        a(f"""
        s_lshl_b32 s{S_T0}, s{S_WAVE}, 2
        v_add_u32 v2, s{S_T0}, v2
        v_mov_b32 v127, v126
        v_mul_u32_u24 v4, {LN_ST}, v2
        v_add_u32 v4, v4, v3
        v_lshlrev_b32 v2, 2, v2
        """)
        for c4 in range(5):
            for c in range(4 * c4, 4 * c4 + 4):
                a(f"v_pk_mul_f32 {vr(XS+2*c,2)}, {vr(XS+2*c,2)}, v[126:127]")
            for c in range(4 * c4, 4 * c4 + 4):
                a(f"v_cvt_pk_bf16_f32 v{XR+c}, v{XS+2*c}, v{XS+2*c+1}")
            a(f"ds_write_b128 v4, {vr(XR+4*c4,4)} offset:{LNBUF + c4*256}")
        a(f"ds_write_b32 v2, v125 offset:{LNG}")
        a(f"""
        v_and_b32 v12, 15, v1
        v_lshrrev_b32 v13, 4, v1
        v_lshrrev_b32 v15, 2, v12
        v_lshl_add_u32 v15, v13, 2, v15
        v_mul_u32_u24 v15, {LN_ST}, v15
        v_and_b32 v2, 3, v12
        v_lshl_add_u32 v15, v2, 3, v15
        s_mul_i32 s{S_T0}, s{S_WAVE}, 160
        v_add_u32 v15, s{S_T0}, v15
        v_lshlrev_b32 v14, 4, v1
        v_lshlrev_b32 v2, 2, v1
        s_mul_i32 s{S_T0}, s{S_WAVE}, {5*65536}
        s_lshl_b32 s{S_T0+1}, s{S_KST}, 10
        s_add_u32 s{S_T0}, s{S_T0}, s{S_T0+1}
        s_add_u32 s{S_T0}, s{S_T0}, {HT}
        s_waitcnt lgkmcnt(0)
        s_add_u32 s{S_TAG}, s{S_TAG}, {TAG_INC:#x}
        s_barrier
        """)
        self.stamp(12, 44)
        for i in range(5):
            a(f"ds_read_b64_tr_b16 {vr(44+4*i,2)}, v15 offset:{LNBUF + i*32}")
            a(f"ds_read_b64_tr_b16 {vr(46+4*i,2)}, v15 offset:{LNBUF + i*32+16*LN_ST}")
        a(f"ds_read_b32 v125, v2 offset:{LNG}")
        for i in range(5):
            a(f"s_waitcnt lgkmcnt({9-2*i})")
            a(f"buffer_store_dwordx4 {vr(44+4*i,4)}, v14, s[{R_WS}:{R_WS+3}], s{S_T0} offen sc1")
            if i < 4:
                a(f"s_add_u32 s{S_T0}, s{S_T0}, 65536")
        a(f"""
        s_cmp_lg_u32 s{S_WAVE}, 0
        s_cbranch_scc1 L_B_nog
        s_lshl_b32 s{S_T0}, s{S_KST}, 7
        s_add_u32 s{S_T0}, s{S_T0}, {G_OFF}
        s_waitcnt lgkmcnt(0)
        s_mov_b32 exec_hi, 0
        buffer_store_dword v125, v2, s[{R_WS}:{R_WS+3}], s{S_T0} offen sc1
        s_mov_b32 exec_hi, -1
        L_B_nog:
        s_waitcnt vmcnt(0) lgkmcnt(0)
        s_barrier
        s_cmp_lg_u32 s{S_WAVE}, 0
        s_cbranch_scc1 L_B_nofl
        s_mul_i32 s{S_T0}, s{S_KST}, {FS}
        s_add_u32 s{S_T0}, s{S_T0}, {F_LN}
        """)
        self.flag_store(S_T0, 12)
        self.stamp(1, 12)
        a("L_B_nofl:")
        if self.o.get("wq") == 1:
            a(f"s_lshl_b32 s{S_T0+1}, s{S_KST}, 3\ns_add_u32 s{S_T0+1}, s{S_T0+1}, s{S_WAVE}")
            wq_touch()
        if self.o.get("wq") == 3:
            a(f"""
            s_lshl_b32 s{S_T0}, s{S_J}, 3
            s_add_u32 s{S_T0}, s{S_T0}, s{S_WAVE}
            s_add_u32 s{S_T0}, s{S_T0}, 128
            v_lshrrev_b32 v6, 3, v1
            v_and_b32 v7, 7, v1
            v_min_u32 v7, 5, v7
            v_mul_u32_u24 v6, 3072, v6
            v_lshl_add_u32 v7, v7, 7, v6
            s_mul_i32 s{S_T0}, s{S_T0}, {8*3072}
            s_mul_i32 s{S_T0+2}, s{S_XCD}, 768
            s_add_u32 s{S_T0}, s{S_T0}, s{S_T0+2}
            buffer_load_dword v253, v7, s[{R_W}:{R_W+3}], s{S_T0} offen {self.nt('ntw1')}
            """)
        a("s_branch L_B_join")
        a("L_B_pfrole:")
        self.srd(R_W, P_W1, 2048 * 3072)
        if self.o.get("pfdelay"):
            common_setup()
            a("s_waitcnt vmcnt(0)")
        wq = self.o.get("wq", 0)
        a(f"""
        s_sub_u32 s{S_T0}, s{S_J}, 16
        s_lshl_b32 s{S_T0}, s{S_T0}, 3
        s_add_u32 s{S_T0}, s{S_T0}, s{S_WAVE}
        s_lshl_b32 s{S_T0+1}, s{S_XCD}, 7
        s_add_u32 s{S_T0+1}, s{S_T0+1}, s{S_T0}
        v_lshrrev_b32 v6, 3, v1
        v_and_b32 v7, 7, v1
        v_min_u32 v7, 5, v7
        v_mul_u32_u24 v6, 3072, v6
        v_lshl_add_u32 v7, v7, 7, v6
        s_mul_i32 s{S_T0}, s{S_T0}, {8*3072}
        s_mul_i32 s{S_T0+2}, s{S_XCD}, 768
        s_add_u32 s{S_T0}, s{S_T0}, s{S_T0+2}
        buffer_load_dword v253, v7, s[{R_W}:{R_W+3}], s{S_T0} offen {self.nt('ntw1')}
        """)
        if wq in (0, 3):
            wq_touch()
        if wq != 3:
            a(f"""
            s_add_u32 s{S_T0}, s{S_T0}, {1024*3072}
            buffer_load_dword v253, v7, s[{R_W}:{R_W+3}], s{S_T0} offen {self.nt('ntw1b')}
            """)
        if self.o.get("promote"):
            k_ = 1 if wq != 3 else 0
            a(f"""
            s_sub_u32 s{S_T0+1}, s{S_T0}, {1024*3072*k_}
            s_waitcnt vmcnt({k_ + (1 if wq in (0, 3) else 0)})
            buffer_load_dword v253, v7, s[{R_W}:{R_W+3}], s{S_T0+1} offen
            """)
            if self.o.get("ntw1b"):
                a(f"s_waitcnt vmcnt(1)\nbuffer_load_dword v253, v7, s[{R_W}:{R_W+3}], s{S_T0} offen")
        if not self.o.get("pfdelay"):
            common_setup()
        self.stamp(15, 12)
        a(f"s_waitcnt lgkmcnt(0)\ns_add_u32 s{S_TAG}, s{S_TAG}, {TAG_INC:#x}")
        a(f"s_cmp_ge_u32 s{S_J}, 30\ns_cbranch_scc1 L_helper")
        N1 = self.o.get("n1", 8)
        NREG = self.o.get("nreg", 0)
        assert NREG == 0 or N1 == 8

        def w1_issue():
            t = self.perm_next(S_T0, S_PERM, 128 * 3072)
            t += f"s_mov_b32 m0, s{S_B}\ns_add_u32 s{S_T0}, s{S_T0}, s{S_A}\n"
            for i in range(4):
                t += f"buffer_load_dwordx4 v{VPF+i}, s[{R_W}:{R_W+3}], s{S_T0} offen offset:{i*1024} lds\n"
            t += f"s_add_u32 s{S_B}, s{S_B}, 16384\n"
            return t
        a(f"""
        L_B_join:
        s_cmp_lt_u32 s{S_WAVE}, 4
        s_cbranch_scc1 L_B_comp0
        s_sub_u32 s{S_T0}, s{S_WAVE}, 4
        s_lshl_b32 s{S_B}, s{S_T0}, 12
        s_mul_i32 s{S_A}, s{S_T0}, {32*3072}
        s_lshl_b32 s{S_T0}, s{S_FT}, 7
        s_add_u32 s{S_A}, s{S_A}, s{S_T0}
        L_B_pf:
        """ + w1_issue() + f"""
        s_cmp_lt_u32 s{S_B}, {N1*16384}
        s_cbranch_scc1 L_B_pf
        """)
        for k in range(NREG):
            if k == 4:
                a("s_waitcnt vmcnt(40)")
            a(self.perm_next(S_T0, S_PERM, 128 * 3072) + f"s_add_u32 s{S_T0}, s{S_T0}, s{S_A}")
            for i in range(4):
                a(f"buffer_load_dwordx4 {vr(64+16*k+4*i,4)}, v{VPF+i}, s[{R_W}:{R_W+3}], s{S_T0} offen offset:{i*1024}")
        a(f"s_branch L_B_aux\nL_B_comp0:\ns_cmp_lg_u32 s{S_WAVE}, 0\ns_cbranch_scc1 L_B_l3")
        a(f"v_mul_u32_u24 v12, {FS}, v1\nv_add_u32 v12, {F_LN}, v12")
        if not self.o.get("x_nopoll"):
            self.poll([12], 14)
        self.stamp(2, 12)
        a("L_B_l3:")
        PF, WF, ACC, VT, VL = 64, 128, 160, 8, 12
        a(f"""
        s_lshl_b32 s{S_T0}, s{S_DT}, 3
        s_lshl_b32 s{S_T0+1}, s{S_WAVE}, 1
        s_add_u32 s{S_D}, s{S_T0}, s{S_T0+1}
        s_lshl_b32 s{S_T0}, s{S_D}, 16
        s_add_u32 s{S_T0}, s{S_T0}, {HT}
        """)
        self.srd(R_P, P_WS, 65536, off_s=S_T0)
        a(f"s_add_u32 s{S_T0}, s{S_T0}, 65536")
        self.srd(R_M, P_WS, 65536, off_s=S_T0)
        a(f"v_lshlrev_b32 v{VL}, 4, v1\ns_mov_b32 s{S_B}, 0")
        a(self.perm_next(S_C, S_PERM, 4096))
        self.tr_addr(VT)
        for r in range(32):
            a(f"v_mov_b32 v{ACC+r}, 0")
        a("s_barrier")
        RP = (R_P, R_M)

        def pload(u, ks):
            if self.o.get("x_noload"):
                return "s_nop 0"
            sc = "" if self.o.get("x_nosc1") else "sc1"
            so = "0" if self.o.get("x_same") else f"s{S_C}"
            return "\n".join(f"buffer_load_dwordx4 {vr(PF+32*(u%2)+8*ks+4*d,4)}, v{VL}, s[{RP[d]}:{RP[d]+3}], {so} offen offset:{ks*1024} {sc}" for d in range(2))

        for t in range(2):
            for ks in range(4):
                a(pload(t, ks))
            a(self.perm_next(S_C, S_PERM, 4096))
            if t == 0:
                first_bar_here = len(a.L)

        def mk(u, bar, virtual=False, head=None, tail=None):
            uses = []
            for ks in range(4):
                for b in range(4):
                    g = ks * 4 + b
                    wb = WF + 4 * (g % 8)
                    off = u * 16384 + ks * 4096
                    reads = [(f"w{g}a", f"ds_read_b64_tr_b16 {vr(wb,2)}, v{VT+b} offset:{off}"),
                             (f"w{g}b", f"ds_read_b64_tr_b16 {vr(wb+2,2)}, v{VT+b} offset:{off+2048}")]
                    mf = []
                    for dd in range(2):
                        acc = vr(ACC + 16 * dd + 4 * b, 4)
                        mf.append(f"v_mfma_f32_16x16x32_bf16 {acc}, {vr(wb,4)}, {vr(PF+32*(u%2)+8*ks+4*dd,4)}, {acc}")
                    if self.o.get("x32"):
                        acc = vr(ACC + 16 * (b & 1), 16)
                        mf = [f"v_mfma_f32_32x32x16_bf16 {acc}, {vr(wb,4)}, {vr(PF+32*(u%2)+8*ks+4*(b>>1),4)}, {acc}"]
                    d = dict(reads=reads, need=[f"w{g}b"], mf=mf)
                    if b == 0:
                        d["vm"] = 14
                    if b == 3:
                        d["after"] = pload(u, ks)
                        if ks == 3:
                            d["after"] += "\n" + self.perm_next(S_C, S_PERM, 4096)
                            if u >= 1:
                                d["after"] += f"s_cmp_ge_u32 s{S_B}, 3\ns_cselect_b32 s{S_C}, 0x10000, s{S_C}"
                    uses.append(d)
            return dict(uses=uses, bar=bar, virtual=virtual, head=head, tail=tail)

        xo = "s_barrier\n" + "\n".join(f"v_xor_b32 v{VT+b}, 0x10000, v{VT+b}" for b in range(4))
        tail = f"s_add_u32 s{S_B}, s{S_B}, 1\ns_cmp_lt_u32 s{S_B}, 4\ns_cbranch_scc1 L_B_loop"
        st = [mk(0, "", head="L_B_loop:"), mk(1, "s_barrier"), mk(2, "s_barrier"), mk(3, "s_barrier", tail=tail), mk(0, xo, virtual=True)]
        a.L.insert(first_bar_here, "    s_barrier")
        nd = self.o.get("nodrain")
        LB = self.o.get("LB", 7)
        self.pipeline(st, LB, (16 - LB) if nd else 13, drain=not nd, wait_every=self.o.get('we', 2))
        if nd and not self.o.get("noEnd"):
            a("s_waitcnt lgkmcnt(0)\ns_barrier")
        self.stamp(3, 44)
        c = 0.7978845608028654
        k0 = -2.0 * c * 1.4426950408889634
        k1 = k0 * 0.044715
        a(f"""
        s_waitcnt lgkmcnt(0)
        s_mov_b32 s{S_K0}, {f2u(k1):#x}
        s_mov_b32 s{S_K0+1}, {f2u(k1):#x}
        v_mov_b32 v44, {f2u(k0):#x}
        v_mov_b32 v45, {f2u(k0):#x}
        v_mov_b32 v46, 1.0
        v_mov_b32 v47, 1.0
        s_mul_i32 s{S_T0}, s{S_D}, {UW_ST}
        s_lshl_b32 s{S_T0+1}, s{S_FT}, 11
        s_add_u32 s{S_T0}, s{S_T0}, s{S_T0+1}
        s_add_u32 s{S_T0}, s{S_T0}, {UW}
        """)
        BF = 16
        for b in range(4):
            a(f"v_lshlrev_b32 v{BF+4*b}, 16, v{B1R+2*b}\nv_and_b32 v{BF+4*b+1}, 0xffff0000, v{B1R+2*b}")
            a(f"v_lshlrev_b32 v{BF+4*b+2}, 16, v{B1R+2*b+1}\nv_and_b32 v{BF+4*b+3}, 0xffff0000, v{B1R+2*b+1}")
        for dd in range(2):
            for p in range(2):
                r = ACC + 16 * dd + 8 * p
                T = 48
                for q in range(4):
                    a(f"v_pk_add_f32 {vr(r+2*q,2)}, {vr(r+2*q,2)}, {vr(BF+8*p+2*q,2)}")
                for q in range(4):
                    a(f"v_pk_mul_f32 {vr(T+2*q,2)}, {vr(r+2*q,2)}, {vr(r+2*q,2)}")
                for q in range(4):
                    a(f"v_pk_fma_f32 {vr(T+2*q,2)}, {vr(T+2*q,2)}, s[{S_K0}:{S_K0+1}], v[44:45]")
                for q in range(4):
                    a(f"v_pk_mul_f32 {vr(T+2*q,2)}, {vr(T+2*q,2)}, {vr(r+2*q,2)}")
                for q in range(8):
                    a(f"v_exp_f32 v{T+q}, v{T+q}")
                for q in range(4):
                    a(f"v_pk_add_f32 {vr(T+2*q,2)}, {vr(T+2*q,2)}, v[46:47]")
                for q in range(8):
                    a(f"v_rcp_f32 v{T+q}, v{T+q}")
                for q in range(4):
                    a(f"v_pk_mul_f32 {vr(r+2*q,2)}, {vr(r+2*q,2)}, {vr(T+2*q,2)}")
                o = 56 + 4 * (p & 1)
                for q in range(4):
                    a(f"v_cvt_pk_bf16_f32 v{o+q}, v{r+2*q}, v{r+2*q+1}")
                a(f"buffer_store_dwordx4 {vr(o,4)}, v{VL}, s[{R_WS}:{R_WS+3}], s{S_T0} offen offset:{p*1024} sc1")
            if dd == 0:
                a(f"s_add_u32 s{S_T0}, s{S_T0}, {UW_ST}")
        self.stamp(10, 44)
        a("s_waitcnt vmcnt(0)\ns_barrier\ns_branch L_F_comp")

        a("L_B_aux:\ns_barrier")
        order = list(range(N1 + NREG))
        cnt = {k: 4 for k in range(16)}
        cnt["t"] = 1
        nxt = N1
        lag = self.o.get("lag", 0)
        if NREG:
            a(f"""
            s_sub_u32 s{S_T0}, s{S_WAVE}, 4
            s_lshl_b32 s{S_T0}, s{S_T0}, 12
            v_lshlrev_b32 v12, 4, v1
            v_add_u32 v12, s{S_T0}, v12
            v_add_u32 v13, 0x10000, v12
            s_add_u32 s{S_B}, s{S_T0}, {(NREG % 8) * 16384}
            """)
        eB = self.o.get("eB", 17)
        nB1 = self.o.get("nB1", 0)
        per = self.o.get("perB", 2)
        done_w2 = 0
        for tb in range(17):
            if tb < 16 and tb <= eB:
                n = sum(cnt[x] for x in order[order.index(tb) + 1:])
                a(f"s_waitcnt vmcnt({min(n, 63) if tb < eB else 0}) lgkmcnt(0)")
            a("s_barrier")
            if tb < 16:
                self.stamp(16 + tb, 44)
            if tb == eB:
                assert nxt == 16
                self.w2_setup()
            if tb >= eB and done_w2 < nB1:
                k2 = min(per, nB1 - done_w2, tb - 9 - done_w2)
                sk = self.if_wave56()
                self.w2_prefill(k2)
                a(f"{sk}:")
                done_w2 += k2
            k = 0
            while nxt <= min(15, tb + (6 if self.o.get("nodrain") and nxt >= 8 else 7) - (lag if nxt >= 8 + NREG else 0)) and k < 2:
                if 8 <= nxt < 8 + NREG:
                    n = sum(cnt[x] for x in order[order.index(nxt) + 1:])
                    a(f"s_waitcnt vmcnt({min(n, 63)})")
                    sl = nxt % 8
                    for i in range(4):
                        a(f"ds_write_b128 v{13 if sl >= 4 else 12}, {vr(64+16*(nxt-8)+4*i,4)} offset:{(sl&3)*16384+i*1024}")
                else:
                    if nxt == 8:
                        a(f"s_and_b32 s{S_B}, s{S_B}, 0x1ffff")
                    a(w1_issue())
                    order.append(nxt)
                nxt += 1
                k += 1
        assert nxt == 16
        if self.o.get("noEnd"):
            assert done_w2 == nB1
        elif self.o.get("nodrain"):
            a("s_barrier")
        if eB == 17:
            self.w2_setup()
        skip = self.if_wave56()
        self.w2_prefill(nB1 - done_w2)
        a("s_barrier\ns_nop 7\ns_nop 7")
        self.w2_prefill(8 - nB1)
        a("s_branch L_F_loader")
        a(f"{skip}:\ns_barrier")
        a(f"s_cmp_lg_u32 s{S_WAVE}, 7\ns_cbranch_scc1 L_F_u4")
        a(f"s_mul_i32 s{S_T0}, s{S_DT}, 24\ns_add_u32 s{S_T0}, s{S_T0}, s{S_FT}\ns_mul_i32 s{S_T0}, s{S_T0}, {FS}\ns_add_u32 s{S_T0}, s{S_T0}, {F_U}")
        self.flag_store(S_T0, 12)
        self.stamp(4, 12)
        a("s_branch L_F_poller")

    def w2_l2_prefetch(self, VT):
        a = self.a
        self.srd(R_W2, P_W2, 1536 * 4096)
        a(f"""
        v_lshrrev_b32 v{VT}, 3, v1
        v_and_b32 v{VT+1}, 7, v1
        v_lshlrev_b32 v{VT+1}, 7, v{VT+1}
        v_lshl_add_u32 v{VT}, v{VT}, 12, v{VT+1}
        s_mul_i32 s{S_T0}, s{S_J}, 48
        s_and_b32 s{S_T0+1}, s{S_WAVE}, 3
        s_mul_i32 s{S_T0+1}, s{S_T0+1}, 12
        s_add_u32 s{S_T0}, s{S_T0}, s{S_T0+1}
        s_lshl_b32 s{S_T0}, s{S_T0}, 12
        s_lshr_b32 s{S_T0+1}, s{S_XCD}, 1
        s_lshl_b32 s{S_T0+1}, s{S_T0+1}, 10
        s_add_u32 s{S_T0}, s{S_T0}, s{S_T0+1}
        buffer_load_dword v{VT+2}, v{VT}, s[{R_W2}:{R_W2+3}], s{S_T0} offen
        s_add_u32 s{S_T0}, s{S_T0}, {8*4096}
        s_mov_b32 exec_hi, 0
        buffer_load_dword v{VT+3}, v{VT}, s[{R_W2}:{R_W2+3}], s{S_T0} offen
        s_mov_b64 exec, -1
        """)

    def tr_addr(self, VT):
        a = self.a
        a(f"""
        v_and_b32 v{VT+1}, 15, v1
        v_lshrrev_b32 v{VT+2}, 4, v1
        v_lshrrev_b32 v{VT+3}, 2, v{VT+1}
        v_lshl_add_u32 v{VT+3}, v{VT+2}, 2, v{VT+3}
        v_bfe_u32 v{VT+2}, v{VT+3}, 1, 2
        v_lshlrev_b32 v{VT+3}, 7, v{VT+3}
        v_lshl_add_u32 v{VT+3}, v{VT+2}, 5, v{VT+3}
        v_and_b32 v{VT+1}, 3, v{VT+1}
        v_lshl_add_u32 v{VT}, v{VT+1}, 3, v{VT+3}
        v_xor_b32 v{VT+1}, 32, v{VT}
        v_xor_b32 v{VT+2}, 64, v{VT}
        v_xor_b32 v{VT+3}, 96, v{VT}
        """)

    def helper(self):
        a = self.a
        a("L_helper:")
        a(f"""
        s_lshl_b32 s{S_D}, s{S_XCD}, 1
        s_add_u32 s{S_D}, s{S_D}, s{S_J}
        s_sub_u32 s{S_D}, s{S_D}, 30
        """)
        self.srd(R_W, P_WO, 640 * 1280)
        for p in range(5):
            a(f"""
            v_add_u32 v12, {p*64}, v1
            v_mul_u32_u24 v13, 205, v12
            v_lshrrev_b32 v13, 11, v13
            v_mul_u32_u24 v14, 10, v13
            v_sub_u32 v14, v12, v14
            v_lshlrev_b32 v14, 4, v14
            v_mul_u32_u24 v13, 1280, v13
            v_add_u32 v{16+p}, v13, v14
            """)
            if p in (1, 2, 3):
                a(f"v_subrev_u32 v{16+p}, {p*1024}, v{16+p}")
        a(f"""
        s_mov_b32 s{S_C}, s{S_WAVE}
        L_H_ld:
        s_mul_i32 s{S_A}, s{S_C}, {32*1280}
        s_mul_i32 s{S_T0}, s{S_D}, 160
        s_add_u32 s{S_A}, s{S_A}, s{S_T0}
        s_mul_i32 s{S_B}, s{S_C}, 5120
        s_mov_b32 m0, s{S_B}
        s_nop 0
        """)
        for p in range(4):
            a(f"buffer_load_dwordx4 v{16+p}, s[{R_W}:{R_W+3}], s{S_A} offen offset:{p*1024} lds")
        a(f"s_add_u32 m0, s{S_B}, 4096\ns_nop 0\nbuffer_load_dwordx4 v20, s[{R_W}:{R_W+3}], s{S_A} offen lds")
        a(f"""
        s_add_u32 s{S_C}, s{S_C}, 8
        s_cmp_lt_u32 s{S_C}, 20
        s_cbranch_scc1 L_H_ld
        v_and_b32 v12, 15, v1
        v_lshrrev_b32 v13, 4, v1
        v_lshrrev_b32 v14, 2, v12
        v_lshl_add_u32 v14, v13, 2, v14
        v_mul_u32_u24 v14, 160, v14
        v_and_b32 v12, 3, v12
        v_lshl_add_u32 v14, v12, 3, v14
        v_lshlrev_b32 v15, 4, v1
        s_waitcnt vmcnt(0)
        s_barrier
        s_mov_b32 s{S_C}, s{S_WAVE}
        L_H_tr:
        s_lshr_b32 s{S_T0}, s{S_C}, 1
        s_mul_i32 s{S_T0}, s{S_T0}, 5
        s_and_b32 s{S_T0+1}, s{S_C}, 1
        s_lshl_b32 s{S_T0+1}, s{S_T0+1}, 1
        s_add_u32 s{S_T0}, s{S_T0}, s{S_T0+1}
        s_add_u32 s{S_T0+1}, s{S_T0}, 1
        s_mul_i32 s{S_T0+2}, s{S_C}, 10
        s_sub_u32 s{S_T0+2}, s{S_T0+2}, 156
        s_add_u32 s{S_T0+3}, s{S_T0+2}, 5
        s_cmp_lt_u32 s{S_C}, 16
        s_cselect_b32 s{S_T0}, s{S_T0}, s{S_T0+2}
        s_cselect_b32 s{S_T0+1}, s{S_T0+1}, s{S_T0+3}
        s_mul_i32 s{S_T0}, s{S_T0}, 2560
        s_mul_i32 s{S_T0+1}, s{S_T0+1}, 2560
        v_add_u32 v12, s{S_T0}, v14
        v_add_u32 v13, s{S_T0+1}, v14
        """)
        for b in range(5):
            a(f"ds_read_b64_tr_b16 {vr(24+4*b,2)}, v12 offset:{b*32}\nds_read_b64_tr_b16 {vr(26+4*b,2)}, v13 offset:{b*32}")
        a(f"""
        s_mul_i32 s{S_T0}, s{S_D}, {5*UW_ST}
        s_lshl_b32 s{S_T0+1}, s{S_C}, 10
        s_add_u32 s{S_T0}, s{S_T0}, s{S_T0+1}
        s_add_u32 s{S_T0}, s{S_T0}, {UW + 49152}
        """)
        for b in range(5):
            a(f"s_waitcnt lgkmcnt({8-2*b})")
            a(f"buffer_store_dwordx4 {vr(24+4*b,4)}, v15, s[{R_WS}:{R_WS+3}], s{S_T0} offen sc1")
            if b < 4:
                a(f"s_add_u32 s{S_T0}, s{S_T0}, {UW_ST}")
        a(f"""
        s_add_u32 s{S_C}, s{S_C}, 8
        s_cmp_lt_u32 s{S_C}, 20
        s_cbranch_scc1 L_H_tr
        s_waitcnt vmcnt(0)
        s_barrier
        """)
        skip = self.if_wave56()
        self.w2_setup()
        self.w2_prefill(8)
        a(f"s_branch L_F_loader\n{skip}:")
        a(f"s_cmp_lt_u32 s{S_WAVE}, 4\ns_cbranch_scc1 L_F_comp\ns_cmp_lg_u32 s{S_WAVE}, 7\ns_cbranch_scc1 L_F_u4")
        a(f"s_mul_i32 s{S_T0}, s{S_D}, {FS}\ns_add_u32 s{S_T0}, s{S_T0}, {F_WOT}")
        self.flag_store(S_T0, 12)
        self.stamp(14, 12)
        a("s_branch L_F_poller")

    F_WOT_REG = 172

    def uw_srd(self):
        a = self.a
        a(f"""
        s_mul_i32 s{S_T0}, s{S_DTILE}, 5
        s_add_u32 s{S_D}, s{S_T0}, s{S_WAVE}
        s_mul_i32 s{S_T0}, s{S_D}, {UW_ST}
        s_add_u32 s{S_T0}, s{S_T0}, {UW}
        """)
        self.srd(R_P, P_WS, UW_ST, off_s=S_T0)

    def wot_preload(self, VL):
        a = self.a
        for k in range(20):
            if k % 4 == 0:
                a(f"s_mov_b32 s{S_C}, {49152 + k*1024}")
            a(f"buffer_load_dwordx4 {vr(self.F_WOT_REG+4*k,4)}, v{VL}, s[{R_P}:{R_P+3}], s{S_C} offen offset:{(k%4)*1024} sc1")

    F_V = (4, 8, 12, 13, 47, 48, 52, 56, 168)
    F_SB = 72

    def f_setup(self):
        a = self.a
        VT, VT2, VL, VU4, VGA, VGH, VG8, GV, BV = self.F_V
        SB = self.F_SB
        self.srd(R_M, P_B2, 4096)
        self.srd(R_OUT, P_OUT, 2048 * 1280)
        self.tr_addr(VT2)
        a(f"""
        v_mov_b32 v42, v{VT2}
        v_lshlrev_b32 v{VL}, 4, v1
        v_add_u32 v{VU4}, 0x20000, v{VL}
        v_and_b32 v{VGA}, 15, v1
        v_lshlrev_b32 v43, 1, v{VGA}
        v_lshlrev_b32 v{VGA}, 2, v{VGA}
        v_lshlrev_b32 v{VG8+3}, 3, v1
        """)
        for b in range(4):
            a(f"""
            s_add_u32 s{SB+b}, s{S_WAVE}, {b}
            s_and_b32 s{SB+b}, s{SB+b}, 3
            s_lshl_b32 s{S_T0}, s{SB+b}, 5
            v_xor_b32 v{VT+b}, s{S_T0}, v42
            s_lshl_b32 s{S_T0+1}, s{S_ST}, 7
            s_add_u32 s{S_T0}, s{S_T0}, s{S_T0+1}
            buffer_load_ushort v{BV+b}, v43, s[{R_M}:{R_M+3}], s{S_T0} offen
            v_add_u32 v{VT2+b}, 0x10000, v{VT+b}
            s_lshl_b32 s{S_T0}, s{SB+b}, 12
            v_add_u32 v{VG8+b}, s{S_T0}, v{VG8+3}
            s_add_u32 s{S_T0}, s{S_T0}, 0x10000
            v_add_u32 v{VGH+b}, s{S_T0}, v{VL}
            """)
        a(f"s_lshl_b32 s{S_A}, s{S_ST}, 8\ns_add_u32 s{S_A}, s{S_A}, {G_OFF}")
        self.f_perm()

    def f0_barrier(self):
        lab = self.a.label("f0")
        self.a(f"s_cmp_eq_u32 s{S_FROMA}, 1\ns_cbranch_scc1 {lab}\ns_barrier\n{lab}:")

    def final(self):
        a = self.a
        a("L_F_comp:")
        if self.stop == "phase1":
            a("s_branch L_end")
        PF, WF, ACC, ACC4, U4, WOT = 64, 112, 144, 160, 36, 172
        NPF = 3
        pre = True
        VT, VT2, VL, VU4, VGA, VGH, VG8, GV, BV = self.F_V
        SB = self.F_SB
        a(f"s_cmp_eq_u32 s{S_FROMA}, 1\ns_cbranch_scc1 L_F_nowot")
        self.uw_srd()
        self.f_setup()
        nstream = 12 if pre else 17

        def next_sc(step):
            if step < 12:
                return self.perm_next(S_C, S_PERM, 4096)
            return f"s_mov_b32 s{S_C}, {step*4096}\n"
        a("s_barrier")
        self.wot_preload(VL)
        a("L_F_nowot:")
        a(next_sc(0))
        a("s_barrier")
        S_C1, S_C2 = S_K0, S_K0 + 1

        def uload(t, ks, so):
            return f"buffer_load_dwordx4 {vr(PF+16*(t % NPF)+4*ks,4)}, v{VL}, s[{R_P}:{R_P+3}], s{so} offen offset:{ks*1024} sc1 ;@u{t}_{ks}"
        vis0 = []
        for ks in range(4):
            a(uload(0, ks, S_C))
            vis0.append(f"u0_{ks}")
        a(self.perm_next(S_C1, S_PERM, 4096) + self.perm_next(S_C2, S_PERM, 4096) + next_sc(3))
        a("s_barrier")

        ACC2 = 16
        blocks = [(ACC + 4 * b, b) for b in range(4)] + [(ACC4, 0)]
        fill = []
        for b in range(4):
            fill += [f"v_lshlrev_b32 v{BV+b}, 16, v{BV+b}", f"v_sub_f32 v{GV+b}, 1.0, v{GV+b}"]
        for r0, b in blocks:
            for k in range(4):
                fill.append(f"v_add_f32 v{r0+k}, v{BV+b}, v{r0+k}")

        stages = []
        for t in range(17):
            slot = t % 8
            hi = slot >= 4
            uses = []
            for ks in range(4):
                for b in range(4):
                    g = ks * 4 + b
                    wb = WF + 4 * (g % 8)
                    reads = []
                    u4 = U4 + 4 * (ks & 1)
                    if b == 0:
                        reads.append((f"u{ks}", f"ds_read_b128 {vr(u4,4)}, v{VU4} offset:{slot*4096 + ks*1024}"))
                    if t < 12:
                        off = (slot & 3) * 16384 + ks * 4096
                        va = (VT2 if hi else VT) + b
                        reads += [(f"w{g}a", f"ds_read_b64_tr_b16 {vr(wb,2)}, v{va} offset:{off}"),
                                  (f"w{g}b", f"ds_read_b64_tr_b16 {vr(wb+2,2)}, v{va} offset:{off+2048}")]
                    elif t < 16:
                        assert hi
                        off = (slot & 3) * 16384 + ks * 1024
                        reads += [(f"w{g}b", f"ds_read_b128 {vr(wb,4)}, v{VGH+b} offset:{off}")]
                    else:
                        off = (slot & 3) * 16384 + ks * 1024
                        assert not hi
                        reads += [(f"w{g}a", f"ds_read_b64 {vr(wb,2)}, v{VG8+b} offset:{off}"),
                                  (f"w{g}b", f"ds_read_b64 {vr(wb+2,2)}, v{VG8+b} offset:{off+512}")]
                    acc = vr((ACC if t < 12 else ACC2) + 4 * b, 4)
                    a4 = vr(ACC4 if t < 12 else ACC2 + 16, 4)
                    ring = t < nstream
                    pf = vr(PF + 16 * (t % NPF) + 4 * ks, 4) if ring else vr(WOT + 16 * (t - 12) + 4 * ks, 4)
                    first = t in (0, 12) and ks == 0
                    mf = [f"v_mfma_f32_16x16x32_bf16 {acc}, {pf}, {vr(wb,4)}, {0 if first else acc}"]
                    if b == 0:
                        mf.append(f"v_mfma_f32_16x16x32_bf16 {a4}, {vr(u4,4)}, {vr(wb,4)}, {0 if first else a4}")
                    d = dict(reads=reads, need=[f"w{g}b"], mf=mf)
                    if self.o.get("x_fewlds"):
                        if b == 0:
                            d["reads"] = reads[1:]
                        else:
                            d["reads"] = []
                            d["need"] = [f"w{g-b}b"]
                    if b == 0 and ring:
                        d["vneed"] = f"u{t}_{ks}"
                    if t == 0 and b in (0, 1):
                        d["after"] = uload(1 + b, ks, (S_C1, S_C2)[b])
                    if t == 1 and b == 1:
                        d["after"] = (f"s_lshl_b32 s{S_T0}, s{SB+ks}, 6\ns_add_u32 s{S_T0}, s{S_T0}, s{S_A}\n"
                                      f"buffer_load_dword v{GV+ks}, v{VGA}, s[{R_WS}:{R_WS+3}], s{S_T0} offen sc1 ;@g{ks}")
                    if b == 3 and t + NPF < nstream:
                        d["after"] = uload(t + NPF, ks, S_C)
                        if ks == 3 and t + NPF + 1 < nstream:
                            d["after"] += "\n" + next_sc(t + NPF + 1)
                    if self.o.get("wotl") and 3 <= t <= 7 and b == 1:
                        k = (t - 3) * 4 + ks
                        lab = a.label("nw")
                        d["before"] = (f"s_cmp_eq_u32 s{S_FROMA}, 1\ns_cbranch_scc0 {lab}\ns_mov_b32 s{S_T0}, {49152 + k*1024}\n"
                                       f"buffer_load_dwordx4 {vr(WOT+4*k,4)}, v{VL}, s[{R_P}:{R_P+3}], s{S_T0} offen sc1\n{lab}:")
                    if t >= 13 and fill and g < 15:
                        d["after"] = fill.pop(0)
                    uses.append(d)
            stages.append(dict(uses=uses, bar="s_barrier" if t else ""))
        nd = self.o.get("nodrain")
        LF = self.o.get("LF", 6)
        self.pipeline(stages, LF, (16 - LF) if nd else 13, drain=not nd, wait_every=self.o.get('we', 2), vis=vis0)
        self.stamp(8, 2)
        a(f"""
        v_and_b32 v2, 15, v1
        v_mul_u32_u24 v2, 1280, v2
        v_lshrrev_b32 v3, 4, v1
        v_lshl_add_u32 v2, v3, 3, v2
        s_mul_i32 s{S_A}, s{S_ST}, {64*1280}
        s_lshl_b32 s{S_T0+1}, s{S_D}, 5
        s_add_u32 s{S_B}, s{S_A}, s{S_T0+1}
        s_mul_i32 s{S_T0+1}, s{S_DTILE}, 160
        s_add_u32 s{S_A}, s{S_A}, s{S_T0+1}
        s_add_u32 s{S_A}, s{S_A}, 128
        """)
        assert not fill
        for i_, (r, b) in enumerate(blocks):
            for k in range(4):
                a(f"v_fma_f32 v{r+k}, v{r+k}, v{GV+b}, v{ACC2+4*i_+k}")
            a(f"s_mul_i32 s{S_T0}, s{SB+b}, {16*1280}\ns_add_u32 s{S_T0}, s{S_T0}, s{S_A if r == ACC4 else S_B}")
            a(f"v_cvt_pk_bf16_f32 v{r}, v{r}, v{r+1}\nv_cvt_pk_bf16_f32 v{r+1}, v{r+2}, v{r+3}")
            a(f"buffer_store_dwordx2 {vr(r,2)}, v2, s[{R_OUT}:{R_OUT+3}], s{S_T0} offen {['', 'sc1', 'nt', 'sc0 sc1'][self.o.get('osc', 0)]}")
        if self.stamps or self.o.get("dbg"):
            a("s_waitcnt vmcnt(0)")
            self.stamp(9, 2)
        if self.o.get("calib"):
            a(f"""
            L_cal:
            s_memrealtime s[96:97]
            s_waitcnt lgkmcnt(0)
            s_sub_u32 s96, s96, s98
            s_cmp_lt_u32 s96, {self.o.get("calib")*100}
            s_cbranch_scc1 L_cal
            """)
        a(f"s_or_b32 s{S_T0}, s2, s{S_WAVE}\ns_cmp_lg_u32 s{S_T0}, 0\ns_cbranch_scc1 L_end\ns_mov_b32 s{S_T0}, 0")
        self.flag_store(S_T0, 4)
        a("s_branch L_end")

        a("L_F_u4:")
        if self.stop == "phase1":
            a("s_branch L_end")
        a(f"""
        v_lshlrev_b32 v{VL}, 4, v1
        s_mul_i32 s{S_C}, s{S_DTILE}, {5*UW_ST}
        s_add_u32 s{S_C}, s{S_C}, {UW + 4*UW_ST}
        """)
        self.f_perm()
        self.f0_barrier()
        p4 = self.o.get("preW4")
        if p4:
            for k in range(20):
                if k % 4 == 0:
                    a(f"s_add_u32 s{S_T0}, s{S_C}, {49152 + k*1024}")
                a(f"buffer_load_dwordx4 {vr(64+4*k,4)}, v{VL}, s[{R_WS}:{R_WS+3}], s{S_T0} offen offset:{(k%4)*1024} sc1")
            a(f"v_add_u32 v{VU4}, 0x20000, v{VL}")
        a("s_barrier")

        def u4_issue(iv):
            if iv >= 12 and p4:
                for i in range(4):
                    a(f"ds_write_b128 v{VU4}, {vr(64+16*(iv-12)+4*i,4)} offset:{(iv % 8)*4096 + i*1024}")
                return
            if iv < 12:
                a(self.perm_next(S_T0, S_PERM, 4096) + f"s_mov_b32 m0, {0x20000 + (iv % 8)*4096:#x}\ns_add_u32 s{S_T0}, s{S_T0}, s{S_C}")
            else:
                a(f"s_mov_b32 m0, {0x20000 + (iv % 8)*4096:#x}\ns_add_u32 s{S_T0}, s{S_C}, {iv*4096}")
            for i in range(4):
                a(f"buffer_load_dwordx4 v{VL}, s[{R_WS}:{R_WS+3}], s{S_T0} offen offset:{i*1024} sc1 lds")
        order = []
        for iv in range(8):
            u4_issue(iv)
            order.append(iv)
            if iv == 1:
                a("s_waitcnt vmcnt(4)\ns_barrier")
        for tb in range(1, 17):
            if tb in order:
                a(f"s_waitcnt vmcnt({4*len(order[order.index(tb)+1:])})")
            a("s_waitcnt lgkmcnt(0)\ns_barrier" if p4 and tb >= 7 else "s_barrier")
            iv = tb + (6 if self.o.get("nodrain") else 7)
            if 8 <= iv <= 16:
                u4_issue(iv)
                if not (p4 and iv >= 12):
                    order.append(iv)
        a("s_branch L_end")

        a("L_F_loader:")
        if self.stop == "phase1":
            a("s_branch L_end")
        a(f"v_lshlrev_b32 v{VL}, 4, v1")
        self.f0_barrier()
        nWR = self.o.get("nWR", 0)
        V = self.V_W2
        if nWR:
            a(f"s_waitcnt vmcnt(30)\nv_add_u32 v{VU4}, s{S_B}, v{VL}")
            for k in range(nWR):
                a(self.perm_next(S_T0, S_PERM, 128 * 4096) + f"s_add_u32 s{S_T0}, s{S_T0}, s{S_A}")
                for g in range(2):
                    if g:
                        a(f"s_add_u32 s{S_T0}, s{S_T0}, {4*32768}")
                    for i in range(4):
                        a(f"buffer_load_dwordx4 {vr(64+32*k+16*g+4*i,4)}, v{V+i}, s[{R_W2}:{R_W2+3}], s{S_T0} offen offset:{i*1024}")
            a(f"s_add_u32 s{S_B}, s{S_B}, {nWR*16384}")
        a("s_barrier")
        a(f"""
        s_sub_u32 s{S_T0}, s{S_WAVE}, 5
        s_lshl_b32 s{S_T0}, s{S_T0}, 1
        s_lshl_b32 s{S_T0+1}, s{S_ST}, 2
        s_add_u32 s{S_T0+1}, s{S_T0+1}, s{S_T0}
        s_mul_i32 s{S_C}, s{S_T0+1}, {GO_ST}
        s_add_u32 s{S_C}, s{S_C}, {GO}
        s_lshl_b32 s{S_D}, s{S_T0}, 12
        """)
        assert nWR == 0
        ops = [(iv, 8) for iv in range(8)]
        for tb in range(17):
            last = max(i for i, (iv, _) in enumerate(ops) if iv == tb)
            n = sum(c for _, c in ops[last + 1:])
            a(f"s_waitcnt vmcnt({min(n,63)})\ns_barrier")
            if self.o.get("halfW"):
                if 2 <= tb <= 9:
                    self.w2_half((tb - 2) & 1)
                    ops.append((8 + (tb - 2) // 2, 4))
            elif 2 <= tb <= 5:
                self.w2_issue()
                ops.append((tb + 6, 8))
            if 9 <= tb <= 13:
                iv = tb + 3
                g = iv - 12
                for s2 in range(2):
                    a(f"s_add_u32 m0, s{S_D}, {(iv % 8)*16384 + s2*4096}\ns_add_u32 s{S_T0}, s{S_C}, {s2*GO_ST + g*4096}")
                    for i in range(4):
                        a(f"buffer_load_dwordx4 v{VL}, s[{R_WS}:{R_WS+3}], s{S_T0} offen offset:{i*1024} sc1 lds")
                ops.append((iv, 8))
        a("s_branch L_end")
        a("L_F_poller:")
        if self.stop == "phase1":
            a("s_branch L_end")
        a(f"s_cmp_eq_u32 s{S_FROMA}, 1\ns_cbranch_scc1 L_F_pnowot")
        a(f"s_mul_i32 s{S_T0}, s{S_DTILE}, {FS}\ns_add_u32 s{S_T0}, s{S_T0}, {F_WOT}\nv_mov_b32 v2, s{S_T0}")
        self.poll([2], 4)
        a("s_barrier\nL_F_pnowot:")
        a(f"""
        s_mul_i32 s{S_T0}, s{S_DTILE}, 5
        s_lshr_b32 s{S_T0+1}, s{S_T0}, 3
        s_add_u32 s{S_T0}, s{S_T0}, 4
        s_lshr_b32 s{S_T0}, s{S_T0}, 3
        s_mul_i32 s{S_T0}, s{S_T0}, 24
        s_mul_i32 s{S_T0+1}, s{S_T0+1}, 24
        v_and_b32 v2, 31, v1
        v_min_u32 v2, 23, v2
        v_add_u32 v3, s{S_T0}, v2
        v_add_u32 v2, s{S_T0+1}, v2
        v_cmp_gt_u32 vcc, 32, v1
        s_mul_i32 s{S_T0}, s{S_DTILE}, {FS}
        s_add_u32 s{S_T0}, s{S_T0}, {F_WOT}
        v_cndmask_b32 v2, v2, v3, vcc
        v_mul_u32_u24 v2, {FS}, v2
        v_add_u32 v2, {F_U}, v2
        v_mov_b32 v3, s{S_T0}
        v_cmp_eq_u32 vcc, 63, v1
        s_nop 1
        v_cndmask_b32 v2, v2, v3, vcc
        """)
        self.poll([2], 4)
        self.stamp(6, 4)
        a("s_barrier")
        a(f"""
        v_and_b32 v2, 7, v1
        s_lshr_b32 s{S_T0}, s{S_ST}, 1
        s_lshl_b32 s{S_T0}, s{S_T0}, 3
        v_add_u32 v2, s{S_T0}, v2
        v_mul_u32_u24 v2, {FS}, v2
        v_add_u32 v2, {F_GO}, v2
        """)
        gp = self.o.get("gopoll", 9)
        for tb in range(gp):
            a("s_barrier")
            if tb == 1:
                a(f"s_cmp_eq_u32 s{S_FROMA}, 1\ns_cbranch_scc0 L_F_nogo")
                a(f"s_lshl_b32 s{S_T0}, s{S_MT}, 3\ns_add_u32 s{S_T0}, s{S_T0}, s{S_HG}\ns_mul_i32 s{S_T0}, s{S_T0}, {FS}\ns_add_u32 s{S_T0}, s{S_T0}, {F_GO}")
                self.flag_store(S_T0, 6)
                a("L_F_nogo:")
            if tb == gp - 3:
                a(f"buffer_load_dword v8, v2, s[{R_WS}:{R_WS+3}], 0 offen sc1")
            self.stamp(32 + tb, 4)
        a(f"s_waitcnt vmcnt(0)\nv_cmp_ne_u32 vcc, s{S_TAG}, v8\ns_nop 1\ns_cmp_eq_u64 vcc, 0\ns_cbranch_scc1 L_F_gook")
        self.poll([2], 4)
        a("L_F_gook:")
        self.stamp(7, 4)
        for tb in range(gp, 17):
            a("s_barrier")
            self.stamp(32 + tb, 4)
        a("L_end:")
        if "probe" in self.o or "pc1" in self.o:
            a("""
            s_cmp_eq_u32 s94, 0
            s_cbranch_scc1 L_exit
            L_prb:
            s_memrealtime s[96:97]
            s_waitcnt lgkmcnt(0)
            s_sub_u32 s96, s96, s98
            s_cmp_lt_i32 s96, 4000
            s_cbranch_scc1 L_prb
            """)
        if self.stamps:
            a(f"""
            s_lshl_b32 s{S_T0}, s2, 3
            s_add_u32 s{S_T0}, s{S_T0}, s{S_WAVE}
            s_lshl_b32 s{S_T0}, s{S_T0}, 9
            s_add_u32 s{S_T0}, s{S_T0}, {STAMP}
            v_lshlrev_b32 v2, 3, v1
            buffer_store_dwordx2 v[254:255], v2, s[{R_WS}:{R_WS+3}], s{S_T0} offen
            """)
        a("L_exit:\ns_endpgm")

    def build(self, header):
        a = self.a
        self.prologue()
        self.role_a()
        self.role_b()
        self.helper()
        self.final()
        body = a.text()
        out = header
        out += f"; @launch grid=(256,1,1) block=(512,1,1) lds={LDS_BYTES}\n"
        out += f'.amdgcn_target "amdgcn-amd-amdhsa--gfx950"\n.text\n.globl {KNAME}\n.p2align 8\n.type {KNAME},@function\n{KNAME}:\n'
        out += body
        out += f""".section .rodata,"a"
.p2align 6
.amdhsa_kernel {KNAME}
  .amdhsa_next_free_vgpr 256
  .amdhsa_next_free_sgpr 102
  .amdhsa_accum_offset 256
  .amdhsa_group_segment_fixed_size 0
  .amdhsa_kernarg_size 96
  .amdhsa_user_sgpr_count 2
  .amdhsa_user_sgpr_kernarg_segment_ptr 1
  .amdhsa_system_sgpr_workgroup_id_x 1
  .amdhsa_float_denorm_mode_32 3
.end_amdhsa_kernel
"""
        return out


def header():
    ref = open("gated_mix__linear_attn_block__mixer_token_mlp__prompt.s.ref").read().split("\n")
    h = []
    for l in ref:
        if l.startswith("; Override"):
            break
        h.append(l)
    return "\n".join(h) + "\n"


if __name__ == "__main__":
    import argparse
    p = argparse.ArgumentParser()
    p.add_argument("-o", default="gated_mix__linear_attn_block__mixer_token_mlp__prompt.s")
    p.add_argument("--stamps", action="store_true")
    p.add_argument("--stop", default=None)
    p.add_argument("--opt", default="")
    args = p.parse_args()
    opts = {k: (int(v) if v != '' else 1) for k, _, v in (x.partition('=') for x in args.opt.split(',') if x)}
    g = Gen(stamps=args.stamps, stop=args.stop, opts=opts)
    open(args.o, "w").write(g.build(header()))
    print("wrote", args.o)
```

```python
import sys

KNAME = "gated_mix__linear_attn_block__mixer_token_mlp__prompt_kernel"

import os
FS = int(os.environ.get('FS', 128))
F_LN, F_KV, F_U, F_GO, F_WOT = 0x1000, 0x5000, 0x9000, 0xD000, 0x11000
G_OFF = 0x12000
STAMP = 0x900000
KVP = 0x20000
KVP_ST = 7168
HT = 0x100000
UW = 0x380000
UW_ST = 69632
GO = 0x640000
GO_ST = 20480
WS_USED = 0xA00000
TAG_INC = 0x9E3779B9
SPIN_LIMIT = 1 << 17

LDS_BYTES = 163840
LNBUF = 0
LN_ST = 1312
LNG = LNBUF + 32 * LN_ST
A_SLOT = 49152
A_WOFF = 16384
EXCH_ST = 14336
EXCH = LDS_BYTES - 4 * EXCH_ST
KVT = 147456
ZH = KVT + 11 * 1024

LOG2E = 0x3FB8AA3B


def f2u(x):
    import struct
    return struct.unpack("<I", struct.pack("<f", x))[0]


class Asm:
    def __init__(self):
        self.L = []
        self.nlab = 0

    def __call__(self, s):
        for line in s.split("\n"):
            line = line.strip()
            if line:
                self.L.append(("    " if not line.endswith(":") else "") + line)

    def label(self, base):
        self.nlab += 1
        return f"L{base}_{self.nlab}"

    def text(self):
        return "\n".join(self.L) + "\n"


def vr(a, n=1):
    return f"v{a}" if n == 1 else f"v[{a}:{a+n-1}]"


def sr(a, n=1):
    return f"s{a}" if n == 1 else f"s[{a}:{a+n-1}]"


P_X, P_WQKV, P_WO, P_BX, P_W1, P_B1, P_W2, P_B2 = 4, 6, 8, 10, 12, 14, 16, 18
P_GATE, P_OUT, P_DBG, P_WS = 20, 22, 24, 26
S_TAG, S_WAVE = 28, 29
S_XCD, S_J = 30, 31
R_WS, R_X, R_W, R_P, R_W2, R_M, R_OUT = 32, 36, 40, 44, 48, 52, 56
S_T0 = 60
S_MT, S_HG, S_DT, S_FT, S_KST, S_PAR = 70, 71, 72, 73, 74, 75
S_ST, S_DTILE = 76, 77
S_CNT = 78
S_A, S_B, S_C, S_D = 80, 81, 82, 83
S_MSK = 84
S_K0 = 90
S_STMP = 96
S_PERM = 66
S_M = 79
S_FROMA = 95
S_PERM2 = 68


def lead_perm(n, nshare, m, lead=2):
    order = list(range(n))
    i = m
    while i + lead < n:
        order[i:i + lead + 1] = [order[i + lead]] + order[i:i + lead]
        i += nshare
    return order


class Gen:
    def __init__(self, stamps=False, stop=None, opts=None):
        self.o = opts or {}
        self.a = Asm()
        self.stamps = stamps
        self.stop = stop

    def nt(self, key):
        return "nt" if self.o.get(key) else ""

    def srd(self, dst, ptr, nbytes, off_s=None):
        a = self.a
        if off_s is None:
            a(f"s_mov_b32 s{dst}, s{ptr}\ns_and_b32 s{dst+1}, s{ptr+1}, 0xffff")
        else:
            a(f"s_add_u32 s{dst}, s{ptr}, s{off_s}\ns_addc_u32 s{dst+1}, s{ptr+1}, 0\ns_and_b32 s{dst+1}, s{dst+1}, 0xffff")
        a(f"s_mov_b32 s{dst+2}, {nbytes:#x}\ns_mov_b32 s{dst+3}, 0x20000")

    def stamp(self, k, vtmp, dyn=None):
        if "pc1" in self.o:
            if dyn is None and k in (self.o["pc1"], self.o["pc2"]):
                lab = self.a.label("npr")
                self.a(f"s_cmp_lg_u32 s{S_FROMA}, {self.o.get('prole', 0)}\ns_cbranch_scc1 {lab}")
                if k == self.o["pc1"]:
                    self.a(f"s_memtime s[92:93]\ns_waitcnt lgkmcnt(0)")
                else:
                    self.a(f"s_memtime s[96:97]\ns_waitcnt lgkmcnt(0)\ns_sub_u32 s92, s96, s92\ns_lshr_b32 s92, s92, 4\ns_add_u32 s98, s98, s92\ns_mov_b32 s94, 1")
                self.a(f"{lab}:")
            return
        if "probe" in self.o:
            role = self.o.get("prole")
            if k == self.o["probe"] and dyn is None:
                lab = self.a.label("npr")
                if role is not None and k != 0:
                    self.a(f"s_cmp_lg_u32 s{S_FROMA}, {role}\ns_cbranch_scc1 {lab}")
                self.a(f"s_memrealtime s[98:99]\ns_mov_b32 s94, 1\ns_waitcnt lgkmcnt(0)\n{lab}:")
            return
        if self.o.get("dbg"):
            m = {0: 0, 11: 1, 1: 2, 2: 3, 3: 4, 4: 5, 6: 6, 9: 7}
            mA = {0: 0, 1: 1, 2: 2, 3: 3, 4: 4, 5: 5, 6: 6, 9: 7}
            if dyn is not None:
                return
            a = self.a
            for wg, mp, base in ((8, m, 0), (12, mA, 8)):
                if k in mp:
                    lab = a.label("nd")
                    a(f"s_cmp_lg_u32 s2, {wg}\ns_cbranch_scc1 {lab}")
                    a(f"s_memrealtime s[{S_STMP}:{S_STMP+1}]\ns_waitcnt lgkmcnt(0)")
                    a(f"v_mov_b32 v{vtmp}, s{S_STMP}\nv_mov_b32 v{vtmp+2}, {4*(base+mp[k])}")
                    a(f"s_mov_b64 exec, 1\nglobal_store_dword v{vtmp+2}, v{vtmp}, s[{P_DBG}:{P_DBG+1}]\ns_mov_b64 exec, -1\n{lab}:")
            return
        if not self.stamps:
            return
        a = self.a
        a(f"s_memrealtime s[{S_STMP}:{S_STMP+1}]\ns_memtime s[100:101]")
        ln = str(k)
        if dyn is not None:
            a(f"s_add_u32 m0, s{dyn}, {k}")
            ln = "m0"
        a(f"s_waitcnt lgkmcnt(0)\nv_writelane_b32 v254, s{S_STMP}, {ln}\nv_writelane_b32 v255, s100, {ln}")

    def perm_setup(self, s_m, n, nshare, dst, enable):
        a = self.a
        def pk(o):
            v = 0
            for i, x in enumerate(o):
                v |= x << (4 * i)
            return v & 0xffffffff, v >> 32
        lo, hi = pk(list(range(n)))
        a(f"s_mov_b32 s{dst}, {lo:#x}\ns_mov_b32 s{dst+1}, {hi:#x}")
        if not enable:
            return
        for m in range(nshare):
            lo, hi = pk(lead_perm(n, nshare, m, enable))
            a(f"s_cmp_eq_u32 s{s_m}, {m}\ns_cselect_b32 s{dst}, {lo:#x}, s{dst}\ns_cselect_b32 s{dst+1}, {hi:#x}, s{dst+1}")

    def perm_next(self, dst, src, mul):
        t = f"s_and_b32 s{dst}, s{src}, 15\ns_lshr_b64 s[{src}:{src+1}], s[{src}:{src+1}], 4\n"
        if mul & (mul - 1) == 0:
            t += f"s_lshl_b32 s{dst}, s{dst}, {mul.bit_length()-1}\n"
        else:
            t += f"s_mul_i32 s{dst}, s{dst}, {mul}\n"
        return t

    def poll(self, voffs, vtmp, mask=None):
        a = self.a
        lp, dn = a.label("poll"), a.label("pdone")
        n = len(voffs)

        def ld(k):
            for i, vo in enumerate(voffs):
                a(f"buffer_load_dword v{vtmp+k*n+i}, v{vo}, s[{R_WS}:{R_WS+3}], 0 offen sc1")

        def chk(k):
            if mask is not None:
                a(f"v_xor_b32 v{vtmp+k*n}, s{S_TAG}, v{vtmp+k*n}\nv_and_b32 v{vtmp+k*n}, v{mask}, v{vtmp+k*n}\nv_cmp_ne_u32 vcc, 0, v{vtmp+k*n}")
            else:
                a(f"v_cmp_ne_u32 vcc, s{S_TAG}, v{vtmp+k*n}")
            for i in range(1, n):
                a(f"v_cmp_ne_u32 s[{S_T0}:{S_T0+1}], s{S_TAG}, v{vtmp+k*n+i}\ns_nop 1\ns_or_b64 vcc, vcc, s[{S_T0}:{S_T0+1}]")
            a(f"s_nop 1\ns_cmp_eq_u64 vcc, 0\ns_cbranch_scc1 {dn}")
        if not self.o.get("pp"):
            a(f"s_mov_b32 s{S_CNT}, 0\n{lp}:")
            ld(0)
            a("s_waitcnt vmcnt(0)")
            chk(0)
            a(f"s_add_u32 s{S_CNT}, s{S_CNT}, 1\ns_cmp_lt_u32 s{S_CNT}, {SPIN_LIMIT}\ns_cbranch_scc0 {dn}\ns_sleep 1\ns_branch {lp}\n{dn}:")
            return
        sl = f"s_sleep {self.o['pp'] - 1}\n" if self.o["pp"] > 1 else ""
        a(f"s_mov_b32 s{S_CNT}, 0")
        ld(0)
        a(f"{sl}{lp}:")
        ld(1)
        a(f"s_waitcnt vmcnt({n})")
        chk(0)
        ld(0)
        a(f"s_waitcnt vmcnt({n})")
        chk(1)
        a(f"s_add_u32 s{S_CNT}, s{S_CNT}, 1\ns_cmp_lt_u32 s{S_CNT}, {SPIN_LIMIT}\ns_cbranch_scc1 {lp}\n{dn}:")

    def flag_store(self, s_off, vtmp):
        a = self.a
        a(f"v_mov_b32 v{vtmp}, s{S_TAG}\nv_mov_b32 v{vtmp+1}, 0\ns_mov_b64 exec, 1")
        a(f"buffer_store_dword v{vtmp}, v{vtmp+1}, s[{R_WS}:{R_WS+3}], s{s_off} offen sc1\ns_mov_b64 exec, -1")

    def pipeline(self, stages, L, gstar, drain=True, wait_every=2, vis=None):
        a = self.a
        seq = [(si, gi, u) for si, st in enumerate(stages) for gi, u in enumerate(st["uses"])]
        issued = []
        vis = list(vis or [])
        state = dict(nxt=0, opened=-1)
        pend = []

        def collect(lim):
            while state["nxt"] < len(seq) and state["nxt"] <= lim and seq[state["nxt"]][0] <= state["opened"]:
                si_, _, u_ = seq[state["nxt"]]
                for name, txt in u_["reads"]:
                    pend.append((f"{si_}:{name}", txt))
                state["nxt"] += 1
                if seq[state["nxt"] - 1][1] == len(stages[si_]["uses"]) - 1 and si_ + 1 < len(stages):
                    state["defer"] = list(stages[si_ + 1].get("pre", []))

        def out(txt):
            if ";@" in txt:
                vis.append(txt.split(";@")[1].strip())
            a(txt)

        def emit(n):
            for _ in range(min(n, len(pend))):
                name, txt = pend.pop(0)
                out(txt)
                if name:
                    issued.append(name)

        a(stages[0]["bar"])
        state["opened"] = 0
        collect(L - 1)
        emit(len(pend))
        n_real = sum(len(st["uses"]) for st in stages if not st.get("virtual"))
        covered = -1
        for f in range(n_real):
            si, gi, u = seq[f]
            nuse = len(stages[si]["uses"])
            if gi == 0 and stages[si].get("head"):
                assert not pend, pend
                a(stages[si]["head"])
                covered = -1
            if gi == gstar and si + 1 < len(stages):
                emit(len(pend))
                for x in state.pop("defer", []):
                    a(x)
                if drain:
                    a("s_waitcnt lgkmcnt(0)")
                    covered = len(issued) - 1
                a(stages[si + 1]["bar"])
                pend.extend((None, x) for x in stages[si + 1].get("bar_pend", []))
                state["opened"] = si + 1
                collect(f + L - 1)
            def lastidx(ff):
                s_, _, uu = seq[ff]
                return max(len(issued) - 1 - issued[::-1].index(f"{s_}:{nm}") for nm in uu["need"])
            w = []
            if lastidx(f) > covered:
                tgt = lastidx(f)
                for ff in range(f + 1, min(f + wait_every, n_real)):
                    if seq[ff][0] != si:
                        break
                    try:
                        tgt = max(tgt, lastidx(ff))
                    except ValueError:
                        break
                n = len(issued) - 1 - tgt
                assert n <= 15, n
                w.append(f"lgkmcnt({n})")
                covered = tgt
            if u.get("vneed") is not None:
                w.insert(0, f"vmcnt({len(vis) - 1 - vis.index(u['vneed'])})")
            if u.get("vm") is not None:
                npv = sum(1 for nm_, t_ in pend if t_.strip().startswith("buffer_load"))
                w.insert(0, f"vmcnt({u['vm'] - npv})")
            if w:
                a("s_waitcnt " + " ".join(w))
            if u.get("before"):
                a(u["before"])
            if state.get("defer") and not pend:
                n_ = self.o.get("npre", 7)
                pend.extend((None, x) for x in state["defer"][:n_])
                state["defer"] = state["defer"][n_:]
            collect(f + L)
            if state.get("mix"):
                k_ = state.pop("mix")
                head_, rest_ = pend[:k_], pend[k_:]
                pend[:] = [x for pr in zip(head_, rest_) for x in pr] + head_[len(rest_):] + rest_[len(head_):]
            nm_ = len(u["mf"])
            for k, m in enumerate(u["mf"]):
                a(m)
                left = nm_ - k
                if drain and gi >= gstar:
                    left += sum(len(uu["mf"]) for uu in stages[si]["uses"][gi + 1:])
                    extra = 2 * (nuse - 1 - gi)
                    emit(-(-(len(pend) + extra) // left) if left > 1 else len(pend))
                else:
                    emit(-(-len(pend) // left))
            if u.get("after"):
                items = [x for x in u["after"].split("\n") if x.strip()]
                if gi == nuse - 1:
                    for x in items:
                        out(x)
                else:
                    assert not pend
                    pend.extend((None, x) for x in items)
                    state["mix"] = len(items)
            if gi == nuse - 1 and stages[si].get("tail"):
                a(stages[si]["tail"])

    def prologue(self):
        a = self.a
        a(f"""
        s_cmp_ge_u32 s2, 256
        s_cbranch_scc1 L_exit
        {"v_mov_b32 v254, 0" if self.stamps else ""}
        {"v_mov_b32 v255, 0" if self.stamps else ""}
        {"s_memrealtime s[98:99]" if self.o.get("calib") or "pc1" in self.o else ""}
        {"s_mov_b32 s94, 0" if "probe" in self.o or "pc1" in self.o else ""}
        s_load_dwordx16 s[4:19], s[0:1], 0
        s_load_dwordx8 s[20:27], s[0:1], 64
        v_and_b32 v1, 63, v0
        v_lshrrev_b32 v2, 6, v0
        s_and_b32 s{S_XCD}, s2, 7
        v_readfirstlane_b32 s{S_WAVE}, v2
        s_lshr_b32 s{S_J}, s2, 3
        s_waitcnt lgkmcnt(0)
        s_load_dword s{S_TAG}, s[{P_WS}:{P_WS+1}], 0
        """)
        self.srd(R_WS, P_WS, WS_USED)
        self.srd(R_X, P_X, 2048 * 1280)
        self.srd(R_W2, P_W2, 1536 * 4096)
        if self.stamps or self.o.get("dbg") or "probe" in self.o:
            a(f"s_cmp_lg_u32 s{S_WAVE}, 0\ns_cbranch_scc1 L_nost0")
            self.stamp(0, 4)
            a("L_nost0:")
        if self.o.get("tlb"):
            self.tlb_warm()
        if self.o.get("pf_code"):
            self.code_prefetch()
        if self.o.get("prio"):
            a(f"""
            s_sub_u32 s{S_T0}, s{S_WAVE}, 4
            s_cmp_lt_u32 s{S_T0}, 3
            s_cbranch_scc1 L_noprio
            s_setprio 3
            L_noprio:
            """)
        a(f"""
        s_lshr_b32 s{S_T0}, s{S_XCD}, 1
        s_lshl_b32 s{S_T0}, s{S_T0}, 3
        s_lshr_b32 s{S_ST}, s{S_J}, 2
        s_add_u32 s{S_ST}, s{S_ST}, s{S_T0}
        s_and_b32 s{S_T0}, s{S_XCD}, 1
        s_lshl_b32 s{S_T0}, s{S_T0}, 2
        s_and_b32 s{S_DTILE}, s{S_J}, 3
        s_add_u32 s{S_DTILE}, s{S_DTILE}, s{S_T0}
        s_cmp_lt_u32 s{S_XCD}, 4
        s_cbranch_scc1 L_roleB
        """)

    V_W2 = 240

    def f_perm(self):
        a = self.a
        a(f"s_lshl_b32 s{S_M}, s{S_DTILE}, 1\ns_add_u32 s{S_M}, s{S_M}, s{S_ST}\ns_and_b32 s{S_M}, s{S_M}, 7")
        self.perm_setup(S_M, 12, 8, S_PERM, self.o.get("rotF"))

    def w2_setup(self):
        a = self.a
        V = self.V_W2
        self.f_perm()
        a(f"""
        v_lshrrev_b32 v{V}, 3, v1
        v_lshrrev_b32 v{V+1}, 4, v1
        v_lshlrev_b32 v{V+1}, 1, v{V+1}
        v_and_b32 v{V+2}, 7, v1
        v_xor_b32 v{V+1}, v{V+1}, v{V+2}
        v_lshlrev_b32 v{V+1}, 4, v{V+1}
        v_lshl_add_u32 v{V}, v{V}, 12, v{V+1}
        v_add_u32 v{V+1}, {32768-1024}, v{V}
        v_add_u32 v{V+2}, {2*(32768-1024)}, v{V}
        v_add_u32 v{V+3}, {3*(32768-1024)}, v{V}
        s_sub_u32 s{S_T0}, s{S_WAVE}, 5
        s_lshl_b32 s{S_B}, s{S_T0}, 13
        s_lshl_b32 s{S_A}, s{S_T0}, 18
        s_lshl_b32 s{S_T0}, s{S_ST}, 7
        s_add_u32 s{S_A}, s{S_A}, s{S_T0}
        """)

    def w2_issue_at(self, p):
        a = self.a
        V = self.V_W2
        a(f"s_bfe_u32 s{S_T0}, s{S_PERM}, {(4 << 16) | (4 * p):#x}\ns_lshl_b32 s{S_T0}, s{S_T0}, 19\ns_add_u32 s{S_T0}, s{S_T0}, s{S_A}")
        for g in range(2):
            a(f"s_add_u32 m0, s{S_B}, {p*16384 + g*4096}")
            a(f"s_add_u32 s{S_T0}, s{S_T0}, {g*4*32768}")
            for i in range(4):
                a(f"buffer_load_dwordx4 v{V+i}, s[{R_W2}:{R_W2+3}], s{S_T0} offen offset:{i*1024} lds")

    def w2_half(self, g):
        a = self.a
        V = self.V_W2
        if g == 0:
            a(self.perm_next(S_K0, S_PERM, 128 * 4096) + f"s_add_u32 s{S_K0}, s{S_K0}, s{S_A}")
        a(f"s_add_u32 m0, s{S_B}, {g*4096}\ns_add_u32 s{S_T0}, s{S_K0}, {g*4*32768}")
        for i in range(4):
            a(f"buffer_load_dwordx4 v{V+i}, s[{R_W2}:{R_W2+3}], s{S_T0} offen offset:{i*1024} lds")
        if g == 1:
            a(f"s_add_u32 s{S_B}, s{S_B}, 16384")

    def w2_issue(self):
        a = self.a
        V = self.V_W2
        a(self.perm_next(S_T0, S_PERM, 128 * 4096))
        a(f"s_add_u32 s{S_T0}, s{S_T0}, s{S_A}")
        for g in range(2):
            a(f"s_add_u32 m0, s{S_B}, {g*4096}")
            a(f"s_add_u32 s{S_T0}, s{S_T0}, {g*4*32768}")
            for i in range(4):
                a(f"buffer_load_dwordx4 v{V+i}, s[{R_W2}:{R_W2+3}], s{S_T0} offen offset:{i*1024} lds")
        a(f"s_add_u32 s{S_B}, s{S_B}, 16384\ns_and_b32 s{S_B}, s{S_B}, 0x1ffff")

    def w2_prefill(self, n):
        if n == 0:
            return
        a = self.a
        lp = a.label("pf")
        a(f"s_mov_b32 s{S_C}, 0\n{lp}:")
        self.w2_issue()
        a(f"s_add_u32 s{S_C}, s{S_C}, 1\ns_cmp_lt_u32 s{S_C}, {n}\ns_cbranch_scc1 {lp}")

    def if_wave56(self):
        a = self.a
        skip = a.label("n56")
        a(f"s_sub_u32 s{S_T0}, s{S_WAVE}, 5\ns_cmp_lt_u32 s{S_T0}, 2\ns_cbranch_scc0 {skip}")
        return skip

    def role_a(self):
        a = self.a
        a(f"L_roleA:\ns_mov_b32 s{S_FROMA}, 1")
        a(f"s_sub_u32 s{S_MT}, s{S_ST}, 16\ns_mov_b32 s{S_HG}, s{S_DTILE}")
        a(f"s_cmp_ge_u32 s{S_WAVE}, 4\ns_cbranch_scc1 L_A_loader")
        ACC, XF, WF, VXA, VWA = 128, 96, 64, 4, 6
        if self.o.get("ta1") or self.o.get("ta2"):
            self.start_prefetch()
        self.a_thread_map()
        a(f"""
        v_and_b32 v16, 15, v1
        v_lshrrev_b32 v17, 4, v1
        s_lshl_b32 s{S_T0}, s{S_WAVE}, 5
        v_add_u32 v18, s{S_T0}, v16
        v_lshrrev_b32 v19, 1, v16
        v_xor_b32 v19, v17, v19
        v_lshlrev_b32 v19, 4, v19
        v_lshl_add_u32 v{VXA}, v18, 7, v19
        v_xor_b32 v{VXA+1}, 64, v{VXA}
        v_lshrrev_b32 v18, 2, v16
        v_lshl_add_u32 v19, v17, 3, v18
        v_and_b32 v20, 1, v17
        v_lshl_or_b32 v20, v20, 2, v18
        v_lshlrev_b32 v19, 9, v19
        v_lshl_add_u32 v19, v20, 5, v19
        v_and_b32 v20, 3, v16
        v_lshl_add_u32 v19, v20, 3, v19
        v_add_u32 v{VWA}, {A_WOFF}, v19
        """)
        for n in range(1, 8):
            a(f"v_xor_b32 v{VWA+n}, {n<<5}, v{VWA}")
        for r in range(120):
            a(f"v_mov_b32 v{ACC+r}, 0")
        a(f"s_mov_b32 s{S_A}, 0\ns_mov_b32 s{S_B}, 0\ns_mov_b32 s{S_C}, {A_SLOT}\ns_waitcnt lgkmcnt(0)")
        a(f"s_add_u32 s{S_TAG}, s{S_TAG}, {TAG_INC:#x}")

        RING = 6
        D = 6

        def mk_stage(bar, virtual=False, head=None, tail=None):
            uses = []
            for g in range(30):
                ks, n = divmod(g, 15)
                wb = WF + 4 * (g % RING)
                reads = []
                if g == 0:
                    for rb in range(2):
                        reads.append((f"x0{rb}", f"ds_read_b128 {vr(XF+4*rb,4)}, v{VXA} offset:{rb*2048}"))
                if g == 13:
                    for rb in range(2):
                        reads.append((f"x1{rb}", f"ds_read_b128 {vr(XF+8+4*rb,4)}, v{VXA+1} offset:{rb*2048}"))
                off = ks * 16384 + (n >> 3) * 256
                reads.append((f"w{g}a", f"ds_read_b64_tr_b16 {vr(wb,2)}, v{VWA+(n&7)} offset:{off}"))
                reads.append((f"w{g}b", f"ds_read_b64_tr_b16 {vr(wb+2,2)}, v{VWA+(n&7)} offset:{off+2048}"))
                need = [f"w{g}b", f"x{ks}1"]
                mf = []
                for rb in range(2):
                    acc = vr(ACC + (n * 2 + rb) * 4, 4)
                    xf = vr(XF + ks * 8 + rb * 4, 4)
                    wf = vr(wb, 4)
                    if n < 5:
                        mf.append(f"v_mfma_f32_16x16x32_bf16 {acc}, {wf}, {xf}, {acc}")
                    else:
                        mf.append(f"v_mfma_f32_16x16x32_bf16 {acc}, {xf}, {wf}, {acc}")
                uses.append(dict(reads=reads, need=need, mf=mf))
            return dict(uses=uses, bar=bar, virtual=virtual, head=head, tail=tail)

        adv = "s_barrier"
        pre = [f"s_add_u32 s{S_B}, s{S_B}, 1", f"s_cmp_eq_u32 s{S_B}, 3", f"s_cselect_b32 s{S_B}, 0, s{S_B}",
               f"s_cselect_b32 s{S_T0}, {(-2*A_SLOT) & 0xffffffff:#x}, s{S_C}"]
        pre += [f"v_add_u32 v{r}, s{S_T0}, v{r}" for r in range(VXA, VWA + 8)]
        tail = f"s_add_u32 s{S_A}, s{S_A}, 1\ns_cmp_lt_u32 s{S_A}, 10\ns_cbranch_scc1 L_A_loop"
        head = "L_A_loop:\n"
        bar0 = "s_barrier"
        if self.o.get("tw2") == 2:
            self.srd(R_P, P_WO, 640 * 1280)
            a(f"""
            v_lshlrev_b32 v252, 7, v1
            s_lshl_b32 s{S_T0}, s{S_MT}, 3
            s_add_u32 s{S_T0}, s{S_T0}, s{S_HG}
            s_lshl_b32 s{S_T0}, s{S_T0}, 2
            s_add_u32 s{S_T0}, s{S_T0}, s{S_WAVE}
            s_mul_i32 s{S_D}, s{S_T0}, {8192 if self.o.get("hW2") else 12288}
            s_add_u32 s{S_KST}, s{S_D}, 8192
            s_mul_i32 s{S_PAR}, s{S_T0}, 1664
            s_and_b32 s{S_M}, s{S_J}, 7
            s_add_u32 s{S_M}, s{S_M}, {self.o.get("tw2at", 1)}
            """)
            head += f"""
            s_cmp_lg_u32 s{S_A}, s{S_M}
            s_cbranch_scc1 L_A_nt2
            buffer_load_dword v253, v252, s[{R_W2}:{R_W2+3}], s{S_D} offen
            s_mov_b32 exec_hi, 0
            {"" if self.o.get("hW2") else f"buffer_load_dword v253, v252, s[{R_W2}:{R_W2+3}], s{S_KST} offen"}
            s_mov_b32 exec_lo, 0x1fff
            buffer_load_dword v253, v252, s[{R_P}:{R_P+3}], s{S_PAR} offen
            s_mov_b64 exec, -1
            L_A_nt2:
            """
        if "promA" in self.o:
            head += f"s_cmp_lg_u32 s{S_A}, {self.o['promA']}\ns_cbranch_scc1 L_A_npr\n" + self.pf_rest_plain() + "L_A_npr:\n"
        ta2 = self.o.get("ta2")
        if ta2 == 1:
            a(self.pf_rest())
        elif ta2 == 2:
            bar0 += "\n" + self.pf_rest()
        elif ta2:
            head += f"s_cmp_lg_u32 s{S_A}, {ta2-2}\ns_cbranch_scc1 L_A_npf\n" + self.pf_rest() + "L_A_npf:\n"
        self.pipeline([mk_stage(bar0, head=head, tail=tail), dict(mk_stage(adv, virtual=True), pre=pre)], 5, 30 - 3, wait_every=self.o.get('we', 2))
        self.stamp(2, 16)
        PK, VV, ONES, KVD, ZD = 16, 36, 56, 64, 116
        a("s_waitcnt lgkmcnt(0)\ns_nop 7")
        a(f"s_mov_b32 s{S_K0}, {LOG2E:#x}\ns_mov_b32 s{S_K0+1}, {LOG2E:#x}\ns_mov_b32 s{S_K0+2}, {f2u(1e-6):#x}")

        def phi(base, n, t):
            for i in range(0, n, 4):
                r = base + i
                a(f"v_pk_mul_f32 {vr(t,2)}, {vr(r,2)}, s[{S_K0}:{S_K0+1}]")
                a(f"v_pk_mul_f32 {vr(t+2,2)}, {vr(r+2,2)}, s[{S_K0}:{S_K0+1}]")
                for k in range(4):
                    a(f"v_exp_f32_e64 v{t+k}, v{t+k} clamp")
                for k in range(4):
                    a(f"v_max_f32 v{r+k}, s{S_K0+2}, v{r+k}")
                a(f"v_pk_add_f32 {vr(r,2)}, {vr(r,2)}, {vr(t,2)}")
                a(f"v_pk_add_f32 {vr(r+2,2)}, {vr(r+2,2)}, {vr(t+2,2)}")

        def pack(dst, src0, src1):
            a(f"v_cvt_pk_bf16_f32 v{dst}, v{src0}, v{src0+1}\nv_cvt_pk_bf16_f32 v{dst+1}, v{src0+2}, v{src0+3}")
            if src1 is None:
                a(f"v_mov_b32 v{dst+2}, 0\nv_mov_b32 v{dst+3}, 0")
            else:
                a(f"v_cvt_pk_bf16_f32 v{dst+2}, v{src1}, v{src1+1}\nv_cvt_pk_bf16_f32 v{dst+3}, v{src1+2}, v{src1+3}")

        for b in range(5):
            pack(VV + 4 * b, ACC + (10 + b) * 8, ACC + (10 + b) * 8 + 4)
        for k in range(4):
            a(f"v_mov_b32 v{ONES+k}, 0x3f803f80")
        phi(ACC + 40, 40, 60)
        for b in range(5):
            pack(PK + 4 * b, ACC + (5 + b) * 8, ACC + (5 + b) * 8 + 4)
        a("s_nop 1")
        ZD = ACC + 80
        blocks = [(x, y) for x in range(5) for y in range(5) if abs(x - y) <= 1]
        for (x, y) in blocks:
            a(f"v_mfma_f32_16x16x32_bf16 {vr(KVD+4*(2*x+y),4)}, {vr(PK+4*x,4)}, {vr(VV+4*y,4)}, 0")
        for x in range(5):
            a(f"v_mfma_f32_16x16x32_bf16 {vr(ZD+4*x,4)}, {vr(ONES,4)}, {vr(PK+4*x,4)}, 0")
        a(f"""
        s_mul_i32 s{S_T0}, s{S_WAVE}, {EXCH_ST}
        s_add_u32 s{S_T0}, s{S_T0}, {EXCH}
        v_lshlrev_b32 v60, 4, v1
        v_add_u32 v60, s{S_T0}, v60
        v_and_b32 v61, 15, v1
        v_lshlrev_b32 v61, 2, v61
        v_add_u32 v61, s{S_T0}, v61
        s_nop 3
        """)
        for i in range(13):
            a(f"ds_write_b128 v60, {vr(KVD+4*i,4)} offset:{i*1024}")
        for x in range(5):
            a(f"ds_write_b32 v61, v{ZD+4*x} offset:{13312+64*x}")
        self.stamp(10, 40)
        a("s_waitcnt lgkmcnt(0)\ns_barrier")
        self.stamp(11, 40)
        self.a_reduce_publish(64)
        self.stamp(12, 40)
        a("s_barrier")
        self.stamp(14, 40)
        PQ = 16
        phi(ACC, 40, 60)
        for ts in range(3):
            for rb in range(2):
                pack(PQ + (ts * 2 + rb) * 4, ACC + (2 * ts * 2 + rb) * 4, None if ts == 2 else ACC + ((2 * ts + 1) * 2 + rb) * 4)
        self.uw_srd()
        self.f_setup()
        a("s_barrier")
        if not self.o.get("wotl"):
            self.wot_preload(self.F_V[2])
        a(f"""
        v_and_b32 v63, 15, v1
        v_lshlrev_b32 v63, 2, v63
        s_lshl_b32 s{S_T0}, s{S_MT}, 7
        s_lshl_b32 s{S_T0+1}, s{S_WAVE}, 5
        s_add_u32 s{S_T0}, s{S_T0}, s{S_T0+1}
        s_lshl_b32 s{S_T0}, s{S_T0}, 2
        s_add_u32 s{S_T0}, s{S_T0}, {G_OFF}
        buffer_load_dword v62, v63, s[{R_WS}:{R_WS+3}], s{S_T0} offen sc1
        buffer_load_dword v61, v63, s[{R_WS}:{R_WS+3}], s{S_T0} offen offset:64 sc1
        """)
        self.a_gather(64)
        a("s_waitcnt lgkmcnt(0)\ns_barrier")
        self.stamp(4, 40)
        FR = 64
        a("v_lshlrev_b32 v60, 4, v1\nv_add_u32 v60, " + str(KVT) + ", v60")
        used = [0, 2, 3, 4, 5, 7, 8, 9, 10, 11, 12, 13]
        for f in used:
            a(f"ds_read_b128 {vr(FR+4*f,4)}, v60 offset:{f*1024}")
        NUM, DEN = 128, 120
        kts = {0: [0], 1: [0, 1], 2: [0, 1], 3: [1, 2], 4: [1, 2]}
        a(f"""
        v_lshrrev_b32 v40, 4, v1
        v_cmp_gt_u32 s[{S_MSK}:{S_MSK+1}], 1, v40
        v_cmp_gt_u32 s[{S_MSK+2}:{S_MSK+3}], 2, v40
        v_cmp_gt_u32 s[{S_MSK+4}:{S_MSK+5}], 3, v40
        s_waitcnt lgkmcnt(0)
        """)
        for rb in range(2):
            for ts in range(3):
                c = "0" if ts == 0 else vr(DEN + 4 * rb, 4)
                a(f"v_mfma_f32_16x16x32_bf16 {vr(DEN+4*rb,4)}, {vr(FR+4*(11+ts),4)}, {vr(PQ+(ts*2+rb)*4,4)}, {c}")
        for rb in range(2):
            for b in range(5):
                for i, ts in enumerate(kts[b]):
                    d = vr(NUM + (rb * 5 + b) * 4, 4)
                    c = "0" if i == 0 else d
                    a(f"v_mfma_f32_16x16x32_bf16 {d}, {vr(FR+4*(2*b+ts),4)}, {vr(PQ+(ts*2+rb)*4,4)}, {c}")
        for rb in range(2):
            for h in range(4):
                a(f"v_add_f32 v{DEN+4*rb+h}, s{S_K0+2}, v{DEN+4*rb+h}")
        for rb in range(2):
            for h in range(4):
                a(f"v_rcp_f32 v{DEN+4*rb+h}, v{DEN+4*rb+h}")
        a("s_nop 0")
        gv = {0: 62, 1: 61}
        for rb in range(2):
            for h in range(4):
                a(f"v_mul_f32 v{DEN+4*rb+h}, v{gv[rb]}, v{DEN+4*rb+h}")
        a(f"""
        s_lshl_b32 s{S_T0}, s{S_MT}, 3
        s_lshl_b32 s{S_T0+1}, s{S_WAVE}, 1
        s_add_u32 s{S_T0}, s{S_T0}, s{S_T0+1}
        s_mul_i32 s{S_T0}, s{S_T0}, {GO_ST}
        s_add_u32 s{S_T0}, s{S_T0}, {GO}
        s_lshl_b32 s{S_T0+1}, s{S_HG}, 11
        s_add_u32 s{S_T0+1}, s{S_T0+1}, s{S_T0}
        s_lshl_b32 s{S_T0+2}, s{S_HG}, 9
        s_add_u32 s{S_T0+2}, s{S_T0+2}, s{S_T0}
        s_add_u32 s{S_T0+2}, s{S_T0+2}, 16384
        v_lshlrev_b32 v40, 4, v1
        v_lshlrev_b32 v41, 3, v1
        """)
        for rb in range(2):
            d = DEN + 4 * rb
            a(f"v_cndmask_b32 v44, v{d+1}, v{d}, s[{S_MSK}:{S_MSK+1}]")
            a(f"v_cndmask_b32 v45, v{d+2}, v{d+1}, s[{S_MSK+2}:{S_MSK+3}]")
            a(f"v_cndmask_b32 v46, v{d+3}, v{d+2}, s[{S_MSK+4}:{S_MSK+5}]")
            sc = [d, 44, 45, 46, d + 3]
            for b in range(5):
                for k in range(4):
                    r = NUM + (rb * 5 + b) * 4 + k
                    a(f"v_mul_f32 v{r}, v{sc[b]}, v{r}")
            o = 16 + rb * 12
            n0 = NUM + rb * 20
            pack(o, n0, n0 + 4)
            pack(o + 4, n0 + 8, n0 + 12)
            a(f"v_cvt_pk_bf16_f32 v{o+8}, v{n0+16}, v{n0+17}\nv_cvt_pk_bf16_f32 v{o+9}, v{n0+18}, v{n0+19}")
            a(f"buffer_store_dwordx4 {vr(o,4)}, v40, s[{R_WS}:{R_WS+3}], s{S_T0+1} offen sc1")
            a(f"buffer_store_dwordx4 {vr(o+4,4)}, v40, s[{R_WS}:{R_WS+3}], s{S_T0+1} offen offset:1024 sc1")
            a(f"buffer_store_dwordx2 {vr(o+8,2)}, v41, s[{R_WS}:{R_WS+3}], s{S_T0+2} offen sc1")
            if rb == 0:
                a(f"s_add_u32 s{S_T0+1}, s{S_T0+1}, {GO_ST}\ns_add_u32 s{S_T0+2}, s{S_T0+2}, {GO_ST}")
        self.stamp(5, 40)
        a("s_branch L_F_comp")

        a("L_A_loader:")
        VX, VW = 4, 8
        self.srd(R_W, P_WQKV, 640 * 3840)
        a(f"""
        s_sub_u32 s{S_D}, s{S_WAVE}, 4
        v_lshrrev_b32 v16, 3, v1
        v_lshrrev_b32 v17, 4, v1
        v_and_b32 v18, 7, v1
        v_xor_b32 v17, v17, v18
        v_lshlrev_b32 v17, 4, v17
        v_mul_u32_u24 v16, 1280, v16
        v_add_u32 v{VX}, v16, v17
        v_xor_b32 v18, 64, v{VX}
        v_add_u32 v{VX+1}, {8*1280-1024}, v18
        v_add_u32 v{VX+2}, {2*(8*1280-1024)}, v{VX}
        v_add_u32 v{VX+3}, {3*(8*1280-1024)}, v18
        s_lshl_b32 s{S_T0}, s{S_MT}, 7
        s_lshl_b32 s{S_T0+1}, s{S_D}, 5
        s_add_u32 s{S_T0}, s{S_T0}, s{S_T0+1}
        s_mul_i32 s{S_A}, s{S_T0}, 1280
        s_lshl_b32 s{S_C}, s{S_D}, 12
        """)
        def issue_x():
            a(f"s_mov_b32 m0, s{S_C}\ns_nop 0")
            for i in range(4):
                a(f"buffer_load_dwordx4 v{VX+i}, s[{R_X}:{R_X+3}], s{S_A} offen offset:{i*1024} lds")
            a(f"s_add_u32 s{S_A}, s{S_A}, 128")

        def issue_w():
            for g in range(2):
                a(f"s_lshl_b32 s{S_T0}, s{S_D}, 12\ns_add_u32 s{S_T0}, s{S_T0}, s{S_C}\ns_add_u32 m0, s{S_T0}, {A_WOFF + g*4096}\ns_nop 0")
                for i in range(4):
                    a(f"buffer_load_dwordx4 v{VW+4*g+i}, s[{R_W}:{R_W+3}], s{S_B} offen offset:{i*1024} lds")
            a(f"s_add_u32 s{S_B}, s{S_B}, {64*3840}")

        def next_slot():
            a(f"s_add_u32 s{S_C}, s{S_C}, {A_SLOT}\ns_cmp_ge_u32 s{S_C}, {3*A_SLOT}\ns_cselect_b32 s{S_T0}, {3*A_SLOT}, 0\ns_sub_u32 s{S_C}, s{S_C}, s{S_T0}")

        issue_x()
        a(f"""
        v_lshrrev_b32 v16, 5, v1
        v_bfe_u32 v17, v1, 1, 4
        v_and_b32 v18, 1, v1
        v_lshlrev_b32 v18, 4, v18
        v_mul_u32_u24 v19, 3840, v16
        v_add_u32 v18, v18, v19
        """)
        for i in (0, 1, 4, 5):
            sig = (2 * (i & 1)) | ((i >> 2) << 2)
            a(f"""
            v_or_b32 v19, {sig}, v16
            v_xor_b32 v19, v17, v19
            v_min_u32 v19, 14, v19
            v_mul_u32_u24 v20, 13, v19
            v_lshrrev_b32 v20, 6, v20
            v_mul_u32_u24 v20, 1120, v20
            v_lshl_add_u32 v19, v19, 5, v20
            v_add_u32 v19, v19, v18
            v_add_u32 v{VW+i}, {2*i*3840 - (i&3)*1024}, v19
            v_add_u32 v{VW+i+2}, {2*(i+2)*3840 - ((i+2)&3)*1024}, v19
            """)
        a(f"""
        s_mul_i32 s{S_B}, s{S_HG}, 160
        s_mul_i32 s{S_T0}, s{S_D}, {16*3840}
        s_add_u32 s{S_B}, s{S_B}, s{S_T0}
        """)
        issue_w()
        for _ in range(2):
            next_slot()
            issue_x()
            issue_w()
        a(f"s_waitcnt lgkmcnt(0)\ns_add_u32 s{S_TAG}, s{S_TAG}, {TAG_INC:#x}")
        a("s_waitcnt vmcnt(24)\ns_barrier")
        self.stamp(1, 16)
        a(f"s_mov_b32 s{S_CNT}, 1\nL_A_lloop:")
        a("s_waitcnt vmcnt(12)\ns_barrier")
        self.stamp(16, 16, dyn=S_CNT)
        next_slot()
        issue_x()
        issue_w()
        a(f"s_add_u32 s{S_CNT}, s{S_CNT}, 1\ns_cmp_le_u32 s{S_CNT}, 7\ns_cbranch_scc1 L_A_lloop")
        tw = 3 if self.o.get("tw2") == 1 else 0
        a(f"s_waitcnt vmcnt(12)\ns_barrier")
        if tw:
            self.w2_touch()
        self.stamp(24, 16)
        self.w2_setup()
        self.a_thread_map()
        a(f"s_waitcnt vmcnt({tw})\ns_barrier")
        self.stamp(25, 16)
        eA = self.o.get("eA", 2)
        early = [3, 4, 5, 0, 1, 2]
        nE = self.o.get("nE", 6)
        sk = self.if_wave56()
        for p in early[:eA]:
            self.w2_issue_at(p)
        a(f"{sk}:\ns_barrier")
        self.stamp(26, 16)
        sk = self.if_wave56()
        for p in early[eA:nE]:
            self.w2_issue_at(p)
        a(f"{sk}:")
        a("s_barrier")
        a(f"s_cmp_eq_u32 s{S_WAVE}, 7\ns_cbranch_scc1 L_A_poller")
        self.a_reduce_publish(64)
        self.stamp(15, 40)
        a("s_barrier")
        self.kvt_zero()
        skip = self.if_wave56()
        for p in early[nE:] + [6, 7]:
            self.w2_issue_at(p)
        a(f"s_mov_b32 s{S_PERM}, s{S_PERM+1}")
        a("s_barrier")
        self.a_gather(64)
        a("s_waitcnt lgkmcnt(0)\ns_barrier")
        a("s_branch L_F_loader")
        a(f"{skip}:\ns_barrier")
        self.a_gather(64)
        a("s_waitcnt lgkmcnt(0)\ns_barrier")
        a("s_branch L_F_u4")
        a("L_A_poller:\ns_barrier")
        self.kvt_zero()
        self.stamp(3, 16)
        a(f"""
        s_mul_i32 s{S_T0}, s{S_DTILE}, {FS}
        s_add_u32 s{S_T0}, s{S_T0}, {F_WOT}
        v_mov_b32 v16, s{S_T0}
        v_and_b32 v17, 3, v1
        s_lshl_b32 s{S_T0}, s{S_MT}, 2
        v_add_u32 v17, s{S_T0}, v17
        v_mul_u32_u24 v17, {FS}, v17
        v_add_u32 v17, {F_LN}, v17
        v_cmp_gt_u32 vcc, 32, v1
        s_nop 1
        v_cndmask_b32 v16, v17, v16, vcc
        """)
        self.poll([16], 18)
        self.stamp(13, 16)
        a("s_barrier\ns_barrier")
        a("s_branch L_F_poller")
        self.a_gather_body(64)

    def kvt_zero(self):
        a = self.a
        a(f"v_lshlrev_b32 v16, 4, v1\ns_lshl_b32 s{S_T0}, s{S_D}, 12\ns_add_u32 s{S_T0}, s{S_T0}, {KVT}\nv_add_u32 v16, s{S_T0}, v16")
        a("v_mov_b32 v20, 0\nv_mov_b32 v21, 0\nv_mov_b32 v22, 0\nv_mov_b32 v23, 0")
        for i in range(4):
            a(f"ds_write_b128 v16, v[20:23] offset:{i*1024}")
        a("s_waitcnt lgkmcnt(0)")

    def start_prefetch(self):
        a = self.a
        self.srd(R_W, P_WQKV, 640 * 3840)
        a(f"""
        s_lshl_b32 s{S_T0}, s{S_J}, 2
        s_add_u32 s{S_T0}, s{S_T0}, s{S_WAVE}
        v_lshrrev_b32 v16, 2, v1
        v_and_b32 v17, 3, v1
        v_mul_u32_u24 v16, 1280, v16
        v_lshl_add_u32 v16, v17, 7, v16
        s_lshr_b32 s{S_T0+2}, s{S_MT}, 3
        s_lshl_b32 s{S_T0+2}, s{S_T0+2}, 7
        s_add_u32 s{S_T0+2}, s{S_T0+2}, s{S_T0}
        s_mul_i32 s{S_DT}, s{S_T0+2}, {8*1280}
        v_lshrrev_b32 v19, 4, v1
        v_and_b32 v17, 15, v1
        v_min_u32 v17, 14, v17
        v_mul_u32_u24 v18, 13, v17
        v_lshrrev_b32 v18, 6, v18
        v_mul_u32_u24 v18, 640, v18
        v_lshl_add_u32 v18, v17, 7, v18
        v_mul_u32_u24 v19, 3840, v19
        v_add_u32 v112, v18, v19
        s_lshr_b32 s{S_T0+2}, s{S_HG}, 2
        s_mul_i32 s{S_T0+2}, s{S_T0+2}, 640
        s_mul_i32 s{S_FT}, s{S_T0}, {2*3840}
        s_add_u32 s{S_FT}, s{S_FT}, s{S_T0+2}
        """)
        if self.o.get("ta1"):
            a(f"""
            s_mov_b32 exec_hi, 0
            buffer_load_dword v253, v112, s[{R_W}:{R_W+3}], s{S_FT} offen {self.nt('nta')}
            buffer_load_dword v253, v16, s[{R_X}:{R_X+3}], s{S_DT} offen {self.nt('ntax')}
            s_mov_b32 exec_hi, -1
            """)
        a(f"""
        s_mul_i32 s{S_FT}, s{S_T0}, {3*3840}
        s_add_u32 s{S_FT}, s{S_FT}, s{S_T0+2}
        s_add_u32 s{S_FT}, s{S_FT}, {256*3840}
        v_lshrrev_b32 v16, 3, v1
        v_and_b32 v17, 7, v1
        v_min_u32 v17, 5, v17
        v_mul_u32_u24 v16, 1280, v16
        v_lshl_add_u32 v113, v17, 7, v16
        s_add_u32 s{S_DT}, s{S_DT}, 512
        """)

    def pf_rest_plain(self):
        return f"""s_waitcnt vmcnt(0)
        s_mov_b32 exec_hi, 0xffff
        buffer_load_dword v253, v112, s[{R_W}:{R_W+3}], s{S_FT} offen
        s_mov_b32 exec_hi, -1
        buffer_load_dword v253, v113, s[{R_X}:{R_X+3}], s{S_DT} offen
        """

    def pf_rest(self):
        return f"""s_mov_b32 exec_hi, 0xffff
        buffer_load_dword v253, v112, s[{R_W}:{R_W+3}], s{S_FT} offen {self.nt('nta')}
        s_mov_b32 exec_hi, -1
        buffer_load_dword v253, v113, s[{R_X}:{R_X+3}], s{S_DT} offen {self.nt('ntax')}
        """

    def w2_touch(self):
        a = self.a
        self.srd(R_W2, P_W2, 1536 * 4096)
        a(f"""
        v_lshlrev_b32 v48, 7, v1
        s_lshl_b32 s{S_T0}, s{S_MT}, 3
        s_add_u32 s{S_T0}, s{S_T0}, s{S_HG}
        s_lshl_b32 s{S_T0}, s{S_T0}, 2
        s_add_u32 s{S_T0}, s{S_T0}, s{S_D}
        s_mul_i32 s{S_T0}, s{S_T0}, 12288
        buffer_load_dword v253, v48, s[{R_W2}:{R_W2+3}], s{S_T0} offen
        s_add_u32 s{S_T0}, s{S_T0}, 8192
        s_mov_b32 exec_hi, 0
        buffer_load_dword v253, v48, s[{R_W2}:{R_W2+3}], s{S_T0} offen
        """)
        self.srd(R_P, P_WO, 640 * 1280)
        a(f"""
        s_lshl_b32 s{S_T0}, s{S_MT}, 3
        s_add_u32 s{S_T0}, s{S_T0}, s{S_HG}
        s_lshl_b32 s{S_T0}, s{S_T0}, 2
        s_add_u32 s{S_T0}, s{S_T0}, s{S_D}
        s_mul_i32 s{S_T0}, s{S_T0}, 1664
        s_mov_b32 exec_lo, 0x1fff
        buffer_load_dword v253, v48, s[{R_P}:{R_P+3}], s{S_T0} offen
        s_mov_b64 exec, -1
        """)

    def tlb_warm(self):
        a = self.a
        mode = self.o["tlb"]
        wv = self.o.get("tlbw", 3)
        a(f"s_cmp_lg_u32 s{S_WAVE}, {wv}\ns_cbranch_scc1 L_notlb")
        self.srd(R_OUT, P_OUT, 2048 * 1280)
        self.srd(R_M, P_B2, 4096)
        self.srd(R_P, P_WO, 640 * 1280)
        self.srd(R_W, P_W1, 2048 * 3072)
        if mode == 1:
            a("v_lshlrev_b32 v4, 20, v1\nv_min_u32 v4, 0xf00000, v4\ns_mov_b64 exec, 0xffff")
            so = "0"
        else:
            a(f"v_lshlrev_b32 v4, 21, v1\ns_lshl_b32 s{S_T0}, s{S_J}, 16\ns_mov_b64 exec, 0x1f")
            so = f"s{S_T0}"
        for r in (R_WS, R_W2, R_OUT, R_W, R_P, R_M):
            a(f"buffer_load_dword v253, v4, s[{r}:{r+3}], {so} offen sc1")
        a("s_mov_b64 exec, -1\nL_notlb:")

    def code_prefetch(self):
        a = self.a
        a(f"""
        s_cmp_lg_u32 s{S_WAVE}, 3
        s_cbranch_scc1 L_nocpf
        s_cmp_ge_u32 s{S_J}, 5
        s_cbranch_scc1 L_nocpf
        s_getpc_b64 s[{S_T0}:{S_T0+1}]
        L_pcref:
        s_lshl_b32 s{S_T0+2}, s{S_J}, 13
        v_lshlrev_b32 v4, 7, v1
        v_add_u32 v4, s{S_T0+2}, v4
        v_min_u32 v4, L_end-L_pcref, v4
        global_load_dword v253, v4, s[{S_T0}:{S_T0+1}]
        L_nocpf:
        """)

    def a_thread_map(self):
        a = self.a
        a(f"""
        v_mul_u32_u24 v16, 625, v0
        v_lshrrev_b32 v16, 16, v16
        v_mul_u32_u24 v17, 105, v16
        v_sub_u32 v17, v0, v17
        v_mul_u32_u24 v19, 205, v17
        v_lshrrev_b32 v19, 12, v19
        v_mul_u32_u24 v18, 20, v19
        v_cmp_lt_u32 vcc, 99, v17
        v_sub_u32 v18, v17, v18
        s_nop 0
        v_cndmask_b32 v19, v19, v18, vcc
        v_mad_u32_u24 v19, v16, 5, v19
        v_mad_u32_u24 v20, v16, 20, v18
        v_lshrrev_b32 v21, 2, v19
        v_and_b32 v22, 3, v19
        v_lshrrev_b32 v23, 4, v20
        v_and_b32 v20, 15, v20
        v_lshl_add_u32 v20, v22, 4, v20
        v_lshl_add_u32 v2, v21, 1, v23
        v_lshlrev_b32 v2, 6, v2
        v_add_u32 v2, v2, v20
        v_lshlrev_b32 v2, 4, v2
        v_lshlrev_b32 v3, 4, v19
        v_add_u32 v3, 13312, v3
        v_cmp_lt_u32 vcc, 99, v17
        v_lshrrev_b32 v24, 1, v21
        v_and_b32 v21, 1, v21
        v_cndmask_b32 v2, v2, v3, vcc
        v_lshl_add_u32 v3, v23, 1, v24
        v_add_u32 v24, 11, v24
        v_lshl_add_u32 v22, v22, 4, v16
        v_cndmask_b32 v3, v3, v24, vcc
        v_cndmask_b32 v20, v20, v22, vcc
        v_lshl_add_u32 v3, v3, 6, v20
        v_lshlrev_b32 v3, 4, v3
        v_lshl_add_u32 v3, v21, 3, v3
        v_add_u32 v3, {KVT}, v3
        v_mov_b32 v25, 2
        v_cndmask_b32 v25, 1, v25, vcc
        v_mov_b32 v16, 420
        v_cmp_gt_u32 vcc, v16, v0
        v_lshlrev_b32 v14, 4, v0
        s_nop 0
        v_cndmask_b32 v15, 0, v25, vcc
        v_cndmask_b32 v2, 0, v2, vcc
        v_add_u32 v2, {EXCH}, v2
        """)

    def a_reduce_publish(self, T):
        a = self.a
        for w in range(4):
            a(f"ds_read_b128 {vr(T+4*w,4)}, v2 offset:{w*EXCH_ST}")
        a(f"""
        s_lshl_b32 s{S_T0}, s{S_HG}, 4
        s_add_u32 s{S_T0}, s{S_T0}, s{S_MT}
        s_mul_i32 s{S_T0}, s{S_T0}, {KVP_ST}
        s_add_u32 s{S_T0}, s{S_T0}, {KVP}
        v_cmp_ne_u32 vcc, 0, v15
        s_waitcnt lgkmcnt(0)
        v_pk_add_f32 {vr(T,2)}, {vr(T,2)}, {vr(T+4,2)}
        v_pk_add_f32 {vr(T+2,2)}, {vr(T+2,2)}, {vr(T+6,2)}
        v_pk_add_f32 {vr(T+8,2)}, {vr(T+8,2)}, {vr(T+12,2)}
        v_pk_add_f32 {vr(T+10,2)}, {vr(T+10,2)}, {vr(T+14,2)}
        v_pk_add_f32 {vr(T,2)}, {vr(T,2)}, {vr(T+8,2)}
        v_pk_add_f32 {vr(T+2,2)}, {vr(T+2,2)}, {vr(T+10,2)}
        v_mov_b32_sdwa v{T}, s{S_TAG} dst_sel:BYTE_0 dst_unused:UNUSED_PRESERVE src0_sel:BYTE_0
        v_mov_b32_sdwa v{T+1}, s{S_TAG} dst_sel:BYTE_0 dst_unused:UNUSED_PRESERVE src0_sel:BYTE_1
        v_mov_b32_sdwa v{T+2}, s{S_TAG} dst_sel:BYTE_0 dst_unused:UNUSED_PRESERVE src0_sel:BYTE_2
        v_mov_b32_sdwa v{T+3}, s{S_TAG} dst_sel:BYTE_0 dst_unused:UNUSED_PRESERVE src0_sel:BYTE_3
        s_mov_b64 exec, vcc
        buffer_store_dwordx4 {vr(T,4)}, v14, s[{R_WS}:{R_WS+3}], s{S_T0} offen sc1
        s_mov_b64 exec, -1
        """)

    S_RET = 88

    def a_gather(self, T):
        self.a(f"s_call_b64 s[{self.S_RET}:{self.S_RET+1}], L_gather")

    def a_gather_body(self, T):
        a = self.a
        MK = S_T0 + 4
        a("L_gather:")
        a(f"s_mul_i32 s{S_T0+1}, s{S_HG}, {16*KVP_ST}\ns_add_u32 s{S_T0+1}, s{S_T0+1}, {KVP}")
        a(f"v_cmp_ne_u32 s[{MK}:{MK+1}], 0, v15\ns_mov_b32 s{S_CNT}, 0\ns_lshl_b32 s{S_T0+2}, s{S_MT}, 1\ns_mov_b64 exec, s[{MK}:{MK+1}]")

        def pair(m):
            a(f"s_add_u32 s{S_T0}, s{S_T0+2}, {m}\ns_and_b32 s{S_T0}, s{S_T0}, 15\ns_mul_i32 s{S_T0}, s{S_T0}, {KVP_ST}\ns_add_u32 s{S_T0}, s{S_T0}, s{S_T0+1}")
            a(f"buffer_load_dwordx4 {vr(T+4*m,4)}, v14, s[{R_WS}:{R_WS+3}], s{S_T0} offen sc1\ns_add_u32 s{S_T0}, s{S_T0}, {KVP_ST}")
            a(f"buffer_load_dwordx4 {vr(T+4*m+4,4)}, v14, s[{R_WS}:{R_WS+3}], s{S_T0} offen sc1")
        for m in range(0, 16, 2):
            pair(m)
        for m in range(0, 16, 2):
            a(f"s_waitcnt vmcnt({14-m})\nL_gchk{m}:")
            for q in range(8):
                a(f"v_cmpx_eq_u32_sdwa vcc, v{T+4*m+q}, s{S_TAG} src0_sel:BYTE_0 src1_sel:BYTE_{q & 3}")
            a(f"""
            s_add_u32 s{S_CNT}, s{S_CNT}, 1
            s_cmp_eq_u64 exec, s[{MK}:{MK+1}]
            s_mov_b64 exec, s[{MK}:{MK+1}]
            s_cbranch_scc1 L_gok{m}
            s_cmp_ge_u32 s{S_CNT}, {SPIN_LIMIT}
            s_cbranch_scc1 L_gok{m}
            """)
            pair(m)
            a(f"s_waitcnt vmcnt(0)\ns_branch L_gchk{m}\nL_gok{m}:")
            for h in (0, 2):
                a(f"v_pk_add_f32 {vr(T+4*m+h,2)}, {vr(T+4*m+h,2)}, {vr(T+4*(m+1)+h,2)}")
            if m >= 2:
                for h in (0, 2):
                    a(f"v_pk_add_f32 {vr(T+h,2)}, {vr(T+h,2)}, {vr(T+4*m+h,2)}")
        a("s_mov_b64 exec, -1")
        a(f"""
        v_cvt_pk_bf16_f32 v{T}, v{T}, v{T+1}
        v_cvt_pk_bf16_f32 v{T+1}, v{T+2}, v{T+3}
        v_cmp_ne_u32 vcc, 0, v15
        v_cmp_eq_u32 s[{S_T0}:{S_T0+1}], 2, v15
        s_nop 1
        s_mov_b64 exec, vcc
        ds_write_b64 v3, {vr(T,2)}
        s_mov_b64 exec, s[{S_T0}:{S_T0+1}]
        ds_write_b64 v3, {vr(T,2)} offset:64
        ds_write_b64 v3, {vr(T,2)} offset:128
        ds_write_b64 v3, {vr(T,2)} offset:192
        s_mov_b64 exec, -1
        s_setpc_b64 s[{self.S_RET}:{self.S_RET+1}]
        """)

    def role_b(self):
        a = self.a
        a(f"L_roleB:\ns_mov_b32 s{S_FROMA}, 0")
        XR, B1R, GR, XS = 16, 36, 64, 84
        VPF = 8
        a(f"s_cmp_ge_u32 s{S_J}, 16\ns_cbranch_scc1 L_B_pfrole")
        a(f"""
        s_lshl_b32 s{S_KST}, s{S_XCD}, 4
        s_add_u32 s{S_KST}, s{S_KST}, s{S_J}
        s_lshl_b32 s{S_T0}, s{S_KST}, 3
        s_add_u32 s{S_T0}, s{S_T0}, s{S_WAVE}
        s_mul_i32 s{S_T0}, s{S_T0}, {4*1280}
        v_lshrrev_b32 v2, 4, v1
        v_and_b32 v3, 15, v1
        v_lshlrev_b32 v3, 4, v3
        v_mul_u32_u24 v4, 1280, v2
        v_add_u32 v4, v4, v3
        """)
        for c in ((2, 3, 4, 0, 1) if self.o.get("xord") else range(5)):
            a(f"buffer_load_dwordx4 {vr(XR+4*c,4)}, v4, s[{R_X}:{R_X+3}], s{S_T0} offen offset:{c*256} {self.nt('ntx')}")
        self.srd(R_M, P_GATE, 1280)
        for c in range(5):
            a(f"buffer_load_dwordx4 {vr(GR+4*c,4)}, v3, s[{R_M}:{R_M+3}], 0 offen offset:{c*256}")

        def common_setup():
            a(f"""
            s_mul_i32 s{S_M}, s{S_J}, 205
            s_lshr_b32 s{S_M}, s{S_M}, 10
            s_mul_i32 s{S_DT}, s{S_M}, 5
            s_sub_u32 s{S_DT}, s{S_J}, s{S_DT}
            s_mul_i32 s{S_FT}, s{S_XCD}, 6
            s_add_u32 s{S_FT}, s{S_FT}, s{S_M}
            """)
            self.srd(R_OUT, P_B1, 3072)
            a(f"v_lshrrev_b32 v5, 4, v1\nv_lshlrev_b32 v5, 3, v5\ns_lshl_b32 s{S_T0}, s{S_FT}, 7")
            for b in range(4):
                a(f"buffer_load_dwordx2 {vr(B1R+2*b,2)}, v5, s[{R_OUT}:{R_OUT+3}], s{S_T0} offen offset:{b*32}")
            a(f"""
            v_lshrrev_b32 v12, 3, v1
            v_lshrrev_b32 v13, 4, v1
            v_lshlrev_b32 v13, 1, v13
            v_and_b32 v14, 7, v1
            v_xor_b32 v13, v13, v14
            v_lshlrev_b32 v13, 4, v13
            v_mul_u32_u24 v12, 3072, v12
            v_add_u32 v{VPF}, v12, v13
            v_add_u32 v{VPF+1}, {8*3072-1024}, v{VPF}
            v_add_u32 v{VPF+2}, {2*(8*3072-1024)}, v{VPF}
            v_add_u32 v{VPF+3}, {3*(8*3072-1024)}, v{VPF}
            """)
            self.perm_setup(S_M, 16, 6, S_PERM, self.o.get("rotB"))

        def wq_touch():
            self.srd(R_M, P_WQKV, 640 * 3840)
            a(f"""
            v_lshlrev_b32 v6, 7, v1
            s_mul_i32 s{S_T0+1}, s{S_T0+1}, 2880
            s_add_u32 s{S_T0+1}, s{S_T0+1}, {256*3840}
            s_mov_b64 exec, 0xffffff
            buffer_load_dword v253, v6, s[{R_M}:{R_M+3}], s{S_T0+1} offen
            s_mov_b64 exec, -1
            """)

        self.srd(R_W, P_W1, 2048 * 3072)
        common_setup()
        a("v_mov_b32 v124, 0\nv_mov_b32 v125, 0\nv_mov_b32 v126, 0x3f803f80\ns_waitcnt vmcnt(4)")
        self.stamp(11, 44)
        for c in range(20):
            a(f"v_dot2c_f32_bf16 v124, v{XR+c}, v126\nv_lshlrev_b32 v{XS+2*c}, 16, v{XR+c}")
            a(f"v_dot2c_f32_bf16 v125, v{XR+c}, v{GR+c}\nv_and_b32 v{XS+2*c+1}, 0xffff0000, v{XR+c}")
        a("s_nop 1")

        def reduce16(regs):
            for mode in ("quad_perm:[1,0,3,2]", "quad_perm:[2,3,0,1]", "row_half_mirror", "row_mirror"):
                for r in regs:
                    a(f"v_add_f32_dpp v{r}, v{r}, v{r} {mode} row_mask:0xf bank_mask:0xf")
                a("s_nop 1" if len(regs) == 1 else "s_nop 0")

        reduce16([124, 125])
        a(f"""
        v_mul_f32 v126, {f2u(-1.0/640):#x}, v124
        v_mul_f32 v127, {f2u(-1.0/640):#x}, v124
        v_mul_f32 v125, {f2u(-1.4426950408889634):#x}, v125
        v_mov_b32 v128, 0
        v_mov_b32 v129, 0
        v_mov_b32 v130, 0
        v_mov_b32 v131, 0
        v_mov_b32 v132, 0
        v_mov_b32 v133, 0
        v_mov_b32 v134, 0
        v_mov_b32 v135, 0
        v_exp_f32 v125, v125
        """)
        for c in range(20):
            a(f"v_pk_add_f32 {vr(XS+2*c,2)}, {vr(XS+2*c,2)}, v[126:127]")
        a("v_add_f32 v125, 1.0, v125\nv_rcp_f32 v125, v125")
        for c in range(20):
            t = 128 + 2 * (c & 3)
            a(f"v_pk_fma_f32 {vr(t,2)}, {vr(XS+2*c,2)}, {vr(XS+2*c,2)}, {vr(t,2)}")
        a("v_pk_add_f32 v[128:129], v[128:129], v[130:131]\nv_pk_add_f32 v[132:133], v[132:133], v[134:135]\nv_pk_add_f32 v[128:129], v[128:129], v[132:133]\nv_add_f32 v128, v128, v129\ns_nop 1")
        reduce16([128])
        a(f"v_mov_b32 v126, {f2u(1e-5):#x}\nv_fmac_f32 v126, {f2u(1.0/640):#x}, v128\nv_rsq_f32 v126, v126")
        a(f"""
        s_lshl_b32 s{S_T0}, s{S_WAVE}, 2
        v_add_u32 v2, s{S_T0}, v2
        v_mov_b32 v127, v126
        v_mul_u32_u24 v4, {LN_ST}, v2
        v_add_u32 v4, v4, v3
        v_lshlrev_b32 v2, 2, v2
        """)
        for c4 in range(5):
            for c in range(4 * c4, 4 * c4 + 4):
                a(f"v_pk_mul_f32 {vr(XS+2*c,2)}, {vr(XS+2*c,2)}, v[126:127]")
            for c in range(4 * c4, 4 * c4 + 4):
                a(f"v_cvt_pk_bf16_f32 v{XR+c}, v{XS+2*c}, v{XS+2*c+1}")
            a(f"ds_write_b128 v4, {vr(XR+4*c4,4)} offset:{LNBUF + c4*256}")
        a(f"ds_write_b32 v2, v125 offset:{LNG}")
        a(f"""
        v_and_b32 v12, 15, v1
        v_lshrrev_b32 v13, 4, v1
        v_lshrrev_b32 v15, 2, v12
        v_lshl_add_u32 v15, v13, 2, v15
        v_mul_u32_u24 v15, {LN_ST}, v15
        v_and_b32 v2, 3, v12
        v_lshl_add_u32 v15, v2, 3, v15
        s_mul_i32 s{S_T0}, s{S_WAVE}, 160
        v_add_u32 v15, s{S_T0}, v15
        v_lshlrev_b32 v14, 4, v1
        v_lshlrev_b32 v2, 2, v1
        s_mul_i32 s{S_T0}, s{S_WAVE}, {5*65536}
        s_lshl_b32 s{S_T0+1}, s{S_KST}, 10
        s_add_u32 s{S_T0}, s{S_T0}, s{S_T0+1}
        s_add_u32 s{S_T0}, s{S_T0}, {HT}
        s_waitcnt lgkmcnt(0)
        s_add_u32 s{S_TAG}, s{S_TAG}, {TAG_INC:#x}
        s_barrier
        """)
        self.stamp(12, 44)
        for i in range(5):
            a(f"ds_read_b64_tr_b16 {vr(44+4*i,2)}, v15 offset:{LNBUF + i*32}")
            a(f"ds_read_b64_tr_b16 {vr(46+4*i,2)}, v15 offset:{LNBUF + i*32+16*LN_ST}")
        a(f"ds_read_b32 v125, v2 offset:{LNG}")
        for i in range(5):
            a(f"s_waitcnt lgkmcnt({9-2*i})")
            a(f"buffer_store_dwordx4 {vr(44+4*i,4)}, v14, s[{R_WS}:{R_WS+3}], s{S_T0} offen sc1")
            if i < 4:
                a(f"s_add_u32 s{S_T0}, s{S_T0}, 65536")
        a(f"""
        s_cmp_lg_u32 s{S_WAVE}, 0
        s_cbranch_scc1 L_B_nog
        s_lshl_b32 s{S_T0}, s{S_KST}, 7
        s_add_u32 s{S_T0}, s{S_T0}, {G_OFF}
        s_waitcnt lgkmcnt(0)
        s_mov_b32 exec_hi, 0
        buffer_store_dword v125, v2, s[{R_WS}:{R_WS+3}], s{S_T0} offen sc1
        s_mov_b32 exec_hi, -1
        L_B_nog:
        s_waitcnt vmcnt(0) lgkmcnt(0)
        s_barrier
        s_cmp_lg_u32 s{S_WAVE}, 0
        s_cbranch_scc1 L_B_nofl
        s_mul_i32 s{S_T0}, s{S_KST}, {FS}
        s_add_u32 s{S_T0}, s{S_T0}, {F_LN}
        """)
        self.flag_store(S_T0, 12)
        self.stamp(1, 12)
        a("L_B_nofl:")
        if self.o.get("wq") == 1:
            a(f"s_lshl_b32 s{S_T0+1}, s{S_KST}, 3\ns_add_u32 s{S_T0+1}, s{S_T0+1}, s{S_WAVE}")
            wq_touch()
        if self.o.get("wq") == 3:
            a(f"""
            s_lshl_b32 s{S_T0}, s{S_J}, 3
            s_add_u32 s{S_T0}, s{S_T0}, s{S_WAVE}
            s_add_u32 s{S_T0}, s{S_T0}, 128
            v_lshrrev_b32 v6, 3, v1
            v_and_b32 v7, 7, v1
            v_min_u32 v7, 5, v7
            v_mul_u32_u24 v6, 3072, v6
            v_lshl_add_u32 v7, v7, 7, v6
            s_mul_i32 s{S_T0}, s{S_T0}, {8*3072}
            s_mul_i32 s{S_T0+2}, s{S_XCD}, 768
            s_add_u32 s{S_T0}, s{S_T0}, s{S_T0+2}
            buffer_load_dword v253, v7, s[{R_W}:{R_W+3}], s{S_T0} offen {self.nt('ntw1')}
            """)
        a("s_branch L_B_join")
        a("L_B_pfrole:")
        self.srd(R_W, P_W1, 2048 * 3072)
        if self.o.get("pfdelay"):
            common_setup()
            a("s_waitcnt vmcnt(0)")
        wq = self.o.get("wq", 0)
        a(f"""
        s_sub_u32 s{S_T0}, s{S_J}, 16
        s_lshl_b32 s{S_T0}, s{S_T0}, 3
        s_add_u32 s{S_T0}, s{S_T0}, s{S_WAVE}
        s_lshl_b32 s{S_T0+1}, s{S_XCD}, 7
        s_add_u32 s{S_T0+1}, s{S_T0+1}, s{S_T0}
        v_lshrrev_b32 v6, 3, v1
        v_and_b32 v7, 7, v1
        v_min_u32 v7, 5, v7
        v_mul_u32_u24 v6, 3072, v6
        v_lshl_add_u32 v7, v7, 7, v6
        s_mul_i32 s{S_T0}, s{S_T0}, {8*3072}
        s_mul_i32 s{S_T0+2}, s{S_XCD}, 768
        s_add_u32 s{S_T0}, s{S_T0}, s{S_T0+2}
        buffer_load_dword v253, v7, s[{R_W}:{R_W+3}], s{S_T0} offen {self.nt('ntw1')}
        """)
        if wq in (0, 3):
            wq_touch()
        if wq != 3:
            a(f"""
            s_add_u32 s{S_T0}, s{S_T0}, {1024*3072}
            buffer_load_dword v253, v7, s[{R_W}:{R_W+3}], s{S_T0} offen {self.nt('ntw1b')}
            """)
        if self.o.get("promote"):
            k_ = 1 if wq != 3 else 0
            a(f"""
            s_sub_u32 s{S_T0+1}, s{S_T0}, {1024*3072*k_}
            s_waitcnt vmcnt({k_ + (1 if wq in (0, 3) else 0)})
            buffer_load_dword v253, v7, s[{R_W}:{R_W+3}], s{S_T0+1} offen
            """)
            if self.o.get("ntw1b"):
                a(f"s_waitcnt vmcnt(1)\nbuffer_load_dword v253, v7, s[{R_W}:{R_W+3}], s{S_T0} offen")
        if not self.o.get("pfdelay"):
            common_setup()
        self.stamp(15, 12)
        a(f"s_waitcnt lgkmcnt(0)\ns_add_u32 s{S_TAG}, s{S_TAG}, {TAG_INC:#x}")
        a(f"s_cmp_ge_u32 s{S_J}, 30\ns_cbranch_scc1 L_helper")
        N1 = self.o.get("n1", 8)
        NREG = self.o.get("nreg", 0)
        assert NREG == 0 or N1 == 8

        def w1_issue():
            t = self.perm_next(S_T0, S_PERM, 128 * 3072)
            t += f"s_mov_b32 m0, s{S_B}\ns_add_u32 s{S_T0}, s{S_T0}, s{S_A}\n"
            for i in range(4):
                t += f"buffer_load_dwordx4 v{VPF+i}, s[{R_W}:{R_W+3}], s{S_T0} offen offset:{i*1024} lds\n"
            t += f"s_add_u32 s{S_B}, s{S_B}, 16384\n"
            return t
        a(f"""
        L_B_join:
        s_cmp_lt_u32 s{S_WAVE}, 4
        s_cbranch_scc1 L_B_comp0
        s_sub_u32 s{S_T0}, s{S_WAVE}, 4
        s_lshl_b32 s{S_B}, s{S_T0}, 12
        s_mul_i32 s{S_A}, s{S_T0}, {32*3072}
        s_lshl_b32 s{S_T0}, s{S_FT}, 7
        s_add_u32 s{S_A}, s{S_A}, s{S_T0}
        L_B_pf:
        """ + w1_issue() + f"""
        s_cmp_lt_u32 s{S_B}, {N1*16384}
        s_cbranch_scc1 L_B_pf
        """)
        for k in range(NREG):
            if k == 4:
                a("s_waitcnt vmcnt(40)")
            a(self.perm_next(S_T0, S_PERM, 128 * 3072) + f"s_add_u32 s{S_T0}, s{S_T0}, s{S_A}")
            for i in range(4):
                a(f"buffer_load_dwordx4 {vr(64+16*k+4*i,4)}, v{VPF+i}, s[{R_W}:{R_W+3}], s{S_T0} offen offset:{i*1024}")
        a("s_branch L_B_aux\nL_B_comp0:")
        BF = 16
        GX = 131072
        split = self.o.get("gsplit")

        def gelu_setup(dblk_off):
            c = 0.7978845608028654
            k0 = -2.0 * c * 1.4426950408889634
            k1 = k0 * 0.044715
            a(f"""
            s_mov_b32 s{S_K0}, {f2u(k1):#x}
            s_mov_b32 s{S_K0+1}, {f2u(k1):#x}
            v_mov_b32 v44, {f2u(k0):#x}
            v_mov_b32 v45, {f2u(k0):#x}
            v_mov_b32 v46, 1.0
            v_mov_b32 v47, 1.0
            s_lshl_b32 s{S_K0+2}, s{S_DT}, 3
            s_lshl_b32 s{S_T0+1}, s{S_WAVE}, 1
            s_add_u32 s{S_K0+2}, s{S_K0+2}, s{S_T0+1}
            s_add_u32 s{S_K0+2}, s{S_K0+2}, {dblk_off & 0xffffffff:#x}
            s_mul_i32 s{S_K0+2}, s{S_K0+2}, {UW_ST}
            s_lshl_b32 s{S_T0+1}, s{S_FT}, 11
            s_add_u32 s{S_K0+2}, s{S_K0+2}, s{S_T0+1}
            s_add_u32 s{S_K0+2}, s{S_K0+2}, {UW}
            """)
            for b in range(4):
                a(f"v_lshlrev_b32 v{BF+4*b}, 16, v{B1R+2*b}\nv_and_b32 v{BF+4*b+1}, 0xffff0000, v{B1R+2*b}")
                a(f"v_lshlrev_b32 v{BF+4*b+2}, 16, v{B1R+2*b+1}\nv_and_b32 v{BF+4*b+3}, 0xffff0000, v{B1R+2*b+1}")

        def gelu_block(base, vl):
            for p in range(2):
                r = base + 8 * p
                T = 48
                for q in range(4):
                    a(f"v_pk_mul_f32 {vr(T+2*q,2)}, {vr(r+2*q,2)}, {vr(r+2*q,2)}")
                for q in range(4):
                    a(f"v_pk_fma_f32 {vr(T+2*q,2)}, {vr(T+2*q,2)}, s[{S_K0}:{S_K0+1}], v[44:45]")
                for q in range(4):
                    a(f"v_pk_mul_f32 {vr(T+2*q,2)}, {vr(T+2*q,2)}, {vr(r+2*q,2)}")
                for q in range(8):
                    a(f"v_exp_f32 v{T+q}, v{T+q}")
                for q in range(4):
                    a(f"v_pk_add_f32 {vr(T+2*q,2)}, {vr(T+2*q,2)}, v[46:47]")
                for q in range(8):
                    a(f"v_rcp_f32 v{T+q}, v{T+q}")
                for q in range(4):
                    a(f"v_pk_mul_f32 {vr(r+2*q,2)}, {vr(r+2*q,2)}, {vr(T+2*q,2)}")
                o = 56 + 4 * (p & 1)
                for q in range(4):
                    a(f"v_cvt_pk_bf16_f32 v{o+q}, v{r+2*q}, v{r+2*q+1}")
                a(f"buffer_store_dwordx4 {vr(o,4)}, v{vl}, s[{R_WS}:{R_WS+3}], s{S_K0+2} offen offset:{p*1024} sc1")

        PF, WF, ACC, VT, VL = 64, 128, 160, 8, 12
        a(f"""
        s_lshl_b32 s{S_T0}, s{S_DT}, 3
        s_lshl_b32 s{S_T0+1}, s{S_WAVE}, 1
        s_add_u32 s{S_D}, s{S_T0}, s{S_T0+1}
        s_lshl_b32 s{S_T0}, s{S_D}, 16
        s_add_u32 s{S_T0}, s{S_T0}, {HT}
        """)
        self.srd(R_P, P_WS, 65536, off_s=S_T0)
        a(f"s_add_u32 s{S_T0}, s{S_T0}, 65536")
        self.srd(R_M, P_WS, 65536, off_s=S_T0)
        a(f"v_lshlrev_b32 v{VL}, 4, v1\ns_mov_b32 s{S_B}, 0")
        a(self.perm_next(S_C, S_PERM, 4096))
        self.tr_addr(VT)
        a("s_waitcnt vmcnt(0)")
        gelu_setup(0)
        for r in range(32):
            a(f"v_mov_b32 v{ACC+r}, v{BF + (r & 15)}")
        a(f"s_lshl_b32 s{S_T0}, s{S_WAVE}, 12\ns_add_u32 s{S_T0}, s{S_T0}, {GX}\nv_add_u32 v13, s{S_T0}, v{VL}")
        a(f"s_cmp_lg_u32 s{S_WAVE}, 0\ns_cbranch_scc1 L_B_l3")
        a(f"v_mul_u32_u24 v2, {FS}, v1\nv_add_u32 v2, {F_LN}, v2")
        if not self.o.get("x_nopoll"):
            self.poll([2], 4)
        self.stamp(2, 4)
        a("L_B_l3:\ns_barrier")
        RP = (R_P, R_M)

        def pload(u, ks):
            if self.o.get("x_noload"):
                return "s_nop 0"
            sc = "" if self.o.get("x_nosc1") else "sc1"
            so = "0" if self.o.get("x_same") else f"s{S_C}"
            return "\n".join(f"buffer_load_dwordx4 {vr(PF+32*(u%2)+8*ks+4*d,4)}, v{VL}, s[{RP[d]}:{RP[d]+3}], {so} offen offset:{ks*1024} {sc}" for d in range(2))

        for t in range(2):
            for ks in range(4):
                a(pload(t, ks))
            a(self.perm_next(S_C, S_PERM, 4096))
            if t == 0:
                first_bar_here = len(a.L)

        def mk(u, bar, virtual=False, head=None, tail=None):
            uses = []
            for ks in range(4):
                for b in range(4):
                    g = ks * 4 + b
                    wb = WF + 4 * (g % 8)
                    off = u * 16384 + ks * 4096
                    reads = [(f"w{g}a", f"ds_read_b64_tr_b16 {vr(wb,2)}, v{VT+b} offset:{off}"),
                             (f"w{g}b", f"ds_read_b64_tr_b16 {vr(wb+2,2)}, v{VT+b} offset:{off+2048}")]
                    mf = []
                    for dd in range(2):
                        acc = vr(ACC + 16 * dd + 4 * b, 4)
                        mf.append(f"v_mfma_f32_16x16x32_bf16 {acc}, {vr(wb,4)}, {vr(PF+32*(u%2)+8*ks+4*dd,4)}, {acc}")
                    if self.o.get("x32"):
                        acc = vr(ACC + 16 * (b & 1), 16)
                        mf = [f"v_mfma_f32_32x32x16_bf16 {acc}, {vr(wb,4)}, {vr(PF+32*(u%2)+8*ks+4*(b>>1),4)}, {acc}"]
                    d = dict(reads=reads, need=[f"w{g}b"], mf=mf)
                    if b == 0:
                        d["vm"] = 14
                    if b == 3:
                        d["after"] = pload(u, ks)
                        if ks == 3:
                            d["after"] += "\n" + self.perm_next(S_C, S_PERM, 4096)
                            if u >= 1:
                                d["after"] += f"s_cmp_ge_u32 s{S_B}, 3\ns_cselect_b32 s{S_C}, 0x10000, s{S_C}"
                    uses.append(d)
            return dict(uses=uses, bar=bar, virtual=virtual, head=head, tail=tail)

        xo = "s_barrier\n" + "\n".join(f"v_xor_b32 v{VT+b}, 0x10000, v{VT+b}" for b in range(4))
        tail = f"s_add_u32 s{S_B}, s{S_B}, 1\ns_cmp_lt_u32 s{S_B}, 4\ns_cbranch_scc1 L_B_loop"
        st = [mk(0, "", head="L_B_loop:"), mk(1, "s_barrier"), mk(2, "s_barrier"), mk(3, "s_barrier", tail=tail), mk(0, xo, virtual=True)]
        a.L.insert(first_bar_here, "    s_barrier")
        nd = self.o.get("nodrain")
        LB = self.o.get("LB", 7)
        self.pipeline(st, LB, (16 - LB) if nd else 13, drain=not nd, wait_every=self.o.get('we', 2))
        if nd and not self.o.get("noEnd"):
            a("s_waitcnt lgkmcnt(0)\ns_barrier")
        self.stamp(3, 44)
        if split:
            a("s_nop 5")
            for i in range(4):
                a(f"ds_write_b128 v13, {vr(ACC+16+4*i,4)} offset:{i*1024}")
            a("s_waitcnt lgkmcnt(0)\ns_barrier")
            gelu_block(ACC, VL)
        else:
            a("s_waitcnt lgkmcnt(0)\ns_nop 4")
            gelu_block(ACC, VL)
            a(f"s_add_u32 s{S_K0+2}, s{S_K0+2}, {UW_ST}")
            gelu_block(ACC + 16, VL)
        self.stamp(10, 44)
        a("s_waitcnt vmcnt(0)\ns_barrier\ns_branch L_F_comp")

        a("L_B_aux:\ns_barrier")
        if split:
            assert NREG == 0
        assert NREG == 0
        ops = [(iv, 4) for iv in range(N1)]
        todo = [(iv, i) for iv in range(N1, 16) for i in range(4)]
        quota = self.o.get("quota", 12) / 3.0
        credit = 0.0
        eB = self.o.get("eB", 17)
        nB1 = self.o.get("nB1", 0)
        per = self.o.get("perB", 2)
        done_w2 = 0
        for tb in range(17):
            if tb < 16 and tb <= eB:
                assert all(iv != tb for iv, _ in todo), (tb, todo)
                last = max(i for i, (iv, _) in enumerate(ops) if iv == tb)
                n = sum(c for _, c in ops[last + 1:])
                a(f"s_waitcnt vmcnt({min(n, 63) if tb < eB else 0})")
            a("s_barrier")
            if tb < 16:
                self.stamp(16 + tb, 44)
            if tb == 11 and split:
                gelu_setup(-7)
                a(f"v_lshlrev_b32 v12, 4, v1\ns_lshl_b32 s{S_T0}, s{S_WAVE}, 12\ns_add_u32 s{S_T0}, s{S_T0}, {GX - 4*4096}\nv_add_u32 v13, s{S_T0}, v12")
            if tb == eB:
                assert not todo
                self.w2_setup()
            if tb >= eB and done_w2 < nB1:
                k2 = min(per, nB1 - done_w2, tb - 9 - done_w2)
                sk = self.if_wave56()
                self.w2_prefill(k2)
                a(f"{sk}:")
                done_w2 += k2
            if todo and (todo[0][0] < 8 or tb >= 2):
                credit += 8 if todo[0][0] < 8 else quota
            setm0 = False
            while todo and credit >= 0.999 and (todo[0][0] < 8 or todo[0][0] <= tb + 6):
                iv, i = todo.pop(0)
                if i == 0:
                    if iv == 8:
                        a(f"s_and_b32 s{S_B}, s{S_B}, 0x1ffff")
                    a(self.perm_next(S_C, S_PERM, 128 * 3072) + f"s_add_u32 s{S_C}, s{S_C}, s{S_A}")
                if i == 0 or not setm0:
                    a(f"s_mov_b32 m0, s{S_B}\ns_nop 0")
                    setm0 = True
                a(f"buffer_load_dwordx4 v{VPF+i}, s[{R_W}:{R_W+3}], s{S_C} offen offset:{i*1024} lds")
                if i == 3:
                    a(f"s_add_u32 s{S_B}, s{S_B}, 16384")
                ops.append((iv, 1))
                credit -= 1
            if todo and todo[0][0] >= 8:
                credit = min(credit, quota)
        nxt = 16
        assert nxt == 16
        if self.o.get("noEnd"):
            assert done_w2 == nB1
        elif self.o.get("nodrain"):
            a("s_barrier")
        if eB == 17:
            self.w2_setup()
        if split:
            a("s_barrier")
            for i in range(4):
                a(f"ds_read_b128 {vr(64+4*i,4)}, v13 offset:{i*1024}")
            a("s_waitcnt lgkmcnt(0)")
            gelu_block(64, 12)
            a("s_waitcnt vmcnt(0)")
        skip = self.if_wave56()
        self.w2_prefill(nB1 - done_w2)
        a("s_barrier\ns_nop 7\ns_nop 7")
        self.w2_prefill(8 - nB1)
        a("s_branch L_F_loader")
        a(f"{skip}:\ns_barrier")
        a(f"s_cmp_lg_u32 s{S_WAVE}, 7\ns_cbranch_scc1 L_F_u4")
        a(f"s_mul_i32 s{S_T0}, s{S_DT}, 24\ns_add_u32 s{S_T0}, s{S_T0}, s{S_FT}\ns_mul_i32 s{S_T0}, s{S_T0}, {FS}\ns_add_u32 s{S_T0}, s{S_T0}, {F_U}")
        self.flag_store(S_T0, 12)
        self.stamp(4, 12)
        a("s_branch L_F_poller")

    def w2_l2_prefetch(self, VT):
        a = self.a
        self.srd(R_W2, P_W2, 1536 * 4096)
        a(f"""
        v_lshrrev_b32 v{VT}, 3, v1
        v_and_b32 v{VT+1}, 7, v1
        v_lshlrev_b32 v{VT+1}, 7, v{VT+1}
        v_lshl_add_u32 v{VT}, v{VT}, 12, v{VT+1}
        s_mul_i32 s{S_T0}, s{S_J}, 48
        s_and_b32 s{S_T0+1}, s{S_WAVE}, 3
        s_mul_i32 s{S_T0+1}, s{S_T0+1}, 12
        s_add_u32 s{S_T0}, s{S_T0}, s{S_T0+1}
        s_lshl_b32 s{S_T0}, s{S_T0}, 12
        s_lshr_b32 s{S_T0+1}, s{S_XCD}, 1
        s_lshl_b32 s{S_T0+1}, s{S_T0+1}, 10
        s_add_u32 s{S_T0}, s{S_T0}, s{S_T0+1}
        buffer_load_dword v{VT+2}, v{VT}, s[{R_W2}:{R_W2+3}], s{S_T0} offen
        s_add_u32 s{S_T0}, s{S_T0}, {8*4096}
        s_mov_b32 exec_hi, 0
        buffer_load_dword v{VT+3}, v{VT}, s[{R_W2}:{R_W2+3}], s{S_T0} offen
        s_mov_b64 exec, -1
        """)

    def tr_addr(self, VT):
        a = self.a
        a(f"""
        v_and_b32 v{VT+1}, 15, v1
        v_lshrrev_b32 v{VT+2}, 4, v1
        v_lshrrev_b32 v{VT+3}, 2, v{VT+1}
        v_lshl_add_u32 v{VT+3}, v{VT+2}, 2, v{VT+3}
        v_bfe_u32 v{VT+2}, v{VT+3}, 1, 2
        v_lshlrev_b32 v{VT+3}, 7, v{VT+3}
        v_lshl_add_u32 v{VT+3}, v{VT+2}, 5, v{VT+3}
        v_and_b32 v{VT+1}, 3, v{VT+1}
        v_lshl_add_u32 v{VT}, v{VT+1}, 3, v{VT+3}
        v_xor_b32 v{VT+1}, 32, v{VT}
        v_xor_b32 v{VT+2}, 64, v{VT}
        v_xor_b32 v{VT+3}, 96, v{VT}
        """)

    def helper(self):
        a = self.a
        a("L_helper:")
        a(f"""
        s_lshl_b32 s{S_D}, s{S_XCD}, 1
        s_add_u32 s{S_D}, s{S_D}, s{S_J}
        s_sub_u32 s{S_D}, s{S_D}, 30
        """)
        self.srd(R_W, P_WO, 640 * 1280)
        for p in range(5):
            a(f"""
            v_add_u32 v12, {p*64}, v1
            v_mul_u32_u24 v13, 205, v12
            v_lshrrev_b32 v13, 11, v13
            v_mul_u32_u24 v14, 10, v13
            v_sub_u32 v14, v12, v14
            v_lshlrev_b32 v14, 4, v14
            v_mul_u32_u24 v13, 1280, v13
            v_add_u32 v{16+p}, v13, v14
            """)
            if p in (1, 2, 3):
                a(f"v_subrev_u32 v{16+p}, {p*1024}, v{16+p}")
        a(f"""
        s_mov_b32 s{S_C}, s{S_WAVE}
        L_H_ld:
        s_mul_i32 s{S_A}, s{S_C}, {32*1280}
        s_mul_i32 s{S_T0}, s{S_D}, 160
        s_add_u32 s{S_A}, s{S_A}, s{S_T0}
        s_mul_i32 s{S_B}, s{S_C}, 5120
        s_mov_b32 m0, s{S_B}
        s_nop 0
        """)
        for p in range(4):
            a(f"buffer_load_dwordx4 v{16+p}, s[{R_W}:{R_W+3}], s{S_A} offen offset:{p*1024} lds")
        a(f"s_add_u32 m0, s{S_B}, 4096\ns_nop 0\nbuffer_load_dwordx4 v20, s[{R_W}:{R_W+3}], s{S_A} offen lds")
        a(f"""
        s_add_u32 s{S_C}, s{S_C}, 8
        s_cmp_lt_u32 s{S_C}, 20
        s_cbranch_scc1 L_H_ld
        v_and_b32 v12, 15, v1
        v_lshrrev_b32 v13, 4, v1
        v_lshrrev_b32 v14, 2, v12
        v_lshl_add_u32 v14, v13, 2, v14
        v_mul_u32_u24 v14, 160, v14
        v_and_b32 v12, 3, v12
        v_lshl_add_u32 v14, v12, 3, v14
        v_lshlrev_b32 v15, 4, v1
        s_waitcnt vmcnt(0)
        s_barrier
        s_mov_b32 s{S_C}, s{S_WAVE}
        L_H_tr:
        s_lshr_b32 s{S_T0}, s{S_C}, 1
        s_mul_i32 s{S_T0}, s{S_T0}, 5
        s_and_b32 s{S_T0+1}, s{S_C}, 1
        s_lshl_b32 s{S_T0+1}, s{S_T0+1}, 1
        s_add_u32 s{S_T0}, s{S_T0}, s{S_T0+1}
        s_add_u32 s{S_T0+1}, s{S_T0}, 1
        s_mul_i32 s{S_T0+2}, s{S_C}, 10
        s_sub_u32 s{S_T0+2}, s{S_T0+2}, 156
        s_add_u32 s{S_T0+3}, s{S_T0+2}, 5
        s_cmp_lt_u32 s{S_C}, 16
        s_cselect_b32 s{S_T0}, s{S_T0}, s{S_T0+2}
        s_cselect_b32 s{S_T0+1}, s{S_T0+1}, s{S_T0+3}
        s_mul_i32 s{S_T0}, s{S_T0}, 2560
        s_mul_i32 s{S_T0+1}, s{S_T0+1}, 2560
        v_add_u32 v12, s{S_T0}, v14
        v_add_u32 v13, s{S_T0+1}, v14
        """)
        for b in range(5):
            a(f"ds_read_b64_tr_b16 {vr(24+4*b,2)}, v12 offset:{b*32}\nds_read_b64_tr_b16 {vr(26+4*b,2)}, v13 offset:{b*32}")
        a(f"""
        s_mul_i32 s{S_T0}, s{S_D}, {5*UW_ST}
        s_lshl_b32 s{S_T0+1}, s{S_C}, 10
        s_add_u32 s{S_T0}, s{S_T0}, s{S_T0+1}
        s_add_u32 s{S_T0}, s{S_T0}, {UW + 49152}
        """)
        for b in range(5):
            a(f"s_waitcnt lgkmcnt({8-2*b})")
            a(f"buffer_store_dwordx4 {vr(24+4*b,4)}, v15, s[{R_WS}:{R_WS+3}], s{S_T0} offen sc1")
            if b < 4:
                a(f"s_add_u32 s{S_T0}, s{S_T0}, {UW_ST}")
        a(f"""
        s_add_u32 s{S_C}, s{S_C}, 8
        s_cmp_lt_u32 s{S_C}, 20
        s_cbranch_scc1 L_H_tr
        s_waitcnt vmcnt(0)
        s_barrier
        """)
        if self.o.get("hW2"):
            a(f"s_cmp_lg_u32 s{S_WAVE}, 7\ns_cbranch_scc1 L_H_nofl")
            a(f"s_mul_i32 s{S_T0}, s{S_D}, {FS}\ns_add_u32 s{S_T0}, s{S_T0}, {F_WOT}")
            self.flag_store(S_T0, 12)
            self.stamp(14, 12)
            a(f"""
            L_H_nofl:
            v_lshlrev_b32 v12, 7, v1
            s_lshl_b32 s{S_T0}, s{S_D}, 3
            s_add_u32 s{S_T0}, s{S_T0}, s{S_WAVE}
            s_lshl_b32 s{S_T0}, s{S_T0}, 13
            s_add_u32 s{S_T0}, s{S_T0}, {1024*4096}
            """)
            for k in range(4):
                a(f"buffer_load_dword v253, v12, s[{R_W2}:{R_W2+3}], s{S_T0} offen\ns_add_u32 s{S_T0}, s{S_T0}, {128*4096}")
        skip = self.if_wave56()
        self.w2_setup()
        self.w2_prefill(8)
        a(f"s_branch L_F_loader\n{skip}:")
        a(f"s_cmp_lt_u32 s{S_WAVE}, 4\ns_cbranch_scc1 L_F_comp\ns_cmp_lg_u32 s{S_WAVE}, 7\ns_cbranch_scc1 L_F_u4")
        if not self.o.get("hW2"):
            a(f"s_mul_i32 s{S_T0}, s{S_D}, {FS}\ns_add_u32 s{S_T0}, s{S_T0}, {F_WOT}")
            self.flag_store(S_T0, 12)
            self.stamp(14, 12)
        a("s_branch L_F_poller")

    F_WOT_REG = 172

    def uw_srd(self):
        a = self.a
        a(f"""
        s_mul_i32 s{S_T0}, s{S_DTILE}, 5
        s_add_u32 s{S_D}, s{S_T0}, s{S_WAVE}
        s_mul_i32 s{S_T0}, s{S_D}, {UW_ST}
        s_add_u32 s{S_T0}, s{S_T0}, {UW}
        """)
        self.srd(R_P, P_WS, UW_ST, off_s=S_T0)

    def wot_preload(self, VL):
        a = self.a
        for k in range(20):
            if k % 4 == 0:
                a(f"s_mov_b32 s{S_C}, {49152 + k*1024}")
            a(f"buffer_load_dwordx4 {vr(self.F_WOT_REG+4*k,4)}, v{VL}, s[{R_P}:{R_P+3}], s{S_C} offen offset:{(k%4)*1024} sc1")

    F_V = (4, 8, 12, 13, 47, 48, 52, 56, 168)
    F_SB = 72

    def f_setup(self):
        a = self.a
        VT, VT2, VL, VU4, VGA, VGH, VG8, GV, BV = self.F_V
        SB = self.F_SB
        self.srd(R_M, P_B2, 4096)
        self.srd(R_OUT, P_OUT, 2048 * 1280)
        self.tr_addr(VT2)
        a(f"""
        v_mov_b32 v42, v{VT2}
        v_lshlrev_b32 v{VL}, 4, v1
        v_add_u32 v{VU4}, 0x20000, v{VL}
        v_and_b32 v{VGA}, 15, v1
        v_lshlrev_b32 v43, 1, v{VGA}
        v_lshlrev_b32 v{VGA}, 2, v{VGA}
        v_lshlrev_b32 v{VG8+3}, 3, v1
        """)
        for b in range(4):
            a(f"""
            s_add_u32 s{SB+b}, s{S_WAVE}, {b}
            s_and_b32 s{SB+b}, s{SB+b}, 3
            s_lshl_b32 s{S_T0}, s{SB+b}, 5
            v_xor_b32 v{VT+b}, s{S_T0}, v42
            s_lshl_b32 s{S_T0+1}, s{S_ST}, 7
            s_add_u32 s{S_T0}, s{S_T0}, s{S_T0+1}
            buffer_load_ushort v{BV+b}, v43, s[{R_M}:{R_M+3}], s{S_T0} offen
            v_add_u32 v{VT2+b}, 0x10000, v{VT+b}
            s_lshl_b32 s{S_T0}, s{SB+b}, 12
            v_add_u32 v{VG8+b}, s{S_T0}, v{VG8+3}
            s_add_u32 s{S_T0}, s{S_T0}, 0x10000
            v_add_u32 v{VGH+b}, s{S_T0}, v{VL}
            """)
        a(f"s_lshl_b32 s{S_A}, s{S_ST}, 8\ns_add_u32 s{S_A}, s{S_A}, {G_OFF}")
        self.f_perm()

    def f0_barrier(self):
        lab = self.a.label("f0")
        self.a(f"s_cmp_eq_u32 s{S_FROMA}, 1\ns_cbranch_scc1 {lab}\ns_barrier\n{lab}:")

    def final(self):
        a = self.a
        a("L_F_comp:")
        if self.stop == "phase1":
            a("s_branch L_end")
        PF, WF, ACC, ACC4, U4, WOT = 64, 112, 144, 160, 36, 172
        NPF = 3
        pre = True
        VT, VT2, VL, VU4, VGA, VGH, VG8, GV, BV = self.F_V
        SB = self.F_SB
        a(f"s_cmp_eq_u32 s{S_FROMA}, 1\ns_cbranch_scc1 L_F_nowot")
        self.uw_srd()
        self.f_setup()
        nstream = 12 if pre else 17

        def next_sc(step):
            if step < 12:
                return self.perm_next(S_C, S_PERM, 4096)
            return f"s_mov_b32 s{S_C}, {step*4096}\n"
        a("s_barrier")
        self.wot_preload(VL)
        a("L_F_nowot:")
        a(next_sc(0))
        a("s_barrier")
        S_C1, S_C2 = S_K0, S_K0 + 1

        def uload(t, ks, so):
            return f"buffer_load_dwordx4 {vr(PF+16*(t % NPF)+4*ks,4)}, v{VL}, s[{R_P}:{R_P+3}], s{so} offen offset:{ks*1024} sc1 ;@u{t}_{ks}"
        vis0 = []
        for ks in range(4):
            a(uload(0, ks, S_C))
            vis0.append(f"u0_{ks}")
        a(self.perm_next(S_C1, S_PERM, 4096) + self.perm_next(S_C2, S_PERM, 4096) + next_sc(3))
        a("s_barrier")

        ACC2 = 16
        blocks = [(ACC + 4 * b, b) for b in range(4)] + [(ACC4, 0)]
        fill = []
        for b in range(4):
            fill += [f"v_lshlrev_b32 v{BV+b}, 16, v{BV+b}", f"v_sub_f32 v{GV+b}, 1.0, v{GV+b}"]
        for r0, b in blocks:
            for k in range(4):
                fill.append(f"v_add_f32 v{r0+k}, v{BV+b}, v{r0+k}")

        stages = []
        for t in range(17):
            slot = t % 8
            hi = slot >= 4
            uses = []
            for ks in range(4):
                for b in range(4):
                    g = ks * 4 + b
                    wb = WF + 4 * (g % 8)
                    reads = []
                    u4 = U4 + 4 * (ks & 1)
                    if b == 0:
                        reads.append((f"u{ks}", f"ds_read_b128 {vr(u4,4)}, v{VU4} offset:{slot*4096 + ks*1024}"))
                    if t < 12:
                        off = (slot & 3) * 16384 + ks * 4096
                        va = (VT2 if hi else VT) + b
                        reads += [(f"w{g}a", f"ds_read_b64_tr_b16 {vr(wb,2)}, v{va} offset:{off}"),
                                  (f"w{g}b", f"ds_read_b64_tr_b16 {vr(wb+2,2)}, v{va} offset:{off+2048}")]
                    elif t < 16:
                        assert hi
                        off = (slot & 3) * 16384 + ks * 1024
                        reads += [(f"w{g}b", f"ds_read_b128 {vr(wb,4)}, v{VGH+b} offset:{off}")]
                    else:
                        off = (slot & 3) * 16384 + ks * 1024
                        assert not hi
                        reads += [(f"w{g}a", f"ds_read_b64 {vr(wb,2)}, v{VG8+b} offset:{off}"),
                                  (f"w{g}b", f"ds_read_b64 {vr(wb+2,2)}, v{VG8+b} offset:{off+512}")]
                    acc = vr((ACC if t < 12 else ACC2) + 4 * b, 4)
                    a4 = vr(ACC4 if t < 12 else ACC2 + 16, 4)
                    ring = t < nstream
                    pf = vr(PF + 16 * (t % NPF) + 4 * ks, 4) if ring else vr(WOT + 16 * (t - 12) + 4 * ks, 4)
                    first = t in (0, 12) and ks == 0
                    mf = [f"v_mfma_f32_16x16x32_bf16 {acc}, {pf}, {vr(wb,4)}, {0 if first else acc}"]
                    if b == 0:
                        mf.append(f"v_mfma_f32_16x16x32_bf16 {a4}, {vr(u4,4)}, {vr(wb,4)}, {0 if first else a4}")
                    d = dict(reads=reads, need=[f"w{g}b"], mf=mf)
                    if self.o.get("x_fewlds"):
                        if b == 0:
                            d["reads"] = reads[1:]
                        else:
                            d["reads"] = []
                            d["need"] = [f"w{g-b}b"]
                    if b == 0 and ring:
                        d["vneed"] = f"u{t}_{ks}"
                    if t == 0 and b in (0, 1):
                        d["after"] = uload(1 + b, ks, (S_C1, S_C2)[b])
                    if t == 1 and b == 1:
                        d["after"] = (f"s_lshl_b32 s{S_T0}, s{SB+ks}, 6\ns_add_u32 s{S_T0}, s{S_T0}, s{S_A}\n"
                                      f"buffer_load_dword v{GV+ks}, v{VGA}, s[{R_WS}:{R_WS+3}], s{S_T0} offen sc1 ;@g{ks}")
                    if b == 3 and t + NPF < nstream:
                        d["after"] = uload(t + NPF, ks, S_C)
                        if ks == 3 and t + NPF + 1 < nstream:
                            d["after"] += "\n" + next_sc(t + NPF + 1)
                    if self.o.get("wotl") and 3 <= t <= 7 and b == 1:
                        k = (t - 3) * 4 + ks
                        lab = a.label("nw")
                        d["before"] = (f"s_cmp_eq_u32 s{S_FROMA}, 1\ns_cbranch_scc0 {lab}\ns_mov_b32 s{S_T0}, {49152 + k*1024}\n"
                                       f"buffer_load_dwordx4 {vr(WOT+4*k,4)}, v{VL}, s[{R_P}:{R_P+3}], s{S_T0} offen sc1\n{lab}:")
                    if t >= 13 and fill and g < 15:
                        d["after"] = fill.pop(0)
                    uses.append(d)
            stages.append(dict(uses=uses, bar="s_barrier" if t else ""))
        nd = self.o.get("nodrain")
        LF = self.o.get("LF", 6)
        self.pipeline(stages, LF, (16 - LF) if nd else 13, drain=not nd, wait_every=self.o.get('we', 2), vis=vis0)
        self.stamp(8, 2)
        a(f"""
        v_and_b32 v2, 15, v1
        v_mul_u32_u24 v2, 1280, v2
        v_lshrrev_b32 v3, 4, v1
        v_lshl_add_u32 v2, v3, 3, v2
        s_mul_i32 s{S_A}, s{S_ST}, {64*1280}
        s_lshl_b32 s{S_T0+1}, s{S_D}, 5
        s_add_u32 s{S_B}, s{S_A}, s{S_T0+1}
        s_mul_i32 s{S_T0+1}, s{S_DTILE}, 160
        s_add_u32 s{S_A}, s{S_A}, s{S_T0+1}
        s_add_u32 s{S_A}, s{S_A}, 128
        """)
        assert not fill
        for i_, (r, b) in enumerate(blocks):
            for k in range(4):
                a(f"v_fma_f32 v{r+k}, v{r+k}, v{GV+b}, v{ACC2+4*i_+k}")
            a(f"s_mul_i32 s{S_T0}, s{SB+b}, {16*1280}\ns_add_u32 s{S_T0}, s{S_T0}, s{S_A if r == ACC4 else S_B}")
            a(f"v_cvt_pk_bf16_f32 v{r}, v{r}, v{r+1}\nv_cvt_pk_bf16_f32 v{r+1}, v{r+2}, v{r+3}")
            a(f"buffer_store_dwordx2 {vr(r,2)}, v2, s[{R_OUT}:{R_OUT+3}], s{S_T0} offen {['', 'sc1', 'nt', 'sc0 sc1'][self.o.get('osc', 0)]}")
        if self.stamps or self.o.get("dbg"):
            a("s_waitcnt vmcnt(0)")
            self.stamp(9, 2)
        if self.o.get("calib"):
            a(f"""
            L_cal:
            s_memrealtime s[96:97]
            s_waitcnt lgkmcnt(0)
            s_sub_u32 s96, s96, s98
            s_cmp_lt_u32 s96, {self.o.get("calib")*100}
            s_cbranch_scc1 L_cal
            """)
        a(f"s_or_b32 s{S_T0}, s2, s{S_WAVE}\ns_cmp_lg_u32 s{S_T0}, 0\ns_cbranch_scc1 L_end\ns_mov_b32 s{S_T0}, 0")
        self.flag_store(S_T0, 4)
        a("s_branch L_end")

        a("L_F_u4:")
        if self.stop == "phase1":
            a("s_branch L_end")
        a(f"""
        v_lshlrev_b32 v{VL}, 4, v1
        s_mul_i32 s{S_C}, s{S_DTILE}, {5*UW_ST}
        s_add_u32 s{S_C}, s{S_C}, {UW + 4*UW_ST}
        """)
        self.f_perm()
        self.f0_barrier()
        p4 = self.o.get("preW4")
        if p4:
            for k in range(20):
                if k % 4 == 0:
                    a(f"s_add_u32 s{S_T0}, s{S_C}, {49152 + k*1024}")
                a(f"buffer_load_dwordx4 {vr(64+4*k,4)}, v{VL}, s[{R_WS}:{R_WS+3}], s{S_T0} offen offset:{(k%4)*1024} sc1")
            a(f"v_add_u32 v{VU4}, 0x20000, v{VL}")
        a("s_barrier")

        def u4_issue(iv):
            if iv >= 12 and p4:
                for i in range(4):
                    a(f"ds_write_b128 v{VU4}, {vr(64+16*(iv-12)+4*i,4)} offset:{(iv % 8)*4096 + i*1024}")
                return
            if iv < 12:
                a(self.perm_next(S_T0, S_PERM, 4096) + f"s_mov_b32 m0, {0x20000 + (iv % 8)*4096:#x}\ns_add_u32 s{S_T0}, s{S_T0}, s{S_C}")
            else:
                a(f"s_mov_b32 m0, {0x20000 + (iv % 8)*4096:#x}\ns_add_u32 s{S_T0}, s{S_C}, {iv*4096}")
            for i in range(4):
                a(f"buffer_load_dwordx4 v{VL}, s[{R_WS}:{R_WS+3}], s{S_T0} offen offset:{i*1024} sc1 lds")
        order = []
        for iv in range(8):
            u4_issue(iv)
            order.append(iv)
            if iv == 1:
                a("s_waitcnt vmcnt(4)\ns_barrier")
        for tb in range(1, 17):
            if tb in order:
                a(f"s_waitcnt vmcnt({4*len(order[order.index(tb)+1:])})")
            a("s_waitcnt lgkmcnt(0)\ns_barrier" if p4 and tb >= 7 else "s_barrier")
            iv = tb + (6 if self.o.get("nodrain") else 7)
            if 8 <= iv <= 16:
                u4_issue(iv)
                if not (p4 and iv >= 12):
                    order.append(iv)
        a("s_branch L_end")

        a("L_F_loader:")
        if self.stop == "phase1":
            a("s_branch L_end")
        a(f"v_lshlrev_b32 v{VL}, 4, v1")
        self.f0_barrier()
        nWR = self.o.get("nWR", 0)
        V = self.V_W2
        if nWR:
            a(f"s_waitcnt vmcnt(30)\nv_add_u32 v{VU4}, s{S_B}, v{VL}")
            for k in range(nWR):
                a(self.perm_next(S_T0, S_PERM, 128 * 4096) + f"s_add_u32 s{S_T0}, s{S_T0}, s{S_A}")
                for g in range(2):
                    if g:
                        a(f"s_add_u32 s{S_T0}, s{S_T0}, {4*32768}")
                    for i in range(4):
                        a(f"buffer_load_dwordx4 {vr(64+32*k+16*g+4*i,4)}, v{V+i}, s[{R_W2}:{R_W2+3}], s{S_T0} offen offset:{i*1024}")
            a(f"s_add_u32 s{S_B}, s{S_B}, {nWR*16384}")
        a("s_barrier")
        a(f"""
        s_sub_u32 s{S_T0}, s{S_WAVE}, 5
        s_lshl_b32 s{S_T0}, s{S_T0}, 1
        s_lshl_b32 s{S_T0+1}, s{S_ST}, 2
        s_add_u32 s{S_T0+1}, s{S_T0+1}, s{S_T0}
        s_mul_i32 s{S_C}, s{S_T0+1}, {GO_ST}
        s_add_u32 s{S_C}, s{S_C}, {GO}
        s_lshl_b32 s{S_D}, s{S_T0}, 12
        """)
        assert nWR == 0
        ops = [(iv, 8) for iv in range(8)]
        for tb in range(17):
            last = max(i for i, (iv, _) in enumerate(ops) if iv == tb)
            n = sum(c for _, c in ops[last + 1:])
            a(f"s_waitcnt vmcnt({min(n,63)})\ns_barrier")
            if self.o.get("halfW"):
                if 2 <= tb <= 9:
                    self.w2_half((tb - 2) & 1)
                    ops.append((8 + (tb - 2) // 2, 4))
            elif 2 <= tb <= 5:
                self.w2_issue()
                ops.append((tb + 6, 8))
            if 9 <= tb <= 13:
                iv = tb + 3
                g = iv - 12
                for s2 in range(2):
                    a(f"s_add_u32 m0, s{S_D}, {(iv % 8)*16384 + s2*4096}\ns_add_u32 s{S_T0}, s{S_C}, {s2*GO_ST + g*4096}")
                    for i in range(4):
                        a(f"buffer_load_dwordx4 v{VL}, s[{R_WS}:{R_WS+3}], s{S_T0} offen offset:{i*1024} sc1 lds")
                ops.append((iv, 8))
        a("s_branch L_end")
        a("L_F_poller:")
        if self.stop == "phase1":
            a("s_branch L_end")
        a(f"s_cmp_eq_u32 s{S_FROMA}, 1\ns_cbranch_scc1 L_F_pnowot")
        a(f"s_mul_i32 s{S_T0}, s{S_DTILE}, {FS}\ns_add_u32 s{S_T0}, s{S_T0}, {F_WOT}\nv_mov_b32 v2, s{S_T0}")
        self.poll([2], 4)
        a("s_barrier\nL_F_pnowot:")
        a(f"""
        s_mul_i32 s{S_T0}, s{S_DTILE}, 5
        s_lshr_b32 s{S_T0+1}, s{S_T0}, 3
        s_add_u32 s{S_T0}, s{S_T0}, 4
        s_lshr_b32 s{S_T0}, s{S_T0}, 3
        s_mul_i32 s{S_T0}, s{S_T0}, 24
        s_mul_i32 s{S_T0+1}, s{S_T0+1}, 24
        v_and_b32 v2, 31, v1
        v_min_u32 v2, 23, v2
        v_add_u32 v3, s{S_T0}, v2
        v_add_u32 v2, s{S_T0+1}, v2
        v_cmp_gt_u32 vcc, 32, v1
        s_mul_i32 s{S_T0}, s{S_DTILE}, {FS}
        s_add_u32 s{S_T0}, s{S_T0}, {F_WOT}
        v_cndmask_b32 v2, v2, v3, vcc
        v_mul_u32_u24 v2, {FS}, v2
        v_add_u32 v2, {F_U}, v2
        v_mov_b32 v3, s{S_T0}
        v_cmp_eq_u32 vcc, 63, v1
        s_nop 1
        v_cndmask_b32 v2, v2, v3, vcc
        """)
        self.poll([2], 4)
        self.stamp(6, 4)
        a("s_barrier")
        a(f"""
        v_and_b32 v2, 7, v1
        s_lshr_b32 s{S_T0}, s{S_ST}, 1
        s_lshl_b32 s{S_T0}, s{S_T0}, 3
        v_add_u32 v2, s{S_T0}, v2
        v_mul_u32_u24 v2, {FS}, v2
        v_add_u32 v2, {F_GO}, v2
        """)
        gp = self.o.get("gopoll", 9)
        for tb in range(gp):
            a("s_barrier")
            if tb == 1:
                a(f"s_cmp_eq_u32 s{S_FROMA}, 1\ns_cbranch_scc0 L_F_nogo")
                a(f"s_lshl_b32 s{S_T0}, s{S_MT}, 3\ns_add_u32 s{S_T0}, s{S_T0}, s{S_HG}\ns_mul_i32 s{S_T0}, s{S_T0}, {FS}\ns_add_u32 s{S_T0}, s{S_T0}, {F_GO}")
                self.flag_store(S_T0, 6)
                a("L_F_nogo:")
            if tb == gp - 3:
                a(f"buffer_load_dword v8, v2, s[{R_WS}:{R_WS+3}], 0 offen sc1")
            self.stamp(32 + tb, 4)
        a(f"s_waitcnt vmcnt(0)\nv_cmp_ne_u32 vcc, s{S_TAG}, v8\ns_nop 1\ns_cmp_eq_u64 vcc, 0\ns_cbranch_scc1 L_F_gook")
        self.poll([2], 4)
        a("L_F_gook:")
        self.stamp(7, 4)
        for tb in range(gp, 17):
            a("s_barrier")
            self.stamp(32 + tb, 4)
        a("L_end:")
        if "probe" in self.o or "pc1" in self.o:
            a("""
            s_cmp_eq_u32 s94, 0
            s_cbranch_scc1 L_exit
            L_prb:
            s_memrealtime s[96:97]
            s_waitcnt lgkmcnt(0)
            s_sub_u32 s96, s96, s98
            s_cmp_lt_i32 s96, 4000
            s_cbranch_scc1 L_prb
            """)
        if self.stamps:
            a(f"""
            s_lshl_b32 s{S_T0}, s2, 3
            s_add_u32 s{S_T0}, s{S_T0}, s{S_WAVE}
            s_lshl_b32 s{S_T0}, s{S_T0}, 9
            s_add_u32 s{S_T0}, s{S_T0}, {STAMP}
            v_lshlrev_b32 v2, 3, v1
            buffer_store_dwordx2 v[254:255], v2, s[{R_WS}:{R_WS+3}], s{S_T0} offen
            """)
        a("L_exit:\ns_endpgm")

    def build(self, header):
        a = self.a
        self.prologue()
        self.role_a()
        self.role_b()
        self.helper()
        self.final()
        body = a.text()
        out = header
        out += f"; @launch grid=(256,1,1) block=(512,1,1) lds={LDS_BYTES}\n"
        out += f'.amdgcn_target "amdgcn-amd-amdhsa--gfx950"\n.text\n.globl {KNAME}\n.p2align 8\n.type {KNAME},@function\n{KNAME}:\n'
        out += body
        out += f""".section .rodata,"a"
.p2align 6
.amdhsa_kernel {KNAME}
  .amdhsa_next_free_vgpr 256
  .amdhsa_next_free_sgpr 102
  .amdhsa_accum_offset 256
  .amdhsa_group_segment_fixed_size 0
  .amdhsa_kernarg_size 96
  .amdhsa_user_sgpr_count 2
  .amdhsa_user_sgpr_kernarg_segment_ptr 1
  .amdhsa_system_sgpr_workgroup_id_x 1
  .amdhsa_float_denorm_mode_32 3
.end_amdhsa_kernel
"""
        return out


def header():
    ref = open("gated_mix__linear_attn_block__mixer_token_mlp__prompt.s.ref").read().split("\n")
    h = []
    for l in ref:
        if l.startswith("; Override"):
            break
        h.append(l)
    return "\n".join(h) + "\n"


if __name__ == "__main__":
    import argparse
    p = argparse.ArgumentParser()
    p.add_argument("-o", default="gated_mix__linear_attn_block__mixer_token_mlp__prompt.s")
    p.add_argument("--stamps", action="store_true")
    p.add_argument("--stop", default=None)
    p.add_argument("--opt", default="")
    args = p.parse_args()
    opts = {k: (int(v) if v != '' else 1) for k, _, v in (x.partition('=') for x in args.opt.split(',') if x)}
    g = Gen(stamps=args.stamps, stop=args.stop, opts=opts)
    open(args.o, "w").write(g.build(header()))
    print("wrote", args.o)
```

```python
import sys

KNAME = "gated_mix__linear_attn_block__mixer_token_mlp__prompt_kernel"

import os
FS = int(os.environ.get('FS', 128))
F_LN, F_KV, F_U, F_GO, F_WOT = 0x1000, 0x5000, 0x9000, 0xD000, 0x11000
G_OFF = 0x12000
STAMP = 0x900000
KVP = 0x20000
KVP_ST = 7168
HT = 0x100000
UW = 0x380000
UW_ST = 69632
GO = 0x640000
GO_ST = 20480
WS_USED = 0xA00000
TAG_INC = 0x9E3779B9
SPIN_LIMIT = 1 << 17

LDS_BYTES = 163840
LNBUF = 0
LN_ST = 1312
LNG = LNBUF + 32 * LN_ST
A_SLOT = 49152
A_WOFF = 16384
EXCH_ST = 14336
EXCH = LDS_BYTES - 4 * EXCH_ST
KVT = 147456
ZH = KVT + 11 * 1024

LOG2E = 0x3FB8AA3B


def f2u(x):
    import struct
    return struct.unpack("<I", struct.pack("<f", x))[0]


class Asm:
    def __init__(self):
        self.L = []
        self.nlab = 0

    def __call__(self, s):
        for line in s.split("\n"):
            line = line.strip()
            if line:
                self.L.append(("    " if not line.endswith(":") else "") + line)

    def label(self, base):
        self.nlab += 1
        return f"L{base}_{self.nlab}"

    def text(self):
        return "\n".join(self.L) + "\n"


def vr(a, n=1):
    return f"v{a}" if n == 1 else f"v[{a}:{a+n-1}]"


def sr(a, n=1):
    return f"s{a}" if n == 1 else f"s[{a}:{a+n-1}]"


P_X, P_WQKV, P_WO, P_BX, P_W1, P_B1, P_W2, P_B2 = 4, 6, 8, 10, 12, 14, 16, 18
P_GATE, P_OUT, P_DBG, P_WS = 20, 22, 24, 26
S_TAG, S_WAVE = 28, 29
S_XCD, S_J = 30, 31
R_WS, R_X, R_W, R_P, R_W2, R_M, R_OUT = 32, 36, 40, 44, 48, 52, 56
S_T0 = 60
S_MT, S_HG, S_DT, S_FT, S_KST, S_PAR = 70, 71, 72, 73, 74, 75
S_ST, S_DTILE = 76, 77
S_CNT = 78
S_A, S_B, S_C, S_D = 80, 81, 82, 83
S_MSK = 84
S_K0 = 90
S_STMP = 96
S_PERM = 66
S_M = 79
S_FROMA = 95
S_PERM2 = 68


def lead_perm(n, nshare, m, lead=2):
    order = list(range(n))
    i = m
    while i + lead < n:
        order[i:i + lead + 1] = [order[i + lead]] + order[i:i + lead]
        i += nshare
    return order


class Gen:
    def __init__(self, stamps=False, stop=None, opts=None):
        self.o = opts or {}
        self.a = Asm()
        self.stamps = stamps
        self.stop = stop

    def nt(self, key):
        return "nt" if self.o.get(key) else ""

    def srd(self, dst, ptr, nbytes, off_s=None):
        a = self.a
        if off_s is None:
            a(f"s_mov_b32 s{dst}, s{ptr}\ns_and_b32 s{dst+1}, s{ptr+1}, 0xffff")
        else:
            a(f"s_add_u32 s{dst}, s{ptr}, s{off_s}\ns_addc_u32 s{dst+1}, s{ptr+1}, 0\ns_and_b32 s{dst+1}, s{dst+1}, 0xffff")
        a(f"s_mov_b32 s{dst+2}, {nbytes:#x}\ns_mov_b32 s{dst+3}, 0x20000")

    def stamp(self, k, vtmp, dyn=None):
        if "pc1" in self.o:
            if dyn is None and k in (self.o["pc1"], self.o["pc2"]):
                lab = self.a.label("npr")
                self.a(f"s_cmp_lg_u32 s{S_FROMA}, {self.o.get('prole', 0)}\ns_cbranch_scc1 {lab}")
                if k == self.o["pc1"]:
                    self.a(f"s_memtime s[92:93]\ns_waitcnt lgkmcnt(0)")
                else:
                    self.a(f"s_memtime s[96:97]\ns_waitcnt lgkmcnt(0)\ns_sub_u32 s92, s96, s92\ns_lshr_b32 s92, s92, 4\ns_add_u32 s98, s98, s92\ns_mov_b32 s94, 1")
                self.a(f"{lab}:")
            return
        if "probe" in self.o:
            role = self.o.get("prole")
            if k == self.o["probe"] and dyn is None:
                lab = self.a.label("npr")
                if role is not None and k != 0:
                    self.a(f"s_cmp_lg_u32 s{S_FROMA}, {role}\ns_cbranch_scc1 {lab}")
                self.a(f"s_memrealtime s[98:99]\ns_mov_b32 s94, 1\ns_waitcnt lgkmcnt(0)\n{lab}:")
            return
        if self.o.get("dbg"):
            m = {0: 0, 11: 1, 1: 2, 2: 3, 3: 4, 4: 5, 6: 6, 9: 7}
            mA = {0: 0, 1: 1, 2: 2, 3: 3, 4: 4, 5: 5, 6: 6, 9: 7}
            if dyn is not None:
                return
            a = self.a
            for wg, mp, base in ((8, m, 0), (12, mA, 8)):
                if k in mp:
                    lab = a.label("nd")
                    a(f"s_cmp_lg_u32 s2, {wg}\ns_cbranch_scc1 {lab}")
                    a(f"s_memrealtime s[{S_STMP}:{S_STMP+1}]\ns_waitcnt lgkmcnt(0)")
                    a(f"v_mov_b32 v{vtmp}, s{S_STMP}\nv_mov_b32 v{vtmp+2}, {4*(base+mp[k])}")
                    a(f"s_mov_b64 exec, 1\nglobal_store_dword v{vtmp+2}, v{vtmp}, s[{P_DBG}:{P_DBG+1}]\ns_mov_b64 exec, -1\n{lab}:")
            return
        if not self.stamps:
            return
        a = self.a
        a(f"s_memrealtime s[{S_STMP}:{S_STMP+1}]\ns_memtime s[100:101]")
        ln = str(k)
        if dyn is not None:
            a(f"s_add_u32 m0, s{dyn}, {k}")
            ln = "m0"
        a(f"s_waitcnt lgkmcnt(0)\nv_writelane_b32 v254, s{S_STMP}, {ln}\nv_writelane_b32 v255, s100, {ln}")

    def perm_setup(self, s_m, n, nshare, dst, enable):
        a = self.a
        def pk(o):
            v = 0
            for i, x in enumerate(o):
                v |= x << (4 * i)
            return v & 0xffffffff, v >> 32
        lo, hi = pk(list(range(n)))
        a(f"s_mov_b32 s{dst}, {lo:#x}\ns_mov_b32 s{dst+1}, {hi:#x}")
        if not enable:
            return
        for m in range(nshare):
            lo, hi = pk(lead_perm(n, nshare, m, enable))
            a(f"s_cmp_eq_u32 s{s_m}, {m}\ns_cselect_b32 s{dst}, {lo:#x}, s{dst}\ns_cselect_b32 s{dst+1}, {hi:#x}, s{dst+1}")

    def perm_next(self, dst, src, mul):
        t = f"s_and_b32 s{dst}, s{src}, 15\ns_lshr_b64 s[{src}:{src+1}], s[{src}:{src+1}], 4\n"
        if mul & (mul - 1) == 0:
            t += f"s_lshl_b32 s{dst}, s{dst}, {mul.bit_length()-1}\n"
        else:
            t += f"s_mul_i32 s{dst}, s{dst}, {mul}\n"
        return t

    def poll(self, voffs, vtmp, mask=None):
        a = self.a
        lp, dn = a.label("poll"), a.label("pdone")
        n = len(voffs)

        def ld(k):
            for i, vo in enumerate(voffs):
                a(f"buffer_load_dword v{vtmp+k*n+i}, v{vo}, s[{R_WS}:{R_WS+3}], 0 offen sc1")

        def chk(k):
            if mask is not None:
                a(f"v_xor_b32 v{vtmp+k*n}, s{S_TAG}, v{vtmp+k*n}\nv_and_b32 v{vtmp+k*n}, v{mask}, v{vtmp+k*n}\nv_cmp_ne_u32 vcc, 0, v{vtmp+k*n}")
            else:
                a(f"v_cmp_ne_u32 vcc, s{S_TAG}, v{vtmp+k*n}")
            for i in range(1, n):
                a(f"v_cmp_ne_u32 s[{S_T0}:{S_T0+1}], s{S_TAG}, v{vtmp+k*n+i}\ns_nop 1\ns_or_b64 vcc, vcc, s[{S_T0}:{S_T0+1}]")
            a(f"s_nop 1\ns_cmp_eq_u64 vcc, 0\ns_cbranch_scc1 {dn}")
        if not self.o.get("pp"):
            a(f"s_mov_b32 s{S_CNT}, 0\n{lp}:")
            ld(0)
            a("s_waitcnt vmcnt(0)")
            chk(0)
            a(f"s_add_u32 s{S_CNT}, s{S_CNT}, 1\ns_cmp_lt_u32 s{S_CNT}, {SPIN_LIMIT}\ns_cbranch_scc0 {dn}\ns_sleep 1\ns_branch {lp}\n{dn}:")
            return
        sl = f"s_sleep {self.o['pp'] - 1}\n" if self.o["pp"] > 1 else ""
        a(f"s_mov_b32 s{S_CNT}, 0")
        ld(0)
        a(f"{sl}{lp}:")
        ld(1)
        a(f"s_waitcnt vmcnt({n})")
        chk(0)
        ld(0)
        a(f"s_waitcnt vmcnt({n})")
        chk(1)
        a(f"s_add_u32 s{S_CNT}, s{S_CNT}, 1\ns_cmp_lt_u32 s{S_CNT}, {SPIN_LIMIT}\ns_cbranch_scc1 {lp}\n{dn}:")

    def flag_store(self, s_off, vtmp):
        a = self.a
        a(f"v_mov_b32 v{vtmp}, s{S_TAG}\nv_mov_b32 v{vtmp+1}, 0\ns_mov_b64 exec, 1")
        a(f"buffer_store_dword v{vtmp}, v{vtmp+1}, s[{R_WS}:{R_WS+3}], s{s_off} offen sc1\ns_mov_b64 exec, -1")

    def pipeline(self, stages, L, gstar, drain=True, wait_every=2, vis=None):
        a = self.a
        seq = [(si, gi, u) for si, st in enumerate(stages) for gi, u in enumerate(st["uses"])]
        issued = []
        vis = list(vis or [])
        state = dict(nxt=0, opened=-1)
        pend = []

        def collect(lim):
            while state["nxt"] < len(seq) and state["nxt"] <= lim and seq[state["nxt"]][0] <= state["opened"]:
                si_, _, u_ = seq[state["nxt"]]
                for name, txt in u_["reads"]:
                    pend.append((f"{si_}:{name}", txt))
                state["nxt"] += 1
                if seq[state["nxt"] - 1][1] == len(stages[si_]["uses"]) - 1 and si_ + 1 < len(stages):
                    state["defer"] = list(stages[si_ + 1].get("pre", []))

        def out(txt):
            if ";@" in txt:
                vis.append(txt.split(";@")[1].strip())
            a(txt)

        def emit(n):
            for _ in range(min(n, len(pend))):
                name, txt = pend.pop(0)
                out(txt)
                if name:
                    issued.append(name)

        a(stages[0]["bar"])
        state["opened"] = 0
        collect(L - 1)
        emit(len(pend))
        n_real = sum(len(st["uses"]) for st in stages if not st.get("virtual"))
        covered = -1
        for f in range(n_real):
            si, gi, u = seq[f]
            nuse = len(stages[si]["uses"])
            if gi == 0 and stages[si].get("head"):
                assert not pend, pend
                a(stages[si]["head"])
                covered = -1
            if gi == gstar and si + 1 < len(stages):
                emit(len(pend))
                for x in state.pop("defer", []):
                    a(x)
                if drain:
                    a("s_waitcnt lgkmcnt(0)")
                    covered = len(issued) - 1
                a(stages[si + 1]["bar"])
                pend.extend((None, x) for x in stages[si + 1].get("bar_pend", []))
                state["opened"] = si + 1
                collect(f + L - 1)
            def lastidx(ff):
                s_, _, uu = seq[ff]
                return max(len(issued) - 1 - issued[::-1].index(f"{s_}:{nm}") for nm in uu["need"])
            w = []
            if lastidx(f) > covered:
                tgt = lastidx(f)
                for ff in range(f + 1, min(f + wait_every, n_real)):
                    if seq[ff][0] != si:
                        break
                    try:
                        tgt = max(tgt, lastidx(ff))
                    except ValueError:
                        break
                n = len(issued) - 1 - tgt
                assert n <= 15, n
                w.append(f"lgkmcnt({n})")
                covered = tgt
            if u.get("vneed") is not None:
                w.insert(0, f"vmcnt({len(vis) - 1 - vis.index(u['vneed'])})")
            if u.get("vm") is not None:
                npv = sum(1 for nm_, t_ in pend if t_.strip().startswith("buffer_load"))
                w.insert(0, f"vmcnt({u['vm'] - npv})")
            if w:
                a("s_waitcnt " + " ".join(w))
            if u.get("before"):
                a(u["before"])
            if state.get("defer") and not pend:
                n_ = self.o.get("npre", 7)
                pend.extend((None, x) for x in state["defer"][:n_])
                state["defer"] = state["defer"][n_:]
            collect(f + L)
            if state.get("mix"):
                k_ = state.pop("mix")
                head_, rest_ = pend[:k_], pend[k_:]
                pend[:] = [x for pr in zip(head_, rest_) for x in pr] + head_[len(rest_):] + rest_[len(head_):]
            nm_ = len(u["mf"])
            for k, m in enumerate(u["mf"]):
                a(m)
                left = nm_ - k
                if drain and gi >= gstar:
                    left += sum(len(uu["mf"]) for uu in stages[si]["uses"][gi + 1:])
                    extra = 2 * (nuse - 1 - gi)
                    emit(-(-(len(pend) + extra) // left) if left > 1 else len(pend))
                else:
                    emit(-(-len(pend) // left))
            if u.get("after"):
                items = [x for x in u["after"].split("\n") if x.strip()]
                if gi == nuse - 1:
                    for x in items:
                        out(x)
                else:
                    assert not pend
                    pend.extend((None, x) for x in items)
                    state["mix"] = len(items)
            if gi == nuse - 1 and stages[si].get("tail"):
                a(stages[si]["tail"])

    def prologue(self):
        a = self.a
        a(f"""
        s_cmp_ge_u32 s2, 256
        s_cbranch_scc1 L_exit
        {"v_mov_b32 v254, 0" if self.stamps else ""}
        {"v_mov_b32 v255, 0" if self.stamps else ""}
        {"s_memrealtime s[98:99]" if self.o.get("calib") or "pc1" in self.o else ""}
        {"s_mov_b32 s94, 0" if "probe" in self.o or "pc1" in self.o else ""}
        s_load_dwordx16 s[4:19], s[0:1], 0
        s_load_dwordx8 s[20:27], s[0:1], 64
        v_and_b32 v1, 63, v0
        v_lshrrev_b32 v2, 6, v0
        s_and_b32 s{S_XCD}, s2, 7
        v_readfirstlane_b32 s{S_WAVE}, v2
        s_lshr_b32 s{S_J}, s2, 3
        s_waitcnt lgkmcnt(0)
        s_load_dword s{S_TAG}, s[{P_WS}:{P_WS+1}], 0
        """)
        self.srd(R_WS, P_WS, WS_USED)
        self.srd(R_X, P_X, 2048 * 1280)
        self.srd(R_W2, P_W2, 1536 * 4096)
        if self.stamps or self.o.get("dbg") or "probe" in self.o:
            a(f"s_cmp_lg_u32 s{S_WAVE}, 0\ns_cbranch_scc1 L_nost0")
            self.stamp(0, 4)
            a("L_nost0:")
        if self.o.get("tlb"):
            self.tlb_warm()
        if self.o.get("pf_code"):
            self.code_prefetch()
        if self.o.get("prio"):
            a(f"""
            s_sub_u32 s{S_T0}, s{S_WAVE}, 4
            s_cmp_lt_u32 s{S_T0}, 3
            s_cbranch_scc1 L_noprio
            s_setprio 3
            L_noprio:
            """)
        a(f"""
        s_lshr_b32 s{S_T0}, s{S_XCD}, 1
        s_lshl_b32 s{S_T0}, s{S_T0}, 3
        s_lshr_b32 s{S_ST}, s{S_J}, 2
        s_add_u32 s{S_ST}, s{S_ST}, s{S_T0}
        s_and_b32 s{S_T0}, s{S_XCD}, 1
        s_lshl_b32 s{S_T0}, s{S_T0}, 2
        s_and_b32 s{S_DTILE}, s{S_J}, 3
        s_add_u32 s{S_DTILE}, s{S_DTILE}, s{S_T0}
        s_cmp_lt_u32 s{S_XCD}, 4
        s_cbranch_scc1 L_roleB
        """)

    V_W2 = 240

    def f_perm(self):
        a = self.a
        a(f"s_lshl_b32 s{S_M}, s{S_DTILE}, 1\ns_add_u32 s{S_M}, s{S_M}, s{S_ST}\ns_and_b32 s{S_M}, s{S_M}, 7")
        self.perm_setup(S_M, 12, 8, S_PERM, self.o.get("rotF"))

    def w2_setup(self):
        a = self.a
        V = self.V_W2
        self.f_perm()
        a(f"""
        v_lshrrev_b32 v{V}, 3, v1
        v_lshrrev_b32 v{V+1}, 4, v1
        v_lshlrev_b32 v{V+1}, 1, v{V+1}
        v_and_b32 v{V+2}, 7, v1
        v_xor_b32 v{V+1}, v{V+1}, v{V+2}
        v_lshlrev_b32 v{V+1}, 4, v{V+1}
        v_lshl_add_u32 v{V}, v{V}, 12, v{V+1}
        v_add_u32 v{V+1}, {32768-1024}, v{V}
        v_add_u32 v{V+2}, {2*(32768-1024)}, v{V}
        v_add_u32 v{V+3}, {3*(32768-1024)}, v{V}
        s_sub_u32 s{S_T0}, s{S_WAVE}, 5
        s_lshl_b32 s{S_B}, s{S_T0}, 13
        s_lshl_b32 s{S_A}, s{S_T0}, 18
        s_lshl_b32 s{S_T0}, s{S_ST}, 7
        s_add_u32 s{S_A}, s{S_A}, s{S_T0}
        """)

    def w2_issue_at(self, p):
        a = self.a
        V = self.V_W2
        a(f"s_bfe_u32 s{S_T0}, s{S_PERM}, {(4 << 16) | (4 * p):#x}\ns_lshl_b32 s{S_T0}, s{S_T0}, 19\ns_add_u32 s{S_T0}, s{S_T0}, s{S_A}")
        for g in range(2):
            a(f"s_add_u32 m0, s{S_B}, {p*16384 + g*4096}")
            a(f"s_add_u32 s{S_T0}, s{S_T0}, {g*4*32768}")
            for i in range(4):
                a(f"buffer_load_dwordx4 v{V+i}, s[{R_W2}:{R_W2+3}], s{S_T0} offen offset:{i*1024} lds")

    def w2_half(self, g):
        a = self.a
        V = self.V_W2
        if g == 0:
            a(self.perm_next(S_K0, S_PERM, 128 * 4096) + f"s_add_u32 s{S_K0}, s{S_K0}, s{S_A}")
        a(f"s_add_u32 m0, s{S_B}, {g*4096}\ns_add_u32 s{S_T0}, s{S_K0}, {g*4*32768}")
        for i in range(4):
            a(f"buffer_load_dwordx4 v{V+i}, s[{R_W2}:{R_W2+3}], s{S_T0} offen offset:{i*1024} lds")
        if g == 1:
            a(f"s_add_u32 s{S_B}, s{S_B}, 16384")

    def w2_issue(self):
        a = self.a
        V = self.V_W2
        a(self.perm_next(S_T0, S_PERM, 128 * 4096))
        a(f"s_add_u32 s{S_T0}, s{S_T0}, s{S_A}")
        for g in range(2):
            a(f"s_add_u32 m0, s{S_B}, {g*4096}")
            a(f"s_add_u32 s{S_T0}, s{S_T0}, {g*4*32768}")
            for i in range(4):
                a(f"buffer_load_dwordx4 v{V+i}, s[{R_W2}:{R_W2+3}], s{S_T0} offen offset:{i*1024} lds")
        a(f"s_add_u32 s{S_B}, s{S_B}, 16384\ns_and_b32 s{S_B}, s{S_B}, 0x1ffff")

    def w2_prefill(self, n):
        if n == 0:
            return
        a = self.a
        lp = a.label("pf")
        a(f"s_mov_b32 s{S_C}, 0\n{lp}:")
        self.w2_issue()
        a(f"s_add_u32 s{S_C}, s{S_C}, 1\ns_cmp_lt_u32 s{S_C}, {n}\ns_cbranch_scc1 {lp}")

    def if_wave56(self):
        a = self.a
        skip = a.label("n56")
        a(f"s_sub_u32 s{S_T0}, s{S_WAVE}, 5\ns_cmp_lt_u32 s{S_T0}, 2\ns_cbranch_scc0 {skip}")
        return skip

    def role_a(self):
        a = self.a
        a(f"L_roleA:\ns_mov_b32 s{S_FROMA}, 1")
        a(f"s_sub_u32 s{S_MT}, s{S_ST}, 16\ns_mov_b32 s{S_HG}, s{S_DTILE}")
        a(f"s_cmp_ge_u32 s{S_WAVE}, 4\ns_cbranch_scc1 L_A_loader")
        ACC, XF, WF, VXA, VWA = 128, 96, 64, 4, 6
        if self.o.get("ta1") or self.o.get("ta2"):
            self.start_prefetch()
        self.a_thread_map()
        a(f"""
        v_and_b32 v16, 15, v1
        v_lshrrev_b32 v17, 4, v1
        s_lshl_b32 s{S_T0}, s{S_WAVE}, 5
        v_add_u32 v18, s{S_T0}, v16
        v_lshrrev_b32 v19, 1, v16
        v_xor_b32 v19, v17, v19
        v_lshlrev_b32 v19, 4, v19
        v_lshl_add_u32 v{VXA}, v18, 7, v19
        v_xor_b32 v{VXA+1}, 64, v{VXA}
        v_lshrrev_b32 v18, 2, v16
        v_lshl_add_u32 v19, v17, 3, v18
        v_and_b32 v20, 1, v17
        v_lshl_or_b32 v20, v20, 2, v18
        v_lshlrev_b32 v19, 9, v19
        v_lshl_add_u32 v19, v20, 5, v19
        v_and_b32 v20, 3, v16
        v_lshl_add_u32 v19, v20, 3, v19
        v_add_u32 v{VWA}, {A_WOFF}, v19
        """)
        for n in range(1, 8):
            a(f"v_xor_b32 v{VWA+n}, {n<<5}, v{VWA}")
        for r in range(120):
            a(f"v_mov_b32 v{ACC+r}, 0")
        a(f"s_mov_b32 s{S_A}, 0\ns_mov_b32 s{S_B}, 0\ns_mov_b32 s{S_C}, {A_SLOT}\ns_waitcnt lgkmcnt(0)")
        a(f"s_add_u32 s{S_TAG}, s{S_TAG}, {TAG_INC:#x}")

        RING = 6
        D = 6

        def mk_stage(bar, virtual=False, head=None, tail=None):
            uses = []
            for g in range(30):
                ks, n = divmod(g, 15)
                wb = WF + 4 * (g % RING)
                reads = []
                if g == 0:
                    for rb in range(2):
                        reads.append((f"x0{rb}", f"ds_read_b128 {vr(XF+4*rb,4)}, v{VXA} offset:{rb*2048}"))
                if g == 13:
                    for rb in range(2):
                        reads.append((f"x1{rb}", f"ds_read_b128 {vr(XF+8+4*rb,4)}, v{VXA+1} offset:{rb*2048}"))
                off = ks * 16384 + (n >> 3) * 256
                reads.append((f"w{g}a", f"ds_read_b64_tr_b16 {vr(wb,2)}, v{VWA+(n&7)} offset:{off}"))
                reads.append((f"w{g}b", f"ds_read_b64_tr_b16 {vr(wb+2,2)}, v{VWA+(n&7)} offset:{off+2048}"))
                need = [f"w{g}b", f"x{ks}1"]
                mf = []
                for rb in range(2):
                    acc = vr(ACC + (n * 2 + rb) * 4, 4)
                    xf = vr(XF + ks * 8 + rb * 4, 4)
                    wf = vr(wb, 4)
                    if n < 5:
                        mf.append(f"v_mfma_f32_16x16x32_bf16 {acc}, {wf}, {xf}, {acc}")
                    else:
                        mf.append(f"v_mfma_f32_16x16x32_bf16 {acc}, {xf}, {wf}, {acc}")
                uses.append(dict(reads=reads, need=need, mf=mf))
            return dict(uses=uses, bar=bar, virtual=virtual, head=head, tail=tail)

        adv = "s_barrier"
        pre = [f"s_add_u32 s{S_B}, s{S_B}, 1", f"s_cmp_eq_u32 s{S_B}, 3", f"s_cselect_b32 s{S_B}, 0, s{S_B}",
               f"s_cselect_b32 s{S_T0}, {(-2*A_SLOT) & 0xffffffff:#x}, s{S_C}"]
        pre += [f"v_add_u32 v{r}, s{S_T0}, v{r}" for r in range(VXA, VWA + 8)]
        tail = f"s_add_u32 s{S_A}, s{S_A}, 1\ns_cmp_lt_u32 s{S_A}, 10\ns_cbranch_scc1 L_A_loop"
        head = "L_A_loop:\n"
        bar0 = "s_barrier"
        self.uw_srd()
        if self.o.get("tw2") == 2:
            self.srd(R_M, P_WO, 640 * 1280)
            a(f"""
            v_lshlrev_b32 v252, 7, v1
            s_lshl_b32 s{S_T0}, s{S_MT}, 3
            s_add_u32 s{S_T0}, s{S_T0}, s{S_HG}
            s_lshl_b32 s{S_T0}, s{S_T0}, 2
            s_add_u32 s{S_T0}, s{S_T0}, s{S_WAVE}
            s_mul_i32 s{S_D}, s{S_T0}, {8192 if self.o.get("hW2") else 12288}
            s_add_u32 s{S_KST}, s{S_D}, 8192
            s_mul_i32 s{S_PAR}, s{S_T0}, 1664
            s_and_b32 s{S_M}, s{S_J}, 7
            s_add_u32 s{S_M}, s{S_M}, {self.o.get("tw2at", 1)}
            """)
            head += f"""
            s_cmp_lg_u32 s{S_A}, s{S_M}
            s_cbranch_scc1 L_A_nt2
            buffer_load_dword v253, v252, s[{R_W2}:{R_W2+3}], s{S_D} offen
            s_mov_b32 exec_hi, 0
            {"" if self.o.get("hW2") else f"buffer_load_dword v253, v252, s[{R_W2}:{R_W2+3}], s{S_KST} offen"}
            s_mov_b32 exec_lo, 0x1fff
            buffer_load_dword v253, v252, s[{R_M}:{R_M+3}], s{S_PAR} offen
            s_mov_b64 exec, -1
            L_A_nt2:
            """
        if "promA" in self.o:
            head += f"s_cmp_lg_u32 s{S_A}, {self.o['promA']}\ns_cbranch_scc1 L_A_npr\n" + self.pf_rest_plain() + "L_A_npr:\n"
        ta2 = self.o.get("ta2")
        if ta2 == 1:
            a(self.pf_rest())
        elif ta2 == 2:
            bar0 += "\n" + self.pf_rest()
        elif ta2:
            head += f"s_cmp_lg_u32 s{S_A}, {ta2-2}\ns_cbranch_scc1 L_A_npf\n" + self.pf_rest() + "L_A_npf:\n"
        self.pipeline([mk_stage(bar0, head=head, tail=tail), dict(mk_stage(adv, virtual=True), pre=pre)], 5, 30 - 3, wait_every=self.o.get('we', 2))
        self.stamp(2, 16)
        PK, VV, ONES, KVD, ZD = 16, 36, 56, 64, 116
        a("s_waitcnt lgkmcnt(0)\ns_nop 7")
        a(f"s_mov_b32 s{S_K0}, {LOG2E:#x}\ns_mov_b32 s{S_K0+1}, {LOG2E:#x}\ns_mov_b32 s{S_K0+2}, {f2u(1e-6):#x}")

        def phi(base, n, t):
            for i in range(0, n, 4):
                r = base + i
                a(f"v_pk_mul_f32 {vr(t,2)}, {vr(r,2)}, s[{S_K0}:{S_K0+1}]")
                a(f"v_pk_mul_f32 {vr(t+2,2)}, {vr(r+2,2)}, s[{S_K0}:{S_K0+1}]")
                for k in range(4):
                    a(f"v_exp_f32_e64 v{t+k}, v{t+k} clamp")
                for k in range(4):
                    a(f"v_max_f32 v{r+k}, s{S_K0+2}, v{r+k}")
                a(f"v_pk_add_f32 {vr(r,2)}, {vr(r,2)}, {vr(t,2)}")
                a(f"v_pk_add_f32 {vr(r+2,2)}, {vr(r+2,2)}, {vr(t+2,2)}")

        def pack(dst, src0, src1):
            a(f"v_cvt_pk_bf16_f32 v{dst}, v{src0}, v{src0+1}\nv_cvt_pk_bf16_f32 v{dst+1}, v{src0+2}, v{src0+3}")
            if src1 is None:
                a(f"v_mov_b32 v{dst+2}, 0\nv_mov_b32 v{dst+3}, 0")
            else:
                a(f"v_cvt_pk_bf16_f32 v{dst+2}, v{src1}, v{src1+1}\nv_cvt_pk_bf16_f32 v{dst+3}, v{src1+2}, v{src1+3}")

        for b in range(5):
            pack(VV + 4 * b, ACC + (10 + b) * 8, ACC + (10 + b) * 8 + 4)
        for k in range(4):
            a(f"v_mov_b32 v{ONES+k}, 0x3f803f80")
        phi(ACC + 40, 40, 60)
        for b in range(5):
            pack(PK + 4 * b, ACC + (5 + b) * 8, ACC + (5 + b) * 8 + 4)
        a("s_nop 1")
        ZD = ACC + 80
        blocks = [(x, y) for x in range(5) for y in range(5) if abs(x - y) <= 1]
        for (x, y) in blocks:
            a(f"v_mfma_f32_16x16x32_bf16 {vr(KVD+4*(2*x+y),4)}, {vr(PK+4*x,4)}, {vr(VV+4*y,4)}, 0")
        for x in range(5):
            a(f"v_mfma_f32_16x16x32_bf16 {vr(ZD+4*x,4)}, {vr(ONES,4)}, {vr(PK+4*x,4)}, 0")
        a(f"""
        s_mul_i32 s{S_T0}, s{S_WAVE}, {EXCH_ST}
        s_add_u32 s{S_T0}, s{S_T0}, {EXCH}
        v_lshlrev_b32 v60, 4, v1
        v_add_u32 v60, s{S_T0}, v60
        v_and_b32 v61, 15, v1
        v_lshlrev_b32 v61, 2, v61
        v_add_u32 v61, s{S_T0}, v61
        s_nop 3
        """)
        for i in range(13):
            a(f"ds_write_b128 v60, {vr(KVD+4*i,4)} offset:{i*1024}")
        for x in range(5):
            a(f"ds_write_b32 v61, v{ZD+4*x} offset:{13312+64*x}")
        self.stamp(10, 40)
        a("s_waitcnt lgkmcnt(0)\ns_barrier")
        self.stamp(11, 40)
        self.a_reduce_publish(64)
        self.stamp(12, 40)
        a("v_lshlrev_b32 v59, 4, v1\ns_barrier")
        self.stamp(14, 40)
        self.wot_preload(59)
        PQ = 16
        phi(ACC, 40, 60)
        for ts in range(3):
            for rb in range(2):
                pack(PQ + (ts * 2 + rb) * 4, ACC + (2 * ts * 2 + rb) * 4, None if ts == 2 else ACC + ((2 * ts + 1) * 2 + rb) * 4)
        self.f_setup()
        a("s_barrier")
        a(f"""
        v_and_b32 v63, 15, v1
        v_lshlrev_b32 v63, 2, v63
        s_lshl_b32 s{S_T0}, s{S_MT}, 7
        s_lshl_b32 s{S_T0+1}, s{S_WAVE}, 5
        s_add_u32 s{S_T0}, s{S_T0}, s{S_T0+1}
        s_lshl_b32 s{S_T0}, s{S_T0}, 2
        s_add_u32 s{S_T0}, s{S_T0}, {G_OFF}
        buffer_load_dword v62, v63, s[{R_WS}:{R_WS+3}], s{S_T0} offen sc1
        buffer_load_dword v61, v63, s[{R_WS}:{R_WS+3}], s{S_T0} offen offset:64 sc1
        """)
        self.a_gather(64)
        a("s_waitcnt lgkmcnt(0)\ns_barrier")
        self.stamp(4, 40)
        FR = 64
        a("v_lshlrev_b32 v60, 4, v1\nv_add_u32 v60, " + str(KVT) + ", v60")
        used = [0, 2, 3, 4, 5, 7, 8, 9, 10, 11, 12, 13]
        for f in used:
            a(f"ds_read_b128 {vr(FR+4*f,4)}, v60 offset:{f*1024}")
        NUM, DEN = 128, 120
        kts = {0: [0], 1: [0, 1], 2: [0, 1], 3: [1, 2], 4: [1, 2]}
        a(f"""
        v_lshrrev_b32 v40, 4, v1
        v_cmp_gt_u32 s[{S_MSK}:{S_MSK+1}], 1, v40
        v_cmp_gt_u32 s[{S_MSK+2}:{S_MSK+3}], 2, v40
        v_cmp_gt_u32 s[{S_MSK+4}:{S_MSK+5}], 3, v40
        s_waitcnt lgkmcnt(0)
        """)
        for rb in range(2):
            for ts in range(3):
                c = "0" if ts == 0 else vr(DEN + 4 * rb, 4)
                a(f"v_mfma_f32_16x16x32_bf16 {vr(DEN+4*rb,4)}, {vr(FR+4*(11+ts),4)}, {vr(PQ+(ts*2+rb)*4,4)}, {c}")
        for rb in range(2):
            for b in range(5):
                for i, ts in enumerate(kts[b]):
                    d = vr(NUM + (rb * 5 + b) * 4, 4)
                    c = "0" if i == 0 else d
                    a(f"v_mfma_f32_16x16x32_bf16 {d}, {vr(FR+4*(2*b+ts),4)}, {vr(PQ+(ts*2+rb)*4,4)}, {c}")
        for rb in range(2):
            for h in range(4):
                a(f"v_add_f32 v{DEN+4*rb+h}, s{S_K0+2}, v{DEN+4*rb+h}")
        for rb in range(2):
            for h in range(4):
                a(f"v_rcp_f32 v{DEN+4*rb+h}, v{DEN+4*rb+h}")
        a("s_nop 0")
        gv = {0: 62, 1: 61}
        for rb in range(2):
            for h in range(4):
                a(f"v_mul_f32 v{DEN+4*rb+h}, v{gv[rb]}, v{DEN+4*rb+h}")
        a(f"""
        s_lshl_b32 s{S_T0}, s{S_MT}, 3
        s_lshl_b32 s{S_T0+1}, s{S_WAVE}, 1
        s_add_u32 s{S_T0}, s{S_T0}, s{S_T0+1}
        s_mul_i32 s{S_T0}, s{S_T0}, {GO_ST}
        s_add_u32 s{S_T0}, s{S_T0}, {GO}
        s_lshl_b32 s{S_T0+1}, s{S_HG}, 11
        s_add_u32 s{S_T0+1}, s{S_T0+1}, s{S_T0}
        s_lshl_b32 s{S_T0+2}, s{S_HG}, 9
        s_add_u32 s{S_T0+2}, s{S_T0+2}, s{S_T0}
        s_add_u32 s{S_T0+2}, s{S_T0+2}, 16384
        v_lshlrev_b32 v40, 4, v1
        v_lshlrev_b32 v41, 3, v1
        """)
        for rb in range(2):
            d = DEN + 4 * rb
            a(f"v_cndmask_b32 v44, v{d+1}, v{d}, s[{S_MSK}:{S_MSK+1}]")
            a(f"v_cndmask_b32 v45, v{d+2}, v{d+1}, s[{S_MSK+2}:{S_MSK+3}]")
            a(f"v_cndmask_b32 v46, v{d+3}, v{d+2}, s[{S_MSK+4}:{S_MSK+5}]")
            sc = [d, 44, 45, 46, d + 3]
            for b in range(5):
                for k in range(4):
                    r = NUM + (rb * 5 + b) * 4 + k
                    a(f"v_mul_f32 v{r}, v{sc[b]}, v{r}")
            o = 16 + rb * 12
            n0 = NUM + rb * 20
            pack(o, n0, n0 + 4)
            pack(o + 4, n0 + 8, n0 + 12)
            a(f"v_cvt_pk_bf16_f32 v{o+8}, v{n0+16}, v{n0+17}\nv_cvt_pk_bf16_f32 v{o+9}, v{n0+18}, v{n0+19}")
            a(f"buffer_store_dwordx4 {vr(o,4)}, v40, s[{R_WS}:{R_WS+3}], s{S_T0+1} offen sc1")
            a(f"buffer_store_dwordx4 {vr(o+4,4)}, v40, s[{R_WS}:{R_WS+3}], s{S_T0+1} offen offset:1024 sc1")
            a(f"buffer_store_dwordx2 {vr(o+8,2)}, v41, s[{R_WS}:{R_WS+3}], s{S_T0+2} offen sc1")
            if rb == 0:
                a(f"s_add_u32 s{S_T0+1}, s{S_T0+1}, {GO_ST}\ns_add_u32 s{S_T0+2}, s{S_T0+2}, {GO_ST}")
        self.stamp(5, 40)
        a("s_branch L_F_comp")

        a("L_A_loader:")
        VX, VW = 4, 8
        self.srd(R_W, P_WQKV, 640 * 3840)
        a(f"""
        s_sub_u32 s{S_D}, s{S_WAVE}, 4
        v_lshrrev_b32 v16, 3, v1
        v_lshrrev_b32 v17, 4, v1
        v_and_b32 v18, 7, v1
        v_xor_b32 v17, v17, v18
        v_lshlrev_b32 v17, 4, v17
        v_mul_u32_u24 v16, 1280, v16
        v_add_u32 v{VX}, v16, v17
        v_xor_b32 v18, 64, v{VX}
        v_add_u32 v{VX+1}, {8*1280-1024}, v18
        v_add_u32 v{VX+2}, {2*(8*1280-1024)}, v{VX}
        v_add_u32 v{VX+3}, {3*(8*1280-1024)}, v18
        s_lshl_b32 s{S_T0}, s{S_MT}, 7
        s_lshl_b32 s{S_T0+1}, s{S_D}, 5
        s_add_u32 s{S_T0}, s{S_T0}, s{S_T0+1}
        s_mul_i32 s{S_A}, s{S_T0}, 1280
        s_lshl_b32 s{S_C}, s{S_D}, 12
        """)
        def issue_x():
            a(f"s_mov_b32 m0, s{S_C}\ns_nop 0")
            for i in range(4):
                a(f"buffer_load_dwordx4 v{VX+i}, s[{R_X}:{R_X+3}], s{S_A} offen offset:{i*1024} lds")
            a(f"s_add_u32 s{S_A}, s{S_A}, 128")

        def issue_w():
            for g in range(2):
                a(f"s_lshl_b32 s{S_T0}, s{S_D}, 12\ns_add_u32 s{S_T0}, s{S_T0}, s{S_C}\ns_add_u32 m0, s{S_T0}, {A_WOFF + g*4096}\ns_nop 0")
                for i in range(4):
                    a(f"buffer_load_dwordx4 v{VW+4*g+i}, s[{R_W}:{R_W+3}], s{S_B} offen offset:{i*1024} lds")
            a(f"s_add_u32 s{S_B}, s{S_B}, {64*3840}")

        def next_slot():
            a(f"s_add_u32 s{S_C}, s{S_C}, {A_SLOT}\ns_cmp_ge_u32 s{S_C}, {3*A_SLOT}\ns_cselect_b32 s{S_T0}, {3*A_SLOT}, 0\ns_sub_u32 s{S_C}, s{S_C}, s{S_T0}")

        issue_x()
        a(f"""
        v_lshrrev_b32 v16, 5, v1
        v_bfe_u32 v17, v1, 1, 4
        v_and_b32 v18, 1, v1
        v_lshlrev_b32 v18, 4, v18
        v_mul_u32_u24 v19, 3840, v16
        v_add_u32 v18, v18, v19
        """)
        for i in (0, 1, 4, 5):
            sig = (2 * (i & 1)) | ((i >> 2) << 2)
            a(f"""
            v_or_b32 v19, {sig}, v16
            v_xor_b32 v19, v17, v19
            v_min_u32 v19, 14, v19
            v_mul_u32_u24 v20, 13, v19
            v_lshrrev_b32 v20, 6, v20
            v_mul_u32_u24 v20, 1120, v20
            v_lshl_add_u32 v19, v19, 5, v20
            v_add_u32 v19, v19, v18
            v_add_u32 v{VW+i}, {2*i*3840 - (i&3)*1024}, v19
            v_add_u32 v{VW+i+2}, {2*(i+2)*3840 - ((i+2)&3)*1024}, v19
            """)
        a(f"""
        s_mul_i32 s{S_B}, s{S_HG}, 160
        s_mul_i32 s{S_T0}, s{S_D}, {16*3840}
        s_add_u32 s{S_B}, s{S_B}, s{S_T0}
        """)
        issue_w()
        for _ in range(2):
            next_slot()
            issue_x()
            issue_w()
        a(f"s_waitcnt lgkmcnt(0)\ns_add_u32 s{S_TAG}, s{S_TAG}, {TAG_INC:#x}")
        a("s_waitcnt vmcnt(24)\ns_barrier")
        self.stamp(1, 16)
        a(f"s_mov_b32 s{S_CNT}, 1\nL_A_lloop:")
        a("s_waitcnt vmcnt(12)\ns_barrier")
        self.stamp(16, 16, dyn=S_CNT)
        next_slot()
        issue_x()
        issue_w()
        a(f"s_add_u32 s{S_CNT}, s{S_CNT}, 1\ns_cmp_le_u32 s{S_CNT}, 7\ns_cbranch_scc1 L_A_lloop")
        tw = 3 if self.o.get("tw2") == 1 else 0
        a(f"s_waitcnt vmcnt(12)\ns_barrier")
        if tw:
            self.w2_touch()
        self.stamp(24, 16)
        self.w2_setup()
        self.a_thread_map()
        a(f"s_waitcnt vmcnt({tw})\ns_barrier")
        self.stamp(25, 16)
        eA = self.o.get("eA", 2)
        early = [3, 4, 5, 0, 1, 2]
        nE = self.o.get("nE", 6)
        sk = self.if_wave56()
        for p in early[:eA]:
            self.w2_issue_at(p)
        a(f"{sk}:\ns_barrier")
        self.stamp(26, 16)
        sk = self.if_wave56()
        for p in early[eA:nE]:
            self.w2_issue_at(p)
        a(f"{sk}:")
        a(f"s_cmp_eq_u32 s{S_WAVE}, 7\ns_cbranch_scc1 L_A_poller")
        a("s_barrier")
        self.a_reduce_publish(64)
        self.stamp(15, 40)
        a("s_barrier")
        self.kvt_zero()
        skip = self.if_wave56()
        for p in early[nE:] + [6, 7]:
            self.w2_issue_at(p)
        a(f"s_mov_b32 s{S_PERM}, s{S_PERM+1}")
        a("s_barrier")
        self.a_gather(64)
        a("s_waitcnt lgkmcnt(0)\ns_barrier")
        a("s_branch L_F_loader")
        a(f"{skip}:\ns_barrier")
        self.a_gather(64)
        a("s_waitcnt lgkmcnt(0)\ns_barrier")
        a("s_branch L_F_u4")
        a("L_A_poller:")
        a(f"""
        s_mul_i32 s{S_T0}, s{S_DTILE}, {FS}
        s_add_u32 s{S_T0}, s{S_T0}, {F_WOT}
        v_mov_b32 v16, s{S_T0}
        v_and_b32 v17, 3, v1
        s_lshl_b32 s{S_T0}, s{S_MT}, 2
        v_add_u32 v17, s{S_T0}, v17
        v_mul_u32_u24 v17, {FS}, v17
        v_add_u32 v17, {F_LN}, v17
        v_cmp_gt_u32 vcc, 32, v1
        s_nop 1
        v_cndmask_b32 v16, v17, v16, vcc
        """)
        self.poll([16], 18)
        self.stamp(13, 16)
        a("s_barrier\ns_barrier")
        self.kvt_zero()
        self.stamp(3, 16)
        a("s_barrier\ns_barrier")
        a("s_branch L_F_poller")
        self.a_gather_body(64)

    def kvt_zero(self):
        a = self.a
        a(f"v_lshlrev_b32 v16, 4, v1\ns_lshl_b32 s{S_T0}, s{S_D}, 12\ns_add_u32 s{S_T0}, s{S_T0}, {KVT}\nv_add_u32 v16, s{S_T0}, v16")
        a("v_mov_b32 v20, 0\nv_mov_b32 v21, 0\nv_mov_b32 v22, 0\nv_mov_b32 v23, 0")
        for i in range(4):
            a(f"ds_write_b128 v16, v[20:23] offset:{i*1024}")
        a("s_waitcnt lgkmcnt(0)")

    def start_prefetch(self):
        a = self.a
        self.srd(R_W, P_WQKV, 640 * 3840)
        a(f"""
        s_lshl_b32 s{S_T0}, s{S_J}, 2
        s_add_u32 s{S_T0}, s{S_T0}, s{S_WAVE}
        v_lshrrev_b32 v16, 2, v1
        v_and_b32 v17, 3, v1
        v_mul_u32_u24 v16, 1280, v16
        v_lshl_add_u32 v16, v17, 7, v16
        s_lshr_b32 s{S_T0+2}, s{S_MT}, 3
        s_lshl_b32 s{S_T0+2}, s{S_T0+2}, 7
        s_add_u32 s{S_T0+2}, s{S_T0+2}, s{S_T0}
        s_mul_i32 s{S_DT}, s{S_T0+2}, {8*1280}
        v_lshrrev_b32 v19, 4, v1
        v_and_b32 v17, 15, v1
        v_min_u32 v17, 14, v17
        v_mul_u32_u24 v18, 13, v17
        v_lshrrev_b32 v18, 6, v18
        v_mul_u32_u24 v18, 640, v18
        v_lshl_add_u32 v18, v17, 7, v18
        v_mul_u32_u24 v19, 3840, v19
        v_add_u32 v112, v18, v19
        s_lshr_b32 s{S_T0+2}, s{S_HG}, 2
        s_mul_i32 s{S_T0+2}, s{S_T0+2}, 640
        s_mul_i32 s{S_FT}, s{S_T0}, {2*3840}
        s_add_u32 s{S_FT}, s{S_FT}, s{S_T0+2}
        """)
        if self.o.get("ta1"):
            a(f"""
            s_mov_b32 exec_hi, 0
            buffer_load_dword v253, v112, s[{R_W}:{R_W+3}], s{S_FT} offen {self.nt('nta')}
            buffer_load_dword v253, v16, s[{R_X}:{R_X+3}], s{S_DT} offen {self.nt('ntax')}
            s_mov_b32 exec_hi, -1
            """)
        a(f"""
        s_mul_i32 s{S_FT}, s{S_T0}, {3*3840}
        s_add_u32 s{S_FT}, s{S_FT}, s{S_T0+2}
        s_add_u32 s{S_FT}, s{S_FT}, {256*3840}
        v_lshrrev_b32 v16, 3, v1
        v_and_b32 v17, 7, v1
        v_min_u32 v17, 5, v17
        v_mul_u32_u24 v16, 1280, v16
        v_lshl_add_u32 v113, v17, 7, v16
        s_add_u32 s{S_DT}, s{S_DT}, 512
        """)

    def pf_rest_plain(self):
        return f"""s_waitcnt vmcnt(0)
        s_mov_b32 exec_hi, 0xffff
        buffer_load_dword v253, v112, s[{R_W}:{R_W+3}], s{S_FT} offen
        s_mov_b32 exec_hi, -1
        buffer_load_dword v253, v113, s[{R_X}:{R_X+3}], s{S_DT} offen
        """

    def pf_rest(self):
        return f"""s_mov_b32 exec_hi, 0xffff
        buffer_load_dword v253, v112, s[{R_W}:{R_W+3}], s{S_FT} offen {self.nt('nta')}
        s_mov_b32 exec_hi, -1
        buffer_load_dword v253, v113, s[{R_X}:{R_X+3}], s{S_DT} offen {self.nt('ntax')}
        """

    def w2_touch(self):
        a = self.a
        self.srd(R_W2, P_W2, 1536 * 4096)
        a(f"""
        v_lshlrev_b32 v48, 7, v1
        s_lshl_b32 s{S_T0}, s{S_MT}, 3
        s_add_u32 s{S_T0}, s{S_T0}, s{S_HG}
        s_lshl_b32 s{S_T0}, s{S_T0}, 2
        s_add_u32 s{S_T0}, s{S_T0}, s{S_D}
        s_mul_i32 s{S_T0}, s{S_T0}, 12288
        buffer_load_dword v253, v48, s[{R_W2}:{R_W2+3}], s{S_T0} offen
        s_add_u32 s{S_T0}, s{S_T0}, 8192
        s_mov_b32 exec_hi, 0
        buffer_load_dword v253, v48, s[{R_W2}:{R_W2+3}], s{S_T0} offen
        """)
        self.srd(R_P, P_WO, 640 * 1280)
        a(f"""
        s_lshl_b32 s{S_T0}, s{S_MT}, 3
        s_add_u32 s{S_T0}, s{S_T0}, s{S_HG}
        s_lshl_b32 s{S_T0}, s{S_T0}, 2
        s_add_u32 s{S_T0}, s{S_T0}, s{S_D}
        s_mul_i32 s{S_T0}, s{S_T0}, 1664
        s_mov_b32 exec_lo, 0x1fff
        buffer_load_dword v253, v48, s[{R_P}:{R_P+3}], s{S_T0} offen
        s_mov_b64 exec, -1
        """)

    def tlb_warm(self):
        a = self.a
        mode = self.o["tlb"]
        wv = self.o.get("tlbw", 3)
        a(f"s_cmp_lg_u32 s{S_WAVE}, {wv}\ns_cbranch_scc1 L_notlb")
        self.srd(R_OUT, P_OUT, 2048 * 1280)
        self.srd(R_M, P_B2, 4096)
        self.srd(R_P, P_WO, 640 * 1280)
        self.srd(R_W, P_W1, 2048 * 3072)
        if mode == 1:
            a("v_lshlrev_b32 v4, 20, v1\nv_min_u32 v4, 0xf00000, v4\ns_mov_b64 exec, 0xffff")
            so = "0"
        else:
            a(f"v_lshlrev_b32 v4, 21, v1\ns_lshl_b32 s{S_T0}, s{S_J}, 16\ns_mov_b64 exec, 0x1f")
            so = f"s{S_T0}"
        for r in (R_WS, R_W2, R_OUT, R_W, R_P, R_M):
            a(f"buffer_load_dword v253, v4, s[{r}:{r+3}], {so} offen sc1")
        a("s_mov_b64 exec, -1\nL_notlb:")

    def code_prefetch(self):
        a = self.a
        a(f"""
        s_cmp_lg_u32 s{S_WAVE}, 3
        s_cbranch_scc1 L_nocpf
        s_cmp_ge_u32 s{S_J}, 5
        s_cbranch_scc1 L_nocpf
        s_getpc_b64 s[{S_T0}:{S_T0+1}]
        L_pcref:
        s_lshl_b32 s{S_T0+2}, s{S_J}, 13
        v_lshlrev_b32 v4, 7, v1
        v_add_u32 v4, s{S_T0+2}, v4
        v_min_u32 v4, L_end-L_pcref, v4
        global_load_dword v253, v4, s[{S_T0}:{S_T0+1}]
        L_nocpf:
        """)

    def a_thread_map(self):
        a = self.a
        a(f"""
        v_mul_u32_u24 v16, 625, v0
        v_lshrrev_b32 v16, 16, v16
        v_mul_u32_u24 v17, 105, v16
        v_sub_u32 v17, v0, v17
        v_mul_u32_u24 v19, 205, v17
        v_lshrrev_b32 v19, 12, v19
        v_mul_u32_u24 v18, 20, v19
        v_cmp_lt_u32 vcc, 99, v17
        v_sub_u32 v18, v17, v18
        s_nop 0
        v_cndmask_b32 v19, v19, v18, vcc
        v_mad_u32_u24 v19, v16, 5, v19
        v_mad_u32_u24 v20, v16, 20, v18
        v_lshrrev_b32 v21, 2, v19
        v_and_b32 v22, 3, v19
        v_lshrrev_b32 v23, 4, v20
        v_and_b32 v20, 15, v20
        v_lshl_add_u32 v20, v22, 4, v20
        v_lshl_add_u32 v2, v21, 1, v23
        v_lshlrev_b32 v2, 6, v2
        v_add_u32 v2, v2, v20
        v_lshlrev_b32 v2, 4, v2
        v_lshlrev_b32 v3, 4, v19
        v_add_u32 v3, 13312, v3
        v_cmp_lt_u32 vcc, 99, v17
        v_lshrrev_b32 v24, 1, v21
        v_and_b32 v21, 1, v21
        v_cndmask_b32 v2, v2, v3, vcc
        v_lshl_add_u32 v3, v23, 1, v24
        v_add_u32 v24, 11, v24
        v_lshl_add_u32 v22, v22, 4, v16
        v_cndmask_b32 v3, v3, v24, vcc
        v_cndmask_b32 v20, v20, v22, vcc
        v_lshl_add_u32 v3, v3, 6, v20
        v_lshlrev_b32 v3, 4, v3
        v_lshl_add_u32 v3, v21, 3, v3
        v_add_u32 v3, {KVT}, v3
        v_mov_b32 v25, 2
        v_cndmask_b32 v25, 1, v25, vcc
        v_mov_b32 v16, 420
        v_cmp_gt_u32 vcc, v16, v0
        v_lshlrev_b32 v14, 4, v0
        s_nop 0
        v_cndmask_b32 v15, 0, v25, vcc
        v_cndmask_b32 v2, 0, v2, vcc
        v_add_u32 v2, {EXCH}, v2
        """)

    def a_reduce_publish(self, T):
        a = self.a
        for w in range(4):
            a(f"ds_read_b128 {vr(T+4*w,4)}, v2 offset:{w*EXCH_ST}")
        a(f"""
        s_lshl_b32 s{S_T0}, s{S_HG}, 4
        s_add_u32 s{S_T0}, s{S_T0}, s{S_MT}
        s_mul_i32 s{S_T0}, s{S_T0}, {KVP_ST}
        s_add_u32 s{S_T0}, s{S_T0}, {KVP}
        v_cmp_ne_u32 vcc, 0, v15
        s_waitcnt lgkmcnt(0)
        v_pk_add_f32 {vr(T,2)}, {vr(T,2)}, {vr(T+4,2)}
        v_pk_add_f32 {vr(T+2,2)}, {vr(T+2,2)}, {vr(T+6,2)}
        v_pk_add_f32 {vr(T+8,2)}, {vr(T+8,2)}, {vr(T+12,2)}
        v_pk_add_f32 {vr(T+10,2)}, {vr(T+10,2)}, {vr(T+14,2)}
        v_pk_add_f32 {vr(T,2)}, {vr(T,2)}, {vr(T+8,2)}
        v_pk_add_f32 {vr(T+2,2)}, {vr(T+2,2)}, {vr(T+10,2)}
        v_mov_b32_sdwa v{T}, s{S_TAG} dst_sel:BYTE_0 dst_unused:UNUSED_PRESERVE src0_sel:BYTE_0
        v_mov_b32_sdwa v{T+1}, s{S_TAG} dst_sel:BYTE_0 dst_unused:UNUSED_PRESERVE src0_sel:BYTE_1
        v_mov_b32_sdwa v{T+2}, s{S_TAG} dst_sel:BYTE_0 dst_unused:UNUSED_PRESERVE src0_sel:BYTE_2
        v_mov_b32_sdwa v{T+3}, s{S_TAG} dst_sel:BYTE_0 dst_unused:UNUSED_PRESERVE src0_sel:BYTE_3
        s_mov_b64 exec, vcc
        buffer_store_dwordx4 {vr(T,4)}, v14, s[{R_WS}:{R_WS+3}], s{S_T0} offen sc1
        s_mov_b64 exec, -1
        """)

    S_RET = 88

    def a_gather(self, T):
        self.a(f"s_call_b64 s[{self.S_RET}:{self.S_RET+1}], L_gather")

    def a_gather_body(self, T):
        a = self.a
        MK = S_T0 + 4
        a("L_gather:")
        a(f"s_mul_i32 s{S_T0+1}, s{S_HG}, {16*KVP_ST}\ns_add_u32 s{S_T0+1}, s{S_T0+1}, {KVP}")
        a(f"v_cmp_ne_u32 s[{MK}:{MK+1}], 0, v15\ns_mov_b32 s{S_CNT}, 0\ns_lshl_b32 s{S_T0+2}, s{S_MT}, 1\ns_mov_b64 exec, s[{MK}:{MK+1}]")

        def pair(m):
            a(f"s_add_u32 s{S_T0}, s{S_T0+2}, {m}\ns_and_b32 s{S_T0}, s{S_T0}, 15\ns_mul_i32 s{S_T0}, s{S_T0}, {KVP_ST}\ns_add_u32 s{S_T0}, s{S_T0}, s{S_T0+1}")
            a(f"buffer_load_dwordx4 {vr(T+4*m,4)}, v14, s[{R_WS}:{R_WS+3}], s{S_T0} offen sc1\ns_add_u32 s{S_T0}, s{S_T0}, {KVP_ST}")
            a(f"buffer_load_dwordx4 {vr(T+4*m+4,4)}, v14, s[{R_WS}:{R_WS+3}], s{S_T0} offen sc1")
        for m in range(0, 16, 2):
            pair(m)
        for m in range(0, 16, 2):
            a(f"s_waitcnt vmcnt({14-m})\nL_gchk{m}:")
            for q in range(8):
                a(f"v_cmpx_eq_u32_sdwa vcc, v{T+4*m+q}, s{S_TAG} src0_sel:BYTE_0 src1_sel:BYTE_{q & 3}")
            a(f"""
            s_add_u32 s{S_CNT}, s{S_CNT}, 1
            s_cmp_eq_u64 exec, s[{MK}:{MK+1}]
            s_mov_b64 exec, s[{MK}:{MK+1}]
            s_cbranch_scc1 L_gok{m}
            s_cmp_ge_u32 s{S_CNT}, {SPIN_LIMIT}
            s_cbranch_scc1 L_gok{m}
            """)
            pair(m)
            a(f"s_waitcnt vmcnt(0)\ns_branch L_gchk{m}\nL_gok{m}:")
            for h in (0, 2):
                a(f"v_pk_add_f32 {vr(T+4*m+h,2)}, {vr(T+4*m+h,2)}, {vr(T+4*(m+1)+h,2)}")
            if m >= 2:
                for h in (0, 2):
                    a(f"v_pk_add_f32 {vr(T+h,2)}, {vr(T+h,2)}, {vr(T+4*m+h,2)}")
        a("s_mov_b64 exec, -1")
        a(f"""
        v_cvt_pk_bf16_f32 v{T}, v{T}, v{T+1}
        v_cvt_pk_bf16_f32 v{T+1}, v{T+2}, v{T+3}
        v_cmp_ne_u32 vcc, 0, v15
        v_cmp_eq_u32 s[{S_T0}:{S_T0+1}], 2, v15
        s_nop 1
        s_mov_b64 exec, vcc
        ds_write_b64 v3, {vr(T,2)}
        s_mov_b64 exec, s[{S_T0}:{S_T0+1}]
        ds_write_b64 v3, {vr(T,2)} offset:64
        ds_write_b64 v3, {vr(T,2)} offset:128
        ds_write_b64 v3, {vr(T,2)} offset:192
        s_mov_b64 exec, -1
        s_setpc_b64 s[{self.S_RET}:{self.S_RET+1}]
        """)

    def role_b(self):
        a = self.a
        a(f"L_roleB:\ns_mov_b32 s{S_FROMA}, 0")
        XR, B1R, GR, XS = 16, 36, 64, 84
        VPF = 8
        a(f"s_cmp_ge_u32 s{S_J}, 16\ns_cbranch_scc1 L_B_pfrole")
        a(f"""
        s_lshl_b32 s{S_KST}, s{S_XCD}, 4
        s_add_u32 s{S_KST}, s{S_KST}, s{S_J}
        s_lshl_b32 s{S_T0}, s{S_KST}, 3
        s_add_u32 s{S_T0}, s{S_T0}, s{S_WAVE}
        s_mul_i32 s{S_T0}, s{S_T0}, {4*1280}
        v_lshrrev_b32 v2, 4, v1
        v_and_b32 v3, 15, v1
        v_lshlrev_b32 v3, 4, v3
        v_mul_u32_u24 v4, 1280, v2
        v_add_u32 v4, v4, v3
        """)
        for c in ((2, 3, 4, 0, 1) if self.o.get("xord") else range(5)):
            a(f"buffer_load_dwordx4 {vr(XR+4*c,4)}, v4, s[{R_X}:{R_X+3}], s{S_T0} offen offset:{c*256} {self.nt('ntx')}")
        self.srd(R_M, P_GATE, 1280)
        for c in range(5):
            a(f"buffer_load_dwordx4 {vr(GR+4*c,4)}, v3, s[{R_M}:{R_M+3}], 0 offen offset:{c*256}")

        def common_setup():
            a(f"""
            s_mul_i32 s{S_M}, s{S_J}, 205
            s_lshr_b32 s{S_M}, s{S_M}, 10
            s_mul_i32 s{S_DT}, s{S_M}, 5
            s_sub_u32 s{S_DT}, s{S_J}, s{S_DT}
            s_mul_i32 s{S_FT}, s{S_XCD}, 6
            s_add_u32 s{S_FT}, s{S_FT}, s{S_M}
            """)
            self.srd(R_OUT, P_B1, 3072)
            a(f"v_lshrrev_b32 v5, 4, v1\nv_lshlrev_b32 v5, 3, v5\ns_lshl_b32 s{S_T0}, s{S_FT}, 7")
            for b in range(4):
                a(f"buffer_load_dwordx2 {vr(B1R+2*b,2)}, v5, s[{R_OUT}:{R_OUT+3}], s{S_T0} offen offset:{b*32}")
            a(f"""
            v_lshrrev_b32 v12, 3, v1
            v_lshrrev_b32 v13, 4, v1
            v_lshlrev_b32 v13, 1, v13
            v_and_b32 v14, 7, v1
            v_xor_b32 v13, v13, v14
            v_lshlrev_b32 v13, 4, v13
            v_mul_u32_u24 v12, 3072, v12
            v_add_u32 v{VPF}, v12, v13
            v_add_u32 v{VPF+1}, {8*3072-1024}, v{VPF}
            v_add_u32 v{VPF+2}, {2*(8*3072-1024)}, v{VPF}
            v_add_u32 v{VPF+3}, {3*(8*3072-1024)}, v{VPF}
            """)
            self.perm_setup(S_M, 16, 6, S_PERM, self.o.get("rotB"))
            a(f"""
            s_and_b32 s{S_T0}, s{S_WAVE}, 3
            s_lshl_b32 s{S_B}, s{S_T0}, 12
            s_mul_i32 s{S_A}, s{S_T0}, {32*3072}
            s_lshl_b32 s{S_T0}, s{S_FT}, 7
            s_add_u32 s{S_A}, s{S_A}, s{S_T0}
            """)

        def w1_at(p):
            a(f"s_bfe_u32 s{S_T0}, s{S_PERM}, {(4 << 16) | (4 * p):#x}\ns_mul_i32 s{S_T0}, s{S_T0}, {128*3072}")
            a(f"s_add_u32 m0, s{S_B}, {p*16384}\ns_add_u32 s{S_T0}, s{S_T0}, s{S_A}")
            for i in range(4):
                a(f"buffer_load_dwordx4 v{VPF+i}, s[{R_W}:{R_W+3}], s{S_T0} offen offset:{i*1024} lds")
        early = [3, 4, 5, 6, 7][:self.o.get("early", 0)]

        def wq_touch():
            self.srd(R_M, P_WQKV, 640 * 3840)
            a(f"""
            v_lshlrev_b32 v6, 7, v1
            s_mul_i32 s{S_T0+1}, s{S_T0+1}, 2880
            s_add_u32 s{S_T0+1}, s{S_T0+1}, {256*3840}
            s_mov_b64 exec, 0xffffff
            buffer_load_dword v253, v6, s[{R_M}:{R_M+3}], s{S_T0+1} offen
            s_mov_b64 exec, -1
            """)

        self.srd(R_W, P_W1, 2048 * 3072)
        common_setup()
        a("v_mov_b32 v124, 0\nv_mov_b32 v125, 0\nv_mov_b32 v126, 0x3f803f80\ns_waitcnt vmcnt(4)")
        self.stamp(11, 44)
        if early:
            a(f"s_cmp_lt_u32 s{S_WAVE}, 4\ns_cbranch_scc1 L_B_noearly")
            for p in early:
                w1_at(p)
            a("L_B_noearly:")
        for c in range(20):
            a(f"v_dot2c_f32_bf16 v124, v{XR+c}, v126\nv_lshlrev_b32 v{XS+2*c}, 16, v{XR+c}")
            a(f"v_dot2c_f32_bf16 v125, v{XR+c}, v{GR+c}\nv_and_b32 v{XS+2*c+1}, 0xffff0000, v{XR+c}")
        a("s_nop 1")

        def reduce16(regs):
            for mode in ("quad_perm:[1,0,3,2]", "quad_perm:[2,3,0,1]", "row_half_mirror", "row_mirror"):
                for r in regs:
                    a(f"v_add_f32_dpp v{r}, v{r}, v{r} {mode} row_mask:0xf bank_mask:0xf")
                a("s_nop 1" if len(regs) == 1 else "s_nop 0")

        reduce16([124, 125])
        a(f"""
        v_mul_f32 v126, {f2u(-1.0/640):#x}, v124
        v_mul_f32 v127, {f2u(-1.0/640):#x}, v124
        v_mul_f32 v125, {f2u(-1.4426950408889634):#x}, v125
        v_mov_b32 v128, 0
        v_mov_b32 v129, 0
        v_mov_b32 v130, 0
        v_mov_b32 v131, 0
        v_mov_b32 v132, 0
        v_mov_b32 v133, 0
        v_mov_b32 v134, 0
        v_mov_b32 v135, 0
        v_exp_f32 v125, v125
        """)
        for c in range(20):
            a(f"v_pk_add_f32 {vr(XS+2*c,2)}, {vr(XS+2*c,2)}, v[126:127]")
        a("v_add_f32 v125, 1.0, v125\nv_rcp_f32 v125, v125")
        for c in range(20):
            t = 128 + 2 * (c & 3)
            a(f"v_pk_fma_f32 {vr(t,2)}, {vr(XS+2*c,2)}, {vr(XS+2*c,2)}, {vr(t,2)}")
        a("v_pk_add_f32 v[128:129], v[128:129], v[130:131]\nv_pk_add_f32 v[132:133], v[132:133], v[134:135]\nv_pk_add_f32 v[128:129], v[128:129], v[132:133]\nv_add_f32 v128, v128, v129\ns_nop 1")
        reduce16([128])
        a(f"v_mov_b32 v126, {f2u(1e-5):#x}\nv_fmac_f32 v126, {f2u(1.0/640):#x}, v128\nv_rsq_f32 v126, v126")
        a(f"""
        s_lshl_b32 s{S_T0}, s{S_WAVE}, 2
        v_add_u32 v2, s{S_T0}, v2
        v_mov_b32 v127, v126
        v_mul_u32_u24 v4, {LN_ST}, v2
        v_add_u32 v4, v4, v3
        v_lshlrev_b32 v2, 2, v2
        """)
        for c4 in range(5):
            for c in range(4 * c4, 4 * c4 + 4):
                a(f"v_pk_mul_f32 {vr(XS+2*c,2)}, {vr(XS+2*c,2)}, v[126:127]")
            for c in range(4 * c4, 4 * c4 + 4):
                a(f"v_cvt_pk_bf16_f32 v{XR+c}, v{XS+2*c}, v{XS+2*c+1}")
            a(f"ds_write_b128 v4, {vr(XR+4*c4,4)} offset:{LNBUF + c4*256}")
        a(f"ds_write_b32 v2, v125 offset:{LNG}")
        a(f"""
        v_and_b32 v12, 15, v1
        v_lshrrev_b32 v13, 4, v1
        v_lshrrev_b32 v15, 2, v12
        v_lshl_add_u32 v15, v13, 2, v15
        v_mul_u32_u24 v15, {LN_ST}, v15
        v_and_b32 v2, 3, v12
        v_lshl_add_u32 v15, v2, 3, v15
        s_mul_i32 s{S_T0}, s{S_WAVE}, 160
        v_add_u32 v15, s{S_T0}, v15
        v_lshlrev_b32 v14, 4, v1
        v_lshlrev_b32 v2, 2, v1
        s_mul_i32 s{S_T0}, s{S_WAVE}, {5*65536}
        s_lshl_b32 s{S_T0+1}, s{S_KST}, 10
        s_add_u32 s{S_T0}, s{S_T0}, s{S_T0+1}
        s_add_u32 s{S_T0}, s{S_T0}, {HT}
        s_waitcnt lgkmcnt(0)
        s_add_u32 s{S_TAG}, s{S_TAG}, {TAG_INC:#x}
        s_barrier
        """)
        self.stamp(12, 44)
        for i in range(5):
            a(f"ds_read_b64_tr_b16 {vr(44+4*i,2)}, v15 offset:{LNBUF + i*32}")
            a(f"ds_read_b64_tr_b16 {vr(46+4*i,2)}, v15 offset:{LNBUF + i*32+16*LN_ST}")
        a(f"ds_read_b32 v125, v2 offset:{LNG}")
        for i in range(5):
            a(f"s_waitcnt lgkmcnt({9-2*i})")
            a(f"buffer_store_dwordx4 {vr(44+4*i,4)}, v14, s[{R_WS}:{R_WS+3}], s{S_T0} offen sc1")
            if i < 4:
                a(f"s_add_u32 s{S_T0}, s{S_T0}, 65536")
        a(f"""
        s_cmp_lg_u32 s{S_WAVE}, 0
        s_cbranch_scc1 L_B_nog
        s_lshl_b32 s{S_T0}, s{S_KST}, 7
        s_add_u32 s{S_T0}, s{S_T0}, {G_OFF}
        s_waitcnt lgkmcnt(0)
        s_mov_b32 exec_hi, 0
        buffer_store_dword v125, v2, s[{R_WS}:{R_WS+3}], s{S_T0} offen sc1
        s_mov_b32 exec_hi, -1
        L_B_nog:
        s_waitcnt vmcnt(0) lgkmcnt(0)
        s_barrier
        s_cmp_lg_u32 s{S_WAVE}, 0
        s_cbranch_scc1 L_B_nofl
        s_mul_i32 s{S_T0}, s{S_KST}, {FS}
        s_add_u32 s{S_T0}, s{S_T0}, {F_LN}
        """)
        self.flag_store(S_T0, 12)
        self.stamp(1, 12)
        a("L_B_nofl:")
        if self.o.get("wq") == 1:
            a(f"s_lshl_b32 s{S_T0+1}, s{S_KST}, 3\ns_add_u32 s{S_T0+1}, s{S_T0+1}, s{S_WAVE}")
            wq_touch()
        if self.o.get("wq") == 3:
            a(f"""
            s_lshl_b32 s{S_T0}, s{S_J}, 3
            s_add_u32 s{S_T0}, s{S_T0}, s{S_WAVE}
            s_add_u32 s{S_T0}, s{S_T0}, 128
            v_lshrrev_b32 v6, 3, v1
            v_and_b32 v7, 7, v1
            v_min_u32 v7, 5, v7
            v_mul_u32_u24 v6, 3072, v6
            v_lshl_add_u32 v7, v7, 7, v6
            s_mul_i32 s{S_T0}, s{S_T0}, {8*3072}
            s_mul_i32 s{S_T0+2}, s{S_XCD}, 768
            s_add_u32 s{S_T0}, s{S_T0}, s{S_T0+2}
            buffer_load_dword v253, v7, s[{R_W}:{R_W+3}], s{S_T0} offen {self.nt('ntw1')}
            """)
        a("s_branch L_B_join")
        a("L_B_pfrole:")
        self.srd(R_W, P_W1, 2048 * 3072)
        if self.o.get("pfdelay"):
            common_setup()
            a("s_waitcnt vmcnt(0)")
        wq = self.o.get("wq", 0)
        a(f"""
        s_sub_u32 s{S_T0}, s{S_J}, 16
        s_lshl_b32 s{S_T0}, s{S_T0}, 3
        s_add_u32 s{S_T0}, s{S_T0}, s{S_WAVE}
        s_lshl_b32 s{S_T0+1}, s{S_XCD}, 7
        s_add_u32 s{S_T0+1}, s{S_T0+1}, s{S_T0}
        v_lshrrev_b32 v6, 3, v1
        v_and_b32 v7, 7, v1
        v_min_u32 v7, 5, v7
        v_mul_u32_u24 v6, 3072, v6
        v_lshl_add_u32 v7, v7, 7, v6
        s_mul_i32 s{S_T0}, s{S_T0}, {8*3072}
        s_mul_i32 s{S_T0+2}, s{S_XCD}, 768
        s_add_u32 s{S_T0}, s{S_T0}, s{S_T0+2}
        buffer_load_dword v253, v7, s[{R_W}:{R_W+3}], s{S_T0} offen {self.nt('ntw1')}
        """)
        if wq in (0, 3):
            wq_touch()
        if wq != 3:
            a(f"""
            s_add_u32 s{S_T0}, s{S_T0}, {1024*3072}
            buffer_load_dword v253, v7, s[{R_W}:{R_W+3}], s{S_T0} offen {self.nt('ntw1b')}
            """)
        if self.o.get("promote"):
            k_ = 1 if wq != 3 else 0
            a(f"""
            s_sub_u32 s{S_T0+1}, s{S_T0}, {1024*3072*k_}
            s_waitcnt vmcnt({k_ + (1 if wq in (0, 3) else 0)})
            buffer_load_dword v253, v7, s[{R_W}:{R_W+3}], s{S_T0+1} offen
            """)
            if self.o.get("ntw1b"):
                a(f"s_waitcnt vmcnt(1)\nbuffer_load_dword v253, v7, s[{R_W}:{R_W+3}], s{S_T0} offen")
        if not self.o.get("pfdelay"):
            common_setup()
        self.stamp(15, 12)
        a(f"s_waitcnt lgkmcnt(0)\ns_add_u32 s{S_TAG}, s{S_TAG}, {TAG_INC:#x}")
        a(f"s_cmp_ge_u32 s{S_J}, 30\ns_cbranch_scc1 L_helper")
        N1 = self.o.get("n1", 8)
        NREG = self.o.get("nreg", 0)
        assert NREG == 0 or N1 == 8

        def w1_issue():
            t = self.perm_next(S_T0, S_PERM, 128 * 3072)
            t += f"s_mov_b32 m0, s{S_B}\ns_add_u32 s{S_T0}, s{S_T0}, s{S_A}\n"
            for i in range(4):
                t += f"buffer_load_dwordx4 v{VPF+i}, s[{R_W}:{R_W+3}], s{S_T0} offen offset:{i*1024} lds\n"
            t += f"s_add_u32 s{S_B}, s{S_B}, 16384\n"
            return t
        assert N1 == 8 and NREG == 0
        a(f"L_B_join:\ns_cmp_lt_u32 s{S_WAVE}, 4\ns_cbranch_scc1 L_B_comp0")
        for p in range(8):
            if early and p == early[0]:
                a(f"s_cmp_lt_u32 s{S_J}, 16\ns_cbranch_scc1 L_B_skipearly")
            w1_at(p)
            if early and p == early[-1]:
                a("L_B_skipearly:")
        a(f"s_mov_b32 s{S_PERM}, s{S_PERM+1}")
        a("s_branch L_B_aux\nL_B_comp0:")
        BF = 16
        GX = 131072
        split = self.o.get("gsplit")

        def gelu_setup(dblk_off):
            c = 0.7978845608028654
            k0 = -2.0 * c * 1.4426950408889634
            k1 = k0 * 0.044715
            a(f"""
            s_mov_b32 s{S_K0}, {f2u(k1):#x}
            s_mov_b32 s{S_K0+1}, {f2u(k1):#x}
            v_mov_b32 v44, {f2u(k0):#x}
            v_mov_b32 v45, {f2u(k0):#x}
            v_mov_b32 v46, 1.0
            v_mov_b32 v47, 1.0
            s_lshl_b32 s{S_K0+2}, s{S_DT}, 3
            s_lshl_b32 s{S_T0+1}, s{S_WAVE}, 1
            s_add_u32 s{S_K0+2}, s{S_K0+2}, s{S_T0+1}
            s_add_u32 s{S_K0+2}, s{S_K0+2}, {dblk_off & 0xffffffff:#x}
            s_mul_i32 s{S_K0+2}, s{S_K0+2}, {UW_ST}
            s_lshl_b32 s{S_T0+1}, s{S_FT}, 11
            s_add_u32 s{S_K0+2}, s{S_K0+2}, s{S_T0+1}
            s_add_u32 s{S_K0+2}, s{S_K0+2}, {UW}
            """)
            for b in range(4):
                a(f"v_lshlrev_b32 v{BF+4*b}, 16, v{B1R+2*b}\nv_and_b32 v{BF+4*b+1}, 0xffff0000, v{B1R+2*b}")
                a(f"v_lshlrev_b32 v{BF+4*b+2}, 16, v{B1R+2*b+1}\nv_and_b32 v{BF+4*b+3}, 0xffff0000, v{B1R+2*b+1}")

        def gelu_block(base, vl):
            for p in range(2):
                r = base + 8 * p
                T = 48
                for q in range(4):
                    a(f"v_pk_mul_f32 {vr(T+2*q,2)}, {vr(r+2*q,2)}, {vr(r+2*q,2)}")
                for q in range(4):
                    a(f"v_pk_fma_f32 {vr(T+2*q,2)}, {vr(T+2*q,2)}, s[{S_K0}:{S_K0+1}], v[44:45]")
                for q in range(4):
                    a(f"v_pk_mul_f32 {vr(T+2*q,2)}, {vr(T+2*q,2)}, {vr(r+2*q,2)}")
                for q in range(8):
                    a(f"v_exp_f32 v{T+q}, v{T+q}")
                for q in range(4):
                    a(f"v_pk_add_f32 {vr(T+2*q,2)}, {vr(T+2*q,2)}, v[46:47]")
                for q in range(8):
                    a(f"v_rcp_f32 v{T+q}, v{T+q}")
                for q in range(4):
                    a(f"v_pk_mul_f32 {vr(r+2*q,2)}, {vr(r+2*q,2)}, {vr(T+2*q,2)}")
                o = 56 + 4 * (p & 1)
                for q in range(4):
                    a(f"v_cvt_pk_bf16_f32 v{o+q}, v{r+2*q}, v{r+2*q+1}")
                a(f"buffer_store_dwordx4 {vr(o,4)}, v{vl}, s[{R_WS}:{R_WS+3}], s{S_K0+2} offen offset:{p*1024} sc1")

        PF, WF, ACC, VT, VL = 64, 128, 160, 8, 12
        a(f"""
        s_lshl_b32 s{S_T0}, s{S_DT}, 3
        s_lshl_b32 s{S_T0+1}, s{S_WAVE}, 1
        s_add_u32 s{S_D}, s{S_T0}, s{S_T0+1}
        s_lshl_b32 s{S_T0}, s{S_D}, 16
        s_add_u32 s{S_T0}, s{S_T0}, {HT}
        """)
        self.srd(R_P, P_WS, 65536, off_s=S_T0)
        a(f"s_add_u32 s{S_T0}, s{S_T0}, 65536")
        self.srd(R_M, P_WS, 65536, off_s=S_T0)
        a(f"v_lshlrev_b32 v{VL}, 4, v1\ns_mov_b32 s{S_B}, 0")
        a(self.perm_next(S_C, S_PERM, 4096))
        self.tr_addr(VT)
        a("s_waitcnt vmcnt(0)")
        gelu_setup(0)
        for r in range(32):
            a(f"v_mov_b32 v{ACC+r}, v{BF + (r & 15)}")
        a(f"s_lshl_b32 s{S_T0}, s{S_WAVE}, 12\ns_add_u32 s{S_T0}, s{S_T0}, {GX}\nv_add_u32 v13, s{S_T0}, v{VL}")
        a(f"s_cmp_lg_u32 s{S_WAVE}, 0\ns_cbranch_scc1 L_B_l3")
        prog = self.o.get("prog", 0)
        if prog:
            assert prog >= 4 * (4 + self.o.get("rotB", 0))
            a(f"v_min_u32 v2, {prog-1}, v1\nv_mul_u32_u24 v2, {FS}, v2\nv_add_u32 v2, {F_LN}, v2")
        else:
            a(f"v_mul_u32_u24 v2, {FS}, v1\nv_add_u32 v2, {F_LN}, v2")
        if not self.o.get("x_nopoll"):
            self.poll([2], 4)
        self.stamp(2, 4)
        a("L_B_l3:\ns_barrier")
        RP = (R_P, R_M)

        def pload(u, ks):
            if self.o.get("x_noload"):
                return "s_nop 0"
            sc = "" if self.o.get("x_nosc1") else "sc1"
            so = "0" if self.o.get("x_same") else f"s{S_C}"
            return "\n".join(f"buffer_load_dwordx4 {vr(PF+32*(u%2)+8*ks+4*d,4)}, v{VL}, s[{RP[d]}:{RP[d]+3}], {so} offen offset:{ks*1024} {sc}" for d in range(2))

        for t in range(2):
            for ks in range(4):
                a(pload(t, ks))
            a(self.perm_next(S_C, S_PERM, 4096))
            if t == 0:
                first_bar_here = len(a.L)

        def mk(u, bar, virtual=False, head=None, tail=None):
            uses = []
            for ks in range(4):
                for b in range(4):
                    g = ks * 4 + b
                    wb = WF + 4 * (g % 8)
                    off = u * 16384 + ks * 4096
                    reads = [(f"w{g}a", f"ds_read_b64_tr_b16 {vr(wb,2)}, v{VT+b} offset:{off}"),
                             (f"w{g}b", f"ds_read_b64_tr_b16 {vr(wb+2,2)}, v{VT+b} offset:{off+2048}")]
                    mf = []
                    for dd in range(2):
                        acc = vr(ACC + 16 * dd + 4 * b, 4)
                        mf.append(f"v_mfma_f32_16x16x32_bf16 {acc}, {vr(wb,4)}, {vr(PF+32*(u%2)+8*ks+4*dd,4)}, {acc}")
                    if self.o.get("x32"):
                        acc = vr(ACC + 16 * (b & 1), 16)
                        mf = [f"v_mfma_f32_32x32x16_bf16 {acc}, {vr(wb,4)}, {vr(PF+32*(u%2)+8*ks+4*(b>>1),4)}, {acc}"]
                    d = dict(reads=reads, need=[f"w{g}b"], mf=mf)
                    if b == 0:
                        d["vm"] = 14
                    if b == 3:
                        d["after"] = pload(u, ks)
                        if ks == 3:
                            d["after"] += "\n" + self.perm_next(S_C, S_PERM, 4096)
                            if u >= 1:
                                d["after"] += f"s_cmp_ge_u32 s{S_B}, 3\ns_cselect_b32 s{S_C}, 0x10000, s{S_C}"
                    uses.append(d)
            return dict(uses=uses, bar=bar, virtual=virtual, head=head, tail=tail)

        xo = "s_barrier\n" + "\n".join(f"v_xor_b32 v{VT+b}, 0x10000, v{VT+b}" for b in range(4))
        tail = f"s_add_u32 s{S_B}, s{S_B}, 1\ns_cmp_lt_u32 s{S_B}, 4\ns_cbranch_scc1 L_B_loop"
        st = [mk(0, "", head="L_B_loop:"), mk(1, "s_barrier"), mk(2, "s_barrier"), mk(3, "s_barrier", tail=tail), mk(0, xo, virtual=True)]
        a.L.insert(first_bar_here, "    s_barrier")
        nd = self.o.get("nodrain")
        LB = self.o.get("LB", 7)
        self.pipeline(st, LB, (16 - LB) if nd else 13, drain=not nd, wait_every=self.o.get('we', 2))
        if nd and not self.o.get("noEnd"):
            a("s_waitcnt lgkmcnt(0)\ns_barrier")
        self.stamp(3, 44)
        if split:
            a("s_nop 5")
            for i in range(4):
                a(f"ds_write_b128 v13, {vr(ACC+16+4*i,4)} offset:{i*1024}")
            a("s_waitcnt lgkmcnt(0)\ns_barrier")
            gelu_block(ACC, VL)
        else:
            a("s_waitcnt lgkmcnt(0)\ns_nop 4")
            gelu_block(ACC, VL)
            a(f"s_add_u32 s{S_K0+2}, s{S_K0+2}, {UW_ST}")
            gelu_block(ACC + 16, VL)
        self.stamp(10, 44)
        a("s_waitcnt vmcnt(0)\ns_barrier\ns_branch L_F_comp")

        a("L_B_aux:\ns_barrier")
        if split:
            assert NREG == 0
        assert NREG == 0
        ops = [(iv, 4) for iv in range(N1)]
        todo = [(iv, i) for iv in range(N1, 16) for i in range(4)]
        quota = self.o.get("quota", 12) / 3.0
        credit = 0.0
        eB = self.o.get("eB", 17)
        nB1 = self.o.get("nB1", 0)
        per = self.o.get("perB", 2)
        done_w2 = 0
        for tb in range(17):
            if tb < 16 and tb <= eB:
                assert all(iv != tb for iv, _ in todo), (tb, todo)
                last = max(i for i, (iv, _) in enumerate(ops) if iv == tb)
                n = sum(c for _, c in ops[last + 1:])
                if tb < 8:
                    n -= 4 * len(early)
                a(f"s_waitcnt vmcnt({max(0, min(n, 63)) if tb < eB else 0})")
            a("s_barrier")
            if tb < 16:
                self.stamp(16 + tb, 44)
            if tb == 0 and self.o.get("prog"):
                a(f"s_cmp_lg_u32 s{S_WAVE}, 7\ns_cbranch_scc1 L_B_nop1\nv_mul_u32_u24 v2, {FS}, v1\nv_add_u32 v2, {F_LN}, v2")
                a(f"buffer_load_dword v3, v2, s[{R_WS}:{R_WS+3}], 0 offen sc1\nL_B_nop1:")
            if tb == 1 and self.o.get("prog"):
                a(f"s_cmp_lg_u32 s{S_WAVE}, 7\ns_cbranch_scc1 L_B_nop2")
                a(f"s_waitcnt vmcnt(0)\nv_cmp_ne_u32 vcc, s{S_TAG}, v3\ns_nop 1\ns_cmp_eq_u64 vcc, 0\ns_cbranch_scc1 L_B_nop2")
                self.poll([2], 4)
                a("L_B_nop2:")
            if tb == 11 and split:
                gelu_setup(-7)
                a(f"v_lshlrev_b32 v12, 4, v1\ns_lshl_b32 s{S_T0}, s{S_WAVE}, 12\ns_add_u32 s{S_T0}, s{S_T0}, {GX - 4*4096}\nv_add_u32 v13, s{S_T0}, v12")
            if tb == eB:
                assert not todo
                self.w2_setup()
            if tb >= eB and done_w2 < nB1:
                k2 = min(per if tb < 16 else 8, nB1 - done_w2, tb - 9 - done_w2)
                sk = self.if_wave56()
                self.w2_prefill(k2)
                a(f"{sk}:")
                done_w2 += k2
            if todo and (todo[0][0] < 8 or tb >= 2):
                credit += 8 if todo[0][0] < 8 else quota
            setm0 = False
            while todo and credit >= 0.999 and (todo[0][0] < 8 or todo[0][0] <= tb + 6):
                iv, i = todo.pop(0)
                if i == 0:
                    if iv == 8:
                        a(f"s_and_b32 s{S_B}, s{S_B}, 0x1ffff")
                    a(self.perm_next(S_C, S_PERM, 128 * 3072) + f"s_add_u32 s{S_C}, s{S_C}, s{S_A}")
                if i == 0 or not setm0:
                    a(f"s_mov_b32 m0, s{S_B}\ns_nop 0")
                    setm0 = True
                a(f"buffer_load_dwordx4 v{VPF+i}, s[{R_W}:{R_W+3}], s{S_C} offen offset:{i*1024} lds")
                if i == 3:
                    a(f"s_add_u32 s{S_B}, s{S_B}, 16384")
                ops.append((iv, 1))
                credit -= 1
            if todo and todo[0][0] >= 8:
                credit = min(credit, quota)
        nxt = 16
        assert nxt == 16
        if self.o.get("noEnd"):
            assert done_w2 == nB1
        elif self.o.get("nodrain"):
            a("s_barrier")
        if eB == 17:
            self.w2_setup()
        if split:
            a("s_barrier")
            for i in range(4):
                a(f"ds_read_b128 {vr(64+4*i,4)}, v13 offset:{i*1024}")
            a("s_waitcnt lgkmcnt(0)")
            gelu_block(64, 12)
            a("s_waitcnt vmcnt(0)")
        skip = self.if_wave56()
        self.w2_prefill(nB1 - done_w2)
        a("s_barrier\ns_nop 7\ns_nop 7")
        self.w2_prefill(8 - nB1)
        a("s_branch L_F_loader")
        a(f"{skip}:\ns_barrier")
        a(f"s_cmp_lg_u32 s{S_WAVE}, 7\ns_cbranch_scc1 L_F_u4")
        a(f"s_mul_i32 s{S_T0}, s{S_DT}, 24\ns_add_u32 s{S_T0}, s{S_T0}, s{S_FT}\ns_mul_i32 s{S_T0}, s{S_T0}, {FS}\ns_add_u32 s{S_T0}, s{S_T0}, {F_U}")
        self.flag_store(S_T0, 12)
        self.stamp(4, 12)
        a("s_branch L_F_poller")

    def w2_l2_prefetch(self, VT):
        a = self.a
        self.srd(R_W2, P_W2, 1536 * 4096)
        a(f"""
        v_lshrrev_b32 v{VT}, 3, v1
        v_and_b32 v{VT+1}, 7, v1
        v_lshlrev_b32 v{VT+1}, 7, v{VT+1}
        v_lshl_add_u32 v{VT}, v{VT}, 12, v{VT+1}
        s_mul_i32 s{S_T0}, s{S_J}, 48
        s_and_b32 s{S_T0+1}, s{S_WAVE}, 3
        s_mul_i32 s{S_T0+1}, s{S_T0+1}, 12
        s_add_u32 s{S_T0}, s{S_T0}, s{S_T0+1}
        s_lshl_b32 s{S_T0}, s{S_T0}, 12
        s_lshr_b32 s{S_T0+1}, s{S_XCD}, 1
        s_lshl_b32 s{S_T0+1}, s{S_T0+1}, 10
        s_add_u32 s{S_T0}, s{S_T0}, s{S_T0+1}
        buffer_load_dword v{VT+2}, v{VT}, s[{R_W2}:{R_W2+3}], s{S_T0} offen
        s_add_u32 s{S_T0}, s{S_T0}, {8*4096}
        s_mov_b32 exec_hi, 0
        buffer_load_dword v{VT+3}, v{VT}, s[{R_W2}:{R_W2+3}], s{S_T0} offen
        s_mov_b64 exec, -1
        """)

    def tr_addr(self, VT):
        a = self.a
        a(f"""
        v_and_b32 v{VT+1}, 15, v1
        v_lshrrev_b32 v{VT+2}, 4, v1
        v_lshrrev_b32 v{VT+3}, 2, v{VT+1}
        v_lshl_add_u32 v{VT+3}, v{VT+2}, 2, v{VT+3}
        v_bfe_u32 v{VT+2}, v{VT+3}, 1, 2
        v_lshlrev_b32 v{VT+3}, 7, v{VT+3}
        v_lshl_add_u32 v{VT+3}, v{VT+2}, 5, v{VT+3}
        v_and_b32 v{VT+1}, 3, v{VT+1}
        v_lshl_add_u32 v{VT}, v{VT+1}, 3, v{VT+3}
        v_xor_b32 v{VT+1}, 32, v{VT}
        v_xor_b32 v{VT+2}, 64, v{VT}
        v_xor_b32 v{VT+3}, 96, v{VT}
        """)

    def helper(self):
        a = self.a
        a("L_helper:")
        a(f"""
        s_lshl_b32 s{S_D}, s{S_XCD}, 1
        s_add_u32 s{S_D}, s{S_D}, s{S_J}
        s_sub_u32 s{S_D}, s{S_D}, 30
        """)
        self.srd(R_W, P_WO, 640 * 1280)
        for p in range(5):
            a(f"""
            v_add_u32 v12, {p*64}, v1
            v_mul_u32_u24 v13, 205, v12
            v_lshrrev_b32 v13, 11, v13
            v_mul_u32_u24 v14, 10, v13
            v_sub_u32 v14, v12, v14
            v_lshlrev_b32 v14, 4, v14
            v_mul_u32_u24 v13, 1280, v13
            v_add_u32 v{16+p}, v13, v14
            """)
            if p in (1, 2, 3):
                a(f"v_subrev_u32 v{16+p}, {p*1024}, v{16+p}")
        a(f"""
        s_mov_b32 s{S_C}, s{S_WAVE}
        L_H_ld:
        s_mul_i32 s{S_A}, s{S_C}, {32*1280}
        s_mul_i32 s{S_T0}, s{S_D}, 160
        s_add_u32 s{S_A}, s{S_A}, s{S_T0}
        s_mul_i32 s{S_B}, s{S_C}, 5120
        s_mov_b32 m0, s{S_B}
        s_nop 0
        """)
        for p in range(4):
            a(f"buffer_load_dwordx4 v{16+p}, s[{R_W}:{R_W+3}], s{S_A} offen offset:{p*1024} lds")
        a(f"s_add_u32 m0, s{S_B}, 4096\ns_nop 0\nbuffer_load_dwordx4 v20, s[{R_W}:{R_W+3}], s{S_A} offen lds")
        a(f"""
        s_add_u32 s{S_C}, s{S_C}, 8
        s_cmp_lt_u32 s{S_C}, 20
        s_cbranch_scc1 L_H_ld
        v_and_b32 v12, 15, v1
        v_lshrrev_b32 v13, 4, v1
        v_lshrrev_b32 v14, 2, v12
        v_lshl_add_u32 v14, v13, 2, v14
        v_mul_u32_u24 v14, 160, v14
        v_and_b32 v12, 3, v12
        v_lshl_add_u32 v14, v12, 3, v14
        v_lshlrev_b32 v15, 4, v1
        s_waitcnt vmcnt(0)
        s_barrier
        s_mov_b32 s{S_C}, s{S_WAVE}
        L_H_tr:
        s_lshr_b32 s{S_T0}, s{S_C}, 1
        s_mul_i32 s{S_T0}, s{S_T0}, 5
        s_and_b32 s{S_T0+1}, s{S_C}, 1
        s_lshl_b32 s{S_T0+1}, s{S_T0+1}, 1
        s_add_u32 s{S_T0}, s{S_T0}, s{S_T0+1}
        s_add_u32 s{S_T0+1}, s{S_T0}, 1
        s_mul_i32 s{S_T0+2}, s{S_C}, 10
        s_sub_u32 s{S_T0+2}, s{S_T0+2}, 156
        s_add_u32 s{S_T0+3}, s{S_T0+2}, 5
        s_cmp_lt_u32 s{S_C}, 16
        s_cselect_b32 s{S_T0}, s{S_T0}, s{S_T0+2}
        s_cselect_b32 s{S_T0+1}, s{S_T0+1}, s{S_T0+3}
        s_mul_i32 s{S_T0}, s{S_T0}, 2560
        s_mul_i32 s{S_T0+1}, s{S_T0+1}, 2560
        v_add_u32 v12, s{S_T0}, v14
        v_add_u32 v13, s{S_T0+1}, v14
        """)
        for b in range(5):
            a(f"ds_read_b64_tr_b16 {vr(24+4*b,2)}, v12 offset:{b*32}\nds_read_b64_tr_b16 {vr(26+4*b,2)}, v13 offset:{b*32}")
        a(f"""
        s_mul_i32 s{S_T0}, s{S_D}, {5*UW_ST}
        s_lshl_b32 s{S_T0+1}, s{S_C}, 10
        s_add_u32 s{S_T0}, s{S_T0}, s{S_T0+1}
        s_add_u32 s{S_T0}, s{S_T0}, {UW + 49152}
        """)
        for b in range(5):
            a(f"s_waitcnt lgkmcnt({8-2*b})")
            a(f"buffer_store_dwordx4 {vr(24+4*b,4)}, v15, s[{R_WS}:{R_WS+3}], s{S_T0} offen sc1")
            if b < 4:
                a(f"s_add_u32 s{S_T0}, s{S_T0}, {UW_ST}")
        a(f"""
        s_add_u32 s{S_C}, s{S_C}, 8
        s_cmp_lt_u32 s{S_C}, 20
        s_cbranch_scc1 L_H_tr
        s_waitcnt vmcnt(0)
        s_barrier
        """)
        if self.o.get("hW2"):
            a(f"s_cmp_lg_u32 s{S_WAVE}, 7\ns_cbranch_scc1 L_H_nofl")
            a(f"s_mul_i32 s{S_T0}, s{S_D}, {FS}\ns_add_u32 s{S_T0}, s{S_T0}, {F_WOT}")
            self.flag_store(S_T0, 12)
            self.stamp(14, 12)
            a(f"""
            L_H_nofl:
            v_lshlrev_b32 v12, 7, v1
            s_lshl_b32 s{S_T0}, s{S_D}, 3
            s_add_u32 s{S_T0}, s{S_T0}, s{S_WAVE}
            s_lshl_b32 s{S_T0}, s{S_T0}, 13
            s_add_u32 s{S_T0}, s{S_T0}, {1024*4096}
            """)
            for k in range(4):
                a(f"buffer_load_dword v253, v12, s[{R_W2}:{R_W2+3}], s{S_T0} offen\ns_add_u32 s{S_T0}, s{S_T0}, {128*4096}")
        skip = self.if_wave56()
        self.w2_setup()
        self.w2_prefill(8)
        a(f"s_branch L_F_loader\n{skip}:")
        a(f"s_cmp_lt_u32 s{S_WAVE}, 4\ns_cbranch_scc1 L_F_comp\ns_cmp_lg_u32 s{S_WAVE}, 7\ns_cbranch_scc1 L_F_u4")
        if not self.o.get("hW2"):
            a(f"s_mul_i32 s{S_T0}, s{S_D}, {FS}\ns_add_u32 s{S_T0}, s{S_T0}, {F_WOT}")
            self.flag_store(S_T0, 12)
            self.stamp(14, 12)
        a("s_branch L_F_poller")

    F_WOT_REG = 172

    def uw_srd(self):
        a = self.a
        a(f"""
        s_mul_i32 s{S_T0}, s{S_DTILE}, 5
        s_add_u32 s{S_D}, s{S_T0}, s{S_WAVE}
        s_mul_i32 s{S_T0}, s{S_D}, {UW_ST}
        s_add_u32 s{S_T0}, s{S_T0}, {UW}
        """)
        self.srd(R_P, P_WS, UW_ST, off_s=S_T0)

    def wot_preload(self, VL):
        a = self.a
        for k in range(20):
            if k % 4 == 0:
                a(f"s_mov_b32 s{S_C}, {49152 + k*1024}")
            a(f"buffer_load_dwordx4 {vr(self.F_WOT_REG+4*k,4)}, v{VL}, s[{R_P}:{R_P+3}], s{S_C} offen offset:{(k%4)*1024} sc1")

    F_V = (4, 8, 12, 13, 47, 48, 52, 56, 168)
    F_SB = 72

    def f_setup(self):
        a = self.a
        VT, VT2, VL, VU4, VGA, VGH, VG8, GV, BV = self.F_V
        SB = self.F_SB
        self.srd(R_M, P_B2, 4096)
        self.srd(R_OUT, P_OUT, 2048 * 1280)
        self.tr_addr(VT2)
        a(f"""
        s_mul_i32 s{S_D}, s{S_DTILE}, 5
        s_add_u32 s{S_D}, s{S_D}, s{S_WAVE}
        v_mov_b32 v42, v{VT2}
        v_lshlrev_b32 v{VL}, 4, v1
        v_add_u32 v{VU4}, 0x20000, v{VL}
        v_and_b32 v{VGA}, 15, v1
        v_lshlrev_b32 v43, 1, v{VGA}
        v_lshlrev_b32 v{VGA}, 2, v{VGA}
        v_lshlrev_b32 v{VG8+3}, 3, v1
        """)
        for b in range(4):
            a(f"""
            s_add_u32 s{SB+b}, s{S_WAVE}, {b}
            s_and_b32 s{SB+b}, s{SB+b}, 3
            s_lshl_b32 s{S_T0}, s{SB+b}, 5
            v_xor_b32 v{VT+b}, s{S_T0}, v42
            s_lshl_b32 s{S_T0+1}, s{S_ST}, 7
            s_add_u32 s{S_T0}, s{S_T0}, s{S_T0+1}
            buffer_load_ushort v{BV+b}, v43, s[{R_M}:{R_M+3}], s{S_T0} offen
            v_add_u32 v{VT2+b}, 0x10000, v{VT+b}
            s_lshl_b32 s{S_T0}, s{SB+b}, 12
            v_add_u32 v{VG8+b}, s{S_T0}, v{VG8+3}
            s_add_u32 s{S_T0}, s{S_T0}, 0x10000
            v_add_u32 v{VGH+b}, s{S_T0}, v{VL}
            """)
        a(f"s_lshl_b32 s{S_A}, s{S_ST}, 8\ns_add_u32 s{S_A}, s{S_A}, {G_OFF}")
        self.f_perm()

    def f0_barrier(self):
        lab = self.a.label("f0")
        self.a(f"s_cmp_eq_u32 s{S_FROMA}, 1\ns_cbranch_scc1 {lab}\ns_barrier\n{lab}:")

    def final(self):
        a = self.a
        a("L_F_comp:")
        if self.stop == "phase1":
            a("s_branch L_end")
        PF, WF, ACC, ACC4, U4, WOT = 64, 112, 144, 160, 36, 172
        NPF = 3
        pre = True
        VT, VT2, VL, VU4, VGA, VGH, VG8, GV, BV = self.F_V
        SB = self.F_SB
        a(f"s_cmp_eq_u32 s{S_FROMA}, 1\ns_cbranch_scc1 L_F_nowot")
        self.uw_srd()
        self.f_setup()
        nstream = 12 if pre else 17

        def next_sc(step):
            if step < 12:
                return self.perm_next(S_C, S_PERM, 4096)
            return f"s_mov_b32 s{S_C}, {step*4096}\n"
        a("s_barrier")
        self.wot_preload(VL)
        a("L_F_nowot:")
        a(next_sc(0))
        a("s_barrier")
        S_C1, S_C2 = S_K0, S_K0 + 1

        def uload(t, ks, so):
            return f"buffer_load_dwordx4 {vr(PF+16*(t % NPF)+4*ks,4)}, v{VL}, s[{R_P}:{R_P+3}], s{so} offen offset:{ks*1024} sc1 ;@u{t}_{ks}"
        vis0 = []
        for ks in range(4):
            a(uload(0, ks, S_C))
            vis0.append(f"u0_{ks}")
        a(self.perm_next(S_C1, S_PERM, 4096) + self.perm_next(S_C2, S_PERM, 4096) + next_sc(3))
        a("s_barrier")

        ACC2 = 16
        blocks = [(ACC + 4 * b, b) for b in range(4)] + [(ACC4, 0)]
        fill = []
        for b in range(4):
            fill += [f"v_lshlrev_b32 v{BV+b}, 16, v{BV+b}", f"v_sub_f32 v{GV+b}, 1.0, v{GV+b}"]
        for r0, b in blocks:
            for k in range(4):
                fill.append(f"v_add_f32 v{r0+k}, v{BV+b}, v{r0+k}")

        stages = []
        for t in range(17):
            slot = t % 8
            hi = slot >= 4
            uses = []
            for ks in range(4):
                for b in range(4):
                    g = ks * 4 + b
                    wb = WF + 4 * (g % 8)
                    reads = []
                    u4 = U4 + 4 * (ks & 1)
                    if b == 0:
                        reads.append((f"u{ks}", f"ds_read_b128 {vr(u4,4)}, v{VU4} offset:{slot*4096 + ks*1024}"))
                    if t < 12:
                        off = (slot & 3) * 16384 + ks * 4096
                        va = (VT2 if hi else VT) + b
                        reads += [(f"w{g}a", f"ds_read_b64_tr_b16 {vr(wb,2)}, v{va} offset:{off}"),
                                  (f"w{g}b", f"ds_read_b64_tr_b16 {vr(wb+2,2)}, v{va} offset:{off+2048}")]
                    elif t < 16:
                        assert hi
                        off = (slot & 3) * 16384 + ks * 1024
                        reads += [(f"w{g}b", f"ds_read_b128 {vr(wb,4)}, v{VGH+b} offset:{off}")]
                    else:
                        off = (slot & 3) * 16384 + ks * 1024
                        assert not hi
                        reads += [(f"w{g}a", f"ds_read_b64 {vr(wb,2)}, v{VG8+b} offset:{off}"),
                                  (f"w{g}b", f"ds_read_b64 {vr(wb+2,2)}, v{VG8+b} offset:{off+512}")]
                    acc = vr((ACC if t < 12 else ACC2) + 4 * b, 4)
                    a4 = vr(ACC4 if t < 12 else ACC2 + 16, 4)
                    ring = t < nstream
                    pf = vr(PF + 16 * (t % NPF) + 4 * ks, 4) if ring else vr(WOT + 16 * (t - 12) + 4 * ks, 4)
                    first = t in (0, 12) and ks == 0
                    mf = [f"v_mfma_f32_16x16x32_bf16 {acc}, {pf}, {vr(wb,4)}, {0 if first else acc}"]
                    if b == 0:
                        mf.append(f"v_mfma_f32_16x16x32_bf16 {a4}, {vr(u4,4)}, {vr(wb,4)}, {0 if first else a4}")
                    d = dict(reads=reads, need=[f"w{g}b"], mf=mf)
                    if self.o.get("x_fewlds"):
                        if b == 0:
                            d["reads"] = reads[1:]
                        else:
                            d["reads"] = []
                            d["need"] = [f"w{g-b}b"]
                    if b == 0 and ring:
                        d["vneed"] = f"u{t}_{ks}"
                    if t == 0 and b in (0, 1):
                        d["after"] = uload(1 + b, ks, (S_C1, S_C2)[b])
                    if t == 1 and b == 1:
                        d["after"] = (f"s_lshl_b32 s{S_T0}, s{SB+ks}, 6\ns_add_u32 s{S_T0}, s{S_T0}, s{S_A}\n"
                                      f"buffer_load_dword v{GV+ks}, v{VGA}, s[{R_WS}:{R_WS+3}], s{S_T0} offen sc1 ;@g{ks}")
                    if b == 3 and t + NPF < nstream:
                        d["after"] = uload(t + NPF, ks, S_C)
                        if ks == 3 and t + NPF + 1 < nstream:
                            d["after"] += "\n" + next_sc(t + NPF + 1)
                    if self.o.get("wotl") and 3 <= t <= 7 and b == 1:
                        k = (t - 3) * 4 + ks
                        lab = a.label("nw")
                        d["before"] = (f"s_cmp_eq_u32 s{S_FROMA}, 1\ns_cbranch_scc0 {lab}\ns_mov_b32 s{S_T0}, {49152 + k*1024}\n"
                                       f"buffer_load_dwordx4 {vr(WOT+4*k,4)}, v{VL}, s[{R_P}:{R_P+3}], s{S_T0} offen sc1\n{lab}:")
                    if t >= 13 and fill and g < 15:
                        d["after"] = fill.pop(0)
                    uses.append(d)
            stages.append(dict(uses=uses, bar="s_barrier" if t else ""))
        nd = self.o.get("nodrain")
        LF = self.o.get("LF", 6)
        self.pipeline(stages, LF, (16 - LF) if nd else 13, drain=not nd, wait_every=self.o.get('we', 2), vis=vis0)
        self.stamp(8, 2)
        a(f"""
        v_and_b32 v2, 15, v1
        v_mul_u32_u24 v2, 1280, v2
        v_lshrrev_b32 v3, 4, v1
        v_lshl_add_u32 v2, v3, 3, v2
        s_mul_i32 s{S_A}, s{S_ST}, {64*1280}
        s_lshl_b32 s{S_T0+1}, s{S_D}, 5
        s_add_u32 s{S_B}, s{S_A}, s{S_T0+1}
        s_mul_i32 s{S_T0+1}, s{S_DTILE}, 160
        s_add_u32 s{S_A}, s{S_A}, s{S_T0+1}
        s_add_u32 s{S_A}, s{S_A}, 128
        """)
        assert not fill
        for i_, (r, b) in enumerate(blocks):
            for k in range(4):
                a(f"v_fma_f32 v{r+k}, v{r+k}, v{GV+b}, v{ACC2+4*i_+k}")
            a(f"s_mul_i32 s{S_T0}, s{SB+b}, {16*1280}\ns_add_u32 s{S_T0}, s{S_T0}, s{S_A if r == ACC4 else S_B}")
            a(f"v_cvt_pk_bf16_f32 v{r}, v{r}, v{r+1}\nv_cvt_pk_bf16_f32 v{r+1}, v{r+2}, v{r+3}")
            a(f"buffer_store_dwordx2 {vr(r,2)}, v2, s[{R_OUT}:{R_OUT+3}], s{S_T0} offen {['', 'sc1', 'nt', 'sc0 sc1'][self.o.get('osc', 0)]}")
        if self.stamps or self.o.get("dbg"):
            a("s_waitcnt vmcnt(0)")
            self.stamp(9, 2)
        if self.o.get("calib"):
            a(f"""
            L_cal:
            s_memrealtime s[96:97]
            s_waitcnt lgkmcnt(0)
            s_sub_u32 s96, s96, s98
            s_cmp_lt_u32 s96, {self.o.get("calib")*100}
            s_cbranch_scc1 L_cal
            """)
        a(f"s_or_b32 s{S_T0}, s2, s{S_WAVE}\ns_cmp_lg_u32 s{S_T0}, 0\ns_cbranch_scc1 L_end\ns_mov_b32 s{S_T0}, 0")
        self.flag_store(S_T0, 4)
        a("s_branch L_end")

        a("L_F_u4:")
        if self.stop == "phase1":
            a("s_branch L_end")
        a(f"""
        v_lshlrev_b32 v{VL}, 4, v1
        s_mul_i32 s{S_C}, s{S_DTILE}, {5*UW_ST}
        s_add_u32 s{S_C}, s{S_C}, {UW + 4*UW_ST}
        """)
        self.f_perm()
        self.f0_barrier()
        p4 = self.o.get("preW4")
        if p4:
            for k in range(20):
                if k % 4 == 0:
                    a(f"s_add_u32 s{S_T0}, s{S_C}, {49152 + k*1024}")
                a(f"buffer_load_dwordx4 {vr(64+4*k,4)}, v{VL}, s[{R_WS}:{R_WS+3}], s{S_T0} offen offset:{(k%4)*1024} sc1")
            a(f"v_add_u32 v{VU4}, 0x20000, v{VL}")
        a("s_barrier")

        def u4_issue(iv):
            if iv >= 12 and p4:
                for i in range(4):
                    a(f"ds_write_b128 v{VU4}, {vr(64+16*(iv-12)+4*i,4)} offset:{(iv % 8)*4096 + i*1024}")
                return
            if iv < 12:
                a(self.perm_next(S_T0, S_PERM, 4096) + f"s_mov_b32 m0, {0x20000 + (iv % 8)*4096:#x}\ns_add_u32 s{S_T0}, s{S_T0}, s{S_C}")
            else:
                a(f"s_mov_b32 m0, {0x20000 + (iv % 8)*4096:#x}\ns_add_u32 s{S_T0}, s{S_C}, {iv*4096}")
            for i in range(4):
                a(f"buffer_load_dwordx4 v{VL}, s[{R_WS}:{R_WS+3}], s{S_T0} offen offset:{i*1024} sc1 lds")
        order = []
        for iv in range(8):
            u4_issue(iv)
            order.append(iv)
            if iv == 1:
                a("s_waitcnt vmcnt(4)\ns_barrier")
        for tb in range(1, 17):
            if tb in order:
                a(f"s_waitcnt vmcnt({4*len(order[order.index(tb)+1:])})")
            a("s_waitcnt lgkmcnt(0)\ns_barrier" if p4 and tb >= 7 else "s_barrier")
            iv = tb + (6 if self.o.get("nodrain") else 7)
            if 8 <= iv <= 16:
                u4_issue(iv)
                if not (p4 and iv >= 12):
                    order.append(iv)
        a("s_branch L_end")

        a("L_F_loader:")
        if self.stop == "phase1":
            a("s_branch L_end")
        a(f"v_lshlrev_b32 v{VL}, 4, v1")
        self.f0_barrier()
        nWR = self.o.get("nWR", 0)
        V = self.V_W2
        if nWR:
            a(f"s_waitcnt vmcnt(30)\nv_add_u32 v{VU4}, s{S_B}, v{VL}")
            for k in range(nWR):
                a(self.perm_next(S_T0, S_PERM, 128 * 4096) + f"s_add_u32 s{S_T0}, s{S_T0}, s{S_A}")
                for g in range(2):
                    if g:
                        a(f"s_add_u32 s{S_T0}, s{S_T0}, {4*32768}")
                    for i in range(4):
                        a(f"buffer_load_dwordx4 {vr(64+32*k+16*g+4*i,4)}, v{V+i}, s[{R_W2}:{R_W2+3}], s{S_T0} offen offset:{i*1024}")
            a(f"s_add_u32 s{S_B}, s{S_B}, {nWR*16384}")
        a("s_barrier")
        a(f"""
        s_sub_u32 s{S_T0}, s{S_WAVE}, 5
        s_lshl_b32 s{S_T0}, s{S_T0}, 1
        s_lshl_b32 s{S_T0+1}, s{S_ST}, 2
        s_add_u32 s{S_T0+1}, s{S_T0+1}, s{S_T0}
        s_mul_i32 s{S_C}, s{S_T0+1}, {GO_ST}
        s_add_u32 s{S_C}, s{S_C}, {GO}
        s_lshl_b32 s{S_D}, s{S_T0}, 12
        """)
        assert nWR == 0
        ops = [(iv, 8) for iv in range(8)]
        for tb in range(17):
            last = max(i for i, (iv, _) in enumerate(ops) if iv == tb)
            n = sum(c for _, c in ops[last + 1:])
            a(f"s_waitcnt vmcnt({min(n,63)})\ns_barrier")
            if self.o.get("halfW"):
                if 2 <= tb <= 9:
                    self.w2_half((tb - 2) & 1)
                    ops.append((8 + (tb - 2) // 2, 4))
            elif 2 <= tb <= 5:
                self.w2_issue()
                ops.append((tb + 6, 8))
            if 9 <= tb <= 13:
                iv = tb + 3
                g = iv - 12
                for s2 in range(2):
                    a(f"s_add_u32 m0, s{S_D}, {(iv % 8)*16384 + s2*4096}\ns_add_u32 s{S_T0}, s{S_C}, {s2*GO_ST + g*4096}")
                    for i in range(4):
                        a(f"buffer_load_dwordx4 v{VL}, s[{R_WS}:{R_WS+3}], s{S_T0} offen offset:{i*1024} sc1 lds")
                ops.append((iv, 8))
        a("s_branch L_end")
        a("L_F_poller:")
        if self.stop == "phase1":
            a("s_branch L_end")
        a(f"s_cmp_eq_u32 s{S_FROMA}, 1\ns_cbranch_scc1 L_F_pnowot")
        a(f"s_mul_i32 s{S_T0}, s{S_DTILE}, {FS}\ns_add_u32 s{S_T0}, s{S_T0}, {F_WOT}\nv_mov_b32 v2, s{S_T0}")
        self.poll([2], 4)
        a("s_barrier\nL_F_pnowot:")
        a(f"""
        s_mul_i32 s{S_T0}, s{S_DTILE}, 5
        s_lshr_b32 s{S_T0+1}, s{S_T0}, 3
        s_add_u32 s{S_T0}, s{S_T0}, 4
        s_lshr_b32 s{S_T0}, s{S_T0}, 3
        s_mul_i32 s{S_T0}, s{S_T0}, 24
        s_mul_i32 s{S_T0+1}, s{S_T0+1}, 24
        v_and_b32 v2, 31, v1
        v_min_u32 v2, 23, v2
        v_add_u32 v3, s{S_T0}, v2
        v_add_u32 v2, s{S_T0+1}, v2
        v_cmp_gt_u32 vcc, 32, v1
        s_mul_i32 s{S_T0}, s{S_DTILE}, {FS}
        s_add_u32 s{S_T0}, s{S_T0}, {F_WOT}
        v_cndmask_b32 v2, v2, v3, vcc
        v_mul_u32_u24 v2, {FS}, v2
        v_add_u32 v2, {F_U}, v2
        v_mov_b32 v3, s{S_T0}
        v_cmp_eq_u32 vcc, 63, v1
        s_nop 1
        v_cndmask_b32 v2, v2, v3, vcc
        """)
        self.poll([2], 4)
        self.stamp(6, 4)
        a("s_barrier")
        a(f"""
        v_and_b32 v2, 7, v1
        s_lshr_b32 s{S_T0}, s{S_ST}, 1
        s_lshl_b32 s{S_T0}, s{S_T0}, 3
        v_add_u32 v2, s{S_T0}, v2
        v_mul_u32_u24 v2, {FS}, v2
        v_add_u32 v2, {F_GO}, v2
        """)
        gp = self.o.get("gopoll", 9)
        for tb in range(gp):
            a("s_barrier")
            if tb == 1:
                a(f"s_cmp_eq_u32 s{S_FROMA}, 1\ns_cbranch_scc0 L_F_nogo")
                a(f"s_lshl_b32 s{S_T0}, s{S_MT}, 3\ns_add_u32 s{S_T0}, s{S_T0}, s{S_HG}\ns_mul_i32 s{S_T0}, s{S_T0}, {FS}\ns_add_u32 s{S_T0}, s{S_T0}, {F_GO}")
                self.flag_store(S_T0, 6)
                a("L_F_nogo:")
            if tb == gp - 3:
                a(f"buffer_load_dword v8, v2, s[{R_WS}:{R_WS+3}], 0 offen sc1")
            self.stamp(32 + tb, 4)
        a(f"s_waitcnt vmcnt(0)\nv_cmp_ne_u32 vcc, s{S_TAG}, v8\ns_nop 1\ns_cmp_eq_u64 vcc, 0\ns_cbranch_scc1 L_F_gook")
        self.poll([2], 4)
        a("L_F_gook:")
        self.stamp(7, 4)
        for tb in range(gp, 17):
            a("s_barrier")
            self.stamp(32 + tb, 4)
        a("L_end:")
        if "probe" in self.o or "pc1" in self.o:
            a("""
            s_cmp_eq_u32 s94, 0
            s_cbranch_scc1 L_exit
            L_prb:
            s_memrealtime s[96:97]
            s_waitcnt lgkmcnt(0)
            s_sub_u32 s96, s96, s98
            s_cmp_lt_i32 s96, 4000
            s_cbranch_scc1 L_prb
            """)
        if self.stamps:
            a(f"""
            s_lshl_b32 s{S_T0}, s2, 3
            s_add_u32 s{S_T0}, s{S_T0}, s{S_WAVE}
            s_lshl_b32 s{S_T0}, s{S_T0}, 9
            s_add_u32 s{S_T0}, s{S_T0}, {STAMP}
            v_lshlrev_b32 v2, 3, v1
            buffer_store_dwordx2 v[254:255], v2, s[{R_WS}:{R_WS+3}], s{S_T0} offen
            """)
        a("L_exit:\ns_endpgm")

    def build(self, header):
        a = self.a
        self.prologue()
        self.role_a()
        self.role_b()
        self.helper()
        self.final()
        body = a.text()
        out = header
        out += f"; @launch grid=(256,1,1) block=(512,1,1) lds={LDS_BYTES}\n"
        out += f'.amdgcn_target "amdgcn-amd-amdhsa--gfx950"\n.text\n.globl {KNAME}\n.p2align 8\n.type {KNAME},@function\n{KNAME}:\n'
        out += body
        out += f""".section .rodata,"a"
.p2align 6
.amdhsa_kernel {KNAME}
  .amdhsa_next_free_vgpr 256
  .amdhsa_next_free_sgpr 102
  .amdhsa_accum_offset 256
  .amdhsa_group_segment_fixed_size 0
  .amdhsa_kernarg_size 96
  .amdhsa_user_sgpr_count 2
  .amdhsa_user_sgpr_kernarg_segment_ptr 1
  .amdhsa_system_sgpr_workgroup_id_x 1
  .amdhsa_float_denorm_mode_32 3
.end_amdhsa_kernel
"""
        return out


def header():
    ref = open("gated_mix__linear_attn_block__mixer_token_mlp__prompt.s.ref").read().split("\n")
    h = []
    for l in ref:
        if l.startswith("; Override"):
            break
        h.append(l)
    return "\n".join(h) + "\n"


if __name__ == "__main__":
    import argparse
    p = argparse.ArgumentParser()
    p.add_argument("-o", default="gated_mix__linear_attn_block__mixer_token_mlp__prompt.s")
    p.add_argument("--stamps", action="store_true")
    p.add_argument("--stop", default=None)
    p.add_argument("--opt", default="")
    args = p.parse_args()
    opts = {k: (int(v) if v != '' else 1) for k, _, v in (x.partition('=') for x in args.opt.split(',') if x)}
    g = Gen(stamps=args.stamps, stop=args.stop, opts=opts)
    open(args.o, "w").write(g.build(header()))
    print("wrote", args.o)
```

```python
import sys

KNAME = "gated_mix__linear_attn_block__mixer_token_mlp__prompt_kernel"

import os
FS = int(os.environ.get('FS', 128))
F_LN, F_KV, F_U, F_GO, F_WOT = 0x1000, 0x5000, 0x9000, 0xD000, 0x11000
G_OFF = 0x12000
STAMP = 0x900000
KVP = 0x20000
KVP_ST = 7168
HT = 0x100000
UW = 0x380000
UW_ST = 69632
GO = 0x640000
GO_ST = 20480
WS_USED = 0xA00000
TAG_INC = 0x9E3779B9
SPIN_LIMIT = 1 << 17

LDS_BYTES = 163840
LNBUF = 0
LN_ST = 1312
LNG = LNBUF + 32 * LN_ST
A_SLOT = 49152
A_WOFF = 16384
EXCH_ST = 14336
EXCH = LDS_BYTES - 4 * EXCH_ST
KVT = 147456
ZH = KVT + 11 * 1024

LOG2E = 0x3FB8AA3B


def f2u(x):
    import struct
    return struct.unpack("<I", struct.pack("<f", x))[0]


class Asm:
    def __init__(self):
        self.L = []
        self.nlab = 0

    def __call__(self, s):
        for line in s.split("\n"):
            line = line.strip()
            if line:
                self.L.append(("    " if not line.endswith(":") else "") + line)

    def label(self, base):
        self.nlab += 1
        return f"L{base}_{self.nlab}"

    def text(self):
        return "\n".join(self.L) + "\n"


def vr(a, n=1):
    return f"v{a}" if n == 1 else f"v[{a}:{a+n-1}]"


def sr(a, n=1):
    return f"s{a}" if n == 1 else f"s[{a}:{a+n-1}]"


P_X, P_WQKV, P_WO, P_BX, P_W1, P_B1, P_W2, P_B2 = 4, 6, 8, 10, 12, 14, 16, 18
P_GATE, P_OUT, P_DBG, P_WS = 20, 22, 24, 26
S_TAG, S_WAVE = 28, 29
S_XCD, S_J = 30, 31
R_WS, R_X, R_W, R_P, R_W2, R_M, R_OUT = 32, 36, 40, 44, 48, 52, 56
S_T0 = 60
S_MT, S_HG, S_DT, S_FT, S_KST, S_PAR = 70, 71, 72, 73, 74, 75
S_ST, S_DTILE = 76, 77
S_CNT = 78
S_A, S_B, S_C, S_D = 80, 81, 82, 83
S_MSK = 84
S_K0 = 90
S_STMP = 96
S_PERM = 66
S_M = 79
S_FROMA = 95
S_PERM2 = 68


def lead_perm(n, nshare, m, lead=2):
    order = list(range(n))
    i = m
    while i + lead < n:
        order[i:i + lead + 1] = [order[i + lead]] + order[i:i + lead]
        i += nshare
    return order


class Gen:
    def __init__(self, stamps=False, stop=None, opts=None):
        self.o = opts or {}
        self.a = Asm()
        self.stamps = stamps
        self.stop = stop

    def nt(self, key):
        return "nt" if self.o.get(key) else ""

    def srd(self, dst, ptr, nbytes, off_s=None):
        a = self.a
        if off_s is None:
            a(f"s_mov_b32 s{dst}, s{ptr}\ns_and_b32 s{dst+1}, s{ptr+1}, 0xffff")
        else:
            a(f"s_add_u32 s{dst}, s{ptr}, s{off_s}\ns_addc_u32 s{dst+1}, s{ptr+1}, 0\ns_and_b32 s{dst+1}, s{dst+1}, 0xffff")
        a(f"s_mov_b32 s{dst+2}, {nbytes:#x}\ns_mov_b32 s{dst+3}, 0x20000")

    def stamp(self, k, vtmp, dyn=None):
        if "pc1" in self.o:
            if dyn is None and k in (self.o["pc1"], self.o["pc2"]):
                lab = self.a.label("npr")
                self.a(f"s_cmp_lg_u32 s{S_FROMA}, {self.o.get('prole', 0)}\ns_cbranch_scc1 {lab}")
                if k == self.o["pc1"]:
                    self.a(f"s_memtime s[92:93]\ns_waitcnt lgkmcnt(0)")
                else:
                    self.a(f"s_memtime s[96:97]\ns_waitcnt lgkmcnt(0)\ns_sub_u32 s92, s96, s92\ns_lshr_b32 s92, s92, 4\ns_add_u32 s98, s98, s92\ns_mov_b32 s94, 1")
                self.a(f"{lab}:")
            return
        if "probe" in self.o:
            role = self.o.get("prole")
            if k == self.o["probe"] and dyn is None:
                lab = self.a.label("npr")
                if role is not None and k != 0:
                    self.a(f"s_cmp_lg_u32 s{S_FROMA}, {role}\ns_cbranch_scc1 {lab}")
                self.a(f"s_memrealtime s[98:99]\ns_mov_b32 s94, 1\ns_waitcnt lgkmcnt(0)\n{lab}:")
            return
        if self.o.get("dbg"):
            m = {0: 0, 11: 1, 1: 2, 2: 3, 3: 4, 4: 5, 6: 6, 9: 7}
            mA = {0: 0, 1: 1, 2: 2, 3: 3, 4: 4, 5: 5, 6: 6, 9: 7}
            if dyn is not None:
                return
            a = self.a
            for wg, mp, base in ((8, m, 0), (12, mA, 8)):
                if k in mp:
                    lab = a.label("nd")
                    a(f"s_cmp_lg_u32 s2, {wg}\ns_cbranch_scc1 {lab}")
                    a(f"s_memrealtime s[{S_STMP}:{S_STMP+1}]\ns_waitcnt lgkmcnt(0)")
                    a(f"v_mov_b32 v{vtmp}, s{S_STMP}\nv_mov_b32 v{vtmp+2}, {4*(base+mp[k])}")
                    a(f"s_mov_b64 exec, 1\nglobal_store_dword v{vtmp+2}, v{vtmp}, s[{P_DBG}:{P_DBG+1}]\ns_mov_b64 exec, -1\n{lab}:")
            return
        if not self.stamps:
            return
        a = self.a
        a(f"s_memrealtime s[{S_STMP}:{S_STMP+1}]\ns_memtime s[100:101]")
        ln = str(k)
        if dyn is not None:
            a(f"s_add_u32 m0, s{dyn}, {k}")
            ln = "m0"
        a(f"s_waitcnt lgkmcnt(0)\nv_writelane_b32 v254, s{S_STMP}, {ln}\nv_writelane_b32 v255, s100, {ln}")

    def perm_setup(self, s_m, n, nshare, dst, enable):
        a = self.a
        def pk(o):
            v = 0
            for i, x in enumerate(o):
                v |= x << (4 * i)
            return v & 0xffffffff, v >> 32
        lo, hi = pk(list(range(n)))
        a(f"s_mov_b32 s{dst}, {lo:#x}\ns_mov_b32 s{dst+1}, {hi:#x}")
        if not enable:
            return
        for m in range(nshare):
            lo, hi = pk(lead_perm(n, nshare, m, enable))
            a(f"s_cmp_eq_u32 s{s_m}, {m}\ns_cselect_b32 s{dst}, {lo:#x}, s{dst}\ns_cselect_b32 s{dst+1}, {hi:#x}, s{dst+1}")

    def perm_next(self, dst, src, mul):
        t = f"s_and_b32 s{dst}, s{src}, 15\ns_lshr_b64 s[{src}:{src+1}], s[{src}:{src+1}], 4\n"
        if mul & (mul - 1) == 0:
            t += f"s_lshl_b32 s{dst}, s{dst}, {mul.bit_length()-1}\n"
        else:
            t += f"s_mul_i32 s{dst}, s{dst}, {mul}\n"
        return t

    def poll(self, voffs, vtmp, mask=None):
        a = self.a
        lp, dn = a.label("poll"), a.label("pdone")
        n = len(voffs)

        def ld(k):
            for i, vo in enumerate(voffs):
                a(f"buffer_load_dword v{vtmp+k*n+i}, v{vo}, s[{R_WS}:{R_WS+3}], 0 offen sc1")

        def chk(k):
            if mask is not None:
                a(f"v_xor_b32 v{vtmp+k*n}, s{S_TAG}, v{vtmp+k*n}\nv_and_b32 v{vtmp+k*n}, v{mask}, v{vtmp+k*n}\nv_cmp_ne_u32 vcc, 0, v{vtmp+k*n}")
            else:
                a(f"v_cmp_ne_u32 vcc, s{S_TAG}, v{vtmp+k*n}")
            for i in range(1, n):
                a(f"v_cmp_ne_u32 s[{S_T0}:{S_T0+1}], s{S_TAG}, v{vtmp+k*n+i}\ns_nop 1\ns_or_b64 vcc, vcc, s[{S_T0}:{S_T0+1}]")
            a(f"s_nop 1\ns_cmp_eq_u64 vcc, 0\ns_cbranch_scc1 {dn}")
        if not self.o.get("pp"):
            a(f"s_mov_b32 s{S_CNT}, 0\n{lp}:")
            ld(0)
            a("s_waitcnt vmcnt(0)")
            chk(0)
            a(f"s_add_u32 s{S_CNT}, s{S_CNT}, 1\ns_cmp_lt_u32 s{S_CNT}, {SPIN_LIMIT}\ns_cbranch_scc0 {dn}\ns_sleep 1\ns_branch {lp}\n{dn}:")
            return
        sl = f"s_sleep {self.o['pp'] - 1}\n" if self.o["pp"] > 1 else ""
        a(f"s_mov_b32 s{S_CNT}, 0")
        ld(0)
        a(f"{sl}{lp}:")
        ld(1)
        a(f"s_waitcnt vmcnt({n})")
        chk(0)
        ld(0)
        a(f"s_waitcnt vmcnt({n})")
        chk(1)
        a(f"s_add_u32 s{S_CNT}, s{S_CNT}, 1\ns_cmp_lt_u32 s{S_CNT}, {SPIN_LIMIT}\ns_cbranch_scc1 {lp}\n{dn}:")

    def flag_store(self, s_off, vtmp):
        a = self.a
        a(f"v_mov_b32 v{vtmp}, s{S_TAG}\nv_mov_b32 v{vtmp+1}, 0\ns_mov_b64 exec, 1")
        a(f"buffer_store_dword v{vtmp}, v{vtmp+1}, s[{R_WS}:{R_WS+3}], s{s_off} offen sc1\ns_mov_b64 exec, -1")

    def pipeline(self, stages, L, gstar, drain=True, wait_every=2, vis=None):
        a = self.a
        seq = [(si, gi, u) for si, st in enumerate(stages) for gi, u in enumerate(st["uses"])]
        issued = []
        vis = list(vis or [])
        state = dict(nxt=0, opened=-1)
        pend = []

        def collect(lim):
            while state["nxt"] < len(seq) and state["nxt"] <= lim and seq[state["nxt"]][0] <= state["opened"]:
                si_, _, u_ = seq[state["nxt"]]
                for name, txt in u_["reads"]:
                    pend.append((f"{si_}:{name}", txt))
                state["nxt"] += 1
                if seq[state["nxt"] - 1][1] == len(stages[si_]["uses"]) - 1 and si_ + 1 < len(stages):
                    state["defer"] = list(stages[si_ + 1].get("pre", []))

        def out(txt):
            if ";@" in txt:
                vis.append(txt.split(";@")[1].strip())
            a(txt)

        def emit(n):
            for _ in range(min(n, len(pend))):
                name, txt = pend.pop(0)
                out(txt)
                if name:
                    issued.append(name)

        a(stages[0]["bar"])
        state["opened"] = 0
        collect(L - 1)
        emit(len(pend))
        n_real = sum(len(st["uses"]) for st in stages if not st.get("virtual"))
        covered = -1
        for f in range(n_real):
            si, gi, u = seq[f]
            nuse = len(stages[si]["uses"])
            if gi == 0 and stages[si].get("head"):
                assert not pend, pend
                a(stages[si]["head"])
                covered = -1
            if gi == gstar and si + 1 < len(stages):
                emit(len(pend))
                for x in state.pop("defer", []):
                    a(x)
                if drain:
                    a("s_waitcnt lgkmcnt(0)")
                    covered = len(issued) - 1
                a(stages[si + 1]["bar"])
                pend.extend((None, x) for x in stages[si + 1].get("bar_pend", []))
                state["opened"] = si + 1
                collect(f + L - 1)
            def lastidx(ff):
                s_, _, uu = seq[ff]
                return max(len(issued) - 1 - issued[::-1].index(f"{s_}:{nm}") for nm in uu["need"])
            w = []
            if lastidx(f) > covered:
                tgt = lastidx(f)
                for ff in range(f + 1, min(f + wait_every, n_real)):
                    if seq[ff][0] != si:
                        break
                    try:
                        tgt = max(tgt, lastidx(ff))
                    except ValueError:
                        break
                n = len(issued) - 1 - tgt
                assert n <= 15, n
                w.append(f"lgkmcnt({n})")
                covered = tgt
            if u.get("vneed") is not None:
                w.insert(0, f"vmcnt({len(vis) - 1 - vis.index(u['vneed'])})")
            if u.get("vm") is not None:
                npv = sum(1 for nm_, t_ in pend if t_.strip().startswith("buffer_load"))
                w.insert(0, f"vmcnt({u['vm'] - npv})")
            if w:
                a("s_waitcnt " + " ".join(w))
            if u.get("before"):
                a(u["before"])
            if state.get("defer") and not pend:
                n_ = self.o.get("npre", 7)
                pend.extend((None, x) for x in state["defer"][:n_])
                state["defer"] = state["defer"][n_:]
            collect(f + L)
            if state.get("mix"):
                k_ = state.pop("mix")
                head_, rest_ = pend[:k_], pend[k_:]
                pend[:] = [x for pr in zip(head_, rest_) for x in pr] + head_[len(rest_):] + rest_[len(head_):]
            nm_ = len(u["mf"])
            for k, m in enumerate(u["mf"]):
                a(m)
                left = nm_ - k
                if drain and gi >= gstar:
                    left += sum(len(uu["mf"]) for uu in stages[si]["uses"][gi + 1:])
                    extra = 2 * (nuse - 1 - gi)
                    emit(-(-(len(pend) + extra) // left) if left > 1 else len(pend))
                else:
                    emit(-(-len(pend) // left))
            if u.get("after"):
                items = [x for x in u["after"].split("\n") if x.strip()]
                if gi == nuse - 1:
                    for x in items:
                        out(x)
                else:
                    assert not pend
                    pend.extend((None, x) for x in items)
                    state["mix"] = len(items)
            if gi == nuse - 1 and stages[si].get("tail"):
                a(stages[si]["tail"])

    def prologue(self):
        a = self.a
        a(f"""
        s_cmp_ge_u32 s2, 256
        s_cbranch_scc1 L_exit
        {"v_mov_b32 v254, 0" if self.stamps else ""}
        {"v_mov_b32 v255, 0" if self.stamps else ""}
        {"s_memrealtime s[98:99]" if self.o.get("calib") or "pc1" in self.o else ""}
        {"s_mov_b32 s94, 0" if "probe" in self.o or "pc1" in self.o else ""}
        s_load_dwordx16 s[4:19], s[0:1], 0
        s_load_dwordx8 s[20:27], s[0:1], 64
        """)
        if self.o.get("pf_code") == 2:
            a(f"""
            s_getpc_b64 s[{S_T0}:{S_T0+1}]
            L_pcref:
            s_lshr_b32 s3, s2, 3
            s_mul_i32 s3, s3, 1280
            v_lshlrev_b32 v4, 7, v0
            v_add_u32 v4, s3, v4
            v_min_u32 v4, L_exit-L_pcref, v4
            v_cmp_gt_u32 vcc, 10, v0
            s_and_saveexec_b64 s[{S_T0+2}:{S_T0+3}], vcc
            s_cbranch_execz L_nocpf
            global_load_dword v253, v4, s[{S_T0}:{S_T0+1}]
            L_nocpf:
            s_mov_b64 exec, -1
            """)
        a(f"""
        v_and_b32 v1, 63, v0
        v_lshrrev_b32 v2, 6, v0
        s_and_b32 s{S_XCD}, s2, 7
        v_readfirstlane_b32 s{S_WAVE}, v2
        s_lshr_b32 s{S_J}, s2, 3
        s_waitcnt lgkmcnt(0)
        s_load_dword s{S_TAG}, s[{P_WS}:{P_WS+1}], 0
        """)
        self.srd(R_WS, P_WS, WS_USED)
        self.srd(R_X, P_X, 2048 * 1280)
        self.srd(R_W2, P_W2, 1536 * 4096)
        if self.stamps or self.o.get("dbg") or "probe" in self.o:
            a(f"s_cmp_lg_u32 s{S_WAVE}, 0\ns_cbranch_scc1 L_nost0")
            self.stamp(0, 4)
            a("L_nost0:")
        if self.o.get("tlb"):
            self.tlb_warm()
        if self.o.get("pf_code") == 1:
            self.code_prefetch()
        if self.o.get("prio"):
            a(f"""
            s_sub_u32 s{S_T0}, s{S_WAVE}, 4
            s_cmp_lt_u32 s{S_T0}, 3
            s_cbranch_scc1 L_noprio
            s_setprio 3
            L_noprio:
            """)
        a(f"""
        s_lshr_b32 s{S_T0}, s{S_XCD}, 1
        s_lshl_b32 s{S_T0}, s{S_T0}, 3
        s_lshr_b32 s{S_ST}, s{S_J}, 2
        s_add_u32 s{S_ST}, s{S_ST}, s{S_T0}
        s_and_b32 s{S_T0}, s{S_XCD}, 1
        s_lshl_b32 s{S_T0}, s{S_T0}, 2
        s_and_b32 s{S_DTILE}, s{S_J}, 3
        s_add_u32 s{S_DTILE}, s{S_DTILE}, s{S_T0}
        s_cmp_lt_u32 s{S_XCD}, 4
        s_cbranch_scc1 L_roleB
        """)

    V_W2 = 240

    def f_perm(self):
        a = self.a
        a(f"s_lshl_b32 s{S_M}, s{S_DTILE}, 1\ns_add_u32 s{S_M}, s{S_M}, s{S_ST}\ns_and_b32 s{S_M}, s{S_M}, 7")
        self.perm_setup(S_M, 12, 8, S_PERM, self.o.get("rotF"))

    def w2_setup(self):
        a = self.a
        V = self.V_W2
        self.f_perm()
        a(f"""
        v_lshrrev_b32 v{V}, 3, v1
        v_lshrrev_b32 v{V+1}, 4, v1
        v_lshlrev_b32 v{V+1}, 1, v{V+1}
        v_and_b32 v{V+2}, 7, v1
        v_xor_b32 v{V+1}, v{V+1}, v{V+2}
        v_lshlrev_b32 v{V+1}, 4, v{V+1}
        v_lshl_add_u32 v{V}, v{V}, 12, v{V+1}
        v_add_u32 v{V+1}, {32768-1024}, v{V}
        v_add_u32 v{V+2}, {2*(32768-1024)}, v{V}
        v_add_u32 v{V+3}, {3*(32768-1024)}, v{V}
        s_sub_u32 s{S_T0}, s{S_WAVE}, 5
        s_lshl_b32 s{S_B}, s{S_T0}, 13
        s_lshl_b32 s{S_A}, s{S_T0}, 18
        s_lshl_b32 s{S_T0}, s{S_ST}, 7
        s_add_u32 s{S_A}, s{S_A}, s{S_T0}
        """)

    def w2_issue_at(self, p):
        a = self.a
        V = self.V_W2
        a(f"s_bfe_u32 s{S_T0}, s{S_PERM}, {(4 << 16) | (4 * p):#x}\ns_lshl_b32 s{S_T0}, s{S_T0}, 19\ns_add_u32 s{S_T0}, s{S_T0}, s{S_A}")
        for g in range(2):
            a(f"s_add_u32 m0, s{S_B}, {p*16384 + g*4096}")
            a(f"s_add_u32 s{S_T0}, s{S_T0}, {g*4*32768}")
            for i in range(4):
                a(f"buffer_load_dwordx4 v{V+i}, s[{R_W2}:{R_W2+3}], s{S_T0} offen offset:{i*1024} lds")

    def w2_half(self, g):
        a = self.a
        V = self.V_W2
        if g == 0:
            a(self.perm_next(S_K0, S_PERM, 128 * 4096) + f"s_add_u32 s{S_K0}, s{S_K0}, s{S_A}")
        a(f"s_add_u32 m0, s{S_B}, {g*4096}\ns_add_u32 s{S_T0}, s{S_K0}, {g*4*32768}")
        for i in range(4):
            a(f"buffer_load_dwordx4 v{V+i}, s[{R_W2}:{R_W2+3}], s{S_T0} offen offset:{i*1024} lds")
        if g == 1:
            a(f"s_add_u32 s{S_B}, s{S_B}, 16384")

    def w2_issue(self):
        a = self.a
        V = self.V_W2
        a(self.perm_next(S_T0, S_PERM, 128 * 4096))
        a(f"s_add_u32 s{S_T0}, s{S_T0}, s{S_A}")
        for g in range(2):
            a(f"s_add_u32 m0, s{S_B}, {g*4096}")
            a(f"s_add_u32 s{S_T0}, s{S_T0}, {g*4*32768}")
            for i in range(4):
                a(f"buffer_load_dwordx4 v{V+i}, s[{R_W2}:{R_W2+3}], s{S_T0} offen offset:{i*1024} lds")
        a(f"s_add_u32 s{S_B}, s{S_B}, 16384\ns_and_b32 s{S_B}, s{S_B}, 0x1ffff")

    def w2_prefill(self, n):
        if n == 0:
            return
        a = self.a
        lp = a.label("pf")
        a(f"s_mov_b32 s{S_C}, 0\n{lp}:")
        self.w2_issue()
        a(f"s_add_u32 s{S_C}, s{S_C}, 1\ns_cmp_lt_u32 s{S_C}, {n}\ns_cbranch_scc1 {lp}")

    def if_wave56(self):
        a = self.a
        skip = a.label("n56")
        a(f"s_sub_u32 s{S_T0}, s{S_WAVE}, 5\ns_cmp_lt_u32 s{S_T0}, 2\ns_cbranch_scc0 {skip}")
        return skip

    def role_a(self):
        a = self.a
        a(f"L_roleA:\ns_mov_b32 s{S_FROMA}, 1")
        a(f"s_sub_u32 s{S_MT}, s{S_ST}, 16\ns_mov_b32 s{S_HG}, s{S_DTILE}")
        a(f"s_cmp_ge_u32 s{S_WAVE}, 4\ns_cbranch_scc1 L_A_loader")
        ACC, XF, WF, VXA, VWA = 128, 96, 64, 4, 6
        if self.o.get("ta1") or self.o.get("ta2"):
            self.start_prefetch()
        self.a_thread_map()
        a(f"""
        v_and_b32 v16, 15, v1
        v_lshrrev_b32 v17, 4, v1
        s_lshl_b32 s{S_T0}, s{S_WAVE}, 5
        v_add_u32 v18, s{S_T0}, v16
        v_lshrrev_b32 v19, 1, v16
        v_xor_b32 v19, v17, v19
        v_lshlrev_b32 v19, 4, v19
        v_lshl_add_u32 v{VXA}, v18, 7, v19
        v_xor_b32 v{VXA+1}, 64, v{VXA}
        v_lshrrev_b32 v18, 2, v16
        v_lshl_add_u32 v19, v17, 3, v18
        v_and_b32 v20, 1, v17
        v_lshl_or_b32 v20, v20, 2, v18
        v_lshlrev_b32 v19, 9, v19
        v_lshl_add_u32 v19, v20, 5, v19
        v_and_b32 v20, 3, v16
        v_lshl_add_u32 v19, v20, 3, v19
        v_add_u32 v{VWA}, {A_WOFF}, v19
        """)
        for n in range(1, 8):
            a(f"v_xor_b32 v{VWA+n}, {n<<5}, v{VWA}")
        for r in range(120):
            a(f"v_mov_b32 v{ACC+r}, 0")
        a(f"s_mov_b32 s{S_A}, 0\ns_mov_b32 s{S_B}, 0\ns_mov_b32 s{S_C}, {A_SLOT}\ns_waitcnt lgkmcnt(0)")
        a(f"s_add_u32 s{S_TAG}, s{S_TAG}, {TAG_INC:#x}")

        RING = 6
        D = 6

        def mk_stage(bar, virtual=False, head=None, tail=None):
            uses = []
            for g in range(30):
                ks, n = divmod(g, 15)
                wb = WF + 4 * (g % RING)
                reads = []
                if g == 0:
                    for rb in range(2):
                        reads.append((f"x0{rb}", f"ds_read_b128 {vr(XF+4*rb,4)}, v{VXA} offset:{rb*2048}"))
                if g == 13:
                    for rb in range(2):
                        reads.append((f"x1{rb}", f"ds_read_b128 {vr(XF+8+4*rb,4)}, v{VXA+1} offset:{rb*2048}"))
                off = ks * 16384 + (n >> 3) * 256
                reads.append((f"w{g}a", f"ds_read_b64_tr_b16 {vr(wb,2)}, v{VWA+(n&7)} offset:{off}"))
                reads.append((f"w{g}b", f"ds_read_b64_tr_b16 {vr(wb+2,2)}, v{VWA+(n&7)} offset:{off+2048}"))
                need = [f"w{g}b", f"x{ks}1"]
                mf = []
                for rb in range(2):
                    acc = vr(ACC + (n * 2 + rb) * 4, 4)
                    xf = vr(XF + ks * 8 + rb * 4, 4)
                    wf = vr(wb, 4)
                    if n < 5:
                        mf.append(f"v_mfma_f32_16x16x32_bf16 {acc}, {wf}, {xf}, {acc}")
                    else:
                        mf.append(f"v_mfma_f32_16x16x32_bf16 {acc}, {xf}, {wf}, {acc}")
                uses.append(dict(reads=reads, need=need, mf=mf))
            return dict(uses=uses, bar=bar, virtual=virtual, head=head, tail=tail)

        adv = "s_barrier"
        pre = [f"s_add_u32 s{S_B}, s{S_B}, 1", f"s_cmp_eq_u32 s{S_B}, 3", f"s_cselect_b32 s{S_B}, 0, s{S_B}",
               f"s_cselect_b32 s{S_T0}, {(-2*A_SLOT) & 0xffffffff:#x}, s{S_C}"]
        pre += [f"v_add_u32 v{r}, s{S_T0}, v{r}" for r in range(VXA, VWA + 8)]
        tail = f"s_add_u32 s{S_A}, s{S_A}, 1\ns_cmp_lt_u32 s{S_A}, 10\ns_cbranch_scc1 L_A_loop"
        head = "L_A_loop:\n"
        bar0 = "s_barrier"
        self.uw_srd()
        if self.o.get("tw2") == 2:
            self.srd(R_M, P_WO, 640 * 1280)
            a(f"""
            v_lshlrev_b32 v252, 7, v1
            s_lshl_b32 s{S_T0}, s{S_MT}, 3
            s_add_u32 s{S_T0}, s{S_T0}, s{S_HG}
            s_lshl_b32 s{S_T0}, s{S_T0}, 2
            s_add_u32 s{S_T0}, s{S_T0}, s{S_WAVE}
            s_mul_i32 s{S_D}, s{S_T0}, {8192 if self.o.get("hW2") else 12288}
            s_add_u32 s{S_KST}, s{S_D}, 8192
            s_mul_i32 s{S_PAR}, s{S_T0}, 1664
            s_and_b32 s{S_M}, s{S_J}, 7
            s_add_u32 s{S_M}, s{S_M}, {self.o.get("tw2at", 1)}
            """)
            head += f"""
            s_cmp_lg_u32 s{S_A}, s{S_M}
            s_cbranch_scc1 L_A_nt2
            buffer_load_dword v253, v252, s[{R_W2}:{R_W2+3}], s{S_D} offen
            s_mov_b32 exec_hi, 0
            {"" if self.o.get("hW2") else f"buffer_load_dword v253, v252, s[{R_W2}:{R_W2+3}], s{S_KST} offen"}
            s_mov_b32 exec_lo, 0x1fff
            buffer_load_dword v253, v252, s[{R_M}:{R_M+3}], s{S_PAR} offen
            s_mov_b64 exec, -1
            L_A_nt2:
            """
        if "promA" in self.o:
            head += f"s_cmp_lg_u32 s{S_A}, {self.o['promA']}\ns_cbranch_scc1 L_A_npr\n" + self.pf_rest_plain() + "L_A_npr:\n"
        ta2 = self.o.get("ta2")
        if ta2 == 1:
            a(self.pf_rest())
        elif ta2 == 2:
            bar0 += "\n" + self.pf_rest()
        elif ta2:
            head += f"s_cmp_lg_u32 s{S_A}, {ta2-2}\ns_cbranch_scc1 L_A_npf\n" + self.pf_rest() + "L_A_npf:\n"
        self.pipeline([mk_stage(bar0, head=head, tail=tail), dict(mk_stage(adv, virtual=True), pre=pre)], 5, 30 - 3, wait_every=self.o.get('we', 2))
        self.stamp(2, 16)
        PK, VV, ONES, KVD, ZD = 16, 36, 56, 64, 116
        a("L_A_tail:\ns_waitcnt lgkmcnt(0)\ns_nop 7")
        a(f"s_mov_b32 s{S_K0}, {LOG2E:#x}\ns_mov_b32 s{S_K0+1}, {LOG2E:#x}\ns_mov_b32 s{S_K0+2}, {f2u(1e-6):#x}")

        def phi(base, n, t):
            for i in range(0, n, 4):
                r = base + i
                a(f"v_pk_mul_f32 {vr(t,2)}, {vr(r,2)}, s[{S_K0}:{S_K0+1}]")
                a(f"v_pk_mul_f32 {vr(t+2,2)}, {vr(r+2,2)}, s[{S_K0}:{S_K0+1}]")
                for k in range(4):
                    a(f"v_exp_f32_e64 v{t+k}, v{t+k} clamp")
                for k in range(4):
                    a(f"v_max_f32 v{r+k}, s{S_K0+2}, v{r+k}")
                a(f"v_pk_add_f32 {vr(r,2)}, {vr(r,2)}, {vr(t,2)}")
                a(f"v_pk_add_f32 {vr(r+2,2)}, {vr(r+2,2)}, {vr(t+2,2)}")

        def pack(dst, src0, src1):
            a(f"v_cvt_pk_bf16_f32 v{dst}, v{src0}, v{src0+1}\nv_cvt_pk_bf16_f32 v{dst+1}, v{src0+2}, v{src0+3}")
            if src1 is None:
                a(f"v_mov_b32 v{dst+2}, 0\nv_mov_b32 v{dst+3}, 0")
            else:
                a(f"v_cvt_pk_bf16_f32 v{dst+2}, v{src1}, v{src1+1}\nv_cvt_pk_bf16_f32 v{dst+3}, v{src1+2}, v{src1+3}")

        for b in range(5):
            pack(VV + 4 * b, ACC + (10 + b) * 8, ACC + (10 + b) * 8 + 4)
        for k in range(4):
            a(f"v_mov_b32 v{ONES+k}, 0x3f803f80")
        phi(ACC + 40, 40, 60)
        for b in range(5):
            pack(PK + 4 * b, ACC + (5 + b) * 8, ACC + (5 + b) * 8 + 4)
        a("s_nop 1")
        ZD = ACC + 80
        blocks = [(x, y) for x in range(5) for y in range(5) if abs(x - y) <= 1]
        for (x, y) in blocks:
            a(f"v_mfma_f32_16x16x32_bf16 {vr(KVD+4*(2*x+y),4)}, {vr(PK+4*x,4)}, {vr(VV+4*y,4)}, 0")
        for x in range(5):
            a(f"v_mfma_f32_16x16x32_bf16 {vr(ZD+4*x,4)}, {vr(ONES,4)}, {vr(PK+4*x,4)}, 0")
        a(f"""
        s_mul_i32 s{S_T0}, s{S_WAVE}, {EXCH_ST}
        s_add_u32 s{S_T0}, s{S_T0}, {EXCH}
        v_lshlrev_b32 v60, 4, v1
        v_add_u32 v60, s{S_T0}, v60
        v_and_b32 v61, 15, v1
        v_lshlrev_b32 v61, 2, v61
        v_add_u32 v61, s{S_T0}, v61
        s_nop 3
        """)
        for i in range(13):
            a(f"ds_write_b128 v60, {vr(KVD+4*i,4)} offset:{i*1024}")
        for x in range(5):
            a(f"ds_write_b32 v61, v{ZD+4*x} offset:{13312+64*x}")
        self.stamp(10, 40)
        a("s_waitcnt lgkmcnt(0)\ns_barrier")
        self.stamp(11, 40)
        self.a_reduce_publish(64)
        self.stamp(12, 40)
        a("v_lshlrev_b32 v59, 4, v1\ns_barrier")
        self.stamp(14, 40)
        self.wot_preload(59)
        PQ = 16
        phi(ACC, 40, 60)
        for ts in range(3):
            for rb in range(2):
                pack(PQ + (ts * 2 + rb) * 4, ACC + (2 * ts * 2 + rb) * 4, None if ts == 2 else ACC + ((2 * ts + 1) * 2 + rb) * 4)
        self.f_setup()
        a("s_barrier")
        a(f"""
        v_and_b32 v63, 15, v1
        v_lshlrev_b32 v63, 2, v63
        s_lshl_b32 s{S_T0}, s{S_MT}, 7
        s_lshl_b32 s{S_T0+1}, s{S_WAVE}, 5
        s_add_u32 s{S_T0}, s{S_T0}, s{S_T0+1}
        s_lshl_b32 s{S_T0}, s{S_T0}, 2
        s_add_u32 s{S_T0}, s{S_T0}, {G_OFF}
        buffer_load_dword v62, v63, s[{R_WS}:{R_WS+3}], s{S_T0} offen sc1
        buffer_load_dword v61, v63, s[{R_WS}:{R_WS+3}], s{S_T0} offen offset:64 sc1
        """)
        self.a_gather(64)
        a("s_waitcnt lgkmcnt(0)\ns_barrier")
        self.stamp(4, 40)
        FR = 64
        a("v_lshlrev_b32 v60, 4, v1\nv_add_u32 v60, " + str(KVT) + ", v60")
        used = [0, 2, 3, 4, 5, 7, 8, 9, 10, 11, 12, 13]
        for f in used:
            a(f"ds_read_b128 {vr(FR+4*f,4)}, v60 offset:{f*1024}")
        NUM, DEN = 128, 120
        kts = {0: [0], 1: [0, 1], 2: [0, 1], 3: [1, 2], 4: [1, 2]}
        a(f"""
        v_lshrrev_b32 v40, 4, v1
        v_cmp_gt_u32 s[{S_MSK}:{S_MSK+1}], 1, v40
        v_cmp_gt_u32 s[{S_MSK+2}:{S_MSK+3}], 2, v40
        v_cmp_gt_u32 s[{S_MSK+4}:{S_MSK+5}], 3, v40
        s_waitcnt lgkmcnt(0)
        """)
        for rb in range(2):
            for ts in range(3):
                c = "0" if ts == 0 else vr(DEN + 4 * rb, 4)
                a(f"v_mfma_f32_16x16x32_bf16 {vr(DEN+4*rb,4)}, {vr(FR+4*(11+ts),4)}, {vr(PQ+(ts*2+rb)*4,4)}, {c}")
        for rb in range(2):
            for b in range(5):
                for i, ts in enumerate(kts[b]):
                    d = vr(NUM + (rb * 5 + b) * 4, 4)
                    c = "0" if i == 0 else d
                    a(f"v_mfma_f32_16x16x32_bf16 {d}, {vr(FR+4*(2*b+ts),4)}, {vr(PQ+(ts*2+rb)*4,4)}, {c}")
        for rb in range(2):
            for h in range(4):
                a(f"v_add_f32 v{DEN+4*rb+h}, s{S_K0+2}, v{DEN+4*rb+h}")
        for rb in range(2):
            for h in range(4):
                a(f"v_rcp_f32 v{DEN+4*rb+h}, v{DEN+4*rb+h}")
        a("s_nop 0")
        gv = {0: 62, 1: 61}
        for rb in range(2):
            for h in range(4):
                a(f"v_mul_f32 v{DEN+4*rb+h}, v{gv[rb]}, v{DEN+4*rb+h}")
        a(f"""
        s_lshl_b32 s{S_T0}, s{S_MT}, 3
        s_lshl_b32 s{S_T0+1}, s{S_WAVE}, 1
        s_add_u32 s{S_T0}, s{S_T0}, s{S_T0+1}
        s_mul_i32 s{S_T0}, s{S_T0}, {GO_ST}
        s_add_u32 s{S_T0}, s{S_T0}, {GO}
        s_lshl_b32 s{S_T0+1}, s{S_HG}, 11
        s_add_u32 s{S_T0+1}, s{S_T0+1}, s{S_T0}
        s_lshl_b32 s{S_T0+2}, s{S_HG}, 9
        s_add_u32 s{S_T0+2}, s{S_T0+2}, s{S_T0}
        s_add_u32 s{S_T0+2}, s{S_T0+2}, 16384
        v_lshlrev_b32 v40, 4, v1
        v_lshlrev_b32 v41, 3, v1
        """)
        for rb in range(2):
            d = DEN + 4 * rb
            a(f"v_cndmask_b32 v44, v{d+1}, v{d}, s[{S_MSK}:{S_MSK+1}]")
            a(f"v_cndmask_b32 v45, v{d+2}, v{d+1}, s[{S_MSK+2}:{S_MSK+3}]")
            a(f"v_cndmask_b32 v46, v{d+3}, v{d+2}, s[{S_MSK+4}:{S_MSK+5}]")
            sc = [d, 44, 45, 46, d + 3]
            for b in range(5):
                for k in range(4):
                    r = NUM + (rb * 5 + b) * 4 + k
                    a(f"v_mul_f32 v{r}, v{sc[b]}, v{r}")
            o = 16 + rb * 12
            n0 = NUM + rb * 20
            pack(o, n0, n0 + 4)
            pack(o + 4, n0 + 8, n0 + 12)
            a(f"v_cvt_pk_bf16_f32 v{o+8}, v{n0+16}, v{n0+17}\nv_cvt_pk_bf16_f32 v{o+9}, v{n0+18}, v{n0+19}")
            a(f"buffer_store_dwordx4 {vr(o,4)}, v40, s[{R_WS}:{R_WS+3}], s{S_T0+1} offen sc1")
            a(f"buffer_store_dwordx4 {vr(o+4,4)}, v40, s[{R_WS}:{R_WS+3}], s{S_T0+1} offen offset:1024 sc1")
            a(f"buffer_store_dwordx2 {vr(o+8,2)}, v41, s[{R_WS}:{R_WS+3}], s{S_T0+2} offen sc1")
            if rb == 0:
                a(f"s_add_u32 s{S_T0+1}, s{S_T0+1}, {GO_ST}\ns_add_u32 s{S_T0+2}, s{S_T0+2}, {GO_ST}")
        self.stamp(5, 40)
        a("s_branch L_F_comp")

        a("L_A_loader:")
        VX, VW = 4, 8
        self.srd(R_W, P_WQKV, 640 * 3840)
        a(f"""
        s_sub_u32 s{S_D}, s{S_WAVE}, 4
        v_lshrrev_b32 v16, 3, v1
        v_lshrrev_b32 v17, 4, v1
        v_and_b32 v18, 7, v1
        v_xor_b32 v17, v17, v18
        v_lshlrev_b32 v17, 4, v17
        v_mul_u32_u24 v16, 1280, v16
        v_add_u32 v{VX}, v16, v17
        v_xor_b32 v18, 64, v{VX}
        v_add_u32 v{VX+1}, {8*1280-1024}, v18
        v_add_u32 v{VX+2}, {2*(8*1280-1024)}, v{VX}
        v_add_u32 v{VX+3}, {3*(8*1280-1024)}, v18
        s_lshl_b32 s{S_T0}, s{S_MT}, 7
        s_lshl_b32 s{S_T0+1}, s{S_D}, 5
        s_add_u32 s{S_T0}, s{S_T0}, s{S_T0+1}
        s_mul_i32 s{S_A}, s{S_T0}, 1280
        s_lshl_b32 s{S_C}, s{S_D}, 12
        """)
        def issue_x():
            a(f"s_mov_b32 m0, s{S_C}\ns_nop 0")
            for i in range(4):
                a(f"buffer_load_dwordx4 v{VX+i}, s[{R_X}:{R_X+3}], s{S_A} offen offset:{i*1024} lds")
            a(f"s_add_u32 s{S_A}, s{S_A}, 128")

        def issue_w():
            for g in range(2):
                a(f"s_lshl_b32 s{S_T0}, s{S_D}, 12\ns_add_u32 s{S_T0}, s{S_T0}, s{S_C}\ns_add_u32 m0, s{S_T0}, {A_WOFF + g*4096}\ns_nop 0")
                for i in range(4):
                    a(f"buffer_load_dwordx4 v{VW+4*g+i}, s[{R_W}:{R_W+3}], s{S_B} offen offset:{i*1024} lds")
            a(f"s_add_u32 s{S_B}, s{S_B}, {64*3840}")

        def next_slot():
            a(f"s_add_u32 s{S_C}, s{S_C}, {A_SLOT}\ns_cmp_ge_u32 s{S_C}, {3*A_SLOT}\ns_cselect_b32 s{S_T0}, {3*A_SLOT}, 0\ns_sub_u32 s{S_C}, s{S_C}, s{S_T0}")

        issue_x()
        a(f"""
        v_lshrrev_b32 v16, 5, v1
        v_bfe_u32 v17, v1, 1, 4
        v_and_b32 v18, 1, v1
        v_lshlrev_b32 v18, 4, v18
        v_mul_u32_u24 v19, 3840, v16
        v_add_u32 v18, v18, v19
        """)
        for i in (0, 1, 4, 5):
            sig = (2 * (i & 1)) | ((i >> 2) << 2)
            a(f"""
            v_or_b32 v19, {sig}, v16
            v_xor_b32 v19, v17, v19
            v_min_u32 v19, 14, v19
            v_mul_u32_u24 v20, 13, v19
            v_lshrrev_b32 v20, 6, v20
            v_mul_u32_u24 v20, 1120, v20
            v_lshl_add_u32 v19, v19, 5, v20
            v_add_u32 v19, v19, v18
            v_add_u32 v{VW+i}, {2*i*3840 - (i&3)*1024}, v19
            v_add_u32 v{VW+i+2}, {2*(i+2)*3840 - ((i+2)&3)*1024}, v19
            """)
        a(f"""
        s_mul_i32 s{S_B}, s{S_HG}, 160
        s_mul_i32 s{S_T0}, s{S_D}, {16*3840}
        s_add_u32 s{S_B}, s{S_B}, s{S_T0}
        """)
        issue_w()
        for _ in range(2):
            next_slot()
            issue_x()
            issue_w()
        a(f"s_waitcnt lgkmcnt(0)\ns_add_u32 s{S_TAG}, s{S_TAG}, {TAG_INC:#x}")
        a("s_waitcnt vmcnt(24)\ns_barrier")
        self.stamp(1, 16)
        a(f"s_mov_b32 s{S_CNT}, 1\nL_A_lloop:")
        a("s_waitcnt vmcnt(12)\ns_barrier")
        self.stamp(16, 16, dyn=S_CNT)
        next_slot()
        issue_x()
        issue_w()
        a(f"s_add_u32 s{S_CNT}, s{S_CNT}, 1\ns_cmp_le_u32 s{S_CNT}, 7\ns_cbranch_scc1 L_A_lloop")
        tw = 3 if self.o.get("tw2") == 1 else 0
        a(f"s_waitcnt vmcnt(12)\ns_barrier")
        if tw:
            self.w2_touch()
        self.stamp(24, 16)
        self.w2_setup()
        self.a_thread_map()
        a(f"s_waitcnt vmcnt({tw})\ns_barrier")
        self.stamp(25, 16)
        self.code_touch([("L_A_tail", 0), ("L_A_post", 0), ("L_F_comp", 0), ("L_F_comp", 1)])
        a("L_A_post:")
        eA = self.o.get("eA", 2)
        early = [3, 4, 5, 0, 1, 2]
        nE = self.o.get("nE", 6)
        sk = self.if_wave56()
        for p in early[:eA]:
            self.w2_issue_at(p)
        a(f"{sk}:\ns_barrier")
        self.stamp(26, 16)
        sk = self.if_wave56()
        for p in early[eA:nE]:
            self.w2_issue_at(p)
        a(f"{sk}:")
        a(f"s_cmp_eq_u32 s{S_WAVE}, 7\ns_cbranch_scc1 L_A_poller")
        a("s_barrier")
        self.a_reduce_publish(64)
        self.stamp(15, 40)
        a("s_barrier")
        self.kvt_zero()
        skip = self.if_wave56()
        for p in early[nE:] + [6, 7]:
            self.w2_issue_at(p)
        a(f"s_mov_b32 s{S_PERM}, s{S_PERM+1}")
        a("s_barrier")
        self.a_gather(64)
        a("s_waitcnt lgkmcnt(0)\ns_barrier")
        a("s_branch L_F_loader")
        a(f"{skip}:\ns_barrier")
        self.a_gather(64)
        a("s_waitcnt lgkmcnt(0)\ns_barrier")
        a("s_branch L_F_u4")
        a("L_A_poller:")
        a(f"""
        s_mul_i32 s{S_T0}, s{S_DTILE}, {FS}
        s_add_u32 s{S_T0}, s{S_T0}, {F_WOT}
        v_mov_b32 v16, s{S_T0}
        v_and_b32 v17, 3, v1
        s_lshl_b32 s{S_T0}, s{S_MT}, 2
        v_add_u32 v17, s{S_T0}, v17
        v_mul_u32_u24 v17, {FS}, v17
        v_add_u32 v17, {F_LN}, v17
        v_cmp_gt_u32 vcc, 32, v1
        s_nop 1
        v_cndmask_b32 v16, v17, v16, vcc
        """)
        self.poll([16], 18)
        self.stamp(13, 16)
        a("s_barrier\ns_barrier")
        self.kvt_zero()
        self.stamp(3, 16)
        a("s_barrier\ns_barrier")
        a("s_branch L_F_poller")
        self.a_gather_body(64)

    def code_touch(self, ranges):
        a = self.a
        if not self.o.get("ctouch"):
            return 0
        lab, ref = a.label("nct"), a.label("pc")
        a(f"s_cmp_lg_u32 s{S_WAVE}, 7\ns_cbranch_scc1 {lab}\ns_getpc_b64 s[{S_T0}:{S_T0+1}]\n{ref}:\nv_lshlrev_b32 v24, 7, v1")
        for (start, k) in ranges:
            a(f"s_add_u32 s{S_T0+2}, s{S_T0}, {start}-{ref}+{k*8192}\ns_addc_u32 s{S_T0+3}, s{S_T0+1}, {'-1' if start == 'L_A_tail' else '0'}")
            a(f"v_min_u32 v25, L_exit-{start}-{k*8192}, v24\nglobal_load_dword v253, v25, s[{S_T0+2}:{S_T0+3}]")
        a(f"{lab}:")
        return len(ranges)

    def kvt_zero(self):
        a = self.a
        a(f"v_lshlrev_b32 v16, 4, v1\ns_lshl_b32 s{S_T0}, s{S_D}, 12\ns_add_u32 s{S_T0}, s{S_T0}, {KVT}\nv_add_u32 v16, s{S_T0}, v16")
        a("v_mov_b32 v20, 0\nv_mov_b32 v21, 0\nv_mov_b32 v22, 0\nv_mov_b32 v23, 0")
        for i in range(4):
            a(f"ds_write_b128 v16, v[20:23] offset:{i*1024}")
        a("s_waitcnt lgkmcnt(0)")

    def start_prefetch(self):
        a = self.a
        self.srd(R_W, P_WQKV, 640 * 3840)
        a(f"""
        s_lshl_b32 s{S_T0}, s{S_J}, 2
        s_add_u32 s{S_T0}, s{S_T0}, s{S_WAVE}
        v_lshrrev_b32 v16, 2, v1
        v_and_b32 v17, 3, v1
        v_mul_u32_u24 v16, 1280, v16
        v_lshl_add_u32 v16, v17, 7, v16
        s_lshr_b32 s{S_T0+2}, s{S_MT}, 3
        s_lshl_b32 s{S_T0+2}, s{S_T0+2}, 7
        s_add_u32 s{S_T0+2}, s{S_T0+2}, s{S_T0}
        s_mul_i32 s{S_DT}, s{S_T0+2}, {8*1280}
        v_lshrrev_b32 v19, 4, v1
        v_and_b32 v17, 15, v1
        v_min_u32 v17, 14, v17
        v_mul_u32_u24 v18, 13, v17
        v_lshrrev_b32 v18, 6, v18
        v_mul_u32_u24 v18, 640, v18
        v_lshl_add_u32 v18, v17, 7, v18
        v_mul_u32_u24 v19, 3840, v19
        v_add_u32 v112, v18, v19
        s_lshr_b32 s{S_T0+2}, s{S_HG}, 2
        s_mul_i32 s{S_T0+2}, s{S_T0+2}, 640
        s_mul_i32 s{S_FT}, s{S_T0}, {2*3840}
        s_add_u32 s{S_FT}, s{S_FT}, s{S_T0+2}
        """)
        if self.o.get("ta1"):
            a(f"""
            s_mov_b32 exec_hi, 0
            buffer_load_dword v253, v112, s[{R_W}:{R_W+3}], s{S_FT} offen {self.nt('nta')}
            buffer_load_dword v253, v16, s[{R_X}:{R_X+3}], s{S_DT} offen {self.nt('ntax')}
            s_mov_b32 exec_hi, -1
            """)
        a(f"""
        s_mul_i32 s{S_FT}, s{S_T0}, {3*3840}
        s_add_u32 s{S_FT}, s{S_FT}, s{S_T0+2}
        s_add_u32 s{S_FT}, s{S_FT}, {256*3840}
        v_lshrrev_b32 v16, 3, v1
        v_and_b32 v17, 7, v1
        v_min_u32 v17, 5, v17
        v_mul_u32_u24 v16, 1280, v16
        v_lshl_add_u32 v113, v17, 7, v16
        s_add_u32 s{S_DT}, s{S_DT}, 512
        """)

    def pf_rest_plain(self):
        return f"""s_waitcnt vmcnt(0)
        s_mov_b32 exec_hi, 0xffff
        buffer_load_dword v253, v112, s[{R_W}:{R_W+3}], s{S_FT} offen
        s_mov_b32 exec_hi, -1
        buffer_load_dword v253, v113, s[{R_X}:{R_X+3}], s{S_DT} offen
        """

    def pf_rest(self):
        return f"""s_mov_b32 exec_hi, 0xffff
        buffer_load_dword v253, v112, s[{R_W}:{R_W+3}], s{S_FT} offen {self.nt('nta')}
        s_mov_b32 exec_hi, -1
        buffer_load_dword v253, v113, s[{R_X}:{R_X+3}], s{S_DT} offen {self.nt('ntax')}
        """

    def w2_touch(self):
        a = self.a
        self.srd(R_W2, P_W2, 1536 * 4096)
        a(f"""
        v_lshlrev_b32 v48, 7, v1
        s_lshl_b32 s{S_T0}, s{S_MT}, 3
        s_add_u32 s{S_T0}, s{S_T0}, s{S_HG}
        s_lshl_b32 s{S_T0}, s{S_T0}, 2
        s_add_u32 s{S_T0}, s{S_T0}, s{S_D}
        s_mul_i32 s{S_T0}, s{S_T0}, 12288
        buffer_load_dword v253, v48, s[{R_W2}:{R_W2+3}], s{S_T0} offen
        s_add_u32 s{S_T0}, s{S_T0}, 8192
        s_mov_b32 exec_hi, 0
        buffer_load_dword v253, v48, s[{R_W2}:{R_W2+3}], s{S_T0} offen
        """)
        self.srd(R_P, P_WO, 640 * 1280)
        a(f"""
        s_lshl_b32 s{S_T0}, s{S_MT}, 3
        s_add_u32 s{S_T0}, s{S_T0}, s{S_HG}
        s_lshl_b32 s{S_T0}, s{S_T0}, 2
        s_add_u32 s{S_T0}, s{S_T0}, s{S_D}
        s_mul_i32 s{S_T0}, s{S_T0}, 1664
        s_mov_b32 exec_lo, 0x1fff
        buffer_load_dword v253, v48, s[{R_P}:{R_P+3}], s{S_T0} offen
        s_mov_b64 exec, -1
        """)

    def tlb_warm(self):
        a = self.a
        mode = self.o["tlb"]
        wv = self.o.get("tlbw", 3)
        a(f"s_cmp_lg_u32 s{S_WAVE}, {wv}\ns_cbranch_scc1 L_notlb")
        self.srd(R_OUT, P_OUT, 2048 * 1280)
        self.srd(R_M, P_B2, 4096)
        self.srd(R_P, P_WO, 640 * 1280)
        self.srd(R_W, P_W1, 2048 * 3072)
        if mode == 1:
            a("v_lshlrev_b32 v4, 20, v1\nv_min_u32 v4, 0xf00000, v4\ns_mov_b64 exec, 0xffff")
            so = "0"
        else:
            a(f"v_lshlrev_b32 v4, 21, v1\ns_lshl_b32 s{S_T0}, s{S_J}, 16\ns_mov_b64 exec, 0x1f")
            so = f"s{S_T0}"
        for r in (R_WS, R_W2, R_OUT, R_W, R_P, R_M):
            a(f"buffer_load_dword v253, v4, s[{r}:{r+3}], {so} offen sc1")
        a("s_mov_b64 exec, -1\nL_notlb:")

    def code_prefetch(self):
        a = self.a
        a(f"""
        s_cmp_lg_u32 s{S_WAVE}, 3
        s_cbranch_scc1 L_nocpf
        s_cmp_ge_u32 s{S_J}, 5
        s_cbranch_scc1 L_nocpf
        s_getpc_b64 s[{S_T0}:{S_T0+1}]
        L_pcref:
        s_lshl_b32 s{S_T0+2}, s{S_J}, 13
        v_lshlrev_b32 v4, 7, v1
        v_add_u32 v4, s{S_T0+2}, v4
        v_min_u32 v4, L_end-L_pcref, v4
        global_load_dword v253, v4, s[{S_T0}:{S_T0+1}]
        L_nocpf:
        """)

    def a_thread_map(self):
        a = self.a
        a(f"""
        v_mul_u32_u24 v16, 625, v0
        v_lshrrev_b32 v16, 16, v16
        v_mul_u32_u24 v17, 105, v16
        v_sub_u32 v17, v0, v17
        v_mul_u32_u24 v19, 205, v17
        v_lshrrev_b32 v19, 12, v19
        v_mul_u32_u24 v18, 20, v19
        v_cmp_lt_u32 vcc, 99, v17
        v_sub_u32 v18, v17, v18
        s_nop 0
        v_cndmask_b32 v19, v19, v18, vcc
        v_mad_u32_u24 v19, v16, 5, v19
        v_mad_u32_u24 v20, v16, 20, v18
        v_lshrrev_b32 v21, 2, v19
        v_and_b32 v22, 3, v19
        v_lshrrev_b32 v23, 4, v20
        v_and_b32 v20, 15, v20
        v_lshl_add_u32 v20, v22, 4, v20
        v_lshl_add_u32 v2, v21, 1, v23
        v_lshlrev_b32 v2, 6, v2
        v_add_u32 v2, v2, v20
        v_lshlrev_b32 v2, 4, v2
        v_lshlrev_b32 v3, 4, v19
        v_add_u32 v3, 13312, v3
        v_cmp_lt_u32 vcc, 99, v17
        v_lshrrev_b32 v24, 1, v21
        v_and_b32 v21, 1, v21
        v_cndmask_b32 v2, v2, v3, vcc
        v_lshl_add_u32 v3, v23, 1, v24
        v_add_u32 v24, 11, v24
        v_lshl_add_u32 v22, v22, 4, v16
        v_cndmask_b32 v3, v3, v24, vcc
        v_cndmask_b32 v20, v20, v22, vcc
        v_lshl_add_u32 v3, v3, 6, v20
        v_lshlrev_b32 v3, 4, v3
        v_lshl_add_u32 v3, v21, 3, v3
        v_add_u32 v3, {KVT}, v3
        v_mov_b32 v25, 2
        v_cndmask_b32 v25, 1, v25, vcc
        v_mov_b32 v16, 420
        v_cmp_gt_u32 vcc, v16, v0
        v_lshlrev_b32 v14, 4, v0
        s_nop 0
        v_cndmask_b32 v15, 0, v25, vcc
        v_cndmask_b32 v2, 0, v2, vcc
        v_add_u32 v2, {EXCH}, v2
        """)

    def a_reduce_publish(self, T):
        a = self.a
        for w in range(4):
            a(f"ds_read_b128 {vr(T+4*w,4)}, v2 offset:{w*EXCH_ST}")
        a(f"""
        s_lshl_b32 s{S_T0}, s{S_HG}, 4
        s_add_u32 s{S_T0}, s{S_T0}, s{S_MT}
        s_mul_i32 s{S_T0}, s{S_T0}, {KVP_ST}
        s_add_u32 s{S_T0}, s{S_T0}, {KVP}
        v_cmp_ne_u32 vcc, 0, v15
        s_waitcnt lgkmcnt(0)
        v_pk_add_f32 {vr(T,2)}, {vr(T,2)}, {vr(T+4,2)}
        v_pk_add_f32 {vr(T+2,2)}, {vr(T+2,2)}, {vr(T+6,2)}
        v_pk_add_f32 {vr(T+8,2)}, {vr(T+8,2)}, {vr(T+12,2)}
        v_pk_add_f32 {vr(T+10,2)}, {vr(T+10,2)}, {vr(T+14,2)}
        v_pk_add_f32 {vr(T,2)}, {vr(T,2)}, {vr(T+8,2)}
        v_pk_add_f32 {vr(T+2,2)}, {vr(T+2,2)}, {vr(T+10,2)}
        v_mov_b32_sdwa v{T}, s{S_TAG} dst_sel:BYTE_0 dst_unused:UNUSED_PRESERVE src0_sel:BYTE_0
        v_mov_b32_sdwa v{T+1}, s{S_TAG} dst_sel:BYTE_0 dst_unused:UNUSED_PRESERVE src0_sel:BYTE_1
        v_mov_b32_sdwa v{T+2}, s{S_TAG} dst_sel:BYTE_0 dst_unused:UNUSED_PRESERVE src0_sel:BYTE_2
        v_mov_b32_sdwa v{T+3}, s{S_TAG} dst_sel:BYTE_0 dst_unused:UNUSED_PRESERVE src0_sel:BYTE_3
        s_mov_b64 exec, vcc
        buffer_store_dwordx4 {vr(T,4)}, v14, s[{R_WS}:{R_WS+3}], s{S_T0} offen sc1
        s_mov_b64 exec, -1
        """)

    S_RET = 88

    def a_gather(self, T):
        self.a(f"s_call_b64 s[{self.S_RET}:{self.S_RET+1}], L_gather")

    def a_gather_body(self, T):
        a = self.a
        MK = S_T0 + 4
        a("L_gather:")
        a(f"s_mul_i32 s{S_T0+1}, s{S_HG}, {16*KVP_ST}\ns_add_u32 s{S_T0+1}, s{S_T0+1}, {KVP}")
        a(f"v_cmp_ne_u32 s[{MK}:{MK+1}], 0, v15\ns_mov_b32 s{S_CNT}, 0\ns_lshl_b32 s{S_T0+2}, s{S_MT}, 1\ns_mov_b64 exec, s[{MK}:{MK+1}]")

        def pair(m):
            a(f"s_add_u32 s{S_T0}, s{S_T0+2}, {m}\ns_and_b32 s{S_T0}, s{S_T0}, 15\ns_mul_i32 s{S_T0}, s{S_T0}, {KVP_ST}\ns_add_u32 s{S_T0}, s{S_T0}, s{S_T0+1}")
            a(f"buffer_load_dwordx4 {vr(T+4*m,4)}, v14, s[{R_WS}:{R_WS+3}], s{S_T0} offen sc1\ns_add_u32 s{S_T0}, s{S_T0}, {KVP_ST}")
            a(f"buffer_load_dwordx4 {vr(T+4*m+4,4)}, v14, s[{R_WS}:{R_WS+3}], s{S_T0} offen sc1")
        for m in range(0, 16, 2):
            pair(m)
        for m in range(0, 16, 2):
            a(f"s_waitcnt vmcnt({14-m})\nL_gchk{m}:")
            for q in range(8):
                a(f"v_cmpx_eq_u32_sdwa vcc, v{T+4*m+q}, s{S_TAG} src0_sel:BYTE_0 src1_sel:BYTE_{q & 3}")
            a(f"""
            s_add_u32 s{S_CNT}, s{S_CNT}, 1
            s_cmp_eq_u64 exec, s[{MK}:{MK+1}]
            s_mov_b64 exec, s[{MK}:{MK+1}]
            s_cbranch_scc1 L_gok{m}
            s_cmp_ge_u32 s{S_CNT}, {SPIN_LIMIT}
            s_cbranch_scc1 L_gok{m}
            """)
            pair(m)
            a(f"s_waitcnt vmcnt(0)\ns_branch L_gchk{m}\nL_gok{m}:")
            for h in (0, 2):
                a(f"v_pk_add_f32 {vr(T+4*m+h,2)}, {vr(T+4*m+h,2)}, {vr(T+4*(m+1)+h,2)}")
            if m >= 2:
                for h in (0, 2):
                    a(f"v_pk_add_f32 {vr(T+h,2)}, {vr(T+h,2)}, {vr(T+4*m+h,2)}")
        a("s_mov_b64 exec, -1")
        a(f"""
        v_cvt_pk_bf16_f32 v{T}, v{T}, v{T+1}
        v_cvt_pk_bf16_f32 v{T+1}, v{T+2}, v{T+3}
        v_cmp_ne_u32 vcc, 0, v15
        v_cmp_eq_u32 s[{S_T0}:{S_T0+1}], 2, v15
        s_nop 1
        s_mov_b64 exec, vcc
        ds_write_b64 v3, {vr(T,2)}
        s_mov_b64 exec, s[{S_T0}:{S_T0+1}]
        ds_write_b64 v3, {vr(T,2)} offset:64
        ds_write_b64 v3, {vr(T,2)} offset:128
        ds_write_b64 v3, {vr(T,2)} offset:192
        s_mov_b64 exec, -1
        s_setpc_b64 s[{self.S_RET}:{self.S_RET+1}]
        """)

    def role_b(self):
        a = self.a
        a(f"L_roleB:\ns_mov_b32 s{S_FROMA}, 0")
        XR, B1R, GR, XS = 16, 36, 64, 84
        VPF = 8
        a(f"s_cmp_ge_u32 s{S_J}, 16\ns_cbranch_scc1 L_B_pfrole")
        a(f"""
        s_lshl_b32 s{S_KST}, s{S_XCD}, 4
        s_add_u32 s{S_KST}, s{S_KST}, s{S_J}
        s_lshl_b32 s{S_T0}, s{S_KST}, 3
        s_add_u32 s{S_T0}, s{S_T0}, s{S_WAVE}
        s_mul_i32 s{S_T0}, s{S_T0}, {4*1280}
        v_lshrrev_b32 v2, 4, v1
        v_and_b32 v3, 15, v1
        v_lshlrev_b32 v3, 4, v3
        v_mul_u32_u24 v4, 1280, v2
        v_add_u32 v4, v4, v3
        """)
        for c in ((2, 3, 4, 0, 1) if self.o.get("xord") else range(5)):
            a(f"buffer_load_dwordx4 {vr(XR+4*c,4)}, v4, s[{R_X}:{R_X+3}], s{S_T0} offen offset:{c*256} {self.nt('ntx')}")
        self.srd(R_M, P_GATE, 1280)
        for c in range(5):
            a(f"buffer_load_dwordx4 {vr(GR+4*c,4)}, v3, s[{R_M}:{R_M+3}], 0 offen offset:{c*256}")

        def common_setup():
            a(f"""
            s_mul_i32 s{S_M}, s{S_J}, 205
            s_lshr_b32 s{S_M}, s{S_M}, 10
            s_mul_i32 s{S_DT}, s{S_M}, 5
            s_sub_u32 s{S_DT}, s{S_J}, s{S_DT}
            s_mul_i32 s{S_FT}, s{S_XCD}, 6
            s_add_u32 s{S_FT}, s{S_FT}, s{S_M}
            """)
            self.srd(R_OUT, P_B1, 3072)
            a(f"v_lshrrev_b32 v5, 4, v1\nv_lshlrev_b32 v5, 3, v5\ns_lshl_b32 s{S_T0}, s{S_FT}, 7")
            for b in range(4):
                a(f"buffer_load_dwordx2 {vr(B1R+2*b,2)}, v5, s[{R_OUT}:{R_OUT+3}], s{S_T0} offen offset:{b*32}")
            a(f"""
            v_lshrrev_b32 v12, 3, v1
            v_lshrrev_b32 v13, 4, v1
            v_lshlrev_b32 v13, 1, v13
            v_and_b32 v14, 7, v1
            v_xor_b32 v13, v13, v14
            v_lshlrev_b32 v13, 4, v13
            v_mul_u32_u24 v12, 3072, v12
            v_add_u32 v{VPF}, v12, v13
            v_add_u32 v{VPF+1}, {8*3072-1024}, v{VPF}
            v_add_u32 v{VPF+2}, {2*(8*3072-1024)}, v{VPF}
            v_add_u32 v{VPF+3}, {3*(8*3072-1024)}, v{VPF}
            """)
            self.perm_setup(S_M, 16, 6, S_PERM, self.o.get("rotB"))
            a(f"""
            s_and_b32 s{S_T0}, s{S_WAVE}, 3
            s_lshl_b32 s{S_B}, s{S_T0}, 12
            s_mul_i32 s{S_A}, s{S_T0}, {32*3072}
            s_lshl_b32 s{S_T0}, s{S_FT}, 7
            s_add_u32 s{S_A}, s{S_A}, s{S_T0}
            """)

        def w1_at(p):
            a(f"s_bfe_u32 s{S_T0}, s{S_PERM}, {(4 << 16) | (4 * p):#x}\ns_mul_i32 s{S_T0}, s{S_T0}, {128*3072}")
            a(f"s_add_u32 m0, s{S_B}, {p*16384}\ns_add_u32 s{S_T0}, s{S_T0}, s{S_A}")
            for i in range(4):
                a(f"buffer_load_dwordx4 v{VPF+i}, s[{R_W}:{R_W+3}], s{S_T0} offen offset:{i*1024} lds")
        early = [3, 4, 5, 6, 7][:self.o.get("early", 0)]

        def wq_touch():
            self.srd(R_M, P_WQKV, 640 * 3840)
            a(f"""
            v_lshlrev_b32 v6, 7, v1
            s_mul_i32 s{S_T0+1}, s{S_T0+1}, 2880
            s_add_u32 s{S_T0+1}, s{S_T0+1}, {256*3840}
            s_mov_b64 exec, 0xffffff
            buffer_load_dword v253, v6, s[{R_M}:{R_M+3}], s{S_T0+1} offen
            s_mov_b64 exec, -1
            """)

        self.srd(R_W, P_W1, 2048 * 3072)
        common_setup()
        a("v_mov_b32 v124, 0\nv_mov_b32 v125, 0\nv_mov_b32 v126, 0x3f803f80\ns_waitcnt vmcnt(4)")
        self.stamp(11, 44)
        if early:
            a(f"s_cmp_lt_u32 s{S_WAVE}, 4\ns_cbranch_scc1 L_B_noearly")
            for p in early:
                w1_at(p)
            a("L_B_noearly:")
        for c in range(20):
            a(f"v_dot2c_f32_bf16 v124, v{XR+c}, v126\nv_lshlrev_b32 v{XS+2*c}, 16, v{XR+c}")
            a(f"v_dot2c_f32_bf16 v125, v{XR+c}, v{GR+c}\nv_and_b32 v{XS+2*c+1}, 0xffff0000, v{XR+c}")
        a("s_nop 1")

        def reduce16(regs):
            for mode in ("quad_perm:[1,0,3,2]", "quad_perm:[2,3,0,1]", "row_half_mirror", "row_mirror"):
                for r in regs:
                    a(f"v_add_f32_dpp v{r}, v{r}, v{r} {mode} row_mask:0xf bank_mask:0xf")
                a("s_nop 1" if len(regs) == 1 else "s_nop 0")

        reduce16([124, 125])
        a(f"""
        v_mul_f32 v126, {f2u(-1.0/640):#x}, v124
        v_mul_f32 v127, {f2u(-1.0/640):#x}, v124
        v_mul_f32 v125, {f2u(-1.4426950408889634):#x}, v125
        v_mov_b32 v128, 0
        v_mov_b32 v129, 0
        v_mov_b32 v130, 0
        v_mov_b32 v131, 0
        v_mov_b32 v132, 0
        v_mov_b32 v133, 0
        v_mov_b32 v134, 0
        v_mov_b32 v135, 0
        v_exp_f32 v125, v125
        """)
        for c in range(20):
            a(f"v_pk_add_f32 {vr(XS+2*c,2)}, {vr(XS+2*c,2)}, v[126:127]")
        a("v_add_f32 v125, 1.0, v125\nv_rcp_f32 v125, v125")
        for c in range(20):
            t = 128 + 2 * (c & 3)
            a(f"v_pk_fma_f32 {vr(t,2)}, {vr(XS+2*c,2)}, {vr(XS+2*c,2)}, {vr(t,2)}")
        a("v_pk_add_f32 v[128:129], v[128:129], v[130:131]\nv_pk_add_f32 v[132:133], v[132:133], v[134:135]\nv_pk_add_f32 v[128:129], v[128:129], v[132:133]\nv_add_f32 v128, v128, v129\ns_nop 1")
        reduce16([128])
        a(f"v_mov_b32 v126, {f2u(1e-5):#x}\nv_fmac_f32 v126, {f2u(1.0/640):#x}, v128\nv_rsq_f32 v126, v126")
        a(f"""
        s_lshl_b32 s{S_T0}, s{S_WAVE}, 2
        v_add_u32 v2, s{S_T0}, v2
        v_mov_b32 v127, v126
        v_mul_u32_u24 v4, {LN_ST}, v2
        v_add_u32 v4, v4, v3
        v_lshlrev_b32 v2, 2, v2
        """)
        for c4 in range(5):
            for c in range(4 * c4, 4 * c4 + 4):
                a(f"v_pk_mul_f32 {vr(XS+2*c,2)}, {vr(XS+2*c,2)}, v[126:127]")
            for c in range(4 * c4, 4 * c4 + 4):
                a(f"v_cvt_pk_bf16_f32 v{XR+c}, v{XS+2*c}, v{XS+2*c+1}")
            a(f"ds_write_b128 v4, {vr(XR+4*c4,4)} offset:{LNBUF + c4*256}")
        a(f"ds_write_b32 v2, v125 offset:{LNG}")
        a(f"""
        v_and_b32 v12, 15, v1
        v_lshrrev_b32 v13, 4, v1
        v_lshrrev_b32 v15, 2, v12
        v_lshl_add_u32 v15, v13, 2, v15
        v_mul_u32_u24 v15, {LN_ST}, v15
        v_and_b32 v2, 3, v12
        v_lshl_add_u32 v15, v2, 3, v15
        s_mul_i32 s{S_T0}, s{S_WAVE}, 160
        v_add_u32 v15, s{S_T0}, v15
        v_lshlrev_b32 v14, 4, v1
        v_lshlrev_b32 v2, 2, v1
        s_mul_i32 s{S_T0}, s{S_WAVE}, {5*65536}
        s_lshl_b32 s{S_T0+1}, s{S_KST}, 10
        s_add_u32 s{S_T0}, s{S_T0}, s{S_T0+1}
        s_add_u32 s{S_T0}, s{S_T0}, {HT}
        s_waitcnt lgkmcnt(0)
        s_add_u32 s{S_TAG}, s{S_TAG}, {TAG_INC:#x}
        s_barrier
        """)
        self.stamp(12, 44)
        for i in range(5):
            a(f"ds_read_b64_tr_b16 {vr(44+4*i,2)}, v15 offset:{LNBUF + i*32}")
            a(f"ds_read_b64_tr_b16 {vr(46+4*i,2)}, v15 offset:{LNBUF + i*32+16*LN_ST}")
        a(f"ds_read_b32 v125, v2 offset:{LNG}")
        for i in range(5):
            a(f"s_waitcnt lgkmcnt({9-2*i})")
            a(f"buffer_store_dwordx4 {vr(44+4*i,4)}, v14, s[{R_WS}:{R_WS+3}], s{S_T0} offen sc1")
            if i < 4:
                a(f"s_add_u32 s{S_T0}, s{S_T0}, 65536")
        a(f"""
        s_cmp_lg_u32 s{S_WAVE}, 0
        s_cbranch_scc1 L_B_nog
        s_lshl_b32 s{S_T0}, s{S_KST}, 7
        s_add_u32 s{S_T0}, s{S_T0}, {G_OFF}
        s_waitcnt lgkmcnt(0)
        s_mov_b32 exec_hi, 0
        buffer_store_dword v125, v2, s[{R_WS}:{R_WS+3}], s{S_T0} offen sc1
        s_mov_b32 exec_hi, -1
        L_B_nog:
        s_waitcnt vmcnt(0) lgkmcnt(0)
        s_barrier
        s_cmp_lg_u32 s{S_WAVE}, 0
        s_cbranch_scc1 L_B_nofl
        s_mul_i32 s{S_T0}, s{S_KST}, {FS}
        s_add_u32 s{S_T0}, s{S_T0}, {F_LN}
        """)
        self.flag_store(S_T0, 12)
        self.stamp(1, 12)
        a("L_B_nofl:")
        if self.o.get("wq") == 1:
            a(f"s_lshl_b32 s{S_T0+1}, s{S_KST}, 3\ns_add_u32 s{S_T0+1}, s{S_T0+1}, s{S_WAVE}")
            wq_touch()
        if self.o.get("wq") == 3:
            a(f"""
            s_lshl_b32 s{S_T0}, s{S_J}, 3
            s_add_u32 s{S_T0}, s{S_T0}, s{S_WAVE}
            s_add_u32 s{S_T0}, s{S_T0}, 128
            v_lshrrev_b32 v6, 3, v1
            v_and_b32 v7, 7, v1
            v_min_u32 v7, 5, v7
            v_mul_u32_u24 v6, 3072, v6
            v_lshl_add_u32 v7, v7, 7, v6
            s_mul_i32 s{S_T0}, s{S_T0}, {8*3072}
            s_mul_i32 s{S_T0+2}, s{S_XCD}, 768
            s_add_u32 s{S_T0}, s{S_T0}, s{S_T0+2}
            buffer_load_dword v253, v7, s[{R_W}:{R_W+3}], s{S_T0} offen {self.nt('ntw1')}
            """)
        a("s_branch L_B_join")
        a("L_B_pfrole:")
        self.srd(R_W, P_W1, 2048 * 3072)
        if self.o.get("pfdelay"):
            common_setup()
            a("s_waitcnt vmcnt(0)")
        wq = self.o.get("wq", 0)
        a(f"""
        s_sub_u32 s{S_T0}, s{S_J}, 16
        s_lshl_b32 s{S_T0}, s{S_T0}, 3
        s_add_u32 s{S_T0}, s{S_T0}, s{S_WAVE}
        s_lshl_b32 s{S_T0+1}, s{S_XCD}, 7
        s_add_u32 s{S_T0+1}, s{S_T0+1}, s{S_T0}
        v_lshrrev_b32 v6, 3, v1
        v_and_b32 v7, 7, v1
        v_min_u32 v7, 5, v7
        v_mul_u32_u24 v6, 3072, v6
        v_lshl_add_u32 v7, v7, 7, v6
        s_mul_i32 s{S_T0}, s{S_T0}, {8*3072}
        s_mul_i32 s{S_T0+2}, s{S_XCD}, 768
        s_add_u32 s{S_T0}, s{S_T0}, s{S_T0+2}
        buffer_load_dword v253, v7, s[{R_W}:{R_W+3}], s{S_T0} offen {self.nt('ntw1')}
        """)
        if wq in (0, 3):
            wq_touch()
        if wq != 3:
            a(f"""
            s_add_u32 s{S_T0}, s{S_T0}, {1024*3072}
            buffer_load_dword v253, v7, s[{R_W}:{R_W+3}], s{S_T0} offen {self.nt('ntw1b')}
            """)
        if self.o.get("promote"):
            k_ = 1 if wq != 3 else 0
            a(f"""
            s_sub_u32 s{S_T0+1}, s{S_T0}, {1024*3072*k_}
            s_waitcnt vmcnt({k_ + (1 if wq in (0, 3) else 0)})
            buffer_load_dword v253, v7, s[{R_W}:{R_W+3}], s{S_T0+1} offen
            """)
            if self.o.get("ntw1b"):
                a(f"s_waitcnt vmcnt(1)\nbuffer_load_dword v253, v7, s[{R_W}:{R_W+3}], s{S_T0} offen")
        if not self.o.get("pfdelay"):
            common_setup()
        self.stamp(15, 12)
        a(f"s_waitcnt lgkmcnt(0)\ns_add_u32 s{S_TAG}, s{S_TAG}, {TAG_INC:#x}")
        a(f"s_cmp_ge_u32 s{S_J}, 30\ns_cbranch_scc1 L_helper")
        N1 = self.o.get("n1", 8)
        NREG = self.o.get("nreg", 0)
        assert NREG == 0 or N1 == 8

        def w1_issue():
            t = self.perm_next(S_T0, S_PERM, 128 * 3072)
            t += f"s_mov_b32 m0, s{S_B}\ns_add_u32 s{S_T0}, s{S_T0}, s{S_A}\n"
            for i in range(4):
                t += f"buffer_load_dwordx4 v{VPF+i}, s[{R_W}:{R_W+3}], s{S_T0} offen offset:{i*1024} lds\n"
            t += f"s_add_u32 s{S_B}, s{S_B}, 16384\n"
            return t
        assert N1 == 8 and NREG == 0
        a(f"L_B_join:\ns_cmp_lt_u32 s{S_WAVE}, 4\ns_cbranch_scc1 L_B_comp0")
        for p in range(8):
            if early and p == early[0]:
                a(f"s_cmp_lt_u32 s{S_J}, 16\ns_cbranch_scc1 L_B_skipearly")
            w1_at(p)
            if early and p == early[-1]:
                a("L_B_skipearly:")
        a(f"s_mov_b32 s{S_PERM}, s{S_PERM+1}")
        a("s_branch L_B_aux\nL_B_comp0:")
        BF = 16
        GX = 131072
        split = self.o.get("gsplit")

        def gelu_setup(dblk_off):
            c = 0.7978845608028654
            k0 = -2.0 * c * 1.4426950408889634
            k1 = k0 * 0.044715
            a(f"""
            s_mov_b32 s{S_K0}, {f2u(k1):#x}
            s_mov_b32 s{S_K0+1}, {f2u(k1):#x}
            v_mov_b32 v44, {f2u(k0):#x}
            v_mov_b32 v45, {f2u(k0):#x}
            v_mov_b32 v46, 1.0
            v_mov_b32 v47, 1.0
            s_lshl_b32 s{S_K0+2}, s{S_DT}, 3
            s_lshl_b32 s{S_T0+1}, s{S_WAVE}, 1
            s_add_u32 s{S_K0+2}, s{S_K0+2}, s{S_T0+1}
            s_add_u32 s{S_K0+2}, s{S_K0+2}, {dblk_off & 0xffffffff:#x}
            s_mul_i32 s{S_K0+2}, s{S_K0+2}, {UW_ST}
            s_lshl_b32 s{S_T0+1}, s{S_FT}, 11
            s_add_u32 s{S_K0+2}, s{S_K0+2}, s{S_T0+1}
            s_add_u32 s{S_K0+2}, s{S_K0+2}, {UW}
            """)
            for b in range(4):
                a(f"v_lshlrev_b32 v{BF+4*b}, 16, v{B1R+2*b}\nv_and_b32 v{BF+4*b+1}, 0xffff0000, v{B1R+2*b}")
                a(f"v_lshlrev_b32 v{BF+4*b+2}, 16, v{B1R+2*b+1}\nv_and_b32 v{BF+4*b+3}, 0xffff0000, v{B1R+2*b+1}")

        def gelu_block(base, vl):
            for p in range(2):
                r = base + 8 * p
                T = 48
                for q in range(4):
                    a(f"v_pk_mul_f32 {vr(T+2*q,2)}, {vr(r+2*q,2)}, {vr(r+2*q,2)}")
                for q in range(4):
                    a(f"v_pk_fma_f32 {vr(T+2*q,2)}, {vr(T+2*q,2)}, s[{S_K0}:{S_K0+1}], v[44:45]")
                for q in range(4):
                    a(f"v_pk_mul_f32 {vr(T+2*q,2)}, {vr(T+2*q,2)}, {vr(r+2*q,2)}")
                for q in range(8):
                    a(f"v_exp_f32 v{T+q}, v{T+q}")
                for q in range(4):
                    a(f"v_pk_add_f32 {vr(T+2*q,2)}, {vr(T+2*q,2)}, v[46:47]")
                for q in range(8):
                    a(f"v_rcp_f32 v{T+q}, v{T+q}")
                for q in range(4):
                    a(f"v_pk_mul_f32 {vr(r+2*q,2)}, {vr(r+2*q,2)}, {vr(T+2*q,2)}")
                o = 56 + 4 * (p & 1)
                for q in range(4):
                    a(f"v_cvt_pk_bf16_f32 v{o+q}, v{r+2*q}, v{r+2*q+1}")
                a(f"buffer_store_dwordx4 {vr(o,4)}, v{vl}, s[{R_WS}:{R_WS+3}], s{S_K0+2} offen offset:{p*1024} sc1")

        PF, WF, ACC, VT, VL = 64, 128, 160, 8, 12
        a(f"""
        s_lshl_b32 s{S_T0}, s{S_DT}, 3
        s_lshl_b32 s{S_T0+1}, s{S_WAVE}, 1
        s_add_u32 s{S_D}, s{S_T0}, s{S_T0+1}
        s_lshl_b32 s{S_T0}, s{S_D}, 16
        s_add_u32 s{S_T0}, s{S_T0}, {HT}
        """)
        self.srd(R_P, P_WS, 65536, off_s=S_T0)
        a(f"s_add_u32 s{S_T0}, s{S_T0}, 65536")
        self.srd(R_M, P_WS, 65536, off_s=S_T0)
        a(f"v_lshlrev_b32 v{VL}, 4, v1\ns_mov_b32 s{S_B}, 0")
        a(self.perm_next(S_C, S_PERM, 4096))
        self.tr_addr(VT)
        a("s_waitcnt vmcnt(0)")
        gelu_setup(0)
        for r in range(32):
            a(f"v_mov_b32 v{ACC+r}, v{BF + (r & 15)}")
        a(f"s_lshl_b32 s{S_T0}, s{S_WAVE}, 12\ns_add_u32 s{S_T0}, s{S_T0}, {GX}\nv_add_u32 v13, s{S_T0}, v{VL}")
        a(f"s_cmp_lg_u32 s{S_WAVE}, 0\ns_cbranch_scc1 L_B_l3")
        prog = self.o.get("prog", 0)
        if prog:
            assert prog >= 4 * (4 + self.o.get("rotB", 0))
            a(f"v_min_u32 v2, {prog-1}, v1\nv_mul_u32_u24 v2, {FS}, v2\nv_add_u32 v2, {F_LN}, v2")
        else:
            a(f"v_mul_u32_u24 v2, {FS}, v1\nv_add_u32 v2, {F_LN}, v2")
        if not self.o.get("x_nopoll"):
            self.poll([2], 4)
        self.stamp(2, 4)
        a("L_B_l3:\ns_barrier")
        RP = (R_P, R_M)

        def pload(u, ks):
            if self.o.get("x_noload"):
                return "s_nop 0"
            sc = "" if self.o.get("x_nosc1") else "sc1"
            so = "0" if self.o.get("x_same") else f"s{S_C}"
            return "\n".join(f"buffer_load_dwordx4 {vr(PF+32*(u%2)+8*ks+4*d,4)}, v{VL}, s[{RP[d]}:{RP[d]+3}], {so} offen offset:{ks*1024} {sc}" for d in range(2))

        for t in range(2):
            for ks in range(4):
                a(pload(t, ks))
            a(self.perm_next(S_C, S_PERM, 4096))
            if t == 0:
                first_bar_here = len(a.L)

        def mk(u, bar, virtual=False, head=None, tail=None):
            uses = []
            for ks in range(4):
                for b in range(4):
                    g = ks * 4 + b
                    wb = WF + 4 * (g % 8)
                    off = u * 16384 + ks * 4096
                    reads = [(f"w{g}a", f"ds_read_b64_tr_b16 {vr(wb,2)}, v{VT+b} offset:{off}"),
                             (f"w{g}b", f"ds_read_b64_tr_b16 {vr(wb+2,2)}, v{VT+b} offset:{off+2048}")]
                    mf = []
                    for dd in range(2):
                        acc = vr(ACC + 16 * dd + 4 * b, 4)
                        mf.append(f"v_mfma_f32_16x16x32_bf16 {acc}, {vr(wb,4)}, {vr(PF+32*(u%2)+8*ks+4*dd,4)}, {acc}")
                    if self.o.get("x32"):
                        acc = vr(ACC + 16 * (b & 1), 16)
                        mf = [f"v_mfma_f32_32x32x16_bf16 {acc}, {vr(wb,4)}, {vr(PF+32*(u%2)+8*ks+4*(b>>1),4)}, {acc}"]
                    d = dict(reads=reads, need=[f"w{g}b"], mf=mf)
                    if b == 0:
                        d["vm"] = 14
                    if b == 3:
                        d["after"] = pload(u, ks)
                        if ks == 3:
                            d["after"] += "\n" + self.perm_next(S_C, S_PERM, 4096)
                            if u >= 1:
                                d["after"] += f"s_cmp_ge_u32 s{S_B}, 3\ns_cselect_b32 s{S_C}, 0x10000, s{S_C}"
                    uses.append(d)
            return dict(uses=uses, bar=bar, virtual=virtual, head=head, tail=tail)

        xo = "s_barrier\n" + "\n".join(f"v_xor_b32 v{VT+b}, 0x10000, v{VT+b}" for b in range(4))
        tail = f"s_add_u32 s{S_B}, s{S_B}, 1\ns_cmp_lt_u32 s{S_B}, 4\ns_cbranch_scc1 L_B_loop"
        st = [mk(0, "", head="L_B_loop:"), mk(1, "s_barrier"), mk(2, "s_barrier"), mk(3, "s_barrier", tail=tail), mk(0, xo, virtual=True)]
        a.L.insert(first_bar_here, "    s_barrier")
        nd = self.o.get("nodrain")
        LB = self.o.get("LB", 7)
        self.pipeline(st, LB, (16 - LB) if nd else 13, drain=not nd, wait_every=self.o.get('we', 2))
        if nd and not self.o.get("noEnd"):
            a("s_waitcnt lgkmcnt(0)\ns_barrier")
        self.stamp(3, 44)
        if split:
            a("s_nop 5")
            for i in range(4):
                a(f"ds_write_b128 v13, {vr(ACC+16+4*i,4)} offset:{i*1024}")
            a("s_waitcnt lgkmcnt(0)\ns_barrier")
            gelu_block(ACC, VL)
        else:
            a("s_waitcnt lgkmcnt(0)\ns_nop 4")
            gelu_block(ACC, VL)
            a(f"s_add_u32 s{S_K0+2}, s{S_K0+2}, {UW_ST}")
            gelu_block(ACC + 16, VL)
        self.stamp(10, 44)
        a("s_waitcnt vmcnt(0)\ns_barrier\ns_branch L_F_comp")

        a("L_B_aux:\ns_barrier")
        if split:
            assert NREG == 0
        assert NREG == 0
        ops = [(iv, 4) for iv in range(N1)]
        todo = [(iv, i) for iv in range(N1, 16) for i in range(4)]
        quota = self.o.get("quota", 12) / 3.0
        credit = 0.0
        eB = self.o.get("eB", 17)
        nB1 = self.o.get("nB1", 0)
        per = self.o.get("perB", 2)
        done_w2 = 0
        for tb in range(17):
            if tb < 16 and tb <= eB:
                assert all(iv != tb for iv, _ in todo), (tb, todo)
                last = max(i for i, (iv, _) in enumerate(ops) if iv == tb)
                n = sum(c for _, c in ops[last + 1:])
                if tb < 8:
                    n -= 4 * len(early)
                a(f"s_waitcnt vmcnt({max(0, min(n, 63)) if tb < eB else 0})")
            a("s_barrier")
            if tb < 16:
                self.stamp(16 + tb, 44)
            if tb == 0 and self.o.get("prog"):
                a(f"s_cmp_lg_u32 s{S_WAVE}, 7\ns_cbranch_scc1 L_B_nop1\nv_mul_u32_u24 v2, {FS}, v1\nv_add_u32 v2, {F_LN}, v2")
                a(f"buffer_load_dword v3, v2, s[{R_WS}:{R_WS+3}], 0 offen sc1\nL_B_nop1:")
            if tb == 1 and self.o.get("prog"):
                a(f"s_cmp_lg_u32 s{S_WAVE}, 7\ns_cbranch_scc1 L_B_nop2")
                a(f"s_waitcnt vmcnt(0)\nv_cmp_ne_u32 vcc, s{S_TAG}, v3\ns_nop 1\ns_cmp_eq_u64 vcc, 0\ns_cbranch_scc1 L_B_nop2")
                self.poll([2], 4)
                a("L_B_nop2:")
            if tb == self.o.get("ctB", 10):
                self.code_touch([("L_F_comp", 0), ("L_F_comp", 1)])
            if tb == 11 and split:
                gelu_setup(-7)
                a(f"v_lshlrev_b32 v12, 4, v1\ns_lshl_b32 s{S_T0}, s{S_WAVE}, 12\ns_add_u32 s{S_T0}, s{S_T0}, {GX - 4*4096}\nv_add_u32 v13, s{S_T0}, v12")
            if tb == eB:
                assert not todo
                self.w2_setup()
            if tb >= eB and done_w2 < nB1:
                k2 = min(per if tb < 16 else 8, nB1 - done_w2, tb - 9 - done_w2)
                sk = self.if_wave56()
                self.w2_prefill(k2)
                a(f"{sk}:")
                done_w2 += k2
            if todo and (todo[0][0] < 8 or tb >= 2):
                credit += 8 if todo[0][0] < 8 else quota
            setm0 = False
            while todo and credit >= 0.999 and (todo[0][0] < 8 or todo[0][0] <= tb + 6):
                iv, i = todo.pop(0)
                if i == 0:
                    if iv == 8:
                        a(f"s_and_b32 s{S_B}, s{S_B}, 0x1ffff")
                    a(self.perm_next(S_C, S_PERM, 128 * 3072) + f"s_add_u32 s{S_C}, s{S_C}, s{S_A}")
                if i == 0 or not setm0:
                    a(f"s_mov_b32 m0, s{S_B}\ns_nop 0")
                    setm0 = True
                a(f"buffer_load_dwordx4 v{VPF+i}, s[{R_W}:{R_W+3}], s{S_C} offen offset:{i*1024} lds")
                if i == 3:
                    a(f"s_add_u32 s{S_B}, s{S_B}, 16384")
                ops.append((iv, 1))
                credit -= 1
            if todo and todo[0][0] >= 8:
                credit = min(credit, quota)
        nxt = 16
        assert nxt == 16
        if self.o.get("noEnd"):
            assert done_w2 == nB1
        elif self.o.get("nodrain"):
            a("s_barrier")
        if eB == 17:
            self.w2_setup()
        if split:
            a("s_barrier")
            for i in range(4):
                a(f"ds_read_b128 {vr(64+4*i,4)}, v13 offset:{i*1024}")
            a("s_waitcnt lgkmcnt(0)")
            gelu_block(64, 12)
            a("s_waitcnt vmcnt(0)")
        skip = self.if_wave56()
        self.w2_prefill(nB1 - done_w2)
        a("s_barrier\ns_nop 7\ns_nop 7")
        self.w2_prefill(8 - nB1)
        a("s_branch L_F_loader")
        a(f"{skip}:\ns_barrier")
        a(f"s_cmp_lg_u32 s{S_WAVE}, 7\ns_cbranch_scc1 L_F_u4")
        a(f"s_mul_i32 s{S_T0}, s{S_DT}, 24\ns_add_u32 s{S_T0}, s{S_T0}, s{S_FT}\ns_mul_i32 s{S_T0}, s{S_T0}, {FS}\ns_add_u32 s{S_T0}, s{S_T0}, {F_U}")
        self.flag_store(S_T0, 12)
        self.stamp(4, 12)
        a("s_branch L_F_poller")

    def w2_l2_prefetch(self, VT):
        a = self.a
        self.srd(R_W2, P_W2, 1536 * 4096)
        a(f"""
        v_lshrrev_b32 v{VT}, 3, v1
        v_and_b32 v{VT+1}, 7, v1
        v_lshlrev_b32 v{VT+1}, 7, v{VT+1}
        v_lshl_add_u32 v{VT}, v{VT}, 12, v{VT+1}
        s_mul_i32 s{S_T0}, s{S_J}, 48
        s_and_b32 s{S_T0+1}, s{S_WAVE}, 3
        s_mul_i32 s{S_T0+1}, s{S_T0+1}, 12
        s_add_u32 s{S_T0}, s{S_T0}, s{S_T0+1}
        s_lshl_b32 s{S_T0}, s{S_T0}, 12
        s_lshr_b32 s{S_T0+1}, s{S_XCD}, 1
        s_lshl_b32 s{S_T0+1}, s{S_T0+1}, 10
        s_add_u32 s{S_T0}, s{S_T0}, s{S_T0+1}
        buffer_load_dword v{VT+2}, v{VT}, s[{R_W2}:{R_W2+3}], s{S_T0} offen
        s_add_u32 s{S_T0}, s{S_T0}, {8*4096}
        s_mov_b32 exec_hi, 0
        buffer_load_dword v{VT+3}, v{VT}, s[{R_W2}:{R_W2+3}], s{S_T0} offen
        s_mov_b64 exec, -1
        """)

    def tr_addr(self, VT):
        a = self.a
        a(f"""
        v_and_b32 v{VT+1}, 15, v1
        v_lshrrev_b32 v{VT+2}, 4, v1
        v_lshrrev_b32 v{VT+3}, 2, v{VT+1}
        v_lshl_add_u32 v{VT+3}, v{VT+2}, 2, v{VT+3}
        v_bfe_u32 v{VT+2}, v{VT+3}, 1, 2
        v_lshlrev_b32 v{VT+3}, 7, v{VT+3}
        v_lshl_add_u32 v{VT+3}, v{VT+2}, 5, v{VT+3}
        v_and_b32 v{VT+1}, 3, v{VT+1}
        v_lshl_add_u32 v{VT}, v{VT+1}, 3, v{VT+3}
        v_xor_b32 v{VT+1}, 32, v{VT}
        v_xor_b32 v{VT+2}, 64, v{VT}
        v_xor_b32 v{VT+3}, 96, v{VT}
        """)

    def helper(self):
        a = self.a
        a("L_helper:")
        a(f"""
        s_lshl_b32 s{S_D}, s{S_XCD}, 1
        s_add_u32 s{S_D}, s{S_D}, s{S_J}
        s_sub_u32 s{S_D}, s{S_D}, 30
        """)
        self.srd(R_W, P_WO, 640 * 1280)
        for p in range(5):
            a(f"""
            v_add_u32 v12, {p*64}, v1
            v_mul_u32_u24 v13, 205, v12
            v_lshrrev_b32 v13, 11, v13
            v_mul_u32_u24 v14, 10, v13
            v_sub_u32 v14, v12, v14
            v_lshlrev_b32 v14, 4, v14
            v_mul_u32_u24 v13, 1280, v13
            v_add_u32 v{16+p}, v13, v14
            """)
            if p in (1, 2, 3):
                a(f"v_subrev_u32 v{16+p}, {p*1024}, v{16+p}")
        a(f"""
        s_mov_b32 s{S_C}, s{S_WAVE}
        L_H_ld:
        s_mul_i32 s{S_A}, s{S_C}, {32*1280}
        s_mul_i32 s{S_T0}, s{S_D}, 160
        s_add_u32 s{S_A}, s{S_A}, s{S_T0}
        s_mul_i32 s{S_B}, s{S_C}, 5120
        s_mov_b32 m0, s{S_B}
        s_nop 0
        """)
        for p in range(4):
            a(f"buffer_load_dwordx4 v{16+p}, s[{R_W}:{R_W+3}], s{S_A} offen offset:{p*1024} lds")
        a(f"s_add_u32 m0, s{S_B}, 4096\ns_nop 0\nbuffer_load_dwordx4 v20, s[{R_W}:{R_W+3}], s{S_A} offen lds")
        a(f"""
        s_add_u32 s{S_C}, s{S_C}, 8
        s_cmp_lt_u32 s{S_C}, 20
        s_cbranch_scc1 L_H_ld
        v_and_b32 v12, 15, v1
        v_lshrrev_b32 v13, 4, v1
        v_lshrrev_b32 v14, 2, v12
        v_lshl_add_u32 v14, v13, 2, v14
        v_mul_u32_u24 v14, 160, v14
        v_and_b32 v12, 3, v12
        v_lshl_add_u32 v14, v12, 3, v14
        v_lshlrev_b32 v15, 4, v1
        s_waitcnt vmcnt(0)
        s_barrier
        s_mov_b32 s{S_C}, s{S_WAVE}
        L_H_tr:
        s_lshr_b32 s{S_T0}, s{S_C}, 1
        s_mul_i32 s{S_T0}, s{S_T0}, 5
        s_and_b32 s{S_T0+1}, s{S_C}, 1
        s_lshl_b32 s{S_T0+1}, s{S_T0+1}, 1
        s_add_u32 s{S_T0}, s{S_T0}, s{S_T0+1}
        s_add_u32 s{S_T0+1}, s{S_T0}, 1
        s_mul_i32 s{S_T0+2}, s{S_C}, 10
        s_sub_u32 s{S_T0+2}, s{S_T0+2}, 156
        s_add_u32 s{S_T0+3}, s{S_T0+2}, 5
        s_cmp_lt_u32 s{S_C}, 16
        s_cselect_b32 s{S_T0}, s{S_T0}, s{S_T0+2}
        s_cselect_b32 s{S_T0+1}, s{S_T0+1}, s{S_T0+3}
        s_mul_i32 s{S_T0}, s{S_T0}, 2560
        s_mul_i32 s{S_T0+1}, s{S_T0+1}, 2560
        v_add_u32 v12, s{S_T0}, v14
        v_add_u32 v13, s{S_T0+1}, v14
        """)
        for b in range(5):
            a(f"ds_read_b64_tr_b16 {vr(24+4*b,2)}, v12 offset:{b*32}\nds_read_b64_tr_b16 {vr(26+4*b,2)}, v13 offset:{b*32}")
        a(f"""
        s_mul_i32 s{S_T0}, s{S_D}, {5*UW_ST}
        s_lshl_b32 s{S_T0+1}, s{S_C}, 10
        s_add_u32 s{S_T0}, s{S_T0}, s{S_T0+1}
        s_add_u32 s{S_T0}, s{S_T0}, {UW + 49152}
        """)
        for b in range(5):
            a(f"s_waitcnt lgkmcnt({8-2*b})")
            a(f"buffer_store_dwordx4 {vr(24+4*b,4)}, v15, s[{R_WS}:{R_WS+3}], s{S_T0} offen sc1")
            if b < 4:
                a(f"s_add_u32 s{S_T0}, s{S_T0}, {UW_ST}")
        a(f"""
        s_add_u32 s{S_C}, s{S_C}, 8
        s_cmp_lt_u32 s{S_C}, 20
        s_cbranch_scc1 L_H_tr
        s_waitcnt vmcnt(0)
        s_barrier
        """)
        if self.o.get("hW2"):
            a(f"s_cmp_lg_u32 s{S_WAVE}, 7\ns_cbranch_scc1 L_H_nofl")
            a(f"s_mul_i32 s{S_T0}, s{S_D}, {FS}\ns_add_u32 s{S_T0}, s{S_T0}, {F_WOT}")
            self.flag_store(S_T0, 12)
            self.stamp(14, 12)
            a(f"""
            L_H_nofl:
            v_lshlrev_b32 v12, 7, v1
            s_lshl_b32 s{S_T0}, s{S_D}, 3
            s_add_u32 s{S_T0}, s{S_T0}, s{S_WAVE}
            s_lshl_b32 s{S_T0}, s{S_T0}, 13
            s_add_u32 s{S_T0}, s{S_T0}, {1024*4096}
            """)
            for k in range(4):
                a(f"buffer_load_dword v253, v12, s[{R_W2}:{R_W2+3}], s{S_T0} offen\ns_add_u32 s{S_T0}, s{S_T0}, {128*4096}")
        skip = self.if_wave56()
        self.w2_setup()
        self.w2_prefill(8)
        a(f"s_branch L_F_loader\n{skip}:")
        a(f"s_cmp_lt_u32 s{S_WAVE}, 4\ns_cbranch_scc1 L_F_comp\ns_cmp_lg_u32 s{S_WAVE}, 7\ns_cbranch_scc1 L_F_u4")
        if not self.o.get("hW2"):
            a(f"s_mul_i32 s{S_T0}, s{S_D}, {FS}\ns_add_u32 s{S_T0}, s{S_T0}, {F_WOT}")
            self.flag_store(S_T0, 12)
            self.stamp(14, 12)
        a("s_branch L_F_poller")

    F_WOT_REG = 172

    def uw_srd(self):
        a = self.a
        a(f"""
        s_mul_i32 s{S_T0}, s{S_DTILE}, 5
        s_add_u32 s{S_D}, s{S_T0}, s{S_WAVE}
        s_mul_i32 s{S_T0}, s{S_D}, {UW_ST}
        s_add_u32 s{S_T0}, s{S_T0}, {UW}
        """)
        self.srd(R_P, P_WS, UW_ST, off_s=S_T0)

    def wot_preload(self, VL):
        a = self.a
        for k in range(20):
            if k % 4 == 0:
                a(f"s_mov_b32 s{S_C}, {49152 + k*1024}")
            a(f"buffer_load_dwordx4 {vr(self.F_WOT_REG+4*k,4)}, v{VL}, s[{R_P}:{R_P+3}], s{S_C} offen offset:{(k%4)*1024} sc1")

    F_V = (4, 8, 12, 13, 47, 48, 52, 56, 168)
    F_SB = 72

    def f_setup(self):
        a = self.a
        VT, VT2, VL, VU4, VGA, VGH, VG8, GV, BV = self.F_V
        SB = self.F_SB
        self.srd(R_M, P_B2, 4096)
        self.srd(R_OUT, P_OUT, 2048 * 1280)
        self.tr_addr(VT2)
        a(f"""
        s_mul_i32 s{S_D}, s{S_DTILE}, 5
        s_add_u32 s{S_D}, s{S_D}, s{S_WAVE}
        v_mov_b32 v42, v{VT2}
        v_lshlrev_b32 v{VL}, 4, v1
        v_add_u32 v{VU4}, 0x20000, v{VL}
        v_and_b32 v{VGA}, 15, v1
        v_lshlrev_b32 v43, 1, v{VGA}
        v_lshlrev_b32 v{VGA}, 2, v{VGA}
        v_lshlrev_b32 v{VG8+3}, 3, v1
        """)
        for b in range(4):
            a(f"""
            s_add_u32 s{SB+b}, s{S_WAVE}, {b}
            s_and_b32 s{SB+b}, s{SB+b}, 3
            s_lshl_b32 s{S_T0}, s{SB+b}, 5
            v_xor_b32 v{VT+b}, s{S_T0}, v42
            s_lshl_b32 s{S_T0+1}, s{S_ST}, 7
            s_add_u32 s{S_T0}, s{S_T0}, s{S_T0+1}
            buffer_load_ushort v{BV+b}, v43, s[{R_M}:{R_M+3}], s{S_T0} offen
            v_add_u32 v{VT2+b}, 0x10000, v{VT+b}
            s_lshl_b32 s{S_T0}, s{SB+b}, 12
            v_add_u32 v{VG8+b}, s{S_T0}, v{VG8+3}
            s_add_u32 s{S_T0}, s{S_T0}, 0x10000
            v_add_u32 v{VGH+b}, s{S_T0}, v{VL}
            """)
        a(f"s_lshl_b32 s{S_A}, s{S_ST}, 8\ns_add_u32 s{S_A}, s{S_A}, {G_OFF}")
        self.f_perm()

    def f0_barrier(self):
        lab = self.a.label("f0")
        self.a(f"s_cmp_eq_u32 s{S_FROMA}, 1\ns_cbranch_scc1 {lab}\ns_barrier\n{lab}:")

    def final(self):
        a = self.a
        a("L_F_comp:")
        if self.stop == "phase1":
            a("s_branch L_end")
        PF, WF, ACC, ACC4, U4, WOT = 64, 112, 144, 160, 36, 172
        NPF = 3
        pre = True
        VT, VT2, VL, VU4, VGA, VGH, VG8, GV, BV = self.F_V
        SB = self.F_SB
        a(f"s_cmp_eq_u32 s{S_FROMA}, 1\ns_cbranch_scc1 L_F_nowot")
        self.uw_srd()
        self.f_setup()
        nstream = 12 if pre else 17

        def next_sc(step):
            if step < 12:
                return self.perm_next(S_C, S_PERM, 4096)
            return f"s_mov_b32 s{S_C}, {step*4096}\n"
        a("s_barrier")
        self.wot_preload(VL)
        a("L_F_nowot:")
        a(next_sc(0))
        a("s_barrier")
        S_C1, S_C2 = S_K0, S_K0 + 1

        def uload(t, ks, so):
            return f"buffer_load_dwordx4 {vr(PF+16*(t % NPF)+4*ks,4)}, v{VL}, s[{R_P}:{R_P+3}], s{so} offen offset:{ks*1024} sc1 ;@u{t}_{ks}"
        vis0 = []
        for ks in range(4):
            a(uload(0, ks, S_C))
            vis0.append(f"u0_{ks}")
        a(self.perm_next(S_C1, S_PERM, 4096) + self.perm_next(S_C2, S_PERM, 4096) + next_sc(3))
        a("s_barrier")

        ACC2 = 16
        blocks = [(ACC + 4 * b, b) for b in range(4)] + [(ACC4, 0)]
        fill = []
        for b in range(4):
            fill += [f"v_lshlrev_b32 v{BV+b}, 16, v{BV+b}", f"v_sub_f32 v{GV+b}, 1.0, v{GV+b}"]
        for r0, b in blocks:
            for k in range(4):
                fill.append(f"v_add_f32 v{r0+k}, v{BV+b}, v{r0+k}")

        stages = []
        for t in range(17):
            slot = t % 8
            hi = slot >= 4
            uses = []
            for ks in range(4):
                for b in range(4):
                    g = ks * 4 + b
                    wb = WF + 4 * (g % 8)
                    reads = []
                    u4 = U4 + 4 * (ks & 1)
                    if b == 0:
                        reads.append((f"u{ks}", f"ds_read_b128 {vr(u4,4)}, v{VU4} offset:{slot*4096 + ks*1024}"))
                    if t < 12:
                        off = (slot & 3) * 16384 + ks * 4096
                        va = (VT2 if hi else VT) + b
                        reads += [(f"w{g}a", f"ds_read_b64_tr_b16 {vr(wb,2)}, v{va} offset:{off}"),
                                  (f"w{g}b", f"ds_read_b64_tr_b16 {vr(wb+2,2)}, v{va} offset:{off+2048}")]
                    elif t < 16:
                        assert hi
                        off = (slot & 3) * 16384 + ks * 1024
                        reads += [(f"w{g}b", f"ds_read_b128 {vr(wb,4)}, v{VGH+b} offset:{off}")]
                    else:
                        off = (slot & 3) * 16384 + ks * 1024
                        assert not hi
                        reads += [(f"w{g}a", f"ds_read_b64 {vr(wb,2)}, v{VG8+b} offset:{off}"),
                                  (f"w{g}b", f"ds_read_b64 {vr(wb+2,2)}, v{VG8+b} offset:{off+512}")]
                    acc = vr((ACC if t < 12 else ACC2) + 4 * b, 4)
                    a4 = vr(ACC4 if t < 12 else ACC2 + 16, 4)
                    ring = t < nstream
                    pf = vr(PF + 16 * (t % NPF) + 4 * ks, 4) if ring else vr(WOT + 16 * (t - 12) + 4 * ks, 4)
                    first = t in (0, 12) and ks == 0
                    mf = [f"v_mfma_f32_16x16x32_bf16 {acc}, {pf}, {vr(wb,4)}, {0 if first else acc}"]
                    if b == 0:
                        mf.append(f"v_mfma_f32_16x16x32_bf16 {a4}, {vr(u4,4)}, {vr(wb,4)}, {0 if first else a4}")
                    d = dict(reads=reads, need=[f"w{g}b"], mf=mf)
                    if self.o.get("x_fewlds"):
                        if b == 0:
                            d["reads"] = reads[1:]
                        else:
                            d["reads"] = []
                            d["need"] = [f"w{g-b}b"]
                    if b == 0 and ring:
                        d["vneed"] = f"u{t}_{ks}"
                    if t == 0 and b in (0, 1):
                        d["after"] = uload(1 + b, ks, (S_C1, S_C2)[b])
                    if t == 1 and b == 1:
                        d["after"] = (f"s_lshl_b32 s{S_T0}, s{SB+ks}, 6\ns_add_u32 s{S_T0}, s{S_T0}, s{S_A}\n"
                                      f"buffer_load_dword v{GV+ks}, v{VGA}, s[{R_WS}:{R_WS+3}], s{S_T0} offen sc1 ;@g{ks}")
                    if b == 3 and t + NPF < nstream:
                        d["after"] = uload(t + NPF, ks, S_C)
                        if ks == 3 and t + NPF + 1 < nstream:
                            d["after"] += "\n" + next_sc(t + NPF + 1)
                    if self.o.get("wotl") and 3 <= t <= 7 and b == 1:
                        k = (t - 3) * 4 + ks
                        lab = a.label("nw")
                        d["before"] = (f"s_cmp_eq_u32 s{S_FROMA}, 1\ns_cbranch_scc0 {lab}\ns_mov_b32 s{S_T0}, {49152 + k*1024}\n"
                                       f"buffer_load_dwordx4 {vr(WOT+4*k,4)}, v{VL}, s[{R_P}:{R_P+3}], s{S_T0} offen sc1\n{lab}:")
                    if t >= 13 and fill and g < 15:
                        d["after"] = fill.pop(0)
                    uses.append(d)
            stages.append(dict(uses=uses, bar="s_barrier" if t else ""))
        nd = self.o.get("nodrain")
        LF = self.o.get("LF", 6)
        self.pipeline(stages, LF, (16 - LF) if nd else 13, drain=not nd, wait_every=self.o.get('we', 2), vis=vis0)
        self.stamp(8, 2)
        a(f"""
        v_and_b32 v2, 15, v1
        v_mul_u32_u24 v2, 1280, v2
        v_lshrrev_b32 v3, 4, v1
        v_lshl_add_u32 v2, v3, 3, v2
        s_mul_i32 s{S_A}, s{S_ST}, {64*1280}
        s_lshl_b32 s{S_T0+1}, s{S_D}, 5
        s_add_u32 s{S_B}, s{S_A}, s{S_T0+1}
        s_mul_i32 s{S_T0+1}, s{S_DTILE}, 160
        s_add_u32 s{S_A}, s{S_A}, s{S_T0+1}
        s_add_u32 s{S_A}, s{S_A}, 128
        """)
        assert not fill
        for i_, (r, b) in enumerate(blocks):
            for k in range(4):
                a(f"v_fma_f32 v{r+k}, v{r+k}, v{GV+b}, v{ACC2+4*i_+k}")
            a(f"s_mul_i32 s{S_T0}, s{SB+b}, {16*1280}\ns_add_u32 s{S_T0}, s{S_T0}, s{S_A if r == ACC4 else S_B}")
            a(f"v_cvt_pk_bf16_f32 v{r}, v{r}, v{r+1}\nv_cvt_pk_bf16_f32 v{r+1}, v{r+2}, v{r+3}")
            a(f"buffer_store_dwordx2 {vr(r,2)}, v2, s[{R_OUT}:{R_OUT+3}], s{S_T0} offen {['', 'sc1', 'nt', 'sc0 sc1'][self.o.get('osc', 0)]}")
        if self.stamps or self.o.get("dbg"):
            a("s_waitcnt vmcnt(0)")
            self.stamp(9, 2)
        if self.o.get("calib"):
            a(f"""
            L_cal:
            s_memrealtime s[96:97]
            s_waitcnt lgkmcnt(0)
            s_sub_u32 s96, s96, s98
            s_cmp_lt_u32 s96, {self.o.get("calib")*100}
            s_cbranch_scc1 L_cal
            """)
        a(f"s_or_b32 s{S_T0}, s2, s{S_WAVE}\ns_cmp_lg_u32 s{S_T0}, 0\ns_cbranch_scc1 L_end\ns_mov_b32 s{S_T0}, 0")
        self.flag_store(S_T0, 4)
        a("s_branch L_end")

        a("L_F_u4:")
        if self.stop == "phase1":
            a("s_branch L_end")
        a(f"""
        v_lshlrev_b32 v{VL}, 4, v1
        s_mul_i32 s{S_C}, s{S_DTILE}, {5*UW_ST}
        s_add_u32 s{S_C}, s{S_C}, {UW + 4*UW_ST}
        """)
        self.f_perm()
        self.f0_barrier()
        p4 = self.o.get("preW4")
        if p4:
            for k in range(20):
                if k % 4 == 0:
                    a(f"s_add_u32 s{S_T0}, s{S_C}, {49152 + k*1024}")
                a(f"buffer_load_dwordx4 {vr(64+4*k,4)}, v{VL}, s[{R_WS}:{R_WS+3}], s{S_T0} offen offset:{(k%4)*1024} sc1")
            a(f"v_add_u32 v{VU4}, 0x20000, v{VL}")
        a("s_barrier")

        def u4_issue(iv):
            if iv >= 12 and p4:
                for i in range(4):
                    a(f"ds_write_b128 v{VU4}, {vr(64+16*(iv-12)+4*i,4)} offset:{(iv % 8)*4096 + i*1024}")
                return
            if iv < 12:
                a(self.perm_next(S_T0, S_PERM, 4096) + f"s_mov_b32 m0, {0x20000 + (iv % 8)*4096:#x}\ns_add_u32 s{S_T0}, s{S_T0}, s{S_C}")
            else:
                a(f"s_mov_b32 m0, {0x20000 + (iv % 8)*4096:#x}\ns_add_u32 s{S_T0}, s{S_C}, {iv*4096}")
            for i in range(4):
                a(f"buffer_load_dwordx4 v{VL}, s[{R_WS}:{R_WS+3}], s{S_T0} offen offset:{i*1024} sc1 lds")
        order = []
        for iv in range(8):
            u4_issue(iv)
            order.append(iv)
            if iv == 1:
                a("s_waitcnt vmcnt(4)\ns_barrier")
        for tb in range(1, 17):
            if tb in order:
                a(f"s_waitcnt vmcnt({4*len(order[order.index(tb)+1:])})")
            a("s_waitcnt lgkmcnt(0)\ns_barrier" if p4 and tb >= 7 else "s_barrier")
            iv = tb + (6 if self.o.get("nodrain") else 7)
            if 8 <= iv <= 16:
                u4_issue(iv)
                if not (p4 and iv >= 12):
                    order.append(iv)
        a("s_branch L_end")

        a("L_F_loader:")
        if self.stop == "phase1":
            a("s_branch L_end")
        a(f"v_lshlrev_b32 v{VL}, 4, v1")
        self.f0_barrier()
        nWR = self.o.get("nWR", 0)
        V = self.V_W2
        if nWR:
            a(f"s_waitcnt vmcnt(30)\nv_add_u32 v{VU4}, s{S_B}, v{VL}")
            for k in range(nWR):
                a(self.perm_next(S_T0, S_PERM, 128 * 4096) + f"s_add_u32 s{S_T0}, s{S_T0}, s{S_A}")
                for g in range(2):
                    if g:
                        a(f"s_add_u32 s{S_T0}, s{S_T0}, {4*32768}")
                    for i in range(4):
                        a(f"buffer_load_dwordx4 {vr(64+32*k+16*g+4*i,4)}, v{V+i}, s[{R_W2}:{R_W2+3}], s{S_T0} offen offset:{i*1024}")
            a(f"s_add_u32 s{S_B}, s{S_B}, {nWR*16384}")
        a("s_barrier")
        a(f"""
        s_sub_u32 s{S_T0}, s{S_WAVE}, 5
        s_lshl_b32 s{S_T0}, s{S_T0}, 1
        s_lshl_b32 s{S_T0+1}, s{S_ST}, 2
        s_add_u32 s{S_T0+1}, s{S_T0+1}, s{S_T0}
        s_mul_i32 s{S_C}, s{S_T0+1}, {GO_ST}
        s_add_u32 s{S_C}, s{S_C}, {GO}
        s_lshl_b32 s{S_D}, s{S_T0}, 12
        """)
        assert nWR == 0
        ops = [(iv, 8) for iv in range(8)]
        for tb in range(17):
            last = max(i for i, (iv, _) in enumerate(ops) if iv == tb)
            n = sum(c for _, c in ops[last + 1:])
            a(f"s_waitcnt vmcnt({min(n,63)})\ns_barrier")
            if self.o.get("halfW"):
                if 2 <= tb <= 9:
                    self.w2_half((tb - 2) & 1)
                    ops.append((8 + (tb - 2) // 2, 4))
            elif 2 <= tb <= 5:
                self.w2_issue()
                ops.append((tb + 6, 8))
            if 9 <= tb <= 13:
                iv = tb + 3
                g = iv - 12
                for s2 in range(2):
                    a(f"s_add_u32 m0, s{S_D}, {(iv % 8)*16384 + s2*4096}\ns_add_u32 s{S_T0}, s{S_C}, {s2*GO_ST + g*4096}")
                    for i in range(4):
                        a(f"buffer_load_dwordx4 v{VL}, s[{R_WS}:{R_WS+3}], s{S_T0} offen offset:{i*1024} sc1 lds")
                ops.append((iv, 8))
        a("s_branch L_end")
        a("L_F_poller:")
        if self.stop == "phase1":
            a("s_branch L_end")
        a(f"s_cmp_eq_u32 s{S_FROMA}, 1\ns_cbranch_scc1 L_F_pnowot")
        a(f"s_mul_i32 s{S_T0}, s{S_DTILE}, {FS}\ns_add_u32 s{S_T0}, s{S_T0}, {F_WOT}\nv_mov_b32 v2, s{S_T0}")
        self.poll([2], 4)
        a("s_barrier\nL_F_pnowot:")
        a(f"""
        s_mul_i32 s{S_T0}, s{S_DTILE}, 5
        s_lshr_b32 s{S_T0+1}, s{S_T0}, 3
        s_add_u32 s{S_T0}, s{S_T0}, 4
        s_lshr_b32 s{S_T0}, s{S_T0}, 3
        s_mul_i32 s{S_T0}, s{S_T0}, 24
        s_mul_i32 s{S_T0+1}, s{S_T0+1}, 24
        v_and_b32 v2, 31, v1
        v_min_u32 v2, 23, v2
        v_add_u32 v3, s{S_T0}, v2
        v_add_u32 v2, s{S_T0+1}, v2
        v_cmp_gt_u32 vcc, 32, v1
        s_mul_i32 s{S_T0}, s{S_DTILE}, {FS}
        s_add_u32 s{S_T0}, s{S_T0}, {F_WOT}
        v_cndmask_b32 v2, v2, v3, vcc
        v_mul_u32_u24 v2, {FS}, v2
        v_add_u32 v2, {F_U}, v2
        v_mov_b32 v3, s{S_T0}
        v_cmp_eq_u32 vcc, 63, v1
        s_nop 1
        v_cndmask_b32 v2, v2, v3, vcc
        """)
        self.poll([2], 4)
        self.stamp(6, 4)
        a("s_barrier")
        a(f"""
        v_and_b32 v2, 7, v1
        s_lshr_b32 s{S_T0}, s{S_ST}, 1
        s_lshl_b32 s{S_T0}, s{S_T0}, 3
        v_add_u32 v2, s{S_T0}, v2
        v_mul_u32_u24 v2, {FS}, v2
        v_add_u32 v2, {F_GO}, v2
        """)
        gp = self.o.get("gopoll", 9)
        for tb in range(gp):
            a("s_barrier")
            if tb == 1:
                a(f"s_cmp_eq_u32 s{S_FROMA}, 1\ns_cbranch_scc0 L_F_nogo")
                a(f"s_lshl_b32 s{S_T0}, s{S_MT}, 3\ns_add_u32 s{S_T0}, s{S_T0}, s{S_HG}\ns_mul_i32 s{S_T0}, s{S_T0}, {FS}\ns_add_u32 s{S_T0}, s{S_T0}, {F_GO}")
                self.flag_store(S_T0, 6)
                a("L_F_nogo:")
            if tb == gp - 3:
                a(f"buffer_load_dword v8, v2, s[{R_WS}:{R_WS+3}], 0 offen sc1")
            self.stamp(32 + tb, 4)
        a(f"s_waitcnt vmcnt(0)\nv_cmp_ne_u32 vcc, s{S_TAG}, v8\ns_nop 1\ns_cmp_eq_u64 vcc, 0\ns_cbranch_scc1 L_F_gook")
        self.poll([2], 4)
        a("L_F_gook:")
        self.stamp(7, 4)
        for tb in range(gp, 17):
            a("s_barrier")
            self.stamp(32 + tb, 4)
        a("L_end:")
        if "probe" in self.o or "pc1" in self.o:
            a("""
            s_cmp_eq_u32 s94, 0
            s_cbranch_scc1 L_exit
            L_prb:
            s_memrealtime s[96:97]
            s_waitcnt lgkmcnt(0)
            s_sub_u32 s96, s96, s98
            s_cmp_lt_i32 s96, 4000
            s_cbranch_scc1 L_prb
            """)
        if self.stamps:
            a(f"""
            s_lshl_b32 s{S_T0}, s2, 3
            s_add_u32 s{S_T0}, s{S_T0}, s{S_WAVE}
            s_lshl_b32 s{S_T0}, s{S_T0}, 9
            s_add_u32 s{S_T0}, s{S_T0}, {STAMP}
            v_lshlrev_b32 v2, 3, v1
            buffer_store_dwordx2 v[254:255], v2, s[{R_WS}:{R_WS+3}], s{S_T0} offen
            """)
        a("L_exit:\ns_endpgm")

    def build(self, header):
        a = self.a
        self.prologue()
        self.role_a()
        self.role_b()
        self.helper()
        self.final()
        body = a.text()
        out = header
        out += f"; @launch grid=(256,1,1) block=(512,1,1) lds={LDS_BYTES}\n"
        out += f'.amdgcn_target "amdgcn-amd-amdhsa--gfx950"\n.text\n.globl {KNAME}\n.p2align 8\n.type {KNAME},@function\n{KNAME}:\n'
        out += body
        out += f""".section .rodata,"a"
.p2align 6
.amdhsa_kernel {KNAME}
  .amdhsa_next_free_vgpr 256
  .amdhsa_next_free_sgpr 102
  .amdhsa_accum_offset 256
  .amdhsa_group_segment_fixed_size 0
  .amdhsa_kernarg_size 96
  .amdhsa_user_sgpr_count 2
  .amdhsa_user_sgpr_kernarg_segment_ptr 1
  .amdhsa_system_sgpr_workgroup_id_x 1
  .amdhsa_float_denorm_mode_32 3
.end_amdhsa_kernel
"""
        return out


def header():
    ref = open("gated_mix__linear_attn_block__mixer_token_mlp__prompt.s.ref").read().split("\n")
    h = []
    for l in ref:
        if l.startswith("; Override"):
            break
        h.append(l)
    return "\n".join(h) + "\n"


if __name__ == "__main__":
    import argparse
    p = argparse.ArgumentParser()
    p.add_argument("-o", default="gated_mix__linear_attn_block__mixer_token_mlp__prompt.s")
    p.add_argument("--stamps", action="store_true")
    p.add_argument("--stop", default=None)
    p.add_argument("--opt", default="")
    args = p.parse_args()
    opts = {k: (int(v) if v != '' else 1) for k, _, v in (x.partition('=') for x in args.opt.split(',') if x)}
    g = Gen(stamps=args.stamps, stop=args.stop, opts=opts)
    open(args.o, "w").write(g.build(header()))
    print("wrote", args.o)
```

```python
import sys

KNAME = "gated_mix__linear_attn_block__mixer_token_mlp__prompt_kernel"

import os
FS = int(os.environ.get('FS', 128))
F_LN, F_KV, F_U, F_GO, F_WOT = 0x1000, 0x5000, 0x9000, 0xD000, 0x11000
G_OFF = 0x12000
STAMP = 0x900000
KVP = 0x20000
KVP_ST = 7168
HT = 0x100000
UW = 0x380000
UW_ST = 69632
GO = 0x640000
GO_ST = 20480
WS_USED = 0xA00000
TAG_INC = 0x9E3779B9
SPIN_LIMIT = 1 << 17

LDS_BYTES = 163840
LNBUF = 0
LN_ST = 1312
LNG = LNBUF + 32 * LN_ST
A_SLOT = 49152
A_WOFF = 16384
EXCH_ST = 14336
EXCH = LDS_BYTES - 4 * EXCH_ST
KVT = 147456
ZH = KVT + 11 * 1024

LOG2E = 0x3FB8AA3B


def f2u(x):
    import struct
    return struct.unpack("<I", struct.pack("<f", x))[0]


class Asm:
    def __init__(self):
        self.L = []
        self.nlab = 0

    def __call__(self, s):
        for line in s.split("\n"):
            line = line.strip()
            if line:
                self.L.append(("    " if not line.endswith(":") else "") + line)

    def label(self, base):
        self.nlab += 1
        return f"L{base}_{self.nlab}"

    def text(self):
        return "\n".join(self.L) + "\n"


def vr(a, n=1):
    return f"v{a}" if n == 1 else f"v[{a}:{a+n-1}]"


def sr(a, n=1):
    return f"s{a}" if n == 1 else f"s[{a}:{a+n-1}]"


P_X, P_WQKV, P_WO, P_BX, P_W1, P_B1, P_W2, P_B2 = 4, 6, 8, 10, 12, 14, 16, 18
P_GATE, P_OUT, P_DBG, P_WS = 20, 22, 24, 26
S_TAG, S_WAVE = 28, 29
S_XCD, S_J = 30, 31
R_WS, R_X, R_W, R_P, R_W2, R_M, R_OUT = 32, 36, 40, 44, 48, 52, 56
S_T0 = 60
S_MT, S_HG, S_DT, S_FT, S_KST, S_PAR = 70, 71, 72, 73, 74, 75
S_ST, S_DTILE = 76, 77
S_CNT = 78
S_A, S_B, S_C, S_D = 80, 81, 82, 83
S_MSK = 84
S_K0 = 90
S_STMP = 96
S_PERM = 66
S_M = 79
S_FROMA = 95
S_PERM2 = 68


def lead_perm(n, nshare, m, lead=2):
    order = list(range(n))
    i = m
    while i + lead < n:
        order[i:i + lead + 1] = [order[i + lead]] + order[i:i + lead]
        i += nshare
    return order


class Gen:
    def __init__(self, stamps=False, stop=None, opts=None):
        self.o = opts or {}
        self.a = Asm()
        self.stamps = stamps
        self.stop = stop

    def nt(self, key):
        return "nt" if self.o.get(key) else ""

    def srd(self, dst, ptr, nbytes, off_s=None):
        a = self.a
        if off_s is None:
            a(f"s_mov_b32 s{dst}, s{ptr}\ns_and_b32 s{dst+1}, s{ptr+1}, 0xffff")
        else:
            a(f"s_add_u32 s{dst}, s{ptr}, s{off_s}\ns_addc_u32 s{dst+1}, s{ptr+1}, 0\ns_and_b32 s{dst+1}, s{dst+1}, 0xffff")
        a(f"s_mov_b32 s{dst+2}, {nbytes:#x}\ns_mov_b32 s{dst+3}, 0x20000")

    def stamp(self, k, vtmp, dyn=None):
        if "pc1" in self.o:
            if dyn is None and k in (self.o["pc1"], self.o["pc2"]):
                lab = self.a.label("npr")
                self.a(f"s_cmp_lg_u32 s{S_FROMA}, {self.o.get('prole', 0)}\ns_cbranch_scc1 {lab}")
                if k == self.o["pc1"]:
                    self.a(f"s_memtime s[92:93]\ns_waitcnt lgkmcnt(0)")
                else:
                    self.a(f"s_memtime s[96:97]\ns_waitcnt lgkmcnt(0)\ns_sub_u32 s92, s96, s92\ns_lshr_b32 s92, s92, 4\ns_add_u32 s98, s98, s92\ns_mov_b32 s94, 1")
                self.a(f"{lab}:")
            return
        if "probe" in self.o:
            role = self.o.get("prole")
            if k == self.o["probe"] and dyn is None:
                lab = self.a.label("npr")
                if role is not None and k != 0:
                    self.a(f"s_cmp_lg_u32 s{S_FROMA}, {role}\ns_cbranch_scc1 {lab}")
                self.a(f"s_memrealtime s[98:99]\ns_mov_b32 s94, 1\ns_waitcnt lgkmcnt(0)\n{lab}:")
            return
        if self.o.get("dbg"):
            m = {0: 0, 11: 1, 1: 2, 2: 3, 3: 4, 4: 5, 6: 6, 9: 7}
            mA = {0: 0, 1: 1, 2: 2, 3: 3, 4: 4, 5: 5, 6: 6, 9: 7}
            if dyn is not None:
                return
            a = self.a
            for wg, mp, base in ((8, m, 0), (12, mA, 8)):
                if k in mp:
                    lab = a.label("nd")
                    a(f"s_cmp_lg_u32 s2, {wg}\ns_cbranch_scc1 {lab}")
                    a(f"s_memrealtime s[{S_STMP}:{S_STMP+1}]\ns_waitcnt lgkmcnt(0)")
                    a(f"v_mov_b32 v{vtmp}, s{S_STMP}\nv_mov_b32 v{vtmp+2}, {4*(base+mp[k])}")
                    a(f"s_mov_b64 exec, 1\nglobal_store_dword v{vtmp+2}, v{vtmp}, s[{P_DBG}:{P_DBG+1}]\ns_mov_b64 exec, -1\n{lab}:")
            return
        if not self.stamps:
            return
        a = self.a
        a(f"s_memrealtime s[{S_STMP}:{S_STMP+1}]\ns_memtime s[100:101]")
        ln = str(k)
        if dyn is not None:
            a(f"s_add_u32 m0, s{dyn}, {k}")
            ln = "m0"
        a(f"s_waitcnt lgkmcnt(0)\nv_writelane_b32 v254, s{S_STMP}, {ln}\nv_writelane_b32 v255, s100, {ln}")

    def perm_setup(self, s_m, n, nshare, dst, enable):
        a = self.a
        def pk(o):
            v = 0
            for i, x in enumerate(o):
                v |= x << (4 * i)
            return v & 0xffffffff, v >> 32
        lo, hi = pk(list(range(n)))
        a(f"s_mov_b32 s{dst}, {lo:#x}\ns_mov_b32 s{dst+1}, {hi:#x}")
        if not enable:
            return
        for m in range(nshare):
            lo, hi = pk(lead_perm(n, nshare, m, enable))
            a(f"s_cmp_eq_u32 s{s_m}, {m}\ns_cselect_b32 s{dst}, {lo:#x}, s{dst}\ns_cselect_b32 s{dst+1}, {hi:#x}, s{dst+1}")

    def perm_next(self, dst, src, mul):
        t = f"s_and_b32 s{dst}, s{src}, 15\ns_lshr_b64 s[{src}:{src+1}], s[{src}:{src+1}], 4\n"
        if mul & (mul - 1) == 0:
            t += f"s_lshl_b32 s{dst}, s{dst}, {mul.bit_length()-1}\n"
        else:
            t += f"s_mul_i32 s{dst}, s{dst}, {mul}\n"
        return t

    def poll(self, voffs, vtmp, mask=None):
        a = self.a
        lp, dn = a.label("poll"), a.label("pdone")
        n = len(voffs)

        def ld(k):
            for i, vo in enumerate(voffs):
                a(f"buffer_load_dword v{vtmp+k*n+i}, v{vo}, s[{R_WS}:{R_WS+3}], 0 offen sc1")

        def chk(k):
            if mask is not None:
                a(f"v_xor_b32 v{vtmp+k*n}, s{S_TAG}, v{vtmp+k*n}\nv_and_b32 v{vtmp+k*n}, v{mask}, v{vtmp+k*n}\nv_cmp_ne_u32 vcc, 0, v{vtmp+k*n}")
            else:
                a(f"v_cmp_ne_u32 vcc, s{S_TAG}, v{vtmp+k*n}")
            for i in range(1, n):
                a(f"v_cmp_ne_u32 s[{S_T0}:{S_T0+1}], s{S_TAG}, v{vtmp+k*n+i}\ns_nop 1\ns_or_b64 vcc, vcc, s[{S_T0}:{S_T0+1}]")
            a(f"s_nop 1\ns_cmp_eq_u64 vcc, 0\ns_cbranch_scc1 {dn}")
        if not self.o.get("pp"):
            a(f"s_mov_b32 s{S_CNT}, 0\n{lp}:")
            ld(0)
            a("s_waitcnt vmcnt(0)")
            chk(0)
            a(f"s_add_u32 s{S_CNT}, s{S_CNT}, 1\ns_cmp_lt_u32 s{S_CNT}, {SPIN_LIMIT}\ns_cbranch_scc0 {dn}\ns_sleep 1\ns_branch {lp}\n{dn}:")
            return
        sl = f"s_sleep {self.o['pp'] - 1}\n" if self.o["pp"] > 1 else ""
        a(f"s_mov_b32 s{S_CNT}, 0")
        ld(0)
        a(f"{sl}{lp}:")
        ld(1)
        a(f"s_waitcnt vmcnt({n})")
        chk(0)
        ld(0)
        a(f"s_waitcnt vmcnt({n})")
        chk(1)
        a(f"s_add_u32 s{S_CNT}, s{S_CNT}, 1\ns_cmp_lt_u32 s{S_CNT}, {SPIN_LIMIT}\ns_cbranch_scc1 {lp}\n{dn}:")

    def flag_store(self, s_off, vtmp):
        a = self.a
        a(f"v_mov_b32 v{vtmp}, s{S_TAG}\nv_mov_b32 v{vtmp+1}, 0\ns_mov_b64 exec, 1")
        a(f"buffer_store_dword v{vtmp}, v{vtmp+1}, s[{R_WS}:{R_WS+3}], s{s_off} offen sc1\ns_mov_b64 exec, -1")

    def pipeline(self, stages, L, gstar, drain=True, wait_every=2, vis=None):
        a = self.a
        seq = [(si, gi, u) for si, st in enumerate(stages) for gi, u in enumerate(st["uses"])]
        issued = []
        vis = list(vis or [])
        state = dict(nxt=0, opened=-1)
        pend = []

        def collect(lim):
            while state["nxt"] < len(seq) and state["nxt"] <= lim and seq[state["nxt"]][0] <= state["opened"]:
                si_, _, u_ = seq[state["nxt"]]
                for name, txt in u_["reads"]:
                    pend.append((f"{si_}:{name}", txt))
                state["nxt"] += 1
                if seq[state["nxt"] - 1][1] == len(stages[si_]["uses"]) - 1 and si_ + 1 < len(stages):
                    state["defer"] = list(stages[si_ + 1].get("pre", []))

        def out(txt):
            if ";@" in txt:
                vis.append(txt.split(";@")[1].strip())
            a(txt)

        def emit(n):
            for _ in range(min(n, len(pend))):
                name, txt = pend.pop(0)
                out(txt)
                if name:
                    issued.append(name)

        a(stages[0]["bar"])
        state["opened"] = 0
        collect(L - 1)
        emit(len(pend))
        n_real = sum(len(st["uses"]) for st in stages if not st.get("virtual"))
        covered = -1
        for f in range(n_real):
            si, gi, u = seq[f]
            nuse = len(stages[si]["uses"])
            if gi == 0 and stages[si].get("head"):
                assert not pend, pend
                a(stages[si]["head"])
                covered = -1
            if gi == gstar and si + 1 < len(stages):
                emit(len(pend))
                for x in state.pop("defer", []):
                    a(x)
                if drain:
                    a("s_waitcnt lgkmcnt(0)")
                    covered = len(issued) - 1
                a(stages[si + 1]["bar"])
                pend.extend((None, x) for x in stages[si + 1].get("bar_pend", []))
                state["opened"] = si + 1
                collect(f + L - 1)
            def lastidx(ff):
                s_, _, uu = seq[ff]
                return max(len(issued) - 1 - issued[::-1].index(f"{s_}:{nm}") for nm in uu["need"])
            w = []
            if lastidx(f) > covered:
                tgt = lastidx(f)
                for ff in range(f + 1, min(f + wait_every, n_real)):
                    if seq[ff][0] != si:
                        break
                    try:
                        tgt = max(tgt, lastidx(ff))
                    except ValueError:
                        break
                n = len(issued) - 1 - tgt
                assert n <= 15, n
                w.append(f"lgkmcnt({n})")
                covered = tgt
            if u.get("vneed") is not None:
                w.insert(0, f"vmcnt({len(vis) - 1 - vis.index(u['vneed'])})")
            if u.get("vm") is not None:
                npv = sum(1 for nm_, t_ in pend if t_.strip().startswith("buffer_load"))
                w.insert(0, f"vmcnt({u['vm'] - npv})")
            if w:
                a("s_waitcnt " + " ".join(w))
            if u.get("before"):
                a(u["before"])
            if state.get("defer") and not pend:
                n_ = self.o.get("npre", 7)
                pend.extend((None, x) for x in state["defer"][:n_])
                state["defer"] = state["defer"][n_:]
            collect(f + L)
            if state.get("mix"):
                k_ = state.pop("mix")
                head_, rest_ = pend[:k_], pend[k_:]
                pend[:] = [x for pr in zip(head_, rest_) for x in pr] + head_[len(rest_):] + rest_[len(head_):]
            nm_ = len(u["mf"])
            for k, m in enumerate(u["mf"]):
                a(m)
                left = nm_ - k
                if drain and gi >= gstar:
                    left += sum(len(uu["mf"]) for uu in stages[si]["uses"][gi + 1:])
                    extra = 2 * (nuse - 1 - gi)
                    emit(-(-(len(pend) + extra) // left) if left > 1 else len(pend))
                else:
                    emit(-(-len(pend) // left))
            if u.get("after"):
                items = [x for x in u["after"].split("\n") if x.strip()]
                if gi == nuse - 1:
                    for x in items:
                        out(x)
                else:
                    assert not pend
                    pend.extend((None, x) for x in items)
                    state["mix"] = len(items)
            if gi == nuse - 1 and stages[si].get("tail"):
                a(stages[si]["tail"])

    def prologue(self):
        a = self.a
        a(f"""
        s_cmp_ge_u32 s2, 256
        s_cbranch_scc1 L_exit
        {"v_mov_b32 v254, 0" if self.stamps else ""}
        {"v_mov_b32 v255, 0" if self.stamps else ""}
        {"s_memrealtime s[98:99]" if self.o.get("calib") or "pc1" in self.o else ""}
        {"s_mov_b32 s94, 0" if "probe" in self.o or "pc1" in self.o else ""}
        s_load_dwordx16 s[4:19], s[0:1], 0
        s_load_dwordx8 s[20:27], s[0:1], 64
        """)
        if self.o.get("pf_code") == 2:
            a(f"""
            s_getpc_b64 s[{S_T0}:{S_T0+1}]
            L_pcref:
            s_lshr_b32 s3, s2, 3
            s_mul_i32 s3, s3, 1280
            v_lshlrev_b32 v4, 7, v0
            v_add_u32 v4, s3, v4
            v_min_u32 v4, L_exit-L_pcref, v4
            v_cmp_gt_u32 vcc, 10, v0
            s_and_saveexec_b64 s[{S_T0+2}:{S_T0+3}], vcc
            s_cbranch_execz L_nocpf
            global_load_dword v253, v4, s[{S_T0}:{S_T0+1}]
            L_nocpf:
            s_mov_b64 exec, -1
            """)
        a(f"""
        v_and_b32 v1, 63, v0
        v_lshrrev_b32 v2, 6, v0
        s_and_b32 s{S_XCD}, s2, 7
        v_readfirstlane_b32 s{S_WAVE}, v2
        s_lshr_b32 s{S_J}, s2, 3
        s_waitcnt lgkmcnt(0)
        s_load_dword s{S_TAG}, s[{P_WS}:{P_WS+1}], 0
        """)
        self.srd(R_WS, P_WS, WS_USED)
        self.srd(R_X, P_X, 2048 * 1280)
        self.srd(R_W2, P_W2, 1536 * 4096)
        if self.stamps or self.o.get("dbg") or "probe" in self.o:
            a(f"s_cmp_lg_u32 s{S_WAVE}, 0\ns_cbranch_scc1 L_nost0")
            self.stamp(0, 4)
            a("L_nost0:")
        if self.o.get("tlb"):
            self.tlb_warm()
        if self.o.get("pf_code") == 1:
            self.code_prefetch()
        if self.o.get("prio"):
            a(f"""
            s_sub_u32 s{S_T0}, s{S_WAVE}, 4
            s_cmp_lt_u32 s{S_T0}, 3
            s_cbranch_scc1 L_noprio
            s_setprio 3
            L_noprio:
            """)
        a(f"""
        s_lshr_b32 s{S_T0}, s{S_XCD}, 1
        s_lshl_b32 s{S_T0}, s{S_T0}, 3
        s_lshr_b32 s{S_ST}, s{S_J}, 2
        s_add_u32 s{S_ST}, s{S_ST}, s{S_T0}
        s_and_b32 s{S_T0}, s{S_XCD}, 1
        s_lshl_b32 s{S_T0}, s{S_T0}, 2
        s_and_b32 s{S_DTILE}, s{S_J}, 3
        s_add_u32 s{S_DTILE}, s{S_DTILE}, s{S_T0}
        s_cmp_lt_u32 s{S_XCD}, 4
        s_cbranch_scc1 L_roleB
        """)

    V_W2 = 240

    def f_perm(self):
        a = self.a
        a(f"s_lshl_b32 s{S_M}, s{S_DTILE}, 1\ns_add_u32 s{S_M}, s{S_M}, s{S_ST}\ns_and_b32 s{S_M}, s{S_M}, 7")
        self.perm_setup(S_M, 12, 8, S_PERM, self.o.get("rotF"))

    def w2_setup(self):
        a = self.a
        V = self.V_W2
        self.f_perm()
        a(f"""
        v_lshrrev_b32 v{V}, 3, v1
        v_lshrrev_b32 v{V+1}, 4, v1
        v_lshlrev_b32 v{V+1}, 1, v{V+1}
        v_and_b32 v{V+2}, 7, v1
        v_xor_b32 v{V+1}, v{V+1}, v{V+2}
        v_lshlrev_b32 v{V+1}, 4, v{V+1}
        v_lshl_add_u32 v{V}, v{V}, 12, v{V+1}
        v_add_u32 v{V+1}, {32768-1024}, v{V}
        v_add_u32 v{V+2}, {2*(32768-1024)}, v{V}
        v_add_u32 v{V+3}, {3*(32768-1024)}, v{V}
        s_sub_u32 s{S_T0}, s{S_WAVE}, 5
        s_lshl_b32 s{S_B}, s{S_T0}, 13
        s_lshl_b32 s{S_A}, s{S_T0}, 18
        s_lshl_b32 s{S_T0}, s{S_ST}, 7
        s_add_u32 s{S_A}, s{S_A}, s{S_T0}
        """)

    def w2_issue_at(self, p):
        a = self.a
        V = self.V_W2
        a(f"s_bfe_u32 s{S_T0}, s{S_PERM}, {(4 << 16) | (4 * p):#x}\ns_lshl_b32 s{S_T0}, s{S_T0}, 19\ns_add_u32 s{S_T0}, s{S_T0}, s{S_A}")
        for g in range(2):
            a(f"s_add_u32 m0, s{S_B}, {p*16384 + g*4096}")
            a(f"s_add_u32 s{S_T0}, s{S_T0}, {g*4*32768}")
            for i in range(4):
                a(f"buffer_load_dwordx4 v{V+i}, s[{R_W2}:{R_W2+3}], s{S_T0} offen offset:{i*1024} lds")

    def w2_half(self, g):
        a = self.a
        V = self.V_W2
        if g == 0:
            a(self.perm_next(S_K0, S_PERM, 128 * 4096) + f"s_add_u32 s{S_K0}, s{S_K0}, s{S_A}")
        a(f"s_add_u32 m0, s{S_B}, {g*4096}\ns_add_u32 s{S_T0}, s{S_K0}, {g*4*32768}")
        for i in range(4):
            a(f"buffer_load_dwordx4 v{V+i}, s[{R_W2}:{R_W2+3}], s{S_T0} offen offset:{i*1024} lds")
        if g == 1:
            a(f"s_add_u32 s{S_B}, s{S_B}, 16384")

    def w2_issue(self):
        a = self.a
        V = self.V_W2
        a(self.perm_next(S_T0, S_PERM, 128 * 4096))
        a(f"s_add_u32 s{S_T0}, s{S_T0}, s{S_A}")
        for g in range(2):
            a(f"s_add_u32 m0, s{S_B}, {g*4096}")
            a(f"s_add_u32 s{S_T0}, s{S_T0}, {g*4*32768}")
            for i in range(4):
                a(f"buffer_load_dwordx4 v{V+i}, s[{R_W2}:{R_W2+3}], s{S_T0} offen offset:{i*1024} lds")
        a(f"s_add_u32 s{S_B}, s{S_B}, 16384\ns_and_b32 s{S_B}, s{S_B}, 0x1ffff")

    def w2_prefill(self, n):
        if n == 0:
            return
        a = self.a
        lp = a.label("pf")
        a(f"s_mov_b32 s{S_C}, 0\n{lp}:")
        self.w2_issue()
        a(f"s_add_u32 s{S_C}, s{S_C}, 1\ns_cmp_lt_u32 s{S_C}, {n}\ns_cbranch_scc1 {lp}")

    def if_wave56(self):
        a = self.a
        skip = a.label("n56")
        a(f"s_sub_u32 s{S_T0}, s{S_WAVE}, 5\ns_cmp_lt_u32 s{S_T0}, 2\ns_cbranch_scc0 {skip}")
        return skip

    def role_a(self):
        a = self.a
        a(f"L_roleA:\ns_mov_b32 s{S_FROMA}, 1")
        a(f"s_sub_u32 s{S_MT}, s{S_ST}, 16\ns_mov_b32 s{S_HG}, s{S_DTILE}")
        a(f"s_cmp_ge_u32 s{S_WAVE}, 4\ns_cbranch_scc1 L_A_loader")
        ACC, XF, WF, VXA, VWA = 128, 96, 64, 4, 6
        if self.o.get("ta1") or self.o.get("ta2"):
            self.start_prefetch()
        self.a_thread_map()
        a(f"""
        v_and_b32 v16, 15, v1
        v_lshrrev_b32 v17, 4, v1
        s_lshl_b32 s{S_T0}, s{S_WAVE}, 5
        v_add_u32 v18, s{S_T0}, v16
        v_lshrrev_b32 v19, 1, v16
        v_xor_b32 v19, v17, v19
        v_lshlrev_b32 v19, 4, v19
        v_lshl_add_u32 v{VXA}, v18, 7, v19
        v_xor_b32 v{VXA+1}, 64, v{VXA}
        v_lshrrev_b32 v18, 2, v16
        v_lshl_add_u32 v19, v17, 3, v18
        v_and_b32 v20, 1, v17
        v_lshl_or_b32 v20, v20, 2, v18
        v_lshlrev_b32 v19, 9, v19
        v_lshl_add_u32 v19, v20, 5, v19
        v_and_b32 v20, 3, v16
        v_lshl_add_u32 v19, v20, 3, v19
        v_add_u32 v{VWA}, {A_WOFF}, v19
        """)
        for n in range(1, 8):
            a(f"v_xor_b32 v{VWA+n}, {n<<5}, v{VWA}")
        for r in range(120):
            a(f"v_mov_b32 v{ACC+r}, 0")
        a(f"s_mov_b32 s{S_A}, 0\ns_mov_b32 s{S_B}, 0\ns_mov_b32 s{S_C}, {A_SLOT}\ns_waitcnt lgkmcnt(0)")
        a(f"s_add_u32 s{S_TAG}, s{S_TAG}, {TAG_INC:#x}")

        RING = 6
        D = 6

        def mk_stage(bar, virtual=False, head=None, tail=None):
            uses = []
            for g in range(30):
                ks, n = divmod(g, 15)
                wb = WF + 4 * (g % RING)
                reads = []
                if g == 0:
                    for rb in range(2):
                        reads.append((f"x0{rb}", f"ds_read_b128 {vr(XF+4*rb,4)}, v{VXA} offset:{rb*2048}"))
                if g == 13:
                    for rb in range(2):
                        reads.append((f"x1{rb}", f"ds_read_b128 {vr(XF+8+4*rb,4)}, v{VXA+1} offset:{rb*2048}"))
                off = ks * 16384 + (n >> 3) * 256
                reads.append((f"w{g}a", f"ds_read_b64_tr_b16 {vr(wb,2)}, v{VWA+(n&7)} offset:{off}"))
                reads.append((f"w{g}b", f"ds_read_b64_tr_b16 {vr(wb+2,2)}, v{VWA+(n&7)} offset:{off+2048}"))
                need = [f"w{g}b", f"x{ks}1"]
                mf = []
                for rb in range(2):
                    acc = vr(ACC + (n * 2 + rb) * 4, 4)
                    xf = vr(XF + ks * 8 + rb * 4, 4)
                    wf = vr(wb, 4)
                    if n < 5:
                        mf.append(f"v_mfma_f32_16x16x32_bf16 {acc}, {wf}, {xf}, {acc}")
                    else:
                        mf.append(f"v_mfma_f32_16x16x32_bf16 {acc}, {xf}, {wf}, {acc}")
                uses.append(dict(reads=reads, need=need, mf=mf))
            return dict(uses=uses, bar=bar, virtual=virtual, head=head, tail=tail)

        adv = "s_barrier"
        pre = [f"s_add_u32 s{S_B}, s{S_B}, 1", f"s_cmp_eq_u32 s{S_B}, 3", f"s_cselect_b32 s{S_B}, 0, s{S_B}",
               f"s_cselect_b32 s{S_T0}, {(-2*A_SLOT) & 0xffffffff:#x}, s{S_C}"]
        pre += [f"v_add_u32 v{r}, s{S_T0}, v{r}" for r in range(VXA, VWA + 8)]
        tail = f"s_add_u32 s{S_A}, s{S_A}, 1\ns_cmp_lt_u32 s{S_A}, 10\ns_cbranch_scc1 L_A_loop"
        head = "L_A_loop:\n"
        bar0 = "s_barrier"
        self.uw_srd()
        if self.o.get("tw2") == 2:
            self.srd(R_M, P_WO, 640 * 1280)
            a(f"""
            v_lshlrev_b32 v252, 7, v1
            s_lshl_b32 s{S_T0}, s{S_MT}, 3
            s_add_u32 s{S_T0}, s{S_T0}, s{S_HG}
            s_lshl_b32 s{S_T0}, s{S_T0}, 2
            s_add_u32 s{S_T0}, s{S_T0}, s{S_WAVE}
            s_mul_i32 s{S_D}, s{S_T0}, {8192 if self.o.get("hW2") else 12288}
            s_add_u32 s{S_KST}, s{S_D}, 8192
            s_mul_i32 s{S_PAR}, s{S_T0}, 1664
            s_and_b32 s{S_M}, s{S_J}, 7
            s_add_u32 s{S_M}, s{S_M}, {self.o.get("tw2at", 1)}
            """)
            head += f"""
            s_cmp_lg_u32 s{S_A}, s{S_M}
            s_cbranch_scc1 L_A_nt2
            buffer_load_dword v253, v252, s[{R_W2}:{R_W2+3}], s{S_D} offen
            s_mov_b32 exec_hi, 0
            {"" if self.o.get("hW2") else f"buffer_load_dword v253, v252, s[{R_W2}:{R_W2+3}], s{S_KST} offen"}
            s_mov_b32 exec_lo, 0x1fff
            {"" if self.o.get("woLN") else f"buffer_load_dword v253, v252, s[{R_M}:{R_M+3}], s{S_PAR} offen"}
            s_mov_b64 exec, -1
            L_A_nt2:
            """
        if "promA" in self.o:
            head += f"s_cmp_lg_u32 s{S_A}, {self.o['promA']}\ns_cbranch_scc1 L_A_npr\n" + self.pf_rest_plain() + "L_A_npr:\n"
        ta2 = self.o.get("ta2")
        if ta2 == 1:
            a(self.pf_rest())
        elif ta2 == 2:
            bar0 += "\n" + self.pf_rest()
        elif ta2:
            head += f"s_cmp_lg_u32 s{S_A}, {ta2-2}\ns_cbranch_scc1 L_A_npf\n" + self.pf_rest() + "L_A_npf:\n"
        self.pipeline([mk_stage(bar0, head=head, tail=tail), dict(mk_stage(adv, virtual=True), pre=pre)], 5, 30 - 3, wait_every=self.o.get('we', 2))
        self.stamp(2, 16)
        PK, VV, ONES, KVD, ZD = 16, 36, 56, 64, 116
        a("L_A_tail:\ns_waitcnt lgkmcnt(0)\ns_nop 7")
        a(f"s_mov_b32 s{S_K0}, {LOG2E:#x}\ns_mov_b32 s{S_K0+1}, {LOG2E:#x}\ns_mov_b32 s{S_K0+2}, {f2u(1e-6):#x}")

        def phi(base, n, t):
            for i in range(0, n, 4):
                r = base + i
                a(f"v_pk_mul_f32 {vr(t,2)}, {vr(r,2)}, s[{S_K0}:{S_K0+1}]")
                a(f"v_pk_mul_f32 {vr(t+2,2)}, {vr(r+2,2)}, s[{S_K0}:{S_K0+1}]")
                for k in range(4):
                    a(f"v_exp_f32_e64 v{t+k}, v{t+k} clamp")
                for k in range(4):
                    a(f"v_max_f32 v{r+k}, s{S_K0+2}, v{r+k}")
                a(f"v_pk_add_f32 {vr(r,2)}, {vr(r,2)}, {vr(t,2)}")
                a(f"v_pk_add_f32 {vr(r+2,2)}, {vr(r+2,2)}, {vr(t+2,2)}")

        def pack(dst, src0, src1):
            a(f"v_cvt_pk_bf16_f32 v{dst}, v{src0}, v{src0+1}\nv_cvt_pk_bf16_f32 v{dst+1}, v{src0+2}, v{src0+3}")
            if src1 is None:
                a(f"v_mov_b32 v{dst+2}, 0\nv_mov_b32 v{dst+3}, 0")
            else:
                a(f"v_cvt_pk_bf16_f32 v{dst+2}, v{src1}, v{src1+1}\nv_cvt_pk_bf16_f32 v{dst+3}, v{src1+2}, v{src1+3}")

        for b in range(5):
            pack(VV + 4 * b, ACC + (10 + b) * 8, ACC + (10 + b) * 8 + 4)
        for k in range(4):
            a(f"v_mov_b32 v{ONES+k}, 0x3f803f80")
        phi(ACC + 40, 40, 60)
        for b in range(5):
            pack(PK + 4 * b, ACC + (5 + b) * 8, ACC + (5 + b) * 8 + 4)
        a("s_nop 1")
        ZD = ACC + 80
        blocks = [(x, y) for x in range(5) for y in range(5) if abs(x - y) <= 1]
        for (x, y) in blocks:
            a(f"v_mfma_f32_16x16x32_bf16 {vr(KVD+4*(2*x+y),4)}, {vr(PK+4*x,4)}, {vr(VV+4*y,4)}, 0")
        for x in range(5):
            a(f"v_mfma_f32_16x16x32_bf16 {vr(ZD+4*x,4)}, {vr(ONES,4)}, {vr(PK+4*x,4)}, 0")
        a(f"""
        s_mul_i32 s{S_T0}, s{S_WAVE}, {EXCH_ST}
        s_add_u32 s{S_T0}, s{S_T0}, {EXCH}
        v_lshlrev_b32 v60, 4, v1
        v_add_u32 v60, s{S_T0}, v60
        v_and_b32 v61, 15, v1
        v_lshlrev_b32 v61, 2, v61
        v_add_u32 v61, s{S_T0}, v61
        s_nop 3
        """)
        for i in range(13):
            a(f"ds_write_b128 v60, {vr(KVD+4*i,4)} offset:{i*1024}")
        for x in range(5):
            a(f"ds_write_b32 v61, v{ZD+4*x} offset:{13312+64*x}")
        self.stamp(10, 40)
        a("s_waitcnt lgkmcnt(0)\ns_barrier")
        self.stamp(11, 40)
        self.a_reduce_publish(64)
        self.stamp(12, 40)
        a("v_lshlrev_b32 v59, 4, v1\ns_barrier")
        self.stamp(14, 40)
        self.wot_preload(59)
        PQ = 16
        phi(ACC, 40, 60)
        for ts in range(3):
            for rb in range(2):
                pack(PQ + (ts * 2 + rb) * 4, ACC + (2 * ts * 2 + rb) * 4, None if ts == 2 else ACC + ((2 * ts + 1) * 2 + rb) * 4)
        self.f_setup()
        a("s_barrier")
        a(f"""
        v_and_b32 v63, 15, v1
        v_lshlrev_b32 v63, 2, v63
        s_lshl_b32 s{S_T0}, s{S_MT}, 7
        s_lshl_b32 s{S_T0+1}, s{S_WAVE}, 5
        s_add_u32 s{S_T0}, s{S_T0}, s{S_T0+1}
        s_lshl_b32 s{S_T0}, s{S_T0}, 2
        s_add_u32 s{S_T0}, s{S_T0}, {G_OFF}
        buffer_load_dword v62, v63, s[{R_WS}:{R_WS+3}], s{S_T0} offen sc1
        buffer_load_dword v61, v63, s[{R_WS}:{R_WS+3}], s{S_T0} offen offset:64 sc1
        """)
        self.a_gather(64)
        a("s_waitcnt lgkmcnt(0)\ns_barrier")
        self.stamp(4, 40)
        FR = 64
        a("v_lshlrev_b32 v60, 4, v1\nv_add_u32 v60, " + str(KVT) + ", v60")
        used = [0, 2, 3, 4, 5, 7, 8, 9, 10, 11, 12, 13]
        for f in used:
            a(f"ds_read_b128 {vr(FR+4*f,4)}, v60 offset:{f*1024}")
        NUM, DEN = 128, 120
        kts = {0: [0], 1: [0, 1], 2: [0, 1], 3: [1, 2], 4: [1, 2]}
        a(f"""
        v_lshrrev_b32 v40, 4, v1
        v_cmp_gt_u32 s[{S_MSK}:{S_MSK+1}], 1, v40
        v_cmp_gt_u32 s[{S_MSK+2}:{S_MSK+3}], 2, v40
        v_cmp_gt_u32 s[{S_MSK+4}:{S_MSK+5}], 3, v40
        s_waitcnt lgkmcnt(0)
        """)
        for rb in range(2):
            for ts in range(3):
                c = "0" if ts == 0 else vr(DEN + 4 * rb, 4)
                a(f"v_mfma_f32_16x16x32_bf16 {vr(DEN+4*rb,4)}, {vr(FR+4*(11+ts),4)}, {vr(PQ+(ts*2+rb)*4,4)}, {c}")
        for rb in range(2):
            for b in range(5):
                for i, ts in enumerate(kts[b]):
                    d = vr(NUM + (rb * 5 + b) * 4, 4)
                    c = "0" if i == 0 else d
                    a(f"v_mfma_f32_16x16x32_bf16 {d}, {vr(FR+4*(2*b+ts),4)}, {vr(PQ+(ts*2+rb)*4,4)}, {c}")
        for rb in range(2):
            for h in range(4):
                a(f"v_add_f32 v{DEN+4*rb+h}, s{S_K0+2}, v{DEN+4*rb+h}")
        for rb in range(2):
            for h in range(4):
                a(f"v_rcp_f32 v{DEN+4*rb+h}, v{DEN+4*rb+h}")
        a("s_nop 0")
        gv = {0: 62, 1: 61}
        for rb in range(2):
            for h in range(4):
                a(f"v_mul_f32 v{DEN+4*rb+h}, v{gv[rb]}, v{DEN+4*rb+h}")
        a(f"""
        s_lshl_b32 s{S_T0}, s{S_MT}, 3
        s_lshl_b32 s{S_T0+1}, s{S_WAVE}, 1
        s_add_u32 s{S_T0}, s{S_T0}, s{S_T0+1}
        s_mul_i32 s{S_T0}, s{S_T0}, {GO_ST}
        s_add_u32 s{S_T0}, s{S_T0}, {GO}
        s_lshl_b32 s{S_T0+1}, s{S_HG}, 11
        s_add_u32 s{S_T0+1}, s{S_T0+1}, s{S_T0}
        s_lshl_b32 s{S_T0+2}, s{S_HG}, 9
        s_add_u32 s{S_T0+2}, s{S_T0+2}, s{S_T0}
        s_add_u32 s{S_T0+2}, s{S_T0+2}, 16384
        v_lshlrev_b32 v40, 4, v1
        v_lshlrev_b32 v41, 3, v1
        """)
        for rb in range(2):
            d = DEN + 4 * rb
            a(f"v_cndmask_b32 v44, v{d+1}, v{d}, s[{S_MSK}:{S_MSK+1}]")
            a(f"v_cndmask_b32 v45, v{d+2}, v{d+1}, s[{S_MSK+2}:{S_MSK+3}]")
            a(f"v_cndmask_b32 v46, v{d+3}, v{d+2}, s[{S_MSK+4}:{S_MSK+5}]")
            sc = [d, 44, 45, 46, d + 3]
            for b in range(5):
                for k in range(4):
                    r = NUM + (rb * 5 + b) * 4 + k
                    a(f"v_mul_f32 v{r}, v{sc[b]}, v{r}")
            o = 16 + rb * 12
            n0 = NUM + rb * 20
            pack(o, n0, n0 + 4)
            pack(o + 4, n0 + 8, n0 + 12)
            a(f"v_cvt_pk_bf16_f32 v{o+8}, v{n0+16}, v{n0+17}\nv_cvt_pk_bf16_f32 v{o+9}, v{n0+18}, v{n0+19}")
            a(f"buffer_store_dwordx4 {vr(o,4)}, v40, s[{R_WS}:{R_WS+3}], s{S_T0+1} offen sc1")
            a(f"buffer_store_dwordx4 {vr(o+4,4)}, v40, s[{R_WS}:{R_WS+3}], s{S_T0+1} offen offset:1024 sc1")
            a(f"buffer_store_dwordx2 {vr(o+8,2)}, v41, s[{R_WS}:{R_WS+3}], s{S_T0+2} offen sc1")
            if rb == 0:
                a(f"s_add_u32 s{S_T0+1}, s{S_T0+1}, {GO_ST}\ns_add_u32 s{S_T0+2}, s{S_T0+2}, {GO_ST}")
        self.stamp(5, 40)
        a("s_branch L_F_comp")

        a("L_A_loader:")
        VX, VW = 4, 8
        self.srd(R_W, P_WQKV, 640 * 3840)
        a(f"""
        s_sub_u32 s{S_D}, s{S_WAVE}, 4
        v_lshrrev_b32 v16, 3, v1
        v_lshrrev_b32 v17, 4, v1
        v_and_b32 v18, 7, v1
        v_xor_b32 v17, v17, v18
        v_lshlrev_b32 v17, 4, v17
        v_mul_u32_u24 v16, 1280, v16
        v_add_u32 v{VX}, v16, v17
        v_xor_b32 v18, 64, v{VX}
        v_add_u32 v{VX+1}, {8*1280-1024}, v18
        v_add_u32 v{VX+2}, {2*(8*1280-1024)}, v{VX}
        v_add_u32 v{VX+3}, {3*(8*1280-1024)}, v18
        s_lshl_b32 s{S_T0}, s{S_MT}, 7
        s_lshl_b32 s{S_T0+1}, s{S_D}, 5
        s_add_u32 s{S_T0}, s{S_T0}, s{S_T0+1}
        s_mul_i32 s{S_A}, s{S_T0}, 1280
        s_lshl_b32 s{S_C}, s{S_D}, 12
        """)
        def issue_x():
            a(f"s_mov_b32 m0, s{S_C}\ns_nop 0")
            for i in range(4):
                a(f"buffer_load_dwordx4 v{VX+i}, s[{R_X}:{R_X+3}], s{S_A} offen offset:{i*1024} lds")
            a(f"s_add_u32 s{S_A}, s{S_A}, 128")

        def issue_w():
            for g in range(2):
                a(f"s_lshl_b32 s{S_T0}, s{S_D}, 12\ns_add_u32 s{S_T0}, s{S_T0}, s{S_C}\ns_add_u32 m0, s{S_T0}, {A_WOFF + g*4096}\ns_nop 0")
                for i in range(4):
                    a(f"buffer_load_dwordx4 v{VW+4*g+i}, s[{R_W}:{R_W+3}], s{S_B} offen offset:{i*1024} lds")
            a(f"s_add_u32 s{S_B}, s{S_B}, {64*3840}")

        def next_slot():
            a(f"s_add_u32 s{S_C}, s{S_C}, {A_SLOT}\ns_cmp_ge_u32 s{S_C}, {3*A_SLOT}\ns_cselect_b32 s{S_T0}, {3*A_SLOT}, 0\ns_sub_u32 s{S_C}, s{S_C}, s{S_T0}")

        issue_x()
        a(f"""
        v_lshrrev_b32 v16, 5, v1
        v_bfe_u32 v17, v1, 1, 4
        v_and_b32 v18, 1, v1
        v_lshlrev_b32 v18, 4, v18
        v_mul_u32_u24 v19, 3840, v16
        v_add_u32 v18, v18, v19
        """)
        for i in (0, 1, 4, 5):
            sig = (2 * (i & 1)) | ((i >> 2) << 2)
            a(f"""
            v_or_b32 v19, {sig}, v16
            v_xor_b32 v19, v17, v19
            v_min_u32 v19, 14, v19
            v_mul_u32_u24 v20, 13, v19
            v_lshrrev_b32 v20, 6, v20
            v_mul_u32_u24 v20, 1120, v20
            v_lshl_add_u32 v19, v19, 5, v20
            v_add_u32 v19, v19, v18
            v_add_u32 v{VW+i}, {2*i*3840 - (i&3)*1024}, v19
            v_add_u32 v{VW+i+2}, {2*(i+2)*3840 - ((i+2)&3)*1024}, v19
            """)
        a(f"""
        s_mul_i32 s{S_B}, s{S_HG}, 160
        s_mul_i32 s{S_T0}, s{S_D}, {16*3840}
        s_add_u32 s{S_B}, s{S_B}, s{S_T0}
        """)
        issue_w()
        for _ in range(2):
            next_slot()
            issue_x()
            issue_w()
        a(f"s_waitcnt lgkmcnt(0)\ns_add_u32 s{S_TAG}, s{S_TAG}, {TAG_INC:#x}")
        a("s_waitcnt vmcnt(24)\ns_barrier")
        self.stamp(1, 16)
        a(f"s_mov_b32 s{S_CNT}, 1\nL_A_lloop:")
        a("s_waitcnt vmcnt(12)\ns_barrier")
        self.stamp(16, 16, dyn=S_CNT)
        next_slot()
        issue_x()
        issue_w()
        a(f"s_add_u32 s{S_CNT}, s{S_CNT}, 1\ns_cmp_le_u32 s{S_CNT}, 7\ns_cbranch_scc1 L_A_lloop")
        tw = 3 if self.o.get("tw2") == 1 else 0
        a(f"s_waitcnt vmcnt(12)\ns_barrier")
        if tw:
            self.w2_touch()
        self.stamp(24, 16)
        self.w2_setup()
        self.a_thread_map()
        a(f"""
        s_mul_i32 s{S_T0}, s{S_DTILE}, {FS}
        s_add_u32 s{S_T0}, s{S_T0}, {F_WOT}
        v_mov_b32 v26, s{S_T0}
        v_and_b32 v27, 3, v1
        s_lshl_b32 s{S_T0}, s{S_MT}, 2
        v_add_u32 v27, s{S_T0}, v27
        v_mul_u32_u24 v27, {FS}, v27
        v_add_u32 v27, {F_LN}, v27
        v_cmp_gt_u32 vcc, 32, v1
        s_nop 1
        v_cndmask_b32 v26, v27, v26, vcc
        """)
        a(f"s_waitcnt vmcnt({tw})\ns_barrier")
        a(f"buffer_load_dword v28, v26, s[{R_WS}:{R_WS+3}], 0 offen sc1")
        self.stamp(25, 16)
        self.code_touch([("L_A_tail", 0), ("L_A_post", 0), ("L_F_comp", 0), ("L_F_comp", 1)])
        a("L_A_post:")
        eA = self.o.get("eA", 2)
        early = [3, 4, 5, 0, 1, 2]
        nE = self.o.get("nE", 6)
        sk = self.if_wave56()
        for p in early[:eA]:
            self.w2_issue_at(p)
        a(f"{sk}:\ns_barrier")
        self.stamp(26, 16)
        sk = self.if_wave56()
        for p in early[eA:nE]:
            self.w2_issue_at(p)
        a(f"{sk}:")
        a(f"s_cmp_eq_u32 s{S_WAVE}, 7\ns_cbranch_scc1 L_A_poller")
        a("s_barrier")
        self.a_reduce_publish(64)
        self.stamp(15, 40)
        a("s_barrier")
        self.kvt_zero()
        skip = self.if_wave56()
        for p in early[nE:] + [6, 7]:
            self.w2_issue_at(p)
        a(f"s_mov_b32 s{S_PERM}, s{S_PERM+1}")
        a("s_barrier")
        self.a_gather(64)
        a("s_waitcnt lgkmcnt(0)\ns_barrier")
        a("s_branch L_F_loader")
        a(f"{skip}:\ns_barrier")
        self.a_gather(64)
        a("s_waitcnt lgkmcnt(0)\ns_barrier")
        a("s_branch L_F_u4")
        a("L_A_poller:")
        a(f"s_waitcnt vmcnt(0)\nv_cmp_ne_u32 vcc, s{S_TAG}, v28\ns_nop 1\ns_cmp_eq_u64 vcc, 0\ns_cbranch_scc1 L_A_pok")
        self.poll([26], 18)
        a("L_A_pok:")
        self.stamp(13, 16)
        a("s_barrier\ns_barrier")
        self.kvt_zero()
        self.stamp(3, 16)
        a("s_barrier\ns_barrier")
        a("s_branch L_F_poller")
        self.a_gather_body(64)

    def code_touch(self, ranges):
        a = self.a
        if not self.o.get("ctouch"):
            return 0
        lab, ref = a.label("nct"), a.label("pc")
        a(f"s_cmp_lg_u32 s{S_WAVE}, 7\ns_cbranch_scc1 {lab}\ns_getpc_b64 s[{S_T0}:{S_T0+1}]\n{ref}:\nv_lshlrev_b32 v24, 7, v1")
        for (start, k) in ranges:
            a(f"s_add_u32 s{S_T0+2}, s{S_T0}, {start}-{ref}+{k*8192}\ns_addc_u32 s{S_T0+3}, s{S_T0+1}, {'-1' if start == 'L_A_tail' else '0'}")
            a(f"v_min_u32 v25, L_exit-{start}-{k*8192}, v24\nglobal_load_dword v253, v25, s[{S_T0+2}:{S_T0+3}]")
        a(f"{lab}:")
        return len(ranges)

    def kvt_zero(self):
        a = self.a
        a(f"v_lshlrev_b32 v16, 4, v1\ns_lshl_b32 s{S_T0}, s{S_D}, 12\ns_add_u32 s{S_T0}, s{S_T0}, {KVT}\nv_add_u32 v16, s{S_T0}, v16")
        a("v_mov_b32 v20, 0\nv_mov_b32 v21, 0\nv_mov_b32 v22, 0\nv_mov_b32 v23, 0")
        for i in range(4):
            a(f"ds_write_b128 v16, v[20:23] offset:{i*1024}")
        a("s_waitcnt lgkmcnt(0)")

    def start_prefetch(self):
        a = self.a
        self.srd(R_W, P_WQKV, 640 * 3840)
        a(f"""
        s_lshl_b32 s{S_T0}, s{S_J}, 2
        s_add_u32 s{S_T0}, s{S_T0}, s{S_WAVE}
        v_lshrrev_b32 v16, 2, v1
        v_and_b32 v17, 3, v1
        v_mul_u32_u24 v16, 1280, v16
        v_lshl_add_u32 v16, v17, 7, v16
        s_lshr_b32 s{S_T0+2}, s{S_MT}, 3
        s_lshl_b32 s{S_T0+2}, s{S_T0+2}, 7
        s_add_u32 s{S_T0+2}, s{S_T0+2}, s{S_T0}
        s_mul_i32 s{S_DT}, s{S_T0+2}, {8*1280}
        v_lshrrev_b32 v19, 4, v1
        v_and_b32 v17, 15, v1
        v_min_u32 v17, 14, v17
        v_mul_u32_u24 v18, 13, v17
        v_lshrrev_b32 v18, 6, v18
        v_mul_u32_u24 v18, 640, v18
        v_lshl_add_u32 v18, v17, 7, v18
        v_mul_u32_u24 v19, 3840, v19
        v_add_u32 v112, v18, v19
        s_lshr_b32 s{S_T0+2}, s{S_HG}, 2
        s_mul_i32 s{S_T0+2}, s{S_T0+2}, 640
        s_mul_i32 s{S_FT}, s{S_T0}, {2*3840}
        s_add_u32 s{S_FT}, s{S_FT}, s{S_T0+2}
        """)
        if self.o.get("ta1"):
            a(f"""
            s_mov_b32 exec_hi, 0
            buffer_load_dword v253, v112, s[{R_W}:{R_W+3}], s{S_FT} offen {self.nt('nta')}
            buffer_load_dword v253, v16, s[{R_X}:{R_X+3}], s{S_DT} offen {self.nt('ntax')}
            s_mov_b32 exec_hi, -1
            """)
        a(f"""
        s_mul_i32 s{S_FT}, s{S_T0}, {3*3840}
        s_add_u32 s{S_FT}, s{S_FT}, s{S_T0+2}
        s_add_u32 s{S_FT}, s{S_FT}, {256*3840}
        v_lshrrev_b32 v16, 3, v1
        v_and_b32 v17, 7, v1
        v_min_u32 v17, 5, v17
        v_mul_u32_u24 v16, 1280, v16
        v_lshl_add_u32 v113, v17, 7, v16
        s_add_u32 s{S_DT}, s{S_DT}, 512
        """)

    def pf_rest_plain(self):
        return f"""s_waitcnt vmcnt(0)
        s_mov_b32 exec_hi, 0xffff
        buffer_load_dword v253, v112, s[{R_W}:{R_W+3}], s{S_FT} offen
        s_mov_b32 exec_hi, -1
        buffer_load_dword v253, v113, s[{R_X}:{R_X+3}], s{S_DT} offen
        """

    def pf_rest(self):
        return f"""s_mov_b32 exec_hi, 0xffff
        buffer_load_dword v253, v112, s[{R_W}:{R_W+3}], s{S_FT} offen {self.nt('nta')}
        s_mov_b32 exec_hi, -1
        buffer_load_dword v253, v113, s[{R_X}:{R_X+3}], s{S_DT} offen {self.nt('ntax')}
        """

    def w2_touch(self):
        a = self.a
        self.srd(R_W2, P_W2, 1536 * 4096)
        a(f"""
        v_lshlrev_b32 v48, 7, v1
        s_lshl_b32 s{S_T0}, s{S_MT}, 3
        s_add_u32 s{S_T0}, s{S_T0}, s{S_HG}
        s_lshl_b32 s{S_T0}, s{S_T0}, 2
        s_add_u32 s{S_T0}, s{S_T0}, s{S_D}
        s_mul_i32 s{S_T0}, s{S_T0}, 12288
        buffer_load_dword v253, v48, s[{R_W2}:{R_W2+3}], s{S_T0} offen
        s_add_u32 s{S_T0}, s{S_T0}, 8192
        s_mov_b32 exec_hi, 0
        buffer_load_dword v253, v48, s[{R_W2}:{R_W2+3}], s{S_T0} offen
        """)
        self.srd(R_P, P_WO, 640 * 1280)
        a(f"""
        s_lshl_b32 s{S_T0}, s{S_MT}, 3
        s_add_u32 s{S_T0}, s{S_T0}, s{S_HG}
        s_lshl_b32 s{S_T0}, s{S_T0}, 2
        s_add_u32 s{S_T0}, s{S_T0}, s{S_D}
        s_mul_i32 s{S_T0}, s{S_T0}, 1664
        s_mov_b32 exec_lo, 0x1fff
        buffer_load_dword v253, v48, s[{R_P}:{R_P+3}], s{S_T0} offen
        s_mov_b64 exec, -1
        """)

    def tlb_warm(self):
        a = self.a
        mode = self.o["tlb"]
        wv = self.o.get("tlbw", 3)
        a(f"s_cmp_lg_u32 s{S_WAVE}, {wv}\ns_cbranch_scc1 L_notlb")
        self.srd(R_OUT, P_OUT, 2048 * 1280)
        self.srd(R_M, P_B2, 4096)
        self.srd(R_P, P_WO, 640 * 1280)
        self.srd(R_W, P_W1, 2048 * 3072)
        if mode == 1:
            a("v_lshlrev_b32 v4, 20, v1\nv_min_u32 v4, 0xf00000, v4\ns_mov_b64 exec, 0xffff")
            so = "0"
        else:
            a(f"v_lshlrev_b32 v4, 21, v1\ns_lshl_b32 s{S_T0}, s{S_J}, 16\ns_mov_b64 exec, 0x1f")
            so = f"s{S_T0}"
        for r in (R_WS, R_W2, R_OUT, R_W, R_P, R_M):
            a(f"buffer_load_dword v253, v4, s[{r}:{r+3}], {so} offen sc1")
        a("s_mov_b64 exec, -1\nL_notlb:")

    def code_prefetch(self):
        a = self.a
        a(f"""
        s_cmp_lg_u32 s{S_WAVE}, 3
        s_cbranch_scc1 L_nocpf
        s_cmp_ge_u32 s{S_J}, 5
        s_cbranch_scc1 L_nocpf
        s_getpc_b64 s[{S_T0}:{S_T0+1}]
        L_pcref:
        s_lshl_b32 s{S_T0+2}, s{S_J}, 13
        v_lshlrev_b32 v4, 7, v1
        v_add_u32 v4, s{S_T0+2}, v4
        v_min_u32 v4, L_end-L_pcref, v4
        global_load_dword v253, v4, s[{S_T0}:{S_T0+1}]
        L_nocpf:
        """)

    def a_thread_map(self):
        a = self.a
        a(f"""
        v_mul_u32_u24 v16, 625, v0
        v_lshrrev_b32 v16, 16, v16
        v_mul_u32_u24 v17, 105, v16
        v_sub_u32 v17, v0, v17
        v_mul_u32_u24 v19, 205, v17
        v_lshrrev_b32 v19, 12, v19
        v_mul_u32_u24 v18, 20, v19
        v_cmp_lt_u32 vcc, 99, v17
        v_sub_u32 v18, v17, v18
        s_nop 0
        v_cndmask_b32 v19, v19, v18, vcc
        v_mad_u32_u24 v19, v16, 5, v19
        v_mad_u32_u24 v20, v16, 20, v18
        v_lshrrev_b32 v21, 2, v19
        v_and_b32 v22, 3, v19
        v_lshrrev_b32 v23, 4, v20
        v_and_b32 v20, 15, v20
        v_lshl_add_u32 v20, v22, 4, v20
        v_lshl_add_u32 v2, v21, 1, v23
        v_lshlrev_b32 v2, 6, v2
        v_add_u32 v2, v2, v20
        v_lshlrev_b32 v2, 4, v2
        v_lshlrev_b32 v3, 4, v19
        v_add_u32 v3, 13312, v3
        v_cmp_lt_u32 vcc, 99, v17
        v_lshrrev_b32 v24, 1, v21
        v_and_b32 v21, 1, v21
        v_cndmask_b32 v2, v2, v3, vcc
        v_lshl_add_u32 v3, v23, 1, v24
        v_add_u32 v24, 11, v24
        v_lshl_add_u32 v22, v22, 4, v16
        v_cndmask_b32 v3, v3, v24, vcc
        v_cndmask_b32 v20, v20, v22, vcc
        v_lshl_add_u32 v3, v3, 6, v20
        v_lshlrev_b32 v3, 4, v3
        v_lshl_add_u32 v3, v21, 3, v3
        v_add_u32 v3, {KVT}, v3
        v_mov_b32 v25, 2
        v_cndmask_b32 v25, 1, v25, vcc
        v_mov_b32 v16, 420
        v_cmp_gt_u32 vcc, v16, v0
        v_lshlrev_b32 v14, 4, v0
        s_nop 0
        v_cndmask_b32 v15, 0, v25, vcc
        v_cndmask_b32 v2, 0, v2, vcc
        v_add_u32 v2, {EXCH}, v2
        """)

    def a_reduce_publish(self, T):
        a = self.a
        for w in range(4):
            a(f"ds_read_b128 {vr(T+4*w,4)}, v2 offset:{w*EXCH_ST}")
        a(f"""
        s_lshl_b32 s{S_T0}, s{S_HG}, 4
        s_add_u32 s{S_T0}, s{S_T0}, s{S_MT}
        s_mul_i32 s{S_T0}, s{S_T0}, {KVP_ST}
        s_add_u32 s{S_T0}, s{S_T0}, {KVP}
        v_cmp_ne_u32 vcc, 0, v15
        s_waitcnt lgkmcnt(0)
        v_pk_add_f32 {vr(T,2)}, {vr(T,2)}, {vr(T+4,2)}
        v_pk_add_f32 {vr(T+2,2)}, {vr(T+2,2)}, {vr(T+6,2)}
        v_pk_add_f32 {vr(T+8,2)}, {vr(T+8,2)}, {vr(T+12,2)}
        v_pk_add_f32 {vr(T+10,2)}, {vr(T+10,2)}, {vr(T+14,2)}
        v_pk_add_f32 {vr(T,2)}, {vr(T,2)}, {vr(T+8,2)}
        v_pk_add_f32 {vr(T+2,2)}, {vr(T+2,2)}, {vr(T+10,2)}
        v_mov_b32_sdwa v{T}, s{S_TAG} dst_sel:BYTE_0 dst_unused:UNUSED_PRESERVE src0_sel:BYTE_0
        v_mov_b32_sdwa v{T+1}, s{S_TAG} dst_sel:BYTE_0 dst_unused:UNUSED_PRESERVE src0_sel:BYTE_1
        v_mov_b32_sdwa v{T+2}, s{S_TAG} dst_sel:BYTE_0 dst_unused:UNUSED_PRESERVE src0_sel:BYTE_2
        v_mov_b32_sdwa v{T+3}, s{S_TAG} dst_sel:BYTE_0 dst_unused:UNUSED_PRESERVE src0_sel:BYTE_3
        s_mov_b64 exec, vcc
        buffer_store_dwordx4 {vr(T,4)}, v14, s[{R_WS}:{R_WS+3}], s{S_T0} offen sc1
        s_mov_b64 exec, -1
        """)

    S_RET = 88

    def a_gather(self, T):
        self.a(f"s_call_b64 s[{self.S_RET}:{self.S_RET+1}], L_gather")

    def a_gather_body(self, T):
        a = self.a
        MK = S_T0 + 4
        a("L_gather:")
        a(f"s_mul_i32 s{S_T0+1}, s{S_HG}, {16*KVP_ST}\ns_add_u32 s{S_T0+1}, s{S_T0+1}, {KVP}")
        a(f"v_cmp_ne_u32 s[{MK}:{MK+1}], 0, v15\ns_mov_b32 s{S_CNT}, 0\ns_lshl_b32 s{S_T0+2}, s{S_MT}, 1\ns_mov_b64 exec, s[{MK}:{MK+1}]")

        def pair(m):
            a(f"s_add_u32 s{S_T0}, s{S_T0+2}, {m}\ns_and_b32 s{S_T0}, s{S_T0}, 15\ns_mul_i32 s{S_T0}, s{S_T0}, {KVP_ST}\ns_add_u32 s{S_T0}, s{S_T0}, s{S_T0+1}")
            a(f"buffer_load_dwordx4 {vr(T+4*m,4)}, v14, s[{R_WS}:{R_WS+3}], s{S_T0} offen sc1\ns_add_u32 s{S_T0}, s{S_T0}, {KVP_ST}")
            a(f"buffer_load_dwordx4 {vr(T+4*m+4,4)}, v14, s[{R_WS}:{R_WS+3}], s{S_T0} offen sc1")
        for m in range(0, 16, 2):
            pair(m)
        for m in range(0, 16, 2):
            a(f"s_waitcnt vmcnt({14-m})\nL_gchk{m}:")
            for q in range(8):
                a(f"v_cmpx_eq_u32_sdwa vcc, v{T+4*m+q}, s{S_TAG} src0_sel:BYTE_0 src1_sel:BYTE_{q & 3}")
            a(f"""
            s_add_u32 s{S_CNT}, s{S_CNT}, 1
            s_cmp_eq_u64 exec, s[{MK}:{MK+1}]
            s_mov_b64 exec, s[{MK}:{MK+1}]
            s_cbranch_scc1 L_gok{m}
            s_cmp_ge_u32 s{S_CNT}, {SPIN_LIMIT}
            s_cbranch_scc1 L_gok{m}
            """)
            pair(m)
            a(f"s_waitcnt vmcnt(0)\ns_branch L_gchk{m}\nL_gok{m}:")
            for h in (0, 2):
                a(f"v_pk_add_f32 {vr(T+4*m+h,2)}, {vr(T+4*m+h,2)}, {vr(T+4*(m+1)+h,2)}")
            if m >= 2:
                for h in (0, 2):
                    a(f"v_pk_add_f32 {vr(T+h,2)}, {vr(T+h,2)}, {vr(T+4*m+h,2)}")
        a("s_mov_b64 exec, -1")
        a(f"""
        v_cvt_pk_bf16_f32 v{T}, v{T}, v{T+1}
        v_cvt_pk_bf16_f32 v{T+1}, v{T+2}, v{T+3}
        v_cmp_ne_u32 vcc, 0, v15
        v_cmp_eq_u32 s[{S_T0}:{S_T0+1}], 2, v15
        s_nop 1
        s_mov_b64 exec, vcc
        ds_write_b64 v3, {vr(T,2)}
        s_mov_b64 exec, s[{S_T0}:{S_T0+1}]
        ds_write_b64 v3, {vr(T,2)} offset:64
        ds_write_b64 v3, {vr(T,2)} offset:128
        ds_write_b64 v3, {vr(T,2)} offset:192
        s_mov_b64 exec, -1
        s_setpc_b64 s[{self.S_RET}:{self.S_RET+1}]
        """)

    def role_b(self):
        a = self.a
        a(f"L_roleB:\ns_mov_b32 s{S_FROMA}, 0")
        XR, B1R, GR, XS = 16, 36, 64, 84
        VPF = 8
        a(f"s_cmp_ge_u32 s{S_J}, 16\ns_cbranch_scc1 L_B_pfrole")
        a(f"""
        s_lshl_b32 s{S_KST}, s{S_XCD}, 4
        s_add_u32 s{S_KST}, s{S_KST}, s{S_J}
        s_lshl_b32 s{S_T0}, s{S_KST}, 3
        s_add_u32 s{S_T0}, s{S_T0}, s{S_WAVE}
        s_mul_i32 s{S_T0}, s{S_T0}, {4*1280}
        v_lshrrev_b32 v2, 4, v1
        v_and_b32 v3, 15, v1
        v_lshlrev_b32 v3, 4, v3
        v_mul_u32_u24 v4, 1280, v2
        v_add_u32 v4, v4, v3
        """)
        for c in ((2, 3, 4, 0, 1) if self.o.get("xord") else range(5)):
            a(f"buffer_load_dwordx4 {vr(XR+4*c,4)}, v4, s[{R_X}:{R_X+3}], s{S_T0} offen offset:{c*256} {self.nt('ntx')}")
        self.srd(R_M, P_GATE, 1280)
        for c in range(5):
            a(f"buffer_load_dwordx4 {vr(GR+4*c,4)}, v3, s[{R_M}:{R_M+3}], 0 offen offset:{c*256}")

        def common_setup():
            a(f"""
            s_mul_i32 s{S_M}, s{S_J}, 205
            s_lshr_b32 s{S_M}, s{S_M}, 10
            s_mul_i32 s{S_DT}, s{S_M}, 5
            s_sub_u32 s{S_DT}, s{S_J}, s{S_DT}
            s_mul_i32 s{S_FT}, s{S_XCD}, 6
            s_add_u32 s{S_FT}, s{S_FT}, s{S_M}
            """)
            self.srd(R_OUT, P_B1, 3072)
            a(f"v_lshrrev_b32 v5, 4, v1\nv_lshlrev_b32 v5, 3, v5\ns_lshl_b32 s{S_T0}, s{S_FT}, 7")
            for b in range(4):
                a(f"buffer_load_dwordx2 {vr(B1R+2*b,2)}, v5, s[{R_OUT}:{R_OUT+3}], s{S_T0} offen offset:{b*32}")
            a(f"""
            v_lshrrev_b32 v12, 3, v1
            v_lshrrev_b32 v13, 4, v1
            v_lshlrev_b32 v13, 1, v13
            v_and_b32 v14, 7, v1
            v_xor_b32 v13, v13, v14
            v_lshlrev_b32 v13, 4, v13
            v_mul_u32_u24 v12, 3072, v12
            v_add_u32 v{VPF}, v12, v13
            v_add_u32 v{VPF+1}, {8*3072-1024}, v{VPF}
            v_add_u32 v{VPF+2}, {2*(8*3072-1024)}, v{VPF}
            v_add_u32 v{VPF+3}, {3*(8*3072-1024)}, v{VPF}
            """)
            self.perm_setup(S_M, 16, 6, S_PERM, self.o.get("rotB"))
            a(f"""
            s_and_b32 s{S_T0}, s{S_WAVE}, 3
            s_lshl_b32 s{S_B}, s{S_T0}, 12
            s_mul_i32 s{S_A}, s{S_T0}, {32*3072}
            s_lshl_b32 s{S_T0}, s{S_FT}, 7
            s_add_u32 s{S_A}, s{S_A}, s{S_T0}
            """)

        def w1_at(p):
            a(f"s_bfe_u32 s{S_T0}, s{S_PERM}, {(4 << 16) | (4 * p):#x}\ns_mul_i32 s{S_T0}, s{S_T0}, {128*3072}")
            a(f"s_add_u32 m0, s{S_B}, {p*16384}\ns_add_u32 s{S_T0}, s{S_T0}, s{S_A}")
            for i in range(4):
                a(f"buffer_load_dwordx4 v{VPF+i}, s[{R_W}:{R_W+3}], s{S_T0} offen offset:{i*1024} lds")
        early = [3, 4, 5, 6, 7][:self.o.get("early", 0)]

        def wq_touch():
            self.srd(R_M, P_WQKV, 640 * 3840)
            a(f"""
            v_lshlrev_b32 v6, 7, v1
            s_mul_i32 s{S_T0+1}, s{S_T0+1}, 2880
            s_add_u32 s{S_T0+1}, s{S_T0+1}, {256*3840}
            s_mov_b64 exec, 0xffffff
            buffer_load_dword v253, v6, s[{R_M}:{R_M+3}], s{S_T0+1} offen
            s_mov_b64 exec, -1
            """)

        self.srd(R_W, P_W1, 2048 * 3072)
        common_setup()
        a("v_mov_b32 v124, 0\nv_mov_b32 v125, 0\nv_mov_b32 v126, 0x3f803f80\ns_waitcnt vmcnt(4)")
        self.stamp(11, 44)
        if early:
            a(f"s_cmp_lt_u32 s{S_WAVE}, 4\ns_cbranch_scc1 L_B_noearly")
            for p in early:
                w1_at(p)
            a("L_B_noearly:")
        for c in range(20):
            a(f"v_dot2c_f32_bf16 v124, v{XR+c}, v126\nv_lshlrev_b32 v{XS+2*c}, 16, v{XR+c}")
            a(f"v_dot2c_f32_bf16 v125, v{XR+c}, v{GR+c}\nv_and_b32 v{XS+2*c+1}, 0xffff0000, v{XR+c}")
        a("s_nop 1")

        def reduce16(regs):
            for mode in ("quad_perm:[1,0,3,2]", "quad_perm:[2,3,0,1]", "row_half_mirror", "row_mirror"):
                for r in regs:
                    a(f"v_add_f32_dpp v{r}, v{r}, v{r} {mode} row_mask:0xf bank_mask:0xf")
                a("s_nop 1" if len(regs) == 1 else "s_nop 0")

        reduce16([124, 125])
        a(f"""
        v_mul_f32 v126, {f2u(-1.0/640):#x}, v124
        v_mul_f32 v127, {f2u(-1.0/640):#x}, v124
        v_mul_f32 v125, {f2u(-1.4426950408889634):#x}, v125
        v_mov_b32 v128, 0
        v_mov_b32 v129, 0
        v_mov_b32 v130, 0
        v_mov_b32 v131, 0
        v_mov_b32 v132, 0
        v_mov_b32 v133, 0
        v_mov_b32 v134, 0
        v_mov_b32 v135, 0
        v_exp_f32 v125, v125
        """)
        for c in range(20):
            a(f"v_pk_add_f32 {vr(XS+2*c,2)}, {vr(XS+2*c,2)}, v[126:127]")
        a("v_add_f32 v125, 1.0, v125\nv_rcp_f32 v125, v125")
        for c in range(20):
            t = 128 + 2 * (c & 3)
            a(f"v_pk_fma_f32 {vr(t,2)}, {vr(XS+2*c,2)}, {vr(XS+2*c,2)}, {vr(t,2)}")
        a("v_pk_add_f32 v[128:129], v[128:129], v[130:131]\nv_pk_add_f32 v[132:133], v[132:133], v[134:135]\nv_pk_add_f32 v[128:129], v[128:129], v[132:133]\nv_add_f32 v128, v128, v129\ns_nop 1")
        reduce16([128])
        a(f"v_mov_b32 v126, {f2u(1e-5):#x}\nv_fmac_f32 v126, {f2u(1.0/640):#x}, v128\nv_rsq_f32 v126, v126")
        a(f"""
        s_lshl_b32 s{S_T0}, s{S_WAVE}, 2
        v_add_u32 v2, s{S_T0}, v2
        v_mov_b32 v127, v126
        v_mul_u32_u24 v4, {LN_ST}, v2
        v_add_u32 v4, v4, v3
        v_lshlrev_b32 v2, 2, v2
        """)
        for c4 in range(5):
            for c in range(4 * c4, 4 * c4 + 4):
                a(f"v_pk_mul_f32 {vr(XS+2*c,2)}, {vr(XS+2*c,2)}, v[126:127]")
            for c in range(4 * c4, 4 * c4 + 4):
                a(f"v_cvt_pk_bf16_f32 v{XR+c}, v{XS+2*c}, v{XS+2*c+1}")
            a(f"ds_write_b128 v4, {vr(XR+4*c4,4)} offset:{LNBUF + c4*256}")
        a(f"ds_write_b32 v2, v125 offset:{LNG}")
        a(f"""
        v_and_b32 v12, 15, v1
        v_lshrrev_b32 v13, 4, v1
        v_lshrrev_b32 v15, 2, v12
        v_lshl_add_u32 v15, v13, 2, v15
        v_mul_u32_u24 v15, {LN_ST}, v15
        v_and_b32 v2, 3, v12
        v_lshl_add_u32 v15, v2, 3, v15
        s_mul_i32 s{S_T0}, s{S_WAVE}, 160
        v_add_u32 v15, s{S_T0}, v15
        v_lshlrev_b32 v14, 4, v1
        v_lshlrev_b32 v2, 2, v1
        s_mul_i32 s{S_T0}, s{S_WAVE}, {5*65536}
        s_lshl_b32 s{S_T0+1}, s{S_KST}, 10
        s_add_u32 s{S_T0}, s{S_T0}, s{S_T0+1}
        s_add_u32 s{S_T0}, s{S_T0}, {HT}
        s_waitcnt lgkmcnt(0)
        s_add_u32 s{S_TAG}, s{S_TAG}, {TAG_INC:#x}
        s_barrier
        """)
        self.stamp(12, 44)
        for i in range(5):
            a(f"ds_read_b64_tr_b16 {vr(44+4*i,2)}, v15 offset:{LNBUF + i*32}")
            a(f"ds_read_b64_tr_b16 {vr(46+4*i,2)}, v15 offset:{LNBUF + i*32+16*LN_ST}")
        a(f"ds_read_b32 v125, v2 offset:{LNG}")
        for i in range(5):
            a(f"s_waitcnt lgkmcnt({9-2*i})")
            a(f"buffer_store_dwordx4 {vr(44+4*i,4)}, v14, s[{R_WS}:{R_WS+3}], s{S_T0} offen sc1")
            if i < 4:
                a(f"s_add_u32 s{S_T0}, s{S_T0}, 65536")
        a(f"""
        s_cmp_lg_u32 s{S_WAVE}, 0
        s_cbranch_scc1 L_B_nog
        s_lshl_b32 s{S_T0}, s{S_KST}, 7
        s_add_u32 s{S_T0}, s{S_T0}, {G_OFF}
        s_waitcnt lgkmcnt(0)
        s_mov_b32 exec_hi, 0
        buffer_store_dword v125, v2, s[{R_WS}:{R_WS+3}], s{S_T0} offen sc1
        s_mov_b32 exec_hi, -1
        L_B_nog:
        s_waitcnt vmcnt(0) lgkmcnt(0)
        s_barrier
        s_cmp_lg_u32 s{S_WAVE}, 0
        s_cbranch_scc1 L_B_nofl
        s_mul_i32 s{S_T0}, s{S_KST}, {FS}
        s_add_u32 s{S_T0}, s{S_T0}, {F_LN}
        """)
        self.flag_store(S_T0, 12)
        self.stamp(1, 12)
        a("L_B_nofl:")
        if self.o.get("woLN"):
            self.srd(R_M, P_WO, 640 * 1280)
            a(f"""
            s_lshl_b32 s{S_T0+1}, s{S_KST}, 3
            s_add_u32 s{S_T0+1}, s{S_T0+1}, s{S_WAVE}
            s_mul_i32 s{S_T0+1}, s{S_T0+1}, 1664
            v_lshlrev_b32 v6, 7, v1
            s_mov_b64 exec, 0x1fff
            buffer_load_dword v253, v6, s[{R_M}:{R_M+3}], s{S_T0+1} offen
            s_mov_b64 exec, -1
            """)
        if self.o.get("wq") == 1:
            a(f"s_lshl_b32 s{S_T0+1}, s{S_KST}, 3\ns_add_u32 s{S_T0+1}, s{S_T0+1}, s{S_WAVE}")
            wq_touch()
        if self.o.get("wq") == 3:
            a(f"""
            s_lshl_b32 s{S_T0}, s{S_J}, 3
            s_add_u32 s{S_T0}, s{S_T0}, s{S_WAVE}
            s_add_u32 s{S_T0}, s{S_T0}, 128
            v_lshrrev_b32 v6, 3, v1
            v_and_b32 v7, 7, v1
            v_min_u32 v7, 5, v7
            v_mul_u32_u24 v6, 3072, v6
            v_lshl_add_u32 v7, v7, 7, v6
            s_mul_i32 s{S_T0}, s{S_T0}, {8*3072}
            s_mul_i32 s{S_T0+2}, s{S_XCD}, 768
            s_add_u32 s{S_T0}, s{S_T0}, s{S_T0+2}
            buffer_load_dword v253, v7, s[{R_W}:{R_W+3}], s{S_T0} offen {self.nt('ntw1')}
            """)
        a("s_branch L_B_join")
        a("L_B_pfrole:")
        self.srd(R_W, P_W1, 2048 * 3072)
        if self.o.get("pfdelay"):
            common_setup()
            a("s_waitcnt vmcnt(0)")
        wq = self.o.get("wq", 0)
        a(f"""
        s_sub_u32 s{S_T0}, s{S_J}, 16
        s_lshl_b32 s{S_T0}, s{S_T0}, 3
        s_add_u32 s{S_T0}, s{S_T0}, s{S_WAVE}
        s_lshl_b32 s{S_T0+1}, s{S_XCD}, 7
        s_add_u32 s{S_T0+1}, s{S_T0+1}, s{S_T0}
        v_lshrrev_b32 v6, 3, v1
        v_and_b32 v7, 7, v1
        v_min_u32 v7, 5, v7
        v_mul_u32_u24 v6, 3072, v6
        v_lshl_add_u32 v7, v7, 7, v6
        s_mul_i32 s{S_T0}, s{S_T0}, {8*3072}
        s_mul_i32 s{S_T0+2}, s{S_XCD}, 768
        s_add_u32 s{S_T0}, s{S_T0}, s{S_T0+2}
        buffer_load_dword v253, v7, s[{R_W}:{R_W+3}], s{S_T0} offen {self.nt('ntw1')}
        """)
        if wq in (0, 3):
            wq_touch()
        if wq != 3:
            a(f"""
            s_add_u32 s{S_T0}, s{S_T0}, {1024*3072}
            buffer_load_dword v253, v7, s[{R_W}:{R_W+3}], s{S_T0} offen {self.nt('ntw1b')}
            """)
        if self.o.get("promote"):
            k_ = 1 if wq != 3 else 0
            a(f"""
            s_sub_u32 s{S_T0+1}, s{S_T0}, {1024*3072*k_}
            s_waitcnt vmcnt({k_ + (1 if wq in (0, 3) else 0)})
            buffer_load_dword v253, v7, s[{R_W}:{R_W+3}], s{S_T0+1} offen
            """)
            if self.o.get("ntw1b"):
                a(f"s_waitcnt vmcnt(1)\nbuffer_load_dword v253, v7, s[{R_W}:{R_W+3}], s{S_T0} offen")
        if not self.o.get("pfdelay"):
            common_setup()
        self.stamp(15, 12)
        a(f"s_waitcnt lgkmcnt(0)\ns_add_u32 s{S_TAG}, s{S_TAG}, {TAG_INC:#x}")
        a(f"s_cmp_ge_u32 s{S_J}, 30\ns_cbranch_scc1 L_helper")
        N1 = self.o.get("n1", 8)
        NREG = self.o.get("nreg", 0)
        assert NREG == 0 or N1 == 8

        def w1_issue():
            t = self.perm_next(S_T0, S_PERM, 128 * 3072)
            t += f"s_mov_b32 m0, s{S_B}\ns_add_u32 s{S_T0}, s{S_T0}, s{S_A}\n"
            for i in range(4):
                t += f"buffer_load_dwordx4 v{VPF+i}, s[{R_W}:{R_W+3}], s{S_T0} offen offset:{i*1024} lds\n"
            t += f"s_add_u32 s{S_B}, s{S_B}, 16384\n"
            return t
        assert N1 == 8 and NREG == 0
        a(f"L_B_join:\ns_cmp_lt_u32 s{S_WAVE}, 4\ns_cbranch_scc1 L_B_comp0")
        for p in range(8):
            if early and p == early[0]:
                a(f"s_cmp_lt_u32 s{S_J}, 16\ns_cbranch_scc1 L_B_skipearly")
            w1_at(p)
            if early and p == early[-1]:
                a("L_B_skipearly:")
        a(f"s_mov_b32 s{S_PERM}, s{S_PERM+1}")
        a("s_branch L_B_aux\nL_B_comp0:")
        BF = 16
        GX = 131072
        split = self.o.get("gsplit")

        def gelu_setup(dblk_off):
            c = 0.7978845608028654
            k0 = -2.0 * c * 1.4426950408889634
            k1 = k0 * 0.044715
            a(f"""
            s_mov_b32 s{S_K0}, {f2u(k1):#x}
            s_mov_b32 s{S_K0+1}, {f2u(k1):#x}
            v_mov_b32 v44, {f2u(k0):#x}
            v_mov_b32 v45, {f2u(k0):#x}
            v_mov_b32 v46, 1.0
            v_mov_b32 v47, 1.0
            s_lshl_b32 s{S_K0+2}, s{S_DT}, 3
            s_lshl_b32 s{S_T0+1}, s{S_WAVE}, 1
            s_add_u32 s{S_K0+2}, s{S_K0+2}, s{S_T0+1}
            s_add_u32 s{S_K0+2}, s{S_K0+2}, {dblk_off & 0xffffffff:#x}
            s_mul_i32 s{S_K0+2}, s{S_K0+2}, {UW_ST}
            s_lshl_b32 s{S_T0+1}, s{S_FT}, 11
            s_add_u32 s{S_K0+2}, s{S_K0+2}, s{S_T0+1}
            s_add_u32 s{S_K0+2}, s{S_K0+2}, {UW}
            """)
            for b in range(4):
                a(f"v_lshlrev_b32 v{BF+4*b}, 16, v{B1R+2*b}\nv_and_b32 v{BF+4*b+1}, 0xffff0000, v{B1R+2*b}")
                a(f"v_lshlrev_b32 v{BF+4*b+2}, 16, v{B1R+2*b+1}\nv_and_b32 v{BF+4*b+3}, 0xffff0000, v{B1R+2*b+1}")

        def gelu_block(base, vl):
            for p in range(2):
                r = base + 8 * p
                T = 48
                for q in range(4):
                    a(f"v_pk_mul_f32 {vr(T+2*q,2)}, {vr(r+2*q,2)}, {vr(r+2*q,2)}")
                for q in range(4):
                    a(f"v_pk_fma_f32 {vr(T+2*q,2)}, {vr(T+2*q,2)}, s[{S_K0}:{S_K0+1}], v[44:45]")
                for q in range(4):
                    a(f"v_pk_mul_f32 {vr(T+2*q,2)}, {vr(T+2*q,2)}, {vr(r+2*q,2)}")
                for q in range(8):
                    a(f"v_exp_f32 v{T+q}, v{T+q}")
                for q in range(4):
                    a(f"v_pk_add_f32 {vr(T+2*q,2)}, {vr(T+2*q,2)}, v[46:47]")
                for q in range(8):
                    a(f"v_rcp_f32 v{T+q}, v{T+q}")
                for q in range(4):
                    a(f"v_pk_mul_f32 {vr(r+2*q,2)}, {vr(r+2*q,2)}, {vr(T+2*q,2)}")
                o = 56 + 4 * (p & 1)
                for q in range(4):
                    a(f"v_cvt_pk_bf16_f32 v{o+q}, v{r+2*q}, v{r+2*q+1}")
                a(f"buffer_store_dwordx4 {vr(o,4)}, v{vl}, s[{R_WS}:{R_WS+3}], s{S_K0+2} offen offset:{p*1024} sc1")

        PF, WF, ACC, VT, VL = 64, 128, 160, 8, 12
        a(f"""
        s_lshl_b32 s{S_T0}, s{S_DT}, 3
        s_lshl_b32 s{S_T0+1}, s{S_WAVE}, 1
        s_add_u32 s{S_D}, s{S_T0}, s{S_T0+1}
        s_lshl_b32 s{S_T0}, s{S_D}, 16
        s_add_u32 s{S_T0}, s{S_T0}, {HT}
        """)
        self.srd(R_P, P_WS, 65536, off_s=S_T0)
        a(f"s_add_u32 s{S_T0}, s{S_T0}, 65536")
        self.srd(R_M, P_WS, 65536, off_s=S_T0)
        a(f"v_lshlrev_b32 v{VL}, 4, v1\ns_mov_b32 s{S_B}, 0")
        a(self.perm_next(S_C, S_PERM, 4096))
        self.tr_addr(VT)
        a("s_waitcnt vmcnt(0)")
        gelu_setup(0)
        for r in range(32):
            a(f"v_mov_b32 v{ACC+r}, v{BF + (r & 15)}")
        a(f"s_lshl_b32 s{S_T0}, s{S_WAVE}, 12\ns_add_u32 s{S_T0}, s{S_T0}, {GX}\nv_add_u32 v13, s{S_T0}, v{VL}")
        a(f"s_cmp_lg_u32 s{S_WAVE}, 0\ns_cbranch_scc1 L_B_l3")
        prog = self.o.get("prog", 0)
        if prog:
            assert prog >= 4 * (4 + self.o.get("rotB", 0))
            a(f"v_min_u32 v2, {prog-1}, v1\nv_mul_u32_u24 v2, {FS}, v2\nv_add_u32 v2, {F_LN}, v2")
        else:
            a(f"v_mul_u32_u24 v2, {FS}, v1\nv_add_u32 v2, {F_LN}, v2")
        if not self.o.get("x_nopoll"):
            self.poll([2], 4)
        self.stamp(2, 4)
        a("L_B_l3:\ns_barrier")
        RP = (R_P, R_M)

        def pload(u, ks):
            if self.o.get("x_noload"):
                return "s_nop 0"
            sc = "" if self.o.get("x_nosc1") else "sc1"
            so = "0" if self.o.get("x_same") else f"s{S_C}"
            return "\n".join(f"buffer_load_dwordx4 {vr(PF+32*(u%2)+8*ks+4*d,4)}, v{VL}, s[{RP[d]}:{RP[d]+3}], {so} offen offset:{ks*1024} {sc}" for d in range(2))

        for t in range(2):
            for ks in range(4):
                a(pload(t, ks))
            a(self.perm_next(S_C, S_PERM, 4096))
            if t == 0:
                first_bar_here = len(a.L)

        def mk(u, bar, virtual=False, head=None, tail=None):
            uses = []
            for ks in range(4):
                for b in range(4):
                    g = ks * 4 + b
                    wb = WF + 4 * (g % 8)
                    off = u * 16384 + ks * 4096
                    reads = [(f"w{g}a", f"ds_read_b64_tr_b16 {vr(wb,2)}, v{VT+b} offset:{off}"),
                             (f"w{g}b", f"ds_read_b64_tr_b16 {vr(wb+2,2)}, v{VT+b} offset:{off+2048}")]
                    mf = []
                    for dd in range(2):
                        acc = vr(ACC + 16 * dd + 4 * b, 4)
                        mf.append(f"v_mfma_f32_16x16x32_bf16 {acc}, {vr(wb,4)}, {vr(PF+32*(u%2)+8*ks+4*dd,4)}, {acc}")
                    if self.o.get("x32"):
                        acc = vr(ACC + 16 * (b & 1), 16)
                        mf = [f"v_mfma_f32_32x32x16_bf16 {acc}, {vr(wb,4)}, {vr(PF+32*(u%2)+8*ks+4*(b>>1),4)}, {acc}"]
                    d = dict(reads=reads, need=[f"w{g}b"], mf=mf)
                    if b == 0:
                        d["vm"] = 14
                    if b == 3:
                        d["after"] = pload(u, ks)
                        if ks == 3:
                            d["after"] += "\n" + self.perm_next(S_C, S_PERM, 4096)
                            if u >= 1:
                                d["after"] += f"s_cmp_ge_u32 s{S_B}, 3\ns_cselect_b32 s{S_C}, 0x10000, s{S_C}"
                    uses.append(d)
            return dict(uses=uses, bar=bar, virtual=virtual, head=head, tail=tail)

        xo = "s_barrier\n" + "\n".join(f"v_xor_b32 v{VT+b}, 0x10000, v{VT+b}" for b in range(4))
        tail = f"s_add_u32 s{S_B}, s{S_B}, 1\ns_cmp_lt_u32 s{S_B}, 4\ns_cbranch_scc1 L_B_loop"
        st = [mk(0, "", head="L_B_loop:"), mk(1, "s_barrier"), mk(2, "s_barrier"), mk(3, "s_barrier", tail=tail), mk(0, xo, virtual=True)]
        a.L.insert(first_bar_here, "    s_barrier")
        nd = self.o.get("nodrain")
        LB = self.o.get("LB", 7)
        self.pipeline(st, LB, (16 - LB) if nd else 13, drain=not nd, wait_every=self.o.get('we', 2))
        if nd and not self.o.get("noEnd"):
            a("s_waitcnt lgkmcnt(0)\ns_barrier")
        self.stamp(3, 44)
        if split:
            a("s_nop 5")
            for i in range(4):
                a(f"ds_write_b128 v13, {vr(ACC+16+4*i,4)} offset:{i*1024}")
            a("s_waitcnt lgkmcnt(0)\ns_barrier")
            gelu_block(ACC, VL)
        else:
            a("s_waitcnt lgkmcnt(0)\ns_nop 4")
            gelu_block(ACC, VL)
            a(f"s_add_u32 s{S_K0+2}, s{S_K0+2}, {UW_ST}")
            gelu_block(ACC + 16, VL)
        self.stamp(10, 44)
        a("s_waitcnt vmcnt(0)\ns_barrier\ns_branch L_F_comp")

        a("L_B_aux:\ns_barrier")
        if split:
            assert NREG == 0
        assert NREG == 0
        ops = [(iv, 4) for iv in range(N1)]
        todo = [(iv, i) for iv in range(N1, 16) for i in range(4)]
        quota = self.o.get("quota", 12) / 3.0
        credit = 0.0
        eB = self.o.get("eB", 17)
        nB1 = self.o.get("nB1", 0)
        per = self.o.get("perB", 2)
        done_w2 = 0
        for tb in range(17):
            if tb < 16 and tb <= eB:
                assert all(iv != tb for iv, _ in todo), (tb, todo)
                last = max(i for i, (iv, _) in enumerate(ops) if iv == tb)
                n = sum(c for _, c in ops[last + 1:])
                if tb < 8:
                    n -= 4 * len(early)
                a(f"s_waitcnt vmcnt({max(0, min(n, 63)) if tb < eB else 0})")
            a("s_barrier")
            if tb < 16:
                self.stamp(16 + tb, 44)
            if tb == 0 and self.o.get("prog"):
                a(f"s_cmp_lg_u32 s{S_WAVE}, 7\ns_cbranch_scc1 L_B_nop1\nv_mul_u32_u24 v2, {FS}, v1\nv_add_u32 v2, {F_LN}, v2")
                a(f"buffer_load_dword v3, v2, s[{R_WS}:{R_WS+3}], 0 offen sc1\nL_B_nop1:")
            if tb == 1 and self.o.get("prog"):
                a(f"s_cmp_lg_u32 s{S_WAVE}, 7\ns_cbranch_scc1 L_B_nop2")
                a(f"s_waitcnt vmcnt(0)\nv_cmp_ne_u32 vcc, s{S_TAG}, v3\ns_nop 1\ns_cmp_eq_u64 vcc, 0\ns_cbranch_scc1 L_B_nop2")
                self.poll([2], 4)
                a("L_B_nop2:")
            if tb == self.o.get("ctB", 10):
                self.code_touch([("L_F_comp", 0), ("L_F_comp", 1)])
            if tb == 11 and split:
                gelu_setup(-7)
                a(f"v_lshlrev_b32 v12, 4, v1\ns_lshl_b32 s{S_T0}, s{S_WAVE}, 12\ns_add_u32 s{S_T0}, s{S_T0}, {GX - 4*4096}\nv_add_u32 v13, s{S_T0}, v12")
            if tb == eB:
                assert not todo
                self.w2_setup()
            if tb >= eB and done_w2 < nB1:
                k2 = min(per if tb < 16 else 8, nB1 - done_w2, tb - 9 - done_w2)
                sk = self.if_wave56()
                self.w2_prefill(k2)
                a(f"{sk}:")
                done_w2 += k2
            if todo and (todo[0][0] < 8 or tb >= 2):
                credit += 8 if todo[0][0] < 8 else quota
            setm0 = False
            while todo and credit >= 0.999 and (todo[0][0] < 8 or todo[0][0] <= tb + 6):
                iv, i = todo.pop(0)
                if i == 0:
                    if iv == 8:
                        a(f"s_and_b32 s{S_B}, s{S_B}, 0x1ffff")
                    a(self.perm_next(S_C, S_PERM, 128 * 3072) + f"s_add_u32 s{S_C}, s{S_C}, s{S_A}")
                if i == 0 or not setm0:
                    a(f"s_mov_b32 m0, s{S_B}\ns_nop 0")
                    setm0 = True
                a(f"buffer_load_dwordx4 v{VPF+i}, s[{R_W}:{R_W+3}], s{S_C} offen offset:{i*1024} lds")
                if i == 3:
                    a(f"s_add_u32 s{S_B}, s{S_B}, 16384")
                ops.append((iv, 1))
                credit -= 1
            if todo and todo[0][0] >= 8:
                credit = min(credit, quota)
        nxt = 16
        assert nxt == 16
        if self.o.get("noEnd"):
            assert done_w2 == nB1
        elif self.o.get("nodrain"):
            a("s_barrier")
        if eB == 17:
            self.w2_setup()
        if split:
            a("s_barrier")
            for i in range(4):
                a(f"ds_read_b128 {vr(64+4*i,4)}, v13 offset:{i*1024}")
            a("s_waitcnt lgkmcnt(0)")
            gelu_block(64, 12)
            a("s_waitcnt vmcnt(0)")
        skip = self.if_wave56()
        self.w2_prefill(nB1 - done_w2)
        a("s_barrier\ns_nop 7\ns_nop 7")
        self.w2_prefill(8 - nB1)
        a("s_branch L_F_loader")
        a(f"{skip}:\ns_barrier")
        a(f"s_cmp_lg_u32 s{S_WAVE}, 7\ns_cbranch_scc1 L_F_u4")
        a(f"s_mul_i32 s{S_T0}, s{S_DT}, 24\ns_add_u32 s{S_T0}, s{S_T0}, s{S_FT}\ns_mul_i32 s{S_T0}, s{S_T0}, {FS}\ns_add_u32 s{S_T0}, s{S_T0}, {F_U}")
        self.flag_store(S_T0, 12)
        self.stamp(4, 12)
        a("s_branch L_F_poller")

    def w2_l2_prefetch(self, VT):
        a = self.a
        self.srd(R_W2, P_W2, 1536 * 4096)
        a(f"""
        v_lshrrev_b32 v{VT}, 3, v1
        v_and_b32 v{VT+1}, 7, v1
        v_lshlrev_b32 v{VT+1}, 7, v{VT+1}
        v_lshl_add_u32 v{VT}, v{VT}, 12, v{VT+1}
        s_mul_i32 s{S_T0}, s{S_J}, 48
        s_and_b32 s{S_T0+1}, s{S_WAVE}, 3
        s_mul_i32 s{S_T0+1}, s{S_T0+1}, 12
        s_add_u32 s{S_T0}, s{S_T0}, s{S_T0+1}
        s_lshl_b32 s{S_T0}, s{S_T0}, 12
        s_lshr_b32 s{S_T0+1}, s{S_XCD}, 1
        s_lshl_b32 s{S_T0+1}, s{S_T0+1}, 10
        s_add_u32 s{S_T0}, s{S_T0}, s{S_T0+1}
        buffer_load_dword v{VT+2}, v{VT}, s[{R_W2}:{R_W2+3}], s{S_T0} offen
        s_add_u32 s{S_T0}, s{S_T0}, {8*4096}
        s_mov_b32 exec_hi, 0
        buffer_load_dword v{VT+3}, v{VT}, s[{R_W2}:{R_W2+3}], s{S_T0} offen
        s_mov_b64 exec, -1
        """)

    def tr_addr(self, VT):
        a = self.a
        a(f"""
        v_and_b32 v{VT+1}, 15, v1
        v_lshrrev_b32 v{VT+2}, 4, v1
        v_lshrrev_b32 v{VT+3}, 2, v{VT+1}
        v_lshl_add_u32 v{VT+3}, v{VT+2}, 2, v{VT+3}
        v_bfe_u32 v{VT+2}, v{VT+3}, 1, 2
        v_lshlrev_b32 v{VT+3}, 7, v{VT+3}
        v_lshl_add_u32 v{VT+3}, v{VT+2}, 5, v{VT+3}
        v_and_b32 v{VT+1}, 3, v{VT+1}
        v_lshl_add_u32 v{VT}, v{VT+1}, 3, v{VT+3}
        v_xor_b32 v{VT+1}, 32, v{VT}
        v_xor_b32 v{VT+2}, 64, v{VT}
        v_xor_b32 v{VT+3}, 96, v{VT}
        """)

    def helper(self):
        a = self.a
        a("L_helper:")
        a(f"""
        s_lshl_b32 s{S_D}, s{S_XCD}, 1
        s_add_u32 s{S_D}, s{S_D}, s{S_J}
        s_sub_u32 s{S_D}, s{S_D}, 30
        """)
        self.srd(R_W, P_WO, 640 * 1280)
        for p in range(5):
            a(f"""
            v_add_u32 v12, {p*64}, v1
            v_mul_u32_u24 v13, 205, v12
            v_lshrrev_b32 v13, 11, v13
            v_mul_u32_u24 v14, 10, v13
            v_sub_u32 v14, v12, v14
            v_lshlrev_b32 v14, 4, v14
            v_mul_u32_u24 v13, 1280, v13
            v_add_u32 v{16+p}, v13, v14
            """)
            if p in (1, 2, 3):
                a(f"v_subrev_u32 v{16+p}, {p*1024}, v{16+p}")
        a(f"""
        s_mov_b32 s{S_C}, s{S_WAVE}
        L_H_ld:
        s_mul_i32 s{S_A}, s{S_C}, {32*1280}
        s_mul_i32 s{S_T0}, s{S_D}, 160
        s_add_u32 s{S_A}, s{S_A}, s{S_T0}
        s_mul_i32 s{S_B}, s{S_C}, 5120
        s_mov_b32 m0, s{S_B}
        s_nop 0
        """)
        for p in range(4):
            a(f"buffer_load_dwordx4 v{16+p}, s[{R_W}:{R_W+3}], s{S_A} offen offset:{p*1024} lds")
        a(f"s_add_u32 m0, s{S_B}, 4096\ns_nop 0\nbuffer_load_dwordx4 v20, s[{R_W}:{R_W+3}], s{S_A} offen lds")
        a(f"""
        s_add_u32 s{S_C}, s{S_C}, 8
        s_cmp_lt_u32 s{S_C}, 20
        s_cbranch_scc1 L_H_ld
        v_and_b32 v12, 15, v1
        v_lshrrev_b32 v13, 4, v1
        v_lshrrev_b32 v14, 2, v12
        v_lshl_add_u32 v14, v13, 2, v14
        v_mul_u32_u24 v14, 160, v14
        v_and_b32 v12, 3, v12
        v_lshl_add_u32 v14, v12, 3, v14
        v_lshlrev_b32 v15, 4, v1
        s_waitcnt vmcnt(0)
        s_barrier
        s_mov_b32 s{S_C}, s{S_WAVE}
        L_H_tr:
        s_lshr_b32 s{S_T0}, s{S_C}, 1
        s_mul_i32 s{S_T0}, s{S_T0}, 5
        s_and_b32 s{S_T0+1}, s{S_C}, 1
        s_lshl_b32 s{S_T0+1}, s{S_T0+1}, 1
        s_add_u32 s{S_T0}, s{S_T0}, s{S_T0+1}
        s_add_u32 s{S_T0+1}, s{S_T0}, 1
        s_mul_i32 s{S_T0+2}, s{S_C}, 10
        s_sub_u32 s{S_T0+2}, s{S_T0+2}, 156
        s_add_u32 s{S_T0+3}, s{S_T0+2}, 5
        s_cmp_lt_u32 s{S_C}, 16
        s_cselect_b32 s{S_T0}, s{S_T0}, s{S_T0+2}
        s_cselect_b32 s{S_T0+1}, s{S_T0+1}, s{S_T0+3}
        s_mul_i32 s{S_T0}, s{S_T0}, 2560
        s_mul_i32 s{S_T0+1}, s{S_T0+1}, 2560
        v_add_u32 v12, s{S_T0}, v14
        v_add_u32 v13, s{S_T0+1}, v14
        """)
        for b in range(5):
            a(f"ds_read_b64_tr_b16 {vr(24+4*b,2)}, v12 offset:{b*32}\nds_read_b64_tr_b16 {vr(26+4*b,2)}, v13 offset:{b*32}")
        a(f"""
        s_mul_i32 s{S_T0}, s{S_D}, {5*UW_ST}
        s_lshl_b32 s{S_T0+1}, s{S_C}, 10
        s_add_u32 s{S_T0}, s{S_T0}, s{S_T0+1}
        s_add_u32 s{S_T0}, s{S_T0}, {UW + 49152}
        """)
        for b in range(5):
            a(f"s_waitcnt lgkmcnt({8-2*b})")
            a(f"buffer_store_dwordx4 {vr(24+4*b,4)}, v15, s[{R_WS}:{R_WS+3}], s{S_T0} offen sc1")
            if b < 4:
                a(f"s_add_u32 s{S_T0}, s{S_T0}, {UW_ST}")
        a(f"""
        s_add_u32 s{S_C}, s{S_C}, 8
        s_cmp_lt_u32 s{S_C}, 20
        s_cbranch_scc1 L_H_tr
        s_waitcnt vmcnt(0)
        s_barrier
        """)
        if self.o.get("hW2"):
            a(f"s_cmp_lg_u32 s{S_WAVE}, 7\ns_cbranch_scc1 L_H_nofl")
            a(f"s_mul_i32 s{S_T0}, s{S_D}, {FS}\ns_add_u32 s{S_T0}, s{S_T0}, {F_WOT}")
            self.flag_store(S_T0, 12)
            self.stamp(14, 12)
            a(f"""
            L_H_nofl:
            v_lshlrev_b32 v12, 7, v1
            s_lshl_b32 s{S_T0}, s{S_D}, 3
            s_add_u32 s{S_T0}, s{S_T0}, s{S_WAVE}
            s_lshl_b32 s{S_T0}, s{S_T0}, 13
            s_add_u32 s{S_T0}, s{S_T0}, {1024*4096}
            """)
            for k in range(4):
                a(f"buffer_load_dword v253, v12, s[{R_W2}:{R_W2+3}], s{S_T0} offen\ns_add_u32 s{S_T0}, s{S_T0}, {128*4096}")
        skip = self.if_wave56()
        self.w2_setup()
        self.w2_prefill(8)
        a(f"s_branch L_F_loader\n{skip}:")
        a(f"s_cmp_lt_u32 s{S_WAVE}, 4\ns_cbranch_scc1 L_F_comp\ns_cmp_lg_u32 s{S_WAVE}, 7\ns_cbranch_scc1 L_F_u4")
        if not self.o.get("hW2"):
            a(f"s_mul_i32 s{S_T0}, s{S_D}, {FS}\ns_add_u32 s{S_T0}, s{S_T0}, {F_WOT}")
            self.flag_store(S_T0, 12)
            self.stamp(14, 12)
        a("s_branch L_F_poller")

    F_WOT_REG = 172

    def uw_srd(self):
        a = self.a
        a(f"""
        s_mul_i32 s{S_T0}, s{S_DTILE}, 5
        s_add_u32 s{S_D}, s{S_T0}, s{S_WAVE}
        s_mul_i32 s{S_T0}, s{S_D}, {UW_ST}
        s_add_u32 s{S_T0}, s{S_T0}, {UW}
        """)
        self.srd(R_P, P_WS, UW_ST, off_s=S_T0)

    def wot_preload(self, VL):
        a = self.a
        for k in range(20):
            if k % 4 == 0:
                a(f"s_mov_b32 s{S_C}, {49152 + k*1024}")
            a(f"buffer_load_dwordx4 {vr(self.F_WOT_REG+4*k,4)}, v{VL}, s[{R_P}:{R_P+3}], s{S_C} offen offset:{(k%4)*1024} sc1")

    F_V = (4, 8, 12, 13, 47, 48, 52, 56, 168)
    F_SB = 72

    def f_setup(self):
        a = self.a
        VT, VT2, VL, VU4, VGA, VGH, VG8, GV, BV = self.F_V
        SB = self.F_SB
        self.srd(R_M, P_B2, 4096)
        self.srd(R_OUT, P_OUT, 2048 * 1280)
        self.tr_addr(VT2)
        a(f"""
        s_mul_i32 s{S_D}, s{S_DTILE}, 5
        s_add_u32 s{S_D}, s{S_D}, s{S_WAVE}
        v_mov_b32 v42, v{VT2}
        v_lshlrev_b32 v{VL}, 4, v1
        v_add_u32 v{VU4}, 0x20000, v{VL}
        v_and_b32 v{VGA}, 15, v1
        v_lshlrev_b32 v43, 1, v{VGA}
        v_lshlrev_b32 v{VGA}, 2, v{VGA}
        v_lshlrev_b32 v{VG8+3}, 3, v1
        """)
        for b in range(4):
            a(f"""
            s_add_u32 s{SB+b}, s{S_WAVE}, {b}
            s_and_b32 s{SB+b}, s{SB+b}, 3
            s_lshl_b32 s{S_T0}, s{SB+b}, 5
            v_xor_b32 v{VT+b}, s{S_T0}, v42
            s_lshl_b32 s{S_T0+1}, s{S_ST}, 7
            s_add_u32 s{S_T0}, s{S_T0}, s{S_T0+1}
            buffer_load_ushort v{BV+b}, v43, s[{R_M}:{R_M+3}], s{S_T0} offen
            v_add_u32 v{VT2+b}, 0x10000, v{VT+b}
            s_lshl_b32 s{S_T0}, s{SB+b}, 12
            v_add_u32 v{VG8+b}, s{S_T0}, v{VG8+3}
            s_add_u32 s{S_T0}, s{S_T0}, 0x10000
            v_add_u32 v{VGH+b}, s{S_T0}, v{VL}
            """)
        a(f"s_lshl_b32 s{S_A}, s{S_ST}, 8\ns_add_u32 s{S_A}, s{S_A}, {G_OFF}")
        self.f_perm()

    def f0_barrier(self):
        lab = self.a.label("f0")
        self.a(f"s_cmp_eq_u32 s{S_FROMA}, 1\ns_cbranch_scc1 {lab}\ns_barrier\n{lab}:")

    def final(self):
        a = self.a
        a("L_F_comp:")
        if self.stop == "phase1":
            a("s_branch L_end")
        PF, WF, ACC, ACC4, U4, WOT = 64, 112, 144, 160, 36, 172
        NPF = 3
        pre = True
        VT, VT2, VL, VU4, VGA, VGH, VG8, GV, BV = self.F_V
        SB = self.F_SB
        a(f"s_cmp_eq_u32 s{S_FROMA}, 1\ns_cbranch_scc1 L_F_nowot")
        self.uw_srd()
        self.f_setup()
        nstream = 12 if pre else 17

        def next_sc(step):
            if step < 12:
                return self.perm_next(S_C, S_PERM, 4096)
            return f"s_mov_b32 s{S_C}, {step*4096}\n"
        a("s_barrier")
        self.wot_preload(VL)
        a("L_F_nowot:")
        a(next_sc(0))
        a("s_barrier")
        S_C1, S_C2 = S_K0, S_K0 + 1

        def uload(t, ks, so):
            return f"buffer_load_dwordx4 {vr(PF+16*(t % NPF)+4*ks,4)}, v{VL}, s[{R_P}:{R_P+3}], s{so} offen offset:{ks*1024} sc1 ;@u{t}_{ks}"
        vis0 = []
        for ks in range(4):
            a(uload(0, ks, S_C))
            vis0.append(f"u0_{ks}")
        a(self.perm_next(S_C1, S_PERM, 4096) + self.perm_next(S_C2, S_PERM, 4096) + next_sc(3))
        a("s_barrier")

        ACC2 = 16
        blocks = [(ACC + 4 * b, b) for b in range(4)] + [(ACC4, 0)]
        fill = []
        for b in range(4):
            fill += [f"v_lshlrev_b32 v{BV+b}, 16, v{BV+b}", f"v_sub_f32 v{GV+b}, 1.0, v{GV+b}"]
        for r0, b in blocks:
            for k in range(4):
                fill.append(f"v_add_f32 v{r0+k}, v{BV+b}, v{r0+k}")

        stages = []
        for t in range(17):
            slot = t % 8
            hi = slot >= 4
            uses = []
            for ks in range(4):
                for b in range(4):
                    g = ks * 4 + b
                    wb = WF + 4 * (g % 8)
                    reads = []
                    u4 = U4 + 4 * (ks & 1)
                    if b == 0:
                        reads.append((f"u{ks}", f"ds_read_b128 {vr(u4,4)}, v{VU4} offset:{slot*4096 + ks*1024}"))
                    if t < 12:
                        off = (slot & 3) * 16384 + ks * 4096
                        va = (VT2 if hi else VT) + b
                        reads += [(f"w{g}a", f"ds_read_b64_tr_b16 {vr(wb,2)}, v{va} offset:{off}"),
                                  (f"w{g}b", f"ds_read_b64_tr_b16 {vr(wb+2,2)}, v{va} offset:{off+2048}")]
                    elif t < 16:
                        assert hi
                        off = (slot & 3) * 16384 + ks * 1024
                        reads += [(f"w{g}b", f"ds_read_b128 {vr(wb,4)}, v{VGH+b} offset:{off}")]
                    else:
                        off = (slot & 3) * 16384 + ks * 1024
                        assert not hi
                        reads += [(f"w{g}a", f"ds_read_b64 {vr(wb,2)}, v{VG8+b} offset:{off}"),
                                  (f"w{g}b", f"ds_read_b64 {vr(wb+2,2)}, v{VG8+b} offset:{off+512}")]
                    acc = vr((ACC if t < 12 else ACC2) + 4 * b, 4)
                    a4 = vr(ACC4 if t < 12 else ACC2 + 16, 4)
                    ring = t < nstream
                    pf = vr(PF + 16 * (t % NPF) + 4 * ks, 4) if ring else vr(WOT + 16 * (t - 12) + 4 * ks, 4)
                    first = t in (0, 12) and ks == 0
                    mf = [f"v_mfma_f32_16x16x32_bf16 {acc}, {pf}, {vr(wb,4)}, {0 if first else acc}"]
                    if b == 0:
                        mf.append(f"v_mfma_f32_16x16x32_bf16 {a4}, {vr(u4,4)}, {vr(wb,4)}, {0 if first else a4}")
                    d = dict(reads=reads, need=[f"w{g}b"], mf=mf)
                    if self.o.get("x_fewlds"):
                        if b == 0:
                            d["reads"] = reads[1:]
                        else:
                            d["reads"] = []
                            d["need"] = [f"w{g-b}b"]
                    if b == 0 and ring:
                        d["vneed"] = f"u{t}_{ks}"
                    if t == 0 and b in (0, 1):
                        d["after"] = uload(1 + b, ks, (S_C1, S_C2)[b])
                    if t == 1 and b == 1:
                        d["after"] = (f"s_lshl_b32 s{S_T0}, s{SB+ks}, 6\ns_add_u32 s{S_T0}, s{S_T0}, s{S_A}\n"
                                      f"buffer_load_dword v{GV+ks}, v{VGA}, s[{R_WS}:{R_WS+3}], s{S_T0} offen sc1 ;@g{ks}")
                    if b == 3 and t + NPF < nstream:
                        d["after"] = uload(t + NPF, ks, S_C)
                        if ks == 3 and t + NPF + 1 < nstream:
                            d["after"] += "\n" + next_sc(t + NPF + 1)
                    if self.o.get("wotl") and 3 <= t <= 7 and b == 1:
                        k = (t - 3) * 4 + ks
                        lab = a.label("nw")
                        d["before"] = (f"s_cmp_eq_u32 s{S_FROMA}, 1\ns_cbranch_scc0 {lab}\ns_mov_b32 s{S_T0}, {49152 + k*1024}\n"
                                       f"buffer_load_dwordx4 {vr(WOT+4*k,4)}, v{VL}, s[{R_P}:{R_P+3}], s{S_T0} offen sc1\n{lab}:")
                    if t >= 13 and fill and g < 15:
                        d["after"] = fill.pop(0)
                    uses.append(d)
            stages.append(dict(uses=uses, bar="s_barrier" if t else ""))
        nd = self.o.get("nodrain")
        LF = self.o.get("LF", 6)
        self.pipeline(stages, LF, (16 - LF) if nd else 13, drain=not nd, wait_every=self.o.get('we', 2), vis=vis0)
        self.stamp(8, 2)
        a(f"""
        v_and_b32 v2, 15, v1
        v_mul_u32_u24 v2, 1280, v2
        v_lshrrev_b32 v3, 4, v1
        v_lshl_add_u32 v2, v3, 3, v2
        s_mul_i32 s{S_A}, s{S_ST}, {64*1280}
        s_lshl_b32 s{S_T0+1}, s{S_D}, 5
        s_add_u32 s{S_B}, s{S_A}, s{S_T0+1}
        s_mul_i32 s{S_T0+1}, s{S_DTILE}, 160
        s_add_u32 s{S_A}, s{S_A}, s{S_T0+1}
        s_add_u32 s{S_A}, s{S_A}, 128
        """)
        assert not fill
        for i_, (r, b) in enumerate(blocks):
            for k in range(4):
                a(f"v_fma_f32 v{r+k}, v{r+k}, v{GV+b}, v{ACC2+4*i_+k}")
            a(f"s_mul_i32 s{S_T0}, s{SB+b}, {16*1280}\ns_add_u32 s{S_T0}, s{S_T0}, s{S_A if r == ACC4 else S_B}")
            a(f"v_cvt_pk_bf16_f32 v{r}, v{r}, v{r+1}\nv_cvt_pk_bf16_f32 v{r+1}, v{r+2}, v{r+3}")
            a(f"buffer_store_dwordx2 {vr(r,2)}, v2, s[{R_OUT}:{R_OUT+3}], s{S_T0} offen {['', 'sc1', 'nt', 'sc0 sc1'][self.o.get('osc', 0)]}")
        if self.stamps or self.o.get("dbg"):
            a("s_waitcnt vmcnt(0)")
            self.stamp(9, 2)
        if self.o.get("calib"):
            a(f"""
            L_cal:
            s_memrealtime s[96:97]
            s_waitcnt lgkmcnt(0)
            s_sub_u32 s96, s96, s98
            s_cmp_lt_u32 s96, {self.o.get("calib")*100}
            s_cbranch_scc1 L_cal
            """)
        a(f"s_or_b32 s{S_T0}, s2, s{S_WAVE}\ns_cmp_lg_u32 s{S_T0}, 0\ns_cbranch_scc1 L_end\ns_mov_b32 s{S_T0}, 0")
        self.flag_store(S_T0, 4)
        a("s_branch L_end")

        a("L_F_u4:")
        if self.stop == "phase1":
            a("s_branch L_end")
        a(f"""
        v_lshlrev_b32 v{VL}, 4, v1
        s_mul_i32 s{S_C}, s{S_DTILE}, {5*UW_ST}
        s_add_u32 s{S_C}, s{S_C}, {UW + 4*UW_ST}
        """)
        self.f_perm()
        self.f0_barrier()
        p4 = self.o.get("preW4")
        if p4:
            for k in range(20):
                if k % 4 == 0:
                    a(f"s_add_u32 s{S_T0}, s{S_C}, {49152 + k*1024}")
                a(f"buffer_load_dwordx4 {vr(64+4*k,4)}, v{VL}, s[{R_WS}:{R_WS+3}], s{S_T0} offen offset:{(k%4)*1024} sc1")
            a(f"v_add_u32 v{VU4}, 0x20000, v{VL}")
        a("s_barrier")

        def u4_issue(iv):
            if iv >= 12 and p4:
                for i in range(4):
                    a(f"ds_write_b128 v{VU4}, {vr(64+16*(iv-12)+4*i,4)} offset:{(iv % 8)*4096 + i*1024}")
                return
            if iv < 12:
                a(self.perm_next(S_T0, S_PERM, 4096) + f"s_mov_b32 m0, {0x20000 + (iv % 8)*4096:#x}\ns_add_u32 s{S_T0}, s{S_T0}, s{S_C}")
            else:
                a(f"s_mov_b32 m0, {0x20000 + (iv % 8)*4096:#x}\ns_add_u32 s{S_T0}, s{S_C}, {iv*4096}")
            for i in range(4):
                a(f"buffer_load_dwordx4 v{VL}, s[{R_WS}:{R_WS+3}], s{S_T0} offen offset:{i*1024} sc1 lds")
        order = []
        for iv in range(8):
            u4_issue(iv)
            order.append(iv)
            if iv == 1:
                a("s_waitcnt vmcnt(4)\ns_barrier")
        for tb in range(1, 17):
            if tb in order:
                a(f"s_waitcnt vmcnt({4*len(order[order.index(tb)+1:])})")
            a("s_waitcnt lgkmcnt(0)\ns_barrier" if p4 and tb >= 7 else "s_barrier")
            iv = tb + (6 if self.o.get("nodrain") else 7)
            if 8 <= iv <= 16:
                u4_issue(iv)
                if not (p4 and iv >= 12):
                    order.append(iv)
        a("s_branch L_end")

        a("L_F_loader:")
        if self.stop == "phase1":
            a("s_branch L_end")
        a(f"v_lshlrev_b32 v{VL}, 4, v1")
        self.f0_barrier()
        nWR = self.o.get("nWR", 0)
        V = self.V_W2
        if nWR:
            a(f"s_waitcnt vmcnt(30)\nv_add_u32 v{VU4}, s{S_B}, v{VL}")
            for k in range(nWR):
                a(self.perm_next(S_T0, S_PERM, 128 * 4096) + f"s_add_u32 s{S_T0}, s{S_T0}, s{S_A}")
                for g in range(2):
                    if g:
                        a(f"s_add_u32 s{S_T0}, s{S_T0}, {4*32768}")
                    for i in range(4):
                        a(f"buffer_load_dwordx4 {vr(64+32*k+16*g+4*i,4)}, v{V+i}, s[{R_W2}:{R_W2+3}], s{S_T0} offen offset:{i*1024}")
            a(f"s_add_u32 s{S_B}, s{S_B}, {nWR*16384}")
        a("s_barrier")
        a(f"""
        s_sub_u32 s{S_T0}, s{S_WAVE}, 5
        s_lshl_b32 s{S_T0}, s{S_T0}, 1
        s_lshl_b32 s{S_T0+1}, s{S_ST}, 2
        s_add_u32 s{S_T0+1}, s{S_T0+1}, s{S_T0}
        s_mul_i32 s{S_C}, s{S_T0+1}, {GO_ST}
        s_add_u32 s{S_C}, s{S_C}, {GO}
        s_lshl_b32 s{S_D}, s{S_T0}, 12
        """)
        assert nWR == 0
        ops = [(iv, 8) for iv in range(8)]
        for tb in range(17):
            last = max(i for i, (iv, _) in enumerate(ops) if iv == tb)
            n = sum(c for _, c in ops[last + 1:])
            a(f"s_waitcnt vmcnt({min(n,63)})\ns_barrier")
            if self.o.get("halfW"):
                if 2 <= tb <= 9:
                    self.w2_half((tb - 2) & 1)
                    ops.append((8 + (tb - 2) // 2, 4))
            elif 2 <= tb <= 5:
                self.w2_issue()
                ops.append((tb + 6, 8))
            if 9 <= tb <= 13:
                iv = tb + 3
                g = iv - 12
                for s2 in range(2):
                    a(f"s_add_u32 m0, s{S_D}, {(iv % 8)*16384 + s2*4096}\ns_add_u32 s{S_T0}, s{S_C}, {s2*GO_ST + g*4096}")
                    for i in range(4):
                        a(f"buffer_load_dwordx4 v{VL}, s[{R_WS}:{R_WS+3}], s{S_T0} offen offset:{i*1024} sc1 lds")
                ops.append((iv, 8))
        a("s_branch L_end")
        a("L_F_poller:")
        if self.stop == "phase1":
            a("s_branch L_end")
        a(f"s_cmp_eq_u32 s{S_FROMA}, 1\ns_cbranch_scc1 L_F_pnowot")
        a(f"s_mul_i32 s{S_T0}, s{S_DTILE}, {FS}\ns_add_u32 s{S_T0}, s{S_T0}, {F_WOT}\nv_mov_b32 v2, s{S_T0}")
        self.poll([2], 4)
        a("s_barrier\nL_F_pnowot:")
        a(f"""
        s_mul_i32 s{S_T0}, s{S_DTILE}, 5
        s_lshr_b32 s{S_T0+1}, s{S_T0}, 3
        s_add_u32 s{S_T0}, s{S_T0}, 4
        s_lshr_b32 s{S_T0}, s{S_T0}, 3
        s_mul_i32 s{S_T0}, s{S_T0}, 24
        s_mul_i32 s{S_T0+1}, s{S_T0+1}, 24
        v_and_b32 v2, 31, v1
        v_min_u32 v2, 23, v2
        v_add_u32 v3, s{S_T0}, v2
        v_add_u32 v2, s{S_T0+1}, v2
        v_cmp_gt_u32 vcc, 32, v1
        s_mul_i32 s{S_T0}, s{S_DTILE}, {FS}
        s_add_u32 s{S_T0}, s{S_T0}, {F_WOT}
        v_cndmask_b32 v2, v2, v3, vcc
        v_mul_u32_u24 v2, {FS}, v2
        v_add_u32 v2, {F_U}, v2
        v_mov_b32 v3, s{S_T0}
        v_cmp_eq_u32 vcc, 63, v1
        s_nop 1
        v_cndmask_b32 v2, v2, v3, vcc
        """)
        self.poll([2], 4)
        self.stamp(6, 4)
        a("s_barrier")
        a(f"""
        v_and_b32 v2, 7, v1
        s_lshr_b32 s{S_T0}, s{S_ST}, 1
        s_lshl_b32 s{S_T0}, s{S_T0}, 3
        v_add_u32 v2, s{S_T0}, v2
        v_mul_u32_u24 v2, {FS}, v2
        v_add_u32 v2, {F_GO}, v2
        """)
        gp = self.o.get("gopoll", 9)
        for tb in range(gp):
            a("s_barrier")
            if tb == 1:
                a(f"s_cmp_eq_u32 s{S_FROMA}, 1\ns_cbranch_scc0 L_F_nogo")
                a(f"s_lshl_b32 s{S_T0}, s{S_MT}, 3\ns_add_u32 s{S_T0}, s{S_T0}, s{S_HG}\ns_mul_i32 s{S_T0}, s{S_T0}, {FS}\ns_add_u32 s{S_T0}, s{S_T0}, {F_GO}")
                self.flag_store(S_T0, 6)
                a("L_F_nogo:")
            if tb == gp - 3:
                a(f"buffer_load_dword v8, v2, s[{R_WS}:{R_WS+3}], 0 offen sc1")
            self.stamp(32 + tb, 4)
        a(f"s_waitcnt vmcnt(0)\nv_cmp_ne_u32 vcc, s{S_TAG}, v8\ns_nop 1\ns_cmp_eq_u64 vcc, 0\ns_cbranch_scc1 L_F_gook")
        self.poll([2], 4)
        a("L_F_gook:")
        self.stamp(7, 4)
        for tb in range(gp, 17):
            a("s_barrier")
            self.stamp(32 + tb, 4)
        a("L_end:")
        if "probe" in self.o or "pc1" in self.o:
            a("""
            s_cmp_eq_u32 s94, 0
            s_cbranch_scc1 L_exit
            L_prb:
            s_memrealtime s[96:97]
            s_waitcnt lgkmcnt(0)
            s_sub_u32 s96, s96, s98
            s_cmp_lt_i32 s96, 4000
            s_cbranch_scc1 L_prb
            """)
        if self.stamps:
            a(f"""
            s_lshl_b32 s{S_T0}, s2, 3
            s_add_u32 s{S_T0}, s{S_T0}, s{S_WAVE}
            s_lshl_b32 s{S_T0}, s{S_T0}, 9
            s_add_u32 s{S_T0}, s{S_T0}, {STAMP}
            v_lshlrev_b32 v2, 3, v1
            buffer_store_dwordx2 v[254:255], v2, s[{R_WS}:{R_WS+3}], s{S_T0} offen
            """)
        a("L_exit:\ns_endpgm")

    def build(self, header):
        a = self.a
        self.prologue()
        self.role_a()
        self.role_b()
        self.helper()
        self.final()
        body = a.text()
        out = header
        out += f"; @launch grid=(256,1,1) block=(512,1,1) lds={LDS_BYTES}\n"
        out += f'.amdgcn_target "amdgcn-amd-amdhsa--gfx950"\n.text\n.globl {KNAME}\n.p2align 8\n.type {KNAME},@function\n{KNAME}:\n'
        out += body
        out += f""".section .rodata,"a"
.p2align 6
.amdhsa_kernel {KNAME}
  .amdhsa_next_free_vgpr 256
  .amdhsa_next_free_sgpr 102
  .amdhsa_accum_offset 256
  .amdhsa_group_segment_fixed_size 0
  .amdhsa_kernarg_size 96
  .amdhsa_user_sgpr_count 2
  .amdhsa_user_sgpr_kernarg_segment_ptr 1
  .amdhsa_system_sgpr_workgroup_id_x 1
  .amdhsa_float_denorm_mode_32 3
.end_amdhsa_kernel
"""
        return out


def header():
    ref = open("gated_mix__linear_attn_block__mixer_token_mlp__prompt.s.ref").read().split("\n")
    h = []
    for l in ref:
        if l.startswith("; Override"):
            break
        h.append(l)
    return "\n".join(h) + "\n"


if __name__ == "__main__":
    import argparse
    p = argparse.ArgumentParser()
    p.add_argument("-o", default="gated_mix__linear_attn_block__mixer_token_mlp__prompt.s")
    p.add_argument("--stamps", action="store_true")
    p.add_argument("--stop", default=None)
    p.add_argument("--opt", default="")
    args = p.parse_args()
    opts = {k: (int(v) if v != '' else 1) for k, _, v in (x.partition('=') for x in args.opt.split(',') if x)}
    g = Gen(stamps=args.stamps, stop=args.stop, opts=opts)
    open(args.o, "w").write(g.build(header()))
    print("wrote", args.o)
```

```python
import sys

KNAME = "gated_mix__linear_attn_block__mixer_token_mlp__prompt_kernel"

import os
FS = int(os.environ.get('FS', 128))
F_LN, F_KV, F_U, F_GO, F_WOT = 0x1000, 0x5000, 0x9000, 0xD000, 0x11000
G_OFF = 0x12000
STAMP = 0x900000
KVP = 0x20000
KVP_ST = 7168
HT = 0x100000
UW = 0x380000
UW_ST = 69632
GO = 0x640000
GO_ST = 20480
WS_USED = 0xA00000
TAG_INC = 0x9E3779B9
SPIN_LIMIT = 1 << 17

LDS_BYTES = 163840
LNBUF = 0
LN_ST = 1312
LNG = LNBUF + 32 * LN_ST
A_SLOT = 49152
A_WOFF = 16384
EXCH_ST = 14336
EXCH = LDS_BYTES - 4 * EXCH_ST
KVT = 147456
ZH = KVT + 11 * 1024

LOG2E = 0x3FB8AA3B


def f2u(x):
    import struct
    return struct.unpack("<I", struct.pack("<f", x))[0]


class Asm:
    def __init__(self):
        self.L = []
        self.nlab = 0

    def __call__(self, s):
        for line in s.split("\n"):
            line = line.strip()
            if line:
                self.L.append(("    " if not line.endswith(":") else "") + line)

    def label(self, base):
        self.nlab += 1
        return f"L{base}_{self.nlab}"

    def text(self):
        return "\n".join(self.L) + "\n"


def vr(a, n=1):
    return f"v{a}" if n == 1 else f"v[{a}:{a+n-1}]"


def sr(a, n=1):
    return f"s{a}" if n == 1 else f"s[{a}:{a+n-1}]"


P_X, P_WQKV, P_WO, P_BX, P_W1, P_B1, P_W2, P_B2 = 4, 6, 8, 10, 12, 14, 16, 18
P_GATE, P_OUT, P_DBG, P_WS = 20, 22, 24, 26
S_TAG, S_WAVE = 28, 29
S_XCD, S_J = 30, 31
R_WS, R_X, R_W, R_P, R_W2, R_M, R_OUT = 32, 36, 40, 44, 48, 52, 56
S_T0 = 60
S_MT, S_HG, S_DT, S_FT, S_KST, S_PAR = 70, 71, 72, 73, 74, 75
S_ST, S_DTILE = 76, 77
S_CNT = 78
S_A, S_B, S_C, S_D = 80, 81, 82, 83
S_MSK = 84
S_K0 = 90
S_STMP = 96
S_PERM = 66
S_M = 79
S_FROMA = 95
S_PERM2 = 68


def lead_perm(n, nshare, m, lead=2):
    order = list(range(n))
    i = m
    while i + lead < n:
        order[i:i + lead + 1] = [order[i + lead]] + order[i:i + lead]
        i += nshare
    return order


class Gen:
    def __init__(self, stamps=False, stop=None, opts=None):
        self.o = opts or {}
        self.a = Asm()
        self.stamps = stamps
        self.stop = stop

    def nt(self, key):
        return "nt" if self.o.get(key) else ""

    def srd(self, dst, ptr, nbytes, off_s=None):
        a = self.a
        if off_s is None:
            a(f"s_mov_b32 s{dst}, s{ptr}\ns_and_b32 s{dst+1}, s{ptr+1}, 0xffff")
        else:
            a(f"s_add_u32 s{dst}, s{ptr}, s{off_s}\ns_addc_u32 s{dst+1}, s{ptr+1}, 0\ns_and_b32 s{dst+1}, s{dst+1}, 0xffff")
        a(f"s_mov_b32 s{dst+2}, {nbytes:#x}\ns_mov_b32 s{dst+3}, 0x20000")

    def stamp(self, k, vtmp, dyn=None):
        if "pc1" in self.o:
            if dyn is None and k in (self.o["pc1"], self.o["pc2"]):
                lab = self.a.label("npr")
                self.a(f"s_cmp_lg_u32 s{S_FROMA}, {self.o.get('prole', 0)}\ns_cbranch_scc1 {lab}")
                if k == self.o["pc1"]:
                    self.a(f"s_memtime s[92:93]\ns_waitcnt lgkmcnt(0)")
                else:
                    self.a(f"s_memtime s[96:97]\ns_waitcnt lgkmcnt(0)\ns_sub_u32 s92, s96, s92\ns_lshr_b32 s92, s92, 4\ns_add_u32 s98, s98, s92\ns_mov_b32 s94, 1")
                self.a(f"{lab}:")
            return
        if "probe" in self.o:
            role = self.o.get("prole")
            if k == self.o["probe"] and dyn is None:
                lab = self.a.label("npr")
                if role is not None and k != 0:
                    self.a(f"s_cmp_lg_u32 s{S_FROMA}, {role}\ns_cbranch_scc1 {lab}")
                self.a(f"s_memrealtime s[98:99]\ns_mov_b32 s94, 1\ns_waitcnt lgkmcnt(0)\n{lab}:")
            return
        if self.o.get("dbg"):
            m = {0: 0, 11: 1, 1: 2, 2: 3, 3: 4, 4: 5, 6: 6, 9: 7}
            mA = {0: 0, 1: 1, 2: 2, 3: 3, 4: 4, 5: 5, 6: 6, 9: 7}
            if dyn is not None:
                return
            a = self.a
            for wg, mp, base in ((8, m, 0), (12, mA, 8)):
                if k in mp:
                    lab = a.label("nd")
                    a(f"s_cmp_lg_u32 s2, {wg}\ns_cbranch_scc1 {lab}")
                    a(f"s_memrealtime s[{S_STMP}:{S_STMP+1}]\ns_waitcnt lgkmcnt(0)")
                    a(f"v_mov_b32 v{vtmp}, s{S_STMP}\nv_mov_b32 v{vtmp+2}, {4*(base+mp[k])}")
                    a(f"s_mov_b64 exec, 1\nglobal_store_dword v{vtmp+2}, v{vtmp}, s[{P_DBG}:{P_DBG+1}]\ns_mov_b64 exec, -1\n{lab}:")
            return
        if not self.stamps:
            return
        a = self.a
        a(f"s_memrealtime s[{S_STMP}:{S_STMP+1}]\ns_memtime s[100:101]")
        ln = str(k)
        if dyn is not None:
            a(f"s_add_u32 m0, s{dyn}, {k}")
            ln = "m0"
        a(f"s_waitcnt lgkmcnt(0)\nv_writelane_b32 v254, s{S_STMP}, {ln}\nv_writelane_b32 v255, s100, {ln}")

    def perm_setup(self, s_m, n, nshare, dst, enable):
        a = self.a
        def pk(o):
            v = 0
            for i, x in enumerate(o):
                v |= x << (4 * i)
            return v & 0xffffffff, v >> 32
        lo, hi = pk(list(range(n)))
        a(f"s_mov_b32 s{dst}, {lo:#x}\ns_mov_b32 s{dst+1}, {hi:#x}")
        if not enable:
            return
        for m in range(nshare):
            lo, hi = pk(lead_perm(n, nshare, m, enable))
            a(f"s_cmp_eq_u32 s{s_m}, {m}\ns_cselect_b32 s{dst}, {lo:#x}, s{dst}\ns_cselect_b32 s{dst+1}, {hi:#x}, s{dst+1}")

    def perm_next(self, dst, src, mul):
        t = f"s_and_b32 s{dst}, s{src}, 15\ns_lshr_b64 s[{src}:{src+1}], s[{src}:{src+1}], 4\n"
        if mul & (mul - 1) == 0:
            t += f"s_lshl_b32 s{dst}, s{dst}, {mul.bit_length()-1}\n"
        else:
            t += f"s_mul_i32 s{dst}, s{dst}, {mul}\n"
        return t

    def poll(self, voffs, vtmp, mask=None):
        a = self.a
        lp, dn = a.label("poll"), a.label("pdone")
        n = len(voffs)

        def ld(k):
            for i, vo in enumerate(voffs):
                a(f"buffer_load_dword v{vtmp+k*n+i}, v{vo}, s[{R_WS}:{R_WS+3}], 0 offen sc1")

        def chk(k):
            if mask is not None:
                a(f"v_xor_b32 v{vtmp+k*n}, s{S_TAG}, v{vtmp+k*n}\nv_and_b32 v{vtmp+k*n}, v{mask}, v{vtmp+k*n}\nv_cmp_ne_u32 vcc, 0, v{vtmp+k*n}")
            else:
                a(f"v_cmp_ne_u32 vcc, s{S_TAG}, v{vtmp+k*n}")
            for i in range(1, n):
                a(f"v_cmp_ne_u32 s[{S_T0}:{S_T0+1}], s{S_TAG}, v{vtmp+k*n+i}\ns_nop 1\ns_or_b64 vcc, vcc, s[{S_T0}:{S_T0+1}]")
            a(f"s_nop 1\ns_cmp_eq_u64 vcc, 0\ns_cbranch_scc1 {dn}")
        if not self.o.get("pp"):
            a(f"s_mov_b32 s{S_CNT}, 0\n{lp}:")
            ld(0)
            a("s_waitcnt vmcnt(0)")
            chk(0)
            a(f"s_add_u32 s{S_CNT}, s{S_CNT}, 1\ns_cmp_lt_u32 s{S_CNT}, {SPIN_LIMIT}\ns_cbranch_scc0 {dn}\ns_sleep 1\ns_branch {lp}\n{dn}:")
            return
        sl = f"s_sleep {self.o['pp'] - 1}\n" if self.o["pp"] > 1 else ""
        a(f"s_mov_b32 s{S_CNT}, 0")
        ld(0)
        a(f"{sl}{lp}:")
        ld(1)
        a(f"s_waitcnt vmcnt({n})")
        chk(0)
        ld(0)
        a(f"s_waitcnt vmcnt({n})")
        chk(1)
        a(f"s_add_u32 s{S_CNT}, s{S_CNT}, 1\ns_cmp_lt_u32 s{S_CNT}, {SPIN_LIMIT}\ns_cbranch_scc1 {lp}\n{dn}:")

    def flag_store(self, s_off, vtmp):
        a = self.a
        a(f"v_mov_b32 v{vtmp}, s{S_TAG}\nv_mov_b32 v{vtmp+1}, 0\ns_mov_b64 exec, 1")
        a(f"buffer_store_dword v{vtmp}, v{vtmp+1}, s[{R_WS}:{R_WS+3}], s{s_off} offen sc1\ns_mov_b64 exec, -1")

    def pipeline(self, stages, L, gstar, drain=True, wait_every=2, vis=None):
        a = self.a
        seq = [(si, gi, u) for si, st in enumerate(stages) for gi, u in enumerate(st["uses"])]
        issued = []
        vis = list(vis or [])
        state = dict(nxt=0, opened=-1)
        pend = []

        def collect(lim):
            while state["nxt"] < len(seq) and state["nxt"] <= lim and seq[state["nxt"]][0] <= state["opened"]:
                si_, _, u_ = seq[state["nxt"]]
                for name, txt in u_["reads"]:
                    pend.append((f"{si_}:{name}", txt))
                state["nxt"] += 1
                if seq[state["nxt"] - 1][1] == len(stages[si_]["uses"]) - 1 and si_ + 1 < len(stages):
                    state["defer"] = list(stages[si_ + 1].get("pre", []))

        def out(txt):
            if ";@" in txt:
                vis.append(txt.split(";@")[1].strip())
            a(txt)

        def emit(n):
            for _ in range(min(n, len(pend))):
                name, txt = pend.pop(0)
                out(txt)
                if name:
                    issued.append(name)

        a(stages[0]["bar"])
        state["opened"] = 0
        collect(L - 1)
        emit(len(pend))
        n_real = sum(len(st["uses"]) for st in stages if not st.get("virtual"))
        covered = -1
        for f in range(n_real):
            si, gi, u = seq[f]
            nuse = len(stages[si]["uses"])
            if gi == 0 and stages[si].get("head"):
                assert not pend, pend
                a(stages[si]["head"])
                covered = -1
            if gi == gstar and si + 1 < len(stages):
                emit(len(pend))
                for x in state.pop("defer", []):
                    a(x)
                if drain:
                    a("s_waitcnt lgkmcnt(0)")
                    covered = len(issued) - 1
                a(stages[si + 1]["bar"])
                pend.extend((None, x) for x in stages[si + 1].get("bar_pend", []))
                state["opened"] = si + 1
                collect(f + L - 1)
            def lastidx(ff):
                s_, _, uu = seq[ff]
                return max(len(issued) - 1 - issued[::-1].index(f"{s_}:{nm}") for nm in uu["need"])
            w = []
            if lastidx(f) > covered:
                tgt = lastidx(f)
                for ff in range(f + 1, min(f + wait_every, n_real)):
                    if seq[ff][0] != si:
                        break
                    try:
                        tgt = max(tgt, lastidx(ff))
                    except ValueError:
                        break
                n = len(issued) - 1 - tgt
                assert n <= 15, n
                w.append(f"lgkmcnt({n})")
                covered = tgt
            if u.get("vneed") is not None:
                w.insert(0, f"vmcnt({len(vis) - 1 - vis.index(u['vneed'])})")
            if u.get("vm") is not None:
                npv = sum(1 for nm_, t_ in pend if t_.strip().startswith("buffer_load"))
                w.insert(0, f"vmcnt({u['vm'] - npv})")
            if w:
                a("s_waitcnt " + " ".join(w))
            if u.get("before"):
                a(u["before"])
            if state.get("defer") and not pend:
                n_ = self.o.get("npre", 7)
                pend.extend((None, x) for x in state["defer"][:n_])
                state["defer"] = state["defer"][n_:]
            collect(f + L)
            if state.get("mix"):
                k_ = state.pop("mix")
                head_, rest_ = pend[:k_], pend[k_:]
                pend[:] = [x for pr in zip(head_, rest_) for x in pr] + head_[len(rest_):] + rest_[len(head_):]
            nm_ = len(u["mf"])
            for k, m in enumerate(u["mf"]):
                a(m)
                left = nm_ - k
                if drain and gi >= gstar:
                    left += sum(len(uu["mf"]) for uu in stages[si]["uses"][gi + 1:])
                    extra = 2 * (nuse - 1 - gi)
                    emit(-(-(len(pend) + extra) // left) if left > 1 else len(pend))
                else:
                    emit(-(-len(pend) // left))
            if u.get("after"):
                items = [x for x in u["after"].split("\n") if x.strip()]
                if gi == nuse - 1:
                    for x in items:
                        out(x)
                else:
                    assert not pend
                    pend.extend((None, x) for x in items)
                    state["mix"] = len(items)
            if gi == nuse - 1 and stages[si].get("tail"):
                a(stages[si]["tail"])

    def prologue(self):
        a = self.a
        a(f"""
        s_cmp_ge_u32 s2, 256
        s_cbranch_scc1 L_exit
        {"v_mov_b32 v254, 0" if self.stamps else ""}
        {"v_mov_b32 v255, 0" if self.stamps else ""}
        {"s_memrealtime s[98:99]" if self.o.get("calib") or "pc1" in self.o else ""}
        {"s_mov_b32 s94, 0" if "probe" in self.o or "pc1" in self.o else ""}
        s_load_dwordx16 s[4:19], s[0:1], 0
        s_load_dwordx8 s[20:27], s[0:1], 64
        """)
        if self.o.get("pf_code") == 2:
            a(f"""
            s_getpc_b64 s[{S_T0}:{S_T0+1}]
            L_pcref:
            s_lshr_b32 s3, s2, 3
            s_mul_i32 s3, s3, 1280
            v_lshlrev_b32 v4, 7, v0
            v_add_u32 v4, s3, v4
            v_min_u32 v4, L_exit-L_pcref, v4
            v_cmp_gt_u32 vcc, 10, v0
            s_and_saveexec_b64 s[{S_T0+2}:{S_T0+3}], vcc
            s_cbranch_execz L_nocpf
            global_load_dword v253, v4, s[{S_T0}:{S_T0+1}]
            L_nocpf:
            s_mov_b64 exec, -1
            """)
        a(f"""
        v_and_b32 v1, 63, v0
        v_lshrrev_b32 v2, 6, v0
        s_and_b32 s{S_XCD}, s2, 7
        v_readfirstlane_b32 s{S_WAVE}, v2
        s_lshr_b32 s{S_J}, s2, 3
        s_waitcnt lgkmcnt(0)
        s_load_dword s{S_TAG}, s[{P_WS}:{P_WS+1}], 0
        """)
        self.srd(R_WS, P_WS, WS_USED)
        self.srd(R_X, P_X, 2048 * 1280)
        self.srd(R_W2, P_W2, 1536 * 4096)
        if self.stamps or self.o.get("dbg") or "probe" in self.o:
            a(f"s_cmp_lg_u32 s{S_WAVE}, 0\ns_cbranch_scc1 L_nost0")
            self.stamp(0, 4)
            a("L_nost0:")
        if self.o.get("tlb"):
            self.tlb_warm()
        if self.o.get("pf_code") == 1:
            self.code_prefetch()
        if self.o.get("prio"):
            a(f"""
            s_sub_u32 s{S_T0}, s{S_WAVE}, 4
            s_cmp_lt_u32 s{S_T0}, 3
            s_cbranch_scc1 L_noprio
            s_setprio 3
            L_noprio:
            """)
        a(f"""
        s_lshr_b32 s{S_T0}, s{S_XCD}, 1
        s_lshl_b32 s{S_T0}, s{S_T0}, 3
        s_lshr_b32 s{S_ST}, s{S_J}, 2
        s_add_u32 s{S_ST}, s{S_ST}, s{S_T0}
        s_and_b32 s{S_T0}, s{S_XCD}, 1
        s_lshl_b32 s{S_T0}, s{S_T0}, 2
        s_and_b32 s{S_DTILE}, s{S_J}, 3
        s_add_u32 s{S_DTILE}, s{S_DTILE}, s{S_T0}
        s_cmp_lt_u32 s{S_XCD}, 4
        s_cbranch_scc1 L_roleB
        """)

    V_W2 = 240

    def f_perm(self):
        a = self.a
        a(f"s_lshl_b32 s{S_M}, s{S_DTILE}, 1\ns_add_u32 s{S_M}, s{S_M}, s{S_ST}\ns_and_b32 s{S_M}, s{S_M}, 7")
        self.perm_setup(S_M, 12, 8, S_PERM, self.o.get("rotF"))

    def w2_setup(self):
        a = self.a
        V = self.V_W2
        self.f_perm()
        a(f"""
        v_lshrrev_b32 v{V}, 3, v1
        v_lshrrev_b32 v{V+1}, 4, v1
        v_lshlrev_b32 v{V+1}, 1, v{V+1}
        v_and_b32 v{V+2}, 7, v1
        v_xor_b32 v{V+1}, v{V+1}, v{V+2}
        v_lshlrev_b32 v{V+1}, 4, v{V+1}
        v_lshl_add_u32 v{V}, v{V}, 12, v{V+1}
        v_add_u32 v{V+1}, {32768-1024}, v{V}
        v_add_u32 v{V+2}, {2*(32768-1024)}, v{V}
        v_add_u32 v{V+3}, {3*(32768-1024)}, v{V}
        s_sub_u32 s{S_T0}, s{S_WAVE}, 5
        s_lshl_b32 s{S_B}, s{S_T0}, 13
        s_lshl_b32 s{S_A}, s{S_T0}, 18
        s_lshl_b32 s{S_T0}, s{S_ST}, 7
        s_add_u32 s{S_A}, s{S_A}, s{S_T0}
        """)

    def w2_issue_at(self, p):
        a = self.a
        V = self.V_W2
        a(f"s_bfe_u32 s{S_T0}, s{S_PERM}, {(4 << 16) | (4 * p):#x}\ns_lshl_b32 s{S_T0}, s{S_T0}, 19\ns_add_u32 s{S_T0}, s{S_T0}, s{S_A}")
        for g in range(2):
            a(f"s_add_u32 m0, s{S_B}, {p*16384 + g*4096}")
            a(f"s_add_u32 s{S_T0}, s{S_T0}, {g*4*32768}")
            for i in range(4):
                a(f"buffer_load_dwordx4 v{V+i}, s[{R_W2}:{R_W2+3}], s{S_T0} offen offset:{i*1024} lds")

    def w2_half(self, g):
        a = self.a
        V = self.V_W2
        if g == 0:
            a(self.perm_next(S_K0, S_PERM, 128 * 4096) + f"s_add_u32 s{S_K0}, s{S_K0}, s{S_A}")
        a(f"s_add_u32 m0, s{S_B}, {g*4096}\ns_add_u32 s{S_T0}, s{S_K0}, {g*4*32768}")
        for i in range(4):
            a(f"buffer_load_dwordx4 v{V+i}, s[{R_W2}:{R_W2+3}], s{S_T0} offen offset:{i*1024} lds")
        if g == 1:
            a(f"s_add_u32 s{S_B}, s{S_B}, 16384")

    def w2_issue(self):
        a = self.a
        V = self.V_W2
        a(self.perm_next(S_T0, S_PERM, 128 * 4096))
        a(f"s_add_u32 s{S_T0}, s{S_T0}, s{S_A}")
        for g in range(2):
            a(f"s_add_u32 m0, s{S_B}, {g*4096}")
            a(f"s_add_u32 s{S_T0}, s{S_T0}, {g*4*32768}")
            for i in range(4):
                a(f"buffer_load_dwordx4 v{V+i}, s[{R_W2}:{R_W2+3}], s{S_T0} offen offset:{i*1024} lds")
        a(f"s_add_u32 s{S_B}, s{S_B}, 16384\ns_and_b32 s{S_B}, s{S_B}, 0x1ffff")

    def w2_prefill(self, n):
        if n == 0:
            return
        a = self.a
        lp = a.label("pf")
        a(f"s_mov_b32 s{S_C}, 0\n{lp}:")
        self.w2_issue()
        a(f"s_add_u32 s{S_C}, s{S_C}, 1\ns_cmp_lt_u32 s{S_C}, {n}\ns_cbranch_scc1 {lp}")

    def if_wave56(self):
        a = self.a
        skip = a.label("n56")
        a(f"s_sub_u32 s{S_T0}, s{S_WAVE}, 5\ns_cmp_lt_u32 s{S_T0}, 2\ns_cbranch_scc0 {skip}")
        return skip

    def role_a(self):
        a = self.a
        a(f"L_roleA:\ns_mov_b32 s{S_FROMA}, 1")
        a(f"s_sub_u32 s{S_MT}, s{S_ST}, 16\ns_mov_b32 s{S_HG}, s{S_DTILE}")
        a(f"s_cmp_ge_u32 s{S_WAVE}, 4\ns_cbranch_scc1 L_A_loader")
        ACC, XF, WF, VXA, VWA = 128, 96, 64, 4, 6
        if self.o.get("ta1") or self.o.get("ta2"):
            self.start_prefetch()
        self.a_thread_map()
        a(f"""
        v_and_b32 v16, 15, v1
        v_lshrrev_b32 v17, 4, v1
        s_lshl_b32 s{S_T0}, s{S_WAVE}, 5
        v_add_u32 v18, s{S_T0}, v16
        v_lshrrev_b32 v19, 1, v16
        v_xor_b32 v19, v17, v19
        v_lshlrev_b32 v19, 4, v19
        v_lshl_add_u32 v{VXA}, v18, 7, v19
        v_xor_b32 v{VXA+1}, 64, v{VXA}
        v_lshrrev_b32 v18, 2, v16
        v_lshl_add_u32 v19, v17, 3, v18
        v_and_b32 v20, 1, v17
        v_lshl_or_b32 v20, v20, 2, v18
        v_lshlrev_b32 v19, 9, v19
        v_lshl_add_u32 v19, v20, 5, v19
        v_and_b32 v20, 3, v16
        v_lshl_add_u32 v19, v20, 3, v19
        v_add_u32 v{VWA}, {A_WOFF}, v19
        """)
        for n in range(1, 8):
            a(f"v_xor_b32 v{VWA+n}, {n<<5}, v{VWA}")
        for r in range(120):
            a(f"v_mov_b32 v{ACC+r}, 0")
        a(f"s_mov_b32 s{S_A}, 0\ns_mov_b32 s{S_B}, 0\ns_mov_b32 s{S_C}, {A_SLOT}\ns_waitcnt lgkmcnt(0)")
        a(f"s_add_u32 s{S_TAG}, s{S_TAG}, {TAG_INC:#x}")

        RING = 6
        D = 6

        def mk_stage(bar, virtual=False, head=None, tail=None):
            uses = []
            for g in range(30):
                ks, n = divmod(g, 15)
                wb = WF + 4 * (g % RING)
                reads = []
                if g == 0:
                    for rb in range(2):
                        reads.append((f"x0{rb}", f"ds_read_b128 {vr(XF+4*rb,4)}, v{VXA} offset:{rb*2048}"))
                if g == 13:
                    for rb in range(2):
                        reads.append((f"x1{rb}", f"ds_read_b128 {vr(XF+8+4*rb,4)}, v{VXA+1} offset:{rb*2048}"))
                off = ks * 16384 + (n >> 3) * 256
                reads.append((f"w{g}a", f"ds_read_b64_tr_b16 {vr(wb,2)}, v{VWA+(n&7)} offset:{off}"))
                reads.append((f"w{g}b", f"ds_read_b64_tr_b16 {vr(wb+2,2)}, v{VWA+(n&7)} offset:{off+2048}"))
                need = [f"w{g}b", f"x{ks}1"]
                mf = []
                for rb in range(2):
                    acc = vr(ACC + (n * 2 + rb) * 4, 4)
                    xf = vr(XF + ks * 8 + rb * 4, 4)
                    wf = vr(wb, 4)
                    if n < 5:
                        mf.append(f"v_mfma_f32_16x16x32_bf16 {acc}, {wf}, {xf}, {acc}")
                    else:
                        mf.append(f"v_mfma_f32_16x16x32_bf16 {acc}, {xf}, {wf}, {acc}")
                uses.append(dict(reads=reads, need=need, mf=mf))
            return dict(uses=uses, bar=bar, virtual=virtual, head=head, tail=tail)

        adv = "s_barrier"
        pre = [f"s_add_u32 s{S_B}, s{S_B}, 1", f"s_cmp_eq_u32 s{S_B}, 3", f"s_cselect_b32 s{S_B}, 0, s{S_B}",
               f"s_cselect_b32 s{S_T0}, {(-2*A_SLOT) & 0xffffffff:#x}, s{S_C}"]
        pre += [f"v_add_u32 v{r}, s{S_T0}, v{r}" for r in range(VXA, VWA + 8)]
        tail = f"s_add_u32 s{S_A}, s{S_A}, 1\ns_cmp_lt_u32 s{S_A}, 10\ns_cbranch_scc1 L_A_loop"
        head = "L_A_loop:\n"
        bar0 = "s_barrier"
        self.uw_srd()
        if self.o.get("tw2") == 2:
            self.srd(R_M, P_WO, 640 * 1280)
            a(f"""
            v_lshlrev_b32 v252, 7, v1
            s_lshl_b32 s{S_T0}, s{S_MT}, 3
            s_add_u32 s{S_T0}, s{S_T0}, s{S_HG}
            s_lshl_b32 s{S_T0}, s{S_T0}, 2
            s_add_u32 s{S_T0}, s{S_T0}, s{S_WAVE}
            s_mul_i32 s{S_D}, s{S_T0}, {8192 if self.o.get("hW2") else 12288}
            s_add_u32 s{S_KST}, s{S_D}, 8192
            s_mul_i32 s{S_PAR}, s{S_T0}, 1664
            s_and_b32 s{S_M}, s{S_J}, 7
            s_add_u32 s{S_M}, s{S_M}, {self.o.get("tw2at", 1)}
            """)
            head += f"""
            s_cmp_lg_u32 s{S_A}, s{S_M}
            s_cbranch_scc1 L_A_nt2
            buffer_load_dword v253, v252, s[{R_W2}:{R_W2+3}], s{S_D} offen
            s_mov_b32 exec_hi, 0
            {"" if self.o.get("hW2") else f"buffer_load_dword v253, v252, s[{R_W2}:{R_W2+3}], s{S_KST} offen"}
            s_mov_b32 exec_lo, 0x1fff
            {"" if self.o.get("woLN") else f"buffer_load_dword v253, v252, s[{R_M}:{R_M+3}], s{S_PAR} offen"}
            s_mov_b64 exec, -1
            L_A_nt2:
            """
        if "promA" in self.o:
            head += f"s_cmp_lg_u32 s{S_A}, {self.o['promA']}\ns_cbranch_scc1 L_A_npr\n" + self.pf_rest_plain() + "L_A_npr:\n"
        ta2 = self.o.get("ta2")
        if ta2 == 1:
            a(self.pf_rest())
        elif ta2 == 2:
            bar0 += "\n" + self.pf_rest()
        elif ta2:
            head += f"s_cmp_lg_u32 s{S_A}, {ta2-2}\ns_cbranch_scc1 L_A_npf\n" + self.pf_rest() + "L_A_npf:\n"
        self.pipeline([mk_stage(bar0, head=head, tail=tail), dict(mk_stage(adv, virtual=True), pre=pre)], 5, 30 - 3, wait_every=self.o.get('we', 2))
        self.stamp(2, 16)
        PK, VV, ONES, KVD, ZD = 16, 36, 56, 64, 116
        a("L_A_tail:\ns_waitcnt lgkmcnt(0)\ns_nop 7")
        a(f"s_mov_b32 s{S_K0}, {LOG2E:#x}\ns_mov_b32 s{S_K0+1}, {LOG2E:#x}\ns_mov_b32 s{S_K0+2}, {f2u(1e-6):#x}")

        def phi(base, n, t):
            for i in range(0, n, 4):
                r = base + i
                a(f"v_pk_mul_f32 {vr(t,2)}, {vr(r,2)}, s[{S_K0}:{S_K0+1}]")
                a(f"v_pk_mul_f32 {vr(t+2,2)}, {vr(r+2,2)}, s[{S_K0}:{S_K0+1}]")
                for k in range(4):
                    a(f"v_exp_f32_e64 v{t+k}, v{t+k} clamp")
                for k in range(4):
                    a(f"v_max_f32 v{r+k}, s{S_K0+2}, v{r+k}")
                a(f"v_pk_add_f32 {vr(r,2)}, {vr(r,2)}, {vr(t,2)}")
                a(f"v_pk_add_f32 {vr(r+2,2)}, {vr(r+2,2)}, {vr(t+2,2)}")

        def pack(dst, src0, src1):
            a(f"v_cvt_pk_bf16_f32 v{dst}, v{src0}, v{src0+1}\nv_cvt_pk_bf16_f32 v{dst+1}, v{src0+2}, v{src0+3}")
            if src1 is None:
                a(f"v_mov_b32 v{dst+2}, 0\nv_mov_b32 v{dst+3}, 0")
            else:
                a(f"v_cvt_pk_bf16_f32 v{dst+2}, v{src1}, v{src1+1}\nv_cvt_pk_bf16_f32 v{dst+3}, v{src1+2}, v{src1+3}")

        for b in range(5):
            pack(VV + 4 * b, ACC + (10 + b) * 8, ACC + (10 + b) * 8 + 4)
        for k in range(4):
            a(f"v_mov_b32 v{ONES+k}, 0x3f803f80")
        phi(ACC + 40, 40, 60)
        for b in range(5):
            pack(PK + 4 * b, ACC + (5 + b) * 8, ACC + (5 + b) * 8 + 4)
        a("s_nop 1")
        ZD = ACC + 80
        blocks = [(x, y) for x in range(5) for y in range(5) if abs(x - y) <= 1]
        for (x, y) in blocks:
            a(f"v_mfma_f32_16x16x32_bf16 {vr(KVD+4*(2*x+y),4)}, {vr(PK+4*x,4)}, {vr(VV+4*y,4)}, 0")
        for x in range(5):
            a(f"v_mfma_f32_16x16x32_bf16 {vr(ZD+4*x,4)}, {vr(ONES,4)}, {vr(PK+4*x,4)}, 0")
        a(f"""
        s_mul_i32 s{S_T0}, s{S_WAVE}, {EXCH_ST}
        s_add_u32 s{S_T0}, s{S_T0}, {EXCH}
        v_lshlrev_b32 v60, 4, v1
        v_add_u32 v60, s{S_T0}, v60
        v_and_b32 v61, 15, v1
        v_lshlrev_b32 v61, 2, v61
        v_add_u32 v61, s{S_T0}, v61
        s_nop 3
        """)
        for i in range(13):
            a(f"ds_write_b128 v60, {vr(KVD+4*i,4)} offset:{i*1024}")
        for x in range(5):
            a(f"ds_write_b32 v61, v{ZD+4*x} offset:{13312+64*x}")
        self.stamp(10, 40)
        a("s_waitcnt lgkmcnt(0)\ns_barrier")
        self.stamp(11, 40)
        self.a_reduce_publish(64)
        self.stamp(12, 40)
        a("v_lshlrev_b32 v59, 4, v1\ns_barrier")
        self.stamp(14, 40)
        self.wot_preload(59)
        PQ = 16
        phi(ACC, 40, 60)
        for ts in range(3):
            for rb in range(2):
                pack(PQ + (ts * 2 + rb) * 4, ACC + (2 * ts * 2 + rb) * 4, None if ts == 2 else ACC + ((2 * ts + 1) * 2 + rb) * 4)
        self.f_setup()
        a("s_barrier")
        a(f"""
        v_and_b32 v63, 15, v1
        v_lshlrev_b32 v63, 2, v63
        s_lshl_b32 s{S_T0}, s{S_MT}, 7
        s_lshl_b32 s{S_T0+1}, s{S_WAVE}, 5
        s_add_u32 s{S_T0}, s{S_T0}, s{S_T0+1}
        s_lshl_b32 s{S_T0}, s{S_T0}, 2
        s_add_u32 s{S_T0}, s{S_T0}, {G_OFF}
        buffer_load_dword v62, v63, s[{R_WS}:{R_WS+3}], s{S_T0} offen sc1
        buffer_load_dword v61, v63, s[{R_WS}:{R_WS+3}], s{S_T0} offen offset:64 sc1
        """)
        self.a_gather(64)
        a("s_waitcnt lgkmcnt(0)\ns_barrier")
        self.stamp(4, 40)
        FR = 64
        a("v_lshlrev_b32 v60, 4, v1\nv_add_u32 v60, " + str(KVT) + ", v60")
        used = [0, 2, 3, 4, 5, 7, 8, 9, 10, 11, 12, 13]
        for f in used:
            a(f"ds_read_b128 {vr(FR+4*f,4)}, v60 offset:{f*1024}")
        NUM, DEN = 128, 120
        kts = {0: [0], 1: [0, 1], 2: [0, 1], 3: [1, 2], 4: [1, 2]}
        a(f"""
        v_lshrrev_b32 v40, 4, v1
        v_cmp_gt_u32 s[{S_MSK}:{S_MSK+1}], 1, v40
        v_cmp_gt_u32 s[{S_MSK+2}:{S_MSK+3}], 2, v40
        v_cmp_gt_u32 s[{S_MSK+4}:{S_MSK+5}], 3, v40
        s_waitcnt lgkmcnt(0)
        """)
        for rb in range(2):
            for ts in range(3):
                c = "0" if ts == 0 else vr(DEN + 4 * rb, 4)
                a(f"v_mfma_f32_16x16x32_bf16 {vr(DEN+4*rb,4)}, {vr(FR+4*(11+ts),4)}, {vr(PQ+(ts*2+rb)*4,4)}, {c}")
        for rb in range(2):
            for b in range(5):
                for i, ts in enumerate(kts[b]):
                    d = vr(NUM + (rb * 5 + b) * 4, 4)
                    c = "0" if i == 0 else d
                    a(f"v_mfma_f32_16x16x32_bf16 {d}, {vr(FR+4*(2*b+ts),4)}, {vr(PQ+(ts*2+rb)*4,4)}, {c}")
        for rb in range(2):
            for h in range(4):
                a(f"v_add_f32 v{DEN+4*rb+h}, s{S_K0+2}, v{DEN+4*rb+h}")
        for rb in range(2):
            for h in range(4):
                a(f"v_rcp_f32 v{DEN+4*rb+h}, v{DEN+4*rb+h}")
        a("s_nop 0")
        gv = {0: 62, 1: 61}
        for rb in range(2):
            for h in range(4):
                a(f"v_mul_f32 v{DEN+4*rb+h}, v{gv[rb]}, v{DEN+4*rb+h}")
        a(f"""
        s_lshl_b32 s{S_T0}, s{S_MT}, 3
        s_lshl_b32 s{S_T0+1}, s{S_WAVE}, 1
        s_add_u32 s{S_T0}, s{S_T0}, s{S_T0+1}
        s_mul_i32 s{S_T0}, s{S_T0}, {GO_ST}
        s_add_u32 s{S_T0}, s{S_T0}, {GO}
        s_lshl_b32 s{S_T0+1}, s{S_HG}, 11
        s_add_u32 s{S_T0+1}, s{S_T0+1}, s{S_T0}
        s_lshl_b32 s{S_T0+2}, s{S_HG}, 9
        s_add_u32 s{S_T0+2}, s{S_T0+2}, s{S_T0}
        s_add_u32 s{S_T0+2}, s{S_T0+2}, 16384
        v_lshlrev_b32 v40, 4, v1
        v_lshlrev_b32 v41, 3, v1
        """)
        for rb in range(2):
            d = DEN + 4 * rb
            a(f"v_cndmask_b32 v44, v{d+1}, v{d}, s[{S_MSK}:{S_MSK+1}]")
            a(f"v_cndmask_b32 v45, v{d+2}, v{d+1}, s[{S_MSK+2}:{S_MSK+3}]")
            a(f"v_cndmask_b32 v46, v{d+3}, v{d+2}, s[{S_MSK+4}:{S_MSK+5}]")
            sc = [d, 44, 45, 46, d + 3]
            for b in range(5):
                for k in range(4):
                    r = NUM + (rb * 5 + b) * 4 + k
                    a(f"v_mul_f32 v{r}, v{sc[b]}, v{r}")
            o = 16 + rb * 12
            n0 = NUM + rb * 20
            pack(o, n0, n0 + 4)
            pack(o + 4, n0 + 8, n0 + 12)
            a(f"v_cvt_pk_bf16_f32 v{o+8}, v{n0+16}, v{n0+17}\nv_cvt_pk_bf16_f32 v{o+9}, v{n0+18}, v{n0+19}")
            a(f"buffer_store_dwordx4 {vr(o,4)}, v40, s[{R_WS}:{R_WS+3}], s{S_T0+1} offen sc1")
            a(f"buffer_store_dwordx4 {vr(o+4,4)}, v40, s[{R_WS}:{R_WS+3}], s{S_T0+1} offen offset:1024 sc1")
            a(f"buffer_store_dwordx2 {vr(o+8,2)}, v41, s[{R_WS}:{R_WS+3}], s{S_T0+2} offen sc1")
            if rb == 0:
                a(f"s_add_u32 s{S_T0+1}, s{S_T0+1}, {GO_ST}\ns_add_u32 s{S_T0+2}, s{S_T0+2}, {GO_ST}")
        self.stamp(5, 40)
        a("s_branch L_F_comp")

        a("L_A_loader:")
        VX, VW = 4, 8
        self.srd(R_W, P_WQKV, 640 * 3840)
        a(f"""
        s_sub_u32 s{S_D}, s{S_WAVE}, 4
        v_lshrrev_b32 v16, 3, v1
        v_lshrrev_b32 v17, 4, v1
        v_and_b32 v18, 7, v1
        v_xor_b32 v17, v17, v18
        v_lshlrev_b32 v17, 4, v17
        v_mul_u32_u24 v16, 1280, v16
        v_add_u32 v{VX}, v16, v17
        v_xor_b32 v18, 64, v{VX}
        v_add_u32 v{VX+1}, {8*1280-1024}, v18
        v_add_u32 v{VX+2}, {2*(8*1280-1024)}, v{VX}
        v_add_u32 v{VX+3}, {3*(8*1280-1024)}, v18
        s_lshl_b32 s{S_T0}, s{S_MT}, 7
        s_lshl_b32 s{S_T0+1}, s{S_D}, 5
        s_add_u32 s{S_T0}, s{S_T0}, s{S_T0+1}
        s_mul_i32 s{S_A}, s{S_T0}, 1280
        s_lshl_b32 s{S_C}, s{S_D}, 12
        """)
        def issue_x():
            a(f"s_mov_b32 m0, s{S_C}\ns_nop 0")
            for i in range(4):
                a(f"buffer_load_dwordx4 v{VX+i}, s[{R_X}:{R_X+3}], s{S_A} offen offset:{i*1024} lds")
            a(f"s_add_u32 s{S_A}, s{S_A}, 128")

        def issue_w():
            for g in range(2):
                a(f"s_lshl_b32 s{S_T0}, s{S_D}, 12\ns_add_u32 s{S_T0}, s{S_T0}, s{S_C}\ns_add_u32 m0, s{S_T0}, {A_WOFF + g*4096}\ns_nop 0")
                for i in range(4):
                    a(f"buffer_load_dwordx4 v{VW+4*g+i}, s[{R_W}:{R_W+3}], s{S_B} offen offset:{i*1024} lds")
            a(f"s_add_u32 s{S_B}, s{S_B}, {64*3840}")

        def next_slot():
            a(f"s_add_u32 s{S_C}, s{S_C}, {A_SLOT}\ns_cmp_ge_u32 s{S_C}, {3*A_SLOT}\ns_cselect_b32 s{S_T0}, {3*A_SLOT}, 0\ns_sub_u32 s{S_C}, s{S_C}, s{S_T0}")

        issue_x()
        a(f"""
        v_lshrrev_b32 v16, 5, v1
        v_bfe_u32 v17, v1, 1, 4
        v_and_b32 v18, 1, v1
        v_lshlrev_b32 v18, 4, v18
        v_mul_u32_u24 v19, 3840, v16
        v_add_u32 v18, v18, v19
        """)
        for i in (0, 1, 4, 5):
            sig = (2 * (i & 1)) | ((i >> 2) << 2)
            a(f"""
            v_or_b32 v19, {sig}, v16
            v_xor_b32 v19, v17, v19
            v_min_u32 v19, 14, v19
            v_mul_u32_u24 v20, 13, v19
            v_lshrrev_b32 v20, 6, v20
            v_mul_u32_u24 v20, 1120, v20
            v_lshl_add_u32 v19, v19, 5, v20
            v_add_u32 v19, v19, v18
            v_add_u32 v{VW+i}, {2*i*3840 - (i&3)*1024}, v19
            v_add_u32 v{VW+i+2}, {2*(i+2)*3840 - ((i+2)&3)*1024}, v19
            """)
        a(f"""
        s_mul_i32 s{S_B}, s{S_HG}, 160
        s_mul_i32 s{S_T0}, s{S_D}, {16*3840}
        s_add_u32 s{S_B}, s{S_B}, s{S_T0}
        """)
        issue_w()
        for _ in range(2):
            next_slot()
            issue_x()
            issue_w()
        a(f"s_waitcnt lgkmcnt(0)\ns_add_u32 s{S_TAG}, s{S_TAG}, {TAG_INC:#x}")
        a("s_waitcnt vmcnt(24)\ns_barrier")
        self.stamp(1, 16)
        rotA = self.o.get("rotA")
        if rotA:
            a(f"s_lshl_b32 s{S_M}, s{S_HG}, 1\ns_add_u32 s{S_M}, s{S_M}, s{S_MT}\ns_and_b32 s{S_M}, s{S_M}, 7")
            self.perm_setup(S_M, 7, 8, S_PERM, rotA)
            a(f"s_mov_b32 s{S_KST}, s{S_A}\ns_mov_b32 s{S_PAR}, s{S_B}")
        a(f"s_mov_b32 s{S_CNT}, 1\nL_A_lloop:")
        if rotA:
            a(self.perm_next(S_B, S_PERM, 1))
            a(f"s_lshl_b32 s{S_A}, s{S_B}, 7\ns_add_u32 s{S_A}, s{S_A}, s{S_KST}\ns_mul_i32 s{S_B}, s{S_B}, {64*3840}\ns_add_u32 s{S_B}, s{S_B}, s{S_PAR}")
        a("s_waitcnt vmcnt(12)\ns_barrier")
        self.stamp(16, 16, dyn=S_CNT)
        next_slot()
        issue_x()
        issue_w()
        a(f"s_add_u32 s{S_CNT}, s{S_CNT}, 1\ns_cmp_le_u32 s{S_CNT}, 7\ns_cbranch_scc1 L_A_lloop")
        tw = 3 if self.o.get("tw2") == 1 else 0
        a(f"s_waitcnt vmcnt(12)\ns_barrier")
        if tw:
            self.w2_touch()
        self.stamp(24, 16)
        self.w2_setup()
        self.a_thread_map()
        a(f"""
        s_mul_i32 s{S_T0}, s{S_DTILE}, {FS}
        s_add_u32 s{S_T0}, s{S_T0}, {F_WOT}
        v_mov_b32 v26, s{S_T0}
        v_and_b32 v27, 3, v1
        s_lshl_b32 s{S_T0}, s{S_MT}, 2
        v_add_u32 v27, s{S_T0}, v27
        v_mul_u32_u24 v27, {FS}, v27
        v_add_u32 v27, {F_LN}, v27
        v_cmp_gt_u32 vcc, 32, v1
        s_nop 1
        v_cndmask_b32 v26, v27, v26, vcc
        """)
        a(f"s_waitcnt vmcnt({tw})\ns_barrier")
        a(f"buffer_load_dword v28, v26, s[{R_WS}:{R_WS+3}], 0 offen sc1")
        self.stamp(25, 16)
        self.code_touch([("L_A_tail", 0), ("L_A_post", 0), ("L_F_comp", 0), ("L_F_comp", 1)])
        a("L_A_post:")
        eA = self.o.get("eA", 2)
        early = [3, 4, 5, 0, 1, 2]
        nE = self.o.get("nE", 6)
        sk = self.if_wave56()
        for p in early[:eA]:
            self.w2_issue_at(p)
        a(f"{sk}:\ns_barrier")
        self.stamp(26, 16)
        sk = self.if_wave56()
        for p in early[eA:nE]:
            self.w2_issue_at(p)
        a(f"{sk}:")
        a(f"s_cmp_eq_u32 s{S_WAVE}, 7\ns_cbranch_scc1 L_A_poller")
        a("s_barrier")
        self.a_reduce_publish(64)
        self.stamp(15, 40)
        a("s_barrier")
        self.kvt_zero()
        skip = self.if_wave56()
        for p in early[nE:] + [6, 7]:
            self.w2_issue_at(p)
        a(f"s_mov_b32 s{S_PERM}, s{S_PERM+1}")
        a("s_barrier")
        self.a_gather(64)
        a("s_waitcnt lgkmcnt(0)\ns_barrier")
        a("s_branch L_F_loader")
        a(f"{skip}:\ns_barrier")
        self.a_gather(64)
        a("s_waitcnt lgkmcnt(0)\ns_barrier")
        a("s_branch L_F_u4")
        a("L_A_poller:")
        a(f"s_waitcnt vmcnt(0)\nv_cmp_ne_u32 vcc, s{S_TAG}, v28\ns_nop 1\ns_cmp_eq_u64 vcc, 0\ns_cbranch_scc1 L_A_pok")
        self.poll([26], 18)
        a("L_A_pok:")
        self.stamp(13, 16)
        a("s_barrier\ns_barrier")
        self.kvt_zero()
        self.stamp(3, 16)
        a("s_barrier\ns_barrier")
        a("s_branch L_F_poller")
        self.a_gather_body(64)

    def code_touch(self, ranges):
        a = self.a
        if not self.o.get("ctouch"):
            return 0
        lab, ref = a.label("nct"), a.label("pc")
        a(f"s_cmp_lg_u32 s{S_WAVE}, 7\ns_cbranch_scc1 {lab}\ns_getpc_b64 s[{S_T0}:{S_T0+1}]\n{ref}:\nv_lshlrev_b32 v24, 7, v1")
        for (start, k) in ranges:
            a(f"s_add_u32 s{S_T0+2}, s{S_T0}, {start}-{ref}+{k*8192}\ns_addc_u32 s{S_T0+3}, s{S_T0+1}, {'-1' if start == 'L_A_tail' else '0'}")
            a(f"v_min_u32 v25, L_exit-{start}-{k*8192}, v24\nglobal_load_dword v253, v25, s[{S_T0+2}:{S_T0+3}]")
        a(f"{lab}:")
        return len(ranges)

    def kvt_zero(self):
        a = self.a
        a(f"v_lshlrev_b32 v16, 4, v1\ns_lshl_b32 s{S_T0}, s{S_D}, 12\ns_add_u32 s{S_T0}, s{S_T0}, {KVT}\nv_add_u32 v16, s{S_T0}, v16")
        a("v_mov_b32 v20, 0\nv_mov_b32 v21, 0\nv_mov_b32 v22, 0\nv_mov_b32 v23, 0")
        for i in range(4):
            a(f"ds_write_b128 v16, v[20:23] offset:{i*1024}")
        a("s_waitcnt lgkmcnt(0)")

    def start_prefetch(self):
        a = self.a
        self.srd(R_W, P_WQKV, 640 * 3840)
        a(f"""
        s_lshl_b32 s{S_T0}, s{S_J}, 2
        s_add_u32 s{S_T0}, s{S_T0}, s{S_WAVE}
        v_lshrrev_b32 v16, 2, v1
        v_and_b32 v17, 3, v1
        v_mul_u32_u24 v16, 1280, v16
        v_lshl_add_u32 v16, v17, 7, v16
        s_lshr_b32 s{S_T0+2}, s{S_MT}, 3
        s_lshl_b32 s{S_T0+2}, s{S_T0+2}, 7
        s_add_u32 s{S_T0+2}, s{S_T0+2}, s{S_T0}
        s_mul_i32 s{S_DT}, s{S_T0+2}, {8*1280}
        v_lshrrev_b32 v19, 4, v1
        v_and_b32 v17, 15, v1
        v_min_u32 v17, 14, v17
        v_mul_u32_u24 v18, 13, v17
        v_lshrrev_b32 v18, 6, v18
        v_mul_u32_u24 v18, 640, v18
        v_lshl_add_u32 v18, v17, 7, v18
        v_mul_u32_u24 v19, 3840, v19
        v_add_u32 v112, v18, v19
        s_lshr_b32 s{S_T0+2}, s{S_HG}, 2
        s_mul_i32 s{S_T0+2}, s{S_T0+2}, 640
        s_mul_i32 s{S_FT}, s{S_T0}, {2*3840}
        s_add_u32 s{S_FT}, s{S_FT}, s{S_T0+2}
        """)
        if self.o.get("ta1"):
            a(f"""
            s_mov_b32 exec_hi, 0
            buffer_load_dword v253, v112, s[{R_W}:{R_W+3}], s{S_FT} offen {self.nt('nta')}
            buffer_load_dword v253, v16, s[{R_X}:{R_X+3}], s{S_DT} offen {self.nt('ntax')}
            s_mov_b32 exec_hi, -1
            """)
        a(f"""
        s_mul_i32 s{S_FT}, s{S_T0}, {3*3840}
        s_add_u32 s{S_FT}, s{S_FT}, s{S_T0+2}
        s_add_u32 s{S_FT}, s{S_FT}, {256*3840}
        v_lshrrev_b32 v16, 3, v1
        v_and_b32 v17, 7, v1
        v_min_u32 v17, 5, v17
        v_mul_u32_u24 v16, 1280, v16
        v_lshl_add_u32 v113, v17, 7, v16
        s_add_u32 s{S_DT}, s{S_DT}, 512
        """)

    def pf_rest_plain(self):
        return f"""s_waitcnt vmcnt(0)
        s_mov_b32 exec_hi, 0xffff
        buffer_load_dword v253, v112, s[{R_W}:{R_W+3}], s{S_FT} offen
        s_mov_b32 exec_hi, -1
        buffer_load_dword v253, v113, s[{R_X}:{R_X+3}], s{S_DT} offen
        """

    def pf_rest(self):
        return f"""s_mov_b32 exec_hi, 0xffff
        buffer_load_dword v253, v112, s[{R_W}:{R_W+3}], s{S_FT} offen {self.nt('nta')}
        s_mov_b32 exec_hi, -1
        buffer_load_dword v253, v113, s[{R_X}:{R_X+3}], s{S_DT} offen {self.nt('ntax')}
        """

    def w2_touch(self):
        a = self.a
        self.srd(R_W2, P_W2, 1536 * 4096)
        a(f"""
        v_lshlrev_b32 v48, 7, v1
        s_lshl_b32 s{S_T0}, s{S_MT}, 3
        s_add_u32 s{S_T0}, s{S_T0}, s{S_HG}
        s_lshl_b32 s{S_T0}, s{S_T0}, 2
        s_add_u32 s{S_T0}, s{S_T0}, s{S_D}
        s_mul_i32 s{S_T0}, s{S_T0}, 12288
        buffer_load_dword v253, v48, s[{R_W2}:{R_W2+3}], s{S_T0} offen
        s_add_u32 s{S_T0}, s{S_T0}, 8192
        s_mov_b32 exec_hi, 0
        buffer_load_dword v253, v48, s[{R_W2}:{R_W2+3}], s{S_T0} offen
        """)
        self.srd(R_P, P_WO, 640 * 1280)
        a(f"""
        s_lshl_b32 s{S_T0}, s{S_MT}, 3
        s_add_u32 s{S_T0}, s{S_T0}, s{S_HG}
        s_lshl_b32 s{S_T0}, s{S_T0}, 2
        s_add_u32 s{S_T0}, s{S_T0}, s{S_D}
        s_mul_i32 s{S_T0}, s{S_T0}, 1664
        s_mov_b32 exec_lo, 0x1fff
        buffer_load_dword v253, v48, s[{R_P}:{R_P+3}], s{S_T0} offen
        s_mov_b64 exec, -1
        """)

    def tlb_warm(self):
        a = self.a
        mode = self.o["tlb"]
        wv = self.o.get("tlbw", 3)
        a(f"s_cmp_lg_u32 s{S_WAVE}, {wv}\ns_cbranch_scc1 L_notlb")
        self.srd(R_OUT, P_OUT, 2048 * 1280)
        self.srd(R_M, P_B2, 4096)
        self.srd(R_P, P_WO, 640 * 1280)
        self.srd(R_W, P_W1, 2048 * 3072)
        if mode == 1:
            a("v_lshlrev_b32 v4, 20, v1\nv_min_u32 v4, 0xf00000, v4\ns_mov_b64 exec, 0xffff")
            so = "0"
        else:
            a(f"v_lshlrev_b32 v4, 21, v1\ns_lshl_b32 s{S_T0}, s{S_J}, 16\ns_mov_b64 exec, 0x1f")
            so = f"s{S_T0}"
        for r in (R_WS, R_W2, R_OUT, R_W, R_P, R_M):
            a(f"buffer_load_dword v253, v4, s[{r}:{r+3}], {so} offen sc1")
        a("s_mov_b64 exec, -1\nL_notlb:")

    def code_prefetch(self):
        a = self.a
        a(f"""
        s_cmp_lg_u32 s{S_WAVE}, 3
        s_cbranch_scc1 L_nocpf
        s_cmp_ge_u32 s{S_J}, 5
        s_cbranch_scc1 L_nocpf
        s_getpc_b64 s[{S_T0}:{S_T0+1}]
        L_pcref:
        s_lshl_b32 s{S_T0+2}, s{S_J}, 13
        v_lshlrev_b32 v4, 7, v1
        v_add_u32 v4, s{S_T0+2}, v4
        v_min_u32 v4, L_end-L_pcref, v4
        global_load_dword v253, v4, s[{S_T0}:{S_T0+1}]
        L_nocpf:
        """)

    def a_thread_map(self):
        a = self.a
        a(f"""
        v_mul_u32_u24 v16, 625, v0
        v_lshrrev_b32 v16, 16, v16
        v_mul_u32_u24 v17, 105, v16
        v_sub_u32 v17, v0, v17
        v_mul_u32_u24 v19, 205, v17
        v_lshrrev_b32 v19, 12, v19
        v_mul_u32_u24 v18, 20, v19
        v_cmp_lt_u32 vcc, 99, v17
        v_sub_u32 v18, v17, v18
        s_nop 0
        v_cndmask_b32 v19, v19, v18, vcc
        v_mad_u32_u24 v19, v16, 5, v19
        v_mad_u32_u24 v20, v16, 20, v18
        v_lshrrev_b32 v21, 2, v19
        v_and_b32 v22, 3, v19
        v_lshrrev_b32 v23, 4, v20
        v_and_b32 v20, 15, v20
        v_lshl_add_u32 v20, v22, 4, v20
        v_lshl_add_u32 v2, v21, 1, v23
        v_lshlrev_b32 v2, 6, v2
        v_add_u32 v2, v2, v20
        v_lshlrev_b32 v2, 4, v2
        v_lshlrev_b32 v3, 4, v19
        v_add_u32 v3, 13312, v3
        v_cmp_lt_u32 vcc, 99, v17
        v_lshrrev_b32 v24, 1, v21
        v_and_b32 v21, 1, v21
        v_cndmask_b32 v2, v2, v3, vcc
        v_lshl_add_u32 v3, v23, 1, v24
        v_add_u32 v24, 11, v24
        v_lshl_add_u32 v22, v22, 4, v16
        v_cndmask_b32 v3, v3, v24, vcc
        v_cndmask_b32 v20, v20, v22, vcc
        v_lshl_add_u32 v3, v3, 6, v20
        v_lshlrev_b32 v3, 4, v3
        v_lshl_add_u32 v3, v21, 3, v3
        v_add_u32 v3, {KVT}, v3
        v_mov_b32 v25, 2
        v_cndmask_b32 v25, 1, v25, vcc
        v_mov_b32 v16, 420
        v_cmp_gt_u32 vcc, v16, v0
        v_lshlrev_b32 v14, 4, v0
        s_nop 0
        v_cndmask_b32 v15, 0, v25, vcc
        v_cndmask_b32 v2, 0, v2, vcc
        v_add_u32 v2, {EXCH}, v2
        """)

    def a_reduce_publish(self, T):
        a = self.a
        for w in range(4):
            a(f"ds_read_b128 {vr(T+4*w,4)}, v2 offset:{w*EXCH_ST}")
        a(f"""
        s_lshl_b32 s{S_T0}, s{S_HG}, 4
        s_add_u32 s{S_T0}, s{S_T0}, s{S_MT}
        s_mul_i32 s{S_T0}, s{S_T0}, {KVP_ST}
        s_add_u32 s{S_T0}, s{S_T0}, {KVP}
        v_cmp_ne_u32 vcc, 0, v15
        s_waitcnt lgkmcnt(0)
        v_pk_add_f32 {vr(T,2)}, {vr(T,2)}, {vr(T+4,2)}
        v_pk_add_f32 {vr(T+2,2)}, {vr(T+2,2)}, {vr(T+6,2)}
        v_pk_add_f32 {vr(T+8,2)}, {vr(T+8,2)}, {vr(T+12,2)}
        v_pk_add_f32 {vr(T+10,2)}, {vr(T+10,2)}, {vr(T+14,2)}
        v_pk_add_f32 {vr(T,2)}, {vr(T,2)}, {vr(T+8,2)}
        v_pk_add_f32 {vr(T+2,2)}, {vr(T+2,2)}, {vr(T+10,2)}
        v_mov_b32_sdwa v{T}, s{S_TAG} dst_sel:BYTE_0 dst_unused:UNUSED_PRESERVE src0_sel:BYTE_0
        v_mov_b32_sdwa v{T+1}, s{S_TAG} dst_sel:BYTE_0 dst_unused:UNUSED_PRESERVE src0_sel:BYTE_1
        v_mov_b32_sdwa v{T+2}, s{S_TAG} dst_sel:BYTE_0 dst_unused:UNUSED_PRESERVE src0_sel:BYTE_2
        v_mov_b32_sdwa v{T+3}, s{S_TAG} dst_sel:BYTE_0 dst_unused:UNUSED_PRESERVE src0_sel:BYTE_3
        s_mov_b64 exec, vcc
        buffer_store_dwordx4 {vr(T,4)}, v14, s[{R_WS}:{R_WS+3}], s{S_T0} offen sc1
        s_mov_b64 exec, -1
        """)

    S_RET = 88

    def a_gather(self, T):
        self.a(f"s_call_b64 s[{self.S_RET}:{self.S_RET+1}], L_gather")

    def a_gather_body(self, T):
        a = self.a
        MK = S_T0 + 4
        a("L_gather:")
        a(f"s_mul_i32 s{S_T0+1}, s{S_HG}, {16*KVP_ST}\ns_add_u32 s{S_T0+1}, s{S_T0+1}, {KVP}")
        a(f"v_cmp_ne_u32 s[{MK}:{MK+1}], 0, v15\ns_mov_b32 s{S_CNT}, 0\ns_lshl_b32 s{S_T0+2}, s{S_MT}, 1\ns_mov_b64 exec, s[{MK}:{MK+1}]")

        def pair(m):
            a(f"s_add_u32 s{S_T0}, s{S_T0+2}, {m}\ns_and_b32 s{S_T0}, s{S_T0}, 15\ns_mul_i32 s{S_T0}, s{S_T0}, {KVP_ST}\ns_add_u32 s{S_T0}, s{S_T0}, s{S_T0+1}")
            a(f"buffer_load_dwordx4 {vr(T+4*m,4)}, v14, s[{R_WS}:{R_WS+3}], s{S_T0} offen sc1\ns_add_u32 s{S_T0}, s{S_T0}, {KVP_ST}")
            a(f"buffer_load_dwordx4 {vr(T+4*m+4,4)}, v14, s[{R_WS}:{R_WS+3}], s{S_T0} offen sc1")
        for m in range(0, 16, 2):
            pair(m)
        for m in range(0, 16, 2):
            a(f"s_waitcnt vmcnt({14-m})\nL_gchk{m}:")
            for q in range(8):
                a(f"v_cmpx_eq_u32_sdwa vcc, v{T+4*m+q}, s{S_TAG} src0_sel:BYTE_0 src1_sel:BYTE_{q & 3}")
            a(f"""
            s_add_u32 s{S_CNT}, s{S_CNT}, 1
            s_cmp_eq_u64 exec, s[{MK}:{MK+1}]
            s_mov_b64 exec, s[{MK}:{MK+1}]
            s_cbranch_scc1 L_gok{m}
            s_cmp_ge_u32 s{S_CNT}, {SPIN_LIMIT}
            s_cbranch_scc1 L_gok{m}
            """)
            pair(m)
            a(f"s_waitcnt vmcnt(0)\ns_branch L_gchk{m}\nL_gok{m}:")
            for q in range(8):
                a(f"v_and_b32 v{T+4*m+q}, 0xffffff00, v{T+4*m+q}")
            for h in (0, 2):
                a(f"v_pk_add_f32 {vr(T+4*m+h,2)}, {vr(T+4*m+h,2)}, {vr(T+4*(m+1)+h,2)}")
            if m >= 2:
                for h in (0, 2):
                    a(f"v_pk_add_f32 {vr(T+h,2)}, {vr(T+h,2)}, {vr(T+4*m+h,2)}")
        a("s_mov_b64 exec, -1")
        a(f"""
        v_cvt_pk_bf16_f32 v{T}, v{T}, v{T+1}
        v_cvt_pk_bf16_f32 v{T+1}, v{T+2}, v{T+3}
        v_cmp_ne_u32 vcc, 0, v15
        v_cmp_eq_u32 s[{S_T0}:{S_T0+1}], 2, v15
        s_nop 1
        s_mov_b64 exec, vcc
        ds_write_b64 v3, {vr(T,2)}
        s_mov_b64 exec, s[{S_T0}:{S_T0+1}]
        ds_write_b64 v3, {vr(T,2)} offset:64
        ds_write_b64 v3, {vr(T,2)} offset:128
        ds_write_b64 v3, {vr(T,2)} offset:192
        s_mov_b64 exec, -1
        s_setpc_b64 s[{self.S_RET}:{self.S_RET+1}]
        """)

    def role_b(self):
        a = self.a
        a(f"L_roleB:\ns_mov_b32 s{S_FROMA}, 0")
        XR, B1R, GR, XS = 16, 36, 64, 84
        VPF = 8
        a(f"s_cmp_ge_u32 s{S_J}, 16\ns_cbranch_scc1 L_B_pfrole")
        a(f"""
        s_lshl_b32 s{S_KST}, s{S_XCD}, 4
        s_add_u32 s{S_KST}, s{S_KST}, s{S_J}
        s_lshl_b32 s{S_T0}, s{S_KST}, 3
        s_add_u32 s{S_T0}, s{S_T0}, s{S_WAVE}
        s_mul_i32 s{S_T0}, s{S_T0}, {4*1280}
        v_lshrrev_b32 v2, 4, v1
        v_and_b32 v3, 15, v1
        v_lshlrev_b32 v3, 4, v3
        v_mul_u32_u24 v4, 1280, v2
        v_add_u32 v4, v4, v3
        """)
        for c in ((2, 3, 4, 0, 1) if self.o.get("xord") else range(5)):
            a(f"buffer_load_dwordx4 {vr(XR+4*c,4)}, v4, s[{R_X}:{R_X+3}], s{S_T0} offen offset:{c*256} {self.nt('ntx')}")
        self.srd(R_M, P_GATE, 1280)
        for c in range(5):
            a(f"buffer_load_dwordx4 {vr(GR+4*c,4)}, v3, s[{R_M}:{R_M+3}], 0 offen offset:{c*256}")

        def common_setup():
            a(f"""
            s_mul_i32 s{S_M}, s{S_J}, 205
            s_lshr_b32 s{S_M}, s{S_M}, 10
            s_mul_i32 s{S_DT}, s{S_M}, 5
            s_sub_u32 s{S_DT}, s{S_J}, s{S_DT}
            s_mul_i32 s{S_FT}, s{S_XCD}, 6
            s_add_u32 s{S_FT}, s{S_FT}, s{S_M}
            """)
            self.srd(R_OUT, P_B1, 3072)
            a(f"v_lshrrev_b32 v5, 4, v1\nv_lshlrev_b32 v5, 3, v5\ns_lshl_b32 s{S_T0}, s{S_FT}, 7")
            for b in range(4):
                a(f"buffer_load_dwordx2 {vr(B1R+2*b,2)}, v5, s[{R_OUT}:{R_OUT+3}], s{S_T0} offen offset:{b*32}")
            a(f"""
            v_lshrrev_b32 v12, 3, v1
            v_lshrrev_b32 v13, 4, v1
            v_lshlrev_b32 v13, 1, v13
            v_and_b32 v14, 7, v1
            v_xor_b32 v13, v13, v14
            v_lshlrev_b32 v13, 4, v13
            v_mul_u32_u24 v12, 3072, v12
            v_add_u32 v{VPF}, v12, v13
            v_add_u32 v{VPF+1}, {8*3072-1024}, v{VPF}
            v_add_u32 v{VPF+2}, {2*(8*3072-1024)}, v{VPF}
            v_add_u32 v{VPF+3}, {3*(8*3072-1024)}, v{VPF}
            """)
            self.perm_setup(S_M, 16, 6, S_PERM, self.o.get("rotB"))
            a(f"""
            s_and_b32 s{S_T0}, s{S_WAVE}, 3
            s_lshl_b32 s{S_B}, s{S_T0}, 12
            s_mul_i32 s{S_A}, s{S_T0}, {32*3072}
            s_lshl_b32 s{S_T0}, s{S_FT}, 7
            s_add_u32 s{S_A}, s{S_A}, s{S_T0}
            """)

        def w1_at(p):
            a(f"s_bfe_u32 s{S_T0}, s{S_PERM}, {(4 << 16) | (4 * p):#x}\ns_mul_i32 s{S_T0}, s{S_T0}, {128*3072}")
            a(f"s_add_u32 m0, s{S_B}, {p*16384}\ns_add_u32 s{S_T0}, s{S_T0}, s{S_A}")
            for i in range(4):
                a(f"buffer_load_dwordx4 v{VPF+i}, s[{R_W}:{R_W+3}], s{S_T0} offen offset:{i*1024} lds")
        early = [3, 4, 5, 6, 7][:self.o.get("early", 0)]

        def wq_touch():
            self.srd(R_M, P_WQKV, 640 * 3840)
            a(f"""
            v_lshlrev_b32 v6, 7, v1
            s_mul_i32 s{S_T0+1}, s{S_T0+1}, 2880
            s_add_u32 s{S_T0+1}, s{S_T0+1}, {256*3840}
            s_mov_b64 exec, 0xffffff
            buffer_load_dword v253, v6, s[{R_M}:{R_M+3}], s{S_T0+1} offen
            s_mov_b64 exec, -1
            """)

        self.srd(R_W, P_W1, 2048 * 3072)
        common_setup()
        a("v_mov_b32 v124, 0\nv_mov_b32 v125, 0\nv_mov_b32 v126, 0x3f803f80\ns_waitcnt vmcnt(4)")
        self.stamp(11, 44)
        if early:
            a(f"s_cmp_lt_u32 s{S_WAVE}, 4\ns_cbranch_scc1 L_B_noearly")
            for p in early:
                w1_at(p)
            a("L_B_noearly:")
        for c in range(20):
            a(f"v_dot2c_f32_bf16 v124, v{XR+c}, v126\nv_lshlrev_b32 v{XS+2*c}, 16, v{XR+c}")
            a(f"v_dot2c_f32_bf16 v125, v{XR+c}, v{GR+c}\nv_and_b32 v{XS+2*c+1}, 0xffff0000, v{XR+c}")
        a("s_nop 1")

        def reduce16(regs):
            for mode in ("quad_perm:[1,0,3,2]", "quad_perm:[2,3,0,1]", "row_half_mirror", "row_mirror"):
                for r in regs:
                    a(f"v_add_f32_dpp v{r}, v{r}, v{r} {mode} row_mask:0xf bank_mask:0xf")
                a("s_nop 1" if len(regs) == 1 else "s_nop 0")

        reduce16([124, 125])
        a(f"""
        v_mul_f32 v126, {f2u(-1.0/640):#x}, v124
        v_mul_f32 v127, {f2u(-1.0/640):#x}, v124
        v_mul_f32 v125, {f2u(-1.4426950408889634):#x}, v125
        v_mov_b32 v128, 0
        v_mov_b32 v129, 0
        v_mov_b32 v130, 0
        v_mov_b32 v131, 0
        v_mov_b32 v132, 0
        v_mov_b32 v133, 0
        v_mov_b32 v134, 0
        v_mov_b32 v135, 0
        v_exp_f32 v125, v125
        """)
        for c in range(20):
            a(f"v_pk_add_f32 {vr(XS+2*c,2)}, {vr(XS+2*c,2)}, v[126:127]")
        a("v_add_f32 v125, 1.0, v125\nv_rcp_f32 v125, v125")
        for c in range(20):
            t = 128 + 2 * (c & 3)
            a(f"v_pk_fma_f32 {vr(t,2)}, {vr(XS+2*c,2)}, {vr(XS+2*c,2)}, {vr(t,2)}")
        a("v_pk_add_f32 v[128:129], v[128:129], v[130:131]\nv_pk_add_f32 v[132:133], v[132:133], v[134:135]\nv_pk_add_f32 v[128:129], v[128:129], v[132:133]\nv_add_f32 v128, v128, v129\ns_nop 1")
        reduce16([128])
        a(f"v_mov_b32 v126, {f2u(1e-5):#x}\nv_fmac_f32 v126, {f2u(1.0/640):#x}, v128\nv_rsq_f32 v126, v126")
        a(f"""
        s_lshl_b32 s{S_T0}, s{S_WAVE}, 2
        v_add_u32 v2, s{S_T0}, v2
        v_mov_b32 v127, v126
        v_mul_u32_u24 v4, {LN_ST}, v2
        v_add_u32 v4, v4, v3
        v_lshlrev_b32 v2, 2, v2
        """)
        for c4 in range(5):
            for c in range(4 * c4, 4 * c4 + 4):
                a(f"v_pk_mul_f32 {vr(XS+2*c,2)}, {vr(XS+2*c,2)}, v[126:127]")
            for c in range(4 * c4, 4 * c4 + 4):
                a(f"v_cvt_pk_bf16_f32 v{XR+c}, v{XS+2*c}, v{XS+2*c+1}")
            a(f"ds_write_b128 v4, {vr(XR+4*c4,4)} offset:{LNBUF + c4*256}")
        a(f"ds_write_b32 v2, v125 offset:{LNG}")
        a(f"""
        v_and_b32 v12, 15, v1
        v_lshrrev_b32 v13, 4, v1
        v_lshrrev_b32 v15, 2, v12
        v_lshl_add_u32 v15, v13, 2, v15
        v_mul_u32_u24 v15, {LN_ST}, v15
        v_and_b32 v2, 3, v12
        v_lshl_add_u32 v15, v2, 3, v15
        s_mul_i32 s{S_T0}, s{S_WAVE}, 160
        v_add_u32 v15, s{S_T0}, v15
        v_lshlrev_b32 v14, 4, v1
        v_lshlrev_b32 v2, 2, v1
        s_mul_i32 s{S_T0}, s{S_WAVE}, {5*65536}
        s_lshl_b32 s{S_T0+1}, s{S_KST}, 10
        s_add_u32 s{S_T0}, s{S_T0}, s{S_T0+1}
        s_add_u32 s{S_T0}, s{S_T0}, {HT}
        s_waitcnt lgkmcnt(0)
        s_add_u32 s{S_TAG}, s{S_TAG}, {TAG_INC:#x}
        s_barrier
        """)
        self.stamp(12, 44)
        for i in range(5):
            a(f"ds_read_b64_tr_b16 {vr(44+4*i,2)}, v15 offset:{LNBUF + i*32}")
            a(f"ds_read_b64_tr_b16 {vr(46+4*i,2)}, v15 offset:{LNBUF + i*32+16*LN_ST}")
        a(f"ds_read_b32 v125, v2 offset:{LNG}")
        for i in range(5):
            a(f"s_waitcnt lgkmcnt({9-2*i})")
            a(f"buffer_store_dwordx4 {vr(44+4*i,4)}, v14, s[{R_WS}:{R_WS+3}], s{S_T0} offen sc1")
            if i < 4:
                a(f"s_add_u32 s{S_T0}, s{S_T0}, 65536")
        a(f"""
        s_cmp_lg_u32 s{S_WAVE}, 0
        s_cbranch_scc1 L_B_nog
        s_lshl_b32 s{S_T0}, s{S_KST}, 7
        s_add_u32 s{S_T0}, s{S_T0}, {G_OFF}
        s_waitcnt lgkmcnt(0)
        s_mov_b32 exec_hi, 0
        buffer_store_dword v125, v2, s[{R_WS}:{R_WS+3}], s{S_T0} offen sc1
        s_mov_b32 exec_hi, -1
        L_B_nog:
        s_waitcnt vmcnt(0) lgkmcnt(0)
        s_barrier
        s_cmp_lg_u32 s{S_WAVE}, 0
        s_cbranch_scc1 L_B_nofl
        s_mul_i32 s{S_T0}, s{S_KST}, {FS}
        s_add_u32 s{S_T0}, s{S_T0}, {F_LN}
        """)
        self.flag_store(S_T0, 12)
        self.stamp(1, 12)
        a("L_B_nofl:")
        if self.o.get("woLN"):
            self.srd(R_M, P_WO, 640 * 1280)
            a(f"""
            s_lshl_b32 s{S_T0+1}, s{S_KST}, 3
            s_add_u32 s{S_T0+1}, s{S_T0+1}, s{S_WAVE}
            s_mul_i32 s{S_T0+1}, s{S_T0+1}, 1664
            v_lshlrev_b32 v6, 7, v1
            s_mov_b64 exec, 0x1fff
            buffer_load_dword v253, v6, s[{R_M}:{R_M+3}], s{S_T0+1} offen
            s_mov_b64 exec, -1
            """)
        if self.o.get("wq") == 1:
            a(f"s_lshl_b32 s{S_T0+1}, s{S_KST}, 3\ns_add_u32 s{S_T0+1}, s{S_T0+1}, s{S_WAVE}")
            wq_touch()
        if self.o.get("wq") == 3:
            a(f"""
            s_lshl_b32 s{S_T0}, s{S_J}, 3
            s_add_u32 s{S_T0}, s{S_T0}, s{S_WAVE}
            s_add_u32 s{S_T0}, s{S_T0}, 128
            v_lshrrev_b32 v6, 3, v1
            v_and_b32 v7, 7, v1
            v_min_u32 v7, 5, v7
            v_mul_u32_u24 v6, 3072, v6
            v_lshl_add_u32 v7, v7, 7, v6
            s_mul_i32 s{S_T0}, s{S_T0}, {8*3072}
            s_mul_i32 s{S_T0+2}, s{S_XCD}, 768
            s_add_u32 s{S_T0}, s{S_T0}, s{S_T0+2}
            buffer_load_dword v253, v7, s[{R_W}:{R_W+3}], s{S_T0} offen {self.nt('ntw1')}
            """)
        a("s_branch L_B_join")
        a("L_B_pfrole:")
        self.srd(R_W, P_W1, 2048 * 3072)
        if self.o.get("pfdelay"):
            common_setup()
            a("s_waitcnt vmcnt(0)")
        wq = self.o.get("wq", 0)
        xh = self.o.get("xhelp", 0)
        if xh:
            self.srd(R_M, P_GATE, 1280)
            a(f"""
            s_cmp_ge_u32 s{S_WAVE}, {xh}
            s_cbranch_scc1 L_B_noxh
            s_lshl_b32 s{S_T0}, s{S_XCD}, 4
            s_add_u32 s{S_T0}, s{S_T0}, s{S_J}
            s_sub_u32 s{S_T0}, s{S_T0}, 16
            s_mul_i32 s{S_T0}, s{S_T0}, {32*1280}
            s_lshl_b32 s{S_T0+1}, s{S_WAVE}, 8
            s_sub_u32 s{S_T0}, s{S_T0}, s{S_T0+1}
            s_add_u32 s{S_T0}, s{S_T0}, 1024
            v_lshrrev_b32 v6, 1, v1
            v_and_b32 v7, 1, v1
            v_mul_u32_u24 v6, 1280, v6
            v_lshl_add_u32 v6, v7, 7, v6
            buffer_load_dword v253, v6, s[{R_X}:{R_X+3}], s{S_T0} offen
            v_lshlrev_b32 v6, 7, v1
            L_B_noxh:
            s_cmp_lg_u32 s{S_WAVE}, 7
            s_cbranch_scc1 L_B_noxg
            v_lshlrev_b32 v6, 7, v1
            buffer_load_dword v253, v6, s[{R_M}:{R_M+3}], 0 offen
            L_B_noxg:
            """)
        a(f"""
        s_sub_u32 s{S_T0}, s{S_J}, 16
        s_lshl_b32 s{S_T0}, s{S_T0}, 3
        s_add_u32 s{S_T0}, s{S_T0}, s{S_WAVE}
        s_lshl_b32 s{S_T0+1}, s{S_XCD}, 7
        s_add_u32 s{S_T0+1}, s{S_T0+1}, s{S_T0}
        v_lshrrev_b32 v6, 3, v1
        v_and_b32 v7, 7, v1
        v_min_u32 v7, 5, v7
        v_mul_u32_u24 v6, 3072, v6
        v_lshl_add_u32 v7, v7, 7, v6
        s_mul_i32 s{S_T0}, s{S_T0}, {8*3072}
        s_mul_i32 s{S_T0+2}, s{S_XCD}, 768
        s_add_u32 s{S_T0}, s{S_T0}, s{S_T0+2}
        buffer_load_dword v253, v7, s[{R_W}:{R_W+3}], s{S_T0} offen {self.nt('ntw1')}
        """)
        if wq in (0, 3):
            wq_touch()
        if wq != 3:
            a(f"""
            s_add_u32 s{S_T0}, s{S_T0}, {1024*3072}
            buffer_load_dword v253, v7, s[{R_W}:{R_W+3}], s{S_T0} offen {self.nt('ntw1b')}
            """)
        if self.o.get("promote"):
            k_ = 1 if wq != 3 else 0
            a(f"""
            s_sub_u32 s{S_T0+1}, s{S_T0}, {1024*3072*k_}
            s_waitcnt vmcnt({k_ + (1 if wq in (0, 3) else 0)})
            buffer_load_dword v253, v7, s[{R_W}:{R_W+3}], s{S_T0+1} offen
            """)
            if self.o.get("ntw1b"):
                a(f"s_waitcnt vmcnt(1)\nbuffer_load_dword v253, v7, s[{R_W}:{R_W+3}], s{S_T0} offen")
        if not self.o.get("pfdelay"):
            common_setup()
        self.stamp(15, 12)
        a(f"s_waitcnt lgkmcnt(0)\ns_add_u32 s{S_TAG}, s{S_TAG}, {TAG_INC:#x}")
        a(f"s_cmp_ge_u32 s{S_J}, 30\ns_cbranch_scc1 L_helper")
        N1 = self.o.get("n1", 8)
        NREG = self.o.get("nreg", 0)
        assert NREG == 0 or N1 == 8

        def w1_issue():
            t = self.perm_next(S_T0, S_PERM, 128 * 3072)
            t += f"s_mov_b32 m0, s{S_B}\ns_add_u32 s{S_T0}, s{S_T0}, s{S_A}\n"
            for i in range(4):
                t += f"buffer_load_dwordx4 v{VPF+i}, s[{R_W}:{R_W+3}], s{S_T0} offen offset:{i*1024} lds\n"
            t += f"s_add_u32 s{S_B}, s{S_B}, 16384\n"
            return t
        assert N1 == 8 and NREG == 0
        a(f"L_B_join:\ns_cmp_lt_u32 s{S_WAVE}, 4\ns_cbranch_scc1 L_B_comp0")
        for p in range(8):
            if early and p == early[0]:
                a(f"s_cmp_lt_u32 s{S_J}, 16\ns_cbranch_scc1 L_B_skipearly")
            w1_at(p)
            if early and p == early[-1]:
                a("L_B_skipearly:")
        a(f"s_mov_b32 s{S_PERM}, s{S_PERM+1}")
        a("s_branch L_B_aux\nL_B_comp0:")
        BF = 16
        GX = 131072
        split = self.o.get("gsplit")

        def gelu_setup(dblk_off):
            c = 0.7978845608028654
            k0 = -2.0 * c * 1.4426950408889634
            k1 = k0 * 0.044715
            a(f"""
            s_mov_b32 s{S_K0}, {f2u(k1):#x}
            s_mov_b32 s{S_K0+1}, {f2u(k1):#x}
            v_mov_b32 v44, {f2u(k0):#x}
            v_mov_b32 v45, {f2u(k0):#x}
            v_mov_b32 v46, 1.0
            v_mov_b32 v47, 1.0
            s_lshl_b32 s{S_K0+2}, s{S_DT}, 3
            s_lshl_b32 s{S_T0+1}, s{S_WAVE}, 1
            s_add_u32 s{S_K0+2}, s{S_K0+2}, s{S_T0+1}
            s_add_u32 s{S_K0+2}, s{S_K0+2}, {dblk_off & 0xffffffff:#x}
            s_mul_i32 s{S_K0+2}, s{S_K0+2}, {UW_ST}
            s_lshl_b32 s{S_T0+1}, s{S_FT}, 11
            s_add_u32 s{S_K0+2}, s{S_K0+2}, s{S_T0+1}
            s_add_u32 s{S_K0+2}, s{S_K0+2}, {UW}
            """)
            for b in range(4):
                a(f"v_lshlrev_b32 v{BF+4*b}, 16, v{B1R+2*b}\nv_and_b32 v{BF+4*b+1}, 0xffff0000, v{B1R+2*b}")
                a(f"v_lshlrev_b32 v{BF+4*b+2}, 16, v{B1R+2*b+1}\nv_and_b32 v{BF+4*b+3}, 0xffff0000, v{B1R+2*b+1}")

        def gelu_block(base, vl):
            for p in range(2):
                r = base + 8 * p
                T = 48
                for q in range(4):
                    a(f"v_pk_mul_f32 {vr(T+2*q,2)}, {vr(r+2*q,2)}, {vr(r+2*q,2)}")
                for q in range(4):
                    a(f"v_pk_fma_f32 {vr(T+2*q,2)}, {vr(T+2*q,2)}, s[{S_K0}:{S_K0+1}], v[44:45]")
                for q in range(4):
                    a(f"v_pk_mul_f32 {vr(T+2*q,2)}, {vr(T+2*q,2)}, {vr(r+2*q,2)}")
                for q in range(8):
                    a(f"v_exp_f32 v{T+q}, v{T+q}")
                for q in range(4):
                    a(f"v_pk_add_f32 {vr(T+2*q,2)}, {vr(T+2*q,2)}, v[46:47]")
                for q in range(8):
                    a(f"v_rcp_f32 v{T+q}, v{T+q}")
                for q in range(4):
                    a(f"v_pk_mul_f32 {vr(r+2*q,2)}, {vr(r+2*q,2)}, {vr(T+2*q,2)}")
                o = 56 + 4 * (p & 1)
                for q in range(4):
                    a(f"v_cvt_pk_bf16_f32 v{o+q}, v{r+2*q}, v{r+2*q+1}")
                a(f"buffer_store_dwordx4 {vr(o,4)}, v{vl}, s[{R_WS}:{R_WS+3}], s{S_K0+2} offen offset:{p*1024} sc1")

        PF, WF, ACC, VT, VL = 64, 128, 160, 8, 12
        a(f"""
        s_lshl_b32 s{S_T0}, s{S_DT}, 3
        s_lshl_b32 s{S_T0+1}, s{S_WAVE}, 1
        s_add_u32 s{S_D}, s{S_T0}, s{S_T0+1}
        s_lshl_b32 s{S_T0}, s{S_D}, 16
        s_add_u32 s{S_T0}, s{S_T0}, {HT}
        """)
        self.srd(R_P, P_WS, 65536, off_s=S_T0)
        a(f"s_add_u32 s{S_T0}, s{S_T0}, 65536")
        self.srd(R_M, P_WS, 65536, off_s=S_T0)
        a(f"v_lshlrev_b32 v{VL}, 4, v1\ns_mov_b32 s{S_B}, 0")
        a(self.perm_next(S_C, S_PERM, 4096))
        self.tr_addr(VT)
        a("s_waitcnt vmcnt(0)")
        gelu_setup(0)
        for r in range(32):
            a(f"v_mov_b32 v{ACC+r}, v{BF + (r & 15)}")
        a(f"s_lshl_b32 s{S_T0}, s{S_WAVE}, 12\ns_add_u32 s{S_T0}, s{S_T0}, {GX}\nv_add_u32 v13, s{S_T0}, v{VL}")
        a(f"s_cmp_lg_u32 s{S_WAVE}, 0\ns_cbranch_scc1 L_B_l3")
        prog = self.o.get("prog", 0)
        if prog:
            assert prog >= 4 * (4 + self.o.get("rotB", 0))
            a(f"v_min_u32 v2, {prog-1}, v1\nv_mul_u32_u24 v2, {FS}, v2\nv_add_u32 v2, {F_LN}, v2")
        else:
            a(f"v_mul_u32_u24 v2, {FS}, v1\nv_add_u32 v2, {F_LN}, v2")
        if not self.o.get("x_nopoll"):
            self.poll([2], 4)
        self.stamp(2, 4)
        a("L_B_l3:\ns_barrier")
        RP = (R_P, R_M)

        def pload(u, ks):
            if self.o.get("x_noload"):
                return "s_nop 0"
            sc = "" if self.o.get("x_nosc1") else "sc1"
            so = "0" if self.o.get("x_same") else f"s{S_C}"
            return "\n".join(f"buffer_load_dwordx4 {vr(PF+32*(u%2)+8*ks+4*d,4)}, v{VL}, s[{RP[d]}:{RP[d]+3}], {so} offen offset:{ks*1024} {sc}" for d in range(2))

        for t in range(2):
            for ks in range(4):
                a(pload(t, ks))
            a(self.perm_next(S_C, S_PERM, 4096))
            if t == 0:
                first_bar_here = len(a.L)

        def mk(u, bar, virtual=False, head=None, tail=None):
            uses = []
            for ks in range(4):
                for b in range(4):
                    g = ks * 4 + b
                    wb = WF + 4 * (g % 8)
                    off = u * 16384 + ks * 4096
                    reads = [(f"w{g}a", f"ds_read_b64_tr_b16 {vr(wb,2)}, v{VT+b} offset:{off}"),
                             (f"w{g}b", f"ds_read_b64_tr_b16 {vr(wb+2,2)}, v{VT+b} offset:{off+2048}")]
                    mf = []
                    for dd in range(2):
                        acc = vr(ACC + 16 * dd + 4 * b, 4)
                        mf.append(f"v_mfma_f32_16x16x32_bf16 {acc}, {vr(wb,4)}, {vr(PF+32*(u%2)+8*ks+4*dd,4)}, {acc}")
                    if self.o.get("x32"):
                        acc = vr(ACC + 16 * (b & 1), 16)
                        mf = [f"v_mfma_f32_32x32x16_bf16 {acc}, {vr(wb,4)}, {vr(PF+32*(u%2)+8*ks+4*(b>>1),4)}, {acc}"]
                    d = dict(reads=reads, need=[f"w{g}b"], mf=mf)
                    if b == 0:
                        d["vm"] = 14
                    if b == 3:
                        d["after"] = pload(u, ks)
                        if ks == 3:
                            d["after"] += "\n" + self.perm_next(S_C, S_PERM, 4096)
                            if u >= 1:
                                d["after"] += f"s_cmp_ge_u32 s{S_B}, 3\ns_cselect_b32 s{S_C}, 0x10000, s{S_C}"
                    uses.append(d)
            return dict(uses=uses, bar=bar, virtual=virtual, head=head, tail=tail)

        xo = "s_barrier\n" + "\n".join(f"v_xor_b32 v{VT+b}, 0x10000, v{VT+b}" for b in range(4))
        tail = f"s_add_u32 s{S_B}, s{S_B}, 1\ns_cmp_lt_u32 s{S_B}, 4\ns_cbranch_scc1 L_B_loop"
        st = [mk(0, "", head="L_B_loop:"), mk(1, "s_barrier"), mk(2, "s_barrier"), mk(3, "s_barrier", tail=tail), mk(0, xo, virtual=True)]
        a.L.insert(first_bar_here, "    s_barrier")
        nd = self.o.get("nodrain")
        LB = self.o.get("LB", 7)
        self.pipeline(st, LB, (16 - LB) if nd else 13, drain=not nd, wait_every=self.o.get('we', 2))
        if nd and not self.o.get("noEnd"):
            a("s_waitcnt lgkmcnt(0)\ns_barrier")
        self.stamp(3, 44)
        if split:
            a("s_nop 5")
            for i in range(4):
                a(f"ds_write_b128 v13, {vr(ACC+16+4*i,4)} offset:{i*1024}")
            a("s_waitcnt lgkmcnt(0)\ns_barrier")
            gelu_block(ACC, VL)
        else:
            a("s_waitcnt lgkmcnt(0)\ns_nop 4")
            gelu_block(ACC, VL)
            a(f"s_add_u32 s{S_K0+2}, s{S_K0+2}, {UW_ST}")
            gelu_block(ACC + 16, VL)
        self.stamp(10, 44)
        a("s_waitcnt vmcnt(0)\ns_barrier\ns_branch L_F_comp")

        a("L_B_aux:\ns_barrier")
        if split:
            assert NREG == 0
        assert NREG == 0
        ops = [(iv, 4) for iv in range(N1)]
        todo = [(iv, i) for iv in range(N1, 16) for i in range(4)]
        quota = self.o.get("quota", 12) / 3.0
        credit = 0.0
        eB = self.o.get("eB", 17)
        nB1 = self.o.get("nB1", 0)
        per = self.o.get("perB", 2)
        done_w2 = 0
        for tb in range(17):
            if tb < 16 and tb <= eB:
                assert all(iv != tb for iv, _ in todo), (tb, todo)
                last = max(i for i, (iv, _) in enumerate(ops) if iv == tb)
                n = sum(c for _, c in ops[last + 1:])
                if tb < 8:
                    n -= 4 * len(early)
                a(f"s_waitcnt vmcnt({max(0, min(n, 63)) if tb < eB else 0})")
            a("s_barrier")
            if tb < 16:
                self.stamp(16 + tb, 44)
            if tb == 0 and self.o.get("prog"):
                a(f"s_cmp_lg_u32 s{S_WAVE}, 7\ns_cbranch_scc1 L_B_nop1\nv_mul_u32_u24 v2, {FS}, v1\nv_add_u32 v2, {F_LN}, v2")
                a(f"buffer_load_dword v3, v2, s[{R_WS}:{R_WS+3}], 0 offen sc1\nL_B_nop1:")
            if tb == 1 and self.o.get("prog"):
                a(f"s_cmp_lg_u32 s{S_WAVE}, 7\ns_cbranch_scc1 L_B_nop2")
                a(f"s_waitcnt vmcnt(0)\nv_cmp_ne_u32 vcc, s{S_TAG}, v3\ns_nop 1\ns_cmp_eq_u64 vcc, 0\ns_cbranch_scc1 L_B_nop2")
                self.poll([2], 4)
                a("L_B_nop2:")
            if tb == self.o.get("ctB", 10):
                self.code_touch([("L_F_comp", 0), ("L_F_comp", 1)])
            if tb == 11 and split:
                gelu_setup(-7)
                a(f"v_lshlrev_b32 v12, 4, v1\ns_lshl_b32 s{S_T0}, s{S_WAVE}, 12\ns_add_u32 s{S_T0}, s{S_T0}, {GX - 4*4096}\nv_add_u32 v13, s{S_T0}, v12")
            if tb == eB:
                assert not todo
                self.w2_setup()
            if tb >= eB and done_w2 < nB1:
                k2 = min(per if tb < 16 else 8, nB1 - done_w2, tb - 9 - done_w2)
                sk = self.if_wave56()
                self.w2_prefill(k2)
                a(f"{sk}:")
                done_w2 += k2
            if todo and (todo[0][0] < 8 or tb >= 2):
                credit += 8 if todo[0][0] < 8 else quota
            setm0 = False
            while todo and credit >= 0.999 and (todo[0][0] < 8 or todo[0][0] <= tb + 6):
                iv, i = todo.pop(0)
                if i == 0:
                    if iv == 8:
                        a(f"s_and_b32 s{S_B}, s{S_B}, 0x1ffff")
                    a(self.perm_next(S_C, S_PERM, 128 * 3072) + f"s_add_u32 s{S_C}, s{S_C}, s{S_A}")
                if i == 0 or not setm0:
                    a(f"s_mov_b32 m0, s{S_B}\ns_nop 0")
                    setm0 = True
                a(f"buffer_load_dwordx4 v{VPF+i}, s[{R_W}:{R_W+3}], s{S_C} offen offset:{i*1024} lds")
                if i == 3:
                    a(f"s_add_u32 s{S_B}, s{S_B}, 16384")
                ops.append((iv, 1))
                credit -= 1
            if todo and todo[0][0] >= 8:
                credit = min(credit, quota)
        nxt = 16
        assert nxt == 16
        if self.o.get("noEnd"):
            assert done_w2 == nB1
        elif self.o.get("nodrain"):
            a("s_barrier")
        if eB == 17:
            self.w2_setup()
        if split:
            a("s_barrier")
            for i in range(4):
                a(f"ds_read_b128 {vr(64+4*i,4)}, v13 offset:{i*1024}")
            a("s_waitcnt lgkmcnt(0)")
            gelu_block(64, 12)
            a("s_waitcnt vmcnt(0)")
        skip = self.if_wave56()
        self.w2_prefill(nB1 - done_w2)
        a("s_barrier\ns_nop 7\ns_nop 7")
        self.w2_prefill(8 - nB1)
        a("s_branch L_F_loader")
        a(f"{skip}:\ns_barrier")
        a(f"s_cmp_lg_u32 s{S_WAVE}, 7\ns_cbranch_scc1 L_F_u4")
        a(f"s_mul_i32 s{S_T0}, s{S_DT}, 24\ns_add_u32 s{S_T0}, s{S_T0}, s{S_FT}\ns_mul_i32 s{S_T0}, s{S_T0}, {FS}\ns_add_u32 s{S_T0}, s{S_T0}, {F_U}")
        self.flag_store(S_T0, 12)
        self.stamp(4, 12)
        a("s_branch L_F_poller")

    def w2_l2_prefetch(self, VT):
        a = self.a
        self.srd(R_W2, P_W2, 1536 * 4096)
        a(f"""
        v_lshrrev_b32 v{VT}, 3, v1
        v_and_b32 v{VT+1}, 7, v1
        v_lshlrev_b32 v{VT+1}, 7, v{VT+1}
        v_lshl_add_u32 v{VT}, v{VT}, 12, v{VT+1}
        s_mul_i32 s{S_T0}, s{S_J}, 48
        s_and_b32 s{S_T0+1}, s{S_WAVE}, 3
        s_mul_i32 s{S_T0+1}, s{S_T0+1}, 12
        s_add_u32 s{S_T0}, s{S_T0}, s{S_T0+1}
        s_lshl_b32 s{S_T0}, s{S_T0}, 12
        s_lshr_b32 s{S_T0+1}, s{S_XCD}, 1
        s_lshl_b32 s{S_T0+1}, s{S_T0+1}, 10
        s_add_u32 s{S_T0}, s{S_T0}, s{S_T0+1}
        buffer_load_dword v{VT+2}, v{VT}, s[{R_W2}:{R_W2+3}], s{S_T0} offen
        s_add_u32 s{S_T0}, s{S_T0}, {8*4096}
        s_mov_b32 exec_hi, 0
        buffer_load_dword v{VT+3}, v{VT}, s[{R_W2}:{R_W2+3}], s{S_T0} offen
        s_mov_b64 exec, -1
        """)

    def tr_addr(self, VT):
        a = self.a
        a(f"""
        v_and_b32 v{VT+1}, 15, v1
        v_lshrrev_b32 v{VT+2}, 4, v1
        v_lshrrev_b32 v{VT+3}, 2, v{VT+1}
        v_lshl_add_u32 v{VT+3}, v{VT+2}, 2, v{VT+3}
        v_bfe_u32 v{VT+2}, v{VT+3}, 1, 2
        v_lshlrev_b32 v{VT+3}, 7, v{VT+3}
        v_lshl_add_u32 v{VT+3}, v{VT+2}, 5, v{VT+3}
        v_and_b32 v{VT+1}, 3, v{VT+1}
        v_lshl_add_u32 v{VT}, v{VT+1}, 3, v{VT+3}
        v_xor_b32 v{VT+1}, 32, v{VT}
        v_xor_b32 v{VT+2}, 64, v{VT}
        v_xor_b32 v{VT+3}, 96, v{VT}
        """)

    def helper(self):
        a = self.a
        a("L_helper:")
        a(f"""
        s_lshl_b32 s{S_D}, s{S_XCD}, 1
        s_add_u32 s{S_D}, s{S_D}, s{S_J}
        s_sub_u32 s{S_D}, s{S_D}, 30
        """)
        self.srd(R_W, P_WO, 640 * 1280)
        for p in range(5):
            a(f"""
            v_add_u32 v12, {p*64}, v1
            v_mul_u32_u24 v13, 205, v12
            v_lshrrev_b32 v13, 11, v13
            v_mul_u32_u24 v14, 10, v13
            v_sub_u32 v14, v12, v14
            v_lshlrev_b32 v14, 4, v14
            v_mul_u32_u24 v13, 1280, v13
            v_add_u32 v{16+p}, v13, v14
            """)
            if p in (1, 2, 3):
                a(f"v_subrev_u32 v{16+p}, {p*1024}, v{16+p}")
        a(f"""
        s_mov_b32 s{S_C}, s{S_WAVE}
        L_H_ld:
        s_mul_i32 s{S_A}, s{S_C}, {32*1280}
        s_mul_i32 s{S_T0}, s{S_D}, 160
        s_add_u32 s{S_A}, s{S_A}, s{S_T0}
        s_mul_i32 s{S_B}, s{S_C}, 5120
        s_mov_b32 m0, s{S_B}
        s_nop 0
        """)
        for p in range(4):
            a(f"buffer_load_dwordx4 v{16+p}, s[{R_W}:{R_W+3}], s{S_A} offen offset:{p*1024} lds")
        a(f"s_add_u32 m0, s{S_B}, 4096\ns_nop 0\nbuffer_load_dwordx4 v20, s[{R_W}:{R_W+3}], s{S_A} offen lds")
        a(f"""
        s_add_u32 s{S_C}, s{S_C}, 8
        s_cmp_lt_u32 s{S_C}, 20
        s_cbranch_scc1 L_H_ld
        v_and_b32 v12, 15, v1
        v_lshrrev_b32 v13, 4, v1
        v_lshrrev_b32 v14, 2, v12
        v_lshl_add_u32 v14, v13, 2, v14
        v_mul_u32_u24 v14, 160, v14
        v_and_b32 v12, 3, v12
        v_lshl_add_u32 v14, v12, 3, v14
        v_lshlrev_b32 v15, 4, v1
        s_waitcnt vmcnt(0)
        s_barrier
        s_mov_b32 s{S_C}, s{S_WAVE}
        L_H_tr:
        s_lshr_b32 s{S_T0}, s{S_C}, 1
        s_mul_i32 s{S_T0}, s{S_T0}, 5
        s_and_b32 s{S_T0+1}, s{S_C}, 1
        s_lshl_b32 s{S_T0+1}, s{S_T0+1}, 1
        s_add_u32 s{S_T0}, s{S_T0}, s{S_T0+1}
        s_add_u32 s{S_T0+1}, s{S_T0}, 1
        s_mul_i32 s{S_T0+2}, s{S_C}, 10
        s_sub_u32 s{S_T0+2}, s{S_T0+2}, 156
        s_add_u32 s{S_T0+3}, s{S_T0+2}, 5
        s_cmp_lt_u32 s{S_C}, 16
        s_cselect_b32 s{S_T0}, s{S_T0}, s{S_T0+2}
        s_cselect_b32 s{S_T0+1}, s{S_T0+1}, s{S_T0+3}
        s_mul_i32 s{S_T0}, s{S_T0}, 2560
        s_mul_i32 s{S_T0+1}, s{S_T0+1}, 2560
        v_add_u32 v12, s{S_T0}, v14
        v_add_u32 v13, s{S_T0+1}, v14
        """)
        for b in range(5):
            a(f"ds_read_b64_tr_b16 {vr(24+4*b,2)}, v12 offset:{b*32}\nds_read_b64_tr_b16 {vr(26+4*b,2)}, v13 offset:{b*32}")
        a(f"""
        s_mul_i32 s{S_T0}, s{S_D}, {5*UW_ST}
        s_lshl_b32 s{S_T0+1}, s{S_C}, 10
        s_add_u32 s{S_T0}, s{S_T0}, s{S_T0+1}
        s_add_u32 s{S_T0}, s{S_T0}, {UW + 49152}
        """)
        for b in range(5):
            a(f"s_waitcnt lgkmcnt({8-2*b})")
            a(f"buffer_store_dwordx4 {vr(24+4*b,4)}, v15, s[{R_WS}:{R_WS+3}], s{S_T0} offen sc1")
            if b < 4:
                a(f"s_add_u32 s{S_T0}, s{S_T0}, {UW_ST}")
        a(f"""
        s_add_u32 s{S_C}, s{S_C}, 8
        s_cmp_lt_u32 s{S_C}, 20
        s_cbranch_scc1 L_H_tr
        s_waitcnt vmcnt(0)
        s_barrier
        """)
        if self.o.get("hW2"):
            a(f"s_cmp_lg_u32 s{S_WAVE}, 7\ns_cbranch_scc1 L_H_nofl")
            a(f"s_mul_i32 s{S_T0}, s{S_D}, {FS}\ns_add_u32 s{S_T0}, s{S_T0}, {F_WOT}")
            self.flag_store(S_T0, 12)
            self.stamp(14, 12)
            a(f"""
            L_H_nofl:
            v_lshlrev_b32 v12, 7, v1
            s_lshl_b32 s{S_T0}, s{S_D}, 3
            s_add_u32 s{S_T0}, s{S_T0}, s{S_WAVE}
            s_lshl_b32 s{S_T0}, s{S_T0}, 13
            s_add_u32 s{S_T0}, s{S_T0}, {1024*4096}
            """)
            for k in range(4):
                a(f"buffer_load_dword v253, v12, s[{R_W2}:{R_W2+3}], s{S_T0} offen\ns_add_u32 s{S_T0}, s{S_T0}, {128*4096}")
        skip = self.if_wave56()
        self.w2_setup()
        self.w2_prefill(8)
        a(f"s_branch L_F_loader\n{skip}:")
        a(f"s_cmp_lt_u32 s{S_WAVE}, 4\ns_cbranch_scc1 L_F_comp\ns_cmp_lg_u32 s{S_WAVE}, 7\ns_cbranch_scc1 L_F_u4")
        if not self.o.get("hW2"):
            a(f"s_mul_i32 s{S_T0}, s{S_D}, {FS}\ns_add_u32 s{S_T0}, s{S_T0}, {F_WOT}")
            self.flag_store(S_T0, 12)
            self.stamp(14, 12)
        a("s_branch L_F_poller")

    F_WOT_REG = 172

    def uw_srd(self):
        a = self.a
        a(f"""
        s_mul_i32 s{S_T0}, s{S_DTILE}, 5
        s_add_u32 s{S_D}, s{S_T0}, s{S_WAVE}
        s_mul_i32 s{S_T0}, s{S_D}, {UW_ST}
        s_add_u32 s{S_T0}, s{S_T0}, {UW}
        """)
        self.srd(R_P, P_WS, UW_ST, off_s=S_T0)

    def wot_preload(self, VL):
        a = self.a
        for k in range(20):
            if k % 4 == 0:
                a(f"s_mov_b32 s{S_C}, {49152 + k*1024}")
            a(f"buffer_load_dwordx4 {vr(self.F_WOT_REG+4*k,4)}, v{VL}, s[{R_P}:{R_P+3}], s{S_C} offen offset:{(k%4)*1024} sc1")

    F_V = (4, 8, 12, 13, 47, 48, 52, 56, 168)
    F_SB = 72

    def f_setup(self):
        a = self.a
        VT, VT2, VL, VU4, VGA, VGH, VG8, GV, BV = self.F_V
        SB = self.F_SB
        self.srd(R_M, P_B2, 4096)
        self.srd(R_OUT, P_OUT, 2048 * 1280)
        self.tr_addr(VT2)
        a(f"""
        s_mul_i32 s{S_D}, s{S_DTILE}, 5
        s_add_u32 s{S_D}, s{S_D}, s{S_WAVE}
        v_mov_b32 v42, v{VT2}
        v_lshlrev_b32 v{VL}, 4, v1
        v_add_u32 v{VU4}, 0x20000, v{VL}
        v_and_b32 v{VGA}, 15, v1
        v_lshlrev_b32 v43, 1, v{VGA}
        v_lshlrev_b32 v{VGA}, 2, v{VGA}
        v_lshlrev_b32 v{VG8+3}, 3, v1
        """)
        for b in range(4):
            a(f"""
            s_add_u32 s{SB+b}, s{S_WAVE}, {b}
            s_and_b32 s{SB+b}, s{SB+b}, 3
            s_lshl_b32 s{S_T0}, s{SB+b}, 5
            v_xor_b32 v{VT+b}, s{S_T0}, v42
            s_lshl_b32 s{S_T0+1}, s{S_ST}, 7
            s_add_u32 s{S_T0}, s{S_T0}, s{S_T0+1}
            buffer_load_ushort v{BV+b}, v43, s[{R_M}:{R_M+3}], s{S_T0} offen
            v_add_u32 v{VT2+b}, 0x10000, v{VT+b}
            s_lshl_b32 s{S_T0}, s{SB+b}, 12
            v_add_u32 v{VG8+b}, s{S_T0}, v{VG8+3}
            s_add_u32 s{S_T0}, s{S_T0}, 0x10000
            v_add_u32 v{VGH+b}, s{S_T0}, v{VL}
            """)
        a(f"s_lshl_b32 s{S_A}, s{S_ST}, 8\ns_add_u32 s{S_A}, s{S_A}, {G_OFF}")
        self.f_perm()

    def f0_barrier(self):
        lab = self.a.label("f0")
        self.a(f"s_cmp_eq_u32 s{S_FROMA}, 1\ns_cbranch_scc1 {lab}\ns_barrier\n{lab}:")

    def final(self):
        a = self.a
        a("L_F_comp:")
        if self.stop == "phase1":
            a("s_branch L_end")
        PF, WF, ACC, ACC4, U4, WOT = 64, 112, 144, 160, 36, 172
        NPF = 3
        pre = True
        VT, VT2, VL, VU4, VGA, VGH, VG8, GV, BV = self.F_V
        SB = self.F_SB
        a(f"s_cmp_eq_u32 s{S_FROMA}, 1\ns_cbranch_scc1 L_F_nowot")
        self.uw_srd()
        self.f_setup()
        nstream = 12 if pre else 17

        def next_sc(step):
            if step < 12:
                return self.perm_next(S_C, S_PERM, 4096)
            return f"s_mov_b32 s{S_C}, {step*4096}\n"
        a("s_barrier")
        self.wot_preload(VL)
        a("L_F_nowot:")
        a(next_sc(0))
        a("s_barrier")
        S_C1, S_C2 = S_K0, S_K0 + 1

        def uload(t, ks, so):
            return f"buffer_load_dwordx4 {vr(PF+16*(t % NPF)+4*ks,4)}, v{VL}, s[{R_P}:{R_P+3}], s{so} offen offset:{ks*1024} sc1 ;@u{t}_{ks}"
        vis0 = []
        for ks in range(4):
            a(uload(0, ks, S_C))
            vis0.append(f"u0_{ks}")
        a(self.perm_next(S_C1, S_PERM, 4096) + self.perm_next(S_C2, S_PERM, 4096) + next_sc(3))
        a("s_barrier")

        ACC2 = 16
        blocks = [(ACC + 4 * b, b) for b in range(4)] + [(ACC4, 0)]
        fill = []
        for b in range(4):
            fill += [f"v_lshlrev_b32 v{BV+b}, 16, v{BV+b}", f"v_sub_f32 v{GV+b}, 1.0, v{GV+b}"]
        for r0, b in blocks:
            for k in range(4):
                fill.append(f"v_add_f32 v{r0+k}, v{BV+b}, v{r0+k}")

        stages = []
        for t in range(17):
            slot = t % 8
            hi = slot >= 4
            uses = []
            for ks in range(4):
                for b in range(4):
                    g = ks * 4 + b
                    wb = WF + 4 * (g % 8)
                    reads = []
                    u4 = U4 + 4 * (ks & 1)
                    if b == 0:
                        reads.append((f"u{ks}", f"ds_read_b128 {vr(u4,4)}, v{VU4} offset:{slot*4096 + ks*1024}"))
                    if t < 12:
                        off = (slot & 3) * 16384 + ks * 4096
                        va = (VT2 if hi else VT) + b
                        reads += [(f"w{g}a", f"ds_read_b64_tr_b16 {vr(wb,2)}, v{va} offset:{off}"),
                                  (f"w{g}b", f"ds_read_b64_tr_b16 {vr(wb+2,2)}, v{va} offset:{off+2048}")]
                    elif t < 16:
                        assert hi
                        off = (slot & 3) * 16384 + ks * 1024
                        reads += [(f"w{g}b", f"ds_read_b128 {vr(wb,4)}, v{VGH+b} offset:{off}")]
                    else:
                        off = (slot & 3) * 16384 + ks * 1024
                        assert not hi
                        reads += [(f"w{g}a", f"ds_read_b64 {vr(wb,2)}, v{VG8+b} offset:{off}"),
                                  (f"w{g}b", f"ds_read_b64 {vr(wb+2,2)}, v{VG8+b} offset:{off+512}")]
                    acc = vr((ACC if t < 12 else ACC2) + 4 * b, 4)
                    a4 = vr(ACC4 if t < 12 else ACC2 + 16, 4)
                    ring = t < nstream
                    pf = vr(PF + 16 * (t % NPF) + 4 * ks, 4) if ring else vr(WOT + 16 * (t - 12) + 4 * ks, 4)
                    first = t in (0, 12) and ks == 0
                    mf = [f"v_mfma_f32_16x16x32_bf16 {acc}, {pf}, {vr(wb,4)}, {0 if first else acc}"]
                    if b == 0:
                        mf.append(f"v_mfma_f32_16x16x32_bf16 {a4}, {vr(u4,4)}, {vr(wb,4)}, {0 if first else a4}")
                    d = dict(reads=reads, need=[f"w{g}b"], mf=mf)
                    if self.o.get("x_fewlds"):
                        if b == 0:
                            d["reads"] = reads[1:]
                        else:
                            d["reads"] = []
                            d["need"] = [f"w{g-b}b"]
                    if b == 0 and ring:
                        d["vneed"] = f"u{t}_{ks}"
                    if t == 0 and b in (0, 1):
                        d["after"] = uload(1 + b, ks, (S_C1, S_C2)[b])
                    if t == 1 and b == 1:
                        d["after"] = (f"s_lshl_b32 s{S_T0}, s{SB+ks}, 6\ns_add_u32 s{S_T0}, s{S_T0}, s{S_A}\n"
                                      f"buffer_load_dword v{GV+ks}, v{VGA}, s[{R_WS}:{R_WS+3}], s{S_T0} offen sc1 ;@g{ks}")
                    if b == 3 and t + NPF < nstream:
                        d["after"] = uload(t + NPF, ks, S_C)
                        if ks == 3 and t + NPF + 1 < nstream:
                            d["after"] += "\n" + next_sc(t + NPF + 1)
                    if self.o.get("wotl") and 3 <= t <= 7 and b == 1:
                        k = (t - 3) * 4 + ks
                        lab = a.label("nw")
                        d["before"] = (f"s_cmp_eq_u32 s{S_FROMA}, 1\ns_cbranch_scc0 {lab}\ns_mov_b32 s{S_T0}, {49152 + k*1024}\n"
                                       f"buffer_load_dwordx4 {vr(WOT+4*k,4)}, v{VL}, s[{R_P}:{R_P+3}], s{S_T0} offen sc1\n{lab}:")
                    if t >= 13 and fill and g < 15:
                        d["after"] = fill.pop(0)
                    uses.append(d)
            stages.append(dict(uses=uses, bar="s_barrier" if t else ""))
        nd = self.o.get("nodrain")
        LF = self.o.get("LF", 6)
        self.pipeline(stages, LF, (16 - LF) if nd else 13, drain=not nd, wait_every=self.o.get('we', 2), vis=vis0)
        self.stamp(8, 2)
        a(f"""
        v_and_b32 v2, 15, v1
        v_mul_u32_u24 v2, 1280, v2
        v_lshrrev_b32 v3, 4, v1
        v_lshl_add_u32 v2, v3, 3, v2
        s_mul_i32 s{S_A}, s{S_ST}, {64*1280}
        s_lshl_b32 s{S_T0+1}, s{S_D}, 5
        s_add_u32 s{S_B}, s{S_A}, s{S_T0+1}
        s_mul_i32 s{S_T0+1}, s{S_DTILE}, 160
        s_add_u32 s{S_A}, s{S_A}, s{S_T0+1}
        s_add_u32 s{S_A}, s{S_A}, 128
        """)
        assert not fill
        for i_, (r, b) in enumerate(blocks):
            for k in range(4):
                a(f"v_fma_f32 v{r+k}, v{r+k}, v{GV+b}, v{ACC2+4*i_+k}")
            a(f"s_mul_i32 s{S_T0}, s{SB+b}, {16*1280}\ns_add_u32 s{S_T0}, s{S_T0}, s{S_A if r == ACC4 else S_B}")
            a(f"v_cvt_pk_bf16_f32 v{r}, v{r}, v{r+1}\nv_cvt_pk_bf16_f32 v{r+1}, v{r+2}, v{r+3}")
            a(f"buffer_store_dwordx2 {vr(r,2)}, v2, s[{R_OUT}:{R_OUT+3}], s{S_T0} offen {['', 'sc1', 'nt', 'sc0 sc1'][self.o.get('osc', 0)]}")
        if self.stamps or self.o.get("dbg"):
            a("s_waitcnt vmcnt(0)")
            self.stamp(9, 2)
        if self.o.get("calib"):
            a(f"""
            L_cal:
            s_memrealtime s[96:97]
            s_waitcnt lgkmcnt(0)
            s_sub_u32 s96, s96, s98
            s_cmp_lt_u32 s96, {self.o.get("calib")*100}
            s_cbranch_scc1 L_cal
            """)
        a(f"s_or_b32 s{S_T0}, s2, s{S_WAVE}\ns_cmp_lg_u32 s{S_T0}, 0\ns_cbranch_scc1 L_end\ns_mov_b32 s{S_T0}, 0")
        self.flag_store(S_T0, 4)
        a("s_branch L_end")

        a("L_F_u4:")
        if self.stop == "phase1":
            a("s_branch L_end")
        a(f"""
        v_lshlrev_b32 v{VL}, 4, v1
        s_mul_i32 s{S_C}, s{S_DTILE}, {5*UW_ST}
        s_add_u32 s{S_C}, s{S_C}, {UW + 4*UW_ST}
        """)
        self.f_perm()
        self.f0_barrier()
        p4 = self.o.get("preW4")
        if p4:
            for k in range(20):
                if k % 4 == 0:
                    a(f"s_add_u32 s{S_T0}, s{S_C}, {49152 + k*1024}")
                a(f"buffer_load_dwordx4 {vr(64+4*k,4)}, v{VL}, s[{R_WS}:{R_WS+3}], s{S_T0} offen offset:{(k%4)*1024} sc1")
            a(f"v_add_u32 v{VU4}, 0x20000, v{VL}")
        a("s_barrier")

        def u4_issue(iv):
            if iv >= 12 and p4:
                for i in range(4):
                    a(f"ds_write_b128 v{VU4}, {vr(64+16*(iv-12)+4*i,4)} offset:{(iv % 8)*4096 + i*1024}")
                return
            if iv < 12:
                a(self.perm_next(S_T0, S_PERM, 4096) + f"s_mov_b32 m0, {0x20000 + (iv % 8)*4096:#x}\ns_add_u32 s{S_T0}, s{S_T0}, s{S_C}")
            else:
                a(f"s_mov_b32 m0, {0x20000 + (iv % 8)*4096:#x}\ns_add_u32 s{S_T0}, s{S_C}, {iv*4096}")
            for i in range(4):
                a(f"buffer_load_dwordx4 v{VL}, s[{R_WS}:{R_WS+3}], s{S_T0} offen offset:{i*1024} sc1 lds")
        order = []
        for iv in range(8):
            u4_issue(iv)
            order.append(iv)
            if iv == 1:
                a("s_waitcnt vmcnt(4)\ns_barrier")
        for tb in range(1, 17):
            if tb in order:
                a(f"s_waitcnt vmcnt({4*len(order[order.index(tb)+1:])})")
            a("s_waitcnt lgkmcnt(0)\ns_barrier" if p4 and tb >= 7 else "s_barrier")
            iv = tb + (6 if self.o.get("nodrain") else 7)
            if 8 <= iv <= 16:
                u4_issue(iv)
                if not (p4 and iv >= 12):
                    order.append(iv)
        a("s_branch L_end")

        a("L_F_loader:")
        if self.stop == "phase1":
            a("s_branch L_end")
        a(f"v_lshlrev_b32 v{VL}, 4, v1")
        self.f0_barrier()
        nWR = self.o.get("nWR", 0)
        V = self.V_W2
        if nWR:
            a(f"s_waitcnt vmcnt(30)\nv_add_u32 v{VU4}, s{S_B}, v{VL}")
            for k in range(nWR):
                a(self.perm_next(S_T0, S_PERM, 128 * 4096) + f"s_add_u32 s{S_T0}, s{S_T0}, s{S_A}")
                for g in range(2):
                    if g:
                        a(f"s_add_u32 s{S_T0}, s{S_T0}, {4*32768}")
                    for i in range(4):
                        a(f"buffer_load_dwordx4 {vr(64+32*k+16*g+4*i,4)}, v{V+i}, s[{R_W2}:{R_W2+3}], s{S_T0} offen offset:{i*1024}")
            a(f"s_add_u32 s{S_B}, s{S_B}, {nWR*16384}")
        a("s_barrier")
        a(f"""
        s_sub_u32 s{S_T0}, s{S_WAVE}, 5
        s_lshl_b32 s{S_T0}, s{S_T0}, 1
        s_lshl_b32 s{S_T0+1}, s{S_ST}, 2
        s_add_u32 s{S_T0+1}, s{S_T0+1}, s{S_T0}
        s_mul_i32 s{S_C}, s{S_T0+1}, {GO_ST}
        s_add_u32 s{S_C}, s{S_C}, {GO}
        s_lshl_b32 s{S_D}, s{S_T0}, 12
        """)
        assert nWR == 0
        ops = [(iv, 8) for iv in range(8)]
        for tb in range(17):
            last = max(i for i, (iv, _) in enumerate(ops) if iv == tb)
            n = sum(c for _, c in ops[last + 1:])
            a(f"s_waitcnt vmcnt({min(n,63)})\ns_barrier")
            if self.o.get("halfW"):
                if 2 <= tb <= 9:
                    self.w2_half((tb - 2) & 1)
                    ops.append((8 + (tb - 2) // 2, 4))
            elif 2 <= tb <= 5:
                self.w2_issue()
                ops.append((tb + 6, 8))
            if 9 <= tb <= 13:
                iv = tb + 3
                g = iv - 12
                for s2 in range(2):
                    a(f"s_add_u32 m0, s{S_D}, {(iv % 8)*16384 + s2*4096}\ns_add_u32 s{S_T0}, s{S_C}, {s2*GO_ST + g*4096}")
                    for i in range(4):
                        a(f"buffer_load_dwordx4 v{VL}, s[{R_WS}:{R_WS+3}], s{S_T0} offen offset:{i*1024} sc1 lds")
                ops.append((iv, 8))
        a("s_branch L_end")
        a("L_F_poller:")
        if self.stop == "phase1":
            a("s_branch L_end")
        a(f"s_cmp_eq_u32 s{S_FROMA}, 1\ns_cbranch_scc1 L_F_pnowot")
        a(f"s_mul_i32 s{S_T0}, s{S_DTILE}, {FS}\ns_add_u32 s{S_T0}, s{S_T0}, {F_WOT}\nv_mov_b32 v2, s{S_T0}")
        self.poll([2], 4)
        a("s_barrier\nL_F_pnowot:")
        a(f"""
        s_mul_i32 s{S_T0}, s{S_DTILE}, 5
        s_lshr_b32 s{S_T0+1}, s{S_T0}, 3
        s_add_u32 s{S_T0}, s{S_T0}, 4
        s_lshr_b32 s{S_T0}, s{S_T0}, 3
        s_mul_i32 s{S_T0}, s{S_T0}, 24
        s_mul_i32 s{S_T0+1}, s{S_T0+1}, 24
        v_and_b32 v2, 31, v1
        v_min_u32 v2, 23, v2
        v_add_u32 v3, s{S_T0}, v2
        v_add_u32 v2, s{S_T0+1}, v2
        v_cmp_gt_u32 vcc, 32, v1
        s_mul_i32 s{S_T0}, s{S_DTILE}, {FS}
        s_add_u32 s{S_T0}, s{S_T0}, {F_WOT}
        v_cndmask_b32 v2, v2, v3, vcc
        v_mul_u32_u24 v2, {FS}, v2
        v_add_u32 v2, {F_U}, v2
        v_mov_b32 v3, s{S_T0}
        v_cmp_eq_u32 vcc, 63, v1
        s_nop 1
        v_cndmask_b32 v2, v2, v3, vcc
        """)
        self.poll([2], 4)
        self.stamp(6, 4)
        a("s_barrier")
        a(f"""
        v_and_b32 v2, 7, v1
        s_lshr_b32 s{S_T0}, s{S_ST}, 1
        s_lshl_b32 s{S_T0}, s{S_T0}, 3
        v_add_u32 v2, s{S_T0}, v2
        v_mul_u32_u24 v2, {FS}, v2
        v_add_u32 v2, {F_GO}, v2
        """)
        gp = self.o.get("gopoll", 9)
        for tb in range(gp):
            a("s_barrier")
            if tb == 1:
                a(f"s_cmp_eq_u32 s{S_FROMA}, 1\ns_cbranch_scc0 L_F_nogo")
                a(f"s_lshl_b32 s{S_T0}, s{S_MT}, 3\ns_add_u32 s{S_T0}, s{S_T0}, s{S_HG}\ns_mul_i32 s{S_T0}, s{S_T0}, {FS}\ns_add_u32 s{S_T0}, s{S_T0}, {F_GO}")
                self.flag_store(S_T0, 6)
                a("L_F_nogo:")
            if tb == gp - 3:
                a(f"buffer_load_dword v8, v2, s[{R_WS}:{R_WS+3}], 0 offen sc1")
            self.stamp(32 + tb, 4)
        a(f"s_waitcnt vmcnt(0)\nv_cmp_ne_u32 vcc, s{S_TAG}, v8\ns_nop 1\ns_cmp_eq_u64 vcc, 0\ns_cbranch_scc1 L_F_gook")
        self.poll([2], 4)
        a("L_F_gook:")
        self.stamp(7, 4)
        for tb in range(gp, 17):
            a("s_barrier")
            self.stamp(32 + tb, 4)
        a("L_end:")
        if "probe" in self.o or "pc1" in self.o:
            a("""
            s_cmp_eq_u32 s94, 0
            s_cbranch_scc1 L_exit
            L_prb:
            s_memrealtime s[96:97]
            s_waitcnt lgkmcnt(0)
            s_sub_u32 s96, s96, s98
            s_cmp_lt_i32 s96, 4000
            s_cbranch_scc1 L_prb
            """)
        if self.stamps:
            a(f"""
            s_lshl_b32 s{S_T0}, s2, 3
            s_add_u32 s{S_T0}, s{S_T0}, s{S_WAVE}
            s_lshl_b32 s{S_T0}, s{S_T0}, 9
            s_add_u32 s{S_T0}, s{S_T0}, {STAMP}
            v_lshlrev_b32 v2, 3, v1
            buffer_store_dwordx2 v[254:255], v2, s[{R_WS}:{R_WS+3}], s{S_T0} offen
            """)
        a("L_exit:\ns_endpgm")

    def build(self, header):
        a = self.a
        self.prologue()
        self.role_a()
        self.role_b()
        self.helper()
        self.final()
        body = a.text()
        out = header
        out += """; One persistent launch, 256 workgroups (one per CU) x 8 waves (0-3 MFMA, 4-7 loaders / pollers).
"""
        out += f"; @launch grid=(256,1,1) block=(512,1,1) lds={LDS_BYTES}\n"
        out += f'.amdgcn_target "amdgcn-amd-amdhsa--gfx950"\n.text\n.globl {KNAME}\n.p2align 8\n.type {KNAME},@function\n{KNAME}:\n'
        out += body
        out += f""".section .rodata,"a"
.p2align 6
.amdhsa_kernel {KNAME}
  .amdhsa_next_free_vgpr 256
  .amdhsa_next_free_sgpr 102
  .amdhsa_accum_offset 256
  .amdhsa_group_segment_fixed_size 0
  .amdhsa_kernarg_size 96
  .amdhsa_user_sgpr_count 2
  .amdhsa_user_sgpr_kernarg_segment_ptr 1
  .amdhsa_system_sgpr_workgroup_id_x 1
  .amdhsa_float_denorm_mode_32 3
.end_amdhsa_kernel
"""
        return out


def header():
    ref = open("gated_mix__linear_attn_block__mixer_token_mlp__prompt.s.ref").read().split("\n")
    h = []
    for l in ref:
        if l.startswith("; Override"):
            break
        h.append(l)
    return "\n".join(h) + "\n"


if __name__ == "__main__":
    import argparse
    p = argparse.ArgumentParser()
    p.add_argument("-o", default="gated_mix__linear_attn_block__mixer_token_mlp__prompt.s")
    p.add_argument("--stamps", action="store_true")
    p.add_argument("--stop", default=None)
    p.add_argument("--opt", default="")
    args = p.parse_args()
    opts = {k: (int(v) if v != '' else 1) for k, _, v in (x.partition('=') for x in args.opt.split(',') if x)}
    g = Gen(stamps=args.stamps, stop=args.stop, opts=opts)
    open(args.o, "w").write(g.build(header()))
    print("wrote", args.o)
```

```python
import sys

KNAME = "gated_mix__linear_attn_block__mixer_token_mlp__prompt_kernel"

import os
FS = int(os.environ.get('FS', 128))
F_LN, F_KV, F_U, F_GO, F_WOT = 0x1000, 0x5000, 0x9000, 0xD000, 0x11000
G_OFF = 0x12000
STAMP = 0x900000
KVP = 0x20000
KVP_ST = 7168
HT = 0x100000
UW = 0x380000
UW_ST = 69632
GO = 0x640000
GO_ST = 20480
WS_USED = 0xA00000
TAG_INC = 0x9E3779B9
SPIN_LIMIT = 1 << 17

LDS_BYTES = 163840
LNBUF = 0
LN_ST = 1312
LNG = LNBUF + 32 * LN_ST
A_SLOT = 49152
A_WOFF = 16384
EXCH_ST = 14336
EXCH = LDS_BYTES - 4 * EXCH_ST
KVT = 147456
ZH = KVT + 11 * 1024

LOG2E = 0x3FB8AA3B


def f2u(x):
    import struct
    return struct.unpack("<I", struct.pack("<f", x))[0]


class Asm:
    def __init__(self):
        self.L = []
        self.nlab = 0

    def __call__(self, s):
        for line in s.split("\n"):
            line = line.strip()
            if line:
                self.L.append(("    " if not line.endswith(":") else "") + line)

    def label(self, base):
        self.nlab += 1
        return f"L{base}_{self.nlab}"

    def text(self):
        return "\n".join(self.L) + "\n"


def vr(a, n=1):
    return f"v{a}" if n == 1 else f"v[{a}:{a+n-1}]"


def sr(a, n=1):
    return f"s{a}" if n == 1 else f"s[{a}:{a+n-1}]"


P_X, P_WQKV, P_WO, P_BX, P_W1, P_B1, P_W2, P_B2 = 4, 6, 8, 10, 12, 14, 16, 18
P_GATE, P_OUT, P_DBG, P_WS = 20, 22, 24, 26
S_TAG, S_WAVE = 28, 29
S_XCD, S_J = 30, 31
R_WS, R_X, R_W, R_P, R_W2, R_M, R_OUT = 32, 36, 40, 44, 48, 52, 56
S_T0 = 60
S_MT, S_HG, S_DT, S_FT, S_KST, S_PAR = 70, 71, 72, 73, 74, 75
S_ST, S_DTILE = 76, 77
S_CNT = 78
S_A, S_B, S_C, S_D = 80, 81, 82, 83
S_MSK = 84
S_K0 = 90
S_STMP = 96
S_PERM = 66
S_M = 79
S_FROMA = 95
S_PERM2 = 68


def lead_perm(n, nshare, m, lead=2):
    order = list(range(n))
    i = m
    while i + lead < n:
        order[i:i + lead + 1] = [order[i + lead]] + order[i:i + lead]
        i += nshare
    return order


class Gen:
    def __init__(self, stamps=False, stop=None, opts=None):
        self.o = opts or {}
        self.a = Asm()
        self.stamps = stamps
        self.stop = stop

    def nt(self, key):
        return "nt" if self.o.get(key) else ""

    def srd(self, dst, ptr, nbytes, off_s=None):
        a = self.a
        if off_s is None:
            a(f"s_mov_b32 s{dst}, s{ptr}\ns_and_b32 s{dst+1}, s{ptr+1}, 0xffff")
        else:
            a(f"s_add_u32 s{dst}, s{ptr}, s{off_s}\ns_addc_u32 s{dst+1}, s{ptr+1}, 0\ns_and_b32 s{dst+1}, s{dst+1}, 0xffff")
        a(f"s_mov_b32 s{dst+2}, {nbytes:#x}\ns_mov_b32 s{dst+3}, 0x20000")

    def stamp(self, k, vtmp, dyn=None):
        if "pc1" in self.o:
            if dyn is None and k in (self.o["pc1"], self.o["pc2"]):
                lab = self.a.label("npr")
                self.a(f"s_cmp_lg_u32 s{S_FROMA}, {self.o.get('prole', 0)}\ns_cbranch_scc1 {lab}")
                if k == self.o["pc1"]:
                    self.a(f"s_memtime s[92:93]\ns_waitcnt lgkmcnt(0)")
                else:
                    self.a(f"s_memtime s[96:97]\ns_waitcnt lgkmcnt(0)\ns_sub_u32 s92, s96, s92\ns_lshr_b32 s92, s92, 4\ns_add_u32 s98, s98, s92\ns_mov_b32 s94, 1")
                self.a(f"{lab}:")
            return
        if "probe" in self.o:
            role = self.o.get("prole")
            if k == self.o["probe"] and dyn is None:
                lab = self.a.label("npr")
                if role is not None and k != 0:
                    self.a(f"s_cmp_lg_u32 s{S_FROMA}, {role}\ns_cbranch_scc1 {lab}")
                self.a(f"s_memrealtime s[98:99]\ns_mov_b32 s94, 1\ns_waitcnt lgkmcnt(0)\n{lab}:")
            return
        if self.o.get("dbg"):
            m = {0: 0, 11: 1, 1: 2, 2: 3, 3: 4, 4: 5, 6: 6, 9: 7}
            mA = {0: 0, 1: 1, 2: 2, 3: 3, 4: 4, 5: 5, 6: 6, 9: 7}
            if dyn is not None:
                return
            a = self.a
            for wg, mp, base in ((8, m, 0), (12, mA, 8)):
                if k in mp:
                    lab = a.label("nd")
                    a(f"s_cmp_lg_u32 s2, {wg}\ns_cbranch_scc1 {lab}")
                    a(f"s_memrealtime s[{S_STMP}:{S_STMP+1}]\ns_waitcnt lgkmcnt(0)")
                    a(f"v_mov_b32 v{vtmp}, s{S_STMP}\nv_mov_b32 v{vtmp+2}, {4*(base+mp[k])}")
                    a(f"s_mov_b64 exec, 1\nglobal_store_dword v{vtmp+2}, v{vtmp}, s[{P_DBG}:{P_DBG+1}]\ns_mov_b64 exec, -1\n{lab}:")
            return
        if not self.stamps:
            return
        a = self.a
        a(f"s_memrealtime s[{S_STMP}:{S_STMP+1}]\ns_memtime s[100:101]")
        ln = str(k)
        if dyn is not None:
            a(f"s_add_u32 m0, s{dyn}, {k}")
            ln = "m0"
        a(f"s_waitcnt lgkmcnt(0)\nv_writelane_b32 v254, s{S_STMP}, {ln}\nv_writelane_b32 v255, s100, {ln}")

    def perm_setup(self, s_m, n, nshare, dst, enable):
        a = self.a
        def pk(o):
            v = 0
            for i, x in enumerate(o):
                v |= x << (4 * i)
            return v & 0xffffffff, v >> 32
        lo, hi = pk(list(range(n)))
        a(f"s_mov_b32 s{dst}, {lo:#x}\ns_mov_b32 s{dst+1}, {hi:#x}")
        if not enable:
            return
        for m in range(nshare):
            lo, hi = pk(lead_perm(n, nshare, m, enable))
            a(f"s_cmp_eq_u32 s{s_m}, {m}\ns_cselect_b32 s{dst}, {lo:#x}, s{dst}\ns_cselect_b32 s{dst+1}, {hi:#x}, s{dst+1}")

    def perm_next(self, dst, src, mul):
        t = f"s_and_b32 s{dst}, s{src}, 15\ns_lshr_b64 s[{src}:{src+1}], s[{src}:{src+1}], 4\n"
        if mul & (mul - 1) == 0:
            t += f"s_lshl_b32 s{dst}, s{dst}, {mul.bit_length()-1}\n"
        else:
            t += f"s_mul_i32 s{dst}, s{dst}, {mul}\n"
        return t

    def poll(self, voffs, vtmp, mask=None):
        a = self.a
        lp, dn = a.label("poll"), a.label("pdone")
        n = len(voffs)

        def ld(k):
            for i, vo in enumerate(voffs):
                a(f"buffer_load_dword v{vtmp+k*n+i}, v{vo}, s[{R_WS}:{R_WS+3}], 0 offen sc1")

        def chk(k):
            if mask is not None:
                a(f"v_xor_b32 v{vtmp+k*n}, s{S_TAG}, v{vtmp+k*n}\nv_and_b32 v{vtmp+k*n}, v{mask}, v{vtmp+k*n}\nv_cmp_ne_u32 vcc, 0, v{vtmp+k*n}")
            else:
                a(f"v_cmp_ne_u32 vcc, s{S_TAG}, v{vtmp+k*n}")
            for i in range(1, n):
                a(f"v_cmp_ne_u32 s[{S_T0}:{S_T0+1}], s{S_TAG}, v{vtmp+k*n+i}\ns_nop 1\ns_or_b64 vcc, vcc, s[{S_T0}:{S_T0+1}]")
            a(f"s_nop 1\ns_cmp_eq_u64 vcc, 0\ns_cbranch_scc1 {dn}")
        if not self.o.get("pp"):
            a(f"s_mov_b32 s{S_CNT}, 0\n{lp}:")
            ld(0)
            a("s_waitcnt vmcnt(0)")
            chk(0)
            a(f"s_add_u32 s{S_CNT}, s{S_CNT}, 1\ns_cmp_lt_u32 s{S_CNT}, {SPIN_LIMIT}\ns_cbranch_scc0 {dn}\ns_sleep 1\ns_branch {lp}\n{dn}:")
            return
        sl = f"s_sleep {self.o['pp'] - 1}\n" if self.o["pp"] > 1 else ""
        a(f"s_mov_b32 s{S_CNT}, 0")
        ld(0)
        a(f"{sl}{lp}:")
        ld(1)
        a(f"s_waitcnt vmcnt({n})")
        chk(0)
        ld(0)
        a(f"s_waitcnt vmcnt({n})")
        chk(1)
        a(f"s_add_u32 s{S_CNT}, s{S_CNT}, 1\ns_cmp_lt_u32 s{S_CNT}, {SPIN_LIMIT}\ns_cbranch_scc1 {lp}\n{dn}:")

    def flag_store(self, s_off, vtmp):
        a = self.a
        a(f"v_mov_b32 v{vtmp}, s{S_TAG}\nv_mov_b32 v{vtmp+1}, 0\ns_mov_b64 exec, 1")
        a(f"buffer_store_dword v{vtmp}, v{vtmp+1}, s[{R_WS}:{R_WS+3}], s{s_off} offen sc1\ns_mov_b64 exec, -1")

    def pipeline(self, stages, L, gstar, drain=True, wait_every=2, vis=None):
        a = self.a
        seq = [(si, gi, u) for si, st in enumerate(stages) for gi, u in enumerate(st["uses"])]
        issued = []
        vis = list(vis or [])
        state = dict(nxt=0, opened=-1)
        pend = []

        def collect(lim):
            while state["nxt"] < len(seq) and state["nxt"] <= lim and seq[state["nxt"]][0] <= state["opened"]:
                si_, _, u_ = seq[state["nxt"]]
                for name, txt in u_["reads"]:
                    pend.append((f"{si_}:{name}", txt))
                state["nxt"] += 1
                if seq[state["nxt"] - 1][1] == len(stages[si_]["uses"]) - 1 and si_ + 1 < len(stages):
                    state["defer"] = list(stages[si_ + 1].get("pre", []))

        def out(txt):
            if ";@" in txt:
                vis.append(txt.split(";@")[1].strip())
            a(txt)

        def emit(n):
            for _ in range(min(n, len(pend))):
                name, txt = pend.pop(0)
                out(txt)
                if name:
                    issued.append(name)

        a(stages[0]["bar"])
        state["opened"] = 0
        collect(L - 1)
        emit(len(pend))
        n_real = sum(len(st["uses"]) for st in stages if not st.get("virtual"))
        covered = -1
        for f in range(n_real):
            si, gi, u = seq[f]
            nuse = len(stages[si]["uses"])
            if gi == 0 and stages[si].get("head"):
                assert not pend, pend
                a(stages[si]["head"])
                covered = -1
            if gi == gstar and si + 1 < len(stages):
                emit(len(pend))
                for x in state.pop("defer", []):
                    a(x)
                if drain:
                    a("s_waitcnt lgkmcnt(0)")
                    covered = len(issued) - 1
                a(stages[si + 1]["bar"])
                pend.extend((None, x) for x in stages[si + 1].get("bar_pend", []))
                state["opened"] = si + 1
                collect(f + L - 1)
            def lastidx(ff):
                s_, _, uu = seq[ff]
                return max(len(issued) - 1 - issued[::-1].index(f"{s_}:{nm}") for nm in uu["need"])
            w = []
            if lastidx(f) > covered:
                tgt = lastidx(f)
                for ff in range(f + 1, min(f + wait_every, n_real)):
                    if seq[ff][0] != si:
                        break
                    try:
                        tgt = max(tgt, lastidx(ff))
                    except ValueError:
                        break
                n = len(issued) - 1 - tgt
                assert n <= 15, n
                w.append(f"lgkmcnt({n})")
                covered = tgt
            if u.get("vneed") is not None:
                w.insert(0, f"vmcnt({len(vis) - 1 - vis.index(u['vneed'])})")
            if u.get("vm") is not None:
                npv = sum(1 for nm_, t_ in pend if t_.strip().startswith("buffer_load"))
                w.insert(0, f"vmcnt({u['vm'] - npv})")
            if w:
                a("s_waitcnt " + " ".join(w))
            if u.get("before"):
                a(u["before"])
            if state.get("defer") and not pend:
                n_ = self.o.get("npre", 7)
                pend.extend((None, x) for x in state["defer"][:n_])
                state["defer"] = state["defer"][n_:]
            collect(f + L)
            if state.get("mix"):
                k_ = state.pop("mix")
                head_, rest_ = pend[:k_], pend[k_:]
                pend[:] = [x for pr in zip(head_, rest_) for x in pr] + head_[len(rest_):] + rest_[len(head_):]
            nm_ = len(u["mf"])
            for k, m in enumerate(u["mf"]):
                a(m)
                left = nm_ - k
                if drain and gi >= gstar:
                    left += sum(len(uu["mf"]) for uu in stages[si]["uses"][gi + 1:])
                    extra = 2 * (nuse - 1 - gi)
                    emit(-(-(len(pend) + extra) // left) if left > 1 else len(pend))
                else:
                    emit(-(-len(pend) // left))
            if u.get("after"):
                items = [x for x in u["after"].split("\n") if x.strip()]
                if gi == nuse - 1:
                    for x in items:
                        out(x)
                else:
                    assert not pend
                    pend.extend((None, x) for x in items)
                    state["mix"] = len(items)
            if gi == nuse - 1 and stages[si].get("tail"):
                a(stages[si]["tail"])

    def prologue(self):
        a = self.a
        a(f"""
        s_cmp_ge_u32 s2, 256
        s_cbranch_scc1 L_exit
        {"v_mov_b32 v254, 0" if self.stamps else ""}
        {"v_mov_b32 v255, 0" if self.stamps else ""}
        {"s_memrealtime s[98:99]" if self.o.get("calib") or "pc1" in self.o else ""}
        {"s_mov_b32 s94, 0" if "probe" in self.o or "pc1" in self.o else ""}
        s_load_dwordx16 s[4:19], s[0:1], 0
        s_load_dwordx8 s[20:27], s[0:1], 64
        """)
        if self.o.get("pf_code") == 2:
            a(f"""
            s_getpc_b64 s[{S_T0}:{S_T0+1}]
            L_pcref:
            s_lshr_b32 s3, s2, 3
            s_mul_i32 s3, s3, 1280
            v_lshlrev_b32 v4, 7, v0
            v_add_u32 v4, s3, v4
            v_min_u32 v4, L_exit-L_pcref, v4
            v_cmp_gt_u32 vcc, 10, v0
            s_and_saveexec_b64 s[{S_T0+2}:{S_T0+3}], vcc
            s_cbranch_execz L_nocpf
            global_load_dword v253, v4, s[{S_T0}:{S_T0+1}]
            L_nocpf:
            s_mov_b64 exec, -1
            """)
        a(f"""
        v_and_b32 v1, 63, v0
        v_lshrrev_b32 v2, 6, v0
        s_and_b32 s{S_XCD}, s2, 7
        v_readfirstlane_b32 s{S_WAVE}, v2
        s_lshr_b32 s{S_J}, s2, 3
        s_waitcnt lgkmcnt(0)
        s_load_dword s{S_TAG}, s[{P_WS}:{P_WS+1}], 0
        """)
        self.srd(R_WS, P_WS, WS_USED)
        self.srd(R_X, P_X, 2048 * 1280)
        self.srd(R_W2, P_W2, 1536 * 4096)
        if self.stamps or self.o.get("dbg") or "probe" in self.o:
            a(f"s_cmp_lg_u32 s{S_WAVE}, 0\ns_cbranch_scc1 L_nost0")
            self.stamp(0, 4)
            a("L_nost0:")
        if self.o.get("tlb"):
            self.tlb_warm()
        if self.o.get("pf_code") == 1:
            self.code_prefetch()
        if self.o.get("prio"):
            a(f"""
            s_sub_u32 s{S_T0}, s{S_WAVE}, 4
            s_cmp_lt_u32 s{S_T0}, 3
            s_cbranch_scc1 L_noprio
            s_setprio 3
            L_noprio:
            """)
        a(f"""
        s_lshr_b32 s{S_T0}, s{S_XCD}, 1
        s_lshl_b32 s{S_T0}, s{S_T0}, 3
        s_lshr_b32 s{S_ST}, s{S_J}, 2
        s_add_u32 s{S_ST}, s{S_ST}, s{S_T0}
        s_and_b32 s{S_T0}, s{S_XCD}, 1
        s_lshl_b32 s{S_T0}, s{S_T0}, 2
        s_and_b32 s{S_DTILE}, s{S_J}, 3
        s_add_u32 s{S_DTILE}, s{S_DTILE}, s{S_T0}
        s_cmp_lt_u32 s{S_XCD}, 4
        s_cbranch_scc1 L_roleB
        """)

    V_W2 = 240

    def f_perm(self):
        a = self.a
        a(f"s_lshl_b32 s{S_M}, s{S_DTILE}, 1\ns_add_u32 s{S_M}, s{S_M}, s{S_ST}\ns_and_b32 s{S_M}, s{S_M}, 7")
        self.perm_setup(S_M, 12, 8, S_PERM, self.o.get("rotF"))

    def w2_setup(self):
        a = self.a
        V = self.V_W2
        self.f_perm()
        a(f"""
        v_lshrrev_b32 v{V}, 3, v1
        v_lshrrev_b32 v{V+1}, 4, v1
        v_lshlrev_b32 v{V+1}, 1, v{V+1}
        v_and_b32 v{V+2}, 7, v1
        v_xor_b32 v{V+1}, v{V+1}, v{V+2}
        v_lshlrev_b32 v{V+1}, 4, v{V+1}
        v_lshl_add_u32 v{V}, v{V}, 12, v{V+1}
        v_add_u32 v{V+1}, {32768-1024}, v{V}
        v_add_u32 v{V+2}, {2*(32768-1024)}, v{V}
        v_add_u32 v{V+3}, {3*(32768-1024)}, v{V}
        s_sub_u32 s{S_T0}, s{S_WAVE}, 5
        s_lshl_b32 s{S_B}, s{S_T0}, 13
        s_lshl_b32 s{S_A}, s{S_T0}, 18
        s_lshl_b32 s{S_T0}, s{S_ST}, 7
        s_add_u32 s{S_A}, s{S_A}, s{S_T0}
        """)

    def w2_issue_at(self, p):
        a = self.a
        V = self.V_W2
        a(f"s_bfe_u32 s{S_T0}, s{S_PERM}, {(4 << 16) | (4 * p):#x}\ns_lshl_b32 s{S_T0}, s{S_T0}, 19\ns_add_u32 s{S_T0}, s{S_T0}, s{S_A}")
        for g in range(2):
            a(f"s_add_u32 m0, s{S_B}, {p*16384 + g*4096}")
            a(f"s_add_u32 s{S_T0}, s{S_T0}, {g*4*32768}")
            for i in range(4):
                a(f"buffer_load_dwordx4 v{V+i}, s[{R_W2}:{R_W2+3}], s{S_T0} offen offset:{i*1024} lds")

    def w2_half(self, g):
        a = self.a
        V = self.V_W2
        if g == 0:
            a(self.perm_next(S_K0, S_PERM, 128 * 4096) + f"s_add_u32 s{S_K0}, s{S_K0}, s{S_A}")
        a(f"s_add_u32 m0, s{S_B}, {g*4096}\ns_add_u32 s{S_T0}, s{S_K0}, {g*4*32768}")
        for i in range(4):
            a(f"buffer_load_dwordx4 v{V+i}, s[{R_W2}:{R_W2+3}], s{S_T0} offen offset:{i*1024} lds")
        if g == 1:
            a(f"s_add_u32 s{S_B}, s{S_B}, 16384")

    def w2_issue(self):
        a = self.a
        V = self.V_W2
        a(self.perm_next(S_T0, S_PERM, 128 * 4096))
        a(f"s_add_u32 s{S_T0}, s{S_T0}, s{S_A}")
        for g in range(2):
            a(f"s_add_u32 m0, s{S_B}, {g*4096}")
            a(f"s_add_u32 s{S_T0}, s{S_T0}, {g*4*32768}")
            for i in range(4):
                a(f"buffer_load_dwordx4 v{V+i}, s[{R_W2}:{R_W2+3}], s{S_T0} offen offset:{i*1024} lds")
        a(f"s_add_u32 s{S_B}, s{S_B}, 16384\ns_and_b32 s{S_B}, s{S_B}, 0x1ffff")

    def w2_prefill(self, n):
        if n == 0:
            return
        a = self.a
        lp = a.label("pf")
        a(f"s_mov_b32 s{S_C}, 0\n{lp}:")
        self.w2_issue()
        a(f"s_add_u32 s{S_C}, s{S_C}, 1\ns_cmp_lt_u32 s{S_C}, {n}\ns_cbranch_scc1 {lp}")

    def if_wave56(self):
        a = self.a
        skip = a.label("n56")
        a(f"s_sub_u32 s{S_T0}, s{S_WAVE}, 5\ns_cmp_lt_u32 s{S_T0}, 2\ns_cbranch_scc0 {skip}")
        return skip

    def role_a(self):
        a = self.a
        a(f"L_roleA:\ns_mov_b32 s{S_FROMA}, 1")
        a(f"s_sub_u32 s{S_MT}, s{S_ST}, 16\ns_mov_b32 s{S_HG}, s{S_DTILE}")
        a(f"s_cmp_ge_u32 s{S_WAVE}, 4\ns_cbranch_scc1 L_A_loader")
        ACC, XF, WF, VXA, VWA = 128, 96, 64, 4, 6
        if self.o.get("ta1") or self.o.get("ta2"):
            self.start_prefetch()
        self.a_thread_map()
        a(f"""
        v_and_b32 v16, 15, v1
        v_lshrrev_b32 v17, 4, v1
        s_lshl_b32 s{S_T0}, s{S_WAVE}, 5
        v_add_u32 v18, s{S_T0}, v16
        v_lshrrev_b32 v19, 1, v16
        v_xor_b32 v19, v17, v19
        v_lshlrev_b32 v19, 4, v19
        v_lshl_add_u32 v{VXA}, v18, 7, v19
        v_xor_b32 v{VXA+1}, 64, v{VXA}
        v_lshrrev_b32 v18, 2, v16
        v_lshl_add_u32 v19, v17, 3, v18
        v_and_b32 v20, 1, v17
        v_lshl_or_b32 v20, v20, 2, v18
        v_lshlrev_b32 v19, 9, v19
        v_lshl_add_u32 v19, v20, 5, v19
        v_and_b32 v20, 3, v16
        v_lshl_add_u32 v19, v20, 3, v19
        v_add_u32 v{VWA}, {A_WOFF}, v19
        """)
        for n in range(1, 8):
            a(f"v_xor_b32 v{VWA+n}, {n<<5}, v{VWA}")
        for r in range(120):
            a(f"v_mov_b32 v{ACC+r}, 0")
        a(f"s_mov_b32 s{S_A}, 0\ns_mov_b32 s{S_B}, 0\ns_mov_b32 s{S_C}, {A_SLOT}\ns_waitcnt lgkmcnt(0)")
        a(f"s_add_u32 s{S_TAG}, s{S_TAG}, {TAG_INC:#x}")

        RING = 6
        D = 6

        def mk_stage(bar, virtual=False, head=None, tail=None):
            uses = []
            for g in range(30):
                ks, n = divmod(g, 15)
                wb = WF + 4 * (g % RING)
                reads = []
                if g == 0:
                    for rb in range(2):
                        reads.append((f"x0{rb}", f"ds_read_b128 {vr(XF+4*rb,4)}, v{VXA} offset:{rb*2048}"))
                if g == 13:
                    for rb in range(2):
                        reads.append((f"x1{rb}", f"ds_read_b128 {vr(XF+8+4*rb,4)}, v{VXA+1} offset:{rb*2048}"))
                off = ks * 16384 + (n >> 3) * 256
                reads.append((f"w{g}a", f"ds_read_b64_tr_b16 {vr(wb,2)}, v{VWA+(n&7)} offset:{off}"))
                reads.append((f"w{g}b", f"ds_read_b64_tr_b16 {vr(wb+2,2)}, v{VWA+(n&7)} offset:{off+2048}"))
                need = [f"w{g}b", f"x{ks}1"]
                mf = []
                for rb in range(2):
                    acc = vr(ACC + (n * 2 + rb) * 4, 4)
                    xf = vr(XF + ks * 8 + rb * 4, 4)
                    wf = vr(wb, 4)
                    if n < 5:
                        mf.append(f"v_mfma_f32_16x16x32_bf16 {acc}, {wf}, {xf}, {acc}")
                    else:
                        mf.append(f"v_mfma_f32_16x16x32_bf16 {acc}, {xf}, {wf}, {acc}")
                uses.append(dict(reads=reads, need=need, mf=mf))
            return dict(uses=uses, bar=bar, virtual=virtual, head=head, tail=tail)

        adv = "s_barrier"
        pre = [f"s_add_u32 s{S_B}, s{S_B}, 1", f"s_cmp_eq_u32 s{S_B}, 3", f"s_cselect_b32 s{S_B}, 0, s{S_B}",
               f"s_cselect_b32 s{S_T0}, {(-2*A_SLOT) & 0xffffffff:#x}, s{S_C}"]
        pre += [f"v_add_u32 v{r}, s{S_T0}, v{r}" for r in range(VXA, VWA + 8)]
        tail = f"s_add_u32 s{S_A}, s{S_A}, 1\ns_cmp_lt_u32 s{S_A}, 10\ns_cbranch_scc1 L_A_loop"
        head = "L_A_loop:\n"
        bar0 = "s_barrier"
        self.uw_srd()
        if self.o.get("tw2") == 2:
            self.srd(R_M, P_WO, 640 * 1280)
            a(f"""
            v_lshlrev_b32 v252, 7, v1
            s_lshl_b32 s{S_T0}, s{S_MT}, 3
            s_add_u32 s{S_T0}, s{S_T0}, s{S_HG}
            s_lshl_b32 s{S_T0}, s{S_T0}, 2
            s_add_u32 s{S_T0}, s{S_T0}, s{S_WAVE}
            s_mul_i32 s{S_D}, s{S_T0}, {8192 if self.o.get("hW2") else 12288}
            s_add_u32 s{S_KST}, s{S_D}, 8192
            s_mul_i32 s{S_PAR}, s{S_T0}, 1664
            s_and_b32 s{S_M}, s{S_J}, 7
            s_add_u32 s{S_M}, s{S_M}, {self.o.get("tw2at", 1)}
            """)
            head += f"""
            s_cmp_lg_u32 s{S_A}, s{S_M}
            s_cbranch_scc1 L_A_nt2
            buffer_load_dword v253, v252, s[{R_W2}:{R_W2+3}], s{S_D} offen
            s_mov_b32 exec_hi, 0
            {"" if self.o.get("hW2") else f"buffer_load_dword v253, v252, s[{R_W2}:{R_W2+3}], s{S_KST} offen"}
            s_mov_b32 exec_lo, 0x1fff
            {"" if self.o.get("woLN") else f"buffer_load_dword v253, v252, s[{R_M}:{R_M+3}], s{S_PAR} offen"}
            s_mov_b64 exec, -1
            L_A_nt2:
            """
        if "promA" in self.o:
            head += f"s_cmp_lg_u32 s{S_A}, {self.o['promA']}\ns_cbranch_scc1 L_A_npr\n" + self.pf_rest_plain() + "L_A_npr:\n"
        ta2 = self.o.get("ta2")
        if ta2 == 1:
            a(self.pf_rest())
        elif ta2 == 2:
            bar0 += "\n" + self.pf_rest()
        elif ta2:
            head += f"s_cmp_lg_u32 s{S_A}, {ta2-2}\ns_cbranch_scc1 L_A_npf\n" + self.pf_rest() + "L_A_npf:\n"
        self.pipeline([mk_stage(bar0, head=head, tail=tail), dict(mk_stage(adv, virtual=True), pre=pre)], 5, 30 - 3, wait_every=self.o.get('we', 2))
        self.stamp(2, 16)
        PK, VV, ONES, KVD, ZD = 16, 36, 56, 64, 116
        a("L_A_tail:\ns_waitcnt lgkmcnt(0)\ns_nop 7")
        a(f"s_mov_b32 s{S_K0}, {LOG2E:#x}\ns_mov_b32 s{S_K0+1}, {LOG2E:#x}\ns_mov_b32 s{S_K0+2}, {f2u(1e-6):#x}")

        def phi(base, n, t):
            for i in range(0, n, 4):
                r = base + i
                a(f"v_pk_mul_f32 {vr(t,2)}, {vr(r,2)}, s[{S_K0}:{S_K0+1}]")
                a(f"v_pk_mul_f32 {vr(t+2,2)}, {vr(r+2,2)}, s[{S_K0}:{S_K0+1}]")
                for k in range(4):
                    a(f"v_exp_f32_e64 v{t+k}, v{t+k} clamp")
                for k in range(4):
                    a(f"v_max_f32 v{r+k}, s{S_K0+2}, v{r+k}")
                a(f"v_pk_add_f32 {vr(r,2)}, {vr(r,2)}, {vr(t,2)}")
                a(f"v_pk_add_f32 {vr(r+2,2)}, {vr(r+2,2)}, {vr(t+2,2)}")

        def pack(dst, src0, src1):
            a(f"v_cvt_pk_bf16_f32 v{dst}, v{src0}, v{src0+1}\nv_cvt_pk_bf16_f32 v{dst+1}, v{src0+2}, v{src0+3}")
            if src1 is None:
                a(f"v_mov_b32 v{dst+2}, 0\nv_mov_b32 v{dst+3}, 0")
            else:
                a(f"v_cvt_pk_bf16_f32 v{dst+2}, v{src1}, v{src1+1}\nv_cvt_pk_bf16_f32 v{dst+3}, v{src1+2}, v{src1+3}")

        for b in range(5):
            pack(VV + 4 * b, ACC + (10 + b) * 8, ACC + (10 + b) * 8 + 4)
        for k in range(4):
            a(f"v_mov_b32 v{ONES+k}, 0x3f803f80")
        phi(ACC + 40, 40, 60)
        for b in range(5):
            pack(PK + 4 * b, ACC + (5 + b) * 8, ACC + (5 + b) * 8 + 4)
        a("s_nop 1")
        ZD = ACC + 80
        blocks = [(x, y) for x in range(5) for y in range(5) if abs(x - y) <= 1]
        for (x, y) in blocks:
            a(f"v_mfma_f32_16x16x32_bf16 {vr(KVD+4*(2*x+y),4)}, {vr(PK+4*x,4)}, {vr(VV+4*y,4)}, 0")
        for x in range(5):
            a(f"v_mfma_f32_16x16x32_bf16 {vr(ZD+4*x,4)}, {vr(ONES,4)}, {vr(PK+4*x,4)}, 0")
        a(f"""
        s_mul_i32 s{S_T0}, s{S_WAVE}, {EXCH_ST}
        s_add_u32 s{S_T0}, s{S_T0}, {EXCH}
        v_lshlrev_b32 v60, 4, v1
        v_add_u32 v60, s{S_T0}, v60
        v_and_b32 v61, 15, v1
        v_lshlrev_b32 v61, 2, v61
        v_add_u32 v61, s{S_T0}, v61
        s_nop 3
        """)
        for i in range(13):
            a(f"ds_write_b128 v60, {vr(KVD+4*i,4)} offset:{i*1024}")
        for x in range(5):
            a(f"ds_write_b32 v61, v{ZD+4*x} offset:{13312+64*x}")
        self.stamp(10, 40)
        a("s_waitcnt lgkmcnt(0)\ns_barrier")
        self.stamp(11, 40)
        self.a_reduce_publish(64)
        self.stamp(12, 40)
        a("v_lshlrev_b32 v59, 4, v1\ns_barrier")
        self.stamp(14, 40)
        self.wot_preload(59)
        PQ = 16
        phi(ACC, 40, 60)
        for ts in range(3):
            for rb in range(2):
                pack(PQ + (ts * 2 + rb) * 4, ACC + (2 * ts * 2 + rb) * 4, None if ts == 2 else ACC + ((2 * ts + 1) * 2 + rb) * 4)
        self.f_setup()
        a("s_barrier")
        a(f"""
        v_and_b32 v63, 15, v1
        v_lshlrev_b32 v63, 2, v63
        s_lshl_b32 s{S_T0}, s{S_MT}, 7
        s_lshl_b32 s{S_T0+1}, s{S_WAVE}, 5
        s_add_u32 s{S_T0}, s{S_T0}, s{S_T0+1}
        s_lshl_b32 s{S_T0}, s{S_T0}, 2
        s_add_u32 s{S_T0}, s{S_T0}, {G_OFF}
        buffer_load_dword v62, v63, s[{R_WS}:{R_WS+3}], s{S_T0} offen sc1
        buffer_load_dword v61, v63, s[{R_WS}:{R_WS+3}], s{S_T0} offen offset:64 sc1
        """)
        self.a_gather(64)
        a("s_waitcnt lgkmcnt(0)\ns_barrier")
        self.stamp(4, 40)
        FR = 64
        a("v_lshlrev_b32 v60, 4, v1\nv_add_u32 v60, " + str(KVT) + ", v60")
        used = [0, 2, 3, 4, 5, 7, 8, 9, 10, 11, 12, 13]
        for f in used:
            a(f"ds_read_b128 {vr(FR+4*f,4)}, v60 offset:{f*1024}")
        NUM, DEN = 128, 120
        kts = {0: [0], 1: [0, 1], 2: [0, 1], 3: [1, 2], 4: [1, 2]}
        a(f"""
        v_lshrrev_b32 v40, 4, v1
        v_cmp_gt_u32 s[{S_MSK}:{S_MSK+1}], 1, v40
        v_cmp_gt_u32 s[{S_MSK+2}:{S_MSK+3}], 2, v40
        v_cmp_gt_u32 s[{S_MSK+4}:{S_MSK+5}], 3, v40
        s_waitcnt lgkmcnt(0)
        """)
        for rb in range(2):
            for ts in range(3):
                c = "0" if ts == 0 else vr(DEN + 4 * rb, 4)
                a(f"v_mfma_f32_16x16x32_bf16 {vr(DEN+4*rb,4)}, {vr(FR+4*(11+ts),4)}, {vr(PQ+(ts*2+rb)*4,4)}, {c}")
        for rb in range(2):
            for b in range(5):
                for i, ts in enumerate(kts[b]):
                    d = vr(NUM + (rb * 5 + b) * 4, 4)
                    c = "0" if i == 0 else d
                    a(f"v_mfma_f32_16x16x32_bf16 {d}, {vr(FR+4*(2*b+ts),4)}, {vr(PQ+(ts*2+rb)*4,4)}, {c}")
        for rb in range(2):
            for h in range(4):
                a(f"v_add_f32 v{DEN+4*rb+h}, s{S_K0+2}, v{DEN+4*rb+h}")
        for rb in range(2):
            for h in range(4):
                a(f"v_rcp_f32 v{DEN+4*rb+h}, v{DEN+4*rb+h}")
        a("s_nop 0")
        gv = {0: 62, 1: 61}
        for rb in range(2):
            for h in range(4):
                a(f"v_mul_f32 v{DEN+4*rb+h}, v{gv[rb]}, v{DEN+4*rb+h}")
        a(f"""
        s_lshl_b32 s{S_T0}, s{S_MT}, 3
        s_lshl_b32 s{S_T0+1}, s{S_WAVE}, 1
        s_add_u32 s{S_T0}, s{S_T0}, s{S_T0+1}
        s_mul_i32 s{S_T0}, s{S_T0}, {GO_ST}
        s_add_u32 s{S_T0}, s{S_T0}, {GO}
        s_lshl_b32 s{S_T0+1}, s{S_HG}, 11
        s_add_u32 s{S_T0+1}, s{S_T0+1}, s{S_T0}
        s_lshl_b32 s{S_T0+2}, s{S_HG}, 9
        s_add_u32 s{S_T0+2}, s{S_T0+2}, s{S_T0}
        s_add_u32 s{S_T0+2}, s{S_T0+2}, 16384
        v_lshlrev_b32 v40, 4, v1
        v_lshlrev_b32 v41, 3, v1
        """)
        for rb in range(2):
            d = DEN + 4 * rb
            a(f"v_cndmask_b32 v44, v{d+1}, v{d}, s[{S_MSK}:{S_MSK+1}]")
            a(f"v_cndmask_b32 v45, v{d+2}, v{d+1}, s[{S_MSK+2}:{S_MSK+3}]")
            a(f"v_cndmask_b32 v46, v{d+3}, v{d+2}, s[{S_MSK+4}:{S_MSK+5}]")
            sc = [d, 44, 45, 46, d + 3]
            for b in range(5):
                for k in range(4):
                    r = NUM + (rb * 5 + b) * 4 + k
                    a(f"v_mul_f32 v{r}, v{sc[b]}, v{r}")
            o = 16 + rb * 12
            n0 = NUM + rb * 20
            pack(o, n0, n0 + 4)
            pack(o + 4, n0 + 8, n0 + 12)
            a(f"v_cvt_pk_bf16_f32 v{o+8}, v{n0+16}, v{n0+17}\nv_cvt_pk_bf16_f32 v{o+9}, v{n0+18}, v{n0+19}")
            a(f"buffer_store_dwordx4 {vr(o,4)}, v40, s[{R_WS}:{R_WS+3}], s{S_T0+1} offen sc1")
            a(f"buffer_store_dwordx4 {vr(o+4,4)}, v40, s[{R_WS}:{R_WS+3}], s{S_T0+1} offen offset:1024 sc1")
            a(f"buffer_store_dwordx2 {vr(o+8,2)}, v41, s[{R_WS}:{R_WS+3}], s{S_T0+2} offen sc1")
            if rb == 0:
                a(f"s_add_u32 s{S_T0+1}, s{S_T0+1}, {GO_ST}\ns_add_u32 s{S_T0+2}, s{S_T0+2}, {GO_ST}")
        self.stamp(5, 40)
        a("s_branch L_F_comp")

        a("L_A_loader:")
        VX, VW = 4, 8
        self.srd(R_W, P_WQKV, 640 * 3840)
        a(f"""
        s_sub_u32 s{S_D}, s{S_WAVE}, 4
        v_lshrrev_b32 v16, 3, v1
        v_lshrrev_b32 v17, 4, v1
        v_and_b32 v18, 7, v1
        v_xor_b32 v17, v17, v18
        v_lshlrev_b32 v17, 4, v17
        v_mul_u32_u24 v16, 1280, v16
        v_add_u32 v{VX}, v16, v17
        v_xor_b32 v18, 64, v{VX}
        v_add_u32 v{VX+1}, {8*1280-1024}, v18
        v_add_u32 v{VX+2}, {2*(8*1280-1024)}, v{VX}
        v_add_u32 v{VX+3}, {3*(8*1280-1024)}, v18
        s_lshl_b32 s{S_T0}, s{S_MT}, 7
        s_lshl_b32 s{S_T0+1}, s{S_D}, 5
        s_add_u32 s{S_T0}, s{S_T0}, s{S_T0+1}
        s_mul_i32 s{S_A}, s{S_T0}, 1280
        s_lshl_b32 s{S_C}, s{S_D}, 12
        """)
        def issue_x():
            a(f"s_mov_b32 m0, s{S_C}\ns_nop 0")
            for i in range(4):
                a(f"buffer_load_dwordx4 v{VX+i}, s[{R_X}:{R_X+3}], s{S_A} offen offset:{i*1024} lds")
            a(f"s_add_u32 s{S_A}, s{S_A}, 128")

        def issue_w():
            for g in range(2):
                a(f"s_lshl_b32 s{S_T0}, s{S_D}, 12\ns_add_u32 s{S_T0}, s{S_T0}, s{S_C}\ns_add_u32 m0, s{S_T0}, {A_WOFF + g*4096}\ns_nop 0")
                for i in range(4):
                    a(f"buffer_load_dwordx4 v{VW+4*g+i}, s[{R_W}:{R_W+3}], s{S_B} offen offset:{i*1024} lds")
            a(f"s_add_u32 s{S_B}, s{S_B}, {64*3840}")

        def next_slot():
            a(f"s_add_u32 s{S_C}, s{S_C}, {A_SLOT}\ns_cmp_ge_u32 s{S_C}, {3*A_SLOT}\ns_cselect_b32 s{S_T0}, {3*A_SLOT}, 0\ns_sub_u32 s{S_C}, s{S_C}, s{S_T0}")

        issue_x()
        a(f"""
        v_lshrrev_b32 v16, 5, v1
        v_bfe_u32 v17, v1, 1, 4
        v_and_b32 v18, 1, v1
        v_lshlrev_b32 v18, 4, v18
        v_mul_u32_u24 v19, 3840, v16
        v_add_u32 v18, v18, v19
        """)
        for i in (0, 1, 4, 5):
            sig = (2 * (i & 1)) | ((i >> 2) << 2)
            a(f"""
            v_or_b32 v19, {sig}, v16
            v_xor_b32 v19, v17, v19
            v_min_u32 v19, 14, v19
            v_mul_u32_u24 v20, 13, v19
            v_lshrrev_b32 v20, 6, v20
            v_mul_u32_u24 v20, 1120, v20
            v_lshl_add_u32 v19, v19, 5, v20
            v_add_u32 v19, v19, v18
            v_add_u32 v{VW+i}, {2*i*3840 - (i&3)*1024}, v19
            v_add_u32 v{VW+i+2}, {2*(i+2)*3840 - ((i+2)&3)*1024}, v19
            """)
        a(f"""
        s_mul_i32 s{S_B}, s{S_HG}, 160
        s_mul_i32 s{S_T0}, s{S_D}, {16*3840}
        s_add_u32 s{S_B}, s{S_B}, s{S_T0}
        """)
        issue_w()
        for _ in range(2):
            next_slot()
            issue_x()
            issue_w()
        a(f"s_waitcnt lgkmcnt(0)\ns_add_u32 s{S_TAG}, s{S_TAG}, {TAG_INC:#x}")
        a("s_waitcnt vmcnt(24)\ns_barrier")
        self.stamp(1, 16)
        rotA = self.o.get("rotA")
        if rotA:
            a(f"s_lshl_b32 s{S_M}, s{S_HG}, 1\ns_add_u32 s{S_M}, s{S_M}, s{S_MT}\ns_and_b32 s{S_M}, s{S_M}, 7")
            self.perm_setup(S_M, 7, 8, S_PERM, rotA)
            a(f"s_mov_b32 s{S_KST}, s{S_A}\ns_mov_b32 s{S_PAR}, s{S_B}")
        a(f"s_mov_b32 s{S_CNT}, 1\nL_A_lloop:")
        if rotA:
            a(self.perm_next(S_B, S_PERM, 1))
            a(f"s_lshl_b32 s{S_A}, s{S_B}, 7\ns_add_u32 s{S_A}, s{S_A}, s{S_KST}\ns_mul_i32 s{S_B}, s{S_B}, {64*3840}\ns_add_u32 s{S_B}, s{S_B}, s{S_PAR}")
        a("s_waitcnt vmcnt(12)\ns_barrier")
        self.stamp(16, 16, dyn=S_CNT)
        next_slot()
        issue_x()
        issue_w()
        a(f"s_add_u32 s{S_CNT}, s{S_CNT}, 1\ns_cmp_le_u32 s{S_CNT}, 7\ns_cbranch_scc1 L_A_lloop")
        tw = 1 if self.o.get("tw2") in (1, 3) else 0
        if self.o.get("tw2") == 3:
            self.w2_touch()
        a(f"s_waitcnt vmcnt({12 + (tw if self.o.get('tw2') == 3 else 0)})\ns_barrier")
        if self.o.get("tw2") == 1:
            self.w2_touch()
        self.stamp(24, 16)
        self.w2_setup()
        self.a_thread_map()
        a(f"""
        s_mul_i32 s{S_T0}, s{S_DTILE}, {FS}
        s_add_u32 s{S_T0}, s{S_T0}, {F_WOT}
        v_mov_b32 v26, s{S_T0}
        v_and_b32 v27, 3, v1
        s_lshl_b32 s{S_T0}, s{S_MT}, 2
        v_add_u32 v27, s{S_T0}, v27
        v_mul_u32_u24 v27, {FS}, v27
        v_add_u32 v27, {F_LN}, v27
        v_cmp_gt_u32 vcc, 32, v1
        s_nop 1
        v_cndmask_b32 v26, v27, v26, vcc
        """)
        a(f"s_waitcnt vmcnt({tw})\ns_barrier")
        a(f"buffer_load_dword v28, v26, s[{R_WS}:{R_WS+3}], 0 offen sc1")
        self.stamp(25, 16)
        self.code_touch([("L_A_tail", 0), ("L_A_post", 0), ("L_F_comp", 0), ("L_F_comp", 1)])
        a("L_A_post:")
        eA = self.o.get("eA", 2)
        early = [3, 4, 5, 0, 1, 2]
        nE = self.o.get("nE", 6)
        sk = self.if_wave56()
        for p in early[:eA]:
            self.w2_issue_at(p)
        a(f"{sk}:\ns_barrier")
        self.stamp(26, 16)
        sk = self.if_wave56()
        for p in early[eA:nE]:
            self.w2_issue_at(p)
        a(f"{sk}:")
        a(f"s_cmp_eq_u32 s{S_WAVE}, 7\ns_cbranch_scc1 L_A_poller")
        a("s_barrier")
        self.a_reduce_publish(64)
        self.stamp(15, 40)
        a("s_barrier")
        self.kvt_zero()
        skip = self.if_wave56()
        for p in early[nE:] + [6, 7]:
            self.w2_issue_at(p)
        a(f"s_mov_b32 s{S_PERM}, s{S_PERM+1}")
        a("s_barrier")
        self.a_gather(64)
        a("s_waitcnt lgkmcnt(0)\ns_barrier")
        a("s_branch L_F_loader")
        a(f"{skip}:\ns_barrier")
        self.a_gather(64)
        a("s_waitcnt lgkmcnt(0)\ns_barrier")
        a("s_branch L_F_u4")
        a("L_A_poller:")
        a(f"s_waitcnt vmcnt(0)\nv_cmp_ne_u32 vcc, s{S_TAG}, v28\ns_nop 1\ns_cmp_eq_u64 vcc, 0\ns_cbranch_scc1 L_A_pok")
        self.poll([26], 18)
        a("L_A_pok:")
        self.stamp(13, 16)
        a("s_barrier\ns_barrier")
        self.kvt_zero()
        self.stamp(3, 16)
        a("s_barrier\ns_barrier")
        a("s_branch L_F_poller")
        self.a_gather_body(64)

    def code_touch(self, ranges):
        a = self.a
        if not self.o.get("ctouch"):
            return 0
        lab, ref = a.label("nct"), a.label("pc")
        a(f"s_cmp_lg_u32 s{S_WAVE}, 7\ns_cbranch_scc1 {lab}\ns_getpc_b64 s[{S_T0}:{S_T0+1}]\n{ref}:\nv_lshlrev_b32 v24, 7, v1")
        for (start, k) in ranges:
            a(f"s_add_u32 s{S_T0+2}, s{S_T0}, {start}-{ref}+{k*8192}\ns_addc_u32 s{S_T0+3}, s{S_T0+1}, {'-1' if start == 'L_A_tail' else '0'}")
            a(f"v_min_u32 v25, L_exit-{start}-{k*8192}, v24\nglobal_load_dword v253, v25, s[{S_T0+2}:{S_T0+3}]")
        a(f"{lab}:")
        return len(ranges)

    def kvt_zero(self):
        a = self.a
        a(f"v_lshlrev_b32 v16, 4, v1\ns_lshl_b32 s{S_T0}, s{S_D}, 12\ns_add_u32 s{S_T0}, s{S_T0}, {KVT}\nv_add_u32 v16, s{S_T0}, v16")
        a("v_mov_b32 v20, 0\nv_mov_b32 v21, 0\nv_mov_b32 v22, 0\nv_mov_b32 v23, 0")
        for i in range(4):
            a(f"ds_write_b128 v16, v[20:23] offset:{i*1024}")
        a("s_waitcnt lgkmcnt(0)")

    def start_prefetch(self):
        a = self.a
        self.srd(R_W, P_WQKV, 640 * 3840)
        a(f"""
        s_lshl_b32 s{S_T0}, s{S_J}, 2
        s_add_u32 s{S_T0}, s{S_T0}, s{S_WAVE}
        v_lshrrev_b32 v16, 2, v1
        v_and_b32 v17, 3, v1
        v_mul_u32_u24 v16, 1280, v16
        v_lshl_add_u32 v16, v17, 7, v16
        s_lshr_b32 s{S_T0+2}, s{S_MT}, 3
        s_lshl_b32 s{S_T0+2}, s{S_T0+2}, 7
        s_add_u32 s{S_T0+2}, s{S_T0+2}, s{S_T0}
        s_mul_i32 s{S_DT}, s{S_T0+2}, {8*1280}
        v_lshrrev_b32 v19, 4, v1
        v_and_b32 v17, 15, v1
        v_min_u32 v17, 14, v17
        v_mul_u32_u24 v18, 13, v17
        v_lshrrev_b32 v18, 6, v18
        v_mul_u32_u24 v18, 640, v18
        v_lshl_add_u32 v18, v17, 7, v18
        v_mul_u32_u24 v19, 3840, v19
        v_add_u32 v112, v18, v19
        s_lshr_b32 s{S_T0+2}, s{S_HG}, 2
        s_mul_i32 s{S_T0+2}, s{S_T0+2}, 640
        s_mul_i32 s{S_FT}, s{S_T0}, {2*3840}
        s_add_u32 s{S_FT}, s{S_FT}, s{S_T0+2}
        """)
        if self.o.get("ta1"):
            a(f"""
            s_mov_b32 exec_hi, 0
            buffer_load_dword v253, v112, s[{R_W}:{R_W+3}], s{S_FT} offen {self.nt('nta')}
            buffer_load_dword v253, v16, s[{R_X}:{R_X+3}], s{S_DT} offen {self.nt('ntax')}
            s_mov_b32 exec_hi, -1
            """)
        a(f"""
        s_mul_i32 s{S_FT}, s{S_T0}, {3*3840}
        s_add_u32 s{S_FT}, s{S_FT}, s{S_T0+2}
        s_add_u32 s{S_FT}, s{S_FT}, {256*3840}
        v_lshrrev_b32 v16, 3, v1
        v_and_b32 v17, 7, v1
        v_min_u32 v17, 5, v17
        v_mul_u32_u24 v16, 1280, v16
        v_lshl_add_u32 v113, v17, 7, v16
        s_add_u32 s{S_DT}, s{S_DT}, 512
        """)

    def pf_rest_plain(self):
        return f"""s_waitcnt vmcnt(0)
        s_mov_b32 exec_hi, 0xffff
        buffer_load_dword v253, v112, s[{R_W}:{R_W+3}], s{S_FT} offen
        s_mov_b32 exec_hi, -1
        buffer_load_dword v253, v113, s[{R_X}:{R_X+3}], s{S_DT} offen
        """

    def pf_rest(self):
        return f"""s_mov_b32 exec_hi, 0xffff
        buffer_load_dword v253, v112, s[{R_W}:{R_W+3}], s{S_FT} offen {self.nt('nta')}
        s_mov_b32 exec_hi, -1
        buffer_load_dword v253, v113, s[{R_X}:{R_X+3}], s{S_DT} offen {self.nt('ntax')}
        """

    def w2_touch(self):
        a = self.a
        assert self.o.get("hW2") and self.o.get("woLN")
        a(f"""
        v_lshlrev_b32 v48, 7, v1
        s_lshl_b32 s{S_T0}, s{S_MT}, 3
        s_add_u32 s{S_T0}, s{S_T0}, s{S_HG}
        s_lshl_b32 s{S_T0}, s{S_T0}, 2
        s_add_u32 s{S_T0}, s{S_T0}, s{S_D}
        s_lshl_b32 s{S_T0}, s{S_T0}, 13
        buffer_load_dword v253, v48, s[{R_W2}:{R_W2+3}], s{S_T0} offen
        """)

    def tlb_warm(self):
        a = self.a
        mode = self.o["tlb"]
        wv = self.o.get("tlbw", 3)
        a(f"s_cmp_lg_u32 s{S_WAVE}, {wv}\ns_cbranch_scc1 L_notlb")
        self.srd(R_OUT, P_OUT, 2048 * 1280)
        self.srd(R_M, P_B2, 4096)
        self.srd(R_P, P_WO, 640 * 1280)
        self.srd(R_W, P_W1, 2048 * 3072)
        if mode == 1:
            a("v_lshlrev_b32 v4, 20, v1\nv_min_u32 v4, 0xf00000, v4\ns_mov_b64 exec, 0xffff")
            so = "0"
        else:
            a(f"v_lshlrev_b32 v4, 21, v1\ns_lshl_b32 s{S_T0}, s{S_J}, 16\ns_mov_b64 exec, 0x1f")
            so = f"s{S_T0}"
        for r in (R_WS, R_W2, R_OUT, R_W, R_P, R_M):
            a(f"buffer_load_dword v253, v4, s[{r}:{r+3}], {so} offen sc1")
        a("s_mov_b64 exec, -1\nL_notlb:")

    def code_prefetch(self):
        a = self.a
        a(f"""
        s_cmp_lg_u32 s{S_WAVE}, 3
        s_cbranch_scc1 L_nocpf
        s_cmp_ge_u32 s{S_J}, 5
        s_cbranch_scc1 L_nocpf
        s_getpc_b64 s[{S_T0}:{S_T0+1}]
        L_pcref:
        s_lshl_b32 s{S_T0+2}, s{S_J}, 13
        v_lshlrev_b32 v4, 7, v1
        v_add_u32 v4, s{S_T0+2}, v4
        v_min_u32 v4, L_end-L_pcref, v4
        global_load_dword v253, v4, s[{S_T0}:{S_T0+1}]
        L_nocpf:
        """)

    def a_thread_map(self):
        a = self.a
        a(f"""
        v_mul_u32_u24 v16, 625, v0
        v_lshrrev_b32 v16, 16, v16
        v_mul_u32_u24 v17, 105, v16
        v_sub_u32 v17, v0, v17
        v_mul_u32_u24 v19, 205, v17
        v_lshrrev_b32 v19, 12, v19
        v_mul_u32_u24 v18, 20, v19
        v_cmp_lt_u32 vcc, 99, v17
        v_sub_u32 v18, v17, v18
        s_nop 0
        v_cndmask_b32 v19, v19, v18, vcc
        v_mad_u32_u24 v19, v16, 5, v19
        v_mad_u32_u24 v20, v16, 20, v18
        v_lshrrev_b32 v21, 2, v19
        v_and_b32 v22, 3, v19
        v_lshrrev_b32 v23, 4, v20
        v_and_b32 v20, 15, v20
        v_lshl_add_u32 v20, v22, 4, v20
        v_lshl_add_u32 v2, v21, 1, v23
        v_lshlrev_b32 v2, 6, v2
        v_add_u32 v2, v2, v20
        v_lshlrev_b32 v2, 4, v2
        v_lshlrev_b32 v3, 4, v19
        v_add_u32 v3, 13312, v3
        v_cmp_lt_u32 vcc, 99, v17
        v_lshrrev_b32 v24, 1, v21
        v_and_b32 v21, 1, v21
        v_cndmask_b32 v2, v2, v3, vcc
        v_lshl_add_u32 v3, v23, 1, v24
        v_add_u32 v24, 11, v24
        v_lshl_add_u32 v22, v22, 4, v16
        v_cndmask_b32 v3, v3, v24, vcc
        v_cndmask_b32 v20, v20, v22, vcc
        v_lshl_add_u32 v3, v3, 6, v20
        v_lshlrev_b32 v3, 4, v3
        v_lshl_add_u32 v3, v21, 3, v3
        v_add_u32 v3, {KVT}, v3
        v_mov_b32 v25, 2
        v_cndmask_b32 v25, 1, v25, vcc
        v_mov_b32 v16, 420
        v_cmp_gt_u32 vcc, v16, v0
        v_lshlrev_b32 v14, 4, v0
        s_nop 0
        v_cndmask_b32 v15, 0, v25, vcc
        v_cndmask_b32 v2, 0, v2, vcc
        v_add_u32 v2, {EXCH}, v2
        """)

    def a_reduce_publish(self, T):
        a = self.a
        for w in range(4):
            a(f"ds_read_b128 {vr(T+4*w,4)}, v2 offset:{w*EXCH_ST}")
        a(f"""
        s_lshl_b32 s{S_T0}, s{S_HG}, 4
        s_add_u32 s{S_T0}, s{S_T0}, s{S_MT}
        s_mul_i32 s{S_T0}, s{S_T0}, {KVP_ST}
        s_add_u32 s{S_T0}, s{S_T0}, {KVP}
        v_cmp_ne_u32 vcc, 0, v15
        s_waitcnt lgkmcnt(0)
        v_pk_add_f32 {vr(T,2)}, {vr(T,2)}, {vr(T+4,2)}
        v_pk_add_f32 {vr(T+2,2)}, {vr(T+2,2)}, {vr(T+6,2)}
        v_pk_add_f32 {vr(T+8,2)}, {vr(T+8,2)}, {vr(T+12,2)}
        v_pk_add_f32 {vr(T+10,2)}, {vr(T+10,2)}, {vr(T+14,2)}
        v_pk_add_f32 {vr(T,2)}, {vr(T,2)}, {vr(T+8,2)}
        v_pk_add_f32 {vr(T+2,2)}, {vr(T+2,2)}, {vr(T+10,2)}
        v_mov_b32_sdwa v{T}, s{S_TAG} dst_sel:BYTE_0 dst_unused:UNUSED_PRESERVE src0_sel:BYTE_0
        v_mov_b32_sdwa v{T+1}, s{S_TAG} dst_sel:BYTE_0 dst_unused:UNUSED_PRESERVE src0_sel:BYTE_1
        v_mov_b32_sdwa v{T+2}, s{S_TAG} dst_sel:BYTE_0 dst_unused:UNUSED_PRESERVE src0_sel:BYTE_2
        v_mov_b32_sdwa v{T+3}, s{S_TAG} dst_sel:BYTE_0 dst_unused:UNUSED_PRESERVE src0_sel:BYTE_3
        s_mov_b64 exec, vcc
        buffer_store_dwordx4 {vr(T,4)}, v14, s[{R_WS}:{R_WS+3}], s{S_T0} offen sc1
        s_mov_b64 exec, -1
        """)

    S_RET = 88

    def a_gather(self, T):
        self.a(f"s_call_b64 s[{self.S_RET}:{self.S_RET+1}], L_gather")

    def a_gather_body(self, T):
        a = self.a
        MK = S_T0 + 4
        a("L_gather:")
        a(f"s_mul_i32 s{S_T0+1}, s{S_HG}, {16*KVP_ST}\ns_add_u32 s{S_T0+1}, s{S_T0+1}, {KVP}")
        a(f"v_cmp_ne_u32 s[{MK}:{MK+1}], 0, v15\ns_mov_b32 s{S_CNT}, 0\ns_lshl_b32 s{S_T0+2}, s{S_MT}, 1\ns_mov_b64 exec, s[{MK}:{MK+1}]")

        def pair(m):
            a(f"s_add_u32 s{S_T0}, s{S_T0+2}, {m}\ns_and_b32 s{S_T0}, s{S_T0}, 15\ns_mul_i32 s{S_T0}, s{S_T0}, {KVP_ST}\ns_add_u32 s{S_T0}, s{S_T0}, s{S_T0+1}")
            a(f"buffer_load_dwordx4 {vr(T+4*m,4)}, v14, s[{R_WS}:{R_WS+3}], s{S_T0} offen sc1\ns_add_u32 s{S_T0}, s{S_T0}, {KVP_ST}")
            a(f"buffer_load_dwordx4 {vr(T+4*m+4,4)}, v14, s[{R_WS}:{R_WS+3}], s{S_T0} offen sc1")
        for m in range(0, 16, 2):
            pair(m)
        for m in range(0, 16, 2):
            a(f"s_waitcnt vmcnt({14-m})\nL_gchk{m}:")
            for q in range(8):
                a(f"v_cmpx_eq_u32_sdwa vcc, v{T+4*m+q}, s{S_TAG} src0_sel:BYTE_0 src1_sel:BYTE_{q & 3}")
            a(f"""
            s_add_u32 s{S_CNT}, s{S_CNT}, 1
            s_cmp_eq_u64 exec, s[{MK}:{MK+1}]
            s_mov_b64 exec, s[{MK}:{MK+1}]
            s_cbranch_scc1 L_gok{m}
            s_cmp_ge_u32 s{S_CNT}, {SPIN_LIMIT}
            s_cbranch_scc1 L_gok{m}
            """)
            pair(m)
            a(f"s_waitcnt vmcnt(0)\ns_branch L_gchk{m}\nL_gok{m}:")
            for q in range(8):
                a(f"v_and_b32 v{T+4*m+q}, 0xffffff00, v{T+4*m+q}")
            for h in (0, 2):
                a(f"v_pk_add_f32 {vr(T+4*m+h,2)}, {vr(T+4*m+h,2)}, {vr(T+4*(m+1)+h,2)}")
            if m >= 2:
                for h in (0, 2):
                    a(f"v_pk_add_f32 {vr(T+h,2)}, {vr(T+h,2)}, {vr(T+4*m+h,2)}")
        a("s_mov_b64 exec, -1")
        a(f"""
        v_cvt_pk_bf16_f32 v{T}, v{T}, v{T+1}
        v_cvt_pk_bf16_f32 v{T+1}, v{T+2}, v{T+3}
        v_cmp_ne_u32 vcc, 0, v15
        v_cmp_eq_u32 s[{S_T0}:{S_T0+1}], 2, v15
        s_nop 1
        s_mov_b64 exec, vcc
        ds_write_b64 v3, {vr(T,2)}
        s_mov_b64 exec, s[{S_T0}:{S_T0+1}]
        ds_write_b64 v3, {vr(T,2)} offset:64
        ds_write_b64 v3, {vr(T,2)} offset:128
        ds_write_b64 v3, {vr(T,2)} offset:192
        s_mov_b64 exec, -1
        s_setpc_b64 s[{self.S_RET}:{self.S_RET+1}]
        """)

    def role_b(self):
        a = self.a
        a(f"L_roleB:\ns_mov_b32 s{S_FROMA}, 0")
        XR, B1R, GR, XS = 16, 36, 64, 84
        VPF = 8
        a(f"s_cmp_ge_u32 s{S_J}, 16\ns_cbranch_scc1 L_B_pfrole")
        a(f"""
        s_lshl_b32 s{S_KST}, s{S_XCD}, 4
        s_add_u32 s{S_KST}, s{S_KST}, s{S_J}
        s_lshl_b32 s{S_T0}, s{S_KST}, 3
        s_add_u32 s{S_T0}, s{S_T0}, s{S_WAVE}
        s_mul_i32 s{S_T0}, s{S_T0}, {4*1280}
        v_lshrrev_b32 v2, 4, v1
        v_and_b32 v3, 15, v1
        v_lshlrev_b32 v3, 4, v3
        v_mul_u32_u24 v4, 1280, v2
        v_add_u32 v4, v4, v3
        """)
        for c in ((2, 3, 4, 0, 1) if self.o.get("xord") else range(5)):
            a(f"buffer_load_dwordx4 {vr(XR+4*c,4)}, v4, s[{R_X}:{R_X+3}], s{S_T0} offen offset:{c*256} {self.nt('ntx')}")
        self.srd(R_M, P_GATE, 1280)
        for c in range(5):
            a(f"buffer_load_dwordx4 {vr(GR+4*c,4)}, v3, s[{R_M}:{R_M+3}], 0 offen offset:{c*256}")

        def common_setup():
            a(f"""
            s_mul_i32 s{S_M}, s{S_J}, 205
            s_lshr_b32 s{S_M}, s{S_M}, 10
            s_mul_i32 s{S_DT}, s{S_M}, 5
            s_sub_u32 s{S_DT}, s{S_J}, s{S_DT}
            s_mul_i32 s{S_FT}, s{S_XCD}, 6
            s_add_u32 s{S_FT}, s{S_FT}, s{S_M}
            """)
            self.srd(R_OUT, P_B1, 3072)
            a(f"v_lshrrev_b32 v5, 4, v1\nv_lshlrev_b32 v5, 3, v5\ns_lshl_b32 s{S_T0}, s{S_FT}, 7")
            for b in range(4):
                a(f"buffer_load_dwordx2 {vr(B1R+2*b,2)}, v5, s[{R_OUT}:{R_OUT+3}], s{S_T0} offen offset:{b*32}")
            a(f"""
            v_lshrrev_b32 v12, 3, v1
            v_lshrrev_b32 v13, 4, v1
            v_lshlrev_b32 v13, 1, v13
            v_and_b32 v14, 7, v1
            v_xor_b32 v13, v13, v14
            v_lshlrev_b32 v13, 4, v13
            v_mul_u32_u24 v12, 3072, v12
            v_add_u32 v{VPF}, v12, v13
            v_add_u32 v{VPF+1}, {8*3072-1024}, v{VPF}
            v_add_u32 v{VPF+2}, {2*(8*3072-1024)}, v{VPF}
            v_add_u32 v{VPF+3}, {3*(8*3072-1024)}, v{VPF}
            """)
            self.perm_setup(S_M, 16, 6, S_PERM, self.o.get("rotB"))
            a(f"""
            s_and_b32 s{S_T0}, s{S_WAVE}, 3
            s_lshl_b32 s{S_B}, s{S_T0}, 12
            s_mul_i32 s{S_A}, s{S_T0}, {32*3072}
            s_lshl_b32 s{S_T0}, s{S_FT}, 7
            s_add_u32 s{S_A}, s{S_A}, s{S_T0}
            """)

        def w1_at(p):
            a(f"s_bfe_u32 s{S_T0}, s{S_PERM}, {(4 << 16) | (4 * p):#x}\ns_mul_i32 s{S_T0}, s{S_T0}, {128*3072}")
            a(f"s_add_u32 m0, s{S_B}, {p*16384}\ns_add_u32 s{S_T0}, s{S_T0}, s{S_A}")
            for i in range(4):
                a(f"buffer_load_dwordx4 v{VPF+i}, s[{R_W}:{R_W+3}], s{S_T0} offen offset:{i*1024} lds")
        early = [3, 4, 5, 6, 7][:self.o.get("early", 0)]

        def wq_touch():
            self.srd(R_M, P_WQKV, 640 * 3840)
            a(f"""
            v_lshlrev_b32 v6, 7, v1
            s_mul_i32 s{S_T0+1}, s{S_T0+1}, 2880
            s_add_u32 s{S_T0+1}, s{S_T0+1}, {256*3840}
            s_mov_b64 exec, 0xffffff
            buffer_load_dword v253, v6, s[{R_M}:{R_M+3}], s{S_T0+1} offen
            s_mov_b64 exec, -1
            """)

        self.srd(R_W, P_W1, 2048 * 3072)
        common_setup()
        a("v_mov_b32 v124, 0\nv_mov_b32 v125, 0\nv_mov_b32 v126, 0x3f803f80\ns_waitcnt vmcnt(4)")
        self.stamp(11, 44)
        if early:
            a(f"s_cmp_lt_u32 s{S_WAVE}, 4\ns_cbranch_scc1 L_B_noearly")
            for p in early:
                w1_at(p)
            a("L_B_noearly:")
        for c in range(20):
            a(f"v_dot2c_f32_bf16 v124, v{XR+c}, v126\nv_lshlrev_b32 v{XS+2*c}, 16, v{XR+c}")
            a(f"v_dot2c_f32_bf16 v125, v{XR+c}, v{GR+c}\nv_and_b32 v{XS+2*c+1}, 0xffff0000, v{XR+c}")
        a("s_nop 1")

        def reduce16(regs):
            for mode in ("quad_perm:[1,0,3,2]", "quad_perm:[2,3,0,1]", "row_half_mirror", "row_mirror"):
                for r in regs:
                    a(f"v_add_f32_dpp v{r}, v{r}, v{r} {mode} row_mask:0xf bank_mask:0xf")
                a("s_nop 1" if len(regs) == 1 else "s_nop 0")

        reduce16([124, 125])
        a(f"""
        v_mul_f32 v126, {f2u(-1.0/640):#x}, v124
        v_mul_f32 v127, {f2u(-1.0/640):#x}, v124
        v_mul_f32 v125, {f2u(-1.4426950408889634):#x}, v125
        v_mov_b32 v128, 0
        v_mov_b32 v129, 0
        v_mov_b32 v130, 0
        v_mov_b32 v131, 0
        v_mov_b32 v132, 0
        v_mov_b32 v133, 0
        v_mov_b32 v134, 0
        v_mov_b32 v135, 0
        v_exp_f32 v125, v125
        """)
        for c in range(20):
            a(f"v_pk_add_f32 {vr(XS+2*c,2)}, {vr(XS+2*c,2)}, v[126:127]")
        a("v_add_f32 v125, 1.0, v125\nv_rcp_f32 v125, v125")
        for c in range(20):
            t = 128 + 2 * (c & 3)
            a(f"v_pk_fma_f32 {vr(t,2)}, {vr(XS+2*c,2)}, {vr(XS+2*c,2)}, {vr(t,2)}")
        a("v_pk_add_f32 v[128:129], v[128:129], v[130:131]\nv_pk_add_f32 v[132:133], v[132:133], v[134:135]\nv_pk_add_f32 v[128:129], v[128:129], v[132:133]\nv_add_f32 v128, v128, v129\ns_nop 1")
        reduce16([128])
        a(f"v_mov_b32 v126, {f2u(1e-5):#x}\nv_fmac_f32 v126, {f2u(1.0/640):#x}, v128\nv_rsq_f32 v126, v126")
        a(f"""
        s_lshl_b32 s{S_T0}, s{S_WAVE}, 2
        v_add_u32 v2, s{S_T0}, v2
        v_mov_b32 v127, v126
        v_mul_u32_u24 v4, {LN_ST}, v2
        v_add_u32 v4, v4, v3
        v_lshlrev_b32 v2, 2, v2
        """)
        for c4 in range(5):
            for c in range(4 * c4, 4 * c4 + 4):
                a(f"v_pk_mul_f32 {vr(XS+2*c,2)}, {vr(XS+2*c,2)}, v[126:127]")
            for c in range(4 * c4, 4 * c4 + 4):
                a(f"v_cvt_pk_bf16_f32 v{XR+c}, v{XS+2*c}, v{XS+2*c+1}")
            a(f"ds_write_b128 v4, {vr(XR+4*c4,4)} offset:{LNBUF + c4*256}")
        a(f"ds_write_b32 v2, v125 offset:{LNG}")
        a(f"""
        v_and_b32 v12, 15, v1
        v_lshrrev_b32 v13, 4, v1
        v_lshrrev_b32 v15, 2, v12
        v_lshl_add_u32 v15, v13, 2, v15
        v_mul_u32_u24 v15, {LN_ST}, v15
        v_and_b32 v2, 3, v12
        v_lshl_add_u32 v15, v2, 3, v15
        s_mul_i32 s{S_T0}, s{S_WAVE}, 160
        v_add_u32 v15, s{S_T0}, v15
        v_lshlrev_b32 v14, 4, v1
        v_lshlrev_b32 v2, 2, v1
        s_mul_i32 s{S_T0}, s{S_WAVE}, {5*65536}
        s_lshl_b32 s{S_T0+1}, s{S_KST}, 10
        s_add_u32 s{S_T0}, s{S_T0}, s{S_T0+1}
        s_add_u32 s{S_T0}, s{S_T0}, {HT}
        s_waitcnt lgkmcnt(0)
        s_add_u32 s{S_TAG}, s{S_TAG}, {TAG_INC:#x}
        s_barrier
        """)
        self.stamp(12, 44)
        for i in range(5):
            a(f"ds_read_b64_tr_b16 {vr(44+4*i,2)}, v15 offset:{LNBUF + i*32}")
            a(f"ds_read_b64_tr_b16 {vr(46+4*i,2)}, v15 offset:{LNBUF + i*32+16*LN_ST}")
        a(f"ds_read_b32 v125, v2 offset:{LNG}")
        for i in range(5):
            a(f"s_waitcnt lgkmcnt({9-2*i})")
            a(f"buffer_store_dwordx4 {vr(44+4*i,4)}, v14, s[{R_WS}:{R_WS+3}], s{S_T0} offen sc1")
            if i < 4:
                a(f"s_add_u32 s{S_T0}, s{S_T0}, 65536")
        a(f"""
        s_cmp_lg_u32 s{S_WAVE}, 0
        s_cbranch_scc1 L_B_nog
        s_lshl_b32 s{S_T0}, s{S_KST}, 7
        s_add_u32 s{S_T0}, s{S_T0}, {G_OFF}
        s_waitcnt lgkmcnt(0)
        s_mov_b32 exec_hi, 0
        buffer_store_dword v125, v2, s[{R_WS}:{R_WS+3}], s{S_T0} offen sc1
        s_mov_b32 exec_hi, -1
        L_B_nog:
        s_waitcnt vmcnt(0) lgkmcnt(0)
        s_barrier
        s_cmp_lg_u32 s{S_WAVE}, 0
        s_cbranch_scc1 L_B_nofl
        s_mul_i32 s{S_T0}, s{S_KST}, {FS}
        s_add_u32 s{S_T0}, s{S_T0}, {F_LN}
        """)
        self.flag_store(S_T0, 12)
        self.stamp(1, 12)
        a("L_B_nofl:")
        if self.o.get("woLN"):
            self.srd(R_M, P_WO, 640 * 1280)
            a(f"""
            s_lshl_b32 s{S_T0+1}, s{S_KST}, 3
            s_add_u32 s{S_T0+1}, s{S_T0+1}, s{S_WAVE}
            s_mul_i32 s{S_T0+1}, s{S_T0+1}, 1664
            v_lshlrev_b32 v6, 7, v1
            s_mov_b64 exec, 0x1fff
            buffer_load_dword v253, v6, s[{R_M}:{R_M+3}], s{S_T0+1} offen
            s_mov_b64 exec, -1
            """)
        if self.o.get("wq") == 1:
            a(f"s_lshl_b32 s{S_T0+1}, s{S_KST}, 3\ns_add_u32 s{S_T0+1}, s{S_T0+1}, s{S_WAVE}")
            wq_touch()
        if self.o.get("wq") == 3:
            a(f"""
            s_lshl_b32 s{S_T0}, s{S_J}, 3
            s_add_u32 s{S_T0}, s{S_T0}, s{S_WAVE}
            s_add_u32 s{S_T0}, s{S_T0}, 128
            v_lshrrev_b32 v6, 3, v1
            v_and_b32 v7, 7, v1
            v_min_u32 v7, 5, v7
            v_mul_u32_u24 v6, 3072, v6
            v_lshl_add_u32 v7, v7, 7, v6
            s_mul_i32 s{S_T0}, s{S_T0}, {8*3072}
            s_mul_i32 s{S_T0+2}, s{S_XCD}, 768
            s_add_u32 s{S_T0}, s{S_T0}, s{S_T0+2}
            buffer_load_dword v253, v7, s[{R_W}:{R_W+3}], s{S_T0} offen {self.nt('ntw1')}
            """)
        a("s_branch L_B_join")
        a("L_B_pfrole:")
        self.srd(R_W, P_W1, 2048 * 3072)
        if self.o.get("pfdelay"):
            common_setup()
            a("s_waitcnt vmcnt(0)")
        wq = self.o.get("wq", 0)
        xh = self.o.get("xhelp", 0)
        if xh:
            self.srd(R_M, P_GATE, 1280)
            a(f"""
            s_cmp_ge_u32 s{S_WAVE}, {xh}
            s_cbranch_scc1 L_B_noxh
            s_lshl_b32 s{S_T0}, s{S_XCD}, 4
            s_add_u32 s{S_T0}, s{S_T0}, s{S_J}
            s_sub_u32 s{S_T0}, s{S_T0}, 16
            s_mul_i32 s{S_T0}, s{S_T0}, {32*1280}
            s_lshl_b32 s{S_T0+1}, s{S_WAVE}, 8
            s_sub_u32 s{S_T0}, s{S_T0}, s{S_T0+1}
            s_add_u32 s{S_T0}, s{S_T0}, 1024
            v_lshrrev_b32 v6, 1, v1
            v_and_b32 v7, 1, v1
            v_mul_u32_u24 v6, 1280, v6
            v_lshl_add_u32 v6, v7, 7, v6
            buffer_load_dword v253, v6, s[{R_X}:{R_X+3}], s{S_T0} offen
            v_lshlrev_b32 v6, 7, v1
            L_B_noxh:
            s_cmp_lg_u32 s{S_WAVE}, 7
            s_cbranch_scc1 L_B_noxg
            v_lshlrev_b32 v6, 7, v1
            buffer_load_dword v253, v6, s[{R_M}:{R_M+3}], 0 offen
            L_B_noxg:
            """)
        a(f"""
        s_sub_u32 s{S_T0}, s{S_J}, 16
        s_lshl_b32 s{S_T0}, s{S_T0}, 3
        s_add_u32 s{S_T0}, s{S_T0}, s{S_WAVE}
        s_lshl_b32 s{S_T0+1}, s{S_XCD}, 7
        s_add_u32 s{S_T0+1}, s{S_T0+1}, s{S_T0}
        v_lshrrev_b32 v6, 3, v1
        v_and_b32 v7, 7, v1
        v_min_u32 v7, 5, v7
        v_mul_u32_u24 v6, 3072, v6
        v_lshl_add_u32 v7, v7, 7, v6
        s_mul_i32 s{S_T0}, s{S_T0}, {8*3072}
        s_mul_i32 s{S_T0+2}, s{S_XCD}, 768
        s_add_u32 s{S_T0}, s{S_T0}, s{S_T0+2}
        buffer_load_dword v253, v7, s[{R_W}:{R_W+3}], s{S_T0} offen {self.nt('ntw1')}
        """)
        if wq in (0, 3):
            wq_touch()
        if wq != 3:
            a(f"""
            s_add_u32 s{S_T0}, s{S_T0}, {1024*3072}
            buffer_load_dword v253, v7, s[{R_W}:{R_W+3}], s{S_T0} offen {self.nt('ntw1b')}
            """)
        if self.o.get("promote"):
            k_ = 1 if wq != 3 else 0
            a(f"""
            s_sub_u32 s{S_T0+1}, s{S_T0}, {1024*3072*k_}
            s_waitcnt vmcnt({k_ + (1 if wq in (0, 3) else 0)})
            buffer_load_dword v253, v7, s[{R_W}:{R_W+3}], s{S_T0+1} offen
            """)
            if self.o.get("ntw1b"):
                a(f"s_waitcnt vmcnt(1)\nbuffer_load_dword v253, v7, s[{R_W}:{R_W+3}], s{S_T0} offen")
        if not self.o.get("pfdelay"):
            common_setup()
        self.stamp(15, 12)
        a(f"s_waitcnt lgkmcnt(0)\ns_add_u32 s{S_TAG}, s{S_TAG}, {TAG_INC:#x}")
        a(f"s_cmp_ge_u32 s{S_J}, 30\ns_cbranch_scc1 L_helper")
        N1 = self.o.get("n1", 8)
        NREG = self.o.get("nreg", 0)
        assert NREG == 0 or N1 == 8

        def w1_issue():
            t = self.perm_next(S_T0, S_PERM, 128 * 3072)
            t += f"s_mov_b32 m0, s{S_B}\ns_add_u32 s{S_T0}, s{S_T0}, s{S_A}\n"
            for i in range(4):
                t += f"buffer_load_dwordx4 v{VPF+i}, s[{R_W}:{R_W+3}], s{S_T0} offen offset:{i*1024} lds\n"
            t += f"s_add_u32 s{S_B}, s{S_B}, 16384\n"
            return t
        assert N1 == 8 and NREG == 0
        a(f"L_B_join:\ns_cmp_lt_u32 s{S_WAVE}, 4\ns_cbranch_scc1 L_B_comp0")
        for p in range(8):
            if early and p == early[0]:
                a(f"s_cmp_lt_u32 s{S_J}, 16\ns_cbranch_scc1 L_B_skipearly")
            w1_at(p)
            if early and p == early[-1]:
                a("L_B_skipearly:")
        a(f"s_mov_b32 s{S_PERM}, s{S_PERM+1}")
        a("s_branch L_B_aux\nL_B_comp0:")
        BF = 16
        GX = 131072
        split = self.o.get("gsplit")

        def gelu_setup(dblk_off):
            c = 0.7978845608028654
            k0 = -2.0 * c * 1.4426950408889634
            k1 = k0 * 0.044715
            a(f"""
            s_mov_b32 s{S_K0}, {f2u(k1):#x}
            s_mov_b32 s{S_K0+1}, {f2u(k1):#x}
            v_mov_b32 v44, {f2u(k0):#x}
            v_mov_b32 v45, {f2u(k0):#x}
            v_mov_b32 v46, 1.0
            v_mov_b32 v47, 1.0
            s_lshl_b32 s{S_K0+2}, s{S_DT}, 3
            s_lshl_b32 s{S_T0+1}, s{S_WAVE}, 1
            s_add_u32 s{S_K0+2}, s{S_K0+2}, s{S_T0+1}
            s_add_u32 s{S_K0+2}, s{S_K0+2}, {dblk_off & 0xffffffff:#x}
            s_mul_i32 s{S_K0+2}, s{S_K0+2}, {UW_ST}
            s_lshl_b32 s{S_T0+1}, s{S_FT}, 11
            s_add_u32 s{S_K0+2}, s{S_K0+2}, s{S_T0+1}
            s_add_u32 s{S_K0+2}, s{S_K0+2}, {UW}
            """)
            for b in range(4):
                a(f"v_lshlrev_b32 v{BF+4*b}, 16, v{B1R+2*b}\nv_and_b32 v{BF+4*b+1}, 0xffff0000, v{B1R+2*b}")
                a(f"v_lshlrev_b32 v{BF+4*b+2}, 16, v{B1R+2*b+1}\nv_and_b32 v{BF+4*b+3}, 0xffff0000, v{B1R+2*b+1}")

        def gelu_block(base, vl):
            for p in range(2):
                r = base + 8 * p
                T = 48
                for q in range(4):
                    a(f"v_pk_mul_f32 {vr(T+2*q,2)}, {vr(r+2*q,2)}, {vr(r+2*q,2)}")
                for q in range(4):
                    a(f"v_pk_fma_f32 {vr(T+2*q,2)}, {vr(T+2*q,2)}, s[{S_K0}:{S_K0+1}], v[44:45]")
                for q in range(4):
                    a(f"v_pk_mul_f32 {vr(T+2*q,2)}, {vr(T+2*q,2)}, {vr(r+2*q,2)}")
                for q in range(8):
                    a(f"v_exp_f32 v{T+q}, v{T+q}")
                for q in range(4):
                    a(f"v_pk_add_f32 {vr(T+2*q,2)}, {vr(T+2*q,2)}, v[46:47]")
                for q in range(8):
                    a(f"v_rcp_f32 v{T+q}, v{T+q}")
                for q in range(4):
                    a(f"v_pk_mul_f32 {vr(r+2*q,2)}, {vr(r+2*q,2)}, {vr(T+2*q,2)}")
                o = 56 + 4 * (p & 1)
                for q in range(4):
                    a(f"v_cvt_pk_bf16_f32 v{o+q}, v{r+2*q}, v{r+2*q+1}")
                a(f"buffer_store_dwordx4 {vr(o,4)}, v{vl}, s[{R_WS}:{R_WS+3}], s{S_K0+2} offen offset:{p*1024} sc1")

        PF, WF, ACC, VT, VL = 64, 128, 160, 8, 12
        a(f"""
        s_lshl_b32 s{S_T0}, s{S_DT}, 3
        s_lshl_b32 s{S_T0+1}, s{S_WAVE}, 1
        s_add_u32 s{S_D}, s{S_T0}, s{S_T0+1}
        s_lshl_b32 s{S_T0}, s{S_D}, 16
        s_add_u32 s{S_T0}, s{S_T0}, {HT}
        """)
        self.srd(R_P, P_WS, 65536, off_s=S_T0)
        a(f"s_add_u32 s{S_T0}, s{S_T0}, 65536")
        self.srd(R_M, P_WS, 65536, off_s=S_T0)
        a(f"v_lshlrev_b32 v{VL}, 4, v1\ns_mov_b32 s{S_B}, 0")
        a(self.perm_next(S_C, S_PERM, 4096))
        self.tr_addr(VT)
        a("s_waitcnt vmcnt(0)")
        gelu_setup(0)
        for r in range(32):
            a(f"v_mov_b32 v{ACC+r}, v{BF + (r & 15)}")
        a(f"s_lshl_b32 s{S_T0}, s{S_WAVE}, 12\ns_add_u32 s{S_T0}, s{S_T0}, {GX}\nv_add_u32 v13, s{S_T0}, v{VL}")
        a(f"s_cmp_lg_u32 s{S_WAVE}, 0\ns_cbranch_scc1 L_B_l3")
        prog = self.o.get("prog", 0)
        if prog:
            assert prog >= 4 * (4 + self.o.get("rotB", 0))
            a(f"v_min_u32 v2, {prog-1}, v1\nv_mul_u32_u24 v2, {FS}, v2\nv_add_u32 v2, {F_LN}, v2")
        else:
            a(f"v_mul_u32_u24 v2, {FS}, v1\nv_add_u32 v2, {F_LN}, v2")
        if not self.o.get("x_nopoll"):
            self.poll([2], 4)
        self.stamp(2, 4)
        a("L_B_l3:\ns_barrier")
        RP = (R_P, R_M)

        def pload(u, ks):
            if self.o.get("x_noload"):
                return "s_nop 0"
            sc = "" if self.o.get("x_nosc1") else "sc1"
            so = "0" if self.o.get("x_same") else f"s{S_C}"
            return "\n".join(f"buffer_load_dwordx4 {vr(PF+32*(u%2)+8*ks+4*d,4)}, v{VL}, s[{RP[d]}:{RP[d]+3}], {so} offen offset:{ks*1024} {sc}" for d in range(2))

        for t in range(2):
            for ks in range(4):
                a(pload(t, ks))
            a(self.perm_next(S_C, S_PERM, 4096))
            if t == 0:
                first_bar_here = len(a.L)

        def mk(u, bar, virtual=False, head=None, tail=None):
            uses = []
            for ks in range(4):
                for b in range(4):
                    g = ks * 4 + b
                    wb = WF + 4 * (g % 8)
                    off = u * 16384 + ks * 4096
                    reads = [(f"w{g}a", f"ds_read_b64_tr_b16 {vr(wb,2)}, v{VT+b} offset:{off}"),
                             (f"w{g}b", f"ds_read_b64_tr_b16 {vr(wb+2,2)}, v{VT+b} offset:{off+2048}")]
                    mf = []
                    for dd in range(2):
                        acc = vr(ACC + 16 * dd + 4 * b, 4)
                        mf.append(f"v_mfma_f32_16x16x32_bf16 {acc}, {vr(wb,4)}, {vr(PF+32*(u%2)+8*ks+4*dd,4)}, {acc}")
                    if self.o.get("x32"):
                        acc = vr(ACC + 16 * (b & 1), 16)
                        mf = [f"v_mfma_f32_32x32x16_bf16 {acc}, {vr(wb,4)}, {vr(PF+32*(u%2)+8*ks+4*(b>>1),4)}, {acc}"]
                    d = dict(reads=reads, need=[f"w{g}b"], mf=mf)
                    if b == 0:
                        d["vm"] = 14
                    if b == 3:
                        d["after"] = pload(u, ks)
                        if ks == 3:
                            d["after"] += "\n" + self.perm_next(S_C, S_PERM, 4096)
                            if u >= 1:
                                d["after"] += f"s_cmp_ge_u32 s{S_B}, 3\ns_cselect_b32 s{S_C}, 0x10000, s{S_C}"
                    uses.append(d)
            return dict(uses=uses, bar=bar, virtual=virtual, head=head, tail=tail)

        xo = "s_barrier\n" + "\n".join(f"v_xor_b32 v{VT+b}, 0x10000, v{VT+b}" for b in range(4))
        tail = f"s_add_u32 s{S_B}, s{S_B}, 1\ns_cmp_lt_u32 s{S_B}, 4\ns_cbranch_scc1 L_B_loop"
        st = [mk(0, "", head="L_B_loop:"), mk(1, "s_barrier"), mk(2, "s_barrier"), mk(3, "s_barrier", tail=tail), mk(0, xo, virtual=True)]
        a.L.insert(first_bar_here, "    s_barrier")
        nd = self.o.get("nodrain")
        LB = self.o.get("LB", 7)
        self.pipeline(st, LB, (16 - LB) if nd else 13, drain=not nd, wait_every=self.o.get('we', 2))
        if nd and not self.o.get("noEnd"):
            a("s_waitcnt lgkmcnt(0)\ns_barrier")
        self.stamp(3, 44)
        if split:
            a("s_nop 5")
            for i in range(4):
                a(f"ds_write_b128 v13, {vr(ACC+16+4*i,4)} offset:{i*1024}")
            a("s_waitcnt lgkmcnt(0)\ns_barrier")
            gelu_block(ACC, VL)
        else:
            a("s_waitcnt lgkmcnt(0)\ns_nop 4")
            gelu_block(ACC, VL)
            a(f"s_add_u32 s{S_K0+2}, s{S_K0+2}, {UW_ST}")
            gelu_block(ACC + 16, VL)
        self.stamp(10, 44)
        a("s_waitcnt vmcnt(0)\ns_barrier\ns_branch L_F_comp")

        a("L_B_aux:\ns_barrier")
        if split:
            assert NREG == 0
        assert NREG == 0
        ops = [(iv, 4) for iv in range(N1)]
        todo = [(iv, i) for iv in range(N1, 16) for i in range(4)]
        quota = self.o.get("quota", 12) / 3.0
        credit = 0.0
        eB = self.o.get("eB", 17)
        nB1 = self.o.get("nB1", 0)
        per = self.o.get("perB", 2)
        done_w2 = 0
        for tb in range(17):
            if tb < 16 and tb <= eB:
                assert all(iv != tb for iv, _ in todo), (tb, todo)
                last = max(i for i, (iv, _) in enumerate(ops) if iv == tb)
                n = sum(c for _, c in ops[last + 1:])
                if tb < 8:
                    n -= 4 * len(early)
                a(f"s_waitcnt vmcnt({max(0, min(n, 63)) if tb < eB else 0})")
            a("s_barrier")
            if tb < 16:
                self.stamp(16 + tb, 44)
            if tb == 0 and self.o.get("prog"):
                a(f"s_cmp_lg_u32 s{S_WAVE}, 7\ns_cbranch_scc1 L_B_nop1\nv_mul_u32_u24 v2, {FS}, v1\nv_add_u32 v2, {F_LN}, v2")
                a(f"buffer_load_dword v3, v2, s[{R_WS}:{R_WS+3}], 0 offen sc1\nL_B_nop1:")
            if tb == 1 and self.o.get("prog"):
                a(f"s_cmp_lg_u32 s{S_WAVE}, 7\ns_cbranch_scc1 L_B_nop2")
                a(f"s_waitcnt vmcnt(0)\nv_cmp_ne_u32 vcc, s{S_TAG}, v3\ns_nop 1\ns_cmp_eq_u64 vcc, 0\ns_cbranch_scc1 L_B_nop2")
                self.poll([2], 4)
                a("L_B_nop2:")
            if tb == self.o.get("ctB", 10):
                self.code_touch([("L_F_comp", 0), ("L_F_comp", 1)])
            if tb == 11 and split:
                gelu_setup(-7)
                a(f"v_lshlrev_b32 v12, 4, v1\ns_lshl_b32 s{S_T0}, s{S_WAVE}, 12\ns_add_u32 s{S_T0}, s{S_T0}, {GX - 4*4096}\nv_add_u32 v13, s{S_T0}, v12")
            if tb == eB:
                assert not todo
                self.w2_setup()
            if tb >= eB and done_w2 < nB1:
                k2 = min(per if tb < 16 else 8, nB1 - done_w2, tb - 9 - done_w2)
                sk = self.if_wave56()
                self.w2_prefill(k2)
                a(f"{sk}:")
                done_w2 += k2
            if todo and (todo[0][0] < 8 or tb >= 2):
                credit += 8 if todo[0][0] < 8 else quota
            setm0 = False
            while todo and credit >= 0.999 and (todo[0][0] < 8 or todo[0][0] <= tb + 6):
                iv, i = todo.pop(0)
                if i == 0:
                    if iv == 8:
                        a(f"s_and_b32 s{S_B}, s{S_B}, 0x1ffff")
                    a(self.perm_next(S_C, S_PERM, 128 * 3072) + f"s_add_u32 s{S_C}, s{S_C}, s{S_A}")
                if i == 0 or not setm0:
                    a(f"s_mov_b32 m0, s{S_B}\ns_nop 0")
                    setm0 = True
                a(f"buffer_load_dwordx4 v{VPF+i}, s[{R_W}:{R_W+3}], s{S_C} offen offset:{i*1024} lds")
                if i == 3:
                    a(f"s_add_u32 s{S_B}, s{S_B}, 16384")
                ops.append((iv, 1))
                credit -= 1
            if todo and todo[0][0] >= 8:
                credit = min(credit, quota)
        nxt = 16
        assert nxt == 16
        if self.o.get("noEnd"):
            assert done_w2 == nB1
        elif self.o.get("nodrain"):
            a("s_barrier")
        if eB == 17:
            self.w2_setup()
        if split:
            a("s_barrier")
            for i in range(4):
                a(f"ds_read_b128 {vr(64+4*i,4)}, v13 offset:{i*1024}")
            a("s_waitcnt lgkmcnt(0)")
            gelu_block(64, 12)
            a("s_waitcnt vmcnt(0)")
        skip = self.if_wave56()
        self.w2_prefill(nB1 - done_w2)
        a("s_barrier\ns_nop 7\ns_nop 7")
        self.w2_prefill(8 - nB1)
        a("s_branch L_F_loader")
        a(f"{skip}:\ns_barrier")
        a(f"s_cmp_lg_u32 s{S_WAVE}, 7\ns_cbranch_scc1 L_F_u4")
        a(f"s_mul_i32 s{S_T0}, s{S_DT}, 24\ns_add_u32 s{S_T0}, s{S_T0}, s{S_FT}\ns_mul_i32 s{S_T0}, s{S_T0}, {FS}\ns_add_u32 s{S_T0}, s{S_T0}, {F_U}")
        self.flag_store(S_T0, 12)
        self.stamp(4, 12)
        a("s_branch L_F_poller")

    def w2_l2_prefetch(self, VT):
        a = self.a
        self.srd(R_W2, P_W2, 1536 * 4096)
        a(f"""
        v_lshrrev_b32 v{VT}, 3, v1
        v_and_b32 v{VT+1}, 7, v1
        v_lshlrev_b32 v{VT+1}, 7, v{VT+1}
        v_lshl_add_u32 v{VT}, v{VT}, 12, v{VT+1}
        s_mul_i32 s{S_T0}, s{S_J}, 48
        s_and_b32 s{S_T0+1}, s{S_WAVE}, 3
        s_mul_i32 s{S_T0+1}, s{S_T0+1}, 12
        s_add_u32 s{S_T0}, s{S_T0}, s{S_T0+1}
        s_lshl_b32 s{S_T0}, s{S_T0}, 12
        s_lshr_b32 s{S_T0+1}, s{S_XCD}, 1
        s_lshl_b32 s{S_T0+1}, s{S_T0+1}, 10
        s_add_u32 s{S_T0}, s{S_T0}, s{S_T0+1}
        buffer_load_dword v{VT+2}, v{VT}, s[{R_W2}:{R_W2+3}], s{S_T0} offen
        s_add_u32 s{S_T0}, s{S_T0}, {8*4096}
        s_mov_b32 exec_hi, 0
        buffer_load_dword v{VT+3}, v{VT}, s[{R_W2}:{R_W2+3}], s{S_T0} offen
        s_mov_b64 exec, -1
        """)

    def tr_addr(self, VT):
        a = self.a
        a(f"""
        v_and_b32 v{VT+1}, 15, v1
        v_lshrrev_b32 v{VT+2}, 4, v1
        v_lshrrev_b32 v{VT+3}, 2, v{VT+1}
        v_lshl_add_u32 v{VT+3}, v{VT+2}, 2, v{VT+3}
        v_bfe_u32 v{VT+2}, v{VT+3}, 1, 2
        v_lshlrev_b32 v{VT+3}, 7, v{VT+3}
        v_lshl_add_u32 v{VT+3}, v{VT+2}, 5, v{VT+3}
        v_and_b32 v{VT+1}, 3, v{VT+1}
        v_lshl_add_u32 v{VT}, v{VT+1}, 3, v{VT+3}
        v_xor_b32 v{VT+1}, 32, v{VT}
        v_xor_b32 v{VT+2}, 64, v{VT}
        v_xor_b32 v{VT+3}, 96, v{VT}
        """)

    def helper(self):
        a = self.a
        a("L_helper:")
        a(f"""
        s_lshl_b32 s{S_D}, s{S_XCD}, 1
        s_add_u32 s{S_D}, s{S_D}, s{S_J}
        s_sub_u32 s{S_D}, s{S_D}, 30
        """)
        self.srd(R_W, P_WO, 640 * 1280)
        for p in range(5):
            a(f"""
            v_add_u32 v12, {p*64}, v1
            v_mul_u32_u24 v13, 205, v12
            v_lshrrev_b32 v13, 11, v13
            v_mul_u32_u24 v14, 10, v13
            v_sub_u32 v14, v12, v14
            v_lshlrev_b32 v14, 4, v14
            v_mul_u32_u24 v13, 1280, v13
            v_add_u32 v{16+p}, v13, v14
            """)
            if p in (1, 2, 3):
                a(f"v_subrev_u32 v{16+p}, {p*1024}, v{16+p}")
        a(f"""
        s_mov_b32 s{S_C}, s{S_WAVE}
        L_H_ld:
        s_mul_i32 s{S_A}, s{S_C}, {32*1280}
        s_mul_i32 s{S_T0}, s{S_D}, 160
        s_add_u32 s{S_A}, s{S_A}, s{S_T0}
        s_mul_i32 s{S_B}, s{S_C}, 5120
        s_mov_b32 m0, s{S_B}
        s_nop 0
        """)
        for p in range(4):
            a(f"buffer_load_dwordx4 v{16+p}, s[{R_W}:{R_W+3}], s{S_A} offen offset:{p*1024} lds")
        a(f"s_add_u32 m0, s{S_B}, 4096\ns_nop 0\nbuffer_load_dwordx4 v20, s[{R_W}:{R_W+3}], s{S_A} offen lds")
        a(f"""
        s_add_u32 s{S_C}, s{S_C}, 8
        s_cmp_lt_u32 s{S_C}, 20
        s_cbranch_scc1 L_H_ld
        v_and_b32 v12, 15, v1
        v_lshrrev_b32 v13, 4, v1
        v_lshrrev_b32 v14, 2, v12
        v_lshl_add_u32 v14, v13, 2, v14
        v_mul_u32_u24 v14, 160, v14
        v_and_b32 v12, 3, v12
        v_lshl_add_u32 v14, v12, 3, v14
        v_lshlrev_b32 v15, 4, v1
        s_waitcnt vmcnt(0)
        s_barrier
        s_mov_b32 s{S_C}, s{S_WAVE}
        L_H_tr:
        s_lshr_b32 s{S_T0}, s{S_C}, 1
        s_mul_i32 s{S_T0}, s{S_T0}, 5
        s_and_b32 s{S_T0+1}, s{S_C}, 1
        s_lshl_b32 s{S_T0+1}, s{S_T0+1}, 1
        s_add_u32 s{S_T0}, s{S_T0}, s{S_T0+1}
        s_add_u32 s{S_T0+1}, s{S_T0}, 1
        s_mul_i32 s{S_T0+2}, s{S_C}, 10
        s_sub_u32 s{S_T0+2}, s{S_T0+2}, 156
        s_add_u32 s{S_T0+3}, s{S_T0+2}, 5
        s_cmp_lt_u32 s{S_C}, 16
        s_cselect_b32 s{S_T0}, s{S_T0}, s{S_T0+2}
        s_cselect_b32 s{S_T0+1}, s{S_T0+1}, s{S_T0+3}
        s_mul_i32 s{S_T0}, s{S_T0}, 2560
        s_mul_i32 s{S_T0+1}, s{S_T0+1}, 2560
        v_add_u32 v12, s{S_T0}, v14
        v_add_u32 v13, s{S_T0+1}, v14
        """)
        for b in range(5):
            a(f"ds_read_b64_tr_b16 {vr(24+4*b,2)}, v12 offset:{b*32}\nds_read_b64_tr_b16 {vr(26+4*b,2)}, v13 offset:{b*32}")
        a(f"""
        s_mul_i32 s{S_T0}, s{S_D}, {5*UW_ST}
        s_lshl_b32 s{S_T0+1}, s{S_C}, 10
        s_add_u32 s{S_T0}, s{S_T0}, s{S_T0+1}
        s_add_u32 s{S_T0}, s{S_T0}, {UW + 49152}
        """)
        for b in range(5):
            a(f"s_waitcnt lgkmcnt({8-2*b})")
            a(f"buffer_store_dwordx4 {vr(24+4*b,4)}, v15, s[{R_WS}:{R_WS+3}], s{S_T0} offen sc1")
            if b < 4:
                a(f"s_add_u32 s{S_T0}, s{S_T0}, {UW_ST}")
        a(f"""
        s_add_u32 s{S_C}, s{S_C}, 8
        s_cmp_lt_u32 s{S_C}, 20
        s_cbranch_scc1 L_H_tr
        s_waitcnt vmcnt(0)
        s_barrier
        """)
        if self.o.get("hW2"):
            a(f"s_cmp_lg_u32 s{S_WAVE}, 7\ns_cbranch_scc1 L_H_nofl")
            a(f"s_mul_i32 s{S_T0}, s{S_D}, {FS}\ns_add_u32 s{S_T0}, s{S_T0}, {F_WOT}")
            self.flag_store(S_T0, 12)
            self.stamp(14, 12)
            a(f"""
            L_H_nofl:
            v_lshlrev_b32 v12, 7, v1
            s_lshl_b32 s{S_T0}, s{S_D}, 3
            s_add_u32 s{S_T0}, s{S_T0}, s{S_WAVE}
            s_lshl_b32 s{S_T0}, s{S_T0}, 13
            s_add_u32 s{S_T0}, s{S_T0}, {1024*4096}
            """)
            for k in range(4):
                a(f"buffer_load_dword v253, v12, s[{R_W2}:{R_W2+3}], s{S_T0} offen\ns_add_u32 s{S_T0}, s{S_T0}, {128*4096}")
        skip = self.if_wave56()
        self.w2_setup()
        self.w2_prefill(8)
        a(f"s_branch L_F_loader\n{skip}:")
        a(f"s_cmp_lt_u32 s{S_WAVE}, 4\ns_cbranch_scc1 L_F_comp\ns_cmp_lg_u32 s{S_WAVE}, 7\ns_cbranch_scc1 L_F_u4")
        if not self.o.get("hW2"):
            a(f"s_mul_i32 s{S_T0}, s{S_D}, {FS}\ns_add_u32 s{S_T0}, s{S_T0}, {F_WOT}")
            self.flag_store(S_T0, 12)
            self.stamp(14, 12)
        a("s_branch L_F_poller")

    F_WOT_REG = 172

    def uw_srd(self):
        a = self.a
        a(f"""
        s_mul_i32 s{S_T0}, s{S_DTILE}, 5
        s_add_u32 s{S_D}, s{S_T0}, s{S_WAVE}
        s_mul_i32 s{S_T0}, s{S_D}, {UW_ST}
        s_add_u32 s{S_T0}, s{S_T0}, {UW}
        """)
        self.srd(R_P, P_WS, UW_ST, off_s=S_T0)

    def wot_preload(self, VL):
        a = self.a
        for k in range(20):
            if k % 4 == 0:
                a(f"s_mov_b32 s{S_C}, {49152 + k*1024}")
            a(f"buffer_load_dwordx4 {vr(self.F_WOT_REG+4*k,4)}, v{VL}, s[{R_P}:{R_P+3}], s{S_C} offen offset:{(k%4)*1024} sc1")

    F_V = (4, 8, 12, 13, 47, 48, 52, 56, 168)
    F_SB = 72

    def f_setup(self):
        a = self.a
        VT, VT2, VL, VU4, VGA, VGH, VG8, GV, BV = self.F_V
        SB = self.F_SB
        self.srd(R_M, P_B2, 4096)
        self.srd(R_OUT, P_OUT, 2048 * 1280)
        self.tr_addr(VT2)
        a(f"""
        s_mul_i32 s{S_D}, s{S_DTILE}, 5
        s_add_u32 s{S_D}, s{S_D}, s{S_WAVE}
        v_mov_b32 v42, v{VT2}
        v_lshlrev_b32 v{VL}, 4, v1
        v_add_u32 v{VU4}, 0x20000, v{VL}
        v_and_b32 v{VGA}, 15, v1
        v_lshlrev_b32 v43, 1, v{VGA}
        v_lshlrev_b32 v{VGA}, 2, v{VGA}
        v_lshlrev_b32 v{VG8+3}, 3, v1
        """)
        for b in range(4):
            a(f"""
            s_add_u32 s{SB+b}, s{S_WAVE}, {b}
            s_and_b32 s{SB+b}, s{SB+b}, 3
            s_lshl_b32 s{S_T0}, s{SB+b}, 5
            v_xor_b32 v{VT+b}, s{S_T0}, v42
            s_lshl_b32 s{S_T0+1}, s{S_ST}, 7
            s_add_u32 s{S_T0}, s{S_T0}, s{S_T0+1}
            buffer_load_ushort v{BV+b}, v43, s[{R_M}:{R_M+3}], s{S_T0} offen
            v_add_u32 v{VT2+b}, 0x10000, v{VT+b}
            s_lshl_b32 s{S_T0}, s{SB+b}, 12
            v_add_u32 v{VG8+b}, s{S_T0}, v{VG8+3}
            s_add_u32 s{S_T0}, s{S_T0}, 0x10000
            v_add_u32 v{VGH+b}, s{S_T0}, v{VL}
            """)
        a(f"s_lshl_b32 s{S_A}, s{S_ST}, 8\ns_add_u32 s{S_A}, s{S_A}, {G_OFF}")
        self.f_perm()

    def f0_barrier(self):
        lab = self.a.label("f0")
        self.a(f"s_cmp_eq_u32 s{S_FROMA}, 1\ns_cbranch_scc1 {lab}\ns_barrier\n{lab}:")

    def final(self):
        a = self.a
        a("L_F_comp:")
        if self.stop == "phase1":
            a("s_branch L_end")
        PF, WF, ACC, ACC4, U4, WOT = 64, 112, 144, 160, 36, 172
        NPF = 3
        pre = True
        VT, VT2, VL, VU4, VGA, VGH, VG8, GV, BV = self.F_V
        SB = self.F_SB
        a(f"s_cmp_eq_u32 s{S_FROMA}, 1\ns_cbranch_scc1 L_F_nowot")
        self.uw_srd()
        self.f_setup()
        nstream = 12 if pre else 17

        def next_sc(step):
            if step < 12:
                return self.perm_next(S_C, S_PERM, 4096)
            return f"s_mov_b32 s{S_C}, {step*4096}\n"
        a("s_barrier")
        self.wot_preload(VL)
        a("L_F_nowot:")
        a(next_sc(0))
        a("s_barrier")
        S_C1, S_C2 = S_K0, S_K0 + 1

        def uload(t, ks, so):
            return f"buffer_load_dwordx4 {vr(PF+16*(t % NPF)+4*ks,4)}, v{VL}, s[{R_P}:{R_P+3}], s{so} offen offset:{ks*1024} sc1 ;@u{t}_{ks}"
        vis0 = []
        for ks in range(4):
            a(uload(0, ks, S_C))
            vis0.append(f"u0_{ks}")
        a(self.perm_next(S_C1, S_PERM, 4096) + self.perm_next(S_C2, S_PERM, 4096) + next_sc(3))
        a("s_barrier")

        ACC2 = 16
        blocks = [(ACC + 4 * b, b) for b in range(4)] + [(ACC4, 0)]
        fill = []
        for b in range(4):
            fill += [f"v_lshlrev_b32 v{BV+b}, 16, v{BV+b}", f"v_sub_f32 v{GV+b}, 1.0, v{GV+b}"]
        for r0, b in blocks:
            for k in range(4):
                fill.append(f"v_add_f32 v{r0+k}, v{BV+b}, v{r0+k}")

        stages = []
        for t in range(17):
            slot = t % 8
            hi = slot >= 4
            uses = []
            for ks in range(4):
                for b in range(4):
                    g = ks * 4 + b
                    wb = WF + 4 * (g % 8)
                    reads = []
                    u4 = U4 + 4 * (ks & 1)
                    if b == 0:
                        reads.append((f"u{ks}", f"ds_read_b128 {vr(u4,4)}, v{VU4} offset:{slot*4096 + ks*1024}"))
                    if t < 12:
                        off = (slot & 3) * 16384 + ks * 4096
                        va = (VT2 if hi else VT) + b
                        reads += [(f"w{g}a", f"ds_read_b64_tr_b16 {vr(wb,2)}, v{va} offset:{off}"),
                                  (f"w{g}b", f"ds_read_b64_tr_b16 {vr(wb+2,2)}, v{va} offset:{off+2048}")]
                    elif t < 16:
                        assert hi
                        off = (slot & 3) * 16384 + ks * 1024
                        reads += [(f"w{g}b", f"ds_read_b128 {vr(wb,4)}, v{VGH+b} offset:{off}")]
                    else:
                        off = (slot & 3) * 16384 + ks * 1024
                        assert not hi
                        reads += [(f"w{g}a", f"ds_read_b64 {vr(wb,2)}, v{VG8+b} offset:{off}"),
                                  (f"w{g}b", f"ds_read_b64 {vr(wb+2,2)}, v{VG8+b} offset:{off+512}")]
                    acc = vr((ACC if t < 12 else ACC2) + 4 * b, 4)
                    a4 = vr(ACC4 if t < 12 else ACC2 + 16, 4)
                    ring = t < nstream
                    pf = vr(PF + 16 * (t % NPF) + 4 * ks, 4) if ring else vr(WOT + 16 * (t - 12) + 4 * ks, 4)
                    first = t in (0, 12) and ks == 0
                    mf = [f"v_mfma_f32_16x16x32_bf16 {acc}, {pf}, {vr(wb,4)}, {0 if first else acc}"]
                    if b == 0:
                        mf.append(f"v_mfma_f32_16x16x32_bf16 {a4}, {vr(u4,4)}, {vr(wb,4)}, {0 if first else a4}")
                    d = dict(reads=reads, need=[f"w{g}b"], mf=mf)
                    if self.o.get("x_fewlds"):
                        if b == 0:
                            d["reads"] = reads[1:]
                        else:
                            d["reads"] = []
                            d["need"] = [f"w{g-b}b"]
                    if b == 0 and ring:
                        d["vneed"] = f"u{t}_{ks}"
                    if t == 0 and b in (0, 1):
                        d["after"] = uload(1 + b, ks, (S_C1, S_C2)[b])
                    if t == 1 and b == 1:
                        d["after"] = (f"s_lshl_b32 s{S_T0}, s{SB+ks}, 6\ns_add_u32 s{S_T0}, s{S_T0}, s{S_A}\n"
                                      f"buffer_load_dword v{GV+ks}, v{VGA}, s[{R_WS}:{R_WS+3}], s{S_T0} offen sc1 ;@g{ks}")
                    if b == 3 and t + NPF < nstream:
                        d["after"] = uload(t + NPF, ks, S_C)
                        if ks == 3 and t + NPF + 1 < nstream:
                            d["after"] += "\n" + next_sc(t + NPF + 1)
                    if self.o.get("wotl") and 3 <= t <= 7 and b == 1:
                        k = (t - 3) * 4 + ks
                        lab = a.label("nw")
                        d["before"] = (f"s_cmp_eq_u32 s{S_FROMA}, 1\ns_cbranch_scc0 {lab}\ns_mov_b32 s{S_T0}, {49152 + k*1024}\n"
                                       f"buffer_load_dwordx4 {vr(WOT+4*k,4)}, v{VL}, s[{R_P}:{R_P+3}], s{S_T0} offen sc1\n{lab}:")
                    if t >= 13 and fill and g < 15:
                        d["after"] = fill.pop(0)
                    uses.append(d)
            stages.append(dict(uses=uses, bar="s_barrier" if t else ""))
        nd = self.o.get("nodrain")
        LF = self.o.get("LF", 6)
        self.pipeline(stages, LF, (16 - LF) if nd else 13, drain=not nd, wait_every=self.o.get('we', 2), vis=vis0)
        self.stamp(8, 2)
        a(f"""
        v_and_b32 v2, 15, v1
        v_mul_u32_u24 v2, 1280, v2
        v_lshrrev_b32 v3, 4, v1
        v_lshl_add_u32 v2, v3, 3, v2
        s_mul_i32 s{S_A}, s{S_ST}, {64*1280}
        s_lshl_b32 s{S_T0+1}, s{S_D}, 5
        s_add_u32 s{S_B}, s{S_A}, s{S_T0+1}
        s_mul_i32 s{S_T0+1}, s{S_DTILE}, 160
        s_add_u32 s{S_A}, s{S_A}, s{S_T0+1}
        s_add_u32 s{S_A}, s{S_A}, 128
        """)
        assert not fill
        for i_, (r, b) in enumerate(blocks):
            for k in range(4):
                a(f"v_fma_f32 v{r+k}, v{r+k}, v{GV+b}, v{ACC2+4*i_+k}")
            a(f"s_mul_i32 s{S_T0}, s{SB+b}, {16*1280}\ns_add_u32 s{S_T0}, s{S_T0}, s{S_A if r == ACC4 else S_B}")
            a(f"v_cvt_pk_bf16_f32 v{r}, v{r}, v{r+1}\nv_cvt_pk_bf16_f32 v{r+1}, v{r+2}, v{r+3}")
            a(f"buffer_store_dwordx2 {vr(r,2)}, v2, s[{R_OUT}:{R_OUT+3}], s{S_T0} offen {['', 'sc1', 'nt', 'sc0 sc1'][self.o.get('osc', 0)]}")
        if self.stamps or self.o.get("dbg"):
            a("s_waitcnt vmcnt(0)")
            self.stamp(9, 2)
        if self.o.get("calib"):
            a(f"""
            L_cal:
            s_memrealtime s[96:97]
            s_waitcnt lgkmcnt(0)
            s_sub_u32 s96, s96, s98
            s_cmp_lt_u32 s96, {self.o.get("calib")*100}
            s_cbranch_scc1 L_cal
            """)
        a(f"s_or_b32 s{S_T0}, s2, s{S_WAVE}\ns_cmp_lg_u32 s{S_T0}, 0\ns_cbranch_scc1 L_end\ns_mov_b32 s{S_T0}, 0")
        self.flag_store(S_T0, 4)
        a("s_branch L_end")

        a("L_F_u4:")
        if self.stop == "phase1":
            a("s_branch L_end")
        a(f"""
        v_lshlrev_b32 v{VL}, 4, v1
        s_mul_i32 s{S_C}, s{S_DTILE}, {5*UW_ST}
        s_add_u32 s{S_C}, s{S_C}, {UW + 4*UW_ST}
        """)
        self.f_perm()
        self.f0_barrier()
        p4 = self.o.get("preW4")
        if p4:
            for k in range(20):
                if k % 4 == 0:
                    a(f"s_add_u32 s{S_T0}, s{S_C}, {49152 + k*1024}")
                a(f"buffer_load_dwordx4 {vr(64+4*k,4)}, v{VL}, s[{R_WS}:{R_WS+3}], s{S_T0} offen offset:{(k%4)*1024} sc1")
            a(f"v_add_u32 v{VU4}, 0x20000, v{VL}")
        a("s_barrier")

        def u4_issue(iv):
            if iv >= 12 and p4:
                for i in range(4):
                    a(f"ds_write_b128 v{VU4}, {vr(64+16*(iv-12)+4*i,4)} offset:{(iv % 8)*4096 + i*1024}")
                return
            if iv < 12:
                a(self.perm_next(S_T0, S_PERM, 4096) + f"s_mov_b32 m0, {0x20000 + (iv % 8)*4096:#x}\ns_add_u32 s{S_T0}, s{S_T0}, s{S_C}")
            else:
                a(f"s_mov_b32 m0, {0x20000 + (iv % 8)*4096:#x}\ns_add_u32 s{S_T0}, s{S_C}, {iv*4096}")
            for i in range(4):
                a(f"buffer_load_dwordx4 v{VL}, s[{R_WS}:{R_WS+3}], s{S_T0} offen offset:{i*1024} sc1 lds")
        order = []
        for iv in range(8):
            u4_issue(iv)
            order.append(iv)
            if iv == 1:
                a("s_waitcnt vmcnt(4)\ns_barrier")
        for tb in range(1, 17):
            if tb in order:
                a(f"s_waitcnt vmcnt({4*len(order[order.index(tb)+1:])})")
            a("s_waitcnt lgkmcnt(0)\ns_barrier" if p4 and tb >= 7 else "s_barrier")
            iv = tb + (6 if self.o.get("nodrain") else 7)
            if 8 <= iv <= 16:
                u4_issue(iv)
                if not (p4 and iv >= 12):
                    order.append(iv)
        a("s_branch L_end")

        a("L_F_loader:")
        if self.stop == "phase1":
            a("s_branch L_end")
        a(f"v_lshlrev_b32 v{VL}, 4, v1")
        self.f0_barrier()
        nWR = self.o.get("nWR", 0)
        V = self.V_W2
        if nWR:
            a(f"s_waitcnt vmcnt(30)\nv_add_u32 v{VU4}, s{S_B}, v{VL}")
            for k in range(nWR):
                a(self.perm_next(S_T0, S_PERM, 128 * 4096) + f"s_add_u32 s{S_T0}, s{S_T0}, s{S_A}")
                for g in range(2):
                    if g:
                        a(f"s_add_u32 s{S_T0}, s{S_T0}, {4*32768}")
                    for i in range(4):
                        a(f"buffer_load_dwordx4 {vr(64+32*k+16*g+4*i,4)}, v{V+i}, s[{R_W2}:{R_W2+3}], s{S_T0} offen offset:{i*1024}")
            a(f"s_add_u32 s{S_B}, s{S_B}, {nWR*16384}")
        a("s_barrier")
        a(f"""
        s_sub_u32 s{S_T0}, s{S_WAVE}, 5
        s_lshl_b32 s{S_T0}, s{S_T0}, 1
        s_lshl_b32 s{S_T0+1}, s{S_ST}, 2
        s_add_u32 s{S_T0+1}, s{S_T0+1}, s{S_T0}
        s_mul_i32 s{S_C}, s{S_T0+1}, {GO_ST}
        s_add_u32 s{S_C}, s{S_C}, {GO}
        s_lshl_b32 s{S_D}, s{S_T0}, 12
        """)
        assert nWR == 0
        ops = [(iv, 8) for iv in range(8)]
        for tb in range(17):
            last = max(i for i, (iv, _) in enumerate(ops) if iv == tb)
            n = sum(c for _, c in ops[last + 1:])
            a(f"s_waitcnt vmcnt({min(n,63)})\ns_barrier")
            if self.o.get("halfW"):
                if 2 <= tb <= 9:
                    self.w2_half((tb - 2) & 1)
                    ops.append((8 + (tb - 2) // 2, 4))
            elif 2 <= tb <= 5:
                self.w2_issue()
                ops.append((tb + 6, 8))
            if 9 <= tb <= 13:
                iv = tb + 3
                g = iv - 12
                for s2 in range(2):
                    a(f"s_add_u32 m0, s{S_D}, {(iv % 8)*16384 + s2*4096}\ns_add_u32 s{S_T0}, s{S_C}, {s2*GO_ST + g*4096}")
                    for i in range(4):
                        a(f"buffer_load_dwordx4 v{VL}, s[{R_WS}:{R_WS+3}], s{S_T0} offen offset:{i*1024} sc1 lds")
                ops.append((iv, 8))
        a("s_branch L_end")
        a("L_F_poller:")
        if self.stop == "phase1":
            a("s_branch L_end")
        a(f"s_cmp_eq_u32 s{S_FROMA}, 1\ns_cbranch_scc1 L_F_pnowot")
        a(f"s_mul_i32 s{S_T0}, s{S_DTILE}, {FS}\ns_add_u32 s{S_T0}, s{S_T0}, {F_WOT}\nv_mov_b32 v2, s{S_T0}")
        self.poll([2], 4)
        a("s_barrier\nL_F_pnowot:")
        a(f"""
        s_mul_i32 s{S_T0}, s{S_DTILE}, 5
        s_lshr_b32 s{S_T0+1}, s{S_T0}, 3
        s_add_u32 s{S_T0}, s{S_T0}, 4
        s_lshr_b32 s{S_T0}, s{S_T0}, 3
        s_mul_i32 s{S_T0}, s{S_T0}, 24
        s_mul_i32 s{S_T0+1}, s{S_T0+1}, 24
        v_and_b32 v2, 31, v1
        v_min_u32 v2, 23, v2
        v_add_u32 v3, s{S_T0}, v2
        v_add_u32 v2, s{S_T0+1}, v2
        v_cmp_gt_u32 vcc, 32, v1
        s_mul_i32 s{S_T0}, s{S_DTILE}, {FS}
        s_add_u32 s{S_T0}, s{S_T0}, {F_WOT}
        v_cndmask_b32 v2, v2, v3, vcc
        v_mul_u32_u24 v2, {FS}, v2
        v_add_u32 v2, {F_U}, v2
        v_mov_b32 v3, s{S_T0}
        v_cmp_eq_u32 vcc, 63, v1
        s_nop 1
        v_cndmask_b32 v2, v2, v3, vcc
        """)
        self.poll([2], 4)
        self.stamp(6, 4)
        a("s_barrier")
        a(f"""
        v_and_b32 v2, 7, v1
        s_lshr_b32 s{S_T0}, s{S_ST}, 1
        s_lshl_b32 s{S_T0}, s{S_T0}, 3
        v_add_u32 v2, s{S_T0}, v2
        v_mul_u32_u24 v2, {FS}, v2
        v_add_u32 v2, {F_GO}, v2
        """)
        gp = self.o.get("gopoll", 9)
        for tb in range(gp):
            a("s_barrier")
            if tb == 1:
                a(f"s_cmp_eq_u32 s{S_FROMA}, 1\ns_cbranch_scc0 L_F_nogo")
                a(f"s_lshl_b32 s{S_T0}, s{S_MT}, 3\ns_add_u32 s{S_T0}, s{S_T0}, s{S_HG}\ns_mul_i32 s{S_T0}, s{S_T0}, {FS}\ns_add_u32 s{S_T0}, s{S_T0}, {F_GO}")
                self.flag_store(S_T0, 6)
                a("L_F_nogo:")
            if tb == gp - 3:
                a(f"buffer_load_dword v8, v2, s[{R_WS}:{R_WS+3}], 0 offen sc1")
            self.stamp(32 + tb, 4)
        a(f"s_waitcnt vmcnt(0)\nv_cmp_ne_u32 vcc, s{S_TAG}, v8\ns_nop 1\ns_cmp_eq_u64 vcc, 0\ns_cbranch_scc1 L_F_gook")
        self.poll([2], 4)
        a("L_F_gook:")
        self.stamp(7, 4)
        for tb in range(gp, 17):
            a("s_barrier")
            self.stamp(32 + tb, 4)
        a("L_end:")
        if "probe" in self.o or "pc1" in self.o:
            a("""
            s_cmp_eq_u32 s94, 0
            s_cbranch_scc1 L_exit
            L_prb:
            s_memrealtime s[96:97]
            s_waitcnt lgkmcnt(0)
            s_sub_u32 s96, s96, s98
            s_cmp_lt_i32 s96, 4000
            s_cbranch_scc1 L_prb
            """)
        if self.stamps:
            a(f"""
            s_lshl_b32 s{S_T0}, s2, 3
            s_add_u32 s{S_T0}, s{S_T0}, s{S_WAVE}
            s_lshl_b32 s{S_T0}, s{S_T0}, 9
            s_add_u32 s{S_T0}, s{S_T0}, {STAMP}
            v_lshlrev_b32 v2, 3, v1
            buffer_store_dwordx2 v[254:255], v2, s[{R_WS}:{R_WS+3}], s{S_T0} offen
            """)
        a("L_exit:\ns_endpgm")

    def build(self, header):
        a = self.a
        self.prologue()
        self.role_a()
        self.role_b()
        self.helper()
        self.final()
        body = a.text()
        out = header
        out += """; One persistent launch, 256 workgroups (one per CU) x 8 waves (0-3 MFMA, 4-7 loaders / pollers).
"""
        out += f"; @launch grid=(256,1,1) block=(512,1,1) lds={LDS_BYTES}\n"
        out += f'.amdgcn_target "amdgcn-amd-amdhsa--gfx950"\n.text\n.globl {KNAME}\n.p2align 8\n.type {KNAME},@function\n{KNAME}:\n'
        out += body
        out += f""".section .rodata,"a"
.p2align 6
.amdhsa_kernel {KNAME}
  .amdhsa_next_free_vgpr 256
  .amdhsa_next_free_sgpr 102
  .amdhsa_accum_offset 256
  .amdhsa_group_segment_fixed_size 0
  .amdhsa_kernarg_size 96
  .amdhsa_user_sgpr_count 2
  .amdhsa_user_sgpr_kernarg_segment_ptr 1
  .amdhsa_system_sgpr_workgroup_id_x 1
  .amdhsa_float_denorm_mode_32 3
.end_amdhsa_kernel
"""
        return out


def header():
    ref = open("gated_mix__linear_attn_block__mixer_token_mlp__prompt.s.ref").read().split("\n")
    h = []
    for l in ref:
        if l.startswith("; Override"):
            break
        h.append(l)
    return "\n".join(h) + "\n"


if __name__ == "__main__":
    import argparse
    p = argparse.ArgumentParser()
    p.add_argument("-o", default="gated_mix__linear_attn_block__mixer_token_mlp__prompt.s")
    p.add_argument("--stamps", action="store_true")
    p.add_argument("--stop", default=None)
    p.add_argument("--opt", default="")
    args = p.parse_args()
    opts = {k: (int(v) if v != '' else 1) for k, _, v in (x.partition('=') for x in args.opt.split(',') if x)}
    g = Gen(stamps=args.stamps, stop=args.stop, opts=opts)
    open(args.o, "w").write(g.build(header()))
    print("wrote", args.o)
```

```python
import sys

KNAME = "gated_mix__linear_attn_block__mixer_token_mlp__prompt_kernel"

import os
FS = int(os.environ.get('FS', 128))
F_LN, F_KV, F_U, F_GO, F_WOT = 0x1000, 0x5000, 0x9000, 0xD000, 0x11000
G_OFF = 0x12000
STAMP = 0x900000
KVP = 0x20000
KVP_ST = 7168
HT = 0x100000
UW = 0x380000
UW_ST = 69632
GO = 0x640000
GO_ST = 20480
WS_USED = 0xA00000
TAG_INC = 0x9E3779B9
SPIN_LIMIT = 1 << 17

LDS_BYTES = 163840
LNBUF = 0
LN_ST = 1312
LNG = LNBUF + 32 * LN_ST
A_SLOT = 49152
A_WOFF = 16384
EXCH_ST = 14336
EXCH = LDS_BYTES - 4 * EXCH_ST
KVT = 147456
ZH = KVT + 11 * 1024

LOG2E = 0x3FB8AA3B


def f2u(x):
    import struct
    return struct.unpack("<I", struct.pack("<f", x))[0]


class Asm:
    def __init__(self):
        self.L = []
        self.nlab = 0

    def __call__(self, s):
        for line in s.split("\n"):
            line = line.strip()
            if line:
                self.L.append(("    " if not line.endswith(":") else "") + line)

    def label(self, base):
        self.nlab += 1
        return f"L{base}_{self.nlab}"

    def text(self):
        return "\n".join(self.L) + "\n"


def vr(a, n=1):
    return f"v{a}" if n == 1 else f"v[{a}:{a+n-1}]"


def sr(a, n=1):
    return f"s{a}" if n == 1 else f"s[{a}:{a+n-1}]"


P_X, P_WQKV, P_WO, P_BX, P_W1, P_B1, P_W2, P_B2 = 4, 6, 8, 10, 12, 14, 16, 18
P_GATE, P_OUT, P_DBG, P_WS = 20, 22, 24, 26
S_TAG, S_WAVE = 28, 29
S_XCD, S_J = 30, 31
R_WS, R_X, R_W, R_P, R_W2, R_M, R_OUT = 32, 36, 40, 44, 48, 52, 56
S_T0 = 60
S_MT, S_HG, S_DT, S_FT, S_KST, S_PAR = 70, 71, 72, 73, 74, 75
S_ST, S_DTILE = 76, 77
S_CNT = 78
S_A, S_B, S_C, S_D = 80, 81, 82, 83
S_MSK = 84
S_K0 = 90
S_STMP = 96
S_PERM = 66
S_M = 79
S_FROMA = 95
S_PERM2 = 68


def lead_perm(n, nshare, m, lead=2):
    order = list(range(n))
    i = m
    while i + lead < n:
        order[i:i + lead + 1] = [order[i + lead]] + order[i:i + lead]
        i += nshare
    return order


class Gen:
    def __init__(self, stamps=False, stop=None, opts=None):
        self.o = opts or {}
        self.a = Asm()
        self.stamps = stamps
        self.stop = stop

    def nt(self, key):
        return "nt" if self.o.get(key) else ""

    def srd(self, dst, ptr, nbytes, off_s=None):
        a = self.a
        if off_s is None:
            a(f"s_mov_b32 s{dst}, s{ptr}\ns_and_b32 s{dst+1}, s{ptr+1}, 0xffff")
        else:
            a(f"s_add_u32 s{dst}, s{ptr}, s{off_s}\ns_addc_u32 s{dst+1}, s{ptr+1}, 0\ns_and_b32 s{dst+1}, s{dst+1}, 0xffff")
        a(f"s_mov_b32 s{dst+2}, {nbytes:#x}\ns_mov_b32 s{dst+3}, 0x20000")

    def stamp(self, k, vtmp, dyn=None):
        if "pc1" in self.o:
            if dyn is None and k in (self.o["pc1"], self.o["pc2"]):
                lab = self.a.label("npr")
                self.a(f"s_cmp_lg_u32 s{S_FROMA}, {self.o.get('prole', 0)}\ns_cbranch_scc1 {lab}")
                if k == self.o["pc1"]:
                    self.a(f"s_memtime s[92:93]\ns_waitcnt lgkmcnt(0)")
                else:
                    self.a(f"s_memtime s[96:97]\ns_waitcnt lgkmcnt(0)\ns_sub_u32 s92, s96, s92\ns_lshr_b32 s92, s92, 4\ns_add_u32 s98, s98, s92\ns_mov_b32 s94, 1")
                self.a(f"{lab}:")
            return
        if "probe" in self.o:
            role = self.o.get("prole")
            if k == self.o["probe"] and dyn is None:
                lab = self.a.label("npr")
                if self.o.get("phelp"):
                    self.a(f"s_cmp_lt_u32 s{S_J}, 30\ns_cbranch_scc1 {lab}")
                if role is not None and k != 0:
                    self.a(f"s_cmp_lg_u32 s{S_FROMA}, {role}\ns_cbranch_scc1 {lab}")
                self.a(f"s_memrealtime s[98:99]\ns_mov_b32 s94, 1\ns_waitcnt lgkmcnt(0)\n{lab}:")
            return
        if self.o.get("dbg"):
            m = {0: 0, 11: 1, 1: 2, 2: 3, 3: 4, 4: 5, 6: 6, 9: 7}
            mA = {0: 0, 1: 1, 2: 2, 3: 3, 4: 4, 5: 5, 6: 6, 9: 7}
            if dyn is not None:
                return
            a = self.a
            for wg, mp, base in ((8, m, 0), (12, mA, 8)):
                if k in mp:
                    lab = a.label("nd")
                    a(f"s_cmp_lg_u32 s2, {wg}\ns_cbranch_scc1 {lab}")
                    a(f"s_memrealtime s[{S_STMP}:{S_STMP+1}]\ns_waitcnt lgkmcnt(0)")
                    a(f"v_mov_b32 v{vtmp}, s{S_STMP}\nv_mov_b32 v{vtmp+2}, {4*(base+mp[k])}")
                    a(f"s_mov_b64 exec, 1\nglobal_store_dword v{vtmp+2}, v{vtmp}, s[{P_DBG}:{P_DBG+1}]\ns_mov_b64 exec, -1\n{lab}:")
            return
        if not self.stamps:
            return
        a = self.a
        a(f"s_memrealtime s[{S_STMP}:{S_STMP+1}]\ns_memtime s[100:101]")
        ln = str(k)
        if dyn is not None:
            a(f"s_add_u32 m0, s{dyn}, {k}")
            ln = "m0"
        a(f"s_waitcnt lgkmcnt(0)\nv_writelane_b32 v254, s{S_STMP}, {ln}\nv_writelane_b32 v255, s100, {ln}")

    def perm_setup(self, s_m, n, nshare, dst, enable):
        a = self.a
        def pk(o):
            v = 0
            for i, x in enumerate(o):
                v |= x << (4 * i)
            return v & 0xffffffff, v >> 32
        lo, hi = pk(list(range(n)))
        a(f"s_mov_b32 s{dst}, {lo:#x}\ns_mov_b32 s{dst+1}, {hi:#x}")
        if not enable:
            return
        for m in range(nshare):
            lo, hi = pk(lead_perm(n, nshare, m, enable))
            a(f"s_cmp_eq_u32 s{s_m}, {m}\ns_cselect_b32 s{dst}, {lo:#x}, s{dst}\ns_cselect_b32 s{dst+1}, {hi:#x}, s{dst+1}")

    def perm_next(self, dst, src, mul):
        t = f"s_and_b32 s{dst}, s{src}, 15\ns_lshr_b64 s[{src}:{src+1}], s[{src}:{src+1}], 4\n"
        if mul & (mul - 1) == 0:
            t += f"s_lshl_b32 s{dst}, s{dst}, {mul.bit_length()-1}\n"
        else:
            t += f"s_mul_i32 s{dst}, s{dst}, {mul}\n"
        return t

    def poll(self, voffs, vtmp, mask=None):
        a = self.a
        lp, dn = a.label("poll"), a.label("pdone")
        n = len(voffs)

        def ld(k):
            for i, vo in enumerate(voffs):
                a(f"buffer_load_dword v{vtmp+k*n+i}, v{vo}, s[{R_WS}:{R_WS+3}], 0 offen sc1")

        def chk(k):
            if mask is not None:
                a(f"v_xor_b32 v{vtmp+k*n}, s{S_TAG}, v{vtmp+k*n}\nv_and_b32 v{vtmp+k*n}, v{mask}, v{vtmp+k*n}\nv_cmp_ne_u32 vcc, 0, v{vtmp+k*n}")
            else:
                a(f"v_cmp_ne_u32 vcc, s{S_TAG}, v{vtmp+k*n}")
            for i in range(1, n):
                a(f"v_cmp_ne_u32 s[{S_T0}:{S_T0+1}], s{S_TAG}, v{vtmp+k*n+i}\ns_nop 1\ns_or_b64 vcc, vcc, s[{S_T0}:{S_T0+1}]")
            a(f"s_nop 1\ns_cmp_eq_u64 vcc, 0\ns_cbranch_scc1 {dn}")
        if not self.o.get("pp"):
            a(f"s_mov_b32 s{S_CNT}, 0\n{lp}:")
            ld(0)
            a("s_waitcnt vmcnt(0)")
            chk(0)
            a(f"s_add_u32 s{S_CNT}, s{S_CNT}, 1\ns_cmp_lt_u32 s{S_CNT}, {SPIN_LIMIT}\ns_cbranch_scc0 {dn}\ns_sleep 1\ns_branch {lp}\n{dn}:")
            return
        sl = f"s_sleep {self.o['pp'] - 1}\n" if self.o["pp"] > 1 else ""
        a(f"s_mov_b32 s{S_CNT}, 0")
        ld(0)
        a(f"{sl}{lp}:")
        ld(1)
        a(f"s_waitcnt vmcnt({n})")
        chk(0)
        ld(0)
        a(f"s_waitcnt vmcnt({n})")
        chk(1)
        a(f"s_add_u32 s{S_CNT}, s{S_CNT}, 1\ns_cmp_lt_u32 s{S_CNT}, {SPIN_LIMIT}\ns_cbranch_scc1 {lp}\n{dn}:")

    def flag_store(self, s_off, vtmp):
        a = self.a
        a(f"v_mov_b32 v{vtmp}, s{S_TAG}\nv_mov_b32 v{vtmp+1}, 0\ns_mov_b64 exec, 1")
        a(f"buffer_store_dword v{vtmp}, v{vtmp+1}, s[{R_WS}:{R_WS+3}], s{s_off} offen sc1\ns_mov_b64 exec, -1")

    def pipeline(self, stages, L, gstar, drain=True, wait_every=2, vis=None):
        a = self.a
        seq = [(si, gi, u) for si, st in enumerate(stages) for gi, u in enumerate(st["uses"])]
        issued = []
        vis = list(vis or [])
        state = dict(nxt=0, opened=-1)
        pend = []

        def collect(lim):
            while state["nxt"] < len(seq) and state["nxt"] <= lim and seq[state["nxt"]][0] <= state["opened"]:
                si_, _, u_ = seq[state["nxt"]]
                for name, txt in u_["reads"]:
                    pend.append((f"{si_}:{name}", txt))
                state["nxt"] += 1
                if seq[state["nxt"] - 1][1] == len(stages[si_]["uses"]) - 1 and si_ + 1 < len(stages):
                    state["defer"] = list(stages[si_ + 1].get("pre", []))

        def out(txt):
            if ";@" in txt:
                vis.append(txt.split(";@")[1].strip())
            a(txt)

        def emit(n):
            for _ in range(min(n, len(pend))):
                name, txt = pend.pop(0)
                out(txt)
                if name:
                    issued.append(name)

        a(stages[0]["bar"])
        state["opened"] = 0
        collect(L - 1)
        emit(len(pend))
        n_real = sum(len(st["uses"]) for st in stages if not st.get("virtual"))
        covered = -1
        for f in range(n_real):
            si, gi, u = seq[f]
            nuse = len(stages[si]["uses"])
            if gi == 0 and stages[si].get("head"):
                assert not pend, pend
                a(stages[si]["head"])
                covered = -1
            if gi == gstar and si + 1 < len(stages):
                emit(len(pend))
                for x in state.pop("defer", []):
                    a(x)
                if drain:
                    a("s_waitcnt lgkmcnt(0)")
                    covered = len(issued) - 1
                a(stages[si + 1]["bar"])
                pend.extend((None, x) for x in stages[si + 1].get("bar_pend", []))
                state["opened"] = si + 1
                collect(f + L - 1)
            def lastidx(ff):
                s_, _, uu = seq[ff]
                return max(len(issued) - 1 - issued[::-1].index(f"{s_}:{nm}") for nm in uu["need"])
            w = []
            if lastidx(f) > covered:
                tgt = lastidx(f)
                for ff in range(f + 1, min(f + wait_every, n_real)):
                    if seq[ff][0] != si:
                        break
                    try:
                        tgt = max(tgt, lastidx(ff))
                    except ValueError:
                        break
                n = len(issued) - 1 - tgt
                assert n <= 15, n
                w.append(f"lgkmcnt({n})")
                covered = tgt
            if u.get("vneed") is not None:
                w.insert(0, f"vmcnt({len(vis) - 1 - vis.index(u['vneed'])})")
            if u.get("vm") is not None:
                npv = sum(1 for nm_, t_ in pend if t_.strip().startswith("buffer_load"))
                w.insert(0, f"vmcnt({u['vm'] - npv})")
            if w:
                a("s_waitcnt " + " ".join(w))
            if u.get("before"):
                a(u["before"])
            if state.get("defer") and not pend:
                n_ = self.o.get("npre", 7)
                pend.extend((None, x) for x in state["defer"][:n_])
                state["defer"] = state["defer"][n_:]
            collect(f + L)
            if state.get("mix"):
                k_ = state.pop("mix")
                head_, rest_ = pend[:k_], pend[k_:]
                pend[:] = [x for pr in zip(head_, rest_) for x in pr] + head_[len(rest_):] + rest_[len(head_):]
            nm_ = len(u["mf"])
            for k, m in enumerate(u["mf"]):
                a(m)
                left = nm_ - k
                if drain and gi >= gstar:
                    left += sum(len(uu["mf"]) for uu in stages[si]["uses"][gi + 1:])
                    extra = 2 * (nuse - 1 - gi)
                    emit(-(-(len(pend) + extra) // left) if left > 1 else len(pend))
                else:
                    emit(-(-len(pend) // left))
            if u.get("after"):
                items = [x for x in u["after"].split("\n") if x.strip()]
                if gi == nuse - 1:
                    for x in items:
                        out(x)
                else:
                    assert not pend
                    pend.extend((None, x) for x in items)
                    state["mix"] = len(items)
            if gi == nuse - 1 and stages[si].get("tail"):
                a(stages[si]["tail"])

    def prologue(self):
        a = self.a
        a(f"""
        s_cmp_ge_u32 s2, 256
        s_cbranch_scc1 L_exit
        {"v_mov_b32 v254, 0" if self.stamps else ""}
        {"v_mov_b32 v255, 0" if self.stamps else ""}
        {"s_memrealtime s[98:99]" if self.o.get("calib") or "pc1" in self.o else ""}
        {"s_mov_b32 s94, 0" if "probe" in self.o or "pc1" in self.o else ""}
        s_load_dwordx16 s[4:19], s[0:1], 0
        s_load_dwordx8 s[20:27], s[0:1], 64
        """)
        if self.o.get("pf_code") == 2:
            a(f"""
            s_getpc_b64 s[{S_T0}:{S_T0+1}]
            L_pcref:
            s_lshr_b32 s3, s2, 3
            s_mul_i32 s3, s3, 1280
            v_lshlrev_b32 v4, 7, v0
            v_add_u32 v4, s3, v4
            v_min_u32 v4, L_exit-L_pcref, v4
            v_cmp_gt_u32 vcc, 10, v0
            s_and_saveexec_b64 s[{S_T0+2}:{S_T0+3}], vcc
            s_cbranch_execz L_nocpf
            global_load_dword v253, v4, s[{S_T0}:{S_T0+1}]
            L_nocpf:
            s_mov_b64 exec, -1
            """)
        a(f"""
        v_and_b32 v1, 63, v0
        v_lshrrev_b32 v2, 6, v0
        s_and_b32 s{S_XCD}, s2, 7
        v_readfirstlane_b32 s{S_WAVE}, v2
        s_lshr_b32 s{S_J}, s2, 3
        s_waitcnt lgkmcnt(0)
        s_load_dword s{S_TAG}, s[{P_WS}:{P_WS+1}], 0
        """)
        self.srd(R_WS, P_WS, WS_USED)
        self.srd(R_X, P_X, 2048 * 1280)
        self.srd(R_W2, P_W2, 1536 * 4096)
        if self.stamps or self.o.get("dbg") or "probe" in self.o:
            a(f"s_cmp_lg_u32 s{S_WAVE}, 0\ns_cbranch_scc1 L_nost0")
            self.stamp(0, 4)
            a("L_nost0:")
        if self.o.get("tlb"):
            self.tlb_warm()
        if self.o.get("pf_code") == 1:
            self.code_prefetch()
        if self.o.get("prio"):
            a(f"""
            s_sub_u32 s{S_T0}, s{S_WAVE}, 4
            s_cmp_lt_u32 s{S_T0}, 3
            s_cbranch_scc1 L_noprio
            s_setprio 3
            L_noprio:
            """)
        a(f"""
        s_lshr_b32 s{S_T0}, s{S_XCD}, 1
        s_lshl_b32 s{S_T0}, s{S_T0}, 3
        s_lshr_b32 s{S_ST}, s{S_J}, 2
        s_add_u32 s{S_ST}, s{S_ST}, s{S_T0}
        s_and_b32 s{S_T0}, s{S_XCD}, 1
        s_lshl_b32 s{S_T0}, s{S_T0}, 2
        s_and_b32 s{S_DTILE}, s{S_J}, 3
        s_add_u32 s{S_DTILE}, s{S_DTILE}, s{S_T0}
        s_cmp_lt_u32 s{S_XCD}, 4
        s_cbranch_scc1 L_roleB
        """)

    V_W2 = 240

    def f_perm(self):
        a = self.a
        a(f"s_lshl_b32 s{S_M}, s{S_DTILE}, 1\ns_add_u32 s{S_M}, s{S_M}, s{S_ST}\ns_and_b32 s{S_M}, s{S_M}, 7")
        self.perm_setup(S_M, 12, 8, S_PERM, self.o.get("rotF"))

    def w2_setup(self):
        a = self.a
        V = self.V_W2
        self.f_perm()
        a(f"""
        v_lshrrev_b32 v{V}, 3, v1
        v_lshrrev_b32 v{V+1}, 4, v1
        v_lshlrev_b32 v{V+1}, 1, v{V+1}
        v_and_b32 v{V+2}, 7, v1
        v_xor_b32 v{V+1}, v{V+1}, v{V+2}
        v_lshlrev_b32 v{V+1}, 4, v{V+1}
        v_lshl_add_u32 v{V}, v{V}, 12, v{V+1}
        v_add_u32 v{V+1}, {32768-1024}, v{V}
        v_add_u32 v{V+2}, {2*(32768-1024)}, v{V}
        v_add_u32 v{V+3}, {3*(32768-1024)}, v{V}
        s_sub_u32 s{S_T0}, s{S_WAVE}, 5
        s_lshl_b32 s{S_B}, s{S_T0}, 13
        s_lshl_b32 s{S_A}, s{S_T0}, 18
        s_lshl_b32 s{S_T0}, s{S_ST}, 7
        s_add_u32 s{S_A}, s{S_A}, s{S_T0}
        """)

    def w2_issue_at(self, p):
        a = self.a
        V = self.V_W2
        a(f"s_bfe_u32 s{S_T0}, s{S_PERM}, {(4 << 16) | (4 * p):#x}\ns_lshl_b32 s{S_T0}, s{S_T0}, 19\ns_add_u32 s{S_T0}, s{S_T0}, s{S_A}")
        for g in range(2):
            a(f"s_add_u32 m0, s{S_B}, {p*16384 + g*4096}")
            a(f"s_add_u32 s{S_T0}, s{S_T0}, {g*4*32768}")
            for i in range(4):
                a(f"buffer_load_dwordx4 v{V+i}, s[{R_W2}:{R_W2+3}], s{S_T0} offen offset:{i*1024} lds")

    def w2_half(self, g):
        a = self.a
        V = self.V_W2
        if g == 0:
            a(self.perm_next(S_K0, S_PERM, 128 * 4096) + f"s_add_u32 s{S_K0}, s{S_K0}, s{S_A}")
        a(f"s_add_u32 m0, s{S_B}, {g*4096}\ns_add_u32 s{S_T0}, s{S_K0}, {g*4*32768}")
        for i in range(4):
            a(f"buffer_load_dwordx4 v{V+i}, s[{R_W2}:{R_W2+3}], s{S_T0} offen offset:{i*1024} lds")
        if g == 1:
            a(f"s_add_u32 s{S_B}, s{S_B}, 16384")

    def w2_issue(self):
        a = self.a
        V = self.V_W2
        a(self.perm_next(S_T0, S_PERM, 128 * 4096))
        a(f"s_add_u32 s{S_T0}, s{S_T0}, s{S_A}")
        for g in range(2):
            a(f"s_add_u32 m0, s{S_B}, {g*4096}")
            a(f"s_add_u32 s{S_T0}, s{S_T0}, {g*4*32768}")
            for i in range(4):
                a(f"buffer_load_dwordx4 v{V+i}, s[{R_W2}:{R_W2+3}], s{S_T0} offen offset:{i*1024} lds")
        a(f"s_add_u32 s{S_B}, s{S_B}, 16384\ns_and_b32 s{S_B}, s{S_B}, 0x1ffff")

    def w2_prefill(self, n):
        if n == 0:
            return
        a = self.a
        lp = a.label("pf")
        a(f"s_mov_b32 s{S_C}, 0\n{lp}:")
        self.w2_issue()
        a(f"s_add_u32 s{S_C}, s{S_C}, 1\ns_cmp_lt_u32 s{S_C}, {n}\ns_cbranch_scc1 {lp}")

    def if_wave56(self):
        a = self.a
        skip = a.label("n56")
        a(f"s_sub_u32 s{S_T0}, s{S_WAVE}, 5\ns_cmp_lt_u32 s{S_T0}, 2\ns_cbranch_scc0 {skip}")
        return skip

    def role_a(self):
        a = self.a
        a(f"L_roleA:\ns_mov_b32 s{S_FROMA}, 1")
        a(f"s_sub_u32 s{S_MT}, s{S_ST}, 16\ns_mov_b32 s{S_HG}, s{S_DTILE}")
        a(f"s_cmp_ge_u32 s{S_WAVE}, 4\ns_cbranch_scc1 L_A_loader")
        ACC, XF, WF, VXA, VWA = 128, 96, 64, 4, 6
        if self.o.get("ta1") or self.o.get("ta2"):
            self.start_prefetch()
        self.a_thread_map()
        a(f"""
        v_and_b32 v16, 15, v1
        v_lshrrev_b32 v17, 4, v1
        s_lshl_b32 s{S_T0}, s{S_WAVE}, 5
        v_add_u32 v18, s{S_T0}, v16
        v_lshrrev_b32 v19, 1, v16
        v_xor_b32 v19, v17, v19
        v_lshlrev_b32 v19, 4, v19
        v_lshl_add_u32 v{VXA}, v18, 7, v19
        v_xor_b32 v{VXA+1}, 64, v{VXA}
        v_lshrrev_b32 v18, 2, v16
        v_lshl_add_u32 v19, v17, 3, v18
        v_and_b32 v20, 1, v17
        v_lshl_or_b32 v20, v20, 2, v18
        v_lshlrev_b32 v19, 9, v19
        v_lshl_add_u32 v19, v20, 5, v19
        v_and_b32 v20, 3, v16
        v_lshl_add_u32 v19, v20, 3, v19
        v_add_u32 v{VWA}, {A_WOFF}, v19
        """)
        for n in range(1, 8):
            a(f"v_xor_b32 v{VWA+n}, {n<<5}, v{VWA}")
        for r in range(120):
            a(f"v_mov_b32 v{ACC+r}, 0")
        a(f"s_mov_b32 s{S_A}, 0\ns_mov_b32 s{S_B}, 0\ns_mov_b32 s{S_C}, {A_SLOT}\ns_waitcnt lgkmcnt(0)")
        a(f"s_add_u32 s{S_TAG}, s{S_TAG}, {TAG_INC:#x}")

        RING = 6
        D = 6

        def mk_stage(bar, virtual=False, head=None, tail=None):
            uses = []
            for g in range(30):
                ks, n = divmod(g, 15)
                wb = WF + 4 * (g % RING)
                reads = []
                if g == 0:
                    for rb in range(2):
                        reads.append((f"x0{rb}", f"ds_read_b128 {vr(XF+4*rb,4)}, v{VXA} offset:{rb*2048}"))
                if g == 13:
                    for rb in range(2):
                        reads.append((f"x1{rb}", f"ds_read_b128 {vr(XF+8+4*rb,4)}, v{VXA+1} offset:{rb*2048}"))
                off = ks * 16384 + (n >> 3) * 256
                reads.append((f"w{g}a", f"ds_read_b64_tr_b16 {vr(wb,2)}, v{VWA+(n&7)} offset:{off}"))
                reads.append((f"w{g}b", f"ds_read_b64_tr_b16 {vr(wb+2,2)}, v{VWA+(n&7)} offset:{off+2048}"))
                need = [f"w{g}b", f"x{ks}1"]
                mf = []
                for rb in range(2):
                    acc = vr(ACC + (n * 2 + rb) * 4, 4)
                    xf = vr(XF + ks * 8 + rb * 4, 4)
                    wf = vr(wb, 4)
                    if n < 5:
                        mf.append(f"v_mfma_f32_16x16x32_bf16 {acc}, {wf}, {xf}, {acc}")
                    else:
                        mf.append(f"v_mfma_f32_16x16x32_bf16 {acc}, {xf}, {wf}, {acc}")
                uses.append(dict(reads=reads, need=need, mf=mf))
            return dict(uses=uses, bar=bar, virtual=virtual, head=head, tail=tail)

        adv = "s_barrier"
        pre = [f"s_add_u32 s{S_B}, s{S_B}, 1", f"s_cmp_eq_u32 s{S_B}, 3", f"s_cselect_b32 s{S_B}, 0, s{S_B}",
               f"s_cselect_b32 s{S_T0}, {(-2*A_SLOT) & 0xffffffff:#x}, s{S_C}"]
        pre += [f"v_add_u32 v{r}, s{S_T0}, v{r}" for r in range(VXA, VWA + 8)]
        tail = f"s_add_u32 s{S_A}, s{S_A}, 1\ns_cmp_lt_u32 s{S_A}, 10\ns_cbranch_scc1 L_A_loop"
        head = "L_A_loop:\n"
        bar0 = "s_barrier"
        self.uw_srd()
        if self.o.get("tw2") == 2:
            self.srd(R_M, P_WO, 640 * 1280)
            a(f"""
            v_lshlrev_b32 v252, 7, v1
            s_lshl_b32 s{S_T0}, s{S_MT}, 3
            s_add_u32 s{S_T0}, s{S_T0}, s{S_HG}
            s_lshl_b32 s{S_T0}, s{S_T0}, 2
            s_add_u32 s{S_T0}, s{S_T0}, s{S_WAVE}
            s_mul_i32 s{S_D}, s{S_T0}, {12288 - 1024 * self.o.get("hW2n", 4) if self.o.get("hW2") else 12288}
            s_add_u32 s{S_KST}, s{S_D}, 8192
            s_mul_i32 s{S_PAR}, s{S_T0}, 1664
            s_and_b32 s{S_M}, s{S_J}, 7
            s_add_u32 s{S_M}, s{S_M}, {self.o.get("tw2at", 1)}
            """)
            head += f"""
            s_cmp_lg_u32 s{S_A}, s{S_M}
            s_cbranch_scc1 L_A_nt2
            buffer_load_dword v253, v252, s[{R_W2}:{R_W2+3}], s{S_D} offen
            s_mov_b32 exec_hi, 0
            {f"s_mov_b32 exec_lo, {(1 << (32 - 8 * self.o.get('hW2n', 4))) - 1:#x}" if self.o.get("hW2") and self.o.get("hW2n", 4) < 4 else ""}
            {"" if self.o.get("hW2") and self.o.get("hW2n", 4) == 4 else f"buffer_load_dword v253, v252, s[{R_W2}:{R_W2+3}], s{S_KST} offen"}
            s_mov_b32 exec_lo, 0x1fff
            {"" if self.o.get("woLN") else f"buffer_load_dword v253, v252, s[{R_M}:{R_M+3}], s{S_PAR} offen"}
            s_mov_b64 exec, -1
            L_A_nt2:
            """
        if "promA" in self.o:
            head += f"s_cmp_lg_u32 s{S_A}, {self.o['promA']}\ns_cbranch_scc1 L_A_npr\n" + self.pf_rest_plain() + "L_A_npr:\n"
        ta2 = self.o.get("ta2")
        if ta2 == 1:
            a(self.pf_rest())
        elif ta2 == 2:
            bar0 += "\n" + self.pf_rest()
        elif ta2:
            head += f"s_cmp_lg_u32 s{S_A}, {ta2-2}\ns_cbranch_scc1 L_A_npf\n" + self.pf_rest() + "L_A_npf:\n"
        self.pipeline([mk_stage(bar0, head=head, tail=tail), dict(mk_stage(adv, virtual=True), pre=pre)], 5, 30 - 3, wait_every=self.o.get('we', 2))
        self.stamp(2, 16)
        PK, VV, ONES, KVD, ZD = 16, 36, 56, 64, 116
        a("L_A_tail:\ns_waitcnt lgkmcnt(0)\ns_nop 7")
        a(f"s_mov_b32 s{S_K0}, {LOG2E:#x}\ns_mov_b32 s{S_K0+1}, {LOG2E:#x}\ns_mov_b32 s{S_K0+2}, {f2u(1e-6):#x}")

        def phi(base, n, t):
            for i in range(0, n, 4):
                r = base + i
                a(f"v_pk_mul_f32 {vr(t,2)}, {vr(r,2)}, s[{S_K0}:{S_K0+1}]")
                a(f"v_pk_mul_f32 {vr(t+2,2)}, {vr(r+2,2)}, s[{S_K0}:{S_K0+1}]")
                for k in range(4):
                    a(f"v_exp_f32_e64 v{t+k}, v{t+k} clamp")
                for k in range(4):
                    a(f"v_max_f32 v{r+k}, s{S_K0+2}, v{r+k}")
                a(f"v_pk_add_f32 {vr(r,2)}, {vr(r,2)}, {vr(t,2)}")
                a(f"v_pk_add_f32 {vr(r+2,2)}, {vr(r+2,2)}, {vr(t+2,2)}")

        def pack(dst, src0, src1):
            a(f"v_cvt_pk_bf16_f32 v{dst}, v{src0}, v{src0+1}\nv_cvt_pk_bf16_f32 v{dst+1}, v{src0+2}, v{src0+3}")
            if src1 is None:
                a(f"v_mov_b32 v{dst+2}, 0\nv_mov_b32 v{dst+3}, 0")
            else:
                a(f"v_cvt_pk_bf16_f32 v{dst+2}, v{src1}, v{src1+1}\nv_cvt_pk_bf16_f32 v{dst+3}, v{src1+2}, v{src1+3}")

        for b in range(5):
            pack(VV + 4 * b, ACC + (10 + b) * 8, ACC + (10 + b) * 8 + 4)
        for k in range(4):
            a(f"v_mov_b32 v{ONES+k}, 0x3f803f80")
        phi(ACC + 40, 40, 60)
        for b in range(5):
            pack(PK + 4 * b, ACC + (5 + b) * 8, ACC + (5 + b) * 8 + 4)
        a("s_nop 1")
        ZD = ACC + 80
        blocks = [(x, y) for x in range(5) for y in range(5) if abs(x - y) <= 1]
        for (x, y) in blocks:
            a(f"v_mfma_f32_16x16x32_bf16 {vr(KVD+4*(2*x+y),4)}, {vr(PK+4*x,4)}, {vr(VV+4*y,4)}, 0")
        for x in range(5):
            a(f"v_mfma_f32_16x16x32_bf16 {vr(ZD+4*x,4)}, {vr(ONES,4)}, {vr(PK+4*x,4)}, 0")
        a(f"""
        s_mul_i32 s{S_T0}, s{S_WAVE}, {EXCH_ST}
        s_add_u32 s{S_T0}, s{S_T0}, {EXCH}
        v_lshlrev_b32 v60, 4, v1
        v_add_u32 v60, s{S_T0}, v60
        v_and_b32 v61, 15, v1
        v_lshlrev_b32 v61, 2, v61
        v_add_u32 v61, s{S_T0}, v61
        s_nop 3
        """)
        for i in range(13):
            a(f"ds_write_b128 v60, {vr(KVD+4*i,4)} offset:{i*1024}")
        for x in range(5):
            a(f"ds_write_b32 v61, v{ZD+4*x} offset:{13312+64*x}")
        self.stamp(10, 40)
        a("s_waitcnt lgkmcnt(0)\ns_barrier")
        self.stamp(11, 40)
        self.a_reduce_publish(64)
        self.stamp(12, 40)
        a("v_lshlrev_b32 v59, 4, v1\ns_barrier")
        self.stamp(14, 40)
        self.wot_preload(59)
        PQ = 16
        phi(ACC, 40, 60)
        for ts in range(3):
            for rb in range(2):
                pack(PQ + (ts * 2 + rb) * 4, ACC + (2 * ts * 2 + rb) * 4, None if ts == 2 else ACC + ((2 * ts + 1) * 2 + rb) * 4)
        self.f_setup()
        a("s_barrier")
        a(f"""
        v_and_b32 v63, 15, v1
        v_lshlrev_b32 v63, 2, v63
        s_lshl_b32 s{S_T0}, s{S_MT}, 7
        s_lshl_b32 s{S_T0+1}, s{S_WAVE}, 5
        s_add_u32 s{S_T0}, s{S_T0}, s{S_T0+1}
        s_lshl_b32 s{S_T0}, s{S_T0}, 2
        s_add_u32 s{S_T0}, s{S_T0}, {G_OFF}
        buffer_load_dword v62, v63, s[{R_WS}:{R_WS+3}], s{S_T0} offen sc1
        buffer_load_dword v61, v63, s[{R_WS}:{R_WS+3}], s{S_T0} offen offset:64 sc1
        """)
        self.a_gather(64)
        a("s_waitcnt lgkmcnt(0)\ns_barrier")
        self.stamp(4, 40)
        FR = 64
        a("v_lshlrev_b32 v60, 4, v1\nv_add_u32 v60, " + str(KVT) + ", v60")
        used = [0, 2, 3, 4, 5, 7, 8, 9, 10, 11, 12, 13]
        for f in used:
            a(f"ds_read_b128 {vr(FR+4*f,4)}, v60 offset:{f*1024}")
        NUM, DEN = 128, 120
        kts = {0: [0], 1: [0, 1], 2: [0, 1], 3: [1, 2], 4: [1, 2]}
        a(f"""
        v_lshrrev_b32 v40, 4, v1
        v_cmp_gt_u32 s[{S_MSK}:{S_MSK+1}], 1, v40
        v_cmp_gt_u32 s[{S_MSK+2}:{S_MSK+3}], 2, v40
        v_cmp_gt_u32 s[{S_MSK+4}:{S_MSK+5}], 3, v40
        s_waitcnt lgkmcnt(0)
        """)
        for rb in range(2):
            for ts in range(3):
                c = "0" if ts == 0 else vr(DEN + 4 * rb, 4)
                a(f"v_mfma_f32_16x16x32_bf16 {vr(DEN+4*rb,4)}, {vr(FR+4*(11+ts),4)}, {vr(PQ+(ts*2+rb)*4,4)}, {c}")
        for rb in range(2):
            for b in range(5):
                for i, ts in enumerate(kts[b]):
                    d = vr(NUM + (rb * 5 + b) * 4, 4)
                    c = "0" if i == 0 else d
                    a(f"v_mfma_f32_16x16x32_bf16 {d}, {vr(FR+4*(2*b+ts),4)}, {vr(PQ+(ts*2+rb)*4,4)}, {c}")
        for rb in range(2):
            for h in range(4):
                a(f"v_add_f32 v{DEN+4*rb+h}, s{S_K0+2}, v{DEN+4*rb+h}")
        for rb in range(2):
            for h in range(4):
                a(f"v_rcp_f32 v{DEN+4*rb+h}, v{DEN+4*rb+h}")
        a("s_nop 0")
        gv = {0: 62, 1: 61}
        for rb in range(2):
            for h in range(4):
                a(f"v_mul_f32 v{DEN+4*rb+h}, v{gv[rb]}, v{DEN+4*rb+h}")
        a(f"""
        s_lshl_b32 s{S_T0}, s{S_MT}, 3
        s_lshl_b32 s{S_T0+1}, s{S_WAVE}, 1
        s_add_u32 s{S_T0}, s{S_T0}, s{S_T0+1}
        s_mul_i32 s{S_T0}, s{S_T0}, {GO_ST}
        s_add_u32 s{S_T0}, s{S_T0}, {GO}
        s_lshl_b32 s{S_T0+1}, s{S_HG}, 11
        s_add_u32 s{S_T0+1}, s{S_T0+1}, s{S_T0}
        s_lshl_b32 s{S_T0+2}, s{S_HG}, 9
        s_add_u32 s{S_T0+2}, s{S_T0+2}, s{S_T0}
        s_add_u32 s{S_T0+2}, s{S_T0+2}, 16384
        v_lshlrev_b32 v40, 4, v1
        v_lshlrev_b32 v41, 3, v1
        """)
        for rb in range(2):
            d = DEN + 4 * rb
            a(f"v_cndmask_b32 v44, v{d+1}, v{d}, s[{S_MSK}:{S_MSK+1}]")
            a(f"v_cndmask_b32 v45, v{d+2}, v{d+1}, s[{S_MSK+2}:{S_MSK+3}]")
            a(f"v_cndmask_b32 v46, v{d+3}, v{d+2}, s[{S_MSK+4}:{S_MSK+5}]")
            sc = [d, 44, 45, 46, d + 3]
            for b in range(5):
                for k in range(4):
                    r = NUM + (rb * 5 + b) * 4 + k
                    a(f"v_mul_f32 v{r}, v{sc[b]}, v{r}")
            o = 16 + rb * 12
            n0 = NUM + rb * 20
            pack(o, n0, n0 + 4)
            pack(o + 4, n0 + 8, n0 + 12)
            a(f"v_cvt_pk_bf16_f32 v{o+8}, v{n0+16}, v{n0+17}\nv_cvt_pk_bf16_f32 v{o+9}, v{n0+18}, v{n0+19}")
            a(f"buffer_store_dwordx4 {vr(o,4)}, v40, s[{R_WS}:{R_WS+3}], s{S_T0+1} offen sc1")
            a(f"buffer_store_dwordx4 {vr(o+4,4)}, v40, s[{R_WS}:{R_WS+3}], s{S_T0+1} offen offset:1024 sc1")
            a(f"buffer_store_dwordx2 {vr(o+8,2)}, v41, s[{R_WS}:{R_WS+3}], s{S_T0+2} offen sc1")
            if rb == 0:
                a(f"s_add_u32 s{S_T0+1}, s{S_T0+1}, {GO_ST}\ns_add_u32 s{S_T0+2}, s{S_T0+2}, {GO_ST}")
        self.stamp(5, 40)
        a("s_branch L_F_comp")

        a("L_A_loader:")
        VX, VW = 4, 8
        self.srd(R_W, P_WQKV, 640 * 3840)
        a(f"""
        s_sub_u32 s{S_D}, s{S_WAVE}, 4
        v_lshrrev_b32 v16, 3, v1
        v_lshrrev_b32 v17, 4, v1
        v_and_b32 v18, 7, v1
        v_xor_b32 v17, v17, v18
        v_lshlrev_b32 v17, 4, v17
        v_mul_u32_u24 v16, 1280, v16
        v_add_u32 v{VX}, v16, v17
        v_xor_b32 v18, 64, v{VX}
        v_add_u32 v{VX+1}, {8*1280-1024}, v18
        v_add_u32 v{VX+2}, {2*(8*1280-1024)}, v{VX}
        v_add_u32 v{VX+3}, {3*(8*1280-1024)}, v18
        s_lshl_b32 s{S_T0}, s{S_MT}, 7
        s_lshl_b32 s{S_T0+1}, s{S_D}, 5
        s_add_u32 s{S_T0}, s{S_T0}, s{S_T0+1}
        s_mul_i32 s{S_A}, s{S_T0}, 1280
        s_lshl_b32 s{S_C}, s{S_D}, 12
        """)
        def issue_x():
            a(f"s_mov_b32 m0, s{S_C}\ns_nop 0")
            for i in range(4):
                a(f"buffer_load_dwordx4 v{VX+i}, s[{R_X}:{R_X+3}], s{S_A} offen offset:{i*1024} lds")
            a(f"s_add_u32 s{S_A}, s{S_A}, 128")

        def issue_w():
            for g in range(2):
                a(f"s_lshl_b32 s{S_T0}, s{S_D}, 12\ns_add_u32 s{S_T0}, s{S_T0}, s{S_C}\ns_add_u32 m0, s{S_T0}, {A_WOFF + g*4096}\ns_nop 0")
                for i in range(4):
                    a(f"buffer_load_dwordx4 v{VW+4*g+i}, s[{R_W}:{R_W+3}], s{S_B} offen offset:{i*1024} lds")
            a(f"s_add_u32 s{S_B}, s{S_B}, {64*3840}")

        def next_slot():
            a(f"s_add_u32 s{S_C}, s{S_C}, {A_SLOT}\ns_cmp_ge_u32 s{S_C}, {3*A_SLOT}\ns_cselect_b32 s{S_T0}, {3*A_SLOT}, 0\ns_sub_u32 s{S_C}, s{S_C}, s{S_T0}")

        issue_x()
        a(f"""
        v_lshrrev_b32 v16, 5, v1
        v_bfe_u32 v17, v1, 1, 4
        v_and_b32 v18, 1, v1
        v_lshlrev_b32 v18, 4, v18
        v_mul_u32_u24 v19, 3840, v16
        v_add_u32 v18, v18, v19
        """)
        for i in (0, 1, 4, 5):
            sig = (2 * (i & 1)) | ((i >> 2) << 2)
            a(f"""
            v_or_b32 v19, {sig}, v16
            v_xor_b32 v19, v17, v19
            v_min_u32 v19, 14, v19
            v_mul_u32_u24 v20, 13, v19
            v_lshrrev_b32 v20, 6, v20
            v_mul_u32_u24 v20, 1120, v20
            v_lshl_add_u32 v19, v19, 5, v20
            v_add_u32 v19, v19, v18
            v_add_u32 v{VW+i}, {2*i*3840 - (i&3)*1024}, v19
            v_add_u32 v{VW+i+2}, {2*(i+2)*3840 - ((i+2)&3)*1024}, v19
            """)
        a(f"""
        s_mul_i32 s{S_B}, s{S_HG}, 160
        s_mul_i32 s{S_T0}, s{S_D}, {16*3840}
        s_add_u32 s{S_B}, s{S_B}, s{S_T0}
        """)
        issue_w()
        for _ in range(2):
            next_slot()
            issue_x()
            issue_w()
        a(f"s_waitcnt lgkmcnt(0)\ns_add_u32 s{S_TAG}, s{S_TAG}, {TAG_INC:#x}")
        a("s_waitcnt vmcnt(24)\ns_barrier")
        self.stamp(1, 16)
        rotA = self.o.get("rotA")
        if rotA:
            a(f"s_lshl_b32 s{S_M}, s{S_HG}, 1\ns_add_u32 s{S_M}, s{S_M}, s{S_MT}\ns_and_b32 s{S_M}, s{S_M}, 7")
            self.perm_setup(S_M, 7, 8, S_PERM, rotA)
            a(f"s_mov_b32 s{S_KST}, s{S_A}\ns_mov_b32 s{S_PAR}, s{S_B}")
        a(f"s_mov_b32 s{S_CNT}, 1\nL_A_lloop:")
        if rotA:
            a(self.perm_next(S_B, S_PERM, 1))
            a(f"s_lshl_b32 s{S_A}, s{S_B}, 7\ns_add_u32 s{S_A}, s{S_A}, s{S_KST}\ns_mul_i32 s{S_B}, s{S_B}, {64*3840}\ns_add_u32 s{S_B}, s{S_B}, s{S_PAR}")
        a("s_waitcnt vmcnt(12)\ns_barrier")
        self.stamp(16, 16, dyn=S_CNT)
        next_slot()
        issue_x()
        issue_w()
        a(f"s_add_u32 s{S_CNT}, s{S_CNT}, 1\ns_cmp_le_u32 s{S_CNT}, 7\ns_cbranch_scc1 L_A_lloop")
        tw = 1 if self.o.get("tw2") in (1, 3) else 0
        if self.o.get("tw2") == 3:
            self.w2_touch()
        a(f"s_waitcnt vmcnt({12 + (tw if self.o.get('tw2') == 3 else 0)})\ns_barrier")
        if self.o.get("tw2") == 1:
            self.w2_touch()
        self.stamp(24, 16)
        self.w2_setup()
        self.a_thread_map()
        a(f"""
        s_mul_i32 s{S_T0}, s{S_DTILE}, {FS}
        s_add_u32 s{S_T0}, s{S_T0}, {F_WOT}
        v_mov_b32 v26, s{S_T0}
        v_and_b32 v27, 3, v1
        s_lshl_b32 s{S_T0}, s{S_MT}, 2
        v_add_u32 v27, s{S_T0}, v27
        v_mul_u32_u24 v27, {FS}, v27
        v_add_u32 v27, {F_LN}, v27
        v_cmp_gt_u32 vcc, 32, v1
        s_nop 1
        v_cndmask_b32 v26, v27, v26, vcc
        """)
        a(f"s_waitcnt vmcnt({tw})\ns_barrier")
        a(f"buffer_load_dword v28, v26, s[{R_WS}:{R_WS+3}], 0 offen sc1")
        self.stamp(25, 16)
        self.code_touch([("L_A_tail", 0), ("L_A_post", 0), ("L_F_comp", 0), ("L_F_comp", 1)])
        a("L_A_post:")
        eA = self.o.get("eA", 2)
        early = [3, 4, 5, 0, 1, 2]
        nE = self.o.get("nE", 6)
        sk = self.if_wave56()
        for p in early[:eA]:
            self.w2_issue_at(p)
        a(f"{sk}:\ns_barrier")
        self.stamp(26, 16)
        sk = self.if_wave56()
        for p in early[eA:nE]:
            self.w2_issue_at(p)
        a(f"{sk}:")
        a(f"s_cmp_eq_u32 s{S_WAVE}, 7\ns_cbranch_scc1 L_A_poller")
        a("s_barrier")
        self.a_reduce_publish(64)
        self.stamp(15, 40)
        a("s_barrier")
        self.kvt_zero()
        skip = self.if_wave56()
        for p in early[nE:] + [6, 7]:
            self.w2_issue_at(p)
        a(f"s_mov_b32 s{S_PERM}, s{S_PERM+1}")
        a("s_barrier")
        self.a_gather(64)
        a("s_waitcnt lgkmcnt(0)\ns_barrier")
        a("s_branch L_F_loader")
        a(f"{skip}:\ns_barrier")
        self.a_gather(64)
        a("s_waitcnt lgkmcnt(0)\ns_barrier")
        a("s_branch L_F_u4")
        a("L_A_poller:")
        a(f"s_waitcnt vmcnt(0)\nv_cmp_ne_u32 vcc, s{S_TAG}, v28\ns_nop 1\ns_cmp_eq_u64 vcc, 0\ns_cbranch_scc1 L_A_pok")
        self.poll([26], 18)
        a("L_A_pok:")
        self.stamp(13, 16)
        a("s_barrier\ns_barrier")
        self.kvt_zero()
        self.stamp(3, 16)
        a("s_barrier\ns_barrier")
        a("s_branch L_F_poller")
        self.a_gather_body(64)

    def code_touch(self, ranges):
        a = self.a
        if not self.o.get("ctouch"):
            return 0
        lab, ref = a.label("nct"), a.label("pc")
        a(f"s_cmp_lg_u32 s{S_WAVE}, 7\ns_cbranch_scc1 {lab}\ns_getpc_b64 s[{S_T0}:{S_T0+1}]\n{ref}:\nv_lshlrev_b32 v24, 7, v1")
        for (start, k) in ranges:
            a(f"s_add_u32 s{S_T0+2}, s{S_T0}, {start}-{ref}+{k*8192}\ns_addc_u32 s{S_T0+3}, s{S_T0+1}, {'-1' if start == 'L_A_tail' else '0'}")
            a(f"v_min_u32 v25, L_exit-{start}-{k*8192}, v24\nglobal_load_dword v253, v25, s[{S_T0+2}:{S_T0+3}]")
        a(f"{lab}:")
        return len(ranges)

    def kvt_zero(self):
        a = self.a
        a(f"v_lshlrev_b32 v16, 4, v1\ns_lshl_b32 s{S_T0}, s{S_D}, 12\ns_add_u32 s{S_T0}, s{S_T0}, {KVT}\nv_add_u32 v16, s{S_T0}, v16")
        a("v_mov_b32 v20, 0\nv_mov_b32 v21, 0\nv_mov_b32 v22, 0\nv_mov_b32 v23, 0")
        for i in range(4):
            a(f"ds_write_b128 v16, v[20:23] offset:{i*1024}")
        a("s_waitcnt lgkmcnt(0)")

    def start_prefetch(self):
        a = self.a
        self.srd(R_W, P_WQKV, 640 * 3840)
        a(f"""
        s_lshl_b32 s{S_T0}, s{S_J}, 2
        s_add_u32 s{S_T0}, s{S_T0}, s{S_WAVE}
        v_lshrrev_b32 v16, 2, v1
        v_and_b32 v17, 3, v1
        v_mul_u32_u24 v16, 1280, v16
        v_lshl_add_u32 v16, v17, 7, v16
        s_lshr_b32 s{S_T0+2}, s{S_MT}, 3
        s_lshl_b32 s{S_T0+2}, s{S_T0+2}, 7
        s_add_u32 s{S_T0+2}, s{S_T0+2}, s{S_T0}
        s_mul_i32 s{S_DT}, s{S_T0+2}, {8*1280}
        v_lshrrev_b32 v19, 4, v1
        v_and_b32 v17, 15, v1
        v_min_u32 v17, 14, v17
        v_mul_u32_u24 v18, 13, v17
        v_lshrrev_b32 v18, 6, v18
        v_mul_u32_u24 v18, 640, v18
        v_lshl_add_u32 v18, v17, 7, v18
        v_mul_u32_u24 v19, 3840, v19
        v_add_u32 v112, v18, v19
        s_lshr_b32 s{S_T0+2}, s{S_HG}, 2
        s_mul_i32 s{S_T0+2}, s{S_T0+2}, 640
        s_mul_i32 s{S_FT}, s{S_T0}, {2*3840}
        s_add_u32 s{S_FT}, s{S_FT}, s{S_T0+2}
        """)
        if self.o.get("ta1"):
            a(f"""
            s_mov_b32 exec_hi, 0
            buffer_load_dword v253, v112, s[{R_W}:{R_W+3}], s{S_FT} offen {self.nt('nta')}
            buffer_load_dword v253, v16, s[{R_X}:{R_X+3}], s{S_DT} offen {self.nt('ntax')}
            s_mov_b32 exec_hi, -1
            """)
        a(f"""
        s_mul_i32 s{S_FT}, s{S_T0}, {3*3840}
        s_add_u32 s{S_FT}, s{S_FT}, s{S_T0+2}
        s_add_u32 s{S_FT}, s{S_FT}, {256*3840}
        v_lshrrev_b32 v16, 3, v1
        v_and_b32 v17, 7, v1
        v_min_u32 v17, 5, v17
        v_mul_u32_u24 v16, 1280, v16
        v_lshl_add_u32 v113, v17, 7, v16
        s_add_u32 s{S_DT}, s{S_DT}, 512
        """)

    def pf_rest_plain(self):
        return f"""s_waitcnt vmcnt(0)
        s_mov_b32 exec_hi, 0xffff
        buffer_load_dword v253, v112, s[{R_W}:{R_W+3}], s{S_FT} offen
        s_mov_b32 exec_hi, -1
        buffer_load_dword v253, v113, s[{R_X}:{R_X+3}], s{S_DT} offen
        """

    def pf_rest(self):
        return f"""s_mov_b32 exec_hi, 0xffff
        buffer_load_dword v253, v112, s[{R_W}:{R_W+3}], s{S_FT} offen {self.nt('nta')}
        s_mov_b32 exec_hi, -1
        buffer_load_dword v253, v113, s[{R_X}:{R_X+3}], s{S_DT} offen {self.nt('ntax')}
        """

    def w2_touch(self):
        a = self.a
        assert self.o.get("hW2") and self.o.get("woLN")
        a(f"""
        v_lshlrev_b32 v48, 7, v1
        s_lshl_b32 s{S_T0}, s{S_MT}, 3
        s_add_u32 s{S_T0}, s{S_T0}, s{S_HG}
        s_lshl_b32 s{S_T0}, s{S_T0}, 2
        s_add_u32 s{S_T0}, s{S_T0}, s{S_D}
        s_lshl_b32 s{S_T0}, s{S_T0}, 13
        buffer_load_dword v253, v48, s[{R_W2}:{R_W2+3}], s{S_T0} offen
        """)

    def tlb_warm(self):
        a = self.a
        mode = self.o["tlb"]
        wv = self.o.get("tlbw", 3)
        a(f"s_cmp_lg_u32 s{S_WAVE}, {wv}\ns_cbranch_scc1 L_notlb")
        self.srd(R_OUT, P_OUT, 2048 * 1280)
        self.srd(R_M, P_B2, 4096)
        self.srd(R_P, P_WO, 640 * 1280)
        self.srd(R_W, P_W1, 2048 * 3072)
        if mode == 1:
            a("v_lshlrev_b32 v4, 20, v1\nv_min_u32 v4, 0xf00000, v4\ns_mov_b64 exec, 0xffff")
            so = "0"
        else:
            a(f"v_lshlrev_b32 v4, 21, v1\ns_lshl_b32 s{S_T0}, s{S_J}, 16\ns_mov_b64 exec, 0x1f")
            so = f"s{S_T0}"
        for r in (R_WS, R_W2, R_OUT, R_W, R_P, R_M):
            a(f"buffer_load_dword v253, v4, s[{r}:{r+3}], {so} offen sc1")
        a("s_mov_b64 exec, -1\nL_notlb:")

    def code_prefetch(self):
        a = self.a
        a(f"""
        s_cmp_lg_u32 s{S_WAVE}, 3
        s_cbranch_scc1 L_nocpf
        s_cmp_ge_u32 s{S_J}, 5
        s_cbranch_scc1 L_nocpf
        s_getpc_b64 s[{S_T0}:{S_T0+1}]
        L_pcref:
        s_lshl_b32 s{S_T0+2}, s{S_J}, 13
        v_lshlrev_b32 v4, 7, v1
        v_add_u32 v4, s{S_T0+2}, v4
        v_min_u32 v4, L_end-L_pcref, v4
        global_load_dword v253, v4, s[{S_T0}:{S_T0+1}]
        L_nocpf:
        """)

    def a_thread_map(self):
        a = self.a
        a(f"""
        v_mul_u32_u24 v16, 625, v0
        v_lshrrev_b32 v16, 16, v16
        v_mul_u32_u24 v17, 105, v16
        v_sub_u32 v17, v0, v17
        v_mul_u32_u24 v19, 205, v17
        v_lshrrev_b32 v19, 12, v19
        v_mul_u32_u24 v18, 20, v19
        v_cmp_lt_u32 vcc, 99, v17
        v_sub_u32 v18, v17, v18
        s_nop 0
        v_cndmask_b32 v19, v19, v18, vcc
        v_mad_u32_u24 v19, v16, 5, v19
        v_mad_u32_u24 v20, v16, 20, v18
        v_lshrrev_b32 v21, 2, v19
        v_and_b32 v22, 3, v19
        v_lshrrev_b32 v23, 4, v20
        v_and_b32 v20, 15, v20
        v_lshl_add_u32 v20, v22, 4, v20
        v_lshl_add_u32 v2, v21, 1, v23
        v_lshlrev_b32 v2, 6, v2
        v_add_u32 v2, v2, v20
        v_lshlrev_b32 v2, 4, v2
        v_lshlrev_b32 v3, 4, v19
        v_add_u32 v3, 13312, v3
        v_cmp_lt_u32 vcc, 99, v17
        v_lshrrev_b32 v24, 1, v21
        v_and_b32 v21, 1, v21
        v_cndmask_b32 v2, v2, v3, vcc
        v_lshl_add_u32 v3, v23, 1, v24
        v_add_u32 v24, 11, v24
        v_lshl_add_u32 v22, v22, 4, v16
        v_cndmask_b32 v3, v3, v24, vcc
        v_cndmask_b32 v20, v20, v22, vcc
        v_lshl_add_u32 v3, v3, 6, v20
        v_lshlrev_b32 v3, 4, v3
        v_lshl_add_u32 v3, v21, 3, v3
        v_add_u32 v3, {KVT}, v3
        v_mov_b32 v25, 2
        v_cndmask_b32 v25, 1, v25, vcc
        v_mov_b32 v16, 420
        v_cmp_gt_u32 vcc, v16, v0
        v_lshlrev_b32 v14, 4, v0
        s_nop 0
        v_cndmask_b32 v15, 0, v25, vcc
        v_cndmask_b32 v2, 0, v2, vcc
        v_add_u32 v2, {EXCH}, v2
        """)

    def a_reduce_publish(self, T):
        a = self.a
        for w in range(4):
            a(f"ds_read_b128 {vr(T+4*w,4)}, v2 offset:{w*EXCH_ST}")
        a(f"""
        s_lshl_b32 s{S_T0}, s{S_HG}, 4
        s_add_u32 s{S_T0}, s{S_T0}, s{S_MT}
        s_mul_i32 s{S_T0}, s{S_T0}, {KVP_ST}
        s_add_u32 s{S_T0}, s{S_T0}, {KVP}
        v_cmp_ne_u32 vcc, 0, v15
        s_waitcnt lgkmcnt(0)
        v_pk_add_f32 {vr(T,2)}, {vr(T,2)}, {vr(T+4,2)}
        v_pk_add_f32 {vr(T+2,2)}, {vr(T+2,2)}, {vr(T+6,2)}
        v_pk_add_f32 {vr(T+8,2)}, {vr(T+8,2)}, {vr(T+12,2)}
        v_pk_add_f32 {vr(T+10,2)}, {vr(T+10,2)}, {vr(T+14,2)}
        v_pk_add_f32 {vr(T,2)}, {vr(T,2)}, {vr(T+8,2)}
        v_pk_add_f32 {vr(T+2,2)}, {vr(T+2,2)}, {vr(T+10,2)}
        v_mov_b32_sdwa v{T}, s{S_TAG} dst_sel:BYTE_0 dst_unused:UNUSED_PRESERVE src0_sel:BYTE_0
        v_mov_b32_sdwa v{T+1}, s{S_TAG} dst_sel:BYTE_0 dst_unused:UNUSED_PRESERVE src0_sel:BYTE_1
        v_mov_b32_sdwa v{T+2}, s{S_TAG} dst_sel:BYTE_0 dst_unused:UNUSED_PRESERVE src0_sel:BYTE_2
        v_mov_b32_sdwa v{T+3}, s{S_TAG} dst_sel:BYTE_0 dst_unused:UNUSED_PRESERVE src0_sel:BYTE_3
        s_mov_b64 exec, vcc
        buffer_store_dwordx4 {vr(T,4)}, v14, s[{R_WS}:{R_WS+3}], s{S_T0} offen sc1
        s_mov_b64 exec, -1
        """)

    S_RET = 88

    def a_gather(self, T):
        self.a(f"s_call_b64 s[{self.S_RET}:{self.S_RET+1}], L_gather")

    def a_gather_body(self, T):
        a = self.a
        MK = S_T0 + 4
        a("L_gather:")
        a(f"s_mul_i32 s{S_T0+1}, s{S_HG}, {16*KVP_ST}\ns_add_u32 s{S_T0+1}, s{S_T0+1}, {KVP}")
        a(f"v_cmp_ne_u32 s[{MK}:{MK+1}], 0, v15\ns_mov_b32 s{S_CNT}, 0\ns_lshl_b32 s{S_T0+2}, s{S_MT}, 1\ns_mov_b64 exec, s[{MK}:{MK+1}]")

        def pair(m):
            a(f"s_add_u32 s{S_T0}, s{S_T0+2}, {m}\ns_and_b32 s{S_T0}, s{S_T0}, 15\ns_mul_i32 s{S_T0}, s{S_T0}, {KVP_ST}\ns_add_u32 s{S_T0}, s{S_T0}, s{S_T0+1}")
            a(f"buffer_load_dwordx4 {vr(T+4*m,4)}, v14, s[{R_WS}:{R_WS+3}], s{S_T0} offen sc1\ns_add_u32 s{S_T0}, s{S_T0}, {KVP_ST}")
            a(f"buffer_load_dwordx4 {vr(T+4*m+4,4)}, v14, s[{R_WS}:{R_WS+3}], s{S_T0} offen sc1")
        for m in range(0, 16, 2):
            pair(m)
        for m in range(0, 16, 2):
            a(f"s_waitcnt vmcnt({14-m})\nL_gchk{m}:")
            for q in range(8):
                a(f"v_cmpx_eq_u32_sdwa vcc, v{T+4*m+q}, s{S_TAG} src0_sel:BYTE_0 src1_sel:BYTE_{q & 3}")
            a(f"""
            s_add_u32 s{S_CNT}, s{S_CNT}, 1
            s_cmp_eq_u64 exec, s[{MK}:{MK+1}]
            s_mov_b64 exec, s[{MK}:{MK+1}]
            s_cbranch_scc1 L_gok{m}
            s_cmp_ge_u32 s{S_CNT}, {SPIN_LIMIT}
            s_cbranch_scc1 L_gok{m}
            """)
            pair(m)
            a(f"s_waitcnt vmcnt(0)\ns_branch L_gchk{m}\nL_gok{m}:")
            for q in range(8):
                a(f"v_and_b32 v{T+4*m+q}, 0xffffff00, v{T+4*m+q}")
            for h in (0, 2):
                a(f"v_pk_add_f32 {vr(T+4*m+h,2)}, {vr(T+4*m+h,2)}, {vr(T+4*(m+1)+h,2)}")
            if m >= 2:
                for h in (0, 2):
                    a(f"v_pk_add_f32 {vr(T+h,2)}, {vr(T+h,2)}, {vr(T+4*m+h,2)}")
        a("s_mov_b64 exec, -1")
        a(f"""
        v_cvt_pk_bf16_f32 v{T}, v{T}, v{T+1}
        v_cvt_pk_bf16_f32 v{T+1}, v{T+2}, v{T+3}
        v_cmp_ne_u32 vcc, 0, v15
        v_cmp_eq_u32 s[{S_T0}:{S_T0+1}], 2, v15
        s_nop 1
        s_mov_b64 exec, vcc
        ds_write_b64 v3, {vr(T,2)}
        s_mov_b64 exec, s[{S_T0}:{S_T0+1}]
        ds_write_b64 v3, {vr(T,2)} offset:64
        ds_write_b64 v3, {vr(T,2)} offset:128
        ds_write_b64 v3, {vr(T,2)} offset:192
        s_mov_b64 exec, -1
        s_setpc_b64 s[{self.S_RET}:{self.S_RET+1}]
        """)

    def role_b(self):
        a = self.a
        a(f"L_roleB:\ns_mov_b32 s{S_FROMA}, 0")
        XR, B1R, GR, XS = 16, 36, 64, 84
        VPF = 8
        a(f"s_cmp_ge_u32 s{S_J}, 16\ns_cbranch_scc1 L_B_pfrole")
        a(f"""
        s_lshl_b32 s{S_KST}, s{S_XCD}, 4
        s_add_u32 s{S_KST}, s{S_KST}, s{S_J}
        s_lshl_b32 s{S_T0}, s{S_KST}, 3
        s_add_u32 s{S_T0}, s{S_T0}, s{S_WAVE}
        s_mul_i32 s{S_T0}, s{S_T0}, {4*1280}
        v_lshrrev_b32 v2, 4, v1
        v_and_b32 v3, 15, v1
        v_lshlrev_b32 v3, 4, v3
        v_mul_u32_u24 v4, 1280, v2
        v_add_u32 v4, v4, v3
        """)
        for c in ((2, 3, 4, 0, 1) if self.o.get("xord") else range(5)):
            a(f"buffer_load_dwordx4 {vr(XR+4*c,4)}, v4, s[{R_X}:{R_X+3}], s{S_T0} offen offset:{c*256} {self.nt('ntx')}")
        self.srd(R_M, P_GATE, 1280)
        for c in range(5):
            a(f"buffer_load_dwordx4 {vr(GR+4*c,4)}, v3, s[{R_M}:{R_M+3}], 0 offen offset:{c*256}")

        def common_setup():
            a(f"""
            s_mul_i32 s{S_M}, s{S_J}, 205
            s_lshr_b32 s{S_M}, s{S_M}, 10
            s_mul_i32 s{S_DT}, s{S_M}, 5
            s_sub_u32 s{S_DT}, s{S_J}, s{S_DT}
            s_mul_i32 s{S_FT}, s{S_XCD}, 6
            s_add_u32 s{S_FT}, s{S_FT}, s{S_M}
            """)
            self.srd(R_OUT, P_B1, 3072)
            a(f"v_lshrrev_b32 v5, 4, v1\nv_lshlrev_b32 v5, 3, v5\ns_lshl_b32 s{S_T0}, s{S_FT}, 7")
            for b in range(4):
                a(f"buffer_load_dwordx2 {vr(B1R+2*b,2)}, v5, s[{R_OUT}:{R_OUT+3}], s{S_T0} offen offset:{b*32}")
            a(f"""
            v_lshrrev_b32 v12, 3, v1
            v_lshrrev_b32 v13, 4, v1
            v_lshlrev_b32 v13, 1, v13
            v_and_b32 v14, 7, v1
            v_xor_b32 v13, v13, v14
            v_lshlrev_b32 v13, 4, v13
            v_mul_u32_u24 v12, 3072, v12
            v_add_u32 v{VPF}, v12, v13
            v_add_u32 v{VPF+1}, {8*3072-1024}, v{VPF}
            v_add_u32 v{VPF+2}, {2*(8*3072-1024)}, v{VPF}
            v_add_u32 v{VPF+3}, {3*(8*3072-1024)}, v{VPF}
            """)
            self.perm_setup(S_M, 16, 6, S_PERM, self.o.get("rotB"))
            a(f"""
            s_and_b32 s{S_T0}, s{S_WAVE}, 3
            s_lshl_b32 s{S_B}, s{S_T0}, 12
            s_mul_i32 s{S_A}, s{S_T0}, {32*3072}
            s_lshl_b32 s{S_T0}, s{S_FT}, 7
            s_add_u32 s{S_A}, s{S_A}, s{S_T0}
            """)

        def w1_at(p):
            a(f"s_bfe_u32 s{S_T0}, s{S_PERM}, {(4 << 16) | (4 * p):#x}\ns_mul_i32 s{S_T0}, s{S_T0}, {128*3072}")
            a(f"s_add_u32 m0, s{S_B}, {p*16384}\ns_add_u32 s{S_T0}, s{S_T0}, s{S_A}")
            for i in range(4):
                a(f"buffer_load_dwordx4 v{VPF+i}, s[{R_W}:{R_W+3}], s{S_T0} offen offset:{i*1024} lds")
        early = [3, 4, 5, 6, 7][:self.o.get("early", 0)]

        def wq_touch():
            self.srd(R_M, P_WQKV, 640 * 3840)
            a(f"""
            v_lshlrev_b32 v6, 7, v1
            s_mul_i32 s{S_T0+1}, s{S_T0+1}, 2880
            s_add_u32 s{S_T0+1}, s{S_T0+1}, {256*3840}
            s_mov_b64 exec, 0xffffff
            buffer_load_dword v253, v6, s[{R_M}:{R_M+3}], s{S_T0+1} offen
            s_mov_b64 exec, -1
            """)

        self.srd(R_W, P_W1, 2048 * 3072)
        common_setup()
        a("v_mov_b32 v124, 0\nv_mov_b32 v125, 0\nv_mov_b32 v126, 0x3f803f80\ns_waitcnt vmcnt(4)")
        self.stamp(11, 44)
        if early:
            a(f"s_cmp_lt_u32 s{S_WAVE}, 4\ns_cbranch_scc1 L_B_noearly")
            for p in early:
                w1_at(p)
            a("L_B_noearly:")
        for c in range(20):
            a(f"v_dot2c_f32_bf16 v124, v{XR+c}, v126\nv_lshlrev_b32 v{XS+2*c}, 16, v{XR+c}")
            a(f"v_dot2c_f32_bf16 v125, v{XR+c}, v{GR+c}\nv_and_b32 v{XS+2*c+1}, 0xffff0000, v{XR+c}")
        a("s_nop 1")

        def reduce16(regs):
            for mode in ("quad_perm:[1,0,3,2]", "quad_perm:[2,3,0,1]", "row_half_mirror", "row_mirror"):
                for r in regs:
                    a(f"v_add_f32_dpp v{r}, v{r}, v{r} {mode} row_mask:0xf bank_mask:0xf")
                a("s_nop 1" if len(regs) == 1 else "s_nop 0")

        reduce16([124, 125])
        a(f"""
        v_mul_f32 v126, {f2u(-1.0/640):#x}, v124
        v_mul_f32 v127, {f2u(-1.0/640):#x}, v124
        v_mul_f32 v125, {f2u(-1.4426950408889634):#x}, v125
        v_mov_b32 v128, 0
        v_mov_b32 v129, 0
        v_mov_b32 v130, 0
        v_mov_b32 v131, 0
        v_mov_b32 v132, 0
        v_mov_b32 v133, 0
        v_mov_b32 v134, 0
        v_mov_b32 v135, 0
        v_exp_f32 v125, v125
        """)
        for c in range(20):
            a(f"v_pk_add_f32 {vr(XS+2*c,2)}, {vr(XS+2*c,2)}, v[126:127]")
        a("v_add_f32 v125, 1.0, v125\nv_rcp_f32 v125, v125")
        for c in range(20):
            t = 128 + 2 * (c & 3)
            a(f"v_pk_fma_f32 {vr(t,2)}, {vr(XS+2*c,2)}, {vr(XS+2*c,2)}, {vr(t,2)}")
        a("v_pk_add_f32 v[128:129], v[128:129], v[130:131]\nv_pk_add_f32 v[132:133], v[132:133], v[134:135]\nv_pk_add_f32 v[128:129], v[128:129], v[132:133]\nv_add_f32 v128, v128, v129\ns_nop 1")
        reduce16([128])
        a(f"v_mov_b32 v126, {f2u(1e-5):#x}\nv_fmac_f32 v126, {f2u(1.0/640):#x}, v128\nv_rsq_f32 v126, v126")
        a(f"""
        s_lshl_b32 s{S_T0}, s{S_WAVE}, 2
        v_add_u32 v2, s{S_T0}, v2
        v_mov_b32 v127, v126
        v_mul_u32_u24 v4, {LN_ST}, v2
        v_add_u32 v4, v4, v3
        v_lshlrev_b32 v2, 2, v2
        """)
        for c4 in range(5):
            for c in range(4 * c4, 4 * c4 + 4):
                a(f"v_pk_mul_f32 {vr(XS+2*c,2)}, {vr(XS+2*c,2)}, v[126:127]")
            for c in range(4 * c4, 4 * c4 + 4):
                a(f"v_cvt_pk_bf16_f32 v{XR+c}, v{XS+2*c}, v{XS+2*c+1}")
            a(f"ds_write_b128 v4, {vr(XR+4*c4,4)} offset:{LNBUF + c4*256}")
        a(f"ds_write_b32 v2, v125 offset:{LNG}")
        a(f"""
        v_and_b32 v12, 15, v1
        v_lshrrev_b32 v13, 4, v1
        v_lshrrev_b32 v15, 2, v12
        v_lshl_add_u32 v15, v13, 2, v15
        v_mul_u32_u24 v15, {LN_ST}, v15
        v_and_b32 v2, 3, v12
        v_lshl_add_u32 v15, v2, 3, v15
        s_mul_i32 s{S_T0}, s{S_WAVE}, 160
        v_add_u32 v15, s{S_T0}, v15
        v_lshlrev_b32 v14, 4, v1
        v_lshlrev_b32 v2, 2, v1
        s_mul_i32 s{S_T0}, s{S_WAVE}, {5*65536}
        s_lshl_b32 s{S_T0+1}, s{S_KST}, 10
        s_add_u32 s{S_T0}, s{S_T0}, s{S_T0+1}
        s_add_u32 s{S_T0}, s{S_T0}, {HT}
        s_waitcnt lgkmcnt(0)
        s_add_u32 s{S_TAG}, s{S_TAG}, {TAG_INC:#x}
        s_barrier
        """)
        self.stamp(12, 44)
        for i in range(5):
            a(f"ds_read_b64_tr_b16 {vr(44+4*i,2)}, v15 offset:{LNBUF + i*32}")
            a(f"ds_read_b64_tr_b16 {vr(46+4*i,2)}, v15 offset:{LNBUF + i*32+16*LN_ST}")
        a(f"ds_read_b32 v125, v2 offset:{LNG}")
        for i in range(5):
            a(f"s_waitcnt lgkmcnt({9-2*i})")
            a(f"buffer_store_dwordx4 {vr(44+4*i,4)}, v14, s[{R_WS}:{R_WS+3}], s{S_T0} offen sc1")
            if i < 4:
                a(f"s_add_u32 s{S_T0}, s{S_T0}, 65536")
        a(f"""
        s_cmp_lg_u32 s{S_WAVE}, 0
        s_cbranch_scc1 L_B_nog
        s_lshl_b32 s{S_T0}, s{S_KST}, 7
        s_add_u32 s{S_T0}, s{S_T0}, {G_OFF}
        s_waitcnt lgkmcnt(0)
        s_mov_b32 exec_hi, 0
        buffer_store_dword v125, v2, s[{R_WS}:{R_WS+3}], s{S_T0} offen sc1
        s_mov_b32 exec_hi, -1
        L_B_nog:
        s_waitcnt vmcnt(0) lgkmcnt(0)
        s_barrier
        s_cmp_lg_u32 s{S_WAVE}, 0
        s_cbranch_scc1 L_B_nofl
        s_mul_i32 s{S_T0}, s{S_KST}, {FS}
        s_add_u32 s{S_T0}, s{S_T0}, {F_LN}
        """)
        self.flag_store(S_T0, 12)
        self.stamp(1, 12)
        a("L_B_nofl:")
        if self.o.get("woLN"):
            self.srd(R_M, P_WO, 640 * 1280)
            a(f"""
            s_lshl_b32 s{S_T0+1}, s{S_KST}, 3
            s_add_u32 s{S_T0+1}, s{S_T0+1}, s{S_WAVE}
            s_mul_i32 s{S_T0+1}, s{S_T0+1}, 1664
            v_lshlrev_b32 v6, 7, v1
            s_mov_b64 exec, 0x1fff
            buffer_load_dword v253, v6, s[{R_M}:{R_M+3}], s{S_T0+1} offen
            s_mov_b64 exec, -1
            """)
        if self.o.get("wq") == 1:
            a(f"s_lshl_b32 s{S_T0+1}, s{S_KST}, 3\ns_add_u32 s{S_T0+1}, s{S_T0+1}, s{S_WAVE}")
            wq_touch()
        if self.o.get("wq") == 3:
            a(f"""
            s_lshl_b32 s{S_T0}, s{S_J}, 3
            s_add_u32 s{S_T0}, s{S_T0}, s{S_WAVE}
            s_add_u32 s{S_T0}, s{S_T0}, 128
            v_lshrrev_b32 v6, 3, v1
            v_and_b32 v7, 7, v1
            v_min_u32 v7, 5, v7
            v_mul_u32_u24 v6, 3072, v6
            v_lshl_add_u32 v7, v7, 7, v6
            s_mul_i32 s{S_T0}, s{S_T0}, {8*3072}
            s_mul_i32 s{S_T0+2}, s{S_XCD}, 768
            s_add_u32 s{S_T0}, s{S_T0}, s{S_T0+2}
            buffer_load_dword v253, v7, s[{R_W}:{R_W+3}], s{S_T0} offen {self.nt('ntw1')}
            """)
        a("s_branch L_B_join")
        a("L_B_pfrole:")
        self.srd(R_W, P_W1, 2048 * 3072)
        if self.o.get("pfdelay"):
            common_setup()
            a("s_waitcnt vmcnt(0)")
        wq = self.o.get("wq", 0)
        xh = self.o.get("xhelp", 0)
        if xh:
            self.srd(R_M, P_GATE, 1280)
            a(f"""
            s_cmp_ge_u32 s{S_WAVE}, {xh}
            s_cbranch_scc1 L_B_noxh
            s_lshl_b32 s{S_T0}, s{S_XCD}, 4
            s_add_u32 s{S_T0}, s{S_T0}, s{S_J}
            s_sub_u32 s{S_T0}, s{S_T0}, 16
            s_mul_i32 s{S_T0}, s{S_T0}, {32*1280}
            s_lshl_b32 s{S_T0+1}, s{S_WAVE}, 8
            s_sub_u32 s{S_T0}, s{S_T0}, s{S_T0+1}
            s_add_u32 s{S_T0}, s{S_T0}, 1024
            v_lshrrev_b32 v6, 1, v1
            v_and_b32 v7, 1, v1
            v_mul_u32_u24 v6, 1280, v6
            v_lshl_add_u32 v6, v7, 7, v6
            buffer_load_dword v253, v6, s[{R_X}:{R_X+3}], s{S_T0} offen
            v_lshlrev_b32 v6, 7, v1
            L_B_noxh:
            s_cmp_lg_u32 s{S_WAVE}, 7
            s_cbranch_scc1 L_B_noxg
            v_lshlrev_b32 v6, 7, v1
            buffer_load_dword v253, v6, s[{R_M}:{R_M+3}], 0 offen
            L_B_noxg:
            """)
        a(f"""
        s_sub_u32 s{S_T0}, s{S_J}, 16
        s_lshl_b32 s{S_T0}, s{S_T0}, 3
        s_add_u32 s{S_T0}, s{S_T0}, s{S_WAVE}
        s_lshl_b32 s{S_T0+1}, s{S_XCD}, 7
        s_add_u32 s{S_T0+1}, s{S_T0+1}, s{S_T0}
        v_lshrrev_b32 v6, 3, v1
        v_and_b32 v7, 7, v1
        v_min_u32 v7, 5, v7
        v_mul_u32_u24 v6, 3072, v6
        v_lshl_add_u32 v7, v7, 7, v6
        s_mul_i32 s{S_T0}, s{S_T0}, {8*3072}
        s_mul_i32 s{S_T0+2}, s{S_XCD}, 768
        s_add_u32 s{S_T0}, s{S_T0}, s{S_T0+2}
        buffer_load_dword v253, v7, s[{R_W}:{R_W+3}], s{S_T0} offen {self.nt('ntw1')}
        """)
        if wq in (0, 3):
            wq_touch()
        def stag_touch():
            a(f"""
            s_lshl_b32 s{S_T0}, s{S_J}, 2
            s_and_b32 s{S_T0+1}, s{S_WAVE}, 3
            s_add_u32 s{S_T0}, s{S_T0}, s{S_T0+1}
            s_add_u32 s{S_T0}, s{S_T0}, 128
            s_mul_i32 s{S_T0}, s{S_T0}, {8*3072}
            s_mul_i32 s{S_T0+1}, s{S_XCD}, 768
            s_add_u32 s{S_T0}, s{S_T0}, s{S_T0+1}
            v_lshrrev_b32 v6, 3, v1
            v_and_b32 v7, 7, v1
            v_min_u32 v7, 5, v7
            v_mul_u32_u24 v6, 3072, v6
            v_lshl_add_u32 v7, v7, 7, v6
            buffer_load_dword v253, v7, s[{R_W}:{R_W+3}], s{S_T0} offen
            """)
        if self.o.get("stag"):
            a(f"s_cmp_lt_u32 s{S_J}, 30\ns_cbranch_scc1 L_B_nost\ns_cmp_lt_u32 s{S_WAVE}, 4\ns_cbranch_scc1 L_B_nost")
            stag_touch()
            a("L_B_nost:")
        elif wq != 3:
            a(f"""
            s_add_u32 s{S_T0}, s{S_T0}, {1024*3072}
            buffer_load_dword v253, v7, s[{R_W}:{R_W+3}], s{S_T0} offen {self.nt('ntw1b')}
            """)
        if self.o.get("promote"):
            k_ = 1 if wq != 3 else 0
            a(f"""
            s_sub_u32 s{S_T0+1}, s{S_T0}, {1024*3072*k_}
            s_waitcnt vmcnt({k_ + (1 if wq in (0, 3) else 0)})
            buffer_load_dword v253, v7, s[{R_W}:{R_W+3}], s{S_T0+1} offen
            """)
            if self.o.get("ntw1b"):
                a(f"s_waitcnt vmcnt(1)\nbuffer_load_dword v253, v7, s[{R_W}:{R_W+3}], s{S_T0} offen")
        if not self.o.get("pfdelay"):
            common_setup()
        self.stamp(15, 12)
        a(f"s_waitcnt lgkmcnt(0)\ns_add_u32 s{S_TAG}, s{S_TAG}, {TAG_INC:#x}")
        a(f"s_cmp_ge_u32 s{S_J}, 30\ns_cbranch_scc1 L_helper")
        N1 = self.o.get("n1", 8)
        NREG = self.o.get("nreg", 0)
        assert NREG == 0 or N1 == 8

        def w1_issue():
            t = self.perm_next(S_T0, S_PERM, 128 * 3072)
            t += f"s_mov_b32 m0, s{S_B}\ns_add_u32 s{S_T0}, s{S_T0}, s{S_A}\n"
            for i in range(4):
                t += f"buffer_load_dwordx4 v{VPF+i}, s[{R_W}:{R_W+3}], s{S_T0} offen offset:{i*1024} lds\n"
            t += f"s_add_u32 s{S_B}, s{S_B}, 16384\n"
            return t
        assert N1 == 8 and NREG == 0
        a(f"L_B_join:\ns_cmp_lt_u32 s{S_WAVE}, 4\ns_cbranch_scc1 L_B_comp0")
        for p in range(8):
            if early and p == early[0]:
                a(f"s_cmp_lt_u32 s{S_J}, 16\ns_cbranch_scc1 L_B_skipearly")
            w1_at(p)
            if early and p == early[-1]:
                a("L_B_skipearly:")
        a(f"s_mov_b32 s{S_PERM}, s{S_PERM+1}")
        a("s_branch L_B_aux\nL_B_comp0:")
        BF = 16
        GX = 131072
        split = self.o.get("gsplit")

        def gelu_setup(dblk_off):
            c = 0.7978845608028654
            k0 = -2.0 * c * 1.4426950408889634
            k1 = k0 * 0.044715
            a(f"""
            s_mov_b32 s{S_K0}, {f2u(k1):#x}
            s_mov_b32 s{S_K0+1}, {f2u(k1):#x}
            v_mov_b32 v44, {f2u(k0):#x}
            v_mov_b32 v45, {f2u(k0):#x}
            v_mov_b32 v46, 1.0
            v_mov_b32 v47, 1.0
            s_lshl_b32 s{S_K0+2}, s{S_DT}, 3
            s_lshl_b32 s{S_T0+1}, s{S_WAVE}, 1
            s_add_u32 s{S_K0+2}, s{S_K0+2}, s{S_T0+1}
            s_add_u32 s{S_K0+2}, s{S_K0+2}, {dblk_off & 0xffffffff:#x}
            s_mul_i32 s{S_K0+2}, s{S_K0+2}, {UW_ST}
            s_lshl_b32 s{S_T0+1}, s{S_FT}, 11
            s_add_u32 s{S_K0+2}, s{S_K0+2}, s{S_T0+1}
            s_add_u32 s{S_K0+2}, s{S_K0+2}, {UW}
            """)
            for b in range(4):
                a(f"v_lshlrev_b32 v{BF+4*b}, 16, v{B1R+2*b}\nv_and_b32 v{BF+4*b+1}, 0xffff0000, v{B1R+2*b}")
                a(f"v_lshlrev_b32 v{BF+4*b+2}, 16, v{B1R+2*b+1}\nv_and_b32 v{BF+4*b+3}, 0xffff0000, v{B1R+2*b+1}")

        def gelu_block(base, vl):
            for p in range(2):
                r = base + 8 * p
                T = 48
                for q in range(4):
                    a(f"v_pk_mul_f32 {vr(T+2*q,2)}, {vr(r+2*q,2)}, {vr(r+2*q,2)}")
                for q in range(4):
                    a(f"v_pk_fma_f32 {vr(T+2*q,2)}, {vr(T+2*q,2)}, s[{S_K0}:{S_K0+1}], v[44:45]")
                for q in range(4):
                    a(f"v_pk_mul_f32 {vr(T+2*q,2)}, {vr(T+2*q,2)}, {vr(r+2*q,2)}")
                for q in range(8):
                    a(f"v_exp_f32 v{T+q}, v{T+q}")
                for q in range(4):
                    a(f"v_pk_add_f32 {vr(T+2*q,2)}, {vr(T+2*q,2)}, v[46:47]")
                for q in range(8):
                    a(f"v_rcp_f32 v{T+q}, v{T+q}")
                for q in range(4):
                    a(f"v_pk_mul_f32 {vr(r+2*q,2)}, {vr(r+2*q,2)}, {vr(T+2*q,2)}")
                o = 56 + 4 * (p & 1)
                for q in range(4):
                    a(f"v_cvt_pk_bf16_f32 v{o+q}, v{r+2*q}, v{r+2*q+1}")
                a(f"buffer_store_dwordx4 {vr(o,4)}, v{vl}, s[{R_WS}:{R_WS+3}], s{S_K0+2} offen offset:{p*1024} sc1")

        PF, WF, ACC, VT, VL = 64, 128, 160, 8, 12
        a(f"""
        s_lshl_b32 s{S_T0}, s{S_DT}, 3
        s_lshl_b32 s{S_T0+1}, s{S_WAVE}, 1
        s_add_u32 s{S_D}, s{S_T0}, s{S_T0+1}
        s_lshl_b32 s{S_T0}, s{S_D}, 16
        s_add_u32 s{S_T0}, s{S_T0}, {HT}
        """)
        self.srd(R_P, P_WS, 65536, off_s=S_T0)
        a(f"s_add_u32 s{S_T0}, s{S_T0}, 65536")
        self.srd(R_M, P_WS, 65536, off_s=S_T0)
        a(f"v_lshlrev_b32 v{VL}, 4, v1\ns_mov_b32 s{S_B}, 0")
        a(self.perm_next(S_C, S_PERM, 4096))
        self.tr_addr(VT)
        a("s_waitcnt vmcnt(0)")
        gelu_setup(0)
        for r in range(32):
            a(f"v_mov_b32 v{ACC+r}, v{BF + (r & 15)}")
        a(f"s_lshl_b32 s{S_T0}, s{S_WAVE}, 12\ns_add_u32 s{S_T0}, s{S_T0}, {GX}\nv_add_u32 v13, s{S_T0}, v{VL}")
        a(f"s_cmp_lg_u32 s{S_WAVE}, 0\ns_cbranch_scc1 L_B_l3")
        prog = self.o.get("prog", 0)
        if prog:
            assert prog >= 4 * (4 + self.o.get("rotB", 0))
            a(f"v_min_u32 v2, {prog-1}, v1\nv_mul_u32_u24 v2, {FS}, v2\nv_add_u32 v2, {F_LN}, v2")
        else:
            a(f"v_mul_u32_u24 v2, {FS}, v1\nv_add_u32 v2, {F_LN}, v2")
        if not self.o.get("x_nopoll"):
            self.poll([2], 4)
        self.stamp(2, 4)
        a("L_B_l3:\ns_barrier")
        RP = (R_P, R_M)

        def pload(u, ks):
            if self.o.get("x_noload"):
                return "s_nop 0"
            sc = "" if self.o.get("x_nosc1") else "sc1"
            so = "0" if self.o.get("x_same") else f"s{S_C}"
            return "\n".join(f"buffer_load_dwordx4 {vr(PF+32*(u%2)+8*ks+4*d,4)}, v{VL}, s[{RP[d]}:{RP[d]+3}], {so} offen offset:{ks*1024} {sc}" for d in range(2))

        for t in range(2):
            for ks in range(4):
                a(pload(t, ks))
            a(self.perm_next(S_C, S_PERM, 4096))
            if t == 0:
                first_bar_here = len(a.L)

        def mk(u, bar, virtual=False, head=None, tail=None):
            uses = []
            for ks in range(4):
                for b in range(4):
                    g = ks * 4 + b
                    wb = WF + 4 * (g % 8)
                    off = u * 16384 + ks * 4096
                    reads = [(f"w{g}a", f"ds_read_b64_tr_b16 {vr(wb,2)}, v{VT+b} offset:{off}"),
                             (f"w{g}b", f"ds_read_b64_tr_b16 {vr(wb+2,2)}, v{VT+b} offset:{off+2048}")]
                    mf = []
                    for dd in range(2):
                        acc = vr(ACC + 16 * dd + 4 * b, 4)
                        mf.append(f"v_mfma_f32_16x16x32_bf16 {acc}, {vr(wb,4)}, {vr(PF+32*(u%2)+8*ks+4*dd,4)}, {acc}")
                    if self.o.get("x32"):
                        acc = vr(ACC + 16 * (b & 1), 16)
                        mf = [f"v_mfma_f32_32x32x16_bf16 {acc}, {vr(wb,4)}, {vr(PF+32*(u%2)+8*ks+4*(b>>1),4)}, {acc}"]
                    d = dict(reads=reads, need=[f"w{g}b"], mf=mf)
                    if b == 0:
                        d["vm"] = 14
                    if b == 3:
                        d["after"] = pload(u, ks)
                        if ks == 3:
                            d["after"] += "\n" + self.perm_next(S_C, S_PERM, 4096)
                            if u >= 1:
                                d["after"] += f"s_cmp_ge_u32 s{S_B}, 3\ns_cselect_b32 s{S_C}, 0x10000, s{S_C}"
                    uses.append(d)
            return dict(uses=uses, bar=bar, virtual=virtual, head=head, tail=tail)

        xo = "s_barrier\n" + "\n".join(f"v_xor_b32 v{VT+b}, 0x10000, v{VT+b}" for b in range(4))
        tail = f"s_add_u32 s{S_B}, s{S_B}, 1\ns_cmp_lt_u32 s{S_B}, 4\ns_cbranch_scc1 L_B_loop"
        st = [mk(0, "", head="L_B_loop:"), mk(1, "s_barrier"), mk(2, "s_barrier"), mk(3, "s_barrier", tail=tail), mk(0, xo, virtual=True)]
        a.L.insert(first_bar_here, "    s_barrier")
        nd = self.o.get("nodrain")
        LB = self.o.get("LB", 7)
        self.pipeline(st, LB, (16 - LB) if nd else 13, drain=not nd, wait_every=self.o.get('we', 2))
        if nd and not self.o.get("noEnd"):
            a("s_waitcnt lgkmcnt(0)\ns_barrier")
        self.stamp(3, 44)
        if split:
            a("s_nop 5")
            for i in range(4):
                a(f"ds_write_b128 v13, {vr(ACC+16+4*i,4)} offset:{i*1024}")
            a("s_waitcnt lgkmcnt(0)\ns_barrier")
            gelu_block(ACC, VL)
        else:
            a("s_waitcnt lgkmcnt(0)\ns_nop 4")
            gelu_block(ACC, VL)
            a(f"s_add_u32 s{S_K0+2}, s{S_K0+2}, {UW_ST}")
            gelu_block(ACC + 16, VL)
        self.stamp(10, 44)
        a("s_waitcnt vmcnt(0)\ns_barrier\ns_branch L_F_comp")

        a("L_B_aux:\ns_barrier")
        if split:
            assert NREG == 0
        assert NREG == 0
        ops = [(iv, 4) for iv in range(N1)]
        todo = [(iv, i) for iv in range(N1, 16) for i in range(4)]
        quota = self.o.get("quota", 12) / 3.0
        credit = 0.0
        eB = self.o.get("eB", 17)
        nB1 = self.o.get("nB1", 0)
        per = self.o.get("perB", 2)
        done_w2 = 0
        for tb in range(17):
            if tb < 16 and tb <= eB:
                assert all(iv != tb for iv, _ in todo), (tb, todo)
                last = max(i for i, (iv, _) in enumerate(ops) if iv == tb)
                n = sum(c for _, c in ops[last + 1:])
                if tb < 8:
                    n -= 4 * len(early)
                a(f"s_waitcnt vmcnt({max(0, min(n, 63)) if tb < eB else 0})")
            a("s_barrier")
            if tb < 16:
                self.stamp(16 + tb, 44)
            so_ = self.o.get("stagoff", 0)
            if self.o.get("stag") and so_ <= tb < 8 + so_:
                lab = a.label("nst")
                a(f"s_lshr_b32 s{S_T0}, s{S_J}, 2\ns_cmp_lg_u32 s{S_T0}, {tb - so_}\ns_cbranch_scc1 {lab}")
                stag_touch()
                a(f"{lab}:")
            if tb == 0 and self.o.get("prog"):
                a(f"s_cmp_lg_u32 s{S_WAVE}, 7\ns_cbranch_scc1 L_B_nop1\nv_mul_u32_u24 v2, {FS}, v1\nv_add_u32 v2, {F_LN}, v2")
                a(f"buffer_load_dword v3, v2, s[{R_WS}:{R_WS+3}], 0 offen sc1\nL_B_nop1:")
            if tb == 1 and self.o.get("prog"):
                a(f"s_cmp_lg_u32 s{S_WAVE}, 7\ns_cbranch_scc1 L_B_nop2")
                a(f"s_waitcnt vmcnt(0)\nv_cmp_ne_u32 vcc, s{S_TAG}, v3\ns_nop 1\ns_cmp_eq_u64 vcc, 0\ns_cbranch_scc1 L_B_nop2")
                self.poll([2], 4)
                a("L_B_nop2:")
            if tb == self.o.get("ctB", 10):
                self.code_touch([("L_F_comp", 0), ("L_F_comp", 1)])
            if tb == 11 and split:
                gelu_setup(-7)
                a(f"v_lshlrev_b32 v12, 4, v1\ns_lshl_b32 s{S_T0}, s{S_WAVE}, 12\ns_add_u32 s{S_T0}, s{S_T0}, {GX - 4*4096}\nv_add_u32 v13, s{S_T0}, v12")
            if tb == eB:
                assert not todo
                self.w2_setup()
            if tb >= eB and done_w2 < nB1:
                k2 = min(per if tb < 16 else 8, nB1 - done_w2, tb - 9 - done_w2)
                sk = self.if_wave56()
                self.w2_prefill(k2)
                a(f"{sk}:")
                done_w2 += k2
            if todo and (todo[0][0] < 8 or tb >= 2):
                credit += 8 if todo[0][0] < 8 else quota
            setm0 = False
            while todo and credit >= 0.999 and (todo[0][0] < 8 or todo[0][0] <= tb + 6):
                iv, i = todo.pop(0)
                if i == 0:
                    if iv == 8:
                        a(f"s_and_b32 s{S_B}, s{S_B}, 0x1ffff")
                    a(self.perm_next(S_C, S_PERM, 128 * 3072) + f"s_add_u32 s{S_C}, s{S_C}, s{S_A}")
                if i == 0 or not setm0:
                    a(f"s_mov_b32 m0, s{S_B}\ns_nop 0")
                    setm0 = True
                a(f"buffer_load_dwordx4 v{VPF+i}, s[{R_W}:{R_W+3}], s{S_C} offen offset:{i*1024} lds")
                if i == 3:
                    a(f"s_add_u32 s{S_B}, s{S_B}, 16384")
                ops.append((iv, 1))
                credit -= 1
            if todo and todo[0][0] >= 8:
                credit = min(credit, quota)
        nxt = 16
        assert nxt == 16
        if self.o.get("noEnd"):
            assert done_w2 == nB1
        elif self.o.get("nodrain"):
            a("s_barrier")
        if eB == 17:
            self.w2_setup()
        if split:
            a("s_barrier")
            for i in range(4):
                a(f"ds_read_b128 {vr(64+4*i,4)}, v13 offset:{i*1024}")
            a("s_waitcnt lgkmcnt(0)")
            gelu_block(64, 12)
            a("s_waitcnt vmcnt(0)")
        skip = self.if_wave56()
        self.w2_prefill(nB1 - done_w2)
        a("s_barrier\ns_nop 7\ns_nop 7")
        self.w2_prefill(8 - nB1)
        a("s_branch L_F_loader")
        a(f"{skip}:\ns_barrier")
        a(f"s_cmp_lg_u32 s{S_WAVE}, 7\ns_cbranch_scc1 L_F_u4")
        a(f"s_mul_i32 s{S_T0}, s{S_DT}, 24\ns_add_u32 s{S_T0}, s{S_T0}, s{S_FT}\ns_mul_i32 s{S_T0}, s{S_T0}, {FS}\ns_add_u32 s{S_T0}, s{S_T0}, {F_U}")
        self.flag_store(S_T0, 12)
        self.stamp(4, 12)
        a("s_branch L_F_poller")

    def w2_l2_prefetch(self, VT):
        a = self.a
        self.srd(R_W2, P_W2, 1536 * 4096)
        a(f"""
        v_lshrrev_b32 v{VT}, 3, v1
        v_and_b32 v{VT+1}, 7, v1
        v_lshlrev_b32 v{VT+1}, 7, v{VT+1}
        v_lshl_add_u32 v{VT}, v{VT}, 12, v{VT+1}
        s_mul_i32 s{S_T0}, s{S_J}, 48
        s_and_b32 s{S_T0+1}, s{S_WAVE}, 3
        s_mul_i32 s{S_T0+1}, s{S_T0+1}, 12
        s_add_u32 s{S_T0}, s{S_T0}, s{S_T0+1}
        s_lshl_b32 s{S_T0}, s{S_T0}, 12
        s_lshr_b32 s{S_T0+1}, s{S_XCD}, 1
        s_lshl_b32 s{S_T0+1}, s{S_T0+1}, 10
        s_add_u32 s{S_T0}, s{S_T0}, s{S_T0+1}
        buffer_load_dword v{VT+2}, v{VT}, s[{R_W2}:{R_W2+3}], s{S_T0} offen
        s_add_u32 s{S_T0}, s{S_T0}, {8*4096}
        s_mov_b32 exec_hi, 0
        buffer_load_dword v{VT+3}, v{VT}, s[{R_W2}:{R_W2+3}], s{S_T0} offen
        s_mov_b64 exec, -1
        """)

    def tr_addr(self, VT):
        a = self.a
        a(f"""
        v_and_b32 v{VT+1}, 15, v1
        v_lshrrev_b32 v{VT+2}, 4, v1
        v_lshrrev_b32 v{VT+3}, 2, v{VT+1}
        v_lshl_add_u32 v{VT+3}, v{VT+2}, 2, v{VT+3}
        v_bfe_u32 v{VT+2}, v{VT+3}, 1, 2
        v_lshlrev_b32 v{VT+3}, 7, v{VT+3}
        v_lshl_add_u32 v{VT+3}, v{VT+2}, 5, v{VT+3}
        v_and_b32 v{VT+1}, 3, v{VT+1}
        v_lshl_add_u32 v{VT}, v{VT+1}, 3, v{VT+3}
        v_xor_b32 v{VT+1}, 32, v{VT}
        v_xor_b32 v{VT+2}, 64, v{VT}
        v_xor_b32 v{VT+3}, 96, v{VT}
        """)

    def helper(self):
        a = self.a
        a("L_helper:")
        a(f"""
        s_lshl_b32 s{S_D}, s{S_XCD}, 1
        s_add_u32 s{S_D}, s{S_D}, s{S_J}
        s_sub_u32 s{S_D}, s{S_D}, 30
        """)
        self.srd(R_W, P_WO, 640 * 1280)
        for p in range(5):
            a(f"""
            v_add_u32 v12, {p*64}, v1
            v_mul_u32_u24 v13, 205, v12
            v_lshrrev_b32 v13, 11, v13
            v_mul_u32_u24 v14, 10, v13
            v_sub_u32 v14, v12, v14
            v_lshlrev_b32 v14, 4, v14
            v_mul_u32_u24 v13, 1280, v13
            v_add_u32 v{16+p}, v13, v14
            """)
            if p in (1, 2, 3):
                a(f"v_subrev_u32 v{16+p}, {p*1024}, v{16+p}")
        a(f"""
        s_mov_b32 s{S_C}, s{S_WAVE}
        L_H_ld:
        s_mul_i32 s{S_A}, s{S_C}, {32*1280}
        s_mul_i32 s{S_T0}, s{S_D}, 160
        s_add_u32 s{S_A}, s{S_A}, s{S_T0}
        s_mul_i32 s{S_B}, s{S_C}, 5120
        s_mov_b32 m0, s{S_B}
        s_nop 0
        """)
        for p in range(4):
            a(f"buffer_load_dwordx4 v{16+p}, s[{R_W}:{R_W+3}], s{S_A} offen offset:{p*1024} lds")
        a(f"s_add_u32 m0, s{S_B}, 4096\ns_nop 0\nbuffer_load_dwordx4 v20, s[{R_W}:{R_W+3}], s{S_A} offen lds")
        a(f"""
        s_add_u32 s{S_C}, s{S_C}, 8
        s_cmp_lt_u32 s{S_C}, 20
        s_cbranch_scc1 L_H_ld
        v_and_b32 v12, 15, v1
        v_lshrrev_b32 v13, 4, v1
        v_lshrrev_b32 v14, 2, v12
        v_lshl_add_u32 v14, v13, 2, v14
        v_mul_u32_u24 v14, 160, v14
        v_and_b32 v12, 3, v12
        v_lshl_add_u32 v14, v12, 3, v14
        v_lshlrev_b32 v15, 4, v1
        s_waitcnt vmcnt(0)
        s_barrier
        s_mov_b32 s{S_C}, s{S_WAVE}
        L_H_tr:
        s_lshr_b32 s{S_T0}, s{S_C}, 1
        s_mul_i32 s{S_T0}, s{S_T0}, 5
        s_and_b32 s{S_T0+1}, s{S_C}, 1
        s_lshl_b32 s{S_T0+1}, s{S_T0+1}, 1
        s_add_u32 s{S_T0}, s{S_T0}, s{S_T0+1}
        s_add_u32 s{S_T0+1}, s{S_T0}, 1
        s_mul_i32 s{S_T0+2}, s{S_C}, 10
        s_sub_u32 s{S_T0+2}, s{S_T0+2}, 156
        s_add_u32 s{S_T0+3}, s{S_T0+2}, 5
        s_cmp_lt_u32 s{S_C}, 16
        s_cselect_b32 s{S_T0}, s{S_T0}, s{S_T0+2}
        s_cselect_b32 s{S_T0+1}, s{S_T0+1}, s{S_T0+3}
        s_mul_i32 s{S_T0}, s{S_T0}, 2560
        s_mul_i32 s{S_T0+1}, s{S_T0+1}, 2560
        v_add_u32 v12, s{S_T0}, v14
        v_add_u32 v13, s{S_T0+1}, v14
        """)
        for b in range(5):
            a(f"ds_read_b64_tr_b16 {vr(24+4*b,2)}, v12 offset:{b*32}\nds_read_b64_tr_b16 {vr(26+4*b,2)}, v13 offset:{b*32}")
        a(f"""
        s_mul_i32 s{S_T0}, s{S_D}, {5*UW_ST}
        s_lshl_b32 s{S_T0+1}, s{S_C}, 10
        s_add_u32 s{S_T0}, s{S_T0}, s{S_T0+1}
        s_add_u32 s{S_T0}, s{S_T0}, {UW + 49152}
        """)
        for b in range(5):
            a(f"s_waitcnt lgkmcnt({8-2*b})")
            a(f"buffer_store_dwordx4 {vr(24+4*b,4)}, v15, s[{R_WS}:{R_WS+3}], s{S_T0} offen sc1")
            if b < 4:
                a(f"s_add_u32 s{S_T0}, s{S_T0}, {UW_ST}")
        a(f"""
        s_add_u32 s{S_C}, s{S_C}, 8
        s_cmp_lt_u32 s{S_C}, 20
        s_cbranch_scc1 L_H_tr
        s_waitcnt vmcnt(0)
        s_barrier
        """)
        if self.o.get("hW2"):
            a(f"s_cmp_lg_u32 s{S_WAVE}, 7\ns_cbranch_scc1 L_H_nofl")
            a(f"s_mul_i32 s{S_T0}, s{S_D}, {FS}\ns_add_u32 s{S_T0}, s{S_T0}, {F_WOT}")
            self.flag_store(S_T0, 12)
            self.stamp(14, 12)
            a(f"""
            L_H_nofl:
            v_lshlrev_b32 v12, 7, v1
            s_lshl_b32 s{S_T0}, s{S_D}, 3
            s_add_u32 s{S_T0}, s{S_T0}, s{S_WAVE}
            s_lshl_b32 s{S_T0}, s{S_T0}, 13
            s_add_u32 s{S_T0}, s{S_T0}, {(1536 - 128 * self.o.get("hW2n", 4))*4096}
            """)
            for k in range(self.o.get("hW2n", 4)):
                a(f"buffer_load_dword v253, v12, s[{R_W2}:{R_W2+3}], s{S_T0} offen\ns_add_u32 s{S_T0}, s{S_T0}, {128*4096}")
        skip = self.if_wave56()
        self.w2_setup()
        self.w2_prefill(8)
        a(f"s_branch L_F_loader\n{skip}:")
        a(f"s_cmp_lt_u32 s{S_WAVE}, 4\ns_cbranch_scc1 L_F_comp\ns_cmp_lg_u32 s{S_WAVE}, 7\ns_cbranch_scc1 L_F_u4")
        if not self.o.get("hW2"):
            a(f"s_mul_i32 s{S_T0}, s{S_D}, {FS}\ns_add_u32 s{S_T0}, s{S_T0}, {F_WOT}")
            self.flag_store(S_T0, 12)
            self.stamp(14, 12)
        a("s_branch L_F_poller")

    F_WOT_REG = 172

    def uw_srd(self):
        a = self.a
        a(f"""
        s_mul_i32 s{S_T0}, s{S_DTILE}, 5
        s_add_u32 s{S_D}, s{S_T0}, s{S_WAVE}
        s_mul_i32 s{S_T0}, s{S_D}, {UW_ST}
        s_add_u32 s{S_T0}, s{S_T0}, {UW}
        """)
        self.srd(R_P, P_WS, UW_ST, off_s=S_T0)

    def wot_preload(self, VL):
        a = self.a
        for k in range(20):
            if k % 4 == 0:
                a(f"s_mov_b32 s{S_C}, {49152 + k*1024}")
            a(f"buffer_load_dwordx4 {vr(self.F_WOT_REG+4*k,4)}, v{VL}, s[{R_P}:{R_P+3}], s{S_C} offen offset:{(k%4)*1024} sc1")

    F_V = (4, 8, 12, 13, 47, 48, 52, 56, 168)
    F_SB = 72

    def f_setup(self):
        a = self.a
        VT, VT2, VL, VU4, VGA, VGH, VG8, GV, BV = self.F_V
        SB = self.F_SB
        self.srd(R_M, P_B2, 4096)
        self.srd(R_OUT, P_OUT, 2048 * 1280)
        self.tr_addr(VT2)
        a(f"""
        s_mul_i32 s{S_D}, s{S_DTILE}, 5
        s_add_u32 s{S_D}, s{S_D}, s{S_WAVE}
        v_mov_b32 v42, v{VT2}
        v_lshlrev_b32 v{VL}, 4, v1
        v_add_u32 v{VU4}, 0x20000, v{VL}
        v_and_b32 v{VGA}, 15, v1
        v_lshlrev_b32 v43, 1, v{VGA}
        v_lshlrev_b32 v{VGA}, 2, v{VGA}
        v_lshlrev_b32 v{VG8+3}, 3, v1
        """)
        for b in range(4):
            a(f"""
            s_add_u32 s{SB+b}, s{S_WAVE}, {b}
            s_and_b32 s{SB+b}, s{SB+b}, 3
            s_lshl_b32 s{S_T0}, s{SB+b}, 5
            v_xor_b32 v{VT+b}, s{S_T0}, v42
            s_lshl_b32 s{S_T0+1}, s{S_ST}, 7
            s_add_u32 s{S_T0}, s{S_T0}, s{S_T0+1}
            buffer_load_ushort v{BV+b}, v43, s[{R_M}:{R_M+3}], s{S_T0} offen
            v_add_u32 v{VT2+b}, 0x10000, v{VT+b}
            s_lshl_b32 s{S_T0}, s{SB+b}, 12
            v_add_u32 v{VG8+b}, s{S_T0}, v{VG8+3}
            s_add_u32 s{S_T0}, s{S_T0}, 0x10000
            v_add_u32 v{VGH+b}, s{S_T0}, v{VL}
            """)
        a(f"s_lshl_b32 s{S_A}, s{S_ST}, 8\ns_add_u32 s{S_A}, s{S_A}, {G_OFF}")
        self.f_perm()

    def f0_barrier(self):
        lab = self.a.label("f0")
        self.a(f"s_cmp_eq_u32 s{S_FROMA}, 1\ns_cbranch_scc1 {lab}\ns_barrier\n{lab}:")

    def final(self):
        a = self.a
        a("L_F_comp:")
        if self.stop == "phase1":
            a("s_branch L_end")
        PF, WF, ACC, ACC4, U4, WOT = 64, 112, 144, 160, 36, 172
        NPF = 3
        pre = True
        VT, VT2, VL, VU4, VGA, VGH, VG8, GV, BV = self.F_V
        SB = self.F_SB
        a(f"s_cmp_eq_u32 s{S_FROMA}, 1\ns_cbranch_scc1 L_F_nowot")
        self.uw_srd()
        self.f_setup()
        nstream = 12 if pre else 17

        def next_sc(step):
            if step < 12:
                return self.perm_next(S_C, S_PERM, 4096)
            return f"s_mov_b32 s{S_C}, {step*4096}\n"
        a("s_barrier")
        self.wot_preload(VL)
        a("L_F_nowot:")
        a(next_sc(0))
        a("s_barrier")
        S_C1, S_C2 = S_K0, S_K0 + 1

        def uload(t, ks, so):
            return f"buffer_load_dwordx4 {vr(PF+16*(t % NPF)+4*ks,4)}, v{VL}, s[{R_P}:{R_P+3}], s{so} offen offset:{ks*1024} sc1 ;@u{t}_{ks}"
        vis0 = []
        for ks in range(4):
            a(uload(0, ks, S_C))
            vis0.append(f"u0_{ks}")
        a(self.perm_next(S_C1, S_PERM, 4096) + self.perm_next(S_C2, S_PERM, 4096) + next_sc(3))
        a("s_barrier")

        ACC2 = 16
        blocks = [(ACC + 4 * b, b) for b in range(4)] + [(ACC4, 0)]
        fill = []
        for b in range(4):
            fill += [f"v_lshlrev_b32 v{BV+b}, 16, v{BV+b}", f"v_sub_f32 v{GV+b}, 1.0, v{GV+b}"]
        for r0, b in blocks:
            for k in range(4):
                fill.append(f"v_add_f32 v{r0+k}, v{BV+b}, v{r0+k}")

        stages = []
        for t in range(17):
            slot = t % 8
            hi = slot >= 4
            uses = []
            for ks in range(4):
                for b in range(4):
                    g = ks * 4 + b
                    wb = WF + 4 * (g % 8)
                    reads = []
                    u4 = U4 + 4 * (ks & 1)
                    if b == 0:
                        reads.append((f"u{ks}", f"ds_read_b128 {vr(u4,4)}, v{VU4} offset:{slot*4096 + ks*1024}"))
                    if t < 12:
                        off = (slot & 3) * 16384 + ks * 4096
                        va = (VT2 if hi else VT) + b
                        reads += [(f"w{g}a", f"ds_read_b64_tr_b16 {vr(wb,2)}, v{va} offset:{off}"),
                                  (f"w{g}b", f"ds_read_b64_tr_b16 {vr(wb+2,2)}, v{va} offset:{off+2048}")]
                    elif t < 16:
                        assert hi
                        off = (slot & 3) * 16384 + ks * 1024
                        reads += [(f"w{g}b", f"ds_read_b128 {vr(wb,4)}, v{VGH+b} offset:{off}")]
                    else:
                        off = (slot & 3) * 16384 + ks * 1024
                        assert not hi
                        reads += [(f"w{g}a", f"ds_read_b64 {vr(wb,2)}, v{VG8+b} offset:{off}"),
                                  (f"w{g}b", f"ds_read_b64 {vr(wb+2,2)}, v{VG8+b} offset:{off+512}")]
                    acc = vr((ACC if t < 12 else ACC2) + 4 * b, 4)
                    a4 = vr(ACC4 if t < 12 else ACC2 + 16, 4)
                    ring = t < nstream
                    pf = vr(PF + 16 * (t % NPF) + 4 * ks, 4) if ring else vr(WOT + 16 * (t - 12) + 4 * ks, 4)
                    first = t in (0, 12) and ks == 0
                    mf = [f"v_mfma_f32_16x16x32_bf16 {acc}, {pf}, {vr(wb,4)}, {0 if first else acc}"]
                    if b == 0:
                        mf.append(f"v_mfma_f32_16x16x32_bf16 {a4}, {vr(u4,4)}, {vr(wb,4)}, {0 if first else a4}")
                    d = dict(reads=reads, need=[f"w{g}b"], mf=mf)
                    if self.o.get("x_fewlds"):
                        if b == 0:
                            d["reads"] = reads[1:]
                        else:
                            d["reads"] = []
                            d["need"] = [f"w{g-b}b"]
                    if b == 0 and ring:
                        d["vneed"] = f"u{t}_{ks}"
                    if t == 0 and b in (0, 1):
                        d["after"] = uload(1 + b, ks, (S_C1, S_C2)[b])
                    if t == 1 and b == 1:
                        d["after"] = (f"s_lshl_b32 s{S_T0}, s{SB+ks}, 6\ns_add_u32 s{S_T0}, s{S_T0}, s{S_A}\n"
                                      f"buffer_load_dword v{GV+ks}, v{VGA}, s[{R_WS}:{R_WS+3}], s{S_T0} offen sc1 ;@g{ks}")
                    if b == 3 and t + NPF < nstream:
                        d["after"] = uload(t + NPF, ks, S_C)
                        if ks == 3 and t + NPF + 1 < nstream:
                            d["after"] += "\n" + next_sc(t + NPF + 1)
                    if self.o.get("wotl") and 3 <= t <= 7 and b == 1:
                        k = (t - 3) * 4 + ks
                        lab = a.label("nw")
                        d["before"] = (f"s_cmp_eq_u32 s{S_FROMA}, 1\ns_cbranch_scc0 {lab}\ns_mov_b32 s{S_T0}, {49152 + k*1024}\n"
                                       f"buffer_load_dwordx4 {vr(WOT+4*k,4)}, v{VL}, s[{R_P}:{R_P+3}], s{S_T0} offen sc1\n{lab}:")
                    if t >= 13 and fill and g < 15:
                        d["after"] = fill.pop(0)
                    uses.append(d)
            stages.append(dict(uses=uses, bar="s_barrier" if t else ""))
        nd = self.o.get("nodrain")
        LF = self.o.get("LF", 6)
        self.pipeline(stages, LF, (16 - LF) if nd else 13, drain=not nd, wait_every=self.o.get('we', 2), vis=vis0)
        self.stamp(8, 2)
        a(f"""
        v_and_b32 v2, 15, v1
        v_mul_u32_u24 v2, 1280, v2
        v_lshrrev_b32 v3, 4, v1
        v_lshl_add_u32 v2, v3, 3, v2
        s_mul_i32 s{S_A}, s{S_ST}, {64*1280}
        s_lshl_b32 s{S_T0+1}, s{S_D}, 5
        s_add_u32 s{S_B}, s{S_A}, s{S_T0+1}
        s_mul_i32 s{S_T0+1}, s{S_DTILE}, 160
        s_add_u32 s{S_A}, s{S_A}, s{S_T0+1}
        s_add_u32 s{S_A}, s{S_A}, 128
        """)
        assert not fill
        for i_, (r, b) in enumerate(blocks):
            for k in range(4):
                a(f"v_fma_f32 v{r+k}, v{r+k}, v{GV+b}, v{ACC2+4*i_+k}")
            a(f"s_mul_i32 s{S_T0}, s{SB+b}, {16*1280}\ns_add_u32 s{S_T0}, s{S_T0}, s{S_A if r == ACC4 else S_B}")
            a(f"v_cvt_pk_bf16_f32 v{r}, v{r}, v{r+1}\nv_cvt_pk_bf16_f32 v{r+1}, v{r+2}, v{r+3}")
            a(f"buffer_store_dwordx2 {vr(r,2)}, v2, s[{R_OUT}:{R_OUT+3}], s{S_T0} offen {['', 'sc1', 'nt', 'sc0 sc1'][self.o.get('osc', 0)]}")
        if self.stamps or self.o.get("dbg"):
            a("s_waitcnt vmcnt(0)")
            self.stamp(9, 2)
        if self.o.get("calib"):
            a(f"""
            L_cal:
            s_memrealtime s[96:97]
            s_waitcnt lgkmcnt(0)
            s_sub_u32 s96, s96, s98
            s_cmp_lt_u32 s96, {self.o.get("calib")*100}
            s_cbranch_scc1 L_cal
            """)
        a(f"s_or_b32 s{S_T0}, s2, s{S_WAVE}\ns_cmp_lg_u32 s{S_T0}, 0\ns_cbranch_scc1 L_end\ns_mov_b32 s{S_T0}, 0")
        self.flag_store(S_T0, 4)
        a("s_branch L_end")

        a("L_F_u4:")
        if self.stop == "phase1":
            a("s_branch L_end")
        a(f"""
        v_lshlrev_b32 v{VL}, 4, v1
        s_mul_i32 s{S_C}, s{S_DTILE}, {5*UW_ST}
        s_add_u32 s{S_C}, s{S_C}, {UW + 4*UW_ST}
        """)
        self.f_perm()
        self.f0_barrier()
        p4 = self.o.get("preW4")
        if p4:
            for k in range(20):
                if k % 4 == 0:
                    a(f"s_add_u32 s{S_T0}, s{S_C}, {49152 + k*1024}")
                a(f"buffer_load_dwordx4 {vr(64+4*k,4)}, v{VL}, s[{R_WS}:{R_WS+3}], s{S_T0} offen offset:{(k%4)*1024} sc1")
            a(f"v_add_u32 v{VU4}, 0x20000, v{VL}")
        a("s_barrier")

        def u4_issue(iv):
            if iv >= 12 and p4:
                for i in range(4):
                    a(f"ds_write_b128 v{VU4}, {vr(64+16*(iv-12)+4*i,4)} offset:{(iv % 8)*4096 + i*1024}")
                return
            if iv < 12:
                a(self.perm_next(S_T0, S_PERM, 4096) + f"s_mov_b32 m0, {0x20000 + (iv % 8)*4096:#x}\ns_add_u32 s{S_T0}, s{S_T0}, s{S_C}")
            else:
                a(f"s_mov_b32 m0, {0x20000 + (iv % 8)*4096:#x}\ns_add_u32 s{S_T0}, s{S_C}, {iv*4096}")
            for i in range(4):
                a(f"buffer_load_dwordx4 v{VL}, s[{R_WS}:{R_WS+3}], s{S_T0} offen offset:{i*1024} sc1 lds")
        order = []
        for iv in range(8):
            u4_issue(iv)
            order.append(iv)
            if iv == 1:
                a("s_waitcnt vmcnt(4)\ns_barrier")
        for tb in range(1, 17):
            if tb in order:
                a(f"s_waitcnt vmcnt({4*len(order[order.index(tb)+1:])})")
            a("s_waitcnt lgkmcnt(0)\ns_barrier" if p4 and tb >= 7 else "s_barrier")
            iv = tb + (6 if self.o.get("nodrain") else 7)
            if 8 <= iv <= 16:
                u4_issue(iv)
                if not (p4 and iv >= 12):
                    order.append(iv)
        a("s_branch L_end")

        a("L_F_loader:")
        if self.stop == "phase1":
            a("s_branch L_end")
        a(f"v_lshlrev_b32 v{VL}, 4, v1")
        self.f0_barrier()
        nWR = self.o.get("nWR", 0)
        V = self.V_W2
        if nWR:
            a(f"s_waitcnt vmcnt(30)\nv_add_u32 v{VU4}, s{S_B}, v{VL}")
            for k in range(nWR):
                a(self.perm_next(S_T0, S_PERM, 128 * 4096) + f"s_add_u32 s{S_T0}, s{S_T0}, s{S_A}")
                for g in range(2):
                    if g:
                        a(f"s_add_u32 s{S_T0}, s{S_T0}, {4*32768}")
                    for i in range(4):
                        a(f"buffer_load_dwordx4 {vr(64+32*k+16*g+4*i,4)}, v{V+i}, s[{R_W2}:{R_W2+3}], s{S_T0} offen offset:{i*1024}")
            a(f"s_add_u32 s{S_B}, s{S_B}, {nWR*16384}")
        a("s_barrier")
        a(f"""
        s_sub_u32 s{S_T0}, s{S_WAVE}, 5
        s_lshl_b32 s{S_T0}, s{S_T0}, 1
        s_lshl_b32 s{S_T0+1}, s{S_ST}, 2
        s_add_u32 s{S_T0+1}, s{S_T0+1}, s{S_T0}
        s_mul_i32 s{S_C}, s{S_T0+1}, {GO_ST}
        s_add_u32 s{S_C}, s{S_C}, {GO}
        s_lshl_b32 s{S_D}, s{S_T0}, 12
        """)
        assert nWR == 0
        ops = [(iv, 8) for iv in range(8)]
        for tb in range(17):
            last = max(i for i, (iv, _) in enumerate(ops) if iv == tb)
            n = sum(c for _, c in ops[last + 1:])
            a(f"s_waitcnt vmcnt({min(n,63)})\ns_barrier")
            if self.o.get("halfW"):
                if 2 <= tb <= 9:
                    self.w2_half((tb - 2) & 1)
                    ops.append((8 + (tb - 2) // 2, 4))
            elif 2 <= tb <= 5:
                self.w2_issue()
                ops.append((tb + 6, 8))
            if 9 <= tb <= 13:
                iv = tb + 3
                g = iv - 12
                for s2 in range(2):
                    a(f"s_add_u32 m0, s{S_D}, {(iv % 8)*16384 + s2*4096}\ns_add_u32 s{S_T0}, s{S_C}, {s2*GO_ST + g*4096}")
                    for i in range(4):
                        a(f"buffer_load_dwordx4 v{VL}, s[{R_WS}:{R_WS+3}], s{S_T0} offen offset:{i*1024} sc1 lds")
                ops.append((iv, 8))
        a("s_branch L_end")
        a("L_F_poller:")
        if self.stop == "phase1":
            a("s_branch L_end")
        a(f"s_cmp_eq_u32 s{S_FROMA}, 1\ns_cbranch_scc1 L_F_pnowot")
        a(f"s_mul_i32 s{S_T0}, s{S_DTILE}, {FS}\ns_add_u32 s{S_T0}, s{S_T0}, {F_WOT}\nv_mov_b32 v2, s{S_T0}")
        self.poll([2], 4)
        a("s_barrier\nL_F_pnowot:")
        a(f"""
        s_mul_i32 s{S_T0}, s{S_DTILE}, 5
        s_lshr_b32 s{S_T0+1}, s{S_T0}, 3
        s_add_u32 s{S_T0}, s{S_T0}, 4
        s_lshr_b32 s{S_T0}, s{S_T0}, 3
        s_mul_i32 s{S_T0}, s{S_T0}, 24
        s_mul_i32 s{S_T0+1}, s{S_T0+1}, 24
        v_and_b32 v2, 31, v1
        v_min_u32 v2, 23, v2
        v_add_u32 v3, s{S_T0}, v2
        v_add_u32 v2, s{S_T0+1}, v2
        v_cmp_gt_u32 vcc, 32, v1
        s_mul_i32 s{S_T0}, s{S_DTILE}, {FS}
        s_add_u32 s{S_T0}, s{S_T0}, {F_WOT}
        v_cndmask_b32 v2, v2, v3, vcc
        v_mul_u32_u24 v2, {FS}, v2
        v_add_u32 v2, {F_U}, v2
        v_mov_b32 v3, s{S_T0}
        v_cmp_eq_u32 vcc, 63, v1
        s_nop 1
        v_cndmask_b32 v2, v2, v3, vcc
        """)
        self.poll([2], 4)
        self.stamp(6, 4)
        a("s_barrier")
        a(f"""
        v_and_b32 v2, 7, v1
        s_lshr_b32 s{S_T0}, s{S_ST}, 1
        s_lshl_b32 s{S_T0}, s{S_T0}, 3
        v_add_u32 v2, s{S_T0}, v2
        v_mul_u32_u24 v2, {FS}, v2
        v_add_u32 v2, {F_GO}, v2
        """)
        gp = self.o.get("gopoll", 9)
        for tb in range(gp):
            a("s_barrier")
            if tb == 1:
                a(f"s_cmp_eq_u32 s{S_FROMA}, 1\ns_cbranch_scc0 L_F_nogo")
                a(f"s_lshl_b32 s{S_T0}, s{S_MT}, 3\ns_add_u32 s{S_T0}, s{S_T0}, s{S_HG}\ns_mul_i32 s{S_T0}, s{S_T0}, {FS}\ns_add_u32 s{S_T0}, s{S_T0}, {F_GO}")
                self.flag_store(S_T0, 6)
                a("L_F_nogo:")
            if tb == gp - 3:
                a(f"buffer_load_dword v8, v2, s[{R_WS}:{R_WS+3}], 0 offen sc1")
            self.stamp(32 + tb, 4)
        a(f"s_waitcnt vmcnt(0)\nv_cmp_ne_u32 vcc, s{S_TAG}, v8\ns_nop 1\ns_cmp_eq_u64 vcc, 0\ns_cbranch_scc1 L_F_gook")
        self.poll([2], 4)
        a("L_F_gook:")
        self.stamp(7, 4)
        for tb in range(gp, 17):
            a("s_barrier")
            self.stamp(32 + tb, 4)
        a("L_end:")
        if "probe" in self.o or "pc1" in self.o:
            a("""
            s_cmp_eq_u32 s94, 0
            s_cbranch_scc1 L_exit
            L_prb:
            s_memrealtime s[96:97]
            s_waitcnt lgkmcnt(0)
            s_sub_u32 s96, s96, s98
            s_cmp_lt_i32 s96, 4000
            s_cbranch_scc1 L_prb
            """)
        if self.stamps:
            a(f"""
            s_lshl_b32 s{S_T0}, s2, 3
            s_add_u32 s{S_T0}, s{S_T0}, s{S_WAVE}
            s_lshl_b32 s{S_T0}, s{S_T0}, 9
            s_add_u32 s{S_T0}, s{S_T0}, {STAMP}
            v_lshlrev_b32 v2, 3, v1
            buffer_store_dwordx2 v[254:255], v2, s[{R_WS}:{R_WS+3}], s{S_T0} offen
            """)
        a("L_exit:\ns_endpgm")

    def build(self, header):
        a = self.a
        self.prologue()
        self.role_a()
        self.role_b()
        self.helper()
        self.final()
        body = a.text()
        out = header
        out += """; One persistent launch, 256 workgroups (one per CU) x 8 waves (0-3 MFMA, 4-7 loaders / pollers).
"""
        out += f"; @launch grid=(256,1,1) block=(512,1,1) lds={LDS_BYTES}\n"
        out += f'.amdgcn_target "amdgcn-amd-amdhsa--gfx950"\n.text\n.globl {KNAME}\n.p2align 8\n.type {KNAME},@function\n{KNAME}:\n'
        out += body
        out += f""".section .rodata,"a"
.p2align 6
.amdhsa_kernel {KNAME}
  .amdhsa_next_free_vgpr 256
  .amdhsa_next_free_sgpr 102
  .amdhsa_accum_offset 256
  .amdhsa_group_segment_fixed_size 0
  .amdhsa_kernarg_size 96
  .amdhsa_user_sgpr_count 2
  .amdhsa_user_sgpr_kernarg_segment_ptr 1
  .amdhsa_system_sgpr_workgroup_id_x 1
  .amdhsa_float_denorm_mode_32 3
.end_amdhsa_kernel
"""
        return out


def header():
    ref = open("gated_mix__linear_attn_block__mixer_token_mlp__prompt.s.ref").read().split("\n")
    h = []
    for l in ref:
        if l.startswith("; Override"):
            break
        h.append(l)
    return "\n".join(h) + "\n"


if __name__ == "__main__":
    import argparse
    p = argparse.ArgumentParser()
    p.add_argument("-o", default="gated_mix__linear_attn_block__mixer_token_mlp__prompt.s")
    p.add_argument("--stamps", action="store_true")
    p.add_argument("--stop", default=None)
    p.add_argument("--opt", default="")
    args = p.parse_args()
    opts = {k: (int(v) if v != '' else 1) for k, _, v in (x.partition('=') for x in args.opt.split(',') if x)}
    g = Gen(stamps=args.stamps, stop=args.stop, opts=opts)
    open(args.o, "w").write(g.build(header()))
    print("wrote", args.o)
```

```python
import sys

KNAME = "gated_mix__linear_attn_block__mixer_token_mlp__prompt_kernel"

import os
FS = int(os.environ.get('FS', 128))
F_LN, F_KV, F_U, F_GO, F_WOT = 0x1000, 0x5000, 0x9000, 0xD000, 0x11000
G_OFF = 0x12000
STAMP = 0x900000
KVP = 0x20000
KVP_ST = 7168
HT = 0x100000
UW = 0x380000
UW_ST = 69632
GO = 0x640000
GO_ST = 20480
WS_USED = 0xA00000
TAG_INC = 0x9E3779B9
SPIN_LIMIT = 1 << 17

LDS_BYTES = 163840
LNBUF = 0
LN_ST = 1312
LNG = LNBUF + 32 * LN_ST
A_SLOT = 49152
A_WOFF = 16384
EXCH_ST = 14336
EXCH = LDS_BYTES - 4 * EXCH_ST
KVT = 147456
ZH = KVT + 11 * 1024

LOG2E = 0x3FB8AA3B


def f2u(x):
    import struct
    return struct.unpack("<I", struct.pack("<f", x))[0]


class Asm:
    def __init__(self):
        self.L = []
        self.nlab = 0

    def __call__(self, s):
        for line in s.split("\n"):
            line = line.strip()
            if line:
                self.L.append(("    " if not line.endswith(":") else "") + line)

    def label(self, base):
        self.nlab += 1
        return f"L{base}_{self.nlab}"

    def text(self):
        return "\n".join(self.L) + "\n"


def vr(a, n=1):
    return f"v{a}" if n == 1 else f"v[{a}:{a+n-1}]"


def sr(a, n=1):
    return f"s{a}" if n == 1 else f"s[{a}:{a+n-1}]"


P_X, P_WQKV, P_WO, P_BX, P_W1, P_B1, P_W2, P_B2 = 4, 6, 8, 10, 12, 14, 16, 18
P_GATE, P_OUT, P_DBG, P_WS = 20, 22, 24, 26
S_TAG, S_WAVE = 28, 29
S_XCD, S_J = 30, 31
R_WS, R_X, R_W, R_P, R_W2, R_M, R_OUT = 32, 36, 40, 44, 48, 52, 56
S_T0 = 60
S_MT, S_HG, S_DT, S_FT, S_KST, S_PAR = 70, 71, 72, 73, 74, 75
S_ST, S_DTILE = 76, 77
S_CNT = 78
S_A, S_B, S_C, S_D = 80, 81, 82, 83
S_MSK = 84
S_K0 = 90
S_STMP = 96
S_PERM = 66
S_M = 79
S_FROMA = 95
S_PERM2 = 68


def lead_perm(n, nshare, m, lead=2):
    order = list(range(n))
    i = m
    while i + lead < n:
        order[i:i + lead + 1] = [order[i + lead]] + order[i:i + lead]
        i += nshare
    return order


class Gen:
    def __init__(self, stamps=False, stop=None, opts=None):
        self.o = opts or {}
        self.a = Asm()
        self.stamps = stamps
        self.stop = stop

    def nt(self, key):
        return "nt" if self.o.get(key) else ""

    def srd(self, dst, ptr, nbytes, off_s=None):
        a = self.a
        if off_s is None:
            a(f"s_mov_b32 s{dst}, s{ptr}\ns_and_b32 s{dst+1}, s{ptr+1}, 0xffff")
        else:
            a(f"s_add_u32 s{dst}, s{ptr}, s{off_s}\ns_addc_u32 s{dst+1}, s{ptr+1}, 0\ns_and_b32 s{dst+1}, s{dst+1}, 0xffff")
        a(f"s_mov_b32 s{dst+2}, {nbytes:#x}\ns_mov_b32 s{dst+3}, 0x20000")

    def stamp(self, k, vtmp, dyn=None):
        if "pc1" in self.o:
            if dyn is None and k in (self.o["pc1"], self.o["pc2"]):
                lab = self.a.label("npr")
                self.a(f"s_cmp_lg_u32 s{S_FROMA}, {self.o.get('prole', 0)}\ns_cbranch_scc1 {lab}")
                if k == self.o["pc1"]:
                    self.a(f"s_memtime s[92:93]\ns_waitcnt lgkmcnt(0)")
                else:
                    self.a(f"s_memtime s[96:97]\ns_waitcnt lgkmcnt(0)\ns_sub_u32 s92, s96, s92\ns_lshr_b32 s92, s92, 4\ns_add_u32 s98, s98, s92\ns_mov_b32 s94, 1")
                self.a(f"{lab}:")
            return
        if "probe" in self.o:
            role = self.o.get("prole")
            if k == self.o["probe"] and dyn is None:
                lab = self.a.label("npr")
                if self.o.get("phelp"):
                    self.a(f"s_cmp_lt_u32 s{S_J}, 30\ns_cbranch_scc1 {lab}")
                if role is not None and k != 0:
                    self.a(f"s_cmp_lg_u32 s{S_FROMA}, {role}\ns_cbranch_scc1 {lab}")
                self.a(f"s_memrealtime s[98:99]\ns_mov_b32 s94, 1\ns_waitcnt lgkmcnt(0)\n{lab}:")
            return
        if self.o.get("dbg"):
            m = {0: 0, 11: 1, 1: 2, 2: 3, 3: 4, 4: 5, 6: 6, 9: 7}
            mA = {0: 0, 1: 1, 2: 2, 3: 3, 4: 4, 5: 5, 6: 6, 9: 7}
            if dyn is not None:
                return
            a = self.a
            for wg, mp, base in ((8, m, 0), (12, mA, 8)):
                if k in mp:
                    lab = a.label("nd")
                    a(f"s_cmp_lg_u32 s2, {wg}\ns_cbranch_scc1 {lab}")
                    a(f"s_memrealtime s[{S_STMP}:{S_STMP+1}]\ns_waitcnt lgkmcnt(0)")
                    a(f"v_mov_b32 v{vtmp}, s{S_STMP}\nv_mov_b32 v{vtmp+2}, {4*(base+mp[k])}")
                    a(f"s_mov_b64 exec, 1\nglobal_store_dword v{vtmp+2}, v{vtmp}, s[{P_DBG}:{P_DBG+1}]\ns_mov_b64 exec, -1\n{lab}:")
            return
        if not self.stamps:
            return
        a = self.a
        a(f"s_memrealtime s[{S_STMP}:{S_STMP+1}]\ns_memtime s[100:101]")
        ln = str(k)
        if dyn is not None:
            a(f"s_add_u32 m0, s{dyn}, {k}")
            ln = "m0"
        a(f"s_waitcnt lgkmcnt(0)\nv_writelane_b32 v254, s{S_STMP}, {ln}\nv_writelane_b32 v255, s100, {ln}")

    def perm_setup(self, s_m, n, nshare, dst, enable):
        a = self.a
        def pk(o):
            v = 0
            for i, x in enumerate(o):
                v |= x << (4 * i)
            return v & 0xffffffff, v >> 32
        lo, hi = pk(list(range(n)))
        a(f"s_mov_b32 s{dst}, {lo:#x}\ns_mov_b32 s{dst+1}, {hi:#x}")
        if not enable:
            return
        for m in range(nshare):
            lo, hi = pk(lead_perm(n, nshare, m, enable))
            a(f"s_cmp_eq_u32 s{s_m}, {m}\ns_cselect_b32 s{dst}, {lo:#x}, s{dst}\ns_cselect_b32 s{dst+1}, {hi:#x}, s{dst+1}")

    def perm_next(self, dst, src, mul):
        t = f"s_and_b32 s{dst}, s{src}, 15\ns_lshr_b64 s[{src}:{src+1}], s[{src}:{src+1}], 4\n"
        if mul & (mul - 1) == 0:
            t += f"s_lshl_b32 s{dst}, s{dst}, {mul.bit_length()-1}\n"
        else:
            t += f"s_mul_i32 s{dst}, s{dst}, {mul}\n"
        return t

    def poll(self, voffs, vtmp, mask=None):
        a = self.a
        lp, dn = a.label("poll"), a.label("pdone")
        n = len(voffs)

        def ld(k):
            for i, vo in enumerate(voffs):
                a(f"buffer_load_dword v{vtmp+k*n+i}, v{vo}, s[{R_WS}:{R_WS+3}], 0 offen sc1")

        def chk(k):
            if mask is not None:
                a(f"v_xor_b32 v{vtmp+k*n}, s{S_TAG}, v{vtmp+k*n}\nv_and_b32 v{vtmp+k*n}, v{mask}, v{vtmp+k*n}\nv_cmp_ne_u32 vcc, 0, v{vtmp+k*n}")
            else:
                a(f"v_cmp_ne_u32 vcc, s{S_TAG}, v{vtmp+k*n}")
            for i in range(1, n):
                a(f"v_cmp_ne_u32 s[{S_T0}:{S_T0+1}], s{S_TAG}, v{vtmp+k*n+i}\ns_nop 1\ns_or_b64 vcc, vcc, s[{S_T0}:{S_T0+1}]")
            a(f"s_nop 1\ns_cmp_eq_u64 vcc, 0\ns_cbranch_scc1 {dn}")
        if not self.o.get("pp"):
            a(f"s_mov_b32 s{S_CNT}, 0\n{lp}:")
            ld(0)
            a("s_waitcnt vmcnt(0)")
            chk(0)
            a(f"s_add_u32 s{S_CNT}, s{S_CNT}, 1\ns_cmp_lt_u32 s{S_CNT}, {SPIN_LIMIT}\ns_cbranch_scc0 {dn}\ns_sleep 1\ns_branch {lp}\n{dn}:")
            return
        sl = f"s_sleep {self.o['pp'] - 1}\n" if self.o["pp"] > 1 else ""
        a(f"s_mov_b32 s{S_CNT}, 0")
        ld(0)
        a(f"{sl}{lp}:")
        ld(1)
        a(f"s_waitcnt vmcnt({n})")
        chk(0)
        ld(0)
        a(f"s_waitcnt vmcnt({n})")
        chk(1)
        a(f"s_add_u32 s{S_CNT}, s{S_CNT}, 1\ns_cmp_lt_u32 s{S_CNT}, {SPIN_LIMIT}\ns_cbranch_scc1 {lp}\n{dn}:")

    def flag_store(self, s_off, vtmp):
        a = self.a
        a(f"v_mov_b32 v{vtmp}, s{S_TAG}\nv_mov_b32 v{vtmp+1}, 0\ns_mov_b64 exec, 1")
        a(f"buffer_store_dword v{vtmp}, v{vtmp+1}, s[{R_WS}:{R_WS+3}], s{s_off} offen sc1\ns_mov_b64 exec, -1")

    def pipeline(self, stages, L, gstar, drain=True, wait_every=2, vis=None):
        a = self.a
        seq = [(si, gi, u) for si, st in enumerate(stages) for gi, u in enumerate(st["uses"])]
        issued = []
        vis = list(vis or [])
        state = dict(nxt=0, opened=-1)
        pend = []

        def collect(lim):
            while state["nxt"] < len(seq) and state["nxt"] <= lim and seq[state["nxt"]][0] <= state["opened"]:
                si_, _, u_ = seq[state["nxt"]]
                for name, txt in u_["reads"]:
                    pend.append((f"{si_}:{name}", txt))
                state["nxt"] += 1
                if seq[state["nxt"] - 1][1] == len(stages[si_]["uses"]) - 1 and si_ + 1 < len(stages):
                    state["defer"] = list(stages[si_ + 1].get("pre", []))

        def out(txt):
            if ";@" in txt:
                vis.append(txt.split(";@")[1].strip())
            a(txt)

        def emit(n):
            for _ in range(min(n, len(pend))):
                name, txt = pend.pop(0)
                out(txt)
                if name:
                    issued.append(name)

        a(stages[0]["bar"])
        state["opened"] = 0
        collect(L - 1)
        emit(len(pend))
        n_real = sum(len(st["uses"]) for st in stages if not st.get("virtual"))
        covered = -1
        for f in range(n_real):
            si, gi, u = seq[f]
            nuse = len(stages[si]["uses"])
            if gi == 0 and stages[si].get("head"):
                assert not pend, pend
                a(stages[si]["head"])
                covered = -1
            if gi == gstar and si + 1 < len(stages):
                emit(len(pend))
                for x in state.pop("defer", []):
                    a(x)
                if drain:
                    a("s_waitcnt lgkmcnt(0)")
                    covered = len(issued) - 1
                a(stages[si + 1]["bar"])
                pend.extend((None, x) for x in stages[si + 1].get("bar_pend", []))
                state["opened"] = si + 1
                collect(f + L - 1)
            def lastidx(ff):
                s_, _, uu = seq[ff]
                return max(len(issued) - 1 - issued[::-1].index(f"{s_}:{nm}") for nm in uu["need"])
            w = []
            if lastidx(f) > covered:
                tgt = lastidx(f)
                for ff in range(f + 1, min(f + wait_every, n_real)):
                    if seq[ff][0] != si:
                        break
                    try:
                        tgt = max(tgt, lastidx(ff))
                    except ValueError:
                        break
                n = len(issued) - 1 - tgt
                assert n <= 15, n
                w.append(f"lgkmcnt({n})")
                covered = tgt
            if u.get("vneed") is not None:
                w.insert(0, f"vmcnt({len(vis) - 1 - vis.index(u['vneed'])})")
            if u.get("vm") is not None:
                npv = sum(1 for nm_, t_ in pend if t_.strip().startswith("buffer_load"))
                w.insert(0, f"vmcnt({u['vm'] - npv})")
            if w:
                a("s_waitcnt " + " ".join(w))
            if u.get("before"):
                a(u["before"])
            if state.get("defer") and not pend:
                n_ = self.o.get("npre", 7)
                pend.extend((None, x) for x in state["defer"][:n_])
                state["defer"] = state["defer"][n_:]
            collect(f + L)
            if state.get("mix"):
                k_ = state.pop("mix")
                head_, rest_ = pend[:k_], pend[k_:]
                pend[:] = [x for pr in zip(head_, rest_) for x in pr] + head_[len(rest_):] + rest_[len(head_):]
            nm_ = len(u["mf"])
            for k, m in enumerate(u["mf"]):
                a(m)
                left = nm_ - k
                if drain and gi >= gstar:
                    left += sum(len(uu["mf"]) for uu in stages[si]["uses"][gi + 1:])
                    extra = 2 * (nuse - 1 - gi)
                    emit(-(-(len(pend) + extra) // left) if left > 1 else len(pend))
                else:
                    emit(-(-len(pend) // left))
            if u.get("after"):
                items = [x for x in u["after"].split("\n") if x.strip()]
                if gi == nuse - 1:
                    for x in items:
                        out(x)
                else:
                    assert not pend
                    pend.extend((None, x) for x in items)
                    state["mix"] = len(items)
            if gi == nuse - 1 and stages[si].get("tail"):
                a(stages[si]["tail"])

    def prologue(self):
        a = self.a
        a(f"""
        s_cmp_ge_u32 s2, 256
        s_cbranch_scc1 L_exit
        {"v_mov_b32 v254, 0" if self.stamps else ""}
        {"v_mov_b32 v255, 0" if self.stamps else ""}
        {"s_memrealtime s[98:99]" if self.o.get("calib") or "pc1" in self.o else ""}
        {"s_mov_b32 s94, 0" if "probe" in self.o or "pc1" in self.o else ""}
        s_load_dwordx16 s[4:19], s[0:1], 0
        s_load_dwordx8 s[20:27], s[0:1], 64
        """)
        if self.o.get("pf_code") == 2:
            a(f"""
            s_getpc_b64 s[{S_T0}:{S_T0+1}]
            L_pcref:
            s_lshr_b32 s3, s2, 3
            s_mul_i32 s3, s3, 1280
            v_lshlrev_b32 v4, 7, v0
            v_add_u32 v4, s3, v4
            v_min_u32 v4, L_exit-L_pcref, v4
            v_cmp_gt_u32 vcc, 10, v0
            s_and_saveexec_b64 s[{S_T0+2}:{S_T0+3}], vcc
            s_cbranch_execz L_nocpf
            global_load_dword v253, v4, s[{S_T0}:{S_T0+1}]
            L_nocpf:
            s_mov_b64 exec, -1
            """)
        a(f"""
        v_and_b32 v1, 63, v0
        v_lshrrev_b32 v2, 6, v0
        s_and_b32 s{S_XCD}, s2, 7
        v_readfirstlane_b32 s{S_WAVE}, v2
        s_lshr_b32 s{S_J}, s2, 3
        s_waitcnt lgkmcnt(0)
        s_load_dword s{S_TAG}, s[{P_WS}:{P_WS+1}], 0
        """)
        self.srd(R_WS, P_WS, WS_USED)
        self.srd(R_X, P_X, 2048 * 1280)
        self.srd(R_W2, P_W2, 1536 * 4096)
        if self.stamps or self.o.get("dbg") or "probe" in self.o:
            a(f"s_cmp_lg_u32 s{S_WAVE}, 0\ns_cbranch_scc1 L_nost0")
            self.stamp(0, 4)
            a("L_nost0:")
        if self.o.get("tlb"):
            self.tlb_warm()
        if self.o.get("pf_code") == 1:
            self.code_prefetch()
        if self.o.get("prio"):
            a(f"""
            s_sub_u32 s{S_T0}, s{S_WAVE}, 4
            s_cmp_lt_u32 s{S_T0}, 3
            s_cbranch_scc1 L_noprio
            s_setprio 3
            L_noprio:
            """)
        a(f"""
        s_lshr_b32 s{S_T0}, s{S_XCD}, 1
        s_lshl_b32 s{S_T0}, s{S_T0}, 3
        s_lshr_b32 s{S_ST}, s{S_J}, 2
        s_add_u32 s{S_ST}, s{S_ST}, s{S_T0}
        s_and_b32 s{S_T0}, s{S_XCD}, 1
        s_lshl_b32 s{S_T0}, s{S_T0}, 2
        s_and_b32 s{S_DTILE}, s{S_J}, 3
        s_add_u32 s{S_DTILE}, s{S_DTILE}, s{S_T0}
        s_cmp_lt_u32 s{S_XCD}, 4
        s_cbranch_scc1 L_roleB
        """)

    V_W2 = 240

    def f_perm(self):
        a = self.a
        a(f"s_lshl_b32 s{S_M}, s{S_DTILE}, 1\ns_add_u32 s{S_M}, s{S_M}, s{S_ST}\ns_and_b32 s{S_M}, s{S_M}, 7")
        self.perm_setup(S_M, 12, 8, S_PERM, self.o.get("rotF"))

    def w2_setup(self):
        a = self.a
        V = self.V_W2
        self.f_perm()
        a(f"""
        v_lshrrev_b32 v{V}, 3, v1
        v_lshrrev_b32 v{V+1}, 4, v1
        v_lshlrev_b32 v{V+1}, 1, v{V+1}
        v_and_b32 v{V+2}, 7, v1
        v_xor_b32 v{V+1}, v{V+1}, v{V+2}
        v_lshlrev_b32 v{V+1}, 4, v{V+1}
        v_lshl_add_u32 v{V}, v{V}, 12, v{V+1}
        v_add_u32 v{V+1}, {32768-1024}, v{V}
        v_add_u32 v{V+2}, {2*(32768-1024)}, v{V}
        v_add_u32 v{V+3}, {3*(32768-1024)}, v{V}
        s_sub_u32 s{S_T0}, s{S_WAVE}, 5
        s_lshl_b32 s{S_B}, s{S_T0}, 13
        s_lshl_b32 s{S_A}, s{S_T0}, 18
        s_lshl_b32 s{S_T0}, s{S_ST}, 7
        s_add_u32 s{S_A}, s{S_A}, s{S_T0}
        """)

    def w2_issue_at(self, p):
        a = self.a
        V = self.V_W2
        a(f"s_bfe_u32 s{S_T0}, s{S_PERM}, {(4 << 16) | (4 * p):#x}\ns_lshl_b32 s{S_T0}, s{S_T0}, 19\ns_add_u32 s{S_T0}, s{S_T0}, s{S_A}")
        for g in range(2):
            a(f"s_add_u32 m0, s{S_B}, {p*16384 + g*4096}")
            a(f"s_add_u32 s{S_T0}, s{S_T0}, {g*4*32768}")
            for i in range(4):
                a(f"buffer_load_dwordx4 v{V+i}, s[{R_W2}:{R_W2+3}], s{S_T0} offen offset:{i*1024} lds")

    def w2_half(self, g):
        a = self.a
        V = self.V_W2
        if g == 0:
            a(self.perm_next(S_K0, S_PERM, 128 * 4096) + f"s_add_u32 s{S_K0}, s{S_K0}, s{S_A}")
        a(f"s_add_u32 m0, s{S_B}, {g*4096}\ns_add_u32 s{S_T0}, s{S_K0}, {g*4*32768}")
        for i in range(4):
            a(f"buffer_load_dwordx4 v{V+i}, s[{R_W2}:{R_W2+3}], s{S_T0} offen offset:{i*1024} lds")
        if g == 1:
            a(f"s_add_u32 s{S_B}, s{S_B}, 16384")

    def w2_issue(self):
        a = self.a
        V = self.V_W2
        a(self.perm_next(S_T0, S_PERM, 128 * 4096))
        a(f"s_add_u32 s{S_T0}, s{S_T0}, s{S_A}")
        for g in range(2):
            a(f"s_add_u32 m0, s{S_B}, {g*4096}")
            a(f"s_add_u32 s{S_T0}, s{S_T0}, {g*4*32768}")
            for i in range(4):
                a(f"buffer_load_dwordx4 v{V+i}, s[{R_W2}:{R_W2+3}], s{S_T0} offen offset:{i*1024} lds")
        a(f"s_add_u32 s{S_B}, s{S_B}, 16384\ns_and_b32 s{S_B}, s{S_B}, 0x1ffff")

    def w2_prefill(self, n):
        if n == 0:
            return
        a = self.a
        lp = a.label("pf")
        a(f"s_mov_b32 s{S_C}, 0\n{lp}:")
        self.w2_issue()
        a(f"s_add_u32 s{S_C}, s{S_C}, 1\ns_cmp_lt_u32 s{S_C}, {n}\ns_cbranch_scc1 {lp}")

    def if_wave56(self):
        a = self.a
        skip = a.label("n56")
        a(f"s_sub_u32 s{S_T0}, s{S_WAVE}, 5\ns_cmp_lt_u32 s{S_T0}, 2\ns_cbranch_scc0 {skip}")
        return skip

    def role_a(self):
        a = self.a
        a(f"L_roleA:\ns_mov_b32 s{S_FROMA}, 1")
        a(f"s_sub_u32 s{S_MT}, s{S_ST}, 16\ns_mov_b32 s{S_HG}, s{S_DTILE}")
        a(f"s_cmp_ge_u32 s{S_WAVE}, 4\ns_cbranch_scc1 L_A_loader")
        ACC, XF, WF, VXA, VWA = 128, 96, 64, 4, 6
        if self.o.get("ta1") or self.o.get("ta2"):
            self.start_prefetch()
        self.a_thread_map()
        a(f"""
        v_and_b32 v16, 15, v1
        v_lshrrev_b32 v17, 4, v1
        s_lshl_b32 s{S_T0}, s{S_WAVE}, 5
        v_add_u32 v18, s{S_T0}, v16
        v_lshrrev_b32 v19, 1, v16
        v_xor_b32 v19, v17, v19
        v_lshlrev_b32 v19, 4, v19
        v_lshl_add_u32 v{VXA}, v18, 7, v19
        v_xor_b32 v{VXA+1}, 64, v{VXA}
        v_lshrrev_b32 v18, 2, v16
        v_lshl_add_u32 v19, v17, 3, v18
        v_and_b32 v20, 1, v17
        v_lshl_or_b32 v20, v20, 2, v18
        v_lshlrev_b32 v19, 9, v19
        v_lshl_add_u32 v19, v20, 5, v19
        v_and_b32 v20, 3, v16
        v_lshl_add_u32 v19, v20, 3, v19
        v_add_u32 v{VWA}, {A_WOFF}, v19
        """)
        for n in range(1, 8):
            a(f"v_xor_b32 v{VWA+n}, {n<<5}, v{VWA}")
        for r in range(120):
            a(f"v_mov_b32 v{ACC+r}, 0")
        a(f"s_mov_b32 s{S_A}, 0\ns_mov_b32 s{S_B}, 0\ns_mov_b32 s{S_C}, {A_SLOT}\ns_waitcnt lgkmcnt(0)")
        a(f"s_add_u32 s{S_TAG}, s{S_TAG}, {TAG_INC:#x}")

        RING = 6
        D = 6

        def mk_stage(bar, virtual=False, head=None, tail=None):
            uses = []
            for g in range(30):
                ks, n = divmod(g, 15)
                wb = WF + 4 * (g % RING)
                reads = []
                if g == 0:
                    for rb in range(2):
                        reads.append((f"x0{rb}", f"ds_read_b128 {vr(XF+4*rb,4)}, v{VXA} offset:{rb*2048}"))
                if g == 13:
                    for rb in range(2):
                        reads.append((f"x1{rb}", f"ds_read_b128 {vr(XF+8+4*rb,4)}, v{VXA+1} offset:{rb*2048}"))
                off = ks * 16384 + (n >> 3) * 256
                reads.append((f"w{g}a", f"ds_read_b64_tr_b16 {vr(wb,2)}, v{VWA+(n&7)} offset:{off}"))
                reads.append((f"w{g}b", f"ds_read_b64_tr_b16 {vr(wb+2,2)}, v{VWA+(n&7)} offset:{off+2048}"))
                need = [f"w{g}b", f"x{ks}1"]
                mf = []
                for rb in range(2):
                    acc = vr(ACC + (n * 2 + rb) * 4, 4)
                    xf = vr(XF + ks * 8 + rb * 4, 4)
                    wf = vr(wb, 4)
                    if n < 5:
                        mf.append(f"v_mfma_f32_16x16x32_bf16 {acc}, {wf}, {xf}, {acc}")
                    else:
                        mf.append(f"v_mfma_f32_16x16x32_bf16 {acc}, {xf}, {wf}, {acc}")
                uses.append(dict(reads=reads, need=need, mf=mf))
            return dict(uses=uses, bar=bar, virtual=virtual, head=head, tail=tail)

        adv = "s_barrier"
        pre = [f"s_add_u32 s{S_B}, s{S_B}, 1", f"s_cmp_eq_u32 s{S_B}, 3", f"s_cselect_b32 s{S_B}, 0, s{S_B}",
               f"s_cselect_b32 s{S_T0}, {(-2*A_SLOT) & 0xffffffff:#x}, s{S_C}"]
        pre += [f"v_add_u32 v{r}, s{S_T0}, v{r}" for r in range(VXA, VWA + 8)]
        tail = f"s_add_u32 s{S_A}, s{S_A}, 1\ns_cmp_lt_u32 s{S_A}, 10\ns_cbranch_scc1 L_A_loop"
        head = "L_A_loop:\n"
        bar0 = "s_barrier"
        self.uw_srd()
        if self.o.get("tw2") == 2:
            self.srd(R_M, P_WO, 640 * 1280)
            a(f"""
            v_lshlrev_b32 v252, 7, v1
            s_lshl_b32 s{S_T0}, s{S_MT}, 3
            s_add_u32 s{S_T0}, s{S_T0}, s{S_HG}
            s_lshl_b32 s{S_T0}, s{S_T0}, 2
            s_add_u32 s{S_T0}, s{S_T0}, s{S_WAVE}
            s_mul_i32 s{S_D}, s{S_T0}, {12288 - 1024 * self.o.get("hW2n", 4) if self.o.get("hW2") else 12288}
            s_add_u32 s{S_KST}, s{S_D}, 8192
            s_mul_i32 s{S_PAR}, s{S_T0}, 1664
            s_and_b32 s{S_M}, s{S_J}, 7
            s_add_u32 s{S_M}, s{S_M}, {self.o.get("tw2at", 1)}
            """)
            head += f"""
            s_cmp_lg_u32 s{S_A}, s{S_M}
            s_cbranch_scc1 L_A_nt2
            buffer_load_dword v253, v252, s[{R_W2}:{R_W2+3}], s{S_D} offen
            s_mov_b32 exec_hi, 0
            {f"s_mov_b32 exec_lo, {(1 << (32 - 8 * self.o.get('hW2n', 4))) - 1:#x}" if self.o.get("hW2") and self.o.get("hW2n", 4) < 4 else ""}
            {"" if self.o.get("hW2") and self.o.get("hW2n", 4) == 4 else f"buffer_load_dword v253, v252, s[{R_W2}:{R_W2+3}], s{S_KST} offen"}
            s_mov_b32 exec_lo, 0x1fff
            {"" if self.o.get("woLN") else f"buffer_load_dword v253, v252, s[{R_M}:{R_M+3}], s{S_PAR} offen"}
            s_mov_b64 exec, -1
            L_A_nt2:
            """
        if "promA" in self.o:
            head += f"s_cmp_lg_u32 s{S_A}, {self.o['promA']}\ns_cbranch_scc1 L_A_npr\n" + self.pf_rest_plain() + "L_A_npr:\n"
        ta2 = self.o.get("ta2")
        if ta2 == 1:
            a(self.pf_rest())
        elif ta2 == 2:
            bar0 += "\n" + self.pf_rest()
        elif ta2:
            head += f"s_cmp_lg_u32 s{S_A}, {ta2-2}\ns_cbranch_scc1 L_A_npf\n" + self.pf_rest() + "L_A_npf:\n"
        self.pipeline([mk_stage(bar0, head=head, tail=tail), dict(mk_stage(adv, virtual=True), pre=pre)], 5, 30 - 3, wait_every=self.o.get('we', 2))
        self.stamp(2, 16)
        PK, VV, ONES, KVD, ZD = 16, 36, 56, 64, 116
        a("L_A_tail:\ns_waitcnt lgkmcnt(0)\ns_nop 7")
        a(f"s_mov_b32 s{S_K0}, {LOG2E:#x}\ns_mov_b32 s{S_K0+1}, {LOG2E:#x}\ns_mov_b32 s{S_K0+2}, {f2u(1e-6):#x}")

        def phi(base, n, t):
            for i in range(0, n, 4):
                r = base + i
                a(f"v_pk_mul_f32 {vr(t,2)}, {vr(r,2)}, s[{S_K0}:{S_K0+1}]")
                a(f"v_pk_mul_f32 {vr(t+2,2)}, {vr(r+2,2)}, s[{S_K0}:{S_K0+1}]")
                for k in range(4):
                    a(f"v_exp_f32_e64 v{t+k}, v{t+k} clamp")
                for k in range(4):
                    a(f"v_max_f32 v{r+k}, s{S_K0+2}, v{r+k}")
                a(f"v_pk_add_f32 {vr(r,2)}, {vr(r,2)}, {vr(t,2)}")
                a(f"v_pk_add_f32 {vr(r+2,2)}, {vr(r+2,2)}, {vr(t+2,2)}")

        def pack(dst, src0, src1):
            a(f"v_cvt_pk_bf16_f32 v{dst}, v{src0}, v{src0+1}\nv_cvt_pk_bf16_f32 v{dst+1}, v{src0+2}, v{src0+3}")
            if src1 is None:
                a(f"v_mov_b32 v{dst+2}, 0\nv_mov_b32 v{dst+3}, 0")
            else:
                a(f"v_cvt_pk_bf16_f32 v{dst+2}, v{src1}, v{src1+1}\nv_cvt_pk_bf16_f32 v{dst+3}, v{src1+2}, v{src1+3}")

        for b in range(5):
            pack(VV + 4 * b, ACC + (10 + b) * 8, ACC + (10 + b) * 8 + 4)
        for k in range(4):
            a(f"v_mov_b32 v{ONES+k}, 0x3f803f80")
        phi(ACC + 40, 40, 60)
        for b in range(5):
            pack(PK + 4 * b, ACC + (5 + b) * 8, ACC + (5 + b) * 8 + 4)
        a("s_nop 1")
        ZD = ACC + 80
        blocks = [(x, y) for x in range(5) for y in range(5) if abs(x - y) <= 1]
        for (x, y) in blocks:
            a(f"v_mfma_f32_16x16x32_bf16 {vr(KVD+4*(2*x+y),4)}, {vr(PK+4*x,4)}, {vr(VV+4*y,4)}, 0")
        for x in range(5):
            a(f"v_mfma_f32_16x16x32_bf16 {vr(ZD+4*x,4)}, {vr(ONES,4)}, {vr(PK+4*x,4)}, 0")
        a(f"""
        s_mul_i32 s{S_T0}, s{S_WAVE}, {EXCH_ST}
        s_add_u32 s{S_T0}, s{S_T0}, {EXCH}
        v_lshlrev_b32 v60, 4, v1
        v_add_u32 v60, s{S_T0}, v60
        v_and_b32 v61, 15, v1
        v_lshlrev_b32 v61, 2, v61
        v_add_u32 v61, s{S_T0}, v61
        s_nop 3
        """)
        for i in range(13):
            a(f"ds_write_b128 v60, {vr(KVD+4*i,4)} offset:{i*1024}")
        for x in range(5):
            a(f"ds_write_b32 v61, v{ZD+4*x} offset:{13312+64*x}")
        self.stamp(10, 40)
        a("s_waitcnt lgkmcnt(0)\ns_barrier")
        self.stamp(11, 40)
        self.a_reduce_publish(64)
        self.stamp(12, 40)
        a("v_lshlrev_b32 v59, 4, v1\ns_barrier")
        self.stamp(14, 40)
        self.wot_preload(59)
        PQ = 16
        phi(ACC, 40, 60)
        for ts in range(3):
            for rb in range(2):
                pack(PQ + (ts * 2 + rb) * 4, ACC + (2 * ts * 2 + rb) * 4, None if ts == 2 else ACC + ((2 * ts + 1) * 2 + rb) * 4)
        self.f_setup()
        a("s_barrier")
        a(f"""
        v_and_b32 v63, 15, v1
        v_lshlrev_b32 v63, 2, v63
        s_lshl_b32 s{S_T0}, s{S_MT}, 7
        s_lshl_b32 s{S_T0+1}, s{S_WAVE}, 5
        s_add_u32 s{S_T0}, s{S_T0}, s{S_T0+1}
        s_lshl_b32 s{S_T0}, s{S_T0}, 2
        s_add_u32 s{S_T0}, s{S_T0}, {G_OFF}
        buffer_load_dword v62, v63, s[{R_WS}:{R_WS+3}], s{S_T0} offen sc1
        buffer_load_dword v61, v63, s[{R_WS}:{R_WS+3}], s{S_T0} offen offset:64 sc1
        """)
        self.a_gather(64)
        a("s_waitcnt lgkmcnt(0)\ns_barrier")
        self.stamp(4, 40)
        FR = 64
        a("v_lshlrev_b32 v60, 4, v1\nv_add_u32 v60, " + str(KVT) + ", v60")
        used = [0, 2, 3, 4, 5, 7, 8, 9, 10, 11, 12, 13]
        for f in used:
            a(f"ds_read_b128 {vr(FR+4*f,4)}, v60 offset:{f*1024}")
        NUM, DEN = 128, 120
        kts = {0: [0], 1: [0, 1], 2: [0, 1], 3: [1, 2], 4: [1, 2]}
        a(f"""
        v_lshrrev_b32 v40, 4, v1
        v_cmp_gt_u32 s[{S_MSK}:{S_MSK+1}], 1, v40
        v_cmp_gt_u32 s[{S_MSK+2}:{S_MSK+3}], 2, v40
        v_cmp_gt_u32 s[{S_MSK+4}:{S_MSK+5}], 3, v40
        s_waitcnt lgkmcnt(0)
        """)
        for rb in range(2):
            for ts in range(3):
                c = "0" if ts == 0 else vr(DEN + 4 * rb, 4)
                a(f"v_mfma_f32_16x16x32_bf16 {vr(DEN+4*rb,4)}, {vr(FR+4*(11+ts),4)}, {vr(PQ+(ts*2+rb)*4,4)}, {c}")
        for rb in range(2):
            for b in range(5):
                for i, ts in enumerate(kts[b]):
                    d = vr(NUM + (rb * 5 + b) * 4, 4)
                    c = "0" if i == 0 else d
                    a(f"v_mfma_f32_16x16x32_bf16 {d}, {vr(FR+4*(2*b+ts),4)}, {vr(PQ+(ts*2+rb)*4,4)}, {c}")
        for rb in range(2):
            for h in range(4):
                a(f"v_add_f32 v{DEN+4*rb+h}, s{S_K0+2}, v{DEN+4*rb+h}")
        for rb in range(2):
            for h in range(4):
                a(f"v_rcp_f32 v{DEN+4*rb+h}, v{DEN+4*rb+h}")
        a("s_nop 0")
        gv = {0: 62, 1: 61}
        for rb in range(2):
            for h in range(4):
                a(f"v_mul_f32 v{DEN+4*rb+h}, v{gv[rb]}, v{DEN+4*rb+h}")
        a(f"""
        s_lshl_b32 s{S_T0}, s{S_MT}, 3
        s_lshl_b32 s{S_T0+1}, s{S_WAVE}, 1
        s_add_u32 s{S_T0}, s{S_T0}, s{S_T0+1}
        s_mul_i32 s{S_T0}, s{S_T0}, {GO_ST}
        s_add_u32 s{S_T0}, s{S_T0}, {GO}
        s_lshl_b32 s{S_T0+1}, s{S_HG}, 11
        s_add_u32 s{S_T0+1}, s{S_T0+1}, s{S_T0}
        s_lshl_b32 s{S_T0+2}, s{S_HG}, 9
        s_add_u32 s{S_T0+2}, s{S_T0+2}, s{S_T0}
        s_add_u32 s{S_T0+2}, s{S_T0+2}, 16384
        v_lshlrev_b32 v40, 4, v1
        v_lshlrev_b32 v41, 3, v1
        """)
        for rb in range(2):
            d = DEN + 4 * rb
            a(f"v_cndmask_b32 v44, v{d+1}, v{d}, s[{S_MSK}:{S_MSK+1}]")
            a(f"v_cndmask_b32 v45, v{d+2}, v{d+1}, s[{S_MSK+2}:{S_MSK+3}]")
            a(f"v_cndmask_b32 v46, v{d+3}, v{d+2}, s[{S_MSK+4}:{S_MSK+5}]")
            sc = [d, 44, 45, 46, d + 3]
            for b in range(5):
                for k in range(4):
                    r = NUM + (rb * 5 + b) * 4 + k
                    a(f"v_mul_f32 v{r}, v{sc[b]}, v{r}")
            o = 16 + rb * 12
            n0 = NUM + rb * 20
            pack(o, n0, n0 + 4)
            pack(o + 4, n0 + 8, n0 + 12)
            a(f"v_cvt_pk_bf16_f32 v{o+8}, v{n0+16}, v{n0+17}\nv_cvt_pk_bf16_f32 v{o+9}, v{n0+18}, v{n0+19}")
            a(f"buffer_store_dwordx4 {vr(o,4)}, v40, s[{R_WS}:{R_WS+3}], s{S_T0+1} offen sc1")
            a(f"buffer_store_dwordx4 {vr(o+4,4)}, v40, s[{R_WS}:{R_WS+3}], s{S_T0+1} offen offset:1024 sc1")
            a(f"buffer_store_dwordx2 {vr(o+8,2)}, v41, s[{R_WS}:{R_WS+3}], s{S_T0+2} offen sc1")
            if rb == 0:
                a(f"s_add_u32 s{S_T0+1}, s{S_T0+1}, {GO_ST}\ns_add_u32 s{S_T0+2}, s{S_T0+2}, {GO_ST}")
        self.stamp(5, 40)
        a("s_branch L_F_comp")

        a("L_A_loader:")
        VX, VW = 4, 8
        self.srd(R_W, P_WQKV, 640 * 3840)
        a(f"""
        s_sub_u32 s{S_D}, s{S_WAVE}, 4
        v_lshrrev_b32 v16, 3, v1
        v_lshrrev_b32 v17, 4, v1
        v_and_b32 v18, 7, v1
        v_xor_b32 v17, v17, v18
        v_lshlrev_b32 v17, 4, v17
        v_mul_u32_u24 v16, 1280, v16
        v_add_u32 v{VX}, v16, v17
        v_xor_b32 v18, 64, v{VX}
        v_add_u32 v{VX+1}, {8*1280-1024}, v18
        v_add_u32 v{VX+2}, {2*(8*1280-1024)}, v{VX}
        v_add_u32 v{VX+3}, {3*(8*1280-1024)}, v18
        s_lshl_b32 s{S_T0}, s{S_MT}, 7
        s_lshl_b32 s{S_T0+1}, s{S_D}, 5
        s_add_u32 s{S_T0}, s{S_T0}, s{S_T0+1}
        s_mul_i32 s{S_A}, s{S_T0}, 1280
        s_lshl_b32 s{S_C}, s{S_D}, 12
        """)
        def issue_x():
            a(f"s_mov_b32 m0, s{S_C}\ns_nop 0")
            for i in range(4):
                a(f"buffer_load_dwordx4 v{VX+i}, s[{R_X}:{R_X+3}], s{S_A} offen offset:{i*1024} lds")
            a(f"s_add_u32 s{S_A}, s{S_A}, 128")

        def issue_w():
            for g in range(2):
                a(f"s_lshl_b32 s{S_T0}, s{S_D}, 12\ns_add_u32 s{S_T0}, s{S_T0}, s{S_C}\ns_add_u32 m0, s{S_T0}, {A_WOFF + g*4096}\ns_nop 0")
                for i in range(4):
                    a(f"buffer_load_dwordx4 v{VW+4*g+i}, s[{R_W}:{R_W+3}], s{S_B} offen offset:{i*1024} lds")
            a(f"s_add_u32 s{S_B}, s{S_B}, {64*3840}")

        def next_slot():
            a(f"s_add_u32 s{S_C}, s{S_C}, {A_SLOT}\ns_cmp_ge_u32 s{S_C}, {3*A_SLOT}\ns_cselect_b32 s{S_T0}, {3*A_SLOT}, 0\ns_sub_u32 s{S_C}, s{S_C}, s{S_T0}")

        issue_x()
        a(f"""
        v_lshrrev_b32 v16, 5, v1
        v_bfe_u32 v17, v1, 1, 4
        v_and_b32 v18, 1, v1
        v_lshlrev_b32 v18, 4, v18
        v_mul_u32_u24 v19, 3840, v16
        v_add_u32 v18, v18, v19
        """)
        for i in (0, 1, 4, 5):
            sig = (2 * (i & 1)) | ((i >> 2) << 2)
            a(f"""
            v_or_b32 v19, {sig}, v16
            v_xor_b32 v19, v17, v19
            v_min_u32 v19, 14, v19
            v_mul_u32_u24 v20, 13, v19
            v_lshrrev_b32 v20, 6, v20
            v_mul_u32_u24 v20, 1120, v20
            v_lshl_add_u32 v19, v19, 5, v20
            v_add_u32 v19, v19, v18
            v_add_u32 v{VW+i}, {2*i*3840 - (i&3)*1024}, v19
            v_add_u32 v{VW+i+2}, {2*(i+2)*3840 - ((i+2)&3)*1024}, v19
            """)
        a(f"""
        s_mul_i32 s{S_B}, s{S_HG}, 160
        s_mul_i32 s{S_T0}, s{S_D}, {16*3840}
        s_add_u32 s{S_B}, s{S_B}, s{S_T0}
        """)
        issue_w()
        for _ in range(2):
            next_slot()
            issue_x()
            issue_w()
        a(f"s_waitcnt lgkmcnt(0)\ns_add_u32 s{S_TAG}, s{S_TAG}, {TAG_INC:#x}")
        a("s_waitcnt vmcnt(24)\ns_barrier")
        self.stamp(1, 16)
        rotA = self.o.get("rotA")
        if rotA:
            a(f"s_lshl_b32 s{S_M}, s{S_HG}, 1\ns_add_u32 s{S_M}, s{S_M}, s{S_MT}\ns_and_b32 s{S_M}, s{S_M}, 7")
            self.perm_setup(S_M, 7, 8, S_PERM, rotA)
            a(f"s_mov_b32 s{S_KST}, s{S_A}\ns_mov_b32 s{S_PAR}, s{S_B}")
        a(f"s_mov_b32 s{S_CNT}, 1\nL_A_lloop:")
        if rotA:
            a(self.perm_next(S_B, S_PERM, 1))
            a(f"s_lshl_b32 s{S_A}, s{S_B}, 7\ns_add_u32 s{S_A}, s{S_A}, s{S_KST}\ns_mul_i32 s{S_B}, s{S_B}, {64*3840}\ns_add_u32 s{S_B}, s{S_B}, s{S_PAR}")
        a("s_waitcnt vmcnt(12)\ns_barrier")
        self.stamp(16, 16, dyn=S_CNT)
        next_slot()
        issue_x()
        issue_w()
        a(f"s_add_u32 s{S_CNT}, s{S_CNT}, 1\ns_cmp_le_u32 s{S_CNT}, 7\ns_cbranch_scc1 L_A_lloop")
        tw = 1 if self.o.get("tw2") in (1, 3) else 0
        if self.o.get("tw2") == 3:
            self.w2_touch()
        a(f"s_waitcnt vmcnt({12 + (tw if self.o.get('tw2') == 3 else 0)})\ns_barrier")
        if self.o.get("tw2") == 1:
            self.w2_touch()
        self.stamp(24, 16)
        self.w2_setup()
        self.a_thread_map()
        a(f"""
        s_mul_i32 s{S_T0}, s{S_DTILE}, {FS}
        s_add_u32 s{S_T0}, s{S_T0}, {F_WOT}
        v_mov_b32 v26, s{S_T0}
        v_and_b32 v27, 3, v1
        s_lshl_b32 s{S_T0}, s{S_MT}, 2
        v_add_u32 v27, s{S_T0}, v27
        v_mul_u32_u24 v27, {FS}, v27
        v_add_u32 v27, {F_LN}, v27
        v_cmp_gt_u32 vcc, 32, v1
        s_nop 1
        v_cndmask_b32 v26, v27, v26, vcc
        """)
        a(f"s_waitcnt vmcnt({tw})\ns_barrier")
        a(f"buffer_load_dword v28, v26, s[{R_WS}:{R_WS+3}], 0 offen sc1")
        self.stamp(25, 16)
        self.code_touch([("L_A_tail", 0), ("L_A_post", 0), ("L_F_comp", 0), ("L_F_comp", 1)])
        a("L_A_post:")
        eA = self.o.get("eA", 2)
        early = [3, 4, 5, 0, 1, 2]
        nE = self.o.get("nE", 6)
        sk = self.if_wave56()
        for p in early[:eA]:
            self.w2_issue_at(p)
        a(f"{sk}:\ns_barrier")
        self.stamp(26, 16)
        sk = self.if_wave56()
        for p in early[eA:nE]:
            self.w2_issue_at(p)
        a(f"{sk}:")
        a(f"s_cmp_eq_u32 s{S_WAVE}, 7\ns_cbranch_scc1 L_A_poller")
        a("s_barrier")
        self.a_reduce_publish(64)
        self.stamp(15, 40)
        a("s_barrier")
        self.kvt_zero()
        skip = self.if_wave56()
        for p in early[nE:] + [6, 7]:
            self.w2_issue_at(p)
        a(f"s_mov_b32 s{S_PERM}, s{S_PERM+1}")
        a("s_barrier")
        self.a_gather(64)
        a("s_waitcnt lgkmcnt(0)\ns_barrier")
        a("s_branch L_F_loader")
        a(f"{skip}:\ns_barrier")
        self.a_gather(64)
        a("s_waitcnt lgkmcnt(0)\ns_barrier")
        a("s_branch L_F_u4")
        a("L_A_poller:")
        a(f"s_waitcnt vmcnt(0)\nv_cmp_ne_u32 vcc, s{S_TAG}, v28\ns_nop 1\ns_cmp_eq_u64 vcc, 0\ns_cbranch_scc1 L_A_pok")
        self.poll([26], 18)
        a("L_A_pok:")
        self.stamp(13, 16)
        a("s_barrier\ns_barrier")
        self.kvt_zero()
        self.stamp(3, 16)
        a("s_barrier\ns_barrier")
        a("s_branch L_F_poller")
        self.a_gather_body(64)

    def code_touch(self, ranges):
        a = self.a
        if not self.o.get("ctouch"):
            return 0
        lab, ref = a.label("nct"), a.label("pc")
        a(f"s_cmp_lg_u32 s{S_WAVE}, 7\ns_cbranch_scc1 {lab}\ns_getpc_b64 s[{S_T0}:{S_T0+1}]\n{ref}:\nv_lshlrev_b32 v24, 7, v1")
        for (start, k) in ranges:
            a(f"s_add_u32 s{S_T0+2}, s{S_T0}, {start}-{ref}+{k*8192}\ns_addc_u32 s{S_T0+3}, s{S_T0+1}, {'-1' if start == 'L_A_tail' else '0'}")
            a(f"v_min_u32 v25, L_exit-{start}-{k*8192}, v24\nglobal_load_dword v253, v25, s[{S_T0+2}:{S_T0+3}]")
        a(f"{lab}:")
        return len(ranges)

    def kvt_zero(self):
        a = self.a
        a(f"v_lshlrev_b32 v16, 4, v1\ns_lshl_b32 s{S_T0}, s{S_D}, 12\ns_add_u32 s{S_T0}, s{S_T0}, {KVT}\nv_add_u32 v16, s{S_T0}, v16")
        a("v_mov_b32 v20, 0\nv_mov_b32 v21, 0\nv_mov_b32 v22, 0\nv_mov_b32 v23, 0")
        for i in range(4):
            a(f"ds_write_b128 v16, v[20:23] offset:{i*1024}")
        a("s_waitcnt lgkmcnt(0)")

    def start_prefetch(self):
        a = self.a
        self.srd(R_W, P_WQKV, 640 * 3840)
        a(f"""
        s_lshl_b32 s{S_T0}, s{S_J}, 2
        s_add_u32 s{S_T0}, s{S_T0}, s{S_WAVE}
        v_lshrrev_b32 v16, 2, v1
        v_and_b32 v17, 3, v1
        v_mul_u32_u24 v16, 1280, v16
        v_lshl_add_u32 v16, v17, 7, v16
        s_lshr_b32 s{S_T0+2}, s{S_MT}, 3
        s_lshl_b32 s{S_T0+2}, s{S_T0+2}, 7
        s_add_u32 s{S_T0+2}, s{S_T0+2}, s{S_T0}
        s_mul_i32 s{S_DT}, s{S_T0+2}, {8*1280}
        v_lshrrev_b32 v19, 4, v1
        v_and_b32 v17, 15, v1
        v_min_u32 v17, 14, v17
        v_mul_u32_u24 v18, 13, v17
        v_lshrrev_b32 v18, 6, v18
        v_mul_u32_u24 v18, 640, v18
        v_lshl_add_u32 v18, v17, 7, v18
        v_mul_u32_u24 v19, 3840, v19
        v_add_u32 v112, v18, v19
        s_lshr_b32 s{S_T0+2}, s{S_HG}, 2
        s_mul_i32 s{S_T0+2}, s{S_T0+2}, 640
        s_mul_i32 s{S_FT}, s{S_T0}, {2*3840}
        s_add_u32 s{S_FT}, s{S_FT}, s{S_T0+2}
        """)
        if self.o.get("ta1"):
            a(f"""
            s_mov_b32 exec_hi, 0
            buffer_load_dword v253, v112, s[{R_W}:{R_W+3}], s{S_FT} offen {self.nt('nta')}
            buffer_load_dword v253, v16, s[{R_X}:{R_X+3}], s{S_DT} offen {self.nt('ntax')}
            s_mov_b32 exec_hi, -1
            """)
        a(f"""
        s_mul_i32 s{S_FT}, s{S_T0}, {3*3840}
        s_add_u32 s{S_FT}, s{S_FT}, s{S_T0+2}
        s_add_u32 s{S_FT}, s{S_FT}, {256*3840}
        v_lshrrev_b32 v16, 3, v1
        v_and_b32 v17, 7, v1
        v_min_u32 v17, 5, v17
        v_mul_u32_u24 v16, 1280, v16
        v_lshl_add_u32 v113, v17, 7, v16
        s_add_u32 s{S_DT}, s{S_DT}, 512
        """)

    def pf_rest_plain(self):
        return f"""s_waitcnt vmcnt(0)
        s_mov_b32 exec_hi, 0xffff
        buffer_load_dword v253, v112, s[{R_W}:{R_W+3}], s{S_FT} offen
        s_mov_b32 exec_hi, -1
        buffer_load_dword v253, v113, s[{R_X}:{R_X+3}], s{S_DT} offen
        """

    def pf_rest(self):
        return f"""s_mov_b32 exec_hi, 0xffff
        buffer_load_dword v253, v112, s[{R_W}:{R_W+3}], s{S_FT} offen {self.nt('nta')}
        s_mov_b32 exec_hi, -1
        buffer_load_dword v253, v113, s[{R_X}:{R_X+3}], s{S_DT} offen {self.nt('ntax')}
        """

    def w2_touch(self):
        a = self.a
        assert self.o.get("hW2") and self.o.get("woLN")
        a(f"""
        v_lshlrev_b32 v48, 7, v1
        s_lshl_b32 s{S_T0}, s{S_MT}, 3
        s_add_u32 s{S_T0}, s{S_T0}, s{S_HG}
        s_lshl_b32 s{S_T0}, s{S_T0}, 2
        s_add_u32 s{S_T0}, s{S_T0}, s{S_D}
        s_lshl_b32 s{S_T0}, s{S_T0}, 13
        buffer_load_dword v253, v48, s[{R_W2}:{R_W2+3}], s{S_T0} offen
        """)

    def tlb_warm(self):
        a = self.a
        mode = self.o["tlb"]
        wv = self.o.get("tlbw", 3)
        a(f"s_cmp_lg_u32 s{S_WAVE}, {wv}\ns_cbranch_scc1 L_notlb")
        self.srd(R_OUT, P_OUT, 2048 * 1280)
        self.srd(R_M, P_B2, 4096)
        self.srd(R_P, P_WO, 640 * 1280)
        self.srd(R_W, P_W1, 2048 * 3072)
        if mode == 1:
            a("v_lshlrev_b32 v4, 20, v1\nv_min_u32 v4, 0xf00000, v4\ns_mov_b64 exec, 0xffff")
            so = "0"
        else:
            a(f"v_lshlrev_b32 v4, 21, v1\ns_lshl_b32 s{S_T0}, s{S_J}, 16\ns_mov_b64 exec, 0x1f")
            so = f"s{S_T0}"
        for r in (R_WS, R_W2, R_OUT, R_W, R_P, R_M):
            a(f"buffer_load_dword v253, v4, s[{r}:{r+3}], {so} offen sc1")
        a("s_mov_b64 exec, -1\nL_notlb:")

    def code_prefetch(self):
        a = self.a
        a(f"""
        s_cmp_lg_u32 s{S_WAVE}, 3
        s_cbranch_scc1 L_nocpf
        s_cmp_ge_u32 s{S_J}, 5
        s_cbranch_scc1 L_nocpf
        s_getpc_b64 s[{S_T0}:{S_T0+1}]
        L_pcref:
        s_lshl_b32 s{S_T0+2}, s{S_J}, 13
        v_lshlrev_b32 v4, 7, v1
        v_add_u32 v4, s{S_T0+2}, v4
        v_min_u32 v4, L_end-L_pcref, v4
        global_load_dword v253, v4, s[{S_T0}:{S_T0+1}]
        L_nocpf:
        """)

    def a_thread_map(self):
        a = self.a
        a(f"""
        v_mul_u32_u24 v16, 625, v0
        v_lshrrev_b32 v16, 16, v16
        v_mul_u32_u24 v17, 105, v16
        v_sub_u32 v17, v0, v17
        v_mul_u32_u24 v19, 205, v17
        v_lshrrev_b32 v19, 12, v19
        v_mul_u32_u24 v18, 20, v19
        v_cmp_lt_u32 vcc, 99, v17
        v_sub_u32 v18, v17, v18
        s_nop 0
        v_cndmask_b32 v19, v19, v18, vcc
        v_mad_u32_u24 v19, v16, 5, v19
        v_mad_u32_u24 v20, v16, 20, v18
        v_lshrrev_b32 v21, 2, v19
        v_and_b32 v22, 3, v19
        v_lshrrev_b32 v23, 4, v20
        v_and_b32 v20, 15, v20
        v_lshl_add_u32 v20, v22, 4, v20
        v_lshl_add_u32 v2, v21, 1, v23
        v_lshlrev_b32 v2, 6, v2
        v_add_u32 v2, v2, v20
        v_lshlrev_b32 v2, 4, v2
        v_lshlrev_b32 v3, 4, v19
        v_add_u32 v3, 13312, v3
        v_cmp_lt_u32 vcc, 99, v17
        v_lshrrev_b32 v24, 1, v21
        v_and_b32 v21, 1, v21
        v_cndmask_b32 v2, v2, v3, vcc
        v_lshl_add_u32 v3, v23, 1, v24
        v_add_u32 v24, 11, v24
        v_lshl_add_u32 v22, v22, 4, v16
        v_cndmask_b32 v3, v3, v24, vcc
        v_cndmask_b32 v20, v20, v22, vcc
        v_lshl_add_u32 v3, v3, 6, v20
        v_lshlrev_b32 v3, 4, v3
        v_lshl_add_u32 v3, v21, 3, v3
        v_add_u32 v3, {KVT}, v3
        v_mov_b32 v25, 2
        v_cndmask_b32 v25, 1, v25, vcc
        v_mov_b32 v16, 420
        v_cmp_gt_u32 vcc, v16, v0
        v_lshlrev_b32 v14, 4, v0
        s_nop 0
        v_cndmask_b32 v15, 0, v25, vcc
        v_cndmask_b32 v2, 0, v2, vcc
        v_add_u32 v2, {EXCH}, v2
        """)

    def a_reduce_publish(self, T):
        a = self.a
        for w in range(4):
            a(f"ds_read_b128 {vr(T+4*w,4)}, v2 offset:{w*EXCH_ST}")
        a(f"""
        s_lshl_b32 s{S_T0}, s{S_HG}, 4
        s_add_u32 s{S_T0}, s{S_T0}, s{S_MT}
        s_mul_i32 s{S_T0}, s{S_T0}, {KVP_ST}
        s_add_u32 s{S_T0}, s{S_T0}, {KVP}
        v_cmp_ne_u32 vcc, 0, v15
        s_waitcnt lgkmcnt(0)
        v_pk_add_f32 {vr(T,2)}, {vr(T,2)}, {vr(T+4,2)}
        v_pk_add_f32 {vr(T+2,2)}, {vr(T+2,2)}, {vr(T+6,2)}
        v_pk_add_f32 {vr(T+8,2)}, {vr(T+8,2)}, {vr(T+12,2)}
        v_pk_add_f32 {vr(T+10,2)}, {vr(T+10,2)}, {vr(T+14,2)}
        v_pk_add_f32 {vr(T,2)}, {vr(T,2)}, {vr(T+8,2)}
        v_pk_add_f32 {vr(T+2,2)}, {vr(T+2,2)}, {vr(T+10,2)}
        v_mov_b32_sdwa v{T}, s{S_TAG} dst_sel:BYTE_0 dst_unused:UNUSED_PRESERVE src0_sel:BYTE_0
        v_mov_b32_sdwa v{T+1}, s{S_TAG} dst_sel:BYTE_0 dst_unused:UNUSED_PRESERVE src0_sel:BYTE_1
        v_mov_b32_sdwa v{T+2}, s{S_TAG} dst_sel:BYTE_0 dst_unused:UNUSED_PRESERVE src0_sel:BYTE_2
        v_mov_b32_sdwa v{T+3}, s{S_TAG} dst_sel:BYTE_0 dst_unused:UNUSED_PRESERVE src0_sel:BYTE_3
        s_mov_b64 exec, vcc
        buffer_store_dwordx4 {vr(T,4)}, v14, s[{R_WS}:{R_WS+3}], s{S_T0} offen sc1
        s_mov_b64 exec, -1
        """)

    S_RET = 88

    def a_gather(self, T):
        self.a(f"s_call_b64 s[{self.S_RET}:{self.S_RET+1}], L_gather")

    def a_gather_body(self, T):
        a = self.a
        MK = S_T0 + 4
        a("L_gather:")
        a(f"s_mul_i32 s{S_T0+1}, s{S_HG}, {16*KVP_ST}\ns_add_u32 s{S_T0+1}, s{S_T0+1}, {KVP}")
        a(f"v_cmp_ne_u32 s[{MK}:{MK+1}], 0, v15\ns_mov_b32 s{S_CNT}, 0\ns_lshl_b32 s{S_T0+2}, s{S_MT}, 1\ns_mov_b64 exec, s[{MK}:{MK+1}]")

        def pair(m):
            a(f"s_add_u32 s{S_T0}, s{S_T0+2}, {m}\ns_and_b32 s{S_T0}, s{S_T0}, 15\ns_mul_i32 s{S_T0}, s{S_T0}, {KVP_ST}\ns_add_u32 s{S_T0}, s{S_T0}, s{S_T0+1}")
            a(f"buffer_load_dwordx4 {vr(T+4*m,4)}, v14, s[{R_WS}:{R_WS+3}], s{S_T0} offen sc1\ns_add_u32 s{S_T0}, s{S_T0}, {KVP_ST}")
            a(f"buffer_load_dwordx4 {vr(T+4*m+4,4)}, v14, s[{R_WS}:{R_WS+3}], s{S_T0} offen sc1")
        for m in range(0, 16, 2):
            pair(m)
        for m in range(0, 16, 2):
            a(f"s_waitcnt vmcnt({14-m})\nL_gchk{m}:")
            for q in range(8):
                a(f"v_cmpx_eq_u32_sdwa vcc, v{T+4*m+q}, s{S_TAG} src0_sel:BYTE_0 src1_sel:BYTE_{q & 3}")
            a(f"""
            s_add_u32 s{S_CNT}, s{S_CNT}, 1
            s_cmp_eq_u64 exec, s[{MK}:{MK+1}]
            s_mov_b64 exec, s[{MK}:{MK+1}]
            s_cbranch_scc1 L_gok{m}
            s_cmp_ge_u32 s{S_CNT}, {SPIN_LIMIT}
            s_cbranch_scc1 L_gok{m}
            """)
            pair(m)
            a(f"s_waitcnt vmcnt(0)\ns_branch L_gchk{m}\nL_gok{m}:")
            for q in range(8):
                a(f"v_and_b32 v{T+4*m+q}, 0xffffff00, v{T+4*m+q}")
            for h in (0, 2):
                a(f"v_pk_add_f32 {vr(T+4*m+h,2)}, {vr(T+4*m+h,2)}, {vr(T+4*(m+1)+h,2)}")
            if m >= 2:
                for h in (0, 2):
                    a(f"v_pk_add_f32 {vr(T+h,2)}, {vr(T+h,2)}, {vr(T+4*m+h,2)}")
        a("s_mov_b64 exec, -1")
        a(f"""
        v_cvt_pk_bf16_f32 v{T}, v{T}, v{T+1}
        v_cvt_pk_bf16_f32 v{T+1}, v{T+2}, v{T+3}
        v_cmp_ne_u32 vcc, 0, v15
        v_cmp_eq_u32 s[{S_T0}:{S_T0+1}], 2, v15
        s_nop 1
        s_mov_b64 exec, vcc
        ds_write_b64 v3, {vr(T,2)}
        s_mov_b64 exec, s[{S_T0}:{S_T0+1}]
        ds_write_b64 v3, {vr(T,2)} offset:64
        ds_write_b64 v3, {vr(T,2)} offset:128
        ds_write_b64 v3, {vr(T,2)} offset:192
        s_mov_b64 exec, -1
        s_setpc_b64 s[{self.S_RET}:{self.S_RET+1}]
        """)

    def role_b(self):
        a = self.a
        a(f"L_roleB:\ns_mov_b32 s{S_FROMA}, 0")
        XR, B1R, GR, XS = 16, 36, 64, 84
        VPF = 8
        a(f"s_cmp_ge_u32 s{S_J}, 16\ns_cbranch_scc1 L_B_pfrole")
        a(f"""
        s_lshl_b32 s{S_KST}, s{S_XCD}, 4
        s_add_u32 s{S_KST}, s{S_KST}, s{S_J}
        s_lshl_b32 s{S_T0}, s{S_KST}, 3
        s_add_u32 s{S_T0}, s{S_T0}, s{S_WAVE}
        s_mul_i32 s{S_T0}, s{S_T0}, {4*1280}
        v_lshrrev_b32 v2, 4, v1
        v_and_b32 v3, 15, v1
        v_lshlrev_b32 v3, 4, v3
        v_mul_u32_u24 v4, 1280, v2
        v_add_u32 v4, v4, v3
        """)
        for c in ((2, 3, 4, 0, 1) if self.o.get("xord") else range(5)):
            a(f"buffer_load_dwordx4 {vr(XR+4*c,4)}, v4, s[{R_X}:{R_X+3}], s{S_T0} offen offset:{c*256} {self.nt('ntx')}")
        self.srd(R_M, P_GATE, 1280)
        for c in range(5):
            a(f"buffer_load_dwordx4 {vr(GR+4*c,4)}, v3, s[{R_M}:{R_M+3}], 0 offen offset:{c*256}")

        def common_setup():
            a(f"""
            s_mul_i32 s{S_M}, s{S_J}, 205
            s_lshr_b32 s{S_M}, s{S_M}, 10
            s_mul_i32 s{S_DT}, s{S_M}, 5
            s_sub_u32 s{S_DT}, s{S_J}, s{S_DT}
            s_mul_i32 s{S_FT}, s{S_XCD}, 6
            s_add_u32 s{S_FT}, s{S_FT}, s{S_M}
            """)
            self.srd(R_OUT, P_B1, 3072)
            a(f"v_lshrrev_b32 v5, 4, v1\nv_lshlrev_b32 v5, 3, v5\ns_lshl_b32 s{S_T0}, s{S_FT}, 7")
            for b in range(4):
                a(f"buffer_load_dwordx2 {vr(B1R+2*b,2)}, v5, s[{R_OUT}:{R_OUT+3}], s{S_T0} offen offset:{b*32}")
            a(f"""
            v_lshrrev_b32 v12, 3, v1
            v_lshrrev_b32 v13, 4, v1
            v_lshlrev_b32 v13, 1, v13
            v_and_b32 v14, 7, v1
            v_xor_b32 v13, v13, v14
            v_lshlrev_b32 v13, 4, v13
            v_mul_u32_u24 v12, 3072, v12
            v_add_u32 v{VPF}, v12, v13
            v_add_u32 v{VPF+1}, {8*3072-1024}, v{VPF}
            v_add_u32 v{VPF+2}, {2*(8*3072-1024)}, v{VPF}
            v_add_u32 v{VPF+3}, {3*(8*3072-1024)}, v{VPF}
            """)
            self.perm_setup(S_M, 16, 6, S_PERM, self.o.get("rotB"))
            a(f"""
            s_and_b32 s{S_T0}, s{S_WAVE}, 3
            s_lshl_b32 s{S_B}, s{S_T0}, 12
            s_mul_i32 s{S_A}, s{S_T0}, {32*3072}
            s_lshl_b32 s{S_T0}, s{S_FT}, 7
            s_add_u32 s{S_A}, s{S_A}, s{S_T0}
            """)

        def w1_at(p):
            a(f"s_bfe_u32 s{S_T0}, s{S_PERM}, {(4 << 16) | (4 * p):#x}\ns_mul_i32 s{S_T0}, s{S_T0}, {128*3072}")
            a(f"s_add_u32 m0, s{S_B}, {p*16384}\ns_add_u32 s{S_T0}, s{S_T0}, s{S_A}")
            for i in range(4):
                a(f"buffer_load_dwordx4 v{VPF+i}, s[{R_W}:{R_W+3}], s{S_T0} offen offset:{i*1024} lds")
        early = [3, 4, 5, 6, 7][:self.o.get("early", 0)]

        def wq_touch():
            self.srd(R_M, P_WQKV, 640 * 3840)
            a(f"""
            v_lshlrev_b32 v6, 7, v1
            s_mul_i32 s{S_T0+1}, s{S_T0+1}, 2880
            s_add_u32 s{S_T0+1}, s{S_T0+1}, {256*3840}
            s_mov_b64 exec, 0xffffff
            buffer_load_dword v253, v6, s[{R_M}:{R_M+3}], s{S_T0+1} offen
            s_mov_b64 exec, -1
            """)

        self.srd(R_W, P_W1, 2048 * 3072)
        common_setup()
        a("v_mov_b32 v124, 0\nv_mov_b32 v125, 0\nv_mov_b32 v126, 0x3f803f80\ns_waitcnt vmcnt(4)")
        self.stamp(11, 44)
        if early:
            a(f"s_cmp_lt_u32 s{S_WAVE}, 4\ns_cbranch_scc1 L_B_noearly")
            for p in early:
                w1_at(p)
            a("L_B_noearly:")
        for c in range(20):
            a(f"v_dot2c_f32_bf16 v124, v{XR+c}, v126\nv_lshlrev_b32 v{XS+2*c}, 16, v{XR+c}")
            a(f"v_dot2c_f32_bf16 v125, v{XR+c}, v{GR+c}\nv_and_b32 v{XS+2*c+1}, 0xffff0000, v{XR+c}")
        a("s_nop 1")

        def reduce16(regs):
            for mode in ("quad_perm:[1,0,3,2]", "quad_perm:[2,3,0,1]", "row_half_mirror", "row_mirror"):
                for r in regs:
                    a(f"v_add_f32_dpp v{r}, v{r}, v{r} {mode} row_mask:0xf bank_mask:0xf")
                a("s_nop 1" if len(regs) == 1 else "s_nop 0")

        reduce16([124, 125])
        a(f"""
        v_mul_f32 v126, {f2u(-1.0/640):#x}, v124
        v_mul_f32 v127, {f2u(-1.0/640):#x}, v124
        v_mul_f32 v125, {f2u(-1.4426950408889634):#x}, v125
        v_mov_b32 v128, 0
        v_mov_b32 v129, 0
        v_mov_b32 v130, 0
        v_mov_b32 v131, 0
        v_mov_b32 v132, 0
        v_mov_b32 v133, 0
        v_mov_b32 v134, 0
        v_mov_b32 v135, 0
        v_exp_f32 v125, v125
        """)
        for c in range(20):
            a(f"v_pk_add_f32 {vr(XS+2*c,2)}, {vr(XS+2*c,2)}, v[126:127]")
        a("v_add_f32 v125, 1.0, v125\nv_rcp_f32 v125, v125")
        for c in range(20):
            t = 128 + 2 * (c & 3)
            a(f"v_pk_fma_f32 {vr(t,2)}, {vr(XS+2*c,2)}, {vr(XS+2*c,2)}, {vr(t,2)}")
        a("v_pk_add_f32 v[128:129], v[128:129], v[130:131]\nv_pk_add_f32 v[132:133], v[132:133], v[134:135]\nv_pk_add_f32 v[128:129], v[128:129], v[132:133]\nv_add_f32 v128, v128, v129\ns_nop 1")
        reduce16([128])
        a(f"v_mov_b32 v126, {f2u(1e-5):#x}\nv_fmac_f32 v126, {f2u(1.0/640):#x}, v128\nv_rsq_f32 v126, v126")
        a(f"""
        s_lshl_b32 s{S_T0}, s{S_WAVE}, 2
        v_add_u32 v2, s{S_T0}, v2
        v_mov_b32 v127, v126
        v_mul_u32_u24 v4, {LN_ST}, v2
        v_add_u32 v4, v4, v3
        v_lshlrev_b32 v2, 2, v2
        """)
        for c4 in range(5):
            for c in range(4 * c4, 4 * c4 + 4):
                a(f"v_pk_mul_f32 {vr(XS+2*c,2)}, {vr(XS+2*c,2)}, v[126:127]")
            for c in range(4 * c4, 4 * c4 + 4):
                a(f"v_cvt_pk_bf16_f32 v{XR+c}, v{XS+2*c}, v{XS+2*c+1}")
            a(f"ds_write_b128 v4, {vr(XR+4*c4,4)} offset:{LNBUF + c4*256}")
        a(f"ds_write_b32 v2, v125 offset:{LNG}")
        a(f"""
        v_and_b32 v12, 15, v1
        v_lshrrev_b32 v13, 4, v1
        v_lshrrev_b32 v15, 2, v12
        v_lshl_add_u32 v15, v13, 2, v15
        v_mul_u32_u24 v15, {LN_ST}, v15
        v_and_b32 v2, 3, v12
        v_lshl_add_u32 v15, v2, 3, v15
        s_mul_i32 s{S_T0}, s{S_WAVE}, 160
        v_add_u32 v15, s{S_T0}, v15
        v_lshlrev_b32 v14, 4, v1
        v_lshlrev_b32 v2, 2, v1
        s_mul_i32 s{S_T0}, s{S_WAVE}, {5*65536}
        s_lshl_b32 s{S_T0+1}, s{S_KST}, 10
        s_add_u32 s{S_T0}, s{S_T0}, s{S_T0+1}
        s_add_u32 s{S_T0}, s{S_T0}, {HT}
        s_waitcnt lgkmcnt(0)
        s_add_u32 s{S_TAG}, s{S_TAG}, {TAG_INC:#x}
        s_barrier
        """)
        self.stamp(12, 44)
        for i in range(5):
            a(f"ds_read_b64_tr_b16 {vr(44+4*i,2)}, v15 offset:{LNBUF + i*32}")
            a(f"ds_read_b64_tr_b16 {vr(46+4*i,2)}, v15 offset:{LNBUF + i*32+16*LN_ST}")
        a(f"ds_read_b32 v125, v2 offset:{LNG}")
        for i in range(5):
            a(f"s_waitcnt lgkmcnt({9-2*i})")
            a(f"buffer_store_dwordx4 {vr(44+4*i,4)}, v14, s[{R_WS}:{R_WS+3}], s{S_T0} offen sc1")
            if i < 4:
                a(f"s_add_u32 s{S_T0}, s{S_T0}, 65536")
        a(f"""
        s_cmp_lg_u32 s{S_WAVE}, 0
        s_cbranch_scc1 L_B_nog
        s_lshl_b32 s{S_T0}, s{S_KST}, 7
        s_add_u32 s{S_T0}, s{S_T0}, {G_OFF}
        s_waitcnt lgkmcnt(0)
        s_mov_b32 exec_hi, 0
        buffer_store_dword v125, v2, s[{R_WS}:{R_WS+3}], s{S_T0} offen sc1
        s_mov_b32 exec_hi, -1
        L_B_nog:
        s_waitcnt vmcnt(0) lgkmcnt(0)
        s_barrier
        s_cmp_lg_u32 s{S_WAVE}, 0
        s_cbranch_scc1 L_B_nofl
        s_mul_i32 s{S_T0}, s{S_KST}, {FS}
        s_add_u32 s{S_T0}, s{S_T0}, {F_LN}
        """)
        self.flag_store(S_T0, 12)
        self.stamp(1, 12)
        a("L_B_nofl:")
        if self.o.get("woLN"):
            self.srd(R_M, P_WO, 640 * 1280)
            a(f"""
            s_lshl_b32 s{S_T0+1}, s{S_KST}, 3
            s_add_u32 s{S_T0+1}, s{S_T0+1}, s{S_WAVE}
            s_mul_i32 s{S_T0+1}, s{S_T0+1}, 1664
            v_lshlrev_b32 v6, 7, v1
            s_mov_b64 exec, 0x1fff
            buffer_load_dword v253, v6, s[{R_M}:{R_M+3}], s{S_T0+1} offen
            s_mov_b64 exec, -1
            """)
            nl = self.o.get("w2LN", 0)
            if nl:
                a(f"""
                s_lshl_b32 s{S_T0+1}, s{S_KST}, 3
                s_add_u32 s{S_T0+1}, s{S_T0+1}, s{S_WAVE}
                s_mul_i32 s{S_T0+1}, s{S_T0+1}, {1024*nl}
                s_add_u32 s{S_T0+1}, s{S_T0+1}, {1024*4096}
                s_mov_b64 exec, {(1 << (8*nl)) - 1:#x}
                buffer_load_dword v253, v6, s[{R_W2}:{R_W2+3}], s{S_T0+1} offen
                s_mov_b64 exec, -1
                """)
        if self.o.get("wq") == 1:
            a(f"s_lshl_b32 s{S_T0+1}, s{S_KST}, 3\ns_add_u32 s{S_T0+1}, s{S_T0+1}, s{S_WAVE}")
            wq_touch()
        if self.o.get("wq") == 3:
            a(f"""
            s_lshl_b32 s{S_T0}, s{S_J}, 3
            s_add_u32 s{S_T0}, s{S_T0}, s{S_WAVE}
            s_add_u32 s{S_T0}, s{S_T0}, 128
            v_lshrrev_b32 v6, 3, v1
            v_and_b32 v7, 7, v1
            v_min_u32 v7, 5, v7
            v_mul_u32_u24 v6, 3072, v6
            v_lshl_add_u32 v7, v7, 7, v6
            s_mul_i32 s{S_T0}, s{S_T0}, {8*3072}
            s_mul_i32 s{S_T0+2}, s{S_XCD}, 768
            s_add_u32 s{S_T0}, s{S_T0}, s{S_T0+2}
            buffer_load_dword v253, v7, s[{R_W}:{R_W+3}], s{S_T0} offen {self.nt('ntw1')}
            """)
        a("s_branch L_B_join")
        a("L_B_pfrole:")
        self.srd(R_W, P_W1, 2048 * 3072)
        if self.o.get("pfdelay"):
            common_setup()
            a("s_waitcnt vmcnt(0)")
        wq = self.o.get("wq", 0)
        xh = self.o.get("xhelp", 0)
        if xh:
            self.srd(R_M, P_GATE, 1280)
            a(f"""
            s_cmp_ge_u32 s{S_WAVE}, {xh}
            s_cbranch_scc1 L_B_noxh
            s_lshl_b32 s{S_T0}, s{S_XCD}, 4
            s_add_u32 s{S_T0}, s{S_T0}, s{S_J}
            s_sub_u32 s{S_T0}, s{S_T0}, 16
            s_mul_i32 s{S_T0}, s{S_T0}, {32*1280}
            s_lshl_b32 s{S_T0+1}, s{S_WAVE}, 8
            s_sub_u32 s{S_T0}, s{S_T0}, s{S_T0+1}
            s_add_u32 s{S_T0}, s{S_T0}, 1024
            v_lshrrev_b32 v6, 1, v1
            v_and_b32 v7, 1, v1
            v_mul_u32_u24 v6, 1280, v6
            v_lshl_add_u32 v6, v7, 7, v6
            buffer_load_dword v253, v6, s[{R_X}:{R_X+3}], s{S_T0} offen
            v_lshlrev_b32 v6, 7, v1
            L_B_noxh:
            s_cmp_lg_u32 s{S_WAVE}, 7
            s_cbranch_scc1 L_B_noxg
            v_lshlrev_b32 v6, 7, v1
            buffer_load_dword v253, v6, s[{R_M}:{R_M+3}], 0 offen
            L_B_noxg:
            """)
        a(f"""
        s_sub_u32 s{S_T0}, s{S_J}, 16
        s_lshl_b32 s{S_T0}, s{S_T0}, 3
        s_add_u32 s{S_T0}, s{S_T0}, s{S_WAVE}
        s_lshl_b32 s{S_T0+1}, s{S_XCD}, 7
        s_add_u32 s{S_T0+1}, s{S_T0+1}, s{S_T0}
        v_lshrrev_b32 v6, 3, v1
        v_and_b32 v7, 7, v1
        v_min_u32 v7, 5, v7
        v_mul_u32_u24 v6, 3072, v6
        v_lshl_add_u32 v7, v7, 7, v6
        s_mul_i32 s{S_T0}, s{S_T0}, {8*3072}
        s_mul_i32 s{S_T0+2}, s{S_XCD}, 768
        s_add_u32 s{S_T0}, s{S_T0}, s{S_T0+2}
        buffer_load_dword v253, v7, s[{R_W}:{R_W+3}], s{S_T0} offen {self.nt('ntw1')}
        """)
        if wq in (0, 3):
            wq_touch()
        def stag_touch():
            a(f"""
            s_lshl_b32 s{S_T0}, s{S_J}, 2
            s_and_b32 s{S_T0+1}, s{S_WAVE}, 3
            s_add_u32 s{S_T0}, s{S_T0}, s{S_T0+1}
            s_add_u32 s{S_T0}, s{S_T0}, 128
            s_mul_i32 s{S_T0}, s{S_T0}, {8*3072}
            s_mul_i32 s{S_T0+1}, s{S_XCD}, 768
            s_add_u32 s{S_T0}, s{S_T0}, s{S_T0+1}
            v_lshrrev_b32 v6, 3, v1
            v_and_b32 v7, 7, v1
            v_min_u32 v7, 5, v7
            v_mul_u32_u24 v6, 3072, v6
            v_lshl_add_u32 v7, v7, 7, v6
            buffer_load_dword v253, v7, s[{R_W}:{R_W+3}], s{S_T0} offen
            """)
        if self.o.get("stag"):
            a(f"s_cmp_lt_u32 s{S_J}, 30\ns_cbranch_scc1 L_B_nost\ns_cmp_lt_u32 s{S_WAVE}, 4\ns_cbranch_scc1 L_B_nost")
            stag_touch()
            a("L_B_nost:")
        elif wq != 3:
            a(f"""
            s_add_u32 s{S_T0}, s{S_T0}, {1024*3072}
            buffer_load_dword v253, v7, s[{R_W}:{R_W+3}], s{S_T0} offen {self.nt('ntw1b')}
            """)
        if self.o.get("promote"):
            k_ = 1 if wq != 3 else 0
            a(f"""
            s_sub_u32 s{S_T0+1}, s{S_T0}, {1024*3072*k_}
            s_waitcnt vmcnt({k_ + (1 if wq in (0, 3) else 0)})
            buffer_load_dword v253, v7, s[{R_W}:{R_W+3}], s{S_T0+1} offen
            """)
            if self.o.get("ntw1b"):
                a(f"s_waitcnt vmcnt(1)\nbuffer_load_dword v253, v7, s[{R_W}:{R_W+3}], s{S_T0} offen")
        if not self.o.get("pfdelay"):
            common_setup()
        self.stamp(15, 12)
        a(f"s_waitcnt lgkmcnt(0)\ns_add_u32 s{S_TAG}, s{S_TAG}, {TAG_INC:#x}")
        a(f"s_cmp_ge_u32 s{S_J}, 30\ns_cbranch_scc1 L_helper")
        N1 = self.o.get("n1", 8)
        NREG = self.o.get("nreg", 0)
        assert NREG == 0 or N1 == 8

        def w1_issue():
            t = self.perm_next(S_T0, S_PERM, 128 * 3072)
            t += f"s_mov_b32 m0, s{S_B}\ns_add_u32 s{S_T0}, s{S_T0}, s{S_A}\n"
            for i in range(4):
                t += f"buffer_load_dwordx4 v{VPF+i}, s[{R_W}:{R_W+3}], s{S_T0} offen offset:{i*1024} lds\n"
            t += f"s_add_u32 s{S_B}, s{S_B}, 16384\n"
            return t
        assert N1 == 8 and NREG == 0
        a(f"L_B_join:\ns_cmp_lt_u32 s{S_WAVE}, 4\ns_cbranch_scc1 L_B_comp0")
        for p in range(8):
            if early and p == early[0]:
                a(f"s_cmp_lt_u32 s{S_J}, 16\ns_cbranch_scc1 L_B_skipearly")
            w1_at(p)
            if early and p == early[-1]:
                a("L_B_skipearly:")
        a(f"s_mov_b32 s{S_PERM}, s{S_PERM+1}")
        a("s_branch L_B_aux\nL_B_comp0:")
        BF = 16
        GX = 131072
        split = self.o.get("gsplit")

        def gelu_setup(dblk_off):
            c = 0.7978845608028654
            k0 = -2.0 * c * 1.4426950408889634
            k1 = k0 * 0.044715
            a(f"""
            s_mov_b32 s{S_K0}, {f2u(k1):#x}
            s_mov_b32 s{S_K0+1}, {f2u(k1):#x}
            v_mov_b32 v44, {f2u(k0):#x}
            v_mov_b32 v45, {f2u(k0):#x}
            v_mov_b32 v46, 1.0
            v_mov_b32 v47, 1.0
            s_lshl_b32 s{S_K0+2}, s{S_DT}, 3
            s_lshl_b32 s{S_T0+1}, s{S_WAVE}, 1
            s_add_u32 s{S_K0+2}, s{S_K0+2}, s{S_T0+1}
            s_add_u32 s{S_K0+2}, s{S_K0+2}, {dblk_off & 0xffffffff:#x}
            s_mul_i32 s{S_K0+2}, s{S_K0+2}, {UW_ST}
            s_lshl_b32 s{S_T0+1}, s{S_FT}, 11
            s_add_u32 s{S_K0+2}, s{S_K0+2}, s{S_T0+1}
            s_add_u32 s{S_K0+2}, s{S_K0+2}, {UW}
            """)
            for b in range(4):
                a(f"v_lshlrev_b32 v{BF+4*b}, 16, v{B1R+2*b}\nv_and_b32 v{BF+4*b+1}, 0xffff0000, v{B1R+2*b}")
                a(f"v_lshlrev_b32 v{BF+4*b+2}, 16, v{B1R+2*b+1}\nv_and_b32 v{BF+4*b+3}, 0xffff0000, v{B1R+2*b+1}")

        def gelu_block(base, vl):
            for p in range(2):
                r = base + 8 * p
                T = 48
                for q in range(4):
                    a(f"v_pk_mul_f32 {vr(T+2*q,2)}, {vr(r+2*q,2)}, {vr(r+2*q,2)}")
                for q in range(4):
                    a(f"v_pk_fma_f32 {vr(T+2*q,2)}, {vr(T+2*q,2)}, s[{S_K0}:{S_K0+1}], v[44:45]")
                for q in range(4):
                    a(f"v_pk_mul_f32 {vr(T+2*q,2)}, {vr(T+2*q,2)}, {vr(r+2*q,2)}")
                for q in range(8):
                    a(f"v_exp_f32 v{T+q}, v{T+q}")
                for q in range(4):
                    a(f"v_pk_add_f32 {vr(T+2*q,2)}, {vr(T+2*q,2)}, v[46:47]")
                for q in range(8):
                    a(f"v_rcp_f32 v{T+q}, v{T+q}")
                for q in range(4):
                    a(f"v_pk_mul_f32 {vr(r+2*q,2)}, {vr(r+2*q,2)}, {vr(T+2*q,2)}")
                o = 56 + 4 * (p & 1)
                for q in range(4):
                    a(f"v_cvt_pk_bf16_f32 v{o+q}, v{r+2*q}, v{r+2*q+1}")
                a(f"buffer_store_dwordx4 {vr(o,4)}, v{vl}, s[{R_WS}:{R_WS+3}], s{S_K0+2} offen offset:{p*1024} sc1")

        PF, WF, ACC, VT, VL = 64, 128, 160, 8, 12
        a(f"""
        s_lshl_b32 s{S_T0}, s{S_DT}, 3
        s_lshl_b32 s{S_T0+1}, s{S_WAVE}, 1
        s_add_u32 s{S_D}, s{S_T0}, s{S_T0+1}
        s_lshl_b32 s{S_T0}, s{S_D}, 16
        s_add_u32 s{S_T0}, s{S_T0}, {HT}
        """)
        self.srd(R_P, P_WS, 65536, off_s=S_T0)
        a(f"s_add_u32 s{S_T0}, s{S_T0}, 65536")
        self.srd(R_M, P_WS, 65536, off_s=S_T0)
        a(f"v_lshlrev_b32 v{VL}, 4, v1\ns_mov_b32 s{S_B}, 0")
        a(self.perm_next(S_C, S_PERM, 4096))
        self.tr_addr(VT)
        a("s_waitcnt vmcnt(0)")
        gelu_setup(0)
        for r in range(32):
            a(f"v_mov_b32 v{ACC+r}, v{BF + (r & 15)}")
        a(f"s_lshl_b32 s{S_T0}, s{S_WAVE}, 12\ns_add_u32 s{S_T0}, s{S_T0}, {GX}\nv_add_u32 v13, s{S_T0}, v{VL}")
        a(f"s_cmp_lg_u32 s{S_WAVE}, 0\ns_cbranch_scc1 L_B_l3")
        prog = self.o.get("prog", 0)
        if prog:
            assert prog >= 4 * (4 + self.o.get("rotB", 0))
            a(f"v_min_u32 v2, {prog-1}, v1\nv_mul_u32_u24 v2, {FS}, v2\nv_add_u32 v2, {F_LN}, v2")
        else:
            a(f"v_mul_u32_u24 v2, {FS}, v1\nv_add_u32 v2, {F_LN}, v2")
        if not self.o.get("x_nopoll"):
            self.poll([2], 4)
        self.stamp(2, 4)
        a("L_B_l3:\ns_barrier")
        RP = (R_P, R_M)

        def pload(u, ks):
            if self.o.get("x_noload"):
                return "s_nop 0"
            sc = "" if self.o.get("x_nosc1") else "sc1"
            so = "0" if self.o.get("x_same") else f"s{S_C}"
            return "\n".join(f"buffer_load_dwordx4 {vr(PF+32*(u%2)+8*ks+4*d,4)}, v{VL}, s[{RP[d]}:{RP[d]+3}], {so} offen offset:{ks*1024} {sc}" for d in range(2))

        for t in range(2):
            for ks in range(4):
                a(pload(t, ks))
            a(self.perm_next(S_C, S_PERM, 4096))
            if t == 0:
                first_bar_here = len(a.L)

        def mk(u, bar, virtual=False, head=None, tail=None):
            uses = []
            for ks in range(4):
                for b in range(4):
                    g = ks * 4 + b
                    wb = WF + 4 * (g % 8)
                    off = u * 16384 + ks * 4096
                    reads = [(f"w{g}a", f"ds_read_b64_tr_b16 {vr(wb,2)}, v{VT+b} offset:{off}"),
                             (f"w{g}b", f"ds_read_b64_tr_b16 {vr(wb+2,2)}, v{VT+b} offset:{off+2048}")]
                    mf = []
                    for dd in range(2):
                        acc = vr(ACC + 16 * dd + 4 * b, 4)
                        mf.append(f"v_mfma_f32_16x16x32_bf16 {acc}, {vr(wb,4)}, {vr(PF+32*(u%2)+8*ks+4*dd,4)}, {acc}")
                    if self.o.get("x32"):
                        acc = vr(ACC + 16 * (b & 1), 16)
                        mf = [f"v_mfma_f32_32x32x16_bf16 {acc}, {vr(wb,4)}, {vr(PF+32*(u%2)+8*ks+4*(b>>1),4)}, {acc}"]
                    d = dict(reads=reads, need=[f"w{g}b"], mf=mf)
                    if b == 0:
                        d["vm"] = 14
                    if b == 3:
                        d["after"] = pload(u, ks)
                        if ks == 3:
                            d["after"] += "\n" + self.perm_next(S_C, S_PERM, 4096)
                            if u >= 1:
                                d["after"] += f"s_cmp_ge_u32 s{S_B}, 3\ns_cselect_b32 s{S_C}, 0x10000, s{S_C}"
                    uses.append(d)
            return dict(uses=uses, bar=bar, virtual=virtual, head=head, tail=tail)

        xo = "s_barrier\n" + "\n".join(f"v_xor_b32 v{VT+b}, 0x10000, v{VT+b}" for b in range(4))
        tail = f"s_add_u32 s{S_B}, s{S_B}, 1\ns_cmp_lt_u32 s{S_B}, 4\ns_cbranch_scc1 L_B_loop"
        st = [mk(0, "", head="L_B_loop:"), mk(1, "s_barrier"), mk(2, "s_barrier"), mk(3, "s_barrier", tail=tail), mk(0, xo, virtual=True)]
        a.L.insert(first_bar_here, "    s_barrier")
        nd = self.o.get("nodrain")
        LB = self.o.get("LB", 7)
        self.pipeline(st, LB, (16 - LB) if nd else 13, drain=not nd, wait_every=self.o.get('we', 2))
        if nd and not self.o.get("noEnd"):
            a("s_waitcnt lgkmcnt(0)\ns_barrier")
        self.stamp(3, 44)
        if split:
            a("s_nop 5")
            for i in range(4):
                a(f"ds_write_b128 v13, {vr(ACC+16+4*i,4)} offset:{i*1024}")
            a("s_waitcnt lgkmcnt(0)\ns_barrier")
            gelu_block(ACC, VL)
        else:
            a("s_waitcnt lgkmcnt(0)\ns_nop 4")
            gelu_block(ACC, VL)
            a(f"s_add_u32 s{S_K0+2}, s{S_K0+2}, {UW_ST}")
            gelu_block(ACC + 16, VL)
        self.stamp(10, 44)
        a("s_waitcnt vmcnt(0)\ns_barrier\ns_branch L_F_comp")

        a("L_B_aux:\ns_barrier")
        if split:
            assert NREG == 0
        assert NREG == 0
        ops = [(iv, 4) for iv in range(N1)]
        todo = [(iv, i) for iv in range(N1, 16) for i in range(4)]
        quota = self.o.get("quota", 12) / 3.0
        credit = 0.0
        eB = self.o.get("eB", 17)
        nB1 = self.o.get("nB1", 0)
        per = self.o.get("perB", 2)
        done_w2 = 0
        for tb in range(17):
            if tb < 16 and tb <= eB:
                assert all(iv != tb for iv, _ in todo), (tb, todo)
                last = max(i for i, (iv, _) in enumerate(ops) if iv == tb)
                n = sum(c for _, c in ops[last + 1:])
                if tb < 8:
                    n -= 4 * len(early)
                a(f"s_waitcnt vmcnt({max(0, min(n, 63)) if tb < eB else 0})")
            a("s_barrier")
            if tb < 16:
                self.stamp(16 + tb, 44)
            so_ = self.o.get("stagoff", 0)
            if self.o.get("stag") and so_ <= tb < 8 + so_:
                lab = a.label("nst")
                a(f"s_lshr_b32 s{S_T0}, s{S_J}, 2\ns_cmp_lg_u32 s{S_T0}, {tb - so_}\ns_cbranch_scc1 {lab}")
                stag_touch()
                a(f"{lab}:")
            if tb == 0 and self.o.get("prog"):
                a(f"s_cmp_lg_u32 s{S_WAVE}, 7\ns_cbranch_scc1 L_B_nop1\nv_mul_u32_u24 v2, {FS}, v1\nv_add_u32 v2, {F_LN}, v2")
                a(f"buffer_load_dword v3, v2, s[{R_WS}:{R_WS+3}], 0 offen sc1\nL_B_nop1:")
            if tb == 1 and self.o.get("prog"):
                a(f"s_cmp_lg_u32 s{S_WAVE}, 7\ns_cbranch_scc1 L_B_nop2")
                a(f"s_waitcnt vmcnt(0)\nv_cmp_ne_u32 vcc, s{S_TAG}, v3\ns_nop 1\ns_cmp_eq_u64 vcc, 0\ns_cbranch_scc1 L_B_nop2")
                self.poll([2], 4)
                a("L_B_nop2:")
            if tb == self.o.get("ctB", 10):
                self.code_touch([("L_F_comp", 0), ("L_F_comp", 1)])
            if tb == 11 and split:
                gelu_setup(-7)
                a(f"v_lshlrev_b32 v12, 4, v1\ns_lshl_b32 s{S_T0}, s{S_WAVE}, 12\ns_add_u32 s{S_T0}, s{S_T0}, {GX - 4*4096}\nv_add_u32 v13, s{S_T0}, v12")
            if tb == eB:
                assert not todo
                self.w2_setup()
            if tb >= eB and done_w2 < nB1:
                k2 = min(per if tb < 16 else 8, nB1 - done_w2, tb - 9 - done_w2)
                sk = self.if_wave56()
                self.w2_prefill(k2)
                a(f"{sk}:")
                done_w2 += k2
            if todo and (todo[0][0] < 8 or tb >= 2):
                credit += 8 if todo[0][0] < 8 else quota
            setm0 = False
            while todo and credit >= 0.999 and (todo[0][0] < 8 or todo[0][0] <= tb + 6):
                iv, i = todo.pop(0)
                if i == 0:
                    if iv == 8:
                        a(f"s_and_b32 s{S_B}, s{S_B}, 0x1ffff")
                    a(self.perm_next(S_C, S_PERM, 128 * 3072) + f"s_add_u32 s{S_C}, s{S_C}, s{S_A}")
                if i == 0 or not setm0:
                    a(f"s_mov_b32 m0, s{S_B}\ns_nop 0")
                    setm0 = True
                a(f"buffer_load_dwordx4 v{VPF+i}, s[{R_W}:{R_W+3}], s{S_C} offen offset:{i*1024} lds")
                if i == 3:
                    a(f"s_add_u32 s{S_B}, s{S_B}, 16384")
                ops.append((iv, 1))
                credit -= 1
            if todo and todo[0][0] >= 8:
                credit = min(credit, quota)
        nxt = 16
        assert nxt == 16
        if self.o.get("noEnd"):
            assert done_w2 == nB1
        elif self.o.get("nodrain"):
            a("s_barrier")
        if eB == 17:
            self.w2_setup()
        if split:
            a("s_barrier")
            for i in range(4):
                a(f"ds_read_b128 {vr(64+4*i,4)}, v13 offset:{i*1024}")
            a("s_waitcnt lgkmcnt(0)")
            gelu_block(64, 12)
            a("s_waitcnt vmcnt(0)")
        skip = self.if_wave56()
        self.w2_prefill(nB1 - done_w2)
        a("s_barrier\ns_nop 7\ns_nop 7")
        self.w2_prefill(8 - nB1)
        a("s_branch L_F_loader")
        a(f"{skip}:\ns_barrier")
        a(f"s_cmp_lg_u32 s{S_WAVE}, 7\ns_cbranch_scc1 L_F_u4")
        a(f"s_mul_i32 s{S_T0}, s{S_DT}, 24\ns_add_u32 s{S_T0}, s{S_T0}, s{S_FT}\ns_mul_i32 s{S_T0}, s{S_T0}, {FS}\ns_add_u32 s{S_T0}, s{S_T0}, {F_U}")
        self.flag_store(S_T0, 12)
        self.stamp(4, 12)
        a("s_branch L_F_poller")

    def w2_l2_prefetch(self, VT):
        a = self.a
        self.srd(R_W2, P_W2, 1536 * 4096)
        a(f"""
        v_lshrrev_b32 v{VT}, 3, v1
        v_and_b32 v{VT+1}, 7, v1
        v_lshlrev_b32 v{VT+1}, 7, v{VT+1}
        v_lshl_add_u32 v{VT}, v{VT}, 12, v{VT+1}
        s_mul_i32 s{S_T0}, s{S_J}, 48
        s_and_b32 s{S_T0+1}, s{S_WAVE}, 3
        s_mul_i32 s{S_T0+1}, s{S_T0+1}, 12
        s_add_u32 s{S_T0}, s{S_T0}, s{S_T0+1}
        s_lshl_b32 s{S_T0}, s{S_T0}, 12
        s_lshr_b32 s{S_T0+1}, s{S_XCD}, 1
        s_lshl_b32 s{S_T0+1}, s{S_T0+1}, 10
        s_add_u32 s{S_T0}, s{S_T0}, s{S_T0+1}
        buffer_load_dword v{VT+2}, v{VT}, s[{R_W2}:{R_W2+3}], s{S_T0} offen
        s_add_u32 s{S_T0}, s{S_T0}, {8*4096}
        s_mov_b32 exec_hi, 0
        buffer_load_dword v{VT+3}, v{VT}, s[{R_W2}:{R_W2+3}], s{S_T0} offen
        s_mov_b64 exec, -1
        """)

    def tr_addr(self, VT):
        a = self.a
        a(f"""
        v_and_b32 v{VT+1}, 15, v1
        v_lshrrev_b32 v{VT+2}, 4, v1
        v_lshrrev_b32 v{VT+3}, 2, v{VT+1}
        v_lshl_add_u32 v{VT+3}, v{VT+2}, 2, v{VT+3}
        v_bfe_u32 v{VT+2}, v{VT+3}, 1, 2
        v_lshlrev_b32 v{VT+3}, 7, v{VT+3}
        v_lshl_add_u32 v{VT+3}, v{VT+2}, 5, v{VT+3}
        v_and_b32 v{VT+1}, 3, v{VT+1}
        v_lshl_add_u32 v{VT}, v{VT+1}, 3, v{VT+3}
        v_xor_b32 v{VT+1}, 32, v{VT}
        v_xor_b32 v{VT+2}, 64, v{VT}
        v_xor_b32 v{VT+3}, 96, v{VT}
        """)

    def helper(self):
        a = self.a
        a("L_helper:")
        a(f"""
        s_lshl_b32 s{S_D}, s{S_XCD}, 1
        s_add_u32 s{S_D}, s{S_D}, s{S_J}
        s_sub_u32 s{S_D}, s{S_D}, 30
        """)
        self.srd(R_W, P_WO, 640 * 1280)
        for p in range(5):
            a(f"""
            v_add_u32 v12, {p*64}, v1
            v_mul_u32_u24 v13, 205, v12
            v_lshrrev_b32 v13, 11, v13
            v_mul_u32_u24 v14, 10, v13
            v_sub_u32 v14, v12, v14
            v_lshlrev_b32 v14, 4, v14
            v_mul_u32_u24 v13, 1280, v13
            v_add_u32 v{16+p}, v13, v14
            """)
            if p in (1, 2, 3):
                a(f"v_subrev_u32 v{16+p}, {p*1024}, v{16+p}")
        a(f"""
        s_mov_b32 s{S_C}, s{S_WAVE}
        L_H_ld:
        s_mul_i32 s{S_A}, s{S_C}, {32*1280}
        s_mul_i32 s{S_T0}, s{S_D}, 160
        s_add_u32 s{S_A}, s{S_A}, s{S_T0}
        s_mul_i32 s{S_B}, s{S_C}, 5120
        s_mov_b32 m0, s{S_B}
        s_nop 0
        """)
        for p in range(4):
            a(f"buffer_load_dwordx4 v{16+p}, s[{R_W}:{R_W+3}], s{S_A} offen offset:{p*1024} lds")
        a(f"s_add_u32 m0, s{S_B}, 4096\ns_nop 0\nbuffer_load_dwordx4 v20, s[{R_W}:{R_W+3}], s{S_A} offen lds")
        a(f"""
        s_add_u32 s{S_C}, s{S_C}, 8
        s_cmp_lt_u32 s{S_C}, 20
        s_cbranch_scc1 L_H_ld
        v_and_b32 v12, 15, v1
        v_lshrrev_b32 v13, 4, v1
        v_lshrrev_b32 v14, 2, v12
        v_lshl_add_u32 v14, v13, 2, v14
        v_mul_u32_u24 v14, 160, v14
        v_and_b32 v12, 3, v12
        v_lshl_add_u32 v14, v12, 3, v14
        v_lshlrev_b32 v15, 4, v1
        s_waitcnt vmcnt(0)
        s_barrier
        s_mov_b32 s{S_C}, s{S_WAVE}
        L_H_tr:
        s_lshr_b32 s{S_T0}, s{S_C}, 1
        s_mul_i32 s{S_T0}, s{S_T0}, 5
        s_and_b32 s{S_T0+1}, s{S_C}, 1
        s_lshl_b32 s{S_T0+1}, s{S_T0+1}, 1
        s_add_u32 s{S_T0}, s{S_T0}, s{S_T0+1}
        s_add_u32 s{S_T0+1}, s{S_T0}, 1
        s_mul_i32 s{S_T0+2}, s{S_C}, 10
        s_sub_u32 s{S_T0+2}, s{S_T0+2}, 156
        s_add_u32 s{S_T0+3}, s{S_T0+2}, 5
        s_cmp_lt_u32 s{S_C}, 16
        s_cselect_b32 s{S_T0}, s{S_T0}, s{S_T0+2}
        s_cselect_b32 s{S_T0+1}, s{S_T0+1}, s{S_T0+3}
        s_mul_i32 s{S_T0}, s{S_T0}, 2560
        s_mul_i32 s{S_T0+1}, s{S_T0+1}, 2560
        v_add_u32 v12, s{S_T0}, v14
        v_add_u32 v13, s{S_T0+1}, v14
        """)
        for b in range(5):
            a(f"ds_read_b64_tr_b16 {vr(24+4*b,2)}, v12 offset:{b*32}\nds_read_b64_tr_b16 {vr(26+4*b,2)}, v13 offset:{b*32}")
        a(f"""
        s_mul_i32 s{S_T0}, s{S_D}, {5*UW_ST}
        s_lshl_b32 s{S_T0+1}, s{S_C}, 10
        s_add_u32 s{S_T0}, s{S_T0}, s{S_T0+1}
        s_add_u32 s{S_T0}, s{S_T0}, {UW + 49152}
        """)
        for b in range(5):
            a(f"s_waitcnt lgkmcnt({8-2*b})")
            a(f"buffer_store_dwordx4 {vr(24+4*b,4)}, v15, s[{R_WS}:{R_WS+3}], s{S_T0} offen sc1")
            if b < 4:
                a(f"s_add_u32 s{S_T0}, s{S_T0}, {UW_ST}")
        a(f"""
        s_add_u32 s{S_C}, s{S_C}, 8
        s_cmp_lt_u32 s{S_C}, 20
        s_cbranch_scc1 L_H_tr
        s_waitcnt vmcnt(0)
        s_barrier
        """)
        if self.o.get("hW2"):
            a(f"s_cmp_lg_u32 s{S_WAVE}, 7\ns_cbranch_scc1 L_H_nofl")
            a(f"s_mul_i32 s{S_T0}, s{S_D}, {FS}\ns_add_u32 s{S_T0}, s{S_T0}, {F_WOT}")
            self.flag_store(S_T0, 12)
            self.stamp(14, 12)
            a(f"""
            L_H_nofl:
            v_lshlrev_b32 v12, 7, v1
            s_lshl_b32 s{S_T0}, s{S_D}, 3
            s_add_u32 s{S_T0}, s{S_T0}, s{S_WAVE}
            s_lshl_b32 s{S_T0}, s{S_T0}, 13
            s_add_u32 s{S_T0}, s{S_T0}, {(1536 - 128 * (self.o.get("hW2n", 4) - self.o.get("w2LN", 0)))*4096}
            """)
            for k in range(self.o.get("hW2n", 4) - self.o.get("w2LN", 0)):
                a(f"buffer_load_dword v253, v12, s[{R_W2}:{R_W2+3}], s{S_T0} offen\ns_add_u32 s{S_T0}, s{S_T0}, {128*4096}")
        skip = self.if_wave56()
        self.w2_setup()
        self.w2_prefill(8)
        a(f"s_branch L_F_loader\n{skip}:")
        a(f"s_cmp_lt_u32 s{S_WAVE}, 4\ns_cbranch_scc1 L_F_comp\ns_cmp_lg_u32 s{S_WAVE}, 7\ns_cbranch_scc1 L_F_u4")
        if not self.o.get("hW2"):
            a(f"s_mul_i32 s{S_T0}, s{S_D}, {FS}\ns_add_u32 s{S_T0}, s{S_T0}, {F_WOT}")
            self.flag_store(S_T0, 12)
            self.stamp(14, 12)
        a("s_branch L_F_poller")

    F_WOT_REG = 172

    def uw_srd(self):
        a = self.a
        a(f"""
        s_mul_i32 s{S_T0}, s{S_DTILE}, 5
        s_add_u32 s{S_D}, s{S_T0}, s{S_WAVE}
        s_mul_i32 s{S_T0}, s{S_D}, {UW_ST}
        s_add_u32 s{S_T0}, s{S_T0}, {UW}
        """)
        self.srd(R_P, P_WS, UW_ST, off_s=S_T0)

    def wot_preload(self, VL):
        a = self.a
        for k in range(20):
            if k % 4 == 0:
                a(f"s_mov_b32 s{S_C}, {49152 + k*1024}")
            a(f"buffer_load_dwordx4 {vr(self.F_WOT_REG+4*k,4)}, v{VL}, s[{R_P}:{R_P+3}], s{S_C} offen offset:{(k%4)*1024} sc1")

    F_V = (4, 8, 12, 13, 47, 48, 52, 56, 168)
    F_SB = 72

    def f_setup(self):
        a = self.a
        VT, VT2, VL, VU4, VGA, VGH, VG8, GV, BV = self.F_V
        SB = self.F_SB
        self.srd(R_M, P_B2, 4096)
        self.srd(R_OUT, P_OUT, 2048 * 1280)
        self.tr_addr(VT2)
        a(f"""
        s_mul_i32 s{S_D}, s{S_DTILE}, 5
        s_add_u32 s{S_D}, s{S_D}, s{S_WAVE}
        v_mov_b32 v42, v{VT2}
        v_lshlrev_b32 v{VL}, 4, v1
        v_add_u32 v{VU4}, 0x20000, v{VL}
        v_and_b32 v{VGA}, 15, v1
        v_lshlrev_b32 v43, 1, v{VGA}
        v_lshlrev_b32 v{VGA}, 2, v{VGA}
        v_lshlrev_b32 v{VG8+3}, 3, v1
        """)
        for b in range(4):
            a(f"""
            s_add_u32 s{SB+b}, s{S_WAVE}, {b}
            s_and_b32 s{SB+b}, s{SB+b}, 3
            s_lshl_b32 s{S_T0}, s{SB+b}, 5
            v_xor_b32 v{VT+b}, s{S_T0}, v42
            s_lshl_b32 s{S_T0+1}, s{S_ST}, 7
            s_add_u32 s{S_T0}, s{S_T0}, s{S_T0+1}
            buffer_load_ushort v{BV+b}, v43, s[{R_M}:{R_M+3}], s{S_T0} offen
            v_add_u32 v{VT2+b}, 0x10000, v{VT+b}
            s_lshl_b32 s{S_T0}, s{SB+b}, 12
            v_add_u32 v{VG8+b}, s{S_T0}, v{VG8+3}
            s_add_u32 s{S_T0}, s{S_T0}, 0x10000
            v_add_u32 v{VGH+b}, s{S_T0}, v{VL}
            """)
        a(f"s_lshl_b32 s{S_A}, s{S_ST}, 8\ns_add_u32 s{S_A}, s{S_A}, {G_OFF}")
        self.f_perm()

    def f0_barrier(self):
        lab = self.a.label("f0")
        self.a(f"s_cmp_eq_u32 s{S_FROMA}, 1\ns_cbranch_scc1 {lab}\ns_barrier\n{lab}:")

    def final(self):
        a = self.a
        a("L_F_comp:")
        if self.stop == "phase1":
            a("s_branch L_end")
        PF, WF, ACC, ACC4, U4, WOT = 64, 112, 144, 160, 36, 172
        NPF = 3
        pre = True
        VT, VT2, VL, VU4, VGA, VGH, VG8, GV, BV = self.F_V
        SB = self.F_SB
        a(f"s_cmp_eq_u32 s{S_FROMA}, 1\ns_cbranch_scc1 L_F_nowot")
        self.uw_srd()
        self.f_setup()
        nstream = 12 if pre else 17

        def next_sc(step):
            if step < 12:
                return self.perm_next(S_C, S_PERM, 4096)
            return f"s_mov_b32 s{S_C}, {step*4096}\n"
        a("s_barrier")
        self.wot_preload(VL)
        a("L_F_nowot:")
        a(next_sc(0))
        a("s_barrier")
        S_C1, S_C2 = S_K0, S_K0 + 1

        def uload(t, ks, so):
            return f"buffer_load_dwordx4 {vr(PF+16*(t % NPF)+4*ks,4)}, v{VL}, s[{R_P}:{R_P+3}], s{so} offen offset:{ks*1024} sc1 ;@u{t}_{ks}"
        vis0 = []
        for ks in range(4):
            a(uload(0, ks, S_C))
            vis0.append(f"u0_{ks}")
        a(self.perm_next(S_C1, S_PERM, 4096) + self.perm_next(S_C2, S_PERM, 4096) + next_sc(3))
        a("s_barrier")

        ACC2 = 16
        blocks = [(ACC + 4 * b, b) for b in range(4)] + [(ACC4, 0)]
        fill = []
        for b in range(4):
            fill += [f"v_lshlrev_b32 v{BV+b}, 16, v{BV+b}", f"v_sub_f32 v{GV+b}, 1.0, v{GV+b}"]
        for r0, b in blocks:
            for k in range(4):
                fill.append(f"v_add_f32 v{r0+k}, v{BV+b}, v{r0+k}")

        stages = []
        for t in range(17):
            slot = t % 8
            hi = slot >= 4
            uses = []
            for ks in range(4):
                for b in range(4):
                    g = ks * 4 + b
                    wb = WF + 4 * (g % 8)
                    reads = []
                    u4 = U4 + 4 * (ks & 1)
                    if b == 0:
                        reads.append((f"u{ks}", f"ds_read_b128 {vr(u4,4)}, v{VU4} offset:{slot*4096 + ks*1024}"))
                    if t < 12:
                        off = (slot & 3) * 16384 + ks * 4096
                        va = (VT2 if hi else VT) + b
                        reads += [(f"w{g}a", f"ds_read_b64_tr_b16 {vr(wb,2)}, v{va} offset:{off}"),
                                  (f"w{g}b", f"ds_read_b64_tr_b16 {vr(wb+2,2)}, v{va} offset:{off+2048}")]
                    elif t < 16:
                        assert hi
                        off = (slot & 3) * 16384 + ks * 1024
                        reads += [(f"w{g}b", f"ds_read_b128 {vr(wb,4)}, v{VGH+b} offset:{off}")]
                    else:
                        off = (slot & 3) * 16384 + ks * 1024
                        assert not hi
                        reads += [(f"w{g}a", f"ds_read_b64 {vr(wb,2)}, v{VG8+b} offset:{off}"),
                                  (f"w{g}b", f"ds_read_b64 {vr(wb+2,2)}, v{VG8+b} offset:{off+512}")]
                    acc = vr((ACC if t < 12 else ACC2) + 4 * b, 4)
                    a4 = vr(ACC4 if t < 12 else ACC2 + 16, 4)
                    ring = t < nstream
                    pf = vr(PF + 16 * (t % NPF) + 4 * ks, 4) if ring else vr(WOT + 16 * (t - 12) + 4 * ks, 4)
                    first = t in (0, 12) and ks == 0
                    mf = [f"v_mfma_f32_16x16x32_bf16 {acc}, {pf}, {vr(wb,4)}, {0 if first else acc}"]
                    if b == 0:
                        mf.append(f"v_mfma_f32_16x16x32_bf16 {a4}, {vr(u4,4)}, {vr(wb,4)}, {0 if first else a4}")
                    d = dict(reads=reads, need=[f"w{g}b"], mf=mf)
                    if self.o.get("x_fewlds"):
                        if b == 0:
                            d["reads"] = reads[1:]
                        else:
                            d["reads"] = []
                            d["need"] = [f"w{g-b}b"]
                    if b == 0 and ring:
                        d["vneed"] = f"u{t}_{ks}"
                    if t == 0 and b in (0, 1):
                        d["after"] = uload(1 + b, ks, (S_C1, S_C2)[b])
                    if t == 1 and b == 1:
                        d["after"] = (f"s_lshl_b32 s{S_T0}, s{SB+ks}, 6\ns_add_u32 s{S_T0}, s{S_T0}, s{S_A}\n"
                                      f"buffer_load_dword v{GV+ks}, v{VGA}, s[{R_WS}:{R_WS+3}], s{S_T0} offen sc1 ;@g{ks}")
                    if b == 3 and t + NPF < nstream:
                        d["after"] = uload(t + NPF, ks, S_C)
                        if ks == 3 and t + NPF + 1 < nstream:
                            d["after"] += "\n" + next_sc(t + NPF + 1)
                    if self.o.get("wotl") and 3 <= t <= 7 and b == 1:
                        k = (t - 3) * 4 + ks
                        lab = a.label("nw")
                        d["before"] = (f"s_cmp_eq_u32 s{S_FROMA}, 1\ns_cbranch_scc0 {lab}\ns_mov_b32 s{S_T0}, {49152 + k*1024}\n"
                                       f"buffer_load_dwordx4 {vr(WOT+4*k,4)}, v{VL}, s[{R_P}:{R_P+3}], s{S_T0} offen sc1\n{lab}:")
                    if t >= 13 and fill and g < 15:
                        d["after"] = fill.pop(0)
                    uses.append(d)
            stages.append(dict(uses=uses, bar="s_barrier" if t else ""))
        nd = self.o.get("nodrain")
        LF = self.o.get("LF", 6)
        self.pipeline(stages, LF, (16 - LF) if nd else 13, drain=not nd, wait_every=self.o.get('we', 2), vis=vis0)
        self.stamp(8, 2)
        a(f"""
        v_and_b32 v2, 15, v1
        v_mul_u32_u24 v2, 1280, v2
        v_lshrrev_b32 v3, 4, v1
        v_lshl_add_u32 v2, v3, 3, v2
        s_mul_i32 s{S_A}, s{S_ST}, {64*1280}
        s_lshl_b32 s{S_T0+1}, s{S_D}, 5
        s_add_u32 s{S_B}, s{S_A}, s{S_T0+1}
        s_mul_i32 s{S_T0+1}, s{S_DTILE}, 160
        s_add_u32 s{S_A}, s{S_A}, s{S_T0+1}
        s_add_u32 s{S_A}, s{S_A}, 128
        """)
        assert not fill
        for i_, (r, b) in enumerate(blocks):
            for k in range(4):
                a(f"v_fma_f32 v{r+k}, v{r+k}, v{GV+b}, v{ACC2+4*i_+k}")
            a(f"s_mul_i32 s{S_T0}, s{SB+b}, {16*1280}\ns_add_u32 s{S_T0}, s{S_T0}, s{S_A if r == ACC4 else S_B}")
            a(f"v_cvt_pk_bf16_f32 v{r}, v{r}, v{r+1}\nv_cvt_pk_bf16_f32 v{r+1}, v{r+2}, v{r+3}")
            a(f"buffer_store_dwordx2 {vr(r,2)}, v2, s[{R_OUT}:{R_OUT+3}], s{S_T0} offen {['', 'sc1', 'nt', 'sc0 sc1'][self.o.get('osc', 0)]}")
        if self.stamps or self.o.get("dbg"):
            a("s_waitcnt vmcnt(0)")
            self.stamp(9, 2)
        if self.o.get("calib"):
            a(f"""
            L_cal:
            s_memrealtime s[96:97]
            s_waitcnt lgkmcnt(0)
            s_sub_u32 s96, s96, s98
            s_cmp_lt_u32 s96, {self.o.get("calib")*100}
            s_cbranch_scc1 L_cal
            """)
        a(f"s_or_b32 s{S_T0}, s2, s{S_WAVE}\ns_cmp_lg_u32 s{S_T0}, 0\ns_cbranch_scc1 L_end\ns_mov_b32 s{S_T0}, 0")
        self.flag_store(S_T0, 4)
        a("s_branch L_end")

        a("L_F_u4:")
        if self.stop == "phase1":
            a("s_branch L_end")
        a(f"""
        v_lshlrev_b32 v{VL}, 4, v1
        s_mul_i32 s{S_C}, s{S_DTILE}, {5*UW_ST}
        s_add_u32 s{S_C}, s{S_C}, {UW + 4*UW_ST}
        """)
        self.f_perm()
        self.f0_barrier()
        p4 = self.o.get("preW4")
        if p4:
            for k in range(20):
                if k % 4 == 0:
                    a(f"s_add_u32 s{S_T0}, s{S_C}, {49152 + k*1024}")
                a(f"buffer_load_dwordx4 {vr(64+4*k,4)}, v{VL}, s[{R_WS}:{R_WS+3}], s{S_T0} offen offset:{(k%4)*1024} sc1")
            a(f"v_add_u32 v{VU4}, 0x20000, v{VL}")
        a("s_barrier")

        def u4_issue(iv):
            if iv >= 12 and p4:
                for i in range(4):
                    a(f"ds_write_b128 v{VU4}, {vr(64+16*(iv-12)+4*i,4)} offset:{(iv % 8)*4096 + i*1024}")
                return
            if iv < 12:
                a(self.perm_next(S_T0, S_PERM, 4096) + f"s_mov_b32 m0, {0x20000 + (iv % 8)*4096:#x}\ns_add_u32 s{S_T0}, s{S_T0}, s{S_C}")
            else:
                a(f"s_mov_b32 m0, {0x20000 + (iv % 8)*4096:#x}\ns_add_u32 s{S_T0}, s{S_C}, {iv*4096}")
            for i in range(4):
                a(f"buffer_load_dwordx4 v{VL}, s[{R_WS}:{R_WS+3}], s{S_T0} offen offset:{i*1024} sc1 lds")
        order = []
        for iv in range(8):
            u4_issue(iv)
            order.append(iv)
            if iv == 1:
                a("s_waitcnt vmcnt(4)\ns_barrier")
        for tb in range(1, 17):
            if tb in order:
                a(f"s_waitcnt vmcnt({4*len(order[order.index(tb)+1:])})")
            a("s_waitcnt lgkmcnt(0)\ns_barrier" if p4 and tb >= 7 else "s_barrier")
            iv = tb + (6 if self.o.get("nodrain") else 7)
            if 8 <= iv <= 16:
                u4_issue(iv)
                if not (p4 and iv >= 12):
                    order.append(iv)
        a("s_branch L_end")

        a("L_F_loader:")
        if self.stop == "phase1":
            a("s_branch L_end")
        a(f"v_lshlrev_b32 v{VL}, 4, v1")
        self.f0_barrier()
        nWR = self.o.get("nWR", 0)
        V = self.V_W2
        if nWR:
            a(f"s_waitcnt vmcnt(30)\nv_add_u32 v{VU4}, s{S_B}, v{VL}")
            for k in range(nWR):
                a(self.perm_next(S_T0, S_PERM, 128 * 4096) + f"s_add_u32 s{S_T0}, s{S_T0}, s{S_A}")
                for g in range(2):
                    if g:
                        a(f"s_add_u32 s{S_T0}, s{S_T0}, {4*32768}")
                    for i in range(4):
                        a(f"buffer_load_dwordx4 {vr(64+32*k+16*g+4*i,4)}, v{V+i}, s[{R_W2}:{R_W2+3}], s{S_T0} offen offset:{i*1024}")
            a(f"s_add_u32 s{S_B}, s{S_B}, {nWR*16384}")
        a("s_barrier")
        a(f"""
        s_sub_u32 s{S_T0}, s{S_WAVE}, 5
        s_lshl_b32 s{S_T0}, s{S_T0}, 1
        s_lshl_b32 s{S_T0+1}, s{S_ST}, 2
        s_add_u32 s{S_T0+1}, s{S_T0+1}, s{S_T0}
        s_mul_i32 s{S_C}, s{S_T0+1}, {GO_ST}
        s_add_u32 s{S_C}, s{S_C}, {GO}
        s_lshl_b32 s{S_D}, s{S_T0}, 12
        """)
        assert nWR == 0
        ops = [(iv, 8) for iv in range(8)]
        for tb in range(17):
            last = max(i for i, (iv, _) in enumerate(ops) if iv == tb)
            n = sum(c for _, c in ops[last + 1:])
            a(f"s_waitcnt vmcnt({min(n,63)})\ns_barrier")
            if self.o.get("halfW"):
                if 2 <= tb <= 9:
                    self.w2_half((tb - 2) & 1)
                    ops.append((8 + (tb - 2) // 2, 4))
            elif 2 <= tb <= 5:
                self.w2_issue()
                ops.append((tb + 6, 8))
            if 9 <= tb <= 13:
                iv = tb + 3
                g = iv - 12
                for s2 in range(2):
                    a(f"s_add_u32 m0, s{S_D}, {(iv % 8)*16384 + s2*4096}\ns_add_u32 s{S_T0}, s{S_C}, {s2*GO_ST + g*4096}")
                    for i in range(4):
                        a(f"buffer_load_dwordx4 v{VL}, s[{R_WS}:{R_WS+3}], s{S_T0} offen offset:{i*1024} sc1 lds")
                ops.append((iv, 8))
        a("s_branch L_end")
        a("L_F_poller:")
        if self.stop == "phase1":
            a("s_branch L_end")
        a(f"s_cmp_eq_u32 s{S_FROMA}, 1\ns_cbranch_scc1 L_F_pnowot")
        a(f"s_mul_i32 s{S_T0}, s{S_DTILE}, {FS}\ns_add_u32 s{S_T0}, s{S_T0}, {F_WOT}\nv_mov_b32 v2, s{S_T0}")
        self.poll([2], 4)
        a("s_barrier\nL_F_pnowot:")
        a(f"""
        s_mul_i32 s{S_T0}, s{S_DTILE}, 5
        s_lshr_b32 s{S_T0+1}, s{S_T0}, 3
        s_add_u32 s{S_T0}, s{S_T0}, 4
        s_lshr_b32 s{S_T0}, s{S_T0}, 3
        s_mul_i32 s{S_T0}, s{S_T0}, 24
        s_mul_i32 s{S_T0+1}, s{S_T0+1}, 24
        v_and_b32 v2, 31, v1
        v_min_u32 v2, 23, v2
        v_add_u32 v3, s{S_T0}, v2
        v_add_u32 v2, s{S_T0+1}, v2
        v_cmp_gt_u32 vcc, 32, v1
        s_mul_i32 s{S_T0}, s{S_DTILE}, {FS}
        s_add_u32 s{S_T0}, s{S_T0}, {F_WOT}
        v_cndmask_b32 v2, v2, v3, vcc
        v_mul_u32_u24 v2, {FS}, v2
        v_add_u32 v2, {F_U}, v2
        v_mov_b32 v3, s{S_T0}
        v_cmp_eq_u32 vcc, 63, v1
        s_nop 1
        v_cndmask_b32 v2, v2, v3, vcc
        """)
        self.poll([2], 4)
        self.stamp(6, 4)
        a("s_barrier")
        a(f"""
        v_and_b32 v2, 7, v1
        s_lshr_b32 s{S_T0}, s{S_ST}, 1
        s_lshl_b32 s{S_T0}, s{S_T0}, 3
        v_add_u32 v2, s{S_T0}, v2
        v_mul_u32_u24 v2, {FS}, v2
        v_add_u32 v2, {F_GO}, v2
        """)
        gp = self.o.get("gopoll", 9)
        for tb in range(gp):
            a("s_barrier")
            if tb == 1:
                a(f"s_cmp_eq_u32 s{S_FROMA}, 1\ns_cbranch_scc0 L_F_nogo")
                a(f"s_lshl_b32 s{S_T0}, s{S_MT}, 3\ns_add_u32 s{S_T0}, s{S_T0}, s{S_HG}\ns_mul_i32 s{S_T0}, s{S_T0}, {FS}\ns_add_u32 s{S_T0}, s{S_T0}, {F_GO}")
                self.flag_store(S_T0, 6)
                a("L_F_nogo:")
            if tb == gp - 3:
                a(f"buffer_load_dword v8, v2, s[{R_WS}:{R_WS+3}], 0 offen sc1")
            self.stamp(32 + tb, 4)
        a(f"s_waitcnt vmcnt(0)\nv_cmp_ne_u32 vcc, s{S_TAG}, v8\ns_nop 1\ns_cmp_eq_u64 vcc, 0\ns_cbranch_scc1 L_F_gook")
        self.poll([2], 4)
        a("L_F_gook:")
        self.stamp(7, 4)
        for tb in range(gp, 17):
            a("s_barrier")
            self.stamp(32 + tb, 4)
        a("L_end:")
        if "probe" in self.o or "pc1" in self.o:
            a("""
            s_cmp_eq_u32 s94, 0
            s_cbranch_scc1 L_exit
            L_prb:
            s_memrealtime s[96:97]
            s_waitcnt lgkmcnt(0)
            s_sub_u32 s96, s96, s98
            s_cmp_lt_i32 s96, 4000
            s_cbranch_scc1 L_prb
            """)
        if self.stamps:
            a(f"""
            s_lshl_b32 s{S_T0}, s2, 3
            s_add_u32 s{S_T0}, s{S_T0}, s{S_WAVE}
            s_lshl_b32 s{S_T0}, s{S_T0}, 9
            s_add_u32 s{S_T0}, s{S_T0}, {STAMP}
            v_lshlrev_b32 v2, 3, v1
            buffer_store_dwordx2 v[254:255], v2, s[{R_WS}:{R_WS+3}], s{S_T0} offen
            """)
        a("L_exit:\ns_endpgm")

    def build(self, header):
        a = self.a
        self.prologue()
        self.role_a()
        self.role_b()
        self.helper()
        self.final()
        body = a.text()
        out = header
        out += """; One persistent launch, 256 workgroups (one per CU) x 8 waves (0-3 MFMA, 4-7 loaders / pollers).
"""
        out += f"; @launch grid=(256,1,1) block=(512,1,1) lds={LDS_BYTES}\n"
        out += f'.amdgcn_target "amdgcn-amd-amdhsa--gfx950"\n.text\n.globl {KNAME}\n.p2align 8\n.type {KNAME},@function\n{KNAME}:\n'
        out += body
        out += f""".section .rodata,"a"
.p2align 6
.amdhsa_kernel {KNAME}
  .amdhsa_next_free_vgpr 256
  .amdhsa_next_free_sgpr 102
  .amdhsa_accum_offset 256
  .amdhsa_group_segment_fixed_size 0
  .amdhsa_kernarg_size 96
  .amdhsa_user_sgpr_count 2
  .amdhsa_user_sgpr_kernarg_segment_ptr 1
  .amdhsa_system_sgpr_workgroup_id_x 1
  .amdhsa_float_denorm_mode_32 3
.end_amdhsa_kernel
"""
        return out


def header():
    ref = open("gated_mix__linear_attn_block__mixer_token_mlp__prompt.s.ref").read().split("\n")
    h = []
    for l in ref:
        if l.startswith("; Override"):
            break
        h.append(l)
    return "\n".join(h) + "\n"


if __name__ == "__main__":
    import argparse
    p = argparse.ArgumentParser()
    p.add_argument("-o", default="gated_mix__linear_attn_block__mixer_token_mlp__prompt.s")
    p.add_argument("--stamps", action="store_true")
    p.add_argument("--stop", default=None)
    p.add_argument("--opt", default="")
    args = p.parse_args()
    opts = {k: (int(v) if v != '' else 1) for k, _, v in (x.partition('=') for x in args.opt.split(',') if x)}
    g = Gen(stamps=args.stamps, stop=args.stop, opts=opts)
    open(args.o, "w").write(g.build(header()))
    print("wrote", args.o)
```

```python
import sys

KNAME = "gated_mix__linear_attn_block__mixer_token_mlp__prompt_kernel"

import os
FS = int(os.environ.get('FS', 128))
F_LN, F_KV, F_U, F_GO, F_WOT = 0x1000, 0x5000, 0x9000, 0xD000, 0x11000
G_OFF = 0x12000
STAMP = 0x900000
KVP = 0x20000
KVP_ST = 7168
HT = 0x100000
UW = 0x380000
UW_ST = 69632
GO = 0x640000
GO_ST = 20480
WS_USED = 0xA00000
TAG_INC = 0x9E3779B9
SPIN_LIMIT = 1 << 17

LDS_BYTES = 163840
LNBUF = 0
LN_ST = 1312
LNG = LNBUF + 32 * LN_ST
A_SLOT = 49152
A_WOFF = 16384
EXCH_ST = 14336
EXCH = LDS_BYTES - 4 * EXCH_ST
KVT = 147456
ZH = KVT + 11 * 1024

LOG2E = 0x3FB8AA3B


def f2u(x):
    import struct
    return struct.unpack("<I", struct.pack("<f", x))[0]


class Asm:
    def __init__(self):
        self.L = []
        self.nlab = 0

    def __call__(self, s):
        for line in s.split("\n"):
            line = line.strip()
            if line:
                self.L.append(("    " if not line.endswith(":") else "") + line)

    def label(self, base):
        self.nlab += 1
        return f"L{base}_{self.nlab}"

    def text(self):
        return "\n".join(self.L) + "\n"


def vr(a, n=1):
    return f"v{a}" if n == 1 else f"v[{a}:{a+n-1}]"


def sr(a, n=1):
    return f"s{a}" if n == 1 else f"s[{a}:{a+n-1}]"


P_X, P_WQKV, P_WO, P_BX, P_W1, P_B1, P_W2, P_B2 = 4, 6, 8, 10, 12, 14, 16, 18
P_GATE, P_OUT, P_DBG, P_WS = 20, 22, 24, 26
S_TAG, S_WAVE = 28, 29
S_XCD, S_J = 30, 31
R_WS, R_X, R_W, R_P, R_W2, R_M, R_OUT = 32, 36, 40, 44, 48, 52, 56
S_T0 = 60
S_MT, S_HG, S_DT, S_FT, S_KST, S_PAR = 70, 71, 72, 73, 74, 75
S_ST, S_DTILE = 76, 77
S_CNT = 78
S_A, S_B, S_C, S_D = 80, 81, 82, 83
S_MSK = 84
S_K0 = 90
S_STMP = 96
S_PERM = 66
S_M = 79
S_FROMA = 95
S_PERM2 = 68


def lead_perm(n, nshare, m, lead=2):
    order = list(range(n))
    i = m
    while i + lead < n:
        order[i:i + lead + 1] = [order[i + lead]] + order[i:i + lead]
        i += nshare
    return order


class Gen:
    def __init__(self, stamps=False, stop=None, opts=None):
        self.o = opts or {}
        self.a = Asm()
        self.stamps = stamps
        self.stop = stop

    def nt(self, key):
        return "nt" if self.o.get(key) else ""

    def srd(self, dst, ptr, nbytes, off_s=None):
        a = self.a
        if off_s is None:
            a(f"s_mov_b32 s{dst}, s{ptr}\ns_and_b32 s{dst+1}, s{ptr+1}, 0xffff")
        else:
            a(f"s_add_u32 s{dst}, s{ptr}, s{off_s}\ns_addc_u32 s{dst+1}, s{ptr+1}, 0\ns_and_b32 s{dst+1}, s{dst+1}, 0xffff")
        a(f"s_mov_b32 s{dst+2}, {nbytes:#x}\ns_mov_b32 s{dst+3}, 0x20000")

    def stamp(self, k, vtmp, dyn=None):
        if "pc1" in self.o:
            if dyn is None and k in (self.o["pc1"], self.o["pc2"]):
                lab = self.a.label("npr")
                self.a(f"s_cmp_lg_u32 s{S_FROMA}, {self.o.get('prole', 0)}\ns_cbranch_scc1 {lab}")
                if k == self.o["pc1"]:
                    self.a(f"s_memtime s[92:93]\ns_waitcnt lgkmcnt(0)")
                else:
                    self.a(f"s_memtime s[96:97]\ns_waitcnt lgkmcnt(0)\ns_sub_u32 s92, s96, s92\ns_lshr_b32 s92, s92, 4\ns_add_u32 s98, s98, s92\ns_mov_b32 s94, 1")
                self.a(f"{lab}:")
            return
        if "probe" in self.o:
            role = self.o.get("prole")
            if k == self.o["probe"] and dyn is None:
                lab = self.a.label("npr")
                if self.o.get("phelp"):
                    self.a(f"s_cmp_lt_u32 s{S_J}, 30\ns_cbranch_scc1 {lab}")
                if role is not None and k != 0:
                    self.a(f"s_cmp_lg_u32 s{S_FROMA}, {role}\ns_cbranch_scc1 {lab}")
                self.a(f"s_memrealtime s[98:99]\ns_mov_b32 s94, 1\ns_waitcnt lgkmcnt(0)\n{lab}:")
            return
        if self.o.get("dbg"):
            m = {0: 0, 11: 1, 1: 2, 2: 3, 3: 4, 4: 5, 6: 6, 9: 7}
            mA = {0: 0, 1: 1, 2: 2, 3: 3, 4: 4, 5: 5, 6: 6, 9: 7}
            if dyn is not None:
                return
            a = self.a
            for wg, mp, base in ((8, m, 0), (12, mA, 8)):
                if k in mp:
                    lab = a.label("nd")
                    a(f"s_cmp_lg_u32 s2, {wg}\ns_cbranch_scc1 {lab}")
                    a(f"s_memrealtime s[{S_STMP}:{S_STMP+1}]\ns_waitcnt lgkmcnt(0)")
                    a(f"v_mov_b32 v{vtmp}, s{S_STMP}\nv_mov_b32 v{vtmp+2}, {4*(base+mp[k])}")
                    a(f"s_mov_b64 exec, 1\nglobal_store_dword v{vtmp+2}, v{vtmp}, s[{P_DBG}:{P_DBG+1}]\ns_mov_b64 exec, -1\n{lab}:")
            return
        if not self.stamps:
            return
        a = self.a
        a(f"s_memrealtime s[{S_STMP}:{S_STMP+1}]\ns_memtime s[100:101]")
        ln = str(k)
        if dyn is not None:
            a(f"s_add_u32 m0, s{dyn}, {k}")
            ln = "m0"
        a(f"s_waitcnt lgkmcnt(0)\nv_writelane_b32 v254, s{S_STMP}, {ln}\nv_writelane_b32 v255, s100, {ln}")

    def perm_setup(self, s_m, n, nshare, dst, enable):
        a = self.a
        def pk(o):
            v = 0
            for i, x in enumerate(o):
                v |= x << (4 * i)
            return v & 0xffffffff, v >> 32
        lo, hi = pk(list(range(n)))
        a(f"s_mov_b32 s{dst}, {lo:#x}\ns_mov_b32 s{dst+1}, {hi:#x}")
        if not enable:
            return
        for m in range(nshare):
            lo, hi = pk(lead_perm(n, nshare, m, enable))
            a(f"s_cmp_eq_u32 s{s_m}, {m}\ns_cselect_b32 s{dst}, {lo:#x}, s{dst}\ns_cselect_b32 s{dst+1}, {hi:#x}, s{dst+1}")

    def perm_next(self, dst, src, mul):
        t = f"s_and_b32 s{dst}, s{src}, 15\ns_lshr_b64 s[{src}:{src+1}], s[{src}:{src+1}], 4\n"
        if mul & (mul - 1) == 0:
            t += f"s_lshl_b32 s{dst}, s{dst}, {mul.bit_length()-1}\n"
        else:
            t += f"s_mul_i32 s{dst}, s{dst}, {mul}\n"
        return t

    def poll(self, voffs, vtmp, mask=None):
        a = self.a
        lp, dn = a.label("poll"), a.label("pdone")
        n = len(voffs)

        def ld(k):
            for i, vo in enumerate(voffs):
                a(f"buffer_load_dword v{vtmp+k*n+i}, v{vo}, s[{R_WS}:{R_WS+3}], 0 offen sc1")

        def chk(k):
            if mask is not None:
                a(f"v_xor_b32 v{vtmp+k*n}, s{S_TAG}, v{vtmp+k*n}\nv_and_b32 v{vtmp+k*n}, v{mask}, v{vtmp+k*n}\nv_cmp_ne_u32 vcc, 0, v{vtmp+k*n}")
            else:
                a(f"v_cmp_ne_u32 vcc, s{S_TAG}, v{vtmp+k*n}")
            for i in range(1, n):
                a(f"v_cmp_ne_u32 s[{S_T0}:{S_T0+1}], s{S_TAG}, v{vtmp+k*n+i}\ns_nop 1\ns_or_b64 vcc, vcc, s[{S_T0}:{S_T0+1}]")
            a(f"s_nop 1\ns_cmp_eq_u64 vcc, 0\ns_cbranch_scc1 {dn}")
        if not self.o.get("pp"):
            a(f"s_mov_b32 s{S_CNT}, 0\n{lp}:")
            ld(0)
            a("s_waitcnt vmcnt(0)")
            chk(0)
            a(f"s_add_u32 s{S_CNT}, s{S_CNT}, 1\ns_cmp_lt_u32 s{S_CNT}, {SPIN_LIMIT}\ns_cbranch_scc0 {dn}\ns_sleep 1\ns_branch {lp}\n{dn}:")
            return
        sl = f"s_sleep {self.o['pp'] - 1}\n" if self.o["pp"] > 1 else ""
        a(f"s_mov_b32 s{S_CNT}, 0")
        ld(0)
        a(f"{sl}{lp}:")
        ld(1)
        a(f"s_waitcnt vmcnt({n})")
        chk(0)
        ld(0)
        a(f"s_waitcnt vmcnt({n})")
        chk(1)
        a(f"s_add_u32 s{S_CNT}, s{S_CNT}, 1\ns_cmp_lt_u32 s{S_CNT}, {SPIN_LIMIT}\ns_cbranch_scc1 {lp}\n{dn}:")

    def flag_store(self, s_off, vtmp):
        a = self.a
        a(f"v_mov_b32 v{vtmp}, s{S_TAG}\nv_mov_b32 v{vtmp+1}, 0\ns_mov_b64 exec, 1")
        a(f"buffer_store_dword v{vtmp}, v{vtmp+1}, s[{R_WS}:{R_WS+3}], s{s_off} offen sc1\ns_mov_b64 exec, -1")

    def pipeline(self, stages, L, gstar, drain=True, wait_every=2, vis=None):
        a = self.a
        seq = [(si, gi, u) for si, st in enumerate(stages) for gi, u in enumerate(st["uses"])]
        issued = []
        vis = list(vis or [])
        state = dict(nxt=0, opened=-1)
        pend = []

        def collect(lim):
            while state["nxt"] < len(seq) and state["nxt"] <= lim and seq[state["nxt"]][0] <= state["opened"]:
                si_, _, u_ = seq[state["nxt"]]
                for name, txt in u_["reads"]:
                    pend.append((f"{si_}:{name}", txt))
                state["nxt"] += 1
                if seq[state["nxt"] - 1][1] == len(stages[si_]["uses"]) - 1 and si_ + 1 < len(stages):
                    state["defer"] = list(stages[si_ + 1].get("pre", []))

        def out(txt):
            if ";@" in txt:
                vis.append(txt.split(";@")[1].strip())
            a(txt)

        def emit(n):
            for _ in range(min(n, len(pend))):
                name, txt = pend.pop(0)
                out(txt)
                if name:
                    issued.append(name)

        a(stages[0]["bar"])
        state["opened"] = 0
        collect(L - 1)
        emit(len(pend))
        n_real = sum(len(st["uses"]) for st in stages if not st.get("virtual"))
        covered = -1
        for f in range(n_real):
            si, gi, u = seq[f]
            nuse = len(stages[si]["uses"])
            if gi == 0 and stages[si].get("head"):
                assert not pend, pend
                a(stages[si]["head"])
                covered = -1
            if gi == gstar and si + 1 < len(stages):
                emit(len(pend))
                for x in state.pop("defer", []):
                    a(x)
                if drain:
                    a("s_waitcnt lgkmcnt(0)")
                    covered = len(issued) - 1
                a(stages[si + 1]["bar"])
                pend.extend((None, x) for x in stages[si + 1].get("bar_pend", []))
                state["opened"] = si + 1
                collect(f + L - 1)
            def lastidx(ff):
                s_, _, uu = seq[ff]
                return max(len(issued) - 1 - issued[::-1].index(f"{s_}:{nm}") for nm in uu["need"])
            w = []
            if lastidx(f) > covered:
                tgt = lastidx(f)
                for ff in range(f + 1, min(f + wait_every, n_real)):
                    if seq[ff][0] != si:
                        break
                    try:
                        tgt = max(tgt, lastidx(ff))
                    except ValueError:
                        break
                n = len(issued) - 1 - tgt
                assert n <= 15, n
                w.append(f"lgkmcnt({n})")
                covered = tgt
            if u.get("vneed") is not None:
                w.insert(0, f"vmcnt({len(vis) - 1 - vis.index(u['vneed'])})")
            if u.get("vm") is not None:
                npv = sum(1 for nm_, t_ in pend if t_.strip().startswith("buffer_load"))
                w.insert(0, f"vmcnt({u['vm'] - npv})")
            if w:
                a("s_waitcnt " + " ".join(w))
            if u.get("before"):
                a(u["before"])
            if state.get("defer") and not pend:
                n_ = self.o.get("npre", 7)
                pend.extend((None, x) for x in state["defer"][:n_])
                state["defer"] = state["defer"][n_:]
            collect(f + L)
            if state.get("mix"):
                k_ = state.pop("mix")
                head_, rest_ = pend[:k_], pend[k_:]
                pend[:] = [x for pr in zip(head_, rest_) for x in pr] + head_[len(rest_):] + rest_[len(head_):]
            nm_ = len(u["mf"])
            for k, m in enumerate(u["mf"]):
                a(m)
                left = nm_ - k
                if drain and gi >= gstar:
                    left += sum(len(uu["mf"]) for uu in stages[si]["uses"][gi + 1:])
                    extra = 2 * (nuse - 1 - gi)
                    emit(-(-(len(pend) + extra) // left) if left > 1 else len(pend))
                else:
                    emit(-(-len(pend) // left))
            if u.get("after"):
                items = [x for x in u["after"].split("\n") if x.strip()]
                if gi == nuse - 1:
                    for x in items:
                        out(x)
                else:
                    assert not pend
                    pend.extend((None, x) for x in items)
                    state["mix"] = len(items)
            if gi == nuse - 1 and stages[si].get("tail"):
                a(stages[si]["tail"])

    def prologue(self):
        a = self.a
        a(f"""
        s_cmp_ge_u32 s2, 256
        s_cbranch_scc1 L_exit
        {"v_mov_b32 v254, 0" if self.stamps else ""}
        {"v_mov_b32 v255, 0" if self.stamps else ""}
        {"s_memrealtime s[98:99]" if self.o.get("calib") or "pc1" in self.o else ""}
        {"s_mov_b32 s94, 0" if "probe" in self.o or "pc1" in self.o else ""}
        s_load_dwordx16 s[4:19], s[0:1], 0
        s_load_dwordx8 s[20:27], s[0:1], 64
        """)
        if self.o.get("pf_code") == 2:
            a(f"""
            s_getpc_b64 s[{S_T0}:{S_T0+1}]
            L_pcref:
            s_lshr_b32 s3, s2, 3
            s_mul_i32 s3, s3, 1280
            v_lshlrev_b32 v4, 7, v0
            v_add_u32 v4, s3, v4
            v_min_u32 v4, L_exit-L_pcref, v4
            v_cmp_gt_u32 vcc, 10, v0
            s_and_saveexec_b64 s[{S_T0+2}:{S_T0+3}], vcc
            s_cbranch_execz L_nocpf
            global_load_dword v253, v4, s[{S_T0}:{S_T0+1}]
            L_nocpf:
            s_mov_b64 exec, -1
            """)
        a(f"""
        v_and_b32 v1, 63, v0
        v_lshrrev_b32 v2, 6, v0
        s_and_b32 s{S_XCD}, s2, 7
        v_readfirstlane_b32 s{S_WAVE}, v2
        s_lshr_b32 s{S_J}, s2, 3
        s_waitcnt lgkmcnt(0)
        s_load_dword s{S_TAG}, s[{P_WS}:{P_WS+1}], 0
        """)
        self.srd(R_WS, P_WS, WS_USED)
        self.srd(R_X, P_X, 2048 * 1280)
        self.srd(R_W2, P_W2, 1536 * 4096)
        if self.stamps or self.o.get("dbg") or "probe" in self.o:
            a(f"s_cmp_lg_u32 s{S_WAVE}, 0\ns_cbranch_scc1 L_nost0")
            self.stamp(0, 4)
            a("L_nost0:")
        if self.o.get("tlb"):
            self.tlb_warm()
        if self.o.get("pf_code") == 1:
            self.code_prefetch()
        if self.o.get("prio"):
            a(f"""
            s_sub_u32 s{S_T0}, s{S_WAVE}, 4
            s_cmp_lt_u32 s{S_T0}, 3
            s_cbranch_scc1 L_noprio
            s_setprio 3
            L_noprio:
            """)
        a(f"""
        s_lshr_b32 s{S_T0}, s{S_XCD}, 1
        s_lshl_b32 s{S_T0}, s{S_T0}, 3
        s_lshr_b32 s{S_ST}, s{S_J}, 2
        s_add_u32 s{S_ST}, s{S_ST}, s{S_T0}
        s_and_b32 s{S_T0}, s{S_XCD}, 1
        s_lshl_b32 s{S_T0}, s{S_T0}, 2
        s_and_b32 s{S_DTILE}, s{S_J}, 3
        s_add_u32 s{S_DTILE}, s{S_DTILE}, s{S_T0}
        s_cmp_lt_u32 s{S_XCD}, 4
        s_cbranch_scc1 L_roleB
        """)

    V_W2 = 240

    def f_perm(self):
        a = self.a
        a(f"s_lshl_b32 s{S_M}, s{S_DTILE}, 1\ns_add_u32 s{S_M}, s{S_M}, s{S_ST}\ns_and_b32 s{S_M}, s{S_M}, 7")
        self.perm_setup(S_M, 12, 8, S_PERM, self.o.get("rotF"))

    def w2_setup(self):
        a = self.a
        V = self.V_W2
        self.f_perm()
        a(f"""
        v_lshrrev_b32 v{V}, 3, v1
        v_lshrrev_b32 v{V+1}, 4, v1
        v_lshlrev_b32 v{V+1}, 1, v{V+1}
        v_and_b32 v{V+2}, 7, v1
        v_xor_b32 v{V+1}, v{V+1}, v{V+2}
        v_lshlrev_b32 v{V+1}, 4, v{V+1}
        v_lshl_add_u32 v{V}, v{V}, 12, v{V+1}
        v_add_u32 v{V+1}, {32768-1024}, v{V}
        v_add_u32 v{V+2}, {2*(32768-1024)}, v{V}
        v_add_u32 v{V+3}, {3*(32768-1024)}, v{V}
        s_sub_u32 s{S_T0}, s{S_WAVE}, 5
        s_lshl_b32 s{S_B}, s{S_T0}, 13
        s_lshl_b32 s{S_A}, s{S_T0}, 18
        s_lshl_b32 s{S_T0}, s{S_ST}, 7
        s_add_u32 s{S_A}, s{S_A}, s{S_T0}
        """)

    def w2_issue_at(self, p):
        a = self.a
        V = self.V_W2
        a(f"s_bfe_u32 s{S_T0}, s{S_PERM}, {(4 << 16) | (4 * p):#x}\ns_lshl_b32 s{S_T0}, s{S_T0}, 19\ns_add_u32 s{S_T0}, s{S_T0}, s{S_A}")
        for g in range(2):
            a(f"s_add_u32 m0, s{S_B}, {p*16384 + g*4096}")
            a(f"s_add_u32 s{S_T0}, s{S_T0}, {g*4*32768}")
            for i in range(4):
                a(f"buffer_load_dwordx4 v{V+i}, s[{R_W2}:{R_W2+3}], s{S_T0} offen offset:{i*1024} lds")

    def w2_half(self, g):
        a = self.a
        V = self.V_W2
        if g == 0:
            a(self.perm_next(S_K0, S_PERM, 128 * 4096) + f"s_add_u32 s{S_K0}, s{S_K0}, s{S_A}")
        a(f"s_add_u32 m0, s{S_B}, {g*4096}\ns_add_u32 s{S_T0}, s{S_K0}, {g*4*32768}")
        for i in range(4):
            a(f"buffer_load_dwordx4 v{V+i}, s[{R_W2}:{R_W2+3}], s{S_T0} offen offset:{i*1024} lds")
        if g == 1:
            a(f"s_add_u32 s{S_B}, s{S_B}, 16384")

    def w2_issue(self):
        a = self.a
        V = self.V_W2
        a(self.perm_next(S_T0, S_PERM, 128 * 4096))
        a(f"s_add_u32 s{S_T0}, s{S_T0}, s{S_A}")
        for g in range(2):
            a(f"s_add_u32 m0, s{S_B}, {g*4096}")
            a(f"s_add_u32 s{S_T0}, s{S_T0}, {g*4*32768}")
            for i in range(4):
                a(f"buffer_load_dwordx4 v{V+i}, s[{R_W2}:{R_W2+3}], s{S_T0} offen offset:{i*1024} lds")
        a(f"s_add_u32 s{S_B}, s{S_B}, 16384\ns_and_b32 s{S_B}, s{S_B}, 0x1ffff")

    def w2_prefill(self, n):
        if n == 0:
            return
        a = self.a
        lp = a.label("pf")
        a(f"s_mov_b32 s{S_C}, 0\n{lp}:")
        self.w2_issue()
        a(f"s_add_u32 s{S_C}, s{S_C}, 1\ns_cmp_lt_u32 s{S_C}, {n}\ns_cbranch_scc1 {lp}")

    def if_wave56(self):
        a = self.a
        skip = a.label("n56")
        a(f"s_sub_u32 s{S_T0}, s{S_WAVE}, 5\ns_cmp_lt_u32 s{S_T0}, 2\ns_cbranch_scc0 {skip}")
        return skip

    def role_a(self):
        a = self.a
        a(f"L_roleA:\ns_mov_b32 s{S_FROMA}, 1")
        a(f"s_sub_u32 s{S_MT}, s{S_ST}, 16\ns_mov_b32 s{S_HG}, s{S_DTILE}")
        a(f"s_cmp_ge_u32 s{S_WAVE}, 4\ns_cbranch_scc1 L_A_loader")
        ACC, XF, WF, VXA, VWA = 128, 96, 64, 4, 6
        if self.o.get("ta1") or self.o.get("ta2"):
            self.start_prefetch()
        self.a_thread_map()
        a(f"""
        v_and_b32 v16, 15, v1
        v_lshrrev_b32 v17, 4, v1
        s_lshl_b32 s{S_T0}, s{S_WAVE}, 5
        v_add_u32 v18, s{S_T0}, v16
        v_lshrrev_b32 v19, 1, v16
        v_xor_b32 v19, v17, v19
        v_lshlrev_b32 v19, 4, v19
        v_lshl_add_u32 v{VXA}, v18, 7, v19
        v_xor_b32 v{VXA+1}, 64, v{VXA}
        v_lshrrev_b32 v18, 2, v16
        v_lshl_add_u32 v19, v17, 3, v18
        v_and_b32 v20, 1, v17
        v_lshl_or_b32 v20, v20, 2, v18
        v_lshlrev_b32 v19, 9, v19
        v_lshl_add_u32 v19, v20, 5, v19
        v_and_b32 v20, 3, v16
        v_lshl_add_u32 v19, v20, 3, v19
        v_add_u32 v{VWA}, {A_WOFF}, v19
        """)
        for n in range(1, 8):
            a(f"v_xor_b32 v{VWA+n}, {n<<5}, v{VWA}")
        for r in range(120):
            a(f"v_mov_b32 v{ACC+r}, 0")
        a(f"s_mov_b32 s{S_A}, 0\ns_mov_b32 s{S_B}, 0\ns_mov_b32 s{S_C}, {A_SLOT}\ns_waitcnt lgkmcnt(0)")
        a(f"s_add_u32 s{S_TAG}, s{S_TAG}, {TAG_INC:#x}")

        RING = 6
        D = 6

        def mk_stage(bar, virtual=False, head=None, tail=None):
            uses = []
            for g in range(30):
                ks, n = divmod(g, 15)
                wb = WF + 4 * (g % RING)
                reads = []
                if g == 0:
                    for rb in range(2):
                        reads.append((f"x0{rb}", f"ds_read_b128 {vr(XF+4*rb,4)}, v{VXA} offset:{rb*2048}"))
                if g == 13:
                    for rb in range(2):
                        reads.append((f"x1{rb}", f"ds_read_b128 {vr(XF+8+4*rb,4)}, v{VXA+1} offset:{rb*2048}"))
                off = ks * 16384 + (n >> 3) * 256
                reads.append((f"w{g}a", f"ds_read_b64_tr_b16 {vr(wb,2)}, v{VWA+(n&7)} offset:{off}"))
                reads.append((f"w{g}b", f"ds_read_b64_tr_b16 {vr(wb+2,2)}, v{VWA+(n&7)} offset:{off+2048}"))
                need = [f"w{g}b", f"x{ks}1"]
                mf = []
                for rb in range(2):
                    acc = vr(ACC + (n * 2 + rb) * 4, 4)
                    xf = vr(XF + ks * 8 + rb * 4, 4)
                    wf = vr(wb, 4)
                    if n < 5:
                        mf.append(f"v_mfma_f32_16x16x32_bf16 {acc}, {wf}, {xf}, {acc}")
                    else:
                        mf.append(f"v_mfma_f32_16x16x32_bf16 {acc}, {xf}, {wf}, {acc}")
                uses.append(dict(reads=reads, need=need, mf=mf))
            return dict(uses=uses, bar=bar, virtual=virtual, head=head, tail=tail)

        adv = "s_barrier"
        pre = [f"s_add_u32 s{S_B}, s{S_B}, 1", f"s_cmp_eq_u32 s{S_B}, 3", f"s_cselect_b32 s{S_B}, 0, s{S_B}",
               f"s_cselect_b32 s{S_T0}, {(-2*A_SLOT) & 0xffffffff:#x}, s{S_C}"]
        pre += [f"v_add_u32 v{r}, s{S_T0}, v{r}" for r in range(VXA, VWA + 8)]
        tail = f"s_add_u32 s{S_A}, s{S_A}, 1\ns_cmp_lt_u32 s{S_A}, 10\ns_cbranch_scc1 L_A_loop"
        head = "L_A_loop:\n"
        bar0 = "s_barrier"
        self.uw_srd()
        if self.o.get("tw2") == 2:
            self.srd(R_M, P_WO, 640 * 1280)
            a(f"""
            v_lshlrev_b32 v252, 7, v1
            s_lshl_b32 s{S_T0}, s{S_MT}, 3
            s_add_u32 s{S_T0}, s{S_T0}, s{S_HG}
            s_lshl_b32 s{S_T0}, s{S_T0}, 2
            s_add_u32 s{S_T0}, s{S_T0}, s{S_WAVE}
            s_mul_i32 s{S_D}, s{S_T0}, {8192 if self.o.get("hW2") else 12288}
            s_add_u32 s{S_KST}, s{S_D}, 8192
            s_mul_i32 s{S_PAR}, s{S_T0}, 1664
            s_and_b32 s{S_M}, s{S_J}, 7
            s_add_u32 s{S_M}, s{S_M}, {self.o.get("tw2at", 1)}
            """)
            head += f"""
            s_cmp_lg_u32 s{S_A}, s{S_M}
            s_cbranch_scc1 L_A_nt2
            buffer_load_dword v253, v252, s[{R_W2}:{R_W2+3}], s{S_D} offen
            s_mov_b32 exec_hi, 0
            {"" if self.o.get("hW2") else f"buffer_load_dword v253, v252, s[{R_W2}:{R_W2+3}], s{S_KST} offen"}
            s_mov_b32 exec_lo, 0x1fff
            {"" if self.o.get("woLN") else f"buffer_load_dword v253, v252, s[{R_M}:{R_M+3}], s{S_PAR} offen"}
            s_mov_b64 exec, -1
            L_A_nt2:
            """
        if "promA" in self.o:
            head += f"s_cmp_lg_u32 s{S_A}, {self.o['promA']}\ns_cbranch_scc1 L_A_npr\n" + self.pf_rest_plain() + "L_A_npr:\n"
        ta2 = self.o.get("ta2")
        if ta2 == 1:
            a(self.pf_rest())
        elif ta2 == 2:
            bar0 += "\n" + self.pf_rest()
        elif ta2:
            head += f"s_cmp_lg_u32 s{S_A}, {ta2-2}\ns_cbranch_scc1 L_A_npf\n" + self.pf_rest() + "L_A_npf:\n"
        self.pipeline([mk_stage(bar0, head=head, tail=tail), dict(mk_stage(adv, virtual=True), pre=pre)], 5, 30 - 3, wait_every=self.o.get('we', 2))
        self.stamp(2, 16)
        PK, VV, ONES, KVD, ZD = 16, 36, 56, 64, 116
        a("L_A_tail:\ns_waitcnt lgkmcnt(0)\ns_nop 7")
        a(f"s_mov_b32 s{S_K0}, {LOG2E:#x}\ns_mov_b32 s{S_K0+1}, {LOG2E:#x}\ns_mov_b32 s{S_K0+2}, {f2u(1e-6):#x}")

        def phi(base, n, t):
            for i in range(0, n, 4):
                r = base + i
                a(f"v_pk_mul_f32 {vr(t,2)}, {vr(r,2)}, s[{S_K0}:{S_K0+1}]")
                a(f"v_pk_mul_f32 {vr(t+2,2)}, {vr(r+2,2)}, s[{S_K0}:{S_K0+1}]")
                for k in range(4):
                    a(f"v_exp_f32_e64 v{t+k}, v{t+k} clamp")
                for k in range(4):
                    a(f"v_max_f32 v{r+k}, s{S_K0+2}, v{r+k}")
                a(f"v_pk_add_f32 {vr(r,2)}, {vr(r,2)}, {vr(t,2)}")
                a(f"v_pk_add_f32 {vr(r+2,2)}, {vr(r+2,2)}, {vr(t+2,2)}")

        def pack(dst, src0, src1):
            a(f"v_cvt_pk_bf16_f32 v{dst}, v{src0}, v{src0+1}\nv_cvt_pk_bf16_f32 v{dst+1}, v{src0+2}, v{src0+3}")
            if src1 is None:
                a(f"v_mov_b32 v{dst+2}, 0\nv_mov_b32 v{dst+3}, 0")
            else:
                a(f"v_cvt_pk_bf16_f32 v{dst+2}, v{src1}, v{src1+1}\nv_cvt_pk_bf16_f32 v{dst+3}, v{src1+2}, v{src1+3}")

        for b in range(5):
            pack(VV + 4 * b, ACC + (10 + b) * 8, ACC + (10 + b) * 8 + 4)
        for k in range(4):
            a(f"v_mov_b32 v{ONES+k}, 0x3f803f80")
        phi(ACC + 40, 40, 60)
        for b in range(5):
            pack(PK + 4 * b, ACC + (5 + b) * 8, ACC + (5 + b) * 8 + 4)
        a("s_nop 1")
        ZD = ACC + 80
        blocks = [(x, y) for x in range(5) for y in range(5) if abs(x - y) <= 1]
        for (x, y) in blocks:
            a(f"v_mfma_f32_16x16x32_bf16 {vr(KVD+4*(2*x+y),4)}, {vr(PK+4*x,4)}, {vr(VV+4*y,4)}, 0")
        for x in range(5):
            a(f"v_mfma_f32_16x16x32_bf16 {vr(ZD+4*x,4)}, {vr(ONES,4)}, {vr(PK+4*x,4)}, 0")
        a(f"""
        s_mul_i32 s{S_T0}, s{S_WAVE}, {EXCH_ST}
        s_add_u32 s{S_T0}, s{S_T0}, {EXCH}
        v_lshlrev_b32 v60, 4, v1
        v_add_u32 v60, s{S_T0}, v60
        v_and_b32 v61, 15, v1
        v_lshlrev_b32 v61, 2, v61
        v_add_u32 v61, s{S_T0}, v61
        s_nop 3
        """)
        for i in range(13):
            a(f"ds_write_b128 v60, {vr(KVD+4*i,4)} offset:{i*1024}")
        for x in range(5):
            a(f"ds_write_b32 v61, v{ZD+4*x} offset:{13312+64*x}")
        self.stamp(10, 40)
        a("s_waitcnt lgkmcnt(0)\ns_barrier")
        self.stamp(11, 40)
        self.a_reduce_publish(64)
        self.stamp(12, 40)
        a("v_lshlrev_b32 v59, 4, v1\ns_barrier")
        self.stamp(14, 40)
        self.wot_preload(59)
        PQ = 16
        phi(ACC, 40, 60)
        for ts in range(3):
            for rb in range(2):
                pack(PQ + (ts * 2 + rb) * 4, ACC + (2 * ts * 2 + rb) * 4, None if ts == 2 else ACC + ((2 * ts + 1) * 2 + rb) * 4)
        self.f_setup()
        a("s_barrier")
        a(f"""
        v_and_b32 v63, 15, v1
        v_lshlrev_b32 v63, 2, v63
        s_lshl_b32 s{S_T0}, s{S_MT}, 7
        s_lshl_b32 s{S_T0+1}, s{S_WAVE}, 5
        s_add_u32 s{S_T0}, s{S_T0}, s{S_T0+1}
        s_lshl_b32 s{S_T0}, s{S_T0}, 2
        s_add_u32 s{S_T0}, s{S_T0}, {G_OFF}
        buffer_load_dword v62, v63, s[{R_WS}:{R_WS+3}], s{S_T0} offen sc1
        buffer_load_dword v61, v63, s[{R_WS}:{R_WS+3}], s{S_T0} offen offset:64 sc1
        """)
        self.a_gather(64)
        a("s_waitcnt lgkmcnt(0)\ns_barrier")
        self.stamp(4, 40)
        FR = 64
        a("v_lshlrev_b32 v60, 4, v1\nv_add_u32 v60, " + str(KVT) + ", v60")
        used = [0, 2, 3, 4, 5, 7, 8, 9, 10, 11, 12, 13]
        for f in used:
            a(f"ds_read_b128 {vr(FR+4*f,4)}, v60 offset:{f*1024}")
        NUM, DEN = 128, 120
        kts = {0: [0], 1: [0, 1], 2: [0, 1], 3: [1, 2], 4: [1, 2]}
        a(f"""
        v_lshrrev_b32 v40, 4, v1
        v_cmp_gt_u32 s[{S_MSK}:{S_MSK+1}], 1, v40
        v_cmp_gt_u32 s[{S_MSK+2}:{S_MSK+3}], 2, v40
        v_cmp_gt_u32 s[{S_MSK+4}:{S_MSK+5}], 3, v40
        s_waitcnt lgkmcnt(0)
        """)
        for rb in range(2):
            for ts in range(3):
                c = "0" if ts == 0 else vr(DEN + 4 * rb, 4)
                a(f"v_mfma_f32_16x16x32_bf16 {vr(DEN+4*rb,4)}, {vr(FR+4*(11+ts),4)}, {vr(PQ+(ts*2+rb)*4,4)}, {c}")
        for rb in range(2):
            for b in range(5):
                for i, ts in enumerate(kts[b]):
                    d = vr(NUM + (rb * 5 + b) * 4, 4)
                    c = "0" if i == 0 else d
                    a(f"v_mfma_f32_16x16x32_bf16 {d}, {vr(FR+4*(2*b+ts),4)}, {vr(PQ+(ts*2+rb)*4,4)}, {c}")
        for rb in range(2):
            for h in range(4):
                a(f"v_add_f32 v{DEN+4*rb+h}, s{S_K0+2}, v{DEN+4*rb+h}")
        for rb in range(2):
            for h in range(4):
                a(f"v_rcp_f32 v{DEN+4*rb+h}, v{DEN+4*rb+h}")
        a("s_nop 0")
        gv = {0: 62, 1: 61}
        for rb in range(2):
            for h in range(4):
                a(f"v_mul_f32 v{DEN+4*rb+h}, v{gv[rb]}, v{DEN+4*rb+h}")
        a(f"""
        s_lshl_b32 s{S_T0}, s{S_MT}, 3
        s_lshl_b32 s{S_T0+1}, s{S_WAVE}, 1
        s_add_u32 s{S_T0}, s{S_T0}, s{S_T0+1}
        s_mul_i32 s{S_T0}, s{S_T0}, {GO_ST}
        s_add_u32 s{S_T0}, s{S_T0}, {GO}
        s_lshl_b32 s{S_T0+1}, s{S_HG}, 11
        s_add_u32 s{S_T0+1}, s{S_T0+1}, s{S_T0}
        s_lshl_b32 s{S_T0+2}, s{S_HG}, 9
        s_add_u32 s{S_T0+2}, s{S_T0+2}, s{S_T0}
        s_add_u32 s{S_T0+2}, s{S_T0+2}, 16384
        v_lshlrev_b32 v40, 4, v1
        v_lshlrev_b32 v41, 3, v1
        """)
        for rb in range(2):
            d = DEN + 4 * rb
            a(f"v_cndmask_b32 v44, v{d+1}, v{d}, s[{S_MSK}:{S_MSK+1}]")
            a(f"v_cndmask_b32 v45, v{d+2}, v{d+1}, s[{S_MSK+2}:{S_MSK+3}]")
            a(f"v_cndmask_b32 v46, v{d+3}, v{d+2}, s[{S_MSK+4}:{S_MSK+5}]")
            sc = [d, 44, 45, 46, d + 3]
            for b in range(5):
                for k in range(4):
                    r = NUM + (rb * 5 + b) * 4 + k
                    a(f"v_mul_f32 v{r}, v{sc[b]}, v{r}")
            o = 16 + rb * 12
            n0 = NUM + rb * 20
            pack(o, n0, n0 + 4)
            pack(o + 4, n0 + 8, n0 + 12)
            a(f"v_cvt_pk_bf16_f32 v{o+8}, v{n0+16}, v{n0+17}\nv_cvt_pk_bf16_f32 v{o+9}, v{n0+18}, v{n0+19}")
            a(f"buffer_store_dwordx4 {vr(o,4)}, v40, s[{R_WS}:{R_WS+3}], s{S_T0+1} offen sc1")
            a(f"buffer_store_dwordx4 {vr(o+4,4)}, v40, s[{R_WS}:{R_WS+3}], s{S_T0+1} offen offset:1024 sc1")
            a(f"buffer_store_dwordx2 {vr(o+8,2)}, v41, s[{R_WS}:{R_WS+3}], s{S_T0+2} offen sc1")
            if rb == 0:
                a(f"s_add_u32 s{S_T0+1}, s{S_T0+1}, {GO_ST}\ns_add_u32 s{S_T0+2}, s{S_T0+2}, {GO_ST}")
        self.stamp(5, 40)
        a("s_branch L_F_comp")

        a("L_A_loader:")
        VX, VW = 4, 8
        self.srd(R_W, P_WQKV, 640 * 3840)
        a(f"""
        s_sub_u32 s{S_D}, s{S_WAVE}, 4
        v_lshrrev_b32 v16, 3, v1
        v_lshrrev_b32 v17, 4, v1
        v_and_b32 v18, 7, v1
        v_xor_b32 v17, v17, v18
        v_lshlrev_b32 v17, 4, v17
        v_mul_u32_u24 v16, 1280, v16
        v_add_u32 v{VX}, v16, v17
        v_xor_b32 v18, 64, v{VX}
        v_add_u32 v{VX+1}, {8*1280-1024}, v18
        v_add_u32 v{VX+2}, {2*(8*1280-1024)}, v{VX}
        v_add_u32 v{VX+3}, {3*(8*1280-1024)}, v18
        s_lshl_b32 s{S_T0}, s{S_MT}, 7
        s_lshl_b32 s{S_T0+1}, s{S_D}, 5
        s_add_u32 s{S_T0}, s{S_T0}, s{S_T0+1}
        s_mul_i32 s{S_A}, s{S_T0}, 1280
        s_lshl_b32 s{S_C}, s{S_D}, 12
        """)
        def issue_x():
            a(f"s_mov_b32 m0, s{S_C}\ns_nop 0")
            for i in range(4):
                a(f"buffer_load_dwordx4 v{VX+i}, s[{R_X}:{R_X+3}], s{S_A} offen offset:{i*1024} lds")
            a(f"s_add_u32 s{S_A}, s{S_A}, 128")

        def issue_w():
            for g in range(2):
                a(f"s_lshl_b32 s{S_T0}, s{S_D}, 12\ns_add_u32 s{S_T0}, s{S_T0}, s{S_C}\ns_add_u32 m0, s{S_T0}, {A_WOFF + g*4096}\ns_nop 0")
                for i in range(4):
                    a(f"buffer_load_dwordx4 v{VW+4*g+i}, s[{R_W}:{R_W+3}], s{S_B} offen offset:{i*1024} lds")
            a(f"s_add_u32 s{S_B}, s{S_B}, {64*3840}")

        def next_slot():
            a(f"s_add_u32 s{S_C}, s{S_C}, {A_SLOT}\ns_cmp_ge_u32 s{S_C}, {3*A_SLOT}\ns_cselect_b32 s{S_T0}, {3*A_SLOT}, 0\ns_sub_u32 s{S_C}, s{S_C}, s{S_T0}")

        issue_x()
        a(f"""
        v_lshrrev_b32 v16, 5, v1
        v_bfe_u32 v17, v1, 1, 4
        v_and_b32 v18, 1, v1
        v_lshlrev_b32 v18, 4, v18
        v_mul_u32_u24 v19, 3840, v16
        v_add_u32 v18, v18, v19
        """)
        for i in (0, 1, 4, 5):
            sig = (2 * (i & 1)) | ((i >> 2) << 2)
            a(f"""
            v_or_b32 v19, {sig}, v16
            v_xor_b32 v19, v17, v19
            v_min_u32 v19, 14, v19
            v_mul_u32_u24 v20, 13, v19
            v_lshrrev_b32 v20, 6, v20
            v_mul_u32_u24 v20, 1120, v20
            v_lshl_add_u32 v19, v19, 5, v20
            v_add_u32 v19, v19, v18
            v_add_u32 v{VW+i}, {2*i*3840 - (i&3)*1024}, v19
            v_add_u32 v{VW+i+2}, {2*(i+2)*3840 - ((i+2)&3)*1024}, v19
            """)
        a(f"""
        s_mul_i32 s{S_B}, s{S_HG}, 160
        s_mul_i32 s{S_T0}, s{S_D}, {16*3840}
        s_add_u32 s{S_B}, s{S_B}, s{S_T0}
        """)
        issue_w()
        for _ in range(2):
            next_slot()
            issue_x()
            issue_w()
        a(f"s_waitcnt lgkmcnt(0)\ns_add_u32 s{S_TAG}, s{S_TAG}, {TAG_INC:#x}")
        a("s_waitcnt vmcnt(24)\ns_barrier")
        self.stamp(1, 16)
        rotA = self.o.get("rotA")
        if rotA:
            a(f"s_lshl_b32 s{S_M}, s{S_HG}, 1\ns_add_u32 s{S_M}, s{S_M}, s{S_MT}\ns_and_b32 s{S_M}, s{S_M}, 7")
            self.perm_setup(S_M, 7, 8, S_PERM, rotA)
            a(f"s_mov_b32 s{S_KST}, s{S_A}\ns_mov_b32 s{S_PAR}, s{S_B}")
        a(f"s_mov_b32 s{S_CNT}, 1\nL_A_lloop:")
        if rotA:
            a(self.perm_next(S_B, S_PERM, 1))
            a(f"s_lshl_b32 s{S_A}, s{S_B}, 7\ns_add_u32 s{S_A}, s{S_A}, s{S_KST}\ns_mul_i32 s{S_B}, s{S_B}, {64*3840}\ns_add_u32 s{S_B}, s{S_B}, s{S_PAR}")
        a("s_waitcnt vmcnt(12)\ns_barrier")
        self.stamp(16, 16, dyn=S_CNT)
        next_slot()
        issue_x()
        issue_w()
        a(f"s_add_u32 s{S_CNT}, s{S_CNT}, 1\ns_cmp_le_u32 s{S_CNT}, 7\ns_cbranch_scc1 L_A_lloop")
        tw = 3 if self.o.get("tw2") == 1 else 0
        a(f"s_waitcnt vmcnt(12)\ns_barrier")
        if tw:
            self.w2_touch()
        self.stamp(24, 16)
        self.w2_setup()
        self.a_thread_map()
        a(f"""
        s_mul_i32 s{S_T0}, s{S_DTILE}, {FS}
        s_add_u32 s{S_T0}, s{S_T0}, {F_WOT}
        v_mov_b32 v26, s{S_T0}
        v_and_b32 v27, 3, v1
        s_lshl_b32 s{S_T0}, s{S_MT}, 2
        v_add_u32 v27, s{S_T0}, v27
        v_mul_u32_u24 v27, {FS}, v27
        v_add_u32 v27, {F_LN}, v27
        v_cmp_gt_u32 vcc, 32, v1
        s_nop 1
        v_cndmask_b32 v26, v27, v26, vcc
        """)
        a(f"s_waitcnt vmcnt({tw})\ns_barrier")
        a(f"buffer_load_dword v28, v26, s[{R_WS}:{R_WS+3}], 0 offen sc1")
        self.stamp(25, 16)
        self.code_touch([("L_A_tail", 0), ("L_A_post", 0), ("L_F_comp", 0), ("L_F_comp", 1)])
        a("L_A_post:")
        eA = self.o.get("eA", 2)
        early = [3, 4, 5, 0, 1, 2]
        nE = self.o.get("nE", 6)
        sk = self.if_wave56()
        for p in early[:eA]:
            self.w2_issue_at(p)
        a(f"{sk}:\ns_barrier")
        self.stamp(26, 16)
        sk = self.if_wave56()
        for p in early[eA:nE]:
            self.w2_issue_at(p)
        a(f"{sk}:")
        a(f"s_cmp_eq_u32 s{S_WAVE}, 7\ns_cbranch_scc1 L_A_poller")
        a("s_barrier")
        self.a_reduce_publish(64)
        self.stamp(15, 40)
        a("s_barrier")
        self.kvt_zero()
        skip = self.if_wave56()
        for p in early[nE:] + [6, 7]:
            self.w2_issue_at(p)
        a(f"s_mov_b32 s{S_PERM}, s{S_PERM+1}")
        a("s_barrier")
        self.a_gather(64)
        a("s_waitcnt lgkmcnt(0)\ns_barrier")
        a("s_branch L_F_loader")
        a(f"{skip}:\ns_barrier")
        self.a_gather(64)
        a("s_waitcnt lgkmcnt(0)\ns_barrier")
        a("s_branch L_F_u4")
        a("L_A_poller:")
        a(f"s_waitcnt vmcnt(0)\nv_cmp_ne_u32 vcc, s{S_TAG}, v28\ns_nop 1\ns_cmp_eq_u64 vcc, 0\ns_cbranch_scc1 L_A_pok")
        self.poll([26], 18)
        a("L_A_pok:")
        self.stamp(13, 16)
        a("s_barrier\ns_barrier")
        self.kvt_zero()
        self.stamp(3, 16)
        a("s_barrier\ns_barrier")
        a("s_branch L_F_poller")
        self.a_gather_body(64)

    def code_touch(self, ranges):
        a = self.a
        if not self.o.get("ctouch"):
            return 0
        lab, ref = a.label("nct"), a.label("pc")
        a(f"s_cmp_lg_u32 s{S_WAVE}, 7\ns_cbranch_scc1 {lab}\ns_getpc_b64 s[{S_T0}:{S_T0+1}]\n{ref}:\nv_lshlrev_b32 v24, 7, v1")
        for (start, k) in ranges:
            a(f"s_add_u32 s{S_T0+2}, s{S_T0}, {start}-{ref}+{k*8192}\ns_addc_u32 s{S_T0+3}, s{S_T0+1}, {'-1' if start == 'L_A_tail' else '0'}")
            a(f"v_min_u32 v25, L_exit-{start}-{k*8192}, v24\nglobal_load_dword v253, v25, s[{S_T0+2}:{S_T0+3}]")
        a(f"{lab}:")
        return len(ranges)

    def kvt_zero(self):
        a = self.a
        a(f"v_lshlrev_b32 v16, 4, v1\ns_lshl_b32 s{S_T0}, s{S_D}, 12\ns_add_u32 s{S_T0}, s{S_T0}, {KVT}\nv_add_u32 v16, s{S_T0}, v16")
        a("v_mov_b32 v20, 0\nv_mov_b32 v21, 0\nv_mov_b32 v22, 0\nv_mov_b32 v23, 0")
        for i in range(4):
            a(f"ds_write_b128 v16, v[20:23] offset:{i*1024}")
        a("s_waitcnt lgkmcnt(0)")

    def start_prefetch(self):
        a = self.a
        self.srd(R_W, P_WQKV, 640 * 3840)
        a(f"""
        s_lshl_b32 s{S_T0}, s{S_J}, 2
        s_add_u32 s{S_T0}, s{S_T0}, s{S_WAVE}
        v_lshrrev_b32 v16, 2, v1
        v_and_b32 v17, 3, v1
        v_mul_u32_u24 v16, 1280, v16
        v_lshl_add_u32 v16, v17, 7, v16
        s_lshr_b32 s{S_T0+2}, s{S_MT}, 3
        s_lshl_b32 s{S_T0+2}, s{S_T0+2}, 7
        s_add_u32 s{S_T0+2}, s{S_T0+2}, s{S_T0}
        s_mul_i32 s{S_DT}, s{S_T0+2}, {8*1280}
        v_lshrrev_b32 v19, 4, v1
        v_and_b32 v17, 15, v1
        v_min_u32 v17, 14, v17
        v_mul_u32_u24 v18, 13, v17
        v_lshrrev_b32 v18, 6, v18
        v_mul_u32_u24 v18, 640, v18
        v_lshl_add_u32 v18, v17, 7, v18
        v_mul_u32_u24 v19, 3840, v19
        v_add_u32 v112, v18, v19
        s_lshr_b32 s{S_T0+2}, s{S_HG}, 2
        s_mul_i32 s{S_T0+2}, s{S_T0+2}, 640
        s_mul_i32 s{S_FT}, s{S_T0}, {2*3840}
        s_add_u32 s{S_FT}, s{S_FT}, s{S_T0+2}
        """)
        if self.o.get("ta1"):
            a(f"""
            s_mov_b32 exec_hi, 0
            buffer_load_dword v253, v112, s[{R_W}:{R_W+3}], s{S_FT} offen {self.nt('nta')}
            buffer_load_dword v253, v16, s[{R_X}:{R_X+3}], s{S_DT} offen {self.nt('ntax')}
            s_mov_b32 exec_hi, -1
            """)
        a(f"""
        s_mul_i32 s{S_FT}, s{S_T0}, {3*3840}
        s_add_u32 s{S_FT}, s{S_FT}, s{S_T0+2}
        s_add_u32 s{S_FT}, s{S_FT}, {256*3840}
        v_lshrrev_b32 v16, 3, v1
        v_and_b32 v17, 7, v1
        v_min_u32 v17, 5, v17
        v_mul_u32_u24 v16, 1280, v16
        v_lshl_add_u32 v113, v17, 7, v16
        s_add_u32 s{S_DT}, s{S_DT}, 512
        """)

    def pf_rest_plain(self):
        return f"""s_waitcnt vmcnt(0)
        s_mov_b32 exec_hi, 0xffff
        buffer_load_dword v253, v112, s[{R_W}:{R_W+3}], s{S_FT} offen
        s_mov_b32 exec_hi, -1
        buffer_load_dword v253, v113, s[{R_X}:{R_X+3}], s{S_DT} offen
        """

    def pf_rest(self):
        return f"""s_mov_b32 exec_hi, 0xffff
        buffer_load_dword v253, v112, s[{R_W}:{R_W+3}], s{S_FT} offen {self.nt('nta')}
        s_mov_b32 exec_hi, -1
        buffer_load_dword v253, v113, s[{R_X}:{R_X+3}], s{S_DT} offen {self.nt('ntax')}
        """

    def w2_touch(self):
        a = self.a
        self.srd(R_W2, P_W2, 1536 * 4096)
        a(f"""
        v_lshlrev_b32 v48, 7, v1
        s_lshl_b32 s{S_T0}, s{S_MT}, 3
        s_add_u32 s{S_T0}, s{S_T0}, s{S_HG}
        s_lshl_b32 s{S_T0}, s{S_T0}, 2
        s_add_u32 s{S_T0}, s{S_T0}, s{S_D}
        s_mul_i32 s{S_T0}, s{S_T0}, 12288
        buffer_load_dword v253, v48, s[{R_W2}:{R_W2+3}], s{S_T0} offen
        s_add_u32 s{S_T0}, s{S_T0}, 8192
        s_mov_b32 exec_hi, 0
        buffer_load_dword v253, v48, s[{R_W2}:{R_W2+3}], s{S_T0} offen
        """)
        self.srd(R_P, P_WO, 640 * 1280)
        a(f"""
        s_lshl_b32 s{S_T0}, s{S_MT}, 3
        s_add_u32 s{S_T0}, s{S_T0}, s{S_HG}
        s_lshl_b32 s{S_T0}, s{S_T0}, 2
        s_add_u32 s{S_T0}, s{S_T0}, s{S_D}
        s_mul_i32 s{S_T0}, s{S_T0}, 1664
        s_mov_b32 exec_lo, 0x1fff
        buffer_load_dword v253, v48, s[{R_P}:{R_P+3}], s{S_T0} offen
        s_mov_b64 exec, -1
        """)

    def tlb_warm(self):
        a = self.a
        mode = self.o["tlb"]
        wv = self.o.get("tlbw", 3)
        a(f"s_cmp_lg_u32 s{S_WAVE}, {wv}\ns_cbranch_scc1 L_notlb")
        self.srd(R_OUT, P_OUT, 2048 * 1280)
        self.srd(R_M, P_B2, 4096)
        self.srd(R_P, P_WO, 640 * 1280)
        self.srd(R_W, P_W1, 2048 * 3072)
        if mode == 1:
            a("v_lshlrev_b32 v4, 20, v1\nv_min_u32 v4, 0xf00000, v4\ns_mov_b64 exec, 0xffff")
            so = "0"
        else:
            a(f"v_lshlrev_b32 v4, 21, v1\ns_lshl_b32 s{S_T0}, s{S_J}, 16\ns_mov_b64 exec, 0x1f")
            so = f"s{S_T0}"
        for r in (R_WS, R_W2, R_OUT, R_W, R_P, R_M):
            a(f"buffer_load_dword v253, v4, s[{r}:{r+3}], {so} offen sc1")
        a("s_mov_b64 exec, -1\nL_notlb:")

    def code_prefetch(self):
        a = self.a
        a(f"""
        s_cmp_lg_u32 s{S_WAVE}, 3
        s_cbranch_scc1 L_nocpf
        s_cmp_ge_u32 s{S_J}, 5
        s_cbranch_scc1 L_nocpf
        s_getpc_b64 s[{S_T0}:{S_T0+1}]
        L_pcref:
        s_lshl_b32 s{S_T0+2}, s{S_J}, 13
        v_lshlrev_b32 v4, 7, v1
        v_add_u32 v4, s{S_T0+2}, v4
        v_min_u32 v4, L_end-L_pcref, v4
        global_load_dword v253, v4, s[{S_T0}:{S_T0+1}]
        L_nocpf:
        """)

    def a_thread_map(self):
        a = self.a
        a(f"""
        v_mul_u32_u24 v16, 625, v0
        v_lshrrev_b32 v16, 16, v16
        v_mul_u32_u24 v17, 105, v16
        v_sub_u32 v17, v0, v17
        v_mul_u32_u24 v19, 205, v17
        v_lshrrev_b32 v19, 12, v19
        v_mul_u32_u24 v18, 20, v19
        v_cmp_lt_u32 vcc, 99, v17
        v_sub_u32 v18, v17, v18
        s_nop 0
        v_cndmask_b32 v19, v19, v18, vcc
        v_mad_u32_u24 v19, v16, 5, v19
        v_mad_u32_u24 v20, v16, 20, v18
        v_lshrrev_b32 v21, 2, v19
        v_and_b32 v22, 3, v19
        v_lshrrev_b32 v23, 4, v20
        v_and_b32 v20, 15, v20
        v_lshl_add_u32 v20, v22, 4, v20
        v_lshl_add_u32 v2, v21, 1, v23
        v_lshlrev_b32 v2, 6, v2
        v_add_u32 v2, v2, v20
        v_lshlrev_b32 v2, 4, v2
        v_lshlrev_b32 v3, 4, v19
        v_add_u32 v3, 13312, v3
        v_cmp_lt_u32 vcc, 99, v17
        v_lshrrev_b32 v24, 1, v21
        v_and_b32 v21, 1, v21
        v_cndmask_b32 v2, v2, v3, vcc
        v_lshl_add_u32 v3, v23, 1, v24
        v_add_u32 v24, 11, v24
        v_lshl_add_u32 v22, v22, 4, v16
        v_cndmask_b32 v3, v3, v24, vcc
        v_cndmask_b32 v20, v20, v22, vcc
        v_lshl_add_u32 v3, v3, 6, v20
        v_lshlrev_b32 v3, 4, v3
        v_lshl_add_u32 v3, v21, 3, v3
        v_add_u32 v3, {KVT}, v3
        v_mov_b32 v25, 2
        v_cndmask_b32 v25, 1, v25, vcc
        v_mov_b32 v16, 420
        v_cmp_gt_u32 vcc, v16, v0
        v_lshlrev_b32 v14, 4, v0
        s_nop 0
        v_cndmask_b32 v15, 0, v25, vcc
        v_cndmask_b32 v2, 0, v2, vcc
        v_add_u32 v2, {EXCH}, v2
        """)

    def a_reduce_publish(self, T):
        a = self.a
        for w in range(4):
            a(f"ds_read_b128 {vr(T+4*w,4)}, v2 offset:{w*EXCH_ST}")
        a(f"""
        s_lshl_b32 s{S_T0}, s{S_HG}, 4
        s_add_u32 s{S_T0}, s{S_T0}, s{S_MT}
        s_mul_i32 s{S_T0}, s{S_T0}, {KVP_ST}
        s_add_u32 s{S_T0}, s{S_T0}, {KVP}
        v_cmp_ne_u32 vcc, 0, v15
        s_waitcnt lgkmcnt(0)
        v_pk_add_f32 {vr(T,2)}, {vr(T,2)}, {vr(T+4,2)}
        v_pk_add_f32 {vr(T+2,2)}, {vr(T+2,2)}, {vr(T+6,2)}
        v_pk_add_f32 {vr(T+8,2)}, {vr(T+8,2)}, {vr(T+12,2)}
        v_pk_add_f32 {vr(T+10,2)}, {vr(T+10,2)}, {vr(T+14,2)}
        v_pk_add_f32 {vr(T,2)}, {vr(T,2)}, {vr(T+8,2)}
        v_pk_add_f32 {vr(T+2,2)}, {vr(T+2,2)}, {vr(T+10,2)}
        v_mov_b32_sdwa v{T}, s{S_TAG} dst_sel:BYTE_0 dst_unused:UNUSED_PRESERVE src0_sel:BYTE_0
        v_mov_b32_sdwa v{T+1}, s{S_TAG} dst_sel:BYTE_0 dst_unused:UNUSED_PRESERVE src0_sel:BYTE_1
        v_mov_b32_sdwa v{T+2}, s{S_TAG} dst_sel:BYTE_0 dst_unused:UNUSED_PRESERVE src0_sel:BYTE_2
        v_mov_b32_sdwa v{T+3}, s{S_TAG} dst_sel:BYTE_0 dst_unused:UNUSED_PRESERVE src0_sel:BYTE_3
        s_mov_b64 exec, vcc
        buffer_store_dwordx4 {vr(T,4)}, v14, s[{R_WS}:{R_WS+3}], s{S_T0} offen sc1
        s_mov_b64 exec, -1
        """)

    S_RET = 88

    def a_gather(self, T):
        self.a(f"s_call_b64 s[{self.S_RET}:{self.S_RET+1}], L_gather")

    def a_gather_body(self, T):
        a = self.a
        MK = S_T0 + 4
        a("L_gather:")
        a(f"s_mul_i32 s{S_T0+1}, s{S_HG}, {16*KVP_ST}\ns_add_u32 s{S_T0+1}, s{S_T0+1}, {KVP}")
        a(f"v_cmp_ne_u32 s[{MK}:{MK+1}], 0, v15\ns_mov_b32 s{S_CNT}, 0\ns_lshl_b32 s{S_T0+2}, s{S_MT}, 1\ns_mov_b64 exec, s[{MK}:{MK+1}]")

        def pair(m):
            a(f"s_add_u32 s{S_T0}, s{S_T0+2}, {m}\ns_and_b32 s{S_T0}, s{S_T0}, 15\ns_mul_i32 s{S_T0}, s{S_T0}, {KVP_ST}\ns_add_u32 s{S_T0}, s{S_T0}, s{S_T0+1}")
            a(f"buffer_load_dwordx4 {vr(T+4*m,4)}, v14, s[{R_WS}:{R_WS+3}], s{S_T0} offen sc1\ns_add_u32 s{S_T0}, s{S_T0}, {KVP_ST}")
            a(f"buffer_load_dwordx4 {vr(T+4*m+4,4)}, v14, s[{R_WS}:{R_WS+3}], s{S_T0} offen sc1")
        for m in range(0, 16, 2):
            pair(m)
        for m in range(0, 16, 2):
            a(f"s_waitcnt vmcnt({14-m})\nL_gchk{m}:")
            for q in range(8):
                a(f"v_cmpx_eq_u32_sdwa vcc, v{T+4*m+q}, s{S_TAG} src0_sel:BYTE_0 src1_sel:BYTE_{q & 3}")
            a(f"""
            s_add_u32 s{S_CNT}, s{S_CNT}, 1
            s_cmp_eq_u64 exec, s[{MK}:{MK+1}]
            s_mov_b64 exec, s[{MK}:{MK+1}]
            s_cbranch_scc1 L_gok{m}
            s_cmp_ge_u32 s{S_CNT}, {SPIN_LIMIT}
            s_cbranch_scc1 L_gok{m}
            """)
            pair(m)
            a(f"s_waitcnt vmcnt(0)\ns_branch L_gchk{m}\nL_gok{m}:")
            for q in range(8):
                a(f"v_and_b32 v{T+4*m+q}, 0xffffff00, v{T+4*m+q}")
            for h in (0, 2):
                a(f"v_pk_add_f32 {vr(T+4*m+h,2)}, {vr(T+4*m+h,2)}, {vr(T+4*(m+1)+h,2)}")
            if m >= 2:
                for h in (0, 2):
                    a(f"v_pk_add_f32 {vr(T+h,2)}, {vr(T+h,2)}, {vr(T+4*m+h,2)}")
        a("s_mov_b64 exec, -1")
        a(f"""
        v_cvt_pk_bf16_f32 v{T}, v{T}, v{T+1}
        v_cvt_pk_bf16_f32 v{T+1}, v{T+2}, v{T+3}
        v_cmp_ne_u32 vcc, 0, v15
        v_cmp_eq_u32 s[{S_T0}:{S_T0+1}], 2, v15
        s_nop 1
        s_mov_b64 exec, vcc
        ds_write_b64 v3, {vr(T,2)}
        s_mov_b64 exec, s[{S_T0}:{S_T0+1}]
        ds_write_b64 v3, {vr(T,2)} offset:64
        ds_write_b64 v3, {vr(T,2)} offset:128
        ds_write_b64 v3, {vr(T,2)} offset:192
        s_mov_b64 exec, -1
        s_setpc_b64 s[{self.S_RET}:{self.S_RET+1}]
        """)

    def role_b(self):
        a = self.a
        a(f"L_roleB:\ns_mov_b32 s{S_FROMA}, 0")
        XR, B1R, GR, XS = 16, 36, 64, 84
        VPF = 8
        a(f"s_cmp_ge_u32 s{S_J}, 16\ns_cbranch_scc1 L_B_pfrole")
        a(f"""
        s_lshl_b32 s{S_KST}, s{S_XCD}, 4
        s_add_u32 s{S_KST}, s{S_KST}, s{S_J}
        s_lshl_b32 s{S_T0}, s{S_KST}, 3
        s_add_u32 s{S_T0}, s{S_T0}, s{S_WAVE}
        s_mul_i32 s{S_T0}, s{S_T0}, {4*1280}
        v_lshrrev_b32 v2, 4, v1
        v_and_b32 v3, 15, v1
        v_lshlrev_b32 v3, 4, v3
        v_mul_u32_u24 v4, 1280, v2
        v_add_u32 v4, v4, v3
        """)
        for c in ((2, 3, 4, 0, 1) if self.o.get("xord") else range(5)):
            a(f"buffer_load_dwordx4 {vr(XR+4*c,4)}, v4, s[{R_X}:{R_X+3}], s{S_T0} offen offset:{c*256} {self.nt('ntx')}")
        self.srd(R_M, P_GATE, 1280)
        for c in range(5):
            a(f"buffer_load_dwordx4 {vr(GR+4*c,4)}, v3, s[{R_M}:{R_M+3}], 0 offen offset:{c*256}")

        def common_setup():
            a(f"""
            s_mul_i32 s{S_M}, s{S_J}, 205
            s_lshr_b32 s{S_M}, s{S_M}, 10
            s_mul_i32 s{S_DT}, s{S_M}, 5
            s_sub_u32 s{S_DT}, s{S_J}, s{S_DT}
            s_mul_i32 s{S_FT}, s{S_XCD}, 6
            s_add_u32 s{S_FT}, s{S_FT}, s{S_M}
            """)
            self.srd(R_OUT, P_B1, 3072)
            a(f"v_lshrrev_b32 v5, 4, v1\nv_lshlrev_b32 v5, 3, v5\ns_lshl_b32 s{S_T0}, s{S_FT}, 7")
            for b in range(4):
                a(f"buffer_load_dwordx2 {vr(B1R+2*b,2)}, v5, s[{R_OUT}:{R_OUT+3}], s{S_T0} offen offset:{b*32}")
            a(f"""
            v_lshrrev_b32 v12, 3, v1
            v_lshrrev_b32 v13, 4, v1
            v_lshlrev_b32 v13, 1, v13
            v_and_b32 v14, 7, v1
            v_xor_b32 v13, v13, v14
            v_lshlrev_b32 v13, 4, v13
            v_mul_u32_u24 v12, 3072, v12
            v_add_u32 v{VPF}, v12, v13
            v_add_u32 v{VPF+1}, {8*3072-1024}, v{VPF}
            v_add_u32 v{VPF+2}, {2*(8*3072-1024)}, v{VPF}
            v_add_u32 v{VPF+3}, {3*(8*3072-1024)}, v{VPF}
            """)
            self.perm_setup(S_M, 16, 6, S_PERM, self.o.get("rotB"))
            a(f"""
            s_and_b32 s{S_T0}, s{S_WAVE}, 3
            s_lshl_b32 s{S_B}, s{S_T0}, 12
            s_mul_i32 s{S_A}, s{S_T0}, {32*3072}
            s_lshl_b32 s{S_T0}, s{S_FT}, 7
            s_add_u32 s{S_A}, s{S_A}, s{S_T0}
            """)

        def w1_at(p):
            a(f"s_bfe_u32 s{S_T0}, s{S_PERM}, {(4 << 16) | (4 * p):#x}\ns_mul_i32 s{S_T0}, s{S_T0}, {128*3072}")
            a(f"s_add_u32 m0, s{S_B}, {p*16384}\ns_add_u32 s{S_T0}, s{S_T0}, s{S_A}")
            for i in range(4):
                a(f"buffer_load_dwordx4 v{VPF+i}, s[{R_W}:{R_W+3}], s{S_T0} offen offset:{i*1024} lds")
        early = [3, 4, 5, 6, 7][:self.o.get("early", 0)]

        def wq_touch():
            self.srd(R_M, P_WQKV, 640 * 3840)
            a(f"""
            v_lshlrev_b32 v6, 7, v1
            s_mul_i32 s{S_T0+1}, s{S_T0+1}, 2880
            s_add_u32 s{S_T0+1}, s{S_T0+1}, {256*3840}
            s_mov_b64 exec, 0xffffff
            buffer_load_dword v253, v6, s[{R_M}:{R_M+3}], s{S_T0+1} offen
            s_mov_b64 exec, -1
            """)

        self.srd(R_W, P_W1, 2048 * 3072)
        common_setup()
        a("v_mov_b32 v124, 0\nv_mov_b32 v125, 0\nv_mov_b32 v126, 0x3f803f80\ns_waitcnt vmcnt(4)")
        self.stamp(11, 44)
        if early:
            a(f"s_cmp_lt_u32 s{S_WAVE}, 4\ns_cbranch_scc1 L_B_noearly")
            for p in early:
                w1_at(p)
            a("L_B_noearly:")
        for c in range(20):
            a(f"v_dot2c_f32_bf16 v124, v{XR+c}, v126\nv_lshlrev_b32 v{XS+2*c}, 16, v{XR+c}")
            a(f"v_dot2c_f32_bf16 v125, v{XR+c}, v{GR+c}\nv_and_b32 v{XS+2*c+1}, 0xffff0000, v{XR+c}")
        a("s_nop 1")

        def reduce16(regs):
            for mode in ("quad_perm:[1,0,3,2]", "quad_perm:[2,3,0,1]", "row_half_mirror", "row_mirror"):
                for r in regs:
                    a(f"v_add_f32_dpp v{r}, v{r}, v{r} {mode} row_mask:0xf bank_mask:0xf")
                a("s_nop 1" if len(regs) == 1 else "s_nop 0")

        reduce16([124, 125])
        a(f"""
        v_mul_f32 v126, {f2u(-1.0/640):#x}, v124
        v_mul_f32 v127, {f2u(-1.0/640):#x}, v124
        v_mul_f32 v125, {f2u(-1.4426950408889634):#x}, v125
        v_mov_b32 v128, 0
        v_mov_b32 v129, 0
        v_mov_b32 v130, 0
        v_mov_b32 v131, 0
        v_mov_b32 v132, 0
        v_mov_b32 v133, 0
        v_mov_b32 v134, 0
        v_mov_b32 v135, 0
        v_exp_f32 v125, v125
        """)
        for c in range(20):
            a(f"v_pk_add_f32 {vr(XS+2*c,2)}, {vr(XS+2*c,2)}, v[126:127]")
        a("v_add_f32 v125, 1.0, v125\nv_rcp_f32 v125, v125")
        for c in range(20):
            t = 128 + 2 * (c & 3)
            a(f"v_pk_fma_f32 {vr(t,2)}, {vr(XS+2*c,2)}, {vr(XS+2*c,2)}, {vr(t,2)}")
        a("v_pk_add_f32 v[128:129], v[128:129], v[130:131]\nv_pk_add_f32 v[132:133], v[132:133], v[134:135]\nv_pk_add_f32 v[128:129], v[128:129], v[132:133]\nv_add_f32 v128, v128, v129\ns_nop 1")
        reduce16([128])
        a(f"v_mov_b32 v126, {f2u(1e-5):#x}\nv_fmac_f32 v126, {f2u(1.0/640):#x}, v128\nv_rsq_f32 v126, v126")
        a(f"""
        s_lshl_b32 s{S_T0}, s{S_WAVE}, 2
        v_add_u32 v2, s{S_T0}, v2
        v_mov_b32 v127, v126
        v_mul_u32_u24 v4, {LN_ST}, v2
        v_add_u32 v4, v4, v3
        v_lshlrev_b32 v2, 2, v2
        """)
        for c4 in range(5):
            for c in range(4 * c4, 4 * c4 + 4):
                a(f"v_pk_mul_f32 {vr(XS+2*c,2)}, {vr(XS+2*c,2)}, v[126:127]")
            for c in range(4 * c4, 4 * c4 + 4):
                a(f"v_cvt_pk_bf16_f32 v{XR+c}, v{XS+2*c}, v{XS+2*c+1}")
            a(f"ds_write_b128 v4, {vr(XR+4*c4,4)} offset:{LNBUF + c4*256}")
        a(f"ds_write_b32 v2, v125 offset:{LNG}")
        a(f"""
        v_and_b32 v12, 15, v1
        v_lshrrev_b32 v13, 4, v1
        v_lshrrev_b32 v15, 2, v12
        v_lshl_add_u32 v15, v13, 2, v15
        v_mul_u32_u24 v15, {LN_ST}, v15
        v_and_b32 v2, 3, v12
        v_lshl_add_u32 v15, v2, 3, v15
        s_mul_i32 s{S_T0}, s{S_WAVE}, 160
        v_add_u32 v15, s{S_T0}, v15
        v_lshlrev_b32 v14, 4, v1
        v_lshlrev_b32 v2, 2, v1
        s_mul_i32 s{S_T0}, s{S_WAVE}, {5*65536}
        s_lshl_b32 s{S_T0+1}, s{S_KST}, 10
        s_add_u32 s{S_T0}, s{S_T0}, s{S_T0+1}
        s_add_u32 s{S_T0}, s{S_T0}, {HT}
        s_waitcnt lgkmcnt(0)
        s_add_u32 s{S_TAG}, s{S_TAG}, {TAG_INC:#x}
        s_barrier
        """)
        self.stamp(12, 44)
        for i in range(5):
            a(f"ds_read_b64_tr_b16 {vr(44+4*i,2)}, v15 offset:{LNBUF + i*32}")
            a(f"ds_read_b64_tr_b16 {vr(46+4*i,2)}, v15 offset:{LNBUF + i*32+16*LN_ST}")
        a(f"ds_read_b32 v125, v2 offset:{LNG}")
        for i in range(5):
            a(f"s_waitcnt lgkmcnt({9-2*i})")
            a(f"buffer_store_dwordx4 {vr(44+4*i,4)}, v14, s[{R_WS}:{R_WS+3}], s{S_T0} offen sc1")
            if i < 4:
                a(f"s_add_u32 s{S_T0}, s{S_T0}, 65536")
        a(f"""
        s_cmp_lg_u32 s{S_WAVE}, 0
        s_cbranch_scc1 L_B_nog
        s_lshl_b32 s{S_T0}, s{S_KST}, 7
        s_add_u32 s{S_T0}, s{S_T0}, {G_OFF}
        s_waitcnt lgkmcnt(0)
        s_mov_b32 exec_hi, 0
        buffer_store_dword v125, v2, s[{R_WS}:{R_WS+3}], s{S_T0} offen sc1
        s_mov_b32 exec_hi, -1
        L_B_nog:
        s_waitcnt vmcnt(0) lgkmcnt(0)
        s_barrier
        s_cmp_lg_u32 s{S_WAVE}, 0
        s_cbranch_scc1 L_B_nofl
        s_mul_i32 s{S_T0}, s{S_KST}, {FS}
        s_add_u32 s{S_T0}, s{S_T0}, {F_LN}
        """)
        self.flag_store(S_T0, 12)
        self.stamp(1, 12)
        a("L_B_nofl:")
        if self.o.get("woLN"):
            self.srd(R_M, P_WO, 640 * 1280)
            a(f"""
            s_lshl_b32 s{S_T0+1}, s{S_KST}, 3
            s_add_u32 s{S_T0+1}, s{S_T0+1}, s{S_WAVE}
            s_mul_i32 s{S_T0+1}, s{S_T0+1}, 1664
            v_lshlrev_b32 v6, 7, v1
            s_mov_b64 exec, 0x1fff
            buffer_load_dword v253, v6, s[{R_M}:{R_M+3}], s{S_T0+1} offen
            s_mov_b64 exec, -1
            """)
        if self.o.get("wq") == 1:
            a(f"s_lshl_b32 s{S_T0+1}, s{S_KST}, 3\ns_add_u32 s{S_T0+1}, s{S_T0+1}, s{S_WAVE}")
            wq_touch()
        if self.o.get("wq") == 3:
            a(f"""
            s_lshl_b32 s{S_T0}, s{S_J}, 3
            s_add_u32 s{S_T0}, s{S_T0}, s{S_WAVE}
            s_add_u32 s{S_T0}, s{S_T0}, 128
            v_lshrrev_b32 v6, 3, v1
            v_and_b32 v7, 7, v1
            v_min_u32 v7, 5, v7
            v_mul_u32_u24 v6, 3072, v6
            v_lshl_add_u32 v7, v7, 7, v6
            s_mul_i32 s{S_T0}, s{S_T0}, {8*3072}
            s_mul_i32 s{S_T0+2}, s{S_XCD}, 768
            s_add_u32 s{S_T0}, s{S_T0}, s{S_T0+2}
            buffer_load_dword v253, v7, s[{R_W}:{R_W+3}], s{S_T0} offen {self.nt('ntw1')}
            """)
        a("s_branch L_B_join")
        a("L_B_pfrole:")
        self.srd(R_W, P_W1, 2048 * 3072)
        if self.o.get("pfdelay"):
            common_setup()
            a("s_waitcnt vmcnt(0)")
        wq = self.o.get("wq", 0)
        xh = self.o.get("xhelp", 0)
        if xh:
            self.srd(R_M, P_GATE, 1280)
            a(f"""
            s_cmp_ge_u32 s{S_WAVE}, {xh}
            s_cbranch_scc1 L_B_noxh
            s_lshl_b32 s{S_T0}, s{S_XCD}, 4
            s_add_u32 s{S_T0}, s{S_T0}, s{S_J}
            s_sub_u32 s{S_T0}, s{S_T0}, 16
            s_mul_i32 s{S_T0}, s{S_T0}, {32*1280}
            s_lshl_b32 s{S_T0+1}, s{S_WAVE}, 8
            s_sub_u32 s{S_T0}, s{S_T0}, s{S_T0+1}
            s_add_u32 s{S_T0}, s{S_T0}, 1024
            v_lshrrev_b32 v6, 1, v1
            v_and_b32 v7, 1, v1
            v_mul_u32_u24 v6, 1280, v6
            v_lshl_add_u32 v6, v7, 7, v6
            buffer_load_dword v253, v6, s[{R_X}:{R_X+3}], s{S_T0} offen
            v_lshlrev_b32 v6, 7, v1
            L_B_noxh:
            s_cmp_lg_u32 s{S_WAVE}, 7
            s_cbranch_scc1 L_B_noxg
            v_lshlrev_b32 v6, 7, v1
            buffer_load_dword v253, v6, s[{R_M}:{R_M+3}], 0 offen
            L_B_noxg:
            """)
        a(f"""
        s_sub_u32 s{S_T0}, s{S_J}, 16
        s_lshl_b32 s{S_T0}, s{S_T0}, 3
        s_add_u32 s{S_T0}, s{S_T0}, s{S_WAVE}
        s_lshl_b32 s{S_T0+1}, s{S_XCD}, 7
        s_add_u32 s{S_T0+1}, s{S_T0+1}, s{S_T0}
        v_lshrrev_b32 v6, 3, v1
        v_and_b32 v7, 7, v1
        v_min_u32 v7, 5, v7
        v_mul_u32_u24 v6, 3072, v6
        v_lshl_add_u32 v7, v7, 7, v6
        s_mul_i32 s{S_T0}, s{S_T0}, {8*3072}
        s_mul_i32 s{S_T0+2}, s{S_XCD}, 768
        s_add_u32 s{S_T0}, s{S_T0}, s{S_T0+2}
        buffer_load_dword v253, v7, s[{R_W}:{R_W+3}], s{S_T0} offen {self.nt('ntw1')}
        """)
        if wq in (0, 3):
            wq_touch()
        if wq != 3:
            a(f"""
            s_add_u32 s{S_T0}, s{S_T0}, {1024*3072}
            buffer_load_dword v253, v7, s[{R_W}:{R_W+3}], s{S_T0} offen {self.nt('ntw1b')}
            """)
        if self.o.get("promote"):
            k_ = 1 if wq != 3 else 0
            a(f"""
            s_sub_u32 s{S_T0+1}, s{S_T0}, {1024*3072*k_}
            s_waitcnt vmcnt({k_ + (1 if wq in (0, 3) else 0)})
            buffer_load_dword v253, v7, s[{R_W}:{R_W+3}], s{S_T0+1} offen
            """)
            if self.o.get("ntw1b"):
                a(f"s_waitcnt vmcnt(1)\nbuffer_load_dword v253, v7, s[{R_W}:{R_W+3}], s{S_T0} offen")
        if not self.o.get("pfdelay"):
            common_setup()
        self.stamp(15, 12)
        a(f"s_waitcnt lgkmcnt(0)\ns_add_u32 s{S_TAG}, s{S_TAG}, {TAG_INC:#x}")
        a(f"s_cmp_ge_u32 s{S_J}, 30\ns_cbranch_scc1 L_helper")
        N1 = self.o.get("n1", 8)
        NREG = self.o.get("nreg", 0)
        assert NREG == 0 or N1 == 8

        def w1_issue():
            t = self.perm_next(S_T0, S_PERM, 128 * 3072)
            t += f"s_mov_b32 m0, s{S_B}\ns_add_u32 s{S_T0}, s{S_T0}, s{S_A}\n"
            for i in range(4):
                t += f"buffer_load_dwordx4 v{VPF+i}, s[{R_W}:{R_W+3}], s{S_T0} offen offset:{i*1024} lds\n"
            t += f"s_add_u32 s{S_B}, s{S_B}, 16384\n"
            return t
        assert N1 == 8 and NREG == 0
        a(f"L_B_join:\ns_cmp_lt_u32 s{S_WAVE}, 4\ns_cbranch_scc1 L_B_comp0")
        for p in range(8):
            if early and p == early[0]:
                a(f"s_cmp_lt_u32 s{S_J}, 16\ns_cbranch_scc1 L_B_skipearly")
            w1_at(p)
            if early and p == early[-1]:
                a("L_B_skipearly:")
        a(f"s_mov_b32 s{S_PERM}, s{S_PERM+1}")
        a("s_branch L_B_aux\nL_B_comp0:")
        BF = 16
        GX = 131072
        split = self.o.get("gsplit")

        def gelu_setup(dblk_off):
            c = 0.7978845608028654
            k0 = -2.0 * c * 1.4426950408889634
            k1 = k0 * 0.044715
            a(f"""
            s_mov_b32 s{S_K0}, {f2u(k1):#x}
            s_mov_b32 s{S_K0+1}, {f2u(k1):#x}
            v_mov_b32 v44, {f2u(k0):#x}
            v_mov_b32 v45, {f2u(k0):#x}
            v_mov_b32 v46, 1.0
            v_mov_b32 v47, 1.0
            s_lshl_b32 s{S_K0+2}, s{S_DT}, 3
            s_lshl_b32 s{S_T0+1}, s{S_WAVE}, 1
            s_add_u32 s{S_K0+2}, s{S_K0+2}, s{S_T0+1}
            s_add_u32 s{S_K0+2}, s{S_K0+2}, {dblk_off & 0xffffffff:#x}
            s_mul_i32 s{S_K0+2}, s{S_K0+2}, {UW_ST}
            s_lshl_b32 s{S_T0+1}, s{S_FT}, 11
            s_add_u32 s{S_K0+2}, s{S_K0+2}, s{S_T0+1}
            s_add_u32 s{S_K0+2}, s{S_K0+2}, {UW}
            """)
            for b in range(4):
                a(f"v_lshlrev_b32 v{BF+4*b}, 16, v{B1R+2*b}\nv_and_b32 v{BF+4*b+1}, 0xffff0000, v{B1R+2*b}")
                a(f"v_lshlrev_b32 v{BF+4*b+2}, 16, v{B1R+2*b+1}\nv_and_b32 v{BF+4*b+3}, 0xffff0000, v{B1R+2*b+1}")

        def gelu_block(base, vl):
            for p in range(2):
                r = base + 8 * p
                T = 48
                for q in range(4):
                    a(f"v_pk_mul_f32 {vr(T+2*q,2)}, {vr(r+2*q,2)}, {vr(r+2*q,2)}")
                for q in range(4):
                    a(f"v_pk_fma_f32 {vr(T+2*q,2)}, {vr(T+2*q,2)}, s[{S_K0}:{S_K0+1}], v[44:45]")
                for q in range(4):
                    a(f"v_pk_mul_f32 {vr(T+2*q,2)}, {vr(T+2*q,2)}, {vr(r+2*q,2)}")
                for q in range(8):
                    a(f"v_exp_f32 v{T+q}, v{T+q}")
                for q in range(4):
                    a(f"v_pk_add_f32 {vr(T+2*q,2)}, {vr(T+2*q,2)}, v[46:47]")
                for q in range(8):
                    a(f"v_rcp_f32 v{T+q}, v{T+q}")
                for q in range(4):
                    a(f"v_pk_mul_f32 {vr(r+2*q,2)}, {vr(r+2*q,2)}, {vr(T+2*q,2)}")
                o = 56 + 4 * (p & 1)
                for q in range(4):
                    a(f"v_cvt_pk_bf16_f32 v{o+q}, v{r+2*q}, v{r+2*q+1}")
                a(f"buffer_store_dwordx4 {vr(o,4)}, v{vl}, s[{R_WS}:{R_WS+3}], s{S_K0+2} offen offset:{p*1024} sc1")

        PF, WF, ACC, VT, VL = 64, 128, 160, 8, 12
        a(f"""
        s_lshl_b32 s{S_T0}, s{S_DT}, 3
        s_lshl_b32 s{S_T0+1}, s{S_WAVE}, 1
        s_add_u32 s{S_D}, s{S_T0}, s{S_T0+1}
        s_lshl_b32 s{S_T0}, s{S_D}, 16
        s_add_u32 s{S_T0}, s{S_T0}, {HT}
        """)
        self.srd(R_P, P_WS, 65536, off_s=S_T0)
        a(f"s_add_u32 s{S_T0}, s{S_T0}, 65536")
        self.srd(R_M, P_WS, 65536, off_s=S_T0)
        a(f"v_lshlrev_b32 v{VL}, 4, v1\ns_mov_b32 s{S_B}, 0")
        a(self.perm_next(S_C, S_PERM, 4096))
        self.tr_addr(VT)
        a("s_waitcnt vmcnt(0)")
        gelu_setup(0)
        for r in range(32):
            a(f"v_mov_b32 v{ACC+r}, v{BF + (r & 15)}")
        a(f"s_lshl_b32 s{S_T0}, s{S_WAVE}, 12\ns_add_u32 s{S_T0}, s{S_T0}, {GX}\nv_add_u32 v13, s{S_T0}, v{VL}")
        a(f"s_cmp_lg_u32 s{S_WAVE}, 0\ns_cbranch_scc1 L_B_l3")
        prog = self.o.get("prog", 0)
        if prog:
            assert prog >= 4 * (4 + self.o.get("rotB", 0))
            a(f"v_min_u32 v2, {prog-1}, v1\nv_mul_u32_u24 v2, {FS}, v2\nv_add_u32 v2, {F_LN}, v2")
        else:
            a(f"v_mul_u32_u24 v2, {FS}, v1\nv_add_u32 v2, {F_LN}, v2")
        if not self.o.get("x_nopoll"):
            self.poll([2], 4)
        self.stamp(2, 4)
        a("L_B_l3:\ns_barrier")
        RP = (R_P, R_M)

        def pload(u, ks):
            if self.o.get("x_noload"):
                return "s_nop 0"
            sc = "" if self.o.get("x_nosc1") else "sc1"
            so = "0" if self.o.get("x_same") else f"s{S_C}"
            return "\n".join(f"buffer_load_dwordx4 {vr(PF+32*(u%2)+8*ks+4*d,4)}, v{VL}, s[{RP[d]}:{RP[d]+3}], {so} offen offset:{ks*1024} {sc}" for d in range(2))

        for t in range(2):
            for ks in range(4):
                a(pload(t, ks))
            a(self.perm_next(S_C, S_PERM, 4096))
            if t == 0:
                first_bar_here = len(a.L)

        def mk(u, bar, virtual=False, head=None, tail=None):
            uses = []
            for ks in range(4):
                for b in range(4):
                    g = ks * 4 + b
                    wb = WF + 4 * (g % 8)
                    off = u * 16384 + ks * 4096
                    reads = [(f"w{g}a", f"ds_read_b64_tr_b16 {vr(wb,2)}, v{VT+b} offset:{off}"),
                             (f"w{g}b", f"ds_read_b64_tr_b16 {vr(wb+2,2)}, v{VT+b} offset:{off+2048}")]
                    mf = []
                    for dd in range(2):
                        acc = vr(ACC + 16 * dd + 4 * b, 4)
                        mf.append(f"v_mfma_f32_16x16x32_bf16 {acc}, {vr(wb,4)}, {vr(PF+32*(u%2)+8*ks+4*dd,4)}, {acc}")
                    if self.o.get("x32"):
                        acc = vr(ACC + 16 * (b & 1), 16)
                        mf = [f"v_mfma_f32_32x32x16_bf16 {acc}, {vr(wb,4)}, {vr(PF+32*(u%2)+8*ks+4*(b>>1),4)}, {acc}"]
                    d = dict(reads=reads, need=[f"w{g}b"], mf=mf)
                    if b == 0:
                        d["vm"] = 14
                    if b == 3:
                        d["after"] = pload(u, ks)
                        if ks == 3:
                            d["after"] += "\n" + self.perm_next(S_C, S_PERM, 4096)
                            if u >= 1:
                                d["after"] += f"s_cmp_ge_u32 s{S_B}, 3\ns_cselect_b32 s{S_C}, 0x10000, s{S_C}"
                    uses.append(d)
            return dict(uses=uses, bar=bar, virtual=virtual, head=head, tail=tail)

        xo = "s_barrier\n" + "\n".join(f"v_xor_b32 v{VT+b}, 0x10000, v{VT+b}" for b in range(4))
        tail = f"s_add_u32 s{S_B}, s{S_B}, 1\ns_cmp_lt_u32 s{S_B}, 4\ns_cbranch_scc1 L_B_loop"
        st = [mk(0, "", head="L_B_loop:"), mk(1, "s_barrier"), mk(2, "s_barrier"), mk(3, "s_barrier", tail=tail), mk(0, xo, virtual=True)]
        a.L.insert(first_bar_here, "    s_barrier")
        nd = self.o.get("nodrain")
        LB = self.o.get("LB", 7)
        self.pipeline(st, LB, (16 - LB) if nd else 13, drain=not nd, wait_every=self.o.get('we', 2))
        if nd and not self.o.get("noEnd"):
            a("s_waitcnt lgkmcnt(0)\ns_barrier")
        self.stamp(3, 44)
        if split:
            a("s_nop 5")
            for i in range(4):
                a(f"ds_write_b128 v13, {vr(ACC+16+4*i,4)} offset:{i*1024}")
            a("s_waitcnt lgkmcnt(0)\ns_barrier")
            gelu_block(ACC, VL)
        else:
            a("s_waitcnt lgkmcnt(0)\ns_nop 4")
            gelu_block(ACC, VL)
            a(f"s_add_u32 s{S_K0+2}, s{S_K0+2}, {UW_ST}")
            gelu_block(ACC + 16, VL)
        self.stamp(10, 44)
        a("s_waitcnt vmcnt(0)\ns_barrier\ns_branch L_F_comp")

        a("L_B_aux:\ns_barrier")
        if split:
            assert NREG == 0
        assert NREG == 0
        ops = [(iv, 4) for iv in range(N1)]
        todo = [(iv, i) for iv in range(N1, 16) for i in range(4)]
        quota = self.o.get("quota", 12) / 3.0
        credit = 0.0
        eB = self.o.get("eB", 17)
        nB1 = self.o.get("nB1", 0)
        per = self.o.get("perB", 2)
        done_w2 = 0
        for tb in range(17):
            if tb < 16 and tb <= eB:
                assert all(iv != tb for iv, _ in todo), (tb, todo)
                last = max(i for i, (iv, _) in enumerate(ops) if iv == tb)
                n = sum(c for _, c in ops[last + 1:])
                if tb < 8:
                    n -= 4 * len(early)
                a(f"s_waitcnt vmcnt({max(0, min(n, 63)) if tb < eB else 0})")
            a("s_barrier")
            if tb < 16:
                self.stamp(16 + tb, 44)
            if tb == 0 and self.o.get("prog"):
                a(f"s_cmp_lg_u32 s{S_WAVE}, 7\ns_cbranch_scc1 L_B_nop1\nv_mul_u32_u24 v2, {FS}, v1\nv_add_u32 v2, {F_LN}, v2")
                a(f"buffer_load_dword v3, v2, s[{R_WS}:{R_WS+3}], 0 offen sc1\nL_B_nop1:")
            if tb == 1 and self.o.get("prog"):
                a(f"s_cmp_lg_u32 s{S_WAVE}, 7\ns_cbranch_scc1 L_B_nop2")
                a(f"s_waitcnt vmcnt(0)\nv_cmp_ne_u32 vcc, s{S_TAG}, v3\ns_nop 1\ns_cmp_eq_u64 vcc, 0\ns_cbranch_scc1 L_B_nop2")
                self.poll([2], 4)
                a("L_B_nop2:")
            if tb == self.o.get("ctB", 10):
                self.code_touch([("L_F_comp", 0), ("L_F_comp", 1)])
            if tb == 11 and split:
                gelu_setup(-7)
                a(f"v_lshlrev_b32 v12, 4, v1\ns_lshl_b32 s{S_T0}, s{S_WAVE}, 12\ns_add_u32 s{S_T0}, s{S_T0}, {GX - 4*4096}\nv_add_u32 v13, s{S_T0}, v12")
            if tb == eB:
                assert not todo
                self.w2_setup()
            if tb >= eB and done_w2 < nB1:
                k2 = min(per if tb < 16 else 8, nB1 - done_w2, tb - 9 - done_w2)
                sk = self.if_wave56()
                self.w2_prefill(k2)
                a(f"{sk}:")
                done_w2 += k2
            if todo and (todo[0][0] < 8 or tb >= 2):
                credit += 8 if todo[0][0] < 8 else quota
            setm0 = False
            while todo and credit >= 0.999 and (todo[0][0] < 8 or todo[0][0] <= tb + 6):
                iv, i = todo.pop(0)
                if i == 0:
                    if iv == 8:
                        a(f"s_and_b32 s{S_B}, s{S_B}, 0x1ffff")
                    a(self.perm_next(S_C, S_PERM, 128 * 3072) + f"s_add_u32 s{S_C}, s{S_C}, s{S_A}")
                if i == 0 or not setm0:
                    a(f"s_mov_b32 m0, s{S_B}\ns_nop 0")
                    setm0 = True
                a(f"buffer_load_dwordx4 v{VPF+i}, s[{R_W}:{R_W+3}], s{S_C} offen offset:{i*1024} lds")
                if i == 3:
                    a(f"s_add_u32 s{S_B}, s{S_B}, 16384")
                ops.append((iv, 1))
                credit -= 1
            if todo and todo[0][0] >= 8:
                credit = min(credit, quota)
        nxt = 16
        assert nxt == 16
        if self.o.get("noEnd"):
            assert done_w2 == nB1
        elif self.o.get("nodrain"):
            a("s_barrier")
        if eB == 17:
            self.w2_setup()
        if split:
            a("s_barrier")
            for i in range(4):
                a(f"ds_read_b128 {vr(64+4*i,4)}, v13 offset:{i*1024}")
            a("s_waitcnt lgkmcnt(0)")
            gelu_block(64, 12)
            a("s_waitcnt vmcnt(0)")
        skip = self.if_wave56()
        self.w2_prefill(nB1 - done_w2)
        a("s_barrier\ns_nop 7\ns_nop 7")
        self.w2_prefill(8 - nB1)
        a("s_branch L_F_loader")
        a(f"{skip}:\ns_barrier")
        a(f"s_cmp_lg_u32 s{S_WAVE}, 7\ns_cbranch_scc1 L_F_u4")
        a(f"s_mul_i32 s{S_T0}, s{S_DT}, 24\ns_add_u32 s{S_T0}, s{S_T0}, s{S_FT}\ns_mul_i32 s{S_T0}, s{S_T0}, {FS}\ns_add_u32 s{S_T0}, s{S_T0}, {F_U}")
        self.flag_store(S_T0, 12)
        self.stamp(4, 12)
        a("s_branch L_F_poller")

    def w2_l2_prefetch(self, VT):
        a = self.a
        self.srd(R_W2, P_W2, 1536 * 4096)
        a(f"""
        v_lshrrev_b32 v{VT}, 3, v1
        v_and_b32 v{VT+1}, 7, v1
        v_lshlrev_b32 v{VT+1}, 7, v{VT+1}
        v_lshl_add_u32 v{VT}, v{VT}, 12, v{VT+1}
        s_mul_i32 s{S_T0}, s{S_J}, 48
        s_and_b32 s{S_T0+1}, s{S_WAVE}, 3
        s_mul_i32 s{S_T0+1}, s{S_T0+1}, 12
        s_add_u32 s{S_T0}, s{S_T0}, s{S_T0+1}
        s_lshl_b32 s{S_T0}, s{S_T0}, 12
        s_lshr_b32 s{S_T0+1}, s{S_XCD}, 1
        s_lshl_b32 s{S_T0+1}, s{S_T0+1}, 10
        s_add_u32 s{S_T0}, s{S_T0}, s{S_T0+1}
        buffer_load_dword v{VT+2}, v{VT}, s[{R_W2}:{R_W2+3}], s{S_T0} offen
        s_add_u32 s{S_T0}, s{S_T0}, {8*4096}
        s_mov_b32 exec_hi, 0
        buffer_load_dword v{VT+3}, v{VT}, s[{R_W2}:{R_W2+3}], s{S_T0} offen
        s_mov_b64 exec, -1
        """)

    def tr_addr(self, VT):
        a = self.a
        a(f"""
        v_and_b32 v{VT+1}, 15, v1
        v_lshrrev_b32 v{VT+2}, 4, v1
        v_lshrrev_b32 v{VT+3}, 2, v{VT+1}
        v_lshl_add_u32 v{VT+3}, v{VT+2}, 2, v{VT+3}
        v_bfe_u32 v{VT+2}, v{VT+3}, 1, 2
        v_lshlrev_b32 v{VT+3}, 7, v{VT+3}
        v_lshl_add_u32 v{VT+3}, v{VT+2}, 5, v{VT+3}
        v_and_b32 v{VT+1}, 3, v{VT+1}
        v_lshl_add_u32 v{VT}, v{VT+1}, 3, v{VT+3}
        v_xor_b32 v{VT+1}, 32, v{VT}
        v_xor_b32 v{VT+2}, 64, v{VT}
        v_xor_b32 v{VT+3}, 96, v{VT}
        """)

    def helper(self):
        a = self.a
        a("L_helper:")
        a(f"""
        s_lshl_b32 s{S_D}, s{S_XCD}, 1
        s_add_u32 s{S_D}, s{S_D}, s{S_J}
        s_sub_u32 s{S_D}, s{S_D}, 30
        """)
        self.srd(R_W, P_WO, 640 * 1280)
        for p in range(5):
            a(f"""
            v_add_u32 v12, {p*64}, v1
            v_mul_u32_u24 v13, 205, v12
            v_lshrrev_b32 v13, 11, v13
            v_mul_u32_u24 v14, 10, v13
            v_sub_u32 v14, v12, v14
            v_lshlrev_b32 v14, 4, v14
            v_mul_u32_u24 v13, 1280, v13
            v_add_u32 v{16+p}, v13, v14
            """)
            if p in (1, 2, 3):
                a(f"v_subrev_u32 v{16+p}, {p*1024}, v{16+p}")
        a(f"""
        s_mov_b32 s{S_C}, s{S_WAVE}
        L_H_ld:
        s_mul_i32 s{S_A}, s{S_C}, {32*1280}
        s_mul_i32 s{S_T0}, s{S_D}, 160
        s_add_u32 s{S_A}, s{S_A}, s{S_T0}
        s_mul_i32 s{S_B}, s{S_C}, 5120
        s_mov_b32 m0, s{S_B}
        s_nop 0
        """)
        for p in range(4):
            a(f"buffer_load_dwordx4 v{16+p}, s[{R_W}:{R_W+3}], s{S_A} offen offset:{p*1024} lds")
        a(f"s_add_u32 m0, s{S_B}, 4096\ns_nop 0\nbuffer_load_dwordx4 v20, s[{R_W}:{R_W+3}], s{S_A} offen lds")
        a(f"""
        s_add_u32 s{S_C}, s{S_C}, 8
        s_cmp_lt_u32 s{S_C}, 20
        s_cbranch_scc1 L_H_ld
        v_and_b32 v12, 15, v1
        v_lshrrev_b32 v13, 4, v1
        v_lshrrev_b32 v14, 2, v12
        v_lshl_add_u32 v14, v13, 2, v14
        v_mul_u32_u24 v14, 160, v14
        v_and_b32 v12, 3, v12
        v_lshl_add_u32 v14, v12, 3, v14
        v_lshlrev_b32 v15, 4, v1
        s_waitcnt vmcnt(0)
        s_barrier
        s_mov_b32 s{S_C}, s{S_WAVE}
        L_H_tr:
        s_lshr_b32 s{S_T0}, s{S_C}, 1
        s_mul_i32 s{S_T0}, s{S_T0}, 5
        s_and_b32 s{S_T0+1}, s{S_C}, 1
        s_lshl_b32 s{S_T0+1}, s{S_T0+1}, 1
        s_add_u32 s{S_T0}, s{S_T0}, s{S_T0+1}
        s_add_u32 s{S_T0+1}, s{S_T0}, 1
        s_mul_i32 s{S_T0+2}, s{S_C}, 10
        s_sub_u32 s{S_T0+2}, s{S_T0+2}, 156
        s_add_u32 s{S_T0+3}, s{S_T0+2}, 5
        s_cmp_lt_u32 s{S_C}, 16
        s_cselect_b32 s{S_T0}, s{S_T0}, s{S_T0+2}
        s_cselect_b32 s{S_T0+1}, s{S_T0+1}, s{S_T0+3}
        s_mul_i32 s{S_T0}, s{S_T0}, 2560
        s_mul_i32 s{S_T0+1}, s{S_T0+1}, 2560
        v_add_u32 v12, s{S_T0}, v14
        v_add_u32 v13, s{S_T0+1}, v14
        """)
        for b in range(5):
            a(f"ds_read_b64_tr_b16 {vr(24+4*b,2)}, v12 offset:{b*32}\nds_read_b64_tr_b16 {vr(26+4*b,2)}, v13 offset:{b*32}")
        a(f"""
        s_mul_i32 s{S_T0}, s{S_D}, {5*UW_ST}
        s_lshl_b32 s{S_T0+1}, s{S_C}, 10
        s_add_u32 s{S_T0}, s{S_T0}, s{S_T0+1}
        s_add_u32 s{S_T0}, s{S_T0}, {UW + 49152}
        """)
        for b in range(5):
            a(f"s_waitcnt lgkmcnt({8-2*b})")
            a(f"buffer_store_dwordx4 {vr(24+4*b,4)}, v15, s[{R_WS}:{R_WS+3}], s{S_T0} offen sc1")
            if b < 4:
                a(f"s_add_u32 s{S_T0}, s{S_T0}, {UW_ST}")
        a(f"""
        s_add_u32 s{S_C}, s{S_C}, 8
        s_cmp_lt_u32 s{S_C}, 20
        s_cbranch_scc1 L_H_tr
        s_waitcnt vmcnt(0)
        s_barrier
        """)
        if self.o.get("hW2"):
            a(f"s_cmp_lg_u32 s{S_WAVE}, 7\ns_cbranch_scc1 L_H_nofl")
            a(f"s_mul_i32 s{S_T0}, s{S_D}, {FS}\ns_add_u32 s{S_T0}, s{S_T0}, {F_WOT}")
            self.flag_store(S_T0, 12)
            self.stamp(14, 12)
            a(f"""
            L_H_nofl:
            v_lshlrev_b32 v12, 7, v1
            s_lshl_b32 s{S_T0}, s{S_D}, 3
            s_add_u32 s{S_T0}, s{S_T0}, s{S_WAVE}
            s_lshl_b32 s{S_T0}, s{S_T0}, 13
            s_add_u32 s{S_T0}, s{S_T0}, {1024*4096}
            """)
            for k in range(4):
                a(f"buffer_load_dword v253, v12, s[{R_W2}:{R_W2+3}], s{S_T0} offen\ns_add_u32 s{S_T0}, s{S_T0}, {128*4096}")
        skip = self.if_wave56()
        self.w2_setup()
        self.w2_prefill(8)
        a(f"s_branch L_F_loader\n{skip}:")
        a(f"s_cmp_lt_u32 s{S_WAVE}, 4\ns_cbranch_scc1 L_F_comp\ns_cmp_lg_u32 s{S_WAVE}, 7\ns_cbranch_scc1 L_F_u4")
        if not self.o.get("hW2"):
            a(f"s_mul_i32 s{S_T0}, s{S_D}, {FS}\ns_add_u32 s{S_T0}, s{S_T0}, {F_WOT}")
            self.flag_store(S_T0, 12)
            self.stamp(14, 12)
        a("s_branch L_F_poller")

    F_WOT_REG = 172

    def uw_srd(self):
        a = self.a
        a(f"""
        s_mul_i32 s{S_T0}, s{S_DTILE}, 5
        s_add_u32 s{S_D}, s{S_T0}, s{S_WAVE}
        s_mul_i32 s{S_T0}, s{S_D}, {UW_ST}
        s_add_u32 s{S_T0}, s{S_T0}, {UW}
        """)
        self.srd(R_P, P_WS, UW_ST, off_s=S_T0)

    def wot_preload(self, VL):
        a = self.a
        for k in range(20):
            if k % 4 == 0:
                a(f"s_mov_b32 s{S_C}, {49152 + k*1024}")
            a(f"buffer_load_dwordx4 {vr(self.F_WOT_REG+4*k,4)}, v{VL}, s[{R_P}:{R_P+3}], s{S_C} offen offset:{(k%4)*1024} sc1")

    F_V = (4, 8, 12, 13, 47, 48, 52, 56, 168)
    F_SB = 72

    def f_setup(self):
        a = self.a
        VT, VT2, VL, VU4, VGA, VGH, VG8, GV, BV = self.F_V
        SB = self.F_SB
        self.srd(R_M, P_B2, 4096)
        self.srd(R_OUT, P_OUT, 2048 * 1280)
        self.tr_addr(VT2)
        a(f"""
        s_mul_i32 s{S_D}, s{S_DTILE}, 5
        s_add_u32 s{S_D}, s{S_D}, s{S_WAVE}
        v_mov_b32 v42, v{VT2}
        v_lshlrev_b32 v{VL}, 4, v1
        v_add_u32 v{VU4}, 0x20000, v{VL}
        v_and_b32 v{VGA}, 15, v1
        v_lshlrev_b32 v43, 1, v{VGA}
        v_lshlrev_b32 v{VGA}, 2, v{VGA}
        v_lshlrev_b32 v{VG8+3}, 3, v1
        """)
        for b in range(4):
            a(f"""
            s_add_u32 s{SB+b}, s{S_WAVE}, {b}
            s_and_b32 s{SB+b}, s{SB+b}, 3
            s_lshl_b32 s{S_T0}, s{SB+b}, 5
            v_xor_b32 v{VT+b}, s{S_T0}, v42
            s_lshl_b32 s{S_T0+1}, s{S_ST}, 7
            s_add_u32 s{S_T0}, s{S_T0}, s{S_T0+1}
            buffer_load_ushort v{BV+b}, v43, s[{R_M}:{R_M+3}], s{S_T0} offen
            v_add_u32 v{VT2+b}, 0x10000, v{VT+b}
            s_lshl_b32 s{S_T0}, s{SB+b}, 12
            v_add_u32 v{VG8+b}, s{S_T0}, v{VG8+3}
            s_add_u32 s{S_T0}, s{S_T0}, 0x10000
            v_add_u32 v{VGH+b}, s{S_T0}, v{VL}
            """)
        a(f"s_lshl_b32 s{S_A}, s{S_ST}, 8\ns_add_u32 s{S_A}, s{S_A}, {G_OFF}")
        self.f_perm()

    def f0_barrier(self):
        lab = self.a.label("f0")
        self.a(f"s_cmp_eq_u32 s{S_FROMA}, 1\ns_cbranch_scc1 {lab}\ns_barrier\n{lab}:")

    def final(self):
        a = self.a
        a("L_F_comp:")
        if self.stop == "phase1":
            a("s_branch L_end")
        PF, WF, ACC, ACC4, U4, WOT = 64, 112, 144, 160, 36, 172
        NPF = 3
        pre = True
        VT, VT2, VL, VU4, VGA, VGH, VG8, GV, BV = self.F_V
        SB = self.F_SB
        a(f"s_cmp_eq_u32 s{S_FROMA}, 1\ns_cbranch_scc1 L_F_nowot")
        self.uw_srd()
        self.f_setup()
        nstream = 12 if pre else 17

        def next_sc(step):
            if step < 12:
                return self.perm_next(S_C, S_PERM, 4096)
            return f"s_mov_b32 s{S_C}, {step*4096}\n"
        a("s_barrier")
        self.wot_preload(VL)
        a("L_F_nowot:")
        a(next_sc(0))
        a("s_barrier")
        S_C1, S_C2 = S_K0, S_K0 + 1

        def uload(t, ks, so):
            return f"buffer_load_dwordx4 {vr(PF+16*(t % NPF)+4*ks,4)}, v{VL}, s[{R_P}:{R_P+3}], s{so} offen offset:{ks*1024} sc1 ;@u{t}_{ks}"
        vis0 = []
        for ks in range(4):
            a(uload(0, ks, S_C))
            vis0.append(f"u0_{ks}")
        a(self.perm_next(S_C1, S_PERM, 4096) + self.perm_next(S_C2, S_PERM, 4096) + next_sc(3))
        a("s_barrier")

        ACC2 = 16
        blocks = [(ACC + 4 * b, b) for b in range(4)] + [(ACC4, 0)]
        fill = []
        for b in range(4):
            fill += [f"v_lshlrev_b32 v{BV+b}, 16, v{BV+b}", f"v_sub_f32 v{GV+b}, 1.0, v{GV+b}"]
        for r0, b in blocks:
            for k in range(4):
                fill.append(f"v_add_f32 v{r0+k}, v{BV+b}, v{r0+k}")

        stages = []
        for t in range(17):
            slot = t % 8
            hi = slot >= 4
            uses = []
            for ks in range(4):
                for b in range(4):
                    g = ks * 4 + b
                    wb = WF + 4 * (g % 8)
                    reads = []
                    u4 = U4 + 4 * (ks & 1)
                    if b == 0:
                        reads.append((f"u{ks}", f"ds_read_b128 {vr(u4,4)}, v{VU4} offset:{slot*4096 + ks*1024}"))
                    if t < 12:
                        off = (slot & 3) * 16384 + ks * 4096
                        va = (VT2 if hi else VT) + b
                        reads += [(f"w{g}a", f"ds_read_b64_tr_b16 {vr(wb,2)}, v{va} offset:{off}"),
                                  (f"w{g}b", f"ds_read_b64_tr_b16 {vr(wb+2,2)}, v{va} offset:{off+2048}")]
                    elif t < 16:
                        assert hi
                        off = (slot & 3) * 16384 + ks * 1024
                        reads += [(f"w{g}b", f"ds_read_b128 {vr(wb,4)}, v{VGH+b} offset:{off}")]
                    else:
                        off = (slot & 3) * 16384 + ks * 1024
                        assert not hi
                        reads += [(f"w{g}a", f"ds_read_b64 {vr(wb,2)}, v{VG8+b} offset:{off}"),
                                  (f"w{g}b", f"ds_read_b64 {vr(wb+2,2)}, v{VG8+b} offset:{off+512}")]
                    acc = vr((ACC if t < 12 else ACC2) + 4 * b, 4)
                    a4 = vr(ACC4 if t < 12 else ACC2 + 16, 4)
                    ring = t < nstream
                    pf = vr(PF + 16 * (t % NPF) + 4 * ks, 4) if ring else vr(WOT + 16 * (t - 12) + 4 * ks, 4)
                    first = t in (0, 12) and ks == 0
                    mf = [f"v_mfma_f32_16x16x32_bf16 {acc}, {pf}, {vr(wb,4)}, {0 if first else acc}"]
                    if b == 0:
                        mf.append(f"v_mfma_f32_16x16x32_bf16 {a4}, {vr(u4,4)}, {vr(wb,4)}, {0 if first else a4}")
                    d = dict(reads=reads, need=[f"w{g}b"], mf=mf)
                    if self.o.get("x_fewlds"):
                        if b == 0:
                            d["reads"] = reads[1:]
                        else:
                            d["reads"] = []
                            d["need"] = [f"w{g-b}b"]
                    if b == 0 and ring:
                        d["vneed"] = f"u{t}_{ks}"
                    if t == 0 and b in (0, 1):
                        d["after"] = uload(1 + b, ks, (S_C1, S_C2)[b])
                    if t == 1 and b == 1:
                        d["after"] = (f"s_lshl_b32 s{S_T0}, s{SB+ks}, 6\ns_add_u32 s{S_T0}, s{S_T0}, s{S_A}\n"
                                      f"buffer_load_dword v{GV+ks}, v{VGA}, s[{R_WS}:{R_WS+3}], s{S_T0} offen sc1 ;@g{ks}")
                    if b == 3 and t + NPF < nstream:
                        d["after"] = uload(t + NPF, ks, S_C)
                        if ks == 3 and t + NPF + 1 < nstream:
                            d["after"] += "\n" + next_sc(t + NPF + 1)
                    if self.o.get("wotl") and 3 <= t <= 7 and b == 1:
                        k = (t - 3) * 4 + ks
                        lab = a.label("nw")
                        d["before"] = (f"s_cmp_eq_u32 s{S_FROMA}, 1\ns_cbranch_scc0 {lab}\ns_mov_b32 s{S_T0}, {49152 + k*1024}\n"
                                       f"buffer_load_dwordx4 {vr(WOT+4*k,4)}, v{VL}, s[{R_P}:{R_P+3}], s{S_T0} offen sc1\n{lab}:")
                    if t >= 13 and fill and g < 15:
                        d["after"] = fill.pop(0)
                    uses.append(d)
            stages.append(dict(uses=uses, bar="s_barrier" if t else ""))
        nd = self.o.get("nodrain")
        LF = self.o.get("LF", 6)
        self.pipeline(stages, LF, (16 - LF) if nd else 13, drain=not nd, wait_every=self.o.get('we', 2), vis=vis0)
        self.stamp(8, 2)
        a(f"""
        v_and_b32 v2, 15, v1
        v_mul_u32_u24 v2, 1280, v2
        v_lshrrev_b32 v3, 4, v1
        v_lshl_add_u32 v2, v3, 3, v2
        s_mul_i32 s{S_A}, s{S_ST}, {64*1280}
        s_lshl_b32 s{S_T0+1}, s{S_D}, 5
        s_add_u32 s{S_B}, s{S_A}, s{S_T0+1}
        s_mul_i32 s{S_T0+1}, s{S_DTILE}, 160
        s_add_u32 s{S_A}, s{S_A}, s{S_T0+1}
        s_add_u32 s{S_A}, s{S_A}, 128
        """)
        assert not fill
        for i_, (r, b) in enumerate(blocks):
            for k in range(4):
                a(f"v_fma_f32 v{r+k}, v{r+k}, v{GV+b}, v{ACC2+4*i_+k}")
            a(f"s_mul_i32 s{S_T0}, s{SB+b}, {16*1280}\ns_add_u32 s{S_T0}, s{S_T0}, s{S_A if r == ACC4 else S_B}")
            a(f"v_cvt_pk_bf16_f32 v{r}, v{r}, v{r+1}\nv_cvt_pk_bf16_f32 v{r+1}, v{r+2}, v{r+3}")
            a(f"buffer_store_dwordx2 {vr(r,2)}, v2, s[{R_OUT}:{R_OUT+3}], s{S_T0} offen {['', 'sc1', 'nt', 'sc0 sc1'][self.o.get('osc', 0)]}")
        if self.stamps or self.o.get("dbg"):
            a("s_waitcnt vmcnt(0)")
            self.stamp(9, 2)
        if self.o.get("calib"):
            a(f"""
            L_cal:
            s_memrealtime s[96:97]
            s_waitcnt lgkmcnt(0)
            s_sub_u32 s96, s96, s98
            s_cmp_lt_u32 s96, {self.o.get("calib")*100}
            s_cbranch_scc1 L_cal
            """)
        a(f"s_or_b32 s{S_T0}, s2, s{S_WAVE}\ns_cmp_lg_u32 s{S_T0}, 0\ns_cbranch_scc1 L_end\ns_mov_b32 s{S_T0}, 0")
        self.flag_store(S_T0, 4)
        a("s_branch L_end")

        a("L_F_u4:")
        if self.stop == "phase1":
            a("s_branch L_end")
        a(f"""
        v_lshlrev_b32 v{VL}, 4, v1
        s_mul_i32 s{S_C}, s{S_DTILE}, {5*UW_ST}
        s_add_u32 s{S_C}, s{S_C}, {UW + 4*UW_ST}
        """)
        self.f_perm()
        self.f0_barrier()
        p4 = self.o.get("preW4")
        if p4:
            for k in range(20):
                if k % 4 == 0:
                    a(f"s_add_u32 s{S_T0}, s{S_C}, {49152 + k*1024}")
                a(f"buffer_load_dwordx4 {vr(64+4*k,4)}, v{VL}, s[{R_WS}:{R_WS+3}], s{S_T0} offen offset:{(k%4)*1024} sc1")
            a(f"v_add_u32 v{VU4}, 0x20000, v{VL}")
        a("s_barrier")

        def u4_issue(iv):
            if iv >= 12 and p4:
                for i in range(4):
                    a(f"ds_write_b128 v{VU4}, {vr(64+16*(iv-12)+4*i,4)} offset:{(iv % 8)*4096 + i*1024}")
                return
            if iv < 12:
                a(self.perm_next(S_T0, S_PERM, 4096) + f"s_mov_b32 m0, {0x20000 + (iv % 8)*4096:#x}\ns_add_u32 s{S_T0}, s{S_T0}, s{S_C}")
            else:
                a(f"s_mov_b32 m0, {0x20000 + (iv % 8)*4096:#x}\ns_add_u32 s{S_T0}, s{S_C}, {iv*4096}")
            for i in range(4):
                a(f"buffer_load_dwordx4 v{VL}, s[{R_WS}:{R_WS+3}], s{S_T0} offen offset:{i*1024} sc1 lds")
        order = []
        for iv in range(8):
            u4_issue(iv)
            order.append(iv)
            if iv == 1:
                a("s_waitcnt vmcnt(4)\ns_barrier")
        for tb in range(1, 17):
            if tb in order:
                a(f"s_waitcnt vmcnt({4*len(order[order.index(tb)+1:])})")
            a("s_waitcnt lgkmcnt(0)\ns_barrier" if p4 and tb >= 7 else "s_barrier")
            iv = tb + (6 if self.o.get("nodrain") else 7)
            if 8 <= iv <= 16:
                u4_issue(iv)
                if not (p4 and iv >= 12):
                    order.append(iv)
        a("s_branch L_end")

        a("L_F_loader:")
        if self.stop == "phase1":
            a("s_branch L_end")
        a(f"v_lshlrev_b32 v{VL}, 4, v1")
        self.f0_barrier()
        nWR = self.o.get("nWR", 0)
        V = self.V_W2
        if nWR:
            a(f"s_waitcnt vmcnt(30)\nv_add_u32 v{VU4}, s{S_B}, v{VL}")
            for k in range(nWR):
                a(self.perm_next(S_T0, S_PERM, 128 * 4096) + f"s_add_u32 s{S_T0}, s{S_T0}, s{S_A}")
                for g in range(2):
                    if g:
                        a(f"s_add_u32 s{S_T0}, s{S_T0}, {4*32768}")
                    for i in range(4):
                        a(f"buffer_load_dwordx4 {vr(64+32*k+16*g+4*i,4)}, v{V+i}, s[{R_W2}:{R_W2+3}], s{S_T0} offen offset:{i*1024}")
            a(f"s_add_u32 s{S_B}, s{S_B}, {nWR*16384}")
        a("s_barrier")
        a(f"""
        s_sub_u32 s{S_T0}, s{S_WAVE}, 5
        s_lshl_b32 s{S_T0}, s{S_T0}, 1
        s_lshl_b32 s{S_T0+1}, s{S_ST}, 2
        s_add_u32 s{S_T0+1}, s{S_T0+1}, s{S_T0}
        s_mul_i32 s{S_C}, s{S_T0+1}, {GO_ST}
        s_add_u32 s{S_C}, s{S_C}, {GO}
        s_lshl_b32 s{S_D}, s{S_T0}, 12
        """)
        assert nWR == 0
        ops = [(iv, 8) for iv in range(8)]
        for tb in range(17):
            last = max(i for i, (iv, _) in enumerate(ops) if iv == tb)
            n = sum(c for _, c in ops[last + 1:])
            a(f"s_waitcnt vmcnt({min(n,63)})\ns_barrier")
            if self.o.get("halfW"):
                if 2 <= tb <= 9:
                    self.w2_half((tb - 2) & 1)
                    ops.append((8 + (tb - 2) // 2, 4))
            elif 2 <= tb <= 5:
                self.w2_issue()
                ops.append((tb + 6, 8))
            if 9 <= tb <= 13:
                iv = tb + 3
                g = iv - 12
                for s2 in range(2):
                    a(f"s_add_u32 m0, s{S_D}, {(iv % 8)*16384 + s2*4096}\ns_add_u32 s{S_T0}, s{S_C}, {s2*GO_ST + g*4096}")
                    for i in range(4):
                        a(f"buffer_load_dwordx4 v{VL}, s[{R_WS}:{R_WS+3}], s{S_T0} offen offset:{i*1024} sc1 lds")
                ops.append((iv, 8))
        a("s_branch L_end")
        a("L_F_poller:")
        if self.stop == "phase1":
            a("s_branch L_end")
        a(f"s_cmp_eq_u32 s{S_FROMA}, 1\ns_cbranch_scc1 L_F_pnowot")
        a(f"s_mul_i32 s{S_T0}, s{S_DTILE}, {FS}\ns_add_u32 s{S_T0}, s{S_T0}, {F_WOT}\nv_mov_b32 v2, s{S_T0}")
        self.poll([2], 4)
        a("s_barrier\nL_F_pnowot:")
        a(f"""
        s_mul_i32 s{S_T0}, s{S_DTILE}, 5
        s_lshr_b32 s{S_T0+1}, s{S_T0}, 3
        s_add_u32 s{S_T0}, s{S_T0}, 4
        s_lshr_b32 s{S_T0}, s{S_T0}, 3
        s_mul_i32 s{S_T0}, s{S_T0}, 24
        s_mul_i32 s{S_T0+1}, s{S_T0+1}, 24
        v_and_b32 v2, 31, v1
        v_min_u32 v2, 23, v2
        v_add_u32 v3, s{S_T0}, v2
        v_add_u32 v2, s{S_T0+1}, v2
        v_cmp_gt_u32 vcc, 32, v1
        s_mul_i32 s{S_T0}, s{S_DTILE}, {FS}
        s_add_u32 s{S_T0}, s{S_T0}, {F_WOT}
        v_cndmask_b32 v2, v2, v3, vcc
        v_mul_u32_u24 v2, {FS}, v2
        v_add_u32 v2, {F_U}, v2
        v_mov_b32 v3, s{S_T0}
        v_cmp_eq_u32 vcc, 63, v1
        s_nop 1
        v_cndmask_b32 v2, v2, v3, vcc
        """)
        self.poll([2], 4)
        self.stamp(6, 4)
        a("s_barrier")
        a(f"""
        v_and_b32 v2, 7, v1
        s_lshr_b32 s{S_T0}, s{S_ST}, 1
        s_lshl_b32 s{S_T0}, s{S_T0}, 3
        v_add_u32 v2, s{S_T0}, v2
        v_mul_u32_u24 v2, {FS}, v2
        v_add_u32 v2, {F_GO}, v2
        """)
        gp = self.o.get("gopoll", 9)
        for tb in range(gp):
            a("s_barrier")
            if tb == 1:
                a(f"s_cmp_eq_u32 s{S_FROMA}, 1\ns_cbranch_scc0 L_F_nogo")
                a(f"s_lshl_b32 s{S_T0}, s{S_MT}, 3\ns_add_u32 s{S_T0}, s{S_T0}, s{S_HG}\ns_mul_i32 s{S_T0}, s{S_T0}, {FS}\ns_add_u32 s{S_T0}, s{S_T0}, {F_GO}")
                self.flag_store(S_T0, 6)
                a("L_F_nogo:")
            if tb == gp - 3:
                a(f"buffer_load_dword v8, v2, s[{R_WS}:{R_WS+3}], 0 offen sc1")
            self.stamp(32 + tb, 4)
        a(f"s_waitcnt vmcnt(0)\nv_cmp_ne_u32 vcc, s{S_TAG}, v8\ns_nop 1\ns_cmp_eq_u64 vcc, 0\ns_cbranch_scc1 L_F_gook")
        self.poll([2], 4)
        a("L_F_gook:")
        self.stamp(7, 4)
        for tb in range(gp, 17):
            a("s_barrier")
            self.stamp(32 + tb, 4)
        a("L_end:")
        if "probe" in self.o or "pc1" in self.o:
            a("""
            s_cmp_eq_u32 s94, 0
            s_cbranch_scc1 L_exit
            L_prb:
            s_memrealtime s[96:97]
            s_waitcnt lgkmcnt(0)
            s_sub_u32 s96, s96, s98
            s_cmp_lt_i32 s96, 4000
            s_cbranch_scc1 L_prb
            """)
        if self.stamps:
            a(f"""
            s_lshl_b32 s{S_T0}, s2, 3
            s_add_u32 s{S_T0}, s{S_T0}, s{S_WAVE}
            s_lshl_b32 s{S_T0}, s{S_T0}, 9
            s_add_u32 s{S_T0}, s{S_T0}, {STAMP}
            v_lshlrev_b32 v2, 3, v1
            buffer_store_dwordx2 v[254:255], v2, s[{R_WS}:{R_WS+3}], s{S_T0} offen
            """)
        a("L_exit:\ns_endpgm")

    def build(self, header):
        a = self.a
        self.prologue()
        self.role_a()
        self.role_b()
        self.helper()
        self.final()
        body = a.text()
        out = header
        out += """; One persistent launch, 256 workgroups (one per CU) x 8 waves (0-3 MFMA, 4-7 loaders / pollers).
"""
        out += f"; @launch grid=(256,1,1) block=(512,1,1) lds={LDS_BYTES}\n"
        out += f'.amdgcn_target "amdgcn-amd-amdhsa--gfx950"\n.text\n.globl {KNAME}\n.p2align 8\n.type {KNAME},@function\n{KNAME}:\n'
        out += body
        out += f""".section .rodata,"a"
.p2align 6
.amdhsa_kernel {KNAME}
  .amdhsa_next_free_vgpr 256
  .amdhsa_next_free_sgpr 102
  .amdhsa_accum_offset 256
  .amdhsa_group_segment_fixed_size 0
  .amdhsa_kernarg_size 96
  .amdhsa_user_sgpr_count 2
  .amdhsa_user_sgpr_kernarg_segment_ptr 1
  .amdhsa_system_sgpr_workgroup_id_x 1
  .amdhsa_float_denorm_mode_32 3
.end_amdhsa_kernel
"""
        return out


def header():
    ref = open("gated_mix__linear_attn_block__mixer_token_mlp__prompt.s.ref").read().split("\n")
    h = []
    for l in ref:
        if l.startswith("; Override"):
            break
        h.append(l)
    return "\n".join(h) + "\n"


if __name__ == "__main__":
    import argparse
    p = argparse.ArgumentParser()
    p.add_argument("-o", default="gated_mix__linear_attn_block__mixer_token_mlp__prompt.s")
    p.add_argument("--stamps", action="store_true")
    p.add_argument("--stop", default=None)
    p.add_argument("--opt", default="")
    args = p.parse_args()
    opts = {k: (int(v) if v != '' else 1) for k, _, v in (x.partition('=') for x in args.opt.split(',') if x)}
    g = Gen(stamps=args.stamps, stop=args.stop, opts=opts)
    open(args.o, "w").write(g.build(header()))
    print("wrote", args.o)
```

```python
import sys

KNAME = "gated_mix__linear_attn_block__mixer_token_mlp__prompt_kernel"

import os
FS = int(os.environ.get('FS', 128))
F_LN, F_KV, F_U, F_GO, F_WOT = 0x1000, 0x5000, 0x9000, 0xD000, 0x11000
G_OFF = 0x12000
STAMP = 0x900000
KVP = 0x20000
KVP_ST = 7168
HT = 0x100000
UW = 0x380000
UW_ST = 69632
GO = 0x640000
GO_ST = 20480
WS_USED = 0xA00000
TAG_INC = 0x9E3779B9
SPIN_LIMIT = 1 << 17

LDS_BYTES = 163840
LNBUF = 0
LN_ST = 1312
LNG = LNBUF + 32 * LN_ST
A_SLOT = 49152
A_WOFF = 16384
EXCH_ST = 14336
EXCH = LDS_BYTES - 4 * EXCH_ST
KVT = 147456
ZH = KVT + 11 * 1024

LOG2E = 0x3FB8AA3B


def f2u(x):
    import struct
    return struct.unpack("<I", struct.pack("<f", x))[0]


class Asm:
    def __init__(self):
        self.L = []
        self.nlab = 0

    def __call__(self, s):
        for line in s.split("\n"):
            line = line.strip()
            if line:
                self.L.append(("    " if not line.endswith(":") else "") + line)

    def label(self, base):
        self.nlab += 1
        return f"L{base}_{self.nlab}"

    def text(self):
        return "\n".join(self.L) + "\n"


def vr(a, n=1):
    return f"v{a}" if n == 1 else f"v[{a}:{a+n-1}]"


def sr(a, n=1):
    return f"s{a}" if n == 1 else f"s[{a}:{a+n-1}]"


P_X, P_WQKV, P_WO, P_BX, P_W1, P_B1, P_W2, P_B2 = 4, 6, 8, 10, 12, 14, 16, 18
P_GATE, P_OUT, P_DBG, P_WS = 20, 22, 24, 26
S_TAG, S_WAVE = 28, 29
S_XCD, S_J = 30, 31
R_WS, R_X, R_W, R_P, R_W2, R_M, R_OUT = 32, 36, 40, 44, 48, 52, 56
S_T0 = 60
S_MT, S_HG, S_DT, S_FT, S_KST, S_PAR = 70, 71, 72, 73, 74, 75
S_ST, S_DTILE = 76, 77
S_CNT = 78
S_A, S_B, S_C, S_D = 80, 81, 82, 83
S_MSK = 84
S_K0 = 90
S_STMP = 96
S_PERM = 66
S_M = 79
S_FROMA = 95
S_PERM2 = 68


def lead_perm(n, nshare, m, lead=2):
    order = list(range(n))
    i = m
    while i + lead < n:
        order[i:i + lead + 1] = [order[i + lead]] + order[i:i + lead]
        i += nshare
    return order


class Gen:
    def __init__(self, stamps=False, stop=None, opts=None):
        self.o = opts or {}
        self.a = Asm()
        self.stamps = stamps
        self.stop = stop

    def nt(self, key):
        return "nt" if self.o.get(key) else ""

    def srd(self, dst, ptr, nbytes, off_s=None):
        a = self.a
        if off_s is None:
            a(f"s_mov_b32 s{dst}, s{ptr}\ns_and_b32 s{dst+1}, s{ptr+1}, 0xffff")
        else:
            a(f"s_add_u32 s{dst}, s{ptr}, s{off_s}\ns_addc_u32 s{dst+1}, s{ptr+1}, 0\ns_and_b32 s{dst+1}, s{dst+1}, 0xffff")
        a(f"s_mov_b32 s{dst+2}, {nbytes:#x}\ns_mov_b32 s{dst+3}, 0x20000")

    def stamp(self, k, vtmp, dyn=None):
        if "pc1" in self.o:
            if dyn is None and k in (self.o["pc1"], self.o["pc2"]):
                lab = self.a.label("npr")
                self.a(f"s_cmp_lg_u32 s{S_FROMA}, {self.o.get('prole', 0)}\ns_cbranch_scc1 {lab}")
                if k == self.o["pc1"]:
                    self.a(f"s_memtime s[92:93]\ns_waitcnt lgkmcnt(0)")
                else:
                    self.a(f"s_memtime s[96:97]\ns_waitcnt lgkmcnt(0)\ns_sub_u32 s92, s96, s92\ns_lshr_b32 s92, s92, 4\ns_add_u32 s98, s98, s92\ns_mov_b32 s94, 1")
                self.a(f"{lab}:")
            return
        if "probe" in self.o:
            role = self.o.get("prole")
            if k == self.o["probe"] and dyn is None:
                lab = self.a.label("npr")
                if self.o.get("phelp"):
                    self.a(f"s_cmp_lt_u32 s{S_J}, 30\ns_cbranch_scc1 {lab}")
                if role is not None and k != 0:
                    self.a(f"s_cmp_lg_u32 s{S_FROMA}, {role}\ns_cbranch_scc1 {lab}")
                self.a(f"s_memrealtime s[98:99]\ns_mov_b32 s94, 1\ns_waitcnt lgkmcnt(0)\n{lab}:")
            return
        if self.o.get("dbg"):
            m = {0: 0, 11: 1, 1: 2, 2: 3, 3: 4, 4: 5, 6: 6, 9: 7}
            mA = {0: 0, 1: 1, 2: 2, 3: 3, 4: 4, 5: 5, 6: 6, 9: 7}
            if dyn is not None:
                return
            a = self.a
            for wg, mp, base in ((8, m, 0), (12, mA, 8)):
                if k in mp:
                    lab = a.label("nd")
                    a(f"s_cmp_lg_u32 s2, {wg}\ns_cbranch_scc1 {lab}")
                    a(f"s_memrealtime s[{S_STMP}:{S_STMP+1}]\ns_waitcnt lgkmcnt(0)")
                    a(f"v_mov_b32 v{vtmp}, s{S_STMP}\nv_mov_b32 v{vtmp+2}, {4*(base+mp[k])}")
                    a(f"s_mov_b64 exec, 1\nglobal_store_dword v{vtmp+2}, v{vtmp}, s[{P_DBG}:{P_DBG+1}]\ns_mov_b64 exec, -1\n{lab}:")
            return
        if not self.stamps:
            return
        a = self.a
        a(f"s_memrealtime s[{S_STMP}:{S_STMP+1}]\ns_memtime s[100:101]")
        ln = str(k)
        if dyn is not None:
            a(f"s_add_u32 m0, s{dyn}, {k}")
            ln = "m0"
        a(f"s_waitcnt lgkmcnt(0)\nv_writelane_b32 v254, s{S_STMP}, {ln}\nv_writelane_b32 v255, s100, {ln}")

    def perm_setup(self, s_m, n, nshare, dst, enable):
        a = self.a
        def pk(o):
            v = 0
            for i, x in enumerate(o):
                v |= x << (4 * i)
            return v & 0xffffffff, v >> 32
        lo, hi = pk(list(range(n)))
        a(f"s_mov_b32 s{dst}, {lo:#x}\ns_mov_b32 s{dst+1}, {hi:#x}")
        if not enable:
            return
        for m in range(nshare):
            lo, hi = pk(lead_perm(n, nshare, m, enable))
            a(f"s_cmp_eq_u32 s{s_m}, {m}\ns_cselect_b32 s{dst}, {lo:#x}, s{dst}\ns_cselect_b32 s{dst+1}, {hi:#x}, s{dst+1}")

    def perm_next(self, dst, src, mul):
        t = f"s_and_b32 s{dst}, s{src}, 15\ns_lshr_b64 s[{src}:{src+1}], s[{src}:{src+1}], 4\n"
        if mul & (mul - 1) == 0:
            t += f"s_lshl_b32 s{dst}, s{dst}, {mul.bit_length()-1}\n"
        else:
            t += f"s_mul_i32 s{dst}, s{dst}, {mul}\n"
        return t

    def poll(self, voffs, vtmp, mask=None):
        a = self.a
        lp, dn = a.label("poll"), a.label("pdone")
        n = len(voffs)

        def ld(k):
            for i, vo in enumerate(voffs):
                a(f"buffer_load_dword v{vtmp+k*n+i}, v{vo}, s[{R_WS}:{R_WS+3}], 0 offen sc1")

        def chk(k):
            if mask is not None:
                a(f"v_xor_b32 v{vtmp+k*n}, s{S_TAG}, v{vtmp+k*n}\nv_and_b32 v{vtmp+k*n}, v{mask}, v{vtmp+k*n}\nv_cmp_ne_u32 vcc, 0, v{vtmp+k*n}")
            else:
                a(f"v_cmp_ne_u32 vcc, s{S_TAG}, v{vtmp+k*n}")
            for i in range(1, n):
                a(f"v_cmp_ne_u32 s[{S_T0}:{S_T0+1}], s{S_TAG}, v{vtmp+k*n+i}\ns_nop 1\ns_or_b64 vcc, vcc, s[{S_T0}:{S_T0+1}]")
            a(f"s_nop 1\ns_cmp_eq_u64 vcc, 0\ns_cbranch_scc1 {dn}")
        if not self.o.get("pp"):
            a(f"s_mov_b32 s{S_CNT}, 0\n{lp}:")
            ld(0)
            a("s_waitcnt vmcnt(0)")
            chk(0)
            a(f"s_add_u32 s{S_CNT}, s{S_CNT}, 1\ns_cmp_lt_u32 s{S_CNT}, {SPIN_LIMIT}\ns_cbranch_scc0 {dn}\ns_sleep 1\ns_branch {lp}\n{dn}:")
            return
        sl = f"s_sleep {self.o['pp'] - 1}\n" if self.o["pp"] > 1 else ""
        a(f"s_mov_b32 s{S_CNT}, 0")
        ld(0)
        a(f"{sl}{lp}:")
        ld(1)
        a(f"s_waitcnt vmcnt({n})")
        chk(0)
        ld(0)
        a(f"s_waitcnt vmcnt({n})")
        chk(1)
        a(f"s_add_u32 s{S_CNT}, s{S_CNT}, 1\ns_cmp_lt_u32 s{S_CNT}, {SPIN_LIMIT}\ns_cbranch_scc1 {lp}\n{dn}:")

    def flag_store(self, s_off, vtmp):
        a = self.a
        a(f"v_mov_b32 v{vtmp}, s{S_TAG}\nv_mov_b32 v{vtmp+1}, 0\ns_mov_b64 exec, 1")
        a(f"buffer_store_dword v{vtmp}, v{vtmp+1}, s[{R_WS}:{R_WS+3}], s{s_off} offen sc1\ns_mov_b64 exec, -1")

    def pipeline(self, stages, L, gstar, drain=True, wait_every=2, vis=None):
        a = self.a
        seq = [(si, gi, u) for si, st in enumerate(stages) for gi, u in enumerate(st["uses"])]
        issued = []
        vis = list(vis or [])
        state = dict(nxt=0, opened=-1)
        pend = []

        def collect(lim):
            while state["nxt"] < len(seq) and state["nxt"] <= lim and seq[state["nxt"]][0] <= state["opened"]:
                si_, _, u_ = seq[state["nxt"]]
                for name, txt in u_["reads"]:
                    pend.append((f"{si_}:{name}", txt))
                state["nxt"] += 1
                if seq[state["nxt"] - 1][1] == len(stages[si_]["uses"]) - 1 and si_ + 1 < len(stages):
                    state["defer"] = list(stages[si_ + 1].get("pre", []))

        def out(txt):
            if ";@" in txt:
                vis.append(txt.split(";@")[1].strip())
            a(txt)

        def emit(n):
            for _ in range(min(n, len(pend))):
                name, txt = pend.pop(0)
                out(txt)
                if name:
                    issued.append(name)

        a(stages[0]["bar"])
        state["opened"] = 0
        collect(L - 1)
        emit(len(pend))
        n_real = sum(len(st["uses"]) for st in stages if not st.get("virtual"))
        covered = -1
        for f in range(n_real):
            si, gi, u = seq[f]
            nuse = len(stages[si]["uses"])
            if gi == 0 and stages[si].get("head"):
                assert not pend, pend
                a(stages[si]["head"])
                covered = -1
            if gi == gstar and si + 1 < len(stages):
                emit(len(pend))
                for x in state.pop("defer", []):
                    a(x)
                if drain:
                    a("s_waitcnt lgkmcnt(0)")
                    covered = len(issued) - 1
                a(stages[si + 1]["bar"])
                pend.extend((None, x) for x in stages[si + 1].get("bar_pend", []))
                state["opened"] = si + 1
                collect(f + L - 1)
            def lastidx(ff):
                s_, _, uu = seq[ff]
                return max(len(issued) - 1 - issued[::-1].index(f"{s_}:{nm}") for nm in uu["need"])
            w = []
            if lastidx(f) > covered:
                tgt = lastidx(f)
                for ff in range(f + 1, min(f + wait_every, n_real)):
                    if seq[ff][0] != si:
                        break
                    try:
                        tgt = max(tgt, lastidx(ff))
                    except ValueError:
                        break
                n = len(issued) - 1 - tgt
                assert n <= 15, n
                w.append(f"lgkmcnt({n})")
                covered = tgt
            if u.get("vneed") is not None:
                w.insert(0, f"vmcnt({len(vis) - 1 - vis.index(u['vneed'])})")
            if u.get("vm") is not None:
                npv = sum(1 for nm_, t_ in pend if t_.strip().startswith("buffer_load"))
                w.insert(0, f"vmcnt({u['vm'] - npv})")
            if w:
                a("s_waitcnt " + " ".join(w))
            if u.get("before"):
                a(u["before"])
            if state.get("defer") and not pend:
                n_ = self.o.get("npre", 7)
                pend.extend((None, x) for x in state["defer"][:n_])
                state["defer"] = state["defer"][n_:]
            collect(f + L)
            if state.get("mix"):
                k_ = state.pop("mix")
                head_, rest_ = pend[:k_], pend[k_:]
                pend[:] = [x for pr in zip(head_, rest_) for x in pr] + head_[len(rest_):] + rest_[len(head_):]
            nm_ = len(u["mf"])
            for k, m in enumerate(u["mf"]):
                a(m)
                left = nm_ - k
                if drain and gi >= gstar:
                    left += sum(len(uu["mf"]) for uu in stages[si]["uses"][gi + 1:])
                    extra = 2 * (nuse - 1 - gi)
                    emit(-(-(len(pend) + extra) // left) if left > 1 else len(pend))
                else:
                    emit(-(-len(pend) // left))
            if u.get("after"):
                items = [x for x in u["after"].split("\n") if x.strip()]
                if gi == nuse - 1:
                    for x in items:
                        out(x)
                else:
                    assert not pend
                    pend.extend((None, x) for x in items)
                    state["mix"] = len(items)
            if gi == nuse - 1 and stages[si].get("tail"):
                a(stages[si]["tail"])

    def prologue(self):
        a = self.a
        a(f"""
        s_cmp_ge_u32 s2, 256
        s_cbranch_scc1 L_exit
        {"v_mov_b32 v254, 0" if self.stamps else ""}
        {"v_mov_b32 v255, 0" if self.stamps else ""}
        {"s_memrealtime s[98:99]" if self.o.get("calib") or "pc1" in self.o else ""}
        {"s_mov_b32 s94, 0" if "probe" in self.o or "pc1" in self.o else ""}
        s_load_dwordx16 s[4:19], s[0:1], 0
        s_load_dwordx8 s[20:27], s[0:1], 64
        """)
        if self.o.get("pf_code") == 2:
            a(f"""
            s_getpc_b64 s[{S_T0}:{S_T0+1}]
            L_pcref:
            s_lshr_b32 s3, s2, 3
            s_mul_i32 s3, s3, 1280
            v_lshlrev_b32 v4, 7, v0
            v_add_u32 v4, s3, v4
            v_min_u32 v4, L_exit-L_pcref, v4
            v_cmp_gt_u32 vcc, 10, v0
            s_and_saveexec_b64 s[{S_T0+2}:{S_T0+3}], vcc
            s_cbranch_execz L_nocpf
            global_load_dword v253, v4, s[{S_T0}:{S_T0+1}]
            L_nocpf:
            s_mov_b64 exec, -1
            """)
        a(f"""
        v_and_b32 v1, 63, v0
        v_lshrrev_b32 v2, 6, v0
        s_and_b32 s{S_XCD}, s2, 7
        v_readfirstlane_b32 s{S_WAVE}, v2
        s_lshr_b32 s{S_J}, s2, 3
        s_waitcnt lgkmcnt(0)
        s_load_dword s{S_TAG}, s[{P_WS}:{P_WS+1}], 0
        """)
        self.srd(R_WS, P_WS, WS_USED)
        self.srd(R_X, P_X, 2048 * 1280)
        self.srd(R_W2, P_W2, 1536 * 4096)
        if self.stamps or self.o.get("dbg") or "probe" in self.o:
            a(f"s_cmp_lg_u32 s{S_WAVE}, 0\ns_cbranch_scc1 L_nost0")
            self.stamp(0, 4)
            a("L_nost0:")
        if self.o.get("tlb"):
            self.tlb_warm()
        if self.o.get("pf_code") == 1:
            self.code_prefetch()
        if self.o.get("prio"):
            a(f"""
            s_sub_u32 s{S_T0}, s{S_WAVE}, 4
            s_cmp_lt_u32 s{S_T0}, 3
            s_cbranch_scc1 L_noprio
            s_setprio 3
            L_noprio:
            """)
        a(f"""
        s_lshr_b32 s{S_T0}, s{S_XCD}, 1
        s_lshl_b32 s{S_T0}, s{S_T0}, 3
        s_lshr_b32 s{S_ST}, s{S_J}, 2
        s_add_u32 s{S_ST}, s{S_ST}, s{S_T0}
        s_and_b32 s{S_T0}, s{S_XCD}, 1
        s_lshl_b32 s{S_T0}, s{S_T0}, 2
        s_and_b32 s{S_DTILE}, s{S_J}, 3
        s_add_u32 s{S_DTILE}, s{S_DTILE}, s{S_T0}
        s_cmp_lt_u32 s{S_XCD}, 4
        s_cbranch_scc1 L_roleB
        """)

    V_W2 = 240

    def f_perm(self):
        a = self.a
        a(f"s_lshl_b32 s{S_M}, s{S_DTILE}, 1\ns_add_u32 s{S_M}, s{S_M}, s{S_ST}\ns_and_b32 s{S_M}, s{S_M}, 7")
        self.perm_setup(S_M, 12, 8, S_PERM, self.o.get("rotF"))

    def w2_setup(self):
        a = self.a
        V = self.V_W2
        self.f_perm()
        a(f"""
        v_lshrrev_b32 v{V}, 3, v1
        v_lshrrev_b32 v{V+1}, 4, v1
        v_lshlrev_b32 v{V+1}, 1, v{V+1}
        v_and_b32 v{V+2}, 7, v1
        v_xor_b32 v{V+1}, v{V+1}, v{V+2}
        v_lshlrev_b32 v{V+1}, 4, v{V+1}
        v_lshl_add_u32 v{V}, v{V}, 12, v{V+1}
        v_add_u32 v{V+1}, {32768-1024}, v{V}
        v_add_u32 v{V+2}, {2*(32768-1024)}, v{V}
        v_add_u32 v{V+3}, {3*(32768-1024)}, v{V}
        s_sub_u32 s{S_T0}, s{S_WAVE}, 5
        s_lshl_b32 s{S_B}, s{S_T0}, 13
        s_lshl_b32 s{S_A}, s{S_T0}, 18
        s_lshl_b32 s{S_T0}, s{S_ST}, 7
        s_add_u32 s{S_A}, s{S_A}, s{S_T0}
        """)

    def w2_issue_at(self, p):
        a = self.a
        V = self.V_W2
        a(f"s_bfe_u32 s{S_T0}, s{S_PERM}, {(4 << 16) | (4 * p):#x}\ns_lshl_b32 s{S_T0}, s{S_T0}, 19\ns_add_u32 s{S_T0}, s{S_T0}, s{S_A}")
        for g in range(2):
            a(f"s_add_u32 m0, s{S_B}, {p*16384 + g*4096}")
            a(f"s_add_u32 s{S_T0}, s{S_T0}, {g*4*32768}")
            for i in range(4):
                a(f"buffer_load_dwordx4 v{V+i}, s[{R_W2}:{R_W2+3}], s{S_T0} offen offset:{i*1024} lds")

    def w2_half(self, g):
        a = self.a
        V = self.V_W2
        if g == 0:
            a(self.perm_next(S_K0, S_PERM, 128 * 4096) + f"s_add_u32 s{S_K0}, s{S_K0}, s{S_A}")
        a(f"s_add_u32 m0, s{S_B}, {g*4096}\ns_add_u32 s{S_T0}, s{S_K0}, {g*4*32768}")
        for i in range(4):
            a(f"buffer_load_dwordx4 v{V+i}, s[{R_W2}:{R_W2+3}], s{S_T0} offen offset:{i*1024} lds")
        if g == 1:
            a(f"s_add_u32 s{S_B}, s{S_B}, 16384")

    def w2_issue(self):
        a = self.a
        V = self.V_W2
        a(self.perm_next(S_T0, S_PERM, 128 * 4096))
        a(f"s_add_u32 s{S_T0}, s{S_T0}, s{S_A}")
        for g in range(2):
            a(f"s_add_u32 m0, s{S_B}, {g*4096}")
            a(f"s_add_u32 s{S_T0}, s{S_T0}, {g*4*32768}")
            for i in range(4):
                a(f"buffer_load_dwordx4 v{V+i}, s[{R_W2}:{R_W2+3}], s{S_T0} offen offset:{i*1024} lds")
        a(f"s_add_u32 s{S_B}, s{S_B}, 16384\ns_and_b32 s{S_B}, s{S_B}, 0x1ffff")

    def w2_prefill(self, n):
        if n == 0:
            return
        a = self.a
        lp = a.label("pf")
        a(f"s_mov_b32 s{S_C}, 0\n{lp}:")
        self.w2_issue()
        a(f"s_add_u32 s{S_C}, s{S_C}, 1\ns_cmp_lt_u32 s{S_C}, {n}\ns_cbranch_scc1 {lp}")

    def if_wave56(self):
        a = self.a
        skip = a.label("n56")
        a(f"s_sub_u32 s{S_T0}, s{S_WAVE}, 5\ns_cmp_lt_u32 s{S_T0}, 2\ns_cbranch_scc0 {skip}")
        return skip

    def role_a(self):
        a = self.a
        a(f"L_roleA:\ns_mov_b32 s{S_FROMA}, 1")
        a(f"s_sub_u32 s{S_MT}, s{S_ST}, 16\ns_mov_b32 s{S_HG}, s{S_DTILE}")
        a(f"s_cmp_ge_u32 s{S_WAVE}, 4\ns_cbranch_scc1 L_A_loader")
        ACC, XF, WF, VXA, VWA = 128, 96, 64, 4, 6
        if self.o.get("ta1") or self.o.get("ta2"):
            self.start_prefetch()
        self.a_thread_map()
        a(f"""
        v_and_b32 v16, 15, v1
        v_lshrrev_b32 v17, 4, v1
        s_lshl_b32 s{S_T0}, s{S_WAVE}, 5
        v_add_u32 v18, s{S_T0}, v16
        v_lshrrev_b32 v19, 1, v16
        v_xor_b32 v19, v17, v19
        v_lshlrev_b32 v19, 4, v19
        v_lshl_add_u32 v{VXA}, v18, 7, v19
        v_xor_b32 v{VXA+1}, 64, v{VXA}
        v_lshrrev_b32 v18, 2, v16
        v_lshl_add_u32 v19, v17, 3, v18
        v_and_b32 v20, 1, v17
        v_lshl_or_b32 v20, v20, 2, v18
        v_lshlrev_b32 v19, 9, v19
        v_lshl_add_u32 v19, v20, 5, v19
        v_and_b32 v20, 3, v16
        v_lshl_add_u32 v19, v20, 3, v19
        v_add_u32 v{VWA}, {A_WOFF}, v19
        """)
        for n in range(1, 8):
            a(f"v_xor_b32 v{VWA+n}, {n<<5}, v{VWA}")
        for r in range(120):
            a(f"v_mov_b32 v{ACC+r}, 0")
        a(f"s_mov_b32 s{S_A}, 0\ns_mov_b32 s{S_B}, 0\ns_mov_b32 s{S_C}, {A_SLOT}\ns_waitcnt lgkmcnt(0)")
        a(f"s_add_u32 s{S_TAG}, s{S_TAG}, {TAG_INC:#x}")

        RING = 6
        D = 6

        def mk_stage(bar, virtual=False, head=None, tail=None):
            uses = []
            for g in range(30):
                ks, n = divmod(g, 15)
                wb = WF + 4 * (g % RING)
                reads = []
                if g == 0:
                    for rb in range(2):
                        reads.append((f"x0{rb}", f"ds_read_b128 {vr(XF+4*rb,4)}, v{VXA} offset:{rb*2048}"))
                if g == 13:
                    for rb in range(2):
                        reads.append((f"x1{rb}", f"ds_read_b128 {vr(XF+8+4*rb,4)}, v{VXA+1} offset:{rb*2048}"))
                off = ks * 16384 + (n >> 3) * 256
                reads.append((f"w{g}a", f"ds_read_b64_tr_b16 {vr(wb,2)}, v{VWA+(n&7)} offset:{off}"))
                reads.append((f"w{g}b", f"ds_read_b64_tr_b16 {vr(wb+2,2)}, v{VWA+(n&7)} offset:{off+2048}"))
                need = [f"w{g}b", f"x{ks}1"]
                mf = []
                for rb in range(2):
                    acc = vr(ACC + (n * 2 + rb) * 4, 4)
                    xf = vr(XF + ks * 8 + rb * 4, 4)
                    wf = vr(wb, 4)
                    if n < 5:
                        mf.append(f"v_mfma_f32_16x16x32_bf16 {acc}, {wf}, {xf}, {acc}")
                    else:
                        mf.append(f"v_mfma_f32_16x16x32_bf16 {acc}, {xf}, {wf}, {acc}")
                u_ = dict(reads=reads, need=need, mf=mf)
                if g == 10 and self.o.get("half0"):
                    u_["before"] = f"s_cmp_lg_u32 s{S_A}, 0\ns_cbranch_scc1 L_A_nb0\ns_barrier\nL_A_nb0:"
                uses.append(u_)
            return dict(uses=uses, bar=bar, virtual=virtual, head=head, tail=tail)

        adv = "s_barrier"
        pre = [f"s_add_u32 s{S_B}, s{S_B}, 1", f"s_cmp_eq_u32 s{S_B}, 3", f"s_cselect_b32 s{S_B}, 0, s{S_B}",
               f"s_cselect_b32 s{S_T0}, {(-2*A_SLOT) & 0xffffffff:#x}, s{S_C}"]
        pre += [f"v_add_u32 v{r}, s{S_T0}, v{r}" for r in range(VXA, VWA + 8)]
        tail = f"s_add_u32 s{S_A}, s{S_A}, 1\ns_cmp_lt_u32 s{S_A}, 10\ns_cbranch_scc1 L_A_loop"
        head = "L_A_loop:\n"
        bar0 = "s_barrier"
        self.uw_srd()
        if self.o.get("tw2") == 2:
            self.srd(R_M, P_WO, 640 * 1280)
            a(f"""
            v_lshlrev_b32 v252, 7, v1
            s_lshl_b32 s{S_T0}, s{S_MT}, 3
            s_add_u32 s{S_T0}, s{S_T0}, s{S_HG}
            s_lshl_b32 s{S_T0}, s{S_T0}, 2
            s_add_u32 s{S_T0}, s{S_T0}, s{S_WAVE}
            s_mul_i32 s{S_D}, s{S_T0}, {8192 if self.o.get("hW2") else 12288}
            s_add_u32 s{S_KST}, s{S_D}, 8192
            s_mul_i32 s{S_PAR}, s{S_T0}, 1664
            s_and_b32 s{S_M}, s{S_J}, 7
            s_add_u32 s{S_M}, s{S_M}, {self.o.get("tw2at", 1)}
            """)
            head += f"""
            s_cmp_lg_u32 s{S_A}, s{S_M}
            s_cbranch_scc1 L_A_nt2
            buffer_load_dword v253, v252, s[{R_W2}:{R_W2+3}], s{S_D} offen
            s_mov_b32 exec_hi, 0
            {"" if self.o.get("hW2") else f"buffer_load_dword v253, v252, s[{R_W2}:{R_W2+3}], s{S_KST} offen"}
            s_mov_b32 exec_lo, 0x1fff
            {"" if self.o.get("woLN") else f"buffer_load_dword v253, v252, s[{R_M}:{R_M+3}], s{S_PAR} offen"}
            s_mov_b64 exec, -1
            L_A_nt2:
            """
        if "promA" in self.o:
            head += f"s_cmp_lg_u32 s{S_A}, {self.o['promA']}\ns_cbranch_scc1 L_A_npr\n" + self.pf_rest_plain() + "L_A_npr:\n"
        ta2 = self.o.get("ta2")
        if ta2 == 1:
            a(self.pf_rest())
        elif ta2 == 2:
            bar0 += "\n" + self.pf_rest()
        elif ta2:
            head += f"s_cmp_lg_u32 s{S_A}, {ta2-2}\ns_cbranch_scc1 L_A_npf\n" + self.pf_rest() + "L_A_npf:\n"
        self.pipeline([mk_stage(bar0, head=head, tail=tail), dict(mk_stage(adv, virtual=True), pre=pre)], 5, 30 - 3, wait_every=self.o.get('we', 2))
        self.stamp(2, 16)
        PK, VV, ONES, KVD, ZD = 16, 36, 56, 64, 116
        a(f"""
        L_A_tail:
        s_mov_b32 s{S_K0}, {LOG2E:#x}
        s_mov_b32 s{S_K0+1}, {LOG2E:#x}
        s_mov_b32 s{S_K0+2}, {f2u(1e-6):#x}
        s_mul_i32 s{S_T0}, s{S_WAVE}, {EXCH_ST}
        s_add_u32 s{S_T0}, s{S_T0}, {EXCH}
        v_lshlrev_b32 v4, 4, v1
        v_add_u32 v4, s{S_T0}, v4
        v_and_b32 v5, 15, v1
        v_lshlrev_b32 v5, 2, v5
        v_add_u32 v5, s{S_T0}, v5
        """)
        for k in range(4):
            a(f"v_mov_b32 v{ONES+k}, 0x3f803f80")

        def phi(base, n, t):
            for i in range(0, n, 4):
                r = base + i
                a(f"v_pk_mul_f32 {vr(t,2)}, {vr(r,2)}, s[{S_K0}:{S_K0+1}]")
                a(f"v_pk_mul_f32 {vr(t+2,2)}, {vr(r+2,2)}, s[{S_K0}:{S_K0+1}]")
                for k in range(4):
                    a(f"v_exp_f32_e64 v{t+k}, v{t+k} clamp")
                for k in range(4):
                    a(f"v_max_f32 v{r+k}, s{S_K0+2}, v{r+k}")
                a(f"v_pk_add_f32 {vr(r,2)}, {vr(r,2)}, {vr(t,2)}")
                a(f"v_pk_add_f32 {vr(r+2,2)}, {vr(r+2,2)}, {vr(t+2,2)}")

        def pack(dst, src0, src1):
            a(f"v_cvt_pk_bf16_f32 v{dst}, v{src0}, v{src0+1}\nv_cvt_pk_bf16_f32 v{dst+1}, v{src0+2}, v{src0+3}")
            if src1 is None:
                a(f"v_mov_b32 v{dst+2}, 0\nv_mov_b32 v{dst+3}, 0")
            else:
                a(f"v_cvt_pk_bf16_f32 v{dst+2}, v{src1}, v{src1+1}\nv_cvt_pk_bf16_f32 v{dst+3}, v{src1+2}, v{src1+3}")

        for b in range(5):
            pack(VV + 4 * b, ACC + (10 + b) * 8, ACC + (10 + b) * 8 + 4)
        a("s_waitcnt lgkmcnt(0)")
        ZD = ACC + 80

        def writes(x):
            for y in range(5):
                if abs(x - y) <= 1:
                    a(f"ds_write_b128 v4, {vr(KVD+4*(2*x+y),4)} offset:{(2*x+y)*1024}")
            a(f"ds_write_b32 v5, v{ZD+4*x} offset:{13312+64*x}")
        phi(ACC + 40, 40, 60)
        for x in range(5):
            pack(PK + 4 * x, ACC + (5 + x) * 8, ACC + (5 + x) * 8 + 4)
        a("s_nop 1")
        for x in range(5):
            for y in range(5):
                if abs(x - y) <= 1:
                    a(f"v_mfma_f32_16x16x32_bf16 {vr(KVD+4*(2*x+y),4)}, {vr(PK+4*x,4)}, {vr(VV+4*y,4)}, 0")
            a(f"v_mfma_f32_16x16x32_bf16 {vr(ZD+4*x,4)}, {vr(ONES,4)}, {vr(PK+4*x,4)}, 0")
            if x >= 3:
                writes(x - 3)
        for x in range(2, 5):
            writes(x)
        self.stamp(10, 40)
        a("s_waitcnt lgkmcnt(0)\ns_barrier")
        self.stamp(11, 40)
        self.a_reduce_publish(64)
        self.stamp(12, 40)
        a("v_lshlrev_b32 v59, 4, v1\ns_barrier")
        self.stamp(14, 40)
        self.wot_preload(59)
        PQ = 16
        phi(ACC, 40, 60)
        for ts in range(3):
            for rb in range(2):
                pack(PQ + (ts * 2 + rb) * 4, ACC + (2 * ts * 2 + rb) * 4, None if ts == 2 else ACC + ((2 * ts + 1) * 2 + rb) * 4)
        self.f_setup()
        a("s_barrier")
        a(f"""
        v_and_b32 v63, 15, v1
        v_lshlrev_b32 v63, 2, v63
        s_lshl_b32 s{S_T0}, s{S_MT}, 7
        s_lshl_b32 s{S_T0+1}, s{S_WAVE}, 5
        s_add_u32 s{S_T0}, s{S_T0}, s{S_T0+1}
        s_lshl_b32 s{S_T0}, s{S_T0}, 2
        s_add_u32 s{S_T0}, s{S_T0}, {G_OFF}
        buffer_load_dword v62, v63, s[{R_WS}:{R_WS+3}], s{S_T0} offen sc1
        buffer_load_dword v61, v63, s[{R_WS}:{R_WS+3}], s{S_T0} offen offset:64 sc1
        """)
        SG1, SG2 = 93, S_M
        a(f"""
        v_lshrrev_b32 v40, 4, v1
        v_cmp_gt_u32 s[{S_MSK}:{S_MSK+1}], 1, v40
        v_cmp_gt_u32 s[{S_MSK+2}:{S_MSK+3}], 2, v40
        v_cmp_gt_u32 s[{S_MSK+4}:{S_MSK+5}], 3, v40
        s_lshl_b32 s{S_T0}, s{S_MT}, 3
        s_lshl_b32 s{S_T0+1}, s{S_WAVE}, 1
        s_add_u32 s{S_T0}, s{S_T0}, s{S_T0+1}
        s_mul_i32 s{S_T0}, s{S_T0}, {GO_ST}
        s_add_u32 s{S_T0}, s{S_T0}, {GO}
        s_lshl_b32 s{SG1}, s{S_HG}, 11
        s_add_u32 s{SG1}, s{SG1}, s{S_T0}
        s_lshl_b32 s{SG2}, s{S_HG}, 9
        s_add_u32 s{SG2}, s{SG2}, s{S_T0}
        s_add_u32 s{SG2}, s{SG2}, 16384
        v_lshlrev_b32 v40, 4, v1
        v_lshlrev_b32 v41, 3, v1
        v_add_u32 v60, {KVT}, v40
        """)
        self.a_gather(64)
        a("s_waitcnt lgkmcnt(0)\ns_barrier")
        self.stamp(4, 40)
        FR = 64
        used = [11, 12, 13, 0, 2, 3, 4, 5, 7, 8, 9, 10]
        for f in used:
            a(f"ds_read_b128 {vr(FR+4*f,4)}, v60 offset:{f*1024}")
        NUM, DEN = 128, 120
        kts = {0: [0], 1: [0, 1], 2: [0, 1], 3: [1, 2], 4: [1, 2]}
        a("s_waitcnt lgkmcnt(9)")
        for ts in range(3):
            for rb in range(2):
                c = "0" if ts == 0 else vr(DEN + 4 * rb, 4)
                a(f"v_mfma_f32_16x16x32_bf16 {vr(DEN+4*rb,4)}, {vr(FR+4*(11+ts),4)}, {vr(PQ+(ts*2+rb)*4,4)}, {c}")
        a("s_waitcnt lgkmcnt(0)")
        gv = {0: 62, 1: 61}
        fill = [f"v_add_f32 v{DEN+i}, s{S_K0+2}, v{DEN+i}" for i in range(8)]
        fill += [f"v_rcp_f32 v{DEN+i}, v{DEN+i}" for i in range(8)]
        fill += [f"v_mul_f32 v{DEN+i}, v{gv[i >> 2]}, v{DEN+i}" for i in range(8)]
        nm = 0
        for rb in range(2):
            for b in range(5):
                for i, ts in enumerate(kts[b]):
                    d = vr(NUM + (rb * 5 + b) * 4, 4)
                    c = "0" if i == 0 else d
                    a(f"v_mfma_f32_16x16x32_bf16 {d}, {vr(FR+4*(2*b+ts),4)}, {vr(PQ+(ts*2+rb)*4,4)}, {c}")
                    nm += 1
                    if nm >= 7:
                        for _ in range(2):
                            if fill:
                                a(fill.pop(0))
        assert not fill
        for rb in range(2):
            d = DEN + 4 * rb
            a(f"v_cndmask_b32 v44, v{d+1}, v{d}, s[{S_MSK}:{S_MSK+1}]")
            a(f"v_cndmask_b32 v45, v{d+2}, v{d+1}, s[{S_MSK+2}:{S_MSK+3}]")
            a(f"v_cndmask_b32 v46, v{d+3}, v{d+2}, s[{S_MSK+4}:{S_MSK+5}]")
            sc = [d, 44, 45, 46, d + 3]
            for b in range(5):
                for k in range(4):
                    r = NUM + (rb * 5 + b) * 4 + k
                    a(f"v_mul_f32 v{r}, v{sc[b]}, v{r}")
            o = 16 + rb * 12
            n0 = NUM + rb * 20
            pack(o, n0, n0 + 4)
            pack(o + 4, n0 + 8, n0 + 12)
            a(f"v_cvt_pk_bf16_f32 v{o+8}, v{n0+16}, v{n0+17}\nv_cvt_pk_bf16_f32 v{o+9}, v{n0+18}, v{n0+19}")
            a(f"buffer_store_dwordx4 {vr(o,4)}, v40, s[{R_WS}:{R_WS+3}], s{SG1} offen sc1")
            a(f"buffer_store_dwordx4 {vr(o+4,4)}, v40, s[{R_WS}:{R_WS+3}], s{SG1} offen offset:1024 sc1")
            a(f"buffer_store_dwordx2 {vr(o+8,2)}, v41, s[{R_WS}:{R_WS+3}], s{SG2} offen sc1")
            if rb == 0:
                a(f"s_add_u32 s{SG1}, s{SG1}, {GO_ST}\ns_add_u32 s{SG2}, s{SG2}, {GO_ST}")
        self.stamp(5, 40)
        a("s_branch L_F_comp")

        a("L_A_loader:")
        VX, VW = 4, 8
        self.srd(R_W, P_WQKV, 640 * 3840)
        a(f"""
        s_sub_u32 s{S_D}, s{S_WAVE}, 4
        v_lshrrev_b32 v16, 3, v1
        v_lshrrev_b32 v17, 4, v1
        v_and_b32 v18, 7, v1
        v_xor_b32 v17, v17, v18
        v_lshlrev_b32 v17, 4, v17
        v_mul_u32_u24 v16, 1280, v16
        v_add_u32 v{VX}, v16, v17
        v_xor_b32 v18, 64, v{VX}
        v_add_u32 v{VX+1}, {8*1280-1024}, v18
        v_add_u32 v{VX+2}, {2*(8*1280-1024)}, v{VX}
        v_add_u32 v{VX+3}, {3*(8*1280-1024)}, v18
        s_lshl_b32 s{S_T0}, s{S_MT}, 7
        s_lshl_b32 s{S_T0+1}, s{S_D}, 5
        s_add_u32 s{S_T0}, s{S_T0}, s{S_T0+1}
        s_mul_i32 s{S_A}, s{S_T0}, 1280
        s_lshl_b32 s{S_C}, s{S_D}, 12
        """)
        def issue_x():
            a(f"s_mov_b32 m0, s{S_C}\ns_nop 0")
            for i in range(4):
                a(f"buffer_load_dwordx4 v{VX+i}, s[{R_X}:{R_X+3}], s{S_A} offen offset:{i*1024} lds")
            a(f"s_add_u32 s{S_A}, s{S_A}, 128")

        def issue_w():
            for g in range(2):
                a(f"s_add_u32 m0, s{S_C}, {A_WOFF + g*16384}\ns_add_u32 s{S_T0}, s{S_B}, {g*32*3840}")
                for i in range(4):
                    a(f"buffer_load_dwordx4 v{VW+i}, s[{R_W}:{R_W+3}], s{S_T0} offen offset:{i*1024} lds")
            a(f"s_add_u32 s{S_B}, s{S_B}, {64*3840}")

        def next_slot():
            a(f"s_add_u32 s{S_C}, s{S_C}, {A_SLOT}\ns_cmp_ge_u32 s{S_C}, {3*A_SLOT}\ns_cselect_b32 s{S_T0}, {3*A_SLOT}, 0\ns_sub_u32 s{S_C}, s{S_C}, s{S_T0}")

        issue_x()
        a(f"""
        v_lshrrev_b32 v16, 5, v1
        v_bfe_u32 v17, v1, 1, 4
        v_and_b32 v18, 1, v1
        v_lshlrev_b32 v18, 4, v18
        v_mul_u32_u24 v19, 3840, v16
        v_add_u32 v18, v18, v19
        """)
        a(f"s_and_b32 s{S_T0}, s{S_D}, 1\ns_lshl_b32 s{S_T0}, s{S_T0}, 2\nv_or_b32 v16, s{S_T0}, v16")
        for i in (0, 1):
            a(f"""
            v_or_b32 v19, {2*i}, v16
            v_xor_b32 v19, v17, v19
            v_min_u32 v19, 14, v19
            v_mul_u32_u24 v20, 13, v19
            v_lshrrev_b32 v20, 6, v20
            v_mul_u32_u24 v20, 1120, v20
            v_lshl_add_u32 v19, v19, 5, v20
            v_add_u32 v19, v19, v18
            v_add_u32 v{VW+i}, {2*i*3840 - i*1024}, v19
            v_add_u32 v{VW+i+2}, {2*(i+2)*3840 - (i+2)*1024}, v19
            """)
        a(f"""
        s_mul_i32 s{S_B}, s{S_HG}, 160
        s_mul_i32 s{S_T0}, s{S_D}, {8*3840}
        s_add_u32 s{S_B}, s{S_B}, s{S_T0}
        """)
        issue_w()
        for _ in range(2):
            next_slot()
            issue_x()
            issue_w()
        a(f"s_waitcnt lgkmcnt(0)\ns_add_u32 s{S_TAG}, s{S_TAG}, {TAG_INC:#x}")
        if self.o.get("half0"):
            a("s_waitcnt vmcnt(28)\ns_barrier")
        a("s_waitcnt vmcnt(24)\ns_barrier")
        self.stamp(1, 16)
        rotA = self.o.get("rotA")
        if rotA:
            a(f"s_lshl_b32 s{S_M}, s{S_HG}, 1\ns_add_u32 s{S_M}, s{S_M}, s{S_MT}\ns_and_b32 s{S_M}, s{S_M}, 7")
            self.perm_setup(S_M, 7, 8, S_PERM, rotA)
            a(f"s_mov_b32 s{S_KST}, s{S_A}\ns_mov_b32 s{S_PAR}, s{S_B}")
        a(f"s_mov_b32 s{S_CNT}, 1\nL_A_lloop:")
        if rotA:
            a(self.perm_next(S_B, S_PERM, 1))
            a(f"s_lshl_b32 s{S_A}, s{S_B}, 7\ns_add_u32 s{S_A}, s{S_A}, s{S_KST}\ns_mul_i32 s{S_B}, s{S_B}, {64*3840}\ns_add_u32 s{S_B}, s{S_B}, s{S_PAR}")
        a("s_waitcnt vmcnt(12)\ns_barrier")
        self.stamp(16, 16, dyn=S_CNT)
        next_slot()
        issue_x()
        issue_w()
        a(f"s_add_u32 s{S_CNT}, s{S_CNT}, 1\ns_cmp_le_u32 s{S_CNT}, 7\ns_cbranch_scc1 L_A_lloop")
        tw = 3 if self.o.get("tw2") == 1 else 0
        a(f"s_waitcnt vmcnt(12)\ns_barrier")
        if tw:
            self.w2_touch()
        self.stamp(24, 16)
        self.w2_setup()
        self.a_thread_map()
        a(f"""
        s_mul_i32 s{S_T0}, s{S_DTILE}, {FS}
        s_add_u32 s{S_T0}, s{S_T0}, {F_WOT}
        v_mov_b32 v26, s{S_T0}
        v_and_b32 v27, 3, v1
        s_lshl_b32 s{S_T0}, s{S_MT}, 2
        v_add_u32 v27, s{S_T0}, v27
        v_mul_u32_u24 v27, {FS}, v27
        v_add_u32 v27, {F_LN}, v27
        v_cmp_gt_u32 vcc, 32, v1
        s_nop 1
        v_cndmask_b32 v26, v27, v26, vcc
        """)
        a(f"s_waitcnt vmcnt({tw})\ns_barrier")
        a(f"buffer_load_dword v28, v26, s[{R_WS}:{R_WS+3}], 0 offen sc1")
        self.stamp(25, 16)
        self.code_touch([("L_A_tail", 0), ("L_A_post", 0), ("L_F_comp", 0), ("L_F_comp", 1)])
        a("L_A_post:")
        eA = self.o.get("eA", 2)
        early = [3, 4, 5, 0, 1, 2]
        nE = self.o.get("nE", 6)
        sk = self.if_wave56()
        for p in early[:eA]:
            self.w2_issue_at(p)
        a(f"{sk}:\ns_barrier")
        self.stamp(26, 16)
        sk = self.if_wave56()
        for p in early[eA:nE]:
            self.w2_issue_at(p)
        a(f"{sk}:")
        a(f"s_cmp_eq_u32 s{S_WAVE}, 7\ns_cbranch_scc1 L_A_poller")
        a("s_barrier")
        self.a_reduce_publish(64)
        self.stamp(15, 40)
        a("s_barrier")
        self.kvt_zero()
        skip = self.if_wave56()
        for p in early[nE:] + [6, 7]:
            self.w2_issue_at(p)
        a(f"s_mov_b32 s{S_PERM}, s{S_PERM+1}")
        a("s_barrier")
        self.a_gather(64)
        a("s_waitcnt lgkmcnt(0)\ns_barrier")
        a("s_branch L_F_loader")
        a(f"{skip}:\ns_barrier")
        self.a_gather(64)
        a("s_waitcnt lgkmcnt(0)\ns_barrier")
        a("s_branch L_F_u4")
        a("L_A_poller:")
        a(f"s_waitcnt vmcnt(0)\nv_cmp_ne_u32 vcc, s{S_TAG}, v28\ns_nop 1\ns_cmp_eq_u64 vcc, 0\ns_cbranch_scc1 L_A_pok")
        self.poll([26], 18)
        a("L_A_pok:")
        self.stamp(13, 16)
        a("s_barrier\ns_barrier")
        self.kvt_zero()
        self.stamp(3, 16)
        a("s_barrier\ns_barrier")
        a("s_branch L_F_poller")
        self.a_gather_body(64)

    def code_touch(self, ranges):
        a = self.a
        if not self.o.get("ctouch"):
            return 0
        lab, ref = a.label("nct"), a.label("pc")
        a(f"s_cmp_lg_u32 s{S_WAVE}, 7\ns_cbranch_scc1 {lab}\ns_getpc_b64 s[{S_T0}:{S_T0+1}]\n{ref}:\nv_lshlrev_b32 v24, 7, v1")
        for (start, k) in ranges:
            a(f"s_add_u32 s{S_T0+2}, s{S_T0}, {start}-{ref}+{k*8192}\ns_addc_u32 s{S_T0+3}, s{S_T0+1}, {'-1' if start == 'L_A_tail' else '0'}")
            a(f"v_min_u32 v25, L_exit-{start}-{k*8192}, v24\nglobal_load_dword v253, v25, s[{S_T0+2}:{S_T0+3}]")
        a(f"{lab}:")
        return len(ranges)

    def kvt_zero(self):
        a = self.a
        a(f"v_lshlrev_b32 v16, 4, v1\ns_lshl_b32 s{S_T0}, s{S_D}, 12\ns_add_u32 s{S_T0}, s{S_T0}, {KVT}\nv_add_u32 v16, s{S_T0}, v16")
        a("v_mov_b32 v20, 0\nv_mov_b32 v21, 0\nv_mov_b32 v22, 0\nv_mov_b32 v23, 0")
        for i in range(4):
            a(f"ds_write_b128 v16, v[20:23] offset:{i*1024}")
        a("s_waitcnt lgkmcnt(0)")

    def start_prefetch(self):
        a = self.a
        self.srd(R_W, P_WQKV, 640 * 3840)
        a(f"""
        s_lshl_b32 s{S_T0}, s{S_J}, 2
        s_add_u32 s{S_T0}, s{S_T0}, s{S_WAVE}
        v_lshrrev_b32 v16, 2, v1
        v_and_b32 v17, 3, v1
        v_mul_u32_u24 v16, 1280, v16
        v_lshl_add_u32 v16, v17, 7, v16
        s_lshr_b32 s{S_T0+2}, s{S_MT}, 3
        s_lshl_b32 s{S_T0+2}, s{S_T0+2}, 7
        s_add_u32 s{S_T0+2}, s{S_T0+2}, s{S_T0}
        s_mul_i32 s{S_DT}, s{S_T0+2}, {8*1280}
        v_lshrrev_b32 v19, 4, v1
        v_and_b32 v17, 15, v1
        v_min_u32 v17, 14, v17
        v_mul_u32_u24 v18, 13, v17
        v_lshrrev_b32 v18, 6, v18
        v_mul_u32_u24 v18, 640, v18
        v_lshl_add_u32 v18, v17, 7, v18
        v_mul_u32_u24 v19, 3840, v19
        v_add_u32 v112, v18, v19
        s_lshr_b32 s{S_T0+2}, s{S_HG}, 2
        s_mul_i32 s{S_T0+2}, s{S_T0+2}, 640
        s_mul_i32 s{S_FT}, s{S_T0}, {2*3840}
        s_add_u32 s{S_FT}, s{S_FT}, s{S_T0+2}
        """)
        if self.o.get("ta1"):
            a(f"""
            s_mov_b32 exec_hi, 0
            buffer_load_dword v253, v112, s[{R_W}:{R_W+3}], s{S_FT} offen {self.nt('nta')}
            buffer_load_dword v253, v16, s[{R_X}:{R_X+3}], s{S_DT} offen {self.nt('ntax')}
            s_mov_b32 exec_hi, -1
            """)
        a(f"""
        s_mul_i32 s{S_FT}, s{S_T0}, {3*3840}
        s_add_u32 s{S_FT}, s{S_FT}, s{S_T0+2}
        s_add_u32 s{S_FT}, s{S_FT}, {256*3840}
        v_lshrrev_b32 v16, 3, v1
        v_and_b32 v17, 7, v1
        v_min_u32 v17, 5, v17
        v_mul_u32_u24 v16, 1280, v16
        v_lshl_add_u32 v113, v17, 7, v16
        s_add_u32 s{S_DT}, s{S_DT}, 512
        """)

    def pf_rest_plain(self):
        return f"""s_waitcnt vmcnt(0)
        s_mov_b32 exec_hi, 0xffff
        buffer_load_dword v253, v112, s[{R_W}:{R_W+3}], s{S_FT} offen
        s_mov_b32 exec_hi, -1
        buffer_load_dword v253, v113, s[{R_X}:{R_X+3}], s{S_DT} offen
        """

    def pf_rest(self):
        return f"""s_mov_b32 exec_hi, 0xffff
        buffer_load_dword v253, v112, s[{R_W}:{R_W+3}], s{S_FT} offen {self.nt('nta')}
        s_mov_b32 exec_hi, -1
        buffer_load_dword v253, v113, s[{R_X}:{R_X+3}], s{S_DT} offen {self.nt('ntax')}
        """

    def w2_touch(self):
        a = self.a
        self.srd(R_W2, P_W2, 1536 * 4096)
        a(f"""
        v_lshlrev_b32 v48, 7, v1
        s_lshl_b32 s{S_T0}, s{S_MT}, 3
        s_add_u32 s{S_T0}, s{S_T0}, s{S_HG}
        s_lshl_b32 s{S_T0}, s{S_T0}, 2
        s_add_u32 s{S_T0}, s{S_T0}, s{S_D}
        s_mul_i32 s{S_T0}, s{S_T0}, 12288
        buffer_load_dword v253, v48, s[{R_W2}:{R_W2+3}], s{S_T0} offen
        s_add_u32 s{S_T0}, s{S_T0}, 8192
        s_mov_b32 exec_hi, 0
        buffer_load_dword v253, v48, s[{R_W2}:{R_W2+3}], s{S_T0} offen
        """)
        self.srd(R_P, P_WO, 640 * 1280)
        a(f"""
        s_lshl_b32 s{S_T0}, s{S_MT}, 3
        s_add_u32 s{S_T0}, s{S_T0}, s{S_HG}
        s_lshl_b32 s{S_T0}, s{S_T0}, 2
        s_add_u32 s{S_T0}, s{S_T0}, s{S_D}
        s_mul_i32 s{S_T0}, s{S_T0}, 1664
        s_mov_b32 exec_lo, 0x1fff
        buffer_load_dword v253, v48, s[{R_P}:{R_P+3}], s{S_T0} offen
        s_mov_b64 exec, -1
        """)

    def tlb_warm(self):
        a = self.a
        mode = self.o["tlb"]
        wv = self.o.get("tlbw", 3)
        a(f"s_cmp_lg_u32 s{S_WAVE}, {wv}\ns_cbranch_scc1 L_notlb")
        self.srd(R_OUT, P_OUT, 2048 * 1280)
        self.srd(R_M, P_B2, 4096)
        self.srd(R_P, P_WO, 640 * 1280)
        self.srd(R_W, P_W1, 2048 * 3072)
        if mode == 1:
            a("v_lshlrev_b32 v4, 20, v1\nv_min_u32 v4, 0xf00000, v4\ns_mov_b64 exec, 0xffff")
            so = "0"
        else:
            a(f"v_lshlrev_b32 v4, 21, v1\ns_lshl_b32 s{S_T0}, s{S_J}, 16\ns_mov_b64 exec, 0x1f")
            so = f"s{S_T0}"
        for r in (R_WS, R_W2, R_OUT, R_W, R_P, R_M):
            a(f"buffer_load_dword v253, v4, s[{r}:{r+3}], {so} offen sc1")
        a("s_mov_b64 exec, -1\nL_notlb:")

    def code_prefetch(self):
        a = self.a
        a(f"""
        s_cmp_lg_u32 s{S_WAVE}, 3
        s_cbranch_scc1 L_nocpf
        s_cmp_ge_u32 s{S_J}, 5
        s_cbranch_scc1 L_nocpf
        s_getpc_b64 s[{S_T0}:{S_T0+1}]
        L_pcref:
        s_lshl_b32 s{S_T0+2}, s{S_J}, 13
        v_lshlrev_b32 v4, 7, v1
        v_add_u32 v4, s{S_T0+2}, v4
        v_min_u32 v4, L_end-L_pcref, v4
        global_load_dword v253, v4, s[{S_T0}:{S_T0+1}]
        L_nocpf:
        """)

    def a_thread_map(self):
        a = self.a
        a(f"""
        v_mul_u32_u24 v16, 625, v0
        v_lshrrev_b32 v16, 16, v16
        v_mul_u32_u24 v17, 105, v16
        v_sub_u32 v17, v0, v17
        v_mul_u32_u24 v19, 205, v17
        v_lshrrev_b32 v19, 12, v19
        v_mul_u32_u24 v18, 20, v19
        v_cmp_lt_u32 vcc, 99, v17
        v_sub_u32 v18, v17, v18
        s_nop 0
        v_cndmask_b32 v19, v19, v18, vcc
        v_mad_u32_u24 v19, v16, 5, v19
        v_mad_u32_u24 v20, v16, 20, v18
        v_lshrrev_b32 v21, 2, v19
        v_and_b32 v22, 3, v19
        v_lshrrev_b32 v23, 4, v20
        v_and_b32 v20, 15, v20
        v_lshl_add_u32 v20, v22, 4, v20
        v_lshl_add_u32 v2, v21, 1, v23
        v_lshlrev_b32 v2, 6, v2
        v_add_u32 v2, v2, v20
        v_lshlrev_b32 v2, 4, v2
        v_lshlrev_b32 v3, 4, v19
        v_add_u32 v3, 13312, v3
        v_cmp_lt_u32 vcc, 99, v17
        v_lshrrev_b32 v24, 1, v21
        v_and_b32 v21, 1, v21
        v_cndmask_b32 v2, v2, v3, vcc
        v_lshl_add_u32 v3, v23, 1, v24
        v_add_u32 v24, 11, v24
        v_lshl_add_u32 v22, v22, 4, v16
        v_cndmask_b32 v3, v3, v24, vcc
        v_cndmask_b32 v20, v20, v22, vcc
        v_lshl_add_u32 v3, v3, 6, v20
        v_lshlrev_b32 v3, 4, v3
        v_lshl_add_u32 v3, v21, 3, v3
        v_add_u32 v3, {KVT}, v3
        v_mov_b32 v25, 2
        v_cndmask_b32 v25, 1, v25, vcc
        v_mov_b32 v16, 420
        v_cmp_gt_u32 vcc, v16, v0
        v_lshlrev_b32 v14, 4, v0
        s_nop 0
        v_cndmask_b32 v15, 0, v25, vcc
        v_cndmask_b32 v2, 0, v2, vcc
        v_add_u32 v2, {EXCH}, v2
        """)

    def a_reduce_publish(self, T):
        a = self.a
        for w in range(4):
            a(f"ds_read_b128 {vr(T+4*w,4)}, v2 offset:{w*EXCH_ST}")
        a(f"""
        s_lshl_b32 s{S_T0}, s{S_HG}, 4
        s_add_u32 s{S_T0}, s{S_T0}, s{S_MT}
        s_mul_i32 s{S_T0}, s{S_T0}, {KVP_ST}
        s_add_u32 s{S_T0}, s{S_T0}, {KVP}
        v_cmp_ne_u32 vcc, 0, v15
        s_waitcnt lgkmcnt(0)
        v_pk_add_f32 {vr(T,2)}, {vr(T,2)}, {vr(T+4,2)}
        v_pk_add_f32 {vr(T+2,2)}, {vr(T+2,2)}, {vr(T+6,2)}
        v_pk_add_f32 {vr(T+8,2)}, {vr(T+8,2)}, {vr(T+12,2)}
        v_pk_add_f32 {vr(T+10,2)}, {vr(T+10,2)}, {vr(T+14,2)}
        v_pk_add_f32 {vr(T,2)}, {vr(T,2)}, {vr(T+8,2)}
        v_pk_add_f32 {vr(T+2,2)}, {vr(T+2,2)}, {vr(T+10,2)}
        v_mov_b32_sdwa v{T}, s{S_TAG} dst_sel:BYTE_0 dst_unused:UNUSED_PRESERVE src0_sel:BYTE_0
        v_mov_b32_sdwa v{T+1}, s{S_TAG} dst_sel:BYTE_0 dst_unused:UNUSED_PRESERVE src0_sel:BYTE_1
        v_mov_b32_sdwa v{T+2}, s{S_TAG} dst_sel:BYTE_0 dst_unused:UNUSED_PRESERVE src0_sel:BYTE_2
        v_mov_b32_sdwa v{T+3}, s{S_TAG} dst_sel:BYTE_0 dst_unused:UNUSED_PRESERVE src0_sel:BYTE_3
        s_mov_b64 exec, vcc
        buffer_store_dwordx4 {vr(T,4)}, v14, s[{R_WS}:{R_WS+3}], s{S_T0} offen sc1
        s_mov_b64 exec, -1
        """)

    S_RET = 68

    def a_gather(self, T):
        self.a(f"s_call_b64 s[{self.S_RET}:{self.S_RET+1}], L_gather")

    def a_gather_body(self, T):
        a = self.a
        MK = S_T0 + 4
        a("L_gather:")
        a(f"s_mul_i32 s{S_T0+1}, s{S_HG}, {16*KVP_ST}\ns_add_u32 s{S_T0+1}, s{S_T0+1}, {KVP}")
        a(f"v_cmp_ne_u32 s[{MK}:{MK+1}], 0, v15\ns_mov_b32 s{S_CNT}, 0\ns_lshl_b32 s{S_T0+2}, s{S_MT}, 1\ns_mov_b64 exec, s[{MK}:{MK+1}]")

        def pair(m):
            a(f"s_add_u32 s{S_T0}, s{S_T0+2}, {m}\ns_and_b32 s{S_T0}, s{S_T0}, 15\ns_mul_i32 s{S_T0}, s{S_T0}, {KVP_ST}\ns_add_u32 s{S_T0}, s{S_T0}, s{S_T0+1}")
            a(f"buffer_load_dwordx4 {vr(T+4*m,4)}, v14, s[{R_WS}:{R_WS+3}], s{S_T0} offen sc1\ns_add_u32 s{S_T0}, s{S_T0}, {KVP_ST}")
            a(f"buffer_load_dwordx4 {vr(T+4*m+4,4)}, v14, s[{R_WS}:{R_WS+3}], s{S_T0} offen sc1")
        for m in range(0, 16, 2):
            pair(m)
        for m in range(0, 16, 2):
            a(f"s_waitcnt vmcnt({14-m})\nL_gchk{m}:")
            for q in range(8):
                a(f"v_cmpx_eq_u32_sdwa vcc, v{T+4*m+q}, s{S_TAG} src0_sel:BYTE_0 src1_sel:BYTE_{q & 3}")
            a(f"""
            s_add_u32 s{S_CNT}, s{S_CNT}, 1
            s_cmp_eq_u64 exec, s[{MK}:{MK+1}]
            s_mov_b64 exec, s[{MK}:{MK+1}]
            s_cbranch_scc1 L_gok{m}
            s_cmp_ge_u32 s{S_CNT}, {SPIN_LIMIT}
            s_cbranch_scc1 L_gok{m}
            """)
            pair(m)
            a(f"s_waitcnt vmcnt(0)\ns_branch L_gchk{m}\nL_gok{m}:")
            for q in range(8):
                a(f"v_and_b32 v{T+4*m+q}, 0xffffff00, v{T+4*m+q}")
            for h in (0, 2):
                a(f"v_pk_add_f32 {vr(T+4*m+h,2)}, {vr(T+4*m+h,2)}, {vr(T+4*(m+1)+h,2)}")
            if m >= 2:
                for h in (0, 2):
                    a(f"v_pk_add_f32 {vr(T+h,2)}, {vr(T+h,2)}, {vr(T+4*m+h,2)}")
        a("s_mov_b64 exec, -1")
        a(f"""
        v_cvt_pk_bf16_f32 v{T}, v{T}, v{T+1}
        v_cvt_pk_bf16_f32 v{T+1}, v{T+2}, v{T+3}
        v_cmp_ne_u32 vcc, 0, v15
        v_cmp_eq_u32 s[{S_T0}:{S_T0+1}], 2, v15
        s_nop 1
        s_mov_b64 exec, vcc
        ds_write_b64 v3, {vr(T,2)}
        s_mov_b64 exec, s[{S_T0}:{S_T0+1}]
        ds_write_b64 v3, {vr(T,2)} offset:64
        ds_write_b64 v3, {vr(T,2)} offset:128
        ds_write_b64 v3, {vr(T,2)} offset:192
        s_mov_b64 exec, -1
        s_setpc_b64 s[{self.S_RET}:{self.S_RET+1}]
        """)

    def role_b(self):
        a = self.a
        a(f"L_roleB:\ns_mov_b32 s{S_FROMA}, 0")
        XR, B1R, GR, XS = 16, 36, 64, 84
        VPF = 8
        a(f"s_cmp_ge_u32 s{S_J}, 16\ns_cbranch_scc1 L_B_pfrole")
        a(f"""
        s_lshl_b32 s{S_KST}, s{S_XCD}, 4
        s_add_u32 s{S_KST}, s{S_KST}, s{S_J}
        s_lshl_b32 s{S_T0}, s{S_KST}, 3
        s_add_u32 s{S_T0}, s{S_T0}, s{S_WAVE}
        s_mul_i32 s{S_T0}, s{S_T0}, {4*1280}
        v_lshrrev_b32 v2, 4, v1
        v_and_b32 v3, 15, v1
        v_lshlrev_b32 v3, 4, v3
        v_mul_u32_u24 v4, 1280, v2
        v_add_u32 v4, v4, v3
        """)
        for c in ((2, 3, 4, 0, 1) if self.o.get("xord") else range(5)):
            a(f"buffer_load_dwordx4 {vr(XR+4*c,4)}, v4, s[{R_X}:{R_X+3}], s{S_T0} offen offset:{c*256} {self.nt('ntx')}")
        self.srd(R_M, P_GATE, 1280)
        for c in range(5):
            a(f"buffer_load_dwordx4 {vr(GR+4*c,4)}, v3, s[{R_M}:{R_M+3}], 0 offen offset:{c*256}")

        def common_setup():
            a(f"""
            s_mul_i32 s{S_M}, s{S_J}, 205
            s_lshr_b32 s{S_M}, s{S_M}, 10
            s_mul_i32 s{S_DT}, s{S_M}, 5
            s_sub_u32 s{S_DT}, s{S_J}, s{S_DT}
            s_mul_i32 s{S_FT}, s{S_XCD}, 6
            s_add_u32 s{S_FT}, s{S_FT}, s{S_M}
            """)
            self.srd(R_OUT, P_B1, 3072)
            a(f"v_lshrrev_b32 v5, 4, v1\nv_lshlrev_b32 v5, 3, v5\ns_lshl_b32 s{S_T0}, s{S_FT}, 7")
            for b in range(4):
                a(f"buffer_load_dwordx2 {vr(B1R+2*b,2)}, v5, s[{R_OUT}:{R_OUT+3}], s{S_T0} offen offset:{b*32}")
            a(f"""
            v_lshrrev_b32 v12, 3, v1
            v_lshrrev_b32 v13, 4, v1
            v_lshlrev_b32 v13, 1, v13
            v_and_b32 v14, 7, v1
            v_xor_b32 v13, v13, v14
            v_lshlrev_b32 v13, 4, v13
            v_mul_u32_u24 v12, 3072, v12
            v_add_u32 v{VPF}, v12, v13
            v_add_u32 v{VPF+1}, {8*3072-1024}, v{VPF}
            v_add_u32 v{VPF+2}, {2*(8*3072-1024)}, v{VPF}
            v_add_u32 v{VPF+3}, {3*(8*3072-1024)}, v{VPF}
            """)
            self.perm_setup(S_M, 16, 6, S_PERM, self.o.get("rotB"))
            a(f"""
            s_and_b32 s{S_T0}, s{S_WAVE}, 3
            s_lshl_b32 s{S_B}, s{S_T0}, 12
            s_mul_i32 s{S_A}, s{S_T0}, {32*3072}
            s_lshl_b32 s{S_T0}, s{S_FT}, 7
            s_add_u32 s{S_A}, s{S_A}, s{S_T0}
            """)

        def w1_at(p):
            a(f"s_bfe_u32 s{S_T0}, s{S_PERM}, {(4 << 16) | (4 * p):#x}\ns_mul_i32 s{S_T0}, s{S_T0}, {128*3072}")
            a(f"s_add_u32 m0, s{S_B}, {p*16384}\ns_add_u32 s{S_T0}, s{S_T0}, s{S_A}")
            for i in range(4):
                a(f"buffer_load_dwordx4 v{VPF+i}, s[{R_W}:{R_W+3}], s{S_T0} offen offset:{i*1024} lds")
        early = [3, 4, 5, 6, 7][:self.o.get("early", 0)]

        def wq_touch():
            self.srd(R_M, P_WQKV, 640 * 3840)
            a(f"""
            v_lshlrev_b32 v6, 7, v1
            s_mul_i32 s{S_T0+1}, s{S_T0+1}, 2880
            s_add_u32 s{S_T0+1}, s{S_T0+1}, {256*3840}
            s_mov_b64 exec, 0xffffff
            buffer_load_dword v253, v6, s[{R_M}:{R_M+3}], s{S_T0+1} offen
            s_mov_b64 exec, -1
            """)

        self.srd(R_W, P_W1, 2048 * 3072)
        common_setup()
        a("v_mov_b32 v124, 0\nv_mov_b32 v125, 0\nv_mov_b32 v126, 0x3f803f80\ns_waitcnt vmcnt(4)")
        self.stamp(11, 44)
        if early:
            a(f"s_cmp_lt_u32 s{S_WAVE}, 4\ns_cbranch_scc1 L_B_noearly")
            for p in early:
                w1_at(p)
            a("L_B_noearly:")
        for c in range(20):
            a(f"v_dot2c_f32_bf16 v124, v{XR+c}, v126\nv_lshlrev_b32 v{XS+2*c}, 16, v{XR+c}")
            a(f"v_dot2c_f32_bf16 v125, v{XR+c}, v{GR+c}\nv_and_b32 v{XS+2*c+1}, 0xffff0000, v{XR+c}")
        a("s_nop 1")

        def reduce16(regs):
            for mode in ("quad_perm:[1,0,3,2]", "quad_perm:[2,3,0,1]", "row_half_mirror", "row_mirror"):
                for r in regs:
                    a(f"v_add_f32_dpp v{r}, v{r}, v{r} {mode} row_mask:0xf bank_mask:0xf")
                a("s_nop 1" if len(regs) == 1 else "s_nop 0")

        reduce16([124, 125])
        a(f"""
        v_mul_f32 v126, {f2u(-1.0/640):#x}, v124
        v_mul_f32 v127, {f2u(-1.0/640):#x}, v124
        v_mul_f32 v125, {f2u(-1.4426950408889634):#x}, v125
        v_mov_b32 v128, 0
        v_mov_b32 v129, 0
        v_mov_b32 v130, 0
        v_mov_b32 v131, 0
        v_mov_b32 v132, 0
        v_mov_b32 v133, 0
        v_mov_b32 v134, 0
        v_mov_b32 v135, 0
        v_exp_f32 v125, v125
        """)
        for c in range(20):
            a(f"v_pk_add_f32 {vr(XS+2*c,2)}, {vr(XS+2*c,2)}, v[126:127]")
        a("v_add_f32 v125, 1.0, v125\nv_rcp_f32 v125, v125")
        for c in range(20):
            t = 128 + 2 * (c & 3)
            a(f"v_pk_fma_f32 {vr(t,2)}, {vr(XS+2*c,2)}, {vr(XS+2*c,2)}, {vr(t,2)}")
        a("v_pk_add_f32 v[128:129], v[128:129], v[130:131]\nv_pk_add_f32 v[132:133], v[132:133], v[134:135]\nv_pk_add_f32 v[128:129], v[128:129], v[132:133]\nv_add_f32 v128, v128, v129\ns_nop 1")
        reduce16([128])
        a(f"v_mov_b32 v126, {f2u(1e-5):#x}\nv_fmac_f32 v126, {f2u(1.0/640):#x}, v128\nv_rsq_f32 v126, v126")
        a(f"""
        s_lshl_b32 s{S_T0}, s{S_WAVE}, 2
        v_add_u32 v2, s{S_T0}, v2
        v_mov_b32 v127, v126
        v_mul_u32_u24 v4, {LN_ST}, v2
        v_add_u32 v4, v4, v3
        v_lshlrev_b32 v2, 2, v2
        """)
        for c4 in range(5):
            for c in range(4 * c4, 4 * c4 + 4):
                a(f"v_pk_mul_f32 {vr(XS+2*c,2)}, {vr(XS+2*c,2)}, v[126:127]")
            for c in range(4 * c4, 4 * c4 + 4):
                a(f"v_cvt_pk_bf16_f32 v{XR+c}, v{XS+2*c}, v{XS+2*c+1}")
            a(f"ds_write_b128 v4, {vr(XR+4*c4,4)} offset:{LNBUF + c4*256}")
        a(f"ds_write_b32 v2, v125 offset:{LNG}")
        a(f"""
        v_and_b32 v12, 15, v1
        v_lshrrev_b32 v13, 4, v1
        v_lshrrev_b32 v15, 2, v12
        v_lshl_add_u32 v15, v13, 2, v15
        v_mul_u32_u24 v15, {LN_ST}, v15
        v_and_b32 v2, 3, v12
        v_lshl_add_u32 v15, v2, 3, v15
        s_mul_i32 s{S_T0}, s{S_WAVE}, 160
        v_add_u32 v15, s{S_T0}, v15
        v_lshlrev_b32 v14, 4, v1
        v_lshlrev_b32 v2, 2, v1
        s_mul_i32 s{S_T0}, s{S_WAVE}, {5*65536}
        s_lshl_b32 s{S_T0+1}, s{S_KST}, 10
        s_add_u32 s{S_T0}, s{S_T0}, s{S_T0+1}
        s_add_u32 s{S_T0}, s{S_T0}, {HT}
        s_waitcnt lgkmcnt(0)
        s_add_u32 s{S_TAG}, s{S_TAG}, {TAG_INC:#x}
        s_barrier
        """)
        self.stamp(12, 44)
        for i in range(5):
            a(f"ds_read_b64_tr_b16 {vr(44+4*i,2)}, v15 offset:{LNBUF + i*32}")
            a(f"ds_read_b64_tr_b16 {vr(46+4*i,2)}, v15 offset:{LNBUF + i*32+16*LN_ST}")
        a(f"ds_read_b32 v125, v2 offset:{LNG}")
        for i in range(5):
            a(f"s_waitcnt lgkmcnt({9-2*i})")
            a(f"buffer_store_dwordx4 {vr(44+4*i,4)}, v14, s[{R_WS}:{R_WS+3}], s{S_T0} offen sc1")
            if i < 4:
                a(f"s_add_u32 s{S_T0}, s{S_T0}, 65536")
        a(f"""
        s_cmp_lg_u32 s{S_WAVE}, 0
        s_cbranch_scc1 L_B_nog
        s_lshl_b32 s{S_T0}, s{S_KST}, 7
        s_add_u32 s{S_T0}, s{S_T0}, {G_OFF}
        s_waitcnt lgkmcnt(0)
        s_mov_b32 exec_hi, 0
        buffer_store_dword v125, v2, s[{R_WS}:{R_WS+3}], s{S_T0} offen sc1
        s_mov_b32 exec_hi, -1
        L_B_nog:
        s_waitcnt vmcnt(0) lgkmcnt(0)
        s_barrier
        s_cmp_lg_u32 s{S_WAVE}, 0
        s_cbranch_scc1 L_B_nofl
        s_mul_i32 s{S_T0}, s{S_KST}, {FS}
        s_add_u32 s{S_T0}, s{S_T0}, {F_LN}
        """)
        self.flag_store(S_T0, 12)
        self.stamp(1, 12)
        a("L_B_nofl:")
        if self.o.get("woLN"):
            self.srd(R_M, P_WO, 640 * 1280)
            a(f"""
            s_lshl_b32 s{S_T0+1}, s{S_KST}, 3
            s_add_u32 s{S_T0+1}, s{S_T0+1}, s{S_WAVE}
            s_mul_i32 s{S_T0+1}, s{S_T0+1}, 1664
            v_lshlrev_b32 v6, 7, v1
            s_mov_b64 exec, 0x1fff
            buffer_load_dword v253, v6, s[{R_M}:{R_M+3}], s{S_T0+1} offen
            s_mov_b64 exec, -1
            """)
        if self.o.get("wq") == 1:
            a(f"s_lshl_b32 s{S_T0+1}, s{S_KST}, 3\ns_add_u32 s{S_T0+1}, s{S_T0+1}, s{S_WAVE}")
            wq_touch()
        if self.o.get("wq") == 3:
            a(f"""
            s_lshl_b32 s{S_T0}, s{S_J}, 3
            s_add_u32 s{S_T0}, s{S_T0}, s{S_WAVE}
            s_add_u32 s{S_T0}, s{S_T0}, 128
            v_lshrrev_b32 v6, 3, v1
            v_and_b32 v7, 7, v1
            v_min_u32 v7, 5, v7
            v_mul_u32_u24 v6, 3072, v6
            v_lshl_add_u32 v7, v7, 7, v6
            s_mul_i32 s{S_T0}, s{S_T0}, {8*3072}
            s_mul_i32 s{S_T0+2}, s{S_XCD}, 768
            s_add_u32 s{S_T0}, s{S_T0}, s{S_T0+2}
            buffer_load_dword v253, v7, s[{R_W}:{R_W+3}], s{S_T0} offen {self.nt('ntw1')}
            """)
        a("s_branch L_B_join")
        a("L_B_pfrole:")
        self.srd(R_W, P_W1, 2048 * 3072)
        if self.o.get("pfdelay"):
            common_setup()
            a("s_waitcnt vmcnt(0)")
        wq = self.o.get("wq", 0)
        xh = self.o.get("xhelp", 0)
        if xh:
            self.srd(R_M, P_GATE, 1280)
            a(f"""
            s_cmp_ge_u32 s{S_WAVE}, {xh}
            s_cbranch_scc1 L_B_noxh
            s_lshl_b32 s{S_T0}, s{S_XCD}, 4
            s_add_u32 s{S_T0}, s{S_T0}, s{S_J}
            s_sub_u32 s{S_T0}, s{S_T0}, 16
            s_mul_i32 s{S_T0}, s{S_T0}, {32*1280}
            s_lshl_b32 s{S_T0+1}, s{S_WAVE}, 8
            s_sub_u32 s{S_T0}, s{S_T0}, s{S_T0+1}
            s_add_u32 s{S_T0}, s{S_T0}, 1024
            v_lshrrev_b32 v6, 1, v1
            v_and_b32 v7, 1, v1
            v_mul_u32_u24 v6, 1280, v6
            v_lshl_add_u32 v6, v7, 7, v6
            buffer_load_dword v253, v6, s[{R_X}:{R_X+3}], s{S_T0} offen
            v_lshlrev_b32 v6, 7, v1
            L_B_noxh:
            s_cmp_lg_u32 s{S_WAVE}, 7
            s_cbranch_scc1 L_B_noxg
            v_lshlrev_b32 v6, 7, v1
            buffer_load_dword v253, v6, s[{R_M}:{R_M+3}], 0 offen
            L_B_noxg:
            """)
        a(f"""
        s_sub_u32 s{S_T0}, s{S_J}, 16
        s_lshl_b32 s{S_T0}, s{S_T0}, 3
        s_add_u32 s{S_T0}, s{S_T0}, s{S_WAVE}
        s_lshl_b32 s{S_T0+1}, s{S_XCD}, 7
        s_add_u32 s{S_T0+1}, s{S_T0+1}, s{S_T0}
        v_lshrrev_b32 v6, 3, v1
        v_and_b32 v7, 7, v1
        v_min_u32 v7, 5, v7
        v_mul_u32_u24 v6, 3072, v6
        v_lshl_add_u32 v7, v7, 7, v6
        s_mul_i32 s{S_T0}, s{S_T0}, {8*3072}
        s_mul_i32 s{S_T0+2}, s{S_XCD}, 768
        s_add_u32 s{S_T0}, s{S_T0}, s{S_T0+2}
        buffer_load_dword v253, v7, s[{R_W}:{R_W+3}], s{S_T0} offen {self.nt('ntw1')}
        """)
        if wq in (0, 3):
            wq_touch()
        if wq != 3:
            a(f"""
            s_add_u32 s{S_T0}, s{S_T0}, {1024*3072}
            buffer_load_dword v253, v7, s[{R_W}:{R_W+3}], s{S_T0} offen {self.nt('ntw1b')}
            """)
        if self.o.get("promote"):
            k_ = 1 if wq != 3 else 0
            a(f"""
            s_sub_u32 s{S_T0+1}, s{S_T0}, {1024*3072*k_}
            s_waitcnt vmcnt({k_ + (1 if wq in (0, 3) else 0)})
            buffer_load_dword v253, v7, s[{R_W}:{R_W+3}], s{S_T0+1} offen
            """)
            if self.o.get("ntw1b"):
                a(f"s_waitcnt vmcnt(1)\nbuffer_load_dword v253, v7, s[{R_W}:{R_W+3}], s{S_T0} offen")
        if not self.o.get("pfdelay"):
            common_setup()
        self.stamp(15, 12)
        a(f"s_waitcnt lgkmcnt(0)\ns_add_u32 s{S_TAG}, s{S_TAG}, {TAG_INC:#x}")
        a(f"s_cmp_ge_u32 s{S_J}, 30\ns_cbranch_scc1 L_helper")
        N1 = self.o.get("n1", 8)
        NREG = self.o.get("nreg", 0)
        assert NREG == 0 or N1 == 8

        def w1_issue():
            t = self.perm_next(S_T0, S_PERM, 128 * 3072)
            t += f"s_mov_b32 m0, s{S_B}\ns_add_u32 s{S_T0}, s{S_T0}, s{S_A}\n"
            for i in range(4):
                t += f"buffer_load_dwordx4 v{VPF+i}, s[{R_W}:{R_W+3}], s{S_T0} offen offset:{i*1024} lds\n"
            t += f"s_add_u32 s{S_B}, s{S_B}, 16384\n"
            return t
        assert N1 == 8 and NREG == 0
        a(f"L_B_join:\ns_cmp_lt_u32 s{S_WAVE}, 4\ns_cbranch_scc1 L_B_comp0")
        for p in range(8):
            if early and p == early[0]:
                a(f"s_cmp_lt_u32 s{S_J}, 16\ns_cbranch_scc1 L_B_skipearly")
            w1_at(p)
            if early and p == early[-1]:
                a("L_B_skipearly:")
        a(f"s_mov_b32 s{S_PERM}, s{S_PERM+1}")
        a("s_branch L_B_aux\nL_B_comp0:")
        BF = 16
        GX = 131072
        split = self.o.get("gsplit")

        def gelu_setup(dblk_off):
            c = 0.7978845608028654
            k0 = -2.0 * c * 1.4426950408889634
            k1 = k0 * 0.044715
            a(f"""
            s_mov_b32 s{S_K0}, {f2u(k1):#x}
            s_mov_b32 s{S_K0+1}, {f2u(k1):#x}
            v_mov_b32 v44, {f2u(k0):#x}
            v_mov_b32 v45, {f2u(k0):#x}
            v_mov_b32 v46, 1.0
            v_mov_b32 v47, 1.0
            s_lshl_b32 s{S_K0+2}, s{S_DT}, 3
            s_lshl_b32 s{S_T0+1}, s{S_WAVE}, 1
            s_add_u32 s{S_K0+2}, s{S_K0+2}, s{S_T0+1}
            s_add_u32 s{S_K0+2}, s{S_K0+2}, {dblk_off & 0xffffffff:#x}
            s_mul_i32 s{S_K0+2}, s{S_K0+2}, {UW_ST}
            s_lshl_b32 s{S_T0+1}, s{S_FT}, 11
            s_add_u32 s{S_K0+2}, s{S_K0+2}, s{S_T0+1}
            s_add_u32 s{S_K0+2}, s{S_K0+2}, {UW}
            """)
            for b in range(4):
                a(f"v_lshlrev_b32 v{BF+4*b}, 16, v{B1R+2*b}\nv_and_b32 v{BF+4*b+1}, 0xffff0000, v{B1R+2*b}")
                a(f"v_lshlrev_b32 v{BF+4*b+2}, 16, v{B1R+2*b+1}\nv_and_b32 v{BF+4*b+3}, 0xffff0000, v{B1R+2*b+1}")

        def gelu_block(base, vl):
            for p in range(2):
                r = base + 8 * p
                T = 48
                for q in range(4):
                    a(f"v_pk_mul_f32 {vr(T+2*q,2)}, {vr(r+2*q,2)}, {vr(r+2*q,2)}")
                for q in range(4):
                    a(f"v_pk_fma_f32 {vr(T+2*q,2)}, {vr(T+2*q,2)}, s[{S_K0}:{S_K0+1}], v[44:45]")
                for q in range(4):
                    a(f"v_pk_mul_f32 {vr(T+2*q,2)}, {vr(T+2*q,2)}, {vr(r+2*q,2)}")
                for q in range(8):
                    a(f"v_exp_f32 v{T+q}, v{T+q}")
                for q in range(4):
                    a(f"v_pk_add_f32 {vr(T+2*q,2)}, {vr(T+2*q,2)}, v[46:47]")
                for q in range(8):
                    a(f"v_rcp_f32 v{T+q}, v{T+q}")
                for q in range(4):
                    a(f"v_pk_mul_f32 {vr(r+2*q,2)}, {vr(r+2*q,2)}, {vr(T+2*q,2)}")
                o = 56 + 4 * (p & 1)
                for q in range(4):
                    a(f"v_cvt_pk_bf16_f32 v{o+q}, v{r+2*q}, v{r+2*q+1}")
                a(f"buffer_store_dwordx4 {vr(o,4)}, v{vl}, s[{R_WS}:{R_WS+3}], s{S_K0+2} offen offset:{p*1024} sc1")

        PF, WF, ACC, VT, VL = 64, 128, 160, 8, 12
        a(f"""
        s_lshl_b32 s{S_T0}, s{S_DT}, 3
        s_lshl_b32 s{S_T0+1}, s{S_WAVE}, 1
        s_add_u32 s{S_D}, s{S_T0}, s{S_T0+1}
        s_lshl_b32 s{S_T0}, s{S_D}, 16
        s_add_u32 s{S_T0}, s{S_T0}, {HT}
        """)
        self.srd(R_P, P_WS, 65536, off_s=S_T0)
        a(f"s_add_u32 s{S_T0}, s{S_T0}, 65536")
        self.srd(R_M, P_WS, 65536, off_s=S_T0)
        a(f"v_lshlrev_b32 v{VL}, 4, v1\ns_mov_b32 s{S_B}, 0")
        a(self.perm_next(S_C, S_PERM, 4096))
        self.tr_addr(VT)
        a("s_waitcnt vmcnt(0)")
        gelu_setup(0)
        for r in range(32):
            a(f"v_mov_b32 v{ACC+r}, v{BF + (r & 15)}")
        a(f"s_lshl_b32 s{S_T0}, s{S_WAVE}, 12\ns_add_u32 s{S_T0}, s{S_T0}, {GX}\nv_add_u32 v13, s{S_T0}, v{VL}")
        a(f"s_cmp_lg_u32 s{S_WAVE}, 0\ns_cbranch_scc1 L_B_l3")
        prog = self.o.get("prog", 0)
        if prog:
            assert prog >= 4 * (4 + self.o.get("rotB", 0))
            a(f"v_min_u32 v2, {prog-1}, v1\nv_mul_u32_u24 v2, {FS}, v2\nv_add_u32 v2, {F_LN}, v2")
        else:
            a(f"v_mul_u32_u24 v2, {FS}, v1\nv_add_u32 v2, {F_LN}, v2")
        if not self.o.get("x_nopoll"):
            self.poll([2], 4)
        self.stamp(2, 4)
        a("L_B_l3:\ns_barrier")
        RP = (R_P, R_M)

        def pload(u, ks):
            if self.o.get("x_noload"):
                return "s_nop 0"
            sc = "" if self.o.get("x_nosc1") else "sc1"
            so = "0" if self.o.get("x_same") else f"s{S_C}"
            return "\n".join(f"buffer_load_dwordx4 {vr(PF+32*(u%2)+8*ks+4*d,4)}, v{VL}, s[{RP[d]}:{RP[d]+3}], {so} offen offset:{ks*1024} {sc}" for d in range(2))

        for t in range(2):
            for ks in range(4):
                a(pload(t, ks))
            a(self.perm_next(S_C, S_PERM, 4096))
            if t == 0:
                first_bar_here = len(a.L)

        def mk(u, bar, virtual=False, head=None, tail=None):
            uses = []
            for ks in range(4):
                for b in range(4):
                    g = ks * 4 + b
                    wb = WF + 4 * (g % 8)
                    off = u * 16384 + ks * 4096
                    reads = [(f"w{g}a", f"ds_read_b64_tr_b16 {vr(wb,2)}, v{VT+b} offset:{off}"),
                             (f"w{g}b", f"ds_read_b64_tr_b16 {vr(wb+2,2)}, v{VT+b} offset:{off+2048}")]
                    mf = []
                    for dd in range(2):
                        acc = vr(ACC + 16 * dd + 4 * b, 4)
                        mf.append(f"v_mfma_f32_16x16x32_bf16 {acc}, {vr(wb,4)}, {vr(PF+32*(u%2)+8*ks+4*dd,4)}, {acc}")
                    if self.o.get("x32"):
                        acc = vr(ACC + 16 * (b & 1), 16)
                        mf = [f"v_mfma_f32_32x32x16_bf16 {acc}, {vr(wb,4)}, {vr(PF+32*(u%2)+8*ks+4*(b>>1),4)}, {acc}"]
                    d = dict(reads=reads, need=[f"w{g}b"], mf=mf)
                    if b == 0:
                        d["vm"] = 14
                    if b == 3:
                        d["after"] = pload(u, ks)
                        if ks == 3:
                            d["after"] += "\n" + self.perm_next(S_C, S_PERM, 4096)
                            if u >= 1:
                                d["after"] += f"s_cmp_ge_u32 s{S_B}, 3\ns_cselect_b32 s{S_C}, 0x10000, s{S_C}"
                    uses.append(d)
            return dict(uses=uses, bar=bar, virtual=virtual, head=head, tail=tail)

        xo = "s_barrier\n" + "\n".join(f"v_xor_b32 v{VT+b}, 0x10000, v{VT+b}" for b in range(4))
        tail = f"s_add_u32 s{S_B}, s{S_B}, 1\ns_cmp_lt_u32 s{S_B}, 4\ns_cbranch_scc1 L_B_loop"
        st = [mk(0, "", head="L_B_loop:"), mk(1, "s_barrier"), mk(2, "s_barrier"), mk(3, "s_barrier", tail=tail), mk(0, xo, virtual=True)]
        a.L.insert(first_bar_here, "    s_barrier")
        nd = self.o.get("nodrain")
        LB = self.o.get("LB", 7)
        self.pipeline(st, LB, (16 - LB) if nd else 13, drain=not nd, wait_every=self.o.get('we', 2))
        if nd and not self.o.get("noEnd"):
            a("s_waitcnt lgkmcnt(0)\ns_barrier")
        self.stamp(3, 44)
        if split:
            a("s_nop 5")
            for i in range(4):
                a(f"ds_write_b128 v13, {vr(ACC+16+4*i,4)} offset:{i*1024}")
            a("s_waitcnt lgkmcnt(0)\ns_barrier")
            gelu_block(ACC, VL)
        else:
            a("s_waitcnt lgkmcnt(0)\ns_nop 4")
            gelu_block(ACC, VL)
            a(f"s_add_u32 s{S_K0+2}, s{S_K0+2}, {UW_ST}")
            gelu_block(ACC + 16, VL)
        self.stamp(10, 44)
        a("s_waitcnt vmcnt(0)\ns_barrier\ns_branch L_F_comp")

        a("L_B_aux:\ns_barrier")
        if split:
            assert NREG == 0
        assert NREG == 0
        ops = [(iv, 4) for iv in range(N1)]
        todo = [(iv, i) for iv in range(N1, 16) for i in range(4)]
        quota = self.o.get("quota", 12) / 3.0
        credit = 0.0
        eB = self.o.get("eB", 17)
        nB1 = self.o.get("nB1", 0)
        per = self.o.get("perB", 2)
        done_w2 = 0
        for tb in range(17):
            if tb < 16 and tb <= eB:
                assert all(iv != tb for iv, _ in todo), (tb, todo)
                last = max(i for i, (iv, _) in enumerate(ops) if iv == tb)
                n = sum(c for _, c in ops[last + 1:])
                if tb < 8:
                    n -= 4 * len(early)
                a(f"s_waitcnt vmcnt({max(0, min(n, 63)) if tb < eB else 0})")
            a("s_barrier")
            if tb < 16:
                self.stamp(16 + tb, 44)
            if tb == 0 and self.o.get("prog"):
                a(f"s_cmp_lg_u32 s{S_WAVE}, 7\ns_cbranch_scc1 L_B_nop1\nv_mul_u32_u24 v2, {FS}, v1\nv_add_u32 v2, {F_LN}, v2")
                a(f"buffer_load_dword v3, v2, s[{R_WS}:{R_WS+3}], 0 offen sc1\nL_B_nop1:")
            if tb == 1 and self.o.get("prog"):
                a(f"s_cmp_lg_u32 s{S_WAVE}, 7\ns_cbranch_scc1 L_B_nop2")
                a(f"s_waitcnt vmcnt(0)\nv_cmp_ne_u32 vcc, s{S_TAG}, v3\ns_nop 1\ns_cmp_eq_u64 vcc, 0\ns_cbranch_scc1 L_B_nop2")
                self.poll([2], 4)
                a("L_B_nop2:")
            if tb == self.o.get("ctB", 10):
                self.code_touch([("L_F_comp", 0), ("L_F_comp", 1)])
            if tb == 11 and split:
                gelu_setup(-7)
                a(f"v_lshlrev_b32 v12, 4, v1\ns_lshl_b32 s{S_T0}, s{S_WAVE}, 12\ns_add_u32 s{S_T0}, s{S_T0}, {GX - 4*4096}\nv_add_u32 v13, s{S_T0}, v12")
            if tb == eB:
                assert not todo
                self.w2_setup()
            if tb >= eB and done_w2 < nB1:
                k2 = min(per if tb < 16 else 8, nB1 - done_w2, tb - 9 - done_w2)
                sk = self.if_wave56()
                self.w2_prefill(k2)
                a(f"{sk}:")
                done_w2 += k2
            if todo and (todo[0][0] < 8 or tb >= 2):
                credit += 8 if todo[0][0] < 8 else quota
            setm0 = False
            while todo and credit >= 0.999 and (todo[0][0] < 8 or todo[0][0] <= tb + 6):
                iv, i = todo.pop(0)
                if i == 0:
                    if iv == 8:
                        a(f"s_and_b32 s{S_B}, s{S_B}, 0x1ffff")
                    a(self.perm_next(S_C, S_PERM, 128 * 3072) + f"s_add_u32 s{S_C}, s{S_C}, s{S_A}")
                if i == 0 or not setm0:
                    a(f"s_mov_b32 m0, s{S_B}\ns_nop 0")
                    setm0 = True
                a(f"buffer_load_dwordx4 v{VPF+i}, s[{R_W}:{R_W+3}], s{S_C} offen offset:{i*1024} lds")
                if i == 3:
                    a(f"s_add_u32 s{S_B}, s{S_B}, 16384")
                ops.append((iv, 1))
                credit -= 1
            if todo and todo[0][0] >= 8:
                credit = min(credit, quota)
        nxt = 16
        assert nxt == 16
        if self.o.get("noEnd"):
            assert done_w2 == nB1
        elif self.o.get("nodrain"):
            a("s_barrier")
        if eB == 17:
            self.w2_setup()
        if split:
            a("s_barrier")
            for i in range(4):
                a(f"ds_read_b128 {vr(64+4*i,4)}, v13 offset:{i*1024}")
            a("s_waitcnt lgkmcnt(0)")
            gelu_block(64, 12)
            a("s_waitcnt vmcnt(0)")
        skip = self.if_wave56()
        self.w2_prefill(nB1 - done_w2)
        a("s_barrier\ns_nop 7\ns_nop 7")
        self.w2_prefill(8 - nB1)
        a("s_branch L_F_loader")
        a(f"{skip}:\ns_barrier")
        a(f"s_cmp_lg_u32 s{S_WAVE}, 7\ns_cbranch_scc1 L_F_u4")
        a(f"s_mul_i32 s{S_T0}, s{S_DT}, 24\ns_add_u32 s{S_T0}, s{S_T0}, s{S_FT}\ns_mul_i32 s{S_T0}, s{S_T0}, {FS}\ns_add_u32 s{S_T0}, s{S_T0}, {F_U}")
        self.flag_store(S_T0, 12)
        self.stamp(4, 12)
        a("s_branch L_F_poller")

    def w2_l2_prefetch(self, VT):
        a = self.a
        self.srd(R_W2, P_W2, 1536 * 4096)
        a(f"""
        v_lshrrev_b32 v{VT}, 3, v1
        v_and_b32 v{VT+1}, 7, v1
        v_lshlrev_b32 v{VT+1}, 7, v{VT+1}
        v_lshl_add_u32 v{VT}, v{VT}, 12, v{VT+1}
        s_mul_i32 s{S_T0}, s{S_J}, 48
        s_and_b32 s{S_T0+1}, s{S_WAVE}, 3
        s_mul_i32 s{S_T0+1}, s{S_T0+1}, 12
        s_add_u32 s{S_T0}, s{S_T0}, s{S_T0+1}
        s_lshl_b32 s{S_T0}, s{S_T0}, 12
        s_lshr_b32 s{S_T0+1}, s{S_XCD}, 1
        s_lshl_b32 s{S_T0+1}, s{S_T0+1}, 10
        s_add_u32 s{S_T0}, s{S_T0}, s{S_T0+1}
        buffer_load_dword v{VT+2}, v{VT}, s[{R_W2}:{R_W2+3}], s{S_T0} offen
        s_add_u32 s{S_T0}, s{S_T0}, {8*4096}
        s_mov_b32 exec_hi, 0
        buffer_load_dword v{VT+3}, v{VT}, s[{R_W2}:{R_W2+3}], s{S_T0} offen
        s_mov_b64 exec, -1
        """)

    def tr_addr(self, VT):
        a = self.a
        a(f"""
        v_and_b32 v{VT+1}, 15, v1
        v_lshrrev_b32 v{VT+2}, 4, v1
        v_lshrrev_b32 v{VT+3}, 2, v{VT+1}
        v_lshl_add_u32 v{VT+3}, v{VT+2}, 2, v{VT+3}
        v_bfe_u32 v{VT+2}, v{VT+3}, 1, 2
        v_lshlrev_b32 v{VT+3}, 7, v{VT+3}
        v_lshl_add_u32 v{VT+3}, v{VT+2}, 5, v{VT+3}
        v_and_b32 v{VT+1}, 3, v{VT+1}
        v_lshl_add_u32 v{VT}, v{VT+1}, 3, v{VT+3}
        v_xor_b32 v{VT+1}, 32, v{VT}
        v_xor_b32 v{VT+2}, 64, v{VT}
        v_xor_b32 v{VT+3}, 96, v{VT}
        """)

    def helper(self):
        a = self.a
        a("L_helper:")
        a(f"""
        s_lshl_b32 s{S_D}, s{S_XCD}, 1
        s_add_u32 s{S_D}, s{S_D}, s{S_J}
        s_sub_u32 s{S_D}, s{S_D}, 30
        """)
        self.srd(R_W, P_WO, 640 * 1280)
        for p in range(5):
            a(f"""
            v_add_u32 v12, {p*64}, v1
            v_mul_u32_u24 v13, 205, v12
            v_lshrrev_b32 v13, 11, v13
            v_mul_u32_u24 v14, 10, v13
            v_sub_u32 v14, v12, v14
            v_lshlrev_b32 v14, 4, v14
            v_mul_u32_u24 v13, 1280, v13
            v_add_u32 v{16+p}, v13, v14
            """)
            if p in (1, 2, 3):
                a(f"v_subrev_u32 v{16+p}, {p*1024}, v{16+p}")
        a(f"""
        s_mov_b32 s{S_C}, s{S_WAVE}
        L_H_ld:
        s_mul_i32 s{S_A}, s{S_C}, {32*1280}
        s_mul_i32 s{S_T0}, s{S_D}, 160
        s_add_u32 s{S_A}, s{S_A}, s{S_T0}
        s_mul_i32 s{S_B}, s{S_C}, 5120
        s_mov_b32 m0, s{S_B}
        s_nop 0
        """)
        for p in range(4):
            a(f"buffer_load_dwordx4 v{16+p}, s[{R_W}:{R_W+3}], s{S_A} offen offset:{p*1024} lds")
        a(f"s_add_u32 m0, s{S_B}, 4096\ns_nop 0\nbuffer_load_dwordx4 v20, s[{R_W}:{R_W+3}], s{S_A} offen lds")
        a(f"""
        s_add_u32 s{S_C}, s{S_C}, 8
        s_cmp_lt_u32 s{S_C}, 20
        s_cbranch_scc1 L_H_ld
        v_and_b32 v12, 15, v1
        v_lshrrev_b32 v13, 4, v1
        v_lshrrev_b32 v14, 2, v12
        v_lshl_add_u32 v14, v13, 2, v14
        v_mul_u32_u24 v14, 160, v14
        v_and_b32 v12, 3, v12
        v_lshl_add_u32 v14, v12, 3, v14
        v_lshlrev_b32 v15, 4, v1
        s_waitcnt vmcnt(0)
        s_barrier
        s_mov_b32 s{S_C}, s{S_WAVE}
        L_H_tr:
        s_lshr_b32 s{S_T0}, s{S_C}, 1
        s_mul_i32 s{S_T0}, s{S_T0}, 5
        s_and_b32 s{S_T0+1}, s{S_C}, 1
        s_lshl_b32 s{S_T0+1}, s{S_T0+1}, 1
        s_add_u32 s{S_T0}, s{S_T0}, s{S_T0+1}
        s_add_u32 s{S_T0+1}, s{S_T0}, 1
        s_mul_i32 s{S_T0+2}, s{S_C}, 10
        s_sub_u32 s{S_T0+2}, s{S_T0+2}, 156
        s_add_u32 s{S_T0+3}, s{S_T0+2}, 5
        s_cmp_lt_u32 s{S_C}, 16
        s_cselect_b32 s{S_T0}, s{S_T0}, s{S_T0+2}
        s_cselect_b32 s{S_T0+1}, s{S_T0+1}, s{S_T0+3}
        s_mul_i32 s{S_T0}, s{S_T0}, 2560
        s_mul_i32 s{S_T0+1}, s{S_T0+1}, 2560
        v_add_u32 v12, s{S_T0}, v14
        v_add_u32 v13, s{S_T0+1}, v14
        """)
        for b in range(5):
            a(f"ds_read_b64_tr_b16 {vr(24+4*b,2)}, v12 offset:{b*32}\nds_read_b64_tr_b16 {vr(26+4*b,2)}, v13 offset:{b*32}")
        a(f"""
        s_mul_i32 s{S_T0}, s{S_D}, {5*UW_ST}
        s_lshl_b32 s{S_T0+1}, s{S_C}, 10
        s_add_u32 s{S_T0}, s{S_T0}, s{S_T0+1}
        s_add_u32 s{S_T0}, s{S_T0}, {UW + 49152}
        """)
        for b in range(5):
            a(f"s_waitcnt lgkmcnt({8-2*b})")
            a(f"buffer_store_dwordx4 {vr(24+4*b,4)}, v15, s[{R_WS}:{R_WS+3}], s{S_T0} offen sc1")
            if b < 4:
                a(f"s_add_u32 s{S_T0}, s{S_T0}, {UW_ST}")
        a(f"""
        s_add_u32 s{S_C}, s{S_C}, 8
        s_cmp_lt_u32 s{S_C}, 20
        s_cbranch_scc1 L_H_tr
        s_waitcnt vmcnt(0)
        s_barrier
        """)
        if self.o.get("hW2"):
            a(f"s_cmp_lg_u32 s{S_WAVE}, 7\ns_cbranch_scc1 L_H_nofl")
            a(f"s_mul_i32 s{S_T0}, s{S_D}, {FS}\ns_add_u32 s{S_T0}, s{S_T0}, {F_WOT}")
            self.flag_store(S_T0, 12)
            self.stamp(14, 12)
            a(f"""
            L_H_nofl:
            v_lshlrev_b32 v12, 7, v1
            s_lshl_b32 s{S_T0}, s{S_D}, 3
            s_add_u32 s{S_T0}, s{S_T0}, s{S_WAVE}
            s_lshl_b32 s{S_T0}, s{S_T0}, 13
            s_add_u32 s{S_T0}, s{S_T0}, {1024*4096}
            """)
            for k in range(4):
                a(f"buffer_load_dword v253, v12, s[{R_W2}:{R_W2+3}], s{S_T0} offen\ns_add_u32 s{S_T0}, s{S_T0}, {128*4096}")
        skip = self.if_wave56()
        self.w2_setup()
        self.w2_prefill(8)
        a(f"s_branch L_F_loader\n{skip}:")
        a(f"s_cmp_lt_u32 s{S_WAVE}, 4\ns_cbranch_scc1 L_F_comp\ns_cmp_lg_u32 s{S_WAVE}, 7\ns_cbranch_scc1 L_F_u4")
        if not self.o.get("hW2"):
            a(f"s_mul_i32 s{S_T0}, s{S_D}, {FS}\ns_add_u32 s{S_T0}, s{S_T0}, {F_WOT}")
            self.flag_store(S_T0, 12)
            self.stamp(14, 12)
        a("s_branch L_F_poller")

    F_WOT_REG = 172

    def uw_srd(self):
        a = self.a
        a(f"""
        s_mul_i32 s{S_T0}, s{S_DTILE}, 5
        s_add_u32 s{S_D}, s{S_T0}, s{S_WAVE}
        s_mul_i32 s{S_T0}, s{S_D}, {UW_ST}
        s_add_u32 s{S_T0}, s{S_T0}, {UW}
        """)
        self.srd(R_P, P_WS, UW_ST, off_s=S_T0)

    def wot_preload(self, VL):
        a = self.a
        for k in range(20):
            if k % 4 == 0:
                a(f"s_mov_b32 s{S_C}, {49152 + k*1024}")
            a(f"buffer_load_dwordx4 {vr(self.F_WOT_REG+4*k,4)}, v{VL}, s[{R_P}:{R_P+3}], s{S_C} offen offset:{(k%4)*1024} sc1")

    F_V = (4, 8, 12, 13, 47, 48, 52, 56, 168)
    F_SB = 72

    def f_setup(self):
        a = self.a
        VT, VT2, VL, VU4, VGA, VGH, VG8, GV, BV = self.F_V
        SB = self.F_SB
        self.srd(R_M, P_B2, 4096)
        self.srd(R_OUT, P_OUT, 2048 * 1280)
        self.tr_addr(VT2)
        a(f"""
        s_mul_i32 s{S_D}, s{S_DTILE}, 5
        s_add_u32 s{S_D}, s{S_D}, s{S_WAVE}
        v_mov_b32 v42, v{VT2}
        v_lshlrev_b32 v{VL}, 4, v1
        v_add_u32 v{VU4}, 0x20000, v{VL}
        v_and_b32 v{VGA}, 15, v1
        v_lshlrev_b32 v43, 1, v{VGA}
        v_lshlrev_b32 v{VGA}, 2, v{VGA}
        v_lshlrev_b32 v{VG8+3}, 3, v1
        """)
        for b in range(4):
            a(f"""
            s_add_u32 s{SB+b}, s{S_WAVE}, {b}
            s_and_b32 s{SB+b}, s{SB+b}, 3
            s_lshl_b32 s{S_T0}, s{SB+b}, 5
            v_xor_b32 v{VT+b}, s{S_T0}, v42
            s_lshl_b32 s{S_T0+1}, s{S_ST}, 7
            s_add_u32 s{S_T0}, s{S_T0}, s{S_T0+1}
            buffer_load_ushort v{BV+b}, v43, s[{R_M}:{R_M+3}], s{S_T0} offen
            v_add_u32 v{VT2+b}, 0x10000, v{VT+b}
            s_lshl_b32 s{S_T0}, s{SB+b}, 12
            v_add_u32 v{VG8+b}, s{S_T0}, v{VG8+3}
            s_add_u32 s{S_T0}, s{S_T0}, 0x10000
            v_add_u32 v{VGH+b}, s{S_T0}, v{VL}
            """)
        a(f"s_lshl_b32 s{S_A}, s{S_ST}, 8\ns_add_u32 s{S_A}, s{S_A}, {G_OFF}")
        self.f_perm()

    def f0_barrier(self):
        lab = self.a.label("f0")
        self.a(f"s_cmp_eq_u32 s{S_FROMA}, 1\ns_cbranch_scc1 {lab}\ns_barrier\n{lab}:")

    def final(self):
        a = self.a
        a("L_F_comp:")
        if self.stop == "phase1":
            a("s_branch L_end")
        PF, WF, ACC, ACC4, U4, WOT = 64, 112, 144, 160, 36, 172
        NPF = 3
        pre = True
        VT, VT2, VL, VU4, VGA, VGH, VG8, GV, BV = self.F_V
        SB = self.F_SB
        a(f"s_cmp_eq_u32 s{S_FROMA}, 1\ns_cbranch_scc1 L_F_nowot")
        self.uw_srd()
        self.f_setup()
        nstream = 12 if pre else 17

        def next_sc(step):
            if step < 12:
                return self.perm_next(S_C, S_PERM, 4096)
            return f"s_mov_b32 s{S_C}, {step*4096}\n"
        a("s_barrier")
        self.wot_preload(VL)
        a("L_F_nowot:")
        a(next_sc(0))
        a("s_barrier")
        S_C1, S_C2 = S_K0, S_K0 + 1

        def uload(t, ks, so):
            return f"buffer_load_dwordx4 {vr(PF+16*(t % NPF)+4*ks,4)}, v{VL}, s[{R_P}:{R_P+3}], s{so} offen offset:{ks*1024} sc1 ;@u{t}_{ks}"
        vis0 = []
        for ks in range(4):
            a(uload(0, ks, S_C))
            vis0.append(f"u0_{ks}")
        a(self.perm_next(S_C1, S_PERM, 4096) + self.perm_next(S_C2, S_PERM, 4096) + next_sc(3))
        a("s_barrier")

        ACC2 = 16
        blocks = [(ACC + 4 * b, b) for b in range(4)] + [(ACC4, 0)]
        fill = []
        for b in range(4):
            fill += [f"v_lshlrev_b32 v{BV+b}, 16, v{BV+b}", f"v_sub_f32 v{GV+b}, 1.0, v{GV+b}"]
        for r0, b in blocks:
            for k in range(4):
                fill.append(f"v_add_f32 v{r0+k}, v{BV+b}, v{r0+k}")

        stages = []
        for t in range(17):
            slot = t % 8
            hi = slot >= 4
            uses = []
            for ks in range(4):
                for b in range(4):
                    g = ks * 4 + b
                    wb = WF + 4 * (g % 8)
                    reads = []
                    u4 = U4 + 4 * (ks & 1)
                    if b == 0:
                        reads.append((f"u{ks}", f"ds_read_b128 {vr(u4,4)}, v{VU4} offset:{slot*4096 + ks*1024}"))
                    if t < 12:
                        off = (slot & 3) * 16384 + ks * 4096
                        va = (VT2 if hi else VT) + b
                        reads += [(f"w{g}a", f"ds_read_b64_tr_b16 {vr(wb,2)}, v{va} offset:{off}"),
                                  (f"w{g}b", f"ds_read_b64_tr_b16 {vr(wb+2,2)}, v{va} offset:{off+2048}")]
                    elif t < 16:
                        assert hi
                        off = (slot & 3) * 16384 + ks * 1024
                        reads += [(f"w{g}b", f"ds_read_b128 {vr(wb,4)}, v{VGH+b} offset:{off}")]
                    else:
                        off = (slot & 3) * 16384 + ks * 1024
                        assert not hi
                        reads += [(f"w{g}a", f"ds_read_b64 {vr(wb,2)}, v{VG8+b} offset:{off}"),
                                  (f"w{g}b", f"ds_read_b64 {vr(wb+2,2)}, v{VG8+b} offset:{off+512}")]
                    acc = vr((ACC if t < 12 else ACC2) + 4 * b, 4)
                    a4 = vr(ACC4 if t < 12 else ACC2 + 16, 4)
                    ring = t < nstream
                    pf = vr(PF + 16 * (t % NPF) + 4 * ks, 4) if ring else vr(WOT + 16 * (t - 12) + 4 * ks, 4)
                    first = t in (0, 12) and ks == 0
                    mf = [f"v_mfma_f32_16x16x32_bf16 {acc}, {pf}, {vr(wb,4)}, {0 if first else acc}"]
                    if b == 0:
                        mf.append(f"v_mfma_f32_16x16x32_bf16 {a4}, {vr(u4,4)}, {vr(wb,4)}, {0 if first else a4}")
                    d = dict(reads=reads, need=[f"w{g}b"], mf=mf)
                    if self.o.get("x_fewlds"):
                        if b == 0:
                            d["reads"] = reads[1:]
                        else:
                            d["reads"] = []
                            d["need"] = [f"w{g-b}b"]
                    if b == 0 and ring:
                        d["vneed"] = f"u{t}_{ks}"
                    if t == 0 and b in (0, 1):
                        d["after"] = uload(1 + b, ks, (S_C1, S_C2)[b])
                    if t == 1 and b == 1:
                        d["after"] = (f"s_lshl_b32 s{S_T0}, s{SB+ks}, 6\ns_add_u32 s{S_T0}, s{S_T0}, s{S_A}\n"
                                      f"buffer_load_dword v{GV+ks}, v{VGA}, s[{R_WS}:{R_WS+3}], s{S_T0} offen sc1 ;@g{ks}")
                    if b == 3 and t + NPF < nstream:
                        d["after"] = uload(t + NPF, ks, S_C)
                        if ks == 3 and t + NPF + 1 < nstream:
                            d["after"] += "\n" + next_sc(t + NPF + 1)
                    if self.o.get("wotl") and 3 <= t <= 7 and b == 1:
                        k = (t - 3) * 4 + ks
                        lab = a.label("nw")
                        d["before"] = (f"s_cmp_eq_u32 s{S_FROMA}, 1\ns_cbranch_scc0 {lab}\ns_mov_b32 s{S_T0}, {49152 + k*1024}\n"
                                       f"buffer_load_dwordx4 {vr(WOT+4*k,4)}, v{VL}, s[{R_P}:{R_P+3}], s{S_T0} offen sc1\n{lab}:")
                    if t >= 13 and fill and g < 15:
                        d["after"] = fill.pop(0)
                    uses.append(d)
            stages.append(dict(uses=uses, bar="s_barrier" if t else ""))
        nd = self.o.get("nodrain")
        LF = self.o.get("LF", 6)
        self.pipeline(stages, LF, (16 - LF) if nd else 13, drain=not nd, wait_every=self.o.get('we', 2), vis=vis0)
        self.stamp(8, 2)
        a(f"""
        v_and_b32 v2, 15, v1
        v_mul_u32_u24 v2, 1280, v2
        v_lshrrev_b32 v3, 4, v1
        v_lshl_add_u32 v2, v3, 3, v2
        s_mul_i32 s{S_A}, s{S_ST}, {64*1280}
        s_lshl_b32 s{S_T0+1}, s{S_D}, 5
        s_add_u32 s{S_B}, s{S_A}, s{S_T0+1}
        s_mul_i32 s{S_T0+1}, s{S_DTILE}, 160
        s_add_u32 s{S_A}, s{S_A}, s{S_T0+1}
        s_add_u32 s{S_A}, s{S_A}, 128
        """)
        assert not fill
        for i_, (r, b) in enumerate(blocks):
            for k in range(4):
                a(f"v_fma_f32 v{r+k}, v{r+k}, v{GV+b}, v{ACC2+4*i_+k}")
            a(f"s_mul_i32 s{S_T0}, s{SB+b}, {16*1280}\ns_add_u32 s{S_T0}, s{S_T0}, s{S_A if r == ACC4 else S_B}")
            a(f"v_cvt_pk_bf16_f32 v{r}, v{r}, v{r+1}\nv_cvt_pk_bf16_f32 v{r+1}, v{r+2}, v{r+3}")
            a(f"buffer_store_dwordx2 {vr(r,2)}, v2, s[{R_OUT}:{R_OUT+3}], s{S_T0} offen {['', 'sc1', 'nt', 'sc0 sc1'][self.o.get('osc', 0)]}")
        if self.stamps or self.o.get("dbg"):
            a("s_waitcnt vmcnt(0)")
            self.stamp(9, 2)
        if self.o.get("calib"):
            a(f"""
            L_cal:
            s_memrealtime s[96:97]
            s_waitcnt lgkmcnt(0)
            s_sub_u32 s96, s96, s98
            s_cmp_lt_u32 s96, {self.o.get("calib")*100}
            s_cbranch_scc1 L_cal
            """)
        a(f"s_or_b32 s{S_T0}, s2, s{S_WAVE}\ns_cmp_lg_u32 s{S_T0}, 0\ns_cbranch_scc1 L_end\ns_mov_b32 s{S_T0}, 0")
        self.flag_store(S_T0, 4)
        a("s_branch L_end")

        a("L_F_u4:")
        if self.stop == "phase1":
            a("s_branch L_end")
        a(f"""
        v_lshlrev_b32 v{VL}, 4, v1
        s_mul_i32 s{S_C}, s{S_DTILE}, {5*UW_ST}
        s_add_u32 s{S_C}, s{S_C}, {UW + 4*UW_ST}
        """)
        self.f_perm()
        self.f0_barrier()
        p4 = self.o.get("preW4")
        if p4:
            for k in range(20):
                if k % 4 == 0:
                    a(f"s_add_u32 s{S_T0}, s{S_C}, {49152 + k*1024}")
                a(f"buffer_load_dwordx4 {vr(64+4*k,4)}, v{VL}, s[{R_WS}:{R_WS+3}], s{S_T0} offen offset:{(k%4)*1024} sc1")
            a(f"v_add_u32 v{VU4}, 0x20000, v{VL}")
        a("s_barrier")

        def u4_issue(iv):
            if iv >= 12 and p4:
                for i in range(4):
                    a(f"ds_write_b128 v{VU4}, {vr(64+16*(iv-12)+4*i,4)} offset:{(iv % 8)*4096 + i*1024}")
                return
            if iv < 12:
                a(self.perm_next(S_T0, S_PERM, 4096) + f"s_mov_b32 m0, {0x20000 + (iv % 8)*4096:#x}\ns_add_u32 s{S_T0}, s{S_T0}, s{S_C}")
            else:
                a(f"s_mov_b32 m0, {0x20000 + (iv % 8)*4096:#x}\ns_add_u32 s{S_T0}, s{S_C}, {iv*4096}")
            for i in range(4):
                a(f"buffer_load_dwordx4 v{VL}, s[{R_WS}:{R_WS+3}], s{S_T0} offen offset:{i*1024} sc1 lds")
        order = []
        for iv in range(8):
            u4_issue(iv)
            order.append(iv)
            if iv == 1:
                a("s_waitcnt vmcnt(4)\ns_barrier")
        for tb in range(1, 17):
            if tb in order:
                a(f"s_waitcnt vmcnt({4*len(order[order.index(tb)+1:])})")
            a("s_waitcnt lgkmcnt(0)\ns_barrier" if p4 and tb >= 7 else "s_barrier")
            iv = tb + (6 if self.o.get("nodrain") else 7)
            if 8 <= iv <= 16:
                u4_issue(iv)
                if not (p4 and iv >= 12):
                    order.append(iv)
        a("s_branch L_end")

        a("L_F_loader:")
        if self.stop == "phase1":
            a("s_branch L_end")
        a(f"v_lshlrev_b32 v{VL}, 4, v1")
        self.f0_barrier()
        nWR = self.o.get("nWR", 0)
        V = self.V_W2
        if nWR:
            a(f"s_waitcnt vmcnt(30)\nv_add_u32 v{VU4}, s{S_B}, v{VL}")
            for k in range(nWR):
                a(self.perm_next(S_T0, S_PERM, 128 * 4096) + f"s_add_u32 s{S_T0}, s{S_T0}, s{S_A}")
                for g in range(2):
                    if g:
                        a(f"s_add_u32 s{S_T0}, s{S_T0}, {4*32768}")
                    for i in range(4):
                        a(f"buffer_load_dwordx4 {vr(64+32*k+16*g+4*i,4)}, v{V+i}, s[{R_W2}:{R_W2+3}], s{S_T0} offen offset:{i*1024}")
            a(f"s_add_u32 s{S_B}, s{S_B}, {nWR*16384}")
        a("s_barrier")
        a(f"""
        s_sub_u32 s{S_T0}, s{S_WAVE}, 5
        s_lshl_b32 s{S_T0}, s{S_T0}, 1
        s_lshl_b32 s{S_T0+1}, s{S_ST}, 2
        s_add_u32 s{S_T0+1}, s{S_T0+1}, s{S_T0}
        s_mul_i32 s{S_C}, s{S_T0+1}, {GO_ST}
        s_add_u32 s{S_C}, s{S_C}, {GO}
        s_lshl_b32 s{S_D}, s{S_T0}, 12
        """)
        assert nWR == 0
        ops = [(iv, 8) for iv in range(8)]
        for tb in range(17):
            last = max(i for i, (iv, _) in enumerate(ops) if iv == tb)
            n = sum(c for _, c in ops[last + 1:])
            a(f"s_waitcnt vmcnt({min(n,63)})\ns_barrier")
            if self.o.get("halfW"):
                if 2 <= tb <= 9:
                    self.w2_half((tb - 2) & 1)
                    ops.append((8 + (tb - 2) // 2, 4))
            elif 2 <= tb <= 5:
                self.w2_issue()
                ops.append((tb + 6, 8))
            if 9 <= tb <= 13:
                iv = tb + 3
                g = iv - 12
                for s2 in range(2):
                    a(f"s_add_u32 m0, s{S_D}, {(iv % 8)*16384 + s2*4096}\ns_add_u32 s{S_T0}, s{S_C}, {s2*GO_ST + g*4096}")
                    for i in range(4):
                        a(f"buffer_load_dwordx4 v{VL}, s[{R_WS}:{R_WS+3}], s{S_T0} offen offset:{i*1024} sc1 lds")
                ops.append((iv, 8))
        a("s_branch L_end")
        a("L_F_poller:")
        if self.stop == "phase1":
            a("s_branch L_end")
        a(f"s_cmp_eq_u32 s{S_FROMA}, 1\ns_cbranch_scc1 L_F_pnowot")
        a(f"s_mul_i32 s{S_T0}, s{S_DTILE}, {FS}\ns_add_u32 s{S_T0}, s{S_T0}, {F_WOT}\nv_mov_b32 v2, s{S_T0}")
        self.poll([2], 4)
        a("s_barrier\nL_F_pnowot:")
        a(f"""
        s_mul_i32 s{S_T0}, s{S_DTILE}, 5
        s_lshr_b32 s{S_T0+1}, s{S_T0}, 3
        s_add_u32 s{S_T0}, s{S_T0}, 4
        s_lshr_b32 s{S_T0}, s{S_T0}, 3
        s_mul_i32 s{S_T0}, s{S_T0}, 24
        s_mul_i32 s{S_T0+1}, s{S_T0+1}, 24
        v_and_b32 v2, 31, v1
        v_min_u32 v2, 23, v2
        v_add_u32 v3, s{S_T0}, v2
        v_add_u32 v2, s{S_T0+1}, v2
        v_cmp_gt_u32 vcc, 32, v1
        s_mul_i32 s{S_T0}, s{S_DTILE}, {FS}
        s_add_u32 s{S_T0}, s{S_T0}, {F_WOT}
        v_cndmask_b32 v2, v2, v3, vcc
        v_mul_u32_u24 v2, {FS}, v2
        v_add_u32 v2, {F_U}, v2
        v_mov_b32 v3, s{S_T0}
        v_cmp_eq_u32 vcc, 63, v1
        s_nop 1
        v_cndmask_b32 v2, v2, v3, vcc
        """)
        self.poll([2], 4)
        self.stamp(6, 4)
        a("s_barrier")
        a(f"""
        v_and_b32 v2, 7, v1
        s_lshr_b32 s{S_T0}, s{S_ST}, 1
        s_lshl_b32 s{S_T0}, s{S_T0}, 3
        v_add_u32 v2, s{S_T0}, v2
        v_mul_u32_u24 v2, {FS}, v2
        v_add_u32 v2, {F_GO}, v2
        """)
        gp = self.o.get("gopoll", 9)
        for tb in range(gp):
            a("s_barrier")
            if tb == 1:
                a(f"s_cmp_eq_u32 s{S_FROMA}, 1\ns_cbranch_scc0 L_F_nogo")
                a(f"s_lshl_b32 s{S_T0}, s{S_MT}, 3\ns_add_u32 s{S_T0}, s{S_T0}, s{S_HG}\ns_mul_i32 s{S_T0}, s{S_T0}, {FS}\ns_add_u32 s{S_T0}, s{S_T0}, {F_GO}")
                self.flag_store(S_T0, 6)
                a("L_F_nogo:")
            if tb == gp - 3:
                a(f"buffer_load_dword v8, v2, s[{R_WS}:{R_WS+3}], 0 offen sc1")
            self.stamp(32 + tb, 4)
        a(f"s_waitcnt vmcnt(0)\nv_cmp_ne_u32 vcc, s{S_TAG}, v8\ns_nop 1\ns_cmp_eq_u64 vcc, 0\ns_cbranch_scc1 L_F_gook")
        self.poll([2], 4)
        a("L_F_gook:")
        self.stamp(7, 4)
        for tb in range(gp, 17):
            a("s_barrier")
            self.stamp(32 + tb, 4)
        a("L_end:")
        if "probe" in self.o or "pc1" in self.o:
            a("""
            s_cmp_eq_u32 s94, 0
            s_cbranch_scc1 L_exit
            L_prb:
            s_memrealtime s[96:97]
            s_waitcnt lgkmcnt(0)
            s_sub_u32 s96, s96, s98
            s_cmp_lt_i32 s96, 4000
            s_cbranch_scc1 L_prb
            """)
        if self.stamps:
            a(f"""
            s_lshl_b32 s{S_T0}, s2, 3
            s_add_u32 s{S_T0}, s{S_T0}, s{S_WAVE}
            s_lshl_b32 s{S_T0}, s{S_T0}, 9
            s_add_u32 s{S_T0}, s{S_T0}, {STAMP}
            v_lshlrev_b32 v2, 3, v1
            buffer_store_dwordx2 v[254:255], v2, s[{R_WS}:{R_WS+3}], s{S_T0} offen
            """)
        a("L_exit:\ns_endpgm")

    def build(self, header):
        a = self.a
        self.prologue()
        self.role_a()
        self.role_b()
        self.helper()
        self.final()
        body = a.text()
        out = header
        out += """; One persistent launch, 256 workgroups (one per CU) x 8 waves (0-3 MFMA, 4-7 loaders / pollers).
"""
        out += f"; @launch grid=(256,1,1) block=(512,1,1) lds={LDS_BYTES}\n"
        out += f'.amdgcn_target "amdgcn-amd-amdhsa--gfx950"\n.text\n.globl {KNAME}\n.p2align 8\n.type {KNAME},@function\n{KNAME}:\n'
        out += body
        out += f""".section .rodata,"a"
.p2align 6
.amdhsa_kernel {KNAME}
  .amdhsa_next_free_vgpr 256
  .amdhsa_next_free_sgpr 102
  .amdhsa_accum_offset 256
  .amdhsa_group_segment_fixed_size 0
  .amdhsa_kernarg_size 96
  .amdhsa_user_sgpr_count 2
  .amdhsa_user_sgpr_kernarg_segment_ptr 1
  .amdhsa_system_sgpr_workgroup_id_x 1
  .amdhsa_float_denorm_mode_32 3
.end_amdhsa_kernel
"""
        return out


def header():
    ref = open("gated_mix__linear_attn_block__mixer_token_mlp__prompt.s.ref").read().split("\n")
    h = []
    for l in ref:
        if l.startswith("; Override"):
            break
        h.append(l)
    return "\n".join(h) + "\n"


if __name__ == "__main__":
    import argparse
    p = argparse.ArgumentParser()
    p.add_argument("-o", default="gated_mix__linear_attn_block__mixer_token_mlp__prompt.s")
    p.add_argument("--stamps", action="store_true")
    p.add_argument("--stop", default=None)
    p.add_argument("--opt", default="")
    args = p.parse_args()
    opts = {k: (int(v) if v != '' else 1) for k, _, v in (x.partition('=') for x in args.opt.split(',') if x)}
    g = Gen(stamps=args.stamps, stop=args.stop, opts=opts)
    open(args.o, "w").write(g.build(header()))
    print("wrote", args.o)
```

```python
import sys

KNAME = "gated_mix__linear_attn_block__mixer_token_mlp__prompt_kernel"

import os
FS = int(os.environ.get('FS', 128))
F_LN, F_KV, F_U, F_GO, F_WOT = 0x1000, 0x5000, 0x9000, 0xD000, 0x11000
G_OFF = 0x12000
STAMP = 0x900000
KVP = 0x20000
KVP_ST = 7168
HT = 0x100000
UW = 0x380000
UW_ST = 69632
GO = 0x640000
GO_ST = 20480
WS_USED = 0xA00000
TAG_INC = 0x9E3779B9
SPIN_LIMIT = 1 << 17

LDS_BYTES = 163840
LNBUF = 0
LN_ST = 1312
LNG = LNBUF + 32 * LN_ST
A_SLOT = 49152
A_WOFF = 16384
EXCH_ST = 14336
EXCH = LDS_BYTES - 4 * EXCH_ST
KVT = 147456
ZH = KVT + 11 * 1024

LOG2E = 0x3FB8AA3B


def f2u(x):
    import struct
    return struct.unpack("<I", struct.pack("<f", x))[0]


class Asm:
    def __init__(self):
        self.L = []
        self.nlab = 0

    def __call__(self, s):
        for line in s.split("\n"):
            line = line.strip()
            if line:
                self.L.append(("    " if not line.endswith(":") else "") + line)

    def label(self, base):
        self.nlab += 1
        return f"L{base}_{self.nlab}"

    def text(self):
        return "\n".join(self.L) + "\n"


def vr(a, n=1):
    return f"v{a}" if n == 1 else f"v[{a}:{a+n-1}]"


def sr(a, n=1):
    return f"s{a}" if n == 1 else f"s[{a}:{a+n-1}]"


P_X, P_WQKV, P_WO, P_BX, P_W1, P_B1, P_W2, P_B2 = 4, 6, 8, 10, 12, 14, 16, 18
P_GATE, P_OUT, P_DBG, P_WS = 20, 22, 24, 26
S_TAG, S_WAVE = 28, 29
S_XCD, S_J = 30, 31
R_WS, R_X, R_W, R_P, R_W2, R_M, R_OUT = 32, 36, 40, 44, 48, 52, 56
S_T0 = 60
S_MT, S_HG, S_DT, S_FT, S_KST, S_PAR = 70, 71, 72, 73, 74, 75
S_ST, S_DTILE = 76, 77
S_CNT = 78
S_A, S_B, S_C, S_D = 80, 81, 82, 83
S_MSK = 84
S_K0 = 90
S_STMP = 96
S_PERM = 66
S_M = 79
S_FROMA = 95
S_PERM2 = 68


def lead_perm(n, nshare, m, lead=2):
    order = list(range(n))
    i = m
    while i + lead < n:
        order[i:i + lead + 1] = [order[i + lead]] + order[i:i + lead]
        i += nshare
    return order


class Gen:
    def __init__(self, stamps=False, stop=None, opts=None):
        self.o = opts or {}
        self.a = Asm()
        self.stamps = stamps
        self.stop = stop

    def nt(self, key):
        return "nt" if self.o.get(key) else ""

    def srd(self, dst, ptr, nbytes, off_s=None):
        a = self.a
        if off_s is None:
            a(f"s_mov_b32 s{dst}, s{ptr}\ns_and_b32 s{dst+1}, s{ptr+1}, 0xffff")
        else:
            a(f"s_add_u32 s{dst}, s{ptr}, s{off_s}\ns_addc_u32 s{dst+1}, s{ptr+1}, 0\ns_and_b32 s{dst+1}, s{dst+1}, 0xffff")
        a(f"s_mov_b32 s{dst+2}, {nbytes:#x}\ns_mov_b32 s{dst+3}, 0x20000")

    def stamp(self, k, vtmp, dyn=None):
        if "pc1" in self.o:
            if dyn is None and k in (self.o["pc1"], self.o["pc2"]):
                lab = self.a.label("npr")
                self.a(f"s_cmp_lg_u32 s{S_FROMA}, {self.o.get('prole', 0)}\ns_cbranch_scc1 {lab}")
                if k == self.o["pc1"]:
                    self.a(f"s_memtime s[92:93]\ns_waitcnt lgkmcnt(0)")
                else:
                    self.a(f"s_memtime s[96:97]\ns_waitcnt lgkmcnt(0)\ns_sub_u32 s92, s96, s92\ns_lshr_b32 s92, s92, 4\ns_add_u32 s98, s98, s92\ns_mov_b32 s94, 1")
                self.a(f"{lab}:")
            return
        if "probe" in self.o:
            role = self.o.get("prole")
            if k == self.o["probe"] and dyn is None:
                lab = self.a.label("npr")
                if self.o.get("phelp"):
                    self.a(f"s_cmp_lt_u32 s{S_J}, 30\ns_cbranch_scc1 {lab}")
                if role is not None and k != 0:
                    self.a(f"s_cmp_lg_u32 s{S_FROMA}, {role}\ns_cbranch_scc1 {lab}")
                self.a(f"s_memrealtime s[98:99]\ns_mov_b32 s94, 1\ns_waitcnt lgkmcnt(0)\n{lab}:")
            return
        if self.o.get("dbg"):
            m = {0: 0, 11: 1, 1: 2, 2: 3, 3: 4, 4: 5, 6: 6, 9: 7}
            mA = {0: 0, 1: 1, 2: 2, 3: 3, 4: 4, 5: 5, 6: 6, 9: 7}
            if dyn is not None:
                return
            a = self.a
            for wg, mp, base in ((8, m, 0), (12, mA, 8)):
                if k in mp:
                    lab = a.label("nd")
                    a(f"s_cmp_lg_u32 s2, {wg}\ns_cbranch_scc1 {lab}")
                    a(f"s_memrealtime s[{S_STMP}:{S_STMP+1}]\ns_waitcnt lgkmcnt(0)")
                    a(f"v_mov_b32 v{vtmp}, s{S_STMP}\nv_mov_b32 v{vtmp+2}, {4*(base+mp[k])}")
                    a(f"s_mov_b64 exec, 1\nglobal_store_dword v{vtmp+2}, v{vtmp}, s[{P_DBG}:{P_DBG+1}]\ns_mov_b64 exec, -1\n{lab}:")
            return
        if not self.stamps:
            return
        a = self.a
        a(f"s_memrealtime s[{S_STMP}:{S_STMP+1}]\ns_memtime s[100:101]")
        ln = str(k)
        if dyn is not None:
            a(f"s_add_u32 m0, s{dyn}, {k}")
            ln = "m0"
        a(f"s_waitcnt lgkmcnt(0)\nv_writelane_b32 v254, s{S_STMP}, {ln}\nv_writelane_b32 v255, s100, {ln}")

    def perm_setup(self, s_m, n, nshare, dst, enable):
        a = self.a
        def pk(o):
            v = 0
            for i, x in enumerate(o):
                v |= x << (4 * i)
            return v & 0xffffffff, v >> 32
        lo, hi = pk(list(range(n)))
        a(f"s_mov_b32 s{dst}, {lo:#x}\ns_mov_b32 s{dst+1}, {hi:#x}")
        if not enable:
            return
        for m in range(nshare):
            lo, hi = pk(lead_perm(n, nshare, m, enable))
            a(f"s_cmp_eq_u32 s{s_m}, {m}\ns_cselect_b32 s{dst}, {lo:#x}, s{dst}\ns_cselect_b32 s{dst+1}, {hi:#x}, s{dst+1}")

    def perm_next(self, dst, src, mul):
        t = f"s_and_b32 s{dst}, s{src}, 15\ns_lshr_b64 s[{src}:{src+1}], s[{src}:{src+1}], 4\n"
        if mul & (mul - 1) == 0:
            t += f"s_lshl_b32 s{dst}, s{dst}, {mul.bit_length()-1}\n"
        else:
            t += f"s_mul_i32 s{dst}, s{dst}, {mul}\n"
        return t

    def poll(self, voffs, vtmp, mask=None):
        a = self.a
        lp, dn = a.label("poll"), a.label("pdone")
        n = len(voffs)

        def ld(k):
            for i, vo in enumerate(voffs):
                a(f"buffer_load_dword v{vtmp+k*n+i}, v{vo}, s[{R_WS}:{R_WS+3}], 0 offen sc1")

        def chk(k):
            if mask is not None:
                a(f"v_xor_b32 v{vtmp+k*n}, s{S_TAG}, v{vtmp+k*n}\nv_and_b32 v{vtmp+k*n}, v{mask}, v{vtmp+k*n}\nv_cmp_ne_u32 vcc, 0, v{vtmp+k*n}")
            else:
                a(f"v_cmp_ne_u32 vcc, s{S_TAG}, v{vtmp+k*n}")
            for i in range(1, n):
                a(f"v_cmp_ne_u32 s[{S_T0}:{S_T0+1}], s{S_TAG}, v{vtmp+k*n+i}\ns_nop 1\ns_or_b64 vcc, vcc, s[{S_T0}:{S_T0+1}]")
            a(f"s_nop 1\ns_cmp_eq_u64 vcc, 0\ns_cbranch_scc1 {dn}")
        if not self.o.get("pp"):
            a(f"s_mov_b32 s{S_CNT}, 0\n{lp}:")
            ld(0)
            a("s_waitcnt vmcnt(0)")
            chk(0)
            a(f"s_add_u32 s{S_CNT}, s{S_CNT}, 1\ns_cmp_lt_u32 s{S_CNT}, {SPIN_LIMIT}\ns_cbranch_scc0 {dn}\ns_sleep 1\ns_branch {lp}\n{dn}:")
            return
        sl = f"s_sleep {self.o['pp'] - 1}\n" if self.o["pp"] > 1 else ""
        a(f"s_mov_b32 s{S_CNT}, 0")
        ld(0)
        a(f"{sl}{lp}:")
        ld(1)
        a(f"s_waitcnt vmcnt({n})")
        chk(0)
        ld(0)
        a(f"s_waitcnt vmcnt({n})")
        chk(1)
        a(f"s_add_u32 s{S_CNT}, s{S_CNT}, 1\ns_cmp_lt_u32 s{S_CNT}, {SPIN_LIMIT}\ns_cbranch_scc1 {lp}\n{dn}:")

    def flag_store(self, s_off, vtmp):
        a = self.a
        a(f"v_mov_b32 v{vtmp}, s{S_TAG}\nv_mov_b32 v{vtmp+1}, 0\ns_mov_b64 exec, 1")
        a(f"buffer_store_dword v{vtmp}, v{vtmp+1}, s[{R_WS}:{R_WS+3}], s{s_off} offen sc1\ns_mov_b64 exec, -1")

    def pipeline(self, stages, L, gstar, drain=True, wait_every=2, vis=None):
        a = self.a
        seq = [(si, gi, u) for si, st in enumerate(stages) for gi, u in enumerate(st["uses"])]
        issued = []
        vis = list(vis or [])
        state = dict(nxt=0, opened=-1)
        pend = []

        def collect(lim):
            while state["nxt"] < len(seq) and state["nxt"] <= lim and seq[state["nxt"]][0] <= state["opened"]:
                si_, _, u_ = seq[state["nxt"]]
                for name, txt in u_["reads"]:
                    pend.append((f"{si_}:{name}", txt))
                state["nxt"] += 1
                if seq[state["nxt"] - 1][1] == len(stages[si_]["uses"]) - 1 and si_ + 1 < len(stages):
                    state["defer"] = list(stages[si_ + 1].get("pre", []))

        def out(txt):
            if ";@" in txt:
                vis.append(txt.split(";@")[1].strip())
            a(txt)

        def emit(n):
            for _ in range(min(n, len(pend))):
                name, txt = pend.pop(0)
                out(txt)
                if name:
                    issued.append(name)

        a(stages[0]["bar"])
        state["opened"] = 0
        collect(L - 1)
        emit(len(pend))
        n_real = sum(len(st["uses"]) for st in stages if not st.get("virtual"))
        covered = -1
        for f in range(n_real):
            si, gi, u = seq[f]
            nuse = len(stages[si]["uses"])
            if gi == 0 and stages[si].get("head"):
                assert not pend, pend
                a(stages[si]["head"])
                covered = -1
            if gi == gstar and si + 1 < len(stages):
                emit(len(pend))
                for x in state.pop("defer", []):
                    a(x)
                if drain:
                    a("s_waitcnt lgkmcnt(0)")
                    covered = len(issued) - 1
                a(stages[si + 1]["bar"])
                pend.extend((None, x) for x in stages[si + 1].get("bar_pend", []))
                state["opened"] = si + 1
                collect(f + L - 1)
            def lastidx(ff):
                s_, _, uu = seq[ff]
                return max(len(issued) - 1 - issued[::-1].index(f"{s_}:{nm}") for nm in uu["need"])
            w = []
            if lastidx(f) > covered:
                tgt = lastidx(f)
                for ff in range(f + 1, min(f + wait_every, n_real)):
                    if seq[ff][0] != si:
                        break
                    try:
                        tgt = max(tgt, lastidx(ff))
                    except ValueError:
                        break
                n = len(issued) - 1 - tgt
                assert n <= 15, n
                w.append(f"lgkmcnt({n})")
                covered = tgt
            if u.get("vneed") is not None:
                w.insert(0, f"vmcnt({len(vis) - 1 - vis.index(u['vneed'])})")
            if u.get("vm") is not None:
                npv = sum(1 for nm_, t_ in pend if t_.strip().startswith("buffer_load"))
                w.insert(0, f"vmcnt({u['vm'] - npv})")
            if w:
                a("s_waitcnt " + " ".join(w))
            if u.get("before"):
                a(u["before"])
            if state.get("defer") and not pend:
                n_ = self.o.get("npre", 7)
                pend.extend((None, x) for x in state["defer"][:n_])
                state["defer"] = state["defer"][n_:]
            collect(f + L)
            if state.get("mix"):
                k_ = state.pop("mix")
                head_, rest_ = pend[:k_], pend[k_:]
                pend[:] = [x for pr in zip(head_, rest_) for x in pr] + head_[len(rest_):] + rest_[len(head_):]
            nm_ = len(u["mf"])
            for k, m in enumerate(u["mf"]):
                a(m)
                left = nm_ - k
                if drain and gi >= gstar:
                    left += sum(len(uu["mf"]) for uu in stages[si]["uses"][gi + 1:])
                    extra = 2 * (nuse - 1 - gi)
                    emit(-(-(len(pend) + extra) // left) if left > 1 else len(pend))
                else:
                    emit(-(-len(pend) // left))
            if u.get("after"):
                items = [x for x in u["after"].split("\n") if x.strip()]
                if gi == nuse - 1:
                    for x in items:
                        out(x)
                else:
                    assert not pend
                    pend.extend((None, x) for x in items)
                    state["mix"] = len(items)
            if gi == nuse - 1 and stages[si].get("tail"):
                a(stages[si]["tail"])

    def prologue(self):
        a = self.a
        a(f"""
        s_cmp_ge_u32 s2, 256
        s_cbranch_scc1 L_exit
        {"v_mov_b32 v254, 0" if self.stamps else ""}
        {"v_mov_b32 v255, 0" if self.stamps else ""}
        {"s_memrealtime s[98:99]" if self.o.get("calib") or "pc1" in self.o else ""}
        {"s_mov_b32 s94, 0" if "probe" in self.o or "pc1" in self.o else ""}
        s_load_dwordx16 s[4:19], s[0:1], 0
        s_load_dwordx8 s[20:27], s[0:1], 64
        """)
        if self.o.get("pf_code") == 2:
            a(f"""
            s_getpc_b64 s[{S_T0}:{S_T0+1}]
            L_pcref:
            s_lshr_b32 s3, s2, 3
            s_mul_i32 s3, s3, 1280
            v_lshlrev_b32 v4, 7, v0
            v_add_u32 v4, s3, v4
            v_min_u32 v4, L_exit-L_pcref, v4
            v_cmp_gt_u32 vcc, 10, v0
            s_and_saveexec_b64 s[{S_T0+2}:{S_T0+3}], vcc
            s_cbranch_execz L_nocpf
            global_load_dword v253, v4, s[{S_T0}:{S_T0+1}]
            L_nocpf:
            s_mov_b64 exec, -1
            """)
        a(f"""
        v_and_b32 v1, 63, v0
        v_lshrrev_b32 v2, 6, v0
        s_and_b32 s{S_XCD}, s2, 7
        v_readfirstlane_b32 s{S_WAVE}, v2
        s_lshr_b32 s{S_J}, s2, 3
        s_waitcnt lgkmcnt(0)
        s_load_dword s{S_TAG}, s[{P_WS}:{P_WS+1}], 0
        """)
        self.srd(R_WS, P_WS, WS_USED)
        self.srd(R_X, P_X, 2048 * 1280)
        self.srd(R_W2, P_W2, 1536 * 4096)
        if self.stamps or self.o.get("dbg") or "probe" in self.o:
            a(f"s_cmp_lg_u32 s{S_WAVE}, 0\ns_cbranch_scc1 L_nost0")
            self.stamp(0, 4)
            a("L_nost0:")
        if self.o.get("tlb"):
            self.tlb_warm()
        if self.o.get("pf_code") == 1:
            self.code_prefetch()
        if self.o.get("prio"):
            a(f"""
            s_sub_u32 s{S_T0}, s{S_WAVE}, 4
            s_cmp_lt_u32 s{S_T0}, 3
            s_cbranch_scc1 L_noprio
            s_setprio 3
            L_noprio:
            """)
        a(f"""
        s_lshr_b32 s{S_T0}, s{S_XCD}, 1
        s_lshl_b32 s{S_T0}, s{S_T0}, 3
        s_lshr_b32 s{S_ST}, s{S_J}, 2
        s_add_u32 s{S_ST}, s{S_ST}, s{S_T0}
        s_and_b32 s{S_T0}, s{S_XCD}, 1
        s_lshl_b32 s{S_T0}, s{S_T0}, 2
        s_and_b32 s{S_DTILE}, s{S_J}, 3
        s_add_u32 s{S_DTILE}, s{S_DTILE}, s{S_T0}
        s_cmp_lt_u32 s{S_XCD}, 4
        s_cbranch_scc1 L_roleB
        """)

    V_W2 = 240

    def f_perm(self):
        a = self.a
        a(f"s_lshl_b32 s{S_M}, s{S_DTILE}, 1\ns_add_u32 s{S_M}, s{S_M}, s{S_ST}\ns_and_b32 s{S_M}, s{S_M}, 7")
        self.perm_setup(S_M, 12, 8, S_PERM, self.o.get("rotF"))

    def w2_setup(self):
        a = self.a
        V = self.V_W2
        self.f_perm()
        a(f"""
        v_lshrrev_b32 v{V}, 3, v1
        v_lshrrev_b32 v{V+1}, 4, v1
        v_lshlrev_b32 v{V+1}, 1, v{V+1}
        v_and_b32 v{V+2}, 7, v1
        v_xor_b32 v{V+1}, v{V+1}, v{V+2}
        v_lshlrev_b32 v{V+1}, 4, v{V+1}
        v_lshl_add_u32 v{V}, v{V}, 12, v{V+1}
        v_add_u32 v{V+1}, {32768-1024}, v{V}
        v_add_u32 v{V+2}, {2*(32768-1024)}, v{V}
        v_add_u32 v{V+3}, {3*(32768-1024)}, v{V}
        s_sub_u32 s{S_T0}, s{S_WAVE}, 5
        s_lshl_b32 s{S_B}, s{S_T0}, 13
        s_lshl_b32 s{S_A}, s{S_T0}, 18
        s_lshl_b32 s{S_T0}, s{S_ST}, 7
        s_add_u32 s{S_A}, s{S_A}, s{S_T0}
        """)

    def w2_issue_at(self, p):
        a = self.a
        V = self.V_W2
        a(f"s_bfe_u32 s{S_T0}, s{S_PERM}, {(4 << 16) | (4 * p):#x}\ns_lshl_b32 s{S_T0}, s{S_T0}, 19\ns_add_u32 s{S_T0}, s{S_T0}, s{S_A}")
        for g in range(2):
            a(f"s_add_u32 m0, s{S_B}, {p*16384 + g*4096}")
            a(f"s_add_u32 s{S_T0}, s{S_T0}, {g*4*32768}")
            for i in range(4):
                a(f"buffer_load_dwordx4 v{V+i}, s[{R_W2}:{R_W2+3}], s{S_T0} offen offset:{i*1024} lds")

    def w2_half(self, g):
        a = self.a
        V = self.V_W2
        if g == 0:
            a(self.perm_next(S_K0, S_PERM, 128 * 4096) + f"s_add_u32 s{S_K0}, s{S_K0}, s{S_A}")
        a(f"s_add_u32 m0, s{S_B}, {g*4096}\ns_add_u32 s{S_T0}, s{S_K0}, {g*4*32768}")
        for i in range(4):
            a(f"buffer_load_dwordx4 v{V+i}, s[{R_W2}:{R_W2+3}], s{S_T0} offen offset:{i*1024} lds")
        if g == 1:
            a(f"s_add_u32 s{S_B}, s{S_B}, 16384")

    def w2_issue(self):
        a = self.a
        V = self.V_W2
        a(self.perm_next(S_T0, S_PERM, 128 * 4096))
        a(f"s_add_u32 s{S_T0}, s{S_T0}, s{S_A}")
        for g in range(2):
            a(f"s_add_u32 m0, s{S_B}, {g*4096}")
            a(f"s_add_u32 s{S_T0}, s{S_T0}, {g*4*32768}")
            for i in range(4):
                a(f"buffer_load_dwordx4 v{V+i}, s[{R_W2}:{R_W2+3}], s{S_T0} offen offset:{i*1024} lds")
        a(f"s_add_u32 s{S_B}, s{S_B}, 16384\ns_and_b32 s{S_B}, s{S_B}, 0x1ffff")

    def w2_prefill(self, n):
        if n == 0:
            return
        a = self.a
        lp = a.label("pf")
        a(f"s_mov_b32 s{S_C}, 0\n{lp}:")
        self.w2_issue()
        a(f"s_add_u32 s{S_C}, s{S_C}, 1\ns_cmp_lt_u32 s{S_C}, {n}\ns_cbranch_scc1 {lp}")

    def if_wave56(self):
        a = self.a
        skip = a.label("n56")
        a(f"s_sub_u32 s{S_T0}, s{S_WAVE}, 5\ns_cmp_lt_u32 s{S_T0}, 2\ns_cbranch_scc0 {skip}")
        return skip

    def role_a(self):
        a = self.a
        a(f"L_roleA:\ns_mov_b32 s{S_FROMA}, 1")
        a(f"s_sub_u32 s{S_MT}, s{S_ST}, 16\ns_mov_b32 s{S_HG}, s{S_DTILE}")
        a(f"s_cmp_ge_u32 s{S_WAVE}, 4\ns_cbranch_scc1 L_A_loader")
        ACC, XF, WF, VXA, VWA = 128, 96, 64, 4, 6
        if self.o.get("ta1") or self.o.get("ta2"):
            self.start_prefetch()
        self.a_thread_map()
        a(f"""
        v_and_b32 v16, 15, v1
        v_lshrrev_b32 v17, 4, v1
        s_lshl_b32 s{S_T0}, s{S_WAVE}, 5
        v_add_u32 v18, s{S_T0}, v16
        v_lshrrev_b32 v19, 1, v16
        v_xor_b32 v19, v17, v19
        v_lshlrev_b32 v19, 4, v19
        v_lshl_add_u32 v{VXA}, v18, 7, v19
        v_xor_b32 v{VXA+1}, 64, v{VXA}
        v_lshrrev_b32 v18, 2, v16
        v_lshl_add_u32 v19, v17, 3, v18
        v_and_b32 v20, 1, v17
        v_lshl_or_b32 v20, v20, 2, v18
        v_lshlrev_b32 v19, 9, v19
        v_lshl_add_u32 v19, v20, 5, v19
        v_and_b32 v20, 3, v16
        v_lshl_add_u32 v19, v20, 3, v19
        v_add_u32 v{VWA}, {A_WOFF}, v19
        """)
        for n in range(1, 8):
            a(f"v_xor_b32 v{VWA+n}, {n<<5}, v{VWA}")
        for r in range(120):
            a(f"v_mov_b32 v{ACC+r}, 0")
        a(f"s_mov_b32 s{S_A}, 0\ns_mov_b32 s{S_B}, 0\ns_mov_b32 s{S_C}, {A_SLOT}\ns_waitcnt lgkmcnt(0)")
        a(f"s_add_u32 s{S_TAG}, s{S_TAG}, {TAG_INC:#x}")

        RING = 6
        D = 6

        def mk_stage(bar, virtual=False, head=None, tail=None):
            uses = []
            for g in range(30):
                ks, n = divmod(g, 15)
                wb = WF + 4 * (g % RING)
                reads = []
                if g == 0:
                    for rb in range(2):
                        reads.append((f"x0{rb}", f"ds_read_b128 {vr(XF+4*rb,4)}, v{VXA} offset:{rb*2048}"))
                if g == 13:
                    for rb in range(2):
                        reads.append((f"x1{rb}", f"ds_read_b128 {vr(XF+8+4*rb,4)}, v{VXA+1} offset:{rb*2048}"))
                off = ks * 16384 + (n >> 3) * 256
                reads.append((f"w{g}a", f"ds_read_b64_tr_b16 {vr(wb,2)}, v{VWA+(n&7)} offset:{off}"))
                reads.append((f"w{g}b", f"ds_read_b64_tr_b16 {vr(wb+2,2)}, v{VWA+(n&7)} offset:{off+2048}"))
                need = [f"w{g}b", f"x{ks}1"]
                mf = []
                for rb in range(2):
                    acc = vr(ACC + (n * 2 + rb) * 4, 4)
                    xf = vr(XF + ks * 8 + rb * 4, 4)
                    wf = vr(wb, 4)
                    if n < 5:
                        mf.append(f"v_mfma_f32_16x16x32_bf16 {acc}, {wf}, {xf}, {acc}")
                    else:
                        mf.append(f"v_mfma_f32_16x16x32_bf16 {acc}, {xf}, {wf}, {acc}")
                u_ = dict(reads=reads, need=need, mf=mf)
                if g == 10 and self.o.get("half0"):
                    u_["before"] = f"s_cmp_lg_u32 s{S_A}, 0\ns_cbranch_scc1 L_A_nb0\ns_barrier\nL_A_nb0:"
                uses.append(u_)
            return dict(uses=uses, bar=bar, virtual=virtual, head=head, tail=tail)

        adv = "s_barrier"
        pre = [f"s_add_u32 s{S_B}, s{S_B}, 1", f"s_cmp_eq_u32 s{S_B}, 3", f"s_cselect_b32 s{S_B}, 0, s{S_B}",
               f"s_cselect_b32 s{S_T0}, {(-2*A_SLOT) & 0xffffffff:#x}, s{S_C}"]
        pre += [f"v_add_u32 v{r}, s{S_T0}, v{r}" for r in range(VXA, VWA + 8)]
        tail = f"s_add_u32 s{S_A}, s{S_A}, 1\ns_cmp_lt_u32 s{S_A}, 10\ns_cbranch_scc1 L_A_loop"
        head = "L_A_loop:\n"
        bar0 = "s_barrier"
        self.uw_srd()
        if self.o.get("tw2") == 2:
            self.srd(R_M, P_WO, 640 * 1280)
            a(f"""
            v_lshlrev_b32 v252, 7, v1
            s_lshl_b32 s{S_T0}, s{S_MT}, 3
            s_add_u32 s{S_T0}, s{S_T0}, s{S_HG}
            s_lshl_b32 s{S_T0}, s{S_T0}, 2
            s_add_u32 s{S_T0}, s{S_T0}, s{S_WAVE}
            s_mul_i32 s{S_D}, s{S_T0}, {8192 if self.o.get("hW2") else 12288}
            s_add_u32 s{S_KST}, s{S_D}, 8192
            s_mul_i32 s{S_PAR}, s{S_T0}, 1664
            s_and_b32 s{S_M}, s{S_J}, 7
            s_add_u32 s{S_M}, s{S_M}, {self.o.get("tw2at", 1)}
            """)
            head += f"""
            s_cmp_lg_u32 s{S_A}, s{S_M}
            s_cbranch_scc1 L_A_nt2
            buffer_load_dword v253, v252, s[{R_W2}:{R_W2+3}], s{S_D} offen
            s_mov_b32 exec_hi, 0
            {"" if self.o.get("hW2") else f"buffer_load_dword v253, v252, s[{R_W2}:{R_W2+3}], s{S_KST} offen"}
            s_mov_b32 exec_lo, 0x1fff
            {"" if self.o.get("woLN") else f"buffer_load_dword v253, v252, s[{R_M}:{R_M+3}], s{S_PAR} offen"}
            s_mov_b64 exec, -1
            L_A_nt2:
            """
        if "promA" in self.o:
            head += f"s_cmp_lg_u32 s{S_A}, {self.o['promA']}\ns_cbranch_scc1 L_A_npr\n" + self.pf_rest_plain() + "L_A_npr:\n"
        ta2 = self.o.get("ta2")
        if ta2 == 1:
            a(self.pf_rest())
        elif ta2 == 2:
            bar0 += "\n" + self.pf_rest()
        elif ta2:
            head += f"s_cmp_lg_u32 s{S_A}, {ta2-2}\ns_cbranch_scc1 L_A_npf\n" + self.pf_rest() + "L_A_npf:\n"
        self.pipeline([mk_stage(bar0, head=head, tail=tail), dict(mk_stage(adv, virtual=True), pre=pre)], 5, 30 - 3, wait_every=self.o.get('we', 2))
        self.stamp(2, 16)
        PK, VV, ONES, KVD, ZD = 16, 36, 56, 64, 116
        a(f"""
        L_A_tail:
        s_mov_b32 s{S_K0}, {LOG2E:#x}
        s_mov_b32 s{S_K0+1}, {LOG2E:#x}
        s_mov_b32 s{S_K0+2}, {f2u(1e-6):#x}
        s_mul_i32 s{S_T0}, s{S_WAVE}, {EXCH_ST}
        s_add_u32 s{S_T0}, s{S_T0}, {EXCH}
        v_lshlrev_b32 v4, 4, v1
        v_add_u32 v4, s{S_T0}, v4
        v_and_b32 v5, 15, v1
        v_lshlrev_b32 v5, 2, v5
        v_add_u32 v5, s{S_T0}, v5
        """)
        for k in range(4):
            a(f"v_mov_b32 v{ONES+k}, 0x3f803f80")

        def phi(base, n, t):
            for i in range(0, n, 4):
                r = base + i
                a(f"v_pk_mul_f32 {vr(t,2)}, {vr(r,2)}, s[{S_K0}:{S_K0+1}]")
                a(f"v_pk_mul_f32 {vr(t+2,2)}, {vr(r+2,2)}, s[{S_K0}:{S_K0+1}]")
                for k in range(4):
                    a(f"v_exp_f32_e64 v{t+k}, v{t+k} clamp")
                for k in range(4):
                    a(f"v_max_f32 v{r+k}, s{S_K0+2}, v{r+k}")
                a(f"v_pk_add_f32 {vr(r,2)}, {vr(r,2)}, {vr(t,2)}")
                a(f"v_pk_add_f32 {vr(r+2,2)}, {vr(r+2,2)}, {vr(t+2,2)}")

        def pack(dst, src0, src1):
            a(f"v_cvt_pk_bf16_f32 v{dst}, v{src0}, v{src0+1}\nv_cvt_pk_bf16_f32 v{dst+1}, v{src0+2}, v{src0+3}")
            if src1 is None:
                a(f"v_mov_b32 v{dst+2}, 0\nv_mov_b32 v{dst+3}, 0")
            else:
                a(f"v_cvt_pk_bf16_f32 v{dst+2}, v{src1}, v{src1+1}\nv_cvt_pk_bf16_f32 v{dst+3}, v{src1+2}, v{src1+3}")

        for b in range(5):
            pack(VV + 4 * b, ACC + (10 + b) * 8, ACC + (10 + b) * 8 + 4)
        a("s_waitcnt lgkmcnt(0)")
        ZD = ACC + 80

        def writes(x):
            for y in range(5):
                if abs(x - y) <= 1:
                    a(f"ds_write_b128 v4, {vr(KVD+4*(2*x+y),4)} offset:{(2*x+y)*1024}")
            a(f"ds_write_b32 v5, v{ZD+4*x} offset:{13312+64*x}")
        phi(ACC + 40, 40, 60)
        for x in range(5):
            pack(PK + 4 * x, ACC + (5 + x) * 8, ACC + (5 + x) * 8 + 4)
        a("s_nop 1")
        for x in range(5):
            for y in range(5):
                if abs(x - y) <= 1:
                    a(f"v_mfma_f32_16x16x32_bf16 {vr(KVD+4*(2*x+y),4)}, {vr(PK+4*x,4)}, {vr(VV+4*y,4)}, 0")
            a(f"v_mfma_f32_16x16x32_bf16 {vr(ZD+4*x,4)}, {vr(ONES,4)}, {vr(PK+4*x,4)}, 0")
            if x >= 3:
                writes(x - 3)
        for x in range(2, 5):
            writes(x)
        self.stamp(10, 40)
        a("s_waitcnt lgkmcnt(0)\ns_barrier")
        self.stamp(11, 40)
        self.a_reduce_publish(64)
        self.stamp(12, 40)
        self.vl_setup()
        a("s_barrier")
        self.stamp(14, 40)
        self.wot_preload()
        PQ = 16
        phi(ACC, 40, 60)
        for ts in range(3):
            for rb in range(2):
                pack(PQ + (ts * 2 + rb) * 4, ACC + (2 * ts * 2 + rb) * 4, None if ts == 2 else ACC + ((2 * ts + 1) * 2 + rb) * 4)
        self.f_setup()
        a("s_barrier")
        a(f"""
        v_and_b32 v63, 15, v1
        v_lshlrev_b32 v63, 2, v63
        s_lshl_b32 s{S_T0}, s{S_MT}, 7
        s_lshl_b32 s{S_T0+1}, s{S_WAVE}, 5
        s_add_u32 s{S_T0}, s{S_T0}, s{S_T0+1}
        s_lshl_b32 s{S_T0}, s{S_T0}, 2
        s_add_u32 s{S_T0}, s{S_T0}, {G_OFF}
        buffer_load_dword v62, v63, s[{R_WS}:{R_WS+3}], s{S_T0} offen sc1
        buffer_load_dword v61, v63, s[{R_WS}:{R_WS+3}], s{S_T0} offen offset:64 sc1
        """)
        SG1, SG2 = 93, S_M
        a(f"""
        v_lshrrev_b32 v40, 4, v1
        v_cmp_gt_u32 s[{S_MSK}:{S_MSK+1}], 1, v40
        v_cmp_gt_u32 s[{S_MSK+2}:{S_MSK+3}], 2, v40
        v_cmp_gt_u32 s[{S_MSK+4}:{S_MSK+5}], 3, v40
        s_lshl_b32 s{S_T0}, s{S_MT}, 3
        s_lshl_b32 s{S_T0+1}, s{S_WAVE}, 1
        s_add_u32 s{S_T0}, s{S_T0}, s{S_T0+1}
        s_mul_i32 s{S_T0}, s{S_T0}, {GO_ST}
        s_add_u32 s{S_T0}, s{S_T0}, {GO}
        s_lshl_b32 s{SG1}, s{S_HG}, 11
        s_add_u32 s{SG1}, s{SG1}, s{S_T0}
        s_lshl_b32 s{SG2}, s{S_HG}, 9
        s_add_u32 s{SG2}, s{SG2}, s{S_T0}
        s_add_u32 s{SG2}, s{SG2}, 16384
        v_lshlrev_b32 v40, 4, v1
        v_lshlrev_b32 v41, 3, v1
        v_add_u32 v60, {KVT}, v40
        """)
        self.a_gather(64)
        a("s_waitcnt lgkmcnt(0)\ns_barrier")
        self.stamp(4, 40)
        FR = 64
        used = [11, 12, 13, 0, 2, 3, 4, 5, 7, 8, 9, 10]
        for f in used:
            a(f"ds_read_b128 {vr(FR+4*f,4)}, v60 offset:{f*1024}")
        NUM, DEN = 128, 120
        kts = {0: [0], 1: [0, 1], 2: [0, 1], 3: [1, 2], 4: [1, 2]}
        a("s_waitcnt lgkmcnt(9)")
        for ts in range(3):
            for rb in range(2):
                c = "0" if ts == 0 else vr(DEN + 4 * rb, 4)
                a(f"v_mfma_f32_16x16x32_bf16 {vr(DEN+4*rb,4)}, {vr(FR+4*(11+ts),4)}, {vr(PQ+(ts*2+rb)*4,4)}, {c}")
        a("s_waitcnt lgkmcnt(0)")
        gv = {0: 62, 1: 61}
        fill = [f"v_add_f32 v{DEN+i}, s{S_K0+2}, v{DEN+i}" for i in range(8)]
        fill += [f"v_rcp_f32 v{DEN+i}, v{DEN+i}" for i in range(8)]
        fill += [f"v_mul_f32 v{DEN+i}, v{gv[i >> 2]}, v{DEN+i}" for i in range(8)]
        nm = 0
        for rb in range(2):
            for b in range(5):
                for i, ts in enumerate(kts[b]):
                    d = vr(NUM + (rb * 5 + b) * 4, 4)
                    c = "0" if i == 0 else d
                    a(f"v_mfma_f32_16x16x32_bf16 {d}, {vr(FR+4*(2*b+ts),4)}, {vr(PQ+(ts*2+rb)*4,4)}, {c}")
                    nm += 1
                    if nm >= 7:
                        for _ in range(2):
                            if fill:
                                a(fill.pop(0))
        assert not fill
        for rb in range(2):
            d = DEN + 4 * rb
            a(f"v_cndmask_b32 v44, v{d+1}, v{d}, s[{S_MSK}:{S_MSK+1}]")
            a(f"v_cndmask_b32 v45, v{d+2}, v{d+1}, s[{S_MSK+2}:{S_MSK+3}]")
            a(f"v_cndmask_b32 v46, v{d+3}, v{d+2}, s[{S_MSK+4}:{S_MSK+5}]")
            sc = [d, 44, 45, 46, d + 3]
            for b in range(5):
                for k in range(4):
                    r = NUM + (rb * 5 + b) * 4 + k
                    a(f"v_mul_f32 v{r}, v{sc[b]}, v{r}")
            o = 16 + rb * 12
            n0 = NUM + rb * 20
            pack(o, n0, n0 + 4)
            pack(o + 4, n0 + 8, n0 + 12)
            a(f"v_cvt_pk_bf16_f32 v{o+8}, v{n0+16}, v{n0+17}\nv_cvt_pk_bf16_f32 v{o+9}, v{n0+18}, v{n0+19}")
            a(f"buffer_store_dwordx4 {vr(o,4)}, v40, s[{R_WS}:{R_WS+3}], s{SG1} offen sc1")
            a(f"buffer_store_dwordx4 {vr(o+4,4)}, v40, s[{R_WS}:{R_WS+3}], s{SG1} offen offset:1024 sc1")
            a(f"buffer_store_dwordx2 {vr(o+8,2)}, v41, s[{R_WS}:{R_WS+3}], s{SG2} offen sc1")
            if rb == 0:
                a(f"s_add_u32 s{SG1}, s{SG1}, {GO_ST}\ns_add_u32 s{SG2}, s{SG2}, {GO_ST}")
        self.stamp(5, 40)
        a("s_branch L_F_comp")

        a("L_A_loader:")
        VX, VW = 4, 8
        self.srd(R_W, P_WQKV, 640 * 3840)
        a(f"""
        s_sub_u32 s{S_D}, s{S_WAVE}, 4
        v_lshrrev_b32 v16, 3, v1
        v_lshrrev_b32 v17, 4, v1
        v_and_b32 v18, 7, v1
        v_xor_b32 v17, v17, v18
        v_lshlrev_b32 v17, 4, v17
        v_mul_u32_u24 v16, 1280, v16
        v_add_u32 v{VX}, v16, v17
        v_xor_b32 v18, 64, v{VX}
        v_add_u32 v{VX+1}, {8*1280-1024}, v18
        v_add_u32 v{VX+2}, {2*(8*1280-1024)}, v{VX}
        v_add_u32 v{VX+3}, {3*(8*1280-1024)}, v18
        s_lshl_b32 s{S_T0}, s{S_MT}, 7
        s_lshl_b32 s{S_T0+1}, s{S_D}, 5
        s_add_u32 s{S_T0}, s{S_T0}, s{S_T0+1}
        s_mul_i32 s{S_A}, s{S_T0}, 1280
        s_lshl_b32 s{S_C}, s{S_D}, 12
        """)
        def issue_x():
            a(f"s_mov_b32 m0, s{S_C}\ns_nop 0")
            for i in range(4):
                a(f"buffer_load_dwordx4 v{VX+i}, s[{R_X}:{R_X+3}], s{S_A} offen offset:{i*1024} lds")
            a(f"s_add_u32 s{S_A}, s{S_A}, 128")

        def issue_w():
            for g in range(2):
                a(f"s_add_u32 m0, s{S_C}, {A_WOFF + g*16384}\ns_add_u32 s{S_T0}, s{S_B}, {g*32*3840}")
                for i in range(4):
                    a(f"buffer_load_dwordx4 v{VW+i}, s[{R_W}:{R_W+3}], s{S_T0} offen offset:{i*1024} lds")
            a(f"s_add_u32 s{S_B}, s{S_B}, {64*3840}")

        def next_slot():
            a(f"s_add_u32 s{S_C}, s{S_C}, {A_SLOT}\ns_cmp_ge_u32 s{S_C}, {3*A_SLOT}\ns_cselect_b32 s{S_T0}, {3*A_SLOT}, 0\ns_sub_u32 s{S_C}, s{S_C}, s{S_T0}")

        issue_x()
        a(f"""
        v_lshrrev_b32 v16, 5, v1
        v_bfe_u32 v17, v1, 1, 4
        v_and_b32 v18, 1, v1
        v_lshlrev_b32 v18, 4, v18
        v_mul_u32_u24 v19, 3840, v16
        v_add_u32 v18, v18, v19
        """)
        a(f"s_and_b32 s{S_T0}, s{S_D}, 1\ns_lshl_b32 s{S_T0}, s{S_T0}, 2\nv_or_b32 v16, s{S_T0}, v16")
        for i in (0, 1):
            a(f"""
            v_or_b32 v19, {2*i}, v16
            v_xor_b32 v19, v17, v19
            v_min_u32 v19, 14, v19
            v_mul_u32_u24 v20, 13, v19
            v_lshrrev_b32 v20, 6, v20
            v_mul_u32_u24 v20, 1120, v20
            v_lshl_add_u32 v19, v19, 5, v20
            v_add_u32 v19, v19, v18
            v_add_u32 v{VW+i}, {2*i*3840 - i*1024}, v19
            v_add_u32 v{VW+i+2}, {2*(i+2)*3840 - (i+2)*1024}, v19
            """)
        a(f"""
        s_mul_i32 s{S_B}, s{S_HG}, 160
        s_mul_i32 s{S_T0}, s{S_D}, {8*3840}
        s_add_u32 s{S_B}, s{S_B}, s{S_T0}
        """)
        issue_w()
        for _ in range(2):
            next_slot()
            issue_x()
            issue_w()
        a(f"s_waitcnt lgkmcnt(0)\ns_add_u32 s{S_TAG}, s{S_TAG}, {TAG_INC:#x}")
        if self.o.get("half0"):
            a("s_waitcnt vmcnt(28)\ns_barrier")
        a("s_waitcnt vmcnt(24)\ns_barrier")
        self.stamp(1, 16)
        rotA = self.o.get("rotA")
        if rotA:
            a(f"s_lshl_b32 s{S_M}, s{S_HG}, 1\ns_add_u32 s{S_M}, s{S_M}, s{S_MT}\ns_and_b32 s{S_M}, s{S_M}, 7")
            self.perm_setup(S_M, 7, 8, S_PERM, rotA)
            a(f"s_mov_b32 s{S_KST}, s{S_A}\ns_mov_b32 s{S_PAR}, s{S_B}")
        a(f"s_mov_b32 s{S_CNT}, 1\nL_A_lloop:")
        if rotA:
            a(self.perm_next(S_B, S_PERM, 1))
            a(f"s_lshl_b32 s{S_A}, s{S_B}, 7\ns_add_u32 s{S_A}, s{S_A}, s{S_KST}\ns_mul_i32 s{S_B}, s{S_B}, {64*3840}\ns_add_u32 s{S_B}, s{S_B}, s{S_PAR}")
        a("s_waitcnt vmcnt(12)\ns_barrier")
        self.stamp(16, 16, dyn=S_CNT)
        next_slot()
        issue_x()
        issue_w()
        a(f"s_add_u32 s{S_CNT}, s{S_CNT}, 1\ns_cmp_le_u32 s{S_CNT}, 7\ns_cbranch_scc1 L_A_lloop")
        tw = 3 if self.o.get("tw2") == 1 else 0
        a(f"s_waitcnt vmcnt(12)\ns_barrier")
        if tw:
            self.w2_touch()
        self.stamp(24, 16)
        self.w2_setup()
        self.a_thread_map()
        a(f"""
        s_mul_i32 s{S_T0}, s{S_DTILE}, {FS}
        s_add_u32 s{S_T0}, s{S_T0}, {F_WOT}
        v_mov_b32 v26, s{S_T0}
        v_and_b32 v27, 3, v1
        s_lshl_b32 s{S_T0}, s{S_MT}, 2
        v_add_u32 v27, s{S_T0}, v27
        v_mul_u32_u24 v27, {FS}, v27
        v_add_u32 v27, {F_LN}, v27
        v_cmp_gt_u32 vcc, 32, v1
        s_nop 1
        v_cndmask_b32 v26, v27, v26, vcc
        """)
        a(f"s_waitcnt vmcnt({tw})\ns_barrier")
        a(f"buffer_load_dword v28, v26, s[{R_WS}:{R_WS+3}], 0 offen sc1")
        self.stamp(25, 16)
        self.code_touch([("L_A_tail", 0), ("L_A_post", 0), ("L_F_comp", 0), ("L_F_comp", 1)])
        a("L_A_post:")
        eA = self.o.get("eA", 2)
        early = [3, 4, 5, 0, 1, 2]
        nE = self.o.get("nE", 6)
        sk = self.if_wave56()
        for p in early[:eA]:
            self.w2_issue_at(p)
        a(f"{sk}:\ns_barrier")
        self.stamp(26, 16)
        sk = self.if_wave56()
        for p in early[eA:nE]:
            self.w2_issue_at(p)
        a(f"{sk}:")
        a(f"s_cmp_eq_u32 s{S_WAVE}, 7\ns_cbranch_scc1 L_A_poller")
        a("s_barrier")
        self.a_reduce_publish(64)
        self.stamp(15, 40)
        a("s_barrier")
        self.kvt_zero()
        skip = self.if_wave56()
        for p in early[nE:] + [6, 7]:
            self.w2_issue_at(p)
        a(f"s_mov_b32 s{S_PERM}, s{S_PERM+1}")
        a("s_barrier")
        self.a_gather(64)
        a("s_waitcnt lgkmcnt(0)\ns_barrier")
        a("s_branch L_F_loader")
        a(f"{skip}:\ns_barrier")
        self.a_gather(64)
        a("s_waitcnt lgkmcnt(0)\ns_barrier")
        a("s_branch L_F_u4")
        a("L_A_poller:")
        a(f"s_waitcnt vmcnt(0)\nv_cmp_ne_u32 vcc, s{S_TAG}, v28\ns_nop 1\ns_cmp_eq_u64 vcc, 0\ns_cbranch_scc1 L_A_pok")
        self.poll([26], 18)
        a("L_A_pok:")
        self.stamp(13, 16)
        a("s_barrier\ns_barrier")
        self.kvt_zero()
        self.stamp(3, 16)
        a("s_barrier\ns_barrier")
        a("s_branch L_F_poller")
        self.a_gather_body(64)

    def code_touch(self, ranges):
        a = self.a
        if not self.o.get("ctouch"):
            return 0
        lab, ref = a.label("nct"), a.label("pc")
        a(f"s_cmp_lg_u32 s{S_WAVE}, 7\ns_cbranch_scc1 {lab}\ns_getpc_b64 s[{S_T0}:{S_T0+1}]\n{ref}:\nv_lshlrev_b32 v24, 7, v1")
        for (start, k) in ranges:
            a(f"s_add_u32 s{S_T0+2}, s{S_T0}, {start}-{ref}+{k*8192}\ns_addc_u32 s{S_T0+3}, s{S_T0+1}, {'-1' if start == 'L_A_tail' else '0'}")
            a(f"v_min_u32 v25, L_exit-{start}-{k*8192}, v24\nglobal_load_dword v253, v25, s[{S_T0+2}:{S_T0+3}]")
        a(f"{lab}:")
        return len(ranges)

    def kvt_zero(self):
        a = self.a
        a(f"v_lshlrev_b32 v16, 4, v1\ns_lshl_b32 s{S_T0}, s{S_D}, 12\ns_add_u32 s{S_T0}, s{S_T0}, {KVT}\nv_add_u32 v16, s{S_T0}, v16")
        a("v_mov_b32 v20, 0\nv_mov_b32 v21, 0\nv_mov_b32 v22, 0\nv_mov_b32 v23, 0")
        for i in range(4):
            a(f"ds_write_b128 v16, v[20:23] offset:{i*1024}")
        a("s_waitcnt lgkmcnt(0)")

    def start_prefetch(self):
        a = self.a
        self.srd(R_W, P_WQKV, 640 * 3840)
        a(f"""
        s_lshl_b32 s{S_T0}, s{S_J}, 2
        s_add_u32 s{S_T0}, s{S_T0}, s{S_WAVE}
        v_lshrrev_b32 v16, 2, v1
        v_and_b32 v17, 3, v1
        v_mul_u32_u24 v16, 1280, v16
        v_lshl_add_u32 v16, v17, 7, v16
        s_lshr_b32 s{S_T0+2}, s{S_MT}, 3
        s_lshl_b32 s{S_T0+2}, s{S_T0+2}, 7
        s_add_u32 s{S_T0+2}, s{S_T0+2}, s{S_T0}
        s_mul_i32 s{S_DT}, s{S_T0+2}, {8*1280}
        v_lshrrev_b32 v19, 4, v1
        v_and_b32 v17, 15, v1
        v_min_u32 v17, 14, v17
        v_mul_u32_u24 v18, 13, v17
        v_lshrrev_b32 v18, 6, v18
        v_mul_u32_u24 v18, 640, v18
        v_lshl_add_u32 v18, v17, 7, v18
        v_mul_u32_u24 v19, 3840, v19
        v_add_u32 v112, v18, v19
        s_lshr_b32 s{S_T0+2}, s{S_HG}, 2
        s_mul_i32 s{S_T0+2}, s{S_T0+2}, 640
        s_mul_i32 s{S_FT}, s{S_T0}, {2*3840}
        s_add_u32 s{S_FT}, s{S_FT}, s{S_T0+2}
        """)
        if self.o.get("ta1"):
            a(f"""
            s_mov_b32 exec_hi, 0
            buffer_load_dword v253, v112, s[{R_W}:{R_W+3}], s{S_FT} offen {self.nt('nta')}
            buffer_load_dword v253, v16, s[{R_X}:{R_X+3}], s{S_DT} offen {self.nt('ntax')}
            s_mov_b32 exec_hi, -1
            """)
        a(f"""
        s_mul_i32 s{S_FT}, s{S_T0}, {3*3840}
        s_add_u32 s{S_FT}, s{S_FT}, s{S_T0+2}
        s_add_u32 s{S_FT}, s{S_FT}, {256*3840}
        v_lshrrev_b32 v16, 3, v1
        v_and_b32 v17, 7, v1
        v_min_u32 v17, 5, v17
        v_mul_u32_u24 v16, 1280, v16
        v_lshl_add_u32 v113, v17, 7, v16
        s_add_u32 s{S_DT}, s{S_DT}, 512
        """)

    def pf_rest_plain(self):
        return f"""s_waitcnt vmcnt(0)
        s_mov_b32 exec_hi, 0xffff
        buffer_load_dword v253, v112, s[{R_W}:{R_W+3}], s{S_FT} offen
        s_mov_b32 exec_hi, -1
        buffer_load_dword v253, v113, s[{R_X}:{R_X+3}], s{S_DT} offen
        """

    def pf_rest(self):
        return f"""s_mov_b32 exec_hi, 0xffff
        buffer_load_dword v253, v112, s[{R_W}:{R_W+3}], s{S_FT} offen {self.nt('nta')}
        s_mov_b32 exec_hi, -1
        buffer_load_dword v253, v113, s[{R_X}:{R_X+3}], s{S_DT} offen {self.nt('ntax')}
        """

    def w2_touch(self):
        a = self.a
        self.srd(R_W2, P_W2, 1536 * 4096)
        a(f"""
        v_lshlrev_b32 v48, 7, v1
        s_lshl_b32 s{S_T0}, s{S_MT}, 3
        s_add_u32 s{S_T0}, s{S_T0}, s{S_HG}
        s_lshl_b32 s{S_T0}, s{S_T0}, 2
        s_add_u32 s{S_T0}, s{S_T0}, s{S_D}
        s_mul_i32 s{S_T0}, s{S_T0}, 12288
        buffer_load_dword v253, v48, s[{R_W2}:{R_W2+3}], s{S_T0} offen
        s_add_u32 s{S_T0}, s{S_T0}, 8192
        s_mov_b32 exec_hi, 0
        buffer_load_dword v253, v48, s[{R_W2}:{R_W2+3}], s{S_T0} offen
        """)
        self.srd(R_P, P_WO, 640 * 1280)
        a(f"""
        s_lshl_b32 s{S_T0}, s{S_MT}, 3
        s_add_u32 s{S_T0}, s{S_T0}, s{S_HG}
        s_lshl_b32 s{S_T0}, s{S_T0}, 2
        s_add_u32 s{S_T0}, s{S_T0}, s{S_D}
        s_mul_i32 s{S_T0}, s{S_T0}, 1664
        s_mov_b32 exec_lo, 0x1fff
        buffer_load_dword v253, v48, s[{R_P}:{R_P+3}], s{S_T0} offen
        s_mov_b64 exec, -1
        """)

    def tlb_warm(self):
        a = self.a
        mode = self.o["tlb"]
        wv = self.o.get("tlbw", 3)
        a(f"s_cmp_lg_u32 s{S_WAVE}, {wv}\ns_cbranch_scc1 L_notlb")
        self.srd(R_OUT, P_OUT, 2048 * 1280)
        self.srd(R_M, P_B2, 4096)
        self.srd(R_P, P_WO, 640 * 1280)
        self.srd(R_W, P_W1, 2048 * 3072)
        if mode == 1:
            a("v_lshlrev_b32 v4, 20, v1\nv_min_u32 v4, 0xf00000, v4\ns_mov_b64 exec, 0xffff")
            so = "0"
        else:
            a(f"v_lshlrev_b32 v4, 21, v1\ns_lshl_b32 s{S_T0}, s{S_J}, 16\ns_mov_b64 exec, 0x1f")
            so = f"s{S_T0}"
        for r in (R_WS, R_W2, R_OUT, R_W, R_P, R_M):
            a(f"buffer_load_dword v253, v4, s[{r}:{r+3}], {so} offen sc1")
        a("s_mov_b64 exec, -1\nL_notlb:")

    def code_prefetch(self):
        a = self.a
        a(f"""
        s_cmp_lg_u32 s{S_WAVE}, 3
        s_cbranch_scc1 L_nocpf
        s_cmp_ge_u32 s{S_J}, 5
        s_cbranch_scc1 L_nocpf
        s_getpc_b64 s[{S_T0}:{S_T0+1}]
        L_pcref:
        s_lshl_b32 s{S_T0+2}, s{S_J}, 13
        v_lshlrev_b32 v4, 7, v1
        v_add_u32 v4, s{S_T0+2}, v4
        v_min_u32 v4, L_end-L_pcref, v4
        global_load_dword v253, v4, s[{S_T0}:{S_T0+1}]
        L_nocpf:
        """)

    def a_thread_map(self):
        a = self.a
        a(f"""
        v_mul_u32_u24 v16, 625, v0
        v_lshrrev_b32 v16, 16, v16
        v_mul_u32_u24 v17, 105, v16
        v_sub_u32 v17, v0, v17
        v_mul_u32_u24 v19, 205, v17
        v_lshrrev_b32 v19, 12, v19
        v_mul_u32_u24 v18, 20, v19
        v_cmp_lt_u32 vcc, 99, v17
        v_sub_u32 v18, v17, v18
        s_nop 0
        v_cndmask_b32 v19, v19, v18, vcc
        v_mad_u32_u24 v19, v16, 5, v19
        v_mad_u32_u24 v20, v16, 20, v18
        v_lshrrev_b32 v21, 2, v19
        v_and_b32 v22, 3, v19
        v_lshrrev_b32 v23, 4, v20
        v_and_b32 v20, 15, v20
        v_lshl_add_u32 v20, v22, 4, v20
        v_lshl_add_u32 v2, v21, 1, v23
        v_lshlrev_b32 v2, 6, v2
        v_add_u32 v2, v2, v20
        v_lshlrev_b32 v2, 4, v2
        v_lshlrev_b32 v3, 4, v19
        v_add_u32 v3, 13312, v3
        v_cmp_lt_u32 vcc, 99, v17
        v_lshrrev_b32 v24, 1, v21
        v_and_b32 v21, 1, v21
        v_cndmask_b32 v2, v2, v3, vcc
        v_lshl_add_u32 v3, v23, 1, v24
        v_add_u32 v24, 11, v24
        v_lshl_add_u32 v22, v22, 4, v16
        v_cndmask_b32 v3, v3, v24, vcc
        v_cndmask_b32 v20, v20, v22, vcc
        v_lshl_add_u32 v3, v3, 6, v20
        v_lshlrev_b32 v3, 4, v3
        v_lshl_add_u32 v3, v21, 3, v3
        v_add_u32 v3, {KVT}, v3
        v_mov_b32 v25, 2
        v_cndmask_b32 v25, 1, v25, vcc
        v_mov_b32 v16, 420
        v_cmp_gt_u32 vcc, v16, v0
        v_lshlrev_b32 v14, 4, v0
        s_nop 0
        v_cndmask_b32 v15, 0, v25, vcc
        v_cndmask_b32 v2, 0, v2, vcc
        v_add_u32 v2, {EXCH}, v2
        """)

    def a_reduce_publish(self, T):
        a = self.a
        for w in range(4):
            a(f"ds_read_b128 {vr(T+4*w,4)}, v2 offset:{w*EXCH_ST}")
        a(f"""
        s_lshl_b32 s{S_T0}, s{S_HG}, 4
        s_add_u32 s{S_T0}, s{S_T0}, s{S_MT}
        s_mul_i32 s{S_T0}, s{S_T0}, {KVP_ST}
        s_add_u32 s{S_T0}, s{S_T0}, {KVP}
        v_cmp_ne_u32 vcc, 0, v15
        s_waitcnt lgkmcnt(0)
        v_pk_add_f32 {vr(T,2)}, {vr(T,2)}, {vr(T+4,2)}
        v_pk_add_f32 {vr(T+2,2)}, {vr(T+2,2)}, {vr(T+6,2)}
        v_pk_add_f32 {vr(T+8,2)}, {vr(T+8,2)}, {vr(T+12,2)}
        v_pk_add_f32 {vr(T+10,2)}, {vr(T+10,2)}, {vr(T+14,2)}
        v_pk_add_f32 {vr(T,2)}, {vr(T,2)}, {vr(T+8,2)}
        v_pk_add_f32 {vr(T+2,2)}, {vr(T+2,2)}, {vr(T+10,2)}
        v_mov_b32_sdwa v{T}, s{S_TAG} dst_sel:BYTE_0 dst_unused:UNUSED_PRESERVE src0_sel:BYTE_0
        v_mov_b32_sdwa v{T+1}, s{S_TAG} dst_sel:BYTE_0 dst_unused:UNUSED_PRESERVE src0_sel:BYTE_1
        v_mov_b32_sdwa v{T+2}, s{S_TAG} dst_sel:BYTE_0 dst_unused:UNUSED_PRESERVE src0_sel:BYTE_2
        v_mov_b32_sdwa v{T+3}, s{S_TAG} dst_sel:BYTE_0 dst_unused:UNUSED_PRESERVE src0_sel:BYTE_3
        s_mov_b64 exec, vcc
        buffer_store_dwordx4 {vr(T,4)}, v14, s[{R_WS}:{R_WS+3}], s{S_T0} offen sc1
        s_mov_b64 exec, -1
        """)

    S_RET = 68

    def a_gather(self, T):
        self.a(f"s_call_b64 s[{self.S_RET}:{self.S_RET+1}], L_gather")

    def a_gather_body(self, T):
        a = self.a
        MK = S_T0 + 4
        a("L_gather:")
        a(f"s_mul_i32 s{S_T0+1}, s{S_HG}, {16*KVP_ST}\ns_add_u32 s{S_T0+1}, s{S_T0+1}, {KVP}")
        a(f"v_cmp_ne_u32 s[{MK}:{MK+1}], 0, v15\ns_mov_b32 s{S_CNT}, 0\ns_lshl_b32 s{S_T0+2}, s{S_MT}, 1\ns_mov_b64 exec, s[{MK}:{MK+1}]")

        def pair(m):
            a(f"s_add_u32 s{S_T0}, s{S_T0+2}, {m}\ns_and_b32 s{S_T0}, s{S_T0}, 15\ns_mul_i32 s{S_T0}, s{S_T0}, {KVP_ST}\ns_add_u32 s{S_T0}, s{S_T0}, s{S_T0+1}")
            a(f"buffer_load_dwordx4 {vr(T+4*m,4)}, v14, s[{R_WS}:{R_WS+3}], s{S_T0} offen sc1\ns_add_u32 s{S_T0}, s{S_T0}, {KVP_ST}")
            a(f"buffer_load_dwordx4 {vr(T+4*m+4,4)}, v14, s[{R_WS}:{R_WS+3}], s{S_T0} offen sc1")
        for m in range(0, 16, 2):
            pair(m)
        for m in range(0, 16, 2):
            a(f"s_waitcnt vmcnt({14-m})\nL_gchk{m}:")
            for q in range(8):
                a(f"v_cmpx_eq_u32_sdwa vcc, v{T+4*m+q}, s{S_TAG} src0_sel:BYTE_0 src1_sel:BYTE_{q & 3}")
            a(f"""
            s_add_u32 s{S_CNT}, s{S_CNT}, 1
            s_cmp_eq_u64 exec, s[{MK}:{MK+1}]
            s_mov_b64 exec, s[{MK}:{MK+1}]
            s_cbranch_scc1 L_gok{m}
            s_cmp_ge_u32 s{S_CNT}, {SPIN_LIMIT}
            s_cbranch_scc1 L_gok{m}
            """)
            pair(m)
            a(f"s_waitcnt vmcnt(0)\ns_branch L_gchk{m}\nL_gok{m}:")
            for q in range(8):
                a(f"v_and_b32 v{T+4*m+q}, 0xffffff00, v{T+4*m+q}")
            for h in (0, 2):
                a(f"v_pk_add_f32 {vr(T+4*m+h,2)}, {vr(T+4*m+h,2)}, {vr(T+4*(m+1)+h,2)}")
            if m >= 2:
                for h in (0, 2):
                    a(f"v_pk_add_f32 {vr(T+h,2)}, {vr(T+h,2)}, {vr(T+4*m+h,2)}")
        a("s_mov_b64 exec, -1")
        a(f"""
        v_cvt_pk_bf16_f32 v{T}, v{T}, v{T+1}
        v_cvt_pk_bf16_f32 v{T+1}, v{T+2}, v{T+3}
        v_cmp_ne_u32 vcc, 0, v15
        v_cmp_eq_u32 s[{S_T0}:{S_T0+1}], 2, v15
        s_nop 1
        s_mov_b64 exec, vcc
        ds_write_b64 v3, {vr(T,2)}
        s_mov_b64 exec, s[{S_T0}:{S_T0+1}]
        ds_write_b64 v3, {vr(T,2)} offset:64
        ds_write_b64 v3, {vr(T,2)} offset:128
        ds_write_b64 v3, {vr(T,2)} offset:192
        s_mov_b64 exec, -1
        s_setpc_b64 s[{self.S_RET}:{self.S_RET+1}]
        """)

    def role_b(self):
        a = self.a
        a(f"L_roleB:\ns_mov_b32 s{S_FROMA}, 0")
        XR, B1R, GR, XS = 16, 36, 64, 84
        VPF = 8
        a(f"s_cmp_ge_u32 s{S_J}, 16\ns_cbranch_scc1 L_B_pfrole")
        a(f"""
        s_lshl_b32 s{S_KST}, s{S_XCD}, 4
        s_add_u32 s{S_KST}, s{S_KST}, s{S_J}
        s_lshl_b32 s{S_T0}, s{S_KST}, 3
        s_add_u32 s{S_T0}, s{S_T0}, s{S_WAVE}
        s_mul_i32 s{S_T0}, s{S_T0}, {4*1280}
        v_lshrrev_b32 v2, 4, v1
        v_and_b32 v3, 15, v1
        v_lshlrev_b32 v3, 4, v3
        v_mul_u32_u24 v4, 1280, v2
        v_add_u32 v4, v4, v3
        """)
        for c in ((2, 3, 4, 0, 1) if self.o.get("xord") else range(5)):
            a(f"buffer_load_dwordx4 {vr(XR+4*c,4)}, v4, s[{R_X}:{R_X+3}], s{S_T0} offen offset:{c*256} {self.nt('ntx')}")
        self.srd(R_M, P_GATE, 1280)
        for c in range(5):
            a(f"buffer_load_dwordx4 {vr(GR+4*c,4)}, v3, s[{R_M}:{R_M+3}], 0 offen offset:{c*256}")

        def common_setup():
            a(f"""
            s_mul_i32 s{S_M}, s{S_J}, 205
            s_lshr_b32 s{S_M}, s{S_M}, 10
            s_mul_i32 s{S_DT}, s{S_M}, 5
            s_sub_u32 s{S_DT}, s{S_J}, s{S_DT}
            s_mul_i32 s{S_FT}, s{S_XCD}, 6
            s_add_u32 s{S_FT}, s{S_FT}, s{S_M}
            """)
            self.srd(R_OUT, P_B1, 3072)
            a(f"v_lshrrev_b32 v5, 4, v1\nv_lshlrev_b32 v5, 3, v5\ns_lshl_b32 s{S_T0}, s{S_FT}, 7")
            for b in range(4):
                a(f"buffer_load_dwordx2 {vr(B1R+2*b,2)}, v5, s[{R_OUT}:{R_OUT+3}], s{S_T0} offen offset:{b*32}")
            a(f"""
            v_lshrrev_b32 v12, 3, v1
            v_lshrrev_b32 v13, 4, v1
            v_lshlrev_b32 v13, 1, v13
            v_and_b32 v14, 7, v1
            v_xor_b32 v13, v13, v14
            v_lshlrev_b32 v13, 4, v13
            v_mul_u32_u24 v12, 3072, v12
            v_add_u32 v{VPF}, v12, v13
            v_add_u32 v{VPF+1}, {8*3072-1024}, v{VPF}
            v_add_u32 v{VPF+2}, {2*(8*3072-1024)}, v{VPF}
            v_add_u32 v{VPF+3}, {3*(8*3072-1024)}, v{VPF}
            """)
            self.perm_setup(S_M, 16, 6, S_PERM, self.o.get("rotB"))
            a(f"""
            s_and_b32 s{S_T0}, s{S_WAVE}, 3
            s_lshl_b32 s{S_B}, s{S_T0}, 12
            s_mul_i32 s{S_A}, s{S_T0}, {32*3072}
            s_lshl_b32 s{S_T0}, s{S_FT}, 7
            s_add_u32 s{S_A}, s{S_A}, s{S_T0}
            """)

        def w1_at(p):
            a(f"s_bfe_u32 s{S_T0}, s{S_PERM}, {(4 << 16) | (4 * p):#x}\ns_mul_i32 s{S_T0}, s{S_T0}, {128*3072}")
            a(f"s_add_u32 m0, s{S_B}, {p*16384}\ns_add_u32 s{S_T0}, s{S_T0}, s{S_A}")
            for i in range(4):
                a(f"buffer_load_dwordx4 v{VPF+i}, s[{R_W}:{R_W+3}], s{S_T0} offen offset:{i*1024} lds")
        early = [3, 4, 5, 6, 7][:self.o.get("early", 0)]

        def wq_touch():
            self.srd(R_M, P_WQKV, 640 * 3840)
            a(f"""
            v_lshlrev_b32 v6, 7, v1
            s_mul_i32 s{S_T0+1}, s{S_T0+1}, 2880
            s_add_u32 s{S_T0+1}, s{S_T0+1}, {256*3840}
            s_mov_b64 exec, 0xffffff
            buffer_load_dword v253, v6, s[{R_M}:{R_M+3}], s{S_T0+1} offen
            s_mov_b64 exec, -1
            """)

        self.srd(R_W, P_W1, 2048 * 3072)
        common_setup()
        a("v_mov_b32 v124, 0\nv_mov_b32 v125, 0\nv_mov_b32 v126, 0x3f803f80\ns_waitcnt vmcnt(4)")
        self.stamp(11, 44)
        if early:
            a(f"s_cmp_lt_u32 s{S_WAVE}, 4\ns_cbranch_scc1 L_B_noearly")
            for p in early:
                w1_at(p)
            a("L_B_noearly:")
        for c in range(20):
            a(f"v_dot2c_f32_bf16 v124, v{XR+c}, v126\nv_lshlrev_b32 v{XS+2*c}, 16, v{XR+c}")
            a(f"v_dot2c_f32_bf16 v125, v{XR+c}, v{GR+c}\nv_and_b32 v{XS+2*c+1}, 0xffff0000, v{XR+c}")
        a("s_nop 1")

        def reduce16(regs):
            for mode in ("quad_perm:[1,0,3,2]", "quad_perm:[2,3,0,1]", "row_half_mirror", "row_mirror"):
                for r in regs:
                    a(f"v_add_f32_dpp v{r}, v{r}, v{r} {mode} row_mask:0xf bank_mask:0xf")
                a("s_nop 1" if len(regs) == 1 else "s_nop 0")

        reduce16([124, 125])
        a(f"""
        v_mul_f32 v126, {f2u(-1.0/640):#x}, v124
        v_mul_f32 v127, {f2u(-1.0/640):#x}, v124
        v_mul_f32 v125, {f2u(-1.4426950408889634):#x}, v125
        v_mov_b32 v128, 0
        v_mov_b32 v129, 0
        v_mov_b32 v130, 0
        v_mov_b32 v131, 0
        v_mov_b32 v132, 0
        v_mov_b32 v133, 0
        v_mov_b32 v134, 0
        v_mov_b32 v135, 0
        v_exp_f32 v125, v125
        """)
        for c in range(20):
            a(f"v_pk_add_f32 {vr(XS+2*c,2)}, {vr(XS+2*c,2)}, v[126:127]")
        a("v_add_f32 v125, 1.0, v125\nv_rcp_f32 v125, v125")
        for c in range(20):
            t = 128 + 2 * (c & 3)
            a(f"v_pk_fma_f32 {vr(t,2)}, {vr(XS+2*c,2)}, {vr(XS+2*c,2)}, {vr(t,2)}")
        a("v_pk_add_f32 v[128:129], v[128:129], v[130:131]\nv_pk_add_f32 v[132:133], v[132:133], v[134:135]\nv_pk_add_f32 v[128:129], v[128:129], v[132:133]\nv_add_f32 v128, v128, v129\ns_nop 1")
        reduce16([128])
        a(f"v_mov_b32 v126, {f2u(1e-5):#x}\nv_fmac_f32 v126, {f2u(1.0/640):#x}, v128\nv_rsq_f32 v126, v126")
        a(f"""
        s_lshl_b32 s{S_T0}, s{S_WAVE}, 2
        v_add_u32 v2, s{S_T0}, v2
        v_mov_b32 v127, v126
        v_mul_u32_u24 v4, {LN_ST}, v2
        v_add_u32 v4, v4, v3
        v_lshlrev_b32 v2, 2, v2
        """)
        for c4 in range(5):
            for c in range(4 * c4, 4 * c4 + 4):
                a(f"v_pk_mul_f32 {vr(XS+2*c,2)}, {vr(XS+2*c,2)}, v[126:127]")
            for c in range(4 * c4, 4 * c4 + 4):
                a(f"v_cvt_pk_bf16_f32 v{XR+c}, v{XS+2*c}, v{XS+2*c+1}")
            a(f"ds_write_b128 v4, {vr(XR+4*c4,4)} offset:{LNBUF + c4*256}")
        a(f"ds_write_b32 v2, v125 offset:{LNG}")
        a(f"""
        v_and_b32 v12, 15, v1
        v_lshrrev_b32 v13, 4, v1
        v_lshrrev_b32 v15, 2, v12
        v_lshl_add_u32 v15, v13, 2, v15
        v_mul_u32_u24 v15, {LN_ST}, v15
        v_and_b32 v2, 3, v12
        v_lshl_add_u32 v15, v2, 3, v15
        s_mul_i32 s{S_T0}, s{S_WAVE}, 160
        v_add_u32 v15, s{S_T0}, v15
        v_lshlrev_b32 v14, 4, v1
        v_lshlrev_b32 v2, 2, v1
        s_mul_i32 s{S_T0}, s{S_WAVE}, {5*65536}
        s_lshl_b32 s{S_T0+1}, s{S_KST}, 10
        s_add_u32 s{S_T0}, s{S_T0}, s{S_T0+1}
        s_add_u32 s{S_T0}, s{S_T0}, {HT}
        s_waitcnt lgkmcnt(0)
        s_add_u32 s{S_TAG}, s{S_TAG}, {TAG_INC:#x}
        s_barrier
        """)
        self.stamp(12, 44)
        for i in range(5):
            a(f"ds_read_b64_tr_b16 {vr(44+4*i,2)}, v15 offset:{LNBUF + i*32}")
            a(f"ds_read_b64_tr_b16 {vr(46+4*i,2)}, v15 offset:{LNBUF + i*32+16*LN_ST}")
        a(f"ds_read_b32 v125, v2 offset:{LNG}")
        for i in range(5):
            a(f"s_waitcnt lgkmcnt({9-2*i})")
            a(f"buffer_store_dwordx4 {vr(44+4*i,4)}, v14, s[{R_WS}:{R_WS+3}], s{S_T0} offen sc1")
            if i < 4:
                a(f"s_add_u32 s{S_T0}, s{S_T0}, 65536")
        a(f"""
        s_cmp_lg_u32 s{S_WAVE}, 0
        s_cbranch_scc1 L_B_nog
        s_lshl_b32 s{S_T0}, s{S_KST}, 7
        s_add_u32 s{S_T0}, s{S_T0}, {G_OFF}
        s_waitcnt lgkmcnt(0)
        s_mov_b32 exec_hi, 0
        buffer_store_dword v125, v2, s[{R_WS}:{R_WS+3}], s{S_T0} offen sc1
        s_mov_b32 exec_hi, -1
        L_B_nog:
        s_waitcnt vmcnt(0) lgkmcnt(0)
        s_barrier
        s_cmp_lg_u32 s{S_WAVE}, 0
        s_cbranch_scc1 L_B_nofl
        s_mul_i32 s{S_T0}, s{S_KST}, {FS}
        s_add_u32 s{S_T0}, s{S_T0}, {F_LN}
        """)
        self.flag_store(S_T0, 12)
        self.stamp(1, 12)
        a("L_B_nofl:")
        if self.o.get("woLN"):
            self.srd(R_M, P_WO, 640 * 1280)
            a(f"""
            s_lshl_b32 s{S_T0+1}, s{S_KST}, 3
            s_add_u32 s{S_T0+1}, s{S_T0+1}, s{S_WAVE}
            s_mul_i32 s{S_T0+1}, s{S_T0+1}, 1664
            v_lshlrev_b32 v6, 7, v1
            s_mov_b64 exec, 0x1fff
            buffer_load_dword v253, v6, s[{R_M}:{R_M+3}], s{S_T0+1} offen
            s_mov_b64 exec, -1
            """)
        if self.o.get("wq") == 1:
            a(f"s_lshl_b32 s{S_T0+1}, s{S_KST}, 3\ns_add_u32 s{S_T0+1}, s{S_T0+1}, s{S_WAVE}")
            wq_touch()
        if self.o.get("wq") == 3:
            a(f"""
            s_lshl_b32 s{S_T0}, s{S_J}, 3
            s_add_u32 s{S_T0}, s{S_T0}, s{S_WAVE}
            s_add_u32 s{S_T0}, s{S_T0}, 128
            v_lshrrev_b32 v6, 3, v1
            v_and_b32 v7, 7, v1
            v_min_u32 v7, 5, v7
            v_mul_u32_u24 v6, 3072, v6
            v_lshl_add_u32 v7, v7, 7, v6
            s_mul_i32 s{S_T0}, s{S_T0}, {8*3072}
            s_mul_i32 s{S_T0+2}, s{S_XCD}, 768
            s_add_u32 s{S_T0}, s{S_T0}, s{S_T0+2}
            buffer_load_dword v253, v7, s[{R_W}:{R_W+3}], s{S_T0} offen {self.nt('ntw1')}
            """)
        a("s_branch L_B_join")
        a("L_B_pfrole:")
        self.srd(R_W, P_W1, 2048 * 3072)
        if self.o.get("pfdelay"):
            common_setup()
            a("s_waitcnt vmcnt(0)")
        wq = self.o.get("wq", 0)
        xh = self.o.get("xhelp", 0)
        if xh:
            self.srd(R_M, P_GATE, 1280)
            a(f"""
            s_cmp_ge_u32 s{S_WAVE}, {xh}
            s_cbranch_scc1 L_B_noxh
            s_lshl_b32 s{S_T0}, s{S_XCD}, 4
            s_add_u32 s{S_T0}, s{S_T0}, s{S_J}
            s_sub_u32 s{S_T0}, s{S_T0}, 16
            s_mul_i32 s{S_T0}, s{S_T0}, {32*1280}
            s_lshl_b32 s{S_T0+1}, s{S_WAVE}, 8
            s_sub_u32 s{S_T0}, s{S_T0}, s{S_T0+1}
            s_add_u32 s{S_T0}, s{S_T0}, 1024
            v_lshrrev_b32 v6, 1, v1
            v_and_b32 v7, 1, v1
            v_mul_u32_u24 v6, 1280, v6
            v_lshl_add_u32 v6, v7, 7, v6
            buffer_load_dword v253, v6, s[{R_X}:{R_X+3}], s{S_T0} offen
            v_lshlrev_b32 v6, 7, v1
            L_B_noxh:
            s_cmp_lg_u32 s{S_WAVE}, 7
            s_cbranch_scc1 L_B_noxg
            v_lshlrev_b32 v6, 7, v1
            buffer_load_dword v253, v6, s[{R_M}:{R_M+3}], 0 offen
            L_B_noxg:
            """)
        a(f"""
        s_sub_u32 s{S_T0}, s{S_J}, 16
        s_lshl_b32 s{S_T0}, s{S_T0}, 3
        s_add_u32 s{S_T0}, s{S_T0}, s{S_WAVE}
        s_lshl_b32 s{S_T0+1}, s{S_XCD}, 7
        s_add_u32 s{S_T0+1}, s{S_T0+1}, s{S_T0}
        v_lshrrev_b32 v6, 3, v1
        v_and_b32 v7, 7, v1
        v_min_u32 v7, 5, v7
        v_mul_u32_u24 v6, 3072, v6
        v_lshl_add_u32 v7, v7, 7, v6
        s_mul_i32 s{S_T0}, s{S_T0}, {8*3072}
        s_mul_i32 s{S_T0+2}, s{S_XCD}, 768
        s_add_u32 s{S_T0}, s{S_T0}, s{S_T0+2}
        buffer_load_dword v253, v7, s[{R_W}:{R_W+3}], s{S_T0} offen {self.nt('ntw1')}
        """)
        if wq in (0, 3):
            wq_touch()
        if wq != 3:
            a(f"""
            s_add_u32 s{S_T0}, s{S_T0}, {1024*3072}
            buffer_load_dword v253, v7, s[{R_W}:{R_W+3}], s{S_T0} offen {self.nt('ntw1b')}
            """)
        if self.o.get("promote"):
            k_ = 1 if wq != 3 else 0
            a(f"""
            s_sub_u32 s{S_T0+1}, s{S_T0}, {1024*3072*k_}
            s_waitcnt vmcnt({k_ + (1 if wq in (0, 3) else 0)})
            buffer_load_dword v253, v7, s[{R_W}:{R_W+3}], s{S_T0+1} offen
            """)
            if self.o.get("ntw1b"):
                a(f"s_waitcnt vmcnt(1)\nbuffer_load_dword v253, v7, s[{R_W}:{R_W+3}], s{S_T0} offen")
        if not self.o.get("pfdelay"):
            common_setup()
        self.stamp(15, 12)
        a(f"s_waitcnt lgkmcnt(0)\ns_add_u32 s{S_TAG}, s{S_TAG}, {TAG_INC:#x}")
        a(f"s_cmp_ge_u32 s{S_J}, 30\ns_cbranch_scc1 L_helper")
        N1 = self.o.get("n1", 8)
        NREG = self.o.get("nreg", 0)
        assert NREG == 0 or N1 == 8

        def w1_issue():
            t = self.perm_next(S_T0, S_PERM, 128 * 3072)
            t += f"s_mov_b32 m0, s{S_B}\ns_add_u32 s{S_T0}, s{S_T0}, s{S_A}\n"
            for i in range(4):
                t += f"buffer_load_dwordx4 v{VPF+i}, s[{R_W}:{R_W+3}], s{S_T0} offen offset:{i*1024} lds\n"
            t += f"s_add_u32 s{S_B}, s{S_B}, 16384\n"
            return t
        assert N1 == 8 and NREG == 0
        a(f"L_B_join:\ns_cmp_lt_u32 s{S_WAVE}, 4\ns_cbranch_scc1 L_B_comp0")
        for p in range(8):
            if early and p == early[0]:
                a(f"s_cmp_lt_u32 s{S_J}, 16\ns_cbranch_scc1 L_B_skipearly")
            w1_at(p)
            if early and p == early[-1]:
                a("L_B_skipearly:")
        a(f"s_mov_b32 s{S_PERM}, s{S_PERM+1}")
        a("s_branch L_B_aux\nL_B_comp0:")
        BF = 16
        GX = 131072
        split = self.o.get("gsplit")

        def gelu_setup(dblk_off):
            c = 0.7978845608028654
            k0 = -2.0 * c * 1.4426950408889634
            k1 = k0 * 0.044715
            a(f"""
            s_mov_b32 s{S_K0}, {f2u(k1):#x}
            s_mov_b32 s{S_K0+1}, {f2u(k1):#x}
            v_mov_b32 v44, {f2u(k0):#x}
            v_mov_b32 v45, {f2u(k0):#x}
            v_mov_b32 v46, 1.0
            v_mov_b32 v47, 1.0
            s_lshl_b32 s{S_K0+2}, s{S_DT}, 3
            s_lshl_b32 s{S_T0+1}, s{S_WAVE}, 1
            s_add_u32 s{S_K0+2}, s{S_K0+2}, s{S_T0+1}
            s_add_u32 s{S_K0+2}, s{S_K0+2}, {dblk_off & 0xffffffff:#x}
            s_mul_i32 s{S_K0+2}, s{S_K0+2}, {UW_ST}
            s_lshl_b32 s{S_T0+1}, s{S_FT}, 11
            s_add_u32 s{S_K0+2}, s{S_K0+2}, s{S_T0+1}
            s_add_u32 s{S_K0+2}, s{S_K0+2}, {UW}
            """)
            for b in range(4):
                a(f"v_lshlrev_b32 v{BF+4*b}, 16, v{B1R+2*b}\nv_and_b32 v{BF+4*b+1}, 0xffff0000, v{B1R+2*b}")
                a(f"v_lshlrev_b32 v{BF+4*b+2}, 16, v{B1R+2*b+1}\nv_and_b32 v{BF+4*b+3}, 0xffff0000, v{B1R+2*b+1}")

        def gelu_block(base, vl):
            for p in range(2):
                r = base + 8 * p
                T = 48
                for q in range(4):
                    a(f"v_pk_mul_f32 {vr(T+2*q,2)}, {vr(r+2*q,2)}, {vr(r+2*q,2)}")
                for q in range(4):
                    a(f"v_pk_fma_f32 {vr(T+2*q,2)}, {vr(T+2*q,2)}, s[{S_K0}:{S_K0+1}], v[44:45]")
                for q in range(4):
                    a(f"v_pk_mul_f32 {vr(T+2*q,2)}, {vr(T+2*q,2)}, {vr(r+2*q,2)}")
                for q in range(8):
                    a(f"v_exp_f32 v{T+q}, v{T+q}")
                for q in range(4):
                    a(f"v_pk_add_f32 {vr(T+2*q,2)}, {vr(T+2*q,2)}, v[46:47]")
                for q in range(8):
                    a(f"v_rcp_f32 v{T+q}, v{T+q}")
                for q in range(4):
                    a(f"v_pk_mul_f32 {vr(r+2*q,2)}, {vr(r+2*q,2)}, {vr(T+2*q,2)}")
                o = 56 + 4 * (p & 1)
                for q in range(4):
                    a(f"v_cvt_pk_bf16_f32 v{o+q}, v{r+2*q}, v{r+2*q+1}")
                a(f"buffer_store_dwordx4 {vr(o,4)}, v{vl}, s[{R_WS}:{R_WS+3}], s{S_K0+2} offen offset:{p*1024} sc1")

        PF, WF, ACC, VT, VL = 64, 128, 160, 8, 12
        a(f"""
        s_lshl_b32 s{S_T0}, s{S_DT}, 3
        s_lshl_b32 s{S_T0+1}, s{S_WAVE}, 1
        s_add_u32 s{S_D}, s{S_T0}, s{S_T0+1}
        s_lshl_b32 s{S_T0}, s{S_D}, 16
        s_add_u32 s{S_T0}, s{S_T0}, {HT}
        """)
        self.srd(R_P, P_WS, 65536, off_s=S_T0)
        a(f"s_add_u32 s{S_T0}, s{S_T0}, 65536")
        self.srd(R_M, P_WS, 65536, off_s=S_T0)
        a(f"v_lshlrev_b32 v{VL}, 4, v1\ns_mov_b32 s{S_B}, 0")
        a(self.perm_next(S_C, S_PERM, 4096))
        self.tr_addr(VT)
        a("s_waitcnt vmcnt(0)")
        gelu_setup(0)
        for r in range(32):
            a(f"v_mov_b32 v{ACC+r}, v{BF + (r & 15)}")
        a(f"s_lshl_b32 s{S_T0}, s{S_WAVE}, 12\ns_add_u32 s{S_T0}, s{S_T0}, {GX}\nv_add_u32 v13, s{S_T0}, v{VL}")
        a(f"s_cmp_lg_u32 s{S_WAVE}, 0\ns_cbranch_scc1 L_B_l3")
        prog = self.o.get("prog", 0)
        if prog:
            assert prog >= 4 * (4 + self.o.get("rotB", 0))
            a(f"v_min_u32 v2, {prog-1}, v1\nv_mul_u32_u24 v2, {FS}, v2\nv_add_u32 v2, {F_LN}, v2")
        else:
            a(f"v_mul_u32_u24 v2, {FS}, v1\nv_add_u32 v2, {F_LN}, v2")
        if not self.o.get("x_nopoll"):
            self.poll([2], 4)
        self.stamp(2, 4)
        a("L_B_l3:\ns_barrier")
        RP = (R_P, R_M)

        def pload(u, ks):
            if self.o.get("x_noload"):
                return "s_nop 0"
            sc = "" if self.o.get("x_nosc1") else "sc1"
            so = "0" if self.o.get("x_same") else f"s{S_C}"
            return "\n".join(f"buffer_load_dwordx4 {vr(PF+32*(u%2)+8*ks+4*d,4)}, v{VL}, s[{RP[d]}:{RP[d]+3}], {so} offen offset:{ks*1024} {sc}" for d in range(2))

        for t in range(2):
            for ks in range(4):
                a(pload(t, ks))
            a(self.perm_next(S_C, S_PERM, 4096))
            if t == 0:
                first_bar_here = len(a.L)

        def mk(u, bar, virtual=False, head=None, tail=None):
            uses = []
            for ks in range(4):
                for b in range(4):
                    g = ks * 4 + b
                    wb = WF + 4 * (g % 8)
                    off = u * 16384 + ks * 4096
                    reads = [(f"w{g}a", f"ds_read_b64_tr_b16 {vr(wb,2)}, v{VT+b} offset:{off}"),
                             (f"w{g}b", f"ds_read_b64_tr_b16 {vr(wb+2,2)}, v{VT+b} offset:{off+2048}")]
                    mf = []
                    for dd in range(2):
                        acc = vr(ACC + 16 * dd + 4 * b, 4)
                        mf.append(f"v_mfma_f32_16x16x32_bf16 {acc}, {vr(wb,4)}, {vr(PF+32*(u%2)+8*ks+4*dd,4)}, {acc}")
                    if self.o.get("x32"):
                        acc = vr(ACC + 16 * (b & 1), 16)
                        mf = [f"v_mfma_f32_32x32x16_bf16 {acc}, {vr(wb,4)}, {vr(PF+32*(u%2)+8*ks+4*(b>>1),4)}, {acc}"]
                    d = dict(reads=reads, need=[f"w{g}b"], mf=mf)
                    if b == 0:
                        d["vm"] = 14
                    if b == 3:
                        d["after"] = pload(u, ks)
                        if ks == 3:
                            d["after"] += "\n" + self.perm_next(S_C, S_PERM, 4096)
                            if u >= 1:
                                d["after"] += f"s_cmp_ge_u32 s{S_B}, 3\ns_cselect_b32 s{S_C}, 0x10000, s{S_C}"
                    uses.append(d)
            return dict(uses=uses, bar=bar, virtual=virtual, head=head, tail=tail)

        xo = "s_barrier\n" + "\n".join(f"v_xor_b32 v{VT+b}, 0x10000, v{VT+b}" for b in range(4))
        tail = f"s_add_u32 s{S_B}, s{S_B}, 1\ns_cmp_lt_u32 s{S_B}, 4\ns_cbranch_scc1 L_B_loop"
        st = [mk(0, "", head="L_B_loop:"), mk(1, "s_barrier"), mk(2, "s_barrier"), mk(3, "s_barrier", tail=tail), mk(0, xo, virtual=True)]
        a.L.insert(first_bar_here, "    s_barrier")
        nd = self.o.get("nodrain")
        LB = self.o.get("LB", 7)
        self.pipeline(st, LB, (16 - LB) if nd else 13, drain=not nd, wait_every=self.o.get('we', 2))
        if nd and not self.o.get("noEnd"):
            a("s_waitcnt lgkmcnt(0)\ns_barrier")
        self.stamp(3, 44)
        if split:
            a("s_nop 5")
            for i in range(4):
                a(f"ds_write_b128 v13, {vr(ACC+16+4*i,4)} offset:{i*1024}")
            a("s_waitcnt lgkmcnt(0)\ns_barrier")
            gelu_block(ACC, VL)
        else:
            a("s_waitcnt lgkmcnt(0)\ns_nop 4")
            gelu_block(ACC, VL)
            a(f"s_add_u32 s{S_K0+2}, s{S_K0+2}, {UW_ST}")
            gelu_block(ACC + 16, VL)
        self.stamp(10, 44)
        a("s_waitcnt vmcnt(0)\ns_barrier\ns_branch L_F_comp")

        a("L_B_aux:\ns_barrier")
        if split:
            assert NREG == 0
        assert NREG == 0
        ops = [(iv, 4) for iv in range(N1)]
        todo = [(iv, i) for iv in range(N1, 16) for i in range(4)]
        quota = self.o.get("quota", 12) / 3.0
        credit = 0.0
        eB = self.o.get("eB", 17)
        nB1 = self.o.get("nB1", 0)
        per = self.o.get("perB", 2)
        done_w2 = 0
        for tb in range(17):
            if tb < 16 and tb <= eB:
                assert all(iv != tb for iv, _ in todo), (tb, todo)
                last = max(i for i, (iv, _) in enumerate(ops) if iv == tb)
                n = sum(c for _, c in ops[last + 1:])
                if tb < 8:
                    n -= 4 * len(early)
                a(f"s_waitcnt vmcnt({max(0, min(n, 63)) if tb < eB else 0})")
            a("s_barrier")
            if tb < 16:
                self.stamp(16 + tb, 44)
            if tb == 0 and self.o.get("prog"):
                a(f"s_cmp_lg_u32 s{S_WAVE}, 7\ns_cbranch_scc1 L_B_nop1\nv_mul_u32_u24 v2, {FS}, v1\nv_add_u32 v2, {F_LN}, v2")
                a(f"buffer_load_dword v3, v2, s[{R_WS}:{R_WS+3}], 0 offen sc1\nL_B_nop1:")
            if tb == 1 and self.o.get("prog"):
                a(f"s_cmp_lg_u32 s{S_WAVE}, 7\ns_cbranch_scc1 L_B_nop2")
                a(f"s_waitcnt vmcnt(0)\nv_cmp_ne_u32 vcc, s{S_TAG}, v3\ns_nop 1\ns_cmp_eq_u64 vcc, 0\ns_cbranch_scc1 L_B_nop2")
                self.poll([2], 4)
                a("L_B_nop2:")
            if tb == self.o.get("ctB", 10):
                self.code_touch([("L_F_comp", 0), ("L_F_comp", 1)])
            if tb == 11 and split:
                gelu_setup(-7)
                a(f"v_lshlrev_b32 v12, 4, v1\ns_lshl_b32 s{S_T0}, s{S_WAVE}, 12\ns_add_u32 s{S_T0}, s{S_T0}, {GX - 4*4096}\nv_add_u32 v13, s{S_T0}, v12")
            if tb == eB:
                assert not todo
                self.w2_setup()
            if tb >= eB and done_w2 < nB1:
                k2 = min(per if tb < 16 else 8, nB1 - done_w2, tb - 9 - done_w2)
                sk = self.if_wave56()
                self.w2_prefill(k2)
                a(f"{sk}:")
                done_w2 += k2
            if todo and (todo[0][0] < 8 or tb >= 2):
                credit += 8 if todo[0][0] < 8 else quota
            setm0 = False
            while todo and credit >= 0.999 and (todo[0][0] < 8 or todo[0][0] <= tb + 6):
                iv, i = todo.pop(0)
                if i == 0:
                    if iv == 8:
                        a(f"s_and_b32 s{S_B}, s{S_B}, 0x1ffff")
                    a(self.perm_next(S_C, S_PERM, 128 * 3072) + f"s_add_u32 s{S_C}, s{S_C}, s{S_A}")
                if i == 0 or not setm0:
                    a(f"s_mov_b32 m0, s{S_B}\ns_nop 0")
                    setm0 = True
                a(f"buffer_load_dwordx4 v{VPF+i}, s[{R_W}:{R_W+3}], s{S_C} offen offset:{i*1024} lds")
                if i == 3:
                    a(f"s_add_u32 s{S_B}, s{S_B}, 16384")
                ops.append((iv, 1))
                credit -= 1
            if todo and todo[0][0] >= 8:
                credit = min(credit, quota)
        nxt = 16
        assert nxt == 16
        if self.o.get("noEnd"):
            assert done_w2 == nB1
        elif self.o.get("nodrain"):
            a("s_barrier")
        if eB == 17:
            self.w2_setup()
        if split:
            a("s_barrier")
            for i in range(4):
                a(f"ds_read_b128 {vr(64+4*i,4)}, v13 offset:{i*1024}")
            a("s_waitcnt lgkmcnt(0)")
            gelu_block(64, 12)
            a("s_waitcnt vmcnt(0)")
        skip = self.if_wave56()
        self.w2_prefill(nB1 - done_w2)
        a("s_barrier\ns_nop 7\ns_nop 7")
        self.w2_prefill(8 - nB1)
        a("s_branch L_F_loader")
        a(f"{skip}:\ns_barrier")
        a(f"s_cmp_lg_u32 s{S_WAVE}, 7\ns_cbranch_scc1 L_F_u4")
        a(f"s_mul_i32 s{S_T0}, s{S_DT}, 24\ns_add_u32 s{S_T0}, s{S_T0}, s{S_FT}\ns_mul_i32 s{S_T0}, s{S_T0}, {FS}\ns_add_u32 s{S_T0}, s{S_T0}, {F_U}")
        self.flag_store(S_T0, 12)
        self.stamp(4, 12)
        a("s_branch L_F_poller")

    def w2_l2_prefetch(self, VT):
        a = self.a
        self.srd(R_W2, P_W2, 1536 * 4096)
        a(f"""
        v_lshrrev_b32 v{VT}, 3, v1
        v_and_b32 v{VT+1}, 7, v1
        v_lshlrev_b32 v{VT+1}, 7, v{VT+1}
        v_lshl_add_u32 v{VT}, v{VT}, 12, v{VT+1}
        s_mul_i32 s{S_T0}, s{S_J}, 48
        s_and_b32 s{S_T0+1}, s{S_WAVE}, 3
        s_mul_i32 s{S_T0+1}, s{S_T0+1}, 12
        s_add_u32 s{S_T0}, s{S_T0}, s{S_T0+1}
        s_lshl_b32 s{S_T0}, s{S_T0}, 12
        s_lshr_b32 s{S_T0+1}, s{S_XCD}, 1
        s_lshl_b32 s{S_T0+1}, s{S_T0+1}, 10
        s_add_u32 s{S_T0}, s{S_T0}, s{S_T0+1}
        buffer_load_dword v{VT+2}, v{VT}, s[{R_W2}:{R_W2+3}], s{S_T0} offen
        s_add_u32 s{S_T0}, s{S_T0}, {8*4096}
        s_mov_b32 exec_hi, 0
        buffer_load_dword v{VT+3}, v{VT}, s[{R_W2}:{R_W2+3}], s{S_T0} offen
        s_mov_b64 exec, -1
        """)

    def tr_addr(self, VT):
        a = self.a
        a(f"""
        v_and_b32 v{VT+1}, 15, v1
        v_lshrrev_b32 v{VT+2}, 4, v1
        v_lshrrev_b32 v{VT+3}, 2, v{VT+1}
        v_lshl_add_u32 v{VT+3}, v{VT+2}, 2, v{VT+3}
        v_bfe_u32 v{VT+2}, v{VT+3}, 1, 2
        v_lshlrev_b32 v{VT+3}, 7, v{VT+3}
        v_lshl_add_u32 v{VT+3}, v{VT+2}, 5, v{VT+3}
        v_and_b32 v{VT+1}, 3, v{VT+1}
        v_lshl_add_u32 v{VT}, v{VT+1}, 3, v{VT+3}
        v_xor_b32 v{VT+1}, 32, v{VT}
        v_xor_b32 v{VT+2}, 64, v{VT}
        v_xor_b32 v{VT+3}, 96, v{VT}
        """)

    def helper(self):
        a = self.a
        a("L_helper:")
        a(f"""
        s_lshl_b32 s{S_D}, s{S_XCD}, 1
        s_add_u32 s{S_D}, s{S_D}, s{S_J}
        s_sub_u32 s{S_D}, s{S_D}, 30
        """)
        self.srd(R_W, P_WO, 640 * 1280)
        for p in range(5):
            a(f"""
            v_add_u32 v12, {p*64}, v1
            v_mul_u32_u24 v13, 205, v12
            v_lshrrev_b32 v13, 11, v13
            v_mul_u32_u24 v14, 10, v13
            v_sub_u32 v14, v12, v14
            v_lshlrev_b32 v14, 4, v14
            v_mul_u32_u24 v13, 1280, v13
            v_add_u32 v{16+p}, v13, v14
            """)
            if p in (1, 2, 3):
                a(f"v_subrev_u32 v{16+p}, {p*1024}, v{16+p}")
        a(f"""
        s_mov_b32 s{S_C}, s{S_WAVE}
        L_H_ld:
        s_mul_i32 s{S_A}, s{S_C}, {32*1280}
        s_mul_i32 s{S_T0}, s{S_D}, 160
        s_add_u32 s{S_A}, s{S_A}, s{S_T0}
        s_mul_i32 s{S_B}, s{S_C}, 5120
        s_mov_b32 m0, s{S_B}
        s_nop 0
        """)
        for p in range(4):
            a(f"buffer_load_dwordx4 v{16+p}, s[{R_W}:{R_W+3}], s{S_A} offen offset:{p*1024} lds")
        a(f"s_add_u32 m0, s{S_B}, 4096\ns_nop 0\nbuffer_load_dwordx4 v20, s[{R_W}:{R_W+3}], s{S_A} offen lds")
        a(f"""
        s_add_u32 s{S_C}, s{S_C}, 8
        s_cmp_lt_u32 s{S_C}, 20
        s_cbranch_scc1 L_H_ld
        v_and_b32 v12, 15, v1
        v_lshrrev_b32 v13, 4, v1
        v_lshrrev_b32 v14, 2, v12
        v_lshl_add_u32 v14, v13, 2, v14
        v_mul_u32_u24 v14, 160, v14
        v_and_b32 v12, 3, v12
        v_lshl_add_u32 v14, v12, 3, v14
        v_lshlrev_b32 v15, 4, v1
        s_waitcnt vmcnt(0)
        s_barrier
        s_mov_b32 s{S_C}, s{S_WAVE}
        L_H_tr:
        s_lshr_b32 s{S_T0}, s{S_C}, 1
        s_mul_i32 s{S_T0}, s{S_T0}, 5
        s_and_b32 s{S_T0+1}, s{S_C}, 1
        s_lshl_b32 s{S_T0+1}, s{S_T0+1}, 1
        s_add_u32 s{S_T0}, s{S_T0}, s{S_T0+1}
        s_add_u32 s{S_T0+1}, s{S_T0}, 1
        s_mul_i32 s{S_T0+2}, s{S_C}, 10
        s_sub_u32 s{S_T0+2}, s{S_T0+2}, 156
        s_add_u32 s{S_T0+3}, s{S_T0+2}, 5
        s_cmp_lt_u32 s{S_C}, 16
        s_cselect_b32 s{S_T0}, s{S_T0}, s{S_T0+2}
        s_cselect_b32 s{S_T0+1}, s{S_T0+1}, s{S_T0+3}
        s_mul_i32 s{S_T0}, s{S_T0}, 2560
        s_mul_i32 s{S_T0+1}, s{S_T0+1}, 2560
        v_add_u32 v12, s{S_T0}, v14
        v_add_u32 v13, s{S_T0+1}, v14
        """)
        for b in range(5):
            a(f"ds_read_b64_tr_b16 {vr(24+4*b,2)}, v12 offset:{b*32}\nds_read_b64_tr_b16 {vr(26+4*b,2)}, v13 offset:{b*32}")
        a(f"""
        s_mul_i32 s{S_T0}, s{S_D}, {5*UW_ST}
        s_lshl_b32 s{S_T0+1}, s{S_C}, 10
        s_add_u32 s{S_T0}, s{S_T0}, s{S_T0+1}
        s_add_u32 s{S_T0}, s{S_T0}, {UW + 49152}
        """)
        for b in range(5):
            a(f"s_waitcnt lgkmcnt({8-2*b})")
            a(f"buffer_store_dwordx4 {vr(24+4*b,4)}, v15, s[{R_WS}:{R_WS+3}], s{S_T0} offen sc1")
            if b < 4:
                a(f"s_add_u32 s{S_T0}, s{S_T0}, {UW_ST}")
        a(f"""
        s_add_u32 s{S_C}, s{S_C}, 8
        s_cmp_lt_u32 s{S_C}, 20
        s_cbranch_scc1 L_H_tr
        s_waitcnt vmcnt(0)
        s_barrier
        """)
        if self.o.get("hW2"):
            a(f"s_cmp_lg_u32 s{S_WAVE}, 7\ns_cbranch_scc1 L_H_nofl")
            a(f"s_mul_i32 s{S_T0}, s{S_D}, {FS}\ns_add_u32 s{S_T0}, s{S_T0}, {F_WOT}")
            self.flag_store(S_T0, 12)
            self.stamp(14, 12)
            a(f"""
            L_H_nofl:
            v_lshlrev_b32 v12, 7, v1
            s_lshl_b32 s{S_T0}, s{S_D}, 3
            s_add_u32 s{S_T0}, s{S_T0}, s{S_WAVE}
            s_lshl_b32 s{S_T0}, s{S_T0}, 13
            s_add_u32 s{S_T0}, s{S_T0}, {1024*4096}
            """)
            for k in range(4):
                a(f"buffer_load_dword v253, v12, s[{R_W2}:{R_W2+3}], s{S_T0} offen\ns_add_u32 s{S_T0}, s{S_T0}, {128*4096}")
        skip = self.if_wave56()
        self.w2_setup()
        self.w2_prefill(8)
        a(f"s_branch L_F_loader\n{skip}:")
        a(f"s_cmp_lt_u32 s{S_WAVE}, 4\ns_cbranch_scc1 L_F_comp\ns_cmp_lg_u32 s{S_WAVE}, 7\ns_cbranch_scc1 L_F_u4")
        if not self.o.get("hW2"):
            a(f"s_mul_i32 s{S_T0}, s{S_D}, {FS}\ns_add_u32 s{S_T0}, s{S_T0}, {F_WOT}")
            self.flag_store(S_T0, 12)
            self.stamp(14, 12)
        a("s_branch L_F_poller")

    F_WOT_REG = 172
    F_V = (4, 8, 12, 13, 47, 48, 52, 56, 168)
    F_VL1 = 252
    F_SB = 72

    def uw_srd(self):
        a = self.a
        a(f"""
        s_mul_i32 s{S_T0}, s{S_DTILE}, 5
        s_and_b32 s{S_T0+1}, s{S_WAVE}, 2
        s_add_u32 s{S_T0}, s{S_T0}, s{S_T0+1}
        s_mul_i32 s{S_T0}, s{S_T0}, {UW_ST}
        s_add_u32 s{S_T0}, s{S_T0}, {UW}
        """)
        self.srd(R_P, P_WS, 2 * UW_ST, off_s=S_T0)

    def vl_setup(self):
        a = self.a
        VL = self.F_V[2]
        a(f"""
        s_and_b32 s{S_T0}, s{S_WAVE}, 1
        s_mul_i32 s{S_T0+1}, s{S_T0}, {2048 + UW_ST}
        s_mul_i32 s{S_T0}, s{S_T0}, {(2048 - UW_ST) & 0xffffffff:#x}
        s_add_u32 s{S_T0}, s{S_T0}, {UW_ST}
        v_lshlrev_b32 v{VL}, 4, v1
        v_add_u32 v{self.F_VL1}, s{S_T0}, v{VL}
        v_add_u32 v{VL}, s{S_T0+1}, v{VL}
        """)

    def wot_preload(self):
        a = self.a
        for t in range(5):
            a(f"s_mov_b32 s{S_C}, {49152 + t*4096}")
            for ks in range(2):
                for e in range(2):
                    a(f"buffer_load_dwordx4 {vr(self.F_WOT_REG+16*t+8*ks+4*e,4)}, v{(self.F_V[2], self.F_VL1)[e]}, s[{R_P}:{R_P+3}], s{S_C} offen offset:{ks*1024} sc1")

    def f_setup(self):
        a = self.a
        VT, VT2, VL, VU4, VGA, VGH, VG8, GV, BV = self.F_V
        SB = self.F_SB
        self.srd(R_M, P_B2, 4096)
        self.srd(R_OUT, P_OUT, 2048 * 1280)
        self.tr_addr(VT2)
        a(f"""
        s_and_b32 s{S_T0+2}, s{S_WAVE}, 1
        s_mul_i32 s{S_D}, s{S_DTILE}, 5
        s_add_u32 s{S_D}, s{S_D}, s{S_WAVE}
        s_lshl_b32 s{S_T0}, s{S_T0+2}, 13
        v_add_u32 v42, s{S_T0}, v{VT2}
        s_lshl_b32 s{S_T0+2}, s{S_T0+2}, 11
        v_lshlrev_b32 v{VGH+3}, 4, v1
        v_add_u32 v{VGH+3}, s{S_T0+2}, v{VGH+3}
        v_add_u32 v{VU4}, 0x20000, v{VGH+3}
        v_and_b32 v{VGA}, 15, v1
        v_lshlrev_b32 v43, 1, v{VGA}
        v_lshlrev_b32 v{VGA}, 2, v{VGA}
        v_lshlrev_b32 v{VG8+3}, 3, v1
        v_add_u32 v{VG8+3}, s{S_T0+2}, v{VG8+3}
        """)
        for b in range(4):
            a(f"""
            s_xor_b32 s{SB+b}, s{S_WAVE}, {b}
            s_lshl_b32 s{S_T0}, s{SB+b}, 5
            v_xor_b32 v{VT+b}, s{S_T0}, v42
            s_lshl_b32 s{S_T0+1}, s{S_ST}, 7
            s_add_u32 s{S_T0}, s{S_T0}, s{S_T0+1}
            buffer_load_ushort v{BV+b}, v43, s[{R_M}:{R_M+3}], s{S_T0} offen
            v_add_u32 v{VT2+b}, 0x10000, v{VT+b}
            s_lshl_b32 s{S_T0}, s{SB+b}, 12
            v_add_u32 v{VG8+b}, s{S_T0}, v{VG8+3}
            s_add_u32 s{S_T0}, s{S_T0}, 0x10000
            v_add_u32 v{VGH+b}, s{S_T0}, v{VGH+3}
            """)
        a(f"s_lshl_b32 s{S_A}, s{S_ST}, 8\ns_add_u32 s{S_A}, s{S_A}, {G_OFF}")
        self.f_perm()

    def f0_barrier(self):
        lab = self.a.label("f0")
        self.a(f"s_cmp_eq_u32 s{S_FROMA}, 1\ns_cbranch_scc1 {lab}\ns_barrier\n{lab}:")

    def final(self):
        a = self.a
        a("L_F_comp:")
        PF, WF, U4, WOT = 64, 112, 36, 172
        ACC = (144, 16)
        ACC4 = (160, 164)
        NPF = 3
        VT, VT2, VL, VU4, VGA, VGH, VG8, GV, BV = self.F_V
        VLE = (VL, self.F_VL1)
        SB = self.F_SB
        a(f"s_cmp_eq_u32 s{S_FROMA}, 1\ns_cbranch_scc1 L_F_nowot")
        self.uw_srd()
        self.vl_setup()
        self.f_setup()

        def next_sc(step):
            return self.perm_next(S_C, S_PERM, 4096)
        a("s_barrier")
        self.wot_preload()
        a("L_F_nowot:")
        a(next_sc(0))
        a("s_barrier")
        S_C1, S_C2 = S_K0, S_K0 + 1

        def uload(t, ks, so):
            return "\n".join(f"buffer_load_dwordx4 {vr(PF+16*(t % NPF)+8*ks+4*e,4)}, v{VLE[e]}, s[{R_P}:{R_P+3}], s{so} offen offset:{ks*1024} sc1 ;@u{t}_{ks}_{e}"
                             for e in range(2))
        vis0 = []
        for ks in range(2):
            a(uload(0, ks, S_C))
            vis0 += [f"u0_{ks}_0", f"u0_{ks}_1"]
        a(self.perm_next(S_C1, S_PERM, 4096) + self.perm_next(S_C2, S_PERM, 4096) + next_sc(3))
        a("s_barrier")

        def scale(b):
            regs = [ACC[0] + 4 * b, ACC[1] + 4 * b] + ([ACC4[b]] if b < 2 else [])
            return "\n".join(f"v_mul_f32 v{r+k}, v{GV+b}, v{r+k}" for r in regs for k in range(4))
        X_W, X_R = 65536, 65536
        late = []
        stages = []
        for t in range(17):
            slot = t % 8
            hi = slot >= 4
            uses = []
            for ks in range(2):
                for b in range(4):
                    g = ks * 4 + b
                    wb = WF + 4 * g
                    reads = []
                    u4 = U4 + 4 * ks
                    if b == 0:
                        reads.append((f"u{ks}", f"ds_read_b128 {vr(u4,4)}, v{VU4} offset:{slot*4096 + ks*1024}"))
                    if t < 12:
                        off = (slot & 3) * 16384 + ks * 4096
                        va = (VT2 if hi else VT) + b
                        reads += [(f"w{g}a", f"ds_read_b64_tr_b16 {vr(wb,2)}, v{va} offset:{off}"),
                                  (f"w{g}b", f"ds_read_b64_tr_b16 {vr(wb+2,2)}, v{va} offset:{off+2048}")]
                    elif t < 16:
                        off = (slot & 3) * 16384 + ks * 1024
                        reads += [(f"w{g}b", f"ds_read_b128 {vr(wb,4)}, v{VGH+b} offset:{off}")]
                    else:
                        off = ks * 1024
                        reads += [(f"w{g}a", f"ds_read_b64 {vr(wb,2)}, v{VG8+b} offset:{off}"),
                                  (f"w{g}b", f"ds_read_b64 {vr(wb+2,2)}, v{VG8+b} offset:{off+512}")]
                    first = t == 0 and ks == 0
                    mf = []
                    for e in range(2):
                        pf = vr(PF + 16 * (t % NPF) + 8 * ks + 4 * e, 4) if t < 12 else vr(WOT + 16 * (t - 12) + 8 * ks + 4 * e, 4)
                        acc = vr(ACC[e] + 4 * b, 4)
                        mf.append(f"v_mfma_f32_16x16x32_bf16 {acc}, {pf}, {vr(wb,4)}, {0 if first else acc}")
                    if b < 2:
                        a4 = vr(ACC4[b], 4)
                        mf.append(f"v_mfma_f32_16x16x32_bf16 {a4}, {vr(u4,4)}, {vr(wb,4)}, {0 if first else a4}")
                    if t == 16 and ks == 1:
                        late += [mf[0]] + ([mf[2]] if b == 0 else [])
                        mf = [mf[1]] + ([mf[2]] if b == 1 else [])
                    d = dict(reads=reads, need=[f"w{g}b"], mf=mf)
                    aft = []
                    if b == 0 and t < 12:
                        d["vneed"] = f"u{t}_{ks}_1"
                    if t == 0 and b in (0, 1):
                        aft.append(uload(1 + b, ks, (S_C1, S_C2)[b]))
                    if t == 1 and b in (0, 1):
                        q = ks * 2 + b
                        aft.append(f"s_lshl_b32 s{S_T0}, s{SB+q}, 6\ns_add_u32 s{S_T0}, s{S_T0}, s{S_A}\n"
                                   f"buffer_load_dword v{GV+q}, v{VGA}, s[{R_WS}:{R_WS+3}], s{S_T0} offen sc1 ;@g{q}")
                    if b == 3 and t + NPF < 12:
                        aft.append(uload(t + NPF, ks, S_C))
                        if ks == 1 and t + NPF + 1 < 12:
                            aft.append(next_sc(t + NPF + 1))
                    if t == 9 and g < 4:
                        aft.append(f"v_sub_f32 v{GV+g}, 1.0, v{GV+g}\nv_lshlrev_b32 v{BV+g}, 16, v{BV+g}")
                    if t == 10 and g < 4:
                        aft.append(f"v_mul_f32 v{BV+g}, v{GV+g}, v{BV+g}")
                    if t == 11 and g in (5, 6):
                        aft.append(scale(g - 5))
                    if t == 11 and g == 7:
                        aft.append("s_nop 3\n" + scale(2))
                    if t == 12 and g == 0:
                        aft.append(scale(3))
                    if t == 15 and g == 2:
                        aft.append(f"s_and_b32 s{S_T0}, s{S_WAVE}, 1\ns_lshl_b32 s{S_T0}, s{S_T0}, 10\ns_xor_b32 s{S_T0+1}, s{S_WAVE}, 1\n"
                                   f"s_mul_i32 s{S_T0+1}, s{S_T0+1}, 5120\ns_add_u32 s{S_T0+1}, s{S_T0+1}, {X_W}\nv_lshlrev_b32 v2, 4, v1")
                    if t == 15 and g == 3:
                        aft.append(f"v_add_u32 v3, s{S_T0+1}, v2\ns_mul_i32 s{S_T0+1}, s{S_WAVE}, 5120\ns_add_u32 s{S_T0+1}, s{S_T0+1}, {X_R}\n"
                                   f"v_add_u32 v2, s{S_T0+1}, v2")
                    if aft:
                        d["after"] = "\n".join(aft)
                    uses.append(d)
            stages.append(dict(uses=uses, bar="s_barrier" if t else ""))
        LF = self.o.get("LF", 6)
        self.pipeline(stages, LF, 8 - LF, drain=False, wait_every=self.o.get('weF', 2), vis=vis0)
        misc = f"""v_and_b32 v4, 15, v1
        v_mul_u32_u24 v4, 1280, v4
        v_lshrrev_b32 v5, 4, v1
        v_lshl_add_u32 v4, v5, 3, v4
        s_mul_i32 s{S_A}, s{S_ST}, {64*1280}
        s_lshl_b32 s{S_T0+1}, s{S_D}, 5
        s_add_u32 s{S_B}, s{S_A}, s{S_T0+1}
        s_mul_i32 s{S_T0+1}, s{S_DTILE}, 160
        s_add_u32 s{S_A}, s{S_A}, s{S_T0+1}
        s_add_u32 s{S_A}, s{S_A}, 128""".split("\n")
        wr = [f"ds_write_b128 v3, {vr(ACC[1]+4*0,4)} offset:1024", f"ds_write_b128 v3, {vr(ACC[1]+4*1,4)} offset:0",
              f"ds_write_b128 v3, {vr(ACC4[1],4)} offset:4096", f"ds_write_b128 v3, {vr(ACC[1]+4*2,4)} offset:3072",
              f"ds_write_b128 v3, {vr(ACC[1]+4*3,4)} offset:2048"]
        for i_, m in enumerate(late):
            a(m)
            a("\n".join(misc[2*i_:2*i_+2]))
            if i_ >= 1:
                a(wr[i_-1])
        a(wr[4])
        self.stamp(8, 6)
        blocks = [(ACC[0] + 4 * b, b) for b in range(4)] + [(ACC4[0], 0)]
        a("s_waitcnt lgkmcnt(0)\ns_barrier")
        for i_ in range(5):
            a(f"ds_read_b128 {vr(PF+4*i_,4)}, v2 offset:{i_*1024}")
        for r, b in blocks:
            for k in range(4):
                a(f"v_add_f32 v{r+k}, v{BV+b}, v{r+k}")
        for i_, (r, b) in enumerate(blocks):
            a(f"s_mul_i32 s{S_T0}, s{SB+b}, {16*1280}\ns_add_u32 s{S_T0}, s{S_T0}, s{S_A if i_ == 4 else S_B}\ns_waitcnt lgkmcnt({4-i_})")
            for h in (0, 2):
                a(f"v_pk_add_f32 {vr(r+h,2)}, {vr(r+h,2)}, {vr(PF+4*i_+h,2)}")
            a(f"v_cvt_pk_bf16_f32 v{r}, v{r}, v{r+1}\nv_cvt_pk_bf16_f32 v{r+1}, v{r+2}, v{r+3}")
            a(f"buffer_store_dwordx2 {vr(r,2)}, v4, s[{R_OUT}:{R_OUT+3}], s{S_T0} offen")
        if self.stamps or self.o.get("dbg"):
            a("s_waitcnt vmcnt(0)")
            self.stamp(9, 2)
        if self.o.get("calib"):
            a(f"""
            L_cal:
            s_memrealtime s[96:97]
            s_waitcnt lgkmcnt(0)
            s_sub_u32 s96, s96, s98
            s_cmp_lt_u32 s96, {self.o.get("calib")*100}
            s_cbranch_scc1 L_cal
            """)
        a(f"s_or_b32 s{S_T0}, s2, s{S_WAVE}\ns_cmp_lg_u32 s{S_T0}, 0\ns_cbranch_scc1 L_end\ns_mov_b32 s{S_T0}, 0")
        self.flag_store(S_T0, 4)
        a("s_branch L_end")

        a("L_F_u4:")
        if self.stop == "phase1":
            a("s_branch L_end")
        a(f"""
        v_lshlrev_b32 v{VL}, 4, v1
        s_mul_i32 s{S_C}, s{S_DTILE}, {5*UW_ST}
        s_add_u32 s{S_C}, s{S_C}, {UW + 4*UW_ST}
        """)
        self.f_perm()
        self.f0_barrier()
        p4 = None
        if p4:
            for k in range(20):
                if k % 4 == 0:
                    a(f"s_add_u32 s{S_T0}, s{S_C}, {49152 + k*1024}")
                a(f"buffer_load_dwordx4 {vr(64+4*k,4)}, v{VL}, s[{R_WS}:{R_WS+3}], s{S_T0} offen offset:{(k%4)*1024} sc1")
            a(f"v_add_u32 v{VU4}, 0x20000, v{VL}")
        a("s_barrier")

        def u4_issue(iv):
            if iv >= 12 and p4:
                for i in range(4):
                    a(f"ds_write_b128 v{VU4}, {vr(64+16*(iv-12)+4*i,4)} offset:{(iv % 8)*4096 + i*1024}")
                return
            if iv < 12:
                a(self.perm_next(S_T0, S_PERM, 4096) + f"s_mov_b32 m0, {0x20000 + (iv % 8)*4096:#x}\ns_add_u32 s{S_T0}, s{S_T0}, s{S_C}")
            else:
                a(f"s_mov_b32 m0, {0x20000 + (iv % 8)*4096:#x}\ns_add_u32 s{S_T0}, s{S_C}, {iv*4096}")
            for i in range(4):
                a(f"buffer_load_dwordx4 v{VL}, s[{R_WS}:{R_WS+3}], s{S_T0} offen offset:{i*1024} sc1 lds")
        order = []
        for iv in range(8):
            u4_issue(iv)
            order.append(iv)
            if iv == 1:
                a("s_waitcnt vmcnt(4)\ns_barrier")
        for tb in range(1, 17):
            if tb in order:
                a(f"s_waitcnt vmcnt({4*len(order[order.index(tb)+1:])})")
            a("s_waitcnt lgkmcnt(0)\ns_barrier" if p4 and tb >= 7 else "s_barrier")
            iv = tb + (6 if self.o.get("nodrain") else 7)
            if 8 <= iv <= 16:
                u4_issue(iv)
                if not (p4 and iv >= 12):
                    order.append(iv)
        a("s_branch L_end")

        a("L_F_loader:")
        if self.stop == "phase1":
            a("s_branch L_end")
        a(f"v_lshlrev_b32 v{VL}, 4, v1")
        self.f0_barrier()
        nWR = self.o.get("nWR", 0)
        V = self.V_W2
        if nWR:
            a(f"s_waitcnt vmcnt(30)\nv_add_u32 v{VU4}, s{S_B}, v{VL}")
            for k in range(nWR):
                a(self.perm_next(S_T0, S_PERM, 128 * 4096) + f"s_add_u32 s{S_T0}, s{S_T0}, s{S_A}")
                for g in range(2):
                    if g:
                        a(f"s_add_u32 s{S_T0}, s{S_T0}, {4*32768}")
                    for i in range(4):
                        a(f"buffer_load_dwordx4 {vr(64+32*k+16*g+4*i,4)}, v{V+i}, s[{R_W2}:{R_W2+3}], s{S_T0} offen offset:{i*1024}")
            a(f"s_add_u32 s{S_B}, s{S_B}, {nWR*16384}")
        a("s_barrier")
        a(f"""
        s_sub_u32 s{S_T0}, s{S_WAVE}, 5
        s_lshl_b32 s{S_T0}, s{S_T0}, 1
        s_lshl_b32 s{S_T0+1}, s{S_ST}, 2
        s_add_u32 s{S_T0+1}, s{S_T0+1}, s{S_T0}
        s_mul_i32 s{S_C}, s{S_T0+1}, {GO_ST}
        s_add_u32 s{S_C}, s{S_C}, {GO}
        s_lshl_b32 s{S_D}, s{S_T0}, 12
        """)
        assert nWR == 0
        ops = [(iv, 8) for iv in range(8)]
        for tb in range(17):
            last = max(i for i, (iv, _) in enumerate(ops) if iv == tb)
            n = sum(c for _, c in ops[last + 1:])
            a(f"s_waitcnt vmcnt({min(n,63)})\ns_barrier")
            if self.o.get("halfW"):
                if 2 <= tb <= 9:
                    self.w2_half((tb - 2) & 1)
                    ops.append((8 + (tb - 2) // 2, 4))
            elif 2 <= tb <= 5:
                self.w2_issue()
                ops.append((tb + 6, 8))
            if 9 <= tb <= 13:
                iv = tb + 3
                g = iv - 12
                for s2 in range(2):
                    a(f"s_add_u32 m0, s{S_D}, {(iv % 8)*16384 + s2*4096}\ns_add_u32 s{S_T0}, s{S_C}, {s2*GO_ST + g*4096}")
                    for i in range(4):
                        a(f"buffer_load_dwordx4 v{VL}, s[{R_WS}:{R_WS+3}], s{S_T0} offen offset:{i*1024} sc1 lds")
                ops.append((iv, 8))
        a("s_branch L_end")
        a("L_F_poller:")
        if self.stop == "phase1":
            a("s_branch L_end")
        a(f"s_cmp_eq_u32 s{S_FROMA}, 1\ns_cbranch_scc1 L_F_pnowot")
        a(f"s_mul_i32 s{S_T0}, s{S_DTILE}, {FS}\ns_add_u32 s{S_T0}, s{S_T0}, {F_WOT}\nv_mov_b32 v2, s{S_T0}")
        self.poll([2], 4)
        a("s_barrier\nL_F_pnowot:")
        a(f"""
        s_mul_i32 s{S_T0}, s{S_DTILE}, 5
        s_lshr_b32 s{S_T0+1}, s{S_T0}, 3
        s_add_u32 s{S_T0}, s{S_T0}, 4
        s_lshr_b32 s{S_T0}, s{S_T0}, 3
        s_mul_i32 s{S_T0}, s{S_T0}, 24
        s_mul_i32 s{S_T0+1}, s{S_T0+1}, 24
        v_and_b32 v2, 31, v1
        v_min_u32 v2, 23, v2
        v_add_u32 v3, s{S_T0}, v2
        v_add_u32 v2, s{S_T0+1}, v2
        v_cmp_gt_u32 vcc, 32, v1
        s_mul_i32 s{S_T0}, s{S_DTILE}, {FS}
        s_add_u32 s{S_T0}, s{S_T0}, {F_WOT}
        v_cndmask_b32 v2, v2, v3, vcc
        v_mul_u32_u24 v2, {FS}, v2
        v_add_u32 v2, {F_U}, v2
        v_mov_b32 v3, s{S_T0}
        v_cmp_eq_u32 vcc, 63, v1
        s_nop 1
        v_cndmask_b32 v2, v2, v3, vcc
        """)
        self.poll([2], 4)
        self.stamp(6, 4)
        a("s_barrier")
        a(f"""
        v_and_b32 v2, 7, v1
        s_lshr_b32 s{S_T0}, s{S_ST}, 1
        s_lshl_b32 s{S_T0}, s{S_T0}, 3
        v_add_u32 v2, s{S_T0}, v2
        v_mul_u32_u24 v2, {FS}, v2
        v_add_u32 v2, {F_GO}, v2
        """)
        gp = self.o.get("gopoll", 9)
        for tb in range(gp):
            a("s_barrier")
            if tb == 1:
                a(f"s_cmp_eq_u32 s{S_FROMA}, 1\ns_cbranch_scc0 L_F_nogo")
                a(f"s_lshl_b32 s{S_T0}, s{S_MT}, 3\ns_add_u32 s{S_T0}, s{S_T0}, s{S_HG}\ns_mul_i32 s{S_T0}, s{S_T0}, {FS}\ns_add_u32 s{S_T0}, s{S_T0}, {F_GO}")
                self.flag_store(S_T0, 6)
                a("L_F_nogo:")
            if tb == gp - 3:
                a(f"buffer_load_dword v8, v2, s[{R_WS}:{R_WS+3}], 0 offen sc1")
            self.stamp(32 + tb, 4)
        a(f"s_waitcnt vmcnt(0)\nv_cmp_ne_u32 vcc, s{S_TAG}, v8\ns_nop 1\ns_cmp_eq_u64 vcc, 0\ns_cbranch_scc1 L_F_gook")
        self.poll([2], 4)
        a("L_F_gook:")
        self.stamp(7, 4)
        for tb in range(gp, 17):
            a("s_barrier")
            self.stamp(32 + tb, 4)
        a("L_end:")
        if "probe" in self.o or "pc1" in self.o:
            a("""
            s_cmp_eq_u32 s94, 0
            s_cbranch_scc1 L_exit
            L_prb:
            s_memrealtime s[96:97]
            s_waitcnt lgkmcnt(0)
            s_sub_u32 s96, s96, s98
            s_cmp_lt_i32 s96, 4000
            s_cbranch_scc1 L_prb
            """)
        if self.stamps:
            a(f"""
            s_lshl_b32 s{S_T0}, s2, 3
            s_add_u32 s{S_T0}, s{S_T0}, s{S_WAVE}
            s_lshl_b32 s{S_T0}, s{S_T0}, 9
            s_add_u32 s{S_T0}, s{S_T0}, {STAMP}
            v_lshlrev_b32 v2, 3, v1
            buffer_store_dwordx2 v[254:255], v2, s[{R_WS}:{R_WS+3}], s{S_T0} offen
            """)
        a("L_exit:\ns_endpgm")

    def build(self, header):
        a = self.a
        self.prologue()
        self.role_a()
        self.role_b()
        self.helper()
        self.final()
        body = a.text()
        out = header
        out += """; One persistent launch, 256 workgroups (one per CU) x 8 waves (0-3 MFMA, 4-7 loaders / pollers).
"""
        out += f"; @launch grid=(256,1,1) block=(512,1,1) lds={LDS_BYTES}\n"
        out += f'.amdgcn_target "amdgcn-amd-amdhsa--gfx950"\n.text\n.globl {KNAME}\n.p2align 8\n.type {KNAME},@function\n{KNAME}:\n'
        out += body
        out += f""".section .rodata,"a"
.p2align 6
.amdhsa_kernel {KNAME}
  .amdhsa_next_free_vgpr 256
  .amdhsa_next_free_sgpr 102
  .amdhsa_accum_offset 256
  .amdhsa_group_segment_fixed_size 0
  .amdhsa_kernarg_size 96
  .amdhsa_user_sgpr_count 2
  .amdhsa_user_sgpr_kernarg_segment_ptr 1
  .amdhsa_system_sgpr_workgroup_id_x 1
  .amdhsa_float_denorm_mode_32 3
.end_amdhsa_kernel
"""
        return out


def header():
    ref = open("gated_mix__linear_attn_block__mixer_token_mlp__prompt.s.ref").read().split("\n")
    h = []
    for l in ref:
        if l.startswith("; Override"):
            break
        h.append(l)
    return "\n".join(h) + "\n"


if __name__ == "__main__":
    import argparse
    p = argparse.ArgumentParser()
    p.add_argument("-o", default="gated_mix__linear_attn_block__mixer_token_mlp__prompt.s")
    p.add_argument("--stamps", action="store_true")
    p.add_argument("--stop", default=None)
    p.add_argument("--opt", default="")
    args = p.parse_args()
    opts = {k: (int(v) if v != '' else 1) for k, _, v in (x.partition('=') for x in args.opt.split(',') if x)}
    g = Gen(stamps=args.stamps, stop=args.stop, opts=opts)
    open(args.o, "w").write(g.build(header()))
    print("wrote", args.o)
```

```python
import sys

KNAME = "gated_mix__linear_attn_block__mixer_token_mlp__prompt_kernel"

import os
FS = int(os.environ.get('FS', 128))
F_LN, F_KV, F_U, F_GO, F_WOT = 0x1000, 0x5000, 0x9000, 0xD000, 0x11000
G_OFF = 0x12000
STAMP = 0x900000
KVP = 0x20000
KVP_ST = 7168
HT = 0x100000
UW = 0x380000
UW_ST = 69632
GO = 0x640000
GO_ST = 20480
WS_USED = 0xA00000
TAG_INC = 0x9E3779B9
SPIN_LIMIT = 1 << 17

LDS_BYTES = 163840
LNBUF = 0
LN_ST = 1312
LNG = LNBUF + 32 * LN_ST
A_SLOT = 49152
A_WOFF = 16384
EXCH_ST = 14336
EXCH = LDS_BYTES - 4 * EXCH_ST
KVT = 147456
ZH = KVT + 11 * 1024

LOG2E = 0x3FB8AA3B


def f2u(x):
    import struct
    return struct.unpack("<I", struct.pack("<f", x))[0]


class Asm:
    def __init__(self):
        self.L = []
        self.nlab = 0

    def __call__(self, s):
        for line in s.split("\n"):
            line = line.strip()
            if line:
                self.L.append(("    " if not line.endswith(":") else "") + line)

    def label(self, base):
        self.nlab += 1
        return f"L{base}_{self.nlab}"

    def text(self):
        return "\n".join(self.L) + "\n"


def vr(a, n=1):
    return f"v{a}" if n == 1 else f"v[{a}:{a+n-1}]"


def sr(a, n=1):
    return f"s{a}" if n == 1 else f"s[{a}:{a+n-1}]"


P_X, P_WQKV, P_WO, P_BX, P_W1, P_B1, P_W2, P_B2 = 4, 6, 8, 10, 12, 14, 16, 18
P_GATE, P_OUT, P_DBG, P_WS = 20, 22, 24, 26
S_TAG, S_WAVE = 28, 29
S_XCD, S_J = 30, 31
R_WS, R_X, R_W, R_P, R_W2, R_M, R_OUT = 32, 36, 40, 44, 48, 52, 56
S_T0 = 60
S_MT, S_HG, S_DT, S_FT, S_KST, S_PAR = 70, 71, 72, 73, 74, 75
S_ST, S_DTILE = 76, 77
S_CNT = 78
S_A, S_B, S_C, S_D = 80, 81, 82, 83
S_MSK = 84
S_K0 = 90
S_STMP = 96
S_PERM = 66
S_M = 79
S_FROMA = 95
S_PERM2 = 68


def lead_perm(n, nshare, m, lead=2):
    order = list(range(n))
    i = m
    while i + lead < n:
        order[i:i + lead + 1] = [order[i + lead]] + order[i:i + lead]
        i += nshare
    return order


class Gen:
    def __init__(self, stamps=False, stop=None, opts=None):
        self.o = opts or {}
        self.a = Asm()
        self.stamps = stamps
        self.stop = stop

    def nt(self, key):
        return "nt" if self.o.get(key) else ""

    def srd(self, dst, ptr, nbytes, off_s=None):
        a = self.a
        if off_s is None:
            a(f"s_mov_b32 s{dst}, s{ptr}\ns_and_b32 s{dst+1}, s{ptr+1}, 0xffff")
        else:
            a(f"s_add_u32 s{dst}, s{ptr}, s{off_s}\ns_addc_u32 s{dst+1}, s{ptr+1}, 0\ns_and_b32 s{dst+1}, s{dst+1}, 0xffff")
        a(f"s_mov_b32 s{dst+2}, {nbytes:#x}\ns_mov_b32 s{dst+3}, 0x20000")

    def stamp(self, k, vtmp, dyn=None):
        if "pc1" in self.o:
            if dyn is None and k in (self.o["pc1"], self.o["pc2"]):
                lab = self.a.label("npr")
                self.a(f"s_cmp_lg_u32 s{S_FROMA}, {self.o.get('prole', 0)}\ns_cbranch_scc1 {lab}")
                if k == self.o["pc1"]:
                    self.a(f"s_memtime s[92:93]\ns_waitcnt lgkmcnt(0)")
                else:
                    self.a(f"s_memtime s[96:97]\ns_waitcnt lgkmcnt(0)\ns_sub_u32 s92, s96, s92\ns_lshr_b32 s92, s92, 4\ns_add_u32 s98, s98, s92\ns_mov_b32 s94, 1")
                self.a(f"{lab}:")
            return
        if "probe" in self.o:
            role = self.o.get("prole")
            if k == self.o["probe"] and dyn is None:
                lab = self.a.label("npr")
                if self.o.get("phelp"):
                    self.a(f"s_cmp_lt_u32 s{S_J}, 30\ns_cbranch_scc1 {lab}")
                if role is not None and k != 0:
                    self.a(f"s_cmp_lg_u32 s{S_FROMA}, {role}\ns_cbranch_scc1 {lab}")
                self.a(f"s_memrealtime s[98:99]\ns_mov_b32 s94, 1\ns_waitcnt lgkmcnt(0)\n{lab}:")
            return
        if self.o.get("dbg"):
            m = {0: 0, 11: 1, 1: 2, 2: 3, 3: 4, 4: 5, 6: 6, 9: 7}
            mA = {0: 0, 1: 1, 2: 2, 3: 3, 4: 4, 5: 5, 6: 6, 9: 7}
            if dyn is not None:
                return
            a = self.a
            for wg, mp, base in ((8, m, 0), (12, mA, 8)):
                if k in mp:
                    lab = a.label("nd")
                    a(f"s_cmp_lg_u32 s2, {wg}\ns_cbranch_scc1 {lab}")
                    a(f"s_memrealtime s[{S_STMP}:{S_STMP+1}]\ns_waitcnt lgkmcnt(0)")
                    a(f"v_mov_b32 v{vtmp}, s{S_STMP}\nv_mov_b32 v{vtmp+2}, {4*(base+mp[k])}")
                    a(f"s_mov_b64 exec, 1\nglobal_store_dword v{vtmp+2}, v{vtmp}, s[{P_DBG}:{P_DBG+1}]\ns_mov_b64 exec, -1\n{lab}:")
            return
        if not self.stamps:
            return
        a = self.a
        a(f"s_memrealtime s[{S_STMP}:{S_STMP+1}]\ns_memtime s[100:101]")
        ln = str(k)
        if dyn is not None:
            a(f"s_add_u32 m0, s{dyn}, {k}")
            ln = "m0"
        a(f"s_waitcnt lgkmcnt(0)\nv_writelane_b32 v254, s{S_STMP}, {ln}\nv_writelane_b32 v255, s100, {ln}")

    def perm_setup(self, s_m, n, nshare, dst, enable):
        a = self.a
        def pk(o):
            v = 0
            for i, x in enumerate(o):
                v |= x << (4 * i)
            return v & 0xffffffff, v >> 32
        lo, hi = pk(list(range(n)))
        a(f"s_mov_b32 s{dst}, {lo:#x}\ns_mov_b32 s{dst+1}, {hi:#x}")
        if not enable:
            return
        for m in range(nshare):
            lo, hi = pk(lead_perm(n, nshare, m, enable))
            a(f"s_cmp_eq_u32 s{s_m}, {m}\ns_cselect_b32 s{dst}, {lo:#x}, s{dst}\ns_cselect_b32 s{dst+1}, {hi:#x}, s{dst+1}")

    def perm_next(self, dst, src, mul):
        t = f"s_and_b32 s{dst}, s{src}, 15\ns_lshr_b64 s[{src}:{src+1}], s[{src}:{src+1}], 4\n"
        if mul & (mul - 1) == 0:
            t += f"s_lshl_b32 s{dst}, s{dst}, {mul.bit_length()-1}\n"
        else:
            t += f"s_mul_i32 s{dst}, s{dst}, {mul}\n"
        return t

    def poll(self, voffs, vtmp, mask=None):
        a = self.a
        lp, dn = a.label("poll"), a.label("pdone")
        n = len(voffs)

        def ld(k):
            for i, vo in enumerate(voffs):
                a(f"buffer_load_dword v{vtmp+k*n+i}, v{vo}, s[{R_WS}:{R_WS+3}], 0 offen sc1")

        def chk(k):
            if mask is not None:
                a(f"v_xor_b32 v{vtmp+k*n}, s{S_TAG}, v{vtmp+k*n}\nv_and_b32 v{vtmp+k*n}, v{mask}, v{vtmp+k*n}\nv_cmp_ne_u32 vcc, 0, v{vtmp+k*n}")
            else:
                a(f"v_cmp_ne_u32 vcc, s{S_TAG}, v{vtmp+k*n}")
            for i in range(1, n):
                a(f"v_cmp_ne_u32 s[{S_T0}:{S_T0+1}], s{S_TAG}, v{vtmp+k*n+i}\ns_nop 1\ns_or_b64 vcc, vcc, s[{S_T0}:{S_T0+1}]")
            a(f"s_nop 1\ns_cmp_eq_u64 vcc, 0\ns_cbranch_scc1 {dn}")
        if not self.o.get("pp"):
            a(f"s_mov_b32 s{S_CNT}, 0\n{lp}:")
            ld(0)
            a("s_waitcnt vmcnt(0)")
            chk(0)
            a(f"s_add_u32 s{S_CNT}, s{S_CNT}, 1\ns_cmp_lt_u32 s{S_CNT}, {SPIN_LIMIT}\ns_cbranch_scc0 {dn}\ns_sleep 1\ns_branch {lp}\n{dn}:")
            return
        sl = f"s_sleep {self.o['pp'] - 1}\n" if self.o["pp"] > 1 else ""
        a(f"s_mov_b32 s{S_CNT}, 0")
        ld(0)
        a(f"{sl}{lp}:")
        ld(1)
        a(f"s_waitcnt vmcnt({n})")
        chk(0)
        ld(0)
        a(f"s_waitcnt vmcnt({n})")
        chk(1)
        a(f"s_add_u32 s{S_CNT}, s{S_CNT}, 1\ns_cmp_lt_u32 s{S_CNT}, {SPIN_LIMIT}\ns_cbranch_scc1 {lp}\n{dn}:")

    def flag_store(self, s_off, vtmp):
        a = self.a
        a(f"v_mov_b32 v{vtmp}, s{S_TAG}\nv_mov_b32 v{vtmp+1}, 0\ns_mov_b64 exec, 1")
        a(f"buffer_store_dword v{vtmp}, v{vtmp+1}, s[{R_WS}:{R_WS+3}], s{s_off} offen sc1\ns_mov_b64 exec, -1")

    def pipeline(self, stages, L, gstar, drain=True, wait_every=2, vis=None):
        a = self.a
        seq = [(si, gi, u) for si, st in enumerate(stages) for gi, u in enumerate(st["uses"])]
        issued = []
        vis = list(vis or [])
        state = dict(nxt=0, opened=-1)
        pend = []

        def collect(lim):
            while state["nxt"] < len(seq) and state["nxt"] <= lim and seq[state["nxt"]][0] <= state["opened"]:
                si_, _, u_ = seq[state["nxt"]]
                for name, txt in u_["reads"]:
                    pend.append((f"{si_}:{name}", txt))
                state["nxt"] += 1
                if seq[state["nxt"] - 1][1] == len(stages[si_]["uses"]) - 1 and si_ + 1 < len(stages):
                    state["defer"] = list(stages[si_ + 1].get("pre", []))

        def out(txt):
            if ";@" in txt:
                vis.append(txt.split(";@")[1].strip())
            a(txt)

        def emit(n):
            for _ in range(min(n, len(pend))):
                name, txt = pend.pop(0)
                out(txt)
                if name:
                    issued.append(name)

        a(stages[0]["bar"])
        state["opened"] = 0
        collect(L - 1)
        emit(len(pend))
        n_real = sum(len(st["uses"]) for st in stages if not st.get("virtual"))
        covered = -1
        for f in range(n_real):
            si, gi, u = seq[f]
            nuse = len(stages[si]["uses"])
            if gi == 0 and stages[si].get("head"):
                assert not pend, pend
                a(stages[si]["head"])
                covered = -1
            if gi == gstar and si + 1 < len(stages):
                emit(len(pend))
                for x in state.pop("defer", []):
                    a(x)
                if drain:
                    a("s_waitcnt lgkmcnt(0)")
                    covered = len(issued) - 1
                a(stages[si + 1]["bar"])
                pend.extend((None, x) for x in stages[si + 1].get("bar_pend", []))
                state["opened"] = si + 1
                collect(f + L - 1)
            def lastidx(ff):
                s_, _, uu = seq[ff]
                return max(len(issued) - 1 - issued[::-1].index(f"{s_}:{nm}") for nm in uu["need"])
            w = []
            if lastidx(f) > covered:
                tgt = lastidx(f)
                for ff in range(f + 1, min(f + wait_every, n_real)):
                    if seq[ff][0] != si:
                        break
                    try:
                        tgt = max(tgt, lastidx(ff))
                    except ValueError:
                        break
                n = len(issued) - 1 - tgt
                assert n <= 15, n
                w.append(f"lgkmcnt({n})")
                covered = tgt
            if u.get("vneed") is not None:
                w.insert(0, f"vmcnt({len(vis) - 1 - vis.index(u['vneed'])})")
            if u.get("vm") is not None:
                npv = sum(1 for nm_, t_ in pend if t_.strip().startswith("buffer_load"))
                w.insert(0, f"vmcnt({u['vm'] - npv})")
            if w:
                a("s_waitcnt " + " ".join(w))
            if u.get("before"):
                a(u["before"])
            if state.get("defer") and not pend:
                n_ = self.o.get("npre", 7)
                pend.extend((None, x) for x in state["defer"][:n_])
                state["defer"] = state["defer"][n_:]
            collect(f + L)
            if state.get("mix"):
                k_ = state.pop("mix")
                head_, rest_ = pend[:k_], pend[k_:]
                pend[:] = [x for pr in zip(head_, rest_) for x in pr] + head_[len(rest_):] + rest_[len(head_):]
            nm_ = len(u["mf"])
            for k, m in enumerate(u["mf"]):
                a(m)
                left = nm_ - k
                if drain and gi >= gstar:
                    left += sum(len(uu["mf"]) for uu in stages[si]["uses"][gi + 1:])
                    extra = 2 * (nuse - 1 - gi)
                    emit(-(-(len(pend) + extra) // left) if left > 1 else len(pend))
                else:
                    emit(-(-len(pend) // left))
            if u.get("after"):
                items = [x for x in u["after"].split("\n") if x.strip()]
                if gi == nuse - 1:
                    for x in items:
                        out(x)
                else:
                    assert not pend
                    pend.extend((None, x) for x in items)
                    state["mix"] = len(items)
            if gi == nuse - 1 and stages[si].get("tail"):
                a(stages[si]["tail"])

    def prologue(self):
        a = self.a
        a(f"""
        s_cmp_ge_u32 s2, 256
        s_cbranch_scc1 L_exit
        {"v_mov_b32 v254, 0" if self.stamps else ""}
        {"v_mov_b32 v255, 0" if self.stamps else ""}
        {"s_memrealtime s[98:99]" if self.o.get("calib") or "pc1" in self.o else ""}
        {"s_mov_b32 s94, 0" if "probe" in self.o or "pc1" in self.o else ""}
        s_load_dwordx16 s[4:19], s[0:1], 0
        s_load_dwordx8 s[20:27], s[0:1], 64
        """)
        if self.o.get("pf_code") == 2:
            a(f"""
            s_getpc_b64 s[{S_T0}:{S_T0+1}]
            L_pcref:
            s_lshr_b32 s3, s2, 3
            s_mul_i32 s3, s3, 1280
            v_lshlrev_b32 v4, 7, v0
            v_add_u32 v4, s3, v4
            v_min_u32 v4, L_exit-L_pcref, v4
            v_cmp_gt_u32 vcc, 10, v0
            s_and_saveexec_b64 s[{S_T0+2}:{S_T0+3}], vcc
            s_cbranch_execz L_nocpf
            global_load_dword v253, v4, s[{S_T0}:{S_T0+1}]
            L_nocpf:
            s_mov_b64 exec, -1
            """)
        a(f"""
        v_and_b32 v1, 63, v0
        v_lshrrev_b32 v2, 6, v0
        s_and_b32 s{S_XCD}, s2, 7
        v_readfirstlane_b32 s{S_WAVE}, v2
        s_lshr_b32 s{S_J}, s2, 3
        s_waitcnt lgkmcnt(0)
        s_load_dword s{S_TAG}, s[{P_WS}:{P_WS+1}], 0
        """)
        self.srd(R_WS, P_WS, WS_USED)
        self.srd(R_X, P_X, 2048 * 1280)
        self.srd(R_W2, P_W2, 1536 * 4096)
        if self.stamps or self.o.get("dbg") or "probe" in self.o:
            a(f"s_cmp_lg_u32 s{S_WAVE}, 0\ns_cbranch_scc1 L_nost0")
            self.stamp(0, 4)
            a("L_nost0:")
        if self.o.get("tlb"):
            self.tlb_warm()
        if self.o.get("pf_code") == 1:
            self.code_prefetch()
        if self.o.get("prio"):
            a(f"""
            s_sub_u32 s{S_T0}, s{S_WAVE}, 4
            s_cmp_lt_u32 s{S_T0}, 3
            s_cbranch_scc1 L_noprio
            s_setprio 3
            L_noprio:
            """)
        a(f"""
        s_lshr_b32 s{S_T0}, s{S_XCD}, 1
        s_lshl_b32 s{S_T0}, s{S_T0}, 3
        s_lshr_b32 s{S_ST}, s{S_J}, 2
        s_add_u32 s{S_ST}, s{S_ST}, s{S_T0}
        s_and_b32 s{S_T0}, s{S_XCD}, 1
        s_lshl_b32 s{S_T0}, s{S_T0}, 2
        s_and_b32 s{S_DTILE}, s{S_J}, 3
        s_add_u32 s{S_DTILE}, s{S_DTILE}, s{S_T0}
        s_cmp_lt_u32 s{S_XCD}, 4
        s_cbranch_scc1 L_roleB
        """)

    V_W2 = 240

    def f_perm(self):
        a = self.a
        a(f"s_lshl_b32 s{S_M}, s{S_DTILE}, 1\ns_add_u32 s{S_M}, s{S_M}, s{S_ST}\ns_and_b32 s{S_M}, s{S_M}, 7")
        self.perm_setup(S_M, 12, 8, S_PERM, self.o.get("rotF"))

    def w2_setup(self):
        a = self.a
        V = self.V_W2
        self.f_perm()
        a(f"""
        v_lshrrev_b32 v{V}, 3, v1
        v_lshrrev_b32 v{V+1}, 4, v1
        v_lshlrev_b32 v{V+1}, 1, v{V+1}
        v_and_b32 v{V+2}, 7, v1
        v_xor_b32 v{V+1}, v{V+1}, v{V+2}
        v_lshlrev_b32 v{V+1}, 4, v{V+1}
        v_lshl_add_u32 v{V}, v{V}, 12, v{V+1}
        v_add_u32 v{V+1}, {32768-1024}, v{V}
        v_add_u32 v{V+2}, {2*(32768-1024)}, v{V}
        v_add_u32 v{V+3}, {3*(32768-1024)}, v{V}
        s_sub_u32 s{S_T0}, s{S_WAVE}, 5
        s_lshl_b32 s{S_B}, s{S_T0}, 13
        s_lshl_b32 s{S_A}, s{S_T0}, 18
        s_lshl_b32 s{S_T0}, s{S_ST}, 7
        s_add_u32 s{S_A}, s{S_A}, s{S_T0}
        """)

    def w2_issue_at(self, p):
        a = self.a
        V = self.V_W2
        a(f"s_bfe_u32 s{S_T0}, s{S_PERM}, {(4 << 16) | (4 * p):#x}\ns_lshl_b32 s{S_T0}, s{S_T0}, 19\ns_add_u32 s{S_T0}, s{S_T0}, s{S_A}")
        for g in range(2):
            a(f"s_add_u32 m0, s{S_B}, {p*16384 + g*4096}")
            a(f"s_add_u32 s{S_T0}, s{S_T0}, {g*4*32768}")
            for i in range(4):
                a(f"buffer_load_dwordx4 v{V+i}, s[{R_W2}:{R_W2+3}], s{S_T0} offen offset:{i*1024} lds")

    def w2_half(self, g):
        a = self.a
        V = self.V_W2
        if g == 0:
            a(self.perm_next(S_K0, S_PERM, 128 * 4096) + f"s_add_u32 s{S_K0}, s{S_K0}, s{S_A}")
        a(f"s_add_u32 m0, s{S_B}, {g*4096}\ns_add_u32 s{S_T0}, s{S_K0}, {g*4*32768}")
        for i in range(4):
            a(f"buffer_load_dwordx4 v{V+i}, s[{R_W2}:{R_W2+3}], s{S_T0} offen offset:{i*1024} lds")
        if g == 1:
            a(f"s_add_u32 s{S_B}, s{S_B}, 16384")

    def w2_issue(self):
        a = self.a
        V = self.V_W2
        a(self.perm_next(S_T0, S_PERM, 128 * 4096))
        a(f"s_add_u32 s{S_T0}, s{S_T0}, s{S_A}")
        for g in range(2):
            a(f"s_add_u32 m0, s{S_B}, {g*4096}")
            a(f"s_add_u32 s{S_T0}, s{S_T0}, {g*4*32768}")
            for i in range(4):
                a(f"buffer_load_dwordx4 v{V+i}, s[{R_W2}:{R_W2+3}], s{S_T0} offen offset:{i*1024} lds")
        a(f"s_add_u32 s{S_B}, s{S_B}, 16384\ns_and_b32 s{S_B}, s{S_B}, 0x1ffff")

    def w2_prefill(self, n):
        if n == 0:
            return
        a = self.a
        lp = a.label("pf")
        a(f"s_mov_b32 s{S_C}, 0\n{lp}:")
        self.w2_issue()
        a(f"s_add_u32 s{S_C}, s{S_C}, 1\ns_cmp_lt_u32 s{S_C}, {n}\ns_cbranch_scc1 {lp}")

    def if_wave56(self):
        a = self.a
        skip = a.label("n56")
        a(f"s_sub_u32 s{S_T0}, s{S_WAVE}, 5\ns_cmp_lt_u32 s{S_T0}, 2\ns_cbranch_scc0 {skip}")
        return skip

    def role_a(self):
        a = self.a
        a(f"L_roleA:\ns_mov_b32 s{S_FROMA}, 1")
        a(f"s_sub_u32 s{S_MT}, s{S_ST}, 16\ns_mov_b32 s{S_HG}, s{S_DTILE}")
        a(f"s_cmp_ge_u32 s{S_WAVE}, 4\ns_cbranch_scc1 L_A_loader")
        ACC, XF, WF, VXA, VWA = 128, 96, 64, 4, 6
        if self.o.get("ta1") or self.o.get("ta2"):
            self.start_prefetch()
        self.a_thread_map()
        a(f"""
        v_and_b32 v16, 15, v1
        v_lshrrev_b32 v17, 4, v1
        s_lshl_b32 s{S_T0}, s{S_WAVE}, 5
        v_add_u32 v18, s{S_T0}, v16
        v_lshrrev_b32 v19, 1, v16
        v_xor_b32 v19, v17, v19
        v_lshlrev_b32 v19, 4, v19
        v_lshl_add_u32 v{VXA}, v18, 7, v19
        v_xor_b32 v{VXA+1}, 64, v{VXA}
        v_lshrrev_b32 v18, 2, v16
        v_lshl_add_u32 v19, v17, 3, v18
        v_and_b32 v20, 1, v17
        v_lshl_or_b32 v20, v20, 2, v18
        v_lshlrev_b32 v19, 9, v19
        v_lshl_add_u32 v19, v20, 5, v19
        v_and_b32 v20, 3, v16
        v_lshl_add_u32 v19, v20, 3, v19
        v_add_u32 v{VWA}, {A_WOFF}, v19
        """)
        for n in range(1, 8):
            a(f"v_xor_b32 v{VWA+n}, {n<<5}, v{VWA}")
        for r in range(120):
            a(f"v_mov_b32 v{ACC+r}, 0")
        a(f"s_mov_b32 s{S_A}, 0\ns_mov_b32 s{S_B}, 0\ns_mov_b32 s{S_C}, {A_SLOT}\ns_waitcnt lgkmcnt(0)")
        a(f"s_add_u32 s{S_TAG}, s{S_TAG}, {TAG_INC:#x}")

        RING = 6
        D = 6

        def mk_stage(bar, virtual=False, head=None, tail=None):
            uses = []
            for g in range(30):
                ks, n = divmod(g, 15)
                wb = WF + 4 * (g % RING)
                reads = []
                if g == 0:
                    for rb in range(2):
                        reads.append((f"x0{rb}", f"ds_read_b128 {vr(XF+4*rb,4)}, v{VXA} offset:{rb*2048}"))
                if g == 13:
                    for rb in range(2):
                        reads.append((f"x1{rb}", f"ds_read_b128 {vr(XF+8+4*rb,4)}, v{VXA+1} offset:{rb*2048}"))
                off = ks * 16384 + (n >> 3) * 256
                reads.append((f"w{g}a", f"ds_read_b64_tr_b16 {vr(wb,2)}, v{VWA+(n&7)} offset:{off}"))
                reads.append((f"w{g}b", f"ds_read_b64_tr_b16 {vr(wb+2,2)}, v{VWA+(n&7)} offset:{off+2048}"))
                need = [f"w{g}b", f"x{ks}1"]
                mf = []
                for rb in range(2):
                    acc = vr(ACC + (n * 2 + rb) * 4, 4)
                    xf = vr(XF + ks * 8 + rb * 4, 4)
                    wf = vr(wb, 4)
                    if n < 5:
                        mf.append(f"v_mfma_f32_16x16x32_bf16 {acc}, {wf}, {xf}, {acc}")
                    else:
                        mf.append(f"v_mfma_f32_16x16x32_bf16 {acc}, {xf}, {wf}, {acc}")
                u_ = dict(reads=reads, need=need, mf=mf)
                if g == 10 and self.o.get("half0"):
                    u_["before"] = f"s_cmp_lg_u32 s{S_A}, 0\ns_cbranch_scc1 L_A_nb0\ns_barrier\nL_A_nb0:"
                uses.append(u_)
            return dict(uses=uses, bar=bar, virtual=virtual, head=head, tail=tail)

        adv = "s_barrier"
        pre = [f"s_add_u32 s{S_B}, s{S_B}, 1", f"s_cmp_eq_u32 s{S_B}, 3", f"s_cselect_b32 s{S_B}, 0, s{S_B}",
               f"s_cselect_b32 s{S_T0}, {(-2*A_SLOT) & 0xffffffff:#x}, s{S_C}"]
        pre += [f"v_add_u32 v{r}, s{S_T0}, v{r}" for r in range(VXA, VWA + 8)]
        tail = f"s_add_u32 s{S_A}, s{S_A}, 1\ns_cmp_lt_u32 s{S_A}, 10\ns_cbranch_scc1 L_A_loop"
        head = "L_A_loop:\n"
        bar0 = "s_barrier"
        self.uw_srd()
        if self.o.get("tw2") == 2:
            self.srd(R_M, P_WO, 640 * 1280)
            a(f"""
            v_lshlrev_b32 v252, 7, v1
            s_lshl_b32 s{S_T0}, s{S_MT}, 3
            s_add_u32 s{S_T0}, s{S_T0}, s{S_HG}
            s_lshl_b32 s{S_T0}, s{S_T0}, 2
            s_add_u32 s{S_T0}, s{S_T0}, s{S_WAVE}
            s_mul_i32 s{S_D}, s{S_T0}, {8192 if self.o.get("hW2") else 12288}
            s_add_u32 s{S_KST}, s{S_D}, 8192
            s_mul_i32 s{S_PAR}, s{S_T0}, 1664
            s_and_b32 s{S_M}, s{S_J}, 7
            s_add_u32 s{S_M}, s{S_M}, {self.o.get("tw2at", 1)}
            """)
            head += f"""
            s_cmp_lg_u32 s{S_A}, s{S_M}
            s_cbranch_scc1 L_A_nt2
            buffer_load_dword v253, v252, s[{R_W2}:{R_W2+3}], s{S_D} offen
            s_mov_b32 exec_hi, 0
            {"" if self.o.get("hW2") else f"buffer_load_dword v253, v252, s[{R_W2}:{R_W2+3}], s{S_KST} offen"}
            s_mov_b32 exec_lo, 0x1fff
            {"" if self.o.get("woLN") else f"buffer_load_dword v253, v252, s[{R_M}:{R_M+3}], s{S_PAR} offen"}
            s_mov_b64 exec, -1
            L_A_nt2:
            """
        if "promA" in self.o:
            head += f"s_cmp_lg_u32 s{S_A}, {self.o['promA']}\ns_cbranch_scc1 L_A_npr\n" + self.pf_rest_plain() + "L_A_npr:\n"
        ta2 = self.o.get("ta2")
        if ta2 == 1:
            a(self.pf_rest())
        elif ta2 == 2:
            bar0 += "\n" + self.pf_rest()
        elif ta2:
            head += f"s_cmp_lg_u32 s{S_A}, {ta2-2}\ns_cbranch_scc1 L_A_npf\n" + self.pf_rest() + "L_A_npf:\n"
        self.pipeline([mk_stage(bar0, head=head, tail=tail), dict(mk_stage(adv, virtual=True), pre=pre)], 5, 30 - 3, wait_every=self.o.get('we', 2))
        self.stamp(2, 16)
        PK, VV, ONES, KVD, ZD = 16, 36, 56, 64, 116
        a(f"""
        L_A_tail:
        s_mov_b32 s{S_K0}, {LOG2E:#x}
        s_mov_b32 s{S_K0+1}, {LOG2E:#x}
        s_mov_b32 s{S_K0+2}, {f2u(1e-6):#x}
        s_mul_i32 s{S_T0}, s{S_WAVE}, {EXCH_ST}
        s_add_u32 s{S_T0}, s{S_T0}, {EXCH}
        v_lshlrev_b32 v4, 4, v1
        v_add_u32 v4, s{S_T0}, v4
        v_and_b32 v5, 15, v1
        v_lshlrev_b32 v5, 2, v5
        v_add_u32 v5, s{S_T0}, v5
        """)
        for k in range(4):
            a(f"v_mov_b32 v{ONES+k}, 0x3f803f80")

        def phi(base, n, t):
            for i in range(0, n, 4):
                r = base + i
                a(f"v_pk_mul_f32 {vr(t,2)}, {vr(r,2)}, s[{S_K0}:{S_K0+1}]")
                a(f"v_pk_mul_f32 {vr(t+2,2)}, {vr(r+2,2)}, s[{S_K0}:{S_K0+1}]")
                for k in range(4):
                    a(f"v_exp_f32_e64 v{t+k}, v{t+k} clamp")
                for k in range(4):
                    a(f"v_max_f32 v{r+k}, s{S_K0+2}, v{r+k}")
                a(f"v_pk_add_f32 {vr(r,2)}, {vr(r,2)}, {vr(t,2)}")
                a(f"v_pk_add_f32 {vr(r+2,2)}, {vr(r+2,2)}, {vr(t+2,2)}")

        def pack(dst, src0, src1):
            a(f"v_cvt_pk_bf16_f32 v{dst}, v{src0}, v{src0+1}\nv_cvt_pk_bf16_f32 v{dst+1}, v{src0+2}, v{src0+3}")
            if src1 is None:
                a(f"v_mov_b32 v{dst+2}, 0\nv_mov_b32 v{dst+3}, 0")
            else:
                a(f"v_cvt_pk_bf16_f32 v{dst+2}, v{src1}, v{src1+1}\nv_cvt_pk_bf16_f32 v{dst+3}, v{src1+2}, v{src1+3}")

        for b in range(5):
            pack(VV + 4 * b, ACC + (10 + b) * 8, ACC + (10 + b) * 8 + 4)
        a("s_waitcnt lgkmcnt(0)")
        ZD = ACC + 80

        def writes(x):
            for y in range(5):
                if abs(x - y) <= 1:
                    a(f"ds_write_b128 v4, {vr(KVD+4*(2*x+y),4)} offset:{(2*x+y)*1024}")
            a(f"ds_write_b32 v5, v{ZD+4*x} offset:{13312+64*x}")
        phi(ACC + 40, 40, 60)
        for x in range(5):
            pack(PK + 4 * x, ACC + (5 + x) * 8, ACC + (5 + x) * 8 + 4)
        a("s_nop 1")
        for x in range(5):
            for y in range(5):
                if abs(x - y) <= 1:
                    a(f"v_mfma_f32_16x16x32_bf16 {vr(KVD+4*(2*x+y),4)}, {vr(PK+4*x,4)}, {vr(VV+4*y,4)}, 0")
            a(f"v_mfma_f32_16x16x32_bf16 {vr(ZD+4*x,4)}, {vr(ONES,4)}, {vr(PK+4*x,4)}, 0")
            if x >= 3:
                writes(x - 3)
        for x in range(2, 5):
            writes(x)
        self.stamp(10, 40)
        a("s_waitcnt lgkmcnt(0)\ns_barrier")
        self.stamp(11, 40)
        self.a_reduce_publish(64)
        self.stamp(12, 40)
        self.vl_setup()
        a("s_barrier")
        self.stamp(14, 40)
        self.wot_preload()
        PQ = 16
        phi(ACC, 40, 60)
        for ts in range(3):
            for rb in range(2):
                pack(PQ + (ts * 2 + rb) * 4, ACC + (2 * ts * 2 + rb) * 4, None if ts == 2 else ACC + ((2 * ts + 1) * 2 + rb) * 4)
        self.f_setup()
        a("s_barrier")
        a(f"""
        v_and_b32 v63, 15, v1
        v_lshlrev_b32 v63, 2, v63
        s_lshl_b32 s{S_T0}, s{S_MT}, 7
        s_lshl_b32 s{S_T0+1}, s{S_WAVE}, 5
        s_add_u32 s{S_T0}, s{S_T0}, s{S_T0+1}
        s_lshl_b32 s{S_T0}, s{S_T0}, 2
        s_add_u32 s{S_T0}, s{S_T0}, {G_OFF}
        buffer_load_dword v62, v63, s[{R_WS}:{R_WS+3}], s{S_T0} offen sc1
        buffer_load_dword v61, v63, s[{R_WS}:{R_WS+3}], s{S_T0} offen offset:64 sc1
        """)
        SG1, SG2 = 93, S_M
        a(f"""
        v_lshrrev_b32 v40, 4, v1
        v_cmp_gt_u32 s[{S_MSK}:{S_MSK+1}], 1, v40
        v_cmp_gt_u32 s[{S_MSK+2}:{S_MSK+3}], 2, v40
        v_cmp_gt_u32 s[{S_MSK+4}:{S_MSK+5}], 3, v40
        s_lshl_b32 s{S_T0}, s{S_MT}, 3
        s_lshl_b32 s{S_T0+1}, s{S_WAVE}, 1
        s_add_u32 s{S_T0}, s{S_T0}, s{S_T0+1}
        s_mul_i32 s{S_T0}, s{S_T0}, {GO_ST}
        s_add_u32 s{S_T0}, s{S_T0}, {GO}
        s_lshl_b32 s{SG1}, s{S_HG}, 11
        s_add_u32 s{SG1}, s{SG1}, s{S_T0}
        s_lshl_b32 s{SG2}, s{S_HG}, 9
        s_add_u32 s{SG2}, s{SG2}, s{S_T0}
        s_add_u32 s{SG2}, s{SG2}, 16384
        v_lshlrev_b32 v40, 4, v1
        v_lshlrev_b32 v41, 3, v1
        v_add_u32 v60, {KVT}, v40
        """)
        self.a_gather(64)
        a("s_waitcnt lgkmcnt(0)\ns_barrier")
        self.stamp(4, 40)
        FR = 64
        used = [11, 12, 13, 0, 2, 3, 4, 5, 7, 8, 9, 10]
        for f in used:
            a(f"ds_read_b128 {vr(FR+4*f,4)}, v60 offset:{f*1024}")
        NUM, DEN = 128, 120
        kts = {0: [0], 1: [0, 1], 2: [0, 1], 3: [1, 2], 4: [1, 2]}
        a("s_waitcnt lgkmcnt(9)")
        for ts in range(3):
            for rb in range(2):
                c = "0" if ts == 0 else vr(DEN + 4 * rb, 4)
                a(f"v_mfma_f32_16x16x32_bf16 {vr(DEN+4*rb,4)}, {vr(FR+4*(11+ts),4)}, {vr(PQ+(ts*2+rb)*4,4)}, {c}")
        a("s_waitcnt lgkmcnt(0)")
        gv = {0: 62, 1: 61}
        fill = [f"v_add_f32 v{DEN+i}, s{S_K0+2}, v{DEN+i}" for i in range(8)]
        fill += [f"v_rcp_f32 v{DEN+i}, v{DEN+i}" for i in range(8)]
        fill += [f"v_mul_f32 v{DEN+i}, v{gv[i >> 2]}, v{DEN+i}" for i in range(8)]
        nm = 0
        for rb in range(2):
            for b in range(5):
                for i, ts in enumerate(kts[b]):
                    d = vr(NUM + (rb * 5 + b) * 4, 4)
                    c = "0" if i == 0 else d
                    a(f"v_mfma_f32_16x16x32_bf16 {d}, {vr(FR+4*(2*b+ts),4)}, {vr(PQ+(ts*2+rb)*4,4)}, {c}")
                    nm += 1
                    if nm >= 7:
                        for _ in range(2):
                            if fill:
                                a(fill.pop(0))
        assert not fill
        for rb in range(2):
            d = DEN + 4 * rb
            a(f"v_cndmask_b32 v44, v{d+1}, v{d}, s[{S_MSK}:{S_MSK+1}]")
            a(f"v_cndmask_b32 v45, v{d+2}, v{d+1}, s[{S_MSK+2}:{S_MSK+3}]")
            a(f"v_cndmask_b32 v46, v{d+3}, v{d+2}, s[{S_MSK+4}:{S_MSK+5}]")
            sc = [d, 44, 45, 46, d + 3]
            for b in range(5):
                for k in range(4):
                    r = NUM + (rb * 5 + b) * 4 + k
                    a(f"v_mul_f32 v{r}, v{sc[b]}, v{r}")
            o = 16 + rb * 12
            n0 = NUM + rb * 20
            pack(o, n0, n0 + 4)
            pack(o + 4, n0 + 8, n0 + 12)
            a(f"v_cvt_pk_bf16_f32 v{o+8}, v{n0+16}, v{n0+17}\nv_cvt_pk_bf16_f32 v{o+9}, v{n0+18}, v{n0+19}")
            a(f"buffer_store_dwordx4 {vr(o,4)}, v40, s[{R_WS}:{R_WS+3}], s{SG1} offen sc1")
            a(f"buffer_store_dwordx4 {vr(o+4,4)}, v40, s[{R_WS}:{R_WS+3}], s{SG1} offen offset:1024 sc1")
            a(f"buffer_store_dwordx2 {vr(o+8,2)}, v41, s[{R_WS}:{R_WS+3}], s{SG2} offen sc1")
            if rb == 0:
                a(f"s_add_u32 s{SG1}, s{SG1}, {GO_ST}\ns_add_u32 s{SG2}, s{SG2}, {GO_ST}")
        self.stamp(5, 40)
        a("s_branch L_F_comp")

        a("L_A_loader:")
        VX, VW = 4, 8
        self.srd(R_W, P_WQKV, 640 * 3840)
        a(f"""
        s_sub_u32 s{S_D}, s{S_WAVE}, 4
        v_lshrrev_b32 v16, 3, v1
        v_lshrrev_b32 v17, 4, v1
        v_and_b32 v18, 7, v1
        v_xor_b32 v17, v17, v18
        v_lshlrev_b32 v17, 4, v17
        v_mul_u32_u24 v16, 1280, v16
        v_add_u32 v{VX}, v16, v17
        v_xor_b32 v18, 64, v{VX}
        v_add_u32 v{VX+1}, {8*1280-1024}, v18
        v_add_u32 v{VX+2}, {2*(8*1280-1024)}, v{VX}
        v_add_u32 v{VX+3}, {3*(8*1280-1024)}, v18
        s_lshl_b32 s{S_T0}, s{S_MT}, 7
        s_lshl_b32 s{S_T0+1}, s{S_D}, 5
        s_add_u32 s{S_T0}, s{S_T0}, s{S_T0+1}
        s_mul_i32 s{S_A}, s{S_T0}, 1280
        s_lshl_b32 s{S_C}, s{S_D}, 12
        """)
        def issue_x():
            a(f"s_mov_b32 m0, s{S_C}\ns_nop 0")
            for i in range(4):
                a(f"buffer_load_dwordx4 v{VX+i}, s[{R_X}:{R_X+3}], s{S_A} offen offset:{i*1024} lds")
            a(f"s_add_u32 s{S_A}, s{S_A}, 128")

        def issue_w():
            for g in range(2):
                a(f"s_add_u32 m0, s{S_C}, {A_WOFF + g*16384}\ns_add_u32 s{S_T0}, s{S_B}, {g*32*3840}")
                for i in range(4):
                    a(f"buffer_load_dwordx4 v{VW+i}, s[{R_W}:{R_W+3}], s{S_T0} offen offset:{i*1024} lds")
            a(f"s_add_u32 s{S_B}, s{S_B}, {64*3840}")

        def next_slot():
            a(f"s_add_u32 s{S_C}, s{S_C}, {A_SLOT}\ns_cmp_ge_u32 s{S_C}, {3*A_SLOT}\ns_cselect_b32 s{S_T0}, {3*A_SLOT}, 0\ns_sub_u32 s{S_C}, s{S_C}, s{S_T0}")

        issue_x()
        a(f"""
        v_lshrrev_b32 v16, 5, v1
        v_bfe_u32 v17, v1, 1, 4
        v_and_b32 v18, 1, v1
        v_lshlrev_b32 v18, 4, v18
        v_mul_u32_u24 v19, 3840, v16
        v_add_u32 v18, v18, v19
        """)
        a(f"s_and_b32 s{S_T0}, s{S_D}, 1\ns_lshl_b32 s{S_T0}, s{S_T0}, 2\nv_or_b32 v16, s{S_T0}, v16")
        for i in (0, 1):
            a(f"""
            v_or_b32 v19, {2*i}, v16
            v_xor_b32 v19, v17, v19
            v_min_u32 v19, 14, v19
            v_mul_u32_u24 v20, 13, v19
            v_lshrrev_b32 v20, 6, v20
            v_mul_u32_u24 v20, 1120, v20
            v_lshl_add_u32 v19, v19, 5, v20
            v_add_u32 v19, v19, v18
            v_add_u32 v{VW+i}, {2*i*3840 - i*1024}, v19
            v_add_u32 v{VW+i+2}, {2*(i+2)*3840 - (i+2)*1024}, v19
            """)
        a(f"""
        s_mul_i32 s{S_B}, s{S_HG}, 160
        s_mul_i32 s{S_T0}, s{S_D}, {8*3840}
        s_add_u32 s{S_B}, s{S_B}, s{S_T0}
        """)
        issue_w()
        for _ in range(2):
            next_slot()
            issue_x()
            issue_w()
        a(f"s_waitcnt lgkmcnt(0)\ns_add_u32 s{S_TAG}, s{S_TAG}, {TAG_INC:#x}")
        if self.o.get("half0"):
            a("s_waitcnt vmcnt(28)\ns_barrier")
        a("s_waitcnt vmcnt(24)\ns_barrier")
        self.stamp(1, 16)
        rotA = self.o.get("rotA")
        if rotA:
            a(f"s_lshl_b32 s{S_M}, s{S_HG}, 1\ns_add_u32 s{S_M}, s{S_M}, s{S_MT}\ns_and_b32 s{S_M}, s{S_M}, 7")
            self.perm_setup(S_M, 7, 8, S_PERM, rotA)
            a(f"s_mov_b32 s{S_KST}, s{S_A}\ns_mov_b32 s{S_PAR}, s{S_B}")
        a(f"s_mov_b32 s{S_CNT}, 1\nL_A_lloop:")
        if rotA:
            a(self.perm_next(S_B, S_PERM, 1))
            a(f"s_lshl_b32 s{S_A}, s{S_B}, 7\ns_add_u32 s{S_A}, s{S_A}, s{S_KST}\ns_mul_i32 s{S_B}, s{S_B}, {64*3840}\ns_add_u32 s{S_B}, s{S_B}, s{S_PAR}")
        a("s_waitcnt vmcnt(12)\ns_barrier")
        self.stamp(16, 16, dyn=S_CNT)
        next_slot()
        issue_x()
        issue_w()
        a(f"s_add_u32 s{S_CNT}, s{S_CNT}, 1\ns_cmp_le_u32 s{S_CNT}, 7\ns_cbranch_scc1 L_A_lloop")
        tw = 3 if self.o.get("tw2") == 1 else 0
        a(f"s_waitcnt vmcnt(12)\ns_barrier")
        if tw:
            self.w2_touch()
        self.stamp(24, 16)
        self.w2_setup()
        self.a_thread_map()
        a(f"""
        s_mul_i32 s{S_T0}, s{S_DTILE}, {FS}
        s_add_u32 s{S_T0}, s{S_T0}, {F_WOT}
        v_mov_b32 v26, s{S_T0}
        v_and_b32 v27, 3, v1
        s_lshl_b32 s{S_T0}, s{S_MT}, 2
        v_add_u32 v27, s{S_T0}, v27
        v_mul_u32_u24 v27, {FS}, v27
        v_add_u32 v27, {F_LN}, v27
        v_cmp_gt_u32 vcc, 32, v1
        s_nop 1
        v_cndmask_b32 v26, v27, v26, vcc
        """)
        a(f"s_waitcnt vmcnt({tw})\ns_barrier")
        a(f"buffer_load_dword v28, v26, s[{R_WS}:{R_WS+3}], 0 offen sc1")
        self.stamp(25, 16)
        self.code_touch([("L_A_tail", 0), ("L_A_post", 0), ("L_F_comp", 0), ("L_F_comp", 1)])
        a("L_A_post:")
        eA = self.o.get("eA", 2)
        early = [3, 4, 5, 0, 1, 2]
        nE = self.o.get("nE", 6)
        sk = self.if_wave56()
        for p in early[:eA]:
            self.w2_issue_at(p)
        a(f"{sk}:\ns_barrier")
        self.stamp(26, 16)
        sk = self.if_wave56()
        for p in early[eA:nE]:
            self.w2_issue_at(p)
        a(f"{sk}:")
        a(f"s_cmp_eq_u32 s{S_WAVE}, 7\ns_cbranch_scc1 L_A_poller")
        a("s_barrier")
        self.a_reduce_publish(64)
        self.stamp(15, 40)
        a("s_barrier")
        self.kvt_zero()
        skip = self.if_wave56()
        for p in early[nE:] + [6, 7]:
            self.w2_issue_at(p)
        a(f"s_mov_b32 s{S_PERM}, s{S_PERM+1}")
        a("s_barrier")
        self.a_gather(64)
        a("s_waitcnt lgkmcnt(0)\ns_barrier")
        a("s_branch L_F_loader")
        a(f"{skip}:\ns_barrier")
        self.a_gather(64)
        a("s_waitcnt lgkmcnt(0)\ns_barrier")
        a("s_branch L_F_u4")
        a("L_A_poller:")
        a(f"s_waitcnt vmcnt(0)\nv_cmp_ne_u32 vcc, s{S_TAG}, v28\ns_nop 1\ns_cmp_eq_u64 vcc, 0\ns_cbranch_scc1 L_A_pok")
        self.poll([26], 18)
        a("L_A_pok:")
        self.stamp(13, 16)
        a("s_barrier\ns_barrier")
        self.kvt_zero()
        self.stamp(3, 16)
        a("s_barrier\ns_barrier")
        a("s_branch L_F_poller")
        self.a_gather_body(64)

    def code_touch(self, ranges):
        a = self.a
        if not self.o.get("ctouch"):
            return 0
        lab, ref = a.label("nct"), a.label("pc")
        a(f"s_cmp_lg_u32 s{S_WAVE}, 7\ns_cbranch_scc1 {lab}\ns_getpc_b64 s[{S_T0}:{S_T0+1}]\n{ref}:\nv_lshlrev_b32 v24, 7, v1")
        for (start, k) in ranges:
            a(f"s_add_u32 s{S_T0+2}, s{S_T0}, {start}-{ref}+{k*8192}\ns_addc_u32 s{S_T0+3}, s{S_T0+1}, {'-1' if start == 'L_A_tail' else '0'}")
            a(f"v_min_u32 v25, L_exit-{start}-{k*8192}, v24\nglobal_load_dword v253, v25, s[{S_T0+2}:{S_T0+3}]")
        a(f"{lab}:")
        return len(ranges)

    def kvt_zero(self):
        a = self.a
        a(f"v_lshlrev_b32 v16, 4, v1\ns_lshl_b32 s{S_T0}, s{S_D}, 12\ns_add_u32 s{S_T0}, s{S_T0}, {KVT}\nv_add_u32 v16, s{S_T0}, v16")
        a("v_mov_b32 v20, 0\nv_mov_b32 v21, 0\nv_mov_b32 v22, 0\nv_mov_b32 v23, 0")
        for i in range(4):
            a(f"ds_write_b128 v16, v[20:23] offset:{i*1024}")
        a("s_waitcnt lgkmcnt(0)")

    def start_prefetch(self):
        a = self.a
        self.srd(R_W, P_WQKV, 640 * 3840)
        a(f"""
        s_lshl_b32 s{S_T0}, s{S_J}, 2
        s_add_u32 s{S_T0}, s{S_T0}, s{S_WAVE}
        v_lshrrev_b32 v16, 2, v1
        v_and_b32 v17, 3, v1
        v_mul_u32_u24 v16, 1280, v16
        v_lshl_add_u32 v16, v17, 7, v16
        s_lshr_b32 s{S_T0+2}, s{S_MT}, 3
        s_lshl_b32 s{S_T0+2}, s{S_T0+2}, 7
        s_add_u32 s{S_T0+2}, s{S_T0+2}, s{S_T0}
        s_mul_i32 s{S_DT}, s{S_T0+2}, {8*1280}
        v_lshrrev_b32 v19, 4, v1
        v_and_b32 v17, 15, v1
        v_min_u32 v17, 14, v17
        v_mul_u32_u24 v18, 13, v17
        v_lshrrev_b32 v18, 6, v18
        v_mul_u32_u24 v18, 640, v18
        v_lshl_add_u32 v18, v17, 7, v18
        v_mul_u32_u24 v19, 3840, v19
        v_add_u32 v112, v18, v19
        s_lshr_b32 s{S_T0+2}, s{S_HG}, 2
        s_mul_i32 s{S_T0+2}, s{S_T0+2}, 640
        s_mul_i32 s{S_FT}, s{S_T0}, {2*3840}
        s_add_u32 s{S_FT}, s{S_FT}, s{S_T0+2}
        """)
        if self.o.get("ta1"):
            a(f"""
            s_mov_b32 exec_hi, 0
            buffer_load_dword v253, v112, s[{R_W}:{R_W+3}], s{S_FT} offen {self.nt('nta')}
            buffer_load_dword v253, v16, s[{R_X}:{R_X+3}], s{S_DT} offen {self.nt('ntax')}
            s_mov_b32 exec_hi, -1
            """)
        a(f"""
        s_mul_i32 s{S_FT}, s{S_T0}, {3*3840}
        s_add_u32 s{S_FT}, s{S_FT}, s{S_T0+2}
        s_add_u32 s{S_FT}, s{S_FT}, {256*3840}
        v_lshrrev_b32 v16, 3, v1
        v_and_b32 v17, 7, v1
        v_min_u32 v17, 5, v17
        v_mul_u32_u24 v16, 1280, v16
        v_lshl_add_u32 v113, v17, 7, v16
        s_add_u32 s{S_DT}, s{S_DT}, 512
        """)

    def pf_rest_plain(self):
        return f"""s_waitcnt vmcnt(0)
        s_mov_b32 exec_hi, 0xffff
        buffer_load_dword v253, v112, s[{R_W}:{R_W+3}], s{S_FT} offen
        s_mov_b32 exec_hi, -1
        buffer_load_dword v253, v113, s[{R_X}:{R_X+3}], s{S_DT} offen
        """

    def pf_rest(self):
        return f"""s_mov_b32 exec_hi, 0xffff
        buffer_load_dword v253, v112, s[{R_W}:{R_W+3}], s{S_FT} offen {self.nt('nta')}
        s_mov_b32 exec_hi, -1
        buffer_load_dword v253, v113, s[{R_X}:{R_X+3}], s{S_DT} offen {self.nt('ntax')}
        """

    def w2_touch(self):
        a = self.a
        self.srd(R_W2, P_W2, 1536 * 4096)
        a(f"""
        v_lshlrev_b32 v48, 7, v1
        s_lshl_b32 s{S_T0}, s{S_MT}, 3
        s_add_u32 s{S_T0}, s{S_T0}, s{S_HG}
        s_lshl_b32 s{S_T0}, s{S_T0}, 2
        s_add_u32 s{S_T0}, s{S_T0}, s{S_D}
        s_mul_i32 s{S_T0}, s{S_T0}, 12288
        buffer_load_dword v253, v48, s[{R_W2}:{R_W2+3}], s{S_T0} offen
        s_add_u32 s{S_T0}, s{S_T0}, 8192
        s_mov_b32 exec_hi, 0
        buffer_load_dword v253, v48, s[{R_W2}:{R_W2+3}], s{S_T0} offen
        """)
        self.srd(R_P, P_WO, 640 * 1280)
        a(f"""
        s_lshl_b32 s{S_T0}, s{S_MT}, 3
        s_add_u32 s{S_T0}, s{S_T0}, s{S_HG}
        s_lshl_b32 s{S_T0}, s{S_T0}, 2
        s_add_u32 s{S_T0}, s{S_T0}, s{S_D}
        s_mul_i32 s{S_T0}, s{S_T0}, 1664
        s_mov_b32 exec_lo, 0x1fff
        buffer_load_dword v253, v48, s[{R_P}:{R_P+3}], s{S_T0} offen
        s_mov_b64 exec, -1
        """)

    def tlb_warm(self):
        a = self.a
        mode = self.o["tlb"]
        wv = self.o.get("tlbw", 3)
        a(f"s_cmp_lg_u32 s{S_WAVE}, {wv}\ns_cbranch_scc1 L_notlb")
        self.srd(R_OUT, P_OUT, 2048 * 1280)
        self.srd(R_M, P_B2, 4096)
        self.srd(R_P, P_WO, 640 * 1280)
        self.srd(R_W, P_W1, 2048 * 3072)
        if mode == 1:
            a("v_lshlrev_b32 v4, 20, v1\nv_min_u32 v4, 0xf00000, v4\ns_mov_b64 exec, 0xffff")
            so = "0"
        else:
            a(f"v_lshlrev_b32 v4, 21, v1\ns_lshl_b32 s{S_T0}, s{S_J}, 16\ns_mov_b64 exec, 0x1f")
            so = f"s{S_T0}"
        for r in (R_WS, R_W2, R_OUT, R_W, R_P, R_M):
            a(f"buffer_load_dword v253, v4, s[{r}:{r+3}], {so} offen sc1")
        a("s_mov_b64 exec, -1\nL_notlb:")

    def code_prefetch(self):
        a = self.a
        a(f"""
        s_cmp_lg_u32 s{S_WAVE}, 3
        s_cbranch_scc1 L_nocpf
        s_cmp_ge_u32 s{S_J}, 5
        s_cbranch_scc1 L_nocpf
        s_getpc_b64 s[{S_T0}:{S_T0+1}]
        L_pcref:
        s_lshl_b32 s{S_T0+2}, s{S_J}, 13
        v_lshlrev_b32 v4, 7, v1
        v_add_u32 v4, s{S_T0+2}, v4
        v_min_u32 v4, L_end-L_pcref, v4
        global_load_dword v253, v4, s[{S_T0}:{S_T0+1}]
        L_nocpf:
        """)

    def a_thread_map(self):
        a = self.a
        a(f"""
        v_mul_u32_u24 v16, 625, v0
        v_lshrrev_b32 v16, 16, v16
        v_mul_u32_u24 v17, 105, v16
        v_sub_u32 v17, v0, v17
        v_mul_u32_u24 v19, 205, v17
        v_lshrrev_b32 v19, 12, v19
        v_mul_u32_u24 v18, 20, v19
        v_cmp_lt_u32 vcc, 99, v17
        v_sub_u32 v18, v17, v18
        s_nop 0
        v_cndmask_b32 v19, v19, v18, vcc
        v_mad_u32_u24 v19, v16, 5, v19
        v_mad_u32_u24 v20, v16, 20, v18
        v_lshrrev_b32 v21, 2, v19
        v_and_b32 v22, 3, v19
        v_lshrrev_b32 v23, 4, v20
        v_and_b32 v20, 15, v20
        v_lshl_add_u32 v20, v22, 4, v20
        v_lshl_add_u32 v2, v21, 1, v23
        v_lshlrev_b32 v2, 6, v2
        v_add_u32 v2, v2, v20
        v_lshlrev_b32 v2, 4, v2
        v_lshlrev_b32 v3, 4, v19
        v_add_u32 v3, 13312, v3
        v_cmp_lt_u32 vcc, 99, v17
        v_lshrrev_b32 v24, 1, v21
        v_and_b32 v21, 1, v21
        v_cndmask_b32 v2, v2, v3, vcc
        v_lshl_add_u32 v3, v23, 1, v24
        v_add_u32 v24, 11, v24
        v_lshl_add_u32 v22, v22, 4, v16
        v_cndmask_b32 v3, v3, v24, vcc
        v_cndmask_b32 v20, v20, v22, vcc
        v_lshl_add_u32 v3, v3, 6, v20
        v_lshlrev_b32 v3, 4, v3
        v_lshl_add_u32 v3, v21, 3, v3
        v_add_u32 v3, {KVT}, v3
        v_mov_b32 v25, 2
        v_cndmask_b32 v25, 1, v25, vcc
        v_mov_b32 v16, 420
        v_cmp_gt_u32 vcc, v16, v0
        v_lshlrev_b32 v14, 4, v0
        s_nop 0
        v_cndmask_b32 v15, 0, v25, vcc
        v_cndmask_b32 v2, 0, v2, vcc
        v_add_u32 v2, {EXCH}, v2
        """)

    def a_reduce_publish(self, T):
        a = self.a
        for w in range(4):
            a(f"ds_read_b128 {vr(T+4*w,4)}, v2 offset:{w*EXCH_ST}")
        a(f"""
        s_lshl_b32 s{S_T0}, s{S_HG}, 4
        s_add_u32 s{S_T0}, s{S_T0}, s{S_MT}
        s_mul_i32 s{S_T0}, s{S_T0}, {KVP_ST}
        s_add_u32 s{S_T0}, s{S_T0}, {KVP}
        v_cmp_ne_u32 vcc, 0, v15
        s_waitcnt lgkmcnt(0)
        v_pk_add_f32 {vr(T,2)}, {vr(T,2)}, {vr(T+4,2)}
        v_pk_add_f32 {vr(T+2,2)}, {vr(T+2,2)}, {vr(T+6,2)}
        v_pk_add_f32 {vr(T+8,2)}, {vr(T+8,2)}, {vr(T+12,2)}
        v_pk_add_f32 {vr(T+10,2)}, {vr(T+10,2)}, {vr(T+14,2)}
        v_pk_add_f32 {vr(T,2)}, {vr(T,2)}, {vr(T+8,2)}
        v_pk_add_f32 {vr(T+2,2)}, {vr(T+2,2)}, {vr(T+10,2)}
        v_mov_b32_sdwa v{T}, s{S_TAG} dst_sel:BYTE_0 dst_unused:UNUSED_PRESERVE src0_sel:BYTE_0
        v_mov_b32_sdwa v{T+1}, s{S_TAG} dst_sel:BYTE_0 dst_unused:UNUSED_PRESERVE src0_sel:BYTE_1
        v_mov_b32_sdwa v{T+2}, s{S_TAG} dst_sel:BYTE_0 dst_unused:UNUSED_PRESERVE src0_sel:BYTE_2
        v_mov_b32_sdwa v{T+3}, s{S_TAG} dst_sel:BYTE_0 dst_unused:UNUSED_PRESERVE src0_sel:BYTE_3
        s_mov_b64 exec, vcc
        buffer_store_dwordx4 {vr(T,4)}, v14, s[{R_WS}:{R_WS+3}], s{S_T0} offen sc1
        s_mov_b64 exec, -1
        """)

    S_RET = 68

    def a_gather(self, T):
        self.a(f"s_call_b64 s[{self.S_RET}:{self.S_RET+1}], L_gather")

    def a_gather_body(self, T):
        a = self.a
        MK = S_T0 + 4
        a("L_gather:")
        a(f"s_mul_i32 s{S_T0+1}, s{S_HG}, {16*KVP_ST}\ns_add_u32 s{S_T0+1}, s{S_T0+1}, {KVP}")
        a(f"v_cmp_ne_u32 s[{MK}:{MK+1}], 0, v15\ns_mov_b32 s{S_CNT}, 0\ns_lshl_b32 s{S_T0+2}, s{S_MT}, 1\ns_mov_b64 exec, s[{MK}:{MK+1}]")

        def pair(m):
            a(f"s_add_u32 s{S_T0}, s{S_T0+2}, {m}\ns_and_b32 s{S_T0}, s{S_T0}, 15\ns_mul_i32 s{S_T0}, s{S_T0}, {KVP_ST}\ns_add_u32 s{S_T0}, s{S_T0}, s{S_T0+1}")
            a(f"buffer_load_dwordx4 {vr(T+4*m,4)}, v14, s[{R_WS}:{R_WS+3}], s{S_T0} offen sc1\ns_add_u32 s{S_T0}, s{S_T0}, {KVP_ST}")
            a(f"buffer_load_dwordx4 {vr(T+4*m+4,4)}, v14, s[{R_WS}:{R_WS+3}], s{S_T0} offen sc1")
        for m in range(0, 16, 2):
            pair(m)
        for m in range(0, 16, 2):
            a(f"s_waitcnt vmcnt({14-m})\nL_gchk{m}:")
            for q in range(8):
                a(f"v_cmpx_eq_u32_sdwa vcc, v{T+4*m+q}, s{S_TAG} src0_sel:BYTE_0 src1_sel:BYTE_{q & 3}")
            a(f"""
            s_add_u32 s{S_CNT}, s{S_CNT}, 1
            s_cmp_eq_u64 exec, s[{MK}:{MK+1}]
            s_mov_b64 exec, s[{MK}:{MK+1}]
            s_cbranch_scc1 L_gok{m}
            s_cmp_ge_u32 s{S_CNT}, {SPIN_LIMIT}
            s_cbranch_scc1 L_gok{m}
            """)
            pair(m)
            a(f"s_waitcnt vmcnt(0)\ns_branch L_gchk{m}\nL_gok{m}:")
            for q in range(8):
                a(f"v_and_b32 v{T+4*m+q}, 0xffffff00, v{T+4*m+q}")
            for h in (0, 2):
                a(f"v_pk_add_f32 {vr(T+4*m+h,2)}, {vr(T+4*m+h,2)}, {vr(T+4*(m+1)+h,2)}")
            if m >= 2:
                for h in (0, 2):
                    a(f"v_pk_add_f32 {vr(T+h,2)}, {vr(T+h,2)}, {vr(T+4*m+h,2)}")
        a("s_mov_b64 exec, -1")
        a(f"""
        v_cvt_pk_bf16_f32 v{T}, v{T}, v{T+1}
        v_cvt_pk_bf16_f32 v{T+1}, v{T+2}, v{T+3}
        v_cmp_ne_u32 vcc, 0, v15
        v_cmp_eq_u32 s[{S_T0}:{S_T0+1}], 2, v15
        s_nop 1
        s_mov_b64 exec, vcc
        ds_write_b64 v3, {vr(T,2)}
        s_mov_b64 exec, s[{S_T0}:{S_T0+1}]
        ds_write_b64 v3, {vr(T,2)} offset:64
        ds_write_b64 v3, {vr(T,2)} offset:128
        ds_write_b64 v3, {vr(T,2)} offset:192
        s_mov_b64 exec, -1
        s_setpc_b64 s[{self.S_RET}:{self.S_RET+1}]
        """)

    def role_b(self):
        a = self.a
        a(f"L_roleB:\ns_mov_b32 s{S_FROMA}, 0")
        XR, B1R, GR, XS = 16, 36, 64, 84
        VPF = 8
        a(f"s_cmp_ge_u32 s{S_J}, 16\ns_cbranch_scc1 L_B_pfrole")
        a(f"""
        s_lshl_b32 s{S_KST}, s{S_XCD}, 4
        s_add_u32 s{S_KST}, s{S_KST}, s{S_J}
        s_lshl_b32 s{S_T0}, s{S_KST}, 3
        s_add_u32 s{S_T0}, s{S_T0}, s{S_WAVE}
        s_mul_i32 s{S_T0}, s{S_T0}, {4*1280}
        v_lshrrev_b32 v2, 4, v1
        v_and_b32 v3, 15, v1
        v_lshlrev_b32 v3, 4, v3
        v_mul_u32_u24 v4, 1280, v2
        v_add_u32 v4, v4, v3
        """)
        for c in ((2, 3, 4, 0, 1) if self.o.get("xord") else range(5)):
            a(f"buffer_load_dwordx4 {vr(XR+4*c,4)}, v4, s[{R_X}:{R_X+3}], s{S_T0} offen offset:{c*256} {self.nt('ntx')}")
        self.srd(R_M, P_GATE, 1280)
        for c in range(5):
            a(f"buffer_load_dwordx4 {vr(GR+4*c,4)}, v3, s[{R_M}:{R_M+3}], 0 offen offset:{c*256}")

        def common_setup():
            a(f"""
            s_mul_i32 s{S_M}, s{S_J}, 205
            s_lshr_b32 s{S_M}, s{S_M}, 10
            s_mul_i32 s{S_DT}, s{S_M}, 5
            s_sub_u32 s{S_DT}, s{S_J}, s{S_DT}
            s_mul_i32 s{S_FT}, s{S_XCD}, 6
            s_add_u32 s{S_FT}, s{S_FT}, s{S_M}
            """)
            self.srd(R_OUT, P_B1, 3072)
            a(f"v_lshrrev_b32 v5, 4, v1\nv_lshlrev_b32 v5, 3, v5\ns_lshl_b32 s{S_T0}, s{S_FT}, 7")
            for b in range(4):
                a(f"buffer_load_dwordx2 {vr(B1R+2*b,2)}, v5, s[{R_OUT}:{R_OUT+3}], s{S_T0} offen offset:{b*32}")
            a(f"""
            v_lshrrev_b32 v12, 3, v1
            v_lshrrev_b32 v13, 4, v1
            v_lshlrev_b32 v13, 1, v13
            v_and_b32 v14, 7, v1
            v_xor_b32 v13, v13, v14
            v_lshlrev_b32 v13, 4, v13
            v_mul_u32_u24 v12, 3072, v12
            v_add_u32 v{VPF}, v12, v13
            v_add_u32 v{VPF+1}, {8*3072-1024}, v{VPF}
            v_add_u32 v{VPF+2}, {2*(8*3072-1024)}, v{VPF}
            v_add_u32 v{VPF+3}, {3*(8*3072-1024)}, v{VPF}
            """)
            self.perm_setup(S_M, 16, 6, S_PERM, self.o.get("rotB"))
            a(f"""
            s_and_b32 s{S_T0}, s{S_WAVE}, 3
            s_lshl_b32 s{S_B}, s{S_T0}, 12
            s_mul_i32 s{S_A}, s{S_T0}, {32*3072}
            s_lshl_b32 s{S_T0}, s{S_FT}, 7
            s_add_u32 s{S_A}, s{S_A}, s{S_T0}
            """)

        def w1_at(p):
            a(f"s_bfe_u32 s{S_T0}, s{S_PERM}, {(4 << 16) | (4 * p):#x}\ns_mul_i32 s{S_T0}, s{S_T0}, {128*3072}")
            a(f"s_add_u32 m0, s{S_B}, {p*16384}\ns_add_u32 s{S_T0}, s{S_T0}, s{S_A}")
            for i in range(4):
                a(f"buffer_load_dwordx4 v{VPF+i}, s[{R_W}:{R_W+3}], s{S_T0} offen offset:{i*1024} lds")
        early = [3, 4, 5, 6, 7][:self.o.get("early", 0)]

        def wq_touch():
            self.srd(R_M, P_WQKV, 640 * 3840)
            a(f"""
            v_lshlrev_b32 v6, 7, v1
            s_mul_i32 s{S_T0+1}, s{S_T0+1}, 2880
            s_add_u32 s{S_T0+1}, s{S_T0+1}, {256*3840}
            s_mov_b64 exec, 0xffffff
            buffer_load_dword v253, v6, s[{R_M}:{R_M+3}], s{S_T0+1} offen
            s_mov_b64 exec, -1
            """)

        self.srd(R_W, P_W1, 2048 * 3072)
        common_setup()
        a("v_mov_b32 v124, 0\nv_mov_b32 v125, 0\nv_mov_b32 v126, 0x3f803f80\ns_waitcnt vmcnt(4)")
        self.stamp(11, 44)
        if early:
            a(f"s_cmp_lt_u32 s{S_WAVE}, 4\ns_cbranch_scc1 L_B_noearly")
            for p in early:
                w1_at(p)
            a("L_B_noearly:")
        for c in range(20):
            a(f"v_dot2c_f32_bf16 v124, v{XR+c}, v126\nv_lshlrev_b32 v{XS+2*c}, 16, v{XR+c}")
            a(f"v_dot2c_f32_bf16 v125, v{XR+c}, v{GR+c}\nv_and_b32 v{XS+2*c+1}, 0xffff0000, v{XR+c}")
        a("s_nop 1")

        def reduce16(regs):
            for mode in ("quad_perm:[1,0,3,2]", "quad_perm:[2,3,0,1]", "row_half_mirror", "row_mirror"):
                for r in regs:
                    a(f"v_add_f32_dpp v{r}, v{r}, v{r} {mode} row_mask:0xf bank_mask:0xf")
                a("s_nop 1" if len(regs) == 1 else "s_nop 0")

        reduce16([124, 125])
        a(f"""
        v_mul_f32 v126, {f2u(-1.0/640):#x}, v124
        v_mul_f32 v127, {f2u(-1.0/640):#x}, v124
        v_mul_f32 v125, {f2u(-1.4426950408889634):#x}, v125
        v_mov_b32 v128, 0
        v_mov_b32 v129, 0
        v_mov_b32 v130, 0
        v_mov_b32 v131, 0
        v_mov_b32 v132, 0
        v_mov_b32 v133, 0
        v_mov_b32 v134, 0
        v_mov_b32 v135, 0
        v_exp_f32 v125, v125
        """)
        for c in range(20):
            a(f"v_pk_add_f32 {vr(XS+2*c,2)}, {vr(XS+2*c,2)}, v[126:127]")
        a("v_add_f32 v125, 1.0, v125\nv_rcp_f32 v125, v125")
        for c in range(20):
            t = 128 + 2 * (c & 3)
            a(f"v_pk_fma_f32 {vr(t,2)}, {vr(XS+2*c,2)}, {vr(XS+2*c,2)}, {vr(t,2)}")
        a("v_pk_add_f32 v[128:129], v[128:129], v[130:131]\nv_pk_add_f32 v[132:133], v[132:133], v[134:135]\nv_pk_add_f32 v[128:129], v[128:129], v[132:133]\nv_add_f32 v128, v128, v129\ns_nop 1")
        reduce16([128])
        a(f"v_mov_b32 v126, {f2u(1e-5):#x}\nv_fmac_f32 v126, {f2u(1.0/640):#x}, v128\nv_rsq_f32 v126, v126")
        a(f"""
        s_lshl_b32 s{S_T0}, s{S_WAVE}, 2
        v_add_u32 v2, s{S_T0}, v2
        v_mov_b32 v127, v126
        v_mul_u32_u24 v4, {LN_ST}, v2
        v_add_u32 v4, v4, v3
        v_lshlrev_b32 v2, 2, v2
        """)
        for c4 in range(5):
            for c in range(4 * c4, 4 * c4 + 4):
                a(f"v_pk_mul_f32 {vr(XS+2*c,2)}, {vr(XS+2*c,2)}, v[126:127]")
            for c in range(4 * c4, 4 * c4 + 4):
                a(f"v_cvt_pk_bf16_f32 v{XR+c}, v{XS+2*c}, v{XS+2*c+1}")
            a(f"ds_write_b128 v4, {vr(XR+4*c4,4)} offset:{LNBUF + c4*256}")
        a(f"ds_write_b32 v2, v125 offset:{LNG}")
        a(f"""
        v_and_b32 v12, 15, v1
        v_lshrrev_b32 v13, 4, v1
        v_lshrrev_b32 v15, 2, v12
        v_lshl_add_u32 v15, v13, 2, v15
        v_mul_u32_u24 v15, {LN_ST}, v15
        v_and_b32 v2, 3, v12
        v_lshl_add_u32 v15, v2, 3, v15
        s_mul_i32 s{S_T0}, s{S_WAVE}, 160
        v_add_u32 v15, s{S_T0}, v15
        v_lshlrev_b32 v14, 4, v1
        v_lshlrev_b32 v2, 2, v1
        s_mul_i32 s{S_T0}, s{S_WAVE}, {5*65536}
        s_lshl_b32 s{S_T0+1}, s{S_KST}, 10
        s_add_u32 s{S_T0}, s{S_T0}, s{S_T0+1}
        s_add_u32 s{S_T0}, s{S_T0}, {HT}
        s_waitcnt lgkmcnt(0)
        s_add_u32 s{S_TAG}, s{S_TAG}, {TAG_INC:#x}
        s_barrier
        """)
        self.stamp(12, 44)
        for i in range(5):
            a(f"ds_read_b64_tr_b16 {vr(44+4*i,2)}, v15 offset:{LNBUF + i*32}")
            a(f"ds_read_b64_tr_b16 {vr(46+4*i,2)}, v15 offset:{LNBUF + i*32+16*LN_ST}")
        a(f"ds_read_b32 v125, v2 offset:{LNG}")
        for i in range(5):
            a(f"s_waitcnt lgkmcnt({9-2*i})")
            a(f"buffer_store_dwordx4 {vr(44+4*i,4)}, v14, s[{R_WS}:{R_WS+3}], s{S_T0} offen sc1")
            if i < 4:
                a(f"s_add_u32 s{S_T0}, s{S_T0}, 65536")
        a(f"""
        s_cmp_lg_u32 s{S_WAVE}, 0
        s_cbranch_scc1 L_B_nog
        s_lshl_b32 s{S_T0}, s{S_KST}, 7
        s_add_u32 s{S_T0}, s{S_T0}, {G_OFF}
        s_waitcnt lgkmcnt(0)
        s_mov_b32 exec_hi, 0
        buffer_store_dword v125, v2, s[{R_WS}:{R_WS+3}], s{S_T0} offen sc1
        s_mov_b32 exec_hi, -1
        L_B_nog:
        s_waitcnt vmcnt(0) lgkmcnt(0)
        s_barrier
        s_cmp_lg_u32 s{S_WAVE}, 0
        s_cbranch_scc1 L_B_nofl
        s_mul_i32 s{S_T0}, s{S_KST}, {FS}
        s_add_u32 s{S_T0}, s{S_T0}, {F_LN}
        """)
        self.flag_store(S_T0, 12)
        self.stamp(1, 12)
        a("L_B_nofl:")
        if self.o.get("woLN"):
            self.srd(R_M, P_WO, 640 * 1280)
            a(f"""
            s_lshl_b32 s{S_T0+1}, s{S_KST}, 3
            s_add_u32 s{S_T0+1}, s{S_T0+1}, s{S_WAVE}
            s_mul_i32 s{S_T0+1}, s{S_T0+1}, 1664
            v_lshlrev_b32 v6, 7, v1
            s_mov_b64 exec, 0x1fff
            buffer_load_dword v253, v6, s[{R_M}:{R_M+3}], s{S_T0+1} offen
            s_mov_b64 exec, -1
            """)
            nl = self.o.get("w2LN", 0)
            if nl:
                a(f"""
                s_lshl_b32 s{S_T0+1}, s{S_KST}, 3
                s_add_u32 s{S_T0+1}, s{S_T0+1}, s{S_WAVE}
                s_mul_i32 s{S_T0+1}, s{S_T0+1}, {1024*nl}
                s_add_u32 s{S_T0+1}, s{S_T0+1}, {1024*4096}
                s_mov_b32 exec_hi, 0
                s_mov_b32 exec_lo, {(1 << (8*nl)) - 1:#x}
                buffer_load_dword v253, v6, s[{R_W2}:{R_W2+3}], s{S_T0+1} offen
                s_mov_b64 exec, -1
                """)
        if self.o.get("wq") == 1:
            a(f"s_lshl_b32 s{S_T0+1}, s{S_KST}, 3\ns_add_u32 s{S_T0+1}, s{S_T0+1}, s{S_WAVE}")
            wq_touch()
        if self.o.get("wq") == 3:
            a(f"""
            s_lshl_b32 s{S_T0}, s{S_J}, 3
            s_add_u32 s{S_T0}, s{S_T0}, s{S_WAVE}
            s_add_u32 s{S_T0}, s{S_T0}, 128
            v_lshrrev_b32 v6, 3, v1
            v_and_b32 v7, 7, v1
            v_min_u32 v7, 5, v7
            v_mul_u32_u24 v6, 3072, v6
            v_lshl_add_u32 v7, v7, 7, v6
            s_mul_i32 s{S_T0}, s{S_T0}, {8*3072}
            s_mul_i32 s{S_T0+2}, s{S_XCD}, 768
            s_add_u32 s{S_T0}, s{S_T0}, s{S_T0+2}
            buffer_load_dword v253, v7, s[{R_W}:{R_W+3}], s{S_T0} offen {self.nt('ntw1')}
            """)
        a("s_branch L_B_join")
        a("L_B_pfrole:")
        self.srd(R_W, P_W1, 2048 * 3072)
        if self.o.get("pfdelay"):
            common_setup()
            a("s_waitcnt vmcnt(0)")
        wq = self.o.get("wq", 0)
        xh = self.o.get("xhelp", 0)
        if xh:
            self.srd(R_M, P_GATE, 1280)
            a(f"""
            s_cmp_ge_u32 s{S_WAVE}, {xh}
            s_cbranch_scc1 L_B_noxh
            s_lshl_b32 s{S_T0}, s{S_XCD}, 4
            s_add_u32 s{S_T0}, s{S_T0}, s{S_J}
            s_sub_u32 s{S_T0}, s{S_T0}, 16
            s_mul_i32 s{S_T0}, s{S_T0}, {32*1280}
            s_lshl_b32 s{S_T0+1}, s{S_WAVE}, 8
            s_sub_u32 s{S_T0}, s{S_T0}, s{S_T0+1}
            s_add_u32 s{S_T0}, s{S_T0}, 1024
            v_lshrrev_b32 v6, 1, v1
            v_and_b32 v7, 1, v1
            v_mul_u32_u24 v6, 1280, v6
            v_lshl_add_u32 v6, v7, 7, v6
            buffer_load_dword v253, v6, s[{R_X}:{R_X+3}], s{S_T0} offen
            v_lshlrev_b32 v6, 7, v1
            L_B_noxh:
            s_cmp_lg_u32 s{S_WAVE}, 7
            s_cbranch_scc1 L_B_noxg
            v_lshlrev_b32 v6, 7, v1
            buffer_load_dword v253, v6, s[{R_M}:{R_M+3}], 0 offen
            L_B_noxg:
            """)
        a(f"""
        s_sub_u32 s{S_T0}, s{S_J}, 16
        s_lshl_b32 s{S_T0}, s{S_T0}, 3
        s_add_u32 s{S_T0}, s{S_T0}, s{S_WAVE}
        s_lshl_b32 s{S_T0+1}, s{S_XCD}, 7
        s_add_u32 s{S_T0+1}, s{S_T0+1}, s{S_T0}
        v_lshrrev_b32 v6, 3, v1
        v_and_b32 v7, 7, v1
        v_min_u32 v7, 5, v7
        v_mul_u32_u24 v6, 3072, v6
        v_lshl_add_u32 v7, v7, 7, v6
        s_mul_i32 s{S_T0}, s{S_T0}, {8*3072}
        s_mul_i32 s{S_T0+2}, s{S_XCD}, 768
        s_add_u32 s{S_T0}, s{S_T0}, s{S_T0+2}
        buffer_load_dword v253, v7, s[{R_W}:{R_W+3}], s{S_T0} offen {self.nt('ntw1')}
        """)
        if wq in (0, 3):
            wq_touch()
        if wq != 3:
            a(f"""
            s_add_u32 s{S_T0}, s{S_T0}, {1024*3072}
            buffer_load_dword v253, v7, s[{R_W}:{R_W+3}], s{S_T0} offen {self.nt('ntw1b')}
            """)
        if self.o.get("promote"):
            k_ = 1 if wq != 3 else 0
            a(f"""
            s_sub_u32 s{S_T0+1}, s{S_T0}, {1024*3072*k_}
            s_waitcnt vmcnt({k_ + (1 if wq in (0, 3) else 0)})
            buffer_load_dword v253, v7, s[{R_W}:{R_W+3}], s{S_T0+1} offen
            """)
            if self.o.get("ntw1b"):
                a(f"s_waitcnt vmcnt(1)\nbuffer_load_dword v253, v7, s[{R_W}:{R_W+3}], s{S_T0} offen")
        if not self.o.get("pfdelay"):
            common_setup()
        self.stamp(15, 12)
        a(f"s_waitcnt lgkmcnt(0)\ns_add_u32 s{S_TAG}, s{S_TAG}, {TAG_INC:#x}")
        a(f"s_cmp_ge_u32 s{S_J}, 30\ns_cbranch_scc1 L_helper")
        N1 = self.o.get("n1", 8)
        NREG = self.o.get("nreg", 0)
        assert NREG == 0 or N1 == 8

        def w1_issue():
            t = self.perm_next(S_T0, S_PERM, 128 * 3072)
            t += f"s_mov_b32 m0, s{S_B}\ns_add_u32 s{S_T0}, s{S_T0}, s{S_A}\n"
            for i in range(4):
                t += f"buffer_load_dwordx4 v{VPF+i}, s[{R_W}:{R_W+3}], s{S_T0} offen offset:{i*1024} lds\n"
            t += f"s_add_u32 s{S_B}, s{S_B}, 16384\n"
            return t
        assert N1 == 8 and NREG == 0
        a(f"L_B_join:\ns_cmp_lt_u32 s{S_WAVE}, 4\ns_cbranch_scc1 L_B_comp0")
        for p in range(8):
            if early and p == early[0]:
                a(f"s_cmp_lt_u32 s{S_J}, 16\ns_cbranch_scc1 L_B_skipearly")
            w1_at(p)
            if early and p == early[-1]:
                a("L_B_skipearly:")
        a(f"s_mov_b32 s{S_PERM}, s{S_PERM+1}")
        a("s_branch L_B_aux\nL_B_comp0:")
        BF = 16
        GX = 131072
        split = self.o.get("gsplit")

        def gelu_setup(dblk_off):
            c = 0.7978845608028654
            k0 = -2.0 * c * 1.4426950408889634
            k1 = k0 * 0.044715
            a(f"""
            s_mov_b32 s{S_K0}, {f2u(k1):#x}
            s_mov_b32 s{S_K0+1}, {f2u(k1):#x}
            v_mov_b32 v44, {f2u(k0):#x}
            v_mov_b32 v45, {f2u(k0):#x}
            v_mov_b32 v46, 1.0
            v_mov_b32 v47, 1.0
            s_lshl_b32 s{S_K0+2}, s{S_DT}, 3
            s_lshl_b32 s{S_T0+1}, s{S_WAVE}, 1
            s_add_u32 s{S_K0+2}, s{S_K0+2}, s{S_T0+1}
            s_add_u32 s{S_K0+2}, s{S_K0+2}, {dblk_off & 0xffffffff:#x}
            s_mul_i32 s{S_K0+2}, s{S_K0+2}, {UW_ST}
            s_lshl_b32 s{S_T0+1}, s{S_FT}, 11
            s_add_u32 s{S_K0+2}, s{S_K0+2}, s{S_T0+1}
            s_add_u32 s{S_K0+2}, s{S_K0+2}, {UW}
            """)
            for b in range(4):
                a(f"v_lshlrev_b32 v{BF+4*b}, 16, v{B1R+2*b}\nv_and_b32 v{BF+4*b+1}, 0xffff0000, v{B1R+2*b}")
                a(f"v_lshlrev_b32 v{BF+4*b+2}, 16, v{B1R+2*b+1}\nv_and_b32 v{BF+4*b+3}, 0xffff0000, v{B1R+2*b+1}")

        def gelu_block(base, vl):
            for p in range(2):
                r = base + 8 * p
                T = 48
                for q in range(4):
                    a(f"v_pk_mul_f32 {vr(T+2*q,2)}, {vr(r+2*q,2)}, {vr(r+2*q,2)}")
                for q in range(4):
                    a(f"v_pk_fma_f32 {vr(T+2*q,2)}, {vr(T+2*q,2)}, s[{S_K0}:{S_K0+1}], v[44:45]")
                for q in range(4):
                    a(f"v_pk_mul_f32 {vr(T+2*q,2)}, {vr(T+2*q,2)}, {vr(r+2*q,2)}")
                for q in range(8):
                    a(f"v_exp_f32 v{T+q}, v{T+q}")
                for q in range(4):
                    a(f"v_pk_add_f32 {vr(T+2*q,2)}, {vr(T+2*q,2)}, v[46:47]")
                for q in range(8):
                    a(f"v_rcp_f32 v{T+q}, v{T+q}")
                for q in range(4):
                    a(f"v_pk_mul_f32 {vr(r+2*q,2)}, {vr(r+2*q,2)}, {vr(T+2*q,2)}")
                o = 56 + 4 * (p & 1)
                for q in range(4):
                    a(f"v_cvt_pk_bf16_f32 v{o+q}, v{r+2*q}, v{r+2*q+1}")
                a(f"buffer_store_dwordx4 {vr(o,4)}, v{vl}, s[{R_WS}:{R_WS+3}], s{S_K0+2} offen offset:{p*1024} sc1")

        PF, WF, ACC, VT, VL = 64, 128, 160, 8, 12
        a(f"""
        s_lshl_b32 s{S_T0}, s{S_DT}, 3
        s_lshl_b32 s{S_T0+1}, s{S_WAVE}, 1
        s_add_u32 s{S_D}, s{S_T0}, s{S_T0+1}
        s_lshl_b32 s{S_T0}, s{S_D}, 16
        s_add_u32 s{S_T0}, s{S_T0}, {HT}
        """)
        self.srd(R_P, P_WS, 65536, off_s=S_T0)
        a(f"s_add_u32 s{S_T0}, s{S_T0}, 65536")
        self.srd(R_M, P_WS, 65536, off_s=S_T0)
        a(f"v_lshlrev_b32 v{VL}, 4, v1\ns_mov_b32 s{S_B}, 0")
        a(self.perm_next(S_C, S_PERM, 4096))
        self.tr_addr(VT)
        a("s_waitcnt vmcnt(0)")
        gelu_setup(0)
        for r in range(32):
            a(f"v_mov_b32 v{ACC+r}, v{BF + (r & 15)}")
        a(f"s_lshl_b32 s{S_T0}, s{S_WAVE}, 12\ns_add_u32 s{S_T0}, s{S_T0}, {GX}\nv_add_u32 v13, s{S_T0}, v{VL}")
        a(f"s_cmp_lg_u32 s{S_WAVE}, 0\ns_cbranch_scc1 L_B_l3")
        prog = self.o.get("prog", 0)
        if prog:
            assert prog >= 4 * (4 + self.o.get("rotB", 0))
            a(f"v_min_u32 v2, {prog-1}, v1\nv_mul_u32_u24 v2, {FS}, v2\nv_add_u32 v2, {F_LN}, v2")
        else:
            a(f"v_mul_u32_u24 v2, {FS}, v1\nv_add_u32 v2, {F_LN}, v2")
        if not self.o.get("x_nopoll"):
            self.poll([2], 4)
        self.stamp(2, 4)
        a("L_B_l3:\ns_barrier")
        RP = (R_P, R_M)

        def pload(u, ks):
            if self.o.get("x_noload"):
                return "s_nop 0"
            sc = "" if self.o.get("x_nosc1") else "sc1"
            so = "0" if self.o.get("x_same") else f"s{S_C}"
            return "\n".join(f"buffer_load_dwordx4 {vr(PF+32*(u%2)+8*ks+4*d,4)}, v{VL}, s[{RP[d]}:{RP[d]+3}], {so} offen offset:{ks*1024} {sc}" for d in range(2))

        for t in range(2):
            for ks in range(4):
                a(pload(t, ks))
            a(self.perm_next(S_C, S_PERM, 4096))
            if t == 0:
                first_bar_here = len(a.L)

        def mk(u, bar, virtual=False, head=None, tail=None):
            uses = []
            for ks in range(4):
                for b in range(4):
                    g = ks * 4 + b
                    wb = WF + 4 * (g % 8)
                    off = u * 16384 + ks * 4096
                    reads = [(f"w{g}a", f"ds_read_b64_tr_b16 {vr(wb,2)}, v{VT+b} offset:{off}"),
                             (f"w{g}b", f"ds_read_b64_tr_b16 {vr(wb+2,2)}, v{VT+b} offset:{off+2048}")]
                    mf = []
                    for dd in range(2):
                        acc = vr(ACC + 16 * dd + 4 * b, 4)
                        mf.append(f"v_mfma_f32_16x16x32_bf16 {acc}, {vr(wb,4)}, {vr(PF+32*(u%2)+8*ks+4*dd,4)}, {acc}")
                    if self.o.get("x32"):
                        acc = vr(ACC + 16 * (b & 1), 16)
                        mf = [f"v_mfma_f32_32x32x16_bf16 {acc}, {vr(wb,4)}, {vr(PF+32*(u%2)+8*ks+4*(b>>1),4)}, {acc}"]
                    d = dict(reads=reads, need=[f"w{g}b"], mf=mf)
                    if b == 0:
                        d["vm"] = 14
                    if b == 3:
                        d["after"] = pload(u, ks)
                        if ks == 3:
                            d["after"] += "\n" + self.perm_next(S_C, S_PERM, 4096)
                            if u >= 1:
                                d["after"] += f"s_cmp_ge_u32 s{S_B}, 3\ns_cselect_b32 s{S_C}, 0x10000, s{S_C}"
                    uses.append(d)
            return dict(uses=uses, bar=bar, virtual=virtual, head=head, tail=tail)

        xo = "s_barrier\n" + "\n".join(f"v_xor_b32 v{VT+b}, 0x10000, v{VT+b}" for b in range(4))
        tail = f"s_add_u32 s{S_B}, s{S_B}, 1\ns_cmp_lt_u32 s{S_B}, 4\ns_cbranch_scc1 L_B_loop"
        st = [mk(0, "", head="L_B_loop:"), mk(1, "s_barrier"), mk(2, "s_barrier"), mk(3, "s_barrier", tail=tail), mk(0, xo, virtual=True)]
        a.L.insert(first_bar_here, "    s_barrier")
        nd = self.o.get("nodrain")
        LB = self.o.get("LB", 7)
        self.pipeline(st, LB, (16 - LB) if nd else 13, drain=not nd, wait_every=self.o.get('we', 2))
        if nd and not self.o.get("noEnd"):
            a("s_waitcnt lgkmcnt(0)\ns_barrier")
        self.stamp(3, 44)
        if split:
            a("s_nop 5")
            for i in range(4):
                a(f"ds_write_b128 v13, {vr(ACC+16+4*i,4)} offset:{i*1024}")
            a("s_waitcnt lgkmcnt(0)\ns_barrier")
            gelu_block(ACC, VL)
        else:
            a("s_waitcnt lgkmcnt(0)\ns_nop 4")
            gelu_block(ACC, VL)
            a(f"s_add_u32 s{S_K0+2}, s{S_K0+2}, {UW_ST}")
            gelu_block(ACC + 16, VL)
        self.stamp(10, 44)
        a("s_waitcnt vmcnt(0)\ns_barrier\ns_branch L_F_comp")

        a("L_B_aux:\ns_barrier")
        if split:
            assert NREG == 0
        assert NREG == 0
        ops = [(iv, 4) for iv in range(N1)]
        todo = [(iv, i) for iv in range(N1, 16) for i in range(4)]
        quota = self.o.get("quota", 12) / 3.0
        credit = 0.0
        eB = self.o.get("eB", 17)
        nB1 = self.o.get("nB1", 0)
        per = self.o.get("perB", 2)
        done_w2 = 0
        for tb in range(17):
            if tb < 16 and tb <= eB:
                assert all(iv != tb for iv, _ in todo), (tb, todo)
                last = max(i for i, (iv, _) in enumerate(ops) if iv == tb)
                n = sum(c for _, c in ops[last + 1:])
                if tb < 8:
                    n -= 4 * len(early)
                a(f"s_waitcnt vmcnt({max(0, min(n, 63)) if tb < eB else 0})")
            a("s_barrier")
            if tb < 16:
                self.stamp(16 + tb, 44)
            if tb == 0 and self.o.get("prog"):
                a(f"s_cmp_lg_u32 s{S_WAVE}, 7\ns_cbranch_scc1 L_B_nop1\nv_mul_u32_u24 v2, {FS}, v1\nv_add_u32 v2, {F_LN}, v2")
                a(f"buffer_load_dword v3, v2, s[{R_WS}:{R_WS+3}], 0 offen sc1\nL_B_nop1:")
            if tb == 1 and self.o.get("prog"):
                a(f"s_cmp_lg_u32 s{S_WAVE}, 7\ns_cbranch_scc1 L_B_nop2")
                a(f"s_waitcnt vmcnt(0)\nv_cmp_ne_u32 vcc, s{S_TAG}, v3\ns_nop 1\ns_cmp_eq_u64 vcc, 0\ns_cbranch_scc1 L_B_nop2")
                self.poll([2], 4)
                a("L_B_nop2:")
            if tb == self.o.get("ctB", 10):
                self.code_touch([("L_F_comp", 0), ("L_F_comp", 1)])
            if tb == 11 and split:
                gelu_setup(-7)
                a(f"v_lshlrev_b32 v12, 4, v1\ns_lshl_b32 s{S_T0}, s{S_WAVE}, 12\ns_add_u32 s{S_T0}, s{S_T0}, {GX - 4*4096}\nv_add_u32 v13, s{S_T0}, v12")
            if tb == eB:
                assert not todo
                self.w2_setup()
            if tb >= eB and done_w2 < nB1:
                k2 = min(per if tb < 16 else 8, nB1 - done_w2, tb - 9 - done_w2)
                sk = self.if_wave56()
                self.w2_prefill(k2)
                a(f"{sk}:")
                done_w2 += k2
            if todo and (todo[0][0] < 8 or tb >= 2):
                credit += 8 if todo[0][0] < 8 else quota
            setm0 = False
            while todo and credit >= 0.999 and (todo[0][0] < 8 or todo[0][0] <= tb + 6):
                iv, i = todo.pop(0)
                if i == 0:
                    if iv == 8:
                        a(f"s_and_b32 s{S_B}, s{S_B}, 0x1ffff")
                    a(self.perm_next(S_C, S_PERM, 128 * 3072) + f"s_add_u32 s{S_C}, s{S_C}, s{S_A}")
                if i == 0 or not setm0:
                    a(f"s_mov_b32 m0, s{S_B}\ns_nop 0")
                    setm0 = True
                a(f"buffer_load_dwordx4 v{VPF+i}, s[{R_W}:{R_W+3}], s{S_C} offen offset:{i*1024} lds")
                if i == 3:
                    a(f"s_add_u32 s{S_B}, s{S_B}, 16384")
                ops.append((iv, 1))
                credit -= 1
            if todo and todo[0][0] >= 8:
                credit = min(credit, quota)
        nxt = 16
        assert nxt == 16
        if self.o.get("noEnd"):
            assert done_w2 == nB1
        elif self.o.get("nodrain"):
            a("s_barrier")
        if eB == 17:
            self.w2_setup()
        if split:
            a("s_barrier")
            for i in range(4):
                a(f"ds_read_b128 {vr(64+4*i,4)}, v13 offset:{i*1024}")
            a("s_waitcnt lgkmcnt(0)")
            gelu_block(64, 12)
            a("s_waitcnt vmcnt(0)")
        skip = self.if_wave56()
        self.w2_prefill(nB1 - done_w2)
        a("s_barrier\ns_nop 7\ns_nop 7")
        self.w2_prefill(8 - nB1)
        a("s_branch L_F_loader")
        a(f"{skip}:\ns_barrier")
        a(f"s_cmp_lg_u32 s{S_WAVE}, 7\ns_cbranch_scc1 L_F_u4")
        a(f"s_mul_i32 s{S_T0}, s{S_DT}, 24\ns_add_u32 s{S_T0}, s{S_T0}, s{S_FT}\ns_mul_i32 s{S_T0}, s{S_T0}, {FS}\ns_add_u32 s{S_T0}, s{S_T0}, {F_U}")
        self.flag_store(S_T0, 12)
        self.stamp(4, 12)
        a("s_branch L_F_poller")

    def w2_l2_prefetch(self, VT):
        a = self.a
        self.srd(R_W2, P_W2, 1536 * 4096)
        a(f"""
        v_lshrrev_b32 v{VT}, 3, v1
        v_and_b32 v{VT+1}, 7, v1
        v_lshlrev_b32 v{VT+1}, 7, v{VT+1}
        v_lshl_add_u32 v{VT}, v{VT}, 12, v{VT+1}
        s_mul_i32 s{S_T0}, s{S_J}, 48
        s_and_b32 s{S_T0+1}, s{S_WAVE}, 3
        s_mul_i32 s{S_T0+1}, s{S_T0+1}, 12
        s_add_u32 s{S_T0}, s{S_T0}, s{S_T0+1}
        s_lshl_b32 s{S_T0}, s{S_T0}, 12
        s_lshr_b32 s{S_T0+1}, s{S_XCD}, 1
        s_lshl_b32 s{S_T0+1}, s{S_T0+1}, 10
        s_add_u32 s{S_T0}, s{S_T0}, s{S_T0+1}
        buffer_load_dword v{VT+2}, v{VT}, s[{R_W2}:{R_W2+3}], s{S_T0} offen
        s_add_u32 s{S_T0}, s{S_T0}, {8*4096}
        s_mov_b32 exec_hi, 0
        buffer_load_dword v{VT+3}, v{VT}, s[{R_W2}:{R_W2+3}], s{S_T0} offen
        s_mov_b64 exec, -1
        """)

    def tr_addr(self, VT):
        a = self.a
        a(f"""
        v_and_b32 v{VT+1}, 15, v1
        v_lshrrev_b32 v{VT+2}, 4, v1
        v_lshrrev_b32 v{VT+3}, 2, v{VT+1}
        v_lshl_add_u32 v{VT+3}, v{VT+2}, 2, v{VT+3}
        v_bfe_u32 v{VT+2}, v{VT+3}, 1, 2
        v_lshlrev_b32 v{VT+3}, 7, v{VT+3}
        v_lshl_add_u32 v{VT+3}, v{VT+2}, 5, v{VT+3}
        v_and_b32 v{VT+1}, 3, v{VT+1}
        v_lshl_add_u32 v{VT}, v{VT+1}, 3, v{VT+3}
        v_xor_b32 v{VT+1}, 32, v{VT}
        v_xor_b32 v{VT+2}, 64, v{VT}
        v_xor_b32 v{VT+3}, 96, v{VT}
        """)

    def helper(self):
        a = self.a
        a("L_helper:")
        a(f"""
        s_lshl_b32 s{S_D}, s{S_XCD}, 1
        s_add_u32 s{S_D}, s{S_D}, s{S_J}
        s_sub_u32 s{S_D}, s{S_D}, 30
        """)
        self.srd(R_W, P_WO, 640 * 1280)
        for p in range(5):
            a(f"""
            v_add_u32 v12, {p*64}, v1
            v_mul_u32_u24 v13, 205, v12
            v_lshrrev_b32 v13, 11, v13
            v_mul_u32_u24 v14, 10, v13
            v_sub_u32 v14, v12, v14
            v_lshlrev_b32 v14, 4, v14
            v_mul_u32_u24 v13, 1280, v13
            v_add_u32 v{16+p}, v13, v14
            """)
            if p in (1, 2, 3):
                a(f"v_subrev_u32 v{16+p}, {p*1024}, v{16+p}")
        a(f"""
        s_mov_b32 s{S_C}, s{S_WAVE}
        L_H_ld:
        s_mul_i32 s{S_A}, s{S_C}, {32*1280}
        s_mul_i32 s{S_T0}, s{S_D}, 160
        s_add_u32 s{S_A}, s{S_A}, s{S_T0}
        s_mul_i32 s{S_B}, s{S_C}, 5120
        s_mov_b32 m0, s{S_B}
        s_nop 0
        """)
        for p in range(4):
            a(f"buffer_load_dwordx4 v{16+p}, s[{R_W}:{R_W+3}], s{S_A} offen offset:{p*1024} lds")
        a(f"s_add_u32 m0, s{S_B}, 4096\ns_nop 0\nbuffer_load_dwordx4 v20, s[{R_W}:{R_W+3}], s{S_A} offen lds")
        a(f"""
        s_add_u32 s{S_C}, s{S_C}, 8
        s_cmp_lt_u32 s{S_C}, 20
        s_cbranch_scc1 L_H_ld
        v_and_b32 v12, 15, v1
        v_lshrrev_b32 v13, 4, v1
        v_lshrrev_b32 v14, 2, v12
        v_lshl_add_u32 v14, v13, 2, v14
        v_mul_u32_u24 v14, 160, v14
        v_and_b32 v12, 3, v12
        v_lshl_add_u32 v14, v12, 3, v14
        v_lshlrev_b32 v15, 4, v1
        s_waitcnt vmcnt(0)
        s_barrier
        s_mov_b32 s{S_C}, s{S_WAVE}
        L_H_tr:
        s_lshr_b32 s{S_T0}, s{S_C}, 1
        s_mul_i32 s{S_T0}, s{S_T0}, 5
        s_and_b32 s{S_T0+1}, s{S_C}, 1
        s_lshl_b32 s{S_T0+1}, s{S_T0+1}, 1
        s_add_u32 s{S_T0}, s{S_T0}, s{S_T0+1}
        s_add_u32 s{S_T0+1}, s{S_T0}, 1
        s_mul_i32 s{S_T0+2}, s{S_C}, 10
        s_sub_u32 s{S_T0+2}, s{S_T0+2}, 156
        s_add_u32 s{S_T0+3}, s{S_T0+2}, 5
        s_cmp_lt_u32 s{S_C}, 16
        s_cselect_b32 s{S_T0}, s{S_T0}, s{S_T0+2}
        s_cselect_b32 s{S_T0+1}, s{S_T0+1}, s{S_T0+3}
        s_mul_i32 s{S_T0}, s{S_T0}, 2560
        s_mul_i32 s{S_T0+1}, s{S_T0+1}, 2560
        v_add_u32 v12, s{S_T0}, v14
        v_add_u32 v13, s{S_T0+1}, v14
        """)
        for b in range(5):
            a(f"ds_read_b64_tr_b16 {vr(24+4*b,2)}, v12 offset:{b*32}\nds_read_b64_tr_b16 {vr(26+4*b,2)}, v13 offset:{b*32}")
        a(f"""
        s_mul_i32 s{S_T0}, s{S_D}, {5*UW_ST}
        s_lshl_b32 s{S_T0+1}, s{S_C}, 10
        s_add_u32 s{S_T0}, s{S_T0}, s{S_T0+1}
        s_add_u32 s{S_T0}, s{S_T0}, {UW + 49152}
        """)
        for b in range(5):
            a(f"s_waitcnt lgkmcnt({8-2*b})")
            a(f"buffer_store_dwordx4 {vr(24+4*b,4)}, v15, s[{R_WS}:{R_WS+3}], s{S_T0} offen sc1")
            if b < 4:
                a(f"s_add_u32 s{S_T0}, s{S_T0}, {UW_ST}")
        a(f"""
        s_add_u32 s{S_C}, s{S_C}, 8
        s_cmp_lt_u32 s{S_C}, 20
        s_cbranch_scc1 L_H_tr
        s_waitcnt vmcnt(0)
        s_barrier
        """)
        if self.o.get("hW2"):
            a(f"s_cmp_lg_u32 s{S_WAVE}, 7\ns_cbranch_scc1 L_H_nofl")
            a(f"s_mul_i32 s{S_T0}, s{S_D}, {FS}\ns_add_u32 s{S_T0}, s{S_T0}, {F_WOT}")
            self.flag_store(S_T0, 12)
            self.stamp(14, 12)
            a(f"""
            L_H_nofl:
            v_lshlrev_b32 v12, 7, v1
            s_lshl_b32 s{S_T0}, s{S_D}, 3
            s_add_u32 s{S_T0}, s{S_T0}, s{S_WAVE}
            s_lshl_b32 s{S_T0}, s{S_T0}, 13
            s_add_u32 s{S_T0}, s{S_T0}, {(1024 + 128 * self.o.get("w2LN", 0))*4096}
            """)
            for k in range(4 - self.o.get("w2LN", 0)):
                a(f"buffer_load_dword v253, v12, s[{R_W2}:{R_W2+3}], s{S_T0} offen\ns_add_u32 s{S_T0}, s{S_T0}, {128*4096}")
        skip = self.if_wave56()
        self.w2_setup()
        self.w2_prefill(8)
        a(f"s_branch L_F_loader\n{skip}:")
        a(f"s_cmp_lt_u32 s{S_WAVE}, 4\ns_cbranch_scc1 L_F_comp\ns_cmp_lg_u32 s{S_WAVE}, 7\ns_cbranch_scc1 L_F_u4")
        if not self.o.get("hW2"):
            a(f"s_mul_i32 s{S_T0}, s{S_D}, {FS}\ns_add_u32 s{S_T0}, s{S_T0}, {F_WOT}")
            self.flag_store(S_T0, 12)
            self.stamp(14, 12)
        a("s_branch L_F_poller")

    F_WOT_REG = 172
    F_V = (4, 8, 12, 13, 47, 48, 52, 56, 168)
    F_VL1 = 252
    F_SB = 72

    def uw_srd(self):
        a = self.a
        a(f"""
        s_mul_i32 s{S_T0}, s{S_DTILE}, 5
        s_and_b32 s{S_T0+1}, s{S_WAVE}, 2
        s_add_u32 s{S_T0}, s{S_T0}, s{S_T0+1}
        s_mul_i32 s{S_T0}, s{S_T0}, {UW_ST}
        s_add_u32 s{S_T0}, s{S_T0}, {UW}
        """)
        self.srd(R_P, P_WS, 2 * UW_ST, off_s=S_T0)

    def vl_setup(self):
        a = self.a
        VL = self.F_V[2]
        a(f"""
        s_and_b32 s{S_T0}, s{S_WAVE}, 1
        s_mul_i32 s{S_T0+1}, s{S_T0}, {2048 + UW_ST}
        s_mul_i32 s{S_T0}, s{S_T0}, {(2048 - UW_ST) & 0xffffffff:#x}
        s_add_u32 s{S_T0}, s{S_T0}, {UW_ST}
        v_lshlrev_b32 v{VL}, 4, v1
        v_add_u32 v{self.F_VL1}, s{S_T0}, v{VL}
        v_add_u32 v{VL}, s{S_T0+1}, v{VL}
        """)

    def wot_preload(self):
        a = self.a
        for t in range(5):
            a(f"s_mov_b32 s{S_C}, {49152 + t*4096}")
            for ks in range(2):
                for e in range(2):
                    a(f"buffer_load_dwordx4 {vr(self.F_WOT_REG+16*t+8*ks+4*e,4)}, v{(self.F_V[2], self.F_VL1)[e]}, s[{R_P}:{R_P+3}], s{S_C} offen offset:{ks*1024} sc1")

    def f_setup(self):
        a = self.a
        VT, VT2, VL, VU4, VGA, VGH, VG8, GV, BV = self.F_V
        SB = self.F_SB
        self.srd(R_M, P_B2, 4096)
        self.srd(R_OUT, P_OUT, 2048 * 1280)
        self.tr_addr(VT2)
        a(f"""
        s_and_b32 s{S_T0+2}, s{S_WAVE}, 1
        s_mul_i32 s{S_D}, s{S_DTILE}, 5
        s_add_u32 s{S_D}, s{S_D}, s{S_WAVE}
        s_lshl_b32 s{S_T0}, s{S_T0+2}, 13
        v_add_u32 v42, s{S_T0}, v{VT2}
        s_lshl_b32 s{S_T0+2}, s{S_T0+2}, 11
        v_lshlrev_b32 v{VGH+3}, 4, v1
        v_add_u32 v{VGH+3}, s{S_T0+2}, v{VGH+3}
        v_add_u32 v{VU4}, 0x20000, v{VGH+3}
        v_and_b32 v{VGA}, 15, v1
        v_lshlrev_b32 v43, 1, v{VGA}
        v_lshlrev_b32 v{VGA}, 2, v{VGA}
        v_lshlrev_b32 v{VG8+3}, 3, v1
        v_add_u32 v{VG8+3}, s{S_T0+2}, v{VG8+3}
        """)
        for b in range(4):
            a(f"""
            s_xor_b32 s{SB+b}, s{S_WAVE}, {b}
            s_lshl_b32 s{S_T0}, s{SB+b}, 5
            v_xor_b32 v{VT+b}, s{S_T0}, v42
            s_lshl_b32 s{S_T0+1}, s{S_ST}, 7
            s_add_u32 s{S_T0}, s{S_T0}, s{S_T0+1}
            buffer_load_ushort v{BV+b}, v43, s[{R_M}:{R_M+3}], s{S_T0} offen
            v_add_u32 v{VT2+b}, 0x10000, v{VT+b}
            s_lshl_b32 s{S_T0}, s{SB+b}, 12
            v_add_u32 v{VG8+b}, s{S_T0}, v{VG8+3}
            s_add_u32 s{S_T0}, s{S_T0}, 0x10000
            v_add_u32 v{VGH+b}, s{S_T0}, v{VGH+3}
            """)
        a(f"s_lshl_b32 s{S_A}, s{S_ST}, 8\ns_add_u32 s{S_A}, s{S_A}, {G_OFF}")
        self.f_perm()

    def f0_barrier(self):
        lab = self.a.label("f0")
        self.a(f"s_cmp_eq_u32 s{S_FROMA}, 1\ns_cbranch_scc1 {lab}\ns_barrier\n{lab}:")

    def final(self):
        a = self.a
        a("L_F_comp:")
        PF, WF, U4, WOT = 64, 112, 36, 172
        ACC = (144, 16)
        ACC4 = (160, 164)
        NPF = 3
        VT, VT2, VL, VU4, VGA, VGH, VG8, GV, BV = self.F_V
        VLE = (VL, self.F_VL1)
        SB = self.F_SB
        a(f"s_cmp_eq_u32 s{S_FROMA}, 1\ns_cbranch_scc1 L_F_nowot")
        self.uw_srd()
        self.vl_setup()
        self.f_setup()

        def next_sc(step):
            return self.perm_next(S_C, S_PERM, 4096)
        a("s_barrier")
        self.wot_preload()
        a("L_F_nowot:")
        a(next_sc(0))
        a("s_barrier")
        S_C1, S_C2 = S_K0, S_K0 + 1

        def uload(t, ks, so):
            return "\n".join(f"buffer_load_dwordx4 {vr(PF+16*(t % NPF)+8*ks+4*e,4)}, v{VLE[e]}, s[{R_P}:{R_P+3}], s{so} offen offset:{ks*1024} sc1 ;@u{t}_{ks}_{e}"
                             for e in range(2))
        vis0 = []
        for ks in range(2):
            a(uload(0, ks, S_C))
            vis0 += [f"u0_{ks}_0", f"u0_{ks}_1"]
        a(self.perm_next(S_C1, S_PERM, 4096) + self.perm_next(S_C2, S_PERM, 4096) + next_sc(3))
        a("s_barrier")

        def scale(b):
            regs = [ACC[0] + 4 * b, ACC[1] + 4 * b] + ([ACC4[b]] if b < 2 else [])
            return "\n".join(f"v_mul_f32 v{r+k}, v{GV+b}, v{r+k}" for r in regs for k in range(4))
        X_W, X_R = 65536, 65536
        late = []
        stages = []
        for t in range(17):
            slot = t % 8
            hi = slot >= 4
            uses = []
            for ks in range(2):
                for b in range(4):
                    g = ks * 4 + b
                    wb = WF + 4 * g
                    reads = []
                    u4 = U4 + 4 * ks
                    if b == 0:
                        reads.append((f"u{ks}", f"ds_read_b128 {vr(u4,4)}, v{VU4} offset:{slot*4096 + ks*1024}"))
                    if t < 12:
                        off = (slot & 3) * 16384 + ks * 4096
                        va = (VT2 if hi else VT) + b
                        reads += [(f"w{g}a", f"ds_read_b64_tr_b16 {vr(wb,2)}, v{va} offset:{off}"),
                                  (f"w{g}b", f"ds_read_b64_tr_b16 {vr(wb+2,2)}, v{va} offset:{off+2048}")]
                    elif t < 16:
                        off = (slot & 3) * 16384 + ks * 1024
                        reads += [(f"w{g}b", f"ds_read_b128 {vr(wb,4)}, v{VGH+b} offset:{off}")]
                    else:
                        off = ks * 1024
                        reads += [(f"w{g}a", f"ds_read_b64 {vr(wb,2)}, v{VG8+b} offset:{off}"),
                                  (f"w{g}b", f"ds_read_b64 {vr(wb+2,2)}, v{VG8+b} offset:{off+512}")]
                    first = t == 0 and ks == 0
                    mf = []
                    for e in range(2):
                        pf = vr(PF + 16 * (t % NPF) + 8 * ks + 4 * e, 4) if t < 12 else vr(WOT + 16 * (t - 12) + 8 * ks + 4 * e, 4)
                        acc = vr(ACC[e] + 4 * b, 4)
                        mf.append(f"v_mfma_f32_16x16x32_bf16 {acc}, {pf}, {vr(wb,4)}, {0 if first else acc}")
                    if b < 2:
                        a4 = vr(ACC4[b], 4)
                        mf.append(f"v_mfma_f32_16x16x32_bf16 {a4}, {vr(u4,4)}, {vr(wb,4)}, {0 if first else a4}")
                    if t == 16 and ks == 1:
                        late += [mf[0]] + ([mf[2]] if b == 0 else [])
                        mf = [mf[1]] + ([mf[2]] if b == 1 else [])
                    d = dict(reads=reads, need=[f"w{g}b"], mf=mf)
                    aft = []
                    if b == 0 and t < 12:
                        d["vneed"] = f"u{t}_{ks}_1"
                    if t == 0 and b in (0, 1):
                        aft.append(uload(1 + b, ks, (S_C1, S_C2)[b]))
                    if t == 1 and b in (0, 1):
                        q = ks * 2 + b
                        aft.append(f"s_lshl_b32 s{S_T0}, s{SB+q}, 6\ns_add_u32 s{S_T0}, s{S_T0}, s{S_A}\n"
                                   f"buffer_load_dword v{GV+q}, v{VGA}, s[{R_WS}:{R_WS+3}], s{S_T0} offen sc1 ;@g{q}")
                    if b == 3 and t + NPF < 12:
                        aft.append(uload(t + NPF, ks, S_C))
                        if ks == 1 and t + NPF + 1 < 12:
                            aft.append(next_sc(t + NPF + 1))
                    if t == 9 and g < 4:
                        aft.append(f"v_sub_f32 v{GV+g}, 1.0, v{GV+g}\nv_lshlrev_b32 v{BV+g}, 16, v{BV+g}")
                    if t == 10 and g < 4:
                        aft.append(f"v_mul_f32 v{BV+g}, v{GV+g}, v{BV+g}")
                    if t == 11 and g in (5, 6):
                        aft.append(scale(g - 5))
                    if t == 11 and g == 7:
                        aft.append("s_nop 3\n" + scale(2))
                    if t == 12 and g == 0:
                        aft.append(scale(3))
                    if t == 15 and g == 2:
                        aft.append(f"s_and_b32 s{S_T0}, s{S_WAVE}, 1\ns_lshl_b32 s{S_T0}, s{S_T0}, 10\ns_xor_b32 s{S_T0+1}, s{S_WAVE}, 1\n"
                                   f"s_mul_i32 s{S_T0+1}, s{S_T0+1}, 5120\ns_add_u32 s{S_T0+1}, s{S_T0+1}, {X_W}\nv_lshlrev_b32 v2, 4, v1")
                    if t == 15 and g == 3:
                        aft.append(f"v_add_u32 v3, s{S_T0+1}, v2\ns_mul_i32 s{S_T0+1}, s{S_WAVE}, 5120\ns_add_u32 s{S_T0+1}, s{S_T0+1}, {X_R}\n"
                                   f"v_add_u32 v2, s{S_T0+1}, v2")
                    if aft:
                        d["after"] = "\n".join(aft)
                    uses.append(d)
            stages.append(dict(uses=uses, bar="s_barrier" if t else ""))
        LF = self.o.get("LF", 6)
        self.pipeline(stages, LF, 8 - LF, drain=False, wait_every=self.o.get('weF', 2), vis=vis0)
        misc = f"""v_and_b32 v4, 15, v1
        v_mul_u32_u24 v4, 1280, v4
        v_lshrrev_b32 v5, 4, v1
        v_lshl_add_u32 v4, v5, 3, v4
        s_mul_i32 s{S_A}, s{S_ST}, {64*1280}
        s_lshl_b32 s{S_T0+1}, s{S_D}, 5
        s_add_u32 s{S_B}, s{S_A}, s{S_T0+1}
        s_mul_i32 s{S_T0+1}, s{S_DTILE}, 160
        s_add_u32 s{S_A}, s{S_A}, s{S_T0+1}
        s_add_u32 s{S_A}, s{S_A}, 128""".split("\n")
        wr = [f"ds_write_b128 v3, {vr(ACC[1]+4*0,4)} offset:1024", f"ds_write_b128 v3, {vr(ACC[1]+4*1,4)} offset:0",
              f"ds_write_b128 v3, {vr(ACC4[1],4)} offset:4096", f"ds_write_b128 v3, {vr(ACC[1]+4*2,4)} offset:3072",
              f"ds_write_b128 v3, {vr(ACC[1]+4*3,4)} offset:2048"]
        for i_, m in enumerate(late):
            a(m)
            a("\n".join(misc[2*i_:2*i_+2]))
            if i_ >= 1:
                a(wr[i_-1])
        a(wr[4])
        self.stamp(8, 6)
        blocks = [(ACC[0] + 4 * b, b) for b in range(4)] + [(ACC4[0], 0)]
        a("s_waitcnt lgkmcnt(0)\ns_barrier")
        for i_ in range(5):
            a(f"ds_read_b128 {vr(PF+4*i_,4)}, v2 offset:{i_*1024}")
        for r, b in blocks:
            for k in range(4):
                a(f"v_add_f32 v{r+k}, v{BV+b}, v{r+k}")
        for i_, (r, b) in enumerate(blocks):
            a(f"s_mul_i32 s{S_T0}, s{SB+b}, {16*1280}\ns_add_u32 s{S_T0}, s{S_T0}, s{S_A if i_ == 4 else S_B}\ns_waitcnt lgkmcnt({4-i_})")
            for h in (0, 2):
                a(f"v_pk_add_f32 {vr(r+h,2)}, {vr(r+h,2)}, {vr(PF+4*i_+h,2)}")
            a(f"v_cvt_pk_bf16_f32 v{r}, v{r}, v{r+1}\nv_cvt_pk_bf16_f32 v{r+1}, v{r+2}, v{r+3}")
            a(f"buffer_store_dwordx2 {vr(r,2)}, v4, s[{R_OUT}:{R_OUT+3}], s{S_T0} offen")
        if self.stamps or self.o.get("dbg"):
            a("s_waitcnt vmcnt(0)")
            self.stamp(9, 2)
        if self.o.get("calib"):
            a(f"""
            L_cal:
            s_memrealtime s[96:97]
            s_waitcnt lgkmcnt(0)
            s_sub_u32 s96, s96, s98
            s_cmp_lt_u32 s96, {self.o.get("calib")*100}
            s_cbranch_scc1 L_cal
            """)
        a(f"s_or_b32 s{S_T0}, s2, s{S_WAVE}\ns_cmp_lg_u32 s{S_T0}, 0\ns_cbranch_scc1 L_end\ns_mov_b32 s{S_T0}, 0")
        self.flag_store(S_T0, 4)
        a("s_branch L_end")

        a("L_F_u4:")
        if self.stop == "phase1":
            a("s_branch L_end")
        a(f"""
        v_lshlrev_b32 v{VL}, 4, v1
        s_mul_i32 s{S_C}, s{S_DTILE}, {5*UW_ST}
        s_add_u32 s{S_C}, s{S_C}, {UW + 4*UW_ST}
        """)
        self.f_perm()
        self.f0_barrier()
        p4 = None
        if p4:
            for k in range(20):
                if k % 4 == 0:
                    a(f"s_add_u32 s{S_T0}, s{S_C}, {49152 + k*1024}")
                a(f"buffer_load_dwordx4 {vr(64+4*k,4)}, v{VL}, s[{R_WS}:{R_WS+3}], s{S_T0} offen offset:{(k%4)*1024} sc1")
            a(f"v_add_u32 v{VU4}, 0x20000, v{VL}")
        a("s_barrier")

        def u4_issue(iv):
            if iv >= 12 and p4:
                for i in range(4):
                    a(f"ds_write_b128 v{VU4}, {vr(64+16*(iv-12)+4*i,4)} offset:{(iv % 8)*4096 + i*1024}")
                return
            if iv < 12:
                a(self.perm_next(S_T0, S_PERM, 4096) + f"s_mov_b32 m0, {0x20000 + (iv % 8)*4096:#x}\ns_add_u32 s{S_T0}, s{S_T0}, s{S_C}")
            else:
                a(f"s_mov_b32 m0, {0x20000 + (iv % 8)*4096:#x}\ns_add_u32 s{S_T0}, s{S_C}, {iv*4096}")
            for i in range(4):
                a(f"buffer_load_dwordx4 v{VL}, s[{R_WS}:{R_WS+3}], s{S_T0} offen offset:{i*1024} sc1 lds")
        order = []
        for iv in range(8):
            u4_issue(iv)
            order.append(iv)
            if iv == 1:
                a("s_waitcnt vmcnt(4)\ns_barrier")
        for tb in range(1, 17):
            if tb in order:
                a(f"s_waitcnt vmcnt({4*len(order[order.index(tb)+1:])})")
            a("s_waitcnt lgkmcnt(0)\ns_barrier" if p4 and tb >= 7 else "s_barrier")
            iv = tb + (6 if self.o.get("nodrain") else 7)
            if 8 <= iv <= 16:
                u4_issue(iv)
                if not (p4 and iv >= 12):
                    order.append(iv)
        a("s_branch L_end")

        a("L_F_loader:")
        if self.stop == "phase1":
            a("s_branch L_end")
        a(f"v_lshlrev_b32 v{VL}, 4, v1")
        self.f0_barrier()
        nWR = self.o.get("nWR", 0)
        V = self.V_W2
        if nWR:
            a(f"s_waitcnt vmcnt(30)\nv_add_u32 v{VU4}, s{S_B}, v{VL}")
            for k in range(nWR):
                a(self.perm_next(S_T0, S_PERM, 128 * 4096) + f"s_add_u32 s{S_T0}, s{S_T0}, s{S_A}")
                for g in range(2):
                    if g:
                        a(f"s_add_u32 s{S_T0}, s{S_T0}, {4*32768}")
                    for i in range(4):
                        a(f"buffer_load_dwordx4 {vr(64+32*k+16*g+4*i,4)}, v{V+i}, s[{R_W2}:{R_W2+3}], s{S_T0} offen offset:{i*1024}")
            a(f"s_add_u32 s{S_B}, s{S_B}, {nWR*16384}")
        a("s_barrier")
        a(f"""
        s_sub_u32 s{S_T0}, s{S_WAVE}, 5
        s_lshl_b32 s{S_T0}, s{S_T0}, 1
        s_lshl_b32 s{S_T0+1}, s{S_ST}, 2
        s_add_u32 s{S_T0+1}, s{S_T0+1}, s{S_T0}
        s_mul_i32 s{S_C}, s{S_T0+1}, {GO_ST}
        s_add_u32 s{S_C}, s{S_C}, {GO}
        s_lshl_b32 s{S_D}, s{S_T0}, 12
        """)
        assert nWR == 0
        ops = [(iv, 8) for iv in range(8)]
        for tb in range(17):
            last = max(i for i, (iv, _) in enumerate(ops) if iv == tb)
            n = sum(c for _, c in ops[last + 1:])
            a(f"s_waitcnt vmcnt({min(n,63)})\ns_barrier")
            if self.o.get("halfW"):
                if 2 <= tb <= 9:
                    self.w2_half((tb - 2) & 1)
                    ops.append((8 + (tb - 2) // 2, 4))
            elif 2 <= tb <= 5:
                self.w2_issue()
                ops.append((tb + 6, 8))
            if 9 <= tb <= 13:
                iv = tb + 3
                g = iv - 12
                for s2 in range(2):
                    a(f"s_add_u32 m0, s{S_D}, {(iv % 8)*16384 + s2*4096}\ns_add_u32 s{S_T0}, s{S_C}, {s2*GO_ST + g*4096}")
                    for i in range(4):
                        a(f"buffer_load_dwordx4 v{VL}, s[{R_WS}:{R_WS+3}], s{S_T0} offen offset:{i*1024} sc1 lds")
                ops.append((iv, 8))
        a("s_branch L_end")
        a("L_F_poller:")
        if self.stop == "phase1":
            a("s_branch L_end")
        a(f"s_cmp_eq_u32 s{S_FROMA}, 1\ns_cbranch_scc1 L_F_pnowot")
        a(f"s_mul_i32 s{S_T0}, s{S_DTILE}, {FS}\ns_add_u32 s{S_T0}, s{S_T0}, {F_WOT}\nv_mov_b32 v2, s{S_T0}")
        self.poll([2], 4)
        a("s_barrier\nL_F_pnowot:")
        a(f"""
        s_mul_i32 s{S_T0}, s{S_DTILE}, 5
        s_lshr_b32 s{S_T0+1}, s{S_T0}, 3
        s_add_u32 s{S_T0}, s{S_T0}, 4
        s_lshr_b32 s{S_T0}, s{S_T0}, 3
        s_mul_i32 s{S_T0}, s{S_T0}, 24
        s_mul_i32 s{S_T0+1}, s{S_T0+1}, 24
        v_and_b32 v2, 31, v1
        v_min_u32 v2, 23, v2
        v_add_u32 v3, s{S_T0}, v2
        v_add_u32 v2, s{S_T0+1}, v2
        v_cmp_gt_u32 vcc, 32, v1
        s_mul_i32 s{S_T0}, s{S_DTILE}, {FS}
        s_add_u32 s{S_T0}, s{S_T0}, {F_WOT}
        v_cndmask_b32 v2, v2, v3, vcc
        v_mul_u32_u24 v2, {FS}, v2
        v_add_u32 v2, {F_U}, v2
        v_mov_b32 v3, s{S_T0}
        v_cmp_eq_u32 vcc, 63, v1
        s_nop 1
        v_cndmask_b32 v2, v2, v3, vcc
        """)
        self.poll([2], 4)
        self.stamp(6, 4)
        a("s_barrier")
        a(f"""
        v_and_b32 v2, 7, v1
        s_lshr_b32 s{S_T0}, s{S_ST}, 1
        s_lshl_b32 s{S_T0}, s{S_T0}, 3
        v_add_u32 v2, s{S_T0}, v2
        v_mul_u32_u24 v2, {FS}, v2
        v_add_u32 v2, {F_GO}, v2
        """)
        gp = self.o.get("gopoll", 9)
        for tb in range(gp):
            a("s_barrier")
            if tb == 1:
                a(f"s_cmp_eq_u32 s{S_FROMA}, 1\ns_cbranch_scc0 L_F_nogo")
                a(f"s_lshl_b32 s{S_T0}, s{S_MT}, 3\ns_add_u32 s{S_T0}, s{S_T0}, s{S_HG}\ns_mul_i32 s{S_T0}, s{S_T0}, {FS}\ns_add_u32 s{S_T0}, s{S_T0}, {F_GO}")
                self.flag_store(S_T0, 6)
                a("L_F_nogo:")
            if tb == gp - 3:
                a(f"buffer_load_dword v8, v2, s[{R_WS}:{R_WS+3}], 0 offen sc1")
            self.stamp(32 + tb, 4)
        a(f"s_waitcnt vmcnt(0)\nv_cmp_ne_u32 vcc, s{S_TAG}, v8\ns_nop 1\ns_cmp_eq_u64 vcc, 0\ns_cbranch_scc1 L_F_gook")
        self.poll([2], 4)
        a("L_F_gook:")
        self.stamp(7, 4)
        for tb in range(gp, 17):
            a("s_barrier")
            self.stamp(32 + tb, 4)
        a("L_end:")
        if "probe" in self.o or "pc1" in self.o:
            a("""
            s_cmp_eq_u32 s94, 0
            s_cbranch_scc1 L_exit
            L_prb:
            s_memrealtime s[96:97]
            s_waitcnt lgkmcnt(0)
            s_sub_u32 s96, s96, s98
            s_cmp_lt_i32 s96, 4000
            s_cbranch_scc1 L_prb
            """)
        if self.stamps:
            a(f"""
            s_lshl_b32 s{S_T0}, s2, 3
            s_add_u32 s{S_T0}, s{S_T0}, s{S_WAVE}
            s_lshl_b32 s{S_T0}, s{S_T0}, 9
            s_add_u32 s{S_T0}, s{S_T0}, {STAMP}
            v_lshlrev_b32 v2, 3, v1
            buffer_store_dwordx2 v[254:255], v2, s[{R_WS}:{R_WS+3}], s{S_T0} offen
            """)
        a("L_exit:\ns_endpgm")

    def build(self, header):
        a = self.a
        self.prologue()
        self.role_a()
        self.role_b()
        self.helper()
        self.final()
        body = a.text()
        out = header
        out += """; One persistent launch, 256 workgroups (one per CU) x 8 waves (0-3 MFMA, 4-7 loaders / pollers).
"""
        out += f"; @launch grid=(256,1,1) block=(512,1,1) lds={LDS_BYTES}\n"
        out += f'.amdgcn_target "amdgcn-amd-amdhsa--gfx950"\n.text\n.globl {KNAME}\n.p2align 8\n.type {KNAME},@function\n{KNAME}:\n'
        out += body
        out += f""".section .rodata,"a"
.p2align 6
.amdhsa_kernel {KNAME}
  .amdhsa_next_free_vgpr 256
  .amdhsa_next_free_sgpr 102
  .amdhsa_accum_offset 256
  .amdhsa_group_segment_fixed_size 0
  .amdhsa_kernarg_size 96
  .amdhsa_user_sgpr_count 2
  .amdhsa_user_sgpr_kernarg_segment_ptr 1
  .amdhsa_system_sgpr_workgroup_id_x 1
  .amdhsa_float_denorm_mode_32 3
.end_amdhsa_kernel
"""
        return out


def header():
    ref = open("gated_mix__linear_attn_block__mixer_token_mlp__prompt.s.ref").read().split("\n")
    h = []
    for l in ref:
        if l.startswith("; Override"):
            break
        h.append(l)
    return "\n".join(h) + "\n"


if __name__ == "__main__":
    import argparse
    p = argparse.ArgumentParser()
    p.add_argument("-o", default="gated_mix__linear_attn_block__mixer_token_mlp__prompt.s")
    p.add_argument("--stamps", action="store_true")
    p.add_argument("--stop", default=None)
    p.add_argument("--opt", default="")
    args = p.parse_args()
    opts = {k: (int(v) if v != '' else 1) for k, _, v in (x.partition('=') for x in args.opt.split(',') if x)}
    g = Gen(stamps=args.stamps, stop=args.stop, opts=opts)
    open(args.o, "w").write(g.build(header()))
    print("wrote", args.o)
```

```python
import sys

KNAME = "gated_mix__linear_attn_block__mixer_token_mlp__prompt_kernel"

import os
FS = int(os.environ.get('FS', 128))
F_LN, F_KV, F_U, F_GO, F_WOT = 0x1000, 0x5000, 0x9000, 0xD000, 0x11000
G_OFF = 0x12000
STAMP = 0x900000
KVP = 0x20000
KVP_ST = 7168
HT = 0x100000
UW = 0x380000
UW_ST = 69632
GO = 0x640000
GO_ST = 20480
WS_USED = 0xA00000
TAG_INC = 0x9E3779B9
SPIN_LIMIT = 1 << 17

LDS_BYTES = 163840
LNBUF = 0
LN_ST = 1312
LNG = LNBUF + 32 * LN_ST
A_SLOT = 49152
A_WOFF = 16384
EXCH_ST = 14336
EXCH = LDS_BYTES - 4 * EXCH_ST
KVT = 147456
ZH = KVT + 11 * 1024

LOG2E = 0x3FB8AA3B


def f2u(x):
    import struct
    return struct.unpack("<I", struct.pack("<f", x))[0]


class Asm:
    def __init__(self):
        self.L = []
        self.nlab = 0

    def __call__(self, s):
        for line in s.split("\n"):
            line = line.strip()
            if line:
                self.L.append(("    " if not line.endswith(":") else "") + line)

    def label(self, base):
        self.nlab += 1
        return f"L{base}_{self.nlab}"

    def text(self):
        return "\n".join(self.L) + "\n"


def vr(a, n=1):
    return f"v{a}" if n == 1 else f"v[{a}:{a+n-1}]"


def sr(a, n=1):
    return f"s{a}" if n == 1 else f"s[{a}:{a+n-1}]"


P_X, P_WQKV, P_WO, P_BX, P_W1, P_B1, P_W2, P_B2 = 4, 6, 8, 10, 12, 14, 16, 18
P_GATE, P_OUT, P_DBG, P_WS = 20, 22, 24, 26
S_TAG, S_WAVE = 28, 29
S_XCD, S_J = 30, 31
R_WS, R_X, R_W, R_P, R_W2, R_M, R_OUT = 32, 36, 40, 44, 48, 52, 56
S_T0 = 60
S_MT, S_HG, S_DT, S_FT, S_KST, S_PAR = 70, 71, 72, 73, 74, 75
S_ST, S_DTILE = 76, 77
S_CNT = 78
S_A, S_B, S_C, S_D = 80, 81, 82, 83
S_MSK = 84
S_K0 = 90
S_STMP = 96
S_PERM = 66
S_M = 79
S_FROMA = 95
S_PERM2 = 68


def lead_perm(n, nshare, m, lead=2):
    order = list(range(n))
    i = m
    while i + lead < n:
        order[i:i + lead + 1] = [order[i + lead]] + order[i:i + lead]
        i += nshare
    return order


class Gen:
    def __init__(self, stamps=False, stop=None, opts=None):
        self.o = opts or {}
        self.a = Asm()
        self.stamps = stamps
        self.stop = stop

    def nt(self, key):
        return "nt" if self.o.get(key) else ""

    def srd(self, dst, ptr, nbytes, off_s=None):
        a = self.a
        if off_s is None:
            a(f"s_mov_b32 s{dst}, s{ptr}\ns_and_b32 s{dst+1}, s{ptr+1}, 0xffff")
        else:
            a(f"s_add_u32 s{dst}, s{ptr}, s{off_s}\ns_addc_u32 s{dst+1}, s{ptr+1}, 0\ns_and_b32 s{dst+1}, s{dst+1}, 0xffff")
        a(f"s_mov_b32 s{dst+2}, {nbytes:#x}\ns_mov_b32 s{dst+3}, 0x20000")

    def stamp(self, k, vtmp, dyn=None):
        if "pc1" in self.o:
            if dyn is None and k in (self.o["pc1"], self.o["pc2"]):
                lab = self.a.label("npr")
                self.a(f"s_cmp_lg_u32 s{S_FROMA}, {self.o.get('prole', 0)}\ns_cbranch_scc1 {lab}")
                if k == self.o["pc1"]:
                    self.a(f"s_memtime s[92:93]\ns_waitcnt lgkmcnt(0)")
                else:
                    self.a(f"s_memtime s[96:97]\ns_waitcnt lgkmcnt(0)\ns_sub_u32 s92, s96, s92\ns_lshr_b32 s92, s92, 4\ns_add_u32 s98, s98, s92\ns_mov_b32 s94, 1")
                self.a(f"{lab}:")
            return
        if "probe" in self.o:
            role = self.o.get("prole")
            if k == self.o["probe"] and dyn is None:
                lab = self.a.label("npr")
                if self.o.get("phelp"):
                    self.a(f"s_cmp_lt_u32 s{S_J}, 30\ns_cbranch_scc1 {lab}")
                if role is not None and k != 0:
                    self.a(f"s_cmp_lg_u32 s{S_FROMA}, {role}\ns_cbranch_scc1 {lab}")
                self.a(f"s_memrealtime s[98:99]\ns_mov_b32 s94, 1\ns_waitcnt lgkmcnt(0)\n{lab}:")
            return
        if self.o.get("dbg"):
            m = {0: 0, 11: 1, 1: 2, 2: 3, 3: 4, 4: 5, 6: 6, 9: 7}
            mA = {0: 0, 1: 1, 2: 2, 3: 3, 4: 4, 5: 5, 6: 6, 9: 7}
            if dyn is not None:
                return
            a = self.a
            for wg, mp, base in ((8, m, 0), (12, mA, 8)):
                if k in mp:
                    lab = a.label("nd")
                    a(f"s_cmp_lg_u32 s2, {wg}\ns_cbranch_scc1 {lab}")
                    a(f"s_memrealtime s[{S_STMP}:{S_STMP+1}]\ns_waitcnt lgkmcnt(0)")
                    a(f"v_mov_b32 v{vtmp}, s{S_STMP}\nv_mov_b32 v{vtmp+2}, {4*(base+mp[k])}")
                    a(f"s_mov_b64 exec, 1\nglobal_store_dword v{vtmp+2}, v{vtmp}, s[{P_DBG}:{P_DBG+1}]\ns_mov_b64 exec, -1\n{lab}:")
            return
        if not self.stamps:
            return
        a = self.a
        a(f"s_memrealtime s[{S_STMP}:{S_STMP+1}]\ns_memtime s[100:101]")
        ln = str(k)
        if dyn is not None:
            a(f"s_add_u32 m0, s{dyn}, {k}")
            ln = "m0"
        a(f"s_waitcnt lgkmcnt(0)\nv_writelane_b32 v254, s{S_STMP}, {ln}\nv_writelane_b32 v255, s100, {ln}")

    def perm_setup(self, s_m, n, nshare, dst, enable):
        a = self.a
        def pk(o):
            v = 0
            for i, x in enumerate(o):
                v |= x << (4 * i)
            return v & 0xffffffff, v >> 32
        lo, hi = pk(list(range(n)))
        a(f"s_mov_b32 s{dst}, {lo:#x}\ns_mov_b32 s{dst+1}, {hi:#x}")
        if not enable:
            return
        for m in range(nshare):
            lo, hi = pk(lead_perm(n, nshare, m, enable))
            a(f"s_cmp_eq_u32 s{s_m}, {m}\ns_cselect_b32 s{dst}, {lo:#x}, s{dst}\ns_cselect_b32 s{dst+1}, {hi:#x}, s{dst+1}")

    def perm_next(self, dst, src, mul):
        t = f"s_and_b32 s{dst}, s{src}, 15\ns_lshr_b64 s[{src}:{src+1}], s[{src}:{src+1}], 4\n"
        if mul & (mul - 1) == 0:
            t += f"s_lshl_b32 s{dst}, s{dst}, {mul.bit_length()-1}\n"
        else:
            t += f"s_mul_i32 s{dst}, s{dst}, {mul}\n"
        return t

    def poll(self, voffs, vtmp, mask=None):
        a = self.a
        lp, dn = a.label("poll"), a.label("pdone")
        n = len(voffs)

        def ld(k):
            for i, vo in enumerate(voffs):
                a(f"buffer_load_dword v{vtmp+k*n+i}, v{vo}, s[{R_WS}:{R_WS+3}], 0 offen sc1")

        def chk(k):
            if mask is not None:
                a(f"v_xor_b32 v{vtmp+k*n}, s{S_TAG}, v{vtmp+k*n}\nv_and_b32 v{vtmp+k*n}, v{mask}, v{vtmp+k*n}\nv_cmp_ne_u32 vcc, 0, v{vtmp+k*n}")
            else:
                a(f"v_cmp_ne_u32 vcc, s{S_TAG}, v{vtmp+k*n}")
            for i in range(1, n):
                a(f"v_cmp_ne_u32 s[{S_T0}:{S_T0+1}], s{S_TAG}, v{vtmp+k*n+i}\ns_nop 1\ns_or_b64 vcc, vcc, s[{S_T0}:{S_T0+1}]")
            a(f"s_nop 1\ns_cmp_eq_u64 vcc, 0\ns_cbranch_scc1 {dn}")
        if not self.o.get("pp"):
            a(f"s_mov_b32 s{S_CNT}, 0\n{lp}:")
            ld(0)
            a("s_waitcnt vmcnt(0)")
            chk(0)
            a(f"s_add_u32 s{S_CNT}, s{S_CNT}, 1\ns_cmp_lt_u32 s{S_CNT}, {SPIN_LIMIT}\ns_cbranch_scc0 {dn}\ns_sleep 1\ns_branch {lp}\n{dn}:")
            return
        sl = f"s_sleep {self.o['pp'] - 1}\n" if self.o["pp"] > 1 else ""
        a(f"s_mov_b32 s{S_CNT}, 0")
        ld(0)
        a(f"{sl}{lp}:")
        ld(1)
        a(f"s_waitcnt vmcnt({n})")
        chk(0)
        ld(0)
        a(f"s_waitcnt vmcnt({n})")
        chk(1)
        a(f"s_add_u32 s{S_CNT}, s{S_CNT}, 1\ns_cmp_lt_u32 s{S_CNT}, {SPIN_LIMIT}\ns_cbranch_scc1 {lp}\n{dn}:")

    def flag_prep(self, vtmp):
        self.a(f"v_mov_b32 v{vtmp}, s{S_TAG}\nv_mov_b32 v{vtmp+1}, 0")

    def flag_fire(self, s_off, vtmp):
        self.a(f"s_mov_b64 exec, 1\nbuffer_store_dword v{vtmp}, v{vtmp+1}, s[{R_WS}:{R_WS+3}], s{s_off} offen sc1\ns_mov_b64 exec, -1")

    def flag_store(self, s_off, vtmp):
        a = self.a
        a(f"v_mov_b32 v{vtmp}, s{S_TAG}\nv_mov_b32 v{vtmp+1}, 0\ns_mov_b64 exec, 1")
        a(f"buffer_store_dword v{vtmp}, v{vtmp+1}, s[{R_WS}:{R_WS+3}], s{s_off} offen sc1\ns_mov_b64 exec, -1")

    def pipeline(self, stages, L, gstar, drain=True, wait_every=2, vis=None):
        a = self.a
        seq = [(si, gi, u) for si, st in enumerate(stages) for gi, u in enumerate(st["uses"])]
        issued = []
        vis = list(vis or [])
        state = dict(nxt=0, opened=-1)
        pend = []

        def collect(lim):
            while state["nxt"] < len(seq) and state["nxt"] <= lim and seq[state["nxt"]][0] <= state["opened"]:
                si_, _, u_ = seq[state["nxt"]]
                for name, txt in u_["reads"]:
                    pend.append((f"{si_}:{name}", txt))
                state["nxt"] += 1
                if seq[state["nxt"] - 1][1] == len(stages[si_]["uses"]) - 1 and si_ + 1 < len(stages):
                    state["defer"] = list(stages[si_ + 1].get("pre", []))

        def out(txt):
            if ";@" in txt:
                vis.append(txt.split(";@")[1].strip())
            a(txt)

        def emit(n):
            for _ in range(min(n, len(pend))):
                name, txt = pend.pop(0)
                out(txt)
                if name:
                    issued.append(name)

        a(stages[0]["bar"])
        state["opened"] = 0
        collect(L - 1)
        emit(len(pend))
        n_real = sum(len(st["uses"]) for st in stages if not st.get("virtual"))
        covered = -1
        for f in range(n_real):
            si, gi, u = seq[f]
            nuse = len(stages[si]["uses"])
            if gi == 0 and stages[si].get("head"):
                assert not pend, pend
                a(stages[si]["head"])
                covered = -1
            if gi == gstar and si + 1 < len(stages):
                emit(len(pend))
                for x in state.pop("defer", []):
                    a(x)
                if drain:
                    a("s_waitcnt lgkmcnt(0)")
                    covered = len(issued) - 1
                a(stages[si + 1]["bar"])
                pend.extend((None, x) for x in stages[si + 1].get("bar_pend", []))
                state["opened"] = si + 1
                collect(f + L - 1)
            def lastidx(ff):
                s_, _, uu = seq[ff]
                return max(len(issued) - 1 - issued[::-1].index(f"{s_}:{nm}") for nm in uu["need"])
            w = []
            if lastidx(f) > covered:
                tgt = lastidx(f)
                for ff in range(f + 1, min(f + wait_every, n_real)):
                    if seq[ff][0] != si:
                        break
                    try:
                        tgt = max(tgt, lastidx(ff))
                    except ValueError:
                        break
                n = len(issued) - 1 - tgt
                assert n <= 15, n
                w.append(f"lgkmcnt({n})")
                covered = tgt
            if u.get("vneed") is not None:
                w.insert(0, f"vmcnt({len(vis) - 1 - vis.index(u['vneed'])})")
            if u.get("vm") is not None:
                npv = sum(1 for nm_, t_ in pend if t_.strip().startswith("buffer_load"))
                w.insert(0, f"vmcnt({u['vm'] - npv})")
            if w:
                a("s_waitcnt " + " ".join(w))
            if u.get("before"):
                a(u["before"])
            if state.get("defer") and not pend:
                n_ = self.o.get("npre", 7)
                pend.extend((None, x) for x in state["defer"][:n_])
                state["defer"] = state["defer"][n_:]
            collect(f + L)
            if state.get("mix"):
                k_ = state.pop("mix")
                head_, rest_ = pend[:k_], pend[k_:]
                pend[:] = [x for pr in zip(head_, rest_) for x in pr] + head_[len(rest_):] + rest_[len(head_):]
            nm_ = len(u["mf"])
            for k, m in enumerate(u["mf"]):
                a(m)
                left = nm_ - k
                if drain and gi >= gstar:
                    left += sum(len(uu["mf"]) for uu in stages[si]["uses"][gi + 1:])
                    extra = 2 * (nuse - 1 - gi)
                    emit(-(-(len(pend) + extra) // left) if left > 1 else len(pend))
                else:
                    emit(-(-len(pend) // left))
            if u.get("after"):
                items = [x for x in u["after"].split("\n") if x.strip()]
                if gi == nuse - 1:
                    for x in items:
                        out(x)
                else:
                    assert not pend
                    pend.extend((None, x) for x in items)
                    state["mix"] = len(items)
            if gi == nuse - 1 and stages[si].get("tail"):
                a(stages[si]["tail"])

    def prologue(self):
        a = self.a
        a(f"""
        s_cmp_ge_u32 s2, 256
        s_cbranch_scc1 L_exit
        {"v_mov_b32 v254, 0" if self.stamps else ""}
        {"v_mov_b32 v255, 0" if self.stamps else ""}
        {"s_memrealtime s[98:99]" if self.o.get("calib") or "pc1" in self.o else ""}
        {"s_mov_b32 s94, 0" if "probe" in self.o or "pc1" in self.o else ""}
        s_load_dwordx16 s[4:19], s[0:1], 0
        s_load_dwordx8 s[20:27], s[0:1], 64
        """)
        if self.o.get("pf_code") == 2:
            a(f"""
            s_getpc_b64 s[{S_T0}:{S_T0+1}]
            L_pcref:
            s_lshr_b32 s3, s2, 3
            s_mul_i32 s3, s3, 1280
            v_lshlrev_b32 v4, 7, v0
            v_add_u32 v4, s3, v4
            v_min_u32 v4, L_exit-L_pcref, v4
            v_cmp_gt_u32 vcc, 10, v0
            s_and_saveexec_b64 s[{S_T0+2}:{S_T0+3}], vcc
            s_cbranch_execz L_nocpf
            global_load_dword v253, v4, s[{S_T0}:{S_T0+1}]
            L_nocpf:
            s_mov_b64 exec, -1
            """)
        a(f"""
        v_and_b32 v1, 63, v0
        v_lshrrev_b32 v2, 6, v0
        s_and_b32 s{S_XCD}, s2, 7
        v_readfirstlane_b32 s{S_WAVE}, v2
        s_lshr_b32 s{S_J}, s2, 3
        s_waitcnt lgkmcnt(0)
        s_load_dword s{S_TAG}, s[{P_WS}:{P_WS+1}], 0
        """)
        self.srd(R_WS, P_WS, WS_USED)
        self.srd(R_X, P_X, 2048 * 1280)
        self.srd(R_W2, P_W2, 1536 * 4096)
        if self.stamps or self.o.get("dbg") or "probe" in self.o:
            a(f"s_cmp_lg_u32 s{S_WAVE}, 0\ns_cbranch_scc1 L_nost0")
            self.stamp(0, 4)
            a("L_nost0:")
        if self.o.get("tlb"):
            self.tlb_warm()
        if self.o.get("pf_code") == 1:
            self.code_prefetch()
        if self.o.get("prio"):
            a(f"""
            s_sub_u32 s{S_T0}, s{S_WAVE}, 4
            s_cmp_lt_u32 s{S_T0}, 3
            s_cbranch_scc1 L_noprio
            s_setprio 3
            L_noprio:
            """)
        a(f"""
        s_lshr_b32 s{S_T0}, s{S_XCD}, 1
        s_lshl_b32 s{S_T0}, s{S_T0}, 3
        s_lshr_b32 s{S_ST}, s{S_J}, 2
        s_add_u32 s{S_ST}, s{S_ST}, s{S_T0}
        s_and_b32 s{S_T0}, s{S_XCD}, 1
        s_lshl_b32 s{S_T0}, s{S_T0}, 2
        s_and_b32 s{S_DTILE}, s{S_J}, 3
        s_add_u32 s{S_DTILE}, s{S_DTILE}, s{S_T0}
        s_cmp_lt_u32 s{S_XCD}, 4
        s_cbranch_scc1 L_roleB
        """)

    V_W2 = 240

    def f_perm(self):
        a = self.a
        a(f"s_lshl_b32 s{S_M}, s{S_DTILE}, 1\ns_add_u32 s{S_M}, s{S_M}, s{S_ST}\ns_and_b32 s{S_M}, s{S_M}, 7")
        self.perm_setup(S_M, 12, 8, S_PERM, self.o.get("rotF"))

    def w2_setup(self):
        a = self.a
        V = self.V_W2
        self.f_perm()
        a(f"""
        v_lshrrev_b32 v{V}, 3, v1
        v_lshrrev_b32 v{V+1}, 4, v1
        v_lshlrev_b32 v{V+1}, 1, v{V+1}
        v_and_b32 v{V+2}, 7, v1
        v_xor_b32 v{V+1}, v{V+1}, v{V+2}
        v_lshlrev_b32 v{V+1}, 4, v{V+1}
        v_lshl_add_u32 v{V}, v{V}, 12, v{V+1}
        v_add_u32 v{V+1}, {32768-1024}, v{V}
        v_add_u32 v{V+2}, {2*(32768-1024)}, v{V}
        v_add_u32 v{V+3}, {3*(32768-1024)}, v{V}
        s_sub_u32 s{S_T0}, s{S_WAVE}, 5
        s_lshl_b32 s{S_B}, s{S_T0}, 13
        s_lshl_b32 s{S_A}, s{S_T0}, 18
        s_lshl_b32 s{S_T0}, s{S_ST}, 7
        s_add_u32 s{S_A}, s{S_A}, s{S_T0}
        """)

    def w2_issue_at(self, p):
        a = self.a
        V = self.V_W2
        a(f"s_bfe_u32 s{S_T0}, s{S_PERM}, {(4 << 16) | (4 * p):#x}\ns_lshl_b32 s{S_T0}, s{S_T0}, 19\ns_add_u32 s{S_T0}, s{S_T0}, s{S_A}")
        for g in range(2):
            a(f"s_add_u32 m0, s{S_B}, {p*16384 + g*4096}")
            a(f"s_add_u32 s{S_T0}, s{S_T0}, {g*4*32768}")
            for i in range(4):
                a(f"buffer_load_dwordx4 v{V+i}, s[{R_W2}:{R_W2+3}], s{S_T0} offen offset:{i*1024} lds")

    def w2_half(self, g):
        a = self.a
        V = self.V_W2
        if g == 0:
            a(self.perm_next(S_K0, S_PERM, 128 * 4096) + f"s_add_u32 s{S_K0}, s{S_K0}, s{S_A}")
        a(f"s_add_u32 m0, s{S_B}, {g*4096}\ns_add_u32 s{S_T0}, s{S_K0}, {g*4*32768}")
        for i in range(4):
            a(f"buffer_load_dwordx4 v{V+i}, s[{R_W2}:{R_W2+3}], s{S_T0} offen offset:{i*1024} lds")
        if g == 1:
            a(f"s_add_u32 s{S_B}, s{S_B}, 16384")

    def w2_issue(self):
        a = self.a
        V = self.V_W2
        a(self.perm_next(S_T0, S_PERM, 128 * 4096))
        a(f"s_add_u32 s{S_T0}, s{S_T0}, s{S_A}")
        for g in range(2):
            a(f"s_add_u32 m0, s{S_B}, {g*4096}")
            a(f"s_add_u32 s{S_T0}, s{S_T0}, {g*4*32768}")
            for i in range(4):
                a(f"buffer_load_dwordx4 v{V+i}, s[{R_W2}:{R_W2+3}], s{S_T0} offen offset:{i*1024} lds")
        a(f"s_add_u32 s{S_B}, s{S_B}, 16384\ns_and_b32 s{S_B}, s{S_B}, 0x1ffff")

    def w2_prefill(self, n):
        if n == 0:
            return
        a = self.a
        lp = a.label("pf")
        a(f"s_mov_b32 s{S_C}, 0\n{lp}:")
        self.w2_issue()
        a(f"s_add_u32 s{S_C}, s{S_C}, 1\ns_cmp_lt_u32 s{S_C}, {n}\ns_cbranch_scc1 {lp}")

    def if_wave56(self):
        a = self.a
        skip = a.label("n56")
        a(f"s_sub_u32 s{S_T0}, s{S_WAVE}, 5\ns_cmp_lt_u32 s{S_T0}, 2\ns_cbranch_scc0 {skip}")
        return skip

    def role_a(self):
        a = self.a
        a(f"L_roleA:\ns_mov_b32 s{S_FROMA}, 1")
        a(f"s_sub_u32 s{S_MT}, s{S_ST}, 16\ns_mov_b32 s{S_HG}, s{S_DTILE}")
        a(f"s_cmp_ge_u32 s{S_WAVE}, 4\ns_cbranch_scc1 L_A_loader")
        ACC, XF, WF, VXA, VWA = 128, 96, 64, 4, 6
        if self.o.get("ta1") or self.o.get("ta2"):
            self.start_prefetch()
        self.a_thread_map()
        a(f"""
        v_and_b32 v16, 15, v1
        v_lshrrev_b32 v17, 4, v1
        s_lshl_b32 s{S_T0}, s{S_WAVE}, 5
        v_add_u32 v18, s{S_T0}, v16
        v_lshrrev_b32 v19, 1, v16
        v_xor_b32 v19, v17, v19
        v_lshlrev_b32 v19, 4, v19
        v_lshl_add_u32 v{VXA}, v18, 7, v19
        v_xor_b32 v{VXA+1}, 64, v{VXA}
        v_lshrrev_b32 v18, 2, v16
        v_lshl_add_u32 v19, v17, 3, v18
        v_and_b32 v20, 1, v17
        v_lshl_or_b32 v20, v20, 2, v18
        v_lshlrev_b32 v19, 9, v19
        v_lshl_add_u32 v19, v20, 5, v19
        v_and_b32 v20, 3, v16
        v_lshl_add_u32 v19, v20, 3, v19
        v_add_u32 v{VWA}, {A_WOFF}, v19
        """)
        for n in range(1, 8):
            a(f"v_xor_b32 v{VWA+n}, {n<<5}, v{VWA}")
        for r in range(120):
            a(f"v_mov_b32 v{ACC+r}, 0")
        a(f"s_mov_b32 s{S_A}, 0\ns_mov_b32 s{S_B}, 0\ns_mov_b32 s{S_C}, {A_SLOT}\ns_waitcnt lgkmcnt(0)")
        a(f"s_add_u32 s{S_TAG}, s{S_TAG}, {TAG_INC:#x}")

        RING = 6
        D = 6

        def mk_stage(bar, virtual=False, head=None, tail=None):
            uses = []
            for g in range(30):
                ks, n = divmod(g, 15)
                wb = WF + 4 * (g % RING)
                reads = []
                if g == 0:
                    for rb in range(2):
                        reads.append((f"x0{rb}", f"ds_read_b128 {vr(XF+4*rb,4)}, v{VXA} offset:{rb*2048}"))
                if g == 13:
                    for rb in range(2):
                        reads.append((f"x1{rb}", f"ds_read_b128 {vr(XF+8+4*rb,4)}, v{VXA+1} offset:{rb*2048}"))
                off = ks * 16384 + (n >> 3) * 256
                reads.append((f"w{g}a", f"ds_read_b64_tr_b16 {vr(wb,2)}, v{VWA+(n&7)} offset:{off}"))
                reads.append((f"w{g}b", f"ds_read_b64_tr_b16 {vr(wb+2,2)}, v{VWA+(n&7)} offset:{off+2048}"))
                need = [f"w{g}b", f"x{ks}1"]
                mf = []
                for rb in range(2):
                    acc = vr(ACC + (n * 2 + rb) * 4, 4)
                    xf = vr(XF + ks * 8 + rb * 4, 4)
                    wf = vr(wb, 4)
                    if n < 5:
                        mf.append(f"v_mfma_f32_16x16x32_bf16 {acc}, {wf}, {xf}, {acc}")
                    else:
                        mf.append(f"v_mfma_f32_16x16x32_bf16 {acc}, {xf}, {wf}, {acc}")
                u_ = dict(reads=reads, need=need, mf=mf)
                if g == 10 and self.o.get("half0"):
                    u_["before"] = f"s_cmp_lg_u32 s{S_A}, 0\ns_cbranch_scc1 L_A_nb0\ns_barrier\nL_A_nb0:"
                uses.append(u_)
            return dict(uses=uses, bar=bar, virtual=virtual, head=head, tail=tail)

        adv = "s_barrier"
        pre = [f"s_add_u32 s{S_B}, s{S_B}, 1", f"s_cmp_eq_u32 s{S_B}, 3", f"s_cselect_b32 s{S_B}, 0, s{S_B}",
               f"s_cselect_b32 s{S_T0}, {(-2*A_SLOT) & 0xffffffff:#x}, s{S_C}"]
        pre += [f"v_add_u32 v{r}, s{S_T0}, v{r}" for r in range(VXA, VWA + 8)]
        tail = f"s_add_u32 s{S_A}, s{S_A}, 1\ns_cmp_lt_u32 s{S_A}, 10\ns_cbranch_scc1 L_A_loop"
        head = "L_A_loop:\n"
        bar0 = "s_barrier"
        self.uw_srd()
        if self.o.get("tw2") == 2:
            self.srd(R_M, P_WO, 640 * 1280)
            a(f"""
            v_lshlrev_b32 v252, 7, v1
            s_lshl_b32 s{S_T0}, s{S_MT}, 3
            s_add_u32 s{S_T0}, s{S_T0}, s{S_HG}
            s_lshl_b32 s{S_T0}, s{S_T0}, 2
            s_add_u32 s{S_T0}, s{S_T0}, s{S_WAVE}
            s_mul_i32 s{S_D}, s{S_T0}, {8192 if self.o.get("hW2") else 12288}
            s_add_u32 s{S_KST}, s{S_D}, 8192
            s_mul_i32 s{S_PAR}, s{S_T0}, 1664
            s_and_b32 s{S_M}, s{S_J}, 7
            s_mul_i32 s{S_M}, s{S_M}, {self.o.get("stg", 4)}
            s_lshr_b32 s{S_M}, s{S_M}, 2
            s_add_u32 s{S_M}, s{S_M}, {self.o.get("tw2at", 1)}
            """)
            head += f"""
            s_cmp_lg_u32 s{S_A}, s{S_M}
            s_cbranch_scc1 L_A_nt2
            buffer_load_dword v253, v252, s[{R_W2}:{R_W2+3}], s{S_D} offen
            s_mov_b32 exec_hi, 0
            {"" if self.o.get("hW2") else f"buffer_load_dword v253, v252, s[{R_W2}:{R_W2+3}], s{S_KST} offen"}
            s_mov_b32 exec_lo, 0x1fff
            {"" if self.o.get("woLN") else f"buffer_load_dword v253, v252, s[{R_M}:{R_M+3}], s{S_PAR} offen"}
            s_mov_b64 exec, -1
            L_A_nt2:
            """
        if "promA" in self.o:
            head += f"s_cmp_lg_u32 s{S_A}, {self.o['promA']}\ns_cbranch_scc1 L_A_npr\n" + self.pf_rest_plain() + "L_A_npr:\n"
        ta2 = self.o.get("ta2")
        if ta2 == 1:
            a(self.pf_rest())
        elif ta2 == 2:
            bar0 += "\n" + self.pf_rest()
        elif ta2:
            head += f"s_cmp_lg_u32 s{S_A}, {ta2-2}\ns_cbranch_scc1 L_A_npf\n" + self.pf_rest() + "L_A_npf:\n"
        self.pipeline([mk_stage(bar0, head=head, tail=tail), dict(mk_stage(adv, virtual=True), pre=pre)], 5, 30 - 3, wait_every=self.o.get('we', 2))
        self.stamp(2, 16)
        PK, VV, ONES, KVD, ZD = 16, 36, 56, 64, 116
        a(f"""
        L_A_tail:
        s_mov_b32 s{S_K0}, {LOG2E:#x}
        s_mov_b32 s{S_K0+1}, {LOG2E:#x}
        s_mov_b32 s{S_K0+2}, {f2u(1e-6):#x}
        s_mul_i32 s{S_T0}, s{S_WAVE}, {EXCH_ST}
        s_add_u32 s{S_T0}, s{S_T0}, {EXCH}
        v_lshlrev_b32 v4, 4, v1
        v_add_u32 v4, s{S_T0}, v4
        v_and_b32 v5, 15, v1
        v_lshlrev_b32 v5, 2, v5
        v_add_u32 v5, s{S_T0}, v5
        """)
        for k in range(4):
            a(f"v_mov_b32 v{ONES+k}, 0x3f803f80")

        def phi(base, n, t):
            for i in range(0, n, 4):
                r = base + i
                a(f"v_pk_mul_f32 {vr(t,2)}, {vr(r,2)}, s[{S_K0}:{S_K0+1}]")
                a(f"v_pk_mul_f32 {vr(t+2,2)}, {vr(r+2,2)}, s[{S_K0}:{S_K0+1}]")
                for k in range(4):
                    a(f"v_exp_f32_e64 v{t+k}, v{t+k} clamp")
                for k in range(4):
                    a(f"v_max_f32 v{r+k}, s{S_K0+2}, v{r+k}")
                a(f"v_pk_add_f32 {vr(r,2)}, {vr(r,2)}, {vr(t,2)}")
                a(f"v_pk_add_f32 {vr(r+2,2)}, {vr(r+2,2)}, {vr(t+2,2)}")

        def pack(dst, src0, src1):
            a(f"v_cvt_pk_bf16_f32 v{dst}, v{src0}, v{src0+1}\nv_cvt_pk_bf16_f32 v{dst+1}, v{src0+2}, v{src0+3}")
            if src1 is None:
                a(f"v_mov_b32 v{dst+2}, 0\nv_mov_b32 v{dst+3}, 0")
            else:
                a(f"v_cvt_pk_bf16_f32 v{dst+2}, v{src1}, v{src1+1}\nv_cvt_pk_bf16_f32 v{dst+3}, v{src1+2}, v{src1+3}")

        for b in range(5):
            pack(VV + 4 * b, ACC + (10 + b) * 8, ACC + (10 + b) * 8 + 4)
        a("s_waitcnt lgkmcnt(0)")
        ZD = ACC + 80

        def writes(x):
            for y in range(5):
                if abs(x - y) <= 1:
                    a(f"ds_write_b128 v4, {vr(KVD+4*(2*x+y),4)} offset:{(2*x+y)*1024}")
            a(f"ds_write_b32 v5, v{ZD+4*x} offset:{13312+64*x}")
        phi(ACC + 40, 40, 60)
        for x in range(5):
            pack(PK + 4 * x, ACC + (5 + x) * 8, ACC + (5 + x) * 8 + 4)
        a("s_nop 1")
        for x in range(5):
            for y in range(5):
                if abs(x - y) <= 1:
                    a(f"v_mfma_f32_16x16x32_bf16 {vr(KVD+4*(2*x+y),4)}, {vr(PK+4*x,4)}, {vr(VV+4*y,4)}, 0")
            a(f"v_mfma_f32_16x16x32_bf16 {vr(ZD+4*x,4)}, {vr(ONES,4)}, {vr(PK+4*x,4)}, 0")
            if x >= 3:
                writes(x - 3)
        for x in range(2, 5):
            writes(x)
        self.stamp(10, 40)
        a("s_waitcnt lgkmcnt(0)\ns_barrier")
        self.stamp(11, 40)
        self.a_reduce_publish(64)
        self.stamp(12, 40)
        self.vl_setup()
        a("s_barrier")
        self.stamp(14, 40)
        self.wot_preload()
        PQ = 16
        phi(ACC, 40, 60)
        for ts in range(3):
            for rb in range(2):
                pack(PQ + (ts * 2 + rb) * 4, ACC + (2 * ts * 2 + rb) * 4, None if ts == 2 else ACC + ((2 * ts + 1) * 2 + rb) * 4)
        self.f_setup()
        a("s_barrier")
        a(f"""
        v_and_b32 v63, 15, v1
        v_lshlrev_b32 v63, 2, v63
        s_lshl_b32 s{S_T0}, s{S_MT}, 7
        s_lshl_b32 s{S_T0+1}, s{S_WAVE}, 5
        s_add_u32 s{S_T0}, s{S_T0}, s{S_T0+1}
        s_lshl_b32 s{S_T0}, s{S_T0}, 2
        s_add_u32 s{S_T0}, s{S_T0}, {G_OFF}
        buffer_load_dword v62, v63, s[{R_WS}:{R_WS+3}], s{S_T0} offen sc1
        buffer_load_dword v61, v63, s[{R_WS}:{R_WS+3}], s{S_T0} offen offset:64 sc1
        """)
        SG1, SG2 = 93, S_M
        a(f"""
        v_lshrrev_b32 v40, 4, v1
        v_cmp_gt_u32 s[{S_MSK}:{S_MSK+1}], 1, v40
        v_cmp_gt_u32 s[{S_MSK+2}:{S_MSK+3}], 2, v40
        v_cmp_gt_u32 s[{S_MSK+4}:{S_MSK+5}], 3, v40
        s_lshl_b32 s{S_T0}, s{S_MT}, 3
        s_lshl_b32 s{S_T0+1}, s{S_WAVE}, 1
        s_add_u32 s{S_T0}, s{S_T0}, s{S_T0+1}
        s_mul_i32 s{S_T0}, s{S_T0}, {GO_ST}
        s_add_u32 s{S_T0}, s{S_T0}, {GO}
        s_lshl_b32 s{SG1}, s{S_HG}, 11
        s_add_u32 s{SG1}, s{SG1}, s{S_T0}
        s_lshl_b32 s{SG2}, s{S_HG}, 9
        s_add_u32 s{SG2}, s{SG2}, s{S_T0}
        s_add_u32 s{SG2}, s{SG2}, 16384
        v_lshlrev_b32 v40, 4, v1
        v_lshlrev_b32 v41, 3, v1
        v_add_u32 v60, {KVT}, v40
        """)
        self.a_gather(64)
        a("s_waitcnt lgkmcnt(0)\ns_barrier")
        self.stamp(4, 40)
        FR = 64
        used = [11, 12, 13, 0, 2, 3, 4, 5, 7, 8, 9, 10]
        for f in used:
            a(f"ds_read_b128 {vr(FR+4*f,4)}, v60 offset:{f*1024}")
        NUM, DEN = 128, 120
        kts = {0: [0], 1: [0, 1], 2: [0, 1], 3: [1, 2], 4: [1, 2]}
        a("s_waitcnt lgkmcnt(9)")
        for ts in range(3):
            for rb in range(2):
                c = "0" if ts == 0 else vr(DEN + 4 * rb, 4)
                a(f"v_mfma_f32_16x16x32_bf16 {vr(DEN+4*rb,4)}, {vr(FR+4*(11+ts),4)}, {vr(PQ+(ts*2+rb)*4,4)}, {c}")
        a("s_waitcnt lgkmcnt(0)")
        gv = {0: 62, 1: 61}
        fill = [f"v_add_f32 v{DEN+i}, s{S_K0+2}, v{DEN+i}" for i in range(8)]
        fill += [f"v_rcp_f32 v{DEN+i}, v{DEN+i}" for i in range(8)]
        fill += [f"v_mul_f32 v{DEN+i}, v{gv[i >> 2]}, v{DEN+i}" for i in range(8)]
        nm = 0
        for rb in range(2):
            for b in range(5):
                for i, ts in enumerate(kts[b]):
                    d = vr(NUM + (rb * 5 + b) * 4, 4)
                    c = "0" if i == 0 else d
                    a(f"v_mfma_f32_16x16x32_bf16 {d}, {vr(FR+4*(2*b+ts),4)}, {vr(PQ+(ts*2+rb)*4,4)}, {c}")
                    nm += 1
                    if nm >= 7:
                        for _ in range(2):
                            if fill:
                                a(fill.pop(0))
        assert not fill
        for rb in range(2):
            d = DEN + 4 * rb
            a(f"v_cndmask_b32 v44, v{d+1}, v{d}, s[{S_MSK}:{S_MSK+1}]")
            a(f"v_cndmask_b32 v45, v{d+2}, v{d+1}, s[{S_MSK+2}:{S_MSK+3}]")
            a(f"v_cndmask_b32 v46, v{d+3}, v{d+2}, s[{S_MSK+4}:{S_MSK+5}]")
            sc = [d, 44, 45, 46, d + 3]
            for b in range(5):
                for k in range(4):
                    r = NUM + (rb * 5 + b) * 4 + k
                    a(f"v_mul_f32 v{r}, v{sc[b]}, v{r}")
            o = 16 + rb * 12
            n0 = NUM + rb * 20
            pack(o, n0, n0 + 4)
            pack(o + 4, n0 + 8, n0 + 12)
            a(f"v_cvt_pk_bf16_f32 v{o+8}, v{n0+16}, v{n0+17}\nv_cvt_pk_bf16_f32 v{o+9}, v{n0+18}, v{n0+19}")
            a(f"buffer_store_dwordx4 {vr(o,4)}, v40, s[{R_WS}:{R_WS+3}], s{SG1} offen sc1")
            a(f"buffer_store_dwordx4 {vr(o+4,4)}, v40, s[{R_WS}:{R_WS+3}], s{SG1} offen offset:1024 sc1")
            a(f"buffer_store_dwordx2 {vr(o+8,2)}, v41, s[{R_WS}:{R_WS+3}], s{SG2} offen sc1")
            if rb == 0:
                a(f"s_add_u32 s{SG1}, s{SG1}, {GO_ST}\ns_add_u32 s{SG2}, s{SG2}, {GO_ST}")
        self.stamp(5, 40)
        a("s_branch L_F_comp")

        a("L_A_loader:")
        VX, VW = 4, 8
        self.srd(R_W, P_WQKV, 640 * 3840)
        a(f"""
        s_sub_u32 s{S_D}, s{S_WAVE}, 4
        v_lshrrev_b32 v16, 3, v1
        v_lshrrev_b32 v17, 4, v1
        v_and_b32 v18, 7, v1
        v_xor_b32 v17, v17, v18
        v_lshlrev_b32 v17, 4, v17
        v_mul_u32_u24 v16, 1280, v16
        v_add_u32 v{VX}, v16, v17
        v_xor_b32 v18, 64, v{VX}
        v_add_u32 v{VX+1}, {8*1280-1024}, v18
        v_add_u32 v{VX+2}, {2*(8*1280-1024)}, v{VX}
        v_add_u32 v{VX+3}, {3*(8*1280-1024)}, v18
        s_lshl_b32 s{S_T0}, s{S_MT}, 7
        s_lshl_b32 s{S_T0+1}, s{S_D}, 5
        s_add_u32 s{S_T0}, s{S_T0}, s{S_T0+1}
        s_mul_i32 s{S_A}, s{S_T0}, 1280
        s_lshl_b32 s{S_C}, s{S_D}, 12
        """)
        def issue_x():
            a(f"s_mov_b32 m0, s{S_C}\ns_nop 0")
            for i in range(4):
                a(f"buffer_load_dwordx4 v{VX+i}, s[{R_X}:{R_X+3}], s{S_A} offen offset:{i*1024} lds")
            a(f"s_add_u32 s{S_A}, s{S_A}, 128")

        def issue_w():
            for g in range(2):
                a(f"s_add_u32 m0, s{S_C}, {A_WOFF + g*16384}\ns_add_u32 s{S_T0}, s{S_B}, {g*32*3840}")
                for i in range(4):
                    a(f"buffer_load_dwordx4 v{VW+i}, s[{R_W}:{R_W+3}], s{S_T0} offen offset:{i*1024} lds")
            a(f"s_add_u32 s{S_B}, s{S_B}, {64*3840}")

        def next_slot():
            a(f"s_add_u32 s{S_C}, s{S_C}, {A_SLOT}\ns_cmp_ge_u32 s{S_C}, {3*A_SLOT}\ns_cselect_b32 s{S_T0}, {3*A_SLOT}, 0\ns_sub_u32 s{S_C}, s{S_C}, s{S_T0}")

        issue_x()
        a(f"""
        v_lshrrev_b32 v16, 5, v1
        v_bfe_u32 v17, v1, 1, 4
        v_and_b32 v18, 1, v1
        v_lshlrev_b32 v18, 4, v18
        v_mul_u32_u24 v19, 3840, v16
        v_add_u32 v18, v18, v19
        """)
        a(f"s_and_b32 s{S_T0}, s{S_D}, 1\ns_lshl_b32 s{S_T0}, s{S_T0}, 2\nv_or_b32 v16, s{S_T0}, v16")
        for i in (0, 1):
            a(f"""
            v_or_b32 v19, {2*i}, v16
            v_xor_b32 v19, v17, v19
            v_min_u32 v19, 14, v19
            v_mul_u32_u24 v20, 13, v19
            v_lshrrev_b32 v20, 6, v20
            v_mul_u32_u24 v20, 1120, v20
            v_lshl_add_u32 v19, v19, 5, v20
            v_add_u32 v19, v19, v18
            v_add_u32 v{VW+i}, {2*i*3840 - i*1024}, v19
            v_add_u32 v{VW+i+2}, {2*(i+2)*3840 - (i+2)*1024}, v19
            """)
        a(f"""
        s_mul_i32 s{S_B}, s{S_HG}, 160
        s_mul_i32 s{S_T0}, s{S_D}, {8*3840}
        s_add_u32 s{S_B}, s{S_B}, s{S_T0}
        """)
        issue_w()
        for _ in range(2):
            next_slot()
            issue_x()
            issue_w()
        a(f"s_waitcnt lgkmcnt(0)\ns_add_u32 s{S_TAG}, s{S_TAG}, {TAG_INC:#x}")
        if self.o.get("half0"):
            a("s_waitcnt vmcnt(28)\ns_barrier")
        a("s_waitcnt vmcnt(24)\ns_barrier")
        self.stamp(1, 16)
        rotA = self.o.get("rotA")
        if rotA:
            a(f"s_lshl_b32 s{S_M}, s{S_HG}, 1\ns_add_u32 s{S_M}, s{S_M}, s{S_MT}\ns_and_b32 s{S_M}, s{S_M}, 7")
            self.perm_setup(S_M, 7, 8, S_PERM, rotA)
            a(f"s_mov_b32 s{S_KST}, s{S_A}\ns_mov_b32 s{S_PAR}, s{S_B}")
        a(f"s_mov_b32 s{S_CNT}, 1\nL_A_lloop:")
        if rotA:
            a(self.perm_next(S_B, S_PERM, 1))
            a(f"s_lshl_b32 s{S_A}, s{S_B}, 7\ns_add_u32 s{S_A}, s{S_A}, s{S_KST}\ns_mul_i32 s{S_B}, s{S_B}, {64*3840}\ns_add_u32 s{S_B}, s{S_B}, s{S_PAR}")
        a("s_waitcnt vmcnt(12)\ns_barrier")
        self.stamp(16, 16, dyn=S_CNT)
        next_slot()
        issue_x()
        issue_w()
        a(f"s_add_u32 s{S_CNT}, s{S_CNT}, 1\ns_cmp_le_u32 s{S_CNT}, 7\ns_cbranch_scc1 L_A_lloop")
        tw = 3 if self.o.get("tw2") == 1 else 0
        a(f"s_waitcnt vmcnt(12)\ns_barrier")
        if tw:
            self.w2_touch()
        self.stamp(24, 16)
        self.w2_setup()
        self.a_thread_map()
        a(f"""
        s_mul_i32 s{S_T0}, s{S_DTILE}, {FS}
        s_add_u32 s{S_T0}, s{S_T0}, {F_WOT}
        v_mov_b32 v26, s{S_T0}
        v_and_b32 v27, 3, v1
        s_lshl_b32 s{S_T0}, s{S_MT}, 2
        v_add_u32 v27, s{S_T0}, v27
        v_mul_u32_u24 v27, {FS}, v27
        v_add_u32 v27, {F_LN}, v27
        v_cmp_gt_u32 vcc, 32, v1
        s_nop 1
        v_cndmask_b32 v26, v27, v26, vcc
        """)
        a(f"s_waitcnt vmcnt({tw})\ns_barrier")
        if self.o.get("look", 9) == 9:
            a(f"buffer_load_dword v28, v26, s[{R_WS}:{R_WS+3}], 0 offen sc1")
        self.stamp(25, 16)
        self.code_touch([("L_A_tail", 0), ("L_A_post", 0), ("L_F_comp", 0), ("L_F_comp", 1)])
        a("L_A_post:")
        eA = self.o.get("eA", 2)
        early = [3, 4, 5, 0, 1, 2]
        nE = self.o.get("nE", 6)
        sk = self.if_wave56()
        for p in early[:eA]:
            self.w2_issue_at(p)
        a(f"{sk}:\ns_barrier")
        if self.o.get("look", 9) == 10:
            a(f"buffer_load_dword v28, v26, s[{R_WS}:{R_WS+3}], 0 offen sc1")
        self.stamp(26, 16)
        sk = self.if_wave56()
        for p in early[eA:nE]:
            self.w2_issue_at(p)
        a(f"{sk}:")
        a(f"s_cmp_eq_u32 s{S_WAVE}, 7\ns_cbranch_scc1 L_A_poller")
        a("s_barrier")
        self.a_reduce_publish(64)
        self.stamp(15, 40)
        a("s_barrier")
        self.kvt_zero()
        skip = self.if_wave56()
        for p in early[nE:] + [6, 7]:
            self.w2_issue_at(p)
        a(f"s_mov_b32 s{S_PERM}, s{S_PERM+1}")
        a("s_barrier")
        self.a_gather(64)
        a("s_waitcnt lgkmcnt(0)\ns_barrier")
        a("s_branch L_F_loader")
        a(f"{skip}:\ns_barrier")
        self.a_gather(64)
        a("s_waitcnt lgkmcnt(0)\ns_barrier")
        a("s_branch L_F_u4")
        a("L_A_poller:")
        a(f"s_waitcnt vmcnt({4 if self.o.get('ctouch') and self.o.get('look', 9) == 9 else 0})\nv_cmp_ne_u32 vcc, s{S_TAG}, v28\ns_nop 1\ns_cmp_eq_u64 vcc, 0\ns_cbranch_scc1 L_A_pok")
        self.poll([26], 18)
        a("L_A_pok:")
        self.stamp(13, 16)
        a("s_barrier\ns_barrier")
        self.kvt_zero()
        self.stamp(3, 16)
        a("s_barrier\ns_barrier")
        a("s_branch L_F_poller")
        self.a_gather_body(64)

    def code_touch(self, ranges):
        a = self.a
        if not self.o.get("ctouch"):
            return 0
        lab, ref = a.label("nct"), a.label("pc")
        a(f"s_cmp_lg_u32 s{S_WAVE}, 7\ns_cbranch_scc1 {lab}\ns_getpc_b64 s[{S_T0}:{S_T0+1}]\n{ref}:\nv_lshlrev_b32 v24, 7, v1")
        for (start, k) in ranges:
            a(f"s_add_u32 s{S_T0+2}, s{S_T0}, {start}-{ref}+{k*8192}\ns_addc_u32 s{S_T0+3}, s{S_T0+1}, {'-1' if start == 'L_A_tail' else '0'}")
            a(f"v_min_u32 v25, L_exit-{start}-{k*8192}, v24\nglobal_load_dword v253, v25, s[{S_T0+2}:{S_T0+3}]")
        a(f"{lab}:")
        return len(ranges)

    def kvt_zero(self):
        a = self.a
        a(f"v_lshlrev_b32 v16, 4, v1\ns_lshl_b32 s{S_T0}, s{S_D}, 12\ns_add_u32 s{S_T0}, s{S_T0}, {KVT}\nv_add_u32 v16, s{S_T0}, v16")
        a("v_mov_b32 v20, 0\nv_mov_b32 v21, 0\nv_mov_b32 v22, 0\nv_mov_b32 v23, 0")
        for i in range(4):
            a(f"ds_write_b128 v16, v[20:23] offset:{i*1024}")
        a("s_waitcnt lgkmcnt(0)")

    def start_prefetch(self):
        a = self.a
        self.srd(R_W, P_WQKV, 640 * 3840)
        a(f"""
        s_lshl_b32 s{S_T0}, s{S_J}, 2
        s_add_u32 s{S_T0}, s{S_T0}, s{S_WAVE}
        v_lshrrev_b32 v16, 2, v1
        v_and_b32 v17, 3, v1
        v_mul_u32_u24 v16, 1280, v16
        v_lshl_add_u32 v16, v17, 7, v16
        s_lshr_b32 s{S_T0+2}, s{S_MT}, 3
        s_lshl_b32 s{S_T0+2}, s{S_T0+2}, 7
        s_add_u32 s{S_T0+2}, s{S_T0+2}, s{S_T0}
        s_mul_i32 s{S_DT}, s{S_T0+2}, {8*1280}
        v_lshrrev_b32 v19, 4, v1
        v_and_b32 v17, 15, v1
        v_min_u32 v17, 14, v17
        v_mul_u32_u24 v18, 13, v17
        v_lshrrev_b32 v18, 6, v18
        v_mul_u32_u24 v18, 640, v18
        v_lshl_add_u32 v18, v17, 7, v18
        v_mul_u32_u24 v19, 3840, v19
        v_add_u32 v112, v18, v19
        s_lshr_b32 s{S_T0+2}, s{S_HG}, 2
        s_mul_i32 s{S_T0+2}, s{S_T0+2}, 640
        s_mul_i32 s{S_FT}, s{S_T0}, {2*3840}
        s_add_u32 s{S_FT}, s{S_FT}, s{S_T0+2}
        """)
        if self.o.get("ta1"):
            a(f"""
            s_mov_b32 exec_hi, 0
            buffer_load_dword v253, v112, s[{R_W}:{R_W+3}], s{S_FT} offen {self.nt('nta')}
            buffer_load_dword v253, v16, s[{R_X}:{R_X+3}], s{S_DT} offen {self.nt('ntax')}
            s_mov_b32 exec_hi, -1
            """)
        a(f"""
        s_mul_i32 s{S_FT}, s{S_T0}, {3*3840}
        s_add_u32 s{S_FT}, s{S_FT}, s{S_T0+2}
        s_add_u32 s{S_FT}, s{S_FT}, {256*3840}
        v_lshrrev_b32 v16, 3, v1
        v_and_b32 v17, 7, v1
        v_min_u32 v17, 5, v17
        v_mul_u32_u24 v16, 1280, v16
        v_lshl_add_u32 v113, v17, 7, v16
        s_add_u32 s{S_DT}, s{S_DT}, 512
        """)

    def pf_rest_plain(self):
        return f"""s_waitcnt vmcnt(0)
        s_mov_b32 exec_hi, 0xffff
        buffer_load_dword v253, v112, s[{R_W}:{R_W+3}], s{S_FT} offen
        s_mov_b32 exec_hi, -1
        buffer_load_dword v253, v113, s[{R_X}:{R_X+3}], s{S_DT} offen
        """

    def pf_rest(self):
        return f"""s_mov_b32 exec_hi, 0xffff
        buffer_load_dword v253, v112, s[{R_W}:{R_W+3}], s{S_FT} offen {self.nt('nta')}
        s_mov_b32 exec_hi, -1
        buffer_load_dword v253, v113, s[{R_X}:{R_X+3}], s{S_DT} offen {self.nt('ntax')}
        """

    def w2_touch(self):
        a = self.a
        self.srd(R_W2, P_W2, 1536 * 4096)
        a(f"""
        v_lshlrev_b32 v48, 7, v1
        s_lshl_b32 s{S_T0}, s{S_MT}, 3
        s_add_u32 s{S_T0}, s{S_T0}, s{S_HG}
        s_lshl_b32 s{S_T0}, s{S_T0}, 2
        s_add_u32 s{S_T0}, s{S_T0}, s{S_D}
        s_mul_i32 s{S_T0}, s{S_T0}, 12288
        buffer_load_dword v253, v48, s[{R_W2}:{R_W2+3}], s{S_T0} offen
        s_add_u32 s{S_T0}, s{S_T0}, 8192
        s_mov_b32 exec_hi, 0
        buffer_load_dword v253, v48, s[{R_W2}:{R_W2+3}], s{S_T0} offen
        """)
        self.srd(R_P, P_WO, 640 * 1280)
        a(f"""
        s_lshl_b32 s{S_T0}, s{S_MT}, 3
        s_add_u32 s{S_T0}, s{S_T0}, s{S_HG}
        s_lshl_b32 s{S_T0}, s{S_T0}, 2
        s_add_u32 s{S_T0}, s{S_T0}, s{S_D}
        s_mul_i32 s{S_T0}, s{S_T0}, 1664
        s_mov_b32 exec_lo, 0x1fff
        buffer_load_dword v253, v48, s[{R_P}:{R_P+3}], s{S_T0} offen
        s_mov_b64 exec, -1
        """)

    def tlb_warm(self):
        a = self.a
        mode = self.o["tlb"]
        wv = self.o.get("tlbw", 3)
        a(f"s_cmp_lg_u32 s{S_WAVE}, {wv}\ns_cbranch_scc1 L_notlb")
        self.srd(R_OUT, P_OUT, 2048 * 1280)
        self.srd(R_M, P_B2, 4096)
        self.srd(R_P, P_WO, 640 * 1280)
        self.srd(R_W, P_W1, 2048 * 3072)
        if mode == 1:
            a("v_lshlrev_b32 v4, 20, v1\nv_min_u32 v4, 0xf00000, v4\ns_mov_b64 exec, 0xffff")
            so = "0"
        else:
            a(f"v_lshlrev_b32 v4, 21, v1\ns_lshl_b32 s{S_T0}, s{S_J}, 16\ns_mov_b64 exec, 0x1f")
            so = f"s{S_T0}"
        for r in (R_WS, R_W2, R_OUT, R_W, R_P, R_M):
            a(f"buffer_load_dword v253, v4, s[{r}:{r+3}], {so} offen sc1")
        a("s_mov_b64 exec, -1\nL_notlb:")

    def code_prefetch(self):
        a = self.a
        a(f"""
        s_cmp_lg_u32 s{S_WAVE}, 3
        s_cbranch_scc1 L_nocpf
        s_cmp_ge_u32 s{S_J}, 5
        s_cbranch_scc1 L_nocpf
        s_getpc_b64 s[{S_T0}:{S_T0+1}]
        L_pcref:
        s_lshl_b32 s{S_T0+2}, s{S_J}, 13
        v_lshlrev_b32 v4, 7, v1
        v_add_u32 v4, s{S_T0+2}, v4
        v_min_u32 v4, L_end-L_pcref, v4
        global_load_dword v253, v4, s[{S_T0}:{S_T0+1}]
        L_nocpf:
        """)

    def a_thread_map(self):
        a = self.a
        a(f"""
        v_mul_u32_u24 v16, 625, v0
        v_lshrrev_b32 v16, 16, v16
        v_mul_u32_u24 v17, 105, v16
        v_sub_u32 v17, v0, v17
        v_mul_u32_u24 v19, 205, v17
        v_lshrrev_b32 v19, 12, v19
        v_mul_u32_u24 v18, 20, v19
        v_cmp_lt_u32 vcc, 99, v17
        v_sub_u32 v18, v17, v18
        s_nop 0
        v_cndmask_b32 v19, v19, v18, vcc
        v_mad_u32_u24 v19, v16, 5, v19
        v_mad_u32_u24 v20, v16, 20, v18
        v_lshrrev_b32 v21, 2, v19
        v_and_b32 v22, 3, v19
        v_lshrrev_b32 v23, 4, v20
        v_and_b32 v20, 15, v20
        v_lshl_add_u32 v20, v22, 4, v20
        v_lshl_add_u32 v2, v21, 1, v23
        v_lshlrev_b32 v2, 6, v2
        v_add_u32 v2, v2, v20
        v_lshlrev_b32 v2, 4, v2
        v_lshlrev_b32 v3, 4, v19
        v_add_u32 v3, 13312, v3
        v_cmp_lt_u32 vcc, 99, v17
        v_lshrrev_b32 v24, 1, v21
        v_and_b32 v21, 1, v21
        v_cndmask_b32 v2, v2, v3, vcc
        v_lshl_add_u32 v3, v23, 1, v24
        v_add_u32 v24, 11, v24
        v_lshl_add_u32 v22, v22, 4, v16
        v_cndmask_b32 v3, v3, v24, vcc
        v_cndmask_b32 v20, v20, v22, vcc
        v_lshl_add_u32 v3, v3, 6, v20
        v_lshlrev_b32 v3, 4, v3
        v_lshl_add_u32 v3, v21, 3, v3
        v_add_u32 v3, {KVT}, v3
        v_mov_b32 v25, 2
        v_cndmask_b32 v25, 1, v25, vcc
        v_mov_b32 v16, 420
        v_cmp_gt_u32 vcc, v16, v0
        v_lshlrev_b32 v14, 4, v0
        s_nop 0
        v_cndmask_b32 v15, 0, v25, vcc
        v_cndmask_b32 v2, 0, v2, vcc
        v_add_u32 v2, {EXCH}, v2
        """)

    def a_reduce_publish(self, T):
        a = self.a
        for w in range(4):
            a(f"ds_read_b128 {vr(T+4*w,4)}, v2 offset:{w*EXCH_ST}")
        a(f"""
        s_lshl_b32 s{S_T0}, s{S_HG}, 4
        s_add_u32 s{S_T0}, s{S_T0}, s{S_MT}
        s_mul_i32 s{S_T0}, s{S_T0}, {KVP_ST}
        s_add_u32 s{S_T0}, s{S_T0}, {KVP}
        v_cmp_ne_u32 vcc, 0, v15
        s_waitcnt lgkmcnt(0)
        v_pk_add_f32 {vr(T,2)}, {vr(T,2)}, {vr(T+4,2)}
        v_pk_add_f32 {vr(T+2,2)}, {vr(T+2,2)}, {vr(T+6,2)}
        v_pk_add_f32 {vr(T+8,2)}, {vr(T+8,2)}, {vr(T+12,2)}
        v_pk_add_f32 {vr(T+10,2)}, {vr(T+10,2)}, {vr(T+14,2)}
        v_pk_add_f32 {vr(T,2)}, {vr(T,2)}, {vr(T+8,2)}
        v_pk_add_f32 {vr(T+2,2)}, {vr(T+2,2)}, {vr(T+10,2)}
        v_mov_b32_sdwa v{T}, s{S_TAG} dst_sel:BYTE_0 dst_unused:UNUSED_PRESERVE src0_sel:BYTE_0
        v_mov_b32_sdwa v{T+1}, s{S_TAG} dst_sel:BYTE_0 dst_unused:UNUSED_PRESERVE src0_sel:BYTE_1
        v_mov_b32_sdwa v{T+2}, s{S_TAG} dst_sel:BYTE_0 dst_unused:UNUSED_PRESERVE src0_sel:BYTE_2
        v_mov_b32_sdwa v{T+3}, s{S_TAG} dst_sel:BYTE_0 dst_unused:UNUSED_PRESERVE src0_sel:BYTE_3
        s_mov_b64 exec, vcc
        buffer_store_dwordx4 {vr(T,4)}, v14, s[{R_WS}:{R_WS+3}], s{S_T0} offen sc1
        s_mov_b64 exec, -1
        """)

    S_RET = 68

    def a_gather(self, T):
        self.a(f"s_call_b64 s[{self.S_RET}:{self.S_RET+1}], L_gather")

    def a_gather_body(self, T):
        a = self.a
        MK = S_T0 + 4
        a("L_gather:")
        a(f"s_mul_i32 s{S_T0+1}, s{S_HG}, {16*KVP_ST}\ns_add_u32 s{S_T0+1}, s{S_T0+1}, {KVP}")
        a(f"v_cmp_ne_u32 s[{MK}:{MK+1}], 0, v15\ns_mov_b32 s{S_CNT}, 0\ns_lshl_b32 s{S_T0+2}, s{S_MT}, 1\ns_mov_b64 exec, s[{MK}:{MK+1}]")

        def pair(m):
            a(f"s_add_u32 s{S_T0}, s{S_T0+2}, {m}\ns_and_b32 s{S_T0}, s{S_T0}, 15\ns_mul_i32 s{S_T0}, s{S_T0}, {KVP_ST}\ns_add_u32 s{S_T0}, s{S_T0}, s{S_T0+1}")
            a(f"buffer_load_dwordx4 {vr(T+4*m,4)}, v14, s[{R_WS}:{R_WS+3}], s{S_T0} offen sc1\ns_add_u32 s{S_T0}, s{S_T0}, {KVP_ST}")
            a(f"buffer_load_dwordx4 {vr(T+4*m+4,4)}, v14, s[{R_WS}:{R_WS+3}], s{S_T0} offen sc1")
        for m in range(0, 16, 2):
            pair(m)
        for m in range(0, 16, 2):
            a(f"s_waitcnt vmcnt({14-m})\nL_gchk{m}:")
            for q in range(8):
                a(f"v_cmpx_eq_u32_sdwa vcc, v{T+4*m+q}, s{S_TAG} src0_sel:BYTE_0 src1_sel:BYTE_{q & 3}")
            a(f"""
            s_add_u32 s{S_CNT}, s{S_CNT}, 1
            s_cmp_eq_u64 exec, s[{MK}:{MK+1}]
            s_mov_b64 exec, s[{MK}:{MK+1}]
            s_cbranch_scc1 L_gok{m}
            s_cmp_ge_u32 s{S_CNT}, {SPIN_LIMIT}
            s_cbranch_scc1 L_gok{m}
            """)
            pair(m)
            a(f"s_waitcnt vmcnt(0)\ns_branch L_gchk{m}\nL_gok{m}:")
            for q in range(8):
                a(f"v_and_b32 v{T+4*m+q}, 0xffffff00, v{T+4*m+q}")
            for h in (0, 2):
                a(f"v_pk_add_f32 {vr(T+4*m+h,2)}, {vr(T+4*m+h,2)}, {vr(T+4*(m+1)+h,2)}")
            if m >= 2:
                for h in (0, 2):
                    a(f"v_pk_add_f32 {vr(T+h,2)}, {vr(T+h,2)}, {vr(T+4*m+h,2)}")
        a("s_mov_b64 exec, -1")
        a(f"""
        v_cvt_pk_bf16_f32 v{T}, v{T}, v{T+1}
        v_cvt_pk_bf16_f32 v{T+1}, v{T+2}, v{T+3}
        v_cmp_ne_u32 vcc, 0, v15
        v_cmp_eq_u32 s[{S_T0}:{S_T0+1}], 2, v15
        s_nop 1
        s_mov_b64 exec, vcc
        ds_write_b64 v3, {vr(T,2)}
        s_mov_b64 exec, s[{S_T0}:{S_T0+1}]
        ds_write_b64 v3, {vr(T,2)} offset:64
        ds_write_b64 v3, {vr(T,2)} offset:128
        ds_write_b64 v3, {vr(T,2)} offset:192
        s_mov_b64 exec, -1
        s_setpc_b64 s[{self.S_RET}:{self.S_RET+1}]
        """)

    def role_b(self):
        a = self.a
        a(f"L_roleB:\ns_mov_b32 s{S_FROMA}, 0")
        XR, B1R, GR, XS = 16, 36, 64, 84
        VPF = 8
        a(f"s_cmp_ge_u32 s{S_J}, 16\ns_cbranch_scc1 L_B_pfrole")
        a(f"""
        s_lshl_b32 s{S_KST}, s{S_XCD}, 4
        s_add_u32 s{S_KST}, s{S_KST}, s{S_J}
        s_lshl_b32 s{S_T0}, s{S_KST}, 3
        s_add_u32 s{S_T0}, s{S_T0}, s{S_WAVE}
        s_mul_i32 s{S_T0}, s{S_T0}, {4*1280}
        v_lshrrev_b32 v2, 4, v1
        v_and_b32 v3, 15, v1
        v_lshlrev_b32 v3, 4, v3
        v_mul_u32_u24 v4, 1280, v2
        v_add_u32 v4, v4, v3
        """)
        for c in ((2, 3, 4, 0, 1) if self.o.get("xord") else range(5)):
            a(f"buffer_load_dwordx4 {vr(XR+4*c,4)}, v4, s[{R_X}:{R_X+3}], s{S_T0} offen offset:{c*256} {self.nt('ntx')}")
        self.srd(R_M, P_GATE, 1280)
        for c in range(5):
            a(f"buffer_load_dwordx4 {vr(GR+4*c,4)}, v3, s[{R_M}:{R_M+3}], 0 offen offset:{c*256}")

        def common_setup():
            a(f"""
            s_mul_i32 s{S_M}, s{S_J}, 205
            s_lshr_b32 s{S_M}, s{S_M}, 10
            s_mul_i32 s{S_DT}, s{S_M}, 5
            s_sub_u32 s{S_DT}, s{S_J}, s{S_DT}
            s_mul_i32 s{S_FT}, s{S_XCD}, 6
            s_add_u32 s{S_FT}, s{S_FT}, s{S_M}
            """)
            self.srd(R_OUT, P_B1, 3072)
            a(f"v_lshrrev_b32 v5, 4, v1\nv_lshlrev_b32 v5, 3, v5\ns_lshl_b32 s{S_T0}, s{S_FT}, 7")
            for b in range(4):
                a(f"buffer_load_dwordx2 {vr(B1R+2*b,2)}, v5, s[{R_OUT}:{R_OUT+3}], s{S_T0} offen offset:{b*32}")
            a(f"""
            v_lshrrev_b32 v12, 3, v1
            v_lshrrev_b32 v13, 4, v1
            v_lshlrev_b32 v13, 1, v13
            v_and_b32 v14, 7, v1
            v_xor_b32 v13, v13, v14
            v_lshlrev_b32 v13, 4, v13
            v_mul_u32_u24 v12, 3072, v12
            v_add_u32 v{VPF}, v12, v13
            v_add_u32 v{VPF+1}, {8*3072-1024}, v{VPF}
            v_add_u32 v{VPF+2}, {2*(8*3072-1024)}, v{VPF}
            v_add_u32 v{VPF+3}, {3*(8*3072-1024)}, v{VPF}
            """)
            self.perm_setup(S_M, 16, 6, S_PERM, self.o.get("rotB"))
            a(f"""
            s_and_b32 s{S_T0}, s{S_WAVE}, 3
            s_lshl_b32 s{S_B}, s{S_T0}, 12
            s_mul_i32 s{S_A}, s{S_T0}, {32*3072}
            s_lshl_b32 s{S_T0}, s{S_FT}, 7
            s_add_u32 s{S_A}, s{S_A}, s{S_T0}
            """)

        def w1_at(p):
            a(f"s_bfe_u32 s{S_T0}, s{S_PERM}, {(4 << 16) | (4 * p):#x}\ns_mul_i32 s{S_T0}, s{S_T0}, {128*3072}")
            a(f"s_add_u32 m0, s{S_B}, {p*16384}\ns_add_u32 s{S_T0}, s{S_T0}, s{S_A}")
            for i in range(4):
                a(f"buffer_load_dwordx4 v{VPF+i}, s[{R_W}:{R_W+3}], s{S_T0} offen offset:{i*1024} lds")
        early = [3, 4, 5, 6, 7][:self.o.get("early", 0)]

        def wq_touch():
            self.srd(R_M, P_WQKV, 640 * 3840)
            a(f"""
            v_lshlrev_b32 v6, 7, v1
            s_mul_i32 s{S_T0+1}, s{S_T0+1}, 2880
            s_add_u32 s{S_T0+1}, s{S_T0+1}, {256*3840}
            s_mov_b64 exec, 0xffffff
            buffer_load_dword v253, v6, s[{R_M}:{R_M+3}], s{S_T0+1} offen
            s_mov_b64 exec, -1
            """)

        self.srd(R_W, P_W1, 2048 * 3072)
        common_setup()
        a("v_mov_b32 v124, 0\nv_mov_b32 v125, 0\nv_mov_b32 v126, 0x3f803f80\ns_waitcnt vmcnt(4)")
        self.stamp(11, 44)
        if early:
            a(f"s_cmp_lt_u32 s{S_WAVE}, 4\ns_cbranch_scc1 L_B_noearly")
            for p in early:
                w1_at(p)
            a("L_B_noearly:")
        for c in range(20):
            a(f"v_dot2c_f32_bf16 v124, v{XR+c}, v126\nv_lshlrev_b32 v{XS+2*c}, 16, v{XR+c}")
            a(f"v_dot2c_f32_bf16 v125, v{XR+c}, v{GR+c}\nv_and_b32 v{XS+2*c+1}, 0xffff0000, v{XR+c}")
        a("s_nop 1")

        def reduce16(regs):
            for mode in ("quad_perm:[1,0,3,2]", "quad_perm:[2,3,0,1]", "row_half_mirror", "row_mirror"):
                for r in regs:
                    a(f"v_add_f32_dpp v{r}, v{r}, v{r} {mode} row_mask:0xf bank_mask:0xf")
                a("s_nop 1" if len(regs) == 1 else "s_nop 0")

        reduce16([124, 125])
        a(f"""
        v_mul_f32 v126, {f2u(-1.0/640):#x}, v124
        v_mul_f32 v127, {f2u(-1.0/640):#x}, v124
        v_mul_f32 v125, {f2u(-1.4426950408889634):#x}, v125
        v_mov_b32 v128, 0
        v_mov_b32 v129, 0
        v_mov_b32 v130, 0
        v_mov_b32 v131, 0
        v_mov_b32 v132, 0
        v_mov_b32 v133, 0
        v_mov_b32 v134, 0
        v_mov_b32 v135, 0
        v_exp_f32 v125, v125
        """)
        for c in range(20):
            a(f"v_pk_add_f32 {vr(XS+2*c,2)}, {vr(XS+2*c,2)}, v[126:127]")
        a("v_add_f32 v125, 1.0, v125\nv_rcp_f32 v125, v125")
        for c in range(20):
            t = 128 + 2 * (c & 3)
            a(f"v_pk_fma_f32 {vr(t,2)}, {vr(XS+2*c,2)}, {vr(XS+2*c,2)}, {vr(t,2)}")
        a("v_pk_add_f32 v[128:129], v[128:129], v[130:131]\nv_pk_add_f32 v[132:133], v[132:133], v[134:135]\nv_pk_add_f32 v[128:129], v[128:129], v[132:133]\nv_add_f32 v128, v128, v129\ns_nop 1")
        reduce16([128])
        a(f"v_mov_b32 v126, {f2u(1e-5):#x}\nv_fmac_f32 v126, {f2u(1.0/640):#x}, v128\nv_rsq_f32 v126, v126")
        a(f"""
        s_lshl_b32 s{S_T0}, s{S_WAVE}, 2
        v_add_u32 v2, s{S_T0}, v2
        v_mov_b32 v127, v126
        v_mul_u32_u24 v4, {LN_ST}, v2
        v_add_u32 v4, v4, v3
        v_lshlrev_b32 v2, 2, v2
        """)
        for c4 in range(5):
            for c in range(4 * c4, 4 * c4 + 4):
                a(f"v_pk_mul_f32 {vr(XS+2*c,2)}, {vr(XS+2*c,2)}, v[126:127]")
            for c in range(4 * c4, 4 * c4 + 4):
                a(f"v_cvt_pk_bf16_f32 v{XR+c}, v{XS+2*c}, v{XS+2*c+1}")
            a(f"ds_write_b128 v4, {vr(XR+4*c4,4)} offset:{LNBUF + c4*256}")
        a(f"ds_write_b32 v2, v125 offset:{LNG}")
        a(f"""
        v_and_b32 v12, 15, v1
        v_lshrrev_b32 v13, 4, v1
        v_lshrrev_b32 v15, 2, v12
        v_lshl_add_u32 v15, v13, 2, v15
        v_mul_u32_u24 v15, {LN_ST}, v15
        v_and_b32 v2, 3, v12
        v_lshl_add_u32 v15, v2, 3, v15
        s_mul_i32 s{S_T0}, s{S_WAVE}, 160
        v_add_u32 v15, s{S_T0}, v15
        v_lshlrev_b32 v14, 4, v1
        v_lshlrev_b32 v2, 2, v1
        s_mul_i32 s{S_T0}, s{S_WAVE}, {5*65536}
        s_lshl_b32 s{S_T0+1}, s{S_KST}, 10
        s_add_u32 s{S_T0}, s{S_T0}, s{S_T0+1}
        s_add_u32 s{S_T0}, s{S_T0}, {HT}
        s_waitcnt lgkmcnt(0)
        s_add_u32 s{S_TAG}, s{S_TAG}, {TAG_INC:#x}
        s_barrier
        """)
        self.stamp(12, 44)
        for i in range(5):
            a(f"ds_read_b64_tr_b16 {vr(44+4*i,2)}, v15 offset:{LNBUF + i*32}")
            a(f"ds_read_b64_tr_b16 {vr(46+4*i,2)}, v15 offset:{LNBUF + i*32+16*LN_ST}")
        a(f"ds_read_b32 v125, v2 offset:{LNG}")
        for i in range(5):
            a(f"s_waitcnt lgkmcnt({9-2*i})")
            a(f"buffer_store_dwordx4 {vr(44+4*i,4)}, v14, s[{R_WS}:{R_WS+3}], s{S_T0} offen sc1")
            if i < 4:
                a(f"s_add_u32 s{S_T0}, s{S_T0}, 65536")
        a(f"""
        s_cmp_lg_u32 s{S_WAVE}, 0
        s_cbranch_scc1 L_B_nog
        s_lshl_b32 s{S_T0}, s{S_KST}, 7
        s_add_u32 s{S_T0}, s{S_T0}, {G_OFF}
        s_waitcnt lgkmcnt(0)
        s_mov_b32 exec_hi, 0
        buffer_store_dword v125, v2, s[{R_WS}:{R_WS+3}], s{S_T0} offen sc1
        s_mov_b32 exec_hi, -1
        L_B_nog:
        s_mul_i32 s{S_T0}, s{S_KST}, {FS}
        s_add_u32 s{S_T0}, s{S_T0}, {F_LN}
        v_mov_b32 v12, s{S_TAG}
        v_mov_b32 v13, 0
        s_cmp_lg_u32 s{S_WAVE}, 0
        s_waitcnt vmcnt(0) lgkmcnt(0)
        s_barrier
        s_cbranch_scc1 L_B_nofl
        """)
        self.flag_fire(S_T0, 12)
        self.stamp(1, 12)
        if self.o.get("flagack"):
            a("s_waitcnt vmcnt(0)")
        a("L_B_nofl:")
        if self.o.get("flagack"):
            a("s_barrier")
        if self.o.get("woLN"):
            self.srd(R_M, P_WO, 640 * 1280)
            a(f"""
            s_lshl_b32 s{S_T0+1}, s{S_KST}, 3
            s_add_u32 s{S_T0+1}, s{S_T0+1}, s{S_WAVE}
            s_mul_i32 s{S_T0+1}, s{S_T0+1}, 1664
            v_lshlrev_b32 v6, 7, v1
            s_mov_b64 exec, 0x1fff
            buffer_load_dword v253, v6, s[{R_M}:{R_M+3}], s{S_T0+1} offen
            s_mov_b64 exec, -1
            """)
            nl = self.o.get("w2LN", 0)
            if nl:
                a(f"""
                s_lshl_b32 s{S_T0+1}, s{S_KST}, 3
                s_add_u32 s{S_T0+1}, s{S_T0+1}, s{S_WAVE}
                s_mul_i32 s{S_T0+1}, s{S_T0+1}, {1024*nl}
                s_add_u32 s{S_T0+1}, s{S_T0+1}, {1024*4096}
                s_mov_b32 exec_hi, 0
                s_mov_b32 exec_lo, {(1 << (8*nl)) - 1:#x}
                buffer_load_dword v253, v6, s[{R_W2}:{R_W2+3}], s{S_T0+1} offen
                s_mov_b64 exec, -1
                """)
        if self.o.get("wq") == 1:
            a(f"s_lshl_b32 s{S_T0+1}, s{S_KST}, 3\ns_add_u32 s{S_T0+1}, s{S_T0+1}, s{S_WAVE}")
            wq_touch()
        if self.o.get("wq") == 3:
            a(f"""
            s_lshl_b32 s{S_T0}, s{S_J}, 3
            s_add_u32 s{S_T0}, s{S_T0}, s{S_WAVE}
            s_add_u32 s{S_T0}, s{S_T0}, 128
            v_lshrrev_b32 v6, 3, v1
            v_and_b32 v7, 7, v1
            v_min_u32 v7, 5, v7
            v_mul_u32_u24 v6, 3072, v6
            v_lshl_add_u32 v7, v7, 7, v6
            s_mul_i32 s{S_T0}, s{S_T0}, {8*3072}
            s_mul_i32 s{S_T0+2}, s{S_XCD}, 768
            s_add_u32 s{S_T0}, s{S_T0}, s{S_T0+2}
            buffer_load_dword v253, v7, s[{R_W}:{R_W+3}], s{S_T0} offen {self.nt('ntw1')}
            """)
        a("s_branch L_B_join")
        a("L_B_pfrole:")
        self.srd(R_W, P_W1, 2048 * 3072)
        if self.o.get("pfdelay"):
            common_setup()
            a("s_waitcnt vmcnt(0)")
        wq = self.o.get("wq", 0)
        xh = self.o.get("xhelp", 0)
        if xh:
            self.srd(R_M, P_GATE, 1280)
            a(f"""
            s_cmp_ge_u32 s{S_WAVE}, {xh}
            s_cbranch_scc1 L_B_noxh
            s_lshl_b32 s{S_T0}, s{S_XCD}, 4
            s_add_u32 s{S_T0}, s{S_T0}, s{S_J}
            s_sub_u32 s{S_T0}, s{S_T0}, 16
            s_mul_i32 s{S_T0}, s{S_T0}, {32*1280}
            s_lshl_b32 s{S_T0+1}, s{S_WAVE}, 8
            s_sub_u32 s{S_T0}, s{S_T0}, s{S_T0+1}
            s_add_u32 s{S_T0}, s{S_T0}, 1024
            v_lshrrev_b32 v6, 1, v1
            v_and_b32 v7, 1, v1
            v_mul_u32_u24 v6, 1280, v6
            v_lshl_add_u32 v6, v7, 7, v6
            buffer_load_dword v253, v6, s[{R_X}:{R_X+3}], s{S_T0} offen
            v_lshlrev_b32 v6, 7, v1
            L_B_noxh:
            s_cmp_lg_u32 s{S_WAVE}, 7
            s_cbranch_scc1 L_B_noxg
            v_lshlrev_b32 v6, 7, v1
            buffer_load_dword v253, v6, s[{R_M}:{R_M+3}], 0 offen
            L_B_noxg:
            """)
        a(f"""
        s_sub_u32 s{S_T0}, s{S_J}, 16
        s_lshl_b32 s{S_T0}, s{S_T0}, 3
        s_add_u32 s{S_T0}, s{S_T0}, s{S_WAVE}
        s_lshl_b32 s{S_T0+1}, s{S_XCD}, 7
        s_add_u32 s{S_T0+1}, s{S_T0+1}, s{S_T0}
        v_lshrrev_b32 v6, 3, v1
        v_and_b32 v7, 7, v1
        v_min_u32 v7, 5, v7
        v_mul_u32_u24 v6, 3072, v6
        v_lshl_add_u32 v7, v7, 7, v6
        s_mul_i32 s{S_T0}, s{S_T0}, {8*3072}
        s_mul_i32 s{S_T0+2}, s{S_XCD}, 768
        s_add_u32 s{S_T0}, s{S_T0}, s{S_T0+2}
        buffer_load_dword v253, v7, s[{R_W}:{R_W+3}], s{S_T0} offen {self.nt('ntw1')}
        """)
        if wq in (0, 3):
            wq_touch()
        if wq != 3:
            a(f"""
            s_add_u32 s{S_T0}, s{S_T0}, {1024*3072}
            buffer_load_dword v253, v7, s[{R_W}:{R_W+3}], s{S_T0} offen {self.nt('ntw1b')}
            """)
        if self.o.get("promote"):
            k_ = 1 if wq != 3 else 0
            a(f"""
            s_sub_u32 s{S_T0+1}, s{S_T0}, {1024*3072*k_}
            s_waitcnt vmcnt({k_ + (1 if wq in (0, 3) else 0)})
            buffer_load_dword v253, v7, s[{R_W}:{R_W+3}], s{S_T0+1} offen
            """)
            if self.o.get("ntw1b"):
                a(f"s_waitcnt vmcnt(1)\nbuffer_load_dword v253, v7, s[{R_W}:{R_W+3}], s{S_T0} offen")
        if not self.o.get("pfdelay"):
            common_setup()
        self.stamp(15, 12)
        a(f"s_waitcnt lgkmcnt(0)\ns_add_u32 s{S_TAG}, s{S_TAG}, {TAG_INC:#x}")
        a(f"s_cmp_ge_u32 s{S_J}, 30\ns_cbranch_scc1 L_helper")
        N1 = self.o.get("n1", 8)
        NREG = self.o.get("nreg", 0)
        assert NREG == 0 or N1 == 8

        def w1_issue():
            t = self.perm_next(S_T0, S_PERM, 128 * 3072)
            t += f"s_mov_b32 m0, s{S_B}\ns_add_u32 s{S_T0}, s{S_T0}, s{S_A}\n"
            for i in range(4):
                t += f"buffer_load_dwordx4 v{VPF+i}, s[{R_W}:{R_W+3}], s{S_T0} offen offset:{i*1024} lds\n"
            t += f"s_add_u32 s{S_B}, s{S_B}, 16384\n"
            return t
        assert N1 == 8 and NREG == 0
        a(f"L_B_join:\ns_cmp_lt_u32 s{S_WAVE}, 4\ns_cbranch_scc1 L_B_comp0")
        for p in range(8):
            if early and p == early[0]:
                a(f"s_cmp_lt_u32 s{S_J}, 16\ns_cbranch_scc1 L_B_skipearly")
            w1_at(p)
            if early and p == early[-1]:
                a("L_B_skipearly:")
        a(f"s_mov_b32 s{S_PERM}, s{S_PERM+1}")
        a("s_branch L_B_aux\nL_B_comp0:")
        BF = 16
        GX = 131072
        split = self.o.get("gsplit")

        def gelu_setup(dblk_off):
            c = 0.7978845608028654
            k0 = -2.0 * c * 1.4426950408889634
            k1 = k0 * 0.044715
            a(f"""
            s_mov_b32 s{S_K0}, {f2u(k1):#x}
            s_mov_b32 s{S_K0+1}, {f2u(k1):#x}
            v_mov_b32 v44, {f2u(k0):#x}
            v_mov_b32 v45, {f2u(k0):#x}
            v_mov_b32 v46, 1.0
            v_mov_b32 v47, 1.0
            s_lshl_b32 s{S_K0+2}, s{S_DT}, 3
            s_lshl_b32 s{S_T0+1}, s{S_WAVE}, 1
            s_add_u32 s{S_K0+2}, s{S_K0+2}, s{S_T0+1}
            s_add_u32 s{S_K0+2}, s{S_K0+2}, {dblk_off & 0xffffffff:#x}
            s_mul_i32 s{S_K0+2}, s{S_K0+2}, {UW_ST}
            s_lshl_b32 s{S_T0+1}, s{S_FT}, 11
            s_add_u32 s{S_K0+2}, s{S_K0+2}, s{S_T0+1}
            s_add_u32 s{S_K0+2}, s{S_K0+2}, {UW}
            """)
            for b in range(4):
                a(f"v_lshlrev_b32 v{BF+4*b}, 16, v{B1R+2*b}\nv_and_b32 v{BF+4*b+1}, 0xffff0000, v{B1R+2*b}")
                a(f"v_lshlrev_b32 v{BF+4*b+2}, 16, v{B1R+2*b+1}\nv_and_b32 v{BF+4*b+3}, 0xffff0000, v{B1R+2*b+1}")

        def gelu_block(base, vl):
            for p in range(2):
                r = base + 8 * p
                T = 48
                for q in range(4):
                    a(f"v_pk_mul_f32 {vr(T+2*q,2)}, {vr(r+2*q,2)}, {vr(r+2*q,2)}")
                for q in range(4):
                    a(f"v_pk_fma_f32 {vr(T+2*q,2)}, {vr(T+2*q,2)}, s[{S_K0}:{S_K0+1}], v[44:45]")
                for q in range(4):
                    a(f"v_pk_mul_f32 {vr(T+2*q,2)}, {vr(T+2*q,2)}, {vr(r+2*q,2)}")
                for q in range(8):
                    a(f"v_exp_f32 v{T+q}, v{T+q}")
                for q in range(4):
                    a(f"v_pk_add_f32 {vr(T+2*q,2)}, {vr(T+2*q,2)}, v[46:47]")
                for q in range(8):
                    a(f"v_rcp_f32 v{T+q}, v{T+q}")
                for q in range(4):
                    a(f"v_pk_mul_f32 {vr(r+2*q,2)}, {vr(r+2*q,2)}, {vr(T+2*q,2)}")
                o = 56 + 4 * (p & 1)
                for q in range(4):
                    a(f"v_cvt_pk_bf16_f32 v{o+q}, v{r+2*q}, v{r+2*q+1}")
                a(f"buffer_store_dwordx4 {vr(o,4)}, v{vl}, s[{R_WS}:{R_WS+3}], s{S_K0+2} offen offset:{p*1024} sc1")

        PF, WF, ACC, VT, VL = 64, 128, 160, 8, 12
        a(f"""
        s_lshl_b32 s{S_T0}, s{S_DT}, 3
        s_lshl_b32 s{S_T0+1}, s{S_WAVE}, 1
        s_add_u32 s{S_D}, s{S_T0}, s{S_T0+1}
        s_lshl_b32 s{S_T0}, s{S_D}, 16
        s_add_u32 s{S_T0}, s{S_T0}, {HT}
        """)
        self.srd(R_P, P_WS, 65536, off_s=S_T0)
        a(f"s_add_u32 s{S_T0}, s{S_T0}, 65536")
        self.srd(R_M, P_WS, 65536, off_s=S_T0)
        a(f"v_lshlrev_b32 v{VL}, 4, v1\ns_mov_b32 s{S_B}, 0")
        a(self.perm_next(S_C, S_PERM, 4096))
        self.tr_addr(VT)
        a("s_waitcnt vmcnt(0)")
        gelu_setup(0)
        for r in range(32):
            a(f"v_mov_b32 v{ACC+r}, v{BF + (r & 15)}")
        a(f"s_lshl_b32 s{S_T0}, s{S_WAVE}, 12\ns_add_u32 s{S_T0}, s{S_T0}, {GX}\nv_add_u32 v13, s{S_T0}, v{VL}")
        a(f"s_cmp_lg_u32 s{S_WAVE}, 0\ns_cbranch_scc1 L_B_l3")
        prog = self.o.get("prog", 0)
        if prog:
            assert prog >= 4 * (4 + self.o.get("rotB", 0))
            a(f"v_min_u32 v2, {prog-1}, v1\nv_mul_u32_u24 v2, {FS}, v2\nv_add_u32 v2, {F_LN}, v2")
        else:
            a(f"v_mul_u32_u24 v2, {FS}, v1\nv_add_u32 v2, {F_LN}, v2")
        if not self.o.get("x_nopoll"):
            self.poll([2], 4)
        self.stamp(2, 4)
        a("L_B_l3:\ns_barrier")
        RP = (R_P, R_M)

        def pload(u, ks):
            if self.o.get("x_noload"):
                return "s_nop 0"
            sc = "" if self.o.get("x_nosc1") else "sc1"
            so = "0" if self.o.get("x_same") else f"s{S_C}"
            return "\n".join(f"buffer_load_dwordx4 {vr(PF+32*(u%2)+8*ks+4*d,4)}, v{VL}, s[{RP[d]}:{RP[d]+3}], {so} offen offset:{ks*1024} {sc}" for d in range(2))

        for t in range(2):
            for ks in range(4):
                a(pload(t, ks))
            a(self.perm_next(S_C, S_PERM, 4096))
            if t == 0:
                first_bar_here = len(a.L)

        def mk(u, bar, virtual=False, head=None, tail=None):
            uses = []
            for ks in range(4):
                for b in range(4):
                    g = ks * 4 + b
                    wb = WF + 4 * (g % 8)
                    off = u * 16384 + ks * 4096
                    reads = [(f"w{g}a", f"ds_read_b64_tr_b16 {vr(wb,2)}, v{VT+b} offset:{off}"),
                             (f"w{g}b", f"ds_read_b64_tr_b16 {vr(wb+2,2)}, v{VT+b} offset:{off+2048}")]
                    mf = []
                    for dd in range(2):
                        acc = vr(ACC + 16 * dd + 4 * b, 4)
                        mf.append(f"v_mfma_f32_16x16x32_bf16 {acc}, {vr(wb,4)}, {vr(PF+32*(u%2)+8*ks+4*dd,4)}, {acc}")
                    if self.o.get("x32"):
                        acc = vr(ACC + 16 * (b & 1), 16)
                        mf = [f"v_mfma_f32_32x32x16_bf16 {acc}, {vr(wb,4)}, {vr(PF+32*(u%2)+8*ks+4*(b>>1),4)}, {acc}"]
                    d = dict(reads=reads, need=[f"w{g}b"], mf=mf)
                    if b == 0:
                        d["vm"] = 14
                    if b == 3:
                        d["after"] = pload(u, ks)
                        if ks == 3:
                            d["after"] += "\n" + self.perm_next(S_C, S_PERM, 4096)
                            if u >= 1:
                                d["after"] += f"s_cmp_ge_u32 s{S_B}, 3\ns_cselect_b32 s{S_C}, 0x10000, s{S_C}"
                    uses.append(d)
            return dict(uses=uses, bar=bar, virtual=virtual, head=head, tail=tail)

        xo = "s_barrier\n" + "\n".join(f"v_xor_b32 v{VT+b}, 0x10000, v{VT+b}" for b in range(4))
        tail = f"s_add_u32 s{S_B}, s{S_B}, 1\ns_cmp_lt_u32 s{S_B}, 4\ns_cbranch_scc1 L_B_loop"
        st = [mk(0, "", head="L_B_loop:"), mk(1, "s_barrier"), mk(2, "s_barrier"), mk(3, "s_barrier", tail=tail), mk(0, xo, virtual=True)]
        a.L.insert(first_bar_here, "    s_barrier")
        nd = self.o.get("nodrain")
        LB = self.o.get("LB", 7)
        self.pipeline(st, LB, (16 - LB) if nd else 13, drain=not nd, wait_every=self.o.get('we', 2))
        if nd and not self.o.get("noEnd"):
            a("s_waitcnt lgkmcnt(0)\ns_barrier")
        self.stamp(3, 44)
        if split:
            a("s_nop 5")
            for i in range(4):
                a(f"ds_write_b128 v13, {vr(ACC+16+4*i,4)} offset:{i*1024}")
            a("s_waitcnt lgkmcnt(0)\ns_barrier")
            gelu_block(ACC, VL)
        else:
            a("s_waitcnt lgkmcnt(0)\ns_nop 4")
            gelu_block(ACC, VL)
            a(f"s_add_u32 s{S_K0+2}, s{S_K0+2}, {UW_ST}")
            gelu_block(ACC + 16, VL)
        self.stamp(10, 44)
        a("s_waitcnt vmcnt(0)\ns_barrier\ns_branch L_F_comp")

        a("L_B_aux:\ns_barrier")
        if split:
            assert NREG == 0
        assert NREG == 0
        ops = [(iv, 4) for iv in range(N1)]
        todo = [(iv, i) for iv in range(N1, 16) for i in range(4)]
        quota = self.o.get("quota", 12) / 3.0
        credit = 0.0
        eB = self.o.get("eB", 17)
        nB1 = self.o.get("nB1", 0)
        per = self.o.get("perB", 2)
        done_w2 = 0
        for tb in range(17):
            if tb < 16 and tb <= eB:
                assert all(iv != tb for iv, _ in todo), (tb, todo)
                last = max(i for i, (iv, _) in enumerate(ops) if iv == tb)
                n = sum(c for _, c in ops[last + 1:])
                if tb < 8:
                    n -= 4 * len(early)
                a(f"s_waitcnt vmcnt({max(0, min(n, 63)) if tb < eB else 0})")
            a("s_barrier")
            if tb < 16:
                self.stamp(16 + tb, 44)
            if tb == 0 and self.o.get("prog"):
                a(f"s_cmp_lg_u32 s{S_WAVE}, 7\ns_cbranch_scc1 L_B_nop1\nv_mul_u32_u24 v2, {FS}, v1\nv_add_u32 v2, {F_LN}, v2")
                a(f"buffer_load_dword v3, v2, s[{R_WS}:{R_WS+3}], 0 offen sc1\nL_B_nop1:")
            if tb == 1 and self.o.get("prog"):
                a(f"s_cmp_lg_u32 s{S_WAVE}, 7\ns_cbranch_scc1 L_B_nop2")
                a(f"s_waitcnt vmcnt(0)\nv_cmp_ne_u32 vcc, s{S_TAG}, v3\ns_nop 1\ns_cmp_eq_u64 vcc, 0\ns_cbranch_scc1 L_B_nop2")
                self.poll([2], 4)
                a("L_B_nop2:")
            if tb == self.o.get("ctB", 10):
                self.code_touch([("L_F_comp", 0), ("L_F_comp", 1)])
            if tb == 11 and split:
                gelu_setup(-7)
                a(f"v_lshlrev_b32 v12, 4, v1\ns_lshl_b32 s{S_T0}, s{S_WAVE}, 12\ns_add_u32 s{S_T0}, s{S_T0}, {GX - 4*4096}\nv_add_u32 v13, s{S_T0}, v12")
            if tb == eB:
                assert not todo
                self.w2_setup()
            if tb >= eB and done_w2 < nB1:
                k2 = min(per if tb < 16 else 8, nB1 - done_w2, tb - 9 - done_w2)
                sk = self.if_wave56()
                self.w2_prefill(k2)
                a(f"{sk}:")
                done_w2 += k2
            if todo and (todo[0][0] < 8 or tb >= 2):
                credit += 8 if todo[0][0] < 8 else quota
            setm0 = False
            while todo and credit >= 0.999 and (todo[0][0] < 8 or todo[0][0] <= tb + 6):
                iv, i = todo.pop(0)
                if i == 0:
                    if iv == 8:
                        a(f"s_and_b32 s{S_B}, s{S_B}, 0x1ffff")
                    a(self.perm_next(S_C, S_PERM, 128 * 3072) + f"s_add_u32 s{S_C}, s{S_C}, s{S_A}")
                if i == 0 or not setm0:
                    a(f"s_mov_b32 m0, s{S_B}\ns_nop 0")
                    setm0 = True
                a(f"buffer_load_dwordx4 v{VPF+i}, s[{R_W}:{R_W+3}], s{S_C} offen offset:{i*1024} lds")
                if i == 3:
                    a(f"s_add_u32 s{S_B}, s{S_B}, 16384")
                ops.append((iv, 1))
                credit -= 1
            if todo and todo[0][0] >= 8:
                credit = min(credit, quota)
        nxt = 16
        assert nxt == 16
        if self.o.get("noEnd"):
            assert done_w2 == nB1
        elif self.o.get("nodrain"):
            a("s_barrier")
        if eB == 17:
            self.w2_setup()
        if split:
            a("s_barrier")
            for i in range(4):
                a(f"ds_read_b128 {vr(64+4*i,4)}, v13 offset:{i*1024}")
            a("s_waitcnt lgkmcnt(0)")
            gelu_block(64, 12)
            a("s_waitcnt vmcnt(0)")
        skip = self.if_wave56()
        self.w2_prefill(nB1 - done_w2)
        a("s_barrier\ns_nop 7\ns_nop 7")
        self.w2_prefill(8 - nB1)
        a("s_branch L_F_loader")
        a(f"{skip}:")
        a(f"s_mul_i32 s{S_T0}, s{S_DT}, 24\ns_add_u32 s{S_T0}, s{S_T0}, s{S_FT}\ns_mul_i32 s{S_T0}, s{S_T0}, {FS}\ns_add_u32 s{S_T0}, s{S_T0}, {F_U}")
        self.flag_prep(12)
        a(f"s_cmp_lg_u32 s{S_WAVE}, 7\ns_barrier\ns_cbranch_scc1 L_F_u4")
        self.flag_fire(S_T0, 12)
        self.stamp(4, 12)
        a("s_branch L_F_poller")

    def w2_l2_prefetch(self, VT):
        a = self.a
        self.srd(R_W2, P_W2, 1536 * 4096)
        a(f"""
        v_lshrrev_b32 v{VT}, 3, v1
        v_and_b32 v{VT+1}, 7, v1
        v_lshlrev_b32 v{VT+1}, 7, v{VT+1}
        v_lshl_add_u32 v{VT}, v{VT}, 12, v{VT+1}
        s_mul_i32 s{S_T0}, s{S_J}, 48
        s_and_b32 s{S_T0+1}, s{S_WAVE}, 3
        s_mul_i32 s{S_T0+1}, s{S_T0+1}, 12
        s_add_u32 s{S_T0}, s{S_T0}, s{S_T0+1}
        s_lshl_b32 s{S_T0}, s{S_T0}, 12
        s_lshr_b32 s{S_T0+1}, s{S_XCD}, 1
        s_lshl_b32 s{S_T0+1}, s{S_T0+1}, 10
        s_add_u32 s{S_T0}, s{S_T0}, s{S_T0+1}
        buffer_load_dword v{VT+2}, v{VT}, s[{R_W2}:{R_W2+3}], s{S_T0} offen
        s_add_u32 s{S_T0}, s{S_T0}, {8*4096}
        s_mov_b32 exec_hi, 0
        buffer_load_dword v{VT+3}, v{VT}, s[{R_W2}:{R_W2+3}], s{S_T0} offen
        s_mov_b64 exec, -1
        """)

    def tr_addr(self, VT):
        a = self.a
        a(f"""
        v_and_b32 v{VT+1}, 15, v1
        v_lshrrev_b32 v{VT+2}, 4, v1
        v_lshrrev_b32 v{VT+3}, 2, v{VT+1}
        v_lshl_add_u32 v{VT+3}, v{VT+2}, 2, v{VT+3}
        v_bfe_u32 v{VT+2}, v{VT+3}, 1, 2
        v_lshlrev_b32 v{VT+3}, 7, v{VT+3}
        v_lshl_add_u32 v{VT+3}, v{VT+2}, 5, v{VT+3}
        v_and_b32 v{VT+1}, 3, v{VT+1}
        v_lshl_add_u32 v{VT}, v{VT+1}, 3, v{VT+3}
        v_xor_b32 v{VT+1}, 32, v{VT}
        v_xor_b32 v{VT+2}, 64, v{VT}
        v_xor_b32 v{VT+3}, 96, v{VT}
        """)

    def helper(self):
        a = self.a
        a("L_helper:")
        a(f"""
        s_lshl_b32 s{S_D}, s{S_XCD}, 1
        s_add_u32 s{S_D}, s{S_D}, s{S_J}
        s_sub_u32 s{S_D}, s{S_D}, 30
        """)
        self.srd(R_W, P_WO, 640 * 1280)
        for p in range(5):
            a(f"""
            v_add_u32 v12, {p*64}, v1
            v_mul_u32_u24 v13, 205, v12
            v_lshrrev_b32 v13, 11, v13
            v_mul_u32_u24 v14, 10, v13
            v_sub_u32 v14, v12, v14
            v_lshlrev_b32 v14, 4, v14
            v_mul_u32_u24 v13, 1280, v13
            v_add_u32 v{16+p}, v13, v14
            """)
            if p in (1, 2, 3):
                a(f"v_subrev_u32 v{16+p}, {p*1024}, v{16+p}")
        a(f"""
        s_mov_b32 s{S_C}, s{S_WAVE}
        L_H_ld:
        s_mul_i32 s{S_A}, s{S_C}, {32*1280}
        s_mul_i32 s{S_T0}, s{S_D}, 160
        s_add_u32 s{S_A}, s{S_A}, s{S_T0}
        s_mul_i32 s{S_B}, s{S_C}, 5120
        s_mov_b32 m0, s{S_B}
        s_nop 0
        """)
        for p in range(4):
            a(f"buffer_load_dwordx4 v{16+p}, s[{R_W}:{R_W+3}], s{S_A} offen offset:{p*1024} lds")
        a(f"s_add_u32 m0, s{S_B}, 4096\ns_nop 0\nbuffer_load_dwordx4 v20, s[{R_W}:{R_W+3}], s{S_A} offen lds")
        a(f"""
        s_add_u32 s{S_C}, s{S_C}, 8
        s_cmp_lt_u32 s{S_C}, 20
        s_cbranch_scc1 L_H_ld
        v_and_b32 v12, 15, v1
        v_lshrrev_b32 v13, 4, v1
        v_lshrrev_b32 v14, 2, v12
        v_lshl_add_u32 v14, v13, 2, v14
        v_mul_u32_u24 v14, 160, v14
        v_and_b32 v12, 3, v12
        v_lshl_add_u32 v14, v12, 3, v14
        v_lshlrev_b32 v15, 4, v1
        s_waitcnt vmcnt(0)
        s_barrier
        s_mov_b32 s{S_C}, s{S_WAVE}
        L_H_tr:
        s_lshr_b32 s{S_T0}, s{S_C}, 1
        s_mul_i32 s{S_T0}, s{S_T0}, 5
        s_and_b32 s{S_T0+1}, s{S_C}, 1
        s_lshl_b32 s{S_T0+1}, s{S_T0+1}, 1
        s_add_u32 s{S_T0}, s{S_T0}, s{S_T0+1}
        s_add_u32 s{S_T0+1}, s{S_T0}, 1
        s_mul_i32 s{S_T0+2}, s{S_C}, 10
        s_sub_u32 s{S_T0+2}, s{S_T0+2}, 156
        s_add_u32 s{S_T0+3}, s{S_T0+2}, 5
        s_cmp_lt_u32 s{S_C}, 16
        s_cselect_b32 s{S_T0}, s{S_T0}, s{S_T0+2}
        s_cselect_b32 s{S_T0+1}, s{S_T0+1}, s{S_T0+3}
        s_mul_i32 s{S_T0}, s{S_T0}, 2560
        s_mul_i32 s{S_T0+1}, s{S_T0+1}, 2560
        v_add_u32 v12, s{S_T0}, v14
        v_add_u32 v13, s{S_T0+1}, v14
        """)
        for b in range(5):
            a(f"ds_read_b64_tr_b16 {vr(24+4*b,2)}, v12 offset:{b*32}\nds_read_b64_tr_b16 {vr(26+4*b,2)}, v13 offset:{b*32}")
        a(f"""
        s_mul_i32 s{S_T0}, s{S_D}, {5*UW_ST}
        s_lshl_b32 s{S_T0+1}, s{S_C}, 10
        s_add_u32 s{S_T0}, s{S_T0}, s{S_T0+1}
        s_add_u32 s{S_T0}, s{S_T0}, {UW + 49152}
        """)
        for b in range(5):
            a(f"s_waitcnt lgkmcnt({8-2*b})")
            a(f"buffer_store_dwordx4 {vr(24+4*b,4)}, v15, s[{R_WS}:{R_WS+3}], s{S_T0} offen sc1")
            if b < 4:
                a(f"s_add_u32 s{S_T0}, s{S_T0}, {UW_ST}")
        a(f"""
        s_add_u32 s{S_C}, s{S_C}, 8
        s_cmp_lt_u32 s{S_C}, 20
        s_cbranch_scc1 L_H_tr
        s_waitcnt vmcnt(0)
        s_barrier
        """)
        if self.o.get("hW2"):
            a(f"s_cmp_lg_u32 s{S_WAVE}, 7\ns_cbranch_scc1 L_H_nofl")
            a(f"s_mul_i32 s{S_T0}, s{S_D}, {FS}\ns_add_u32 s{S_T0}, s{S_T0}, {F_WOT}")
            self.flag_store(S_T0, 12)
            self.stamp(14, 12)
            a(f"""
            L_H_nofl:
            s_barrier
            v_lshlrev_b32 v12, 7, v1
            s_lshl_b32 s{S_T0}, s{S_D}, 3
            s_add_u32 s{S_T0}, s{S_T0}, s{S_WAVE}
            s_lshl_b32 s{S_T0}, s{S_T0}, 13
            s_add_u32 s{S_T0}, s{S_T0}, {(1024 + 128 * self.o.get("w2LN", 0))*4096}
            """)
            for k in range(4 - self.o.get("w2LN", 0)):
                a(f"buffer_load_dword v253, v12, s[{R_W2}:{R_W2+3}], s{S_T0} offen\ns_add_u32 s{S_T0}, s{S_T0}, {128*4096}")
        skip = self.if_wave56()
        self.w2_setup()
        self.w2_prefill(8)
        a(f"s_branch L_F_loader\n{skip}:")
        a(f"s_cmp_lt_u32 s{S_WAVE}, 4\ns_cbranch_scc1 L_F_comp\ns_cmp_lg_u32 s{S_WAVE}, 7\ns_cbranch_scc1 L_F_u4")
        if not self.o.get("hW2"):
            a(f"s_mul_i32 s{S_T0}, s{S_D}, {FS}\ns_add_u32 s{S_T0}, s{S_T0}, {F_WOT}")
            self.flag_store(S_T0, 12)
            self.stamp(14, 12)
        a("s_branch L_F_poller")

    F_WOT_REG = 172
    F_V = (4, 8, 12, 13, 47, 48, 52, 56, 168)
    F_VL1 = 252
    F_SB = 72

    def uw_srd(self):
        a = self.a
        a(f"""
        s_mul_i32 s{S_T0}, s{S_DTILE}, 5
        s_and_b32 s{S_T0+1}, s{S_WAVE}, 2
        s_add_u32 s{S_T0}, s{S_T0}, s{S_T0+1}
        s_mul_i32 s{S_T0}, s{S_T0}, {UW_ST}
        s_add_u32 s{S_T0}, s{S_T0}, {UW}
        """)
        self.srd(R_P, P_WS, 2 * UW_ST, off_s=S_T0)

    def vl_setup(self):
        a = self.a
        VL = self.F_V[2]
        a(f"""
        s_and_b32 s{S_T0}, s{S_WAVE}, 1
        s_mul_i32 s{S_T0+1}, s{S_T0}, {2048 + UW_ST}
        s_mul_i32 s{S_T0}, s{S_T0}, {(2048 - UW_ST) & 0xffffffff:#x}
        s_add_u32 s{S_T0}, s{S_T0}, {UW_ST}
        v_lshlrev_b32 v{VL}, 4, v1
        v_add_u32 v{self.F_VL1}, s{S_T0}, v{VL}
        v_add_u32 v{VL}, s{S_T0+1}, v{VL}
        """)

    def wot_preload(self):
        a = self.a
        for t in range(5):
            a(f"s_mov_b32 s{S_C}, {49152 + t*4096}")
            for ks in range(2):
                for e in range(2):
                    a(f"buffer_load_dwordx4 {vr(self.F_WOT_REG+16*t+8*ks+4*e,4)}, v{(self.F_V[2], self.F_VL1)[e]}, s[{R_P}:{R_P+3}], s{S_C} offen offset:{ks*1024} sc1")

    def f_setup(self):
        a = self.a
        VT, VT2, VL, VU4, VGA, VGH, VG8, GV, BV = self.F_V
        SB = self.F_SB
        self.srd(R_M, P_B2, 4096)
        self.srd(R_OUT, P_OUT, 2048 * 1280)
        self.tr_addr(VT2)
        a(f"""
        s_and_b32 s{S_T0+2}, s{S_WAVE}, 1
        s_mul_i32 s{S_D}, s{S_DTILE}, 5
        s_add_u32 s{S_D}, s{S_D}, s{S_WAVE}
        s_lshl_b32 s{S_T0}, s{S_T0+2}, 13
        v_add_u32 v42, s{S_T0}, v{VT2}
        s_lshl_b32 s{S_T0+2}, s{S_T0+2}, 11
        v_lshlrev_b32 v{VGH+3}, 4, v1
        v_add_u32 v{VGH+3}, s{S_T0+2}, v{VGH+3}
        v_add_u32 v{VU4}, 0x20000, v{VGH+3}
        v_and_b32 v{VGA}, 15, v1
        v_lshlrev_b32 v43, 1, v{VGA}
        v_lshlrev_b32 v{VGA}, 2, v{VGA}
        v_lshlrev_b32 v{VG8+3}, 3, v1
        v_add_u32 v{VG8+3}, s{S_T0+2}, v{VG8+3}
        """)
        for b in range(4):
            a(f"""
            s_xor_b32 s{SB+b}, s{S_WAVE}, {b}
            s_lshl_b32 s{S_T0}, s{SB+b}, 5
            v_xor_b32 v{VT+b}, s{S_T0}, v42
            s_lshl_b32 s{S_T0+1}, s{S_ST}, 7
            s_add_u32 s{S_T0}, s{S_T0}, s{S_T0+1}
            buffer_load_ushort v{BV+b}, v43, s[{R_M}:{R_M+3}], s{S_T0} offen
            v_add_u32 v{VT2+b}, 0x10000, v{VT+b}
            s_lshl_b32 s{S_T0}, s{SB+b}, 12
            v_add_u32 v{VG8+b}, s{S_T0}, v{VG8+3}
            s_add_u32 s{S_T0}, s{S_T0}, 0x10000
            v_add_u32 v{VGH+b}, s{S_T0}, v{VGH+3}
            """)
        a(f"s_lshl_b32 s{S_A}, s{S_ST}, 8\ns_add_u32 s{S_A}, s{S_A}, {G_OFF}")
        self.f_perm()

    def f0_barrier(self):
        lab = self.a.label("f0")
        self.a(f"s_cmp_eq_u32 s{S_FROMA}, 1\ns_cbranch_scc1 {lab}\ns_barrier\n{lab}:")

    def final(self):
        a = self.a
        a("L_F_comp:")
        PF, WF, U4, WOT = 64, 112, 36, 172
        ACC = (144, 16)
        ACC4 = (160, 164)
        NPF = 3
        VT, VT2, VL, VU4, VGA, VGH, VG8, GV, BV = self.F_V
        VLE = (VL, self.F_VL1)
        SB = self.F_SB
        a(f"s_cmp_eq_u32 s{S_FROMA}, 1\ns_cbranch_scc1 L_F_nowot")
        self.uw_srd()
        self.vl_setup()
        self.f_setup()

        def next_sc(step):
            return self.perm_next(S_C, S_PERM, 4096)
        a("s_barrier")
        self.wot_preload()
        a("L_F_nowot:")
        a(next_sc(0))
        a("s_barrier")
        S_C1, S_C2 = S_K0, S_K0 + 1

        def uload(t, ks, so):
            return "\n".join(f"buffer_load_dwordx4 {vr(PF+16*(t % NPF)+8*ks+4*e,4)}, v{VLE[e]}, s[{R_P}:{R_P+3}], s{so} offen offset:{ks*1024} sc1 ;@u{t}_{ks}_{e}"
                             for e in range(2))
        vis0 = []
        for ks in range(2):
            a(uload(0, ks, S_C))
            vis0 += [f"u0_{ks}_0", f"u0_{ks}_1"]
        a(self.perm_next(S_C1, S_PERM, 4096) + self.perm_next(S_C2, S_PERM, 4096) + next_sc(3))
        a("s_barrier")

        def scale(b):
            regs = [ACC[0] + 4 * b, ACC[1] + 4 * b] + ([ACC4[b]] if b < 2 else [])
            return "\n".join(f"v_mul_f32 v{r+k}, v{GV+b}, v{r+k}" for r in regs for k in range(4))
        X_W, X_R = 65536, 65536
        late = []
        stages = []
        for t in range(17):
            slot = t % 8
            hi = slot >= 4
            uses = []
            for ks in range(2):
                for b in range(4):
                    g = ks * 4 + b
                    wb = WF + 4 * g
                    reads = []
                    u4 = U4 + 4 * ks
                    if b == 0:
                        reads.append((f"u{ks}", f"ds_read_b128 {vr(u4,4)}, v{VU4} offset:{slot*4096 + ks*1024}"))
                    if t < 12:
                        off = (slot & 3) * 16384 + ks * 4096
                        va = (VT2 if hi else VT) + b
                        reads += [(f"w{g}a", f"ds_read_b64_tr_b16 {vr(wb,2)}, v{va} offset:{off}"),
                                  (f"w{g}b", f"ds_read_b64_tr_b16 {vr(wb+2,2)}, v{va} offset:{off+2048}")]
                    elif t < 16:
                        off = (slot & 3) * 16384 + ks * 1024
                        reads += [(f"w{g}b", f"ds_read_b128 {vr(wb,4)}, v{VGH+b} offset:{off}")]
                    else:
                        off = ks * 1024
                        reads += [(f"w{g}a", f"ds_read_b64 {vr(wb,2)}, v{VG8+b} offset:{off}"),
                                  (f"w{g}b", f"ds_read_b64 {vr(wb+2,2)}, v{VG8+b} offset:{off+512}")]
                    first = t == 0 and ks == 0
                    mf = []
                    for e in range(2):
                        pf = vr(PF + 16 * (t % NPF) + 8 * ks + 4 * e, 4) if t < 12 else vr(WOT + 16 * (t - 12) + 8 * ks + 4 * e, 4)
                        acc = vr(ACC[e] + 4 * b, 4)
                        mf.append(f"v_mfma_f32_16x16x32_bf16 {acc}, {pf}, {vr(wb,4)}, {0 if first else acc}")
                    if b < 2:
                        a4 = vr(ACC4[b], 4)
                        mf.append(f"v_mfma_f32_16x16x32_bf16 {a4}, {vr(u4,4)}, {vr(wb,4)}, {0 if first else a4}")
                    if t == 16 and ks == 1:
                        late += [mf[0]] + ([mf[2]] if b == 0 else [])
                        mf = [mf[1]] + ([mf[2]] if b == 1 else [])
                    d = dict(reads=reads, need=[f"w{g}b"], mf=mf)
                    aft = []
                    if b == 0 and t < 12:
                        d["vneed"] = f"u{t}_{ks}_1"
                    if t == 0 and b in (0, 1):
                        aft.append(uload(1 + b, ks, (S_C1, S_C2)[b]))
                    if t == 1 and b in (0, 1):
                        q = ks * 2 + b
                        aft.append(f"s_lshl_b32 s{S_T0}, s{SB+q}, 6\ns_add_u32 s{S_T0}, s{S_T0}, s{S_A}\n"
                                   f"buffer_load_dword v{GV+q}, v{VGA}, s[{R_WS}:{R_WS+3}], s{S_T0} offen sc1 ;@g{q}")
                    if b == 3 and t + NPF < 12:
                        aft.append(uload(t + NPF, ks, S_C))
                        if ks == 1 and t + NPF + 1 < 12:
                            aft.append(next_sc(t + NPF + 1))
                    if t == 9 and g < 4:
                        aft.append(f"v_sub_f32 v{GV+g}, 1.0, v{GV+g}\nv_lshlrev_b32 v{BV+g}, 16, v{BV+g}")
                    if t == 10 and g < 4:
                        aft.append(f"v_mul_f32 v{BV+g}, v{GV+g}, v{BV+g}")
                    if t == 11 and g in (5, 6):
                        aft.append(scale(g - 5))
                    if t == 11 and g == 7:
                        aft.append("s_nop 3\n" + scale(2))
                    if t == 12 and g == 0:
                        aft.append(scale(3))
                    if t == 15 and g == 2:
                        aft.append(f"s_and_b32 s{S_T0}, s{S_WAVE}, 1\ns_lshl_b32 s{S_T0}, s{S_T0}, 10\ns_xor_b32 s{S_T0+1}, s{S_WAVE}, 1\n"
                                   f"s_mul_i32 s{S_T0+1}, s{S_T0+1}, 5120\ns_add_u32 s{S_T0+1}, s{S_T0+1}, {X_W}\nv_lshlrev_b32 v2, 4, v1")
                    if t == 15 and g == 3:
                        aft.append(f"v_add_u32 v3, s{S_T0+1}, v2\ns_mul_i32 s{S_T0+1}, s{S_WAVE}, 5120\ns_add_u32 s{S_T0+1}, s{S_T0+1}, {X_R}\n"
                                   f"v_add_u32 v2, s{S_T0+1}, v2")
                    if aft:
                        d["after"] = "\n".join(aft)
                    uses.append(d)
            stages.append(dict(uses=uses, bar="s_barrier" if t else ""))
        LF = self.o.get("LF", 6)
        self.pipeline(stages, LF, 8 - LF, drain=False, wait_every=self.o.get('weF', 2), vis=vis0)
        misc = f"""v_and_b32 v4, 15, v1
        v_mul_u32_u24 v4, 1280, v4
        v_lshrrev_b32 v5, 4, v1
        v_lshl_add_u32 v4, v5, 3, v4
        s_mul_i32 s{S_A}, s{S_ST}, {64*1280}
        s_lshl_b32 s{S_T0+1}, s{S_D}, 5
        s_add_u32 s{S_B}, s{S_A}, s{S_T0+1}
        s_mul_i32 s{S_T0+1}, s{S_DTILE}, 160
        s_add_u32 s{S_A}, s{S_A}, s{S_T0+1}
        s_add_u32 s{S_A}, s{S_A}, 128""".split("\n")
        wr = [f"ds_write_b128 v3, {vr(ACC[1]+4*0,4)} offset:1024", f"ds_write_b128 v3, {vr(ACC[1]+4*1,4)} offset:0",
              f"ds_write_b128 v3, {vr(ACC4[1],4)} offset:4096", f"ds_write_b128 v3, {vr(ACC[1]+4*2,4)} offset:3072",
              f"ds_write_b128 v3, {vr(ACC[1]+4*3,4)} offset:2048"]
        for i_, m in enumerate(late):
            a(m)
            a("\n".join(misc[2*i_:2*i_+2]))
            if i_ >= 1:
                a(wr[i_-1])
        a(wr[4])
        self.stamp(8, 6)
        blocks = [(ACC[0] + 4 * b, b) for b in range(4)] + [(ACC4[0], 0)]
        a("s_waitcnt lgkmcnt(0)\ns_barrier")
        for i_ in range(5):
            a(f"ds_read_b128 {vr(PF+4*i_,4)}, v2 offset:{i_*1024}")
        for r, b in blocks:
            for k in range(4):
                a(f"v_add_f32 v{r+k}, v{BV+b}, v{r+k}")
        for i_, (r, b) in enumerate(blocks):
            a(f"s_mul_i32 s{S_T0}, s{SB+b}, {16*1280}\ns_add_u32 s{S_T0}, s{S_T0}, s{S_A if i_ == 4 else S_B}\ns_waitcnt lgkmcnt({4-i_})")
            for h in (0, 2):
                a(f"v_pk_add_f32 {vr(r+h,2)}, {vr(r+h,2)}, {vr(PF+4*i_+h,2)}")
            a(f"v_cvt_pk_bf16_f32 v{r}, v{r}, v{r+1}\nv_cvt_pk_bf16_f32 v{r+1}, v{r+2}, v{r+3}")
            a(f"buffer_store_dwordx2 {vr(r,2)}, v4, s[{R_OUT}:{R_OUT+3}], s{S_T0} offen")
        if self.stamps or self.o.get("dbg"):
            a("s_waitcnt vmcnt(0)")
            self.stamp(9, 2)
        if self.o.get("calib"):
            a(f"""
            L_cal:
            s_memrealtime s[96:97]
            s_waitcnt lgkmcnt(0)
            s_sub_u32 s96, s96, s98
            s_cmp_lt_u32 s96, {self.o.get("calib")*100}
            s_cbranch_scc1 L_cal
            """)
        a(f"s_or_b32 s{S_T0}, s2, s{S_WAVE}\ns_cmp_lg_u32 s{S_T0}, 0\ns_cbranch_scc1 L_end\ns_mov_b32 s{S_T0}, 0")
        self.flag_store(S_T0, 4)
        a("s_branch L_end")

        a("L_F_u4:")
        if self.stop == "phase1":
            a("s_branch L_end")
        a(f"""
        v_lshlrev_b32 v{VL}, 4, v1
        s_mul_i32 s{S_C}, s{S_DTILE}, {5*UW_ST}
        s_add_u32 s{S_C}, s{S_C}, {UW + 4*UW_ST}
        """)
        self.f_perm()
        self.f0_barrier()
        p4 = None
        if p4:
            for k in range(20):
                if k % 4 == 0:
                    a(f"s_add_u32 s{S_T0}, s{S_C}, {49152 + k*1024}")
                a(f"buffer_load_dwordx4 {vr(64+4*k,4)}, v{VL}, s[{R_WS}:{R_WS+3}], s{S_T0} offen offset:{(k%4)*1024} sc1")
            a(f"v_add_u32 v{VU4}, 0x20000, v{VL}")
        a("s_barrier")

        def u4_issue(iv):
            if iv >= 12 and p4:
                for i in range(4):
                    a(f"ds_write_b128 v{VU4}, {vr(64+16*(iv-12)+4*i,4)} offset:{(iv % 8)*4096 + i*1024}")
                return
            if iv < 12:
                a(self.perm_next(S_T0, S_PERM, 4096) + f"s_mov_b32 m0, {0x20000 + (iv % 8)*4096:#x}\ns_add_u32 s{S_T0}, s{S_T0}, s{S_C}")
            else:
                a(f"s_mov_b32 m0, {0x20000 + (iv % 8)*4096:#x}\ns_add_u32 s{S_T0}, s{S_C}, {iv*4096}")
            for i in range(4):
                a(f"buffer_load_dwordx4 v{VL}, s[{R_WS}:{R_WS+3}], s{S_T0} offen offset:{i*1024} sc1 lds")
        order = []
        for iv in range(8):
            u4_issue(iv)
            order.append(iv)
            if iv == 1:
                a("s_waitcnt vmcnt(4)\ns_barrier")
        for tb in range(1, 17):
            if tb in order:
                a(f"s_waitcnt vmcnt({4*len(order[order.index(tb)+1:])})")
            a("s_waitcnt lgkmcnt(0)\ns_barrier" if p4 and tb >= 7 else "s_barrier")
            iv = tb + (6 if self.o.get("nodrain") else 7)
            if 8 <= iv <= 16:
                u4_issue(iv)
                if not (p4 and iv >= 12):
                    order.append(iv)
        a("s_branch L_end")

        a("L_F_loader:")
        if self.stop == "phase1":
            a("s_branch L_end")
        a(f"v_lshlrev_b32 v{VL}, 4, v1")
        self.f0_barrier()
        nWR = self.o.get("nWR", 0)
        V = self.V_W2
        if nWR:
            a(f"s_waitcnt vmcnt(30)\nv_add_u32 v{VU4}, s{S_B}, v{VL}")
            for k in range(nWR):
                a(self.perm_next(S_T0, S_PERM, 128 * 4096) + f"s_add_u32 s{S_T0}, s{S_T0}, s{S_A}")
                for g in range(2):
                    if g:
                        a(f"s_add_u32 s{S_T0}, s{S_T0}, {4*32768}")
                    for i in range(4):
                        a(f"buffer_load_dwordx4 {vr(64+32*k+16*g+4*i,4)}, v{V+i}, s[{R_W2}:{R_W2+3}], s{S_T0} offen offset:{i*1024}")
            a(f"s_add_u32 s{S_B}, s{S_B}, {nWR*16384}")
        a("s_barrier")
        a(f"""
        s_sub_u32 s{S_T0}, s{S_WAVE}, 5
        s_lshl_b32 s{S_T0}, s{S_T0}, 1
        s_lshl_b32 s{S_T0+1}, s{S_ST}, 2
        s_add_u32 s{S_T0+1}, s{S_T0+1}, s{S_T0}
        s_mul_i32 s{S_C}, s{S_T0+1}, {GO_ST}
        s_add_u32 s{S_C}, s{S_C}, {GO}
        s_lshl_b32 s{S_D}, s{S_T0}, 12
        """)
        assert nWR == 0
        ops = [(iv, 8) for iv in range(8)]
        for tb in range(17):
            last = max(i for i, (iv, _) in enumerate(ops) if iv == tb)
            n = sum(c for _, c in ops[last + 1:])
            a(f"s_waitcnt vmcnt({min(n,63)})\ns_barrier")
            if self.o.get("halfW"):
                if 2 <= tb <= 9:
                    self.w2_half((tb - 2) & 1)
                    ops.append((8 + (tb - 2) // 2, 4))
            elif 2 <= tb <= 5:
                self.w2_issue()
                ops.append((tb + 6, 8))
            if 9 <= tb <= 13:
                iv = tb + 3
                g = iv - 12
                for s2 in range(2):
                    a(f"s_add_u32 m0, s{S_D}, {(iv % 8)*16384 + s2*4096}\ns_add_u32 s{S_T0}, s{S_C}, {s2*GO_ST + g*4096}")
                    for i in range(4):
                        a(f"buffer_load_dwordx4 v{VL}, s[{R_WS}:{R_WS+3}], s{S_T0} offen offset:{i*1024} sc1 lds")
                ops.append((iv, 8))
        a("s_branch L_end")
        a("L_F_poller:")
        if self.stop == "phase1":
            a("s_branch L_end")
        a(f"s_cmp_eq_u32 s{S_FROMA}, 1\ns_cbranch_scc1 L_F_pnowot")
        a(f"s_mul_i32 s{S_T0}, s{S_DTILE}, {FS}\ns_add_u32 s{S_T0}, s{S_T0}, {F_WOT}\nv_mov_b32 v2, s{S_T0}")
        self.poll([2], 4)
        a("s_barrier\nL_F_pnowot:")
        a(f"""
        s_mul_i32 s{S_T0}, s{S_DTILE}, 5
        s_lshr_b32 s{S_T0+1}, s{S_T0}, 3
        s_add_u32 s{S_T0}, s{S_T0}, 4
        s_lshr_b32 s{S_T0}, s{S_T0}, 3
        s_mul_i32 s{S_T0}, s{S_T0}, 24
        s_mul_i32 s{S_T0+1}, s{S_T0+1}, 24
        v_and_b32 v2, 31, v1
        v_min_u32 v2, 23, v2
        v_add_u32 v3, s{S_T0}, v2
        v_add_u32 v2, s{S_T0+1}, v2
        v_cmp_gt_u32 vcc, 32, v1
        s_mul_i32 s{S_T0}, s{S_DTILE}, {FS}
        s_add_u32 s{S_T0}, s{S_T0}, {F_WOT}
        v_cndmask_b32 v2, v2, v3, vcc
        v_mul_u32_u24 v2, {FS}, v2
        v_add_u32 v2, {F_U}, v2
        v_mov_b32 v3, s{S_T0}
        v_cmp_eq_u32 vcc, 63, v1
        s_nop 1
        v_cndmask_b32 v2, v2, v3, vcc
        """)
        self.poll([2], 4)
        self.stamp(6, 4)
        a("s_barrier")
        a(f"""
        v_and_b32 v2, 7, v1
        s_lshr_b32 s{S_T0}, s{S_ST}, 1
        s_lshl_b32 s{S_T0}, s{S_T0}, 3
        v_add_u32 v2, s{S_T0}, v2
        v_mul_u32_u24 v2, {FS}, v2
        v_add_u32 v2, {F_GO}, v2
        """)
        gp = self.o.get("gopoll", 9)
        for tb in range(gp):
            a("s_barrier")
            if tb == 1:
                a(f"s_cmp_eq_u32 s{S_FROMA}, 1\ns_cbranch_scc0 L_F_nogo")
                a(f"s_lshl_b32 s{S_T0}, s{S_MT}, 3\ns_add_u32 s{S_T0}, s{S_T0}, s{S_HG}\ns_mul_i32 s{S_T0}, s{S_T0}, {FS}\ns_add_u32 s{S_T0}, s{S_T0}, {F_GO}")
                self.flag_store(S_T0, 6)
                a("L_F_nogo:")
            if tb == gp - 3:
                a(f"buffer_load_dword v8, v2, s[{R_WS}:{R_WS+3}], 0 offen sc1")
            self.stamp(32 + tb, 4)
        a(f"s_waitcnt vmcnt(0)\nv_cmp_ne_u32 vcc, s{S_TAG}, v8\ns_nop 1\ns_cmp_eq_u64 vcc, 0\ns_cbranch_scc1 L_F_gook")
        self.poll([2], 4)
        a("L_F_gook:")
        self.stamp(7, 4)
        for tb in range(gp, 17):
            a("s_barrier")
            self.stamp(32 + tb, 4)
        a("L_end:")
        if "probe" in self.o or "pc1" in self.o:
            a("""
            s_cmp_eq_u32 s94, 0
            s_cbranch_scc1 L_exit
            L_prb:
            s_memrealtime s[96:97]
            s_waitcnt lgkmcnt(0)
            s_sub_u32 s96, s96, s98
            s_cmp_lt_i32 s96, 4000
            s_cbranch_scc1 L_prb
            """)
        if self.stamps:
            a(f"""
            s_lshl_b32 s{S_T0}, s2, 3
            s_add_u32 s{S_T0}, s{S_T0}, s{S_WAVE}
            s_lshl_b32 s{S_T0}, s{S_T0}, 9
            s_add_u32 s{S_T0}, s{S_T0}, {STAMP}
            v_lshlrev_b32 v2, 3, v1
            buffer_store_dwordx2 v[254:255], v2, s[{R_WS}:{R_WS+3}], s{S_T0} offen
            """)
        a("L_exit:\ns_endpgm")

    def build(self, header):
        a = self.a
        self.prologue()
        self.role_a()
        self.role_b()
        self.helper()
        self.final()
        body = a.text()
        out = header
        out += """; One persistent launch, 256 workgroups (one per CU) x 8 waves (0-3 MFMA, 4-7 loaders / pollers).
"""
        out += f"; @launch grid=(256,1,1) block=(512,1,1) lds={LDS_BYTES}\n"
        out += f'.amdgcn_target "amdgcn-amd-amdhsa--gfx950"\n.text\n.globl {KNAME}\n.p2align 8\n.type {KNAME},@function\n{KNAME}:\n'
        out += body
        out += f""".section .rodata,"a"
.p2align 6
.amdhsa_kernel {KNAME}
  .amdhsa_next_free_vgpr 256
  .amdhsa_next_free_sgpr 102
  .amdhsa_accum_offset 256
  .amdhsa_group_segment_fixed_size 0
  .amdhsa_kernarg_size 96
  .amdhsa_user_sgpr_count 2
  .amdhsa_user_sgpr_kernarg_segment_ptr 1
  .amdhsa_system_sgpr_workgroup_id_x 1
  .amdhsa_float_denorm_mode_32 3
.end_amdhsa_kernel
"""
        return out


def header():
    ref = open("gated_mix__linear_attn_block__mixer_token_mlp__prompt.s.ref").read().split("\n")
    h = []
    for l in ref:
        if l.startswith("; Override"):
            break
        h.append(l)
    return "\n".join(h) + "\n"


if __name__ == "__main__":
    import argparse
    p = argparse.ArgumentParser()
    p.add_argument("-o", default="gated_mix__linear_attn_block__mixer_token_mlp__prompt.s")
    p.add_argument("--stamps", action="store_true")
    p.add_argument("--stop", default=None)
    p.add_argument("--opt", default="")
    args = p.parse_args()
    opts = {k: (int(v) if v != '' else 1) for k, _, v in (x.partition('=') for x in args.opt.split(',') if x)}
    g = Gen(stamps=args.stamps, stop=args.stop, opts=opts)
    open(args.o, "w").write(g.build(header()))
    print("wrote", args.o)
```
